```python
import torch

def _softmax(x, axis=-1):
    return torch.softmax(x, dim=axis)
def _gelu(x):
    return torch.nn.functional.gelu(x, approximate="tanh")
def _silu(x):
    return torch.nn.functional.silu(x)
def _sigmoid(x):
    return torch.sigmoid(x)
def _layernorm(x, axis=-1, eps=1e-5):
    m = x.mean(dim=axis, keepdim=True)
    v = x.var(dim=axis, keepdim=True, unbiased=False)
    return (x - m) / torch.sqrt(v + eps)
def _scatter_add(tgt, idx, src, axis=0):
    return tgt.clone().index_add_(axis, idx, src)
def _segment_sum(src, seg, n):
    out = torch.zeros((n,) + src.shape[1:], dtype=src.dtype)
    return out.index_add_(0, seg, src)
def _pad(x, pw):
    flat = tuple(v for pair in reversed(pw) for v in pair)
    return torch.nn.functional.pad(x, flat)

kernel_name = 'sequential_preLN__mha_block__mixer_token_mlp__prompt'

def setup_inputs():

    _w = (lambda a: (lambda t: t.to(torch.bfloat16) if t.is_floating_point() else t)(torch.as_tensor(a)))
    def _A_setup():
        B, S, D, H = 1, 2048, 448, 16
        return {
            "x": _w((lambda *s: torch.randn(*s, dtype=torch.bfloat16) * 0.05)(B, S, D)),
            "wqkv": _w((lambda *s: torch.randn(*s, dtype=torch.bfloat16) * 0.05)(D, 3 * D)),
            "wo": _w((lambda *s: torch.randn(*s, dtype=torch.bfloat16) * 0.05)(D, D)),
        }
    _A_in = _A_setup()

    def _B_setup():
        B, S, D, F = 1, 2048, 448, 1792
        return {
            "x": _w((lambda *s: torch.randn(*s, dtype=torch.bfloat16) * 0.05)(B, S, D)),
            "w1": _w((lambda *s: torch.randn(*s, dtype=torch.bfloat16) * 0.8)(S, F) * (S ** -0.5)),
            "b1": _w((lambda *s: torch.randn(*s, dtype=torch.bfloat16) * 12.8)(F) * 0.02),
            "w2": _w((lambda *s: torch.randn(*s, dtype=torch.bfloat16) * 0.2)(F, S) * (F ** -0.5)),
            "b2": _w((lambda *s: torch.randn(*s, dtype=torch.bfloat16) * 1.6)(S) * 0.02),
        }
    _B_in = _B_setup()

    return {
        "A_x": _A_in["x"],
        "A_wqkv": _A_in["wqkv"],
        "A_wo": _A_in["wo"],
        "B_x": _B_in["x"],
        "B_w1": _B_in["w1"],
        "B_b1": _B_in["b1"],
        "B_w2": _B_in["w2"],
        "B_b2": _B_in["b2"],
    }

def reference(A_x, A_wqkv, A_wo, B_x, B_w1, B_b1, B_w2, B_b2):
    def _A_ref(x, wqkv, wo):
        B, S, D = x.shape
        H = 16
        Dh = D // H
        qkv = (lambda x, *d: x.permute(*d))((x @ wqkv).reshape(B, S, 3, H, Dh), 2, 0, 3, 1, 4)
        q, k, v = qkv[0], qkv[1], qkv[2]
        scores = torch.einsum("bhqd,bhkd->bhqk", q, k) * (Dh ** -0.5)
        p = _softmax(scores, axis=-1)
        o = torch.einsum("bhqk,bhkd->bhqd", p, v)
        return (lambda x, *d: x.permute(*d))(o, 0, 2, 1, 3).reshape(B, S, D) @ wo

    def _B_ref(x, w1, b1, w2, b2):
        B, S, D = x.shape
        h = _layernorm(x, axis=-1)
        u = torch.einsum("bsd,sf->bdf", h, w1) + b1
        u = _gelu(u)
        y = torch.einsum("bdf,fs->bds", u, w2) + b2
        return (lambda x, *d: x.permute(*d))(y, 0, 2, 1)

    x = A_x
    h = x + _A_ref(_layernorm(x, axis=-1), A_wqkv, A_wo)
    h2 = h + _B_ref(_layernorm(h, axis=-1), B_w1, B_b1, B_w2, B_b2)
    return h2
```

```python
import re

def v(i, n=1):
    return f"v{i}" if n == 1 else f"v[{i}:{i+n-1}]"
def a(i, n=1):
    return f"a{i}" if n == 1 else f"a[{i}:{i+n-1}]"
def s(i, n=1):
    return f"s{i}" if n == 1 else f"s[{i}:{i+n-1}]"

_TRANS = ("v_exp_f32", "v_log_f32", "v_rcp_f32", "v_rsq_f32", "v_sqrt_f32", "v_sin_f32", "v_cos_f32", "v_rcp_iflag_f32",
          "v_exp_f16", "v_rcp_f16")

def _regs(tok):
    tok = tok.strip()
    tok = re.sub(r"^-", "", tok)
    m = re.match(r"^abs\((.*)\)$", tok)
    if m: tok = m.group(1)
    tok = tok.strip("|")
    m = re.match(r"^([vas])(\d+)$", tok)
    if m: return {(m.group(1), int(m.group(2)))}
    m = re.match(r"^([vas])\[(\d+):(\d+)\]$", tok)
    if m: return {(m.group(1), i) for i in range(int(m.group(2)), int(m.group(3)) + 1)}
    if tok == "vcc": return {("s", "vcc")}
    if tok in ("vcc_lo", "vcc_hi"): return {("s", "vcc")}
    if tok in ("exec", "exec_lo", "exec_hi"): return {("s", "exec")}
    if tok == "m0": return {("s", "m0")}
    return set()

class Ins:
    def __init__(self, text):
        self.text = text
        t = text.split(";")[0].strip()
        parts = t.split(None, 1)
        self.op = parts[0]
        rest = parts[1] if len(parts) > 1 else ""
        toks = [x.strip() for x in rest.split(",")] if rest else []
        ops = []
        self.mods = ""
        for i, tk in enumerate(toks):
            w = tk.split()
            if not w: continue
            ops.append(w[0])
            if len(w) > 1: self.mods += " " + " ".join(w[1:])
        self.ops = ops
        op = self.op
        self.kind = "other"
        self.dst = set(); self.src = set(); self.srcC = set(); self.srcAB = set()
        R = [_regs(o) for o in ops]
        if op.startswith("v_mfma") or op.startswith("v_smfmac"):
            self.kind = "mfma"
            self.dst = R[0]; self.srcAB = R[1] | R[2]; self.srcC = R[3] if len(R) > 3 else set()
            self.src = self.srcAB | self.srcC
            self.passes = 8 if "32x32x16" in op else (4 if "16x16x32" in op else (2 if "4x4x4" in op else 16))
        elif op.startswith("v_"):
            self.kind = "valu"
            base = re.sub(r"_(e32|e64|dpp|sdwa)$", "", op)
            self.base = base
            self.trans = base in _TRANS
            self.dpp = op.endswith("_dpp") or "row_" in self.mods or "quad_perm" in self.mods or "wave_" in self.mods
            self.sdwa = op.endswith("_sdwa") or "op_sel" in self.mods and not base.startswith("v_pk_")
            self.dot = base.startswith("v_dot")
            if base.startswith("v_permlane") and "swap" in base:
                self.dst = R[0] | R[1]; self.src = R[0] | R[1]
            elif base in ("v_add_co_u32", "v_sub_co_u32", "v_addc_co_u32", "v_subb_co_u32", "v_div_scale_f32"):
                self.dst = R[0] | R[1]
                for r in R[2:]: self.src |= r
            else:
                self.dst = R[0]
                for r in R[1:]: self.src |= r
                if base in ("v_fmac_f32", "v_dot2c_f32_bf16", "v_writelane_b32") or "UNUSED_PRESERVE" in self.mods or self.dpp:
                    self.src |= R[0]
            if base == "v_cndmask_b32" and len(R) == 3: self.src |= {("s", "vcc")}
        elif op.startswith("ds_"):
            self.kind = "ds"
            if op.startswith("ds_read") or op.startswith("ds_bpermute") or op.startswith("ds_swizzle") or op.startswith("ds_permute") or "_rtn" in op:
                self.dst = R[0]
                for r in R[1:]: self.src |= r
            else:
                for r in R: self.src |= r
        elif op.startswith("buffer_") or op.startswith("global_"):
            self.kind = "vmem"
            self.lds = " lds" in (" " + self.mods + " ").replace(" lds ", " lds ") and re.search(r"\blds\b", self.mods) is not None or "load_lds" in op
            self.wide_store = False
            if "load" in op and not self.lds:
                self.dst = R[0]
                for r in R[1:]: self.src |= r
            else:
                for r in R: self.src |= r
                if "atomic" in op and "sc0" in self.mods: self.dst = R[0]
                if "store" in op and ("x3" in op or "x4" in op):
                    self.wide_store = True
                    self.data = R[0] if op.startswith("buffer_") else R[1]
            if self.lds: self.src |= {("s", "m0")}
        elif op.startswith("s_"):
            self.kind = "salu"
            if op in ("s_nop", "s_waitcnt", "s_barrier", "s_endpgm", "s_branch", "s_sleep", "s_setprio") or op.startswith("s_cbranch") or op.startswith("s_cmp") or op.startswith("s_bitcmp"):
                for r in R: self.src |= r
            else:
                if R: self.dst = R[0]
                for r in R[1:]: self.src |= r
                if "saveexec" in op: self.dst |= {("s", "exec")}
    def states(self):
        if self.op == "s_nop": return int(self.ops[0], 0) + 1
        return 1

def _need(p, c):
    n = 0
    vd = {r for r in p.dst if r[0] in "va"}
    sd = {r for r in p.dst if r[0] == "s"}
    if p.kind == "valu":
        if c.kind == "mfma" and vd & c.src: n = max(n, 2 if not p.dot else 3)
        if c.kind == "valu":
            if p.trans and not c.trans and vd & c.src: n = max(n, 1)
            if (c.base.startswith("v_permlane") or c.dpp) and vd & c.src: n = max(n, 2)
            if c.base in ("v_readlane_b32", "v_readfirstlane_b32") and vd & c.src: n = max(n, 1)
            if sd & c.src: n = max(n, 4 if c.base in ("v_readlane_b32", "v_writelane_b32") else 2)
            if p.sdwa and vd & (c.src | c.dst): n = max(n, 1)
            if p.dot and vd & (c.src | c.dst):
                if c.base == p.base:
                    ab = set()
                    for o in c.ops[1:3]: ab |= _regs(o)
                    if vd & ab: n = max(n, 3)
                else: n = max(n, 3)
        if p.dot and c.kind in ("ds", "vmem") and vd & c.src: n = max(n, 3)
        if c.kind == "vmem" and sd & c.src: n = max(n, 5)
        if c.kind == "salu" and sd & c.src: n = max(n, 1)
    if p.kind == "mfma":
        P = p.passes
        big = {2: 5, 4: 8, 8: 12, 16: 20}[P]
        if c.kind == "mfma":
            if p.dst & c.srcAB: n = max(n, big)
            if p.dst & c.srcC:
                if p.dst == c.srcC and c.passes == P: n = max(n, 2 if P == 2 else 0)
                else: n = max(n, {2: 4, 4: 6, 8: 10, 16: 18}[P])
            elif p.dst & c.dst: n = max(n, big)
        elif c.kind in ("valu", "ds", "vmem"):
            if p.dst & (c.src | c.dst): n = max(n, big)
            if c.kind == "valu" and p.srcC & c.dst: n = max(n, {2: 1, 4: 3, 8: 7, 16: 15}[P])
    if p.kind == "salu":
        if ("s", "m0") in p.dst and c.kind == "vmem" and c.lds: n = max(n, 1)
    if p.kind == "vmem" and getattr(p, "wide_store", False):
        if c.kind in ("valu",) and p.data & c.dst: n = max(n, 2)
        elif c.kind in ("mfma", "ds", "vmem") and p.data & c.dst: n = max(n, 1)
    return n

def fix_hazards(lines):
    back = {}
    for _pass in range(3):
        out = []
        hists = [[]]
        pend = {}
        seen = set()
        newback = {}
        nadded = 0
        for line in lines:
            t = line.split(";")[0].strip()
            if not t or t.startswith("."):
                out.append(line); continue
            if t.endswith(":"):
                lab = t[:-1]
                seen.add(lab)
                hists = hists + pend.pop(lab, []) + back.get(lab, [])
                out.append(line); continue
            c = Ins(t)
            need = 0
            for hist in hists:
                dist = 0
                for p in reversed(hist):
                    if dist >= 20: break
                    need = max(need, _need(p, c) - dist)
                    dist += p.states()
            add = []
            while need > 0:
                k = min(need, 16)
                add.append(Ins(f"s_nop {k-1}")); out.append(f"    s_nop {k-1}"); need -= k; nadded += 1
            out.append(line); add.append(c)
            nh = []
            keys = set()
            for hist in hists:
                h = (hist + add)[-24:]
                key = tuple(id(x) for x in h)
                if key not in keys:
                    keys.add(key); nh.append(h)
            hists = nh
            if c.op.startswith("s_cbranch") or c.op == "s_branch":
                lab = c.ops[0]
                if lab in seen: newback.setdefault(lab, []).extend([list(h) for h in hists])
                else: pend.setdefault(lab, []).extend([list(h) for h in hists])
                if c.op == "s_branch": hists = [[]]
            if c.op == "s_endpgm": hists = [[]]
        back = newback
    return out, nadded

class Asm:
    def __init__(self):
        self.l = []
        self.uid = 0
    def __call__(self, s):
        for line in s.split("\n"):
            line = line.strip()
            if line:
                self.l.append(("" if line.endswith(":") else "    ") + line)
    def label(self, base="L"):
        self.uid += 1
        return f"{base}_{self.uid}"
    def text(self, fix=True):
        l = self.l
        if fix:
            l, n = fix_hazards(l)
        return "\n".join(l) + "\n"

def kernel_header(name):
    return f""".globl {name}
.p2align 8
.type {name},@function
{name}:
"""

def kernel_desc(name, vgpr, sgpr=102, accum=None):
    if accum is None:
        accum = (min(vgpr, 256) + 3) // 4 * 4
    return f""".p2align 6
.amdhsa_kernel {name}
  .amdhsa_next_free_vgpr {vgpr}
  .amdhsa_next_free_sgpr {sgpr}
  .amdhsa_accum_offset {accum}
  .amdhsa_group_segment_fixed_size 0
  .amdhsa_kernarg_size 88
  .amdhsa_user_sgpr_count 2
  .amdhsa_user_sgpr_kernarg_segment_ptr 1
  .amdhsa_system_sgpr_workgroup_id_x 1
.end_amdhsa_kernel
"""
```

```python
import sys, struct, math
from asmlib import *

S, D, H, DH, F = 2048, 448, 16, 28, 1792
MB = 1 << 20
WS_Q, WS_KV, WS_O, WS_H, WS_HH, WS_G = 0, 2*MB, 6*MB, 8*MB, 10*MB, 12*MB
WS_SIZE = 16*MB
EPS = 1e-5
def f2u(x): return struct.unpack("<I", struct.pack("<f", x))[0]
def hx(x): return f"0x{x & 0xffffffff:08x}"
def fl(x): return hx(f2u(x))
MFMA = "v_mfma_f32_32x32x16_bf16"

class Cnt:
    def __init__(self, A, name, mx):
        self.A, self.name, self.mx, self.q = A, name, mx, []
    def issue(self, tag): self.q.append(tag)
    def wait(self, tag):
        idx = [i for i, t in enumerate(self.q) if t == tag]
        if not idx: return
        n = len(self.q) - 1 - idx[-1]
        assert n <= self.mx, (self.name, n)
        self.A(f"s_waitcnt {self.name}({n})")
        self.q = self.q[idx[-1] + 1:]
    def wait_all(self):
        self.A(f"s_waitcnt {self.name}(0)"); self.q = []

P_X, P_WQKV, P_WO, P_W1, P_B1, P_W2, P_B2, P_OUT, P_DBG, P_WS = 8, 10, 12, 16, 18, 20, 22, 24, 26, 28
SW = 46

def prologue(A, nwg, end):
    A(f"s_cmp_ge_u32 s2, {nwg}\ns_cbranch_scc1 {end}")
    A("s_load_dwordx16 s[8:23], s[0:1], 0\ns_load_dwordx4 s[24:27], s[0:1], 64\ns_load_dwordx2 s[28:29], s[0:1], 80")
    A(f"v_and_b32 v1, 63, v0\nv_lshrrev_b32 v2, 6, v0\nv_readfirstlane_b32 s{SW}, v2")

def srd(A, d, p, size):
    A(f"s_mov_b32 s{d}, s{p}\ns_mov_b32 s{d+1}, s{p+1}\ns_mov_b32 s{d+2}, {size}\ns_mov_b32 s{d+3}, 0x20000")

def halfsum(A, x, t):
    A(f"v_mov_b32 v{t}, v{x}\nv_permlane32_swap_b32 v{x}, v{t}\nv_add_f32 v{x}, v{x}, v{t}")

def set_exec(A, mask):
    A(f"s_mov_b32 exec_lo, {hx(mask)}\ns_mov_b32 exec_hi, {hx(mask >> 32)}")

def k1():
    A = Asm(); vm = Cnt(A, "vmcnt", 63); lg = Cnt(A, "lgkmcnt", 15)
    END = "K1_END"
    XB = 448*192; CSB = XB + 4*14336; SCR = CSB + 1536; LDS = SCR + 4*512
    prologue(A, 256, END)
    sH, sI, sBH, sCO, sXO, sM, sT = 44, 45, 47, 48, 49, 50, 51
    A(f"s_and_b32 s{sH}, s2, 7\ns_lshl_b32 s{sH}, s{sH}, 1\ns_bfe_u32 s{sT}, s2, 0x10003\ns_add_u32 s{sH}, s{sH}, s{sT}\ns_lshr_b32 s{sI}, s2, 4")
    A(f"s_mul_i32 s{sBH}, s{sH}, 56\ns_and_b32 s{sCO}, s{sBH}, 15\ns_and_b32 s{sBH}, s{sBH}, 0xfffffff0")
    XF, AQ, AK, AV, WF = 16, 128, 144, 160, 176
    VX = list(range(200, 207)); VW = [207, 208, 209]; VXA = [210, 211]; VWR = [212, 213]
    SQ = [214, 215]; SM = [216, 217]; CS = [218, 219, 220]; T0, T1, T2, T3 = 221, 222, 223, 224
    ONES = 52
    A(f"s_mov_b32 s{ONES}, 0x3f803f80")
    for j in range(7):
        A(f"v_add_u32 v{T0}, {64*j}, v1\nv_mul_u32_u24 v{T1}, 2341, v{T0}\nv_lshrrev_b32 v{T1}, 16, v{T1}")
        A(f"v_mul_u32_u24 v{T2}, 28, v{T1}\nv_sub_u32 v{T0}, v{T0}, v{T2}")
        A(f"v_bfe_u32 v{T2}, v{T1}, 2, 2\nv_xor_b32 v{T0}, v{T0}, v{T2}\nv_mul_u32_u24 v{T1}, 896, v{T1}")
        A(f"v_lshl_add_u32 v{VX[j]}, v{T0}, 4, v{T1}")
    A("s_waitcnt lgkmcnt(0)")
    srd(A, 32, P_X, S*D*2); srd(A, 36, P_WQKV, D*3*D*2); srd(A, 40, P_WS, WS_SIZE)
    A(f"s_lshl_b32 s{sXO}, s{sI}, 2\ns_add_u32 s{sXO}, s{sXO}, s{SW}\ns_mul_i32 s{sXO}, s{sXO}, {32*896}")
    A(f"s_mul_i32 s{sM}, s{SW}, 14336\ns_add_u32 s{sM}, s{sM}, {XB}")
    def xdma(half):
        for j in range(14):
            A(f"s_add_u32 m0, s{sM}, {j*1024}\ns_add_u32 s{sT}, s{sXO}, {(j//7)*16*896 + half*448}")
            A(f"buffer_load_dwordx4 v{VX[j%7]}, s[32:35], s{sT} offen lds"); vm.issue(f"x{half}")
    xdma(0)
    for j in range(3):
        A(f"v_add_u32 v{T0}, {256*j}, v0\nv_mul_u32_u24 v{T1}, 5462, v{T0}\nv_lshrrev_b32 v{T1}, 16, v{T1}")
        A(f"v_mul_u32_u24 v{T2}, 12, v{T1}\nv_sub_u32 v{T0}, v{T0}, v{T2}")
        A(f"v_lshrrev_b32 v{T2}, 2, v{T0}\nv_mul_u32_u24 v{T2}, 896, v{T2}\nv_and_b32 v{T0}, 3, v{T0}\nv_lshl_add_u32 v{T2}, v{T0}, 4, v{T2}")
        A(f"v_mul_u32_u24 v{T1}, 2688, v{T1}\nv_add_u32 v{VW[j]}, v{T1}, v{T2}")
    sWM = 53
    A(f"s_lshl_b32 s{sWM}, s{SW}, 10")
    def wdma(j0, j1):
        for j in range(j0, j1):
            A(f"s_add_u32 m0, s{sWM}, {j*4096}\ns_add_u32 s{sT}, s{sBH}, {(j//3)*64*2688}")
            A(f"buffer_load_dwordx4 v{VW[j%3]}, s[36:39], s{sT} offen lds"); vm.issue(f"w{j}")
    wdma(0, 11)
    A(f"v_and_b32 v{T0}, 31, v1\nv_lshrrev_b32 v{T1}, 5, v1\nv_bfe_u32 v{T2}, v{T0}, 2, 2\nv_mul_u32_u24 v{T0}, 448, v{T0}\nv_add_u32 v{T0}, s{sM}, v{T0}")
    for par in range(2):
        A(f"v_add_u32 v{T3}, {2*par}, v{T1}\nv_xor_b32 v{T3}, v{T3}, v{T2}\nv_lshl_add_u32 v{VXA[par]}, v{T3}, 4, v{T0}")
    A(f"v_bfe_u32 v{T0}, v1, 2, 2\nv_lshl_add_u32 v{T0}, v{T1}, 3, v{T0}\nv_mul_u32_u24 v{T0}, 192, v{T0}")
    A(f"v_bfe_u32 v{T2}, v1, 4, 1\nv_lshl_add_u32 v{T0}, v{T2}, 5, v{T0}\nv_and_b32 v{T2}, 3, v1\nv_lshl_add_u32 v{T0}, v{T2}, 3, v{T0}")
    A(f"v_add_u32 v{VWR[0]}, s{sCO}, v{T0}\nv_add_u32 v{VWR[1]}, {14*3072}, v{VWR[0]}")
    for r in SQ + SM + CS: A(f"v_mov_b32 v{r}, 0")
    def xread(half):
        for ks in range(14):
            A(f"ds_read_b128 {v(XF + (half*14+ks)*4, 4)}, v{VXA[ks&1]} offset:{(ks>>1)*64}")
        A("s_waitcnt lgkmcnt(0)")
    vm.wait("x0"); xread(0)
    xdma(1); wdma(11, 21)
    def wread(ks):
        b = WF + (ks & 1)*12
        for sec in range(3):
            for half in range(2):
                A(f"ds_read_b64_tr_b16 {v(b + sec*4 + half*2, 2)}, v{VWR[ks//14]} offset:{(ks%14)*3072 + half*768 + sec*64}")
                lg.issue(f"w{ks}")
    def stage(k0, k1_):
        wread(k0)
        for ks in range(k0, k1_):
            if ks + 1 < k1_: wread(ks + 1)
            lg.wait(f"w{ks}")
            b = WF + (ks & 1)*12; x = XF + ks*4
            c = lambda acc: "0" if ks == 0 else v(acc, 16)
            A(f"{MFMA} {v(AQ,16)}, {v(b,4)}, {v(x,4)}, {c(AQ)}")
            for j in range(4): A(f"v_dot2_f32_bf16 v{SQ[j&1]}, v{x+j}, v{x+j}, v{SQ[j&1]}")
            A(f"{MFMA} {v(AK,16)}, {v(b+4,4)}, {v(x,4)}, {c(AK)}")
            for j in range(4): A(f"v_dot2_f32_bf16 v{SM[j&1]}, v{x+j}, s{ONES}, v{SM[j&1]}")
            A(f"{MFMA} {v(AV,16)}, {v(x,4)}, {v(b+8,4)}, {c(AV)}")
            L = A.label("K1_cs")
            A(f"s_cmp_lg_u32 s{SW}, {ks & 3}\ns_cbranch_scc1 {L}")
            for j in range(4):
                for sec in range(3): A(f"v_dot2_f32_bf16 v{CS[sec]}, v{b+sec*4+j}, s{ONES}, v{CS[sec]}")
            A(f"{L}:")
    vm.wait("w10"); A("s_barrier"); stage(0, 14)
    vm.wait("w15"); A("s_barrier"); xread(1); stage(14, 21)
    vm.wait_all(); A("s_barrier"); stage(21, 28)
    sq, sm = SQ[0], SM[0]
    A(f"v_add_f32 v{sq}, v{SQ[0]}, v{SQ[1]}\nv_add_f32 v{sm}, v{SM[0]}, v{SM[1]}")
    halfsum(A, sq, T0); halfsum(A, sm, T1)
    for sec in range(3): halfsum(A, CS[sec], T0 + sec)
    A(f"v_and_b32 v{T0}, 31, v1\nv_lshlrev_b32 v{T0}, 4, v{T0}\ns_lshl_b32 s{sT}, s{SW}, 2\ns_add_u32 s{sT}, s{sT}, {CSB}\nv_add_u32 v{T1}, s{sT}, v{T0}")
    for sec in range(3): A(f"ds_write_b32 v{T1}, v{CS[sec]} offset:{sec*512}")
    RS, NMR = SQ[1], SM[1]
    A(f"v_mul_f32 v{sm}, {fl(1.0/D)}, v{sm}\nv_mul_f32 v{sq}, {fl(1.0/D)}, v{sq}\nv_fma_f32 v{sq}, -v{sm}, v{sm}, v{sq}")
    A(f"v_max_f32 v{sq}, 0, v{sq}\nv_add_f32 v{sq}, {fl(EPS)}, v{sq}\nv_rsq_f32 v{RS}, v{sq}\nv_mul_f32 v{NMR}, v{sm}, v{RS}\nv_sub_f32 v{NMR}, 0, v{NMR}")
    sHI = 54
    A(f"s_mov_b32 s{sHI}, 0\ns_mov_b32 s{sHI+1}, -1")
    VSC = VX[0]; VSR = VX[1]
    A(f"s_lshl_b32 s{sT}, s{SW}, 9\ns_add_u32 s{sT}, s{sT}, {SCR}\nv_lshl_add_u32 v{VSC}, v1, 2, s{sT}")
    A(f"v_cndmask_b32 v{T2}, v{RS}, v{NMR}, s[{sHI}:{sHI+1}]\nds_write_b32 v{VSC}, v{T2}")
    A(f"v_lshrrev_b32 v{T2}, 5, v1\nv_lshl_add_u32 v{VSR}, v{T2}, 4, s{sT}")
    A("s_waitcnt lgkmcnt(0)\ns_barrier")
    A(f"v_add_u32 v{T0}, {CSB}, v{T0}")
    TB = XF
    for sec in range(3): A(f"ds_read_b128 {v(TB+sec*4,4)}, v{T0} offset:{sec*512}")
    RSV, NMV, CQ, CK = TB+16, TB+32, TB+48, TB+64
    for g in range(4):
        A(f"ds_read_b128 {v(RSV+g*4,4)}, v{VSR} offset:{g*32}\nds_read_b128 {v(NMV+g*4,4)}, v{VSR} offset:{128+g*32}")
    A("s_waitcnt lgkmcnt(8)")
    for sec in range(3):
        b = TB+sec*4
        A(f"v_add_f32 v{b}, v{b}, v{b+1}\nv_add_f32 v{b+2}, v{b+2}, v{b+3}\nv_add_f32 v{CS[sec]}, v{b}, v{b+2}")
    A(f"v_cndmask_b32 v{T2}, v{CS[0]}, v{CS[1]}, s[{sHI}:{sHI+1}]\nds_write_b32 v{VSC}, v{T2} offset:256")
    A("s_waitcnt lgkmcnt(0)")
    for g in range(4):
        A(f"ds_read_b128 {v(CQ+g*4,4)}, v{VSR} offset:{256+g*32}\nds_read_b128 {v(CK+g*4,4)}, v{VSR} offset:{384+g*32}")
    PK = TB + 80
    for r in range(16):
        A(f"v_mul_f32 v{NMV+r}, v{NMV+r}, v{CS[2]}\nv_fma_f32 v{AV+r}, v{AV+r}, v{RSV+r}, v{NMV+r}")
    for r in range(8): A(f"v_cvt_pk_bf16_f32 v{PK+16+r}, v{AV+2*r}, v{AV+2*r+1}")
    A("s_waitcnt lgkmcnt(0)")
    QS = DH ** -0.5 * math.log2(math.e)
    A(f"v_mul_f32 v{T0}, {fl(QS)}, v{RS}\nv_mul_f32 v{T1}, {fl(QS)}, v{NMR}")
    for r in range(16):
        A(f"v_mul_f32 v{CQ+r}, v{CQ+r}, v{T1}\nv_fma_f32 v{AQ+r}, v{AQ+r}, v{T0}, v{CQ+r}")
        A(f"v_mul_f32 v{CK+r}, v{CK+r}, v{NMR}\nv_fma_f32 v{AK+r}, v{AK+r}, v{RS}, v{CK+r}")
    for r in range(8):
        A(f"v_cvt_pk_bf16_f32 v{PK+r}, v{AQ+2*r}, v{AQ+2*r+1}\nv_cvt_pk_bf16_f32 v{PK+8+r}, v{AK+2*r}, v{AK+2*r+1}")
    set_exec(A, 0xFFFFFFFF00000000)
    A(f"v_mov_b32 v{PK+6}, 0\nv_mov_b32 v{PK+7}, 0\nv_mov_b32 v{PK+14}, s{ONES}\nv_mov_b32 v{PK+15}, 0x3f80")
    set_exec(A, 0x1000000010000000)
    for r in range(8): A(f"v_mov_b32 v{PK+16+r}, s{ONES}")
    set_exec(A, 0xE0000000E0000000)
    for r in range(8): A(f"v_mov_b32 v{PK+16+r}, 0")
    A("s_mov_b64 exec, -1")
    A(f"s_lshl_b32 s{sT}, s{sH}, 6\ns_lshl_b32 s{sM}, s{sI}, 2\ns_add_u32 s{sT}, s{sT}, s{sM}\ns_add_u32 s{sT}, s{sT}, s{SW}")
    A(f"s_lshl_b32 s{sM}, s{sT}, 11\ns_lshl_b32 s{sT}, s{sT}, 12\ns_add_u32 s{sT}, s{sT}, {WS_KV}\nv_lshlrev_b32 v{T0}, 4, v1")
    for f in range(2): A(f"buffer_store_dwordx4 {v(PK+4*f,4)}, v{T0}, s[40:43], s{sM} offen offset:{f*1024}")
    for f in range(4): A(f"buffer_store_dwordx4 {v(PK+8+4*f,4)}, v{T0}, s[40:43], s{sT} offen offset:{f*1024}")
    A(f"{END}:\ns_endpgm")
    return A, 228, LDS

def k2():
    A = Asm(); vm = Cnt(A, "vmcnt", 63)
    END = "K2_END"
    FLG = 4*3*4096; MXB = FLG + 64; LDS = MXB + 4*512
    prologue(A, 256, END)
    sH, sI, sT, sKV, sRETRY, sU, sHI = 44, 45, 47, 48, 49, 50, 52
    A(f"s_and_b32 s{sH}, s2, 7\ns_lshl_b32 s{sH}, s{sH}, 1\ns_bfe_u32 s{sT}, s2, 0x10003\ns_add_u32 s{sH}, s{sH}, s{sT}\ns_lshr_b32 s{sI}, s2, 4")
    Q, O, SS, PP, KV, K0 = 16, 48, [112, 128], [144, 152], 160, 224
    M = [232, 233, 234, 235]; VL, T0, T1, T2, T3 = 236, 237, 238, 239, 240
    A(f"v_lshlrev_b32 v{VL}, 4, v1\ns_mov_b32 s{sRETRY}, 0\ns_mov_b32 s{sHI}, 0\ns_mov_b32 s{sHI+1}, -1")
    A("s_waitcnt lgkmcnt(0)")
    srd(A, 40, P_WS, WS_SIZE)
    A(f"s_lshl_b32 s{sKV}, s{sH}, 18\ns_add_u32 s{sKV}, s{sKV}, {WS_KV}")
    for f in range(2): A(f"buffer_load_dwordx4 {v(K0+4*f,4)}, v{VL}, s[40:43], s{sKV} offen offset:{f*1024}")
    for t in range(4):
        A(f"s_add_u32 s{sT}, s{SW}, {t}\ns_and_b32 s{sT}, s{sT}, 3\ns_lshl_b32 s{sU}, s{sI}, 2\ns_add_u32 s{sT}, s{sT}, s{sU}\ns_lshl_b32 s{sU}, s{sH}, 6\ns_add_u32 s{sT}, s{sT}, s{sU}\ns_lshl_b32 s{sT}, s{sT}, 11")
        for f in range(2): A(f"buffer_load_dwordx4 {v(Q+8*t+4*f,4)}, v{VL}, s[40:43], s{sT} offen offset:{f*1024}")
    A(f"s_lshl_b32 s{sT}, s{SW}, 16\ns_add_u32 s{sKV}, s{sKV}, s{sT}")
    A("s_waitcnt vmcnt(0)")
    def tilemax(sreg, dst):
        A(f"v_max3_f32 v{T0}, v{sreg}, v{sreg+1}, v{sreg+2}\nv_max3_f32 v{T1}, v{sreg+3}, v{sreg+4}, v{sreg+5}")
        A(f"v_max3_f32 v{T0}, v{T0}, v{sreg+6}, v{sreg+7}\nv_max3_f32 v{T1}, v{T1}, v{sreg+8}, v{sreg+9}")
        A(f"v_max3_f32 v{T0}, v{T0}, v{sreg+10}, v{sreg+11}\nv_max3_f32 v{T1}, v{T1}, v{sreg+12}, v{sreg+13}")
        A(f"v_max3_f32 v{T0}, v{T0}, v{sreg+14}, v{sreg+15}")
        return T0, T1
    for t in range(4):
        A(f"{MFMA} {v(O+16*t,16)}, {v(K0,4)}, {v(Q+8*t,4)}, 0\n{MFMA} {v(O+16*t,16)}, {v(K0+4,4)}, {v(Q+8*t+4,4)}, {v(O+16*t,16)}")
    for t in range(4):
        tilemax(O+16*t, M[t])
        A(f"v_max_f32 v{M[t]}, v{T0}, v{T1}\nv_mov_b32 v{T2}, v{M[t]}\nv_permlane32_swap_b32 v{M[t]}, v{T2}\nv_max_f32 v{M[t]}, v{M[t]}, v{T2}")
    A("K2_MAIN:")
    def kvload(n):
        A(f"s_add_u32 s{sT}, s{sKV}, {n*4096}")
        for f in range(4):
            A(f"buffer_load_dwordx4 {v(KV+16*(n&3)+4*f,4)}, v{VL}, s[40:43], s{sT} offen offset:{f*1024}"); vm.issue(f"kv{n}")
    for n in range(4): kvload(n)
    for t in range(4):
        A(f"v_sub_f32 v{T0}, 0, v{M[t]}\nv_and_b32 v{T1}, 0xffff0000, v{T0}\nv_sub_f32 v{T0}, v{T0}, v{T1}")
        A(f"v_and_b32 v{T2}, 0xffff0000, v{T0}\nv_sub_f32 v{T0}, v{T0}, v{T2}\nv_lshrrev_b32 v{T0}, 16, v{T0}")
        A(f"v_lshrrev_b32 v{T1}, 16, v{T1}\nv_or_b32 v{T1}, v{T1}, v{T2}")
        A(f"v_cndmask_b32 v{Q+8*t+6}, v{Q+8*t+6}, v{T1}, s[{sHI}:{sHI+1}]\nv_cndmask_b32 v{Q+8*t+7}, v{Q+8*t+7}, v{T0}, s[{sHI}:{sHI+1}]")
    def qk(idx, part):
        n, t = idx >> 2, idx & 3
        sr = SS[idx & 1]; k = KV + 16*(n & 3)
        return f"{MFMA} {v(sr,16)}, {v(k+4*part,4)}, {v(Q+8*t+4*part,4)}, {'0' if part == 0 else v(sr,16)}"
    def pv(idx, part):
        n, t = idx >> 2, idx & 3
        k = KV + 16*(n & 3) + 8; o = O + 16*t
        return f"{MFMA} {v(o,16)}, {v(k+4*part,4)}, {v(PP[idx&1]+4*part,4)}, {'0' if (n == 0 and part == 0) else v(o,16)}"
    vm.wait("kv0")
    A(qk(0, 0)); A(qk(0, 1))
    NI = 64
    for idx in range(NI):
        n, t = idx >> 2, idx & 3
        if t == 3 and n + 1 < 16: vm.wait(f"kv{n+1}")
        mf = [qk(idx+1, 0) if idx+1 < NI else None, pv(idx-1, 0) if idx > 0 else None,
              qk(idx+1, 1) if idx+1 < NI else None, pv(idx-1, 1) if idx > 0 else None]
        sr, p = SS[idx & 1], PP[idx & 1]
        for q in range(4):
            if mf[q]: A(mf[q])
            for j in range(4): A(f"v_exp_f32 v{sr+4*q+j}, v{sr+4*q+j}")
            if q > 0:
                for j in range(2): A(f"v_cvt_pk_bf16_f32 v{p+2*(q-1)+j}, v{sr+4*(q-1)+2*j}, v{sr+4*(q-1)+2*j+1}")
        if t == 0 and n >= 1 and n + 3 < 16: kvload(n + 3)
        for j in range(2): A(f"v_cvt_pk_bf16_f32 v{p+6+j}, v{sr+12+2*j}, v{sr+12+2*j+1}")
    A(pv(NI-1, 0)); A(pv(NI-1, 1))
    A(f"s_mov_b32 s{sT}, {fl(2.0**30)}")
    A(f"v_cmp_nlt_f32 s[54:55], v{O+12}, s{sT}\nv_cmp_nlt_f32 s[56:57], v{O+28}, s{sT}\nv_cmp_nlt_f32 s[58:59], v{O+44}, s{sT}\nv_cmp_nlt_f32 s[60:61], v{O+60}, s{sT}")
    A("s_or_b32 s55, s55, s57\ns_or_b32 s59, s59, s61\ns_or_b32 s55, s55, s59")
    A(f"v_mov_b32 v{T0}, s55\ns_lshl_b32 s{sT}, s{SW}, 2\ns_add_u32 s{sT}, s{sT}, {FLG}\nv_mov_b32 v{T1}, s{sT}\nds_write_b32 v{T1}, v{T0}")
    for t in range(1, 4):
        A(f"s_add_u32 s{sT}, s{SW}, {t}\ns_and_b32 s{sT}, s{sT}, 3\ns_mul_i32 s{sT}, s{sT}, 12288\nv_add_u32 v{T2}, s{sT}, v{VL}")
        for g in range(4): A(f"ds_write_b128 v{T2}, {v(O+16*t+4*g,4)} offset:{(t-1)*4096 + g*1024}")
    A("s_waitcnt lgkmcnt(0)\ns_barrier")
    A(f"v_mov_b32 v{T1}, {FLG}\nds_read_b128 {v(K0,4)}, v{T1}")
    A(f"s_mul_i32 s{sT}, s{SW}, 12288\nv_add_u32 v{T2}, s{sT}, v{VL}")
    for t in range(1, 4):
        for g in range(4): A(f"ds_read_b128 {v(O+16*t+4*g,4)}, v{T2} offset:{(t-1)*4096 + g*1024}")
    A("s_waitcnt lgkmcnt(12)")
    A(f"v_or3_b32 v{K0}, v{K0}, v{K0+1}, v{K0+2}\nv_or_b32 v{K0}, v{K0}, v{K0+3}\nv_readfirstlane_b32 s{sT}, v{K0}")
    A(f"s_cmp_eq_u32 s{sT}, 0\ns_cbranch_scc1 K2_FIN\ns_cmp_lg_u32 s{sRETRY}, 0\ns_cbranch_scc1 K2_FIN")
    A(f"s_mov_b32 s{sRETRY}, 1\ns_waitcnt lgkmcnt(0)")
    for t in range(4):
        A(f"v_cndmask_b32 v{Q+8*t+6}, v{Q+8*t+6}, 0, s[{sHI}:{sHI+1}]\nv_cndmask_b32 v{Q+8*t+7}, v{Q+8*t+7}, 0, s[{sHI}:{sHI+1}]\nv_mov_b32 v{M[t]}, 0xff800000")
    A(f"s_mov_b32 s{sU}, 0\nK2_MAXLOOP:")
    A(f"s_add_u32 s{sT}, s{sKV}, s{sU}")
    for f in range(2): A(f"buffer_load_dwordx4 {v(K0+4*f,4)}, v{VL}, s[40:43], s{sT} offen offset:{f*1024}")
    A("s_waitcnt vmcnt(0)")
    for t in range(4):
        A(f"{MFMA} {v(O+16*t,16)}, {v(K0,4)}, {v(Q+8*t,4)}, 0\n{MFMA} {v(O+16*t,16)}, {v(K0+4,4)}, {v(Q+8*t+4,4)}, {v(O+16*t,16)}")
    for t in range(4):
        tilemax(O+16*t, M[t]); A(f"v_max3_f32 v{M[t]}, v{M[t]}, v{T0}, v{T1}")
    A(f"s_add_u32 s{sU}, s{sU}, 4096\ns_cmp_lt_u32 s{sU}, 65536\ns_cbranch_scc1 K2_MAXLOOP")
    A(f"v_and_b32 v{T3}, 31, v1\nv_lshlrev_b32 v{T3}, 4, v{T3}")
    for t in range(4):
        A(f"v_mov_b32 v{T2}, v{M[t]}\nv_permlane32_swap_b32 v{M[t]}, v{T2}\nv_max_f32 v{M[t]}, v{M[t]}, v{T2}")
        A(f"s_add_u32 s{sT}, s{SW}, {t}\ns_and_b32 s{sT}, s{sT}, 3\ns_lshl_b32 s{sT}, s{sT}, 9\ns_add_u32 s{sT}, s{sT}, {MXB}\ns_lshl_b32 s{sU}, s{SW}, 2\ns_add_u32 s{sU}, s{sU}, s{sT}")
        A(f"v_add_u32 v{K0+t}, s{sT}, v{T3}\nv_add_u32 v{T2}, s{sU}, v{T3}\nds_write_b32 v{T2}, v{M[t]}")
    A("s_waitcnt lgkmcnt(0)\ns_barrier")
    for t in range(4): A(f"ds_read_b128 {v(O+4*t,4)}, v{K0+t}")
    A("s_waitcnt lgkmcnt(0)")
    for t in range(4): A(f"v_max3_f32 v{M[t]}, v{O+4*t}, v{O+4*t+1}, v{O+4*t+2}\nv_max_f32 v{M[t]}, v{M[t]}, v{O+4*t+3}")
    A("s_branch K2_MAIN")
    A("K2_FIN:")
    A("s_waitcnt lgkmcnt(0)")
    for r in range(16):
        A(f"v_add_f32 v{O+r}, v{O+r}, v{O+16+r}\nv_add_f32 v{O+32+r}, v{O+32+r}, v{O+48+r}\nv_add_f32 v{O+r}, v{O+r}, v{O+32+r}")
    A(f"v_mov_b32 v{T0}, v{O+12}\nv_mov_b32 v{T1}, v{O+12}\nv_permlane32_swap_b32 v{T0}, v{T1}\nv_rcp_f32 v{T1}, v{T1}")
    for r in range(16): A(f"v_mul_f32 v{O+r}, v{O+r}, v{T1}")
    for r in range(8): A(f"v_cvt_pk_bf16_f32 v{O+16+r}, v{O+2*r}, v{O+2*r+1}")
    A(f"s_lshl_b32 s{sT}, s{sI}, 2\ns_add_u32 s{sT}, s{sT}, s{SW}\ns_mul_i32 s{sT}, s{sT}, 28672\ns_add_u32 s{sT}, s{sT}, {WS_O}\ns_mul_i32 s{sU}, s{sH}, 7")
    A(f"v_lshrrev_b32 v{T0}, 5, v1\nv_add_u32 v{T0}, s{sU}, v{T0}\nv_and_b32 v{T3}, 31, v1\nv_lshlrev_b32 v{T3}, 4, v{T3}")
    A(f"v_and_b32 v{T1}, 1, v{T0}\nv_lshl_add_u32 v{T3}, v{T1}, 3, v{T3}\nv_lshrrev_b32 v{T0}, 1, v{T0}\nv_lshl_add_u32 v{T3}, v{T0}, 9, v{T3}")
    for g in range(4):
        if g == 3: set_exec(A, 0xFFFFFFFF)
        A(f"buffer_store_dwordx2 {v(O+16+2*g,2)}, v{T3}, s[40:43], s{sT} offen offset:{g*512}")
    A(f"{END}:\ns_endpgm")
    return A, 244, LDS

def gemm64(A, nks, depth, TP, sT0, sR0, sR1, t_is_a, dmap, rotate, tsrd, rsrd, pre=None):
    vm = Cnt(A, "vmcnt", 63); lg = Cnt(A, "lgkmcnt", 15)
    ACC, TF, RF = 16, 80, 96
    VT, VR, VL, T0, T1 = 4, [5, 6], 7, 8, 9
    sM, sX, sY = 60, 61, 62
    A(f"s_mul_i32 s{sM}, s{SW}, {depth*2048}")
    A(f"v_lshrrev_b32 v{T0}, 3, v1\nv_mul_u32_u24 v{T0}, {TP}, v{T0}\nv_bfe_u32 v{T1}, v1, 4, 1\nv_lshlrev_b32 v{T1}, 2, v{T1}\nv_and_b32 v{VT}, 7, v1\nv_xor_b32 v{VT}, v{VT}, v{T1}\nv_lshl_add_u32 v{VT}, v{VT}, 4, v{T0}")
    A(f"v_lshlrev_b32 v{VL}, 4, v1")
    def load(ks):
        slot = ks % depth
        for j in range(2):
            A(f"s_add_u32 m0, s{sM}, {slot*2048 + j*1024}\ns_add_u32 s{sX}, s{sT0}, {(ks*16 + j*8)*TP}")
            A(f"buffer_load_dwordx4 v{VT}, s[{tsrd}:{tsrd+3}], s{sX} offen lds"); vm.issue(ks)
        for j in range(2):
            A(f"s_add_u32 s{sY}, s{[sR0, sR1][j]}, {ks*1024}")
            A(f"buffer_load_dwordx4 {v(RF + slot*8 + j*4, 4)}, v{VL}, s[{rsrd}:{rsrd+3}], s{sY} offen"); vm.issue(ks)
    for ks in range(min(depth, nks)): load(ks)
    if pre: pre(vm)
    hs = 4 if dmap else 8
    halfrows = 8 if dmap else 4
    A(f"v_lshrrev_b32 v{T0}, 5, v1\nv_mul_u32_u24 v{T0}, {hs}, v{T0}\nv_bfe_u32 v{T1}, v1, 2, 2\nv_add_u32 v{T0}, v{T0}, v{T1}\nv_lshlrev_b32 v{T0}, 7, v{T0}")
    A(f"v_bfe_u32 v{T1}, v1, 4, 1\nv_lshl_add_u32 v{T0}, v{T1}, 5, v{T0}\nv_and_b32 v{T1}, 3, v1\nv_lshl_add_u32 v{T0}, v{T1}, 3, v{T0}\nv_add_u32 v{T0}, s{sM}, v{T0}")
    A(f"v_bfe_u32 v{T1}, v1, 3, 1")
    if rotate: A(f"s_lshr_b32 s{sX}, s{SW}, 1\nv_xor_b32 v{T1}, s{sX}, v{T1}")
    A(f"v_lshl_add_u32 v{VR[0]}, v{T1}, 6, v{T0}\nv_xor_b32 v{T1}, 1, v{T1}\nv_lshl_add_u32 v{VR[1]}, v{T1}, 6, v{T0}")
    def tread(ks):
        slot = ks % depth
        vm.wait(ks)
        for ti in range(2):
            for half in range(2):
                A(f"ds_read_b64_tr_b16 {v(TF + (ks&1)*8 + ti*4 + half*2, 2)}, v{VR[ti]} offset:{slot*2048 + half*halfrows*128}"); lg.issue(ks)
    tread(0)
    for ks in range(nks):
        if ks + 1 < nks: tread(ks + 1)
        lg.wait(ks)
        slot = ks % depth
        for ti in range(2):
            for tj in range(2):
                acc = ACC + 16*(2*ti + tj); t = v(TF + (ks&1)*8 + ti*4, 4); r = v(RF + slot*8 + tj*4, 4)
                ab = f"{t}, {r}" if t_is_a else f"{r}, {t}"
                A(f"{MFMA} {v(acc,16)}, {ab}, {'0' if ks == 0 else v(acc,16)}")
        if ks + depth < nks: load(ks + depth)
    return vm

def reduce_rowmajor(A, depth, di_of, sj_of):
    T0, T1 = 8, 9
    A(f"v_and_b32 v{T0}, 31, v1\nv_mul_u32_u24 v{T0}, 272, v{T0}\nv_lshrrev_b32 v{T1}, 5, v1\nv_lshl_add_u32 v{T0}, v{T1}, 4, v{T0}\nv_add_u32 v{T0}, s60, v{T0}")
    for slot in range(4):
        for g in range(4):
            A(f"ds_write_b128 v{T0}, {v(16+16*slot+4*g,4)} offset:{sj_of(slot)*32*272 + di_of(slot)*128 + g*32}")
    A(f"v_lshrrev_b32 v{T0}, 3, v0\nv_mul_u32_u24 v{T0}, 272, v{T0}\nv_and_b32 v{T1}, 7, v0\nv_lshl_add_u32 v{T0}, v{T1}, 5, v{T0}")
    A(f"v_add_u32 v{T1}, {2*depth*2048}, v{T0}")
    A("s_waitcnt lgkmcnt(0)\ns_barrier")
    for w in range(4):
        for rr in range(2):
            for q in range(2):
                A(f"ds_read_b128 {v(16+16*w+8*rr+4*q,4)}, v{[T0,T1][w>>1]} offset:{(w&1)*depth*2048 + rr*32*272 + q*16}")
    A("s_waitcnt lgkmcnt(0)")
    for r in range(16):
        A(f"v_add_f32 v{16+r}, v{16+r}, v{32+r}\nv_add_f32 v{48+r}, v{48+r}, v{64+r}\nv_add_f32 v{16+r}, v{16+r}, v{48+r}")

def add_bf16x8(A, acc, src, tmp):
    for j in range(4):
        A(f"v_lshlrev_b32 v{tmp}, 16, v{src+j}\nv_add_f32 v{acc+2*j}, v{acc+2*j}, v{tmp}\nv_and_b32 v{tmp}, 0xffff0000, v{src+j}\nv_add_f32 v{acc+2*j+1}, v{acc+2*j+1}, v{tmp}")

def k3a():
    A = Asm(); END = "K3A_END"; depth = 9
    prologue(A, 224, END)
    A(f"s_and_b32 s44, s2, 7\ns_mul_i32 s44, s44, 28\ns_lshr_b32 s45, s2, 3\ns_add_u32 s44, s44, s45\ns_mul_i32 s45, s44, 9363\ns_lshr_b32 s45, s45, 16\ns_mul_i32 s47, s45, 7\ns_sub_u32 s44, s44, s47")
    A(f"s_mul_i32 s48, s{SW}, {112*896}\ns_lshl_b32 s47, s44, 7\ns_add_u32 s48, s48, s47")
    A(f"s_mul_i32 s49, s45, {2*28672}\ns_mul_i32 s47, s{SW}, 7168\ns_add_u32 s49, s49, s47\ns_add_u32 s49, s49, {WS_O}\ns_add_u32 s50, s49, 28672")
    A("s_waitcnt lgkmcnt(0)")
    srd(A, 32, P_X, S*D*2); srd(A, 36, P_WO, D*D*2); srd(A, 40, P_WS, WS_SIZE)
    XR, VO = 176, 10
    def pre(vm):
        A(f"v_lshrrev_b32 v{VO}, 3, v0\nv_mul_u32_u24 v{VO}, 896, v{VO}\nv_and_b32 v11, 7, v0\nv_lshl_add_u32 v{VO}, v11, 4, v{VO}")
        A(f"s_mul_i32 s51, s45, {64*896}\ns_lshl_b32 s47, s44, 7\ns_add_u32 s51, s51, s47\ns_add_u32 s52, s51, {32*896}")
        A(f"buffer_load_dwordx4 {v(XR,4)}, v{VO}, s[32:35], s51 offen\nbuffer_load_dwordx4 {v(XR+4,4)}, v{VO}, s[32:35], s52 offen")
        vm.issue("x"); vm.issue("x")
    vm = gemm64(A, 7, depth, 896, 48, 49, 50, True, False, False, 36, 40, pre)
    reduce_rowmajor(A, depth, lambda sl: sl >> 1, lambda sl: sl & 1)
    vm.wait_all()
    add_bf16x8(A, 16, XR, 8); add_bf16x8(A, 24, XR+4, 8)
    for r in range(8): A(f"v_cvt_pk_bf16_f32 v{32+r}, v{16+2*r}, v{17+2*r}")
    A(f"s_add_u32 s51, s51, {WS_H}\ns_add_u32 s52, s52, {WS_H}")
    A(f"buffer_store_dwordx4 v[32:35], v{VO}, s[40:43], s51 offen\nbuffer_store_dwordx4 v[36:39], v{VO}, s[40:43], s52 offen")
    A(f"{END}:\ns_endpgm")
    return A, 184, 4*depth*2048

def wave_sum(A, x, t):
    for m in ("quad_perm:[1,0,3,2]", "quad_perm:[2,3,0,1]", "row_half_mirror", "row_mirror"):
        A(f"v_add_f32_dpp v{x}, v{x}, v{x} {m} row_mask:0xf bank_mask:0xf")
    A(f"v_mov_b32 v{t}, v{x}\nv_permlane16_swap_b32 v{x}, v{t}\nv_add_f32 v{x}, v{x}, v{t}")
    halfsum(A, x, t)

def k3b():
    A = Asm(); END = "K3B_END"; PITCH = 896 + 64
    prologue(A, 128, END)
    A("s_waitcnt lgkmcnt(0)")
    srd(A, 40, P_WS, WS_SIZE)
    A(f"s_lshl_b32 s44, s2, 4\ns_lshl_b32 s45, s{SW}, 2\ns_add_u32 s44, s44, s45\ns_mul_i32 s44, s44, 896\ns_add_u32 s44, s44, {WS_H}")
    A("v_lshlrev_b32 v4, 4, v1\ns_mov_b32 s47, 0x3f803f80")
    for r in range(16): A(f"v_mov_b32 v{16+r}, 0")
    set_exec(A, (1 << 56) - 1)
    for r in range(4): A(f"buffer_load_dwordx4 {v(16+4*r,4)}, v4, s[40:43], s44 offen offset:{r*896}")
    A("s_mov_b64 exec, -1\ns_waitcnt vmcnt(0)")
    for r in range(4):
        A(f"v_mov_b32 v{32+r}, 0\nv_mov_b32 v{36+r}, 0")
        for j in range(4):
            A(f"v_dot2_f32_bf16 v{32+r}, v{16+4*r+j}, s47, v{32+r}\nv_dot2_f32_bf16 v{36+r}, v{16+4*r+j}, v{16+4*r+j}, v{36+r}")
    for r in range(8): wave_sum(A, 32+r, 40)
    for r in range(4):
        m, q = 32+r, 36+r
        A(f"v_mul_f32 v{m}, {fl(1.0/D)}, v{m}\nv_mul_f32 v{q}, {fl(1.0/D)}, v{q}\nv_fma_f32 v{q}, -v{m}, v{m}, v{q}\nv_max_f32 v{q}, 0, v{q}")
        A(f"v_add_f32 v40, {fl(EPS)}, v{q}\nv_mul_f32 v40, {fl(EPS)}, v40\nv_add_f32 v{q}, v{q}, v40\nv_rsq_f32 v{q}, v{q}\nv_mul_f32 v{m}, v{m}, v{q}")
        for j in range(4):
            x = 16+4*r+j
            A(f"v_lshlrev_b32 v41, 16, v{x}\nv_and_b32 v42, 0xffff0000, v{x}\nv_fma_f32 v41, v41, v{q}, -v{m}\nv_fma_f32 v42, v42, v{q}, -v{m}\nv_cvt_pk_bf16_f32 v{x}, v41, v42")
    A(f"s_mul_i32 s45, s{SW}, {4*PITCH}\nv_add_u32 v5, s45, v4")
    set_exec(A, (1 << 56) - 1)
    for r in range(4): A(f"ds_write_b128 v5, {v(16+4*r,4)} offset:{r*PITCH}")
    A("s_mov_b64 exec, -1\ns_waitcnt lgkmcnt(0)\ns_barrier")
    A(f"v_lshrrev_b32 v5, 5, v1\nv_bfe_u32 v6, v1, 2, 2\nv_lshl_add_u32 v5, v5, 3, v6\nv_mul_u32_u24 v5, {PITCH}, v5\nv_bfe_u32 v6, v1, 4, 1\nv_lshl_add_u32 v5, v6, 5, v5\nv_and_b32 v6, 3, v1\nv_lshl_add_u32 v5, v6, 3, v5")
    A(f"s_lshl_b32 s45, s{SW}, 6\nv_add_u32 v5, s45, v5")
    for j in range(4):
        for half in range(2): A(f"ds_read_b64_tr_b16 {v(16+4*j+2*half,2)}, v5 offset:{j*256 + half*4*PITCH}")
    A(f"s_lshl_b32 s44, s{SW}, 17\ns_lshl_b32 s45, s2, 10\ns_add_u32 s44, s44, s45\ns_add_u32 s44, s44, {WS_HH}\ns_waitcnt lgkmcnt(0)")
    for j in range(4):
        if j == 3: A(f"s_cmp_ge_u32 s{SW}, 2\ns_cbranch_scc1 {END}")
        A(f"buffer_store_dwordx4 {v(16+4*j,4)}, v4, s[40:43], s44 offen\ns_add_u32 s44, s44, {4 << 17}")
    A(f"{END}:\ns_endpgm")
    return A, 48, 16*PITCH + 256

def k4():
    A = Asm(); END = "K4_END"; depth = 12
    prologue(A, 200, END)
    A(f"s_and_b32 s44, s2, 7\ns_mul_i32 s44, s44, 25\ns_lshr_b32 s45, s2, 3\ns_add_u32 s44, s44, s45\ns_cmp_ge_u32 s44, 196\ns_cbranch_scc1 {END}")
    A("s_mul_i32 s45, s44, 9363\ns_lshr_b32 s45, s45, 16\ns_mul_i32 s47, s45, 7\ns_sub_u32 s44, s44, s47")
    A(f"s_mul_i32 s48, s{SW}, {512*3584}\ns_lshl_b32 s47, s45, 7\ns_add_u32 s48, s48, s47")
    A(f"s_and_b32 s51, s{SW}, 1\ns_lshl_b32 s47, s44, 1\ns_add_u32 s51, s51, s47\ns_xor_b32 s52, s51, 1")
    A(f"s_lshl_b32 s47, s{SW}, 15\ns_add_u32 s47, s47, {WS_HH}\ns_lshl_b32 s49, s51, 17\ns_add_u32 s49, s49, s47\ns_lshl_b32 s50, s52, 17\ns_add_u32 s50, s50, s47")
    A("s_waitcnt lgkmcnt(0)")
    srd(A, 32, P_B1, F*2); srd(A, 36, P_W1, S*F*2); srd(A, 40, P_WS, WS_SIZE)
    BR = 200
    def pre(vm):
        A(f"s_lshr_b32 s53, s{SW}, 1\ns_lshl_b32 s47, s45, 1\ns_add_u32 s53, s53, s47\ns_lshl_b32 s47, s53, 6\nv_lshrrev_b32 v10, 5, v1\nv_lshlrev_b32 v10, 3, v10")
        for g in range(4):
            A(f"buffer_load_dwordx2 {v(BR+2*g,2)}, v10, s[32:35], s47 offen offset:{g*16}"); vm.issue("b")
    vm = gemm64(A, 32, depth, 3584, 48, 49, 50, True, False, True, 36, 40, pre)
    for sl in range(1, 4):
        A(f"s_xor_b32 s47, s{SW}, {sl}\ns_mul_i32 s47, s47, 12288\ns_add_u32 s47, s47, {4*depth*2048}\nv_add_u32 v8, s47, v7")
        for g in range(4): A(f"ds_write_b128 v8, {v(16+16*sl+4*g,4)} offset:{(sl-1)*4096 + g*1024}")
    A(f"s_mul_i32 s47, s{SW}, 12288\ns_add_u32 s47, s47, {4*depth*2048}\nv_add_u32 v8, s47, v7\ns_waitcnt lgkmcnt(0)\ns_barrier")
    for sl in range(1, 4):
        for g in range(4): A(f"ds_read_b128 {v(16+16*sl+4*g,4)}, v8 offset:{(sl-1)*4096 + g*1024}")
    A("s_waitcnt lgkmcnt(0)")
    for r in range(16):
        A(f"v_add_f32 v{16+r}, v{16+r}, v{32+r}\nv_add_f32 v{48+r}, v{48+r}, v{64+r}\nv_add_f32 v{16+r}, v{16+r}, v{48+r}")
    add_bf16x8(A, 16, BR, 8); add_bf16x8(A, 24, BR+4, 8)
    c1 = -2.0*math.sqrt(2.0/math.pi)*math.log2(math.e); c2 = c1*0.044715
    A(f"s_mov_b32 s47, {fl(c2)}\nv_mov_b32 v9, {fl(c1)}")
    for r in range(16): A(f"v_mul_f32 v{32+r}, v{16+r}, v{16+r}\nv_fma_f32 v{32+r}, v{32+r}, s47, v9\nv_mul_f32 v{32+r}, v{32+r}, v{16+r}")
    for r in range(16): A(f"v_exp_f32 v{32+r}, v{32+r}")
    for r in range(16): A(f"v_add_f32 v{32+r}, 1.0, v{32+r}")
    for r in range(16): A(f"v_rcp_f32 v{32+r}, v{32+r}")
    for r in range(16): A(f"v_mul_f32 v{16+r}, v{16+r}, v{32+r}")
    for r in range(8): A(f"v_cvt_pk_bf16_f32 v{32+r}, v{16+2*r}, v{17+2*r}")
    A(f"s_mul_i32 s47, s51, {112*1024}\ns_lshl_b32 s53, s53, 11\ns_add_u32 s47, s47, s53\ns_add_u32 s47, s47, {WS_G}")
    A("buffer_store_dwordx4 v[32:35], v7, s[40:43], s47 offen\nbuffer_store_dwordx4 v[36:39], v7, s[40:43], s47 offen offset:1024")
    A(f"{END}:\ns_endpgm")
    return A, 208, 4*depth*2048 + 4*12288

def k5():
    A = Asm(); END = "K5_END"; depth = 12
    prologue(A, 224, END)
    A(f"s_and_b32 s44, s2, 7\ns_mul_i32 s44, s44, 28\ns_lshr_b32 s45, s2, 3\ns_add_u32 s44, s44, s45\ns_mul_i32 s45, s44, 9363\ns_lshr_b32 s45, s45, 16\ns_mul_i32 s47, s45, 7\ns_sub_u32 s44, s44, s47")
    A(f"s_mul_i32 s48, s{SW}, {448*4096}\ns_lshl_b32 s47, s45, 7\ns_add_u32 s48, s48, s47")
    A(f"s_mul_i32 s49, s44, {2*112*1024}\ns_mul_i32 s47, s{SW}, {28*1024}\ns_add_u32 s49, s49, s47\ns_add_u32 s49, s49, {WS_G}\ns_add_u32 s50, s49, {112*1024}")
    A("s_waitcnt lgkmcnt(0)")
    srd(A, 32, P_B2, S*2); srd(A, 36, P_W2, S*F*2); srd(A, 40, P_WS, WS_SIZE); srd(A, 64, P_OUT, S*D*2)
    XR, VO = 200, 10
    def pre(vm):
        A(f"v_lshrrev_b32 v11, 3, v0\nv_mul_u32_u24 v{VO}, 896, v11\nv_and_b32 v12, 7, v0\nv_lshl_add_u32 v{VO}, v12, 4, v{VO}\nv_lshlrev_b32 v11, 1, v11")
        A(f"s_mul_i32 s51, s45, {64*896}\ns_lshl_b32 s47, s44, 7\ns_add_u32 s51, s51, s47\ns_add_u32 s52, s51, {32*896}")
        A(f"s_add_u32 s53, s51, {WS_H}\ns_add_u32 s54, s52, {WS_H}\ns_lshl_b32 s47, s45, 7")
        A(f"buffer_load_dwordx4 {v(XR,4)}, v{VO}, s[40:43], s53 offen\nbuffer_load_dwordx4 {v(XR+4,4)}, v{VO}, s[40:43], s54 offen")
        A(f"buffer_load_ushort v{XR+8}, v11, s[32:35], s47 offen\nbuffer_load_ushort v{XR+9}, v11, s[32:35], s47 offen offset:64")
        for _ in range(4): vm.issue("x")
    vm = gemm64(A, 28, depth, 4096, 48, 49, 50, False, True, False, 36, 40, pre)
    reduce_rowmajor(A, depth, lambda sl: sl & 1, lambda sl: sl >> 1)
    vm.wait_all()
    A(f"v_lshlrev_b32 v{XR+8}, 16, v{XR+8}\nv_lshlrev_b32 v{XR+9}, 16, v{XR+9}")
    for r in range(16): A(f"v_add_f32 v{16+r}, v{16+r}, v{XR+8+(r>>3)}")
    add_bf16x8(A, 16, XR, 8); add_bf16x8(A, 24, XR+4, 8)
    for r in range(8): A(f"v_cvt_pk_bf16_f32 v{32+r}, v{16+2*r}, v{17+2*r}")
    A(f"buffer_store_dwordx4 v[32:35], v{VO}, s[64:67], s51 offen\nbuffer_store_dwordx4 v[36:39], v{VO}, s[64:67], s52 offen")
    A(f"{END}:\ns_endpgm")
    return A, 212, 4*depth*2048

def main(out, extra=0):
    ks = [("qkv_kernel", k1, 256), ("attn_kernel", k2, 256), ("wo_kernel", k3a, 224), ("ln2_kernel", k3b, 128), ("mlp1_kernel", k4, 200), ("mlp2_kernel", k5, 224)]
    head = open("sequential_preLN__mha_block__mixer_token_mlp__prompt.s.ref").read().split("; Override")[0]
    body, desc, launch = "", "", ""
    for name, fn, grid in ks:
        A, nv, lds = fn()
        launch += f"; @launch kernel={name} grid=({grid},1,1) block=(256,1,1) lds={lds}\n"
        body += kernel_header(name) + A.text()
        desc += kernel_desc(name, nv, 80)
    if extra:
        body += kernel_header("nop_kernel") + "    s_endpgm\n"
        desc += kernel_desc("nop_kernel", 8, 16)
        launch += "; @launch kernel=nop_kernel grid=(256,1,1) block=(256,1,1) lds=0\n" * extra
    txt = head + launch + '.amdgcn_target "amdgcn-amd-amdhsa--gfx950"\n.text\n' + body + '.section .rodata,"a"\n' + desc
    open(out, "w").write(txt)

if __name__ == "__main__":
    main(sys.argv[1], int(sys.argv[2]) if len(sys.argv) > 2 else 0)
```

```python
import sys, struct, math, os
from asmlib import *

S, D, H, DH, F = 2048, 448, 16, 28, 1792
MB = 1 << 20
WS_Q, WS_KV, WS_O, WS_HF, WS_HH, WS_G, WS_ST, WS_FL, WS_STAMP = 0, 2*MB, 6*MB, 8*MB, 10*MB, 12*MB, 14*MB, 14*MB + 512*1024, 15*MB
F1, F2, F4, F5 = WS_FL, WS_FL + 131072, WS_FL + 2*131072, WS_FL + 3*131072
WS_RST, WS_CSG = 13*MB + 768*1024, 13*MB + 832*1024
WS_SIZE = 16*MB
EPS = 1e-5
STAMP = os.environ.get("STAMP", "0") == "1"
def env(n, d): return int(os.environ.get(n, str(d)))
def f2u(x): return struct.unpack("<I", struct.pack("<f", x))[0]
def hx(x): return f"0x{x & 0xffffffff:08x}"
def fl(x): return hx(f2u(x))
MFMA = "v_mfma_f32_32x32x16_bf16"
NAME = "sequential_preLN__mha_block__mixer_token_mlp__prompt_kernel"

class Cnt:
    def __init__(self, A, name, mx):
        self.A, self.name, self.mx, self.q = A, name, mx, []
    def issue(self, tag): self.q.append(tag)
    def wait(self, tag):
        idx = [i for i, t in enumerate(self.q) if t == tag]
        if not idx: return
        n = len(self.q) - 1 - idx[-1]
        self.A(f"s_waitcnt {self.name}({min(n, self.mx)})")
        self.q = self.q[idx[-1] + 1:]
    def wait_all(self):
        self.A(f"s_waitcnt {self.name}(0)"); self.q = []

RX, RWQ, RWO, RW1, RB1, RW2, RB2, ROUT, RDBG, RWS = 8, 12, 16, 20, 24, 28, 32, 36, 40, 44
def R(r): return f"s[{r}:{r+3}]"
SW, sH, sI, sJ, sFT, sDT4, sST, sDT5, sACT4, sTO, sTAG = 48, 49, 50, 51, 52, 53, 54, 55, 56, 57, 58
sHI, sONES = 60, 62
sT, sU, sV, sA, sB, sC, sD_, sE, sRETRY = 63, 64, 65, 66, 67, 68, 69, 70, 71
sF = [4, 5, 6, 7]
sSEC, sHQ = 3, 92
sRBW, sW2W = 94, 95
sW1, sW1S, sW1E, sW2, sW2S, sW2E = 96, 97, 98, 99, 100, 101
VL, VST = 2, 255
W2A, RBUF, LDS_TOTAL = 0, 114688, 163840

A = Asm(); vm = Cnt(A, "vmcnt", 63); lg = Cnt(A, "lgkmcnt", 15)
st = {"pend": [], "names": {}}
def stamp(name):
    if not STAMP: return
    k = len(st["pend"]); assert k < 9, name
    n = st["names"].setdefault(name, len(st["names"]))
    A(f"{'s_memtime' if env('CYC', 0) else 's_memrealtime'} s[{74+2*k}:{75+2*k}]"); st["pend"].append(n)
def stamp_flush():
    if not STAMP or not st["pend"]: return
    A("s_waitcnt lgkmcnt(0)")
    for k, n in enumerate(st["pend"]): A(f"v_writelane_b32 v{VST}, s{74+2*k}, {n}")
    st["pend"] = []

def set_exec(mask): A(f"s_mov_b32 exec_lo, {hx(mask)}\ns_mov_b32 exec_hi, {hx(mask >> 32)}")
def halfsum(x, t): A(f"v_mov_b32 v{t}, v{x}\nv_permlane32_swap_b32 v{x}, v{t}\nv_add_f32 v{x}, v{x}, v{t}")
def flag_store(soff_reg, t=4):
    A(f"v_mov_b32 v{t}, s{sTAG}\nv_mov_b32 v{t+1}, s{sTAG+1}\nv_mov_b32 v{t+2}, 0\ns_mov_b64 exec, 1")
    A(f"buffer_store_dwordx2 {v(t,2)}, v{t+2}, {R(RWS)}, s{soff_reg} offen sc1\ns_mov_b64 exec, -1"); vm.issue("flag")
def poll(voff, soff_reg, nl, t):
    L = A.label("POLL")
    set_exec((1 << nl) - 1)
    A(f"s_mov_b32 s{sTO}, 0x40000\n{L}:")
    A(f"buffer_load_dwordx2 {v(t,2)}, v{voff}, {R(RWS)}, s{soff_reg} offen sc1\ns_sub_u32 s{sTO}, s{sTO}, 1\ns_waitcnt vmcnt(0)")
    A(f"s_cbranch_scc1 {L}_x\nv_cmp_ne_u64 vcc, s[{sTAG}:{sTAG+1}], {v(t,2)}\ns_cbranch_vccnz {L}\n{L}_x:\ns_mov_b64 exec, -1")
    vm.q = []
def tr_lane_addr(dst, t, pitch, hs, rs=1):
    A(f"v_lshrrev_b32 v{dst}, 5, v1\nv_mul_u32_u24 v{dst}, {hs*pitch}, v{dst}\nv_bfe_u32 v{t}, v1, 2, 2\nv_mul_u32_u24 v{t}, {rs*pitch}, v{t}\nv_add_u32 v{dst}, v{dst}, v{t}")
    A(f"v_bfe_u32 v{t}, v1, 4, 1\nv_lshl_add_u32 v{dst}, v{t}, 5, v{dst}\nv_and_b32 v{t}, 3, v1\nv_lshl_add_u32 v{dst}, v{t}, 3, v{dst}")
def get_tag(TAGV, lab):
    A(f"v_readfirstlane_b32 s{sTAG}, v{TAGV}\nv_readfirstlane_b32 s{sTAG+1}, v{TAGV+1}")
    A(f"s_cmp_lg_u32 s{sTAG+1}, 0\ns_cbranch_scc1 {lab}_ok\ns_mov_b32 s{sTO}, 0x40000\nv_mov_b32 v4, 0\n{lab}_l:")
    A(f"buffer_load_dwordx2 {v(TAGV,2)}, v4, {R(RDBG)}, 0 offen sc1\ns_sub_u32 s{sTO}, s{sTO}, 1\ns_waitcnt vmcnt(0)\ns_cbranch_scc1 {lab}_ok")
    A(f"v_readfirstlane_b32 s{sTAG}, v{TAGV}\nv_readfirstlane_b32 s{sTAG+1}, v{TAGV+1}\ns_cmp_eq_u32 s{sTAG+1}, 0\ns_cbranch_scc1 {lab}_l\n{lab}_ok:")
def tagcheck(regs, T1, T2, T3):
    A(f"v_xor_b32 v{T1}, s{sTAG}, v{regs[0]+1}\nv_xor_b32 v{T2}, s{sTAG+1}, v{regs[0]+3}\nv_or_b32 v{T1}, v{T1}, v{T2}")
    for g in regs[1:]: A(f"v_xor_b32 v{T2}, s{sTAG}, v{g+1}\nv_xor_b32 v{T3}, s{sTAG+1}, v{g+3}\nv_or3_b32 v{T1}, v{T1}, v{T2}, v{T3}")
    A(f"v_cmp_ne_u32 vcc, 0, v{T1}")
def rot4(d):
    A(f"s_bfe_u32 s{d}, s2, 0x20001\ns_mul_i32 s{d}, s{d}, 7\ns_sub_u32 s{d}, s{sFT}, s{d}\ns_lshl_b32 s{d}, s{d}, 2")
def rot5(d):
    A(f"s_and_b32 s{d}, s{sST}, 7\ns_mul_i32 s{d}, s{d}, 7\ns_lshr_b32 s{d}, s{d}, 2\ns_lshl_b32 s{d}, s{d}, 1")

def prologue():
    if STAMP: A(f"s_memrealtime s[72:73]\nv_mov_b32 v{VST}, -1")
    stamp("start")
    A("s_cmp_ge_u32 s2, 256\ns_cbranch_scc1 K_END")
    for r, off in ((RX, 0), (RWQ, 8), (RWS, 80), (RDBG, 72), (RWO, 16), (RW1, 32), (RB1, 40), (RW2, 48), (RB2, 56), (ROUT, 64)):
        A(f"s_load_dwordx2 s[{r}:{r+1}], s[0:1], {off}")
    A(f"s_memrealtime s[{sTAG}:{sTAG+1}]")
    for r, sz in ((RX, S*D*2), (RWQ, D*3*D*2), (RWS, WS_SIZE), (RDBG, 256), (RWO, D*D*2), (RW1, S*F*2), (RB1, F*2), (RW2, S*F*2), (RB2, S*2), (ROUT, S*D*2)):
        A(f"s_mov_b32 s{r+2}, {sz}\ns_mov_b32 s{r+3}, 0x20000")
    A(f"v_and_b32 v1, 63, v0\nv_lshrrev_b32 v3, 6, v0\nv_lshlrev_b32 v{VL}, 4, v1\nv_readfirstlane_b32 s{SW}, v3")
    A(f"s_lshr_b32 s{sJ}, s2, 3\ns_bfe_u32 s{sT}, s2, 0x20001\ns_and_b32 s{sU}, s2, 1")
    A(f"s_lshl_b32 s{sI}, s{sT}, 2\ns_and_b32 s{sV}, s{sJ}, 3\ns_add_u32 s{sI}, s{sI}, s{sV}")
    A(f"s_lshr_b32 s{sSEC}, s{sJ}, 3\ns_bfe_u32 s{sHQ}, s{sJ}, 0x10002\ns_lshl_b32 s{sV}, s{sU}, 1\ns_add_u32 s{sHQ}, s{sHQ}, s{sV}")
    A(f"s_mov_b32 s{sHI}, 0\ns_mov_b32 s{sHI+1}, -1\ns_mov_b32 s{sONES}, 0x3f803f80\ns_mov_b32 s{sRETRY}, 0")

def roles():
    A(f"s_bfe_u32 s{sT}, s2, 0x20001\ns_and_b32 s{sU}, s2, 1")
    A(f"s_lshl_b32 s{sH}, s{sU}, 3\ns_lshr_b32 s{sV}, s{sJ}, 2\ns_add_u32 s{sH}, s{sH}, s{sV}")
    A(f"s_sub_u32 s{sV}, 25, s{sU}\ns_cmp_lt_u32 s{sJ}, s{sV}\ns_cselect_b32 s{sACT4}, 1, 0\ns_cselect_b32 s{sV}, s{sJ}, 0")
    A(f"s_mul_i32 s{sFT}, s{sU}, 25\ns_add_u32 s{sV}, s{sV}, s{sFT}\ns_mul_i32 s{sDT4}, s{sV}, 9363\ns_lshr_b32 s{sDT4}, s{sDT4}, 16")
    A(f"s_mul_i32 s{sFT}, s{sDT4}, 7\ns_sub_u32 s{sV}, s{sV}, s{sFT}\ns_mul_i32 s{sFT}, s{sT}, 7\ns_add_u32 s{sFT}, s{sV}, s{sFT}")
    A(f"s_cmp_lt_u32 s{sJ}, 28\ns_cselect_b32 s{sV}, s{sJ}, 0\ns_mul_i32 s{sST}, s{sU}, 28\ns_add_u32 s{sV}, s{sV}, s{sST}")
    A(f"s_lshr_b32 s{sDT5}, s{sV}, 3\ns_and_b32 s{sV}, s{sV}, 7\ns_lshl_b32 s{sST}, s{sT}, 3\ns_add_u32 s{sST}, s{sST}, s{sV}")
    A(f"s_lshl_b32 s{sT}, s{sHQ}, 2\ns_add_u32 s{sT}, s{sT}, s{SW}\ns_lshl_b32 s{sT}, s{sT}, 2\ns_add_u32 s{sT}, s{sT}, s{sSEC}\ns_lshl_b32 s{sT}, s{sT}, 4\ns_add_u32 s{sT}, s{sT}, s{sI}\ns_lshl_b32 s{sT}, s{sT}, 7\ns_add_u32 s{sF[0]}, s{sT}, {F1}")
    A(f"s_lshl_b32 s{sU}, s{sI}, 2\ns_add_u32 s{sU}, s{sU}, s{SW}\ns_lshl_b32 s{sT}, s{sU}, 4\ns_add_u32 s{sT}, s{sT}, s{sH}\ns_lshl_b32 s{sV}, s{sT}, 9\ns_lshl_b32 s{sT}, s{sT}, 7\ns_add_u32 s{sF[1]}, s{sT}, {F2}")
    A(f"s_lshl_b32 s{sT}, s{sH}, 6\ns_add_u32 s{sT}, s{sT}, s{sU}\ns_lshl_b32 s{sT}, s{sT}, 7\ns_add_u32 s{sF[2]}, s{sT}, {F4}")
    A(f"s_mul_i32 s{sT}, s{sDT4}, 28\ns_add_u32 s{sT}, s{sT}, s{sFT}\ns_lshl_b32 s{sT}, s{sT}, 2\ns_add_u32 s{sT}, s{sT}, s{SW}\ns_lshl_b32 s{sT}, s{sT}, 7\ns_add_u32 s{sF[3]}, s{sT}, {F5}")
    A(f"s_add_u32 s{sV}, s{sV}, {WS_ST}\nv_lshl_add_u32 v4, v1, 7, s{sV}")
    A(f"v_writelane_b32 v4, s{sF[0]}, 4\nv_writelane_b32 v4, s{sF[1]}, 5\nv_writelane_b32 v4, s{sF[2]}, 6\nv_writelane_b32 v4, s{sF[3]}, 7\ns_mov_b64 exec, 0xff\nbuffer_load_dword v12, v4, {R(RWS)}, 0 offen sc1\ns_mov_b64 exec, -1")
    vm.issue("touch")

def p1_helper():
    TAGV = 14
    sHX = sA
    A("P1_HELP:")
    vm.q = []
    A(f"s_and_b32 s{sHX}, s2, 7\ns_lshl_b32 s{sHX}, s{sHX}, 3\ns_add_u32 s{sHX}, s{sHX}, s{sJ}\ns_sub_u32 s{sHX}, s{sHX}, 24")
    A(f"v_lshrrev_b32 v4, 3, v1\nv_and_b32 v5, 7, v1\nv_lshlrev_b32 v5, 4, v5\ns_waitcnt lgkmcnt(0)")
    A(f"s_cmp_lg_u32 s2, 255\ns_cbranch_scc1 H_NOTAG\ns_cmp_lg_u32 s{SW}, 3\ns_cbranch_scc1 H_NOTAG")
    A(f"s_bitset1_b32 s{sTAG+1}, 31\nv_mov_b32 v8, s{sTAG}\nv_mov_b32 v9, s{sTAG+1}\nv_mov_b32 v6, 0\ns_mov_b64 exec, 1\nbuffer_store_dwordx2 v[8:9], v6, {R(RDBG)}, 0 offen sc1\ns_mov_b64 exec, -1\nH_NOTAG:")
    A(f"s_cmp_ge_u32 s{SW}, 2\ns_cbranch_scc1 H_CS")
    A(f"v_mul_u32_u24 v6, 896, v4\nv_add_u32 v6, v6, v5\ns_lshl_b32 s{sB}, s{sHX}, 1\ns_add_u32 s{sB}, s{sB}, s{SW}\ns_mul_i32 s{sT}, s{sB}, {16*896}\ns_add_u32 s{sU}, s{sT}, {8*896}")
    for b in range(2):
        for m in range(7): A(f"buffer_load_dwordx4 {v(16+28*b+4*m,4)}, v6, {R(RX)}, s{[sT,sU][b]} offen offset:{m*128}")
    A(f"v_mov_b32 v7, 0\nbuffer_load_dwordx2 {v(TAGV,2)}, v7, {R(RDBG)}, 0 offen sc1")
    for r in range(80, 88): A(f"v_mov_b32 v{r}, 0")
    for b in range(2):
        A(f"s_waitcnt vmcnt({8 if b == 0 else 0})")
        for k in range(28): A(f"v_dot2c_f32_bf16 v{80+4*b}, s{sONES}, v{16+28*b+k}\nv_dot2c_f32_bf16 v{82+4*b}, v{16+28*b+k}, v{16+28*b+k}")
    for m in ("quad_perm:[1,0,3,2]", "quad_perm:[2,3,0,1]", "row_half_mirror"):
        for r in (80, 82, 84, 86): A(f"v_add_f32_dpp v{r}, v{r}, v{r} {m} row_mask:0xf bank_mask:0xf")
    get_tag(TAGV, "H_T1")
    for b in range(2):
        sm, sq = 80+4*b, 82+4*b
        A(f"v_mul_f32 v{sm}, {fl(1.0/D)}, v{sm}\nv_mul_f32 v{sq}, {fl(1.0/D)}, v{sq}\nv_fma_f32 v{sq}, -v{sm}, v{sm}, v{sq}\nv_max_f32 v{sq}, 0, v{sq}\nv_add_f32 v{sq}, {fl(EPS)}, v{sq}\nv_rsq_f32 v{sq}, v{sq}")
        A(f"v_mov_b32 v{sm+1}, s{sTAG}\nv_mov_b32 v{sq+1}, s{sTAG+1}\nv_mul_f32 v{sm}, v{sm}, v{sq}\nv_sub_f32 v{sm}, 0, v{sm}")
    A(f"v_lshrrev_b32 v4, 3, v1\nv_lshlrev_b32 v6, 4, v4\ns_lshl_b32 s{sT}, s{sB}, 8\ns_add_u32 s{sT}, s{sT}, {WS_RST}")
    set_exec(0x0101010101010101)
    A(f"buffer_store_dwordx4 v[80:83], v6, {R(RWS)}, s{sT} offen sc1\nbuffer_store_dwordx4 v[84:87], v6, {R(RWS)}, s{sT} offen offset:128 sc1\ns_mov_b64 exec, -1\ns_branch H_PF")
    A(f"H_CS:\ns_sub_u32 s{sB}, s{SW}, 2\ns_lshl_b32 s{sB}, s{sB}, 6\ns_add_u32 s{sB}, s{sB}, s{sHX}\nv_mov_b32 v7, 0")
    A(f"s_cmp_lt_u32 s{sB}, 84\ns_cbranch_scc1 H_CS2\nbuffer_load_dwordx2 {v(TAGV,2)}, v7, {R(RDBG)}, 0 offen sc1\ns_waitcnt vmcnt(0)")
    get_tag(TAGV, "H_T3")
    A("s_branch H_PF\nH_CS2:")
    A(f"v_mul_u32_u24 v6, 2688, v4\nv_add_u32 v6, v6, v5\ns_and_b32 s{sC}, s{sB}, 3\ns_lshr_b32 s{sD_}, s{sB}, 2\ns_mul_i32 s{sT}, s{sC}, {112*2688}\ns_lshl_b32 s{sU}, s{sD_}, 7\ns_add_u32 s{sT}, s{sT}, s{sU}")
    for m in range(14): A(f"buffer_load_dwordx4 {v(16+4*m,4)}, v6, {R(RWQ)}, s{sT} offen\ns_add_u32 s{sT}, s{sT}, {8*2688}")
    A(f"buffer_load_dwordx2 {v(TAGV,2)}, v7, {R(RDBG)}, 0 offen sc1\ns_mov_b32 s{sT}, 0x3f80\ns_mov_b32 s{sU}, 0x3f800000")
    for r in range(80, 88): A(f"v_mov_b32 v{r}, 0")
    for m in range(14):
        if m % 4 == 0: A(f"s_waitcnt vmcnt({max(0, 14 - m - 4 + 1)})")
        for k in range(4): A(f"v_dot2c_f32_bf16 v{80+2*k}, s{sT}, v{16+4*m+k}\nv_dot2c_f32_bf16 v{81+2*k}, s{sU}, v{16+4*m+k}")
    for r in range(80, 88): A(f"v_add_f32_dpp v{r}, v{r}, v{r} row_ror:8 row_mask:0xf bank_mask:0xf")
    for r in range(80, 88): A(f"v_mov_b32 v{r+8}, v{r}")
    for r in range(80, 88): A(f"v_permlane16_swap_b32 v{r}, v{r+8}")
    for r in range(80, 88): A(f"v_add_f32 v{r}, v{r}, v{r+8}")
    for r in range(80, 88): A(f"v_mov_b32 v{r+8}, v{r}")
    for r in range(80, 88): A(f"v_permlane32_swap_b32 v{r}, v{r+8}")
    for r in range(80, 88): A(f"v_add_f32 v{r}, v{r}, v{r+8}")
    A("s_waitcnt vmcnt(0)")
    get_tag(TAGV, "H_T2")
    A(f"v_lshrrev_b32 v4, 3, v1\nv_mov_b32 v88, v80\nv_mov_b32 v90, v81\nv_mov_b32 v89, s{sTAG}\nv_mov_b32 v91, s{sTAG+1}")
    for pi in range(1, 4): A(f"v_cmp_eq_u32 vcc, {pi}, v4\nv_cndmask_b32 v88, v88, v{80+2*pi}, vcc\nv_cndmask_b32 v90, v90, v{81+2*pi}, vcc")
    A(f"v_lshlrev_b32 v6, 2, v5\nv_lshl_add_u32 v6, v4, 4, v6\ns_mul_i32 s{sT}, s{sC}, 10752\ns_lshl_b32 s{sU}, s{sD_}, 9\ns_add_u32 s{sT}, s{sT}, s{sU}\ns_add_u32 s{sT}, s{sT}, {WS_CSG}")
    set_exec(0xFFFFFFFF)
    A(f"buffer_store_dwordx4 v[88:91], v6, {R(RWS)}, s{sT} offen sc1\ns_mov_b64 exec, -1")
    A("H_PF:")
    stamp("h_pub")
    roles()
    sQ = sB
    A(f"s_sub_u32 s{sQ}, s{sJ}, 24\ns_lshl_b32 s{sQ}, s{sQ}, 2\ns_add_u32 s{sQ}, s{sQ}, s{SW}")
    A(f"s_getpc_b64 s[{sC}:{sC+1}]\nCODE_REF:\ns_sub_u32 s{sC}, s{sC}, CODE_REF-{NAME}\ns_subb_u32 s{sC+1}, s{sC+1}, 0")
    A(f"s_lshl_b32 s{sT}, s{sQ}, 11\nv_lshl_add_u32 v6, v1, 7, s{sT}\nv_min_u32 v6, CODE_END-{NAME}-4, v6")
    A(f"v_mov_b32 v9, s{sC+1}\nv_add_co_u32 v8, vcc, s{sC}, v6\nv_addc_co_u32 v9, vcc, 0, v9, vcc\ns_mov_b64 exec, 0xffff\nglobal_load_dword v11, v[8:9], off\ns_mov_b64 exec, -1")
    A(f"v_lshlrev_b32 v6, 7, v1\ns_and_b32 s{sT}, s2, 7\ns_lshl_b32 s{sT}, s{sT}, 5\ns_add_u32 s{sT}, s{sT}, s{sQ}\ns_mul_i32 s{sT}, s{sT}, {13*128}\ns_mov_b64 exec, 0x1fff\nbuffer_load_dword v24, v6, {R(RWO)}, s{sT} offen\ns_mov_b64 exec, -1")
    A(f"v_mul_u32_u24 v6, 3584, v1\ns_and_b32 s{sT}, s2, 1\ns_lshl_b32 s{sT}, s{sT}, 5\ns_add_u32 s{sQ}, s{sQ}, s{sT}\ns_bfe_u32 s{sE}, s2, 0x20001\ns_mul_i32 s{sE}, s{sE}, 896")
    for k in range(env("NP1", 2)):
        A(f"s_add_u32 s{sT}, s{sQ}, {64*k}\ns_mul_i32 s{sU}, s{sT}, 2341\ns_lshr_b32 s{sU}, s{sU}, 16\ns_mul_i32 s{sV}, s{sU}, 28\ns_sub_u32 s{sT}, s{sT}, s{sV}")
        A(f"s_mul_i32 s{sV}, s{sT}, 9363\ns_lshr_b32 s{sV}, s{sV}, 16\ns_mul_i32 s{sC}, s{sV}, 7\ns_sub_u32 s{sT}, s{sT}, s{sC}")
        A(f"s_add_u32 s{sU}, s{sU}, s{sT}\ns_and_b32 s{sU}, s{sU}, 7\ns_lshl_b32 s{sV}, s{sV}, 3\ns_add_u32 s{sU}, s{sU}, s{sV}\ns_mul_i32 s{sU}, s{sU}, {64*3584}\ns_lshl_b32 s{sT}, s{sT}, 7\ns_add_u32 s{sU}, s{sU}, s{sT}\ns_add_u32 s{sU}, s{sU}, s{sE}")
        A(f"buffer_load_dword v{16+k}, v6, {R(RW1)}, s{sU} offen")
    stamp_flush()
    A("s_branch P2_START")

def p1():
    XA = LDS_TOTAL - 65536
    XF, ACC, WF = 16, 128, 192
    VXD = [224, 225, 226, 227]; VXE = [228, 229]; VWD = list(range(230, 237)); VXR = list(range(237, 245)); VXS = list(range(245, 249)); VWR = [249, 250]
    TAGV = 252
    sWO, sXO, sM, sWM = sA, sB, sC, sD_
    A(f"s_cmp_ge_u32 s{sJ}, 24\ns_cbranch_scc1 P1_HELP")
    A(f"s_mul_i32 s{sWO}, s{sSEC}, 896\ns_mul_i32 s{sT}, s{sHQ}, 224\ns_add_u32 s{sWO}, s{sWO}, s{sT}")
    A(f"s_lshl_b32 s{sE}, s{sI}, 2\ns_add_u32 s{sE}, s{sE}, s{SW}\ns_mul_i32 s{sXO}, s{sE}, {32*896}")
    A(f"s_lshl_b32 s{sM}, s{SW}, 14\ns_add_u32 s{sM}, s{sM}, {XA}\ns_lshl_b32 s{sWM}, s{SW}, 10")
    A("v_lshrrev_b32 v4, 4, v1\nv_and_b32 v5, 15, v1\nv_xor_b32 v5, v5, v4\nv_mul_u32_u24 v6, 896, v4")
    for j in range(4):
        A(f"v_xor_b32 v7, {4*j}, v5\nv_lshl_add_u32 v7, v7, 4, v6\nv_add_u32 v{VXD[j]}, {j*4*896 - j*1024}, v7")
    A(f"v_lshlrev_b32 v8, 7, v1\ns_lshr_b32 s{sT}, s{sJ}, 2\ns_lshl_b32 s{sT}, s{sT}, 2\ns_add_u32 s{sT}, s{sT}, s{SW}\ns_mul_i32 s{sT}, s{sT}, {38*128}\ns_mul_i32 s{sU}, s{sI}, {128*896}\ns_add_u32 s{sT}, s{sT}, s{sU}")
    A(f"v_and_b32 v9, 31, v1\nv_min_u32 v9, 27, v9\nv_mul_u32_u24 v9, 2688, v9\nv_lshrrev_b32 v10, 5, v1\nv_lshl_add_u32 v9, v10, 7, v9")
    A(f"s_and_b32 s{sU}, s{sE}, 15\ns_mul_i32 s{sU}, s{sU}, {28*2688}\ns_add_u32 s{sU}, s{sU}, s{sWO}")
    A("s_waitcnt lgkmcnt(0)")
    stamp("karg")
    if env("P1T", 0):
        set_exec((1 << 38) - 1)
        A(f"buffer_load_dword v11, v8, {R(RX)}, s{sT} offen\ns_mov_b64 exec, -1\nbuffer_load_dword v12, v9, {R(RWQ)}, s{sU} offen\nbuffer_load_dword v13, v9, {R(RWQ)}, s{sU} offen offset:96")
        for _ in range(3): vm.issue("touch")
    ops = []
    def xpiece(p):
        buf = (p & 1)*8192
        if p < 3:
            for j in range(8):
                pre = f"s_add_u32 m0, s{sM}, {buf + (j>>2)*4096}\ns_add_u32 s{sV}, s{sXO}, {(j>>2)*16*896 + p*256}\n" if j % 4 == 0 else ""
                ops.append((pre + f"buffer_load_dwordx4 v{VXD[j&3]}, {R(RX)}, s{sV} offen offset:{(j&3)*1024} lds", f"x{p}"))
        else:
            for j in range(4):
                ops.append((f"s_add_u32 m0, s{sM}, {buf + j*1024}\ns_add_u32 s{sV}, s{sXO}, {(j>>1)*16*896 + 768}\nbuffer_load_dwordx4 v{VXE[j&1]}, {R(RX)}, s{sV} offen lds", f"x{p}"))
    def wgroup(j0, j1, g):
        for j in range(j0, j1):
            ops.append((f"s_add_u32 m0, s{sWM}, {j*4096}\ns_add_u32 s{sT}, s{sWO}, {(j//7)*128*2688}\nbuffer_load_dwordx4 v{VWD[j%7]}, {R(RWQ)}, s{sT} offen lds", f"w{g}"))
    xpiece(0); wgroup(0, 7, 0); xpiece(1); wgroup(7, 14, 1); xpiece(2); wgroup(14, 21, 2); xpiece(3); wgroup(21, 24, 3)
    pos = [0]
    def issue(n):
        for t, tag in ops[pos[0]:pos[0]+n]: A(t); vm.issue(tag)
        pos[0] = min(len(ops), pos[0] + n)
    issue(8)
    for j in range(7):
        A(f"v_add_u32 v4, {256*j}, v0\nv_mul_u32_u24 v5, 4682, v4\nv_lshrrev_b32 v5, 16, v5\nv_mul_u32_u24 v6, 14, v5\nv_sub_u32 v4, v4, v6")
        A(f"v_and_b32 v6, 0xf8, v5\nv_and_b32 v7, 1, v5\nv_lshl_add_u32 v6, v7, 2, v6\nv_bfe_u32 v7, v5, 1, 2\nv_add_u32 v6, v6, v7\nv_mul_u32_u24 v6, 2688, v6\nv_lshl_add_u32 v{VWD[j]}, v4, 4, v6")
        issue(1)
    issue(env("P1PRO", 8))
    roles()
    A("v_lshrrev_b32 v4, 3, v1\nv_mul_u32_u24 v6, 896, v4\nv_lshrrev_b32 v4, 4, v1\nv_and_b32 v5, 7, v1\nv_xor_b32 v5, v5, v4")
    for j in range(2): A(f"v_xor_b32 v7, {4*j}, v5\nv_lshl_add_u32 v7, v7, 4, v6\nv_add_u32 v{VXE[j]}, {j*8*896}, v7")
    A(f"v_and_b32 v4, 31, v1\nv_lshrrev_b32 v5, 5, v1\nv_and_b32 v6, 15, v1\nv_xor_b32 v6, v6, v5\nv_lshlrev_b32 v6, 4, v6\nv_lshl_add_u32 v6, v4, 8, v6\nv_add_u32 v6, s{sM}, v6")
    for k in range(8): A(f"v_xor_b32 v{VXR[k]}, {k<<5}, v6")
    A(f"v_bfe_u32 v6, v1, 1, 3\nv_xor_b32 v6, v6, v5\nv_lshlrev_b32 v6, 4, v6\nv_lshl_add_u32 v6, v4, 7, v6\nv_add_u32 v6, s{sM}, v6")
    for k in range(4): A(f"v_xor_b32 v{VXS[k]}, {k<<5}, v6")
    tr_lane_addr(VWR[0], 4, 224, 8, 2); A(f"v_add_u32 v{VWR[1]}, {14*3584}, v{VWR[0]}")
    stamp("issued0"); stamp_flush()
    A(f"s_cmp_eq_u32 s{sSEC}, 2\ns_cbranch_scc1 P1_V")
    q0, p0 = list(vm.q), pos[0]
    for isv in (0, 1):
        vm.q = list(q0); pos[0] = p0; lg.q = []
        if isv: A("P1_V:")
        def xread(p):
            for k in range(8 if p < 3 else 4):
                A(f"ds_read_b128 {v(XF + (8*p+k)*4, 4)}, v{(VXR if p < 3 else VXS)[k]} offset:{(p&1)*8192}"); lg.issue(f"x{p}")
        def wread(ks, hds=range(4)):
            for hd in hds:
                for half in range(2):
                    A(f"ds_read_b64_tr_b16 {v(WF + (ks&1)*16 + hd*4 + half*2, 2)}, v{VWR[ks//14]} offset:{(ks%14)*3584 + half*224 + hd*56}"); lg.issue(f"w{ks}_{hd}")
        GR = WF
        for p in range(4):
            k0, k1 = 8*p, min(8*p + 8, 28)
            vm.wait(f"x{p}"); xread(p)
            if p == 3:
                vm.wait_all()
            else:
                vm.wait(f"w{p}")
            lg.wait_all()
            if p == 2:
                L = A.label("P1_TAIL")
                A(f"s_cmp_lg_u32 s{SW}, 0\ns_cbranch_scc1 {L}")
                A(f"s_mov_b32 m0, {96*1024}\ns_add_u32 s{sT}, s{sWO}, {3*128*2688}\nbuffer_load_dwordx4 v{VWD[3]}, {R(RWQ)}, s{sT} offen lds")
                A(f"v_add_u32 v4, {256*3+64}, v0\nv_mul_u32_u24 v5, 4682, v4\nv_lshrrev_b32 v5, 16, v5\nv_mul_u32_u24 v6, 14, v5\nv_sub_u32 v4, v4, v6")
                A(f"v_and_b32 v6, 0xf8, v5\nv_and_b32 v7, 1, v5\nv_lshl_add_u32 v6, v7, 2, v6\nv_bfe_u32 v7, v5, 1, 2\nv_add_u32 v6, v6, v7\nv_mul_u32_u24 v6, 2688, v6\nv_lshl_add_u32 v4, v4, 4, v6")
                A(f"s_mov_b32 m0, {97*1024}\nbuffer_load_dwordx4 v4, {R(RWQ)}, s{sT} offen lds\n{L}:")
            A("s_barrier"); stamp(f"g{p}")
            if p == 3:
                A(f"v_and_b32 v4, 31, v1\nv_lshlrev_b32 v4, 4, v4\ns_lshl_b32 s{sU}, s{sE}, 9\ns_add_u32 s{sU}, s{sU}, {WS_RST}\ns_lshl_b32 s{sV}, s{sWO}, 2\ns_add_u32 s{sV}, s{sV}, {WS_CSG}")
                A(f"v_min_u32 v5, 55, v1\nv_lshlrev_b32 v5, 4, v5\nv_add_u32 v6, 10752, v5\nv_add_u32 v7, 21504, v5\nv_add_u32 v8, 32256, v5")
                def gload():
                    A(f"buffer_load_dwordx4 v[16:19], v4, {R(RWS)}, s{sU} offen sc1")
                    for kq in range(4): A(f"buffer_load_dwordx4 {v(20+4*kq,4)}, v{5+kq}, {R(RWS)}, s{sV} offen sc1")
                gload()
            wread(k0)
            for ks in range(k0, k1):
                x = v(XF + ks*4, 4)
                for hd in range(4):
                    lg.wait(f"w{ks}_{hd}")
                    w_ = v(WF + (ks&1)*16 + hd*4, 4); acc = v(ACC + 16*hd, 16)
                    A(f"{MFMA} {acc}, {x if isv else w_}, {w_ if isv else x}, {'0' if ks == 0 else acc}")
                    if ks + 1 < k1: wread(ks + 1, [hd])
                    if hd in (1, 3): issue(1)
                if p == 2 and ks == k1 - 1:
                    A(f"v_mov_b32 v4, 0\nbuffer_load_dwordx2 {v(TAGV,2)}, v4, {R(RDBG)}, 0 offen sc1"); vm.issue("tag")
        assert pos[0] == len(ops)
        stamp("mfma_done")
        get_tag(TAGV, f"P1_T{isv}")
        L = A.label("P1_G")
        A(f"v_and_b32 v4, 31, v1\nv_lshlrev_b32 v4, 4, v4\ns_mov_b32 s{sTO}, 0x40000\ns_branch {L}_c\n{L}:")
        gload()
        A(f"{L}_c:\ns_sub_u32 s{sTO}, s{sTO}, 1\ns_waitcnt vmcnt(0)\ns_cbranch_scc1 {L}_x")
        tagcheck([16, 20, 24, 28, 32], 9, 10, 11)
        A(f"s_cbranch_vccnz {L}\n{L}_x:")
        vm.q = []
        stamp("gran")
        A("v_add_f32 v20, v20, v24\nv_add_f32 v28, v28, v32\nv_add_f32 v22, v22, v26\nv_add_f32 v30, v30, v34\nv_add_f32 v20, v20, v28\nv_add_f32 v21, v22, v30")
        A(f"s_add_u32 s{sT}, s{sM}, 8192\nv_lshl_add_u32 v4, v1, 3, s{sT}\nds_write_b64 v4, v[20:21]\nv_lshrrev_b32 v5, 5, v1\nv_lshl_add_u32 v5, v5, 4, s{sT}")
        PK = 96
        A(f"s_lshl_b32 s{sU}, s{sHQ}, 8\ns_add_u32 s{sU}, s{sU}, s{sE}")
        if not isv:
            QS = DH ** -0.5 * math.log2(math.e)
            A(f"s_cmp_eq_u32 s{sSEC}, 0\ns_cselect_b32 s{sV}, {fl(QS)}, 1.0\ns_cselect_b32 s{sA}, 0, s{sONES}\ns_cselect_b32 s{sB}, 0, 0x3f80\ns_cselect_b32 s{sC}, {WS_Q}, {WS_KV}")
            A(f"s_add_u32 s{sD_}, s{sSEC}, 11\ns_lshl_b32 s{sU}, s{sU}, s{sD_}\ns_add_u32 s{sU}, s{sU}, s{sC}\ns_lshl_b32 s{sD_}, 64, s{sD_}")
            A(f"v_mul_f32 v16, s{sV}, v16\nv_mul_f32 v18, s{sV}, v18\nv_mov_b32 v12, s{sA}\nv_mov_b32 v13, s{sB}")
            for hd in range(4):
                for g in range(4): A(f"ds_read_b128 {v(32+16*hd+4*g,4)}, v5 offset:{hd*112 + g*32}"); lg.issue(f"c{hd}")
            for hd in range(4):
                lg.wait(f"c{hd}")
                c, ac = 32+16*hd, ACC+16*hd
                for r in range(0, 16, 2): A(f"v_pk_mul_f32 {v(c+r,2)}, {v(c+r,2)}, v[16:17] op_sel_hi:[1,0]")
                for r in range(0, 16, 2): A(f"v_pk_fma_f32 {v(ac+r,2)}, {v(ac+r,2)}, v[18:19], {v(c+r,2)} op_sel_hi:[1,0,1]")
                for r in range(8): A(f"v_cvt_pk_bf16_f32 v{PK+8*hd+r}, v{ac+2*r}, v{ac+2*r+1}")
                A(f"v_cndmask_b32 v{PK+8*hd+6}, v{PK+8*hd+6}, v12, s[{sHI}:{sHI+1}]\nv_cndmask_b32 v{PK+8*hd+7}, v{PK+8*hd+7}, v13, s[{sHI}:{sHI+1}]")
                for f in range(2): A(f"buffer_store_dwordx4 {v(PK+8*hd+4*f,4)}, v{VL}, {R(RWS)}, s{sU} offen offset:{f*1024} sc1")
                A(f"s_add_u32 s{sU}, s{sU}, s{sD_}")
        else:
            A(f"s_lshl_b32 s{sU}, s{sU}, 12\ns_add_u32 s{sU}, s{sU}, {WS_KV + 2048}")
            A(f"v_cndmask_b32 v6, v18, v16, s[{sHI}:{sHI+1}]\nv_lshl_add_u32 v4, v1, 2, s{sT}\nds_write_b32 v4, v6 offset:512")
            A(f"v_and_b32 v6, 31, v1\nv_lshl_add_u32 v4, v6, 2, s{sT}")
            for g in range(4): A(f"ds_read_b128 {v(32+4*g,4)}, v5 offset:{512 + g*32}\nds_read_b128 {v(48+4*g,4)}, v5 offset:{640 + g*32}")
            for hd in range(4): A(f"ds_read_b32 v{24+2*hd}, v4 offset:{hd*112}")
            A(f"v_cmp_eq_u32 vcc, 28, v6\nv_mov_b32 v13, s{sONES}\nv_cndmask_b32 v12, 0, v13, vcc\nv_cmp_lt_u32 s[{sA}:{sA+1}], 27, v6\ns_waitcnt lgkmcnt(0)")
            for hd in range(4):
                ac = ACC+16*hd
                for r in range(0, 16, 2): A(f"v_pk_mul_f32 {v(64+r,2)}, {v(48+r,2)}, {v(24+2*hd,2)} op_sel_hi:[1,0]")
                for r in range(0, 16, 2): A(f"v_pk_fma_f32 {v(ac+r,2)}, {v(ac+r,2)}, {v(32+r,2)}, {v(64+r,2)}")
                for r in range(8): A(f"v_cvt_pk_bf16_f32 v{PK+8*hd+r}, v{ac+2*r}, v{ac+2*r+1}")
                for r in range(8): A(f"v_cndmask_b32 v{PK+8*hd+r}, v{PK+8*hd+r}, v12, s[{sA}:{sA+1}]")
                for f in range(2): A(f"buffer_store_dwordx4 {v(PK+8*hd+4*f,4)}, v{VL}, {R(RWS)}, s{sU} offen offset:{f*1024} sc1")
                A(f"s_add_u32 s{sU}, s{sU}, {64*4096}")
        stamp("kvst"); stamp_flush()
        if not isv: A("s_branch P1_DONE")
    A("P1_DONE:")

def tilemax(sreg, T0, T1):
    A(f"v_max3_f32 v{T0}, v{sreg}, v{sreg+1}, v{sreg+2}\nv_max3_f32 v{T1}, v{sreg+3}, v{sreg+4}, v{sreg+5}")
    A(f"v_max3_f32 v{T0}, v{T0}, v{sreg+6}, v{sreg+7}\nv_max3_f32 v{T1}, v{T1}, v{sreg+8}, v{sreg+9}")
    A(f"v_max3_f32 v{T0}, v{T0}, v{sreg+10}, v{sreg+11}\nv_max3_f32 v{T1}, v{T1}, v{sreg+12}, v{sreg+13}")
    A(f"v_max3_f32 v{T0}, v{T0}, v{sreg+14}, v{sreg+15}")
def set_qpad(q, m, T0, T1, T2):
    A(f"v_sub_f32 v{T0}, 0, v{m}\nv_and_b32 v{T1}, 0xffff0000, v{T0}\nv_sub_f32 v{T0}, v{T0}, v{T1}")
    A(f"v_and_b32 v{T2}, 0xffff0000, v{T0}\nv_sub_f32 v{T0}, v{T0}, v{T2}\nv_lshrrev_b32 v{T0}, 16, v{T0}")
    A(f"v_lshrrev_b32 v{T1}, 16, v{T1}\nv_or_b32 v{T1}, v{T1}, v{T2}")
    A(f"v_cndmask_b32 v{q+6}, v{q+6}, v{T1}, s[{sHI}:{sHI+1}]\nv_cndmask_b32 v{q+7}, v{q+7}, v{T0}, s[{sHI}:{sHI+1}]")

VT1 = list(range(224, 232))
VKV = 232
VT2 = [240, 241, 242, 243]
VRD, VFL, VONE = [244, 245], 246, 248
VTW, VTR = 250, [251, 252]
def addr_setup():
    A(f"s_mul_i32 s{sRBW}, s{SW}, 12288\ns_add_u32 s{sRBW}, s{sRBW}, {RBUF}\ns_mul_i32 s{sW2W}, s{SW}, 28672")
    A("v_lshrrev_b32 v4, 3, v1\nv_bfe_u32 v5, v1, 4, 1\nv_lshlrev_b32 v5, 2, v5\nv_and_b32 v6, 7, v1\nv_xor_b32 v6, v6, v5\nv_lshlrev_b32 v6, 4, v6")
    A(f"v_mul_u32_u24 v5, 3584, v4\nv_add_u32 v{VT1[0]}, v5, v6")
    for j in range(1, 8): A(f"v_add_u32 v{VT1[j]}, {j*8*3584}, v{VT1[0]}")
    A(f"v_lshl_add_u32 v{VT2[0]}, v4, 12, v6")
    for j in range(1, 4): A(f"v_add_u32 v{VT2[j]}, {j*8*4096 - j*1024}, v{VT2[0]}")
    tr_lane_addr(4, 5, 128, 4)
    A(f"v_bfe_u32 v5, v1, 3, 1\ns_lshr_b32 s{sT}, s{SW}, 1\nv_xor_b32 v5, s{sT}, v5")
    A(f"v_lshl_add_u32 v6, v5, 6, v4\nv_xor_b32 v5, 1, v5\nv_lshl_add_u32 v7, v5, 6, v4")
    A(f"v_add_u32 v{VRD[0]}, s{sW2W}, v6\nv_add_u32 v{VRD[1]}, s{sW2W}, v7\ns_add_u32 s{sT}, s{sRBW}, 10240")
    A(f"v_add_u32 v{VTR[0]}, s{sT}, v6\nv_add_u32 v{VTR[1]}, s{sT}, v7\nv_add_u32 v{VTW}, s{sT}, v{VL}")
    A(f"v_lshlrev_b32 v{VFL}, 7, v1\nv_mov_b32 v{VONE}, 0x3f80\nv_mov_b32 v{VONE+1}, 1.0")
    A(f"s_lshl_b32 s{sT}, s{sH}, 6\ns_add_u32 s{sT}, s{sT}, s{SW}\ns_lshl_b32 s{sT}, s{sT}, 12\ns_add_u32 s{sT}, s{sT}, {WS_KV}\nv_add_u32 v{VKV}, s{sT}, v{VL}")
def w_init():
    A(f"s_mul_i32 s{sW1S}, s{SW}, {512*3584}\ns_lshl_b32 s{sT}, s{sFT}, 7\ns_add_u32 s{sW1S}, s{sW1S}, s{sT}\ns_add_u32 s{sW1E}, s{sW1S}, {512*3584}")
    rot4(sT); A(f"s_mul_i32 s{sT}, s{sT}, {16*3584}\ns_add_u32 s{sW1}, s{sW1S}, s{sT}")
    A(f"s_mul_i32 s{sW2S}, s{SW}, {448*4096}\ns_lshl_b32 s{sT}, s{sST}, 7\ns_add_u32 s{sW2S}, s{sW2S}, s{sT}\ns_add_u32 s{sW2E}, s{sW2S}, {448*4096}")
    rot5(sT); A(f"s_lshl_b32 s{sT}, s{sT}, 16\ns_add_u32 s{sW2}, s{sW2S}, s{sT}")
def w2group(g):
    l = [f"s_add_u32 m0, s{sW2W}, {g*4096}"]
    l += [f"buffer_load_dwordx4 v{VT2[j]}, {R(RW2)}, s{sW2} offen offset:{j*1024} lds" for j in range(4)]
    l += [f"s_add_u32 s{sW2}, s{sW2}, {32*4096}", f"s_cmp_eq_u32 s{sW2}, s{sW2E}", f"s_cselect_b32 s{sW2}, s{sW2S}, s{sW2}"]
    return l
def w1_transform(n):
    l = [f"ds_write_b128 v{VTW}, {a(8*n,4)}", f"ds_write_b128 v{VTW}, {a(8*n+4,4)} offset:1024"]
    l += [f"ds_read_b64_tr_b16 {a(8*n + ti*4 + half*2, 2)}, v{VTR[ti]} offset:{half*1024}" for ti in range(2) for half in range(2)]
    return l

def p2():
    Q, O, SS, PP, KV = 16, 48, [112, 128], [144, 152], 160
    M = [112, 113, 114, 115]; K0 = 120
    T0, T1, T2, T3 = 4, 5, 6, 7
    sKN = sB
    addr_setup()
    vm.wait_all(); stamp("kvdrain")
    flag_store(sF[0]); stamp_flush()
    A("s_branch P2_GO\nP2_START:")
    addr_setup()
    A("P2_GO:")
    A(f"s_lshr_b32 s{sT}, s{sH}, 2\ns_lshl_b32 s{sT}, s{sT}, 2\ns_add_u32 s{sT}, s{sT}, s{SW}\ns_lshl_b32 s{sT}, s{sT}, 13\ns_add_u32 s{sT}, s{sT}, {F1}")
    A(f"s_lshl_b32 s{sU}, s{sH}, 6\ns_lshl_b32 s{sV}, s{sI}, 2\ns_add_u32 s{sU}, s{sU}, s{sV}\ns_add_u32 s{sU}, s{sU}, s{SW}\ns_lshl_b32 s{sU}, s{sU}, 11")
    A("s_barrier")
    poll(VFL, sT, 48, 8); stamp("s1")
    def kvload(n):
        pre = [f"s_lshl_b32 s{sKN}, s{sI}, 14"] if n == 0 else [f"s_add_u32 s{sKN}, s{sKN}, 16384", f"s_and_b32 s{sKN}, s{sKN}, 0x3ffff"]
        return pre + [f"buffer_load_dwordx4 {v(KV+16*(n&3)+4*f,4)}, v{VKV}, {R(RWS)}, s{sKN} offen offset:{f*1024} sc1" for f in range(4)]
    def emit(lines, tag):
        for ln in lines:
            A(ln)
            if ln.startswith("buffer_"): vm.issue(tag)
    for f in range(2): A(f"buffer_load_dwordx4 {v(Q+4*f,4)}, v{VL}, {R(RWS)}, s{sU} offen offset:{f*1024} sc1"); vm.issue("q")
    for n in range(4): emit(kvload(n), f"kv{n}")
    w_init()
    QX = RBUF
    A(f"s_lshl_b32 s{sT}, s{SW}, 11\ns_add_u32 s{sT}, s{sT}, {QX}\nv_add_u32 v8, s{sT}, v{VL}")
    for t in range(1, 4):
        A(f"s_add_u32 s{sT}, s{SW}, {t}\ns_and_b32 s{sT}, s{sT}, 3\ns_lshl_b32 s{sT}, s{sT}, 11\ns_add_u32 s{sT}, s{sT}, {QX}\nv_add_u32 v{8+t}, s{sT}, v{VL}")
    A("s_waitcnt vmcnt(14)"); stamp("qk0")
    A(f"{MFMA} {v(O,16)}, {v(KV,4)}, {v(Q,4)}, 0\n{MFMA} {v(O,16)}, {v(KV+4,4)}, {v(Q+4,4)}, {v(O,16)}")
    A(f"ds_write_b128 v8, {v(Q,4)}")
    tilemax(O, T0, T1)
    A(f"v_max_f32 v{T0}, v{T0}, v{T1}\nv_mov_b32 v{T1}, v{T0}\nv_permlane32_swap_b32 v{T0}, v{T1}\nv_max_f32 v{T0}, v{T0}, v{T1}")
    set_qpad(Q, T0, T1, T2, T3)
    A(f"ds_write_b128 v8, {v(Q+4,4)} offset:1024\ns_waitcnt lgkmcnt(0)\ns_barrier")
    for t in range(1, 4): A(f"ds_read_b128 {v(Q+8*t,4)}, v{8+t}\nds_read_b128 {v(Q+8*t+4,4)}, v{8+t} offset:1024")
    A("P2_MAIN:")
    def qk(idx, part):
        n, t = idx >> 2, idx & 3; sr = SS[idx & 1]; k = KV + 16*(n & 3)
        return f"{MFMA} {v(sr,16)}, {v(k+4*part,4)}, {v(Q+8*t+4*part,4)}, {'0' if part == 0 else v(sr,16)}"
    def pv(idx, part):
        n, t = idx >> 2, idx & 3; k = KV + 16*(n & 3) + 8; o = O + 16*t
        return f"{MFMA} {v(o,16)}, {v(k+4*part,4)}, {v(PP[idx&1]+4*part,4)}, {'0' if (n == 0 and part == 0) else v(o,16)}"
    NI = 64
    side = [[] for _ in range(NI)]
    for n in range(1, 13):
        l = kvload(n + 3)
        side[4*n+1] += [(x, f"kv{n+3}") for x in l[:4]]; side[4*n+2] += [(x, f"kv{n+3}") for x in l[4:]]
    bulk = []
    if env("PF1", 1):
        for g in range(8):
            for j in range(8): bulk.append([f"buffer_load_dwordx4 {a(32*g+4*j,4)}, v{VT1[j]}, {R(RW1)}, s{sW1} offen"])
            bulk[-1] += [f"s_add_u32 s{sW1}, s{sW1}, {64*3584}", f"s_cmp_eq_u32 s{sW1}, s{sW1E}", f"s_cselect_b32 s{sW1}, s{sW1S}, s{sW1}"]
            if g < 7 and env("PF2", 1):
                l = w2group(g); bulk += [l[0:2], l[2:3], l[3:4], l[4:]]
    b0, b1 = env("B0", 1), env("B1", 60)
    for k, l in enumerate(bulk): side[b0 + k*(b1 - b0)//len(bulk)] += [(x, "bulk") for x in l]
    A(qk(0, 0)); A(qk(0, 1)); A("s_waitcnt lgkmcnt(0)")
    for idx in range(NI):
        n, t = idx >> 2, idx & 3
        if idx in (16, 32, 48): stamp(f"a{idx}")
        if idx == 1: vm.wait("kv0")
        if t == 3 and n + 1 < 16: vm.wait(f"kv{n+1}")
        mf = [qk(idx+1, 0) if idx+1 < NI else None, pv(idx-1, 0) if idx > 0 else None,
              qk(idx+1, 1) if idx+1 < NI else None, pv(idx-1, 1) if idx > 0 else None]
        sr, p = SS[idx & 1], PP[idx & 1]
        ins = list(side[idx])
        slots = [(k*16)//len(ins) for k in range(len(ins))] if ins else []
        for q in range(4):
            if mf[q]: A(mf[q])
            for j in range(4):
                A(f"v_exp_f32 v{sr+4*q+j}, v{sr+4*q+j}")
                for k, (ln, tag) in enumerate(ins):
                    if slots[k] == 4*q + j: emit([ln], tag)
            if q > 0:
                for j in range(2): A(f"v_cvt_pk_bf16_f32 v{p+2*(q-1)+j}, v{sr+4*(q-1)+2*j}, v{sr+4*(q-1)+2*j+1}")
        for j in range(2): A(f"v_cvt_pk_bf16_f32 v{p+6+j}, v{sr+12+2*j}, v{sr+12+2*j+1}")
    A(pv(NI-1, 0)); A(pv(NI-1, 1)); stamp("aend")
    for t in range(1, 4):
        A(f"s_add_u32 s{sT}, s{SW}, {t}\ns_and_b32 s{sT}, s{sT}, 3\ns_mul_i32 s{sT}, s{sT}, 12288\ns_add_u32 s{sT}, s{sT}, {RBUF}\nv_add_u32 v{8+t}, s{sT}, v{VL}")
    for t in (1, 2):
        for g in range(3): A(f"ds_write_b128 v{8+t}, {v(O+16*t+4*g,4)} offset:{(t-1)*4096 + g*1024}")
    A(f"s_mov_b32 s{sT}, {fl(2.0**30)}")
    A(f"v_cmp_nlt_f32 s[{sA}:{sA+1}], v{O+12}, s{sT}\nv_cmp_nlt_f32 s[{sC}:{sC+1}], v{O+28}, s{sT}\ns_or_b32 s{sU}, s{sA+1}, s{sC+1}")
    A(f"v_cmp_nlt_f32 s[{sA}:{sA+1}], v{O+44}, s{sT}\nv_cmp_nlt_f32 s[{sC}:{sC+1}], v{O+60}, s{sT}\ns_or_b32 s{sU}, s{sU}, s{sA+1}\ns_or_b32 s{sU}, s{sU}, s{sC+1}")
    A(f"s_cselect_b32 s{sU}, 1.0, 0\nv_mov_b32 v{T0}, s{sU}")
    for t in range(4): A(f"v_cndmask_b32 v{O+16*t+13}, v{O+16*t+13}, v{T0}, s[{sHI}:{sHI+1}]")
    for g in range(3): A(f"ds_write_b128 v11, {v(O+48+4*g,4)} offset:{2*4096 + g*1024}")
    for t in range(1, 4): A(f"ds_write_b128 v{8+t}, {v(O+16*t+12,4)} offset:{(t-1)*4096 + 3*1024}")
    A(f"v_add_u32 v{T2}, s{sRBW}, v{VL}")
    A(f"s_lshl_b32 s{sV}, s{sI}, 2\ns_add_u32 s{sV}, s{sV}, s{SW}\ns_lshl_b32 s{sV}, s{sV}, 4\ns_add_u32 s{sV}, s{sV}, s{sH}\ns_lshl_b32 s{sV}, s{sV}, 11\ns_add_u32 s{sV}, s{sV}, {WS_O}")
    A("s_waitcnt lgkmcnt(0)\ns_barrier")
    for g in (3, 0, 1, 2):
        for t in range(1, 4): A(f"ds_read_b128 {v(O+16*t+4*g,4)}, v{T2} offset:{(t-1)*4096 + g*1024}")
    def red(g):
        for r in (4*g, 4*g+2):
            A(f"v_pk_add_f32 {v(O+r,2)}, {v(O+r,2)}, {v(O+16+r,2)}\nv_pk_add_f32 {v(O+32+r,2)}, {v(O+32+r,2)}, {v(O+48+r,2)}")
        for r in (4*g, 4*g+2): A(f"v_pk_add_f32 {v(O+r,2)}, {v(O+r,2)}, {v(O+32+r,2)}")
    A("s_waitcnt lgkmcnt(9)"); red(3)
    A(f"v_readlane_b32 s{sT}, v{O+13}, 32\nv_mov_b32 v{T0}, v{O+12}\nv_mov_b32 v{T2}, v{O+12}\nv_permlane32_swap_b32 v{T0}, v{T2}\nv_rcp_f32 v{T2}, v{T2}")
    A(f"s_cmp_lg_u32 s{sT}, s{sRETRY}\ns_cbranch_scc1 P2_FALL\nP2_FIN:")
    for k, g in enumerate((0, 1, 2)):
        A(f"s_waitcnt lgkmcnt({6 - 3*k})"); red(g)
    for r in range(0, 16, 2): A(f"v_pk_mul_f32 {v(O+r,2)}, {v(O+r,2)}, {v(T2,2)} op_sel_hi:[1,0]")
    for r in range(8): A(f"v_cvt_pk_bf16_f32 v{O+16+r}, v{O+2*r}, v{O+2*r+1}")
    A(f"v_cndmask_b32 v{O+22}, v{O+22}, 0, s[{sHI}:{sHI+1}]\nv_cndmask_b32 v{O+23}, v{O+23}, 0, s[{sHI}:{sHI+1}]")
    for f in range(2): A(f"buffer_store_dwordx4 {v(O+16+4*f,4)}, v{VL}, {R(RWS)}, s{sV} offen offset:{f*1024} sc1"); vm.issue("ost")
    stamp("ost"); stamp_flush()
    def fallback():
        A(f"P2_FALL:\ns_cmp_lg_u32 s{sRETRY}, 0\ns_cbranch_scc1 P2_FIN")
        A(f"s_mov_b32 s{sRETRY}, -1\ns_waitcnt vmcnt(0) lgkmcnt(0)")
        for t in range(4):
            A(f"v_cndmask_b32 v{Q+8*t+6}, v{Q+8*t+6}, 0, s[{sHI}:{sHI+1}]\nv_cndmask_b32 v{Q+8*t+7}, v{Q+8*t+7}, 0, s[{sHI}:{sHI+1}]\nv_mov_b32 v{M[t]}, 0xff800000")
        A(f"s_mov_b32 s{sU}, 0\nP2_MAXLOOP:")
        for f in range(2): A(f"buffer_load_dwordx4 {v(K0+4*f,4)}, v{VKV}, {R(RWS)}, s{sU} offen offset:{f*1024} sc1")
        A("s_waitcnt vmcnt(0)")
        for t in range(4):
            A(f"{MFMA} {v(O+16*t,16)}, {v(K0,4)}, {v(Q+8*t,4)}, 0\n{MFMA} {v(O+16*t,16)}, {v(K0+4,4)}, {v(Q+8*t+4,4)}, {v(O+16*t,16)}")
        for t in range(4):
            tilemax(O+16*t, T0, T1); A(f"v_max3_f32 v{M[t]}, v{M[t]}, v{T0}, v{T1}")
        A(f"s_add_u32 s{sU}, s{sU}, 16384\ns_cmp_lt_u32 s{sU}, {16*16384}\ns_cbranch_scc1 P2_MAXLOOP")
        A(f"s_barrier\nv_and_b32 v{T3}, 31, v1\nv_lshlrev_b32 v{T3}, 4, v{T3}")
        for t in range(4):
            A(f"v_mov_b32 v{T2}, v{M[t]}\nv_permlane32_swap_b32 v{M[t]}, v{T2}\nv_max_f32 v{M[t]}, v{M[t]}, v{T2}")
            A(f"s_add_u32 s{sT}, s{SW}, {t}\ns_and_b32 s{sT}, s{sT}, 3\ns_lshl_b32 s{sT}, s{sT}, 9\ns_add_u32 s{sT}, s{sT}, {RBUF}\ns_lshl_b32 s{sU}, s{SW}, 2\ns_add_u32 s{sU}, s{sU}, s{sT}")
            A(f"v_add_u32 v{K0+t}, s{sT}, v{T3}\nv_add_u32 v{T2}, s{sU}, v{T3}\nds_write_b32 v{T2}, v{M[t]}")
        A("s_waitcnt lgkmcnt(0)\ns_barrier")
        for t in range(4): A(f"ds_read_b128 {v(O+4*t,4)}, v{K0+t}")
        for n in range(4):
            for ln in kvload(n): A(ln)
        w_init()
        A("s_waitcnt vmcnt(0) lgkmcnt(0)\ns_barrier")
        for t in range(4):
            A(f"v_max3_f32 v{M[t]}, v{O+4*t}, v{O+4*t+1}, v{O+4*t+2}\nv_max_f32 v{M[t]}, v{M[t]}, v{O+4*t+3}")
            set_qpad(Q+8*t, M[t], T0, T1, T2)
        A("s_branch P2_MAIN")
    return fallback

NT2, NT3, NT4 = env("NT2", 10), env("NT3", 4), env("NT4", 6)
def transforms(n0, n1):
    for n in range(n0, n1):
        for ln in w1_transform(n): A(ln)

def p3():
    OFR, D1, D2, TF, XR, IR = 16, 144, 160, 176, 184, 192
    T0, T1, T2, T3, VWO = 8, 9, 10, 11, 12
    A(f"s_cmp_lt_u32 s{sH}, 14\ns_cbranch_scc1 P3_GO")
    q0 = list(vm.q)
    vm.wait("ost"); flag_store(sF[1])
    transforms(0, NT2 + NT3)
    A("s_branch P3_END\nP3_GO:")
    vm.q = q0
    A(f"v_lshrrev_b32 v{T0}, 2, v1\nv_mul_u32_u24 v{T0}, 896, v{T0}\nv_and_b32 v{T1}, 3, v1\nv_lshl_add_u32 v{T0}, v{T1}, 4, v{T0}\nv_add_u32 v13, {16*896 - 1024}, v{T0}")
    A(f"s_and_b32 s{sA}, s{sH}, 7\ns_lshl_b32 s{sA}, s{sA}, 1\ns_lshl_b32 s{sB}, s{SW}, 2\ns_add_u32 s{sB}, s{sB}, s{sA}\ns_lshl_b32 s{sC}, s{sH}, 6")
    for k in range(4):
        A(f"s_add_u32 s{sT}, s{sB}, {k}\ns_and_b32 s{sT}, s{sT}, 15\ns_mul_i32 s{sT}, s{sT}, {28*896}\ns_add_u32 m0, s{sRBW}, {k*2048}\ns_add_u32 s{sT}, s{sT}, s{sC}")
        A(f"buffer_load_dwordx4 v{T0}, {R(RWO)}, s{sT} offen lds\nbuffer_load_dwordx4 v13, {R(RWO)}, s{sT} offen offset:1024 lds"); vm.issue("wo"); vm.issue("wo")
    A(f"v_and_b32 v{T1}, 31, v1\nv_mul_u32_u24 v{T1}, 896, v{T1}\nv_lshrrev_b32 v{T2}, 5, v1\nv_lshl_add_u32 v{T1}, v{T2}, 4, v{T1}")
    A(f"s_lshl_b32 s{sD_}, s{sI}, 2\ns_add_u32 s{sD_}, s{sD_}, s{SW}\ns_mul_i32 s{sT}, s{sD_}, {32*896}\ns_add_u32 s{sT}, s{sT}, s{sC}")
    for p in range(2): A(f"buffer_load_dwordx4 {v(XR+4*p,4)}, v{T1}, {R(RX)}, s{sT} offen offset:{32*p}"); vm.issue("xr")
    A(f"v_and_b32 v{T3}, 31, v1\nv_lshlrev_b32 v{T2}, 3, v{T2}\nv_sub_u32 v{T3}, v{T3}, v{T2}")
    for p in range(2):
        for r in range(4):
            A(f"v_cmp_eq_u32 vcc, {16*p+2*r}, v{T3}\nv_cmp_eq_u32 s[{sU}:{sU+1}], {16*p+2*r+1}, v{T3}\nv_cndmask_b32 v{IR+4*p+r}, 0, v{VONE}, vcc\nv_cndmask_b32 v{IR+4*p+r}, v{IR+4*p+r}, v{VONE+1}, s[{sU}:{sU+1}]")
    tr_lane_addr(VWO, T0, 64, 4); A(f"v_add_u32 v{VWO}, {RBUF}, v{VWO}")
    vm.wait("ost"); stamp("odrain"); flag_store(sF[1])
    transforms(0, NT2)
    vm.wait("xr")
    A(f"{MFMA} {v(D1,16)}, {v(XR,4)}, {v(IR,4)}, 0\n{MFMA} {v(D2,16)}, {v(IR,4)}, {v(XR,4)}, 0")
    A(f"{MFMA} {v(D1,16)}, {v(XR+4,4)}, {v(IR+4,4)}, {v(D1,16)}\n{MFMA} {v(D2,16)}, {v(IR+4,4)}, {v(XR+4,4)}, {v(D2,16)}")
    A(f"s_lshl_b32 s{sT}, s{sH}, 7\ns_sub_u32 s{sT}, s{sF[1]}, s{sT}\ns_lshl_b32 s{sB}, s{sD_}, 15\ns_add_u32 s{sB}, s{sB}, {WS_O}\nv_add_u32 v{T2}, s{sB}, v{VL}\ns_lshl_b32 s{sA}, s{sA}, 11")
    A("s_barrier"); stamp("s2pre")
    poll(VFL, sT, 16, T0); stamp("s2")
    def oload(m):
        for k in range(4): A(f"buffer_load_dwordx4 {v(OFR+16*m+4*k,4)}, v{T2}, {R(RWS)}, s{sA} offen offset:{k*1024} sc1"); vm.issue(f"o{4*m+k}")
        A(f"s_add_u32 s{sA}, s{sA}, 4096\ns_and_b32 s{sA}, s{sA}, 0x7fff")
    NPRE = 3
    for m in range(NPRE): oload(m)
    lg.q = ["t"] * 15
    def wread(ks):
        n, p = ks >> 1, ks & 1
        for half in range(2):
            A(f"ds_read_b64_tr_b16 {v(TF+4*(ks&1)+2*half,2)}, v{VWO} offset:{(n>>2)*12288 + (n&3)*2048 + (16*p+8*half)*64}"); lg.issue(f"w{ks}")
    wread(0)
    for ks in range(32):
        if ks + 1 < 32: wread(ks + 1)
        vm.wait(f"o{ks}"); lg.wait(f"w{ks}")
        o, wv = v(OFR+4*ks, 4), v(TF+4*(ks&1), 4)
        A(f"{MFMA} {v(D2,16)}, {wv}, {o}, {v(D2,16)}\n{MFMA} {v(D1,16)}, {o}, {wv}, {v(D1,16)}")
        if ks % 4 == 1 and NPRE + ks//4 < 8: oload(NPRE + ks//4)
    stamp("p3mm")
    G = 16
    A(f"s_lshl_b32 s{sB}, s{sD_}, 13\ns_add_u32 s{sB}, s{sB}, {WS_ST}\ns_lshl_b32 s{sT}, s{sH}, 9\ns_add_u32 s{sT}, s{sT}, s{sB}")
    A(f"v_mov_b32 v{G+1}, s{sTAG}\nv_mov_b32 v{G+3}, s{sTAG+1}")
    A(f"v_pk_add_f32 v[20:21], {v(D2,2)}, {v(D2+2,2)}\nv_pk_mul_f32 v[22:23], {v(D2,2)}, {v(D2,2)}\nv_pk_fma_f32 v[22:23], {v(D2+2,2)}, {v(D2+2,2)}, v[22:23]")
    for r in range(4, 16, 2): A(f"v_pk_add_f32 v[20:21], v[20:21], {v(D2+r,2)}\nv_pk_fma_f32 v[22:23], {v(D2+r,2)}, {v(D2+r,2)}, v[22:23]")
    A(f"v_add_f32 v{G}, v20, v21\nv_add_f32 v{G+2}, v22, v23")
    A(f"v_mov_b32 v20, v{G}\nv_mov_b32 v22, v{G+2}\nv_permlane32_swap_b32 v{G}, v20\nv_permlane32_swap_b32 v{G+2}, v22\nv_add_f32 v{G}, v{G}, v20\nv_add_f32 v{G+2}, v{G+2}, v22")
    set_exec(0xFFFFFFFF)
    A(f"buffer_store_dwordx4 {v(G,4)}, v{VL}, {R(RWS)}, s{sT} offen sc1\ns_mov_b64 exec, -1")
    for r in range(8): A(f"v_cvt_pk_bf16_f32 v{24+r}, v{D2+2*r}, v{D2+2*r+1}")
    A(f"s_mul_i32 s{sT}, s{sD_}, 14\ns_add_u32 s{sT}, s{sT}, s{sH}\ns_lshl_b32 s{sT}, s{sT}, 11\ns_add_u32 s{sT}, s{sT}, {WS_HF}")
    for p in range(2): A(f"buffer_store_dwordx4 {v(24+4*p,4)}, v{VL}, {R(RWS)}, s{sT} offen offset:{p*1024} sc1")
    A(f"v_and_b32 v{T0}, 31, v1\nv_lshlrev_b32 v{T0}, 4, v{T0}\nv_lshrrev_b32 v{T1}, 5, v1\nv_mul_u32_u24 v{T1}, 3584, v{T1}\nv_add_u32 v{T0}, v{T0}, v{T1}")
    transforms(NT2, NT2 + NT3)
    stamp("s3pre")
    GR = 32
    A(f"s_mov_b32 s{sTO}, 0x40000\nP3_GL:")
    for k in range(7): A(f"buffer_load_dwordx4 {v(GR+4*k,4)}, v{T0}, {R(RWS)}, s{sB} offen offset:{k*512} sc1")
    A(f"s_sub_u32 s{sTO}, s{sTO}, 1\ns_waitcnt vmcnt(0)\ns_cbranch_scc1 P3_GX")
    tagcheck([GR+4*k for k in range(7)], T1, T2, T3)
    A("s_cbranch_vccnz P3_GL\nP3_GX:")
    vm.q = []
    stamp("s3")
    for k in range(1, 7): A(f"v_add_f32 v{GR}, v{GR}, v{GR+4*k}\nv_add_f32 v{GR+2}, v{GR+2}, v{GR+4*k+2}")
    m, q = GR, GR+2
    halfsum(m, T0); halfsum(q, T1)
    A(f"v_mul_f32 v{m}, {fl(1.0/D)}, v{m}\nv_mul_f32 v{q}, {fl(1.0/D)}, v{q}\nv_fma_f32 v{q}, -v{m}, v{m}, v{q}\nv_max_f32 v{q}, 0, v{q}")
    A(f"v_add_f32 v{T0}, {fl(EPS)}, v{q}\nv_mul_f32 v{T0}, {fl(EPS)}, v{T0}\nv_add_f32 v{q}, v{q}, v{T0}\nv_rsq_f32 v{q}, v{q}\nv_mul_f32 v{m}, v{m}, v{q}")
    A(f"v_cndmask_b32 v{T0}, v{q}, v{m}, s[{sHI}:{sHI+1}]\ns_add_u32 s{sT}, s{sRBW}, 8192\nv_lshl_add_u32 v{T1}, v1, 2, s{sT}\nds_write_b32 v{T1}, v{T0}")
    A(f"v_lshrrev_b32 v{T2}, 5, v1\nv_lshl_add_u32 v{T2}, v{T2}, 4, s{sT}")
    for g in range(4): A(f"ds_read_b128 {v(64+4*g,4)}, v{T2} offset:{g*32}\nds_read_b128 {v(80+4*g,4)}, v{T2} offset:{128+g*32}")
    A(f"s_lshl_b32 s{sT}, s{sH}, 17\ns_lshl_b32 s{sU}, s{sD_}, 11\ns_add_u32 s{sT}, s{sT}, s{sU}\ns_add_u32 s{sT}, s{sT}, {WS_HH}\ns_waitcnt lgkmcnt(0)")
    for r in range(0, 16, 2): A(f"v_pk_fma_f32 {v(D1+r,2)}, {v(D1+r,2)}, {v(64+r,2)}, {v(80+r,2)} neg_lo:[0,0,1] neg_hi:[0,0,1]")
    for r in range(8): A(f"v_cvt_pk_bf16_f32 v{24+r}, v{D1+2*r}, v{D1+2*r+1}")
    for p in range(2): A(f"buffer_store_dwordx4 {v(24+4*p,4)}, v{VL}, {R(RWS)}, s{sT} offen offset:{p*1024} sc1")
    stamp("hhst"); stamp_flush()
    A("P3_END:")
    vm.q = []; lg.q = []

W2R, ACC = 128, 16
def p4():
    RING, NR = 80, 6
    T0, T1, BR = 4, 5, 6
    for n in range(14):
        for ti in range(2):
            for half in range(2):
                A(f"ds_read_b64_tr_b16 {v(W2R + 8*n + ti*4 + half*2, 2)}, v{VRD[ti]} offset:{n*2048 + half*1024}")
    A(f"s_cmp_ge_u32 s{sH}, 14\ns_cbranch_scc1 P4_NOFLAG\ns_waitcnt vmcnt(0)")
    flag_store(sF[2])
    A("P4_NOFLAG:\ns_waitcnt lgkmcnt(0)")
    stamp("hhflag"); stamp_flush()
    NB = env("W2B4", 7)
    n0 = NT2 + NT3
    for g in range(NB):
        for ln in w2group(g): A(ln)
        if g < NT4:
            for ln in w1_transform(n0 + g): A(ln)
    for n in range(n0 + min(NB, NT4), n0 + NT4):
        for ln in w1_transform(n): A(ln)
    A(f"s_cmp_eq_u32 s{sACT4}, 0\ns_cbranch_scc1 P4_END")
    sFO, sRO = sA, sD_
    A(f"s_lshr_b32 s{sFO}, s{SW}, 1\ns_lshl_b32 s{sT}, s{sFT}, 1\ns_add_u32 s{sFO}, s{sFO}, s{sT}\ns_lshl_b32 s{sT}, s{sFO}, 6\nv_lshrrev_b32 v{T0}, 5, v1\nv_lshlrev_b32 v{T0}, 3, v{T0}")
    for g in range(4): A(f"buffer_load_dwordx2 {v(BR+2*g,2)}, v{T0}, {R(RB1)}, s{sT} offen offset:{g*16}")
    A(f"s_and_b32 s{sE}, s{SW}, 1\ns_lshl_b32 s{sT}, s{sDT4}, 1\ns_add_u32 s{sE}, s{sE}, s{sT}\ns_xor_b32 s{sU}, s{sE}, 1")
    VH = [253, 254]
    A(f"s_lshl_b32 s{sT}, s{SW}, 15\ns_add_u32 s{sT}, s{sT}, {WS_HH}\ns_lshl_b32 s{sB}, s{sE}, 17\ns_add_u32 s{sB}, s{sB}, s{sT}\ns_lshl_b32 s{sC}, s{sU}, 17\ns_add_u32 s{sC}, s{sC}, s{sT}")
    A(f"v_add_u32 v{VH[0]}, s{sB}, v{VL}\nv_add_u32 v{VH[1]}, s{sC}, v{VL}")
    rot4(sRO); A(f"s_lshl_b32 s{sRO}, s{sRO}, 10")
    A(f"v_and_b32 v{T0}, 15, v1\nv_lshlrev_b32 v{T0}, 7, v{T0}\nv_bfe_u32 v{T1}, v1, 4, 1\nv_lshl_add_u32 v{T0}, v{T1}, 13, v{T0}")
    A(f"s_lshl_b32 s{sT}, s{sDT4}, 14\ns_lshl_b32 s{sU}, s{SW}, 11\ns_add_u32 s{sT}, s{sT}, s{sU}\ns_add_u32 s{sT}, s{sT}, {F4}")
    stamp("p4pre")
    poll(T0, sT, 32, 14); stamp("s4")
    dest = lambda n, j: v(RING + (n % NR)*8 + 4*j, 4)
    def hload(n):
        for j in range(2): A(f"buffer_load_dwordx4 {dest(n,j)}, v{VH[j]}, {R(RWS)}, s{sRO} offen offset:{(n&3)*1024} sc1"); vm.issue(n)
        if n & 3 == 3: A(f"s_add_u32 s{sRO}, s{sRO}, 4096\ns_and_b32 s{sRO}, s{sRO}, 0x7fff")
    for n in range(NR): hload(n)
    nt = n0 + NT4
    lg.q = []
    for n in range(32):
        vm.wait(n)
        if n == 0: A("s_waitcnt lgkmcnt(0)"); stamp("p4first")
        lg.wait(n)
        tl = w1_transform(nt) if nt < 32 else []
        for ti in range(2):
            for tj in range(2):
                acc = ACC + 16*(2*ti + tj)
                A(f"{MFMA} {v(acc,16)}, {a(8*n+4*ti,4)}, {dest(n,tj)}, {'0' if n == 0 else v(acc,16)}")
                k = 2*ti + tj
                for ln in ([tl[0:1], tl[1:2], tl[2:4], tl[4:6]][k] if tl else []): A(ln); lg.issue(nt)
        if tl: nt += 1
        if n == 24:
            assert nt == 32
            A("s_waitcnt lgkmcnt(0)\ns_barrier"); lg.q = []
        if n + NR < 32: hload(n + NR)
    stamp("p4mm")
    for sl in (1, 2, 3):
        A(f"s_xor_b32 s{sT}, s{SW}, {sl}\ns_mul_i32 s{sT}, s{sT}, 12288\ns_add_u32 s{sT}, s{sT}, {RBUF}\nv_add_u32 v{T0}, s{sT}, v{VL}")
        for g in range(4): A(f"ds_write_b128 v{T0}, {v(ACC+16*sl+4*g,4)} offset:{(sl-1)*4096 + g*1024}")
    for j in range(8):
        A(f"v_lshlrev_b32 v80, 16, v{BR+j}\nv_and_b32 v81, 0xffff0000, v{BR+j}\nv_pk_add_f32 {v(ACC+2*j,2)}, {v(ACC+2*j,2)}, v[80:81]")
    c1 = -2.0*math.sqrt(2.0/math.pi)*math.log2(math.e); c2 = c1*0.044715
    A(f"v_mov_b32 v82, {fl(c2)}\nv_mov_b32 v84, {fl(c1)}")
    A(f"s_mul_i32 s{sT}, s{sE}, {112*1024}\ns_lshl_b32 s{sU}, s{sFO}, 11\ns_add_u32 s{sT}, s{sT}, s{sU}\ns_add_u32 s{sT}, s{sT}, {WS_G}")
    A(f"v_add_u32 v{T0}, s{sRBW}, v{VL}\ns_waitcnt lgkmcnt(0)\ns_barrier")
    for g in range(4):
        for sl in range(1, 4): A(f"ds_read_b128 {v(ACC+16*sl+4*g,4)}, v{T0} offset:{(sl-1)*4096 + g*1024}")
    for g in range(4):
        A(f"s_waitcnt lgkmcnt({9-3*g})")
        rs = (16+4*g, 18+4*g)
        for r in rs: A(f"v_pk_add_f32 {v(r,2)}, {v(r,2)}, {v(r+16,2)}\nv_pk_add_f32 {v(r+32,2)}, {v(r+32,2)}, {v(r+48,2)}")
        for r in rs: A(f"v_pk_add_f32 {v(r,2)}, {v(r,2)}, {v(r+32,2)}")
        for r in rs: A(f"v_pk_mul_f32 {v(r+16,2)}, {v(r,2)}, {v(r,2)}")
        for r in rs: A(f"v_pk_fma_f32 {v(r+16,2)}, {v(r+16,2)}, v[82:83], v[84:85] op_sel_hi:[1,0,0]")
        for r in rs: A(f"v_pk_mul_f32 {v(r+16,2)}, {v(r+16,2)}, {v(r,2)}")
        for r in range(32+4*g, 36+4*g): A(f"v_exp_f32 v{r}, v{r}")
        for r in rs: A(f"v_pk_add_f32 {v(r+16,2)}, {v(r+16,2)}, 1.0 op_sel_hi:[1,0]")
        for r in range(32+4*g, 36+4*g): A(f"v_rcp_f32 v{r}, v{r}")
        for r in rs: A(f"v_pk_mul_f32 {v(r,2)}, {v(r,2)}, {v(r+16,2)}")
        for k, r in enumerate(rs): A(f"v_cvt_pk_bf16_f32 v{88+2*g+k}, v{r}, v{r+1}")
        if g & 1: A(f"buffer_store_dwordx4 {v(88+4*(g>>1),4)}, v{VL}, {R(RWS)}, s{sT} offen offset:{(g>>1)*1024} sc1")
    stamp("gst")
    A("s_waitcnt vmcnt(0)")
    flag_store(sF[3])
    stamp("gflag"); stamp_flush()
    A("P4_END:")
    vm.q = []; lg.q = []
    for g in range(NB, 7):
        for ln in w2group(g): A(ln)

def p5():
    T0, T1, T2 = 4, 5, 6
    TF, HR, IR, VO, B2R, VG = 80, 96, 104, 112, 114, [118, 119]
    A(f"s_cmp_ge_u32 s{sJ}, 28\ns_cbranch_scc1 K_FIN")
    sGC = sC
    A(f"s_and_b32 s{sE}, s{SW}, 1\ns_lshl_b32 s{sT}, s{sDT5}, 1\ns_add_u32 s{sE}, s{sE}, s{sT}\ns_xor_b32 s{sU}, s{sE}, 1")
    A(f"s_mul_i32 s{sT}, s{SW}, {28*1024}\ns_add_u32 s{sT}, s{sT}, {WS_G}\ns_mul_i32 s{sA}, s{sE}, {112*1024}\ns_add_u32 s{sA}, s{sA}, s{sT}\ns_mul_i32 s{sB}, s{sU}, {112*1024}\ns_add_u32 s{sB}, s{sB}, s{sT}")
    A(f"v_add_u32 v{VG[0]}, s{sA}, v{VL}\nv_add_u32 v{VG[1]}, s{sB}, v{VL}")
    rot5(sGC); A(f"s_lshl_b32 s{sGC}, s{sGC}, 10")
    A(f"v_and_b32 v{T0}, 31, v1\nv_lshrrev_b32 v{T1}, 5, v1\nv_lshlrev_b32 v{T1}, 2, v{T1}\nv_sub_u32 v{T0}, v{T0}, v{T1}")
    for p in range(2):
        for r in range(4):
            d0 = 16*p + 8*(r >> 1) + 2*(r & 1)
            A(f"v_cmp_eq_u32 vcc, {d0}, v{T0}\nv_cmp_eq_u32 s[{sA}:{sA+1}], {d0+1}, v{T0}\nv_cndmask_b32 v{IR+4*p+r}, 0, v{VONE}, vcc\nv_cndmask_b32 v{IR+4*p+r}, v{IR+4*p+r}, v{VONE+1}, s[{sA}:{sA+1}]")
    A(f"v_lshrrev_b32 v{T0}, 3, v0\nv_mul_u32_u24 v{VO}, 896, v{T0}\nv_and_b32 v{T1}, 7, v0\nv_lshl_add_u32 v{VO}, v{T1}, 4, v{VO}\nv_lshlrev_b32 v{T0}, 1, v{T0}\ns_lshl_b32 s{sT}, s{sST}, 7")
    A(f"buffer_load_ushort v{B2R}, v{T0}, {R(RB2)}, s{sT} offen\nbuffer_load_ushort v{B2R+2}, v{T0}, {R(RB2)}, s{sT} offen offset:64")
    VWA = [120, 121, 122, 123]; VRA = [124, 125]
    A(f"v_and_b32 v{T0}, 31, v1\nv_mul_u32_u24 v{T0}, 272, v{T0}\nv_lshrrev_b32 v{T1}, 5, v1\nv_lshl_add_u32 v{T0}, v{T1}, 4, v{T0}\nv_add_u32 v{T0}, s{sW2W}, v{T0}")
    for sl in range(4):
        A(f"s_xor_b32 s{sT}, s{SW}, {sl}\ns_lshr_b32 s{sU}, s{sT}, 1\ns_mul_i32 s{sU}, s{sU}, {32*272}\ns_and_b32 s{sT}, s{sT}, 1\ns_lshl_b32 s{sT}, s{sT}, 7\ns_add_u32 s{sT}, s{sT}, s{sU}\nv_add_u32 v{VWA[sl]}, s{sT}, v{T0}")
    A(f"v_lshrrev_b32 v{T0}, 3, v0\nv_mul_u32_u24 v{T0}, 272, v{T0}\nv_and_b32 v{T1}, 7, v0\nv_lshl_add_u32 v{VRA[0]}, v{T1}, 5, v{T0}\nv_add_u32 v{VRA[1]}, {2*28672}, v{VRA[0]}")
    A(f"s_lshr_b32 s{sV}, s{SW}, 1\ns_lshl_b32 s{sU}, s{sST}, 1\ns_add_u32 s{sV}, s{sV}, s{sU}\ns_mul_i32 s{sV}, s{sV}, 14\ns_add_u32 s{sV}, s{sV}, s{sE}\ns_lshl_b32 s{sV}, s{sV}, 11\ns_add_u32 s{sV}, s{sV}, {WS_HF}")
    A(f"s_mul_i32 s{sT}, s{sDT5}, 112\ns_mul_i32 s{sU}, s{SW}, 28\ns_add_u32 s{sT}, s{sT}, s{sU}\ns_lshl_b32 s{sT}, s{sT}, 7\ns_add_u32 s{sT}, s{sT}, {F5}")
    stamp("p5pre")
    poll(VFL, sT, 28, 8); stamp("s5")
    def gload(n):
        for j in range(2): A(f"buffer_load_dwordx4 {a(8*n+4*j,4)}, v{VG[j]}, {R(RWS)}, s{sGC} offen offset:{(n&1)*1024} sc1"); vm.issue(n)
        if n & 1: A(f"s_add_u32 s{sGC}, s{sGC}, 2048\ns_cmp_eq_u32 s{sGC}, {28*1024}\ns_cselect_b32 s{sGC}, 0, s{sGC}")
    NR = 6
    for n in range(NR): gload(n)
    def tread(n):
        for ti in range(2):
            for half in range(2):
                A(f"ds_read_b64_tr_b16 {v(TF + (n&1)*8 + ti*4 + half*2, 2)}, v{VRD[ti]} offset:{(n-14)*2048 + half*1024}"); lg.issue(n)
    A(f"v_lshlrev_b32 v{B2R}, 16, v{B2R}\nv_lshlrev_b32 v{B2R+2}, 16, v{B2R+2}")
    A(f"s_mul_i32 s{sT}, s{sST}, {64*896}\ns_lshl_b32 s{sU}, s{sDT5}, 7\ns_add_u32 s{sT}, s{sT}, s{sU}\ns_add_u32 s{sU}, s{sT}, {32*896}")
    for n in range(28):
        vm.wait(n)
        if n == 0: stamp("p5first")
        if n >= 14: lg.wait(n)
        order = [(0, 0), (0, 1), (1, 0), (1, 1)] if n < 27 else [(1, 1), (1, 0), (0, 1), (0, 0)]
        for k, (ti, tj) in enumerate(order):
            acc = ACC + 16*(2*ti + tj)
            t = v(W2R + 8*n + 4*ti, 4) if n < 14 else v(TF + (n&1)*8 + 4*ti, 4)
            A(f"{MFMA} {v(acc,16)}, {a(8*n+4*tj,4)}, {t}, {'0' if n == 0 else v(acc,16)}")
            if k == 0 and 14 <= n + 1 < 28: tread(n + 1)
        if n + NR < 28: gload(n + NR)
        if n == 2:
            for p in range(2): A(f"buffer_load_dwordx4 {v(HR+4*p,4)}, v{VL}, {R(RWS)}, s{sV} offen offset:{p*1024} sc1"); vm.issue("h")
        if n == 20:
            for p in range(2): A(f"{MFMA} {v(ACC,16)}, {v(IR+4*p,4)}, {v(HR+4*p,4)}, {v(ACC,16)}")
    stamp("p5mm")
    for sl in (3, 2, 1, 0):
        for g in range(4): A(f"ds_write_b128 v{VWA[sl]}, {v(ACC+16*sl+4*g,4)} offset:{g*32}")
    A("s_waitcnt lgkmcnt(0)\ns_barrier")
    for rr in range(2):
        for w in range(4):
            for q in range(2):
                A(f"ds_read_b128 {v(16+16*w+8*rr+4*q,4)}, v{VRA[w>>1]} offset:{(w&1)*28672 + rr*32*272 + q*16}")
    for rr in range(2):
        A(f"s_waitcnt lgkmcnt({8 if rr == 0 else 0})")
        rs = range(16+8*rr, 24+8*rr, 2)
        for r in rs: A(f"v_pk_add_f32 {v(r,2)}, {v(r,2)}, {v(r+16,2)}\nv_pk_add_f32 {v(r+32,2)}, {v(r+32,2)}, {v(r+48,2)}")
        for r in rs: A(f"v_pk_add_f32 {v(r,2)}, {v(r,2)}, {v(B2R+2*rr,2)} op_sel_hi:[1,0]")
        for r in rs: A(f"v_pk_add_f32 {v(r,2)}, {v(r,2)}, {v(r+32,2)}")
        for r in range(4): A(f"v_cvt_pk_bf16_f32 v{80+4*rr+r}, v{16+8*rr+2*r}, v{17+8*rr+2*r}")
        A(f"buffer_store_dwordx4 {v(80+4*rr,4)}, v{VO}, {R(ROUT)}, s{[sT,sU][rr]} offen")
    stamp("outst"); stamp_flush()
    A("K_FIN:")
    if STAMP:
        A("s_waitcnt vmcnt(0)"); stamp("end"); A(f"s_memrealtime s[{sA}:{sA+1}]"); stamp_flush()
        A(f"v_writelane_b32 v{VST}, s72, 62\nv_writelane_b32 v{VST}, s{sA}, 63")
        A(f"s_lshl_b32 s{sT}, s2, 2\ns_add_u32 s{sT}, s{sT}, s{SW}\ns_lshl_b32 s{sT}, s{sT}, 8\ns_add_u32 s{sT}, s{sT}, {WS_STAMP}\nv_lshlrev_b32 v4, 2, v1\nbuffer_store_dword v{VST}, v4, {R(RWS)}, s{sT} offen")
    A("K_END:\ns_endpgm")

def main(out):
    prologue()
    pend0 = list(st["pend"])
    p1(); fb = p2(); p3(); p4(); p5()
    st["pend"] = pend0
    p1_helper(); fb()
    A("CODE_END:")
    head = open("head.txt").read().split("; Override")[0]
    txt = head + f"; @launch grid=(256,1,1) block=(256,1,1) lds={LDS_TOTAL}\n" + '.amdgcn_target "amdgcn-amd-amdhsa--gfx950"\n.text\n' + kernel_header(NAME) + A.text() + '.section .rodata,"a"\n' + kernel_desc(NAME, 512, 102, 256)
    open(out, "w").write(txt)
    if STAMP: open(out + ".names", "w").write(" ".join(st["names"].keys()))

if __name__ == "__main__":
    main(sys.argv[1])
```

```python
import sys, struct, math, os
from asmlib import *

S, D, H, DH, F = 2048, 448, 16, 28, 1792
MB = 1 << 20
WS_Q, WS_KV, WS_O, WS_HF, WS_HH, WS_G, WS_ST, WS_FL, WS_STAMP = 0, 2*MB, 6*MB, 8*MB, 10*MB, 12*MB, 14*MB, 14*MB + 512*1024, 15*MB
F1, F2, F4, F5 = WS_FL, WS_FL + 131072, WS_FL + 2*131072, WS_FL + 3*131072
WS_RST, WS_CSG = 13*MB + 768*1024, 13*MB + 832*1024
WS_SIZE = 16*MB
EPS = 1e-5
STAMP = os.environ.get("STAMP", "0") == "1"
def env(n, d): return int(os.environ.get(n, str(d)))
def f2u(x): return struct.unpack("<I", struct.pack("<f", x))[0]
def hx(x): return f"0x{x & 0xffffffff:08x}"
def fl(x): return hx(f2u(x))
MFMA = "v_mfma_f32_32x32x16_bf16"
NAME = "sequential_preLN__mha_block__mixer_token_mlp__prompt_kernel"

class Cnt:
    def __init__(self, A, name, mx):
        self.A, self.name, self.mx, self.q = A, name, mx, []
    def issue(self, tag): self.q.append(tag)
    def wait(self, tag):
        idx = [i for i, t in enumerate(self.q) if t == tag]
        if not idx: return
        n = len(self.q) - 1 - idx[-1]
        self.A(f"s_waitcnt {self.name}({min(n, self.mx)})")
        self.q = self.q[idx[-1] + 1:]
    def wait_all(self):
        self.A(f"s_waitcnt {self.name}(0)"); self.q = []

RX, RWQ, RWO, RW1, RB1, RW2, RB2, ROUT, RDBG, RWS = 8, 12, 16, 20, 24, 28, 32, 36, 40, 44
def R(r): return f"s[{r}:{r+3}]"
SW, sH, sI, sJ, sFT, sDT4, sST, sDT5, sACT4, sTO, sTAG = 48, 49, 50, 51, 52, 53, 54, 55, 56, 57, 58
sHI, sONES = 60, 62
sT, sU, sV, sA, sB, sC, sD_, sE, sRETRY = 63, 64, 65, 66, 67, 68, 69, 70, 71
sF = [4, 5, 6, 7]
sSEC, sHQ, sW8 = 3, 92, 93
sRBW, sW2W = 94, 95
sW1, sW1S, sW1E, sW2, sW2S, sW2E = 96, 97, 98, 99, 100, 101
VL, VST = 2, 255
W2A, RBUF, LDS_TOTAL = 0, 114688, 163840

A = Asm(); vm = Cnt(A, "vmcnt", 63); lg = Cnt(A, "lgkmcnt", 15)
st = {"pend": [], "names": {}}
def stamp(name):
    if not STAMP: return
    k = len(st["pend"]); assert k < 9, name
    n = st["names"].setdefault(name, len(st["names"]))
    A(f"{'s_memtime' if env('CYC', 0) else 's_memrealtime'} s[{74+2*k}:{75+2*k}]"); st["pend"].append(n)
def stamp_flush():
    if not STAMP or not st["pend"]: return
    A("s_waitcnt lgkmcnt(0)")
    for k, n in enumerate(st["pend"]): A(f"v_writelane_b32 v{st.get('v', VST)}, s{74+2*k}, {n}")
    st["pend"] = []

def set_exec(mask): A(f"s_mov_b32 exec_lo, {hx(mask)}\ns_mov_b32 exec_hi, {hx(mask >> 32)}")
def halfsum(x, t): A(f"v_mov_b32 v{t}, v{x}\nv_permlane32_swap_b32 v{x}, v{t}\nv_add_f32 v{x}, v{x}, v{t}")
def flag_store(soff_reg, t=4):
    A(f"v_mov_b32 v{t}, s{sTAG}\nv_mov_b32 v{t+1}, s{sTAG+1}\nv_mov_b32 v{t+2}, 0\ns_mov_b64 exec, 1")
    A(f"buffer_store_dwordx2 {v(t,2)}, v{t+2}, {R(RWS)}, s{soff_reg} offen sc1\ns_mov_b64 exec, -1"); vm.issue("flag")
def poll(voff, soff_reg, nl, t):
    L = A.label("POLL")
    set_exec((1 << nl) - 1)
    A(f"s_mov_b32 s{sTO}, 0x40000\n{L}:")
    A(f"buffer_load_dwordx2 {v(t,2)}, v{voff}, {R(RWS)}, s{soff_reg} offen sc1\ns_sub_u32 s{sTO}, s{sTO}, 1\ns_waitcnt vmcnt(0)")
    A(f"s_cbranch_scc1 {L}_x\nv_cmp_ne_u64 vcc, s[{sTAG}:{sTAG+1}], {v(t,2)}\ns_and_b64 exec, exec, vcc\n" + (f"s_cbranch_scc0 {L}_x\ns_sleep {env('PSL', 0)}\ns_branch {L}" if env("PSL", 0) else f"s_cbranch_scc1 {L}") + f"\n{L}_x:\ns_mov_b64 exec, -1")
    vm.q = []
def tr_lane_addr(dst, t, pitch, hs, rs=1):
    A(f"v_lshrrev_b32 v{dst}, 5, v1\nv_mul_u32_u24 v{dst}, {hs*pitch}, v{dst}\nv_bfe_u32 v{t}, v1, 2, 2\nv_mul_u32_u24 v{t}, {rs*pitch}, v{t}\nv_add_u32 v{dst}, v{dst}, v{t}")
    A(f"v_bfe_u32 v{t}, v1, 4, 1\nv_lshl_add_u32 v{dst}, v{t}, 5, v{dst}\nv_and_b32 v{t}, 3, v1\nv_lshl_add_u32 v{dst}, v{t}, 3, v{dst}")
def get_tag(TAGV, lab):
    A(f"v_readfirstlane_b32 s{sTAG}, v{TAGV}\nv_readfirstlane_b32 s{sTAG+1}, v{TAGV+1}")
    A(f"s_or_b32 s{sTO}, s{sTAG}, s{sTAG+1}\ns_cbranch_scc1 {lab}_ok\ns_mov_b32 s{sTO}, 0x40000\nv_mov_b32 v4, 0\n{lab}_l:")
    A(f"buffer_load_dwordx2 {v(TAGV,2)}, v4, {R(RDBG)}, 0 offen sc1\ns_sub_u32 s{sTO}, s{sTO}, 1\ns_waitcnt vmcnt(0)\ns_cbranch_scc1 {lab}_ok")
    A(f"v_readfirstlane_b32 s{sTAG}, v{TAGV}\nv_readfirstlane_b32 s{sTAG+1}, v{TAGV+1}\ns_cmp_eq_u64 s[{sTAG}:{sTAG+1}], 0\ns_cbranch_scc1 {lab}_l\n{lab}_ok:")
def tagcheck(regs, T1, T2, T3):
    A(f"v_xor_b32 v{T1}, s{sTAG}, v{regs[0]+1}\nv_xor_b32 v{T2}, s{sTAG+1}, v{regs[0]+3}\nv_or_b32 v{T1}, v{T1}, v{T2}")
    for g in regs[1:]: A(f"v_xor_b32 v{T2}, s{sTAG}, v{g+1}\nv_xor_b32 v{T3}, s{sTAG+1}, v{g+3}\nv_or3_b32 v{T1}, v{T1}, v{T2}, v{T3}")
    A(f"v_cmp_ne_u32 vcc, 0, v{T1}")
def rot4(d):
    A(f"s_bfe_u32 s{d}, s2, 0x20001\ns_mul_i32 s{d}, s{d}, 7\ns_sub_u32 s{d}, s{sFT}, s{d}\ns_add_u32 s{d}, s{d}, s{sDT4}\ns_and_b32 s{d}, s{d}, 7\ns_lshl_b32 s{d}, s{d}, 2")
def rot5(d):
    A(f"s_and_b32 s{d}, s{sST}, 7\ns_mul_i32 s{d}, s{d}, 7\ns_lshr_b32 s{d}, s{d}, 2\ns_add_u32 s{d}, s{d}, s{sDT5}\ns_add_u32 s{d}, s{d}, s{sDT5}\ns_lshl_b32 s{d}, s{d}, 1")
    A(f"s_cmp_ge_u32 s{d}, 28\ns_cselect_b32 s{sTO}, 28, 0\ns_sub_u32 s{d}, s{d}, s{sTO}")

def prologue():
    if STAMP: A(f"s_memrealtime s[72:73]\nv_mov_b32 v{VST}, -1")
    stamp("start")
    A(f"s_load_dwordx2 s[{RX}:{RX+1}], s[0:1], 0\ns_load_dwordx2 s[{RWQ}:{RWQ+1}], s[0:1], 8")
    A("s_cmp_ge_u32 s2, 256\ns_cbranch_scc1 K_END")
    A(f"v_and_b32 v1, 63, v0\nv_lshrrev_b32 v3, 6, v0\nv_lshlrev_b32 v{VL}, 4, v1\nv_readfirstlane_b32 s{sW8}, v3\nv_and_b32 v0, 255, v0")
    for r, sz in ((RX, S*D*2), (RWQ, D*3*D*2)): A(f"s_mov_b32 s{r+2}, {sz}\ns_mov_b32 s{r+3}, 0x20000")
    A(f"s_and_b32 s{SW}, s{sW8}, 3\ns_lshr_b32 s{sJ}, s2, 3\ns_bfe_u32 s{sT}, s2, 0x20001\ns_and_b32 s{sU}, s2, 1")
    A(f"s_lshl_b32 s{sI}, s{sT}, 2\ns_and_b32 s{sV}, s{sJ}, 3\ns_add_u32 s{sI}, s{sI}, s{sV}")
    A(f"s_lshr_b32 s{sSEC}, s{sJ}, 3\ns_bfe_u32 s{sHQ}, s{sJ}, 0x10002\ns_lshl_b32 s{sV}, s{sU}, 1\ns_add_u32 s{sHQ}, s{sHQ}, s{sV}")
    A(f"s_cmp_ge_u32 s{sJ}, 24\ns_cbranch_scc1 P1_HELP\ns_cmp_lt_u32 s{sW8}, 4\ns_cbranch_scc1 A_P1")

def prologue2():
    for r, off in ((RWS, 80), (RDBG, 72), (RWO, 16), (RW1, 32), (RB1, 40), (RW2, 48), (RB2, 56), (ROUT, 64)):
        A(f"s_load_dwordx2 s[{r}:{r+1}], s[0:1], {off}")
    A(f"s_memrealtime s[{sTAG}:{sTAG+1}]")
    for r, sz in ((RWS, WS_SIZE), (RDBG, 256), (RWO, D*D*2), (RW1, S*F*2), (RB1, F*2), (RW2, S*F*2), (RB2, S*2), (ROUT, S*D*2)):
        A(f"s_mov_b32 s{r+2}, {sz}\ns_mov_b32 s{r+3}, 0x20000")
    A(f"s_mov_b32 s{sHI}, 0\ns_mov_b32 s{sHI+1}, -1\ns_mov_b32 s{sONES}, 0x3f803f80\ns_mov_b32 s{sRETRY}, 0")
    A(f"s_mul_i32 s{sRBW}, s{SW}, 12288\ns_add_u32 s{sRBW}, s{sRBW}, {RBUF}\ns_mul_i32 s{sW2W}, s{SW}, 28672")

def roles(flags=True):
    A(f"s_bfe_u32 s{sT}, s2, 0x20001\ns_and_b32 s{sU}, s2, 1")
    A(f"s_lshl_b32 s{sH}, s{sU}, 3\ns_lshr_b32 s{sV}, s{sJ}, 2\ns_add_u32 s{sH}, s{sH}, s{sV}")
    A(f"s_sub_u32 s{sV}, 25, s{sU}\ns_cmp_lt_u32 s{sJ}, s{sV}\ns_cselect_b32 s{sACT4}, 1, 0\ns_cselect_b32 s{sV}, s{sJ}, 0")
    A(f"s_mul_i32 s{sFT}, s{sU}, 25\ns_add_u32 s{sV}, s{sV}, s{sFT}\ns_mul_i32 s{sDT4}, s{sV}, 9363\ns_lshr_b32 s{sDT4}, s{sDT4}, 16")
    A(f"s_mul_i32 s{sFT}, s{sDT4}, 7\ns_sub_u32 s{sV}, s{sV}, s{sFT}\ns_mul_i32 s{sFT}, s{sT}, 7\ns_add_u32 s{sFT}, s{sV}, s{sFT}")
    A(f"s_cmp_lt_u32 s{sJ}, 28\ns_cselect_b32 s{sV}, s{sJ}, 0\ns_mul_i32 s{sST}, s{sU}, 28\ns_add_u32 s{sV}, s{sV}, s{sST}")
    A(f"s_lshr_b32 s{sDT5}, s{sV}, 3\ns_and_b32 s{sV}, s{sV}, 7\ns_lshl_b32 s{sST}, s{sT}, 3\ns_add_u32 s{sST}, s{sST}, s{sV}")
    if not flags: return
    A(f"s_lshl_b32 s{sT}, s{sHQ}, 2\ns_add_u32 s{sT}, s{sT}, s{sSEC}\ns_lshl_b32 s{sT}, s{sT}, 4\ns_add_u32 s{sT}, s{sT}, s{sI}\ns_lshl_b32 s{sT}, s{sT}, 7\ns_add_u32 s{sF[0]}, s{sT}, {F1}")
    A(f"s_lshl_b32 s{sU}, s{sI}, 2\ns_add_u32 s{sU}, s{sU}, s{SW}\ns_lshl_b32 s{sT}, s{sU}, 4\ns_add_u32 s{sT}, s{sT}, s{sH}\ns_lshl_b32 s{sV}, s{sT}, 9\ns_lshl_b32 s{sT}, s{sT}, 7\ns_add_u32 s{sF[1]}, s{sT}, {F2}")
    A(f"s_lshl_b32 s{sT}, s{sH}, 6\ns_add_u32 s{sT}, s{sT}, s{sU}\ns_lshl_b32 s{sT}, s{sT}, 7\ns_add_u32 s{sF[2]}, s{sT}, {F4}")
    A(f"s_mul_i32 s{sT}, s{sDT4}, 28\ns_add_u32 s{sT}, s{sT}, s{sFT}\ns_lshl_b32 s{sT}, s{sT}, 2\ns_add_u32 s{sT}, s{sT}, s{SW}\ns_lshl_b32 s{sT}, s{sT}, 7\ns_add_u32 s{sF[3]}, s{sT}, {F5}")
    A(f"s_add_u32 s{sV}, s{sV}, {WS_ST}\nv_lshl_add_u32 v4, v1, 7, s{sV}")
    A(f"v_writelane_b32 v4, s{sF[0]}, 4\nv_writelane_b32 v4, s{sF[1]}, 5\nv_writelane_b32 v4, s{sF[2]}, 6\nv_writelane_b32 v4, s{sF[3]}, 7\ns_mov_b64 exec, 0xff\nbuffer_load_dword v12, v4, {R(RWS)}, 0 offen sc1\ns_mov_b64 exec, -1")
    vm.issue("touch")

def p1_helper():
    TAGV = 14
    sHX = sA
    A("P1_HELP:")
    vm.q = []
    prologue2()
    A(f"s_and_b32 s{sHX}, s2, 7\ns_lshl_b32 s{sHX}, s{sHX}, 3\ns_add_u32 s{sHX}, s{sHX}, s{sJ}\ns_sub_u32 s{sHX}, s{sHX}, 24")
    A(f"v_lshrrev_b32 v4, 3, v1\nv_and_b32 v5, 7, v1\nv_lshlrev_b32 v5, 4, v5\nv_mov_b32 v7, 0")
    A(f"s_cmp_ge_u32 s{sW8}, 4\ns_cbranch_scc1 H_CS")
    A(f"v_mul_u32_u24 v6, 896, v4\nv_add_u32 v6, v6, v5\ns_lshl_b32 s{sB}, s{sHX}, 2\ns_add_u32 s{sB}, s{sB}, s{SW}\ns_mul_i32 s{sT}, s{sB}, {8*896}\ns_waitcnt lgkmcnt(0)")
    for m in range(7): A(f"buffer_load_dwordx4 {v(16+4*m,4)}, v6, {R(RX)}, s{sT} offen offset:{m*128}")
    A("v_mov_b32 v80, 0\nv_mov_b32 v82, 0\nv_mov_b32 v84, 0\nv_mov_b32 v86, 0\ns_waitcnt vmcnt(0)")
    A(f"buffer_load_dwordx2 {v(TAGV,2)}, v7, {R(RDBG)}, 0 offen sc1")
    for k in range(28): A(f"v_dot2c_f32_bf16 v{80+4*(k&1)}, s{sONES}, v{16+k}\nv_dot2c_f32_bf16 v{82+4*(k&1)}, v{16+k}, v{16+k}")
    A("v_add_f32 v80, v80, v84\nv_add_f32 v82, v82, v86")
    for m in ("quad_perm:[1,0,3,2]", "quad_perm:[2,3,0,1]", "row_half_mirror"):
        for r in (80, 82): A(f"v_add_f32_dpp v{r}, v{r}, v{r} {m} row_mask:0xf bank_mask:0xf")
    A(f"v_mul_f32 v80, {fl(1.0/D)}, v80\nv_mul_f32 v82, {fl(1.0/D)}, v82\nv_fma_f32 v82, -v80, v80, v82\nv_max_f32 v82, 0, v82\nv_add_f32 v82, {fl(EPS)}, v82\nv_rsq_f32 v82, v82")
    A(f"v_lshlrev_b32 v6, 4, v4\nv_mul_f32 v80, v80, v82\nv_sub_f32 v80, 0, v80\ns_waitcnt vmcnt(0)")
    get_tag(TAGV, "H_T1")
    A(f"v_mov_b32 v81, s{sTAG}\nv_mov_b32 v83, s{sTAG+1}\ns_lshl_b32 s{sT}, s{sB}, 7\ns_add_u32 s{sT}, s{sT}, {WS_RST}")
    set_exec(0x0101010101010101)
    A(f"buffer_store_dwordx4 v[80:83], v6, {R(RWS)}, s{sT} offen sc1\ns_mov_b64 exec, -1")
    stamp("h_pub"); stamp_flush()
    A("s_barrier")
    roles()
    A("s_branch P2_START")
    st["pend"] = [0] if STAMP else []
    A(f"H_CS:\ns_lshl_b32 s{sB}, s{SW}, 6\ns_add_u32 s{sB}, s{sB}, s{sHX}\ns_cmp_ge_u32 s{sB}, 84\ns_cbranch_scc1 H_PF")
    A(f"v_mul_u32_u24 v6, 2688, v4\nv_add_u32 v6, v6, v5\ns_and_b32 s{sC}, s{sB}, 3\ns_lshr_b32 s{sD_}, s{sB}, 2\ns_mul_i32 s{sT}, s{sC}, {112*2688}\ns_lshl_b32 s{sU}, s{sD_}, 7\ns_add_u32 s{sT}, s{sT}, s{sU}\ns_waitcnt lgkmcnt(0)")
    for m in range(14): A(f"buffer_load_dwordx4 {v(16+4*m,4)}, v6, {R(RWQ)}, s{sT} offen\ns_add_u32 s{sT}, s{sT}, {8*2688}")
    A(f"s_mov_b32 s{sT}, 0x3f80\ns_mov_b32 s{sU}, 0x3f800000")
    for r in range(80, 88): A(f"v_mov_b32 v{r}, 0")
    for m in range(14):
        if m % 4 == 0: A(f"s_waitcnt vmcnt({max(0, 14 - m - 4)})")
        if m == 12: A(f"buffer_load_dwordx2 {v(TAGV,2)}, v7, {R(RDBG)}, 0 offen sc1")
        for k in range(4): A(f"v_dot2c_f32_bf16 v{80+2*k}, s{sT}, v{16+4*m+k}\nv_dot2c_f32_bf16 v{81+2*k}, s{sU}, v{16+4*m+k}")
    for r in range(80, 88): A(f"v_add_f32_dpp v{r}, v{r}, v{r} row_ror:8 row_mask:0xf bank_mask:0xf")
    for op in ("v_permlane16_swap_b32", "v_permlane32_swap_b32"):
        for r in range(80, 88): A(f"v_mov_b32 v{r+8}, v{r}")
        for r in range(80, 88): A(f"{op} v{r}, v{r+8}")
        for r in range(80, 88): A(f"v_add_f32 v{r}, v{r}, v{r+8}")
    A("v_mov_b32 v88, v80\nv_mov_b32 v90, v81")
    for pi in range(1, 4): A(f"v_cmp_eq_u32 vcc, {pi}, v4\nv_cndmask_b32 v88, v88, v{80+2*pi}, vcc\nv_cndmask_b32 v90, v90, v{81+2*pi}, vcc")
    A(f"v_lshlrev_b32 v6, 2, v5\nv_lshl_add_u32 v6, v4, 4, v6\ns_waitcnt vmcnt(0)")
    get_tag(TAGV, "H_T2")
    A(f"v_mov_b32 v89, s{sTAG}\nv_mov_b32 v91, s{sTAG+1}\ns_mul_i32 s{sT}, s{sC}, 10752\ns_lshl_b32 s{sU}, s{sD_}, 9\ns_add_u32 s{sT}, s{sT}, s{sU}\ns_add_u32 s{sT}, s{sT}, {WS_CSG}")
    set_exec(0xFFFFFFFF)
    A(f"buffer_store_dwordx4 v[88:91], v6, {R(RWS)}, s{sT} offen sc1\ns_mov_b64 exec, -1\ns_barrier\ns_branch B_P2")
    A(f"H_PF:\ns_cmp_lt_u32 s{SW}, 2\ns_cbranch_scc1 H_W")
    sQ = sB
    A(f"s_sub_u32 s{sQ}, s{sJ}, 24\ns_lshl_b32 s{sQ}, s{sQ}, 1\ns_add_u32 s{sQ}, s{sQ}, s{SW}\ns_sub_u32 s{sQ}, s{sQ}, 2")
    A(f"s_getpc_b64 s[{sC}:{sC+1}]\nCODE_REF:\ns_sub_u32 s{sC}, s{sC}, CODE_REF-{NAME}\ns_subb_u32 s{sC+1}, s{sC+1}, 0")
    A(f"s_lshl_b32 s{sT}, s{sQ}, 12\nv_lshl_add_u32 v6, v1, 7, s{sT}\nv_min_u32 v6, CODE_END-{NAME}-4, v6")
    A(f"v_mov_b32 v9, s{sC+1}\nv_add_co_u32 v8, vcc, s{sC}, v6\nv_addc_co_u32 v9, vcc, 0, v9, vcc")
    set_exec(0xFFFFFFFF)
    A(f"global_load_dword v25, v[8:9], off\ns_mov_b64 exec, -1\ns_waitcnt lgkmcnt(0)\ns_barrier")
    A(f"v_lshlrev_b32 v6, 7, v1\ns_and_b32 s{sT}, s2, 7\ns_lshl_b32 s{sT}, s{sT}, 4\ns_add_u32 s{sT}, s{sT}, s{sQ}\ns_mul_i32 s{sT}, s{sT}, {25*128}\ns_mov_b64 exec, 0x1ffffff\nbuffer_load_dword v24, v6, {R(RWO)}, s{sT} offen\ns_mov_b64 exec, -1")
    A(f"s_and_b32 s{sT}, s2, 7\ns_lshl_b32 s{sT}, s{sT}, 4\ns_add_u32 s{sT}, s{sT}, s{sQ}\ns_mul_i32 s{sT}, s{sT}, {7*8192}")
    for k in range(env("NP1", 7)): A(f"s_add_u32 s{sU}, s{sT}, {k*8192}\nbuffer_load_dword v{16+k}, v6, {R(RW1)}, s{sU} offen")
    for k in range(env("NP2", 0)): A(f"s_add_u32 s{sU}, s{sT}, {k*8192}\nbuffer_load_dword v{26+k}, v6, {R(RW2)}, s{sU} offen")
    if STAMP:
        A("s_waitcnt vmcnt(0)"); stamp("h_touch"); stamp_flush(); A(f"v_mov_b32 v15, v{VST}\ns_branch B_P2S")
    A("s_branch B_P2\nH_W:\ns_waitcnt lgkmcnt(0)\ns_barrier\ns_branch B_P2")

XA = LDS_TOTAL - 65536
XBUF = [8192, 0, 8192, 4096]
def p1_common():
    sWO, sM = sA, sC
    A(f"s_mul_i32 s{sWO}, s{sSEC}, 896\ns_mul_i32 s{sT}, s{sHQ}, 224\ns_add_u32 s{sWO}, s{sWO}, s{sT}")
    A(f"s_lshl_b32 s{sE}, s{sI}, 2\ns_add_u32 s{sE}, s{sE}, s{SW}\ns_lshl_b32 s{sM}, s{SW}, 14\ns_add_u32 s{sM}, s{sM}, {XA}")

def p1():
    XF, ACC, WF = 16, 128, 192
    VXR = list(range(224, 232)); VXS = list(range(232, 236)); VWR = [236, 237]; TAGV = 238
    sWO, sM = sA, sC
    A("A_P1:")
    prologue2()
    p1_common()
    A(f"v_and_b32 v4, 31, v1\nv_lshrrev_b32 v5, 5, v1\nv_and_b32 v6, 15, v1\nv_xor_b32 v6, v6, v5\nv_lshlrev_b32 v6, 4, v6\nv_lshl_add_u32 v6, v4, 8, v6\nv_add_u32 v6, s{sM}, v6")
    for k in range(8): A(f"v_xor_b32 v{VXR[k]}, {k<<5}, v6")
    A(f"v_bfe_u32 v6, v1, 1, 3\nv_xor_b32 v6, v6, v5\nv_lshlrev_b32 v6, 4, v6\nv_lshl_add_u32 v6, v4, 7, v6\nv_add_u32 v6, s{sM}, v6")
    for k in range(4): A(f"v_xor_b32 v{VXS[k]}, {k<<5}, v6")
    tr_lane_addr(VWR[0], 4, 224, 8, 2); A(f"v_add_u32 v{VWR[1]}, {14*3584}, v{VWR[0]}")
    A("s_waitcnt lgkmcnt(0)")
    stamp("karg")
    A(f"s_or_b32 s{sT}, s2, s{SW}\ns_cbranch_scc1 P1_NOTAG")
    A(f"s_bitset1_b32 s{sTAG+1}, 31\nv_mov_b32 v8, s{sTAG}\nv_mov_b32 v9, s{sTAG+1}\nv_mov_b32 v10, 0\nv_mov_b32 v11, 0\ns_mov_b64 exec, 1\nbuffer_atomic_cmpswap_x2 v[8:11], v10, {R(RDBG)}, 0 offen sc1\ns_mov_b64 exec, -1\nP1_NOTAG:")
    roles()
    stamp_flush()
    A(f"s_cmp_eq_u32 s{sSEC}, 2\ns_cbranch_scc1 P1_V")
    for isv in (0, 1):
        vm.q = []; lg.q = []
        if isv: A("P1_V:")
        def xread(p):
            for k in range(8 if p < 3 else 4):
                A(f"ds_read_b128 {v(XF + (8*p+k)*4, 4)}, v{(VXR if p < 3 else VXS)[k]} offset:{XBUF[p]}"); lg.issue(f"x{p}")
        def wread(ks, hds=range(4)):
            for hd in hds:
                for half in range(2):
                    A(f"ds_read_b64_tr_b16 {v(WF + (ks&1)*16 + hd*4 + half*2, 2)}, v{VWR[ks//14]} offset:{(ks%14)*3584 + half*224 + hd*56}"); lg.issue(f"w{ks}_{hd}")
        def gload():
            A(f"buffer_load_dwordx4 v[16:19], v4, {R(RWS)}, s{sU} offen sc1")
            for kq in range(4): A(f"buffer_load_dwordx4 {v(20+4*kq,4)}, v{5+kq}, {R(RWS)}, s{sV} offen sc1")
        for p in range(4):
            k0, k1 = 8*p, min(8*p + 8, 28)
            if p == 3:
                A(f"v_and_b32 v4, 31, v1\nv_lshlrev_b32 v4, 4, v4\ns_lshl_b32 s{sU}, s{sE}, 9\ns_add_u32 s{sU}, s{sU}, {WS_RST}\ns_lshl_b32 s{sV}, s{sWO}, 2\ns_add_u32 s{sV}, s{sV}, {WS_CSG}")
                A(f"v_min_u32 v5, 55, v1\nv_lshlrev_b32 v5, 4, v5\nv_add_u32 v6, 10752, v5\nv_add_u32 v7, 21504, v5\nv_add_u32 v8, 32256, v5\nv_mov_b32 v9, 0")
            A("s_barrier"); stamp(f"g{p}")
            xread(p); wread(k0, [0, 1, 2])
            if p == 3:
                A(f"buffer_load_dwordx2 {v(TAGV,2)}, v9, {R(RDBG)}, 0 offen sc1"); gload()
            lg.wait(f"x{p}")
            if p < 2: A("s_barrier")
            wread(k0, [3])
            for ks in range(k0, k1):
                x = v(XF + ks*4, 4)
                for hd in range(4):
                    lg.wait(f"w{ks}_{hd}")
                    w_ = v(WF + (ks&1)*16 + hd*4, 4); acc = v(ACC + 16*hd, 16)
                    A(f"{MFMA} {acc}, {x if isv else w_}, {w_ if isv else x}, {'0' if ks == 0 else acc}")
                    if ks + 1 < k1: wread(ks + 1, [hd])
        stamp("mfma_done")
        A("s_waitcnt vmcnt(5)")
        get_tag(TAGV, f"P1_T{isv}")
        L = A.label("P1_G")
        A(f"s_waitcnt vmcnt(0)")
        tagcheck([16, 20, 24, 28, 32], 9, 10, 11)
        A(f"s_cbranch_vccz {L}_x\nv_and_b32 v4, 31, v1\nv_lshlrev_b32 v4, 4, v4\ns_mov_b32 s{sTO}, 0x40000\n{L}:")
        gload()
        A(f"s_sub_u32 s{sTO}, s{sTO}, 1\ns_waitcnt vmcnt(0)\ns_cbranch_scc1 {L}_x")
        tagcheck([16, 20, 24, 28, 32], 9, 10, 11)
        A(f"s_cbranch_vccnz {L}\n{L}_x:")
        stamp("gran")
        A("v_add_f32 v20, v20, v24\nv_add_f32 v28, v28, v32\nv_add_f32 v22, v22, v26\nv_add_f32 v30, v30, v34\nv_add_f32 v20, v20, v28\nv_add_f32 v21, v22, v30")
        A(f"s_add_u32 s{sT}, s{sM}, 8192\nv_lshl_add_u32 v4, v1, 3, s{sT}\nds_write_b64 v4, v[20:21]\nv_lshrrev_b32 v5, 5, v1\nv_lshl_add_u32 v5, v5, 4, s{sT}")
        PK = 96
        A(f"s_lshl_b32 s{sU}, s{sHQ}, 8\ns_add_u32 s{sU}, s{sU}, s{sE}")
        if not isv:
            for hd in range(4):
                for g in range(4): A(f"ds_read_b128 {v(32+16*hd+4*g,4)}, v5 offset:{hd*112 + g*32}"); lg.issue(f"c{hd}")
            QS = DH ** -0.5 * math.log2(math.e)
            A(f"s_cmp_eq_u32 s{sSEC}, 0\ns_cselect_b32 s{sV}, {fl(QS)}, 1.0\ns_cselect_b32 s{sA}, 0, s{sONES}\ns_cselect_b32 s{sB}, 0, 0x3f80\ns_cselect_b32 s{sC}, {WS_Q}, {WS_KV}")
            A(f"s_add_u32 s{sD_}, s{sSEC}, 11\ns_lshl_b32 s{sU}, s{sU}, s{sD_}\ns_add_u32 s{sU}, s{sU}, s{sC}\ns_lshl_b32 s{sD_}, 64, s{sD_}")
            A(f"v_mul_f32 v16, s{sV}, v16\nv_mul_f32 v18, s{sV}, v18\nv_mov_b32 v12, s{sA}\nv_mov_b32 v13, s{sB}")
            for hd in range(4):
                lg.wait(f"c{hd}")
                c, ac = 32+16*hd, ACC+16*hd
                for r in range(0, 16, 2): A(f"v_pk_mul_f32 {v(c+r,2)}, {v(c+r,2)}, v[16:17] op_sel_hi:[1,0]")
                for r in range(0, 16, 2): A(f"v_pk_fma_f32 {v(ac+r,2)}, {v(ac+r,2)}, v[18:19], {v(c+r,2)} op_sel_hi:[1,0,1]")
                for r in range(8): A(f"v_cvt_pk_bf16_f32 v{PK+8*hd+r}, v{ac+2*r}, v{ac+2*r+1}")
                A(f"v_cndmask_b32 v{PK+8*hd+6}, v{PK+8*hd+6}, v12, s[{sHI}:{sHI+1}]\nv_cndmask_b32 v{PK+8*hd+7}, v{PK+8*hd+7}, v13, s[{sHI}:{sHI+1}]")
                for f in range(2): A(f"buffer_store_dwordx4 {v(PK+8*hd+4*f,4)}, v{VL}, {R(RWS)}, s{sU} offen offset:{f*1024} sc1")
                A(f"s_add_u32 s{sU}, s{sU}, s{sD_}")
        else:
            A(f"v_cndmask_b32 v6, v18, v16, s[{sHI}:{sHI+1}]\nv_lshl_add_u32 v4, v1, 2, s{sT}\nds_write_b32 v4, v6 offset:512")
            A(f"v_and_b32 v6, 31, v1\nv_lshl_add_u32 v4, v6, 2, s{sT}")
            for g in range(4): A(f"ds_read_b128 {v(32+4*g,4)}, v5 offset:{512 + g*32}\nds_read_b128 {v(48+4*g,4)}, v5 offset:{640 + g*32}")
            for hd in range(4): A(f"ds_read_b32 v{24+2*hd}, v4 offset:{hd*112}")
            A(f"s_lshl_b32 s{sU}, s{sU}, 12\ns_add_u32 s{sU}, s{sU}, {WS_KV + 2048}")
            A(f"v_cmp_eq_u32 vcc, 28, v6\nv_mov_b32 v13, s{sONES}\nv_cndmask_b32 v12, 0, v13, vcc\nv_mov_b32 v13, v12")
            for r in range(0, 16, 2): A(f"v_pk_mov_b32 {v(PK+r,2)}, v[12:13], v[12:13]")
            A(f"s_mov_b32 s{sA}, 0x0fffffff\ns_mov_b32 s{sA+1}, 0x0fffffff\ns_waitcnt lgkmcnt(0)")
            for hd in range(4):
                ac = ACC+16*hd; pk = PK + 8*(hd & 1)
                for r in range(0, 16, 2): A(f"v_pk_mul_f32 {v(64+r,2)}, {v(48+r,2)}, {v(24+2*hd,2)} op_sel_hi:[1,0]")
                for r in range(0, 16, 2): A(f"v_pk_fma_f32 {v(ac+r,2)}, {v(ac+r,2)}, {v(32+r,2)}, {v(64+r,2)}")
                A(f"s_mov_b64 exec, s[{sA}:{sA+1}]")
                for r in range(8): A(f"v_cvt_pk_bf16_f32 v{pk+r}, v{ac+2*r}, v{ac+2*r+1}")
                A("s_mov_b64 exec, -1")
                for f in range(2): A(f"buffer_store_dwordx4 {v(pk+4*f,4)}, v{VL}, {R(RWS)}, s{sU} offen offset:{f*1024} sc1")
                A(f"s_add_u32 s{sU}, s{sU}, {64*4096}")
        stamp("kvst"); stamp_flush()
        if not isv: A("s_branch P1_DONE")
    A("P1_DONE:")

def tilemax(sreg, T0, T1):
    A(f"v_max3_f32 v{T0}, v{sreg}, v{sreg+1}, v{sreg+2}\nv_max3_f32 v{T1}, v{sreg+3}, v{sreg+4}, v{sreg+5}")
    A(f"v_max3_f32 v{T0}, v{T0}, v{sreg+6}, v{sreg+7}\nv_max3_f32 v{T1}, v{T1}, v{sreg+8}, v{sreg+9}")
    A(f"v_max3_f32 v{T0}, v{T0}, v{sreg+10}, v{sreg+11}\nv_max3_f32 v{T1}, v{T1}, v{sreg+12}, v{sreg+13}")
    A(f"v_max3_f32 v{T0}, v{T0}, v{sreg+14}, v{sreg+15}")
def set_qpad(q, m, T0, T1, T2):
    A(f"v_sub_f32 v{T0}, 0, v{m}\nv_and_b32 v{T1}, 0xffff0000, v{T0}\nv_sub_f32 v{T0}, v{T0}, v{T1}")
    A(f"v_and_b32 v{T2}, 0xffff0000, v{T0}\nv_sub_f32 v{T0}, v{T0}, v{T2}\nv_lshrrev_b32 v{T0}, 16, v{T0}")
    A(f"v_lshrrev_b32 v{T1}, 16, v{T1}\nv_or_b32 v{T1}, v{T1}, v{T2}")
    A(f"v_cndmask_b32 v{q+6}, v{q+6}, v{T1}, s[{sHI}:{sHI+1}]\nv_cndmask_b32 v{q+7}, v{q+7}, v{T0}, s[{sHI}:{sHI+1}]")

XR, IR3 = 224, 232
VRD, VFL, VKV, VONE, VRB, VWO = [240, 241], 242, 243, 244, [246, 247], 248
VRW = [249, 250, 251, 252]
def addr_setup():
    tr_lane_addr(4, 5, 128, 4)
    A(f"v_bfe_u32 v5, v1, 3, 1\ns_lshr_b32 s{sT}, s{SW}, 1\nv_xor_b32 v5, s{sT}, v5")
    A(f"v_lshl_add_u32 v6, v5, 6, v4\nv_xor_b32 v5, 1, v5\nv_lshl_add_u32 v7, v5, 6, v4")
    A(f"v_add_u32 v{VRD[0]}, s{sW2W}, v6\nv_add_u32 v{VRD[1]}, s{sW2W}, v7\nv_add_u32 v{VRB[0]}, s{sRBW}, v6\nv_add_u32 v{VRB[1]}, s{sRBW}, v7")
    A(f"v_lshlrev_b32 v{VFL}, 7, v1\nv_mov_b32 v{VONE}, 0x3f80\nv_mov_b32 v{VONE+1}, 1.0")
    A(f"s_lshl_b32 s{sT}, s{sH}, 2\ns_add_u32 s{sT}, s{sT}, s{SW}\ns_lshl_b32 s{sT}, s{sT}, 16\ns_add_u32 s{sT}, s{sT}, {WS_KV}\nv_add_u32 v{VKV}, s{sT}, v{VL}")
    tr_lane_addr(VWO, 4, 64, 4); A(f"v_add_u32 v{VWO}, {RBUF}, v{VWO}\nv_add_u32 v{VRW[0]}, s{sRBW}, v{VL}")
    for t in range(1, 4):
        A(f"s_add_u32 s{sT}, s{SW}, {t}\ns_and_b32 s{sT}, s{sT}, 3\ns_mul_i32 s{sT}, s{sT}, 12288\ns_add_u32 s{sT}, s{sT}, {RBUF}\nv_add_u32 v{VRW[t]}, s{sT}, v{VL}")
    A("v_and_b32 v4, 31, v1\nv_lshrrev_b32 v5, 5, v1\nv_lshlrev_b32 v6, 3, v5\nv_sub_u32 v6, v4, v6")
    for p in range(2):
        for r in range(4):
            A(f"v_cmp_eq_u32 vcc, {16*p+2*r}, v6\nv_cmp_eq_u32 s[{sU}:{sU+1}], {16*p+2*r+1}, v6\nv_cndmask_b32 v{IR3+4*p+r}, 0, v{VONE}, vcc\nv_cndmask_b32 v{IR3+4*p+r}, v{IR3+4*p+r}, v{VONE+1}, s[{sU}:{sU+1}]")
    A("v_mul_u32_u24 v13, 896, v4\nv_lshl_add_u32 v13, v5, 4, v13")

def p2():
    Q, O, SS, PP, KV = 16, 48, [112, 128], [144, 152], 160
    M = [112, 113, 114, 115]; K0 = 120
    T0, T1, T2, T3 = 4, 5, 6, 7
    sKN = sB
    addr_setup()
    vm.wait_all(); stamp("kvdrain")
    A(f"s_barrier\ns_cmp_lg_u32 s{SW}, 0\ns_cbranch_scc1 P2_NOF")
    flag_store(sF[0]); A("P2_NOF:"); stamp_flush()
    A("s_branch P2_GO\nP2_START:")
    addr_setup()
    A("P2_GO:")
    A(f"s_lshl_b32 s{sV}, s{sI}, 2\ns_add_u32 s{sV}, s{sV}, s{SW}\ns_mul_i32 s{sT}, s{sV}, {32*896}\ns_lshl_b32 s{sU}, s{sH}, 6\ns_add_u32 s{sT}, s{sT}, s{sU}")
    for p in range(2): A(f"buffer_load_dwordx4 {v(XR+4*p,4)}, v13, {R(RX)}, s{sT} offen offset:{32*p}")
    A(f"s_add_u32 s{sU}, s{sU}, s{sV}\ns_lshl_b32 s{sU}, s{sU}, 11")
    A(f"s_lshr_b32 s{sT}, s{sH}, 2\ns_lshl_b32 s{sT}, s{sT}, 13\ns_add_u32 s{sT}, s{sT}, {F1}\ns_lshl_b32 s{sA}, s{SW}, 9\ns_add_u32 s{sA}, s{sA}, 2048\ns_lshl_b32 s{sC}, s{sI}, 7")
    A(f"v_and_b32 v10, 3, v1\nv_lshl_add_u32 v10, v10, 7, s{sA}\nv_bfe_u32 v11, v1, 2, 1\nv_lshl_add_u32 v10, v11, 11, v10\nv_writelane_b32 v10, s{sC}, 8")
    poll(10, sT, 9, 8); stamp("s1")
    def kvload(n):
        pre = [f"s_mov_b32 s{sKN}, {n*4096}"]
        return pre + [f"buffer_load_dwordx4 {v(KV+16*(n&3)+4*f,4)}, v{VKV}, {R(RWS)}, s{sKN} offen offset:{f*1024} sc1" for f in range(4)]
    def emit(lines, tag):
        for ln in lines:
            A(ln)
            if ln.startswith("buffer_"): vm.issue(tag)
    for f in range(2): A(f"buffer_load_dwordx4 {v(Q+4*f,4)}, v{VL}, {R(RWS)}, s{sU} offen offset:{f*1024} sc1"); vm.issue("q")
    emit(kvload(0), "kv0")
    A("s_waitcnt vmcnt(2)"); stamp("qk0")
    A(f"{MFMA} {v(O,16)}, {v(KV,4)}, {v(Q,4)}, 0\n{MFMA} {v(O,16)}, {v(KV+4,4)}, {v(Q+4,4)}, {v(O,16)}")
    emit(kvload(1), "kv1")
    A(f"ds_write_b128 v{VRW[0]}, {v(Q,4)}")
    tilemax(O, T0, T1)
    A(f"v_max_f32 v{T0}, v{T0}, v{T1}\nv_mov_b32 v{T1}, v{T0}\nv_permlane32_swap_b32 v{T0}, v{T1}\nv_max_f32 v{T0}, v{T0}, v{T1}")
    set_qpad(Q, T0, T1, T2, T3)
    A(f"ds_write_b128 v{VRW[0]}, {v(Q+4,4)} offset:1024\ns_waitcnt lgkmcnt(0)")
    emit(kvload(2), "kv2")
    A("s_barrier")
    for t in range(1, 4): A(f"ds_read_b128 {v(Q+8*t,4)}, v{VRW[t]}\nds_read_b128 {v(Q+8*t+4,4)}, v{VRW[t]} offset:1024")
    emit(kvload(3), "kv3")
    A("P2_MAIN:")
    def qk(idx, part):
        n, t = idx >> 2, idx & 3; sr = SS[idx & 1]; k = KV + 16*(n & 3)
        return f"{MFMA} {v(sr,16)}, {v(k+4*part,4)}, {v(Q+8*t+4*part,4)}, {'0' if part == 0 else v(sr,16)}"
    def pv(idx, part):
        n, t = idx >> 2, idx & 3; k = KV + 16*(n & 3) + 8; o = O + 16*t
        return f"{MFMA} {v(o,16)}, {v(k+4*part,4)}, {v(PP[idx&1]+4*part,4)}, {'0' if (n == 0 and part == 0) else v(o,16)}"
    NI = 64
    A(qk(0, 0)); A(qk(0, 1)); A("s_waitcnt lgkmcnt(0)")
    for idx in range(NI):
        n, t = idx >> 2, idx & 3
        if idx in (16, 32, 48): stamp(f"a{idx}")
        if idx == 1: vm.wait("kv0")
        if env("BDEL", 0) and idx == env("BDEL", 0): A("s_barrier")
        if t == 3 and n + 1 < 16: vm.wait(f"kv{n+1}")
        mf = [qk(idx+1, 0) if idx+1 < NI else None, pv(idx-1, 0) if idx > 0 else None,
              qk(idx+1, 1) if idx+1 < NI else None, pv(idx-1, 1) if idx > 0 else None]
        sr, p = SS[idx & 1], PP[idx & 1]
        for q in range(4):
            if mf[q]: A(mf[q])
            for j in range(4): A(f"v_exp_f32 v{sr+4*q+j}, v{sr+4*q+j}")
            if q > 0:
                for j in range(2): A(f"v_cvt_pk_bf16_f32 v{p+2*(q-1)+j}, v{sr+4*(q-1)+2*j}, v{sr+4*(q-1)+2*j+1}")
        if t == 0 and 1 <= n < 13: emit(kvload(n + 3), f"kv{n+3}")
        for j in range(2): A(f"v_cvt_pk_bf16_f32 v{p+6+j}, v{sr+12+2*j}, v{sr+12+2*j+1}")
    A(pv(NI-1, 0)); A(pv(NI-1, 1)); stamp("aend")
    for t in (1, 2):
        for g in range(3): A(f"ds_write_b128 v{VRW[t]}, {v(O+16*t+4*g,4)} offset:{(t-1)*4096 + g*1024}")
    A(f"s_mov_b32 s{sT}, {fl(2.0**30)}")
    A(f"v_cmp_nlt_f32 s[{sA}:{sA+1}], v{O+12}, s{sT}\nv_cmp_nlt_f32 s[{sC}:{sC+1}], v{O+28}, s{sT}\ns_or_b32 s{sU}, s{sA+1}, s{sC+1}")
    A(f"v_cmp_nlt_f32 s[{sA}:{sA+1}], v{O+44}, s{sT}\nv_cmp_nlt_f32 s[{sC}:{sC+1}], v{O+60}, s{sT}\ns_or_b32 s{sU}, s{sU}, s{sA+1}\ns_or_b32 s{sU}, s{sU}, s{sC+1}")
    A(f"s_cselect_b32 s{sU}, 1.0, 0\nv_mov_b32 v{T0}, s{sU}")
    for t in range(4): A(f"v_cndmask_b32 v{O+16*t+13}, v{O+16*t+13}, v{T0}, s[{sHI}:{sHI+1}]")
    for g in range(3): A(f"ds_write_b128 v{VRW[3]}, {v(O+48+4*g,4)} offset:{2*4096 + g*1024}")
    for t in range(1, 4): A(f"ds_write_b128 v{VRW[t]}, {v(O+16*t+12,4)} offset:{(t-1)*4096 + 3*1024}")
    A(f"s_lshl_b32 s{sD_}, s{sI}, 2\ns_add_u32 s{sD_}, s{sD_}, s{SW}\ns_lshl_b32 s{sV}, s{sD_}, 4\ns_add_u32 s{sV}, s{sV}, s{sH}\ns_lshl_b32 s{sV}, s{sV}, 11\ns_add_u32 s{sV}, s{sV}, {WS_O}")
    A("s_waitcnt lgkmcnt(0)\ns_barrier")
    for g in (3, 0, 1, 2):
        for t in range(1, 4): A(f"ds_read_b128 {v(O+16*t+4*g,4)}, v{VRW[0]} offset:{(t-1)*4096 + g*1024}")
    def red(g):
        for r in (4*g, 4*g+2):
            A(f"v_pk_add_f32 {v(O+r,2)}, {v(O+r,2)}, {v(O+16+r,2)}\nv_pk_add_f32 {v(O+32+r,2)}, {v(O+32+r,2)}, {v(O+48+r,2)}")
        for r in (4*g, 4*g+2): A(f"v_pk_add_f32 {v(O+r,2)}, {v(O+r,2)}, {v(O+32+r,2)}")
    A("s_waitcnt lgkmcnt(9)"); red(3)
    A(f"v_readlane_b32 s{sT}, v{O+13}, 32\nv_mov_b32 v{T0}, v{O+12}\nv_mov_b32 v{T2}, v{O+12}\nv_permlane32_swap_b32 v{T0}, v{T2}\nv_rcp_f32 v{T2}, v{T2}")
    A(f"s_cmp_lg_u32 s{sT}, s{sRETRY}\ns_cbranch_scc1 P2_FALL\nP2_FIN:")
    for k, g in enumerate((0, 1, 2)):
        A(f"s_waitcnt lgkmcnt({6 - 3*k})"); red(g)
    for r in range(0, 16, 2): A(f"v_pk_mul_f32 {v(O+r,2)}, {v(O+r,2)}, {v(T2,2)} op_sel_hi:[1,0]")
    for r in range(8): A(f"v_cvt_pk_bf16_f32 v{O+16+r}, v{O+2*r}, v{O+2*r+1}")
    A(f"v_cndmask_b32 v{O+22}, v{O+22}, 0, s[{sHI}:{sHI+1}]\nv_cndmask_b32 v{O+23}, v{O+23}, 0, s[{sHI}:{sHI+1}]")
    for f in range(2): A(f"buffer_store_dwordx4 {v(O+16+4*f,4)}, v{VL}, {R(RWS)}, s{sV} offen offset:{f*1024} sc1")
    stamp("ost")
    A("s_barrier")
    def fallback():
        A(f"P2_FALL:\ns_cmp_lg_u32 s{sRETRY}, 0\ns_cbranch_scc1 P2_FIN")
        A(f"s_mov_b32 s{sRETRY}, -1\ns_waitcnt vmcnt(0) lgkmcnt(0)")
        for t in range(4):
            A(f"v_cndmask_b32 v{Q+8*t+6}, v{Q+8*t+6}, 0, s[{sHI}:{sHI+1}]\nv_cndmask_b32 v{Q+8*t+7}, v{Q+8*t+7}, 0, s[{sHI}:{sHI+1}]\nv_mov_b32 v{M[t]}, 0xff800000")
        A(f"s_mov_b32 s{sU}, 0\nP2_MAXLOOP:")
        for f in range(2): A(f"buffer_load_dwordx4 {v(K0+4*f,4)}, v{VKV}, {R(RWS)}, s{sU} offen offset:{f*1024} sc1")
        A("s_waitcnt vmcnt(0)")
        for t in range(4):
            A(f"{MFMA} {v(O+16*t,16)}, {v(K0,4)}, {v(Q+8*t,4)}, 0\n{MFMA} {v(O+16*t,16)}, {v(K0+4,4)}, {v(Q+8*t+4,4)}, {v(O+16*t,16)}")
        for t in range(4):
            tilemax(O+16*t, T0, T1); A(f"v_max3_f32 v{M[t]}, v{M[t]}, v{T0}, v{T1}")
        A(f"s_add_u32 s{sU}, s{sU}, 4096\ns_cmp_lt_u32 s{sU}, {16*4096}\ns_cbranch_scc1 P2_MAXLOOP")
        A(f"s_barrier\nv_and_b32 v{T3}, 31, v1\nv_lshlrev_b32 v{T3}, 4, v{T3}")
        for t in range(4):
            A(f"v_mov_b32 v{T2}, v{M[t]}\nv_permlane32_swap_b32 v{M[t]}, v{T2}\nv_max_f32 v{M[t]}, v{M[t]}, v{T2}")
            A(f"s_add_u32 s{sT}, s{SW}, {t}\ns_and_b32 s{sT}, s{sT}, 3\ns_lshl_b32 s{sT}, s{sT}, 9\ns_add_u32 s{sT}, s{sT}, {RBUF}\ns_lshl_b32 s{sU}, s{SW}, 2\ns_add_u32 s{sU}, s{sU}, s{sT}")
            A(f"v_add_u32 v{K0+t}, s{sT}, v{T3}\nv_add_u32 v{T2}, s{sU}, v{T3}\nds_write_b32 v{T2}, v{M[t]}")
        A("s_waitcnt lgkmcnt(0)\ns_barrier")
        for t in range(4): A(f"ds_read_b128 {v(O+4*t,4)}, v{K0+t}")
        for n in range(4):
            for ln in kvload(n): A(ln)
        A("s_waitcnt vmcnt(0) lgkmcnt(0)\ns_barrier")
        for t in range(4):
            A(f"v_max3_f32 v{M[t]}, v{O+4*t}, v{O+4*t+1}, v{O+4*t+2}\nv_max_f32 v{M[t]}, v{M[t]}, v{O+4*t+3}")
            set_qpad(Q+8*t, M[t], T0, T1, T2)
        A("s_branch P2_MAIN")
    return fallback

def p3():
    OFR, D1, D2, TF = 16, 144, 160, 176
    T0, T1, T2, T3 = 8, 9, 10, 11
    A(f"{MFMA} {v(D1,16)}, {v(XR,4)}, {v(IR3,4)}, 0\n{MFMA} {v(D2,16)}, {v(IR3,4)}, {v(XR,4)}, 0")
    A(f"{MFMA} {v(D1,16)}, {v(XR+4,4)}, {v(IR3+4,4)}, {v(D1,16)}\n{MFMA} {v(D2,16)}, {v(IR3+4,4)}, {v(XR+4,4)}, {v(D2,16)}")
    A(f"s_lshl_b32 s{sT}, s{sH}, 7\ns_sub_u32 s{sT}, s{sF[1]}, s{sT}\ns_lshl_b32 s{sB}, s{sD_}, 15\ns_add_u32 s{sB}, s{sB}, {WS_O}\nv_add_u32 v{T2}, s{sB}, v{VL}\ns_and_b32 s{sA}, s{sH}, 7\ns_lshl_b32 s{sA}, s{sA}, 12")
    vm.wait_all(); stamp("odrain"); flag_store(sF[1]); stamp_flush()
    A("s_barrier")
    A(f"s_cmp_lt_u32 s{sH}, 14\ns_cbranch_scc1 P3_GO\ns_barrier\ns_branch P3_END\nP3_GO:")
    poll(VFL, sT, 16, T0); stamp("s2")
    def oload(m):
        for k in range(4): A(f"buffer_load_dwordx4 {v(OFR+16*m+4*k,4)}, v{T2}, {R(RWS)}, s{sA} offen offset:{k*1024} sc1"); vm.issue(f"o{4*m+k}")
        A(f"s_add_u32 s{sA}, s{sA}, 4096\ns_and_b32 s{sA}, s{sA}, 0x7fff")
    NPRE = 3
    for m in range(NPRE): oload(m)
    lg.q = []
    def wread(ks):
        n, p = ks >> 1, ks & 1
        for half in range(2):
            A(f"ds_read_b64_tr_b16 {v(TF+4*(ks&3)+2*half,2)}, v{VWO} offset:{(n>>2)*12288 + (n&3)*2048 + (16*p+8*half)*64}"); lg.issue(f"w{ks}")
    wread(0); wread(1)
    for ks in range(32):
        vm.wait(f"o{ks}"); lg.wait(f"w{ks}")
        if ks in (0, 16): stamp(f"p3_{ks}")
        o, wv = v(OFR+4*ks, 4), v(TF+4*(ks&3), 4)
        A(f"{MFMA} {v(D2,16)}, {wv}, {o}, {v(D2,16)}")
        if ks + 2 < 32: wread(ks + 2)
        A(f"{MFMA} {v(D1,16)}, {o}, {wv}, {v(D1,16)}")
        if ks % 4 == 1 and NPRE + ks//4 < 8: oload(NPRE + ks//4)
    stamp("p3mm")
    G = 16
    A(f"s_lshl_b32 s{sB}, s{sD_}, 13\ns_add_u32 s{sB}, s{sB}, {WS_ST}\ns_lshl_b32 s{sT}, s{sH}, 9\ns_add_u32 s{sT}, s{sT}, s{sB}")
    A(f"v_mov_b32 v{G+1}, s{sTAG}\nv_mov_b32 v{G+3}, s{sTAG+1}")
    A(f"v_pk_add_f32 v[20:21], {v(D2,2)}, {v(D2+2,2)}\nv_pk_mul_f32 v[22:23], {v(D2,2)}, {v(D2,2)}\nv_pk_fma_f32 v[22:23], {v(D2+2,2)}, {v(D2+2,2)}, v[22:23]")
    for r in range(4, 16, 2): A(f"v_pk_add_f32 v[20:21], v[20:21], {v(D2+r,2)}\nv_pk_fma_f32 v[22:23], {v(D2+r,2)}, {v(D2+r,2)}, v[22:23]")
    A(f"v_add_f32 v{G}, v20, v21\nv_add_f32 v{G+2}, v22, v23")
    A(f"v_mov_b32 v20, v{G}\nv_mov_b32 v22, v{G+2}\nv_permlane32_swap_b32 v{G}, v20\nv_permlane32_swap_b32 v{G+2}, v22\nv_add_f32 v{G}, v{G}, v20\nv_add_f32 v{G+2}, v{G+2}, v22")
    set_exec(0xFFFFFFFF)
    A(f"buffer_store_dwordx4 {v(G,4)}, v{VL}, {R(RWS)}, s{sT} offen sc1\ns_mov_b64 exec, -1")
    for r in range(8): A(f"v_cvt_pk_bf16_f32 v{24+r}, v{D2+2*r}, v{D2+2*r+1}")
    A(f"s_mul_i32 s{sT}, s{sD_}, 14\ns_add_u32 s{sT}, s{sT}, s{sH}\ns_lshl_b32 s{sT}, s{sT}, 11\ns_add_u32 s{sT}, s{sT}, {WS_HF}")
    for p in range(2): A(f"buffer_store_dwordx4 {v(24+4*p,4)}, v{VL}, {R(RWS)}, s{sT} offen offset:{p*1024} sc1")
    A(f"v_and_b32 v{T0}, 31, v1\nv_lshlrev_b32 v{T0}, 4, v{T0}\nv_lshrrev_b32 v{T1}, 5, v1\nv_mul_u32_u24 v{T1}, 3584, v{T1}\nv_add_u32 v{T0}, v{T0}, v{T1}")
    A("s_barrier")
    if env("S3W", 1): A("s_waitcnt vmcnt(2)")
    stamp("s3pre")
    GR = 32
    A(f"s_mov_b32 s{sTO}, 0x40000\nP3_GL:")
    for k in range(7): A(f"buffer_load_dwordx4 {v(GR+4*k,4)}, v{T0}, {R(RWS)}, s{sB} offen offset:{k*512} sc1")
    A(f"s_sub_u32 s{sTO}, s{sTO}, 1\ns_waitcnt vmcnt(0)\ns_cbranch_scc1 P3_GX")
    tagcheck([GR+4*k for k in range(7)], T1, T2, T3)
    A("s_cbranch_vccnz P3_GL\nP3_GX:")
    vm.q = []
    stamp("s3")
    for k in range(1, 7): A(f"v_add_f32 v{GR}, v{GR}, v{GR+4*k}\nv_add_f32 v{GR+2}, v{GR+2}, v{GR+4*k+2}")
    m, q = GR, GR+2
    A(f"v_mov_b32 v{T0}, v{m}\nv_mov_b32 v{T1}, v{q}\nv_permlane32_swap_b32 v{m}, v{T0}\nv_permlane32_swap_b32 v{q}, v{T1}\nv_add_f32 v{m}, v{m}, v{T0}\nv_add_f32 v{q}, v{q}, v{T1}")
    A(f"v_mul_f32 v{m}, {fl(1.0/D)}, v{m}\nv_mul_f32 v{q}, {fl(1.0/D)}, v{q}\nv_fma_f32 v{q}, -v{m}, v{m}, v{q}\nv_max_f32 v{q}, 0, v{q}")
    A(f"v_add_f32 v{T0}, {fl(EPS)}, v{q}\nv_mul_f32 v{T0}, {fl(EPS)}, v{T0}\nv_add_f32 v{q}, v{q}, v{T0}\nv_rsq_f32 v{q}, v{q}\ns_add_u32 s{sT}, s{sRBW}, 8192\nv_mul_f32 v{m}, v{m}, v{q}")
    A(f"v_cndmask_b32 v{T0}, v{q}, v{m}, s[{sHI}:{sHI+1}]\nv_lshl_add_u32 v{T1}, v1, 2, s{sT}\nds_write_b32 v{T1}, v{T0}")
    A(f"v_lshrrev_b32 v{T2}, 5, v1\nv_lshl_add_u32 v{T2}, v{T2}, 4, s{sT}")
    for g in range(4): A(f"ds_read_b128 {v(64+4*g,4)}, v{T2} offset:{g*32}\nds_read_b128 {v(80+4*g,4)}, v{T2} offset:{128+g*32}")
    A(f"s_lshl_b32 s{sT}, s{sH}, 17\ns_lshl_b32 s{sU}, s{sD_}, 11\ns_add_u32 s{sT}, s{sT}, s{sU}\ns_add_u32 s{sT}, s{sT}, {WS_HH}")
    for p in range(2):
        A(f"s_waitcnt lgkmcnt({4 - 4*p})")
        for r in range(8*p, 8*p+8, 2): A(f"v_pk_fma_f32 {v(D1+r,2)}, {v(D1+r,2)}, {v(64+r,2)}, {v(80+r,2)} neg_lo:[0,0,1] neg_hi:[0,0,1]")
        for r in range(4*p, 4*p+4): A(f"v_cvt_pk_bf16_f32 v{24+r}, v{D1+2*r}, v{D1+2*r+1}")
        A(f"buffer_store_dwordx4 {v(24+4*p,4)}, v{VL}, {R(RWS)}, s{sT} offen offset:{p*1024} sc1")
    stamp("hhst"); stamp_flush()
    A("P3_END:")
    vm.q = []; lg.q = []

PRE, ACC = 128, 16
def preread():
    for n in range(14):
        for ti in range(2):
            for half in range(2):
                A(f"ds_read_b64_tr_b16 {v(PRE + 8*n + ti*4 + half*2, 2)}, v{VRD[ti]} offset:{n*2048 + half*1024}")

def p4():
    RING, NR = 80, 6
    T0, T1, BR, VH = 4, 5, 6, [14, 15]
    preread()
    A(f"s_cmp_ge_u32 s{sH}, 14\ns_cbranch_scc1 P4_NOFLAG\ns_waitcnt vmcnt(0)")
    flag_store(sF[2])
    A("P4_NOFLAG:\ns_waitcnt lgkmcnt(0)\ns_barrier")
    stamp("hhflag"); stamp_flush()
    A(f"s_cmp_lg_u32 s{sACT4}, 0\ns_cbranch_scc1 P4_GO\ns_barrier\ns_barrier\ns_barrier\ns_barrier\ns_branch P4_END\nP4_GO:")
    sFO, sRO = sA, sD_
    A(f"s_lshr_b32 s{sFO}, s{SW}, 1\ns_lshl_b32 s{sT}, s{sFT}, 1\ns_add_u32 s{sFO}, s{sFO}, s{sT}\ns_lshl_b32 s{sT}, s{sFO}, 6\nv_lshrrev_b32 v{T0}, 5, v1\nv_lshlrev_b32 v{T0}, 3, v{T0}")
    for g in range(4): A(f"buffer_load_dwordx2 {v(BR+2*g,2)}, v{T0}, {R(RB1)}, s{sT} offen offset:{g*16}")
    A(f"s_and_b32 s{sE}, s{SW}, 1\ns_lshl_b32 s{sT}, s{sDT4}, 1\ns_add_u32 s{sE}, s{sE}, s{sT}\ns_xor_b32 s{sU}, s{sE}, 1")
    A(f"s_lshl_b32 s{sT}, s{SW}, 15\ns_add_u32 s{sT}, s{sT}, {WS_HH}\ns_lshl_b32 s{sB}, s{sE}, 17\ns_add_u32 s{sB}, s{sB}, s{sT}\ns_lshl_b32 s{sC}, s{sU}, 17\ns_add_u32 s{sC}, s{sC}, s{sT}")
    A(f"v_add_u32 v{VH[0]}, s{sB}, v{VL}\nv_add_u32 v{VH[1]}, s{sC}, v{VL}")
    rot4(sRO); A(f"s_lshl_b32 s{sRO}, s{sRO}, 10")
    A(f"v_and_b32 v{T0}, 15, v1\nv_lshlrev_b32 v{T0}, 7, v{T0}\nv_bfe_u32 v{T1}, v1, 4, 1\nv_lshl_add_u32 v{T0}, v{T1}, 13, v{T0}")
    A(f"s_lshl_b32 s{sT}, s{sDT4}, 14\ns_lshl_b32 s{sU}, s{SW}, 11\ns_add_u32 s{sT}, s{sT}, s{sU}\ns_add_u32 s{sT}, s{sT}, {F4}")
    for sl in range(1, 4):
        A(f"s_xor_b32 s{sU}, s{SW}, {sl}\ns_mul_i32 s{sU}, s{sU}, 12288\ns_add_u32 s{sU}, s{sU}, {RBUF}\nv_add_u32 v{VRW[sl]}, s{sU}, v{VL}")
    poll(T0, sT, 32, RING); stamp("s4")
    dest = lambda n, j: v(RING + (n % NR)*8 + 4*j, 4)
    def hload(n):
        for j in range(2): A(f"buffer_load_dwordx4 {dest(n,j)}, v{VH[j]}, {R(RWS)}, s{sRO} offen offset:{(n&3)*1024} sc1"); vm.issue(n)
        if n & 3 == 3: A(f"s_add_u32 s{sRO}, s{sRO}, 4096\ns_and_b32 s{sRO}, s{sRO}, 0x7fff")
    wreg = lambda n, ti: v(PRE + 8*(n if n < 14 else n & 3) + 4*ti, 4)
    def tread(n, ti):
        va, off = (VRB, (n-14)*2048) if n < 18 else (VRD, (n-18)*2048)
        for half in range(2): A(f"ds_read_b64_tr_b16 {v(PRE + 8*(n&3) + ti*4 + half*2, 2)}, v{va[ti]} offset:{off + half*1024}"); lg.issue(n)
    for n in range(NR): hload(n)
    for n in range(32):
        vm.wait(n)
        if n == 0: stamp("p4first")
        if n in (8, 16, 24): stamp(f"p4_{n}")
        if n == 12: A("s_barrier")
        lg.wait(n)
        if n == 25: A("s_barrier")
        if n == 31: A("s_barrier")
        order = [(0, 0), (0, 1), (1, 0), (1, 1)] if n < 31 else [(0, 1), (1, 0), (1, 1), (0, 0)]
        for k, (ti, tj) in enumerate(order):
            acc = ACC + 16*(2*ti + tj)
            A(f"{MFMA} {v(acc,16)}, {wreg(n,ti)}, {dest(n,tj)}, {'0' if n == 0 else v(acc,16)}")
            if k < 2 and 14 <= n + 2 < 32: tread(n + 2, k)
        if n + NR < 32: hload(n + NR)
    stamp("p4mm")
    for sl in (1, 2, 3):
        for g in range(4): A(f"ds_write_b128 v{VRW[sl]}, {v(ACC+16*sl+4*g,4)} offset:{(sl-1)*4096 + g*1024}")
    for j in range(8):
        A(f"v_lshlrev_b32 v80, 16, v{BR+j}\nv_and_b32 v81, 0xffff0000, v{BR+j}\nv_pk_add_f32 {v(ACC+2*j,2)}, {v(ACC+2*j,2)}, v[80:81]")
    c1 = -2.0*math.sqrt(2.0/math.pi)*math.log2(math.e); c2 = c1*0.044715
    A(f"v_mov_b32 v82, {fl(c2)}\nv_mov_b32 v84, {fl(c1)}")
    A(f"s_mul_i32 s{sT}, s{sE}, {112*1024}\ns_lshl_b32 s{sU}, s{sFO}, 11\ns_add_u32 s{sT}, s{sT}, s{sU}\ns_add_u32 s{sT}, s{sT}, {WS_G}")
    A("s_waitcnt lgkmcnt(0)\ns_barrier")
    for g in range(4):
        for sl in range(1, 4): A(f"ds_read_b128 {v(ACC+16*sl+4*g,4)}, v{VRW[0]} offset:{(sl-1)*4096 + g*1024}")
    for g in range(4):
        A(f"s_waitcnt lgkmcnt({9-3*g})")
        rs = (16+4*g, 18+4*g)
        for r in rs: A(f"v_pk_add_f32 {v(r,2)}, {v(r,2)}, {v(r+16,2)}\nv_pk_add_f32 {v(r+32,2)}, {v(r+32,2)}, {v(r+48,2)}")
        for r in rs: A(f"v_pk_add_f32 {v(r,2)}, {v(r,2)}, {v(r+32,2)}")
        for r in rs: A(f"v_pk_mul_f32 {v(r+16,2)}, {v(r,2)}, {v(r,2)}")
        for r in rs: A(f"v_pk_fma_f32 {v(r+16,2)}, {v(r+16,2)}, v[82:83], v[84:85] op_sel_hi:[1,0,0]")
        for r in rs: A(f"v_pk_mul_f32 {v(r+16,2)}, {v(r+16,2)}, {v(r,2)}")
        for r in range(32+4*g, 36+4*g): A(f"v_exp_f32 v{r}, v{r}")
        for r in rs: A(f"v_pk_add_f32 {v(r+16,2)}, {v(r+16,2)}, 1.0 op_sel_hi:[1,0]")
        for r in range(32+4*g, 36+4*g): A(f"v_rcp_f32 v{r}, v{r}")
        for r in rs: A(f"v_pk_mul_f32 {v(r,2)}, {v(r,2)}, {v(r+16,2)}")
        for k, r in enumerate(rs): A(f"v_cvt_pk_bf16_f32 v{88+2*g+k}, v{r}, v{r+1}")
        if g & 1: A(f"buffer_store_dwordx4 {v(88+4*(g>>1),4)}, v{VL}, {R(RWS)}, s{sT} offen offset:{(g>>1)*1024} sc1")
    stamp("gst"); stamp_flush()
    A("P4_END:\ns_barrier")
    vm.q = []; lg.q = []
    preread()
    A(f"s_cmp_eq_u32 s{sACT4}, 0\ns_cbranch_scc1 P5_NOFLAG\ns_waitcnt vmcnt(0)")
    flag_store(sF[3])
    A("P5_NOFLAG:\ns_waitcnt lgkmcnt(0)\ns_barrier")
    stamp("gflag"); stamp_flush()

def p5():
    T0, T1, T2 = 4, 5, 6
    RING, NR, HR, IR, VO, B2R, VG = 80, 5, 120, 246, 3, 8, [12, 13]
    A(f"s_cmp_ge_u32 s{sJ}, 28\ns_cbranch_scc1 K_FIN")
    sGC = sC
    A(f"s_and_b32 s{sE}, s{SW}, 1\ns_lshl_b32 s{sT}, s{sDT5}, 1\ns_add_u32 s{sE}, s{sE}, s{sT}\ns_xor_b32 s{sU}, s{sE}, 1")
    A(f"s_mul_i32 s{sT}, s{SW}, {28*1024}\ns_add_u32 s{sT}, s{sT}, {WS_G}\ns_mul_i32 s{sA}, s{sE}, {112*1024}\ns_add_u32 s{sA}, s{sA}, s{sT}\ns_mul_i32 s{sB}, s{sU}, {112*1024}\ns_add_u32 s{sB}, s{sB}, s{sT}")
    A(f"v_add_u32 v{VG[0]}, s{sA}, v{VL}\nv_add_u32 v{VG[1]}, s{sB}, v{VL}")
    rot5(sGC); A(f"s_lshl_b32 s{sGC}, s{sGC}, 10")
    A(f"s_lshr_b32 s{sV}, s{SW}, 1\ns_lshl_b32 s{sU}, s{sST}, 1\ns_add_u32 s{sV}, s{sV}, s{sU}\ns_mul_i32 s{sV}, s{sV}, 14\ns_add_u32 s{sV}, s{sV}, s{sE}\ns_lshl_b32 s{sV}, s{sV}, 11\ns_add_u32 s{sV}, s{sV}, {WS_HF}")
    A(f"s_mul_i32 s{sT}, s{sDT5}, 112\ns_mul_i32 s{sU}, s{SW}, 28\ns_add_u32 s{sT}, s{sT}, s{sU}\ns_lshl_b32 s{sT}, s{sT}, 7\ns_add_u32 s{sT}, s{sT}, {F5}")
    poll(VFL, sT, 28, RING); stamp("s5")
    dest = lambda n, j: v(RING + (n % NR)*8 + 4*j, 4)
    def gload(n):
        for j in range(2): A(f"buffer_load_dwordx4 {dest(n,j)}, v{VG[j]}, {R(RWS)}, s{sGC} offen offset:{(n&1)*1024} sc1"); vm.issue(n)
        if n & 1: A(f"s_add_u32 s{sGC}, s{sGC}, 2048\ns_cmp_eq_u32 s{sGC}, {28*1024}\ns_cselect_b32 s{sGC}, 0, s{sGC}")
    for n in range(NR): gload(n)
    for p in range(2): A(f"buffer_load_dwordx4 {v(HR+4*p,4)}, v{VL}, {R(RWS)}, s{sV} offen offset:{p*1024} sc1"); vm.issue("h")
    A(f"v_lshrrev_b32 v{T0}, 3, v0\nv_mul_u32_u24 v{VO}, 896, v{T0}\nv_and_b32 v{T1}, 7, v0\nv_lshl_add_u32 v{VO}, v{T1}, 4, v{VO}\nv_lshlrev_b32 v{T0}, 1, v{T0}\ns_lshl_b32 s{sT}, s{sST}, 7")
    A(f"buffer_load_ushort v{B2R}, v{T0}, {R(RB2)}, s{sT} offen\nbuffer_load_ushort v{B2R+2}, v{T0}, {R(RB2)}, s{sT} offen offset:64"); vm.issue("b"); vm.issue("b")
    A(f"v_and_b32 v{T0}, 31, v1\nv_lshrrev_b32 v{T1}, 5, v1\nv_lshlrev_b32 v{T1}, 2, v{T1}\nv_sub_u32 v{T0}, v{T0}, v{T1}")
    for p in range(2):
        for r in range(4):
            d0 = 16*p + 8*(r >> 1) + 2*(r & 1)
            A(f"v_cmp_eq_u32 vcc, {d0}, v{T0}\nv_cmp_eq_u32 s[{sA}:{sA+1}], {d0+1}, v{T0}\nv_cndmask_b32 v{IR+4*p+r}, 0, v{VONE}, vcc\nv_cndmask_b32 v{IR+4*p+r}, v{IR+4*p+r}, v{VONE+1}, s[{sA}:{sA+1}]")
    VWA = [4, 5, 6, 7]; VRA = [14, 15]
    A(f"v_and_b32 v14, 31, v1\nv_mul_u32_u24 v14, 272, v14\nv_lshrrev_b32 v15, 5, v1\nv_lshl_add_u32 v14, v15, 4, v14\nv_add_u32 v14, s{sW2W}, v14")
    for sl in range(4):
        A(f"s_xor_b32 s{sT}, s{SW}, {sl}\ns_lshr_b32 s{sU}, s{sT}, 1\ns_mul_i32 s{sU}, s{sU}, {32*272}\ns_and_b32 s{sT}, s{sT}, 1\ns_lshl_b32 s{sT}, s{sT}, 7\ns_add_u32 s{sT}, s{sT}, s{sU}\nv_add_u32 v{VWA[sl]}, s{sT}, v14")
    A(f"v_lshrrev_b32 v14, 3, v0\nv_mul_u32_u24 v14, 272, v14\nv_and_b32 v15, 7, v0\nv_lshl_add_u32 v14, v15, 5, v14\nv_add_u32 v15, {2*28672}, v14")
    A(f"s_mul_i32 s{sT}, s{sST}, {64*896}\ns_lshl_b32 s{sU}, s{sDT5}, 7\ns_add_u32 s{sT}, s{sT}, s{sU}\ns_add_u32 s{sU}, s{sT}, {32*896}")
    wreg = lambda n, ti: v(PRE + 8*(n if n < 14 else n & 3) + 4*ti, 4)
    def tread(n, ti):
        for half in range(2): A(f"ds_read_b64_tr_b16 {v(PRE + 8*(n&3) + ti*4 + half*2, 2)}, v{VRD[ti]} offset:{(n-14)*2048 + half*1024}"); lg.issue(n)
    for n in range(28):
        vm.wait(n)
        if n == 0: stamp("p5first")
        if n in (7, 14, 21): stamp(f"p5_{n}")
        if n == 12: A("s_barrier")
        lg.wait(n)
        for k, (ti, tj) in enumerate([(0, 0), (0, 1), (1, 0), (1, 1)]):
            acc = ACC + 16*(2*ti + tj)
            A(f"{MFMA} {v(acc,16)}, {dest(n,tj)}, {wreg(n,ti)}, {'0' if n == 0 else v(acc,16)}")
            if k < 2 and 14 <= n + 2 < 28: tread(n + 2, k)
        if n + NR < 28: gload(n + NR)
        if n == 8:
            for p in range(2): A(f"{MFMA} {v(ACC,16)}, {v(IR+4*p,4)}, {v(HR+4*p,4)}, {v(ACC,16)}")
            A(f"v_lshlrev_b32 v{B2R}, 16, v{B2R}\nv_lshlrev_b32 v{B2R+2}, 16, v{B2R+2}")
    stamp("p5mm")
    for sl in range(4):
        for g in range(4): A(f"ds_write_b128 v{VWA[sl]}, {v(ACC+16*sl+4*g,4)} offset:{g*32}")
    A("s_waitcnt lgkmcnt(0)\ns_barrier")
    for rr in range(2):
        for w in range(4):
            for q in range(2):
                A(f"ds_read_b128 {v(16+16*w+8*rr+4*q,4)}, v{VRA[w>>1]} offset:{(w&1)*28672 + rr*32*272 + q*16}")
    for rr in range(2):
        A(f"s_waitcnt lgkmcnt({8 if rr == 0 else 0})")
        rs = range(16+8*rr, 24+8*rr, 2)
        for r in rs: A(f"v_pk_add_f32 {v(r,2)}, {v(r,2)}, {v(r+16,2)}\nv_pk_add_f32 {v(r+32,2)}, {v(r+32,2)}, {v(r+48,2)}")
        for r in rs: A(f"v_pk_add_f32 {v(r,2)}, {v(r,2)}, {v(B2R+2*rr,2)} op_sel_hi:[1,0]")
        for r in rs: A(f"v_pk_add_f32 {v(r,2)}, {v(r,2)}, {v(r+32,2)}")
        for r in range(4): A(f"v_cvt_pk_bf16_f32 v{80+4*rr+r}, v{16+8*rr+2*r}, v{17+8*rr+2*r}")
        A(f"buffer_store_dwordx4 {v(80+4*rr,4)}, v{VO}, {R(ROUT)}, s{[sT,sU][rr]} offen")
    stamp("outst"); stamp_flush()
    A("K_FIN:")
    if STAMP:
        A("s_waitcnt vmcnt(0)"); stamp("end"); A(f"s_memrealtime s[{sA}:{sA+1}]"); stamp_flush()
        A(f"v_writelane_b32 v{VST}, s72, 62\nv_writelane_b32 v{VST}, s{sA}, 63")
        A(f"s_lshl_b32 s{sT}, s2, 3\ns_add_u32 s{sT}, s{sT}, s{sW8}\ns_lshl_b32 s{sT}, s{sT}, 8\ns_add_u32 s{sT}, s{sT}, {WS_STAMP}\nv_lshlrev_b32 v4, 2, v1\nbuffer_store_dword v{VST}, v4, {R(RWS)}, s{sT} offen")
    A("K_END:\ns_endpgm")

def bprog():
    NT = env("NT", 0); nt = " nt" if NT else ""
    nt1 = " nt" if env("NT1", 0) else ""
    VXD = [16, 17, 18, 19]; VXE = [20, 21]; VWD = list(range(22, 29))
    sWO, sXO, sM, sWM = sA, sB, sC, sD_
    sXP, sWP = [sW1, sW1S, sW1E], [sW2, sW2S, sW2E]
    A("B_P1:"); vm.q = []; lg.q = []
    p1_common()
    A(f"s_mul_i32 s{sXO}, s{sE}, {32*896}\ns_lshl_b32 s{sWM}, s{SW}, 10")
    A("v_lshrrev_b32 v4, 4, v1\nv_and_b32 v5, 15, v1\nv_xor_b32 v5, v5, v4\nv_mul_u32_u24 v6, 896, v4")
    for j in range(4): A(f"v_xor_b32 v7, {4*j}, v5\nv_lshl_add_u32 v7, v7, 4, v6\nv_add_u32 v{VXD[j]}, {j*4*896 - j*1024}, v7")
    A(f"s_lshr_b32 s{sT}, s{sJ}, 2\ns_and_b32 s{sU}, s{sJ}, 3\ns_add_u32 s{sT}, s{sT}, s{sU}\ns_mul_i32 s{sU}, s{sT}, 11\ns_lshr_b32 s{sU}, s{sU}, 5\ns_mul_i32 s{sU}, s{sU}, 3\ns_sub_u32 s{sT}, s{sT}, s{sU}")
    if not env("P1ROT", 1): A(f"s_mov_b32 s{sT}, 0")
    for p in range(3):
        A(f"s_lshl_b32 s{sU}, s{sT}, 8\ns_add_u32 s{sXP[p]}, s{sXO}, s{sU}\ns_mul_i32 s{sU}, s{sT}, {128*2688}\ns_add_u32 s{sWP[p]}, s{sWO}, s{sU}")
        if p < 2: A(f"s_add_u32 s{sT}, s{sT}, 1\ns_cmp_eq_u32 s{sT}, 3\ns_cselect_b32 s{sT}, 0, s{sT}")
    def xpiece(p):
        if p < 3:
            for j in range(8):
                if j % 4 == 0: A(f"s_add_u32 m0, s{sM}, {XBUF[p] + (j>>2)*4096}\ns_add_u32 s{sV}, s{sXP[p]}, {(j>>2)*16*896}")
                A(f"buffer_load_dwordx4 v{VXD[j&3]}, {R(RX)}, s{sV} offen offset:{(j&3)*1024}{nt1} lds"); vm.issue(f"x{p}")
        else:
            for j in range(4):
                A(f"s_add_u32 m0, s{sM}, {XBUF[p] + j*1024}\ns_add_u32 s{sV}, s{sXO}, {(j>>1)*16*896 + 768}\nbuffer_load_dwordx4 v{VXE[j&1]}, {R(RX)}, s{sV} offen{nt1} lds"); vm.issue(f"x{p}")
    def wdma(j):
        g = j // 7
        if g == 3 and j == 21: A(f"s_add_u32 s{sT}, s{sWO}, {3*128*2688}")
        A(f"s_add_u32 m0, s{sWM}, {j*4096}\nbuffer_load_dwordx4 v{VWD[j%7]}, {R(RWQ)}, s{sWP[g] if g < 3 else sT} offen{nt1} lds"); vm.issue(f"w{g}")
    A("s_waitcnt lgkmcnt(0)")
    xpiece(0)
    for j in range(7):
        A(f"v_add_u32 v4, {256*j}, v0\nv_mul_u32_u24 v5, 4682, v4\nv_lshrrev_b32 v5, 16, v5\nv_mul_u32_u24 v6, 14, v5\nv_sub_u32 v4, v4, v6")
        A(f"v_and_b32 v6, 0xf8, v5\nv_and_b32 v7, 1, v5\nv_lshl_add_u32 v6, v7, 2, v6\nv_bfe_u32 v7, v5, 1, 2\nv_add_u32 v6, v6, v7\nv_mul_u32_u24 v6, 2688, v6\nv_lshl_add_u32 v{VWD[j]}, v4, 4, v6")
        wdma(j)
    xpiece(1)
    A("v_lshrrev_b32 v4, 3, v1\nv_mul_u32_u24 v6, 896, v4\nv_lshrrev_b32 v4, 4, v1\nv_and_b32 v5, 7, v1\nv_xor_b32 v5, v5, v4")
    for j in range(2): A(f"v_xor_b32 v7, {4*j}, v5\nv_lshl_add_u32 v7, v7, 4, v6\nv_add_u32 v{VXE[j]}, {j*8*896}, v7")
    prologue2()
    vm.wait("w0"); A("s_barrier\ns_barrier")
    for j in range(7, 14): wdma(j)
    xpiece(2)
    vm.wait("w1"); A("s_barrier\ns_barrier")
    for j in range(14, 21): wdma(j)
    xpiece(3)
    for j in range(21, 25): wdma(j)
    vm.wait("w2"); A("s_barrier")
    vm.wait_all(); A("s_barrier\ns_waitcnt lgkmcnt(0)\ns_branch B_P2")

def bprog2():
    NT = env("NT", 0); nt = " nt" if NT else ""
    A("B_P2:"); vm.q = []
    if STAMP: A("v_mov_b32 v15, -1\nB_P2S:"); st["v"] = 15
    roles(False)
    W1B, WOR, W2R0 = 16, 160, 192
    VT1, VT2, VTO, VDW, VDR = [4, 5], [6, 7], [8, 9], 10, 11
    A("v_lshrrev_b32 v12, 3, v1\nv_bfe_u32 v13, v1, 4, 1\nv_lshlrev_b32 v13, 2, v13\nv_and_b32 v14, 7, v1\nv_xor_b32 v14, v14, v13\nv_lshlrev_b32 v14, 4, v14")
    A(f"v_mul_u32_u24 v13, 3584, v12\nv_add_u32 v{VT1[0]}, v13, v14\nv_add_u32 v{VT1[1]}, {8*3584}, v{VT1[0]}\nv_lshl_add_u32 v{VT2[0]}, v12, 12, v14\nv_add_u32 v{VT2[1]}, {8*4096}, v{VT2[0]}")
    A(f"v_lshrrev_b32 v12, 2, v1\nv_mul_u32_u24 v12, 896, v12\nv_and_b32 v13, 3, v1\nv_lshl_add_u32 v{VTO[0]}, v13, 4, v12\nv_add_u32 v{VTO[1]}, {16*896}, v{VTO[0]}")
    A(f"v_add_u32 v{VDW}, s{sW2W}, v{VL}\nv_add_u32 v{VDR}, s{sRBW}, v{VL}")
    A(f"s_mul_i32 s{sW1S}, s{SW}, {512*3584}\ns_lshl_b32 s{sT}, s{sFT}, 7\ns_add_u32 s{sW1S}, s{sW1S}, s{sT}\ns_add_u32 s{sW1E}, s{sW1S}, {512*3584}")
    rot4(sT); A(f"s_mul_i32 s{sT}, s{sT}, {16*3584}\ns_add_u32 s{sW1}, s{sW1S}, s{sT}")
    A(f"s_mul_i32 s{sW2S}, s{SW}, {448*4096}\ns_lshl_b32 s{sT}, s{sST}, 7\ns_add_u32 s{sW2S}, s{sW2S}, s{sT}\ns_add_u32 s{sW2E}, s{sW2S}, {448*4096}")
    rot5(sT); A(f"s_lshl_b32 s{sT}, s{sT}, 16\ns_add_u32 s{sW2}, s{sW2S}, s{sT}")
    TH = env("BTH", 4)
    def adv(cur, st_, en, step): A(f"s_add_u32 s{cur}, s{cur}, {step}\ns_cmp_eq_u32 s{cur}, s{en}\ns_cselect_b32 s{cur}, s{st_}, s{cur}")
    def w2reg(n): return W2R0 + 8*n if n < 8 else (WOR + 8*(n-8) if n < 12 else W1B + 8*(n-12))
    def w2load(n, th=None):
        for j in range(2): A(f"buffer_load_dwordx4 {v(w2reg(n)+4*j,4)}, v{VT2[j]}, {R(RW2)}, s{sW2} offen{nt}"); vm.issue(f"v{n}")
        adv(sW2, sW2S, sW2E, 16*4096)
        if th: A(f"s_waitcnt vmcnt({th})")
    A(f"s_and_b32 s{sT}, s{sH}, 7\ns_lshl_b32 s{sT}, s{sT}, 1\ns_lshl_b32 s{sB}, s{SW}, 2\ns_add_u32 s{sB}, s{sB}, s{sT}\ns_min_u32 s{sC}, s{sH}, 13\ns_lshl_b32 s{sC}, s{sC}, 6")
    A(f"s_cmp_ge_u32 s{sJ}, 24\ns_cbranch_scc1 B_NOKV\ns_barrier\nB_NOKV:\ns_barrier")
    if env("BDEL", 0): A("s_barrier")
    stamp("b_go")
    W2T = env("W2T", 2)
    A(f"v_lshlrev_b32 v12, 7, v1\ns_lshl_b32 s{sA}, s2, 2\ns_add_u32 s{sA}, s{sA}, s{SW}\ns_mul_i32 s{sA}, s{sA}, {56*128}")
    for n in range(32):
        for j in range(2):
            if n < 14: A(f"s_add_u32 m0, s{sW2W}, {n*2048 + j*1024}\nbuffer_load_dwordx4 v{VT1[j]}, {R(RW1)}, s{sW1} offen{nt} lds")
            else: A(f"buffer_load_dwordx4 {v(W1B+8*(n-14)+4*j,4)}, v{VT1[j]}, {R(RW1)}, s{sW1} offen{nt}")
        adv(sW1, sW1S, sW1E, 16*3584); A(f"s_waitcnt vmcnt({TH})")
        if W2T and n % 4 == 0 and n // 4 < W2T:
            nl = 56 // W2T
            set_exec(((1 << nl) - 1) << (nl*(n//4))); A(f"buffer_load_dword v14, v12, {R(RW2)}, s{sA} offen\ns_mov_b64 exec, -1")
        if n == 16: TH = env("BTH2", 8)
        if n in (9, 11, 13, 15):
            k = (n - 9) // 2
            A(f"s_add_u32 s{sT}, s{sB}, {k}\ns_and_b32 s{sT}, s{sT}, 15\ns_mul_i32 s{sT}, s{sT}, {28*896}\ns_add_u32 s{sT}, s{sT}, s{sC}")
            for j in range(2): A(f"buffer_load_dwordx4 {v(WOR+8*k+4*j,4)}, v{VTO[j]}, {R(RWO)}, s{sT} offen")
            A(f"s_waitcnt vmcnt({TH})")
        if n >= 16 and n % 2 == 1: w2load((n - 16) // 2, TH)
    stamp("b_w1")
    vm.wait_all(); stamp("b_done"); stamp_flush()
    A(f"v_min_u32 v12, 5, v1\nv_lshlrev_b32 v12, 12, v12\nv_add_u32 v12, {RBUF + 3*1024 + 32*16 + 4}, v12")
    A(f"B_RED:\ns_barrier\nds_read_b32 v13, v12\ns_waitcnt lgkmcnt(0)\nv_cmp_ne_u32 vcc, 0, v13")
    A(f"s_cbranch_vccz B_OK\ns_cmp_lg_u32 s{sRETRY}, 0\ns_cbranch_scc1 B_OK\ns_mov_b32 s{sRETRY}, -1\ns_barrier\ns_barrier\ns_barrier\n{'s_barrier' if env('BDEL', 0) else ''}\ns_branch B_RED\nB_OK:")
    A("s_barrier")
    for k in range(8): A(f"ds_write_b128 v{VDR}, {v(WOR+4*k,4)} offset:{k*1024}")
    A("s_waitcnt lgkmcnt(0)\ns_barrier\ns_barrier")
    for n in range(8, 12): w2load(n)
    A("s_barrier")
    def dump(reg, va, off):
        for j in range(2): A(f"ds_write_b128 v{va}, {v(reg+4*j,4)} offset:{off + j*1024}")
    for n in range(14, 18): dump(W1B + 8*(n-14), VDR, (n-14)*2048)
    A("s_waitcnt lgkmcnt(0)")
    NE = env("W2E", 16)
    for n in range(12, NE): w2load(n)
    for n in range(18, 32): dump(W1B + 8*(n-14), VDW, (n-18)*2048)
    A("s_waitcnt lgkmcnt(0)\ns_barrier\ns_barrier")
    for n in range(7): dump(w2reg(n), VDW, n*2048)
    A("s_barrier")
    rest = list(range(NE, 28))
    for n in rest[:4]: w2load(n)
    rest = rest[4:]
    A("s_barrier")
    vm.wait("v13")
    for n in range(7, 14):
        dump(w2reg(n), VDW, n*2048)
        if rest: w2load(rest.pop(0))
    for n in rest: w2load(n)
    A("s_waitcnt lgkmcnt(0)\ns_barrier\ns_barrier")
    for n in range(14, 28):
        vm.wait(f"v{n}"); dump(w2reg(n), VDW, (n-14)*2048)
    A("s_waitcnt lgkmcnt(0)\ns_barrier")
    if STAMP: A(f"v_mov_b32 v{VST}, v15"); del st["v"]
    A("s_branch K_FIN")

def main(out):
    prologue()
    pend0 = list(st["pend"])
    bprog()
    st["pend"] = list(pend0); p1_helper()
    st["pend"] = list(pend0); p1(); fb = p2(); p3(); p4(); p5()
    st["pend"] = list(pend0); bprog2(); fb()
    A("CODE_END:")
    head = open("head.txt").read()
    nv = 256
    txt = head + f"; @launch grid=(256,1,1) block=(512,1,1) lds={LDS_TOTAL}\n" + '.amdgcn_target "amdgcn-amd-amdhsa--gfx950"\n.text\n' + kernel_header(NAME) + A.text() + '.section .rodata,"a"\n' + kernel_desc(NAME, nv, 102, 256)
    open(out, "w").write(txt)
    if STAMP: open(out + ".names", "w").write(" ".join(st["names"].keys()))

if __name__ == "__main__":
    main(sys.argv[1])
```

```python
import sys, struct, math, os
from asmlib import *

S, D, H, DH, F = 2048, 448, 16, 28, 1792
MB = 1 << 20
WS_Q, WS_KV, WS_O, WS_HF, WS_HH, WS_G, WS_ST, WS_FL, WS_STAMP = 0, 2*MB, 6*MB, 8*MB, 10*MB, 12*MB, 14*MB, 14*MB + 512*1024, 15*MB
F1, F2, F4, F5 = WS_FL, WS_FL + 131072, WS_FL + 2*131072, WS_FL + 3*131072
WS_RST, WS_CSG = 13*MB + 768*1024, 13*MB + 832*1024
WS_SIZE = 16*MB
EPS = 1e-5
STAMP = os.environ.get("STAMP", "0") == "1"
def env(n, d): return int(os.environ.get(n, str(d)))
def f2u(x): return struct.unpack("<I", struct.pack("<f", x))[0]
def hx(x): return f"0x{x & 0xffffffff:08x}"
def fl(x): return hx(f2u(x))
MFMA = "v_mfma_f32_32x32x16_bf16"
NAME = "sequential_preLN__mha_block__mixer_token_mlp__prompt_kernel"

class Cnt:
    def __init__(self, A, name, mx):
        self.A, self.name, self.mx, self.q = A, name, mx, []
    def issue(self, tag): self.q.append(tag)
    def wait(self, tag):
        idx = [i for i, t in enumerate(self.q) if t == tag]
        if not idx: return
        n = len(self.q) - 1 - idx[-1]
        self.A(f"s_waitcnt {self.name}({min(n, self.mx)})")
        self.q = self.q[idx[-1] + 1:]
    def wait_all(self):
        self.A(f"s_waitcnt {self.name}(0)"); self.q = []

RX, RWQ, RWO, RW1, RB1, RW2, RB2, ROUT, RDBG, RWS = 8, 12, 16, 20, 24, 28, 32, 36, 40, 44
def R(r): return f"s[{r}:{r+3}]"
SW, sH, sI, sJ, sFT, sDT4, sST, sDT5, sACT4, sTO, sTAG = 48, 49, 50, 51, 52, 53, 54, 55, 56, 57, 58
sHI, sONES = 60, 62
sT, sU, sV, sA, sB, sC, sD_, sE, sRETRY = 63, 64, 65, 66, 67, 68, 69, 70, 71
sF = [4, 5, 6, 7]
sSEC, sHQ, sW8 = 3, 92, 93
sRBW, sW2W = 94, 95
sW1, sW1S, sW1E, sW2, sW2S, sW2E = 96, 97, 98, 99, 100, 101
VL, VST = 2, 255
W2A, RBUF, LDS_TOTAL = 0, 114688, 163840

A = Asm(); vm = Cnt(A, "vmcnt", 63); lg = Cnt(A, "lgkmcnt", 15)
st = {"pend": [], "names": {}}
def stamp(name):
    if not STAMP: return
    k = len(st["pend"]); assert k < 9, name
    n = st["names"].setdefault(name, len(st["names"]))
    A(f"{'s_memtime' if env('CYC', 0) else 's_memrealtime'} s[{74+2*k}:{75+2*k}]"); st["pend"].append(n)
def stamp_flush():
    if not STAMP or not st["pend"]: return
    A("s_waitcnt lgkmcnt(0)")
    for k, n in enumerate(st["pend"]): A(f"v_writelane_b32 v{st.get('v', VST)}, s{74+2*k}, {n}")
    st["pend"] = []

def set_exec(mask): A(f"s_mov_b32 exec_lo, {hx(mask)}\ns_mov_b32 exec_hi, {hx(mask >> 32)}")
def halfsum(x, t): A(f"v_mov_b32 v{t}, v{x}\nv_permlane32_swap_b32 v{x}, v{t}\nv_add_f32 v{x}, v{x}, v{t}")
def flag_store(soff_reg, t=4):
    A(f"v_mov_b32 v{t}, s{sTAG}\nv_mov_b32 v{t+1}, s{sTAG+1}\nv_mov_b32 v{t+2}, 0\ns_mov_b64 exec, 1")
    A(f"buffer_store_dwordx2 {v(t,2)}, v{t+2}, {R(RWS)}, s{soff_reg} offen sc1\ns_mov_b64 exec, -1"); vm.issue("flag")
def poll(voff, soff_reg, nl, t):
    L = A.label("POLL")
    set_exec((1 << nl) - 1)
    A(f"s_mov_b32 s{sTO}, 0x40000\n{L}:")
    A(f"buffer_load_dwordx2 {v(t,2)}, v{voff}, {R(RWS)}, s{soff_reg} offen sc1\ns_sub_u32 s{sTO}, s{sTO}, 1\ns_waitcnt vmcnt(0)")
    A(f"s_cbranch_scc1 {L}_x\nv_cmp_ne_u64 vcc, s[{sTAG}:{sTAG+1}], {v(t,2)}\ns_and_b64 exec, exec, vcc\n" + (f"s_cbranch_scc0 {L}_x\ns_sleep {env('PSL', 0)}\ns_branch {L}" if env("PSL", 0) else f"s_cbranch_scc1 {L}") + f"\n{L}_x:\ns_mov_b64 exec, -1")
    vm.q = []
def tr_lane_addr(dst, t, pitch, hs, rs=1):
    A(f"v_lshrrev_b32 v{dst}, 5, v1\nv_mul_u32_u24 v{dst}, {hs*pitch}, v{dst}\nv_bfe_u32 v{t}, v1, 2, 2\nv_mul_u32_u24 v{t}, {rs*pitch}, v{t}\nv_add_u32 v{dst}, v{dst}, v{t}")
    A(f"v_bfe_u32 v{t}, v1, 4, 1\nv_lshl_add_u32 v{dst}, v{t}, 5, v{dst}\nv_and_b32 v{t}, 3, v1\nv_lshl_add_u32 v{dst}, v{t}, 3, v{dst}")
def get_tag(TAGV, lab):
    A(f"v_readfirstlane_b32 s{sTAG}, v{TAGV}\nv_readfirstlane_b32 s{sTAG+1}, v{TAGV+1}")
    A(f"s_or_b32 s{sTO}, s{sTAG}, s{sTAG+1}\ns_cbranch_scc1 {lab}_ok\ns_mov_b32 s{sTO}, 0x40000\nv_mov_b32 v4, 0\n{lab}_l:")
    A(f"buffer_load_dwordx2 {v(TAGV,2)}, v4, {R(RDBG)}, 0 offen sc1\ns_sub_u32 s{sTO}, s{sTO}, 1\ns_waitcnt vmcnt(0)\ns_cbranch_scc1 {lab}_ok")
    A(f"v_readfirstlane_b32 s{sTAG}, v{TAGV}\nv_readfirstlane_b32 s{sTAG+1}, v{TAGV+1}\ns_cmp_eq_u64 s[{sTAG}:{sTAG+1}], 0\ns_cbranch_scc1 {lab}_l\n{lab}_ok:")
def tagcheck(regs, T1, T2, T3):
    A(f"v_xor_b32 v{T1}, s{sTAG}, v{regs[0]+1}\nv_xor_b32 v{T2}, s{sTAG+1}, v{regs[0]+3}\nv_or_b32 v{T1}, v{T1}, v{T2}")
    for g in regs[1:]: A(f"v_xor_b32 v{T2}, s{sTAG}, v{g+1}\nv_xor_b32 v{T3}, s{sTAG+1}, v{g+3}\nv_or3_b32 v{T1}, v{T1}, v{T2}, v{T3}")
    A(f"v_cmp_ne_u32 vcc, 0, v{T1}")
def rot4(d):
    A(f"s_bfe_u32 s{d}, s2, 0x20001\ns_mul_i32 s{d}, s{d}, 7\ns_sub_u32 s{d}, s{sFT}, s{d}\ns_add_u32 s{d}, s{d}, s{sDT4}\ns_and_b32 s{d}, s{d}, 7\ns_lshl_b32 s{d}, s{d}, 2")
def rot5(d):
    A(f"s_and_b32 s{d}, s{sST}, 7\ns_mul_i32 s{d}, s{d}, 7\ns_lshr_b32 s{d}, s{d}, 2\ns_add_u32 s{d}, s{d}, s{sDT5}\ns_add_u32 s{d}, s{d}, s{sDT5}\ns_lshl_b32 s{d}, s{d}, 1")
    A(f"s_cmp_ge_u32 s{d}, 28\ns_cselect_b32 s{sTO}, 28, 0\ns_sub_u32 s{d}, s{d}, s{sTO}")

def prologue():
    if STAMP: A(f"s_memrealtime s[72:73]\nv_mov_b32 v{VST}, -1")
    if env("DIAG0", 0): A("s_memrealtime s[72:73]")
    stamp("start")
    A(f"s_load_dwordx2 s[{RX}:{RX+1}], s[0:1], 0\ns_load_dwordx2 s[{RWQ}:{RWQ+1}], s[0:1], 8")
    A("s_cmp_ge_u32 s2, 256\ns_cbranch_scc1 K_END")
    if env("CT", 1) == 2:
        A(f"s_getpc_b64 s[4:5]\nCODE_REF2:\nv_lshlrev_b32 v6, 7, v0\nv_min_u32 v6, CODE_END-CODE_REF2-4, v6\nv_mov_b32 v9, s5\nv_add_co_u32 v8, vcc, s4, v6\nv_addc_co_u32 v9, vcc, 0, v9, vcc\nglobal_load_dword v254, v[8:9], off")
    if env("CT", 1) == 3:
        A(f"s_getpc_b64 s[4:5]\nCODE_REF2:\ns_lshr_b32 s6, s2, 3\ns_lshl_b32 s6, s6, 11\nv_lshl_add_u32 v6, v0, 7, s6\nv_min_u32 v6, CODE_END-CODE_REF2-4, v6\nv_mov_b32 v9, s5\nv_add_co_u32 v8, vcc, s4, v6\nv_addc_co_u32 v9, vcc, 0, v9, vcc")
        A("v_cmp_gt_u32 vcc, 16, v0\ns_and_saveexec_b64 s[6:7], vcc\ns_cbranch_execz CT_SKIP\nglobal_load_dword v254, v[8:9], off\nCT_SKIP:\ns_mov_b64 exec, -1")
    A(f"v_and_b32 v1, 63, v0\nv_lshrrev_b32 v3, 6, v0\nv_lshlrev_b32 v{VL}, 4, v1\nv_readfirstlane_b32 s{sW8}, v3\nv_and_b32 v0, 255, v0")
    for r, sz in ((RX, S*D*2), (RWQ, D*3*D*2)): A(f"s_mov_b32 s{r+2}, {sz}\ns_mov_b32 s{r+3}, 0x20000")
    A(f"s_and_b32 s{SW}, s{sW8}, 3\ns_lshr_b32 s{sJ}, s2, 3\ns_bfe_u32 s{sT}, s2, 0x20001\ns_and_b32 s{sU}, s2, 1")
    A(f"s_lshl_b32 s{sI}, s{sT}, 2\ns_and_b32 s{sV}, s{sJ}, 3\ns_add_u32 s{sI}, s{sI}, s{sV}")
    A(f"s_lshr_b32 s{sSEC}, s{sJ}, 3\ns_bfe_u32 s{sHQ}, s{sJ}, 0x10002\ns_lshl_b32 s{sV}, s{sU}, 1\ns_add_u32 s{sHQ}, s{sHQ}, s{sV}")
    A(f"s_cmp_ge_u32 s{sJ}, 24\ns_cbranch_scc1 P1_HELP\ns_cmp_lt_u32 s{sW8}, 4\ns_cbranch_scc1 A_P1")

def prologue2():
    for r, off in ((RWS, 80), (RDBG, 72), (RWO, 16), (RW1, 32), (RB1, 40), (RW2, 48), (RB2, 56), (ROUT, 64)):
        A(f"s_load_dwordx2 s[{r}:{r+1}], s[0:1], {off}")
    A(f"s_memrealtime s[{sTAG}:{sTAG+1}]")
    for r, sz in ((RWS, WS_SIZE), (RDBG, 256), (RWO, D*D*2), (RW1, S*F*2), (RB1, F*2), (RW2, S*F*2), (RB2, S*2), (ROUT, S*D*2)):
        A(f"s_mov_b32 s{r+2}, {sz}\ns_mov_b32 s{r+3}, 0x20000")
    A(f"s_mov_b32 s{sHI}, 0\ns_mov_b32 s{sHI+1}, -1\ns_mov_b32 s{sONES}, 0x3f803f80\ns_mov_b32 s{sRETRY}, 0")
    A(f"s_mul_i32 s{sRBW}, s{SW}, 12288\ns_add_u32 s{sRBW}, s{sRBW}, {RBUF}\ns_mul_i32 s{sW2W}, s{SW}, 28672")

def roles(flags=True):
    A(f"s_bfe_u32 s{sT}, s2, 0x20001\ns_and_b32 s{sU}, s2, 1")
    A(f"s_lshl_b32 s{sH}, s{sU}, 3\ns_lshr_b32 s{sV}, s{sJ}, 2\ns_add_u32 s{sH}, s{sH}, s{sV}")
    A(f"s_sub_u32 s{sV}, 25, s{sU}\ns_cmp_lt_u32 s{sJ}, s{sV}\ns_cselect_b32 s{sACT4}, 1, 0\ns_cselect_b32 s{sV}, s{sJ}, 0")
    A(f"s_mul_i32 s{sFT}, s{sU}, 25\ns_add_u32 s{sV}, s{sV}, s{sFT}\ns_mul_i32 s{sDT4}, s{sV}, 9363\ns_lshr_b32 s{sDT4}, s{sDT4}, 16")
    A(f"s_mul_i32 s{sFT}, s{sDT4}, 7\ns_sub_u32 s{sV}, s{sV}, s{sFT}\ns_mul_i32 s{sFT}, s{sT}, 7\ns_add_u32 s{sFT}, s{sV}, s{sFT}")
    A(f"s_cmp_lt_u32 s{sJ}, 28\ns_cselect_b32 s{sV}, s{sJ}, 0\ns_mul_i32 s{sST}, s{sU}, 28\ns_add_u32 s{sV}, s{sV}, s{sST}")
    A(f"s_lshr_b32 s{sDT5}, s{sV}, 3\ns_and_b32 s{sV}, s{sV}, 7\ns_lshl_b32 s{sST}, s{sT}, 3\ns_add_u32 s{sST}, s{sST}, s{sV}")
    if not flags: return
    A(f"s_lshl_b32 s{sT}, s{sHQ}, 2\ns_add_u32 s{sT}, s{sT}, s{sSEC}\ns_lshl_b32 s{sT}, s{sT}, 4\ns_add_u32 s{sT}, s{sT}, s{sI}\ns_lshl_b32 s{sT}, s{sT}, 7\ns_add_u32 s{sF[0]}, s{sT}, {F1}")
    A(f"s_lshl_b32 s{sU}, s{sI}, 2\ns_add_u32 s{sU}, s{sU}, s{SW}\ns_lshl_b32 s{sT}, s{sU}, 4\ns_add_u32 s{sT}, s{sT}, s{sH}\ns_lshl_b32 s{sV}, s{sT}, 9\ns_lshl_b32 s{sT}, s{sT}, 7\ns_add_u32 s{sF[1]}, s{sT}, {F2}")
    A(f"s_lshl_b32 s{sT}, s{sH}, 6\ns_add_u32 s{sT}, s{sT}, s{sU}\ns_lshl_b32 s{sT}, s{sT}, 7\ns_add_u32 s{sF[2]}, s{sT}, {F4}")
    A(f"s_mul_i32 s{sT}, s{sDT4}, 28\ns_add_u32 s{sT}, s{sT}, s{sFT}\ns_lshl_b32 s{sT}, s{sT}, 2\ns_add_u32 s{sT}, s{sT}, s{SW}\ns_lshl_b32 s{sT}, s{sT}, 7\ns_add_u32 s{sF[3]}, s{sT}, {F5}")
    A(f"s_add_u32 s{sV}, s{sV}, {WS_ST}\nv_lshl_add_u32 v4, v1, 7, s{sV}")
    A(f"v_writelane_b32 v4, s{sF[0]}, 4\nv_writelane_b32 v4, s{sF[1]}, 5\nv_writelane_b32 v4, s{sF[2]}, 6\nv_writelane_b32 v4, s{sF[3]}, 7\ns_mov_b64 exec, 0xff\nbuffer_load_dword v12, v4, {R(RWS)}, 0 offen sc1\ns_mov_b64 exec, -1")
    vm.issue("touch")

def p1_helper():
    TAGV = 14
    sHX = sA
    A("P1_HELP:")
    vm.q = []
    prologue2()
    A(f"s_and_b32 s{sHX}, s2, 7\ns_lshl_b32 s{sHX}, s{sHX}, 3\ns_add_u32 s{sHX}, s{sHX}, s{sJ}\ns_sub_u32 s{sHX}, s{sHX}, 24")
    A(f"v_lshrrev_b32 v4, 3, v1\nv_and_b32 v5, 7, v1\nv_lshlrev_b32 v5, 4, v5\nv_mov_b32 v7, 0")
    A(f"s_cmp_ge_u32 s{sW8}, 4\ns_cbranch_scc1 H_CS")
    A(f"v_mul_u32_u24 v6, 896, v4\nv_add_u32 v6, v6, v5\ns_lshl_b32 s{sB}, s{sHX}, 2\ns_add_u32 s{sB}, s{sB}, s{SW}\ns_mul_i32 s{sT}, s{sB}, {8*896}\ns_waitcnt lgkmcnt(0)")
    for m in range(7): A(f"buffer_load_dwordx4 {v(16+4*m,4)}, v6, {R(RX)}, s{sT} offen offset:{m*128}")
    A("v_mov_b32 v80, 0\nv_mov_b32 v82, 0\nv_mov_b32 v84, 0\nv_mov_b32 v86, 0\ns_waitcnt vmcnt(0)")
    A(f"buffer_load_dwordx2 {v(TAGV,2)}, v7, {R(RDBG)}, 0 offen sc1")
    for k in range(28): A(f"v_dot2c_f32_bf16 v{80+4*(k&1)}, s{sONES}, v{16+k}\nv_dot2c_f32_bf16 v{82+4*(k&1)}, v{16+k}, v{16+k}")
    A("v_add_f32 v80, v80, v84\nv_add_f32 v82, v82, v86")
    for m in ("quad_perm:[1,0,3,2]", "quad_perm:[2,3,0,1]", "row_half_mirror"):
        for r in (80, 82): A(f"v_add_f32_dpp v{r}, v{r}, v{r} {m} row_mask:0xf bank_mask:0xf")
    A(f"v_mul_f32 v80, {fl(1.0/D)}, v80\nv_mul_f32 v82, {fl(1.0/D)}, v82\nv_fma_f32 v82, -v80, v80, v82\nv_max_f32 v82, 0, v82\nv_add_f32 v82, {fl(EPS)}, v82\nv_rsq_f32 v82, v82")
    A(f"v_lshlrev_b32 v6, 4, v4\nv_mul_f32 v80, v80, v82\nv_sub_f32 v80, 0, v80\ns_waitcnt vmcnt(0)")
    get_tag(TAGV, "H_T1")
    A(f"v_mov_b32 v81, s{sTAG}\nv_mov_b32 v83, s{sTAG+1}\ns_lshl_b32 s{sT}, s{sB}, 7\ns_add_u32 s{sT}, s{sT}, {WS_RST}")
    set_exec(0x0101010101010101)
    A(f"buffer_store_dwordx4 v[80:83], v6, {R(RWS)}, s{sT} offen sc1\ns_mov_b64 exec, -1")
    stamp("h_pub"); stamp_flush()
    A("s_barrier")
    roles()
    A("s_branch P2_START")
    st["pend"] = [0] if STAMP else []
    A(f"H_CS:\ns_lshl_b32 s{sB}, s{SW}, 6\ns_add_u32 s{sB}, s{sB}, s{sHX}\ns_cmp_ge_u32 s{sB}, 84\ns_cbranch_scc1 H_PF")
    A(f"v_mul_u32_u24 v6, 2688, v4\nv_add_u32 v6, v6, v5\ns_and_b32 s{sC}, s{sB}, 3\ns_lshr_b32 s{sD_}, s{sB}, 2\ns_mul_i32 s{sT}, s{sC}, {112*2688}\ns_lshl_b32 s{sU}, s{sD_}, 7\ns_add_u32 s{sT}, s{sT}, s{sU}\ns_waitcnt lgkmcnt(0)")
    for m in range(14): A(f"buffer_load_dwordx4 {v(16+4*m,4)}, v6, {R(RWQ)}, s{sT} offen\ns_add_u32 s{sT}, s{sT}, {8*2688}")
    A(f"s_mov_b32 s{sT}, 0x3f80\ns_mov_b32 s{sU}, 0x3f800000")
    for r in range(80, 88): A(f"v_mov_b32 v{r}, 0")
    for m in range(14):
        if m % 4 == 0: A(f"s_waitcnt vmcnt({max(0, 14 - m - 4)})")
        if m == 12: A(f"buffer_load_dwordx2 {v(TAGV,2)}, v7, {R(RDBG)}, 0 offen sc1")
        for k in range(4): A(f"v_dot2c_f32_bf16 v{80+2*k}, s{sT}, v{16+4*m+k}\nv_dot2c_f32_bf16 v{81+2*k}, s{sU}, v{16+4*m+k}")
    for r in range(80, 88): A(f"v_add_f32_dpp v{r}, v{r}, v{r} row_ror:8 row_mask:0xf bank_mask:0xf")
    for op in ("v_permlane16_swap_b32", "v_permlane32_swap_b32"):
        for r in range(80, 88): A(f"v_mov_b32 v{r+8}, v{r}")
        for r in range(80, 88): A(f"{op} v{r}, v{r+8}")
        for r in range(80, 88): A(f"v_add_f32 v{r}, v{r}, v{r+8}")
    A("v_mov_b32 v88, v80\nv_mov_b32 v90, v81")
    for pi in range(1, 4): A(f"v_cmp_eq_u32 vcc, {pi}, v4\nv_cndmask_b32 v88, v88, v{80+2*pi}, vcc\nv_cndmask_b32 v90, v90, v{81+2*pi}, vcc")
    A(f"v_lshlrev_b32 v6, 2, v5\nv_lshl_add_u32 v6, v4, 4, v6\ns_waitcnt vmcnt(0)")
    get_tag(TAGV, "H_T2")
    A(f"v_mov_b32 v89, s{sTAG}\nv_mov_b32 v91, s{sTAG+1}\ns_mul_i32 s{sT}, s{sC}, 10752\ns_lshl_b32 s{sU}, s{sD_}, 9\ns_add_u32 s{sT}, s{sT}, s{sU}\ns_add_u32 s{sT}, s{sT}, {WS_CSG}")
    set_exec(0xFFFFFFFF)
    A(f"buffer_store_dwordx4 v[88:91], v6, {R(RWS)}, s{sT} offen sc1\ns_mov_b64 exec, -1\ns_barrier\ns_branch B_P2")
    A(f"H_PF:\ns_cmp_lt_u32 s{SW}, 2\ns_cbranch_scc1 H_W")
    sQ = sB
    A(f"s_sub_u32 s{sQ}, s{sJ}, 24\ns_lshl_b32 s{sQ}, s{sQ}, 1\ns_add_u32 s{sQ}, s{sQ}, s{SW}\ns_sub_u32 s{sQ}, s{sQ}, 2")
    A(f"s_getpc_b64 s[{sC}:{sC+1}]\nCODE_REF:\ns_sub_u32 s{sC}, s{sC}, CODE_REF-{NAME}\ns_subb_u32 s{sC+1}, s{sC+1}, 0")
    A(f"s_lshl_b32 s{sT}, s{sQ}, 12\nv_lshl_add_u32 v6, v1, 7, s{sT}\nv_min_u32 v6, CODE_END-{NAME}-4, v6")
    A(f"v_mov_b32 v9, s{sC+1}\nv_add_co_u32 v8, vcc, s{sC}, v6\nv_addc_co_u32 v9, vcc, 0, v9, vcc")
    set_exec(0xFFFFFFFF)
    A(("global_load_dword v25, v[8:9], off\n" if env("CT", 1) == 1 else "") + f"s_mov_b64 exec, -1\ns_waitcnt lgkmcnt(0)\ns_barrier")
    A(f"v_lshlrev_b32 v6, 7, v1\ns_and_b32 s{sT}, s2, 7\ns_lshl_b32 s{sT}, s{sT}, 4\ns_add_u32 s{sT}, s{sT}, s{sQ}\ns_mul_i32 s{sT}, s{sT}, {25*128}\ns_mov_b64 exec, 0x1ffffff\nbuffer_load_dword v24, v6, {R(RWO)}, s{sT} offen\ns_mov_b64 exec, -1")
    A(f"s_and_b32 s{sT}, s2, 7\ns_lshl_b32 s{sT}, s{sT}, 4\ns_add_u32 s{sT}, s{sT}, s{sQ}\ns_mul_i32 s{sT}, s{sT}, {7*8192}")
    for k in range(env("NP1", 7)): A(f"s_add_u32 s{sU}, s{sT}, {k*8192}\nbuffer_load_dword v{16+k}, v6, {R(RW1)}, s{sU} offen")
    for k in range(env("NP2", 0)): A(f"s_add_u32 s{sU}, s{sT}, {k*8192}\nbuffer_load_dword v{26+k}, v6, {R(RW2)}, s{sU} offen")
    if STAMP:
        A("s_waitcnt vmcnt(0)"); stamp("h_touch"); stamp_flush(); A(f"v_mov_b32 v15, v{VST}\ns_branch B_P2S")
    A("s_branch B_P2\nH_W:\ns_waitcnt lgkmcnt(0)\ns_barrier\ns_branch B_P2")

XA = LDS_TOTAL - 65536
XBUF = [8192, 0, 8192, 4096]
def p1_common():
    sWO, sM = sA, sC
    A(f"s_mul_i32 s{sWO}, s{sSEC}, 896\ns_mul_i32 s{sT}, s{sHQ}, 224\ns_add_u32 s{sWO}, s{sWO}, s{sT}")
    A(f"s_lshl_b32 s{sE}, s{sI}, 2\ns_add_u32 s{sE}, s{sE}, s{SW}\ns_lshl_b32 s{sM}, s{SW}, 14\ns_add_u32 s{sM}, s{sM}, {XA}")

def p1():
    XF, ACC, WF = 16, 128, 192
    VXR = list(range(224, 232)); VXS = list(range(232, 236)); VWR = [236, 237]; TAGV = 238
    sWO, sM = sA, sC
    A("A_P1:")
    prologue2()
    p1_common()
    A(f"v_and_b32 v4, 31, v1\nv_lshrrev_b32 v5, 5, v1\nv_and_b32 v6, 15, v1\nv_xor_b32 v6, v6, v5\nv_lshlrev_b32 v6, 4, v6\nv_lshl_add_u32 v6, v4, 8, v6\nv_add_u32 v6, s{sM}, v6")
    for k in range(8): A(f"v_xor_b32 v{VXR[k]}, {k<<5}, v6")
    A(f"v_bfe_u32 v6, v1, 1, 3\nv_xor_b32 v6, v6, v5\nv_lshlrev_b32 v6, 4, v6\nv_lshl_add_u32 v6, v4, 7, v6\nv_add_u32 v6, s{sM}, v6")
    for k in range(4): A(f"v_xor_b32 v{VXS[k]}, {k<<5}, v6")
    tr_lane_addr(VWR[0], 4, 224, 8, 2); A(f"v_add_u32 v{VWR[1]}, {14*3584}, v{VWR[0]}")
    A("s_waitcnt lgkmcnt(0)")
    stamp("karg")
    A(f"s_or_b32 s{sT}, s2, s{SW}\ns_cbranch_scc1 P1_NOTAG")
    A(f"s_bitset1_b32 s{sTAG+1}, 31\nv_mov_b32 v8, s{sTAG}\nv_mov_b32 v9, s{sTAG+1}\nv_mov_b32 v10, 0\nv_mov_b32 v11, 0\ns_mov_b64 exec, 1\nbuffer_atomic_cmpswap_x2 v[8:11], v10, {R(RDBG)}, 0 offen sc1\ns_mov_b64 exec, -1\nP1_NOTAG:")
    roles()
    stamp_flush()
    A(f"s_cmp_eq_u32 s{sSEC}, 2\ns_cbranch_scc1 P1_V")
    for isv in (0, 1):
        vm.q = []; lg.q = []
        if isv: A("P1_V:")
        def xread(p):
            for k in range(8 if p < 3 else 4):
                A(f"ds_read_b128 {v(XF + (8*p+k)*4, 4)}, v{(VXR if p < 3 else VXS)[k]} offset:{XBUF[p]}"); lg.issue(f"x{p}")
        def wread(ks, hds=range(4)):
            for hd in hds:
                for half in range(2):
                    A(f"ds_read_b64_tr_b16 {v(WF + (ks&1)*16 + hd*4 + half*2, 2)}, v{VWR[ks//14]} offset:{(ks%14)*3584 + half*224 + hd*56}"); lg.issue(f"w{ks}_{hd}")
        def gload():
            A(f"buffer_load_dwordx4 v[16:19], v4, {R(RWS)}, s{sU} offen sc1")
            for kq in range(4): A(f"buffer_load_dwordx4 {v(20+4*kq,4)}, v{5+kq}, {R(RWS)}, s{sV} offen sc1")
        for p in range(4):
            k0, k1 = 8*p, min(8*p + 8, 28)
            if p == 3:
                A(f"v_and_b32 v4, 31, v1\nv_lshlrev_b32 v4, 4, v4\ns_lshl_b32 s{sU}, s{sE}, 9\ns_add_u32 s{sU}, s{sU}, {WS_RST}\ns_lshl_b32 s{sV}, s{sWO}, 2\ns_add_u32 s{sV}, s{sV}, {WS_CSG}")
                A(f"v_min_u32 v5, 55, v1\nv_lshlrev_b32 v5, 4, v5\nv_add_u32 v6, 10752, v5\nv_add_u32 v7, 21504, v5\nv_add_u32 v8, 32256, v5\nv_mov_b32 v9, 0")
            A("s_barrier"); stamp(f"g{p}")
            xread(p); wread(k0, [0, 1, 2])
            if p == 3:
                A(f"buffer_load_dwordx2 {v(TAGV,2)}, v9, {R(RDBG)}, 0 offen sc1"); gload()
            lg.wait(f"x{p}")
            if p < 2: A("s_barrier")
            wread(k0, [3])
            for ks in range(k0, k1):
                x = v(XF + ks*4, 4)
                for hd in range(4):
                    lg.wait(f"w{ks}_{hd}")
                    w_ = v(WF + (ks&1)*16 + hd*4, 4); acc = v(ACC + 16*hd, 16)
                    A(f"{MFMA} {acc}, {x if isv else w_}, {w_ if isv else x}, {'0' if ks == 0 else acc}")
                    if ks + 1 < k1: wread(ks + 1, [hd])
        stamp("mfma_done")
        A("s_waitcnt vmcnt(5)")
        get_tag(TAGV, f"P1_T{isv}")
        L = A.label("P1_G")
        A(f"s_waitcnt vmcnt(0)")
        tagcheck([16, 20, 24, 28, 32], 9, 10, 11)
        A(f"s_cbranch_vccz {L}_x\nv_and_b32 v4, 31, v1\nv_lshlrev_b32 v4, 4, v4\ns_mov_b32 s{sTO}, 0x40000\n{L}:")
        gload()
        A(f"s_sub_u32 s{sTO}, s{sTO}, 1\ns_waitcnt vmcnt(0)\ns_cbranch_scc1 {L}_x")
        tagcheck([16, 20, 24, 28, 32], 9, 10, 11)
        A(f"s_cbranch_vccnz {L}\n{L}_x:")
        stamp("gran")
        A("v_add_f32 v20, v20, v24\nv_add_f32 v28, v28, v32\nv_add_f32 v22, v22, v26\nv_add_f32 v30, v30, v34\nv_add_f32 v20, v20, v28\nv_add_f32 v21, v22, v30")
        A(f"s_add_u32 s{sT}, s{sM}, 8192\nv_lshl_add_u32 v4, v1, 3, s{sT}\nds_write_b64 v4, v[20:21]\nv_lshrrev_b32 v5, 5, v1\nv_lshl_add_u32 v5, v5, 4, s{sT}")
        PK = 96
        A(f"s_lshl_b32 s{sU}, s{sHQ}, 8\ns_add_u32 s{sU}, s{sU}, s{sE}")
        if not isv:
            for hd in range(4):
                for g in range(4): A(f"ds_read_b128 {v(32+16*hd+4*g,4)}, v5 offset:{hd*112 + g*32}"); lg.issue(f"c{hd}")
            QS = DH ** -0.5 * math.log2(math.e)
            A(f"s_cmp_eq_u32 s{sSEC}, 0\ns_cselect_b32 s{sV}, {fl(QS)}, 1.0\ns_cselect_b32 s{sA}, 0, s{sONES}\ns_cselect_b32 s{sB}, 0, 0x3f80\ns_cselect_b32 s{sC}, {WS_Q}, {WS_KV}")
            A(f"s_add_u32 s{sD_}, s{sSEC}, 11\ns_lshl_b32 s{sU}, s{sU}, s{sD_}\ns_add_u32 s{sU}, s{sU}, s{sC}\ns_lshl_b32 s{sD_}, 64, s{sD_}")
            A(f"v_mul_f32 v16, s{sV}, v16\nv_mul_f32 v18, s{sV}, v18\nv_mov_b32 v12, s{sA}\nv_mov_b32 v13, s{sB}")
            for hd in range(4):
                lg.wait(f"c{hd}")
                c, ac = 32+16*hd, ACC+16*hd
                for r in range(0, 16, 2): A(f"v_pk_mul_f32 {v(c+r,2)}, {v(c+r,2)}, v[16:17] op_sel_hi:[1,0]")
                for r in range(0, 16, 2): A(f"v_pk_fma_f32 {v(ac+r,2)}, {v(ac+r,2)}, v[18:19], {v(c+r,2)} op_sel_hi:[1,0,1]")
                for r in range(8): A(f"v_cvt_pk_bf16_f32 v{PK+8*hd+r}, v{ac+2*r}, v{ac+2*r+1}")
                A(f"v_cndmask_b32 v{PK+8*hd+6}, v{PK+8*hd+6}, v12, s[{sHI}:{sHI+1}]\nv_cndmask_b32 v{PK+8*hd+7}, v{PK+8*hd+7}, v13, s[{sHI}:{sHI+1}]")
                for f in range(2): A(f"buffer_store_dwordx4 {v(PK+8*hd+4*f,4)}, v{VL}, {R(RWS)}, s{sU} offen offset:{f*1024} sc1")
                A(f"s_add_u32 s{sU}, s{sU}, s{sD_}")
        else:
            A(f"v_cndmask_b32 v6, v18, v16, s[{sHI}:{sHI+1}]\nv_lshl_add_u32 v4, v1, 2, s{sT}\nds_write_b32 v4, v6 offset:512")
            A(f"v_and_b32 v6, 31, v1\nv_lshl_add_u32 v4, v6, 2, s{sT}")
            for g in range(4): A(f"ds_read_b128 {v(32+4*g,4)}, v5 offset:{512 + g*32}\nds_read_b128 {v(48+4*g,4)}, v5 offset:{640 + g*32}")
            for hd in range(4): A(f"ds_read_b32 v{24+2*hd}, v4 offset:{hd*112}")
            A(f"s_lshl_b32 s{sU}, s{sU}, 12\ns_add_u32 s{sU}, s{sU}, {WS_KV + 2048}")
            A(f"v_cmp_eq_u32 vcc, 28, v6\nv_mov_b32 v13, s{sONES}\nv_cndmask_b32 v12, 0, v13, vcc\nv_mov_b32 v13, v12")
            for r in range(0, 16, 2): A(f"v_pk_mov_b32 {v(PK+r,2)}, v[12:13], v[12:13]")
            A(f"s_mov_b32 s{sA}, 0x0fffffff\ns_mov_b32 s{sA+1}, 0x0fffffff\ns_waitcnt lgkmcnt(0)")
            for hd in range(4):
                ac = ACC+16*hd; pk = PK + 8*(hd & 1)
                for r in range(0, 16, 2): A(f"v_pk_mul_f32 {v(64+r,2)}, {v(48+r,2)}, {v(24+2*hd,2)} op_sel_hi:[1,0]")
                for r in range(0, 16, 2): A(f"v_pk_fma_f32 {v(ac+r,2)}, {v(ac+r,2)}, {v(32+r,2)}, {v(64+r,2)}")
                A(f"s_mov_b64 exec, s[{sA}:{sA+1}]")
                for r in range(8): A(f"v_cvt_pk_bf16_f32 v{pk+r}, v{ac+2*r}, v{ac+2*r+1}")
                A("s_mov_b64 exec, -1")
                for f in range(2): A(f"buffer_store_dwordx4 {v(pk+4*f,4)}, v{VL}, {R(RWS)}, s{sU} offen offset:{f*1024} sc1")
                A(f"s_add_u32 s{sU}, s{sU}, {64*4096}")
        stamp("kvst"); stamp_flush()
        if not isv: A("s_branch P1_DONE")
    A("P1_DONE:")

def tilemax(sreg, T0, T1):
    A(f"v_max3_f32 v{T0}, v{sreg}, v{sreg+1}, v{sreg+2}\nv_max3_f32 v{T1}, v{sreg+3}, v{sreg+4}, v{sreg+5}")
    A(f"v_max3_f32 v{T0}, v{T0}, v{sreg+6}, v{sreg+7}\nv_max3_f32 v{T1}, v{T1}, v{sreg+8}, v{sreg+9}")
    A(f"v_max3_f32 v{T0}, v{T0}, v{sreg+10}, v{sreg+11}\nv_max3_f32 v{T1}, v{T1}, v{sreg+12}, v{sreg+13}")
    A(f"v_max3_f32 v{T0}, v{T0}, v{sreg+14}, v{sreg+15}")
def set_qpad(q, m, T0, T1, T2):
    A(f"v_sub_f32 v{T0}, 0, v{m}\nv_and_b32 v{T1}, 0xffff0000, v{T0}\nv_sub_f32 v{T0}, v{T0}, v{T1}")
    A(f"v_and_b32 v{T2}, 0xffff0000, v{T0}\nv_sub_f32 v{T0}, v{T0}, v{T2}\nv_lshrrev_b32 v{T0}, 16, v{T0}")
    A(f"v_lshrrev_b32 v{T1}, 16, v{T1}\nv_or_b32 v{T1}, v{T1}, v{T2}")
    A(f"v_cndmask_b32 v{q+6}, v{q+6}, v{T1}, s[{sHI}:{sHI+1}]\nv_cndmask_b32 v{q+7}, v{q+7}, v{T0}, s[{sHI}:{sHI+1}]")

XR, IR3 = 224, 232
VRD, VFL, VKV, VONE, VRB, VWO = [240, 241], 242, 243, 244, [246, 247], 248
VRW = [249, 250, 251, 252]
def addr_setup():
    tr_lane_addr(4, 5, 128, 4)
    A(f"v_bfe_u32 v5, v1, 3, 1\ns_lshr_b32 s{sT}, s{SW}, 1\nv_xor_b32 v5, s{sT}, v5")
    A(f"v_lshl_add_u32 v6, v5, 6, v4\nv_xor_b32 v5, 1, v5\nv_lshl_add_u32 v7, v5, 6, v4")
    A(f"v_add_u32 v{VRD[0]}, s{sW2W}, v6\nv_add_u32 v{VRD[1]}, s{sW2W}, v7\nv_add_u32 v{VRB[0]}, s{sRBW}, v6\nv_add_u32 v{VRB[1]}, s{sRBW}, v7")
    A(f"v_lshlrev_b32 v{VFL}, 7, v1\nv_mov_b32 v{VONE}, 0x3f80\nv_mov_b32 v{VONE+1}, 1.0")
    A(f"s_lshl_b32 s{sT}, s{sH}, 2\ns_add_u32 s{sT}, s{sT}, s{SW}\ns_lshl_b32 s{sT}, s{sT}, 16\ns_add_u32 s{sT}, s{sT}, {WS_KV}\nv_add_u32 v{VKV}, s{sT}, v{VL}")
    tr_lane_addr(VWO, 4, 64, 4); A(f"v_add_u32 v{VWO}, {RBUF}, v{VWO}\nv_add_u32 v{VRW[0]}, s{sRBW}, v{VL}")
    for t in range(1, 4):
        A(f"s_add_u32 s{sT}, s{SW}, {t}\ns_and_b32 s{sT}, s{sT}, 3\ns_mul_i32 s{sT}, s{sT}, 12288\ns_add_u32 s{sT}, s{sT}, {RBUF}\nv_add_u32 v{VRW[t]}, s{sT}, v{VL}")
    A("v_and_b32 v4, 31, v1\nv_lshrrev_b32 v5, 5, v1\nv_lshlrev_b32 v6, 3, v5\nv_sub_u32 v6, v4, v6")
    for p in range(2):
        for r in range(4):
            A(f"v_cmp_eq_u32 vcc, {16*p+2*r}, v6\nv_cmp_eq_u32 s[{sU}:{sU+1}], {16*p+2*r+1}, v6\nv_cndmask_b32 v{IR3+4*p+r}, 0, v{VONE}, vcc\nv_cndmask_b32 v{IR3+4*p+r}, v{IR3+4*p+r}, v{VONE+1}, s[{sU}:{sU+1}]")
    A("v_mul_u32_u24 v13, 896, v4\nv_lshl_add_u32 v13, v5, 4, v13")

def p2():
    Q, O, SS, PP, KV = 16, 48, [112, 128], [144, 152], 160
    M = [112, 113, 114, 115]; K0 = 120
    T0, T1, T2, T3 = 4, 5, 6, 7
    sKN = sB
    addr_setup()
    vm.wait_all(); stamp("kvdrain")
    A(f"s_barrier\ns_cmp_lg_u32 s{SW}, 0\ns_cbranch_scc1 P2_NOF")
    flag_store(sF[0]); A("P2_NOF:"); stamp_flush()
    A("s_branch P2_GO\nP2_START:")
    addr_setup()
    A("P2_GO:")
    A(f"s_lshl_b32 s{sV}, s{sI}, 2\ns_add_u32 s{sV}, s{sV}, s{SW}\ns_mul_i32 s{sT}, s{sV}, {32*896}\ns_lshl_b32 s{sU}, s{sH}, 6\ns_add_u32 s{sT}, s{sT}, s{sU}")
    for p in range(2): A(f"buffer_load_dwordx4 {v(XR+4*p,4)}, v13, {R(RX)}, s{sT} offen offset:{32*p}")
    A(f"s_add_u32 s{sU}, s{sU}, s{sV}\ns_lshl_b32 s{sU}, s{sU}, 11")
    A(f"s_lshr_b32 s{sT}, s{sH}, 2\ns_lshl_b32 s{sT}, s{sT}, 13\ns_add_u32 s{sT}, s{sT}, {F1}\ns_lshl_b32 s{sA}, s{SW}, 9\ns_add_u32 s{sA}, s{sA}, 2048\ns_lshl_b32 s{sC}, s{sI}, 7")
    A(f"v_and_b32 v10, 3, v1\nv_lshl_add_u32 v10, v10, 7, s{sA}\nv_bfe_u32 v11, v1, 2, 1\nv_lshl_add_u32 v10, v11, 11, v10\nv_writelane_b32 v10, s{sC}, 8")
    poll(10, sT, 9, 8); stamp("s1")
    def kvload(n):
        pre = [f"s_mov_b32 s{sKN}, {n*4096}"]
        return pre + [f"buffer_load_dwordx4 {v(KV+16*(n&3)+4*f,4)}, v{VKV}, {R(RWS)}, s{sKN} offen offset:{f*1024} sc1" for f in range(4)]
    def emit(lines, tag):
        for ln in lines:
            A(ln)
            if ln.startswith("buffer_"): vm.issue(tag)
    for f in range(2): A(f"buffer_load_dwordx4 {v(Q+4*f,4)}, v{VL}, {R(RWS)}, s{sU} offen offset:{f*1024} sc1"); vm.issue("q")
    emit(kvload(0), "kv0")
    A("s_waitcnt vmcnt(2)"); stamp("qk0")
    A(f"{MFMA} {v(O,16)}, {v(KV,4)}, {v(Q,4)}, 0\n{MFMA} {v(O,16)}, {v(KV+4,4)}, {v(Q+4,4)}, {v(O,16)}")
    emit(kvload(1), "kv1")
    A(f"ds_write_b128 v{VRW[0]}, {v(Q,4)}")
    tilemax(O, T0, T1)
    A(f"v_max_f32 v{T0}, v{T0}, v{T1}\nv_mov_b32 v{T1}, v{T0}\nv_permlane32_swap_b32 v{T0}, v{T1}\nv_max_f32 v{T0}, v{T0}, v{T1}")
    set_qpad(Q, T0, T1, T2, T3)
    A(f"ds_write_b128 v{VRW[0]}, {v(Q+4,4)} offset:1024\ns_waitcnt lgkmcnt(0)")
    emit(kvload(2), "kv2")
    A("s_barrier")
    for t in range(1, 4): A(f"ds_read_b128 {v(Q+8*t,4)}, v{VRW[t]}\nds_read_b128 {v(Q+8*t+4,4)}, v{VRW[t]} offset:1024")
    emit(kvload(3), "kv3")
    A("P2_MAIN:")
    def qk(idx, part):
        n, t = idx >> 2, idx & 3; sr = SS[idx & 1]; k = KV + 16*(n & 3)
        return f"{MFMA} {v(sr,16)}, {v(k+4*part,4)}, {v(Q+8*t+4*part,4)}, {'0' if part == 0 else v(sr,16)}"
    def pv(idx, part):
        n, t = idx >> 2, idx & 3; k = KV + 16*(n & 3) + 8; o = O + 16*t
        return f"{MFMA} {v(o,16)}, {v(k+4*part,4)}, {v(PP[idx&1]+4*part,4)}, {'0' if (n == 0 and part == 0) else v(o,16)}"
    NI = 64
    A(qk(0, 0)); A(qk(0, 1)); A("s_waitcnt lgkmcnt(0)")
    for idx in range(NI):
        n, t = idx >> 2, idx & 3
        if idx in (16, 32, 48): stamp(f"a{idx}")
        if idx == 1: vm.wait("kv0")
        if env("BDEL", 0) and idx == env("BDEL", 0): A("s_barrier")
        if t == 3 and n + 1 < 16: vm.wait(f"kv{n+1}")
        mf = [qk(idx+1, 0) if idx+1 < NI else None, pv(idx-1, 0) if idx > 0 else None,
              qk(idx+1, 1) if idx+1 < NI else None, pv(idx-1, 1) if idx > 0 else None]
        sr, p = SS[idx & 1], PP[idx & 1]
        for q in range(4):
            if mf[q]: A(mf[q])
            for j in range(4): A(f"v_exp_f32 v{sr+4*q+j}, v{sr+4*q+j}")
            if q > 0:
                for j in range(2): A(f"v_cvt_pk_bf16_f32 v{p+2*(q-1)+j}, v{sr+4*(q-1)+2*j}, v{sr+4*(q-1)+2*j+1}")
        if t == 0 and 1 <= n < 13: emit(kvload(n + 3), f"kv{n+3}")
        for j in range(2): A(f"v_cvt_pk_bf16_f32 v{p+6+j}, v{sr+12+2*j}, v{sr+12+2*j+1}")
    A(pv(NI-1, 0)); A(pv(NI-1, 1)); stamp("aend")
    for t in (1, 2):
        for g in range(3): A(f"ds_write_b128 v{VRW[t]}, {v(O+16*t+4*g,4)} offset:{(t-1)*4096 + g*1024}")
    A(f"s_mov_b32 s{sT}, {fl(2.0**30)}")
    A(f"v_cmp_nlt_f32 s[{sA}:{sA+1}], v{O+12}, s{sT}\nv_cmp_nlt_f32 s[{sC}:{sC+1}], v{O+28}, s{sT}\ns_or_b32 s{sU}, s{sA+1}, s{sC+1}")
    A(f"v_cmp_nlt_f32 s[{sA}:{sA+1}], v{O+44}, s{sT}\nv_cmp_nlt_f32 s[{sC}:{sC+1}], v{O+60}, s{sT}\ns_or_b32 s{sU}, s{sU}, s{sA+1}\ns_or_b32 s{sU}, s{sU}, s{sC+1}")
    A(f"s_cselect_b32 s{sU}, 1.0, 0\nv_mov_b32 v{T0}, s{sU}")
    for t in range(4): A(f"v_cndmask_b32 v{O+16*t+13}, v{O+16*t+13}, v{T0}, s[{sHI}:{sHI+1}]")
    for g in range(3): A(f"ds_write_b128 v{VRW[3]}, {v(O+48+4*g,4)} offset:{2*4096 + g*1024}")
    for t in range(1, 4): A(f"ds_write_b128 v{VRW[t]}, {v(O+16*t+12,4)} offset:{(t-1)*4096 + 3*1024}")
    A(f"s_lshl_b32 s{sD_}, s{sI}, 2\ns_add_u32 s{sD_}, s{sD_}, s{SW}\ns_lshl_b32 s{sV}, s{sD_}, 4\ns_add_u32 s{sV}, s{sV}, s{sH}\ns_lshl_b32 s{sV}, s{sV}, 11\ns_add_u32 s{sV}, s{sV}, {WS_O}")
    A("s_waitcnt lgkmcnt(0)\ns_barrier")
    for g in (3, 0, 1, 2):
        for t in range(1, 4): A(f"ds_read_b128 {v(O+16*t+4*g,4)}, v{VRW[0]} offset:{(t-1)*4096 + g*1024}")
    def red(g):
        for r in (4*g, 4*g+2):
            A(f"v_pk_add_f32 {v(O+r,2)}, {v(O+r,2)}, {v(O+16+r,2)}\nv_pk_add_f32 {v(O+32+r,2)}, {v(O+32+r,2)}, {v(O+48+r,2)}")
        for r in (4*g, 4*g+2): A(f"v_pk_add_f32 {v(O+r,2)}, {v(O+r,2)}, {v(O+32+r,2)}")
    A("s_waitcnt lgkmcnt(9)"); red(3)
    A(f"v_readlane_b32 s{sT}, v{O+13}, 32\nv_mov_b32 v{T0}, v{O+12}\nv_mov_b32 v{T2}, v{O+12}\nv_permlane32_swap_b32 v{T0}, v{T2}\nv_rcp_f32 v{T2}, v{T2}")
    A(f"s_cmp_lg_u32 s{sT}, s{sRETRY}\ns_cbranch_scc1 P2_FALL\nP2_FIN:")
    for k, g in enumerate((0, 1, 2)):
        A(f"s_waitcnt lgkmcnt({6 - 3*k})"); red(g)
    for r in range(0, 16, 2): A(f"v_pk_mul_f32 {v(O+r,2)}, {v(O+r,2)}, {v(T2,2)} op_sel_hi:[1,0]")
    for r in range(8): A(f"v_cvt_pk_bf16_f32 v{O+16+r}, v{O+2*r}, v{O+2*r+1}")
    A(f"v_cndmask_b32 v{O+22}, v{O+22}, 0, s[{sHI}:{sHI+1}]\nv_cndmask_b32 v{O+23}, v{O+23}, 0, s[{sHI}:{sHI+1}]")
    for f in range(2): A(f"buffer_store_dwordx4 {v(O+16+4*f,4)}, v{VL}, {R(RWS)}, s{sV} offen offset:{f*1024} sc1")
    stamp("ost")
    A("s_barrier")
    def fallback():
        A(f"P2_FALL:\ns_cmp_lg_u32 s{sRETRY}, 0\ns_cbranch_scc1 P2_FIN")
        A(f"s_mov_b32 s{sRETRY}, -1\ns_waitcnt vmcnt(0) lgkmcnt(0)")
        for t in range(4):
            A(f"v_cndmask_b32 v{Q+8*t+6}, v{Q+8*t+6}, 0, s[{sHI}:{sHI+1}]\nv_cndmask_b32 v{Q+8*t+7}, v{Q+8*t+7}, 0, s[{sHI}:{sHI+1}]\nv_mov_b32 v{M[t]}, 0xff800000")
        A(f"s_mov_b32 s{sU}, 0\nP2_MAXLOOP:")
        for f in range(2): A(f"buffer_load_dwordx4 {v(K0+4*f,4)}, v{VKV}, {R(RWS)}, s{sU} offen offset:{f*1024} sc1")
        A("s_waitcnt vmcnt(0)")
        for t in range(4):
            A(f"{MFMA} {v(O+16*t,16)}, {v(K0,4)}, {v(Q+8*t,4)}, 0\n{MFMA} {v(O+16*t,16)}, {v(K0+4,4)}, {v(Q+8*t+4,4)}, {v(O+16*t,16)}")
        for t in range(4):
            tilemax(O+16*t, T0, T1); A(f"v_max3_f32 v{M[t]}, v{M[t]}, v{T0}, v{T1}")
        A(f"s_add_u32 s{sU}, s{sU}, 4096\ns_cmp_lt_u32 s{sU}, {16*4096}\ns_cbranch_scc1 P2_MAXLOOP")
        A(f"s_barrier\nv_and_b32 v{T3}, 31, v1\nv_lshlrev_b32 v{T3}, 4, v{T3}")
        for t in range(4):
            A(f"v_mov_b32 v{T2}, v{M[t]}\nv_permlane32_swap_b32 v{M[t]}, v{T2}\nv_max_f32 v{M[t]}, v{M[t]}, v{T2}")
            A(f"s_add_u32 s{sT}, s{SW}, {t}\ns_and_b32 s{sT}, s{sT}, 3\ns_lshl_b32 s{sT}, s{sT}, 9\ns_add_u32 s{sT}, s{sT}, {RBUF}\ns_lshl_b32 s{sU}, s{SW}, 2\ns_add_u32 s{sU}, s{sU}, s{sT}")
            A(f"v_add_u32 v{K0+t}, s{sT}, v{T3}\nv_add_u32 v{T2}, s{sU}, v{T3}\nds_write_b32 v{T2}, v{M[t]}")
        A("s_waitcnt lgkmcnt(0)\ns_barrier")
        for t in range(4): A(f"ds_read_b128 {v(O+4*t,4)}, v{K0+t}")
        for n in range(4):
            for ln in kvload(n): A(ln)
        A("s_waitcnt vmcnt(0) lgkmcnt(0)\ns_barrier")
        for t in range(4):
            A(f"v_max3_f32 v{M[t]}, v{O+4*t}, v{O+4*t+1}, v{O+4*t+2}\nv_max_f32 v{M[t]}, v{M[t]}, v{O+4*t+3}")
            set_qpad(Q+8*t, M[t], T0, T1, T2)
        A("s_branch P2_MAIN")
    return fallback

def p3():
    OFR, D1, D2, TF = 16, 144, 160, 176
    T0, T1, T2, T3 = 8, 9, 10, 11
    A(f"{MFMA} {v(D1,16)}, {v(XR,4)}, {v(IR3,4)}, 0\n{MFMA} {v(D2,16)}, {v(IR3,4)}, {v(XR,4)}, 0")
    A(f"{MFMA} {v(D1,16)}, {v(XR+4,4)}, {v(IR3+4,4)}, {v(D1,16)}\n{MFMA} {v(D2,16)}, {v(IR3+4,4)}, {v(XR+4,4)}, {v(D2,16)}")
    A(f"s_lshl_b32 s{sT}, s{sH}, 7\ns_sub_u32 s{sT}, s{sF[1]}, s{sT}\ns_lshl_b32 s{sB}, s{sD_}, 15\ns_add_u32 s{sB}, s{sB}, {WS_O}\nv_add_u32 v{T2}, s{sB}, v{VL}\ns_and_b32 s{sA}, s{sH}, 7\ns_lshl_b32 s{sA}, s{sA}, 12")
    vm.wait_all(); stamp("odrain"); flag_store(sF[1]); stamp_flush()
    A("s_barrier")
    A(f"s_cmp_lt_u32 s{sH}, 14\ns_cbranch_scc1 P3_GO\ns_barrier\ns_branch P3_END\nP3_GO:")
    poll(VFL, sT, 16, T0); stamp("s2")
    def oload(m):
        for k in range(4): A(f"buffer_load_dwordx4 {v(OFR+16*m+4*k,4)}, v{T2}, {R(RWS)}, s{sA} offen offset:{k*1024} sc1"); vm.issue(f"o{4*m+k}")
        A(f"s_add_u32 s{sA}, s{sA}, 4096\ns_and_b32 s{sA}, s{sA}, 0x7fff")
    NPRE = 3
    for m in range(NPRE): oload(m)
    lg.q = []
    def wread(ks):
        n, p = ks >> 1, ks & 1
        for half in range(2):
            A(f"ds_read_b64_tr_b16 {v(TF+4*(ks&3)+2*half,2)}, v{VWO} offset:{(n>>2)*12288 + (n&3)*2048 + (16*p+8*half)*64}"); lg.issue(f"w{ks}")
    wread(0); wread(1)
    for ks in range(32):
        vm.wait(f"o{ks}"); lg.wait(f"w{ks}")
        if ks in (0, 16): stamp(f"p3_{ks}")
        o, wv = v(OFR+4*ks, 4), v(TF+4*(ks&3), 4)
        A(f"{MFMA} {v(D2,16)}, {wv}, {o}, {v(D2,16)}")
        if ks + 2 < 32: wread(ks + 2)
        A(f"{MFMA} {v(D1,16)}, {o}, {wv}, {v(D1,16)}")
        if ks % 4 == 1 and NPRE + ks//4 < 8: oload(NPRE + ks//4)
    stamp("p3mm")
    G = 16
    A(f"s_lshl_b32 s{sB}, s{sD_}, 13\ns_add_u32 s{sB}, s{sB}, {WS_ST}\ns_lshl_b32 s{sT}, s{sH}, 9\ns_add_u32 s{sT}, s{sT}, s{sB}")
    A(f"v_mov_b32 v{G+1}, s{sTAG}\nv_mov_b32 v{G+3}, s{sTAG+1}")
    A(f"v_pk_add_f32 v[20:21], {v(D2,2)}, {v(D2+2,2)}\nv_pk_mul_f32 v[22:23], {v(D2,2)}, {v(D2,2)}\nv_pk_fma_f32 v[22:23], {v(D2+2,2)}, {v(D2+2,2)}, v[22:23]")
    for r in range(4, 16, 2): A(f"v_pk_add_f32 v[20:21], v[20:21], {v(D2+r,2)}\nv_pk_fma_f32 v[22:23], {v(D2+r,2)}, {v(D2+r,2)}, v[22:23]")
    A(f"v_add_f32 v{G}, v20, v21\nv_add_f32 v{G+2}, v22, v23")
    A(f"v_mov_b32 v20, v{G}\nv_mov_b32 v22, v{G+2}\nv_permlane32_swap_b32 v{G}, v20\nv_permlane32_swap_b32 v{G+2}, v22\nv_add_f32 v{G}, v{G}, v20\nv_add_f32 v{G+2}, v{G+2}, v22")
    set_exec(0xFFFFFFFF)
    A(f"buffer_store_dwordx4 {v(G,4)}, v{VL}, {R(RWS)}, s{sT} offen sc1\ns_mov_b64 exec, -1")
    for r in range(8): A(f"v_cvt_pk_bf16_f32 v{24+r}, v{D2+2*r}, v{D2+2*r+1}")
    A(f"s_mul_i32 s{sT}, s{sD_}, 14\ns_add_u32 s{sT}, s{sT}, s{sH}\ns_lshl_b32 s{sT}, s{sT}, 11\ns_add_u32 s{sT}, s{sT}, {WS_HF}")
    for p in range(2): A(f"buffer_store_dwordx4 {v(24+4*p,4)}, v{VL}, {R(RWS)}, s{sT} offen offset:{p*1024} sc1")
    A(f"v_and_b32 v{T0}, 31, v1\nv_lshlrev_b32 v{T0}, 4, v{T0}\nv_lshrrev_b32 v{T1}, 5, v1\nv_mul_u32_u24 v{T1}, 3584, v{T1}\nv_add_u32 v{T0}, v{T0}, v{T1}")
    A("s_barrier")
    if env("S3W", 1): A("s_waitcnt vmcnt(2)")
    stamp("s3pre")
    GR = 32
    A(f"s_mov_b32 s{sTO}, 0x40000\nP3_GL:")
    for k in range(7): A(f"buffer_load_dwordx4 {v(GR+4*k,4)}, v{T0}, {R(RWS)}, s{sB} offen offset:{k*512} sc1")
    A(f"s_sub_u32 s{sTO}, s{sTO}, 1\ns_waitcnt vmcnt(0)\ns_cbranch_scc1 P3_GX")
    tagcheck([GR+4*k for k in range(7)], T1, T2, T3)
    A("s_cbranch_vccnz P3_GL\nP3_GX:")
    vm.q = []
    stamp("s3")
    for k in range(1, 7): A(f"v_add_f32 v{GR}, v{GR}, v{GR+4*k}\nv_add_f32 v{GR+2}, v{GR+2}, v{GR+4*k+2}")
    m, q = GR, GR+2
    A(f"v_mov_b32 v{T0}, v{m}\nv_mov_b32 v{T1}, v{q}\nv_permlane32_swap_b32 v{m}, v{T0}\nv_permlane32_swap_b32 v{q}, v{T1}\nv_add_f32 v{m}, v{m}, v{T0}\nv_add_f32 v{q}, v{q}, v{T1}")
    A(f"v_mul_f32 v{m}, {fl(1.0/D)}, v{m}\nv_mul_f32 v{q}, {fl(1.0/D)}, v{q}\nv_fma_f32 v{q}, -v{m}, v{m}, v{q}\nv_max_f32 v{q}, 0, v{q}")
    A(f"v_add_f32 v{T0}, {fl(EPS)}, v{q}\nv_mul_f32 v{T0}, {fl(EPS)}, v{T0}\nv_add_f32 v{q}, v{q}, v{T0}\nv_rsq_f32 v{q}, v{q}\ns_add_u32 s{sT}, s{sRBW}, 8192\nv_mul_f32 v{m}, v{m}, v{q}")
    A(f"v_cndmask_b32 v{T0}, v{q}, v{m}, s[{sHI}:{sHI+1}]\nv_lshl_add_u32 v{T1}, v1, 2, s{sT}\nds_write_b32 v{T1}, v{T0}")
    A(f"v_lshrrev_b32 v{T2}, 5, v1\nv_lshl_add_u32 v{T2}, v{T2}, 4, s{sT}")
    for g in range(4): A(f"ds_read_b128 {v(64+4*g,4)}, v{T2} offset:{g*32}\nds_read_b128 {v(80+4*g,4)}, v{T2} offset:{128+g*32}")
    A(f"s_lshl_b32 s{sT}, s{sH}, 17\ns_lshl_b32 s{sU}, s{sD_}, 11\ns_add_u32 s{sT}, s{sT}, s{sU}\ns_add_u32 s{sT}, s{sT}, {WS_HH}")
    for p in range(2):
        A(f"s_waitcnt lgkmcnt({4 - 4*p})")
        for r in range(8*p, 8*p+8, 2): A(f"v_pk_fma_f32 {v(D1+r,2)}, {v(D1+r,2)}, {v(64+r,2)}, {v(80+r,2)} neg_lo:[0,0,1] neg_hi:[0,0,1]")
        for r in range(4*p, 4*p+4): A(f"v_cvt_pk_bf16_f32 v{24+r}, v{D1+2*r}, v{D1+2*r+1}")
        A(f"buffer_store_dwordx4 {v(24+4*p,4)}, v{VL}, {R(RWS)}, s{sT} offen offset:{p*1024} sc1")
    stamp("hhst"); stamp_flush()
    A("P3_END:")
    vm.q = []; lg.q = []

PRE, ACC = 128, 16
def preread():
    for n in range(14):
        for ti in range(2):
            for half in range(2):
                A(f"ds_read_b64_tr_b16 {v(PRE + 8*n + ti*4 + half*2, 2)}, v{VRD[ti]} offset:{n*2048 + half*1024}")

def p4():
    RING, NR = 80, 6
    T0, T1, BR, VH = 4, 5, 6, [14, 15]
    preread()
    A(f"s_cmp_ge_u32 s{sH}, 14\ns_cbranch_scc1 P4_NOFLAG\ns_waitcnt vmcnt(0)")
    flag_store(sF[2])
    A("P4_NOFLAG:\ns_waitcnt lgkmcnt(0)\ns_barrier")
    stamp("hhflag"); stamp_flush()
    A(f"s_cmp_lg_u32 s{sACT4}, 0\ns_cbranch_scc1 P4_GO\ns_barrier\ns_barrier\ns_barrier\ns_barrier\ns_branch P4_END\nP4_GO:")
    sFO, sRO = sA, sD_
    A(f"s_lshr_b32 s{sFO}, s{SW}, 1\ns_lshl_b32 s{sT}, s{sFT}, 1\ns_add_u32 s{sFO}, s{sFO}, s{sT}\ns_lshl_b32 s{sT}, s{sFO}, 6\nv_lshrrev_b32 v{T0}, 5, v1\nv_lshlrev_b32 v{T0}, 3, v{T0}")
    for g in range(4): A(f"buffer_load_dwordx2 {v(BR+2*g,2)}, v{T0}, {R(RB1)}, s{sT} offen offset:{g*16}")
    A(f"s_and_b32 s{sE}, s{SW}, 1\ns_lshl_b32 s{sT}, s{sDT4}, 1\ns_add_u32 s{sE}, s{sE}, s{sT}\ns_xor_b32 s{sU}, s{sE}, 1")
    A(f"s_lshl_b32 s{sT}, s{SW}, 15\ns_add_u32 s{sT}, s{sT}, {WS_HH}\ns_lshl_b32 s{sB}, s{sE}, 17\ns_add_u32 s{sB}, s{sB}, s{sT}\ns_lshl_b32 s{sC}, s{sU}, 17\ns_add_u32 s{sC}, s{sC}, s{sT}")
    A(f"v_add_u32 v{VH[0]}, s{sB}, v{VL}\nv_add_u32 v{VH[1]}, s{sC}, v{VL}")
    rot4(sRO); A(f"s_lshl_b32 s{sRO}, s{sRO}, 10")
    A(f"v_and_b32 v{T0}, 15, v1\nv_lshlrev_b32 v{T0}, 7, v{T0}\nv_bfe_u32 v{T1}, v1, 4, 1\nv_lshl_add_u32 v{T0}, v{T1}, 13, v{T0}")
    A(f"s_lshl_b32 s{sT}, s{sDT4}, 14\ns_lshl_b32 s{sU}, s{SW}, 11\ns_add_u32 s{sT}, s{sT}, s{sU}\ns_add_u32 s{sT}, s{sT}, {F4}")
    for sl in range(1, 4):
        A(f"s_xor_b32 s{sU}, s{SW}, {sl}\ns_mul_i32 s{sU}, s{sU}, 12288\ns_add_u32 s{sU}, s{sU}, {RBUF}\nv_add_u32 v{VRW[sl]}, s{sU}, v{VL}")
    poll(T0, sT, 32, RING); stamp("s4")
    dest = lambda n, j: v(RING + (n % NR)*8 + 4*j, 4)
    def hload(n):
        for j in range(2): A(f"buffer_load_dwordx4 {dest(n,j)}, v{VH[j]}, {R(RWS)}, s{sRO} offen offset:{(n&3)*1024} sc1"); vm.issue(n)
        if n & 3 == 3: A(f"s_add_u32 s{sRO}, s{sRO}, 4096\ns_and_b32 s{sRO}, s{sRO}, 0x7fff")
    wreg = lambda n, ti: v(PRE + 8*(n if n < 14 else n & 3) + 4*ti, 4)
    def tread(n, ti):
        va, off = (VRB, (n-14)*2048) if n < 18 else (VRD, (n-18)*2048)
        for half in range(2): A(f"ds_read_b64_tr_b16 {v(PRE + 8*(n&3) + ti*4 + half*2, 2)}, v{va[ti]} offset:{off + half*1024}"); lg.issue(n)
    for n in range(NR): hload(n)
    for n in range(32):
        vm.wait(n)
        if n == 0: stamp("p4first")
        if n in (8, 16, 24): stamp(f"p4_{n}")
        if n == 12: A("s_barrier")
        lg.wait(n)
        if n == 25: A("s_barrier")
        if n == 31: A("s_barrier")
        order = [(0, 0), (0, 1), (1, 0), (1, 1)] if n < 31 else [(0, 1), (1, 0), (1, 1), (0, 0)]
        for k, (ti, tj) in enumerate(order):
            acc = ACC + 16*(2*ti + tj)
            A(f"{MFMA} {v(acc,16)}, {wreg(n,ti)}, {dest(n,tj)}, {'0' if n == 0 else v(acc,16)}")
            if k < 2 and 14 <= n + 2 < 32: tread(n + 2, k)
        if n + NR < 32: hload(n + NR)
    stamp("p4mm")
    for sl in (1, 2, 3):
        for g in range(4): A(f"ds_write_b128 v{VRW[sl]}, {v(ACC+16*sl+4*g,4)} offset:{(sl-1)*4096 + g*1024}")
    for j in range(8):
        A(f"v_lshlrev_b32 v80, 16, v{BR+j}\nv_and_b32 v81, 0xffff0000, v{BR+j}\nv_pk_add_f32 {v(ACC+2*j,2)}, {v(ACC+2*j,2)}, v[80:81]")
    c1 = -2.0*math.sqrt(2.0/math.pi)*math.log2(math.e); c2 = c1*0.044715
    A(f"v_mov_b32 v82, {fl(c2)}\nv_mov_b32 v84, {fl(c1)}")
    A(f"s_mul_i32 s{sT}, s{sE}, {112*1024}\ns_lshl_b32 s{sU}, s{sFO}, 11\ns_add_u32 s{sT}, s{sT}, s{sU}\ns_add_u32 s{sT}, s{sT}, {WS_G}")
    A("s_waitcnt lgkmcnt(0)\ns_barrier")
    for g in range(4):
        for sl in range(1, 4): A(f"ds_read_b128 {v(ACC+16*sl+4*g,4)}, v{VRW[0]} offset:{(sl-1)*4096 + g*1024}")
    for g in range(4):
        A(f"s_waitcnt lgkmcnt({9-3*g})")
        rs = (16+4*g, 18+4*g)
        for r in rs: A(f"v_pk_add_f32 {v(r,2)}, {v(r,2)}, {v(r+16,2)}\nv_pk_add_f32 {v(r+32,2)}, {v(r+32,2)}, {v(r+48,2)}")
        for r in rs: A(f"v_pk_add_f32 {v(r,2)}, {v(r,2)}, {v(r+32,2)}")
        for r in rs: A(f"v_pk_mul_f32 {v(r+16,2)}, {v(r,2)}, {v(r,2)}")
        for r in rs: A(f"v_pk_fma_f32 {v(r+16,2)}, {v(r+16,2)}, v[82:83], v[84:85] op_sel_hi:[1,0,0]")
        for r in rs: A(f"v_pk_mul_f32 {v(r+16,2)}, {v(r+16,2)}, {v(r,2)}")
        for r in range(32+4*g, 36+4*g): A(f"v_exp_f32 v{r}, v{r}")
        for r in rs: A(f"v_pk_add_f32 {v(r+16,2)}, {v(r+16,2)}, 1.0 op_sel_hi:[1,0]")
        for r in range(32+4*g, 36+4*g): A(f"v_rcp_f32 v{r}, v{r}")
        for r in rs: A(f"v_pk_mul_f32 {v(r,2)}, {v(r,2)}, {v(r+16,2)}")
        for k, r in enumerate(rs): A(f"v_cvt_pk_bf16_f32 v{88+2*g+k}, v{r}, v{r+1}")
        if g & 1: A(f"buffer_store_dwordx4 {v(88+4*(g>>1),4)}, v{VL}, {R(RWS)}, s{sT} offen offset:{(g>>1)*1024} sc1")
    stamp("gst"); stamp_flush()
    A("P4_END:\ns_barrier")
    vm.q = []; lg.q = []
    preread()
    A(f"s_cmp_eq_u32 s{sACT4}, 0\ns_cbranch_scc1 P5_NOFLAG\ns_waitcnt vmcnt(0)")
    flag_store(sF[3])
    A("P5_NOFLAG:\ns_waitcnt lgkmcnt(0)\ns_barrier")
    stamp("gflag"); stamp_flush()

def p5():
    T0, T1, T2 = 4, 5, 6
    RING, NR, HR, IR, VO, B2R, VG = 80, 5, 120, 246, 3, 8, [12, 13]
    A(f"s_cmp_ge_u32 s{sJ}, 28\ns_cbranch_scc1 K_FIN")
    sGC = sC
    A(f"s_and_b32 s{sE}, s{SW}, 1\ns_lshl_b32 s{sT}, s{sDT5}, 1\ns_add_u32 s{sE}, s{sE}, s{sT}\ns_xor_b32 s{sU}, s{sE}, 1")
    A(f"s_mul_i32 s{sT}, s{SW}, {28*1024}\ns_add_u32 s{sT}, s{sT}, {WS_G}\ns_mul_i32 s{sA}, s{sE}, {112*1024}\ns_add_u32 s{sA}, s{sA}, s{sT}\ns_mul_i32 s{sB}, s{sU}, {112*1024}\ns_add_u32 s{sB}, s{sB}, s{sT}")
    A(f"v_add_u32 v{VG[0]}, s{sA}, v{VL}\nv_add_u32 v{VG[1]}, s{sB}, v{VL}")
    rot5(sGC); A(f"s_lshl_b32 s{sGC}, s{sGC}, 10")
    A(f"s_lshr_b32 s{sV}, s{SW}, 1\ns_lshl_b32 s{sU}, s{sST}, 1\ns_add_u32 s{sV}, s{sV}, s{sU}\ns_mul_i32 s{sV}, s{sV}, 14\ns_add_u32 s{sV}, s{sV}, s{sE}\ns_lshl_b32 s{sV}, s{sV}, 11\ns_add_u32 s{sV}, s{sV}, {WS_HF}")
    A(f"s_mul_i32 s{sT}, s{sDT5}, 112\ns_mul_i32 s{sU}, s{SW}, 28\ns_add_u32 s{sT}, s{sT}, s{sU}\ns_lshl_b32 s{sT}, s{sT}, 7\ns_add_u32 s{sT}, s{sT}, {F5}")
    poll(VFL, sT, 28, RING); stamp("s5")
    dest = lambda n, j: v(RING + (n % NR)*8 + 4*j, 4)
    def gload(n):
        for j in range(2): A(f"buffer_load_dwordx4 {dest(n,j)}, v{VG[j]}, {R(RWS)}, s{sGC} offen offset:{(n&1)*1024} sc1"); vm.issue(n)
        if n & 1: A(f"s_add_u32 s{sGC}, s{sGC}, 2048\ns_cmp_eq_u32 s{sGC}, {28*1024}\ns_cselect_b32 s{sGC}, 0, s{sGC}")
    for n in range(NR): gload(n)
    for p in range(2): A(f"buffer_load_dwordx4 {v(HR+4*p,4)}, v{VL}, {R(RWS)}, s{sV} offen offset:{p*1024} sc1"); vm.issue("h")
    A(f"v_lshrrev_b32 v{T0}, 3, v0\nv_mul_u32_u24 v{VO}, 896, v{T0}\nv_and_b32 v{T1}, 7, v0\nv_lshl_add_u32 v{VO}, v{T1}, 4, v{VO}\nv_lshlrev_b32 v{T0}, 1, v{T0}\ns_lshl_b32 s{sT}, s{sST}, 7")
    A(f"buffer_load_ushort v{B2R}, v{T0}, {R(RB2)}, s{sT} offen\nbuffer_load_ushort v{B2R+2}, v{T0}, {R(RB2)}, s{sT} offen offset:64"); vm.issue("b"); vm.issue("b")
    A(f"v_and_b32 v{T0}, 31, v1\nv_lshrrev_b32 v{T1}, 5, v1\nv_lshlrev_b32 v{T1}, 2, v{T1}\nv_sub_u32 v{T0}, v{T0}, v{T1}")
    for p in range(2):
        for r in range(4):
            d0 = 16*p + 8*(r >> 1) + 2*(r & 1)
            A(f"v_cmp_eq_u32 vcc, {d0}, v{T0}\nv_cmp_eq_u32 s[{sA}:{sA+1}], {d0+1}, v{T0}\nv_cndmask_b32 v{IR+4*p+r}, 0, v{VONE}, vcc\nv_cndmask_b32 v{IR+4*p+r}, v{IR+4*p+r}, v{VONE+1}, s[{sA}:{sA+1}]")
    VWA = [4, 5, 6, 7]; VRA = [14, 15]
    A(f"v_and_b32 v14, 31, v1\nv_mul_u32_u24 v14, 272, v14\nv_lshrrev_b32 v15, 5, v1\nv_lshl_add_u32 v14, v15, 4, v14\nv_add_u32 v14, s{sW2W}, v14")
    for sl in range(4):
        A(f"s_xor_b32 s{sT}, s{SW}, {sl}\ns_lshr_b32 s{sU}, s{sT}, 1\ns_mul_i32 s{sU}, s{sU}, {32*272}\ns_and_b32 s{sT}, s{sT}, 1\ns_lshl_b32 s{sT}, s{sT}, 7\ns_add_u32 s{sT}, s{sT}, s{sU}\nv_add_u32 v{VWA[sl]}, s{sT}, v14")
    A(f"v_lshrrev_b32 v14, 3, v0\nv_mul_u32_u24 v14, 272, v14\nv_and_b32 v15, 7, v0\nv_lshl_add_u32 v14, v15, 5, v14\nv_add_u32 v15, {2*28672}, v14")
    A(f"s_mul_i32 s{sT}, s{sST}, {64*896}\ns_lshl_b32 s{sU}, s{sDT5}, 7\ns_add_u32 s{sT}, s{sT}, s{sU}\ns_add_u32 s{sU}, s{sT}, {32*896}")
    wreg = lambda n, ti: v(PRE + 8*(n if n < 14 else n & 3) + 4*ti, 4)
    def tread(n, ti):
        for half in range(2): A(f"ds_read_b64_tr_b16 {v(PRE + 8*(n&3) + ti*4 + half*2, 2)}, v{VRD[ti]} offset:{(n-14)*2048 + half*1024}"); lg.issue(n)
    for n in range(28):
        vm.wait(n)
        if n == 0: stamp("p5first")
        if n in (7, 14, 21): stamp(f"p5_{n}")
        if n == 12: A("s_barrier")
        lg.wait(n)
        for k, (ti, tj) in enumerate([(0, 0), (0, 1), (1, 0), (1, 1)]):
            acc = ACC + 16*(2*ti + tj)
            A(f"{MFMA} {v(acc,16)}, {dest(n,tj)}, {wreg(n,ti)}, {'0' if n == 0 else v(acc,16)}")
            if k < 2 and 14 <= n + 2 < 28: tread(n + 2, k)
        if n + NR < 28: gload(n + NR)
        if n == 8:
            for p in range(2): A(f"{MFMA} {v(ACC,16)}, {v(IR+4*p,4)}, {v(HR+4*p,4)}, {v(ACC,16)}")
            A(f"v_lshlrev_b32 v{B2R}, 16, v{B2R}\nv_lshlrev_b32 v{B2R+2}, 16, v{B2R+2}")
    stamp("p5mm")
    for sl in range(4):
        for g in range(4): A(f"ds_write_b128 v{VWA[sl]}, {v(ACC+16*sl+4*g,4)} offset:{g*32}")
    A("s_waitcnt lgkmcnt(0)\ns_barrier")
    for rr in range(2):
        for w in range(4):
            for q in range(2):
                A(f"ds_read_b128 {v(16+16*w+8*rr+4*q,4)}, v{VRA[w>>1]} offset:{(w&1)*28672 + rr*32*272 + q*16}")
    for rr in range(2):
        A(f"s_waitcnt lgkmcnt({8 if rr == 0 else 0})")
        rs = range(16+8*rr, 24+8*rr, 2)
        for r in rs: A(f"v_pk_add_f32 {v(r,2)}, {v(r,2)}, {v(r+16,2)}\nv_pk_add_f32 {v(r+32,2)}, {v(r+32,2)}, {v(r+48,2)}")
        for r in rs: A(f"v_pk_add_f32 {v(r,2)}, {v(r,2)}, {v(B2R+2*rr,2)} op_sel_hi:[1,0]")
        for r in rs: A(f"v_pk_add_f32 {v(r,2)}, {v(r,2)}, {v(r+32,2)}")
        for r in range(4): A(f"v_cvt_pk_bf16_f32 v{80+4*rr+r}, v{16+8*rr+2*r}, v{17+8*rr+2*r}")
        A(f"buffer_store_dwordx4 {v(80+4*rr,4)}, v{VO}, {R(ROUT)}, s{[sT,sU][rr]} offen")
    stamp("outst"); stamp_flush()
    if env("DIAGSPIN", 0):
        A(f"DSP:\ns_memrealtime s[{sA}:{sA+1}]\ns_waitcnt lgkmcnt(0)\ns_sub_u32 s{sA}, s{sA}, s{72 if env('DIAG0', 0) else sTAG}\ns_cmp_lt_u32 s{sA}, {env('DIAGSPIN', 0)}\ns_cbranch_scc1 DSP")
    A("K_FIN:")
    if STAMP:
        A("s_waitcnt vmcnt(0)"); stamp("end"); A(f"s_memrealtime s[{sA}:{sA+1}]"); stamp_flush()
        A(f"v_writelane_b32 v{VST}, s72, 62\nv_writelane_b32 v{VST}, s{sA}, 63")
        A(f"s_lshl_b32 s{sT}, s2, 3\ns_add_u32 s{sT}, s{sT}, s{sW8}\ns_lshl_b32 s{sT}, s{sT}, 8\ns_add_u32 s{sT}, s{sT}, {WS_STAMP}\nv_lshlrev_b32 v4, 2, v1\nbuffer_store_dword v{VST}, v4, {R(RWS)}, s{sT} offen")
    A("K_END:\ns_endpgm")

def bprog():
    NT = env("NT", 0); nt = " nt" if NT else ""
    nt1 = " nt" if env("NT1", 0) else ""
    VXD = [16, 17, 18, 19]; VXE = [20, 21]; VWD = list(range(22, 29))
    sWO, sXO, sM, sWM = sA, sB, sC, sD_
    sXP, sWP = [sW1, sW1S, sW1E], [sW2, sW2S, sW2E]
    A("B_P1:"); vm.q = []; lg.q = []
    p1_common()
    A(f"s_mul_i32 s{sXO}, s{sE}, {32*896}\ns_lshl_b32 s{sWM}, s{SW}, 10")
    A("v_lshrrev_b32 v4, 4, v1\nv_and_b32 v5, 15, v1\nv_xor_b32 v5, v5, v4\nv_mul_u32_u24 v6, 896, v4")
    for j in range(4): A(f"v_xor_b32 v7, {4*j}, v5\nv_lshl_add_u32 v7, v7, 4, v6\nv_add_u32 v{VXD[j]}, {j*4*896 - j*1024}, v7")
    A(f"s_lshr_b32 s{sT}, s{sJ}, 2\ns_and_b32 s{sU}, s{sJ}, 3\ns_add_u32 s{sT}, s{sT}, s{sU}\ns_mul_i32 s{sU}, s{sT}, 11\ns_lshr_b32 s{sU}, s{sU}, 5\ns_mul_i32 s{sU}, s{sU}, 3\ns_sub_u32 s{sT}, s{sT}, s{sU}")
    if not env("P1ROT", 1): A(f"s_mov_b32 s{sT}, 0")
    for p in range(3):
        A(f"s_lshl_b32 s{sU}, s{sT}, 8\ns_add_u32 s{sXP[p]}, s{sXO}, s{sU}\ns_mul_i32 s{sU}, s{sT}, {128*2688}\ns_add_u32 s{sWP[p]}, s{sWO}, s{sU}")
        if p < 2: A(f"s_add_u32 s{sT}, s{sT}, 1\ns_cmp_eq_u32 s{sT}, 3\ns_cselect_b32 s{sT}, 0, s{sT}")
    def xpiece(p):
        if p < 3:
            for j in range(8):
                if j % 4 == 0: A(f"s_add_u32 m0, s{sM}, {XBUF[p] + (j>>2)*4096}\ns_add_u32 s{sV}, s{sXP[p]}, {(j>>2)*16*896}")
                A(f"buffer_load_dwordx4 v{VXD[j&3]}, {R(RX)}, s{sV} offen offset:{(j&3)*1024}{nt1} lds"); vm.issue(f"x{p}")
        else:
            for j in range(4):
                A(f"s_add_u32 m0, s{sM}, {XBUF[p] + j*1024}\ns_add_u32 s{sV}, s{sXO}, {(j>>1)*16*896 + 768}\nbuffer_load_dwordx4 v{VXE[j&1]}, {R(RX)}, s{sV} offen{nt1} lds"); vm.issue(f"x{p}")
    def wdma(j):
        g = j // 7
        if g == 3 and j == 21: A(f"s_add_u32 s{sT}, s{sWO}, {3*128*2688}")
        A(f"s_add_u32 m0, s{sWM}, {j*4096}\nbuffer_load_dwordx4 v{VWD[j%7]}, {R(RWQ)}, s{sWP[g] if g < 3 else sT} offen{nt1} lds"); vm.issue(f"w{g}")
    A("s_waitcnt lgkmcnt(0)")
    xpiece(0)
    for j in range(7):
        A(f"v_add_u32 v4, {256*j}, v0\nv_mul_u32_u24 v5, 4682, v4\nv_lshrrev_b32 v5, 16, v5\nv_mul_u32_u24 v6, 14, v5\nv_sub_u32 v4, v4, v6")
        A(f"v_and_b32 v6, 0xf8, v5\nv_and_b32 v7, 1, v5\nv_lshl_add_u32 v6, v7, 2, v6\nv_bfe_u32 v7, v5, 1, 2\nv_add_u32 v6, v6, v7\nv_mul_u32_u24 v6, 2688, v6\nv_lshl_add_u32 v{VWD[j]}, v4, 4, v6")
        wdma(j)
    xpiece(1)
    A("v_lshrrev_b32 v4, 3, v1\nv_mul_u32_u24 v6, 896, v4\nv_lshrrev_b32 v4, 4, v1\nv_and_b32 v5, 7, v1\nv_xor_b32 v5, v5, v4")
    for j in range(2): A(f"v_xor_b32 v7, {4*j}, v5\nv_lshl_add_u32 v7, v7, 4, v6\nv_add_u32 v{VXE[j]}, {j*8*896}, v7")
    prologue2()
    vm.wait("w0"); A("s_barrier\ns_barrier")
    for j in range(7, 14): wdma(j)
    xpiece(2)
    vm.wait("w1"); A("s_barrier\ns_barrier")
    for j in range(14, 21): wdma(j)
    xpiece(3)
    for j in range(21, 25): wdma(j)
    vm.wait("w2"); A("s_barrier")
    vm.wait_all(); A("s_barrier\ns_waitcnt lgkmcnt(0)\ns_branch B_P2")

def bprog2():
    NT = env("NT", 0); nt = " nt" if NT else ""
    A("B_P2:"); vm.q = []
    if STAMP: A("v_mov_b32 v15, -1\nB_P2S:"); st["v"] = 15
    roles(False)
    W1B, WOR, W2R0 = 16, 160, 192
    VT1, VT2, VTO, VDW, VDR = [4, 5], [6, 7], [8, 9], 10, 11
    A("v_lshrrev_b32 v12, 3, v1\nv_bfe_u32 v13, v1, 4, 1\nv_lshlrev_b32 v13, 2, v13\nv_and_b32 v14, 7, v1\nv_xor_b32 v14, v14, v13\nv_lshlrev_b32 v14, 4, v14")
    A(f"v_mul_u32_u24 v13, 3584, v12\nv_add_u32 v{VT1[0]}, v13, v14\nv_add_u32 v{VT1[1]}, {8*3584}, v{VT1[0]}\nv_lshl_add_u32 v{VT2[0]}, v12, 12, v14\nv_add_u32 v{VT2[1]}, {8*4096}, v{VT2[0]}")
    A(f"v_lshrrev_b32 v12, 2, v1\nv_mul_u32_u24 v12, 896, v12\nv_and_b32 v13, 3, v1\nv_lshl_add_u32 v{VTO[0]}, v13, 4, v12\nv_add_u32 v{VTO[1]}, {16*896}, v{VTO[0]}")
    A(f"v_add_u32 v{VDW}, s{sW2W}, v{VL}\nv_add_u32 v{VDR}, s{sRBW}, v{VL}")
    A(f"s_mul_i32 s{sW1S}, s{SW}, {512*3584}\ns_lshl_b32 s{sT}, s{sFT}, 7\ns_add_u32 s{sW1S}, s{sW1S}, s{sT}\ns_add_u32 s{sW1E}, s{sW1S}, {512*3584}")
    rot4(sT); A(f"s_mul_i32 s{sT}, s{sT}, {16*3584}\ns_add_u32 s{sW1}, s{sW1S}, s{sT}")
    A(f"s_mul_i32 s{sW2S}, s{SW}, {448*4096}\ns_lshl_b32 s{sT}, s{sST}, 7\ns_add_u32 s{sW2S}, s{sW2S}, s{sT}\ns_add_u32 s{sW2E}, s{sW2S}, {448*4096}")
    rot5(sT); A(f"s_lshl_b32 s{sT}, s{sT}, 16\ns_add_u32 s{sW2}, s{sW2S}, s{sT}")
    TH = env("BTH", 4)
    def adv(cur, st_, en, step): A(f"s_add_u32 s{cur}, s{cur}, {step}\ns_cmp_eq_u32 s{cur}, s{en}\ns_cselect_b32 s{cur}, s{st_}, s{cur}")
    def w2reg(n): return W2R0 + 8*n if n < 8 else (WOR + 8*(n-8) if n < 12 else W1B + 8*(n-12))
    def w2load(n, th=None):
        for j in range(2): A(f"buffer_load_dwordx4 {v(w2reg(n)+4*j,4)}, v{VT2[j]}, {R(RW2)}, s{sW2} offen{nt}"); vm.issue(f"v{n}")
        adv(sW2, sW2S, sW2E, 16*4096)
        if th: A(f"s_waitcnt vmcnt({th})")
    A(f"s_and_b32 s{sT}, s{sH}, 7\ns_lshl_b32 s{sT}, s{sT}, 1\ns_lshl_b32 s{sB}, s{SW}, 2\ns_add_u32 s{sB}, s{sB}, s{sT}\ns_min_u32 s{sC}, s{sH}, 13\ns_lshl_b32 s{sC}, s{sC}, 6")
    A(f"s_cmp_ge_u32 s{sJ}, 24\ns_cbranch_scc1 B_NOKV\ns_barrier\nB_NOKV:\ns_barrier")
    if env("BDEL", 0): A("s_barrier")
    stamp("b_go")
    W2T = env("W2T", 2)
    A(f"v_lshlrev_b32 v12, 7, v1\ns_lshl_b32 s{sA}, s2, 2\ns_add_u32 s{sA}, s{sA}, s{SW}\ns_mul_i32 s{sA}, s{sA}, {56*128}")
    for n in range(32):
        for j in range(2):
            if n < 14: A(f"s_add_u32 m0, s{sW2W}, {n*2048 + j*1024}\nbuffer_load_dwordx4 v{VT1[j]}, {R(RW1)}, s{sW1} offen{nt} lds")
            else: A(f"buffer_load_dwordx4 {v(W1B+8*(n-14)+4*j,4)}, v{VT1[j]}, {R(RW1)}, s{sW1} offen{nt}")
        adv(sW1, sW1S, sW1E, 16*3584); A(f"s_waitcnt vmcnt({TH})")
        if W2T and n % 4 == 0 and n // 4 < W2T:
            nl = 56 // W2T
            set_exec(((1 << nl) - 1) << (nl*(n//4))); A(f"buffer_load_dword v14, v12, {R(RW2)}, s{sA} offen\ns_mov_b64 exec, -1")
        if n == 16: TH = env("BTH2", 8)
        if n in (9, 11, 13, 15):
            k = (n - 9) // 2
            A(f"s_add_u32 s{sT}, s{sB}, {k}\ns_and_b32 s{sT}, s{sT}, 15\ns_mul_i32 s{sT}, s{sT}, {28*896}\ns_add_u32 s{sT}, s{sT}, s{sC}")
            for j in range(2): A(f"buffer_load_dwordx4 {v(WOR+8*k+4*j,4)}, v{VTO[j]}, {R(RWO)}, s{sT} offen")
            A(f"s_waitcnt vmcnt({TH})")
        if n >= 16 and n % 2 == 1: w2load((n - 16) // 2, TH)
    stamp("b_w1")
    vm.wait_all(); stamp("b_done"); stamp_flush()
    A(f"v_min_u32 v12, 5, v1\nv_lshlrev_b32 v12, 12, v12\nv_add_u32 v12, {RBUF + 3*1024 + 32*16 + 4}, v12")
    A(f"B_RED:\ns_barrier\nds_read_b32 v13, v12\ns_waitcnt lgkmcnt(0)\nv_cmp_ne_u32 vcc, 0, v13")
    A(f"s_cbranch_vccz B_OK\ns_cmp_lg_u32 s{sRETRY}, 0\ns_cbranch_scc1 B_OK\ns_mov_b32 s{sRETRY}, -1\ns_barrier\ns_barrier\ns_barrier\n{'s_barrier' if env('BDEL', 0) else ''}\ns_branch B_RED\nB_OK:")
    A("s_barrier")
    for k in range(8): A(f"ds_write_b128 v{VDR}, {v(WOR+4*k,4)} offset:{k*1024}")
    A("s_waitcnt lgkmcnt(0)\ns_barrier\ns_barrier")
    for n in range(8, 12): w2load(n)
    A("s_barrier")
    def dump(reg, va, off):
        for j in range(2): A(f"ds_write_b128 v{va}, {v(reg+4*j,4)} offset:{off + j*1024}")
    for n in range(14, 18): dump(W1B + 8*(n-14), VDR, (n-14)*2048)
    A("s_waitcnt lgkmcnt(0)")
    NE = env("W2E", 16)
    for n in range(12, NE): w2load(n)
    for n in range(18, 32): dump(W1B + 8*(n-14), VDW, (n-18)*2048)
    A("s_waitcnt lgkmcnt(0)\ns_barrier\ns_barrier")
    for n in range(7): dump(w2reg(n), VDW, n*2048)
    A("s_barrier")
    rest = list(range(NE, 28))
    for n in rest[:4]: w2load(n)
    rest = rest[4:]
    A("s_barrier")
    vm.wait("v13")
    for n in range(7, 14):
        dump(w2reg(n), VDW, n*2048)
        if rest: w2load(rest.pop(0))
    for n in rest: w2load(n)
    A("s_waitcnt lgkmcnt(0)\ns_barrier\ns_barrier")
    for n in range(14, 28):
        vm.wait(f"v{n}"); dump(w2reg(n), VDW, (n-14)*2048)
    A("s_waitcnt lgkmcnt(0)\ns_barrier")
    if STAMP: A(f"v_mov_b32 v{VST}, v15"); del st["v"]
    A("s_branch K_FIN")

def main(out):
    prologue()
    pend0 = list(st["pend"])
    bprog()
    st["pend"] = list(pend0); p1_helper()
    st["pend"] = list(pend0); p1(); fb = p2(); p3(); p4(); p5()
    st["pend"] = list(pend0); bprog2(); fb()
    A("CODE_END:")
    head = open("head.txt").read()
    nv = 256
    txt = head + f"; @launch grid=(256,1,1) block=(512,1,1) lds={LDS_TOTAL}\n" + '.amdgcn_target "amdgcn-amd-amdhsa--gfx950"\n.text\n' + kernel_header(NAME) + A.text() + '.section .rodata,"a"\n' + kernel_desc(NAME, nv, 102, 256)
    open(out, "w").write(txt)
    if STAMP: open(out + ".names", "w").write(" ".join(st["names"].keys()))

if __name__ == "__main__":
    main(sys.argv[1])
```

```python
import sys, struct, math, os
from asmlib import *

S, D, H, DH, F = 2048, 448, 16, 28, 1792
MB = 1 << 20
WS_Q, WS_KV, WS_O, WS_HF, WS_HH, WS_G, WS_ST, WS_FL, WS_STAMP = 0, 2*MB, 6*MB, 8*MB, 10*MB, 12*MB, 14*MB, 14*MB + 512*1024, 15*MB
F1, F2, F4, F5 = WS_FL, WS_FL + 131072, WS_FL + 2*131072, WS_FL + 3*131072
WS_RST, WS_CSG = 13*MB + 768*1024, 13*MB + 832*1024
WS_SIZE = 16*MB
EPS = 1e-5
STAMP = os.environ.get("STAMP", "0") == "1"
def env(n, d): return int(os.environ.get(n, str(d)))
def f2u(x): return struct.unpack("<I", struct.pack("<f", x))[0]
def hx(x): return f"0x{x & 0xffffffff:08x}"
def fl(x): return hx(f2u(x))
MFMA = "v_mfma_f32_32x32x16_bf16"
NAME = "sequential_preLN__mha_block__mixer_token_mlp__prompt_kernel"

class Cnt:
    def __init__(self, A, name, mx):
        self.A, self.name, self.mx, self.q = A, name, mx, []
    def issue(self, tag): self.q.append(tag)
    def wait(self, tag):
        idx = [i for i, t in enumerate(self.q) if t == tag]
        if not idx: return
        n = len(self.q) - 1 - idx[-1]
        self.A(f"s_waitcnt {self.name}({min(n, self.mx)})")
        self.q = self.q[idx[-1] + 1:]
    def wait_all(self):
        self.A(f"s_waitcnt {self.name}(0)"); self.q = []

RX, RWQ, RWO, RW1, RB1, RW2, RB2, ROUT, RDBG, RWS = 8, 12, 16, 20, 24, 28, 32, 36, 40, 44
def R(r): return f"s[{r}:{r+3}]"
SW, sH, sI, sJ, sFT, sDT4, sST, sDT5, sACT4, sTO, sTAG = 48, 49, 50, 51, 52, 53, 54, 55, 56, 57, 58
sHI, sONES = 60, 62
sT, sU, sV, sA, sB, sC, sD_, sE, sRETRY = 63, 64, 65, 66, 67, 68, 69, 70, 71
sF = [4, 5, 6, 7]
sSEC, sHQ, sW8 = 3, 92, 93
sC3, sR3 = 0, 1
sRBW, sW2W = 94, 95
sW1, sW1S, sW1E, sW2, sW2S, sW2E = 96, 97, 98, 99, 100, 101
VL, VST = 2, 255
W2A, RBUF, LDS_TOTAL = 0, 114688, 163840

A = Asm(); vm = Cnt(A, "vmcnt", 63); lg = Cnt(A, "lgkmcnt", 15)
st = {"pend": [], "names": {}}
def stamp(name):
    if not STAMP: return
    k = len(st["pend"]); assert k < 9, name
    n = st["names"].setdefault(name, len(st["names"]))
    A(f"{'s_memtime' if env('CYC', 0) else 's_memrealtime'} s[{74+2*k}:{75+2*k}]"); st["pend"].append(n)
def stamp_flush():
    if not STAMP or not st["pend"]: return
    A("s_waitcnt lgkmcnt(0)")
    for k, n in enumerate(st["pend"]): A(f"v_writelane_b32 v{st.get('v', VST)}, s{74+2*k}, {n}")
    st["pend"] = []

def set_exec(mask): A(f"s_mov_b32 exec_lo, {hx(mask)}\ns_mov_b32 exec_hi, {hx(mask >> 32)}")
def halfsum(x, t): A(f"v_mov_b32 v{t}, v{x}\nv_permlane32_swap_b32 v{x}, v{t}\nv_add_f32 v{x}, v{x}, v{t}")
def flag_store(soff_reg, t=4):
    A(f"v_mov_b32 v{t}, s{sTAG}\nv_mov_b32 v{t+1}, s{sTAG+1}\nv_mov_b32 v{t+2}, 0\ns_mov_b64 exec, 1")
    A(f"buffer_store_dwordx2 {v(t,2)}, v{t+2}, {R(RWS)}, s{soff_reg} offen sc1\ns_mov_b64 exec, -1"); vm.issue("flag")
def poll(voff, soff_reg, nl, t):
    L = A.label("POLL")
    set_exec((1 << nl) - 1)
    A(f"s_mov_b32 s{sTO}, 0x40000\n{L}:")
    A(f"buffer_load_dwordx2 {v(t,2)}, v{voff}, {R(RWS)}, s{soff_reg} offen sc1\ns_sub_u32 s{sTO}, s{sTO}, 1\ns_waitcnt vmcnt(0)")
    A(f"s_cbranch_scc1 {L}_x\nv_cmp_ne_u64 vcc, s[{sTAG}:{sTAG+1}], {v(t,2)}\ns_and_b64 exec, exec, vcc\n" + (f"s_cbranch_scc0 {L}_x\ns_sleep {env('PSL', 0)}\ns_branch {L}" if env("PSL", 0) else f"s_cbranch_scc1 {L}") + f"\n{L}_x:\ns_mov_b64 exec, -1")
    vm.q = []
def tr_lane_addr(dst, t, pitch, hs, rs=1):
    A(f"v_lshrrev_b32 v{dst}, 5, v1\nv_mul_u32_u24 v{dst}, {hs*pitch}, v{dst}\nv_bfe_u32 v{t}, v1, 2, 2\nv_mul_u32_u24 v{t}, {rs*pitch}, v{t}\nv_add_u32 v{dst}, v{dst}, v{t}")
    A(f"v_bfe_u32 v{t}, v1, 4, 1\nv_lshl_add_u32 v{dst}, v{t}, 5, v{dst}\nv_and_b32 v{t}, 3, v1\nv_lshl_add_u32 v{dst}, v{t}, 3, v{dst}")
def get_tag(TAGV, lab):
    A(f"v_readfirstlane_b32 s{sTAG}, v{TAGV}\nv_readfirstlane_b32 s{sTAG+1}, v{TAGV+1}")
    A(f"s_or_b32 s{sTO}, s{sTAG}, s{sTAG+1}\ns_cbranch_scc1 {lab}_ok\ns_mov_b32 s{sTO}, 0x40000\nv_mov_b32 v4, 0\n{lab}_l:")
    A(f"buffer_load_dwordx2 {v(TAGV,2)}, v4, {R(RDBG)}, 0 offen sc1\ns_sub_u32 s{sTO}, s{sTO}, 1\ns_waitcnt vmcnt(0)\ns_cbranch_scc1 {lab}_ok")
    A(f"v_readfirstlane_b32 s{sTAG}, v{TAGV}\nv_readfirstlane_b32 s{sTAG+1}, v{TAGV+1}\ns_cmp_eq_u64 s[{sTAG}:{sTAG+1}], 0\ns_cbranch_scc1 {lab}_l\n{lab}_ok:")
def tagcheck(regs, T1, T2, T3):
    A(f"v_xor_b32 v{T1}, s{sTAG}, v{regs[0]+1}\nv_xor_b32 v{T2}, s{sTAG+1}, v{regs[0]+3}\nv_or_b32 v{T1}, v{T1}, v{T2}")
    for g in regs[1:]: A(f"v_xor_b32 v{T2}, s{sTAG}, v{g+1}\nv_xor_b32 v{T3}, s{sTAG+1}, v{g+3}\nv_or3_b32 v{T1}, v{T1}, v{T2}, v{T3}")
    A(f"v_cmp_ne_u32 vcc, 0, v{T1}")
def rot4(d):
    A(f"s_bfe_u32 s{d}, s2, 0x20001\ns_mul_i32 s{d}, s{d}, 7\ns_sub_u32 s{d}, s{sFT}, s{d}\ns_add_u32 s{d}, s{d}, s{sDT4}\ns_and_b32 s{d}, s{d}, 7\ns_lshl_b32 s{d}, s{d}, 2")
def rot5(d):
    A(f"s_and_b32 s{d}, s{sST}, 7\ns_mul_i32 s{d}, s{d}, 7\ns_lshr_b32 s{d}, s{d}, 2\ns_add_u32 s{d}, s{d}, s{sDT5}\ns_add_u32 s{d}, s{d}, s{sDT5}\ns_lshl_b32 s{d}, s{d}, 1")
    A(f"s_cmp_ge_u32 s{d}, 28\ns_cselect_b32 s{sTO}, 28, 0\ns_sub_u32 s{d}, s{d}, s{sTO}")

handlers = []
class Stream:
    def __init__(self, name, ng, loads, soff, T):
        self.name, self.ng, self.loads, self.soff, self.T, self.last = name, ng, loads, soff, T, -1
    def _emit(self, g, track):
        self.soff(g)
        for reg, va, off in self.loads(g):
            A(f"buffer_load_dwordx4 {v(reg,4)}, v{va}, {R(RWS)}, s{sT} offen offset:{off} sc1")
            if track: vm.issue((self.name, g))
    def issue(self, g):
        if g < self.ng: self._emit(g, True); self.last = g
    def _red(self, g):
        r = [x[0] + 3 for x in self.loads(g)]
        if len(r) == 4: A(f"v_max3_u32 v{self.T}, v{r[0]}, v{r[1]}, v{r[2]}\nv_max_u32 v{self.T}, v{self.T}, v{r[3]}")
        else: A(f"v_max_u32 v{self.T}, v{r[0]}, v{r[1]}")
    def check1(self, g):
        if g < self.ng: vm.wait((self.name, g)); self._red(g)
    def check2(self, g):
        if g >= self.ng: return
        L = f"{self.name}{g}"
        A(f"v_cmp_eq_u32 vcc, -1, v{self.T}\ns_cbranch_vccnz {L}_h\n{L}_r:")
        last = self.last
        def h():
            A(f"{L}_h:\ns_mov_b32 s{sTO}, 0x40000\n{L}_l:")
            self._emit(g, False)
            A(f"s_sub_u32 s{sTO}, s{sTO}, 1\ns_waitcnt vmcnt(0)\ns_cbranch_scc1 {L}_r")
            self._red(g)
            A(f"v_cmp_eq_u32 vcc, -1, v{self.T}\ns_cbranch_vccnz {L}_l")
            for k in range(g + 1, last + 1): self._emit(k, False)
            A(f"s_branch {L}_r")
        handlers.append(h)
def sanitize(*regs):
    for r in regs: A(f"v_min_u32 v{r}, -2, v{r}")

def prologue():
    if STAMP: A(f"s_memrealtime s[72:73]\nv_mov_b32 v{VST}, -1")
    if env("DIAG0", 0): A("s_memrealtime s[72:73]")
    stamp("start")
    A(f"s_load_dwordx2 s[{RX}:{RX+1}], s[0:1], 0\ns_load_dwordx2 s[{RWQ}:{RWQ+1}], s[0:1], 8")
    A("s_cmp_ge_u32 s2, 256\ns_cbranch_scc1 K_END")
    A(f"v_and_b32 v1, 63, v0\nv_lshrrev_b32 v3, 6, v0\nv_lshlrev_b32 v{VL}, 4, v1\nv_readfirstlane_b32 s{sW8}, v3\nv_and_b32 v0, 255, v0")
    for r, sz in ((RX, S*D*2), (RWQ, D*3*D*2)): A(f"s_mov_b32 s{r+2}, {sz}\ns_mov_b32 s{r+3}, 0x20000")
    A(f"s_and_b32 s{SW}, s{sW8}, 3\ns_lshr_b32 s{sJ}, s2, 3\ns_bfe_u32 s{sT}, s2, 0x20001\ns_and_b32 s{sU}, s2, 1")
    A(f"s_lshl_b32 s{sI}, s{sT}, 2\ns_and_b32 s{sV}, s{sJ}, 3\ns_add_u32 s{sI}, s{sI}, s{sV}")
    A(f"s_lshr_b32 s{sSEC}, s{sJ}, 3\ns_bfe_u32 s{sHQ}, s{sJ}, 0x10002\ns_lshl_b32 s{sV}, s{sU}, 1\ns_add_u32 s{sHQ}, s{sHQ}, s{sV}")
    A(f"s_cmp_ge_u32 s{sJ}, 24\ns_cbranch_scc1 P1_HELP\ns_cmp_lt_u32 s{sW8}, 4\ns_cbranch_scc1 A_P1")

def prologue2():
    for r, off in ((RWS, 80), (RDBG, 72), (RWO, 16), (RW1, 32), (RB1, 40), (RW2, 48), (RB2, 56), (ROUT, 64)):
        A(f"s_load_dwordx2 s[{r}:{r+1}], s[0:1], {off}")
    A(f"s_memrealtime s[{sTAG}:{sTAG+1}]")
    for r, sz in ((RWS, WS_SIZE), (RDBG, 256), (RWO, D*D*2), (RW1, S*F*2), (RB1, F*2), (RW2, S*F*2), (RB2, S*2), (ROUT, S*D*2)):
        A(f"s_mov_b32 s{r+2}, {sz}\ns_mov_b32 s{r+3}, 0x20000")
    A(f"s_mov_b32 s{sHI}, 0\ns_mov_b32 s{sHI+1}, -1\ns_mov_b32 s{sONES}, 0x3f803f80\ns_mov_b32 s{sRETRY}, 0")
    A(f"s_mul_i32 s{sRBW}, s{SW}, 12288\ns_add_u32 s{sRBW}, s{sRBW}, {RBUF}\ns_mul_i32 s{sW2W}, s{SW}, 28672")

def roles(touch=True):
    A(f"s_bfe_u32 s{sT}, s2, 0x20001\ns_and_b32 s{sU}, s2, 1")
    pass
    A(f"s_sub_u32 s{sV}, 25, s{sU}\ns_cmp_lt_u32 s{sJ}, s{sV}\ns_cselect_b32 s{sACT4}, 1, 0\ns_cselect_b32 s{sV}, s{sJ}, 0")
    A(f"s_mul_i32 s{sFT}, s{sU}, 25\ns_add_u32 s{sV}, s{sV}, s{sFT}\ns_mul_i32 s{sDT4}, s{sV}, 9363\ns_lshr_b32 s{sDT4}, s{sDT4}, 16")
    A(f"s_mul_i32 s{sFT}, s{sDT4}, 7\ns_sub_u32 s{sV}, s{sV}, s{sFT}\ns_mul_i32 s{sFT}, s{sT}, 7\ns_add_u32 s{sFT}, s{sV}, s{sFT}")
    A(f"s_cmp_lt_u32 s{sJ}, 28\ns_cselect_b32 s{sV}, s{sJ}, 0\ns_mul_i32 s{sST}, s{sU}, 28\ns_add_u32 s{sV}, s{sV}, s{sST}")
    A(f"s_lshr_b32 s{sDT5}, s{sV}, 3\ns_and_b32 s{sV}, s{sV}, 7\ns_lshl_b32 s{sST}, s{sT}, 3\ns_add_u32 s{sST}, s{sST}, s{sV}")
    A(f"s_lshl_b32 s{sT}, s{sHQ}, 2\ns_add_u32 s{sT}, s{sT}, s{sSEC}\ns_lshl_b32 s{sT}, s{sT}, 4\ns_add_u32 s{sT}, s{sT}, s{sI}\ns_lshl_b32 s{sT}, s{sT}, 7\ns_add_u32 s{sF[0]}, s{sT}, {F1}")
    A(f"s_and_b32 s{sT}, s2, 7\ns_lshl_b32 s{sT}, s{sT}, 1\ns_and_b32 s{sH}, s{sJ}, 1\ns_add_u32 s{sH}, s{sH}, s{sT}\ns_lshr_b32 s{sI}, s{sJ}, 1")
    A(f"s_lshr_b32 s{sR3}, s{sJ}, 4\ns_add_u32 s{sR3}, s{sR3}, s{sT}\ns_lshl_b32 s{sR3}, s{sR3}, 2\ns_add_u32 s{sR3}, s{sR3}, s{SW}\ns_and_b32 s{sC3}, s{sJ}, 15")
    A(f"s_lshl_b32 s{sU}, s{sI}, 2\ns_add_u32 s{sU}, s{sU}, s{SW}\ns_lshl_b32 s{sT}, s{sU}, 4\ns_add_u32 s{sT}, s{sT}, s{sH}\ns_lshl_b32 s{sT}, s{sT}, 7\ns_add_u32 s{sF[1]}, s{sT}, {F2}")
    A(f"s_lshl_b32 s{sT}, s{sC3}, 6\ns_add_u32 s{sT}, s{sT}, s{sR3}\ns_lshl_b32 s{sT}, s{sT}, 7\ns_add_u32 s{sF[2]}, s{sT}, {F4}\ns_lshl_b32 s{sV}, s{sR3}, 4\ns_add_u32 s{sV}, s{sV}, s{sC3}\ns_lshl_b32 s{sV}, s{sV}, 9")
    A(f"s_mul_i32 s{sT}, s{sDT4}, 28\ns_add_u32 s{sT}, s{sT}, s{sFT}\ns_lshl_b32 s{sT}, s{sT}, 2\ns_add_u32 s{sT}, s{sT}, s{SW}\ns_lshl_b32 s{sT}, s{sT}, 7\ns_add_u32 s{sF[3]}, s{sT}, {F5}")
    if not touch: return
    A(f"s_add_u32 s{sV}, s{sV}, {WS_ST}\nv_lshl_add_u32 v4, v1, 7, s{sV}")
    A(f"v_writelane_b32 v4, s{sF[0]}, 4\nv_writelane_b32 v4, s{sF[1]}, 5\nv_writelane_b32 v4, s{sF[2]}, 6\nv_writelane_b32 v4, s{sF[3]}, 7\ns_mov_b64 exec, 0xff\nbuffer_load_dword v12, v4, {R(RWS)}, 0 offen sc1\ns_mov_b64 exec, -1")
    vm.issue("touch")

def p1_helper():
    TAGV = 14
    sHX = sA
    A("P1_HELP:")
    vm.q = []
    prologue2()
    A(f"s_and_b32 s{sHX}, s2, 7\ns_lshl_b32 s{sHX}, s{sHX}, 3\ns_add_u32 s{sHX}, s{sHX}, s{sJ}\ns_sub_u32 s{sHX}, s{sHX}, 24")
    A(f"v_lshrrev_b32 v4, 3, v1\nv_and_b32 v5, 7, v1\nv_lshlrev_b32 v5, 4, v5\nv_mov_b32 v7, 0")
    A(f"s_cmp_ge_u32 s{sW8}, 4\ns_cbranch_scc1 H_CS")
    A(f"v_mul_u32_u24 v6, 896, v4\nv_add_u32 v6, v6, v5\ns_lshl_b32 s{sB}, s{sHX}, 2\ns_add_u32 s{sB}, s{sB}, s{SW}\ns_mul_i32 s{sT}, s{sB}, {8*896}\ns_waitcnt lgkmcnt(0)")
    for m in range(7): A(f"buffer_load_dwordx4 {v(16+4*m,4)}, v6, {R(RX)}, s{sT} offen offset:{m*128}")
    A("v_mov_b32 v80, 0\nv_mov_b32 v82, 0\nv_mov_b32 v84, 0\nv_mov_b32 v86, 0\ns_waitcnt vmcnt(0)")
    A(f"buffer_load_dwordx2 {v(TAGV,2)}, v7, {R(RDBG)}, 0 offen sc1")
    for k in range(28): A(f"v_dot2c_f32_bf16 v{80+4*(k&1)}, s{sONES}, v{16+k}\nv_dot2c_f32_bf16 v{82+4*(k&1)}, v{16+k}, v{16+k}")
    A("v_add_f32 v80, v80, v84\nv_add_f32 v82, v82, v86")
    for m in ("quad_perm:[1,0,3,2]", "quad_perm:[2,3,0,1]", "row_half_mirror"):
        for r in (80, 82): A(f"v_add_f32_dpp v{r}, v{r}, v{r} {m} row_mask:0xf bank_mask:0xf")
    A(f"v_mul_f32 v80, {fl(1.0/D)}, v80\nv_mul_f32 v82, {fl(1.0/D)}, v82\nv_fma_f32 v82, -v80, v80, v82\nv_max_f32 v82, 0, v82\nv_add_f32 v82, {fl(EPS)}, v82\nv_rsq_f32 v82, v82")
    A(f"v_lshlrev_b32 v6, 4, v4\nv_mul_f32 v80, v80, v82\nv_sub_f32 v80, 0, v80\ns_waitcnt vmcnt(0)")
    get_tag(TAGV, "H_T1")
    A(f"v_mov_b32 v81, s{sTAG}\nv_mov_b32 v83, s{sTAG+1}\ns_lshl_b32 s{sT}, s{sB}, 7\ns_add_u32 s{sT}, s{sT}, {WS_RST}")
    set_exec(0x0101010101010101)
    A(f"buffer_store_dwordx4 v[80:83], v6, {R(RWS)}, s{sT} offen sc1\ns_mov_b64 exec, -1")
    stamp("h_pub"); stamp_flush()
    A("s_barrier")
    roles()
    A("s_branch P2_START")
    st["pend"] = [0] if STAMP else []
    A(f"H_CS:\ns_lshl_b32 s{sB}, s{SW}, 6\ns_add_u32 s{sB}, s{sB}, s{sHX}\ns_cmp_ge_u32 s{sB}, 84\ns_cbranch_scc1 H_PF")
    A(f"v_mul_u32_u24 v6, 2688, v4\nv_add_u32 v6, v6, v5\ns_and_b32 s{sC}, s{sB}, 3\ns_lshr_b32 s{sD_}, s{sB}, 2\ns_mul_i32 s{sT}, s{sC}, {112*2688}\ns_lshl_b32 s{sU}, s{sD_}, 7\ns_add_u32 s{sT}, s{sT}, s{sU}\ns_waitcnt lgkmcnt(0)")
    for m in range(14): A(f"buffer_load_dwordx4 {v(16+4*m,4)}, v6, {R(RWQ)}, s{sT} offen\ns_add_u32 s{sT}, s{sT}, {8*2688}")
    A(f"s_mov_b32 s{sT}, 0x3f80\ns_mov_b32 s{sU}, 0x3f800000")
    for r in range(80, 88): A(f"v_mov_b32 v{r}, 0")
    for m in range(14):
        if m % 4 == 0: A(f"s_waitcnt vmcnt({max(0, 14 - m - 4)})")
        if m == 12: A(f"buffer_load_dwordx2 {v(TAGV,2)}, v7, {R(RDBG)}, 0 offen sc1")
        for k in range(4): A(f"v_dot2c_f32_bf16 v{80+2*k}, s{sT}, v{16+4*m+k}\nv_dot2c_f32_bf16 v{81+2*k}, s{sU}, v{16+4*m+k}")
    for r in range(80, 88): A(f"v_add_f32_dpp v{r}, v{r}, v{r} row_ror:8 row_mask:0xf bank_mask:0xf")
    for op in ("v_permlane16_swap_b32", "v_permlane32_swap_b32"):
        for r in range(80, 88): A(f"v_mov_b32 v{r+8}, v{r}")
        for r in range(80, 88): A(f"{op} v{r}, v{r+8}")
        for r in range(80, 88): A(f"v_add_f32 v{r}, v{r}, v{r+8}")
    A("v_mov_b32 v88, v80\nv_mov_b32 v90, v81")
    for pi in range(1, 4): A(f"v_cmp_eq_u32 vcc, {pi}, v4\nv_cndmask_b32 v88, v88, v{80+2*pi}, vcc\nv_cndmask_b32 v90, v90, v{81+2*pi}, vcc")
    A(f"v_lshlrev_b32 v6, 2, v5\nv_lshl_add_u32 v6, v4, 4, v6\ns_waitcnt vmcnt(0)")
    get_tag(TAGV, "H_T2")
    A(f"v_mov_b32 v89, s{sTAG}\nv_mov_b32 v91, s{sTAG+1}\ns_mul_i32 s{sT}, s{sC}, 10752\ns_lshl_b32 s{sU}, s{sD_}, 9\ns_add_u32 s{sT}, s{sT}, s{sU}\ns_add_u32 s{sT}, s{sT}, {WS_CSG}")
    set_exec(0xFFFFFFFF)
    A(f"buffer_store_dwordx4 v[88:91], v6, {R(RWS)}, s{sT} offen sc1\ns_mov_b64 exec, -1\ns_barrier\ns_branch B_P2")
    A(f"H_PF:\ns_cmp_lt_u32 s{SW}, 2\ns_cbranch_scc1 H_W")
    sQ = sB
    A(f"s_sub_u32 s{sQ}, s{sJ}, 24\ns_lshl_b32 s{sQ}, s{sQ}, 1\ns_add_u32 s{sQ}, s{sQ}, s{SW}\ns_sub_u32 s{sQ}, s{sQ}, 2")
    A(f"s_getpc_b64 s[{sC}:{sC+1}]\nCODE_REF:\ns_lshl_b32 s{sT}, s{sQ}, 12\nv_lshl_add_u32 v6, v1, 7, s{sT}\nv_min_u32 v6, CODE_END-CODE_REF-4, v6")
    A(f"v_mov_b32 v9, s{sC+1}\nv_add_co_u32 v8, vcc, s{sC}, v6\nv_addc_co_u32 v9, vcc, 0, v9, vcc")
    set_exec(0xFFFFFFFF)
    A("global_load_dword v25, v[8:9], off\ns_mov_b64 exec, -1\ns_waitcnt lgkmcnt(0)\ns_barrier")
    A("v_lshlrev_b32 v6, 7, v1")
    A(f"s_and_b32 s{sT}, s2, 7\ns_lshl_b32 s{sT}, s{sT}, 4\ns_add_u32 s{sT}, s{sT}, s{sQ}\ns_mul_i32 s{sT}, s{sT}, {7*8192}")
    for k in range(env("NP1", 7)): A(f"s_add_u32 s{sU}, s{sT}, {k*8192}\nbuffer_load_dword v{16+k}, v6, {R(RW1)}, s{sU} offen")
    for k in range(env("NP2", 0)): A(f"s_add_u32 s{sU}, s{sT}, {k*8192}\nbuffer_load_dword v{26+k}, v6, {R(RW2)}, s{sU} offen")
    if env("WOT", 1) == 1:
        A(f"s_mul_i32 s{sT}, s{sQ}, {196*128}")
        set_exec((1 << 49) - 1)
        for k in range(4): A(f"s_add_u32 s{sU}, s{sT}, {k*49*128}\nbuffer_load_dword v24, v6, {R(RWO)}, s{sU} offen")
        A("s_mov_b64 exec, -1")
    if STAMP:
        A("s_waitcnt vmcnt(0)"); stamp("h_touch"); stamp_flush(); A(f"v_mov_b32 v15, v{VST}\ns_branch B_P2S")
    A("s_branch B_P2\nH_W:\ns_waitcnt lgkmcnt(0)\ns_barrier\ns_branch B_P2")

XA = LDS_TOTAL - 65536
XBUF = [8192, 0, 8192, 4096]
def p1_common():
    sWO, sM = sA, sC
    A(f"s_mul_i32 s{sWO}, s{sSEC}, 896\ns_mul_i32 s{sT}, s{sHQ}, 224\ns_add_u32 s{sWO}, s{sWO}, s{sT}")
    A(f"s_lshl_b32 s{sE}, s{sI}, 2\ns_add_u32 s{sE}, s{sE}, s{SW}\ns_lshl_b32 s{sM}, s{SW}, 14\ns_add_u32 s{sM}, s{sM}, {XA}")

def p1():
    XF, ACC, WF = 16, 128, 192
    VXR = list(range(224, 232)); VXS = list(range(232, 236)); VWR = [236, 237]; TAGV = 238
    sWO, sM = sA, sC
    A("A_P1:")
    prologue2()
    p1_common()
    A(f"v_and_b32 v4, 31, v1\nv_lshrrev_b32 v5, 5, v1\nv_and_b32 v6, 15, v1\nv_xor_b32 v6, v6, v5\nv_lshlrev_b32 v6, 4, v6\nv_lshl_add_u32 v6, v4, 8, v6\nv_add_u32 v6, s{sM}, v6")
    for k in range(8): A(f"v_xor_b32 v{VXR[k]}, {k<<5}, v6")
    A(f"v_bfe_u32 v6, v1, 1, 3\nv_xor_b32 v6, v6, v5\nv_lshlrev_b32 v6, 4, v6\nv_lshl_add_u32 v6, v4, 7, v6\nv_add_u32 v6, s{sM}, v6")
    for k in range(4): A(f"v_xor_b32 v{VXS[k]}, {k<<5}, v6")
    tr_lane_addr(VWR[0], 4, 224, 8, 2); A(f"v_add_u32 v{VWR[1]}, {14*3584}, v{VWR[0]}")
    A("s_waitcnt lgkmcnt(0)")
    stamp("karg")
    A(f"s_or_b32 s{sT}, s2, s{SW}\ns_cbranch_scc1 P1_NOTAG")
    A(f"s_bitset1_b32 s{sTAG+1}, 31\nv_mov_b32 v8, s{sTAG}\nv_mov_b32 v9, s{sTAG+1}\nv_mov_b32 v10, 0\nv_mov_b32 v11, 0\ns_mov_b64 exec, 1\nbuffer_atomic_cmpswap_x2 v[8:11], v10, {R(RDBG)}, 0 offen sc1\ns_mov_b64 exec, -1\nP1_NOTAG:")
    roles()
    stamp_flush()
    A(f"s_cmp_eq_u32 s{sSEC}, 2\ns_cbranch_scc1 P1_V")
    for isv in (0, 1):
        vm.q = []; lg.q = []
        if isv: A("P1_V:")
        def xread(p):
            for k in range(8 if p < 3 else 4):
                A(f"ds_read_b128 {v(XF + (8*p+k)*4, 4)}, v{(VXR if p < 3 else VXS)[k]} offset:{XBUF[p]}"); lg.issue(f"x{p}")
        def wread(ks, hds=range(4)):
            for hd in hds:
                for half in range(2):
                    A(f"ds_read_b64_tr_b16 {v(WF + (ks&1)*16 + hd*4 + half*2, 2)}, v{VWR[ks//14]} offset:{(ks%14)*3584 + half*224 + hd*56}"); lg.issue(f"w{ks}_{hd}")
        def gload():
            A(f"buffer_load_dwordx4 v[16:19], v4, {R(RWS)}, s{sU} offen sc1")
            for kq in range(4): A(f"buffer_load_dwordx4 {v(20+4*kq,4)}, v{5+kq}, {R(RWS)}, s{sV} offen sc1")
        for p in range(4):
            k0, k1 = 8*p, min(8*p + 8, 28)
            if p == 3:
                A(f"v_and_b32 v4, 31, v1\nv_lshlrev_b32 v4, 4, v4\ns_lshl_b32 s{sU}, s{sE}, 9\ns_add_u32 s{sU}, s{sU}, {WS_RST}\ns_lshl_b32 s{sV}, s{sWO}, 2\ns_add_u32 s{sV}, s{sV}, {WS_CSG}")
                A(f"v_min_u32 v5, 55, v1\nv_lshlrev_b32 v5, 4, v5\nv_add_u32 v6, 10752, v5\nv_add_u32 v7, 21504, v5\nv_add_u32 v8, 32256, v5\nv_mov_b32 v9, 0")
            A("s_barrier"); stamp(f"g{p}")
            xread(p); wread(k0, [0, 1, 2])
            if p == 3:
                A(f"buffer_load_dwordx2 {v(TAGV,2)}, v9, {R(RDBG)}, 0 offen sc1"); gload()
            lg.wait(f"x{p}")
            if p < 2: A("s_barrier")
            wread(k0, [3])
            for ks in range(k0, k1):
                x = v(XF + ks*4, 4)
                for hd in range(4):
                    lg.wait(f"w{ks}_{hd}")
                    w_ = v(WF + (ks&1)*16 + hd*4, 4); acc = v(ACC + 16*hd, 16)
                    A(f"{MFMA} {acc}, {x if isv else w_}, {w_ if isv else x}, {'0' if ks == 0 else acc}")
                    if ks + 1 < k1: wread(ks + 1, [hd])
        stamp("mfma_done")
        A("s_waitcnt vmcnt(5)")
        get_tag(TAGV, f"P1_T{isv}")
        L = A.label("P1_G")
        A(f"s_waitcnt vmcnt(0)")
        tagcheck([16, 20, 24, 28, 32], 9, 10, 11)
        A(f"s_cbranch_vccz {L}_x\nv_and_b32 v4, 31, v1\nv_lshlrev_b32 v4, 4, v4\ns_mov_b32 s{sTO}, 0x40000\n{L}:")
        gload()
        A(f"s_sub_u32 s{sTO}, s{sTO}, 1\ns_waitcnt vmcnt(0)\ns_cbranch_scc1 {L}_x")
        tagcheck([16, 20, 24, 28, 32], 9, 10, 11)
        A(f"s_cbranch_vccnz {L}\n{L}_x:")
        stamp("gran")
        A("v_add_f32 v20, v20, v24\nv_add_f32 v28, v28, v32\nv_add_f32 v22, v22, v26\nv_add_f32 v30, v30, v34\nv_add_f32 v20, v20, v28\nv_add_f32 v21, v22, v30")
        A(f"s_add_u32 s{sT}, s{sM}, 8192\nv_lshl_add_u32 v4, v1, 3, s{sT}\nds_write_b64 v4, v[20:21]\nv_lshrrev_b32 v5, 5, v1\nv_lshl_add_u32 v5, v5, 4, s{sT}")
        PK = 96
        A(f"s_lshl_b32 s{sU}, s{sHQ}, 8\ns_add_u32 s{sU}, s{sU}, s{sE}")
        if not isv:
            for hd in range(4):
                for g in range(4): A(f"ds_read_b128 {v(32+16*hd+4*g,4)}, v5 offset:{hd*112 + g*32}"); lg.issue(f"c{hd}")
            QS = DH ** -0.5 * math.log2(math.e)
            A(f"s_cmp_eq_u32 s{sSEC}, 0\ns_cselect_b32 s{sV}, {fl(QS)}, 1.0\ns_cselect_b32 s{sA}, 0, s{sONES}\ns_cselect_b32 s{sB}, 0, 0x3f80\ns_cselect_b32 s{sC}, {WS_Q}, {WS_KV}")
            A(f"s_add_u32 s{sD_}, s{sSEC}, 11\ns_lshl_b32 s{sU}, s{sU}, s{sD_}\ns_add_u32 s{sU}, s{sU}, s{sC}\ns_lshl_b32 s{sD_}, 64, s{sD_}")
            A(f"v_mul_f32 v16, s{sV}, v16\nv_mul_f32 v18, s{sV}, v18\nv_mov_b32 v12, s{sA}\nv_mov_b32 v13, s{sB}")
            for hd in range(4):
                lg.wait(f"c{hd}")
                c, ac = 32+16*hd, ACC+16*hd
                for r in range(0, 16, 2): A(f"v_pk_mul_f32 {v(c+r,2)}, {v(c+r,2)}, v[16:17] op_sel_hi:[1,0]")
                for r in range(0, 16, 2): A(f"v_pk_fma_f32 {v(ac+r,2)}, {v(ac+r,2)}, v[18:19], {v(c+r,2)} op_sel_hi:[1,0,1]")
                for r in range(8): A(f"v_cvt_pk_bf16_f32 v{PK+8*hd+r}, v{ac+2*r}, v{ac+2*r+1}")
                A(f"v_cndmask_b32 v{PK+8*hd+6}, v{PK+8*hd+6}, v12, s[{sHI}:{sHI+1}]\nv_cndmask_b32 v{PK+8*hd+7}, v{PK+8*hd+7}, v13, s[{sHI}:{sHI+1}]")
                for f in range(2): A(f"buffer_store_dwordx4 {v(PK+8*hd+4*f,4)}, v{VL}, {R(RWS)}, s{sU} offen offset:{f*1024} sc1")
                A(f"s_add_u32 s{sU}, s{sU}, s{sD_}")
        else:
            A(f"v_cndmask_b32 v6, v18, v16, s[{sHI}:{sHI+1}]\nv_lshl_add_u32 v4, v1, 2, s{sT}\nds_write_b32 v4, v6 offset:512")
            A(f"v_and_b32 v6, 31, v1\nv_lshl_add_u32 v4, v6, 2, s{sT}")
            for g in range(4): A(f"ds_read_b128 {v(32+4*g,4)}, v5 offset:{512 + g*32}\nds_read_b128 {v(48+4*g,4)}, v5 offset:{640 + g*32}")
            for hd in range(4): A(f"ds_read_b32 v{24+2*hd}, v4 offset:{hd*112}")
            A(f"s_lshl_b32 s{sU}, s{sU}, 12\ns_add_u32 s{sU}, s{sU}, {WS_KV + 2048}")
            A(f"v_cmp_eq_u32 vcc, 28, v6\nv_mov_b32 v13, s{sONES}\nv_cndmask_b32 v12, 0, v13, vcc\nv_mov_b32 v13, v12")
            for r in range(0, 16, 2): A(f"v_pk_mov_b32 {v(PK+r,2)}, v[12:13], v[12:13]")
            A(f"s_mov_b32 s{sA}, 0x0fffffff\ns_mov_b32 s{sA+1}, 0x0fffffff\ns_waitcnt lgkmcnt(0)")
            for hd in range(4):
                ac = ACC+16*hd; pk = PK + 8*(hd & 1)
                for r in range(0, 16, 2): A(f"v_pk_mul_f32 {v(64+r,2)}, {v(48+r,2)}, {v(24+2*hd,2)} op_sel_hi:[1,0]")
                for r in range(0, 16, 2): A(f"v_pk_fma_f32 {v(ac+r,2)}, {v(ac+r,2)}, {v(32+r,2)}, {v(64+r,2)}")
                A(f"s_mov_b64 exec, s[{sA}:{sA+1}]")
                for r in range(8): A(f"v_cvt_pk_bf16_f32 v{pk+r}, v{ac+2*r}, v{ac+2*r+1}")
                A("s_mov_b64 exec, -1")
                for f in range(2): A(f"buffer_store_dwordx4 {v(pk+4*f,4)}, v{VL}, {R(RWS)}, s{sU} offen offset:{f*1024} sc1")
                A(f"s_add_u32 s{sU}, s{sU}, {64*4096}")
        stamp("kvst"); stamp_flush()
        if not isv: A("s_branch P1_DONE")
    A("P1_DONE:")

def tilemax(sreg, T0, T1):
    A(f"v_max3_f32 v{T0}, v{sreg}, v{sreg+1}, v{sreg+2}\nv_max3_f32 v{T1}, v{sreg+3}, v{sreg+4}, v{sreg+5}")
    A(f"v_max3_f32 v{T0}, v{T0}, v{sreg+6}, v{sreg+7}\nv_max3_f32 v{T1}, v{T1}, v{sreg+8}, v{sreg+9}")
    A(f"v_max3_f32 v{T0}, v{T0}, v{sreg+10}, v{sreg+11}\nv_max3_f32 v{T1}, v{T1}, v{sreg+12}, v{sreg+13}")
    A(f"v_max3_f32 v{T0}, v{T0}, v{sreg+14}, v{sreg+15}")
def set_qpad(q, m, T0, T1, T2):
    A(f"v_sub_f32 v{T0}, 0, v{m}\nv_and_b32 v{T1}, 0xffff0000, v{T0}\nv_sub_f32 v{T0}, v{T0}, v{T1}")
    A(f"v_and_b32 v{T2}, 0xffff0000, v{T0}\nv_sub_f32 v{T0}, v{T0}, v{T2}\nv_lshrrev_b32 v{T0}, 16, v{T0}")
    A(f"v_lshrrev_b32 v{T1}, 16, v{T1}\nv_or_b32 v{T1}, v{T1}, v{T2}")
    A(f"v_cndmask_b32 v{q+6}, v{q+6}, v{T1}, s[{sHI}:{sHI+1}]\nv_cndmask_b32 v{q+7}, v{q+7}, v{T0}, s[{sHI}:{sHI+1}]")

XR, IR3 = 224, 232
VRD, VFL, VKV, VONE, VRB, VWO = [240, 241], 242, 243, 244, [246, 247], 248
VRW = [249, 250, 251, 252]
def addr_setup():
    tr_lane_addr(4, 5, 128, 4)
    A(f"v_bfe_u32 v5, v1, 3, 1\ns_lshr_b32 s{sT}, s{SW}, 1\nv_xor_b32 v5, s{sT}, v5")
    A(f"v_lshl_add_u32 v6, v5, 6, v4\nv_xor_b32 v5, 1, v5\nv_lshl_add_u32 v7, v5, 6, v4")
    A(f"v_add_u32 v{VRD[0]}, s{sW2W}, v6\nv_add_u32 v{VRD[1]}, s{sW2W}, v7\nv_add_u32 v{VRB[0]}, s{sRBW}, v6\nv_add_u32 v{VRB[1]}, s{sRBW}, v7")
    A(f"v_lshlrev_b32 v{VFL}, 7, v1\nv_mov_b32 v{VONE}, 0x3f80\nv_mov_b32 v{VONE+1}, 1.0")
    A(f"s_lshl_b32 s{sT}, s{sH}, 2\ns_add_u32 s{sT}, s{sT}, s{SW}\ns_lshl_b32 s{sT}, s{sT}, 16\ns_add_u32 s{sT}, s{sT}, {WS_KV}\nv_add_u32 v{VKV}, s{sT}, v{VL}")
    tr_lane_addr(VWO, 4, 64, 4); A(f"v_add_u32 v{VWO}, {RBUF}, v{VWO}\nv_add_u32 v{VRW[0]}, s{sRBW}, v{VL}")
    for t in range(1, 4):
        A(f"s_add_u32 s{sT}, s{SW}, {t}\ns_and_b32 s{sT}, s{sT}, 3\ns_mul_i32 s{sT}, s{sT}, 12288\ns_add_u32 s{sT}, s{sT}, {RBUF}\nv_add_u32 v{VRW[t]}, s{sT}, v{VL}")
    A("v_and_b32 v4, 31, v1\nv_lshrrev_b32 v5, 5, v1\nv_lshlrev_b32 v6, 3, v5\nv_sub_u32 v6, v4, v6")
    for p in range(2):
        for r in range(4):
            A(f"v_cmp_eq_u32 vcc, {16*p+2*r}, v6\nv_cmp_eq_u32 s[{sU}:{sU+1}], {16*p+2*r+1}, v6\nv_cndmask_b32 v{IR3+4*p+r}, 0, v{VONE}, vcc\nv_cndmask_b32 v{IR3+4*p+r}, v{IR3+4*p+r}, v{VONE+1}, s[{sU}:{sU+1}]")
    A("v_mul_u32_u24 v13, 896, v4\nv_lshl_add_u32 v13, v5, 4, v13")

def p2():
    Q, O, SS, PP, KV = 16, 48, [112, 128], [144, 152], 160
    M = [112, 113, 114, 115]; K0 = 120
    T0, T1, T2, T3 = 4, 5, 6, 7
    sKN = sB
    addr_setup()
    vm.wait_all(); stamp("kvdrain")
    A(f"s_barrier\ns_cmp_lg_u32 s{SW}, 0\ns_cbranch_scc1 P2_NOF")
    flag_store(sF[0]); A("P2_NOF:"); stamp_flush()
    A("s_branch P2_GO\nP2_START:")
    addr_setup()
    A("P2_GO:")
    A(f"s_mul_i32 s{sT}, s{sR3}, {32*896}\ns_lshl_b32 s{sU}, s{sC3}, 6\ns_add_u32 s{sT}, s{sT}, s{sU}\ns_lshl_b32 s{sV}, s{sI}, 2\ns_add_u32 s{sV}, s{sV}, s{SW}\ns_lshl_b32 s{sU}, s{sH}, 6")
    for p in range(2): A(f"buffer_load_dwordx4 {v(XR+4*p,4)}, v13, {R(RX)}, s{sT} offen offset:{32*p}")
    A(f"s_add_u32 s{sU}, s{sU}, s{sV}\ns_lshl_b32 s{sU}, s{sU}, 11")
    A(f"s_lshr_b32 s{sT}, s{sH}, 2\ns_lshl_b32 s{sT}, s{sT}, 13\ns_add_u32 s{sT}, s{sT}, {F1}\ns_lshl_b32 s{sA}, s{SW}, 9\ns_add_u32 s{sA}, s{sA}, 2048\ns_lshl_b32 s{sC}, s{sI}, 7")
    A(f"v_and_b32 v10, 3, v1\nv_lshl_add_u32 v10, v10, 7, s{sA}\nv_bfe_u32 v11, v1, 2, 1\nv_lshl_add_u32 v10, v11, 11, v10\nv_writelane_b32 v10, s{sC}, 8")
    poll(10, sT, 9, 8); stamp("s1")
    def kvload(n):
        pre = [f"s_mov_b32 s{sKN}, {n*4096}"]
        return pre + [f"buffer_load_dwordx4 {v(KV+16*(n&3)+4*f,4)}, v{VKV}, {R(RWS)}, s{sKN} offen offset:{f*1024} sc1" for f in range(4)]
    def emit(lines, tag):
        for ln in lines:
            A(ln)
            if ln.startswith("buffer_"): vm.issue(tag)
    for f in range(2): A(f"buffer_load_dwordx4 {v(Q+4*f,4)}, v{VL}, {R(RWS)}, s{sU} offen offset:{f*1024} sc1"); vm.issue("q")
    emit(kvload(0), "kv0")
    A("s_waitcnt vmcnt(2)"); stamp("qk0")
    A(f"{MFMA} {v(O,16)}, {v(KV,4)}, {v(Q,4)}, 0\n{MFMA} {v(O,16)}, {v(KV+4,4)}, {v(Q+4,4)}, {v(O,16)}")
    emit(kvload(1), "kv1")
    A(f"ds_write_b128 v{VRW[0]}, {v(Q,4)}")
    tilemax(O, T0, T1)
    A(f"v_max_f32 v{T0}, v{T0}, v{T1}\nv_mov_b32 v{T1}, v{T0}\nv_permlane32_swap_b32 v{T0}, v{T1}\nv_max_f32 v{T0}, v{T0}, v{T1}")
    set_qpad(Q, T0, T1, T2, T3)
    A(f"ds_write_b128 v{VRW[0]}, {v(Q+4,4)} offset:1024\ns_waitcnt lgkmcnt(0)")
    emit(kvload(2), "kv2")
    A("s_barrier")
    for t in range(1, 4): A(f"ds_read_b128 {v(Q+8*t,4)}, v{VRW[t]}\nds_read_b128 {v(Q+8*t+4,4)}, v{VRW[t]} offset:1024")
    emit(kvload(3), "kv3")
    A("P2_MAIN:")
    def qk(idx, part):
        n, t = idx >> 2, idx & 3; sr = SS[idx & 1]; k = KV + 16*(n & 3)
        return f"{MFMA} {v(sr,16)}, {v(k+4*part,4)}, {v(Q+8*t+4*part,4)}, {'0' if part == 0 else v(sr,16)}"
    def pv(idx, part):
        n, t = idx >> 2, idx & 3; k = KV + 16*(n & 3) + 8; o = O + 16*t
        return f"{MFMA} {v(o,16)}, {v(k+4*part,4)}, {v(PP[idx&1]+4*part,4)}, {'0' if (n == 0 and part == 0) else v(o,16)}"
    NI = 64
    A(qk(0, 0)); A(qk(0, 1)); A("s_waitcnt lgkmcnt(0)")
    for idx in range(NI):
        n, t = idx >> 2, idx & 3
        if idx in (16, 32, 48): stamp(f"a{idx}")
        if idx == 1: vm.wait("kv0")
        if env("BDEL", 0) and idx == env("BDEL", 0): A("s_barrier")
        if t == 3 and n + 1 < 16: vm.wait(f"kv{n+1}")
        mf = [qk(idx+1, 0) if idx+1 < NI else None, pv(idx-1, 0) if idx > 0 else None,
              qk(idx+1, 1) if idx+1 < NI else None, pv(idx-1, 1) if idx > 0 else None]
        sr, p = SS[idx & 1], PP[idx & 1]
        for q in range(4):
            if mf[q]: A(mf[q])
            for j in range(4): A(f"v_exp_f32 v{sr+4*q+j}, v{sr+4*q+j}")
            if q > 0:
                for j in range(2): A(f"v_cvt_pk_bf16_f32 v{p+2*(q-1)+j}, v{sr+4*(q-1)+2*j}, v{sr+4*(q-1)+2*j+1}")
        if t == 0 and 1 <= n < 13: emit(kvload(n + 3), f"kv{n+3}")
        for j in range(2): A(f"v_cvt_pk_bf16_f32 v{p+6+j}, v{sr+12+2*j}, v{sr+12+2*j+1}")
    A(pv(NI-1, 0)); A(pv(NI-1, 1)); stamp("aend")
    for t in (1, 2):
        for g in range(3): A(f"ds_write_b128 v{VRW[t]}, {v(O+16*t+4*g,4)} offset:{(t-1)*4096 + g*1024}")
    A(f"s_mov_b32 s{sT}, {fl(2.0**30)}")
    A(f"v_cmp_nlt_f32 s[{sA}:{sA+1}], v{O+12}, s{sT}\nv_cmp_nlt_f32 s[{sC}:{sC+1}], v{O+28}, s{sT}\ns_or_b32 s{sU}, s{sA+1}, s{sC+1}")
    A(f"v_cmp_nlt_f32 s[{sA}:{sA+1}], v{O+44}, s{sT}\nv_cmp_nlt_f32 s[{sC}:{sC+1}], v{O+60}, s{sT}\ns_or_b32 s{sU}, s{sU}, s{sA+1}\ns_or_b32 s{sU}, s{sU}, s{sC+1}")
    A(f"s_cselect_b32 s{sU}, 1.0, 0\nv_mov_b32 v{T0}, s{sU}")
    for t in range(4): A(f"v_cndmask_b32 v{O+16*t+13}, v{O+16*t+13}, v{T0}, s[{sHI}:{sHI+1}]")
    for g in range(3): A(f"ds_write_b128 v{VRW[3]}, {v(O+48+4*g,4)} offset:{2*4096 + g*1024}")
    for t in range(1, 4): A(f"ds_write_b128 v{VRW[t]}, {v(O+16*t+12,4)} offset:{(t-1)*4096 + 3*1024}")
    A(f"s_lshl_b32 s{sD_}, s{sI}, 2\ns_add_u32 s{sD_}, s{sD_}, s{SW}\ns_lshl_b32 s{sV}, s{sD_}, 4\ns_add_u32 s{sV}, s{sV}, s{sH}\ns_lshl_b32 s{sV}, s{sV}, 11\ns_add_u32 s{sV}, s{sV}, {WS_O}")
    A("s_waitcnt lgkmcnt(0)\ns_barrier")
    for g in (3, 0, 1, 2):
        for t in range(1, 4): A(f"ds_read_b128 {v(O+16*t+4*g,4)}, v{VRW[0]} offset:{(t-1)*4096 + g*1024}")
    def red(g):
        for r in (4*g, 4*g+2):
            A(f"v_pk_add_f32 {v(O+r,2)}, {v(O+r,2)}, {v(O+16+r,2)}\nv_pk_add_f32 {v(O+32+r,2)}, {v(O+32+r,2)}, {v(O+48+r,2)}")
        for r in (4*g, 4*g+2): A(f"v_pk_add_f32 {v(O+r,2)}, {v(O+r,2)}, {v(O+32+r,2)}")
    A("s_waitcnt lgkmcnt(9)"); red(3)
    A(f"v_readlane_b32 s{sT}, v{O+13}, 32\nv_mov_b32 v{T0}, v{O+12}\nv_mov_b32 v{T2}, v{O+12}\nv_permlane32_swap_b32 v{T0}, v{T2}\nv_rcp_f32 v{T2}, v{T2}")
    A(f"s_cmp_lg_u32 s{sT}, s{sRETRY}\ns_cbranch_scc1 P2_FALL\nP2_FIN:")
    for k, g in enumerate((0, 1, 2)):
        A(f"s_waitcnt lgkmcnt({6 - 3*k})"); red(g)
    for r in range(0, 16, 2): A(f"v_pk_mul_f32 {v(O+r,2)}, {v(O+r,2)}, {v(T2,2)} op_sel_hi:[1,0]")
    for r in range(8): A(f"v_cvt_pk_bf16_f32 v{O+16+r}, v{O+2*r}, v{O+2*r+1}")
    A(f"v_cndmask_b32 v{O+22}, v{O+22}, 0, s[{sHI}:{sHI+1}]\nv_cndmask_b32 v{O+23}, v{O+23}, 0, s[{sHI}:{sHI+1}]")
    sanitize(O+19, O+23)
    for f in range(2): A(f"buffer_store_dwordx4 {v(O+16+4*f,4)}, v{VL}, {R(RWS)}, s{sV} offen offset:{f*1024} sc1")
    stamp("ost"); stamp_flush()
    A("s_barrier")
    def fallback():
        A(f"P2_FALL:\ns_cmp_lg_u32 s{sRETRY}, 0\ns_cbranch_scc1 P2_FIN")
        A(f"s_mov_b32 s{sRETRY}, -1\ns_waitcnt vmcnt(0) lgkmcnt(0)")
        for t in range(4):
            A(f"v_cndmask_b32 v{Q+8*t+6}, v{Q+8*t+6}, 0, s[{sHI}:{sHI+1}]\nv_cndmask_b32 v{Q+8*t+7}, v{Q+8*t+7}, 0, s[{sHI}:{sHI+1}]\nv_mov_b32 v{M[t]}, 0xff800000")
        A(f"s_mov_b32 s{sU}, 0\nP2_MAXLOOP:")
        for f in range(2): A(f"buffer_load_dwordx4 {v(K0+4*f,4)}, v{VKV}, {R(RWS)}, s{sU} offen offset:{f*1024} sc1")
        A("s_waitcnt vmcnt(0)")
        for t in range(4):
            A(f"{MFMA} {v(O+16*t,16)}, {v(K0,4)}, {v(Q+8*t,4)}, 0\n{MFMA} {v(O+16*t,16)}, {v(K0+4,4)}, {v(Q+8*t+4,4)}, {v(O+16*t,16)}")
        for t in range(4):
            tilemax(O+16*t, T0, T1); A(f"v_max3_f32 v{M[t]}, v{M[t]}, v{T0}, v{T1}")
        A(f"s_add_u32 s{sU}, s{sU}, 4096\ns_cmp_lt_u32 s{sU}, {16*4096}\ns_cbranch_scc1 P2_MAXLOOP")
        A(f"s_barrier\nv_and_b32 v{T3}, 31, v1\nv_lshlrev_b32 v{T3}, 4, v{T3}")
        for t in range(4):
            A(f"v_mov_b32 v{T2}, v{M[t]}\nv_permlane32_swap_b32 v{M[t]}, v{T2}\nv_max_f32 v{M[t]}, v{M[t]}, v{T2}")
            A(f"s_add_u32 s{sT}, s{SW}, {t}\ns_and_b32 s{sT}, s{sT}, 3\ns_lshl_b32 s{sT}, s{sT}, 9\ns_add_u32 s{sT}, s{sT}, {RBUF}\ns_lshl_b32 s{sU}, s{SW}, 2\ns_add_u32 s{sU}, s{sU}, s{sT}")
            A(f"v_add_u32 v{K0+t}, s{sT}, v{T3}\nv_add_u32 v{T2}, s{sU}, v{T3}\nds_write_b32 v{T2}, v{M[t]}")
        A("s_waitcnt lgkmcnt(0)\ns_barrier")
        for t in range(4): A(f"ds_read_b128 {v(O+4*t,4)}, v{K0+t}")
        for n in range(4):
            for ln in kvload(n): A(ln)
        A("s_waitcnt vmcnt(0) lgkmcnt(0)\ns_barrier")
        for t in range(4):
            A(f"v_max3_f32 v{M[t]}, v{O+4*t}, v{O+4*t+1}, v{O+4*t+2}\nv_max_f32 v{M[t]}, v{M[t]}, v{O+4*t+3}")
            set_qpad(Q+8*t, M[t], T0, T1, T2)
        A("s_branch P2_MAIN")
    return fallback

def p3():
    OFR, D1, D2, TF = 16, 144, 160, 176
    T0, T1, T2, T3 = 8, 9, 10, 11
    A(f"{MFMA} {v(D1,16)}, {v(XR,4)}, {v(IR3,4)}, 0\n{MFMA} {v(D2,16)}, {v(IR3,4)}, {v(XR,4)}, 0")
    A(f"{MFMA} {v(D1,16)}, {v(XR+4,4)}, {v(IR3+4,4)}, {v(D1,16)}\n{MFMA} {v(D2,16)}, {v(IR3+4,4)}, {v(XR+4,4)}, {v(D2,16)}")
    A(f"s_lshl_b32 s{sB}, s{sR3}, 15\ns_add_u32 s{sB}, s{sB}, {WS_O}\nv_add_u32 v{T2}, s{sB}, v{VL}\ns_and_b32 s{sA}, s{sC3}, 7\ns_lshl_b32 s{sA}, s{sA}, 12")
    A("s_barrier")
    A(f"s_cmp_lt_u32 s{sC3}, 14\ns_cbranch_scc1 P3_GO\ns_barrier\ns_branch P3_END\nP3_GO:")
    vm.q = []; lg.q = []
    so = Stream("SO", 8, lambda g: [(OFR+16*g+4*k, T2, k*1024) for k in range(4)],
                lambda g: A(f"s_add_u32 s{sT}, s{sA}, {g*4096}\ns_and_b32 s{sT}, s{sT}, 0x7fff"), T0)
    NPRE = 3
    for m in range(NPRE): so.issue(m)
    def wread(ks):
        n, p = ks >> 1, ks & 1
        for half in range(2):
            A(f"ds_read_b64_tr_b16 {v(TF+4*(ks&3)+2*half,2)}, v{VWO} offset:{(n>>2)*12288 + (n&3)*2048 + (16*p+8*half)*64}"); lg.issue(f"w{ks}")
    wread(0); wread(1)
    so.check1(0); so.check2(0)
    for ks in range(32):
        lg.wait(f"w{ks}")
        if ks in (0, 16): stamp(f"p3_{ks}")
        o, wv = v(OFR+4*ks, 4), v(TF+4*(ks&3), 4)
        A(f"{MFMA} {v(D2,16)}, {wv}, {o}, {v(D2,16)}")
        if ks + 2 < 32: wread(ks + 2)
        A(f"{MFMA} {v(D1,16)}, {o}, {wv}, {v(D1,16)}")
        if ks % 4 == 0: so.issue(NPRE + ks//4)
        if ks % 4 == 2: so.check1(ks//4 + 1)
        if ks % 4 == 3: so.check2(ks//4 + 1)
    stamp("p3mm")
    G = 16
    A(f"s_lshl_b32 s{sB}, s{sR3}, 13\ns_add_u32 s{sB}, s{sB}, {WS_ST}\ns_lshl_b32 s{sT}, s{sC3}, 9\ns_add_u32 s{sT}, s{sT}, s{sB}")
    A(f"v_mov_b32 v{G+1}, s{sTAG}\nv_mov_b32 v{G+3}, s{sTAG+1}")
    A(f"v_pk_add_f32 v[20:21], {v(D2,2)}, {v(D2+2,2)}\nv_pk_mul_f32 v[22:23], {v(D2,2)}, {v(D2,2)}\nv_pk_fma_f32 v[22:23], {v(D2+2,2)}, {v(D2+2,2)}, v[22:23]")
    for r in range(4, 16, 2): A(f"v_pk_add_f32 v[20:21], v[20:21], {v(D2+r,2)}\nv_pk_fma_f32 v[22:23], {v(D2+r,2)}, {v(D2+r,2)}, v[22:23]")
    A(f"v_add_f32 v{G}, v20, v21\nv_add_f32 v{G+2}, v22, v23")
    A(f"v_mov_b32 v20, v{G}\nv_mov_b32 v22, v{G+2}\nv_permlane32_swap_b32 v{G}, v20\nv_permlane32_swap_b32 v{G+2}, v22\nv_add_f32 v{G}, v{G}, v20\nv_add_f32 v{G+2}, v{G+2}, v22")
    set_exec(0xFFFFFFFF)
    A(f"buffer_store_dwordx4 {v(G,4)}, v{VL}, {R(RWS)}, s{sT} offen sc1\ns_mov_b64 exec, -1")
    for r in range(8): A(f"v_cvt_pk_bf16_f32 v{24+r}, v{D2+2*r}, v{D2+2*r+1}")
    sanitize(27, 31)
    A(f"s_mul_i32 s{sT}, s{sR3}, 14\ns_add_u32 s{sT}, s{sT}, s{sC3}\ns_lshl_b32 s{sT}, s{sT}, 11\ns_add_u32 s{sT}, s{sT}, {WS_HF}")
    for p in range(2): A(f"buffer_store_dwordx4 {v(24+4*p,4)}, v{VL}, {R(RWS)}, s{sT} offen offset:{p*1024} sc1")
    A(f"v_and_b32 v{T0}, 31, v1\nv_lshlrev_b32 v{T0}, 4, v{T0}\nv_lshrrev_b32 v{T1}, 5, v1\nv_mul_u32_u24 v{T1}, 3584, v{T1}\nv_add_u32 v{T0}, v{T0}, v{T1}")
    A("s_barrier")
    if env("S3W", 1): A("s_waitcnt vmcnt(2)")
    stamp("s3pre")
    GR = 32
    A(f"s_mov_b32 s{sTO}, 0x40000\nP3_GL:")
    for k in range(7): A(f"buffer_load_dwordx4 {v(GR+4*k,4)}, v{T0}, {R(RWS)}, s{sB} offen offset:{k*512} sc1")
    A(f"s_sub_u32 s{sTO}, s{sTO}, 1\ns_waitcnt vmcnt(0)\ns_cbranch_scc1 P3_GX")
    tagcheck([GR+4*k for k in range(7)], T1, T2, T3)
    A("s_cbranch_vccnz P3_GL\nP3_GX:")
    vm.q = []
    stamp("s3")
    for k in range(1, 7): A(f"v_add_f32 v{GR}, v{GR}, v{GR+4*k}\nv_add_f32 v{GR+2}, v{GR+2}, v{GR+4*k+2}")
    m, q = GR, GR+2
    A(f"v_mov_b32 v{T0}, v{m}\nv_mov_b32 v{T1}, v{q}\nv_permlane32_swap_b32 v{m}, v{T0}\nv_permlane32_swap_b32 v{q}, v{T1}\nv_add_f32 v{m}, v{m}, v{T0}\nv_add_f32 v{q}, v{q}, v{T1}")
    A(f"v_mul_f32 v{m}, {fl(1.0/D)}, v{m}\nv_mul_f32 v{q}, {fl(1.0/D)}, v{q}\nv_fma_f32 v{q}, -v{m}, v{m}, v{q}\nv_max_f32 v{q}, 0, v{q}")
    A(f"v_add_f32 v{T0}, {fl(EPS)}, v{q}\nv_mul_f32 v{T0}, {fl(EPS)}, v{T0}\nv_add_f32 v{q}, v{q}, v{T0}\nv_rsq_f32 v{q}, v{q}\ns_add_u32 s{sT}, s{sRBW}, 8192\nv_mul_f32 v{m}, v{m}, v{q}")
    A(f"v_cndmask_b32 v{T0}, v{q}, v{m}, s[{sHI}:{sHI+1}]\nv_lshl_add_u32 v{T1}, v1, 2, s{sT}\nds_write_b32 v{T1}, v{T0}")
    A(f"v_lshrrev_b32 v{T2}, 5, v1\nv_lshl_add_u32 v{T2}, v{T2}, 4, s{sT}")
    for g in range(4): A(f"ds_read_b128 {v(64+4*g,4)}, v{T2} offset:{g*32}\nds_read_b128 {v(80+4*g,4)}, v{T2} offset:{128+g*32}")
    A(f"s_lshl_b32 s{sT}, s{sC3}, 17\ns_lshl_b32 s{sU}, s{sR3}, 11\ns_add_u32 s{sT}, s{sT}, s{sU}\ns_add_u32 s{sT}, s{sT}, {WS_HH}")
    for p in range(2):
        A(f"s_waitcnt lgkmcnt({4 - 4*p})")
        for r in range(8*p, 8*p+8, 2): A(f"v_pk_fma_f32 {v(D1+r,2)}, {v(D1+r,2)}, {v(64+r,2)}, {v(80+r,2)} neg_lo:[0,0,1] neg_hi:[0,0,1]")
        for r in range(4*p, 4*p+4): A(f"v_cvt_pk_bf16_f32 v{24+r}, v{D1+2*r}, v{D1+2*r+1}")
        sanitize(27+4*p)
        A(f"buffer_store_dwordx4 {v(24+4*p,4)}, v{VL}, {R(RWS)}, s{sT} offen offset:{p*1024} sc1")
    stamp("hhst"); stamp_flush()
    A("P3_END:")
    vm.q = []; lg.q = []

PRE, ACC = 128, 16
def preread():
    for n in range(14):
        for ti in range(2):
            for half in range(2):
                A(f"ds_read_b64_tr_b16 {v(PRE + 8*n + ti*4 + half*2, 2)}, v{VRD[ti]} offset:{n*2048 + half*1024}")

def p4():
    RING, NR = 80, 6
    T0, T1, BR, VH = 4, 5, 6, [14, 15]
    preread()
    A("s_waitcnt lgkmcnt(0)\ns_barrier")
    stamp("hhflag"); stamp_flush()
    A(f"s_cmp_lg_u32 s{sACT4}, 0\ns_cbranch_scc1 P4_GO\ns_barrier\ns_barrier\ns_barrier\ns_barrier\ns_branch P4_END\nP4_GO:")
    sFO, sRO = sA, sD_
    A(f"s_lshr_b32 s{sFO}, s{SW}, 1\ns_lshl_b32 s{sT}, s{sFT}, 1\ns_add_u32 s{sFO}, s{sFO}, s{sT}\ns_lshl_b32 s{sT}, s{sFO}, 6\nv_lshrrev_b32 v{T0}, 5, v1\nv_lshlrev_b32 v{T0}, 3, v{T0}")
    for g in range(4): A(f"buffer_load_dwordx2 {v(BR+2*g,2)}, v{T0}, {R(RB1)}, s{sT} offen offset:{g*16}")
    A(f"s_and_b32 s{sE}, s{SW}, 1\ns_lshl_b32 s{sT}, s{sDT4}, 1\ns_add_u32 s{sE}, s{sE}, s{sT}\ns_xor_b32 s{sU}, s{sE}, 1")
    A(f"s_lshl_b32 s{sT}, s{SW}, 15\ns_add_u32 s{sT}, s{sT}, {WS_HH}\ns_lshl_b32 s{sB}, s{sE}, 17\ns_add_u32 s{sB}, s{sB}, s{sT}\ns_lshl_b32 s{sC}, s{sU}, 17\ns_add_u32 s{sC}, s{sC}, s{sT}")
    A(f"v_add_u32 v{VH[0]}, s{sB}, v{VL}\nv_add_u32 v{VH[1]}, s{sC}, v{VL}")
    rot4(sRO); A(f"s_lshl_b32 s{sRO}, s{sRO}, 10")
    for sl in range(1, 4):
        A(f"s_xor_b32 s{sU}, s{SW}, {sl}\ns_mul_i32 s{sU}, s{sU}, 12288\ns_add_u32 s{sU}, s{sU}, {RBUF}\nv_add_u32 v{VRW[sl]}, s{sU}, v{VL}")
    dreg = lambda n, j: RING + (n % NR)*8 + 4*j
    dest = lambda n, j: v(dreg(n, j), 4)
    vm.q = []
    sh = Stream("SH", 16, lambda g: [(dreg(2*g+k, j), VH[j], k*1024) for k in range(2) for j in range(2)],
                lambda g: A(f"s_add_u32 s{sT}, s{sRO}, {g*2048}\ns_and_b32 s{sT}, s{sT}, 0x7fff"), T0)
    wreg = lambda n, ti: v(PRE + 8*(n if n < 14 else n & 3) + 4*ti, 4)
    def tread(n, ti):
        va, off = (VRB, (n-14)*2048) if n < 18 else (VRD, (n-18)*2048)
        for half in range(2): A(f"ds_read_b64_tr_b16 {v(PRE + 8*(n&3) + ti*4 + half*2, 2)}, v{va[ti]} offset:{off + half*1024}"); lg.issue(n)
    for g in range(NR//2): sh.issue(g)
    sh.check1(0); sh.check2(0)
    for n in range(32):
        if n == 0: stamp("p4first")
        if n in (8, 16, 24): stamp(f"p4_{n}")
        if n == 12: A("s_barrier")
        lg.wait(n)
        if n == 25: A("s_barrier")
        if n == 31: A("s_barrier")
        order = [(0, 0), (0, 1), (1, 0), (1, 1)] if n < 31 else [(0, 1), (1, 0), (1, 1), (0, 0)]
        for k, (ti, tj) in enumerate(order):
            acc = ACC + 16*(2*ti + tj)
            A(f"{MFMA} {v(acc,16)}, {wreg(n,ti)}, {dest(n,tj)}, {'0' if n == 0 else v(acc,16)}")
            if k < 2 and 14 <= n + 2 < 32: tread(n + 2, k)
            if n & 1 and k == 2: sh.check1(n//2 + 1)
        if n & 1: sh.check2(n//2 + 1); sh.issue(n//2 + NR//2)
    stamp("p4mm")
    for sl in (1, 2, 3):
        for g in range(4): A(f"ds_write_b128 v{VRW[sl]}, {v(ACC+16*sl+4*g,4)} offset:{(sl-1)*4096 + g*1024}")
    for j in range(8):
        A(f"v_lshlrev_b32 v80, 16, v{BR+j}\nv_and_b32 v81, 0xffff0000, v{BR+j}\nv_pk_add_f32 {v(ACC+2*j,2)}, {v(ACC+2*j,2)}, v[80:81]")
    c1 = -2.0*math.sqrt(2.0/math.pi)*math.log2(math.e); c2 = c1*0.044715
    A(f"v_mov_b32 v82, {fl(c2)}\nv_mov_b32 v84, {fl(c1)}")
    A(f"s_mul_i32 s{sT}, s{sE}, {112*1024}\ns_lshl_b32 s{sU}, s{sFO}, 11\ns_add_u32 s{sT}, s{sT}, s{sU}\ns_add_u32 s{sT}, s{sT}, {WS_G}")
    A("s_waitcnt lgkmcnt(0)\ns_barrier")
    for g in range(4):
        for sl in range(1, 4): A(f"ds_read_b128 {v(ACC+16*sl+4*g,4)}, v{VRW[0]} offset:{(sl-1)*4096 + g*1024}")
    for g in range(4):
        A(f"s_waitcnt lgkmcnt({9-3*g})")
        rs = (16+4*g, 18+4*g)
        for r in rs: A(f"v_pk_add_f32 {v(r,2)}, {v(r,2)}, {v(r+16,2)}\nv_pk_add_f32 {v(r+32,2)}, {v(r+32,2)}, {v(r+48,2)}")
        for r in rs: A(f"v_pk_add_f32 {v(r,2)}, {v(r,2)}, {v(r+32,2)}")
        for r in rs: A(f"v_pk_mul_f32 {v(r+16,2)}, {v(r,2)}, {v(r,2)}")
        for r in rs: A(f"v_pk_fma_f32 {v(r+16,2)}, {v(r+16,2)}, v[82:83], v[84:85] op_sel_hi:[1,0,0]")
        for r in rs: A(f"v_pk_mul_f32 {v(r+16,2)}, {v(r+16,2)}, {v(r,2)}")
        for r in range(32+4*g, 36+4*g): A(f"v_exp_f32 v{r}, v{r}")
        for r in rs: A(f"v_pk_add_f32 {v(r+16,2)}, {v(r+16,2)}, 1.0 op_sel_hi:[1,0]")
        for r in range(32+4*g, 36+4*g): A(f"v_rcp_f32 v{r}, v{r}")
        for r in rs: A(f"v_pk_mul_f32 {v(r,2)}, {v(r,2)}, {v(r+16,2)}")
        for k, r in enumerate(rs): A(f"v_cvt_pk_bf16_f32 v{88+2*g+k}, v{r}, v{r+1}")
        if g & 1: sanitize(89+2*g)
        if g & 1: A(f"buffer_store_dwordx4 {v(88+4*(g>>1),4)}, v{VL}, {R(RWS)}, s{sT} offen offset:{(g>>1)*1024} sc1")
    stamp("gst"); stamp_flush()
    A("P4_END:\ns_barrier")
    vm.q = []; lg.q = []
    preread()
    A("s_waitcnt lgkmcnt(0)\ns_barrier")
    stamp("gflag"); stamp_flush()

def p5():
    T0, T1, T2 = 4, 5, 6
    RING, NR, HR, IR, VO, B2R, VG, TC = 80, 6, 64, 246, 3, 8, [12, 13], 254
    A(f"s_cmp_ge_u32 s{sJ}, 28\ns_cbranch_scc1 K_FIN")
    sGC = sC
    A(f"s_and_b32 s{sE}, s{SW}, 1\ns_lshl_b32 s{sT}, s{sDT5}, 1\ns_add_u32 s{sE}, s{sE}, s{sT}\ns_xor_b32 s{sU}, s{sE}, 1")
    A(f"s_lshr_b32 s{sV}, s{SW}, 1\ns_lshl_b32 s{sT}, s{sST}, 1\ns_add_u32 s{sV}, s{sV}, s{sT}\ns_mul_i32 s{sV}, s{sV}, 14\ns_add_u32 s{sV}, s{sV}, s{sE}\ns_lshl_b32 s{sV}, s{sV}, 11\ns_add_u32 s{sV}, s{sV}, {WS_HF}")
    vm.q = []
    A(f"v_lshrrev_b32 v{T0}, 3, v0\nv_mul_u32_u24 v{VO}, 896, v{T0}\nv_and_b32 v{T1}, 7, v0\nv_lshl_add_u32 v{VO}, v{T1}, 4, v{VO}\nv_lshlrev_b32 v{T0}, 1, v{T0}\ns_lshl_b32 s{sT}, s{sST}, 7")
    A(f"buffer_load_ushort v{B2R}, v{T0}, {R(RB2)}, s{sT} offen\nbuffer_load_ushort v{B2R+2}, v{T0}, {R(RB2)}, s{sT} offen offset:64")
    sx = Stream("SX", 1, lambda g: [(HR+4*p, VL, p*1024) for p in range(2)], lambda g: A(f"s_mov_b32 s{sT}, s{sV}"), TC)
    sx.issue(0)
    A(f"s_mul_i32 s{sT}, s{SW}, {28*1024}\ns_add_u32 s{sT}, s{sT}, {WS_G}\ns_mul_i32 s{sA}, s{sE}, {112*1024}\ns_add_u32 s{sA}, s{sA}, s{sT}\ns_mul_i32 s{sB}, s{sU}, {112*1024}\ns_add_u32 s{sB}, s{sB}, s{sT}")
    A(f"v_add_u32 v{VG[0]}, s{sA}, v{VL}\nv_add_u32 v{VG[1]}, s{sB}, v{VL}")
    rot5(sGC); A(f"s_lshl_b32 s{sGC}, s{sGC}, 10")
    dreg = lambda n, j: RING + (n % NR)*8 + 4*j
    dest = lambda n, j: v(dreg(n, j), 4)
    sg = Stream("SG", 14, lambda g: [(dreg(2*g+k, j), VG[j], k*1024) for k in range(2) for j in range(2)],
                lambda g: A(f"s_add_u32 s{sT}, s{sGC}, {g*2048}\ns_sub_u32 s{sD_}, s{sT}, {28*1024}\ns_min_u32 s{sT}, s{sT}, s{sD_}"), TC)
    for g in range(NR//2): sg.issue(g)
    A(f"v_and_b32 v{T0}, 31, v1\nv_lshrrev_b32 v{T1}, 5, v1\nv_lshlrev_b32 v{T1}, 2, v{T1}\nv_sub_u32 v{T0}, v{T0}, v{T1}")
    for p in range(2):
        for r in range(4):
            d0 = 16*p + 8*(r >> 1) + 2*(r & 1)
            A(f"v_cmp_eq_u32 vcc, {d0}, v{T0}\nv_cmp_eq_u32 s[{sA}:{sA+1}], {d0+1}, v{T0}\nv_cndmask_b32 v{IR+4*p+r}, 0, v{VONE}, vcc\nv_cndmask_b32 v{IR+4*p+r}, v{IR+4*p+r}, v{VONE+1}, s[{sA}:{sA+1}]")
    VWA = [4, 5, 6, 7]; VRA = [14, 15]
    A(f"v_and_b32 v14, 31, v1\nv_mul_u32_u24 v14, 272, v14\nv_lshrrev_b32 v15, 5, v1\nv_lshl_add_u32 v14, v15, 4, v14\nv_add_u32 v14, s{sW2W}, v14")
    for sl in range(4):
        A(f"s_xor_b32 s{sT}, s{SW}, {sl}\ns_lshr_b32 s{sU}, s{sT}, 1\ns_mul_i32 s{sU}, s{sU}, {32*272}\ns_and_b32 s{sT}, s{sT}, 1\ns_lshl_b32 s{sT}, s{sT}, 7\ns_add_u32 s{sT}, s{sT}, s{sU}\nv_add_u32 v{VWA[sl]}, s{sT}, v14")
    A(f"v_lshrrev_b32 v14, 3, v0\nv_mul_u32_u24 v14, 272, v14\nv_and_b32 v15, 7, v0\nv_lshl_add_u32 v14, v15, 5, v14\nv_add_u32 v15, {2*28672}, v14")
    sx.check1(0); sx.check2(0)
    A(f"{MFMA} {v(ACC,16)}, {v(IR,4)}, {v(HR,4)}, 0\n{MFMA} {v(ACC,16)}, {v(IR+4,4)}, {v(HR+4,4)}, {v(ACC,16)}")
    A(f"v_lshlrev_b32 v{B2R}, 16, v{B2R}\nv_lshlrev_b32 v{B2R+2}, 16, v{B2R+2}")
    wreg = lambda n, ti: v(PRE + 8*(n if n < 14 else n & 3) + 4*ti, 4)
    def tread(n, ti):
        for half in range(2): A(f"ds_read_b64_tr_b16 {v(PRE + 8*(n&3) + ti*4 + half*2, 2)}, v{VRD[ti]} offset:{(n-14)*2048 + half*1024}"); lg.issue(n)
    sg.check1(0); sg.check2(0)
    for n in range(28):
        if n == 0: stamp("p5first")
        if n in (7, 14, 21): stamp(f"p5_{n}")
        if n == 12: A("s_barrier")
        lg.wait(n)
        for k, (ti, tj) in enumerate([(0, 0), (0, 1), (1, 0), (1, 1)]):
            acc = ACC + 16*(2*ti + tj)
            A(f"{MFMA} {v(acc,16)}, {dest(n,tj)}, {wreg(n,ti)}, {'0' if n == 0 and k else v(acc,16)}")
            if k < 2 and 14 <= n + 2 < 28: tread(n + 2, k)
            if n & 1 and k == 2: sg.check1(n//2 + 1)
        if n & 1: sg.check2(n//2 + 1); sg.issue(n//2 + NR//2)
    A(f"s_mul_i32 s{sT}, s{sST}, {64*896}\ns_lshl_b32 s{sU}, s{sDT5}, 7\ns_add_u32 s{sT}, s{sT}, s{sU}\ns_add_u32 s{sU}, s{sT}, {32*896}")
    stamp("p5mm")
    for sl in range(4):
        for g in range(4): A(f"ds_write_b128 v{VWA[sl]}, {v(ACC+16*sl+4*g,4)} offset:{g*32}")
    A("s_waitcnt lgkmcnt(0)\ns_barrier")
    for rr in range(2):
        for w in range(4):
            for q in range(2):
                A(f"ds_read_b128 {v(16+16*w+8*rr+4*q,4)}, v{VRA[w>>1]} offset:{(w&1)*28672 + rr*32*272 + q*16}")
    for rr in range(2):
        A(f"s_waitcnt lgkmcnt({8 if rr == 0 else 0})")
        rs = range(16+8*rr, 24+8*rr, 2)
        for r in rs: A(f"v_pk_add_f32 {v(r,2)}, {v(r,2)}, {v(r+16,2)}\nv_pk_add_f32 {v(r+32,2)}, {v(r+32,2)}, {v(r+48,2)}")
        for r in rs: A(f"v_pk_add_f32 {v(r,2)}, {v(r,2)}, {v(B2R+2*rr,2)} op_sel_hi:[1,0]")
        for r in rs: A(f"v_pk_add_f32 {v(r,2)}, {v(r,2)}, {v(r+32,2)}")
        for r in range(4): A(f"v_cvt_pk_bf16_f32 v{80+4*rr+r}, v{16+8*rr+2*r}, v{17+8*rr+2*r}")
        A(f"buffer_store_dwordx4 {v(80+4*rr,4)}, v{VO}, {R(ROUT)}, s{[sT,sU][rr]} offen")
    stamp("outst"); stamp_flush()
    if env("DIAGSPIN", 0):
        A(f"DSP:\ns_memrealtime s[{sA}:{sA+1}]\ns_waitcnt lgkmcnt(0)\ns_sub_u32 s{sA}, s{sA}, s{72 if env('DIAG0', 0) else sTAG}\ns_cmp_lt_u32 s{sA}, {env('DIAGSPIN', 0)}\ns_cbranch_scc1 DSP")
    A("K_FIN:")
    if STAMP:
        A("s_waitcnt vmcnt(0)"); stamp("end"); A(f"s_memrealtime s[{sA}:{sA+1}]"); stamp_flush()
        A(f"v_writelane_b32 v{VST}, s72, 62\nv_writelane_b32 v{VST}, s{sA}, 63")
        A(f"s_lshl_b32 s{sT}, s2, 3\ns_add_u32 s{sT}, s{sT}, s{sW8}\ns_lshl_b32 s{sT}, s{sT}, 8\ns_add_u32 s{sT}, s{sT}, {WS_STAMP}\nv_lshlrev_b32 v4, 2, v1\nbuffer_store_dword v{VST}, v4, {R(RWS)}, s{sT} offen")
    A("K_END:\ns_endpgm")

PZ = 192
def poison_all(lab):
    for r in range(4): A(f"v_mov_b32 v{PZ+r}, -1")
    def poison():
        for p in range(2): A(f"buffer_store_dwordx4 {v(PZ,4)}, v{VL}, {R(RWS)}, s{sT} offen offset:{p*1024} sc1")
    A(f"s_lshl_b32 s{sT}, s{sI}, 2\ns_add_u32 s{sT}, s{sT}, s{SW}\ns_lshl_b32 s{sT}, s{sT}, 4\ns_add_u32 s{sT}, s{sT}, s{sH}\ns_lshl_b32 s{sT}, s{sT}, 11\ns_add_u32 s{sT}, s{sT}, {WS_O}")
    poison()
    A(f"s_cmp_ge_u32 s{sC3}, 14\ns_cbranch_scc1 {lab}1")
    A(f"s_mul_i32 s{sT}, s{sR3}, 14\ns_add_u32 s{sT}, s{sT}, s{sC3}\ns_lshl_b32 s{sT}, s{sT}, 11\ns_add_u32 s{sT}, s{sT}, {WS_HF}"); poison()
    A(f"s_lshl_b32 s{sT}, s{sC3}, 17\ns_lshl_b32 s{sU}, s{sR3}, 11\ns_add_u32 s{sT}, s{sT}, s{sU}\ns_add_u32 s{sT}, s{sT}, {WS_HH}"); poison()
    A(f"{lab}1:\ns_cmp_eq_u32 s{sACT4}, 0\ns_cbranch_scc1 {lab}2")
    A(f"s_and_b32 s{sT}, s{SW}, 1\ns_lshl_b32 s{sU}, s{sDT4}, 1\ns_add_u32 s{sT}, s{sT}, s{sU}\ns_mul_i32 s{sT}, s{sT}, {112*1024}\ns_lshr_b32 s{sU}, s{SW}, 1\ns_lshl_b32 s{sV}, s{sFT}, 1\ns_add_u32 s{sU}, s{sU}, s{sV}\ns_lshl_b32 s{sU}, s{sU}, 11\ns_add_u32 s{sT}, s{sT}, s{sU}\ns_add_u32 s{sT}, s{sT}, {WS_G}"); poison()
    A(f"{lab}2:")

def bprog():
    NT = env("NT", 0); nt = " nt" if NT else ""
    nt1 = " nt" if env("NT1", 0) else ""
    VXD = [16, 17, 18, 19]; VXE = [20, 21]; VWD = list(range(22, 29))
    sWO, sXO, sM, sWM = sA, sB, sC, sD_
    sXP, sWP = [sW1, sW1S, sW1E], [sW2, sW2S, sW2E]
    A("B_P1:"); vm.q = []; lg.q = []
    p1_common()
    A(f"s_mul_i32 s{sXO}, s{sE}, {32*896}\ns_lshl_b32 s{sWM}, s{SW}, 10")
    A("v_lshrrev_b32 v4, 4, v1\nv_and_b32 v5, 15, v1\nv_xor_b32 v5, v5, v4\nv_mul_u32_u24 v6, 896, v4")
    for j in range(4): A(f"v_xor_b32 v7, {4*j}, v5\nv_lshl_add_u32 v7, v7, 4, v6\nv_add_u32 v{VXD[j]}, {j*4*896 - j*1024}, v7")
    A(f"s_lshr_b32 s{sT}, s{sJ}, 2\ns_and_b32 s{sU}, s{sJ}, 3\ns_add_u32 s{sT}, s{sT}, s{sU}\ns_mul_i32 s{sU}, s{sT}, 11\ns_lshr_b32 s{sU}, s{sU}, 5\ns_mul_i32 s{sU}, s{sU}, 3\ns_sub_u32 s{sT}, s{sT}, s{sU}")
    if not env("P1ROT", 1): A(f"s_mov_b32 s{sT}, 0")
    for p in range(3):
        A(f"s_lshl_b32 s{sU}, s{sT}, 8\ns_add_u32 s{sXP[p]}, s{sXO}, s{sU}\ns_mul_i32 s{sU}, s{sT}, {128*2688}\ns_add_u32 s{sWP[p]}, s{sWO}, s{sU}")
        if p < 2: A(f"s_add_u32 s{sT}, s{sT}, 1\ns_cmp_eq_u32 s{sT}, 3\ns_cselect_b32 s{sT}, 0, s{sT}")
    def xpiece(p):
        if p < 3:
            for j in range(8):
                if j % 4 == 0: A(f"s_add_u32 m0, s{sM}, {XBUF[p] + (j>>2)*4096}\ns_add_u32 s{sV}, s{sXP[p]}, {(j>>2)*16*896}")
                A(f"buffer_load_dwordx4 v{VXD[j&3]}, {R(RX)}, s{sV} offen offset:{(j&3)*1024}{nt1} lds"); vm.issue(f"x{p}")
        else:
            for j in range(4):
                A(f"s_add_u32 m0, s{sM}, {XBUF[p] + j*1024}\ns_add_u32 s{sV}, s{sXO}, {(j>>1)*16*896 + 768}\nbuffer_load_dwordx4 v{VXE[j&1]}, {R(RX)}, s{sV} offen{nt1} lds"); vm.issue(f"x{p}")
    def wdma(j):
        g = j // 7
        if g == 3 and j == 21: A(f"s_add_u32 s{sT}, s{sWO}, {3*128*2688}")
        A(f"s_add_u32 m0, s{sWM}, {j*4096}\nbuffer_load_dwordx4 v{VWD[j%7]}, {R(RWQ)}, s{sWP[g] if g < 3 else sT} offen{nt1} lds"); vm.issue(f"w{g}")
    A("s_waitcnt lgkmcnt(0)")
    xpiece(0)
    for j in range(7):
        A(f"v_add_u32 v4, {256*j}, v0\nv_mul_u32_u24 v5, 4682, v4\nv_lshrrev_b32 v5, 16, v5\nv_mul_u32_u24 v6, 14, v5\nv_sub_u32 v4, v4, v6")
        A(f"v_and_b32 v6, 0xf8, v5\nv_and_b32 v7, 1, v5\nv_lshl_add_u32 v6, v7, 2, v6\nv_bfe_u32 v7, v5, 1, 2\nv_add_u32 v6, v6, v7\nv_mul_u32_u24 v6, 2688, v6\nv_lshl_add_u32 v{VWD[j]}, v4, 4, v6")
        wdma(j)
    xpiece(1)
    A("v_lshrrev_b32 v4, 3, v1\nv_mul_u32_u24 v6, 896, v4\nv_lshrrev_b32 v4, 4, v1\nv_and_b32 v5, 7, v1\nv_xor_b32 v5, v5, v4")
    for j in range(2): A(f"v_xor_b32 v7, {4*j}, v5\nv_lshl_add_u32 v7, v7, 4, v6\nv_add_u32 v{VXE[j]}, {j*8*896}, v7")
    prologue2()
    vm.wait("w0"); A("s_barrier\ns_barrier")
    for j in range(7, 14): wdma(j)
    xpiece(2)
    vm.wait("w1"); A("s_barrier\ns_barrier")
    for j in range(14, 21): wdma(j)
    xpiece(3)
    for j in range(21, 25): wdma(j)
    A("s_waitcnt lgkmcnt(0)")
    roles(touch=False)
    vm.wait("w2"); A("s_barrier")
    vm.wait_all()
    poison_all("B_PZA")
    A("s_barrier\ns_branch B_P2R")

def bprog2():
    NT = env("NT", 0); nt = " nt" if NT else ""
    A("B_P2:"); vm.q = []
    if STAMP: A("v_mov_b32 v15, -1\nB_P2S:"); st["v"] = 15
    roles(touch=False)
    poison_all("B_PZB")
    A("B_P2R:")
    if STAMP: A("s_cmp_ge_u32 s51, 24\ns_cbranch_scc1 B_P2T\nv_mov_b32 v15, -1\nB_P2T:")
    W1B, WOR, W2R0 = 16, 160, 192
    VT1, VT2, VTO, VDW, VDR = [4, 5], [6, 7], [8, 9], 10, 11
    A("v_lshrrev_b32 v12, 3, v1\nv_bfe_u32 v13, v1, 4, 1\nv_lshlrev_b32 v13, 2, v13\nv_and_b32 v14, 7, v1\nv_xor_b32 v14, v14, v13\nv_lshlrev_b32 v14, 4, v14")
    A(f"v_mul_u32_u24 v13, 3584, v12\nv_add_u32 v{VT1[0]}, v13, v14\nv_add_u32 v{VT1[1]}, {8*3584}, v{VT1[0]}\nv_lshl_add_u32 v{VT2[0]}, v12, 12, v14\nv_add_u32 v{VT2[1]}, {8*4096}, v{VT2[0]}")
    A(f"v_lshrrev_b32 v12, 2, v1\nv_mul_u32_u24 v12, 896, v12\nv_and_b32 v13, 3, v1\nv_lshl_add_u32 v{VTO[0]}, v13, 4, v12\nv_add_u32 v{VTO[1]}, {16*896}, v{VTO[0]}")
    A(f"v_add_u32 v{VDW}, s{sW2W}, v{VL}\nv_add_u32 v{VDR}, s{sRBW}, v{VL}")
    A(f"s_mul_i32 s{sW1S}, s{SW}, {512*3584}\ns_lshl_b32 s{sT}, s{sFT}, 7\ns_add_u32 s{sW1S}, s{sW1S}, s{sT}\ns_add_u32 s{sW1E}, s{sW1S}, {512*3584}")
    rot4(sT); A(f"s_mul_i32 s{sT}, s{sT}, {16*3584}\ns_add_u32 s{sW1}, s{sW1S}, s{sT}")
    A(f"s_mul_i32 s{sW2S}, s{SW}, {448*4096}\ns_lshl_b32 s{sT}, s{sST}, 7\ns_add_u32 s{sW2S}, s{sW2S}, s{sT}\ns_add_u32 s{sW2E}, s{sW2S}, {448*4096}")
    rot5(sT); A(f"s_lshl_b32 s{sT}, s{sT}, 16\ns_add_u32 s{sW2}, s{sW2S}, s{sT}")
    TH = env("BTH", 4)
    def adv(cur, st_, en, step): A(f"s_add_u32 s{cur}, s{cur}, {step}\ns_cmp_eq_u32 s{cur}, s{en}\ns_cselect_b32 s{cur}, s{st_}, s{cur}")
    def w2reg(n): return W2R0 + 8*n if n < 8 else (WOR + 8*(n-8) if n < 12 else W1B + 8*(n-12))
    def w2load(n, th=None):
        for j in range(2): A(f"buffer_load_dwordx4 {v(w2reg(n)+4*j,4)}, v{VT2[j]}, {R(RW2)}, s{sW2} offen{nt}"); vm.issue(f"v{n}")
        adv(sW2, sW2S, sW2E, 16*4096)
        if th: A(f"s_waitcnt vmcnt({th})")
    A(f"s_and_b32 s{sT}, s{sC3}, 7\ns_lshl_b32 s{sT}, s{sT}, 1\ns_lshl_b32 s{sB}, s{SW}, 2\ns_add_u32 s{sB}, s{sB}, s{sT}\ns_min_u32 s{sC}, s{sC3}, 13\ns_lshl_b32 s{sC}, s{sC}, 6")
    A(f"s_cmp_ge_u32 s{sJ}, 24\ns_cbranch_scc1 B_NOKV\ns_barrier\nB_NOKV:\ns_barrier")
    if env("BDEL", 0): A("s_barrier")
    stamp("b_go")
    A(f"v_mov_b32 v12, 0\nbuffer_load_dwordx2 v[{PZ+4}:{PZ+5}], v12, {R(RDBG)}, 0 offen sc1\nv_mov_b32 v13, s{sF[1]}\nv_writelane_b32 v13, s{sF[2]}, 1\nv_writelane_b32 v13, s{sF[3]}, 2\ns_waitcnt vmcnt(0)")
    A(f"v_readfirstlane_b32 s{sTAG}, v{PZ+4}\nv_readfirstlane_b32 s{sTAG+1}, v{PZ+5}")
    A(f"s_cmp_lg_u32 s{sACT4}, 0\ns_cselect_b32 exec_lo, 7, 3\ns_mov_b32 exec_hi, 0\nbuffer_store_dwordx2 v[{PZ+4}:{PZ+5}], v13, {R(RWS)}, 0 offen sc1\ns_mov_b64 exec, -1")
    W2T = env("W2T", 2)
    A(f"v_lshlrev_b32 v12, 7, v1\ns_lshl_b32 s{sA}, s2, 2\ns_add_u32 s{sA}, s{sA}, s{SW}\ns_mul_i32 s{sA}, s{sA}, {56*128}")
    for n in range(32):
        for j in range(2):
            if n < 14: A(f"s_add_u32 m0, s{sW2W}, {n*2048 + j*1024}\nbuffer_load_dwordx4 v{VT1[j]}, {R(RW1)}, s{sW1} offen{nt} lds")
            else: A(f"buffer_load_dwordx4 {v(W1B+8*(n-14)+4*j,4)}, v{VT1[j]}, {R(RW1)}, s{sW1} offen{nt}")
        adv(sW1, sW1S, sW1E, 16*3584); A(f"s_waitcnt vmcnt({TH})")
        if W2T and n % 4 == 0 and n // 4 < W2T:
            nl = 56 // W2T
            set_exec(((1 << nl) - 1) << (nl*(n//4))); A(f"buffer_load_dword v14, v12, {R(RW2)}, s{sA} offen\ns_mov_b64 exec, -1")
        if n == 16: TH = env("BTH2", 8)
        if n in (2, 4, 8, 16, 24): stamp(f"b_{n}")
        if n in (9, 11, 13, 15):
            k = (n - 9) // 2
            A(f"s_add_u32 s{sT}, s{sB}, {k}\ns_and_b32 s{sT}, s{sT}, 15\ns_mul_i32 s{sT}, s{sT}, {28*896}\ns_add_u32 s{sT}, s{sT}, s{sC}")
            for j in range(2): A(f"buffer_load_dwordx4 {v(WOR+8*k+4*j,4)}, v{VTO[j]}, {R(RWO)}, s{sT} offen")
            A(f"s_waitcnt vmcnt({TH})")
        if n >= 16 and n % 2 == 1: w2load((n - 16) // 2, TH)
    stamp("b_w1")
    A(f"s_lshl_b32 s{sT}, s{sR3}, 11\ns_add_u32 s{sT}, s{sT}, {F2}\nv_lshl_add_u32 v12, v1, 7, s{sT}")
    A(f"s_lshl_b32 s{sT}, s{sDT4}, 14\ns_lshl_b32 s{sU}, s{SW}, 11\ns_add_u32 s{sT}, s{sT}, s{sU}\ns_add_u32 s{sT}, s{sT}, {F4}")
    A(f"v_and_b32 v13, 15, v1\nv_lshl_add_u32 v13, v13, 7, s{sT}\nv_lshrrev_b32 v14, 5, v1\nv_lshl_add_u32 v13, v14, 13, v13\nv_cmp_lt_u32 vcc, 15, v1\nv_cndmask_b32 v12, v12, v13, vcc\ns_mov_b32 s{sV}, 0")
    poll(12, sV, 48, 4 if False else 8)
    A(f"s_mul_i32 s{sT}, s{sDT5}, 112\ns_mul_i32 s{sU}, s{SW}, 28\ns_add_u32 s{sT}, s{sT}, s{sU}\ns_lshl_b32 s{sT}, s{sT}, 7\ns_add_u32 s{sT}, s{sT}, {F5}\nv_lshl_add_u32 v12, v1, 7, s{sT}")
    A(f"s_and_b32 s{sT}, s{SW}, 1\ns_lshl_b32 s{sU}, s{sDT5}, 1\ns_add_u32 s{sT}, s{sT}, s{sU}\ns_lshl_b32 s{sT}, s{sT}, 6\ns_lshr_b32 s{sU}, s{SW}, 1\ns_add_u32 s{sT}, s{sT}, s{sU}\ns_lshl_b32 s{sU}, s{sST}, 1\ns_add_u32 s{sT}, s{sT}, s{sU}\ns_lshl_b32 s{sT}, s{sT}, 7\ns_add_u32 s{sT}, s{sT}, {F4}\nv_writelane_b32 v12, s{sT}, 28")
    poll(12, sV, 29, 8)
    stamp("b_done"); stamp_flush()
    A(f"v_min_u32 v12, 5, v1\nv_lshlrev_b32 v12, 12, v12\nv_add_u32 v12, {RBUF + 3*1024 + 32*16 + 4}, v12")
    A(f"B_RED:\ns_barrier\nds_read_b32 v13, v12\ns_waitcnt lgkmcnt(0)\nv_cmp_ne_u32 vcc, 0, v13")
    A(f"s_cbranch_vccz B_OK\ns_cmp_lg_u32 s{sRETRY}, 0\ns_cbranch_scc1 B_OK\ns_mov_b32 s{sRETRY}, -1\ns_barrier\ns_barrier\ns_barrier\n{'s_barrier' if env('BDEL', 0) else ''}\ns_branch B_RED\nB_OK:")
    A("s_barrier")
    for k in range(8): A(f"ds_write_b128 v{VDR}, {v(WOR+4*k,4)} offset:{k*1024}")
    A("s_waitcnt lgkmcnt(0)\ns_barrier\ns_barrier")
    for n in range(8, 12): w2load(n)
    A("s_barrier")
    def dump(reg, va, off):
        for j in range(2): A(f"ds_write_b128 v{va}, {v(reg+4*j,4)} offset:{off + j*1024}")
    for n in range(14, 18): dump(W1B + 8*(n-14), VDR, (n-14)*2048)
    A("s_waitcnt lgkmcnt(0)")
    NE = env("W2E", 16)
    for n in range(12, NE): w2load(n)
    for n in range(18, 32): dump(W1B + 8*(n-14), VDW, (n-18)*2048)
    A("s_waitcnt lgkmcnt(0)\ns_barrier\ns_barrier")
    for n in range(7): dump(w2reg(n), VDW, n*2048)
    A("s_barrier")
    rest = list(range(NE, 28))
    for n in rest[:4]: w2load(n)
    rest = rest[4:]
    A("s_barrier")
    vm.wait("v13")
    for n in range(7, 14):
        dump(w2reg(n), VDW, n*2048)
        if rest: w2load(rest.pop(0))
    for n in rest: w2load(n)
    A("s_waitcnt lgkmcnt(0)\ns_barrier\ns_barrier")
    for n in range(14, 28):
        vm.wait(f"v{n}"); dump(w2reg(n), VDW, (n-14)*2048)
    A("s_waitcnt lgkmcnt(0)\ns_barrier")
    if STAMP: A(f"v_mov_b32 v{VST}, v15"); del st["v"]
    A("s_branch K_FIN")

def main(out):
    prologue()
    pend0 = list(st["pend"])
    bprog()
    st["pend"] = list(pend0); p1_helper()
    st["pend"] = list(pend0); p1(); fb = p2(); p3(); p4(); p5()
    st["pend"] = list(pend0); bprog2(); fb()
    for h in handlers: h()
    A("CODE_END:")
    head = open("head.txt").read()
    nv = 256
    txt = head + f"; @launch grid=(256,1,1) block=(512,1,1) lds={LDS_TOTAL}\n" + '.amdgcn_target "amdgcn-amd-amdhsa--gfx950"\n.text\n' + kernel_header(NAME) + A.text() + '.section .rodata,"a"\n' + kernel_desc(NAME, nv, 102, 256)
    open(out, "w").write(txt)
    if STAMP: open(out + ".names", "w").write(" ".join(st["names"].keys()))

if __name__ == "__main__":
    main(sys.argv[1])
```

```python
import sys, struct, math, os
from asmlib import *

S, D, H, DH, F = 2048, 448, 16, 28, 1792
MB = 1 << 20
WS_Q, WS_KV, WS_O, WS_HF, WS_HH, WS_G, WS_ST, WS_FL, WS_STAMP = 0, 2*MB, 6*MB, 8*MB, 10*MB, 12*MB, 14*MB, 14*MB + 512*1024, 15*MB
F1, F2, F4, F5 = WS_FL, WS_FL + 131072, WS_FL + 2*131072, WS_FL + 3*131072
WS_RST, WS_CSG = 13*MB + 768*1024, 13*MB + 832*1024
WS_SIZE = 16*MB
EPS = 1e-5
STAMP = os.environ.get("STAMP", "0") == "1"
def env(n, d): return int(os.environ.get(n, str(d)))
def f2u(x): return struct.unpack("<I", struct.pack("<f", x))[0]
def hx(x): return f"0x{x & 0xffffffff:08x}"
def fl(x): return hx(f2u(x))
MFMA = "v_mfma_f32_32x32x16_bf16"
NAME = "sequential_preLN__mha_block__mixer_token_mlp__prompt_kernel"

class Cnt:
    def __init__(self, A, name, mx):
        self.A, self.name, self.mx, self.q = A, name, mx, []
    def issue(self, tag): self.q.append(tag)
    def wait(self, tag):
        idx = [i for i, t in enumerate(self.q) if t == tag]
        if not idx: return
        n = len(self.q) - 1 - idx[-1]
        self.A(f"s_waitcnt {self.name}({min(n, self.mx)})")
        self.q = self.q[idx[-1] + 1:]
    def wait_all(self):
        self.A(f"s_waitcnt {self.name}(0)"); self.q = []

RX, RWQ, RWO, RW1, RB1, RW2, RB2, ROUT, RDBG, RWS = 8, 12, 16, 20, 24, 28, 32, 36, 40, 44
def R(r): return f"s[{r}:{r+3}]"
SW, sH, sI, sJ, sFT, sDT4, sST, sDT5, sACT4, sTO, sTAG = 48, 49, 50, 51, 52, 53, 54, 55, 56, 57, 58
sHI, sONES = 60, 62
sT, sU, sV, sA, sB, sC, sD_, sE, sRETRY = 63, 64, 65, 66, 67, 68, 69, 70, 71
sF = [4, 5, 6, 7]
sSEC, sHQ, sW8 = 3, 92, 93
sC3, sR3 = 0, 1
sRBW, sW2W = 94, 95
sW1, sW1S, sW1E, sW2, sW2S, sW2E = 96, 97, 98, 99, 100, 101
VL, VST = 2, 255
W2A, RBUF, LDS_TOTAL = 0, 114688, 163840

A = Asm(); vm = Cnt(A, "vmcnt", 63); lg = Cnt(A, "lgkmcnt", 15)
st = {"pend": [], "names": {}}
def stamp(name):
    if os.environ.get("DIAGAT") == name or (os.environ.get("DIAGAT") and name == "start"): A("s_memrealtime s[72:73]")
    if not STAMP: return
    k = len(st["pend"]); assert k < 9, name
    n = st["names"].setdefault(name, len(st["names"]))
    A(f"{'s_memtime' if env('CYC', 0) else 's_memrealtime'} s[{74+2*k}:{75+2*k}]"); st["pend"].append(n)
def stamp_flush():
    if not STAMP or not st["pend"]: return
    A("s_waitcnt lgkmcnt(0)")
    for k, n in enumerate(st["pend"]): A(f"v_writelane_b32 v{st.get('v', VST)}, s{74+2*k}, {n}")
    st["pend"] = []

def set_exec(mask): A(f"s_mov_b32 exec_lo, {hx(mask)}\ns_mov_b32 exec_hi, {hx(mask >> 32)}")
def halfsum(x, t): A(f"v_mov_b32 v{t}, v{x}\nv_permlane32_swap_b32 v{x}, v{t}\nv_add_f32 v{x}, v{x}, v{t}")
def flag_store(soff_reg, t=4):
    A(f"v_mov_b32 v{t}, s{sTAG}\nv_mov_b32 v{t+1}, s{sTAG+1}\nv_mov_b32 v{t+2}, 0\ns_mov_b64 exec, 1")
    A(f"buffer_store_dwordx2 {v(t,2)}, v{t+2}, {R(RWS)}, s{soff_reg} offen sc1\ns_mov_b64 exec, -1"); vm.issue("flag")
def poll(voff, soff_reg, nl, t):
    L = A.label("POLL")
    set_exec((1 << nl) - 1)
    A(f"s_mov_b32 s{sTO}, 0x40000\n{L}:")
    A(f"buffer_load_dwordx2 {v(t,2)}, v{voff}, {R(RWS)}, s{soff_reg} offen sc1\ns_sub_u32 s{sTO}, s{sTO}, 1\ns_waitcnt vmcnt(0)")
    A(f"s_cbranch_scc1 {L}_x\nv_cmp_ne_u64 vcc, s[{sTAG}:{sTAG+1}], {v(t,2)}\ns_and_b64 exec, exec, vcc\n" + (f"s_cbranch_scc0 {L}_x\ns_sleep {env('PSL', 0)}\ns_branch {L}" if env("PSL", 0) else f"s_cbranch_scc1 {L}") + f"\n{L}_x:\ns_mov_b64 exec, -1")
    vm.q = []
def tr_lane_addr(dst, t, pitch, hs, rs=1):
    A(f"v_lshrrev_b32 v{dst}, 5, v1\nv_mul_u32_u24 v{dst}, {hs*pitch}, v{dst}\nv_bfe_u32 v{t}, v1, 2, 2\nv_mul_u32_u24 v{t}, {rs*pitch}, v{t}\nv_add_u32 v{dst}, v{dst}, v{t}")
    A(f"v_bfe_u32 v{t}, v1, 4, 1\nv_lshl_add_u32 v{dst}, v{t}, 5, v{dst}\nv_and_b32 v{t}, 3, v1\nv_lshl_add_u32 v{dst}, v{t}, 3, v{dst}")
def get_tag(TAGV, lab):
    A(f"v_readfirstlane_b32 s{sTAG}, v{TAGV}\nv_readfirstlane_b32 s{sTAG+1}, v{TAGV+1}")
    A(f"s_or_b32 s{sTO}, s{sTAG}, s{sTAG+1}\ns_cbranch_scc1 {lab}_ok\ns_mov_b32 s{sTO}, 0x40000\nv_mov_b32 v4, 0\n{lab}_l:")
    A(f"buffer_load_dwordx2 {v(TAGV,2)}, v4, {R(RDBG)}, 0 offen sc1\ns_sub_u32 s{sTO}, s{sTO}, 1\ns_waitcnt vmcnt(0)\ns_cbranch_scc1 {lab}_ok")
    A(f"v_readfirstlane_b32 s{sTAG}, v{TAGV}\nv_readfirstlane_b32 s{sTAG+1}, v{TAGV+1}\ns_cmp_eq_u64 s[{sTAG}:{sTAG+1}], 0\ns_cbranch_scc1 {lab}_l\n{lab}_ok:")
def tagcheck(regs, T1, T2, T3):
    A(f"v_xor_b32 v{T1}, s{sTAG}, v{regs[0]+1}\nv_xor_b32 v{T2}, s{sTAG+1}, v{regs[0]+3}\nv_or_b32 v{T1}, v{T1}, v{T2}")
    for g in regs[1:]: A(f"v_xor_b32 v{T2}, s{sTAG}, v{g+1}\nv_xor_b32 v{T3}, s{sTAG+1}, v{g+3}\nv_or3_b32 v{T1}, v{T1}, v{T2}, v{T3}")
    A(f"v_cmp_ne_u32 vcc, 0, v{T1}")
def rot4(d):
    A(f"s_bfe_u32 s{d}, s2, 0x20001\ns_mul_i32 s{d}, s{d}, 7\ns_sub_u32 s{d}, s{sFT}, s{d}\ns_add_u32 s{d}, s{d}, s{sDT4}\ns_and_b32 s{d}, s{d}, 7\ns_lshl_b32 s{d}, s{d}, 2")
def rot5(d):
    A(f"s_and_b32 s{d}, s{sST}, 7\ns_mul_i32 s{d}, s{d}, 7\ns_lshr_b32 s{d}, s{d}, 2\ns_add_u32 s{d}, s{d}, s{sDT5}\ns_add_u32 s{d}, s{d}, s{sDT5}\ns_lshl_b32 s{d}, s{d}, 1")
    A(f"s_cmp_ge_u32 s{d}, 28\ns_cselect_b32 s{sTO}, 28, 0\ns_sub_u32 s{d}, s{d}, s{sTO}")

handlers = []
class Stream:
    def __init__(self, name, ng, loads, soff, T):
        self.name, self.ng, self.loads, self.soff, self.T, self.last = name, ng, loads, soff, T, -1
    def _emit(self, g, track):
        self.soff(g)
        for reg, va, off in self.loads(g):
            A(f"buffer_load_dwordx4 {v(reg,4)}, v{va}, {R(RWS)}, s{sT} offen offset:{off} sc1")
            if track: vm.issue((self.name, g))
    def issue(self, g):
        if g < self.ng: self._emit(g, True); self.last = g
    def _red(self, g):
        r = [x[0] + 3 for x in self.loads(g)]
        if len(r) == 4: A(f"v_max3_u32 v{self.T}, v{r[0]}, v{r[1]}, v{r[2]}\nv_max_u32 v{self.T}, v{self.T}, v{r[3]}")
        else: A(f"v_max_u32 v{self.T}, v{r[0]}, v{r[1]}")
    def check1(self, g):
        if g < self.ng: vm.wait((self.name, g)); self._red(g)
    def check2(self, g):
        if g >= self.ng: return
        L = f"{self.name}{g}"
        A(f"v_cmp_eq_u32 vcc, -1, v{self.T}\ns_cbranch_vccnz {L}_h\n{L}_r:")
        last = self.last
        def h():
            A(f"{L}_h:\ns_mov_b32 s{sTO}, 0x40000\n{L}_l:")
            self._emit(g, False)
            A(f"s_sub_u32 s{sTO}, s{sTO}, 1\ns_waitcnt vmcnt(0)\ns_cbranch_scc1 {L}_r")
            self._red(g)
            A(f"v_cmp_eq_u32 vcc, -1, v{self.T}\ns_cbranch_vccnz {L}_l")
            for k in range(g + 1, last + 1): self._emit(k, False)
            A(f"s_branch {L}_r")
        handlers.append(h)
def sanitize(*regs):
    for r in regs: A(f"v_min_u32 v{r}, -2, v{r}")

def prologue():
    if STAMP: A(f"s_memrealtime s[72:73]\nv_mov_b32 v{VST}, -1")
    stamp("start")
    A(f"s_load_dwordx2 s[{RX}:{RX+1}], s[0:1], 0\ns_load_dwordx2 s[{RWQ}:{RWQ+1}], s[0:1], 8")
    A("s_cmp_ge_u32 s2, 256\ns_cbranch_scc1 K_END")
    A(f"v_and_b32 v1, 63, v0\nv_lshrrev_b32 v3, 6, v0\nv_lshlrev_b32 v{VL}, 4, v1\nv_readfirstlane_b32 s{sW8}, v3\nv_and_b32 v0, 255, v0")
    for r, sz in ((RX, S*D*2), (RWQ, D*3*D*2)): A(f"s_mov_b32 s{r+2}, {sz}\ns_mov_b32 s{r+3}, 0x20000")
    A(f"s_and_b32 s{SW}, s{sW8}, 3\ns_lshr_b32 s{sJ}, s2, 3\ns_bfe_u32 s{sT}, s2, 0x20001\ns_and_b32 s{sU}, s2, 1")
    A(f"s_lshl_b32 s{sI}, s{sT}, 2\ns_and_b32 s{sV}, s{sJ}, 3\ns_add_u32 s{sI}, s{sI}, s{sV}")
    A(f"s_lshr_b32 s{sSEC}, s{sJ}, 3\ns_bfe_u32 s{sHQ}, s{sJ}, 0x10002\ns_lshl_b32 s{sV}, s{sU}, 1\ns_add_u32 s{sHQ}, s{sHQ}, s{sV}")
    A(f"s_cmp_ge_u32 s{sJ}, 24\ns_cbranch_scc1 P1_HELP\ns_cmp_lt_u32 s{sW8}, 4\ns_cbranch_scc1 A_P1")

def prologue2():
    for r, off in ((RWS, 80), (RDBG, 72), (RWO, 16), (RW1, 32), (RB1, 40), (RW2, 48), (RB2, 56), (ROUT, 64)):
        A(f"s_load_dwordx2 s[{r}:{r+1}], s[0:1], {off}")
    A(f"s_memrealtime s[{sTAG}:{sTAG+1}]")
    for r, sz in ((RWS, WS_SIZE), (RDBG, 256), (RWO, D*D*2), (RW1, S*F*2), (RB1, F*2), (RW2, S*F*2), (RB2, S*2), (ROUT, S*D*2)):
        A(f"s_mov_b32 s{r+2}, {sz}\ns_mov_b32 s{r+3}, 0x20000")
    A(f"s_mov_b32 s{sHI}, 0\ns_mov_b32 s{sHI+1}, -1\ns_mov_b32 s{sONES}, 0x3f803f80\ns_mov_b32 s{sRETRY}, 0")
    A(f"s_mul_i32 s{sRBW}, s{SW}, 12288\ns_add_u32 s{sRBW}, s{sRBW}, {RBUF}\ns_mul_i32 s{sW2W}, s{SW}, 28672")

def roles(touch=True):
    A(f"s_bfe_u32 s{sT}, s2, 0x20001\ns_and_b32 s{sU}, s2, 1")
    pass
    A(f"s_sub_u32 s{sV}, 25, s{sU}\ns_cmp_lt_u32 s{sJ}, s{sV}\ns_cselect_b32 s{sACT4}, 1, 0\ns_cselect_b32 s{sV}, s{sJ}, 0")
    A(f"s_mul_i32 s{sFT}, s{sU}, 25\ns_add_u32 s{sV}, s{sV}, s{sFT}\ns_mul_i32 s{sDT4}, s{sV}, 9363\ns_lshr_b32 s{sDT4}, s{sDT4}, 16")
    A(f"s_mul_i32 s{sFT}, s{sDT4}, 7\ns_sub_u32 s{sV}, s{sV}, s{sFT}\ns_mul_i32 s{sFT}, s{sT}, 7\ns_add_u32 s{sFT}, s{sV}, s{sFT}")
    A(f"s_cmp_lt_u32 s{sJ}, 28\ns_cselect_b32 s{sV}, s{sJ}, 0\ns_mul_i32 s{sST}, s{sU}, 28\ns_add_u32 s{sV}, s{sV}, s{sST}")
    A(f"s_lshr_b32 s{sDT5}, s{sV}, 3\ns_and_b32 s{sV}, s{sV}, 7\ns_lshl_b32 s{sST}, s{sT}, 3\ns_add_u32 s{sST}, s{sST}, s{sV}")
    A(f"s_lshl_b32 s{sT}, s{sHQ}, 2\ns_add_u32 s{sT}, s{sT}, s{sSEC}\ns_lshl_b32 s{sT}, s{sT}, 4\ns_add_u32 s{sT}, s{sT}, s{sI}\ns_lshl_b32 s{sT}, s{sT}, 7\ns_add_u32 s{sF[0]}, s{sT}, {F1}")
    A(f"s_and_b32 s{sT}, s2, 7\ns_lshl_b32 s{sT}, s{sT}, 1\ns_and_b32 s{sH}, s{sJ}, 1\ns_add_u32 s{sH}, s{sH}, s{sT}\ns_lshr_b32 s{sI}, s{sJ}, 1")
    A(f"s_lshr_b32 s{sR3}, s{sJ}, 4\ns_add_u32 s{sR3}, s{sR3}, s{sT}\ns_lshl_b32 s{sR3}, s{sR3}, 2\ns_add_u32 s{sR3}, s{sR3}, s{SW}\ns_and_b32 s{sC3}, s{sJ}, 15")
    A(f"s_lshl_b32 s{sU}, s{sI}, 2\ns_add_u32 s{sU}, s{sU}, s{SW}\ns_lshl_b32 s{sT}, s{sU}, 4\ns_add_u32 s{sT}, s{sT}, s{sH}\ns_lshl_b32 s{sT}, s{sT}, 7\ns_add_u32 s{sF[1]}, s{sT}, {F2}")
    A(f"s_lshl_b32 s{sT}, s{sC3}, 6\ns_add_u32 s{sT}, s{sT}, s{sR3}\ns_lshl_b32 s{sT}, s{sT}, 7\ns_add_u32 s{sF[2]}, s{sT}, {F4}\ns_lshl_b32 s{sV}, s{sR3}, 4\ns_add_u32 s{sV}, s{sV}, s{sC3}\ns_lshl_b32 s{sV}, s{sV}, 9")
    A(f"s_mul_i32 s{sT}, s{sDT4}, 28\ns_add_u32 s{sT}, s{sT}, s{sFT}\ns_lshl_b32 s{sT}, s{sT}, 2\ns_add_u32 s{sT}, s{sT}, s{SW}\ns_lshl_b32 s{sT}, s{sT}, 7\ns_add_u32 s{sF[3]}, s{sT}, {F5}")
    if not touch: return
    A(f"s_add_u32 s{sV}, s{sV}, {WS_ST}\nv_lshl_add_u32 v4, v1, 7, s{sV}")
    A(f"v_writelane_b32 v4, s{sF[0]}, 4\nv_writelane_b32 v4, s{sF[1]}, 5\nv_writelane_b32 v4, s{sF[2]}, 6\nv_writelane_b32 v4, s{sF[3]}, 7\ns_mov_b64 exec, 0xff\nbuffer_load_dword v12, v4, {R(RWS)}, 0 offen sc1\ns_mov_b64 exec, -1")
    vm.issue("touch")

def p1_helper():
    TAGV = 14
    sHX = sA
    A("P1_HELP:")
    vm.q = []
    prologue2()
    A(f"s_and_b32 s{sHX}, s2, 7\ns_lshl_b32 s{sHX}, s{sHX}, 3\ns_add_u32 s{sHX}, s{sHX}, s{sJ}\ns_sub_u32 s{sHX}, s{sHX}, 24")
    A(f"v_lshrrev_b32 v4, 3, v1\nv_and_b32 v5, 7, v1\nv_lshlrev_b32 v5, 4, v5\nv_mov_b32 v7, 0")
    A(f"s_cmp_ge_u32 s{sW8}, 4\ns_cbranch_scc1 H_CS")
    A(f"v_mul_u32_u24 v6, 896, v4\nv_add_u32 v6, v6, v5\ns_lshl_b32 s{sB}, s{sHX}, 2\ns_add_u32 s{sB}, s{sB}, s{SW}\ns_mul_i32 s{sT}, s{sB}, {8*896}\ns_waitcnt lgkmcnt(0)")
    for m in range(7): A(f"buffer_load_dwordx4 {v(16+4*m,4)}, v6, {R(RX)}, s{sT} offen offset:{m*128}")
    A("v_mov_b32 v80, 0\nv_mov_b32 v82, 0\nv_mov_b32 v84, 0\nv_mov_b32 v86, 0\ns_waitcnt vmcnt(0)")
    A(f"buffer_load_dwordx2 {v(TAGV,2)}, v7, {R(RDBG)}, 0 offen sc1")
    for k in range(28): A(f"v_dot2c_f32_bf16 v{80+4*(k&1)}, s{sONES}, v{16+k}\nv_dot2c_f32_bf16 v{82+4*(k&1)}, v{16+k}, v{16+k}")
    A("v_add_f32 v80, v80, v84\nv_add_f32 v82, v82, v86")
    for m in ("quad_perm:[1,0,3,2]", "quad_perm:[2,3,0,1]", "row_half_mirror"):
        for r in (80, 82): A(f"v_add_f32_dpp v{r}, v{r}, v{r} {m} row_mask:0xf bank_mask:0xf")
    A(f"v_mul_f32 v80, {fl(1.0/D)}, v80\nv_mul_f32 v82, {fl(1.0/D)}, v82\nv_fma_f32 v82, -v80, v80, v82\nv_max_f32 v82, 0, v82\nv_add_f32 v82, {fl(EPS)}, v82\nv_rsq_f32 v82, v82")
    A(f"v_lshlrev_b32 v6, 4, v4\nv_mul_f32 v80, v80, v82\nv_sub_f32 v80, 0, v80\ns_waitcnt vmcnt(0)")
    get_tag(TAGV, "H_T1")
    A(f"v_mov_b32 v81, s{sTAG}\nv_mov_b32 v83, s{sTAG+1}\ns_lshl_b32 s{sT}, s{sB}, 7\ns_add_u32 s{sT}, s{sT}, {WS_RST}")
    set_exec(0x0101010101010101)
    A(f"buffer_store_dwordx4 v[80:83], v6, {R(RWS)}, s{sT} offen sc1\ns_mov_b64 exec, -1")
    stamp("h_pub"); stamp_flush()
    A("s_barrier")
    roles()
    A("s_branch P2_START")
    st["pend"] = [0] if STAMP else []
    A(f"H_CS:\ns_lshl_b32 s{sB}, s{SW}, 6\ns_add_u32 s{sB}, s{sB}, s{sHX}\ns_cmp_ge_u32 s{sB}, 84\ns_cbranch_scc1 H_PF")
    A(f"v_mul_u32_u24 v6, 2688, v4\nv_add_u32 v6, v6, v5\ns_and_b32 s{sC}, s{sB}, 3\ns_lshr_b32 s{sD_}, s{sB}, 2\ns_mul_i32 s{sT}, s{sC}, {112*2688}\ns_lshl_b32 s{sU}, s{sD_}, 7\ns_add_u32 s{sT}, s{sT}, s{sU}\ns_waitcnt lgkmcnt(0)")
    for m in range(14): A(f"buffer_load_dwordx4 {v(16+4*m,4)}, v6, {R(RWQ)}, s{sT} offen\ns_add_u32 s{sT}, s{sT}, {8*2688}")
    A(f"s_mov_b32 s{sT}, 0x3f80\ns_mov_b32 s{sU}, 0x3f800000")
    for r in range(80, 88): A(f"v_mov_b32 v{r}, 0")
    for m in range(14):
        if m % 4 == 0: A(f"s_waitcnt vmcnt({max(0, 14 - m - 4)})")
        if m == 12: A(f"buffer_load_dwordx2 {v(TAGV,2)}, v7, {R(RDBG)}, 0 offen sc1")
        for k in range(4): A(f"v_dot2c_f32_bf16 v{80+2*k}, s{sT}, v{16+4*m+k}\nv_dot2c_f32_bf16 v{81+2*k}, s{sU}, v{16+4*m+k}")
    for r in range(80, 88): A(f"v_add_f32_dpp v{r}, v{r}, v{r} row_ror:8 row_mask:0xf bank_mask:0xf")
    for op in ("v_permlane16_swap_b32", "v_permlane32_swap_b32"):
        for r in range(80, 88): A(f"v_mov_b32 v{r+8}, v{r}")
        for r in range(80, 88): A(f"{op} v{r}, v{r+8}")
        for r in range(80, 88): A(f"v_add_f32 v{r}, v{r}, v{r+8}")
    A("v_mov_b32 v88, v80\nv_mov_b32 v90, v81")
    for pi in range(1, 4): A(f"v_cmp_eq_u32 vcc, {pi}, v4\nv_cndmask_b32 v88, v88, v{80+2*pi}, vcc\nv_cndmask_b32 v90, v90, v{81+2*pi}, vcc")
    A(f"v_lshlrev_b32 v6, 2, v5\nv_lshl_add_u32 v6, v4, 4, v6\ns_waitcnt vmcnt(0)")
    get_tag(TAGV, "H_T2")
    A(f"v_mov_b32 v89, s{sTAG}\nv_mov_b32 v91, s{sTAG+1}\ns_mul_i32 s{sT}, s{sC}, 10752\ns_lshl_b32 s{sU}, s{sD_}, 9\ns_add_u32 s{sT}, s{sT}, s{sU}\ns_add_u32 s{sT}, s{sT}, {WS_CSG}")
    set_exec(0xFFFFFFFF)
    A(f"buffer_store_dwordx4 v[88:91], v6, {R(RWS)}, s{sT} offen sc1\ns_mov_b64 exec, -1\ns_barrier\ns_branch B_P2")
    A(f"H_PF:\ns_cmp_lt_u32 s{SW}, 2\ns_cbranch_scc1 H_W")
    sQ = sB
    A(f"s_sub_u32 s{sQ}, s{sJ}, 24\ns_lshl_b32 s{sQ}, s{sQ}, 1\ns_add_u32 s{sQ}, s{sQ}, s{SW}\ns_sub_u32 s{sQ}, s{sQ}, 2")
    A(f"s_getpc_b64 s[{sC}:{sC+1}]\nCODE_REF:\ns_lshl_b32 s{sT}, s{sQ}, 12\nv_lshl_add_u32 v6, v1, 7, s{sT}\nv_min_u32 v6, CODE_END-CODE_REF-4, v6")
    A(f"v_mov_b32 v9, s{sC+1}\nv_add_co_u32 v8, vcc, s{sC}, v6\nv_addc_co_u32 v9, vcc, 0, v9, vcc")
    set_exec(0xFFFFFFFF)
    A("global_load_dword v25, v[8:9], off\ns_mov_b64 exec, -1\ns_waitcnt lgkmcnt(0)\ns_barrier")
    A("v_lshlrev_b32 v6, 7, v1")
    A(f"s_and_b32 s{sT}, s2, 7\ns_lshl_b32 s{sT}, s{sT}, 4\ns_add_u32 s{sT}, s{sT}, s{sQ}\ns_mul_i32 s{sT}, s{sT}, {7*8192}")
    for k in range(env("NP1", 0)): A(f"s_add_u32 s{sU}, s{sT}, {k*8192}\nbuffer_load_dword v{16+k}, v6, {R(RW1)}, s{sU} offen")
    for k in range(env("NP2", 0)): A(f"s_add_u32 s{sU}, s{sT}, {k*8192}\nbuffer_load_dword v{26+k}, v6, {R(RW2)}, s{sU} offen")
    if env("WOT", 0) == 1:
        A(f"s_mul_i32 s{sT}, s{sQ}, {196*128}")
        set_exec((1 << 49) - 1)
        for k in range(4): A(f"s_add_u32 s{sU}, s{sT}, {k*49*128}\nbuffer_load_dword v24, v6, {R(RWO)}, s{sU} offen")
        A("s_mov_b64 exec, -1")
    if STAMP:
        A("s_waitcnt vmcnt(0)"); stamp("h_touch"); stamp_flush(); A(f"v_mov_b32 v15, v{VST}\ns_branch B_P2S")
    A("s_branch B_P2\nH_W:\ns_waitcnt lgkmcnt(0)\ns_barrier\ns_branch B_P2")

XA = LDS_TOTAL - 65536
XBUF = [8192, 0, 8192, 4096]
def p1_common():
    sWO, sM = sA, sC
    A(f"s_mul_i32 s{sWO}, s{sSEC}, 896\ns_mul_i32 s{sT}, s{sHQ}, 224\ns_add_u32 s{sWO}, s{sWO}, s{sT}")
    A(f"s_lshl_b32 s{sE}, s{sI}, 2\ns_add_u32 s{sE}, s{sE}, s{SW}\ns_lshl_b32 s{sM}, s{SW}, 14\ns_add_u32 s{sM}, s{sM}, {XA}")

def p1():
    XF, ACC, WF = 16, 128, 192
    VXR = list(range(224, 232)); VXS = list(range(232, 236)); VWR = [236, 237]; TAGV = 238
    sWO, sM = sA, sC
    A("A_P1:")
    prologue2()
    p1_common()
    A(f"v_and_b32 v4, 31, v1\nv_lshrrev_b32 v5, 5, v1\nv_and_b32 v6, 15, v1\nv_xor_b32 v6, v6, v5\nv_lshlrev_b32 v6, 4, v6\nv_lshl_add_u32 v6, v4, 8, v6\nv_add_u32 v6, s{sM}, v6")
    for k in range(8): A(f"v_xor_b32 v{VXR[k]}, {k<<5}, v6")
    A(f"v_bfe_u32 v6, v1, 1, 3\nv_xor_b32 v6, v6, v5\nv_lshlrev_b32 v6, 4, v6\nv_lshl_add_u32 v6, v4, 7, v6\nv_add_u32 v6, s{sM}, v6")
    for k in range(4): A(f"v_xor_b32 v{VXS[k]}, {k<<5}, v6")
    tr_lane_addr(VWR[0], 4, 224, 8, 2); A(f"v_add_u32 v{VWR[1]}, {14*3584}, v{VWR[0]}")
    A("s_waitcnt lgkmcnt(0)")
    stamp("karg")
    A(f"s_or_b32 s{sT}, s2, s{SW}\ns_cbranch_scc1 P1_NOTAG")
    A(f"s_bitset1_b32 s{sTAG+1}, 31\nv_mov_b32 v8, s{sTAG}\nv_mov_b32 v9, s{sTAG+1}\nv_mov_b32 v10, 0\nv_mov_b32 v11, 0\ns_mov_b64 exec, 1\nbuffer_atomic_cmpswap_x2 v[8:11], v10, {R(RDBG)}, 0 offen sc1\ns_mov_b64 exec, -1\nP1_NOTAG:")
    roles()
    stamp_flush()
    A(f"s_cmp_eq_u32 s{sSEC}, 2\ns_cbranch_scc1 P1_V")
    for isv in (0, 1):
        vm.q = []; lg.q = []
        if isv: A("P1_V:")
        def xread(p):
            for k in range(8 if p < 3 else 4):
                A(f"ds_read_b128 {v(XF + (8*p+k)*4, 4)}, v{(VXR if p < 3 else VXS)[k]} offset:{XBUF[p]}"); lg.issue(f"x{p}")
        def wread(ks, hds=range(4)):
            for hd in hds:
                for half in range(2):
                    A(f"ds_read_b64_tr_b16 {v(WF + (ks&1)*16 + hd*4 + half*2, 2)}, v{VWR[ks//14]} offset:{(ks%14)*3584 + half*224 + hd*56}"); lg.issue(f"w{ks}_{hd}")
        def gload():
            A(f"buffer_load_dwordx4 v[16:19], v4, {R(RWS)}, s{sU} offen sc1")
            for kq in range(4): A(f"buffer_load_dwordx4 {v(20+4*kq,4)}, v{5+kq}, {R(RWS)}, s{sV} offen sc1")
        for p in range(4):
            k0, k1 = 8*p, min(8*p + 8, 28)
            if p == 3:
                A(f"v_and_b32 v4, 31, v1\nv_lshlrev_b32 v4, 4, v4\ns_lshl_b32 s{sU}, s{sE}, 9\ns_add_u32 s{sU}, s{sU}, {WS_RST}\ns_lshl_b32 s{sV}, s{sWO}, 2\ns_add_u32 s{sV}, s{sV}, {WS_CSG}")
                A(f"v_min_u32 v5, 55, v1\nv_lshlrev_b32 v5, 4, v5\nv_add_u32 v6, 10752, v5\nv_add_u32 v7, 21504, v5\nv_add_u32 v8, 32256, v5\nv_mov_b32 v9, 0")
            A("s_barrier"); stamp(f"g{p}")
            xread(p); wread(k0, [0, 1, 2])
            if p == 3:
                A(f"buffer_load_dwordx2 {v(TAGV,2)}, v9, {R(RDBG)}, 0 offen sc1"); gload()
            lg.wait(f"x{p}")
            if p < 2: A("s_barrier")
            wread(k0, [3])
            for ks in range(k0, k1):
                x = v(XF + ks*4, 4)
                for hd in range(4):
                    lg.wait(f"w{ks}_{hd}")
                    w_ = v(WF + (ks&1)*16 + hd*4, 4); acc = v(ACC + 16*hd, 16)
                    A(f"{MFMA} {acc}, {x if isv else w_}, {w_ if isv else x}, {'0' if ks == 0 else acc}")
                    if ks + 1 < k1: wread(ks + 1, [hd])
        stamp("mfma_done")
        A("s_waitcnt vmcnt(5)")
        get_tag(TAGV, f"P1_T{isv}")
        L = A.label("P1_G")
        A(f"s_waitcnt vmcnt(0)")
        tagcheck([16, 20, 24, 28, 32], 9, 10, 11)
        A(f"s_cbranch_vccz {L}_x\nv_and_b32 v4, 31, v1\nv_lshlrev_b32 v4, 4, v4\ns_mov_b32 s{sTO}, 0x40000\n{L}:")
        gload()
        A(f"s_sub_u32 s{sTO}, s{sTO}, 1\ns_waitcnt vmcnt(0)\ns_cbranch_scc1 {L}_x")
        tagcheck([16, 20, 24, 28, 32], 9, 10, 11)
        A(f"s_cbranch_vccnz {L}\n{L}_x:")
        stamp("gran")
        A("v_add_f32 v20, v20, v24\nv_add_f32 v28, v28, v32\nv_add_f32 v22, v22, v26\nv_add_f32 v30, v30, v34\nv_add_f32 v20, v20, v28\nv_add_f32 v21, v22, v30")
        A(f"s_add_u32 s{sT}, s{sM}, 8192\nv_lshl_add_u32 v4, v1, 3, s{sT}\nds_write_b64 v4, v[20:21]\nv_lshrrev_b32 v5, 5, v1\nv_lshl_add_u32 v5, v5, 4, s{sT}")
        PK = 96
        A(f"s_lshl_b32 s{sU}, s{sHQ}, 8\ns_add_u32 s{sU}, s{sU}, s{sE}")
        if not isv:
            for hd in range(4):
                for g in range(4): A(f"ds_read_b128 {v(32+16*hd+4*g,4)}, v5 offset:{hd*112 + g*32}"); lg.issue(f"c{hd}")
            QS = DH ** -0.5 * math.log2(math.e)
            A(f"s_cmp_eq_u32 s{sSEC}, 0\ns_cselect_b32 s{sV}, {fl(QS)}, 1.0\ns_cselect_b32 s{sA}, 0, s{sONES}\ns_cselect_b32 s{sB}, 0, 0x3f80\ns_cselect_b32 s{sC}, {WS_Q}, {WS_KV}")
            A(f"s_add_u32 s{sD_}, s{sSEC}, 11\ns_lshl_b32 s{sU}, s{sU}, s{sD_}\ns_add_u32 s{sU}, s{sU}, s{sC}\ns_lshl_b32 s{sD_}, 64, s{sD_}")
            A(f"v_mul_f32 v16, s{sV}, v16\nv_mul_f32 v18, s{sV}, v18\nv_mov_b32 v12, s{sA}\nv_mov_b32 v13, s{sB}")
            for hd in range(4):
                lg.wait(f"c{hd}")
                c, ac = 32+16*hd, ACC+16*hd
                for r in range(0, 16, 2): A(f"v_pk_mul_f32 {v(c+r,2)}, {v(c+r,2)}, v[16:17] op_sel_hi:[1,0]")
                for r in range(0, 16, 2): A(f"v_pk_fma_f32 {v(ac+r,2)}, {v(ac+r,2)}, v[18:19], {v(c+r,2)} op_sel_hi:[1,0,1]")
                for r in range(8): A(f"v_cvt_pk_bf16_f32 v{PK+8*hd+r}, v{ac+2*r}, v{ac+2*r+1}")
                A(f"v_cndmask_b32 v{PK+8*hd+6}, v{PK+8*hd+6}, v12, s[{sHI}:{sHI+1}]\nv_cndmask_b32 v{PK+8*hd+7}, v{PK+8*hd+7}, v13, s[{sHI}:{sHI+1}]")
                for f in range(2): A(f"buffer_store_dwordx4 {v(PK+8*hd+4*f,4)}, v{VL}, {R(RWS)}, s{sU} offen offset:{f*1024} sc1")
                A(f"s_add_u32 s{sU}, s{sU}, s{sD_}")
        else:
            A(f"v_cndmask_b32 v6, v18, v16, s[{sHI}:{sHI+1}]\nv_lshl_add_u32 v4, v1, 2, s{sT}\nds_write_b32 v4, v6 offset:512")
            A(f"v_and_b32 v6, 31, v1\nv_lshl_add_u32 v4, v6, 2, s{sT}")
            for g in range(4): A(f"ds_read_b128 {v(32+4*g,4)}, v5 offset:{512 + g*32}\nds_read_b128 {v(48+4*g,4)}, v5 offset:{640 + g*32}")
            for hd in range(4): A(f"ds_read_b32 v{24+2*hd}, v4 offset:{hd*112}")
            A(f"s_lshl_b32 s{sU}, s{sU}, 12\ns_add_u32 s{sU}, s{sU}, {WS_KV + 2048}")
            A(f"v_cmp_eq_u32 vcc, 28, v6\nv_mov_b32 v13, s{sONES}\nv_cndmask_b32 v12, 0, v13, vcc\nv_mov_b32 v13, v12")
            for r in range(0, 16, 2): A(f"v_pk_mov_b32 {v(PK+r,2)}, v[12:13], v[12:13]")
            A(f"s_mov_b32 s{sA}, 0x0fffffff\ns_mov_b32 s{sA+1}, 0x0fffffff\ns_waitcnt lgkmcnt(0)")
            for hd in range(4):
                ac = ACC+16*hd; pk = PK + 8*(hd & 1)
                for r in range(0, 16, 2): A(f"v_pk_mul_f32 {v(64+r,2)}, {v(48+r,2)}, {v(24+2*hd,2)} op_sel_hi:[1,0]")
                for r in range(0, 16, 2): A(f"v_pk_fma_f32 {v(ac+r,2)}, {v(ac+r,2)}, {v(32+r,2)}, {v(64+r,2)}")
                A(f"s_mov_b64 exec, s[{sA}:{sA+1}]")
                for r in range(8): A(f"v_cvt_pk_bf16_f32 v{pk+r}, v{ac+2*r}, v{ac+2*r+1}")
                A("s_mov_b64 exec, -1")
                for f in range(2): A(f"buffer_store_dwordx4 {v(pk+4*f,4)}, v{VL}, {R(RWS)}, s{sU} offen offset:{f*1024} sc1")
                A(f"s_add_u32 s{sU}, s{sU}, {64*4096}")
        stamp("kvst"); stamp_flush()
        if not isv: A("s_branch P1_DONE")
    A("P1_DONE:")

def tilemax(sreg, T0, T1):
    A(f"v_max3_f32 v{T0}, v{sreg}, v{sreg+1}, v{sreg+2}\nv_max3_f32 v{T1}, v{sreg+3}, v{sreg+4}, v{sreg+5}")
    A(f"v_max3_f32 v{T0}, v{T0}, v{sreg+6}, v{sreg+7}\nv_max3_f32 v{T1}, v{T1}, v{sreg+8}, v{sreg+9}")
    A(f"v_max3_f32 v{T0}, v{T0}, v{sreg+10}, v{sreg+11}\nv_max3_f32 v{T1}, v{T1}, v{sreg+12}, v{sreg+13}")
    A(f"v_max3_f32 v{T0}, v{T0}, v{sreg+14}, v{sreg+15}")
def set_qpad(q, m, T0, T1, T2):
    A(f"v_sub_f32 v{T0}, 0, v{m}\nv_and_b32 v{T1}, 0xffff0000, v{T0}\nv_sub_f32 v{T0}, v{T0}, v{T1}")
    A(f"v_and_b32 v{T2}, 0xffff0000, v{T0}\nv_sub_f32 v{T0}, v{T0}, v{T2}\nv_lshrrev_b32 v{T0}, 16, v{T0}")
    A(f"v_lshrrev_b32 v{T1}, 16, v{T1}\nv_or_b32 v{T1}, v{T1}, v{T2}")
    A(f"v_cndmask_b32 v{q+6}, v{q+6}, v{T1}, s[{sHI}:{sHI+1}]\nv_cndmask_b32 v{q+7}, v{q+7}, v{T0}, s[{sHI}:{sHI+1}]")

XR, IR3 = 224, 232
VRD, VFL, VKV, VONE, VRB, VWO = [240, 241], 242, 243, 244, [246, 247], 248
VRW = [249, 250, 251, 252]
def addr_setup():
    tr_lane_addr(4, 5, 128, 4)
    A(f"v_bfe_u32 v5, v1, 3, 1\ns_lshr_b32 s{sT}, s{SW}, 1\nv_xor_b32 v5, s{sT}, v5")
    A(f"v_lshl_add_u32 v6, v5, 6, v4\nv_xor_b32 v5, 1, v5\nv_lshl_add_u32 v7, v5, 6, v4")
    A(f"v_add_u32 v{VRD[0]}, s{sW2W}, v6\nv_add_u32 v{VRD[1]}, s{sW2W}, v7\nv_add_u32 v{VRB[0]}, s{sRBW}, v6\nv_add_u32 v{VRB[1]}, s{sRBW}, v7")
    A(f"v_lshlrev_b32 v{VFL}, 7, v1\nv_mov_b32 v{VONE}, 0x3f80\nv_mov_b32 v{VONE+1}, 1.0")
    A(f"s_lshl_b32 s{sT}, s{sH}, 2\ns_add_u32 s{sT}, s{sT}, s{SW}\ns_lshl_b32 s{sT}, s{sT}, 16\ns_add_u32 s{sT}, s{sT}, {WS_KV}\nv_add_u32 v{VKV}, s{sT}, v{VL}")
    tr_lane_addr(VWO, 4, 64, 4); A(f"v_add_u32 v{VWO}, {RBUF}, v{VWO}\nv_add_u32 v{VRW[0]}, s{sRBW}, v{VL}")
    for t in range(1, 4):
        A(f"s_add_u32 s{sT}, s{SW}, {t}\ns_and_b32 s{sT}, s{sT}, 3\ns_mul_i32 s{sT}, s{sT}, 12288\ns_add_u32 s{sT}, s{sT}, {RBUF}\nv_add_u32 v{VRW[t]}, s{sT}, v{VL}")
    A("v_and_b32 v4, 31, v1\nv_lshrrev_b32 v5, 5, v1\nv_lshlrev_b32 v6, 3, v5\nv_sub_u32 v6, v4, v6")
    for p in range(2):
        for r in range(4):
            A(f"v_cmp_eq_u32 vcc, {16*p+2*r}, v6\nv_cmp_eq_u32 s[{sU}:{sU+1}], {16*p+2*r+1}, v6\nv_cndmask_b32 v{IR3+4*p+r}, 0, v{VONE}, vcc\nv_cndmask_b32 v{IR3+4*p+r}, v{IR3+4*p+r}, v{VONE+1}, s[{sU}:{sU+1}]")
    A("v_mul_u32_u24 v13, 896, v4\nv_lshl_add_u32 v13, v5, 4, v13")

def p2():
    Q, O, SS, PP, KV = 16, 48, [112, 128], [144, 152], 160
    M = [112, 113, 114, 115]; K0 = 120
    T0, T1, T2, T3 = 4, 5, 6, 7
    sKN = sB
    addr_setup()
    vm.wait_all(); stamp("kvdrain")
    A(f"s_barrier\ns_cmp_lg_u32 s{SW}, 0\ns_cbranch_scc1 P2_NOF")
    flag_store(sF[0]); A("P2_NOF:"); stamp_flush()
    A("s_branch P2_GO\nP2_START:")
    addr_setup()
    A("P2_GO:")
    A(f"s_mul_i32 s{sT}, s{sR3}, {32*896}\ns_lshl_b32 s{sU}, s{sC3}, 6\ns_add_u32 s{sT}, s{sT}, s{sU}\ns_lshl_b32 s{sV}, s{sI}, 2\ns_add_u32 s{sV}, s{sV}, s{SW}\ns_lshl_b32 s{sU}, s{sH}, 6")
    for p in range(2): A(f"buffer_load_dwordx4 {v(XR+4*p,4)}, v13, {R(RX)}, s{sT} offen offset:{32*p}")
    A(f"s_add_u32 s{sU}, s{sU}, s{sV}\ns_lshl_b32 s{sU}, s{sU}, 11")
    A(f"s_lshr_b32 s{sT}, s{sH}, 2\ns_lshl_b32 s{sT}, s{sT}, 13\ns_add_u32 s{sT}, s{sT}, {F1}\ns_lshl_b32 s{sA}, s{SW}, 9\ns_add_u32 s{sA}, s{sA}, 2048\ns_lshl_b32 s{sC}, s{sI}, 7")
    A(f"v_and_b32 v10, 3, v1\nv_lshl_add_u32 v10, v10, 7, s{sA}\nv_bfe_u32 v11, v1, 2, 1\nv_lshl_add_u32 v10, v11, 11, v10\nv_writelane_b32 v10, s{sC}, 8")
    poll(10, sT, 9, 8); stamp("s1")
    def kvload(n):
        pre = [f"s_mov_b32 s{sKN}, {n*4096}"]
        return pre + [f"buffer_load_dwordx4 {v(KV+16*(n&3)+4*f,4)}, v{VKV}, {R(RWS)}, s{sKN} offen offset:{f*1024} sc1" for f in range(4)]
    def emit(lines, tag):
        for ln in lines:
            A(ln)
            if ln.startswith("buffer_"): vm.issue(tag)
    for f in range(2): A(f"buffer_load_dwordx4 {v(Q+4*f,4)}, v{VL}, {R(RWS)}, s{sU} offen offset:{f*1024} sc1"); vm.issue("q")
    emit(kvload(0), "kv0")
    A("s_waitcnt vmcnt(2)"); stamp("qk0")
    A(f"{MFMA} {v(O,16)}, {v(KV,4)}, {v(Q,4)}, 0\n{MFMA} {v(O,16)}, {v(KV+4,4)}, {v(Q+4,4)}, {v(O,16)}")
    emit(kvload(1), "kv1")
    A(f"ds_write_b128 v{VRW[0]}, {v(Q,4)}")
    tilemax(O, T0, T1)
    A(f"v_max_f32 v{T0}, v{T0}, v{T1}\nv_mov_b32 v{T1}, v{T0}\nv_permlane32_swap_b32 v{T0}, v{T1}\nv_max_f32 v{T0}, v{T0}, v{T1}")
    set_qpad(Q, T0, T1, T2, T3)
    A(f"ds_write_b128 v{VRW[0]}, {v(Q+4,4)} offset:1024\ns_waitcnt lgkmcnt(0)")
    emit(kvload(2), "kv2")
    A("s_barrier")
    for t in range(1, 4): A(f"ds_read_b128 {v(Q+8*t,4)}, v{VRW[t]}\nds_read_b128 {v(Q+8*t+4,4)}, v{VRW[t]} offset:1024")
    emit(kvload(3), "kv3")
    A("P2_MAIN:")
    def qk(idx, part):
        n, t = idx >> 2, idx & 3; sr = SS[idx & 1]; k = KV + 16*(n & 3)
        return f"{MFMA} {v(sr,16)}, {v(k+4*part,4)}, {v(Q+8*t+4*part,4)}, {'0' if part == 0 else v(sr,16)}"
    def pv(idx, part):
        n, t = idx >> 2, idx & 3; k = KV + 16*(n & 3) + 8; o = O + 16*t
        return f"{MFMA} {v(o,16)}, {v(k+4*part,4)}, {v(PP[idx&1]+4*part,4)}, {'0' if (n == 0 and part == 0) else v(o,16)}"
    NI = 64
    A(qk(0, 0)); A(qk(0, 1)); A("s_waitcnt lgkmcnt(0)")
    for idx in range(NI):
        n, t = idx >> 2, idx & 3
        if idx in (16, 32, 48): stamp(f"a{idx}")
        if idx == 1: vm.wait("kv0")
        if env("BDEL", 0) and idx == env("BDEL", 0): A("s_barrier")
        if t == 3 and n + 1 < 16: vm.wait(f"kv{n+1}")
        mf = [qk(idx+1, 0) if idx+1 < NI else None, pv(idx-1, 0) if idx > 0 else None,
              qk(idx+1, 1) if idx+1 < NI else None, pv(idx-1, 1) if idx > 0 else None]
        sr, p = SS[idx & 1], PP[idx & 1]
        for q in range(4):
            if mf[q]: A(mf[q])
            for j in range(4): A(f"v_exp_f32 v{sr+4*q+j}, v{sr+4*q+j}")
            if q > 0:
                for j in range(2): A(f"v_cvt_pk_bf16_f32 v{p+2*(q-1)+j}, v{sr+4*(q-1)+2*j}, v{sr+4*(q-1)+2*j+1}")
        if t == 0 and 1 <= n < 13: emit(kvload(n + 3), f"kv{n+3}")
        for j in range(2): A(f"v_cvt_pk_bf16_f32 v{p+6+j}, v{sr+12+2*j}, v{sr+12+2*j+1}")
    A(pv(NI-1, 0)); A(pv(NI-1, 1)); stamp("aend")
    for t in (1, 2):
        for g in range(3): A(f"ds_write_b128 v{VRW[t]}, {v(O+16*t+4*g,4)} offset:{(t-1)*4096 + g*1024}")
    A(f"s_mov_b32 s{sT}, {fl(2.0**30)}")
    A(f"v_cmp_nlt_f32 s[{sA}:{sA+1}], v{O+12}, s{sT}\nv_cmp_nlt_f32 s[{sC}:{sC+1}], v{O+28}, s{sT}\ns_or_b32 s{sU}, s{sA+1}, s{sC+1}")
    A(f"v_cmp_nlt_f32 s[{sA}:{sA+1}], v{O+44}, s{sT}\nv_cmp_nlt_f32 s[{sC}:{sC+1}], v{O+60}, s{sT}\ns_or_b32 s{sU}, s{sU}, s{sA+1}\ns_or_b32 s{sU}, s{sU}, s{sC+1}")
    A(f"s_cselect_b32 s{sU}, 1.0, 0\nv_mov_b32 v{T0}, s{sU}")
    for t in range(4): A(f"v_cndmask_b32 v{O+16*t+13}, v{O+16*t+13}, v{T0}, s[{sHI}:{sHI+1}]")
    for g in range(3): A(f"ds_write_b128 v{VRW[3]}, {v(O+48+4*g,4)} offset:{2*4096 + g*1024}")
    for t in range(1, 4): A(f"ds_write_b128 v{VRW[t]}, {v(O+16*t+12,4)} offset:{(t-1)*4096 + 3*1024}")
    A(f"s_lshl_b32 s{sD_}, s{sI}, 2\ns_add_u32 s{sD_}, s{sD_}, s{SW}\ns_lshl_b32 s{sV}, s{sD_}, 4\ns_add_u32 s{sV}, s{sV}, s{sH}\ns_lshl_b32 s{sV}, s{sV}, 11\ns_add_u32 s{sV}, s{sV}, {WS_O}")
    A("s_waitcnt lgkmcnt(0)\ns_barrier")
    for g in (3, 0, 1, 2):
        for t in range(1, 4): A(f"ds_read_b128 {v(O+16*t+4*g,4)}, v{VRW[0]} offset:{(t-1)*4096 + g*1024}")
    def red(g):
        for r in (4*g, 4*g+2):
            A(f"v_pk_add_f32 {v(O+r,2)}, {v(O+r,2)}, {v(O+16+r,2)}\nv_pk_add_f32 {v(O+32+r,2)}, {v(O+32+r,2)}, {v(O+48+r,2)}")
        for r in (4*g, 4*g+2): A(f"v_pk_add_f32 {v(O+r,2)}, {v(O+r,2)}, {v(O+32+r,2)}")
    A("s_waitcnt lgkmcnt(9)"); red(3)
    A(f"v_readlane_b32 s{sT}, v{O+13}, 32\nv_mov_b32 v{T0}, v{O+12}\nv_mov_b32 v{T2}, v{O+12}\nv_permlane32_swap_b32 v{T0}, v{T2}\nv_rcp_f32 v{T2}, v{T2}")
    A(f"s_cmp_lg_u32 s{sT}, s{sRETRY}\ns_cbranch_scc1 P2_FALL\nP2_FIN:")
    for k, g in enumerate((0, 1, 2)):
        A(f"s_waitcnt lgkmcnt({6 - 3*k})"); red(g)
    for r in range(0, 16, 2): A(f"v_pk_mul_f32 {v(O+r,2)}, {v(O+r,2)}, {v(T2,2)} op_sel_hi:[1,0]")
    for r in range(8): A(f"v_cvt_pk_bf16_f32 v{O+16+r}, v{O+2*r}, v{O+2*r+1}")
    A(f"v_cndmask_b32 v{O+22}, v{O+22}, 0, s[{sHI}:{sHI+1}]\nv_cndmask_b32 v{O+23}, v{O+23}, 0, s[{sHI}:{sHI+1}]")
    sanitize(O+19, O+23)
    for f in range(2): A(f"buffer_store_dwordx4 {v(O+16+4*f,4)}, v{VL}, {R(RWS)}, s{sV} offen offset:{f*1024} sc1")
    stamp("ost"); stamp_flush()
    A("s_barrier")
    def fallback():
        A(f"P2_FALL:\ns_cmp_lg_u32 s{sRETRY}, 0\ns_cbranch_scc1 P2_FIN")
        A(f"s_mov_b32 s{sRETRY}, -1\ns_waitcnt vmcnt(0) lgkmcnt(0)")
        for t in range(4):
            A(f"v_cndmask_b32 v{Q+8*t+6}, v{Q+8*t+6}, 0, s[{sHI}:{sHI+1}]\nv_cndmask_b32 v{Q+8*t+7}, v{Q+8*t+7}, 0, s[{sHI}:{sHI+1}]\nv_mov_b32 v{M[t]}, 0xff800000")
        A(f"s_mov_b32 s{sU}, 0\nP2_MAXLOOP:")
        for f in range(2): A(f"buffer_load_dwordx4 {v(K0+4*f,4)}, v{VKV}, {R(RWS)}, s{sU} offen offset:{f*1024} sc1")
        A("s_waitcnt vmcnt(0)")
        for t in range(4):
            A(f"{MFMA} {v(O+16*t,16)}, {v(K0,4)}, {v(Q+8*t,4)}, 0\n{MFMA} {v(O+16*t,16)}, {v(K0+4,4)}, {v(Q+8*t+4,4)}, {v(O+16*t,16)}")
        for t in range(4):
            tilemax(O+16*t, T0, T1); A(f"v_max3_f32 v{M[t]}, v{M[t]}, v{T0}, v{T1}")
        A(f"s_add_u32 s{sU}, s{sU}, 4096\ns_cmp_lt_u32 s{sU}, {16*4096}\ns_cbranch_scc1 P2_MAXLOOP")
        A(f"s_barrier\nv_and_b32 v{T3}, 31, v1\nv_lshlrev_b32 v{T3}, 4, v{T3}")
        for t in range(4):
            A(f"v_mov_b32 v{T2}, v{M[t]}\nv_permlane32_swap_b32 v{M[t]}, v{T2}\nv_max_f32 v{M[t]}, v{M[t]}, v{T2}")
            A(f"s_add_u32 s{sT}, s{SW}, {t}\ns_and_b32 s{sT}, s{sT}, 3\ns_lshl_b32 s{sT}, s{sT}, 9\ns_add_u32 s{sT}, s{sT}, {RBUF}\ns_lshl_b32 s{sU}, s{SW}, 2\ns_add_u32 s{sU}, s{sU}, s{sT}")
            A(f"v_add_u32 v{K0+t}, s{sT}, v{T3}\nv_add_u32 v{T2}, s{sU}, v{T3}\nds_write_b32 v{T2}, v{M[t]}")
        A("s_waitcnt lgkmcnt(0)\ns_barrier")
        for t in range(4): A(f"ds_read_b128 {v(O+4*t,4)}, v{K0+t}")
        for n in range(4):
            for ln in kvload(n): A(ln)
        A("s_waitcnt vmcnt(0) lgkmcnt(0)\ns_barrier")
        for t in range(4):
            A(f"v_max3_f32 v{M[t]}, v{O+4*t}, v{O+4*t+1}, v{O+4*t+2}\nv_max_f32 v{M[t]}, v{M[t]}, v{O+4*t+3}")
            set_qpad(Q+8*t, M[t], T0, T1, T2)
        A("s_branch P2_MAIN")
    return fallback

def p3():
    OFR, D1, D2, TF = 16, 144, 160, 176
    T0, T1, T2, T3 = 8, 9, 10, 11
    A(f"{MFMA} {v(D1,16)}, {v(XR,4)}, {v(IR3,4)}, 0\n{MFMA} {v(D2,16)}, {v(IR3,4)}, {v(XR,4)}, 0")
    A(f"{MFMA} {v(D1,16)}, {v(XR+4,4)}, {v(IR3+4,4)}, {v(D1,16)}\n{MFMA} {v(D2,16)}, {v(IR3+4,4)}, {v(XR+4,4)}, {v(D2,16)}")
    A(f"s_lshl_b32 s{sB}, s{sR3}, 15\ns_add_u32 s{sB}, s{sB}, {WS_O}\nv_add_u32 v{T2}, s{sB}, v{VL}\ns_and_b32 s{sA}, s{sC3}, 7\ns_lshl_b32 s{sA}, s{sA}, 12")
    A("s_barrier")
    A(f"s_cmp_lt_u32 s{sC3}, 14\ns_cbranch_scc1 P3_GO\ns_barrier\ns_branch P3_END\nP3_GO:")
    vm.q = []; lg.q = []
    so = Stream("SO", 8, lambda g: [(OFR+16*g+4*k, T2, k*1024) for k in range(4)],
                lambda g: A(f"s_add_u32 s{sT}, s{sA}, {g*4096}\ns_and_b32 s{sT}, s{sT}, 0x7fff"), T0)
    NPRE = 3
    for m in range(NPRE): so.issue(m)
    def wread(ks):
        n, p = ks >> 1, ks & 1
        for half in range(2):
            A(f"ds_read_b64_tr_b16 {v(TF+4*(ks&3)+2*half,2)}, v{VWO} offset:{(n>>2)*12288 + (n&3)*2048 + (16*p+8*half)*64}"); lg.issue(f"w{ks}")
    wread(0); wread(1)
    so.check1(0); so.check2(0)
    for ks in range(32):
        lg.wait(f"w{ks}")
        if ks in (0, 16): stamp(f"p3_{ks}")
        o, wv = v(OFR+4*ks, 4), v(TF+4*(ks&3), 4)
        A(f"{MFMA} {v(D2,16)}, {wv}, {o}, {v(D2,16)}")
        if ks + 2 < 32: wread(ks + 2)
        A(f"{MFMA} {v(D1,16)}, {o}, {wv}, {v(D1,16)}")
        if ks % 4 == 0: so.issue(NPRE + ks//4)
        if ks % 4 == 2: so.check1(ks//4 + 1)
        if ks % 4 == 3: so.check2(ks//4 + 1)
    stamp("p3mm")
    G = 16
    A(f"s_lshl_b32 s{sB}, s{sR3}, 13\ns_add_u32 s{sB}, s{sB}, {WS_ST}\ns_lshl_b32 s{sT}, s{sC3}, 9\ns_add_u32 s{sT}, s{sT}, s{sB}")
    A(f"v_mov_b32 v{G+1}, s{sTAG}\nv_mov_b32 v{G+3}, s{sTAG+1}")
    A(f"v_pk_add_f32 v[20:21], {v(D2,2)}, {v(D2+2,2)}\nv_pk_mul_f32 v[22:23], {v(D2,2)}, {v(D2,2)}\nv_pk_fma_f32 v[22:23], {v(D2+2,2)}, {v(D2+2,2)}, v[22:23]")
    for r in range(4, 16, 2): A(f"v_pk_add_f32 v[20:21], v[20:21], {v(D2+r,2)}\nv_pk_fma_f32 v[22:23], {v(D2+r,2)}, {v(D2+r,2)}, v[22:23]")
    A(f"v_add_f32 v{G}, v20, v21\nv_add_f32 v{G+2}, v22, v23")
    A(f"v_mov_b32 v20, v{G}\nv_mov_b32 v22, v{G+2}\nv_permlane32_swap_b32 v{G}, v20\nv_permlane32_swap_b32 v{G+2}, v22\nv_add_f32 v{G}, v{G}, v20\nv_add_f32 v{G+2}, v{G+2}, v22")
    set_exec(0xFFFFFFFF)
    A(f"buffer_store_dwordx4 {v(G,4)}, v{VL}, {R(RWS)}, s{sT} offen sc1\ns_mov_b64 exec, -1")
    for r in range(8): A(f"v_cvt_pk_bf16_f32 v{24+r}, v{D2+2*r}, v{D2+2*r+1}")
    sanitize(27, 31)
    A(f"s_mul_i32 s{sT}, s{sR3}, 14\ns_add_u32 s{sT}, s{sT}, s{sC3}\ns_lshl_b32 s{sT}, s{sT}, 11\ns_add_u32 s{sT}, s{sT}, {WS_HF}")
    for p in range(2): A(f"buffer_store_dwordx4 {v(24+4*p,4)}, v{VL}, {R(RWS)}, s{sT} offen offset:{p*1024} sc1")
    A(f"v_and_b32 v{T0}, 31, v1\nv_lshlrev_b32 v{T0}, 4, v{T0}\nv_lshrrev_b32 v{T1}, 5, v1\nv_mul_u32_u24 v{T1}, 3584, v{T1}\nv_add_u32 v{T0}, v{T0}, v{T1}")
    A("s_barrier")
    if env("S3W", 1): A("s_waitcnt vmcnt(2)")
    stamp("s3pre")
    GR = 32
    A(f"s_mov_b32 s{sTO}, 0x40000\nP3_GL:")
    for k in range(7): A(f"buffer_load_dwordx4 {v(GR+4*k,4)}, v{T0}, {R(RWS)}, s{sB} offen offset:{k*512} sc1")
    A(f"s_sub_u32 s{sTO}, s{sTO}, 1\ns_waitcnt vmcnt(0)\ns_cbranch_scc1 P3_GX")
    tagcheck([GR+4*k for k in range(7)], T1, T2, T3)
    A("s_cbranch_vccnz P3_GL\nP3_GX:")
    vm.q = []
    stamp("s3")
    for k in range(1, 7): A(f"v_add_f32 v{GR}, v{GR}, v{GR+4*k}\nv_add_f32 v{GR+2}, v{GR+2}, v{GR+4*k+2}")
    m, q = GR, GR+2
    A(f"v_mov_b32 v{T0}, v{m}\nv_mov_b32 v{T1}, v{q}\nv_permlane32_swap_b32 v{m}, v{T0}\nv_permlane32_swap_b32 v{q}, v{T1}\nv_add_f32 v{m}, v{m}, v{T0}\nv_add_f32 v{q}, v{q}, v{T1}")
    A(f"v_mul_f32 v{m}, {fl(1.0/D)}, v{m}\nv_mul_f32 v{q}, {fl(1.0/D)}, v{q}\nv_fma_f32 v{q}, -v{m}, v{m}, v{q}\nv_max_f32 v{q}, 0, v{q}")
    A(f"v_add_f32 v{T0}, {fl(EPS)}, v{q}\nv_mul_f32 v{T0}, {fl(EPS)}, v{T0}\nv_add_f32 v{q}, v{q}, v{T0}\nv_rsq_f32 v{q}, v{q}\ns_add_u32 s{sT}, s{sRBW}, 8192\nv_mul_f32 v{m}, v{m}, v{q}")
    A(f"v_cndmask_b32 v{T0}, v{q}, v{m}, s[{sHI}:{sHI+1}]\nv_lshl_add_u32 v{T1}, v1, 2, s{sT}\nds_write_b32 v{T1}, v{T0}")
    A(f"v_lshrrev_b32 v{T2}, 5, v1\nv_lshl_add_u32 v{T2}, v{T2}, 4, s{sT}")
    for g in range(4): A(f"ds_read_b128 {v(64+4*g,4)}, v{T2} offset:{g*32}\nds_read_b128 {v(80+4*g,4)}, v{T2} offset:{128+g*32}")
    A(f"s_lshl_b32 s{sT}, s{sC3}, 17\ns_lshl_b32 s{sU}, s{sR3}, 11\ns_add_u32 s{sT}, s{sT}, s{sU}\ns_add_u32 s{sT}, s{sT}, {WS_HH}")
    for p in range(2):
        A(f"s_waitcnt lgkmcnt({4 - 4*p})")
        for r in range(8*p, 8*p+8, 2): A(f"v_pk_fma_f32 {v(D1+r,2)}, {v(D1+r,2)}, {v(64+r,2)}, {v(80+r,2)} neg_lo:[0,0,1] neg_hi:[0,0,1]")
        for r in range(4*p, 4*p+4): A(f"v_cvt_pk_bf16_f32 v{24+r}, v{D1+2*r}, v{D1+2*r+1}")
        sanitize(27+4*p)
        A(f"buffer_store_dwordx4 {v(24+4*p,4)}, v{VL}, {R(RWS)}, s{sT} offen offset:{p*1024} sc1")
    stamp("hhst"); stamp_flush()
    A("P3_END:")
    vm.q = []; lg.q = []

PRE, ACC = 128, 16
def preread():
    for n in range(14):
        for ti in range(2):
            for half in range(2):
                A(f"ds_read_b64_tr_b16 {v(PRE + 8*n + ti*4 + half*2, 2)}, v{VRD[ti]} offset:{n*2048 + half*1024}")

def p4():
    RING, NR = 80, 6
    T0, T1, BR, VH = 4, 5, 6, [14, 15]
    preread()
    A("s_waitcnt lgkmcnt(0)\ns_barrier")
    stamp("hhflag"); stamp_flush()
    A(f"s_cmp_lg_u32 s{sACT4}, 0\ns_cbranch_scc1 P4_GO\ns_barrier\ns_barrier\ns_barrier\ns_barrier\ns_branch P4_END\nP4_GO:")
    sFO, sRO = sA, sD_
    A(f"s_lshr_b32 s{sFO}, s{SW}, 1\ns_lshl_b32 s{sT}, s{sFT}, 1\ns_add_u32 s{sFO}, s{sFO}, s{sT}\ns_lshl_b32 s{sT}, s{sFO}, 6\nv_lshrrev_b32 v{T0}, 5, v1\nv_lshlrev_b32 v{T0}, 3, v{T0}")
    for g in range(4): A(f"buffer_load_dwordx2 {v(BR+2*g,2)}, v{T0}, {R(RB1)}, s{sT} offen offset:{g*16}")
    A(f"s_and_b32 s{sE}, s{SW}, 1\ns_lshl_b32 s{sT}, s{sDT4}, 1\ns_add_u32 s{sE}, s{sE}, s{sT}\ns_xor_b32 s{sU}, s{sE}, 1")
    A(f"s_lshl_b32 s{sT}, s{SW}, 15\ns_add_u32 s{sT}, s{sT}, {WS_HH}\ns_lshl_b32 s{sB}, s{sE}, 17\ns_add_u32 s{sB}, s{sB}, s{sT}\ns_lshl_b32 s{sC}, s{sU}, 17\ns_add_u32 s{sC}, s{sC}, s{sT}")
    A(f"v_add_u32 v{VH[0]}, s{sB}, v{VL}\nv_add_u32 v{VH[1]}, s{sC}, v{VL}")
    rot4(sRO); A(f"s_lshl_b32 s{sRO}, s{sRO}, 10")
    for sl in range(1, 4):
        A(f"s_xor_b32 s{sU}, s{SW}, {sl}\ns_mul_i32 s{sU}, s{sU}, 12288\ns_add_u32 s{sU}, s{sU}, {RBUF}\nv_add_u32 v{VRW[sl]}, s{sU}, v{VL}")
    dreg = lambda n, j: RING + (n % NR)*8 + 4*j
    dest = lambda n, j: v(dreg(n, j), 4)
    vm.q = []
    sh = Stream("SH", 16, lambda g: [(dreg(2*g+k, j), VH[j], k*1024) for k in range(2) for j in range(2)],
                lambda g: A(f"s_add_u32 s{sT}, s{sRO}, {g*2048}\ns_and_b32 s{sT}, s{sT}, 0x7fff"), T0)
    wreg = lambda n, ti: v(PRE + 8*(n if n < 14 else n & 3) + 4*ti, 4)
    def tread(n, ti):
        va, off = (VRB, (n-14)*2048) if n < 18 else (VRD, (n-18)*2048)
        for half in range(2): A(f"ds_read_b64_tr_b16 {v(PRE + 8*(n&3) + ti*4 + half*2, 2)}, v{va[ti]} offset:{off + half*1024}"); lg.issue(n)
    for g in range(NR//2): sh.issue(g)
    sh.check1(0); sh.check2(0)
    for n in range(32):
        if n == 0: stamp("p4first")
        if n in (8, 16, 24): stamp(f"p4_{n}")
        if n == 12: A("s_barrier")
        lg.wait(n)
        if n == 25: A("s_barrier")
        if n == 31: A("s_barrier")
        order = [(0, 0), (0, 1), (1, 0), (1, 1)] if n < 31 else [(0, 1), (1, 0), (1, 1), (0, 0)]
        for k, (ti, tj) in enumerate(order):
            acc = ACC + 16*(2*ti + tj)
            A(f"{MFMA} {v(acc,16)}, {wreg(n,ti)}, {dest(n,tj)}, {'0' if n == 0 else v(acc,16)}")
            if k < 2 and 14 <= n + 2 < 32: tread(n + 2, k)
            if n & 1 and k == 2: sh.check1(n//2 + 1)
        if n & 1: sh.check2(n//2 + 1); sh.issue(n//2 + NR//2)
    stamp("p4mm")
    for sl in (1, 2, 3):
        for g in range(4): A(f"ds_write_b128 v{VRW[sl]}, {v(ACC+16*sl+4*g,4)} offset:{(sl-1)*4096 + g*1024}")
    for j in range(8):
        A(f"v_lshlrev_b32 v80, 16, v{BR+j}\nv_and_b32 v81, 0xffff0000, v{BR+j}\nv_pk_add_f32 {v(ACC+2*j,2)}, {v(ACC+2*j,2)}, v[80:81]")
    c1 = -2.0*math.sqrt(2.0/math.pi)*math.log2(math.e); c2 = c1*0.044715
    A(f"v_mov_b32 v82, {fl(c2)}\nv_mov_b32 v84, {fl(c1)}")
    A(f"s_mul_i32 s{sT}, s{sE}, {112*1024}\ns_lshl_b32 s{sU}, s{sFO}, 11\ns_add_u32 s{sT}, s{sT}, s{sU}\ns_add_u32 s{sT}, s{sT}, {WS_G}")
    A("s_waitcnt lgkmcnt(0)\ns_barrier")
    for g in range(4):
        for sl in range(1, 4): A(f"ds_read_b128 {v(ACC+16*sl+4*g,4)}, v{VRW[0]} offset:{(sl-1)*4096 + g*1024}")
    for g in range(4):
        A(f"s_waitcnt lgkmcnt({9-3*g})")
        rs = (16+4*g, 18+4*g)
        for r in rs: A(f"v_pk_add_f32 {v(r,2)}, {v(r,2)}, {v(r+16,2)}\nv_pk_add_f32 {v(r+32,2)}, {v(r+32,2)}, {v(r+48,2)}")
        for r in rs: A(f"v_pk_add_f32 {v(r,2)}, {v(r,2)}, {v(r+32,2)}")
        for r in rs: A(f"v_pk_mul_f32 {v(r+16,2)}, {v(r,2)}, {v(r,2)}")
        for r in rs: A(f"v_pk_fma_f32 {v(r+16,2)}, {v(r+16,2)}, v[82:83], v[84:85] op_sel_hi:[1,0,0]")
        for r in rs: A(f"v_pk_mul_f32 {v(r+16,2)}, {v(r+16,2)}, {v(r,2)}")
        for r in range(32+4*g, 36+4*g): A(f"v_exp_f32 v{r}, v{r}")
        for r in rs: A(f"v_pk_add_f32 {v(r+16,2)}, {v(r+16,2)}, 1.0 op_sel_hi:[1,0]")
        for r in range(32+4*g, 36+4*g): A(f"v_rcp_f32 v{r}, v{r}")
        for r in rs: A(f"v_pk_mul_f32 {v(r,2)}, {v(r,2)}, {v(r+16,2)}")
        for k, r in enumerate(rs): A(f"v_cvt_pk_bf16_f32 v{88+2*g+k}, v{r}, v{r+1}")
        if g & 1: sanitize(89+2*g)
        if g & 1: A(f"buffer_store_dwordx4 {v(88+4*(g>>1),4)}, v{VL}, {R(RWS)}, s{sT} offen offset:{(g>>1)*1024} sc1")
    stamp("gst"); stamp_flush()
    A("P4_END:\ns_barrier")
    vm.q = []; lg.q = []
    preread()
    A("s_waitcnt lgkmcnt(0)\ns_barrier")
    stamp("gflag"); stamp_flush()

def p5():
    T0, T1, T2 = 4, 5, 6
    RING, NR, HR, IR, VO, B2R, VG, TC = 80, 6, 64, 246, 3, 8, [12, 13], 254
    A(f"s_cmp_ge_u32 s{sJ}, 28\ns_cbranch_scc1 K_FIN")
    sGC = sC
    A(f"s_and_b32 s{sE}, s{SW}, 1\ns_lshl_b32 s{sT}, s{sDT5}, 1\ns_add_u32 s{sE}, s{sE}, s{sT}\ns_xor_b32 s{sU}, s{sE}, 1")
    A(f"s_lshr_b32 s{sV}, s{SW}, 1\ns_lshl_b32 s{sT}, s{sST}, 1\ns_add_u32 s{sV}, s{sV}, s{sT}\ns_mul_i32 s{sV}, s{sV}, 14\ns_add_u32 s{sV}, s{sV}, s{sE}\ns_lshl_b32 s{sV}, s{sV}, 11\ns_add_u32 s{sV}, s{sV}, {WS_HF}")
    vm.q = []
    A(f"v_lshrrev_b32 v{T0}, 3, v0\nv_mul_u32_u24 v{VO}, 896, v{T0}\nv_and_b32 v{T1}, 7, v0\nv_lshl_add_u32 v{VO}, v{T1}, 4, v{VO}\nv_lshlrev_b32 v{T0}, 1, v{T0}\ns_lshl_b32 s{sT}, s{sST}, 7")
    A(f"buffer_load_ushort v{B2R}, v{T0}, {R(RB2)}, s{sT} offen\nbuffer_load_ushort v{B2R+2}, v{T0}, {R(RB2)}, s{sT} offen offset:64")
    sx = Stream("SX", 1, lambda g: [(HR+4*p, VL, p*1024) for p in range(2)], lambda g: A(f"s_mov_b32 s{sT}, s{sV}"), TC)
    sx.issue(0)
    A(f"s_mul_i32 s{sT}, s{SW}, {28*1024}\ns_add_u32 s{sT}, s{sT}, {WS_G}\ns_mul_i32 s{sA}, s{sE}, {112*1024}\ns_add_u32 s{sA}, s{sA}, s{sT}\ns_mul_i32 s{sB}, s{sU}, {112*1024}\ns_add_u32 s{sB}, s{sB}, s{sT}")
    A(f"v_add_u32 v{VG[0]}, s{sA}, v{VL}\nv_add_u32 v{VG[1]}, s{sB}, v{VL}")
    rot5(sGC); A(f"s_lshl_b32 s{sGC}, s{sGC}, 10")
    dreg = lambda n, j: RING + (n % NR)*8 + 4*j
    dest = lambda n, j: v(dreg(n, j), 4)
    sg = Stream("SG", 14, lambda g: [(dreg(2*g+k, j), VG[j], k*1024) for k in range(2) for j in range(2)],
                lambda g: A(f"s_add_u32 s{sT}, s{sGC}, {g*2048}\ns_sub_u32 s{sD_}, s{sT}, {28*1024}\ns_min_u32 s{sT}, s{sT}, s{sD_}"), TC)
    for g in range(NR//2): sg.issue(g)
    A(f"v_and_b32 v{T0}, 31, v1\nv_lshrrev_b32 v{T1}, 5, v1\nv_lshlrev_b32 v{T1}, 2, v{T1}\nv_sub_u32 v{T0}, v{T0}, v{T1}")
    for p in range(2):
        for r in range(4):
            d0 = 16*p + 8*(r >> 1) + 2*(r & 1)
            A(f"v_cmp_eq_u32 vcc, {d0}, v{T0}\nv_cmp_eq_u32 s[{sA}:{sA+1}], {d0+1}, v{T0}\nv_cndmask_b32 v{IR+4*p+r}, 0, v{VONE}, vcc\nv_cndmask_b32 v{IR+4*p+r}, v{IR+4*p+r}, v{VONE+1}, s[{sA}:{sA+1}]")
    VWA = [4, 5, 6, 7]; VRA = [14, 15]
    A(f"v_and_b32 v14, 31, v1\nv_mul_u32_u24 v14, 272, v14\nv_lshrrev_b32 v15, 5, v1\nv_lshl_add_u32 v14, v15, 4, v14\nv_add_u32 v14, s{sW2W}, v14")
    for sl in range(4):
        A(f"s_xor_b32 s{sT}, s{SW}, {sl}\ns_lshr_b32 s{sU}, s{sT}, 1\ns_mul_i32 s{sU}, s{sU}, {32*272}\ns_and_b32 s{sT}, s{sT}, 1\ns_lshl_b32 s{sT}, s{sT}, 7\ns_add_u32 s{sT}, s{sT}, s{sU}\nv_add_u32 v{VWA[sl]}, s{sT}, v14")
    A(f"v_lshrrev_b32 v14, 3, v0\nv_mul_u32_u24 v14, 272, v14\nv_and_b32 v15, 7, v0\nv_lshl_add_u32 v14, v15, 5, v14\nv_add_u32 v15, {2*28672}, v14")
    sx.check1(0); sx.check2(0)
    A(f"{MFMA} {v(ACC,16)}, {v(IR,4)}, {v(HR,4)}, 0\n{MFMA} {v(ACC,16)}, {v(IR+4,4)}, {v(HR+4,4)}, {v(ACC,16)}")
    A(f"v_lshlrev_b32 v{B2R}, 16, v{B2R}\nv_lshlrev_b32 v{B2R+2}, 16, v{B2R+2}")
    wreg = lambda n, ti: v(PRE + 8*(n if n < 14 else n & 3) + 4*ti, 4)
    def tread(n, ti):
        for half in range(2): A(f"ds_read_b64_tr_b16 {v(PRE + 8*(n&3) + ti*4 + half*2, 2)}, v{VRD[ti]} offset:{(n-14)*2048 + half*1024}"); lg.issue(n)
    sg.check1(0); sg.check2(0)
    for n in range(28):
        if n == 0: stamp("p5first")
        if n in (7, 14, 21): stamp(f"p5_{n}")
        if n == 12: A("s_barrier")
        lg.wait(n)
        for k, (ti, tj) in enumerate([(0, 0), (0, 1), (1, 0), (1, 1)]):
            acc = ACC + 16*(2*ti + tj)
            A(f"{MFMA} {v(acc,16)}, {dest(n,tj)}, {wreg(n,ti)}, {'0' if n == 0 and k else v(acc,16)}")
            if k < 2 and 14 <= n + 2 < 28: tread(n + 2, k)
            if n & 1 and k == 2: sg.check1(n//2 + 1)
        if n & 1: sg.check2(n//2 + 1); sg.issue(n//2 + NR//2)
    A(f"s_mul_i32 s{sT}, s{sST}, {64*896}\ns_lshl_b32 s{sU}, s{sDT5}, 7\ns_add_u32 s{sT}, s{sT}, s{sU}\ns_add_u32 s{sU}, s{sT}, {32*896}")
    stamp("p5mm")
    for sl in range(4):
        for g in range(4): A(f"ds_write_b128 v{VWA[sl]}, {v(ACC+16*sl+4*g,4)} offset:{g*32}")
    A("s_waitcnt lgkmcnt(0)\ns_barrier")
    for rr in range(2):
        for w in range(4):
            for q in range(2):
                A(f"ds_read_b128 {v(16+16*w+8*rr+4*q,4)}, v{VRA[w>>1]} offset:{(w&1)*28672 + rr*32*272 + q*16}")
    for rr in range(2):
        A(f"s_waitcnt lgkmcnt({8 if rr == 0 else 0})")
        rs = range(16+8*rr, 24+8*rr, 2)
        for r in rs: A(f"v_pk_add_f32 {v(r,2)}, {v(r,2)}, {v(r+16,2)}\nv_pk_add_f32 {v(r+32,2)}, {v(r+32,2)}, {v(r+48,2)}")
        for r in rs: A(f"v_pk_add_f32 {v(r,2)}, {v(r,2)}, {v(B2R+2*rr,2)} op_sel_hi:[1,0]")
        for r in rs: A(f"v_pk_add_f32 {v(r,2)}, {v(r,2)}, {v(r+32,2)}")
        for r in range(4): A(f"v_cvt_pk_bf16_f32 v{80+4*rr+r}, v{16+8*rr+2*r}, v{17+8*rr+2*r}")
        A(f"buffer_store_dwordx4 {v(80+4*rr,4)}, v{VO}, {R(ROUT)}, s{[sT,sU][rr]} offen")
    stamp("outst"); stamp_flush()
    A("K_FIN:")
    if os.environ.get("DIAGAT"):
        A(f"DSP:\ns_memrealtime s[{sA}:{sA+1}]\ns_waitcnt lgkmcnt(0)\ns_sub_u32 s{sA}, s{sA}, s72\ns_cmp_lt_u32 s{sA}, 4000\ns_cbranch_scc1 DSP")
    if STAMP:
        A("s_waitcnt vmcnt(0)"); stamp("end"); A(f"s_memrealtime s[{sA}:{sA+1}]"); stamp_flush()
        A(f"v_writelane_b32 v{VST}, s72, 62\nv_writelane_b32 v{VST}, s{sA}, 63")
        A(f"s_lshl_b32 s{sT}, s2, 3\ns_add_u32 s{sT}, s{sT}, s{sW8}\ns_lshl_b32 s{sT}, s{sT}, 8\ns_add_u32 s{sT}, s{sT}, {WS_STAMP}\nv_lshlrev_b32 v4, 2, v1\nbuffer_store_dword v{VST}, v4, {R(RWS)}, s{sT} offen")
    A("K_END:\ns_endpgm")

PZ = 192
def poison_all(lab):
    for r in range(4): A(f"v_mov_b32 v{PZ+r}, -1")
    def poison():
        for p in range(2): A(f"buffer_store_dwordx4 {v(PZ,4)}, v{VL}, {R(RWS)}, s{sT} offen offset:{p*1024} sc1")
    A(f"s_lshl_b32 s{sT}, s{sI}, 2\ns_add_u32 s{sT}, s{sT}, s{SW}\ns_lshl_b32 s{sT}, s{sT}, 4\ns_add_u32 s{sT}, s{sT}, s{sH}\ns_lshl_b32 s{sT}, s{sT}, 11\ns_add_u32 s{sT}, s{sT}, {WS_O}")
    poison()
    A(f"s_cmp_ge_u32 s{sC3}, 14\ns_cbranch_scc1 {lab}1")
    A(f"s_mul_i32 s{sT}, s{sR3}, 14\ns_add_u32 s{sT}, s{sT}, s{sC3}\ns_lshl_b32 s{sT}, s{sT}, 11\ns_add_u32 s{sT}, s{sT}, {WS_HF}"); poison()
    A(f"s_lshl_b32 s{sT}, s{sC3}, 17\ns_lshl_b32 s{sU}, s{sR3}, 11\ns_add_u32 s{sT}, s{sT}, s{sU}\ns_add_u32 s{sT}, s{sT}, {WS_HH}"); poison()
    A(f"{lab}1:\ns_cmp_eq_u32 s{sACT4}, 0\ns_cbranch_scc1 {lab}2")
    A(f"s_and_b32 s{sT}, s{SW}, 1\ns_lshl_b32 s{sU}, s{sDT4}, 1\ns_add_u32 s{sT}, s{sT}, s{sU}\ns_mul_i32 s{sT}, s{sT}, {112*1024}\ns_lshr_b32 s{sU}, s{SW}, 1\ns_lshl_b32 s{sV}, s{sFT}, 1\ns_add_u32 s{sU}, s{sU}, s{sV}\ns_lshl_b32 s{sU}, s{sU}, 11\ns_add_u32 s{sT}, s{sT}, s{sU}\ns_add_u32 s{sT}, s{sT}, {WS_G}"); poison()
    A(f"{lab}2:")

def bprog():
    NT = env("NT", 0); nt = " nt" if NT else ""
    nt1 = " nt" if env("NT1", 0) else ""
    VXD = [16, 17, 18, 19]; VXE = [20, 21]; VWD = list(range(22, 29))
    sWO, sXO, sM, sWM = sA, sB, sC, sD_
    sXP, sWP = [sW1, sW1S, sW1E], [sW2, sW2S, sW2E]
    A("B_P1:"); vm.q = []; lg.q = []
    p1_common()
    A(f"s_mul_i32 s{sXO}, s{sE}, {32*896}\ns_lshl_b32 s{sWM}, s{SW}, 10")
    A("v_lshrrev_b32 v4, 4, v1\nv_and_b32 v5, 15, v1\nv_xor_b32 v5, v5, v4\nv_mul_u32_u24 v6, 896, v4")
    for j in range(4): A(f"v_xor_b32 v7, {4*j}, v5\nv_lshl_add_u32 v7, v7, 4, v6\nv_add_u32 v{VXD[j]}, {j*4*896 - j*1024}, v7")
    A(f"s_lshr_b32 s{sT}, s{sJ}, 2\ns_and_b32 s{sU}, s{sJ}, 3\ns_add_u32 s{sT}, s{sT}, s{sU}\ns_mul_i32 s{sU}, s{sT}, 11\ns_lshr_b32 s{sU}, s{sU}, 5\ns_mul_i32 s{sU}, s{sU}, 3\ns_sub_u32 s{sT}, s{sT}, s{sU}")
    if not env("P1ROT", 1): A(f"s_mov_b32 s{sT}, 0")
    for p in range(3):
        A(f"s_lshl_b32 s{sU}, s{sT}, 8\ns_add_u32 s{sXP[p]}, s{sXO}, s{sU}\ns_mul_i32 s{sU}, s{sT}, {128*2688}\ns_add_u32 s{sWP[p]}, s{sWO}, s{sU}")
        if p < 2: A(f"s_add_u32 s{sT}, s{sT}, 1\ns_cmp_eq_u32 s{sT}, 3\ns_cselect_b32 s{sT}, 0, s{sT}")
    def xpiece(p):
        if p < 3:
            for j in range(8):
                if j % 4 == 0: A(f"s_add_u32 m0, s{sM}, {XBUF[p] + (j>>2)*4096}\ns_add_u32 s{sV}, s{sXP[p]}, {(j>>2)*16*896}")
                A(f"buffer_load_dwordx4 v{VXD[j&3]}, {R(RX)}, s{sV} offen offset:{(j&3)*1024}{nt1} lds"); vm.issue(f"x{p}")
        else:
            for j in range(4):
                A(f"s_add_u32 m0, s{sM}, {XBUF[p] + j*1024}\ns_add_u32 s{sV}, s{sXO}, {(j>>1)*16*896 + 768}\nbuffer_load_dwordx4 v{VXE[j&1]}, {R(RX)}, s{sV} offen{nt1} lds"); vm.issue(f"x{p}")
    def wdma(j):
        g = j // 7
        if g == 3 and j == 21: A(f"s_add_u32 s{sT}, s{sWO}, {3*128*2688}")
        A(f"s_add_u32 m0, s{sWM}, {j*4096}\nbuffer_load_dwordx4 v{VWD[j%7]}, {R(RWQ)}, s{sWP[g] if g < 3 else sT} offen{nt1} lds"); vm.issue(f"w{g}")
    A("s_waitcnt lgkmcnt(0)")
    xpiece(0)
    for j in range(7):
        A(f"v_add_u32 v4, {256*j}, v0\nv_mul_u32_u24 v5, 4682, v4\nv_lshrrev_b32 v5, 16, v5\nv_mul_u32_u24 v6, 14, v5\nv_sub_u32 v4, v4, v6")
        A(f"v_and_b32 v6, 0xf8, v5\nv_and_b32 v7, 1, v5\nv_lshl_add_u32 v6, v7, 2, v6\nv_bfe_u32 v7, v5, 1, 2\nv_add_u32 v6, v6, v7\nv_mul_u32_u24 v6, 2688, v6\nv_lshl_add_u32 v{VWD[j]}, v4, 4, v6")
        wdma(j)
    xpiece(1)
    A("v_lshrrev_b32 v4, 3, v1\nv_mul_u32_u24 v6, 896, v4\nv_lshrrev_b32 v4, 4, v1\nv_and_b32 v5, 7, v1\nv_xor_b32 v5, v5, v4")
    for j in range(2): A(f"v_xor_b32 v7, {4*j}, v5\nv_lshl_add_u32 v7, v7, 4, v6\nv_add_u32 v{VXE[j]}, {j*8*896}, v7")
    prologue2()
    vm.wait("w0"); A("s_barrier\ns_barrier")
    for j in range(7, 14): wdma(j)
    xpiece(2)
    vm.wait("w1"); A("s_barrier\ns_barrier")
    for j in range(14, 21): wdma(j)
    xpiece(3)
    for j in range(21, 25): wdma(j)
    A("s_waitcnt lgkmcnt(0)")
    roles(touch=False)
    vm.wait("w2"); A("s_barrier")
    vm.wait_all()
    poison_all("B_PZA")
    A("s_barrier\ns_branch B_P2R")

def bprog2():
    NT = env("NT", 0); nt = " nt" if NT else ""
    A("B_P2:"); vm.q = []
    if STAMP: A("v_mov_b32 v15, -1\nB_P2S:"); st["v"] = 15
    roles(touch=False)
    poison_all("B_PZB")
    A("B_P2R:")
    if STAMP: A("s_cmp_ge_u32 s51, 24\ns_cbranch_scc1 B_P2T\nv_mov_b32 v15, -1\nB_P2T:")
    W1B, WOR, W2R0 = 16, 160, 192
    VT1, VT2, VTO, VDW, VDR = [4, 5], [6, 7], [8, 9], 10, 11
    A("v_lshrrev_b32 v12, 3, v1\nv_bfe_u32 v13, v1, 4, 1\nv_lshlrev_b32 v13, 2, v13\nv_and_b32 v14, 7, v1\nv_xor_b32 v14, v14, v13\nv_lshlrev_b32 v14, 4, v14")
    A(f"v_mul_u32_u24 v13, 3584, v12\nv_add_u32 v{VT1[0]}, v13, v14\nv_add_u32 v{VT1[1]}, {8*3584}, v{VT1[0]}\nv_lshl_add_u32 v{VT2[0]}, v12, 12, v14\nv_add_u32 v{VT2[1]}, {8*4096}, v{VT2[0]}")
    A(f"v_lshrrev_b32 v12, 2, v1\nv_mul_u32_u24 v12, 896, v12\nv_and_b32 v13, 3, v1\nv_lshl_add_u32 v{VTO[0]}, v13, 4, v12\nv_add_u32 v{VTO[1]}, {16*896}, v{VTO[0]}")
    A(f"v_add_u32 v{VDW}, s{sW2W}, v{VL}\nv_add_u32 v{VDR}, s{sRBW}, v{VL}")
    A(f"s_mul_i32 s{sW1S}, s{SW}, {512*3584}\ns_lshl_b32 s{sT}, s{sFT}, 7\ns_add_u32 s{sW1S}, s{sW1S}, s{sT}\ns_add_u32 s{sW1E}, s{sW1S}, {512*3584}")
    rot4(sT); A(f"s_mul_i32 s{sT}, s{sT}, {16*3584}\ns_add_u32 s{sW1}, s{sW1S}, s{sT}")
    A(f"s_mul_i32 s{sW2S}, s{SW}, {448*4096}\ns_lshl_b32 s{sT}, s{sST}, 7\ns_add_u32 s{sW2S}, s{sW2S}, s{sT}\ns_add_u32 s{sW2E}, s{sW2S}, {448*4096}")
    rot5(sT); A(f"s_lshl_b32 s{sT}, s{sT}, 16\ns_add_u32 s{sW2}, s{sW2S}, s{sT}")
    TH = env("BTH", 4)
    def adv(cur, st_, en, step): A(f"s_add_u32 s{cur}, s{cur}, {step}\ns_cmp_eq_u32 s{cur}, s{en}\ns_cselect_b32 s{cur}, s{st_}, s{cur}")
    def w2reg(n): return W2R0 + 8*n if n < 8 else (WOR + 8*(n-8) if n < 12 else W1B + 8*(n-12))
    def w2load(n, th=None):
        for j in range(2): A(f"buffer_load_dwordx4 {v(w2reg(n)+4*j,4)}, v{VT2[j]}, {R(RW2)}, s{sW2} offen{nt}"); vm.issue(f"v{n}")
        adv(sW2, sW2S, sW2E, 16*4096)
        if th: A(f"s_waitcnt vmcnt({th})")
    A(f"s_and_b32 s{sT}, s{sC3}, 7\ns_lshl_b32 s{sT}, s{sT}, 1\ns_lshl_b32 s{sB}, s{SW}, 2\ns_add_u32 s{sB}, s{sB}, s{sT}\ns_min_u32 s{sC}, s{sC3}, 13\ns_lshl_b32 s{sC}, s{sC}, 6")
    A(f"s_cmp_ge_u32 s{sJ}, 24\ns_cbranch_scc1 B_NOKV\ns_barrier\nB_NOKV:\ns_barrier")
    if env("BDEL", 0): A("s_barrier")
    stamp("b_go")
    A(f"v_mov_b32 v12, 0\nbuffer_load_dwordx2 v[{PZ+4}:{PZ+5}], v12, {R(RDBG)}, 0 offen sc1\nv_mov_b32 v13, s{sF[1]}\nv_writelane_b32 v13, s{sF[2]}, 1\nv_writelane_b32 v13, s{sF[3]}, 2\ns_waitcnt vmcnt(0)")
    A(f"v_readfirstlane_b32 s{sTAG}, v{PZ+4}\nv_readfirstlane_b32 s{sTAG+1}, v{PZ+5}")
    A(f"s_cmp_lg_u32 s{sACT4}, 0\ns_cselect_b32 exec_lo, 7, 3\ns_mov_b32 exec_hi, 0\nbuffer_store_dwordx2 v[{PZ+4}:{PZ+5}], v13, {R(RWS)}, 0 offen sc1\ns_mov_b64 exec, -1")
    W2T = env("W2T", 0)
    A(f"v_lshlrev_b32 v12, 7, v1\ns_lshl_b32 s{sA}, s2, 2\ns_add_u32 s{sA}, s{sA}, s{SW}\ns_mul_i32 s{sA}, s{sA}, {56*128}")
    for n in range(32):
        for j in range(2):
            if n < 14: A(f"s_add_u32 m0, s{sW2W}, {n*2048 + j*1024}\nbuffer_load_dwordx4 v{VT1[j]}, {R(RW1)}, s{sW1} offen{nt} lds")
            else: A(f"buffer_load_dwordx4 {v(W1B+8*(n-14)+4*j,4)}, v{VT1[j]}, {R(RW1)}, s{sW1} offen{nt}")
        adv(sW1, sW1S, sW1E, 16*3584); A(f"s_waitcnt vmcnt({TH})")
        if W2T and n % 4 == 0 and n // 4 < W2T:
            nl = 56 // W2T
            set_exec(((1 << nl) - 1) << (nl*(n//4))); A(f"buffer_load_dword v14, v12, {R(RW2)}, s{sA} offen\ns_mov_b64 exec, -1")
        if n == 16: TH = env("BTH2", 8)
        if n in (2, 4, 8, 16, 24): stamp(f"b_{n}")
        if n in (9, 11, 13, 15):
            k = (n - 9) // 2
            A(f"s_add_u32 s{sT}, s{sB}, {k}\ns_and_b32 s{sT}, s{sT}, 15\ns_mul_i32 s{sT}, s{sT}, {28*896}\ns_add_u32 s{sT}, s{sT}, s{sC}")
            for j in range(2): A(f"buffer_load_dwordx4 {v(WOR+8*k+4*j,4)}, v{VTO[j]}, {R(RWO)}, s{sT} offen")
            A(f"s_waitcnt vmcnt({TH})")
        if n >= 16 and n % 2 == 1: w2load((n - 16) // 2, TH)
    stamp("b_w1")
    A(f"s_lshl_b32 s{sT}, s{sR3}, 11\ns_add_u32 s{sT}, s{sT}, {F2}\nv_lshl_add_u32 v12, v1, 7, s{sT}")
    A(f"s_lshl_b32 s{sT}, s{sDT4}, 14\ns_lshl_b32 s{sU}, s{SW}, 11\ns_add_u32 s{sT}, s{sT}, s{sU}\ns_add_u32 s{sT}, s{sT}, {F4}")
    A(f"v_and_b32 v13, 15, v1\nv_lshl_add_u32 v13, v13, 7, s{sT}\nv_lshrrev_b32 v14, 5, v1\nv_lshl_add_u32 v13, v14, 13, v13\nv_cmp_lt_u32 vcc, 15, v1\nv_cndmask_b32 v12, v12, v13, vcc\ns_mov_b32 s{sV}, 0")
    poll(12, sV, 48, 4 if False else 8)
    A(f"s_mul_i32 s{sT}, s{sDT5}, 112\ns_mul_i32 s{sU}, s{SW}, 28\ns_add_u32 s{sT}, s{sT}, s{sU}\ns_lshl_b32 s{sT}, s{sT}, 7\ns_add_u32 s{sT}, s{sT}, {F5}\nv_lshl_add_u32 v12, v1, 7, s{sT}")
    A(f"s_and_b32 s{sT}, s{SW}, 1\ns_lshl_b32 s{sU}, s{sDT5}, 1\ns_add_u32 s{sT}, s{sT}, s{sU}\ns_lshl_b32 s{sT}, s{sT}, 6\ns_lshr_b32 s{sU}, s{SW}, 1\ns_add_u32 s{sT}, s{sT}, s{sU}\ns_lshl_b32 s{sU}, s{sST}, 1\ns_add_u32 s{sT}, s{sT}, s{sU}\ns_lshl_b32 s{sT}, s{sT}, 7\ns_add_u32 s{sT}, s{sT}, {F4}\nv_writelane_b32 v12, s{sT}, 28")
    poll(12, sV, 29, 8)
    stamp("b_done"); stamp_flush()
    A(f"v_min_u32 v12, 5, v1\nv_lshlrev_b32 v12, 12, v12\nv_add_u32 v12, {RBUF + 3*1024 + 32*16 + 4}, v12")
    A(f"B_RED:\ns_barrier\nds_read_b32 v13, v12\ns_waitcnt lgkmcnt(0)\nv_cmp_ne_u32 vcc, 0, v13")
    A(f"s_cbranch_vccz B_OK\ns_cmp_lg_u32 s{sRETRY}, 0\ns_cbranch_scc1 B_OK\ns_mov_b32 s{sRETRY}, -1\ns_barrier\ns_barrier\ns_barrier\n{'s_barrier' if env('BDEL', 0) else ''}\ns_branch B_RED\nB_OK:")
    A("s_barrier")
    for k in range(8): A(f"ds_write_b128 v{VDR}, {v(WOR+4*k,4)} offset:{k*1024}")
    A("s_waitcnt lgkmcnt(0)\ns_barrier\ns_barrier")
    for n in range(8, 12): w2load(n)
    A("s_barrier")
    def dump(reg, va, off):
        for j in range(2): A(f"ds_write_b128 v{va}, {v(reg+4*j,4)} offset:{off + j*1024}")
    for n in range(14, 18): dump(W1B + 8*(n-14), VDR, (n-14)*2048)
    A("s_waitcnt lgkmcnt(0)")
    NE = env("W2E", 16)
    for n in range(12, NE): w2load(n)
    for n in range(18, 32): dump(W1B + 8*(n-14), VDW, (n-18)*2048)
    A("s_waitcnt lgkmcnt(0)\ns_barrier\ns_barrier")
    for n in range(7): dump(w2reg(n), VDW, n*2048)
    A("s_barrier")
    rest = list(range(NE, 28))
    for n in rest[:4]: w2load(n)
    rest = rest[4:]
    A("s_barrier")
    vm.wait("v13")
    for n in range(7, 14):
        dump(w2reg(n), VDW, n*2048)
        if rest: w2load(rest.pop(0))
    for n in rest: w2load(n)
    A("s_waitcnt lgkmcnt(0)\ns_barrier\ns_barrier")
    for n in range(14, 28):
        vm.wait(f"v{n}"); dump(w2reg(n), VDW, (n-14)*2048)
    A("s_waitcnt lgkmcnt(0)\ns_barrier")
    if STAMP: A(f"v_mov_b32 v{VST}, v15"); del st["v"]
    A("s_branch K_FIN")

def main(out):
    prologue()
    pend0 = list(st["pend"])
    bprog()
    st["pend"] = list(pend0); p1_helper()
    st["pend"] = list(pend0); p1(); fb = p2(); p3(); p4(); p5()
    st["pend"] = list(pend0); bprog2(); fb()
    for h in handlers: h()
    A("CODE_END:")
    head = open("head.txt").read()
    nv = 256
    txt = head + f"; @launch grid=(256,1,1) block=(512,1,1) lds={LDS_TOTAL}\n" + '.amdgcn_target "amdgcn-amd-amdhsa--gfx950"\n.text\n' + kernel_header(NAME) + A.text() + '.section .rodata,"a"\n' + kernel_desc(NAME, nv, 102, 256)
    open(out, "w").write(txt)
    if STAMP: open(out + ".names", "w").write(" ".join(st["names"].keys()))

if __name__ == "__main__":
    main(sys.argv[1])
```

```python
import sys, struct, math, os
from asmlib import *

S, D, H, DH, F = 2048, 448, 16, 28, 1792
MB = 1 << 20
WS_Q, WS_KV, WS_O, WS_HF, WS_HH, WS_G, WS_ST, WS_FL, WS_STAMP = 0, 2*MB, 6*MB, 8*MB, 10*MB, 12*MB, 14*MB, 14*MB + 512*1024, 15*MB
F1, F2, F4, F5 = WS_FL, WS_FL + 131072, WS_FL + 2*131072, WS_FL + 3*131072
WS_RST, WS_CSG = 13*MB + 768*1024, 13*MB + 832*1024
WS_SIZE = 16*MB
EPS = 1e-5
STAMP = os.environ.get("STAMP", "0") == "1"
def env(n, d): return int(os.environ.get(n, str(d)))
def f2u(x): return struct.unpack("<I", struct.pack("<f", x))[0]
def hx(x): return f"0x{x & 0xffffffff:08x}"
def fl(x): return hx(f2u(x))
MFMA = "v_mfma_f32_32x32x16_bf16"
NAME = "sequential_preLN__mha_block__mixer_token_mlp__prompt_kernel"

class Cnt:
    def __init__(self, A, name, mx):
        self.A, self.name, self.mx, self.q = A, name, mx, []
    def issue(self, tag): self.q.append(tag)
    def wait(self, tag):
        idx = [i for i, t in enumerate(self.q) if t == tag]
        if not idx: return
        n = len(self.q) - 1 - idx[-1]
        self.A(f"s_waitcnt {self.name}({min(n, self.mx)})")
        self.q = self.q[idx[-1] + 1:]
    def wait_all(self):
        self.A(f"s_waitcnt {self.name}(0)"); self.q = []

RX, RWQ, RWO, RW1, RB1, RW2, RB2, ROUT, RDBG, RWS = 8, 12, 16, 20, 24, 28, 32, 36, 40, 44
def R(r): return f"s[{r}:{r+3}]"
SW, sH, sI, sJ, sFT, sDT4, sST, sDT5, sACT4, sTO, sTAG = 48, 49, 50, 51, 52, 53, 54, 55, 56, 57, 58
sHI, sONES = 60, 62
sT, sU, sV, sA, sB, sC, sD_, sE, sRETRY = 63, 64, 65, 66, 67, 68, 69, 70, 71
sF = [4, 5, 6, 7]
sSEC, sHQ, sW8 = 3, 92, 93
sC3, sR3 = 0, 1
sRBW, sW2W = 94, 95
sW1, sW1S, sW1E, sW2, sW2S, sW2E = 96, 97, 98, 99, 100, 101
VL, VST = 2, 255
W2A, RBUF, LDS_TOTAL = 0, 114688, 163840

A = Asm(); vm = Cnt(A, "vmcnt", 63); lg = Cnt(A, "lgkmcnt", 15)
st = {"pend": [], "names": {}}
def stamp(name):
    if os.environ.get("DIAGAT") == name or (os.environ.get("DIAGAT") and name == "start"): A("s_memrealtime s[72:73]")
    if not STAMP: return
    k = len(st["pend"]); assert k < 9, name
    n = st["names"].setdefault(name, len(st["names"]))
    A(f"{'s_memtime' if env('CYC', 0) else 's_memrealtime'} s[{74+2*k}:{75+2*k}]"); st["pend"].append(n)
def stamp_flush():
    if not STAMP or not st["pend"]: return
    A("s_waitcnt lgkmcnt(0)")
    for k, n in enumerate(st["pend"]): A(f"v_writelane_b32 v{st.get('v', VST)}, s{74+2*k}, {n}")
    st["pend"] = []

def set_exec(mask): A(f"s_mov_b32 exec_lo, {hx(mask)}\ns_mov_b32 exec_hi, {hx(mask >> 32)}")
def halfsum(x, t): A(f"v_mov_b32 v{t}, v{x}\nv_permlane32_swap_b32 v{x}, v{t}\nv_add_f32 v{x}, v{x}, v{t}")
def flag_store(soff_reg, t=4):
    A(f"v_mov_b32 v{t}, s{sTAG}\nv_mov_b32 v{t+1}, s{sTAG+1}\nv_mov_b32 v{t+2}, 0\ns_mov_b64 exec, 1")
    A(f"buffer_store_dwordx2 {v(t,2)}, v{t+2}, {R(RWS)}, s{soff_reg} offen sc1\ns_mov_b64 exec, -1"); vm.issue("flag")
def poll(voff, soff_reg, nl, t):
    L = A.label("POLL")
    set_exec((1 << nl) - 1)
    A(f"s_mov_b32 s{sTO}, 0x40000\n{L}:")
    A(f"buffer_load_dwordx2 {v(t,2)}, v{voff}, {R(RWS)}, s{soff_reg} offen sc1\ns_sub_u32 s{sTO}, s{sTO}, 1\ns_waitcnt vmcnt(0)")
    A(f"s_cbranch_scc1 {L}_x\nv_cmp_ne_u64 vcc, s[{sTAG}:{sTAG+1}], {v(t,2)}\ns_and_b64 exec, exec, vcc\n" + (f"s_cbranch_scc0 {L}_x\ns_sleep {env('PSL', 0)}\ns_branch {L}" if env("PSL", 0) else f"s_cbranch_scc1 {L}") + f"\n{L}_x:\ns_mov_b64 exec, -1")
    vm.q = []
def tr_lane_addr(dst, t, pitch, hs, rs=1):
    A(f"v_lshrrev_b32 v{dst}, 5, v1\nv_mul_u32_u24 v{dst}, {hs*pitch}, v{dst}\nv_bfe_u32 v{t}, v1, 2, 2\nv_mul_u32_u24 v{t}, {rs*pitch}, v{t}\nv_add_u32 v{dst}, v{dst}, v{t}")
    A(f"v_bfe_u32 v{t}, v1, 4, 1\nv_lshl_add_u32 v{dst}, v{t}, 5, v{dst}\nv_and_b32 v{t}, 3, v1\nv_lshl_add_u32 v{dst}, v{t}, 3, v{dst}")
def get_tag(TAGV, lab):
    A(f"v_readfirstlane_b32 s{sTAG}, v{TAGV}\nv_readfirstlane_b32 s{sTAG+1}, v{TAGV+1}")
    A(f"s_or_b32 s{sTO}, s{sTAG}, s{sTAG+1}\ns_cbranch_scc1 {lab}_ok\ns_mov_b32 s{sTO}, 0x40000\nv_mov_b32 v4, 0\n{lab}_l:")
    A(f"buffer_load_dwordx2 {v(TAGV,2)}, v4, {R(RDBG)}, 0 offen sc1\ns_sub_u32 s{sTO}, s{sTO}, 1\ns_waitcnt vmcnt(0)\ns_cbranch_scc1 {lab}_ok")
    A(f"v_readfirstlane_b32 s{sTAG}, v{TAGV}\nv_readfirstlane_b32 s{sTAG+1}, v{TAGV+1}\ns_cmp_eq_u64 s[{sTAG}:{sTAG+1}], 0\ns_cbranch_scc1 {lab}_l\n{lab}_ok:")
def tagcheck(regs, T1, T2, T3):
    A(f"v_xor_b32 v{T1}, s{sTAG}, v{regs[0]+1}\nv_xor_b32 v{T2}, s{sTAG+1}, v{regs[0]+3}\nv_or_b32 v{T1}, v{T1}, v{T2}")
    for g in regs[1:]: A(f"v_xor_b32 v{T2}, s{sTAG}, v{g+1}\nv_xor_b32 v{T3}, s{sTAG+1}, v{g+3}\nv_or3_b32 v{T1}, v{T1}, v{T2}, v{T3}")
    A(f"v_cmp_ne_u32 vcc, 0, v{T1}")
def rot4(d):
    A(f"s_bfe_u32 s{d}, s2, 0x20001\ns_mul_i32 s{d}, s{d}, 7\ns_sub_u32 s{d}, s{sFT}, s{d}\ns_add_u32 s{d}, s{d}, s{sDT4}\ns_and_b32 s{d}, s{d}, 7\ns_lshl_b32 s{d}, s{d}, 2")
def rot5(d):
    A(f"s_and_b32 s{d}, s{sST}, 7\ns_mul_i32 s{d}, s{d}, 7\ns_lshr_b32 s{d}, s{d}, 2\ns_add_u32 s{d}, s{d}, s{sDT5}\ns_add_u32 s{d}, s{d}, s{sDT5}\ns_lshl_b32 s{d}, s{d}, 1")
    A(f"s_cmp_ge_u32 s{d}, 28\ns_cselect_b32 s{sTO}, 28, 0\ns_sub_u32 s{d}, s{d}, s{sTO}")

handlers = []
class Stream:
    def __init__(self, name, ng, loads, soff, T):
        self.name, self.ng, self.loads, self.soff, self.T, self.last = name, ng, loads, soff, T, -1
    def _emit(self, g, track):
        self.soff(g)
        for reg, va, off in self.loads(g):
            A(f"buffer_load_dwordx4 {v(reg,4)}, v{va}, {R(RWS)}, s{sT} offen offset:{off} sc1")
            if track: vm.issue((self.name, g))
    def issue(self, g):
        if g < self.ng: self._emit(g, True); self.last = g
    def _red(self, g):
        r = [x[0] + 3 for x in self.loads(g)]
        if len(r) == 4: A(f"v_max3_u32 v{self.T}, v{r[0]}, v{r[1]}, v{r[2]}\nv_max_u32 v{self.T}, v{self.T}, v{r[3]}")
        else: A(f"v_max_u32 v{self.T}, v{r[0]}, v{r[1]}")
    def check1(self, g):
        if g < self.ng: vm.wait((self.name, g)); self._red(g)
    def check2(self, g):
        if g >= self.ng: return
        L = f"{self.name}{g}"
        A(f"v_cmp_eq_u32 vcc, -1, v{self.T}\ns_cbranch_vccnz {L}_h\n{L}_r:")
        last = self.last
        def h():
            A(f"{L}_h:\ns_mov_b32 s{sTO}, 0x40000\n{L}_l:")
            self._emit(g, False)
            A(f"s_sub_u32 s{sTO}, s{sTO}, 1\ns_waitcnt vmcnt(0)\ns_cbranch_scc1 {L}_r")
            self._red(g)
            A(f"v_cmp_eq_u32 vcc, -1, v{self.T}\ns_cbranch_vccnz {L}_l")
            for k in range(g + 1, last + 1): self._emit(k, False)
            A(f"s_branch {L}_r")
        handlers.append(h)
def sanitize(*regs):
    for r in regs: A(f"v_min_u32 v{r}, -2, v{r}")

def prologue():
    if STAMP: A(f"s_memrealtime s[72:73]\nv_mov_b32 v{VST}, -1")
    stamp("start")
    A(f"s_load_dwordx2 s[{RX}:{RX+1}], s[0:1], 0\ns_load_dwordx2 s[{RWQ}:{RWQ+1}], s[0:1], 8")
    A("s_cmp_ge_u32 s2, 256\ns_cbranch_scc1 K_END")
    A(f"v_and_b32 v1, 63, v0\nv_lshrrev_b32 v3, 6, v0\nv_lshlrev_b32 v{VL}, 4, v1\nv_readfirstlane_b32 s{sW8}, v3\nv_and_b32 v0, 255, v0")
    for r, sz in ((RX, S*D*2), (RWQ, D*3*D*2)): A(f"s_mov_b32 s{r+2}, {sz}\ns_mov_b32 s{r+3}, 0x20000")
    A(f"s_and_b32 s{SW}, s{sW8}, 3\ns_lshr_b32 s{sJ}, s2, 3\ns_bfe_u32 s{sT}, s2, 0x20001\ns_and_b32 s{sU}, s2, 1")
    A(f"s_lshl_b32 s{sI}, s{sT}, 2\ns_and_b32 s{sV}, s{sJ}, 3\ns_add_u32 s{sI}, s{sI}, s{sV}")
    A(f"s_lshr_b32 s{sSEC}, s{sJ}, 3\ns_bfe_u32 s{sHQ}, s{sJ}, 0x10002\ns_lshl_b32 s{sV}, s{sU}, 1\ns_add_u32 s{sHQ}, s{sHQ}, s{sV}")
    A(f"s_cmp_ge_u32 s{sJ}, 24\ns_cbranch_scc1 P1_HELP\ns_cmp_lt_u32 s{sW8}, 4\ns_cbranch_scc1 A_P1")

def prologue2():
    for r, off in ((RWS, 80), (RDBG, 72), (RWO, 16), (RW1, 32), (RB1, 40), (RW2, 48), (RB2, 56), (ROUT, 64)):
        A(f"s_load_dwordx2 s[{r}:{r+1}], s[0:1], {off}")
    A(f"s_memrealtime s[{sTAG}:{sTAG+1}]")
    for r, sz in ((RWS, WS_SIZE), (RDBG, 256), (RWO, D*D*2), (RW1, S*F*2), (RB1, F*2), (RW2, S*F*2), (RB2, S*2), (ROUT, S*D*2)):
        A(f"s_mov_b32 s{r+2}, {sz}\ns_mov_b32 s{r+3}, 0x20000")
    A(f"s_mov_b32 s{sHI}, 0\ns_mov_b32 s{sHI+1}, -1\ns_mov_b32 s{sONES}, 0x3f803f80\ns_mov_b32 s{sRETRY}, 0")
    A(f"s_mul_i32 s{sRBW}, s{SW}, 12288\ns_add_u32 s{sRBW}, s{sRBW}, {RBUF}\ns_mul_i32 s{sW2W}, s{SW}, 28672")

def roles(touch=True):
    A(f"s_bfe_u32 s{sT}, s2, 0x20001\ns_and_b32 s{sU}, s2, 1")
    pass
    A(f"s_sub_u32 s{sV}, 25, s{sU}\ns_cmp_lt_u32 s{sJ}, s{sV}\ns_cselect_b32 s{sACT4}, 1, 0\ns_cselect_b32 s{sV}, s{sJ}, 0")
    A(f"s_mul_i32 s{sFT}, s{sU}, 25\ns_add_u32 s{sV}, s{sV}, s{sFT}\ns_mul_i32 s{sDT4}, s{sV}, 9363\ns_lshr_b32 s{sDT4}, s{sDT4}, 16")
    A(f"s_mul_i32 s{sFT}, s{sDT4}, 7\ns_sub_u32 s{sV}, s{sV}, s{sFT}\ns_mul_i32 s{sFT}, s{sT}, 7\ns_add_u32 s{sFT}, s{sV}, s{sFT}")
    A(f"s_cmp_lt_u32 s{sJ}, 28\ns_cselect_b32 s{sV}, s{sJ}, 0\ns_mul_i32 s{sST}, s{sU}, 28\ns_add_u32 s{sV}, s{sV}, s{sST}")
    A(f"s_lshr_b32 s{sDT5}, s{sV}, 3\ns_and_b32 s{sV}, s{sV}, 7\ns_lshl_b32 s{sST}, s{sT}, 3\ns_add_u32 s{sST}, s{sST}, s{sV}")
    A(f"s_lshl_b32 s{sT}, s{sHQ}, 2\ns_add_u32 s{sT}, s{sT}, s{sSEC}\ns_lshl_b32 s{sT}, s{sT}, 4\ns_add_u32 s{sT}, s{sT}, s{sI}\ns_lshl_b32 s{sT}, s{sT}, 7\ns_add_u32 s{sF[0]}, s{sT}, {F1}")
    A(f"s_and_b32 s{sT}, s2, 7\ns_lshl_b32 s{sT}, s{sT}, 1\ns_and_b32 s{sH}, s{sJ}, 1\ns_add_u32 s{sH}, s{sH}, s{sT}\ns_lshr_b32 s{sI}, s{sJ}, 1")
    A(f"s_lshr_b32 s{sR3}, s{sJ}, 4\ns_add_u32 s{sR3}, s{sR3}, s{sT}\ns_lshl_b32 s{sR3}, s{sR3}, 2\ns_add_u32 s{sR3}, s{sR3}, s{SW}\ns_and_b32 s{sC3}, s{sJ}, 15")
    A(f"s_lshl_b32 s{sT}, s2, 7\ns_add_u32 s{sF[1]}, s{sT}, {F2}")
    if not touch: return
    A(f"s_lshl_b32 s{sV}, s{sR3}, 4\ns_add_u32 s{sV}, s{sV}, s{sC3}\ns_lshl_b32 s{sV}, s{sV}, 9\ns_add_u32 s{sV}, s{sV}, {WS_ST}\nv_lshl_add_u32 v4, v1, 7, s{sV}")
    A(f"v_writelane_b32 v4, s{sF[0]}, 4\nv_writelane_b32 v4, s{sF[1]}, 5\ns_mov_b64 exec, 0x3f\nbuffer_load_dword v12, v4, {R(RWS)}, 0 offen sc1\ns_mov_b64 exec, -1")
    vm.issue("touch")

def p1_helper():
    TAGV = 14
    sHX = sA
    A("P1_HELP:")
    vm.q = []
    prologue2()
    A(f"s_and_b32 s{sHX}, s2, 7\ns_lshl_b32 s{sHX}, s{sHX}, 3\ns_add_u32 s{sHX}, s{sHX}, s{sJ}\ns_sub_u32 s{sHX}, s{sHX}, 24")
    A(f"v_lshrrev_b32 v4, 3, v1\nv_and_b32 v5, 7, v1\nv_lshlrev_b32 v5, 4, v5\nv_mov_b32 v7, 0")
    A(f"s_cmp_ge_u32 s{sW8}, 4\ns_cbranch_scc1 H_CS")
    A(f"v_mul_u32_u24 v6, 896, v4\nv_add_u32 v6, v6, v5\ns_lshl_b32 s{sB}, s{sHX}, 2\ns_add_u32 s{sB}, s{sB}, s{SW}\ns_mul_i32 s{sT}, s{sB}, {8*896}\ns_waitcnt lgkmcnt(0)")
    for m in range(7): A(f"buffer_load_dwordx4 {v(16+4*m,4)}, v6, {R(RX)}, s{sT} offen offset:{m*128}")
    A("v_mov_b32 v80, 0\nv_mov_b32 v82, 0\nv_mov_b32 v84, 0\nv_mov_b32 v86, 0\ns_waitcnt vmcnt(0)")
    A(f"buffer_load_dwordx2 {v(TAGV,2)}, v7, {R(RDBG)}, 0 offen sc1")
    for k in range(28): A(f"v_dot2c_f32_bf16 v{80+4*(k&1)}, s{sONES}, v{16+k}\nv_dot2c_f32_bf16 v{82+4*(k&1)}, v{16+k}, v{16+k}")
    A("v_add_f32 v80, v80, v84\nv_add_f32 v82, v82, v86")
    for m in ("quad_perm:[1,0,3,2]", "quad_perm:[2,3,0,1]", "row_half_mirror"):
        for r in (80, 82): A(f"v_add_f32_dpp v{r}, v{r}, v{r} {m} row_mask:0xf bank_mask:0xf")
    A(f"v_mul_f32 v80, {fl(1.0/D)}, v80\nv_mul_f32 v82, {fl(1.0/D)}, v82\nv_fma_f32 v82, -v80, v80, v82\nv_max_f32 v82, 0, v82\nv_add_f32 v82, {fl(EPS)}, v82\nv_rsq_f32 v82, v82")
    A(f"v_lshlrev_b32 v6, 4, v4\nv_mul_f32 v80, v80, v82\nv_sub_f32 v80, 0, v80\ns_waitcnt vmcnt(0)")
    get_tag(TAGV, "H_T1")
    A(f"v_mov_b32 v81, s{sTAG}\nv_mov_b32 v83, s{sTAG+1}\ns_lshl_b32 s{sT}, s{sB}, 7\ns_add_u32 s{sT}, s{sT}, {WS_RST}")
    set_exec(0x0101010101010101)
    A(f"buffer_store_dwordx4 v[80:83], v6, {R(RWS)}, s{sT} offen sc1\ns_mov_b64 exec, -1")
    stamp("h_pub"); stamp_flush()
    A("s_barrier")
    roles()
    poison_all("H_PZ")
    A("s_branch P2_START")
    st["pend"] = [0] if STAMP else []
    A(f"H_CS:\ns_lshl_b32 s{sB}, s{SW}, 6\ns_add_u32 s{sB}, s{sB}, s{sHX}\ns_cmp_ge_u32 s{sB}, 84\ns_cbranch_scc1 H_PF")
    A(f"v_mul_u32_u24 v6, 2688, v4\nv_add_u32 v6, v6, v5\ns_and_b32 s{sC}, s{sB}, 3\ns_lshr_b32 s{sD_}, s{sB}, 2\ns_mul_i32 s{sT}, s{sC}, {112*2688}\ns_lshl_b32 s{sU}, s{sD_}, 7\ns_add_u32 s{sT}, s{sT}, s{sU}\ns_waitcnt lgkmcnt(0)")
    for m in range(14): A(f"buffer_load_dwordx4 {v(16+4*m,4)}, v6, {R(RWQ)}, s{sT} offen\ns_add_u32 s{sT}, s{sT}, {8*2688}")
    A(f"s_mov_b32 s{sT}, 0x3f80\ns_mov_b32 s{sU}, 0x3f800000")
    for r in range(80, 88): A(f"v_mov_b32 v{r}, 0")
    for m in range(14):
        if m % 4 == 0: A(f"s_waitcnt vmcnt({max(0, 14 - m - 4)})")
        if m == 12: A(f"buffer_load_dwordx2 {v(TAGV,2)}, v7, {R(RDBG)}, 0 offen sc1")
        for k in range(4): A(f"v_dot2c_f32_bf16 v{80+2*k}, s{sT}, v{16+4*m+k}\nv_dot2c_f32_bf16 v{81+2*k}, s{sU}, v{16+4*m+k}")
    for r in range(80, 88): A(f"v_add_f32_dpp v{r}, v{r}, v{r} row_ror:8 row_mask:0xf bank_mask:0xf")
    for op in ("v_permlane16_swap_b32", "v_permlane32_swap_b32"):
        for r in range(80, 88): A(f"v_mov_b32 v{r+8}, v{r}")
        for r in range(80, 88): A(f"{op} v{r}, v{r+8}")
        for r in range(80, 88): A(f"v_add_f32 v{r}, v{r}, v{r+8}")
    A("v_mov_b32 v88, v80\nv_mov_b32 v90, v81")
    for pi in range(1, 4): A(f"v_cmp_eq_u32 vcc, {pi}, v4\nv_cndmask_b32 v88, v88, v{80+2*pi}, vcc\nv_cndmask_b32 v90, v90, v{81+2*pi}, vcc")
    A(f"v_lshlrev_b32 v6, 2, v5\nv_lshl_add_u32 v6, v4, 4, v6\ns_waitcnt vmcnt(0)")
    get_tag(TAGV, "H_T2")
    A(f"v_mov_b32 v89, s{sTAG}\nv_mov_b32 v91, s{sTAG+1}\ns_mul_i32 s{sT}, s{sC}, 10752\ns_lshl_b32 s{sU}, s{sD_}, 9\ns_add_u32 s{sT}, s{sT}, s{sU}\ns_add_u32 s{sT}, s{sT}, {WS_CSG}")
    set_exec(0xFFFFFFFF)
    A(f"buffer_store_dwordx4 v[88:91], v6, {R(RWS)}, s{sT} offen sc1\ns_mov_b64 exec, -1\ns_barrier\ns_branch B_P2")
    A(f"H_PF:\ns_cmp_lt_u32 s{SW}, 2\ns_cbranch_scc1 H_W")
    sQ = sB
    A(f"s_sub_u32 s{sQ}, s{sJ}, 24\ns_lshl_b32 s{sQ}, s{sQ}, 1\ns_add_u32 s{sQ}, s{sQ}, s{SW}\ns_sub_u32 s{sQ}, s{sQ}, 2")
    A(f"s_getpc_b64 s[{sC}:{sC+1}]\nCODE_REF:\ns_lshl_b32 s{sT}, s{sQ}, 12\nv_lshl_add_u32 v6, v1, 7, s{sT}\nv_min_u32 v6, CODE_END-CODE_REF-4, v6")
    A(f"v_mov_b32 v9, s{sC+1}\nv_add_co_u32 v8, vcc, s{sC}, v6\nv_addc_co_u32 v9, vcc, 0, v9, vcc")
    set_exec(0xFFFFFFFF)
    A("global_load_dword v25, v[8:9], off\ns_mov_b64 exec, -1\ns_waitcnt lgkmcnt(0)\ns_barrier")
    A("v_lshlrev_b32 v6, 7, v1")
    A(f"s_and_b32 s{sT}, s2, 7\ns_lshl_b32 s{sT}, s{sT}, 4\ns_add_u32 s{sT}, s{sT}, s{sQ}\ns_mul_i32 s{sT}, s{sT}, {7*8192}")
    for k in range(env("NP1", 0)): A(f"s_add_u32 s{sU}, s{sT}, {k*8192}\nbuffer_load_dword v{16+k}, v6, {R(RW1)}, s{sU} offen")
    for k in range(env("NP2", 0)): A(f"s_add_u32 s{sU}, s{sT}, {k*8192}\nbuffer_load_dword v{26+k}, v6, {R(RW2)}, s{sU} offen")
    if env("WOT", 0) == 1:
        A(f"s_mul_i32 s{sT}, s{sQ}, {196*128}")
        set_exec((1 << 49) - 1)
        for k in range(4): A(f"s_add_u32 s{sU}, s{sT}, {k*49*128}\nbuffer_load_dword v24, v6, {R(RWO)}, s{sU} offen")
        A("s_mov_b64 exec, -1")
    if STAMP:
        A("s_waitcnt vmcnt(0)"); stamp("h_touch"); stamp_flush(); A(f"v_mov_b32 v15, v{VST}\ns_branch B_P2S")
    A("s_branch B_P2\nH_W:\ns_waitcnt lgkmcnt(0)\ns_barrier\ns_branch B_P2")

XA = LDS_TOTAL - 65536
XBUF = [8192, 0, 8192, 4096]
def p1_common():
    sWO, sM = sA, sC
    A(f"s_mul_i32 s{sWO}, s{sSEC}, 896\ns_mul_i32 s{sT}, s{sHQ}, 224\ns_add_u32 s{sWO}, s{sWO}, s{sT}")
    A(f"s_lshl_b32 s{sE}, s{sI}, 2\ns_add_u32 s{sE}, s{sE}, s{SW}\ns_lshl_b32 s{sM}, s{SW}, 14\ns_add_u32 s{sM}, s{sM}, {XA}")

def p1():
    XF, ACC, WF = 16, 128, 192
    VXR = list(range(224, 232)); VXS = list(range(232, 236)); VWR = [236, 237]; TAGV = 238
    sWO, sM = sA, sC
    A("A_P1:")
    prologue2()
    p1_common()
    A(f"v_and_b32 v4, 31, v1\nv_lshrrev_b32 v5, 5, v1\nv_and_b32 v6, 15, v1\nv_xor_b32 v6, v6, v5\nv_lshlrev_b32 v6, 4, v6\nv_lshl_add_u32 v6, v4, 8, v6\nv_add_u32 v6, s{sM}, v6")
    for k in range(8): A(f"v_xor_b32 v{VXR[k]}, {k<<5}, v6")
    A(f"v_bfe_u32 v6, v1, 1, 3\nv_xor_b32 v6, v6, v5\nv_lshlrev_b32 v6, 4, v6\nv_lshl_add_u32 v6, v4, 7, v6\nv_add_u32 v6, s{sM}, v6")
    for k in range(4): A(f"v_xor_b32 v{VXS[k]}, {k<<5}, v6")
    tr_lane_addr(VWR[0], 4, 224, 8, 2); A(f"v_add_u32 v{VWR[1]}, {14*3584}, v{VWR[0]}")
    A("s_waitcnt lgkmcnt(0)")
    stamp("karg")
    A(f"s_or_b32 s{sT}, s2, s{SW}\ns_cbranch_scc1 P1_NOTAG")
    A(f"s_bitset1_b32 s{sTAG+1}, 31\nv_mov_b32 v8, s{sTAG}\nv_mov_b32 v9, s{sTAG+1}\nv_mov_b32 v10, 0\nv_mov_b32 v11, 0\ns_mov_b64 exec, 1\nbuffer_atomic_cmpswap_x2 v[8:11], v10, {R(RDBG)}, 0 offen sc1\ns_mov_b64 exec, -1\nP1_NOTAG:")
    roles()
    poison_all("A_PZ")
    stamp_flush()
    A(f"s_cmp_eq_u32 s{sSEC}, 2\ns_cbranch_scc1 P1_V")
    for isv in (0, 1):
        vm.q = []; lg.q = []
        if isv: A("P1_V:")
        def xread(p):
            for k in range(8 if p < 3 else 4):
                A(f"ds_read_b128 {v(XF + (8*p+k)*4, 4)}, v{(VXR if p < 3 else VXS)[k]} offset:{XBUF[p]}"); lg.issue(f"x{p}")
        def wread(ks, hds=range(4)):
            for hd in hds:
                for half in range(2):
                    A(f"ds_read_b64_tr_b16 {v(WF + (ks&1)*16 + hd*4 + half*2, 2)}, v{VWR[ks//14]} offset:{(ks%14)*3584 + half*224 + hd*56}"); lg.issue(f"w{ks}_{hd}")
        def gload():
            A(f"buffer_load_dwordx4 v[16:19], v4, {R(RWS)}, s{sU} offen sc1")
            for kq in range(4): A(f"buffer_load_dwordx4 {v(20+4*kq,4)}, v{5+kq}, {R(RWS)}, s{sV} offen sc1")
        for p in range(4):
            k0, k1 = 8*p, min(8*p + 8, 28)
            if p == 3:
                A(f"v_and_b32 v4, 31, v1\nv_lshlrev_b32 v4, 4, v4\ns_lshl_b32 s{sU}, s{sE}, 9\ns_add_u32 s{sU}, s{sU}, {WS_RST}\ns_lshl_b32 s{sV}, s{sWO}, 2\ns_add_u32 s{sV}, s{sV}, {WS_CSG}")
                A(f"v_min_u32 v5, 55, v1\nv_lshlrev_b32 v5, 4, v5\nv_add_u32 v6, 10752, v5\nv_add_u32 v7, 21504, v5\nv_add_u32 v8, 32256, v5\nv_mov_b32 v9, 0")
            A("s_barrier"); stamp(f"g{p}")
            xread(p); wread(k0, [0, 1, 2])
            if p == 3:
                A(f"buffer_load_dwordx2 {v(TAGV,2)}, v9, {R(RDBG)}, 0 offen sc1"); gload()
            lg.wait(f"x{p}")
            if p < 2: A("s_barrier")
            wread(k0, [3])
            for ks in range(k0, k1):
                x = v(XF + ks*4, 4)
                for hd in range(4):
                    lg.wait(f"w{ks}_{hd}")
                    w_ = v(WF + (ks&1)*16 + hd*4, 4); acc = v(ACC + 16*hd, 16)
                    A(f"{MFMA} {acc}, {x if isv else w_}, {w_ if isv else x}, {'0' if ks == 0 else acc}")
                    if ks + 1 < k1: wread(ks + 1, [hd])
        stamp("mfma_done")
        A("s_waitcnt vmcnt(5)")
        get_tag(TAGV, f"P1_T{isv}")
        L = A.label("P1_G")
        A(f"s_waitcnt vmcnt(0)")
        tagcheck([16, 20, 24, 28, 32], 9, 10, 11)
        A(f"s_cbranch_vccz {L}_x\nv_and_b32 v4, 31, v1\nv_lshlrev_b32 v4, 4, v4\ns_mov_b32 s{sTO}, 0x40000\n{L}:")
        gload()
        A(f"s_sub_u32 s{sTO}, s{sTO}, 1\ns_waitcnt vmcnt(0)\ns_cbranch_scc1 {L}_x")
        tagcheck([16, 20, 24, 28, 32], 9, 10, 11)
        A(f"s_cbranch_vccnz {L}\n{L}_x:")
        stamp("gran")
        A("v_add_f32 v20, v20, v24\nv_add_f32 v28, v28, v32\nv_add_f32 v22, v22, v26\nv_add_f32 v30, v30, v34\nv_add_f32 v20, v20, v28\nv_add_f32 v21, v22, v30")
        A(f"s_add_u32 s{sT}, s{sM}, 8192\nv_lshl_add_u32 v4, v1, 3, s{sT}\nds_write_b64 v4, v[20:21]\nv_lshrrev_b32 v5, 5, v1\nv_lshl_add_u32 v5, v5, 4, s{sT}")
        PK = 96
        A(f"s_lshl_b32 s{sU}, s{sHQ}, 8\ns_add_u32 s{sU}, s{sU}, s{sE}")
        if not isv:
            for hd in range(4):
                for g in range(4): A(f"ds_read_b128 {v(32+16*hd+4*g,4)}, v5 offset:{hd*112 + g*32}"); lg.issue(f"c{hd}")
            QS = DH ** -0.5 * math.log2(math.e)
            A(f"s_cmp_eq_u32 s{sSEC}, 0\ns_cselect_b32 s{sV}, {fl(QS)}, 1.0\ns_cselect_b32 s{sA}, 0, s{sONES}\ns_cselect_b32 s{sB}, 0, 0x3f80\ns_cselect_b32 s{sC}, {WS_Q}, {WS_KV}")
            A(f"s_add_u32 s{sD_}, s{sSEC}, 11\ns_lshl_b32 s{sU}, s{sU}, s{sD_}\ns_add_u32 s{sU}, s{sU}, s{sC}\ns_lshl_b32 s{sD_}, 64, s{sD_}")
            A(f"v_mul_f32 v16, s{sV}, v16\nv_mul_f32 v18, s{sV}, v18\nv_mov_b32 v12, s{sA}\nv_mov_b32 v13, s{sB}")
            for hd in range(4):
                lg.wait(f"c{hd}")
                c, ac = 32+16*hd, ACC+16*hd
                for r in range(0, 16, 2): A(f"v_pk_mul_f32 {v(c+r,2)}, {v(c+r,2)}, v[16:17] op_sel_hi:[1,0]")
                for r in range(0, 16, 2): A(f"v_pk_fma_f32 {v(ac+r,2)}, {v(ac+r,2)}, v[18:19], {v(c+r,2)} op_sel_hi:[1,0,1]")
                for r in range(8): A(f"v_cvt_pk_bf16_f32 v{PK+8*hd+r}, v{ac+2*r}, v{ac+2*r+1}")
                A(f"v_cndmask_b32 v{PK+8*hd+6}, v{PK+8*hd+6}, v12, s[{sHI}:{sHI+1}]\nv_cndmask_b32 v{PK+8*hd+7}, v{PK+8*hd+7}, v13, s[{sHI}:{sHI+1}]")
                for f in range(2): A(f"buffer_store_dwordx4 {v(PK+8*hd+4*f,4)}, v{VL}, {R(RWS)}, s{sU} offen offset:{f*1024} sc1")
                A(f"s_add_u32 s{sU}, s{sU}, s{sD_}")
        else:
            A(f"v_cndmask_b32 v6, v18, v16, s[{sHI}:{sHI+1}]\nv_lshl_add_u32 v4, v1, 2, s{sT}\nds_write_b32 v4, v6 offset:512")
            A(f"v_and_b32 v6, 31, v1\nv_lshl_add_u32 v4, v6, 2, s{sT}")
            for g in range(4): A(f"ds_read_b128 {v(32+4*g,4)}, v5 offset:{512 + g*32}\nds_read_b128 {v(48+4*g,4)}, v5 offset:{640 + g*32}")
            for hd in range(4): A(f"ds_read_b32 v{24+2*hd}, v4 offset:{hd*112}")
            A(f"s_lshl_b32 s{sU}, s{sU}, 12\ns_add_u32 s{sU}, s{sU}, {WS_KV + 2048}")
            A(f"v_cmp_eq_u32 vcc, 28, v6\nv_mov_b32 v13, s{sONES}\nv_cndmask_b32 v12, 0, v13, vcc\nv_mov_b32 v13, v12")
            for r in range(0, 16, 2): A(f"v_pk_mov_b32 {v(PK+r,2)}, v[12:13], v[12:13]")
            A(f"s_mov_b32 s{sA}, 0x0fffffff\ns_mov_b32 s{sA+1}, 0x0fffffff\ns_waitcnt lgkmcnt(0)")
            for hd in range(4):
                ac = ACC+16*hd; pk = PK + 8*(hd & 1)
                for r in range(0, 16, 2): A(f"v_pk_mul_f32 {v(64+r,2)}, {v(48+r,2)}, {v(24+2*hd,2)} op_sel_hi:[1,0]")
                for r in range(0, 16, 2): A(f"v_pk_fma_f32 {v(ac+r,2)}, {v(ac+r,2)}, {v(32+r,2)}, {v(64+r,2)}")
                A(f"s_mov_b64 exec, s[{sA}:{sA+1}]")
                for r in range(8): A(f"v_cvt_pk_bf16_f32 v{pk+r}, v{ac+2*r}, v{ac+2*r+1}")
                A("s_mov_b64 exec, -1")
                for f in range(2): A(f"buffer_store_dwordx4 {v(pk+4*f,4)}, v{VL}, {R(RWS)}, s{sU} offen offset:{f*1024} sc1")
                A(f"s_add_u32 s{sU}, s{sU}, {64*4096}")
        stamp("kvst"); stamp_flush()
        if not isv: A("s_branch P1_DONE")
    A("P1_DONE:")

def tilemax(sreg, T0, T1):
    A(f"v_max3_f32 v{T0}, v{sreg}, v{sreg+1}, v{sreg+2}\nv_max3_f32 v{T1}, v{sreg+3}, v{sreg+4}, v{sreg+5}")
    A(f"v_max3_f32 v{T0}, v{T0}, v{sreg+6}, v{sreg+7}\nv_max3_f32 v{T1}, v{T1}, v{sreg+8}, v{sreg+9}")
    A(f"v_max3_f32 v{T0}, v{T0}, v{sreg+10}, v{sreg+11}\nv_max3_f32 v{T1}, v{T1}, v{sreg+12}, v{sreg+13}")
    A(f"v_max3_f32 v{T0}, v{T0}, v{sreg+14}, v{sreg+15}")
def set_qpad(q, m, T0, T1, T2):
    A(f"v_sub_f32 v{T0}, 0, v{m}\nv_and_b32 v{T1}, 0xffff0000, v{T0}\nv_sub_f32 v{T0}, v{T0}, v{T1}")
    A(f"v_and_b32 v{T2}, 0xffff0000, v{T0}\nv_sub_f32 v{T0}, v{T0}, v{T2}\nv_lshrrev_b32 v{T0}, 16, v{T0}")
    A(f"v_lshrrev_b32 v{T1}, 16, v{T1}\nv_or_b32 v{T1}, v{T1}, v{T2}")
    A(f"v_cndmask_b32 v{q+6}, v{q+6}, v{T1}, s[{sHI}:{sHI+1}]\nv_cndmask_b32 v{q+7}, v{q+7}, v{T0}, s[{sHI}:{sHI+1}]")

XR, IR3 = 224, 232
VRD, VFL, VKV, VONE, VRB, VWO = [240, 241], 242, 243, 244, [246, 247], 248
VRW = [249, 250, 251, 252]
def addr_setup():
    tr_lane_addr(4, 5, 128, 4)
    A(f"v_bfe_u32 v5, v1, 3, 1\ns_lshr_b32 s{sT}, s{SW}, 1\nv_xor_b32 v5, s{sT}, v5")
    A(f"v_lshl_add_u32 v6, v5, 6, v4\nv_xor_b32 v5, 1, v5\nv_lshl_add_u32 v7, v5, 6, v4")
    A(f"v_add_u32 v{VRD[0]}, s{sW2W}, v6\nv_add_u32 v{VRD[1]}, s{sW2W}, v7\nv_add_u32 v{VRB[0]}, s{sRBW}, v6\nv_add_u32 v{VRB[1]}, s{sRBW}, v7")
    A(f"v_lshlrev_b32 v{VFL}, 7, v1\nv_mov_b32 v{VONE}, 0x3f80\nv_mov_b32 v{VONE+1}, 1.0")
    A(f"s_lshl_b32 s{sT}, s{sH}, 2\ns_add_u32 s{sT}, s{sT}, s{SW}\ns_lshl_b32 s{sT}, s{sT}, 16\ns_add_u32 s{sT}, s{sT}, {WS_KV}\nv_add_u32 v{VKV}, s{sT}, v{VL}")
    tr_lane_addr(VWO, 4, 64, 4); A(f"v_add_u32 v{VWO}, {RBUF}, v{VWO}\nv_add_u32 v{VRW[0]}, s{sRBW}, v{VL}")
    for t in range(1, 4):
        A(f"s_add_u32 s{sT}, s{SW}, {t}\ns_and_b32 s{sT}, s{sT}, 3\ns_mul_i32 s{sT}, s{sT}, 12288\ns_add_u32 s{sT}, s{sT}, {RBUF}\nv_add_u32 v{VRW[t]}, s{sT}, v{VL}")
    A("v_and_b32 v4, 31, v1\nv_lshrrev_b32 v5, 5, v1\nv_lshlrev_b32 v6, 3, v5\nv_sub_u32 v6, v4, v6")
    for p in range(2):
        for r in range(4):
            A(f"v_cmp_eq_u32 vcc, {16*p+2*r}, v6\nv_cmp_eq_u32 s[{sU}:{sU+1}], {16*p+2*r+1}, v6\nv_cndmask_b32 v{IR3+4*p+r}, 0, v{VONE}, vcc\nv_cndmask_b32 v{IR3+4*p+r}, v{IR3+4*p+r}, v{VONE+1}, s[{sU}:{sU+1}]")
    A("v_mul_u32_u24 v13, 896, v4\nv_lshl_add_u32 v13, v5, 4, v13")

def p2():
    Q, O, SS, PP, KV = 16, 48, [112, 128], [144, 152], 160
    M = [112, 113, 114, 115]; K0 = 120
    T0, T1, T2, T3 = 4, 5, 6, 7
    sKN = sB
    addr_setup()
    vm.wait_all(); stamp("kvdrain")
    A(f"s_barrier\ns_cmp_lg_u32 s{SW}, 0\ns_cbranch_scc1 P2_NOF")
    flag_store(sF[0]); A("P2_NOF:"); stamp_flush()
    A("s_branch P2_GO\nP2_START:")
    addr_setup()
    A("P2_GO:")
    A(f"s_mul_i32 s{sT}, s{sR3}, {32*896}\ns_lshl_b32 s{sU}, s{sC3}, 6\ns_add_u32 s{sT}, s{sT}, s{sU}\ns_lshl_b32 s{sV}, s{sI}, 2\ns_add_u32 s{sV}, s{sV}, s{SW}\ns_lshl_b32 s{sU}, s{sH}, 6")
    for p in range(2): A(f"buffer_load_dwordx4 {v(XR+4*p,4)}, v13, {R(RX)}, s{sT} offen offset:{32*p}")
    A(f"s_add_u32 s{sU}, s{sU}, s{sV}\ns_lshl_b32 s{sU}, s{sU}, 11")
    A(f"s_lshr_b32 s{sT}, s{sH}, 2\ns_lshl_b32 s{sT}, s{sT}, 13\ns_add_u32 s{sT}, s{sT}, {F1}\ns_lshl_b32 s{sA}, s{SW}, 9\ns_add_u32 s{sA}, s{sA}, 2048\ns_lshl_b32 s{sC}, s{sI}, 7")
    A(f"v_and_b32 v10, 3, v1\nv_lshl_add_u32 v10, v10, 7, s{sA}\nv_bfe_u32 v11, v1, 2, 1\nv_lshl_add_u32 v10, v11, 11, v10\nv_writelane_b32 v10, s{sC}, 8")
    poll(10, sT, 9, 8); stamp("s1")
    def kvload(n):
        pre = [f"s_mov_b32 s{sKN}, {n*4096}"]
        return pre + [f"buffer_load_dwordx4 {v(KV+16*(n&3)+4*f,4)}, v{VKV}, {R(RWS)}, s{sKN} offen offset:{f*1024} sc1" for f in range(4)]
    def emit(lines, tag):
        for ln in lines:
            A(ln)
            if ln.startswith("buffer_"): vm.issue(tag)
    for f in range(2): A(f"buffer_load_dwordx4 {v(Q+4*f,4)}, v{VL}, {R(RWS)}, s{sU} offen offset:{f*1024} sc1"); vm.issue("q")
    emit(kvload(0), "kv0")
    A("s_waitcnt vmcnt(2)"); stamp("qk0")
    A(f"{MFMA} {v(O,16)}, {v(KV,4)}, {v(Q,4)}, 0\n{MFMA} {v(O,16)}, {v(KV+4,4)}, {v(Q+4,4)}, {v(O,16)}")
    emit(kvload(1), "kv1")
    A(f"ds_write_b128 v{VRW[0]}, {v(Q,4)}")
    tilemax(O, T0, T1)
    A(f"v_max_f32 v{T0}, v{T0}, v{T1}\nv_mov_b32 v{T1}, v{T0}\nv_permlane32_swap_b32 v{T0}, v{T1}\nv_max_f32 v{T0}, v{T0}, v{T1}")
    set_qpad(Q, T0, T1, T2, T3)
    A(f"ds_write_b128 v{VRW[0]}, {v(Q+4,4)} offset:1024\ns_waitcnt lgkmcnt(0)")
    emit(kvload(2), "kv2")
    A("s_barrier")
    for t in range(1, 4): A(f"ds_read_b128 {v(Q+8*t,4)}, v{VRW[t]}\nds_read_b128 {v(Q+8*t+4,4)}, v{VRW[t]} offset:1024")
    emit(kvload(3), "kv3")
    A("P2_MAIN:")
    def qk(idx, part):
        n, t = idx >> 2, idx & 3; sr = SS[idx & 1]; k = KV + 16*(n & 3)
        return f"{MFMA} {v(sr,16)}, {v(k+4*part,4)}, {v(Q+8*t+4*part,4)}, {'0' if part == 0 else v(sr,16)}"
    def pv(idx, part):
        n, t = idx >> 2, idx & 3; k = KV + 16*(n & 3) + 8; o = O + 16*t
        return f"{MFMA} {v(o,16)}, {v(k+4*part,4)}, {v(PP[idx&1]+4*part,4)}, {'0' if (n == 0 and part == 0) else v(o,16)}"
    NI = 64
    A(qk(0, 0)); A(qk(0, 1)); A("s_waitcnt lgkmcnt(0)")
    for idx in range(NI):
        n, t = idx >> 2, idx & 3
        if idx in (16, 32, 48): stamp(f"a{idx}")
        if idx == 1: vm.wait("kv0")
        if idx == env("CUTAT", 57): A(f"ds_write_b32 v{VRW[1]}, v{VONE} offset:3072")
        if t == 3 and n + 1 < 16: vm.wait(f"kv{n+1}")
        mf = [qk(idx+1, 0) if idx+1 < NI else None, pv(idx-1, 0) if idx > 0 else None,
              qk(idx+1, 1) if idx+1 < NI else None, pv(idx-1, 1) if idx > 0 else None]
        sr, p = SS[idx & 1], PP[idx & 1]
        for q in range(4):
            if mf[q]: A(mf[q])
            for j in range(4): A(f"v_exp_f32 v{sr+4*q+j}, v{sr+4*q+j}")
            if q > 0:
                for j in range(2): A(f"v_cvt_pk_bf16_f32 v{p+2*(q-1)+j}, v{sr+4*(q-1)+2*j}, v{sr+4*(q-1)+2*j+1}")
        if t == 0 and 1 <= n < 13: emit(kvload(n + 3), f"kv{n+3}")
        for j in range(2): A(f"v_cvt_pk_bf16_f32 v{p+6+j}, v{sr+12+2*j}, v{sr+12+2*j+1}")
    A(pv(NI-1, 0)); A(pv(NI-1, 1)); stamp("aend")
    for t in (1, 2):
        for g in range(3): A(f"ds_write_b128 v{VRW[t]}, {v(O+16*t+4*g,4)} offset:{(t-1)*4096 + g*1024}")
    A(f"s_mov_b32 s{sT}, {fl(2.0**30)}")
    A(f"v_cmp_nlt_f32 s[{sA}:{sA+1}], v{O+12}, s{sT}\nv_cmp_nlt_f32 s[{sC}:{sC+1}], v{O+28}, s{sT}\ns_or_b32 s{sU}, s{sA+1}, s{sC+1}")
    A(f"v_cmp_nlt_f32 s[{sA}:{sA+1}], v{O+44}, s{sT}\nv_cmp_nlt_f32 s[{sC}:{sC+1}], v{O+60}, s{sT}\ns_or_b32 s{sU}, s{sU}, s{sA+1}\ns_or_b32 s{sU}, s{sU}, s{sC+1}")
    A(f"s_cselect_b32 s{sU}, 1.0, 0\nv_mov_b32 v{T0}, s{sU}")
    for t in range(4): A(f"v_cndmask_b32 v{O+16*t+13}, v{O+16*t+13}, v{T0}, s[{sHI}:{sHI+1}]")
    for g in range(3): A(f"ds_write_b128 v{VRW[3]}, {v(O+48+4*g,4)} offset:{2*4096 + g*1024}")
    for t in range(1, 4): A(f"ds_write_b128 v{VRW[t]}, {v(O+16*t+12,4)} offset:{(t-1)*4096 + 3*1024}")
    A(f"s_lshl_b32 s{sD_}, s{sI}, 2\ns_add_u32 s{sD_}, s{sD_}, s{SW}\ns_lshl_b32 s{sV}, s{sD_}, 4\ns_add_u32 s{sV}, s{sV}, s{sH}\ns_lshl_b32 s{sV}, s{sV}, 11\ns_add_u32 s{sV}, s{sV}, {WS_O}")
    A("s_waitcnt lgkmcnt(0)\ns_barrier")
    for g in (3, 0, 1, 2):
        for t in range(1, 4): A(f"ds_read_b128 {v(O+16*t+4*g,4)}, v{VRW[0]} offset:{(t-1)*4096 + g*1024}")
    def red(g):
        for r in (4*g, 4*g+2):
            A(f"v_pk_add_f32 {v(O+r,2)}, {v(O+r,2)}, {v(O+16+r,2)}\nv_pk_add_f32 {v(O+32+r,2)}, {v(O+32+r,2)}, {v(O+48+r,2)}")
        for r in (4*g, 4*g+2): A(f"v_pk_add_f32 {v(O+r,2)}, {v(O+r,2)}, {v(O+32+r,2)}")
    A("s_waitcnt lgkmcnt(9)"); red(3)
    A(f"v_readlane_b32 s{sT}, v{O+13}, 32\nv_mov_b32 v{T0}, v{O+12}\nv_mov_b32 v{T2}, v{O+12}\nv_permlane32_swap_b32 v{T0}, v{T2}\nv_rcp_f32 v{T2}, v{T2}")
    A(f"s_cmp_lg_u32 s{sT}, s{sRETRY}\ns_cbranch_scc1 P2_FALL\nP2_FIN:")
    for k, g in enumerate((0, 1, 2)):
        A(f"s_waitcnt lgkmcnt({6 - 3*k})"); red(g)
    for r in range(0, 16, 2): A(f"v_pk_mul_f32 {v(O+r,2)}, {v(O+r,2)}, {v(T2,2)} op_sel_hi:[1,0]")
    for r in range(8): A(f"v_cvt_pk_bf16_f32 v{O+16+r}, v{O+2*r}, v{O+2*r+1}")
    A(f"v_cndmask_b32 v{O+22}, v{O+22}, 0, s[{sHI}:{sHI+1}]\nv_cndmask_b32 v{O+23}, v{O+23}, 0, s[{sHI}:{sHI+1}]")
    sanitize(O+19, O+23)
    for f in range(2): A(f"buffer_store_dwordx4 {v(O+16+4*f,4)}, v{VL}, {R(RWS)}, s{sV} offen offset:{f*1024} sc1")
    stamp("ost"); stamp_flush()
    A("s_barrier")
    def fallback():
        A(f"P2_FALL:\ns_cmp_lg_u32 s{sRETRY}, 0\ns_cbranch_scc1 P2_FIN")
        A(f"s_mov_b32 s{sRETRY}, -1\ns_waitcnt vmcnt(0) lgkmcnt(0)")
        for t in range(4):
            A(f"v_cndmask_b32 v{Q+8*t+6}, v{Q+8*t+6}, 0, s[{sHI}:{sHI+1}]\nv_cndmask_b32 v{Q+8*t+7}, v{Q+8*t+7}, 0, s[{sHI}:{sHI+1}]\nv_mov_b32 v{M[t]}, 0xff800000")
        A(f"s_mov_b32 s{sU}, 0\nP2_MAXLOOP:")
        for f in range(2): A(f"buffer_load_dwordx4 {v(K0+4*f,4)}, v{VKV}, {R(RWS)}, s{sU} offen offset:{f*1024} sc1")
        A("s_waitcnt vmcnt(0)")
        for t in range(4):
            A(f"{MFMA} {v(O+16*t,16)}, {v(K0,4)}, {v(Q+8*t,4)}, 0\n{MFMA} {v(O+16*t,16)}, {v(K0+4,4)}, {v(Q+8*t+4,4)}, {v(O+16*t,16)}")
        for t in range(4):
            tilemax(O+16*t, T0, T1); A(f"v_max3_f32 v{M[t]}, v{M[t]}, v{T0}, v{T1}")
        A(f"s_add_u32 s{sU}, s{sU}, 4096\ns_cmp_lt_u32 s{sU}, {16*4096}\ns_cbranch_scc1 P2_MAXLOOP")
        A(f"s_barrier\nv_and_b32 v{T3}, 31, v1\nv_lshlrev_b32 v{T3}, 4, v{T3}")
        for t in range(4):
            A(f"v_mov_b32 v{T2}, v{M[t]}\nv_permlane32_swap_b32 v{M[t]}, v{T2}\nv_max_f32 v{M[t]}, v{M[t]}, v{T2}")
            A(f"s_add_u32 s{sT}, s{SW}, {t}\ns_and_b32 s{sT}, s{sT}, 3\ns_lshl_b32 s{sT}, s{sT}, 9\ns_add_u32 s{sT}, s{sT}, {RBUF}\ns_lshl_b32 s{sU}, s{SW}, 2\ns_add_u32 s{sU}, s{sU}, s{sT}")
            A(f"v_add_u32 v{K0+t}, s{sT}, v{T3}\nv_add_u32 v{T2}, s{sU}, v{T3}\nds_write_b32 v{T2}, v{M[t]}")
        A("s_waitcnt lgkmcnt(0)\ns_barrier")
        for t in range(4): A(f"ds_read_b128 {v(O+4*t,4)}, v{K0+t}")
        for n in range(4):
            for ln in kvload(n): A(ln)
        A("s_waitcnt vmcnt(0) lgkmcnt(0)\ns_barrier")
        for t in range(4):
            A(f"v_max3_f32 v{M[t]}, v{O+4*t}, v{O+4*t+1}, v{O+4*t+2}\nv_max_f32 v{M[t]}, v{M[t]}, v{O+4*t+3}")
            set_qpad(Q+8*t, M[t], T0, T1, T2)
        A("s_branch P2_MAIN")
    return fallback

def p3():
    OFR, D1, D2, TF = 16, 144, 160, 176
    T0, T1, T2, T3 = 8, 9, 10, 11
    A(f"{MFMA} {v(D1,16)}, {v(XR,4)}, {v(IR3,4)}, 0\n{MFMA} {v(D2,16)}, {v(IR3,4)}, {v(XR,4)}, 0")
    A(f"{MFMA} {v(D1,16)}, {v(XR+4,4)}, {v(IR3+4,4)}, {v(D1,16)}\n{MFMA} {v(D2,16)}, {v(IR3+4,4)}, {v(XR+4,4)}, {v(D2,16)}")
    A(f"s_lshl_b32 s{sB}, s{sR3}, 15\ns_add_u32 s{sB}, s{sB}, {WS_O}\nv_add_u32 v{T2}, s{sB}, v{VL}\ns_and_b32 s{sA}, s{sC3}, 7\ns_lshl_b32 s{sA}, s{sA}, 12")
    A("s_barrier")
    A(f"s_cmp_lt_u32 s{sC3}, 14\ns_cbranch_scc1 P3_GO\ns_barrier\ns_branch P3_END\nP3_GO:")
    vm.q = []; lg.q = []
    so = Stream("SO", 8, lambda g: [(OFR+16*g+4*k, T2, k*1024) for k in range(4)],
                lambda g: A(f"s_add_u32 s{sT}, s{sA}, {g*4096}\ns_and_b32 s{sT}, s{sT}, 0x7fff"), T0)
    NPRE = 3
    for m in range(NPRE): so.issue(m)
    def wread(ks):
        n, p = ks >> 1, ks & 1
        for half in range(2):
            A(f"ds_read_b64_tr_b16 {v(TF+4*(ks&3)+2*half,2)}, v{VWO} offset:{(n>>2)*12288 + (n&3)*2048 + (16*p+8*half)*64}"); lg.issue(f"w{ks}")
    wread(0); wread(1)
    so.check1(0); so.check2(0)
    for ks in range(32):
        lg.wait(f"w{ks}")
        if ks in (0, 16): stamp(f"p3_{ks}")
        o, wv = v(OFR+4*ks, 4), v(TF+4*(ks&3), 4)
        A(f"{MFMA} {v(D2,16)}, {wv}, {o}, {v(D2,16)}")
        if ks + 2 < 32: wread(ks + 2)
        A(f"{MFMA} {v(D1,16)}, {o}, {wv}, {v(D1,16)}")
        if ks % 4 == 0: so.issue(NPRE + ks//4)
        if ks % 4 == 2: so.check1(ks//4 + 1)
        if ks % 4 == 3: so.check2(ks//4 + 1)
    stamp("p3mm")
    G = 16
    A(f"s_lshl_b32 s{sB}, s{sR3}, 13\ns_add_u32 s{sB}, s{sB}, {WS_ST}\ns_lshl_b32 s{sT}, s{sC3}, 9\ns_add_u32 s{sT}, s{sT}, s{sB}")
    A(f"v_mov_b32 v{G+1}, s{sTAG}\nv_mov_b32 v{G+3}, s{sTAG+1}")
    A(f"v_pk_add_f32 v[20:21], {v(D2,2)}, {v(D2+2,2)}\nv_pk_mul_f32 v[22:23], {v(D2,2)}, {v(D2,2)}\nv_pk_fma_f32 v[22:23], {v(D2+2,2)}, {v(D2+2,2)}, v[22:23]")
    for r in range(4, 16, 2): A(f"v_pk_add_f32 v[20:21], v[20:21], {v(D2+r,2)}\nv_pk_fma_f32 v[22:23], {v(D2+r,2)}, {v(D2+r,2)}, v[22:23]")
    A(f"v_add_f32 v{G}, v20, v21\nv_add_f32 v{G+2}, v22, v23")
    A(f"v_mov_b32 v20, v{G}\nv_mov_b32 v22, v{G+2}\nv_permlane32_swap_b32 v{G}, v20\nv_permlane32_swap_b32 v{G+2}, v22\nv_add_f32 v{G}, v{G}, v20\nv_add_f32 v{G+2}, v{G+2}, v22")
    set_exec(0xFFFFFFFF)
    A(f"buffer_store_dwordx4 {v(G,4)}, v{VL}, {R(RWS)}, s{sT} offen sc1\ns_mov_b64 exec, -1")
    for r in range(8): A(f"v_cvt_pk_bf16_f32 v{24+r}, v{D2+2*r}, v{D2+2*r+1}")
    sanitize(27, 31)
    A(f"s_mul_i32 s{sT}, s{sR3}, 14\ns_add_u32 s{sT}, s{sT}, s{sC3}\ns_lshl_b32 s{sT}, s{sT}, 11\ns_add_u32 s{sT}, s{sT}, {WS_HF}")
    for p in range(2): A(f"buffer_store_dwordx4 {v(24+4*p,4)}, v{VL}, {R(RWS)}, s{sT} offen offset:{p*1024} sc1")
    A(f"v_and_b32 v{T0}, 31, v1\nv_lshlrev_b32 v{T0}, 4, v{T0}\nv_lshrrev_b32 v{T1}, 5, v1\nv_mul_u32_u24 v{T1}, 3584, v{T1}\nv_add_u32 v{T0}, v{T0}, v{T1}")
    A("s_barrier")
    if env("S3W", 1): A("s_waitcnt vmcnt(2)")
    stamp("s3pre")
    GR = 32
    A(f"s_mov_b32 s{sTO}, 0x40000\nP3_GL:")
    for k in range(7): A(f"buffer_load_dwordx4 {v(GR+4*k,4)}, v{T0}, {R(RWS)}, s{sB} offen offset:{k*512} sc1")
    A(f"s_sub_u32 s{sTO}, s{sTO}, 1\ns_waitcnt vmcnt(0)\ns_cbranch_scc1 P3_GX")
    tagcheck([GR+4*k for k in range(7)], T1, T2, T3)
    A("s_cbranch_vccnz P3_GL\nP3_GX:")
    vm.q = []
    stamp("s3")
    for k in range(1, 7): A(f"v_add_f32 v{GR}, v{GR}, v{GR+4*k}\nv_add_f32 v{GR+2}, v{GR+2}, v{GR+4*k+2}")
    m, q = GR, GR+2
    A(f"v_mov_b32 v{T0}, v{m}\nv_mov_b32 v{T1}, v{q}\nv_permlane32_swap_b32 v{m}, v{T0}\nv_permlane32_swap_b32 v{q}, v{T1}\nv_add_f32 v{m}, v{m}, v{T0}\nv_add_f32 v{q}, v{q}, v{T1}")
    A(f"v_mul_f32 v{m}, {fl(1.0/D)}, v{m}\nv_mul_f32 v{q}, {fl(1.0/D)}, v{q}\nv_fma_f32 v{q}, -v{m}, v{m}, v{q}\nv_max_f32 v{q}, 0, v{q}")
    A(f"v_add_f32 v{T0}, {fl(EPS)}, v{q}\nv_mul_f32 v{T0}, {fl(EPS)}, v{T0}\nv_add_f32 v{q}, v{q}, v{T0}\nv_rsq_f32 v{q}, v{q}\ns_add_u32 s{sT}, s{sRBW}, 8192\nv_mul_f32 v{m}, v{m}, v{q}")
    A(f"v_cndmask_b32 v{T0}, v{q}, v{m}, s[{sHI}:{sHI+1}]\nv_lshl_add_u32 v{T1}, v1, 2, s{sT}\nds_write_b32 v{T1}, v{T0}")
    A(f"v_lshrrev_b32 v{T2}, 5, v1\nv_lshl_add_u32 v{T2}, v{T2}, 4, s{sT}")
    for g in range(4): A(f"ds_read_b128 {v(64+4*g,4)}, v{T2} offset:{g*32}\nds_read_b128 {v(80+4*g,4)}, v{T2} offset:{128+g*32}")
    A(f"s_lshl_b32 s{sT}, s{sC3}, 17\ns_lshl_b32 s{sU}, s{sR3}, 11\ns_add_u32 s{sT}, s{sT}, s{sU}\ns_add_u32 s{sT}, s{sT}, {WS_HH}")
    for p in range(2):
        A(f"s_waitcnt lgkmcnt({4 - 4*p})")
        for r in range(8*p, 8*p+8, 2): A(f"v_pk_fma_f32 {v(D1+r,2)}, {v(D1+r,2)}, {v(64+r,2)}, {v(80+r,2)} neg_lo:[0,0,1] neg_hi:[0,0,1]")
        for r in range(4*p, 4*p+4): A(f"v_cvt_pk_bf16_f32 v{24+r}, v{D1+2*r}, v{D1+2*r+1}")
        sanitize(27+4*p)
        A(f"buffer_store_dwordx4 {v(24+4*p,4)}, v{VL}, {R(RWS)}, s{sT} offen offset:{p*1024} sc1")
    stamp("hhst"); stamp_flush()
    A("P3_END:")
    vm.q = []; lg.q = []

PRE, ACC = 128, 16
def preread():
    for n in range(14):
        for ti in range(2):
            for half in range(2):
                A(f"ds_read_b64_tr_b16 {v(PRE + 8*n + ti*4 + half*2, 2)}, v{VRD[ti]} offset:{n*2048 + half*1024}")

def p4():
    RING, NR = 80, 6
    T0, T1, BR, VH = 4, 5, 6, [14, 15]
    preread()
    A("s_waitcnt lgkmcnt(0)\ns_barrier")
    stamp("hhflag"); stamp_flush()
    A(f"s_cmp_lg_u32 s{sACT4}, 0\ns_cbranch_scc1 P4_GO\ns_barrier\ns_barrier\ns_barrier\ns_barrier\ns_branch P4_END\nP4_GO:")
    sFO, sRO = sA, sD_
    A(f"s_lshr_b32 s{sFO}, s{SW}, 1\ns_lshl_b32 s{sT}, s{sFT}, 1\ns_add_u32 s{sFO}, s{sFO}, s{sT}\ns_lshl_b32 s{sT}, s{sFO}, 6\nv_lshrrev_b32 v{T0}, 5, v1\nv_lshlrev_b32 v{T0}, 3, v{T0}")
    for g in range(4): A(f"buffer_load_dwordx2 {v(BR+2*g,2)}, v{T0}, {R(RB1)}, s{sT} offen offset:{g*16}")
    A(f"s_and_b32 s{sE}, s{SW}, 1\ns_lshl_b32 s{sT}, s{sDT4}, 1\ns_add_u32 s{sE}, s{sE}, s{sT}\ns_xor_b32 s{sU}, s{sE}, 1")
    A(f"s_lshl_b32 s{sT}, s{SW}, 15\ns_add_u32 s{sT}, s{sT}, {WS_HH}\ns_lshl_b32 s{sB}, s{sE}, 17\ns_add_u32 s{sB}, s{sB}, s{sT}\ns_lshl_b32 s{sC}, s{sU}, 17\ns_add_u32 s{sC}, s{sC}, s{sT}")
    A(f"v_add_u32 v{VH[0]}, s{sB}, v{VL}\nv_add_u32 v{VH[1]}, s{sC}, v{VL}")
    rot4(sRO); A(f"s_lshl_b32 s{sRO}, s{sRO}, 10")
    for sl in range(1, 4):
        A(f"s_xor_b32 s{sU}, s{SW}, {sl}\ns_mul_i32 s{sU}, s{sU}, 12288\ns_add_u32 s{sU}, s{sU}, {RBUF}\nv_add_u32 v{VRW[sl]}, s{sU}, v{VL}")
    dreg = lambda n, j: RING + (n % NR)*8 + 4*j
    dest = lambda n, j: v(dreg(n, j), 4)
    vm.q = []
    sh = Stream("SH", 16, lambda g: [(dreg(2*g+k, j), VH[j], k*1024) for k in range(2) for j in range(2)],
                lambda g: A(f"s_add_u32 s{sT}, s{sRO}, {g*2048}\ns_and_b32 s{sT}, s{sT}, 0x7fff"), T0)
    wreg = lambda n, ti: v(PRE + 8*(n if n < 14 else n & 3) + 4*ti, 4)
    def tread(n, ti):
        va, off = (VRB, (n-14)*2048) if n < 18 else (VRD, (n-18)*2048)
        for half in range(2): A(f"ds_read_b64_tr_b16 {v(PRE + 8*(n&3) + ti*4 + half*2, 2)}, v{va[ti]} offset:{off + half*1024}"); lg.issue(n)
    for g in range(NR//2): sh.issue(g)
    sh.check1(0); sh.check2(0)
    for n in range(32):
        if n == 0: stamp("p4first")
        if n in (8, 16, 24): stamp(f"p4_{n}")
        if n == 12: A("s_barrier")
        lg.wait(n)
        if n == 25: A("s_barrier")
        if n == 31: A("s_barrier")
        order = [(0, 0), (0, 1), (1, 0), (1, 1)] if n < 31 else [(0, 1), (1, 0), (1, 1), (0, 0)]
        for k, (ti, tj) in enumerate(order):
            acc = ACC + 16*(2*ti + tj)
            A(f"{MFMA} {v(acc,16)}, {wreg(n,ti)}, {dest(n,tj)}, {'0' if n == 0 else v(acc,16)}")
            if k < 2 and 14 <= n + 2 < 32: tread(n + 2, k)
            if n & 1 and k == 2: sh.check1(n//2 + 1)
        if n & 1: sh.check2(n//2 + 1); sh.issue(n//2 + NR//2)
    stamp("p4mm")
    for sl in (1, 2, 3):
        for g in range(4): A(f"ds_write_b128 v{VRW[sl]}, {v(ACC+16*sl+4*g,4)} offset:{(sl-1)*4096 + g*1024}")
    for j in range(8):
        A(f"v_lshlrev_b32 v80, 16, v{BR+j}\nv_and_b32 v81, 0xffff0000, v{BR+j}\nv_pk_add_f32 {v(ACC+2*j,2)}, {v(ACC+2*j,2)}, v[80:81]")
    c1 = -2.0*math.sqrt(2.0/math.pi)*math.log2(math.e); c2 = c1*0.044715
    A(f"v_mov_b32 v82, {fl(c2)}\nv_mov_b32 v84, {fl(c1)}")
    A(f"s_mul_i32 s{sT}, s{sE}, {112*1024}\ns_lshl_b32 s{sU}, s{sFO}, 11\ns_add_u32 s{sT}, s{sT}, s{sU}\ns_add_u32 s{sT}, s{sT}, {WS_G}")
    A("s_waitcnt lgkmcnt(0)\ns_barrier")
    for g in range(4):
        for sl in range(1, 4): A(f"ds_read_b128 {v(ACC+16*sl+4*g,4)}, v{VRW[0]} offset:{(sl-1)*4096 + g*1024}")
    for g in range(4):
        A(f"s_waitcnt lgkmcnt({9-3*g})")
        rs = (16+4*g, 18+4*g)
        for r in rs: A(f"v_pk_add_f32 {v(r,2)}, {v(r,2)}, {v(r+16,2)}\nv_pk_add_f32 {v(r+32,2)}, {v(r+32,2)}, {v(r+48,2)}")
        for r in rs: A(f"v_pk_add_f32 {v(r,2)}, {v(r,2)}, {v(r+32,2)}")
        for r in rs: A(f"v_pk_mul_f32 {v(r+16,2)}, {v(r,2)}, {v(r,2)}")
        for r in rs: A(f"v_pk_fma_f32 {v(r+16,2)}, {v(r+16,2)}, v[82:83], v[84:85] op_sel_hi:[1,0,0]")
        for r in rs: A(f"v_pk_mul_f32 {v(r+16,2)}, {v(r+16,2)}, {v(r,2)}")
        for r in range(32+4*g, 36+4*g): A(f"v_exp_f32 v{r}, v{r}")
        for r in rs: A(f"v_pk_add_f32 {v(r+16,2)}, {v(r+16,2)}, 1.0 op_sel_hi:[1,0]")
        for r in range(32+4*g, 36+4*g): A(f"v_rcp_f32 v{r}, v{r}")
        for r in rs: A(f"v_pk_mul_f32 {v(r,2)}, {v(r,2)}, {v(r+16,2)}")
        for k, r in enumerate(rs): A(f"v_cvt_pk_bf16_f32 v{88+2*g+k}, v{r}, v{r+1}")
        if g & 1: sanitize(89+2*g)
        if g & 1: A(f"buffer_store_dwordx4 {v(88+4*(g>>1),4)}, v{VL}, {R(RWS)}, s{sT} offen offset:{(g>>1)*1024} sc1")
    stamp("gst"); stamp_flush()
    A("P4_END:\ns_barrier")
    vm.q = []; lg.q = []
    preread()
    A("s_waitcnt lgkmcnt(0)\ns_barrier")
    stamp("gflag"); stamp_flush()

def p5():
    T0, T1, T2 = 4, 5, 6
    RING, NR, HR, IR, VO, B2R, VG, TC = 80, 6, 64, 246, 3, 8, [12, 13], 254
    A(f"s_cmp_ge_u32 s{sJ}, 28\ns_cbranch_scc1 K_FIN")
    sGC = sC
    A(f"s_and_b32 s{sE}, s{SW}, 1\ns_lshl_b32 s{sT}, s{sDT5}, 1\ns_add_u32 s{sE}, s{sE}, s{sT}\ns_xor_b32 s{sU}, s{sE}, 1")
    A(f"s_lshr_b32 s{sV}, s{SW}, 1\ns_lshl_b32 s{sT}, s{sST}, 1\ns_add_u32 s{sV}, s{sV}, s{sT}\ns_mul_i32 s{sV}, s{sV}, 14\ns_add_u32 s{sV}, s{sV}, s{sE}\ns_lshl_b32 s{sV}, s{sV}, 11\ns_add_u32 s{sV}, s{sV}, {WS_HF}")
    vm.q = []
    A(f"v_lshrrev_b32 v{T0}, 3, v0\nv_mul_u32_u24 v{VO}, 896, v{T0}\nv_and_b32 v{T1}, 7, v0\nv_lshl_add_u32 v{VO}, v{T1}, 4, v{VO}\nv_lshlrev_b32 v{T0}, 1, v{T0}\ns_lshl_b32 s{sT}, s{sST}, 7")
    A(f"buffer_load_ushort v{B2R}, v{T0}, {R(RB2)}, s{sT} offen\nbuffer_load_ushort v{B2R+2}, v{T0}, {R(RB2)}, s{sT} offen offset:64")
    sx = Stream("SX", 1, lambda g: [(HR+4*p, VL, p*1024) for p in range(2)], lambda g: A(f"s_mov_b32 s{sT}, s{sV}"), TC)
    sx.issue(0)
    A(f"s_mul_i32 s{sT}, s{SW}, {28*1024}\ns_add_u32 s{sT}, s{sT}, {WS_G}\ns_mul_i32 s{sA}, s{sE}, {112*1024}\ns_add_u32 s{sA}, s{sA}, s{sT}\ns_mul_i32 s{sB}, s{sU}, {112*1024}\ns_add_u32 s{sB}, s{sB}, s{sT}")
    A(f"v_add_u32 v{VG[0]}, s{sA}, v{VL}\nv_add_u32 v{VG[1]}, s{sB}, v{VL}")
    rot5(sGC); A(f"s_lshl_b32 s{sGC}, s{sGC}, 10")
    dreg = lambda n, j: RING + (n % NR)*8 + 4*j
    dest = lambda n, j: v(dreg(n, j), 4)
    sg = Stream("SG", 14, lambda g: [(dreg(2*g+k, j), VG[j], k*1024) for k in range(2) for j in range(2)],
                lambda g: A(f"s_add_u32 s{sT}, s{sGC}, {g*2048}\ns_sub_u32 s{sD_}, s{sT}, {28*1024}\ns_min_u32 s{sT}, s{sT}, s{sD_}"), TC)
    for g in range(NR//2): sg.issue(g)
    A(f"v_and_b32 v{T0}, 31, v1\nv_lshrrev_b32 v{T1}, 5, v1\nv_lshlrev_b32 v{T1}, 2, v{T1}\nv_sub_u32 v{T0}, v{T0}, v{T1}")
    for p in range(2):
        for r in range(4):
            d0 = 16*p + 8*(r >> 1) + 2*(r & 1)
            A(f"v_cmp_eq_u32 vcc, {d0}, v{T0}\nv_cmp_eq_u32 s[{sA}:{sA+1}], {d0+1}, v{T0}\nv_cndmask_b32 v{IR+4*p+r}, 0, v{VONE}, vcc\nv_cndmask_b32 v{IR+4*p+r}, v{IR+4*p+r}, v{VONE+1}, s[{sA}:{sA+1}]")
    VWA = [4, 5, 6, 7]; VRA = [14, 15]
    A(f"v_and_b32 v14, 31, v1\nv_mul_u32_u24 v14, 272, v14\nv_lshrrev_b32 v15, 5, v1\nv_lshl_add_u32 v14, v15, 4, v14\nv_add_u32 v14, s{sW2W}, v14")
    for sl in range(4):
        A(f"s_xor_b32 s{sT}, s{SW}, {sl}\ns_lshr_b32 s{sU}, s{sT}, 1\ns_mul_i32 s{sU}, s{sU}, {32*272}\ns_and_b32 s{sT}, s{sT}, 1\ns_lshl_b32 s{sT}, s{sT}, 7\ns_add_u32 s{sT}, s{sT}, s{sU}\nv_add_u32 v{VWA[sl]}, s{sT}, v14")
    A(f"v_lshrrev_b32 v14, 3, v0\nv_mul_u32_u24 v14, 272, v14\nv_and_b32 v15, 7, v0\nv_lshl_add_u32 v14, v15, 5, v14\nv_add_u32 v15, {2*28672}, v14")
    sx.check1(0); sx.check2(0)
    A(f"{MFMA} {v(ACC,16)}, {v(IR,4)}, {v(HR,4)}, 0\n{MFMA} {v(ACC,16)}, {v(IR+4,4)}, {v(HR+4,4)}, {v(ACC,16)}")
    A(f"v_lshlrev_b32 v{B2R}, 16, v{B2R}\nv_lshlrev_b32 v{B2R+2}, 16, v{B2R+2}")
    wreg = lambda n, ti: v(PRE + 8*(n if n < 14 else n & 3) + 4*ti, 4)
    def tread(n, ti):
        for half in range(2): A(f"ds_read_b64_tr_b16 {v(PRE + 8*(n&3) + ti*4 + half*2, 2)}, v{VRD[ti]} offset:{(n-14)*2048 + half*1024}"); lg.issue(n)
    sg.check1(0); sg.check2(0)
    for n in range(28):
        if n == 0: stamp("p5first")
        if n in (7, 14, 21): stamp(f"p5_{n}")
        if n == 12: A("s_barrier")
        lg.wait(n)
        for k, (ti, tj) in enumerate([(0, 0), (0, 1), (1, 0), (1, 1)]):
            acc = ACC + 16*(2*ti + tj)
            A(f"{MFMA} {v(acc,16)}, {dest(n,tj)}, {wreg(n,ti)}, {'0' if n == 0 and k else v(acc,16)}")
            if k < 2 and 14 <= n + 2 < 28: tread(n + 2, k)
            if n & 1 and k == 2: sg.check1(n//2 + 1)
        if n & 1: sg.check2(n//2 + 1); sg.issue(n//2 + NR//2)
    A(f"s_mul_i32 s{sT}, s{sST}, {64*896}\ns_lshl_b32 s{sU}, s{sDT5}, 7\ns_add_u32 s{sT}, s{sT}, s{sU}\ns_add_u32 s{sU}, s{sT}, {32*896}")
    stamp("p5mm")
    for sl in range(4):
        for g in range(4): A(f"ds_write_b128 v{VWA[sl]}, {v(ACC+16*sl+4*g,4)} offset:{g*32}")
    A("s_waitcnt lgkmcnt(0)\ns_barrier")
    for rr in range(2):
        for w in range(4):
            for q in range(2):
                A(f"ds_read_b128 {v(16+16*w+8*rr+4*q,4)}, v{VRA[w>>1]} offset:{(w&1)*28672 + rr*32*272 + q*16}")
    for rr in range(2):
        A(f"s_waitcnt lgkmcnt({8 if rr == 0 else 0})")
        rs = range(16+8*rr, 24+8*rr, 2)
        for r in rs: A(f"v_pk_add_f32 {v(r,2)}, {v(r,2)}, {v(r+16,2)}\nv_pk_add_f32 {v(r+32,2)}, {v(r+32,2)}, {v(r+48,2)}")
        for r in rs: A(f"v_pk_add_f32 {v(r,2)}, {v(r,2)}, {v(B2R+2*rr,2)} op_sel_hi:[1,0]")
        for r in rs: A(f"v_pk_add_f32 {v(r,2)}, {v(r,2)}, {v(r+32,2)}")
        for r in range(4): A(f"v_cvt_pk_bf16_f32 v{80+4*rr+r}, v{16+8*rr+2*r}, v{17+8*rr+2*r}")
        A(f"buffer_store_dwordx4 {v(80+4*rr,4)}, v{VO}, {R(ROUT)}, s{[sT,sU][rr]} offen")
    stamp("outst"); stamp_flush()
    A("K_FIN:")
    if os.environ.get("DIAGAT"):
        A(f"DSP:\ns_memrealtime s[{sA}:{sA+1}]\ns_waitcnt lgkmcnt(0)\ns_sub_u32 s{sA}, s{sA}, s72\ns_cmp_lt_u32 s{sA}, 4000\ns_cbranch_scc1 DSP")
    if STAMP:
        A("s_waitcnt vmcnt(0)"); stamp("end"); A(f"s_memrealtime s[{sA}:{sA+1}]"); stamp_flush()
        A(f"v_writelane_b32 v{VST}, s72, 62\nv_writelane_b32 v{VST}, s{sA}, 63")
        A(f"s_lshl_b32 s{sT}, s2, 3\ns_add_u32 s{sT}, s{sT}, s{sW8}\ns_lshl_b32 s{sT}, s{sT}, 8\ns_add_u32 s{sT}, s{sT}, {WS_STAMP}\nv_lshlrev_b32 v4, 2, v1\nbuffer_store_dword v{VST}, v4, {R(RWS)}, s{sT} offen")
    A("K_END:\ns_endpgm")

PZ = 8
def poison_all(lab):
    for r in range(4): A(f"v_mov_b32 v{PZ+r}, -1")
    def poison():
        for p in range(2): A(f"buffer_store_dwordx4 {v(PZ,4)}, v{VL}, {R(RWS)}, s{sT} offen offset:{p*1024} sc1")
    A(f"s_lshl_b32 s{sT}, s{sI}, 2\ns_add_u32 s{sT}, s{sT}, s{SW}\ns_lshl_b32 s{sT}, s{sT}, 4\ns_add_u32 s{sT}, s{sT}, s{sH}\ns_lshl_b32 s{sT}, s{sT}, 11\ns_add_u32 s{sT}, s{sT}, {WS_O}")
    poison()
    A(f"s_cmp_ge_u32 s{sC3}, 14\ns_cbranch_scc1 {lab}1")
    A(f"s_mul_i32 s{sT}, s{sR3}, 14\ns_add_u32 s{sT}, s{sT}, s{sC3}\ns_lshl_b32 s{sT}, s{sT}, 11\ns_add_u32 s{sT}, s{sT}, {WS_HF}"); poison()
    A(f"s_lshl_b32 s{sT}, s{sC3}, 17\ns_lshl_b32 s{sU}, s{sR3}, 11\ns_add_u32 s{sT}, s{sT}, s{sU}\ns_add_u32 s{sT}, s{sT}, {WS_HH}"); poison()
    A(f"{lab}1:\ns_cmp_eq_u32 s{sACT4}, 0\ns_cbranch_scc1 {lab}2")
    A(f"s_and_b32 s{sT}, s{SW}, 1\ns_lshl_b32 s{sU}, s{sDT4}, 1\ns_add_u32 s{sT}, s{sT}, s{sU}\ns_mul_i32 s{sT}, s{sT}, {112*1024}\ns_lshr_b32 s{sU}, s{SW}, 1\ns_lshl_b32 s{sV}, s{sFT}, 1\ns_add_u32 s{sU}, s{sU}, s{sV}\ns_lshl_b32 s{sU}, s{sU}, 11\ns_add_u32 s{sT}, s{sT}, s{sU}\ns_add_u32 s{sT}, s{sT}, {WS_G}"); poison()
    A(f"{lab}2:")

def bprog():
    NT = env("NT", 0); nt = " nt" if NT else ""
    nt1 = " nt" if env("NT1", 0) else ""
    VXD = [16, 17, 18, 19]; VXE = [20, 21]; VWD = list(range(22, 29))
    sWO, sXO, sM, sWM = sA, sB, sC, sD_
    sXP, sWP = [sW1, sW1S, sW1E], [sW2, sW2S, sW2E]
    A("B_P1:"); vm.q = []; lg.q = []
    p1_common()
    A(f"s_mul_i32 s{sXO}, s{sE}, {32*896}\ns_lshl_b32 s{sWM}, s{SW}, 10")
    A("v_lshrrev_b32 v4, 4, v1\nv_and_b32 v5, 15, v1\nv_xor_b32 v5, v5, v4\nv_mul_u32_u24 v6, 896, v4")
    for j in range(4): A(f"v_xor_b32 v7, {4*j}, v5\nv_lshl_add_u32 v7, v7, 4, v6\nv_add_u32 v{VXD[j]}, {j*4*896 - j*1024}, v7")
    A(f"s_lshr_b32 s{sT}, s{sJ}, 2\ns_and_b32 s{sU}, s{sJ}, 3\ns_add_u32 s{sT}, s{sT}, s{sU}\ns_mul_i32 s{sU}, s{sT}, 11\ns_lshr_b32 s{sU}, s{sU}, 5\ns_mul_i32 s{sU}, s{sU}, 3\ns_sub_u32 s{sT}, s{sT}, s{sU}")
    if not env("P1ROT", 1): A(f"s_mov_b32 s{sT}, 0")
    for p in range(3):
        A(f"s_lshl_b32 s{sU}, s{sT}, 8\ns_add_u32 s{sXP[p]}, s{sXO}, s{sU}\ns_mul_i32 s{sU}, s{sT}, {128*2688}\ns_add_u32 s{sWP[p]}, s{sWO}, s{sU}")
        if p < 2: A(f"s_add_u32 s{sT}, s{sT}, 1\ns_cmp_eq_u32 s{sT}, 3\ns_cselect_b32 s{sT}, 0, s{sT}")
    def xpiece(p):
        if p < 3:
            for j in range(8):
                if j % 4 == 0: A(f"s_add_u32 m0, s{sM}, {XBUF[p] + (j>>2)*4096}\ns_add_u32 s{sV}, s{sXP[p]}, {(j>>2)*16*896}")
                A(f"buffer_load_dwordx4 v{VXD[j&3]}, {R(RX)}, s{sV} offen offset:{(j&3)*1024}{nt1} lds"); vm.issue(f"x{p}")
        else:
            for j in range(4):
                A(f"s_add_u32 m0, s{sM}, {XBUF[p] + j*1024}\ns_add_u32 s{sV}, s{sXO}, {(j>>1)*16*896 + 768}\nbuffer_load_dwordx4 v{VXE[j&1]}, {R(RX)}, s{sV} offen{nt1} lds"); vm.issue(f"x{p}")
    def wdma(j):
        g = j // 7
        if g == 3 and j == 21: A(f"s_add_u32 s{sT}, s{sWO}, {3*128*2688}")
        A(f"s_add_u32 m0, s{sWM}, {j*4096}\nbuffer_load_dwordx4 v{VWD[j%7]}, {R(RWQ)}, s{sWP[g] if g < 3 else sT} offen{nt1} lds"); vm.issue(f"w{g}")
    A("s_waitcnt lgkmcnt(0)")
    xpiece(0)
    for j in range(7):
        A(f"v_add_u32 v4, {256*j}, v0\nv_mul_u32_u24 v5, 4682, v4\nv_lshrrev_b32 v5, 16, v5\nv_mul_u32_u24 v6, 14, v5\nv_sub_u32 v4, v4, v6")
        A(f"v_and_b32 v6, 0xf8, v5\nv_and_b32 v7, 1, v5\nv_lshl_add_u32 v6, v7, 2, v6\nv_bfe_u32 v7, v5, 1, 2\nv_add_u32 v6, v6, v7\nv_mul_u32_u24 v6, 2688, v6\nv_lshl_add_u32 v{VWD[j]}, v4, 4, v6")
        wdma(j)
    xpiece(1)
    A("v_lshrrev_b32 v4, 3, v1\nv_mul_u32_u24 v6, 896, v4\nv_lshrrev_b32 v4, 4, v1\nv_and_b32 v5, 7, v1\nv_xor_b32 v5, v5, v4")
    for j in range(2): A(f"v_xor_b32 v7, {4*j}, v5\nv_lshl_add_u32 v7, v7, 4, v6\nv_add_u32 v{VXE[j]}, {j*8*896}, v7")
    prologue2()
    vm.wait("w0"); A("s_barrier\ns_barrier")
    for j in range(7, 14): wdma(j)
    xpiece(2)
    vm.wait("w1"); A("s_barrier\ns_barrier")
    for j in range(14, 21): wdma(j)
    xpiece(3)
    for j in range(21, 25): wdma(j)
    vm.wait("w2"); A("s_barrier")
    vm.wait_all(); A("s_barrier\ns_waitcnt lgkmcnt(0)\ns_branch B_P2")

def bprog2():
    NT = env("NT", 0); nt = " nt" if NT else ""
    A("B_P2:"); vm.q = []
    if STAMP: A("v_mov_b32 v15, -1\nB_P2S:"); st["v"] = 15
    roles(touch=False)
    W1B, WOR, W2R0 = 16, 160, 192
    VT1, VT2, VTO, VDW, VDR = [4, 5], [6, 7], [8, 9], 10, 11
    A("v_lshrrev_b32 v12, 3, v1\nv_bfe_u32 v13, v1, 4, 1\nv_lshlrev_b32 v13, 2, v13\nv_and_b32 v14, 7, v1\nv_xor_b32 v14, v14, v13\nv_lshlrev_b32 v14, 4, v14")
    A(f"v_mul_u32_u24 v13, 3584, v12\nv_add_u32 v{VT1[0]}, v13, v14\nv_add_u32 v{VT1[1]}, {8*3584}, v{VT1[0]}\nv_lshl_add_u32 v{VT2[0]}, v12, 12, v14\nv_add_u32 v{VT2[1]}, {8*4096}, v{VT2[0]}")
    A(f"v_lshrrev_b32 v12, 2, v1\nv_mul_u32_u24 v12, 896, v12\nv_and_b32 v13, 3, v1\nv_lshl_add_u32 v{VTO[0]}, v13, 4, v12\nv_add_u32 v{VTO[1]}, {16*896}, v{VTO[0]}")
    A(f"v_add_u32 v{VDW}, s{sW2W}, v{VL}\nv_add_u32 v{VDR}, s{sRBW}, v{VL}")
    A(f"s_mul_i32 s{sW1S}, s{SW}, {512*3584}\ns_lshl_b32 s{sT}, s{sFT}, 7\ns_add_u32 s{sW1S}, s{sW1S}, s{sT}\ns_add_u32 s{sW1E}, s{sW1S}, {512*3584}")
    rot4(sT); A(f"s_mul_i32 s{sT}, s{sT}, {16*3584}\ns_add_u32 s{sW1}, s{sW1S}, s{sT}")
    A(f"s_mul_i32 s{sW2S}, s{SW}, {448*4096}\ns_lshl_b32 s{sT}, s{sST}, 7\ns_add_u32 s{sW2S}, s{sW2S}, s{sT}\ns_add_u32 s{sW2E}, s{sW2S}, {448*4096}")
    rot5(sT); A(f"s_lshl_b32 s{sT}, s{sT}, 16\ns_add_u32 s{sW2}, s{sW2S}, s{sT}")
    TH = env("BTH", 4)
    def adv(cur, st_, en, step): A(f"s_add_u32 s{cur}, s{cur}, {step}\ns_cmp_eq_u32 s{cur}, s{en}\ns_cselect_b32 s{cur}, s{st_}, s{cur}")
    def w2reg(n): return W2R0 + 8*n if n < 8 else (WOR + 8*(n-8) if n < 12 else W1B + 8*(n-12))
    def w2load(n, th=None):
        for j in range(2): A(f"buffer_load_dwordx4 {v(w2reg(n)+4*j,4)}, v{VT2[j]}, {R(RW2)}, s{sW2} offen{nt}"); vm.issue(f"v{n}")
        adv(sW2, sW2S, sW2E, 16*4096)
        if th: A(f"s_waitcnt vmcnt({th})")
    A(f"s_and_b32 s{sT}, s{sC3}, 7\ns_lshl_b32 s{sT}, s{sT}, 1\ns_lshl_b32 s{sB}, s{SW}, 2\ns_add_u32 s{sB}, s{sB}, s{sT}\ns_min_u32 s{sC}, s{sC3}, 13\ns_lshl_b32 s{sC}, s{sC}, 6")
    A(f"s_cmp_ge_u32 s{sJ}, 24\ns_cbranch_scc1 B_NOKV\ns_barrier\nB_NOKV:")
    A(f"s_add_u32 s{sT}, s{SW}, 1\ns_and_b32 s{sT}, s{sT}, 3\ns_mul_i32 s{sT}, s{sT}, 12288\ns_add_u32 s{sT}, s{sT}, {RBUF + 3072}\nv_add_u32 v14, s{sT}, v{VL}")
    A(f"v_mov_b32 v12, 0\nds_write_b32 v14, v12\ns_waitcnt lgkmcnt(0)\ns_barrier")
    stamp("b_go")
    A(f"buffer_load_dwordx2 v[{W2R0}:{W2R0+1}], v12, {R(RDBG)}, 0 offen sc1")
    sPOS = sE
    def item(k, th):
        if k < 32:
            n = k
            for j in range(2):
                if n < 14: A(f"s_add_u32 m0, s{sW2W}, {n*2048 + j*1024}\nbuffer_load_dwordx4 v{VT1[j]}, {R(RW1)}, s{sW1} offen{nt} lds")
                else: A(f"buffer_load_dwordx4 {v(W1B+8*(n-14)+4*j,4)}, v{VT1[j]}, {R(RW1)}, s{sW1} offen{nt}")
            adv(sW1, sW1S, sW1E, 16*3584)
            if th: A(f"s_waitcnt vmcnt({th})")
        else: w2load(k - 32, th)
    K0 = 14
    for k in range(40):
        if k >= K0: A("ds_read_b32 v13, v14")
        item(k, TH)
        if k == 3:
            A(f"s_waitcnt vmcnt(8)\nv_readfirstlane_b32 s{sTAG}, v{W2R0}\nv_readfirstlane_b32 s{sTAG+1}, v{W2R0+1}\ns_cmp_lg_u32 s{SW}, 0\ns_cbranch_scc1 B_NOFP")
            A(f"s_mov_b64 exec, 1\nbuffer_store_dwordx2 v[{W2R0}:{W2R0+1}], v12, {R(RWS)}, s{sF[1]} offen sc1\ns_mov_b64 exec, -1\nB_NOFP:")
        if k in (4, 6, 8, 10):
            q = (k - 4) // 2
            A(f"s_add_u32 s{sT}, s{sB}, {q}\ns_and_b32 s{sT}, s{sT}, 15\ns_mul_i32 s{sT}, s{sT}, {28*896}\ns_add_u32 s{sT}, s{sT}, s{sC}")
            for j in range(2): A(f"buffer_load_dwordx4 {v(WOR+8*q+4*j,4)}, v{VTO[j]}, {R(RWO)}, s{sT} offen")
            A(f"s_waitcnt vmcnt({TH})")
        if k == 13:
            A(f"v_lshlrev_b32 v12, 7, v1\ns_lshl_b32 s{sV}, s{SW}, 13\ns_add_u32 s{sV}, s{sV}, {F2}")
            poll(12, sV, 64, 8)
            TH = env("BTH2", 8)
        if k in (4, 13): stamp(f"b_{k}")
        if K0 <= k < 39:
            A(f"s_mov_b32 s{sPOS}, {k+1}\ns_waitcnt lgkmcnt(0)\nv_cmp_ne_u32 vcc, 0, v13\ns_cbranch_vccnz B_CUT")
    A(f"s_mov_b32 s{sPOS}, 40\nB_CUT:")
    stamp("b_done"); stamp_flush()
    if STAMP: A(f"v_writelane_b32 v15, s{sPOS}, 60")
    A(f"v_min_u32 v12, 5, v1\nv_lshlrev_b32 v12, 12, v12\nv_add_u32 v12, {RBUF + 3*1024 + 32*16 + 4}, v12")
    A(f"B_RED:\ns_barrier\nds_read_b32 v13, v12\ns_waitcnt lgkmcnt(0)\nv_cmp_ne_u32 vcc, 0, v13")
    A(f"s_cbranch_vccz B_OK\ns_cmp_lg_u32 s{sRETRY}, 0\ns_cbranch_scc1 B_OK\ns_mov_b32 s{sRETRY}, -1\ns_barrier\ns_barrier\ns_barrier\ns_branch B_RED\nB_OK:")
    A("s_barrier")
    for k in range(8): A(f"ds_write_b128 v{VDR}, {v(WOR+4*k,4)} offset:{k*1024}")
    A("s_waitcnt lgkmcnt(0)\ns_barrier\ns_barrier")
    for k in range(K0 + 1, 40):
        A(f"s_cmp_gt_u32 s{sPOS}, {k}\ns_cbranch_scc1 B_SK{k}"); item(k, None); A(f"B_SK{k}:")
    vm.q = []
    for n in range(8, 12): w2load(n)
    A("s_barrier\ns_waitcnt vmcnt(8)")
    def dump(reg, va, off):
        for j in range(2): A(f"ds_write_b128 v{va}, {v(reg+4*j,4)} offset:{off + j*1024}")
    for n in range(14, 18): dump(W1B + 8*(n-14), VDR, (n-14)*2048)
    A("s_waitcnt lgkmcnt(0)")
    NE = env("W2E", 16)
    for n in range(12, NE): w2load(n)
    for n in range(18, 32): dump(W1B + 8*(n-14), VDW, (n-18)*2048)
    A("s_waitcnt lgkmcnt(0)\ns_barrier\ns_barrier")
    for n in range(7): dump(w2reg(n), VDW, n*2048)
    A("s_barrier")
    rest = list(range(NE, 28))
    for n in rest[:4]: w2load(n)
    rest = rest[4:]
    A("s_barrier")
    vm.wait("v13")
    for n in range(7, 14):
        dump(w2reg(n), VDW, n*2048)
        if rest: w2load(rest.pop(0))
    for n in rest: w2load(n)
    A("s_waitcnt lgkmcnt(0)\ns_barrier\ns_barrier")
    for n in range(14, 28):
        vm.wait(f"v{n}"); dump(w2reg(n), VDW, (n-14)*2048)
    A("s_waitcnt lgkmcnt(0)\ns_barrier")
    if STAMP: A(f"v_mov_b32 v{VST}, v15"); del st["v"]
    A("s_branch K_FIN")

def main(out):
    prologue()
    pend0 = list(st["pend"])
    bprog()
    st["pend"] = list(pend0); p1_helper()
    st["pend"] = list(pend0); p1(); fb = p2(); p3(); p4(); p5()
    st["pend"] = list(pend0); bprog2(); fb()
    for h in handlers: h()
    A("CODE_END:")
    head = open("head.txt").read()
    nv = 256
    txt = head + f"; @launch grid=(256,1,1) block=(512,1,1) lds={LDS_TOTAL}\n" + '.amdgcn_target "amdgcn-amd-amdhsa--gfx950"\n.text\n' + kernel_header(NAME) + A.text() + '.section .rodata,"a"\n' + kernel_desc(NAME, nv, 102, 256)
    open(out, "w").write(txt)
    if STAMP: open(out + ".names", "w").write(" ".join(st["names"].keys()))

if __name__ == "__main__":
    main(sys.argv[1])
```

```python
import sys, struct, math, os
from asmlib import *

S, D, H, DH, F = 2048, 448, 16, 28, 1792
MB = 1 << 20
WS_Q, WS_KV, WS_O, WS_HF, WS_HH, WS_G, WS_ST, WS_FL, WS_STAMP = 0, 2*MB, 6*MB, 8*MB, 10*MB, 12*MB, 14*MB, 14*MB + 512*1024, 15*MB
F1, F2, F4, F5 = WS_FL, WS_FL + 131072, WS_FL + 2*131072, WS_FL + 3*131072
WS_RST, WS_CSG = 13*MB + 768*1024, 13*MB + 832*1024
WS_SIZE = 16*MB
EPS = 1e-5
STAMP = os.environ.get("STAMP", "0") == "1"
def env(n, d): return int(os.environ.get(n, str(d)))
def f2u(x): return struct.unpack("<I", struct.pack("<f", x))[0]
def hx(x): return f"0x{x & 0xffffffff:08x}"
def fl(x): return hx(f2u(x))
MFMA = "v_mfma_f32_32x32x16_bf16"
NAME = "sequential_preLN__mha_block__mixer_token_mlp__prompt_kernel"

class Cnt:
    def __init__(self, A, name, mx):
        self.A, self.name, self.mx, self.q = A, name, mx, []
    def issue(self, tag): self.q.append(tag)
    def wait(self, tag):
        idx = [i for i, t in enumerate(self.q) if t == tag]
        if not idx: return
        n = len(self.q) - 1 - idx[-1]
        self.A(f"s_waitcnt {self.name}({min(n, self.mx)})")
        self.q = self.q[idx[-1] + 1:]
    def wait_all(self):
        self.A(f"s_waitcnt {self.name}(0)"); self.q = []

RX, RWQ, RWO, RW1, RB1, RW2, RB2, ROUT, RDBG, RWS = 8, 12, 16, 20, 24, 28, 32, 36, 40, 44
def R(r): return f"s[{r}:{r+3}]"
SW, sH, sI, sJ, sFT, sDT4, sST, sDT5, sACT4, sTO, sTAG = 48, 49, 50, 51, 52, 53, 54, 55, 56, 57, 58
sHI, sONES = 60, 62
sT, sU, sV, sA, sB, sC, sD_, sE, sRETRY = 63, 64, 65, 66, 67, 68, 69, 70, 71
sF = [4, 5, 6, 7]
sSEC, sHQ, sW8 = 3, 92, 93
sC3, sR3 = 0, 1
sRBW, sW2W = 94, 95
sW1, sW1S, sW1E, sW2, sW2S, sW2E = 96, 97, 98, 99, 100, 101
VL, VST = 2, 255
W2A, RBUF, LDS_TOTAL = 0, 114688, 163840

A = Asm(); vm = Cnt(A, "vmcnt", 63); lg = Cnt(A, "lgkmcnt", 15)
st = {"pend": [], "names": {}}
def stamp(name):
    if os.environ.get("DIAGAT") == name or (os.environ.get("DIAGAT") and name == "start"): A("s_memrealtime s[72:73]")
    if not STAMP: return
    k = len(st["pend"]); assert k < 9, name
    n = st["names"].setdefault(name, len(st["names"]))
    A(f"{'s_memtime' if env('CYC', 0) else 's_memrealtime'} s[{74+2*k}:{75+2*k}]"); st["pend"].append(n)
def stamp_flush():
    if not STAMP or not st["pend"]: return
    A("s_waitcnt lgkmcnt(0)")
    for k, n in enumerate(st["pend"]): A(f"v_writelane_b32 v{st.get('v', VST)}, s{74+2*k}, {n}")
    st["pend"] = []

def set_exec(mask): A(f"s_mov_b32 exec_lo, {hx(mask)}\ns_mov_b32 exec_hi, {hx(mask >> 32)}")
def halfsum(x, t): A(f"v_mov_b32 v{t}, v{x}\nv_permlane32_swap_b32 v{x}, v{t}\nv_add_f32 v{x}, v{x}, v{t}")
def flag_store(soff_reg, t=4):
    A(f"v_mov_b32 v{t}, s{sTAG}\nv_mov_b32 v{t+1}, s{sTAG+1}\nv_mov_b32 v{t+2}, 0\ns_mov_b64 exec, 1")
    A(f"buffer_store_dwordx2 {v(t,2)}, v{t+2}, {R(RWS)}, s{soff_reg} offen sc1\ns_mov_b64 exec, -1"); vm.issue("flag")
def poll(voff, soff_reg, nl, t):
    L = A.label("POLL")
    set_exec((1 << nl) - 1)
    A(f"s_mov_b32 s{sTO}, 0x40000\n{L}:")
    A(f"buffer_load_dwordx2 {v(t,2)}, v{voff}, {R(RWS)}, s{soff_reg} offen sc1\ns_sub_u32 s{sTO}, s{sTO}, 1\ns_waitcnt vmcnt(0)")
    A(f"s_cbranch_scc1 {L}_x\nv_cmp_ne_u64 vcc, s[{sTAG}:{sTAG+1}], {v(t,2)}\ns_and_b64 exec, exec, vcc\n" + (f"s_cbranch_scc0 {L}_x\ns_sleep {env('PSL', 0)}\ns_branch {L}" if env("PSL", 0) else f"s_cbranch_scc1 {L}") + f"\n{L}_x:\ns_mov_b64 exec, -1")
    vm.q = []
def tr_lane_addr(dst, t, pitch, hs, rs=1):
    A(f"v_lshrrev_b32 v{dst}, 5, v1\nv_mul_u32_u24 v{dst}, {hs*pitch}, v{dst}\nv_bfe_u32 v{t}, v1, 2, 2\nv_mul_u32_u24 v{t}, {rs*pitch}, v{t}\nv_add_u32 v{dst}, v{dst}, v{t}")
    A(f"v_bfe_u32 v{t}, v1, 4, 1\nv_lshl_add_u32 v{dst}, v{t}, 5, v{dst}\nv_and_b32 v{t}, 3, v1\nv_lshl_add_u32 v{dst}, v{t}, 3, v{dst}")
def get_tag(TAGV, lab):
    A(f"v_readfirstlane_b32 s{sTAG}, v{TAGV}\nv_readfirstlane_b32 s{sTAG+1}, v{TAGV+1}")
    A(f"s_or_b32 s{sTO}, s{sTAG}, s{sTAG+1}\ns_cbranch_scc1 {lab}_ok\ns_mov_b32 s{sTO}, 0x40000\nv_mov_b32 v4, 0\n{lab}_l:")
    A(f"buffer_load_dwordx2 {v(TAGV,2)}, v4, {R(RDBG)}, 0 offen sc1\ns_sub_u32 s{sTO}, s{sTO}, 1\ns_waitcnt vmcnt(0)\ns_cbranch_scc1 {lab}_ok")
    A(f"v_readfirstlane_b32 s{sTAG}, v{TAGV}\nv_readfirstlane_b32 s{sTAG+1}, v{TAGV+1}\ns_cmp_eq_u64 s[{sTAG}:{sTAG+1}], 0\ns_cbranch_scc1 {lab}_l\n{lab}_ok:")
def tagcheck(regs, T1, T2, T3):
    A(f"v_xor_b32 v{T1}, s{sTAG}, v{regs[0]+1}\nv_xor_b32 v{T2}, s{sTAG+1}, v{regs[0]+3}\nv_or_b32 v{T1}, v{T1}, v{T2}")
    for g in regs[1:]: A(f"v_xor_b32 v{T2}, s{sTAG}, v{g+1}\nv_xor_b32 v{T3}, s{sTAG+1}, v{g+3}\nv_or3_b32 v{T1}, v{T1}, v{T2}, v{T3}")
    A(f"v_cmp_ne_u32 vcc, 0, v{T1}")
def rot4(d):
    A(f"s_bfe_u32 s{d}, s2, 0x20001\ns_mul_i32 s{d}, s{d}, 7\ns_sub_u32 s{d}, s{sFT}, s{d}\ns_add_u32 s{d}, s{d}, s{sDT4}\ns_add_u32 s{d}, s{d}, s{sDT4}")
    A(f"s_and_b32 s{sTO}, s2, 1\ns_mul_i32 s{sTO}, s{sTO}, 3\ns_add_u32 s{d}, s{d}, s{sTO}\ns_and_b32 s{d}, s{d}, 7\ns_lshl_b32 s{d}, s{d}, 2")
def rot5(d):
    A(f"s_and_b32 s{sTO}, s2, 1\ns_mul_i32 s{d}, s{sTO}, 3\ns_sub_u32 s{d}, s{sDT5}, s{d}\ns_mul_i32 s{d}, s{d}, 7\ns_lshr_b32 s{d}, s{d}, 1\ns_lshl_b32 s{sTO}, s{sTO}, 1\ns_add_u32 s{d}, s{d}, s{sTO}")
    A(f"s_and_b32 s{sTO}, s{sST}, 7\ns_mul_i32 s{sTO}, s{sTO}, 7\ns_lshr_b32 s{sTO}, s{sTO}, 2\ns_add_u32 s{d}, s{d}, s{sTO}")
    A(f"s_cmp_ge_u32 s{d}, 14\ns_cselect_b32 s{sTO}, 14, 0\ns_sub_u32 s{d}, s{d}, s{sTO}\ns_lshl_b32 s{d}, s{d}, 1")

handlers = []
class Stream:
    def __init__(self, name, ng, loads, soff, T):
        self.name, self.ng, self.loads, self.soff, self.T, self.last = name, ng, loads, soff, T, -1
    def _emit(self, g, track):
        self.soff(g)
        for reg, va, off in self.loads(g):
            A(f"buffer_load_dwordx4 {v(reg,4)}, v{va}, {R(RWS)}, s{sT} offen offset:{off} sc1")
            if track: vm.issue((self.name, g))
    def issue(self, g):
        if g < self.ng: self._emit(g, True); self.last = g
    def _red(self, g):
        r = [x[0] + 3 for x in self.loads(g)]
        if len(r) == 4: A(f"v_max3_u32 v{self.T}, v{r[0]}, v{r[1]}, v{r[2]}\nv_max_u32 v{self.T}, v{self.T}, v{r[3]}")
        else: A(f"v_max_u32 v{self.T}, v{r[0]}, v{r[1]}")
    def check1(self, g):
        if g < self.ng: vm.wait((self.name, g)); self._red(g)
    def check2(self, g):
        if g >= self.ng: return
        L = f"{self.name}{g}"
        A(f"v_cmp_eq_u32 vcc, -1, v{self.T}\ns_cbranch_vccnz {L}_h\n{L}_r:")
        last = self.last
        def h():
            A(f"{L}_h:\ns_mov_b32 s{sTO}, 0x40000\n{L}_l:")
            self._emit(g, False)
            A(f"s_sub_u32 s{sTO}, s{sTO}, 1\ns_waitcnt vmcnt(0)\ns_cbranch_scc1 {L}_r")
            self._red(g)
            A(f"v_cmp_eq_u32 vcc, -1, v{self.T}\ns_cbranch_vccnz {L}_l")
            for k in range(g + 1, last + 1): self._emit(k, False)
            A(f"s_branch {L}_r")
        handlers.append(h)
def sanitize(*regs):
    for r in regs: A(f"v_min_u32 v{r}, -2, v{r}")

def prologue():
    if STAMP: A(f"s_memrealtime s[72:73]\nv_mov_b32 v{VST}, -1")
    stamp("start")
    A(f"s_load_dwordx2 s[{RX}:{RX+1}], s[0:1], 0\ns_load_dwordx2 s[{RWQ}:{RWQ+1}], s[0:1], 8")
    A("s_cmp_ge_u32 s2, 256\ns_cbranch_scc1 K_END")
    A(f"v_and_b32 v1, 63, v0\nv_lshrrev_b32 v3, 6, v0\nv_lshlrev_b32 v{VL}, 4, v1\nv_readfirstlane_b32 s{sW8}, v3\nv_and_b32 v0, 255, v0")
    for r, sz in ((RX, S*D*2), (RWQ, D*3*D*2)): A(f"s_mov_b32 s{r+2}, {sz}\ns_mov_b32 s{r+3}, 0x20000")
    A(f"s_and_b32 s{SW}, s{sW8}, 3\ns_lshr_b32 s{sJ}, s2, 3\ns_bfe_u32 s{sT}, s2, 0x20001\ns_and_b32 s{sU}, s2, 1")
    A(f"s_lshl_b32 s{sI}, s{sT}, 2\ns_and_b32 s{sV}, s{sJ}, 3\ns_add_u32 s{sI}, s{sI}, s{sV}")
    A(f"s_lshr_b32 s{sSEC}, s{sJ}, 3\ns_bfe_u32 s{sHQ}, s{sJ}, 0x10002\ns_lshl_b32 s{sV}, s{sU}, 1\ns_add_u32 s{sHQ}, s{sHQ}, s{sV}")
    A(f"s_cmp_ge_u32 s{sJ}, 24\ns_cbranch_scc1 P1_HELP\ns_cmp_lt_u32 s{sW8}, 4\ns_cbranch_scc1 A_P1")

def prologue2():
    for r, off in ((RWS, 80), (RDBG, 72), (RWO, 16), (RW1, 32), (RB1, 40), (RW2, 48), (RB2, 56), (ROUT, 64)):
        A(f"s_load_dwordx2 s[{r}:{r+1}], s[0:1], {off}")
    A(f"s_memrealtime s[{sTAG}:{sTAG+1}]")
    for r, sz in ((RWS, WS_SIZE), (RDBG, 256), (RWO, D*D*2), (RW1, S*F*2), (RB1, F*2), (RW2, S*F*2), (RB2, S*2), (ROUT, S*D*2)):
        A(f"s_mov_b32 s{r+2}, {sz}\ns_mov_b32 s{r+3}, 0x20000")
    A(f"s_mov_b32 s{sHI}, 0\ns_mov_b32 s{sHI+1}, -1\ns_mov_b32 s{sONES}, 0x3f803f80\ns_mov_b32 s{sRETRY}, 0")
    A(f"s_mul_i32 s{sRBW}, s{SW}, 12288\ns_add_u32 s{sRBW}, s{sRBW}, {RBUF}\ns_mul_i32 s{sW2W}, s{SW}, 28672")

def roles(touch=True):
    A(f"s_bfe_u32 s{sT}, s2, 0x20001\ns_and_b32 s{sU}, s2, 1")
    pass
    A(f"s_sub_u32 s{sV}, 25, s{sU}\ns_cmp_lt_u32 s{sJ}, s{sV}\ns_cselect_b32 s{sACT4}, 1, 0\ns_cselect_b32 s{sV}, s{sJ}, 0")
    A(f"s_mul_i32 s{sFT}, s{sU}, 25\ns_add_u32 s{sV}, s{sV}, s{sFT}\ns_mul_i32 s{sDT4}, s{sV}, 9363\ns_lshr_b32 s{sDT4}, s{sDT4}, 16")
    A(f"s_mul_i32 s{sFT}, s{sDT4}, 7\ns_sub_u32 s{sV}, s{sV}, s{sFT}\ns_mul_i32 s{sFT}, s{sT}, 7\ns_add_u32 s{sFT}, s{sV}, s{sFT}")
    A(f"s_cmp_lt_u32 s{sJ}, 28\ns_cselect_b32 s{sV}, s{sJ}, 0\ns_mul_i32 s{sST}, s{sU}, 28\ns_add_u32 s{sV}, s{sV}, s{sST}")
    A(f"s_lshr_b32 s{sDT5}, s{sV}, 3\ns_and_b32 s{sV}, s{sV}, 7\ns_lshl_b32 s{sST}, s{sT}, 3\ns_add_u32 s{sST}, s{sST}, s{sV}")
    A(f"s_lshl_b32 s{sT}, s{sHQ}, 2\ns_add_u32 s{sT}, s{sT}, s{sSEC}\ns_lshl_b32 s{sT}, s{sT}, 4\ns_add_u32 s{sT}, s{sT}, s{sI}\ns_lshl_b32 s{sT}, s{sT}, 7\ns_add_u32 s{sF[0]}, s{sT}, {F1}")
    A(f"s_and_b32 s{sT}, s2, 7\ns_lshl_b32 s{sT}, s{sT}, 1\ns_and_b32 s{sH}, s{sJ}, 1\ns_add_u32 s{sH}, s{sH}, s{sT}\ns_lshr_b32 s{sI}, s{sJ}, 1")
    A(f"s_lshr_b32 s{sR3}, s{sJ}, 4\ns_add_u32 s{sR3}, s{sR3}, s{sT}\ns_lshl_b32 s{sR3}, s{sR3}, 2\ns_add_u32 s{sR3}, s{sR3}, s{SW}\ns_and_b32 s{sC3}, s{sJ}, 15")
    A(f"s_lshl_b32 s{sT}, s2, 3\ns_add_u32 s{sF[1]}, s{sT}, {F2}")
    if not touch: return
    A(f"s_lshl_b32 s{sV}, s{sR3}, 4\ns_add_u32 s{sV}, s{sV}, s{sC3}\ns_lshl_b32 s{sV}, s{sV}, 9\ns_add_u32 s{sV}, s{sV}, {WS_ST}\nv_lshl_add_u32 v4, v1, 7, s{sV}")
    A(f"v_writelane_b32 v4, s{sF[0]}, 4\nv_writelane_b32 v4, s{sF[1]}, 5\ns_mov_b64 exec, 0x3f\nbuffer_load_dword v12, v4, {R(RWS)}, 0 offen sc1\ns_mov_b64 exec, -1")
    vm.issue("touch")

def p1_helper():
    TAGV = 14
    sHX = sA
    A("P1_HELP:")
    vm.q = []
    prologue2()
    A(f"s_and_b32 s{sHX}, s2, 7\ns_lshl_b32 s{sHX}, s{sHX}, 3\ns_add_u32 s{sHX}, s{sHX}, s{sJ}\ns_sub_u32 s{sHX}, s{sHX}, 24")
    A(f"v_lshrrev_b32 v4, 3, v1\nv_and_b32 v5, 7, v1\nv_lshlrev_b32 v5, 4, v5\nv_mov_b32 v7, 0")
    A(f"s_cmp_ge_u32 s{sW8}, 4\ns_cbranch_scc1 H_CS")
    A(f"v_mul_u32_u24 v6, 896, v4\nv_add_u32 v6, v6, v5\ns_lshl_b32 s{sB}, s{sHX}, 2\ns_add_u32 s{sB}, s{sB}, s{SW}\ns_mul_i32 s{sT}, s{sB}, {8*896}\ns_waitcnt lgkmcnt(0)")
    for m in range(7): A(f"buffer_load_dwordx4 {v(16+4*m,4)}, v6, {R(RX)}, s{sT} offen offset:{m*128}")
    A("v_mov_b32 v80, 0\nv_mov_b32 v82, 0\nv_mov_b32 v84, 0\nv_mov_b32 v86, 0\ns_waitcnt vmcnt(0)")
    A(f"buffer_load_dwordx2 {v(TAGV,2)}, v7, {R(RDBG)}, 0 offen sc1")
    for k in range(28): A(f"v_dot2c_f32_bf16 v{80+4*(k&1)}, s{sONES}, v{16+k}\nv_dot2c_f32_bf16 v{82+4*(k&1)}, v{16+k}, v{16+k}")
    A("v_add_f32 v80, v80, v84\nv_add_f32 v82, v82, v86")
    for m in ("quad_perm:[1,0,3,2]", "quad_perm:[2,3,0,1]", "row_half_mirror"):
        for r in (80, 82): A(f"v_add_f32_dpp v{r}, v{r}, v{r} {m} row_mask:0xf bank_mask:0xf")
    A(f"v_mul_f32 v80, {fl(1.0/D)}, v80\nv_mul_f32 v82, {fl(1.0/D)}, v82\nv_fma_f32 v82, -v80, v80, v82\nv_max_f32 v82, 0, v82\nv_add_f32 v82, {fl(EPS)}, v82\nv_rsq_f32 v82, v82")
    A(f"v_lshlrev_b32 v6, 4, v4\nv_mul_f32 v80, v80, v82\nv_sub_f32 v80, 0, v80\ns_waitcnt vmcnt(0)")
    get_tag(TAGV, "H_T1")
    A(f"v_mov_b32 v81, s{sTAG}\nv_mov_b32 v83, s{sTAG+1}\ns_lshl_b32 s{sT}, s{sB}, 7\ns_add_u32 s{sT}, s{sT}, {WS_RST}")
    set_exec(0x0101010101010101)
    A(f"buffer_store_dwordx4 v[80:83], v6, {R(RWS)}, s{sT} offen sc1\ns_mov_b64 exec, -1")
    stamp("h_pub"); stamp_flush()
    A("s_barrier")
    roles()
    poison_all("H_PZ")
    A("s_branch P2_START")
    st["pend"] = [0] if STAMP else []
    A(f"H_CS:\ns_lshl_b32 s{sB}, s{SW}, 6\ns_add_u32 s{sB}, s{sB}, s{sHX}\ns_cmp_ge_u32 s{sB}, 84\ns_cbranch_scc1 H_PF")
    A(f"v_mul_u32_u24 v6, 2688, v4\nv_add_u32 v6, v6, v5\ns_and_b32 s{sC}, s{sB}, 3\ns_lshr_b32 s{sD_}, s{sB}, 2\ns_mul_i32 s{sT}, s{sC}, {112*2688}\ns_lshl_b32 s{sU}, s{sD_}, 7\ns_add_u32 s{sT}, s{sT}, s{sU}\ns_waitcnt lgkmcnt(0)")
    for m in range(14): A(f"buffer_load_dwordx4 {v(16+4*m,4)}, v6, {R(RWQ)}, s{sT} offen\ns_add_u32 s{sT}, s{sT}, {8*2688}")
    A(f"s_mov_b32 s{sT}, 0x3f80\ns_mov_b32 s{sU}, 0x3f800000")
    for r in range(80, 88): A(f"v_mov_b32 v{r}, 0")
    for m in range(14):
        if m % 4 == 0: A(f"s_waitcnt vmcnt({max(0, 14 - m - 4)})")
        if m == 12: A(f"buffer_load_dwordx2 {v(TAGV,2)}, v7, {R(RDBG)}, 0 offen sc1")
        for k in range(4): A(f"v_dot2c_f32_bf16 v{80+2*k}, s{sT}, v{16+4*m+k}\nv_dot2c_f32_bf16 v{81+2*k}, s{sU}, v{16+4*m+k}")
    for r in range(80, 88): A(f"v_add_f32_dpp v{r}, v{r}, v{r} row_ror:8 row_mask:0xf bank_mask:0xf")
    for op in ("v_permlane16_swap_b32", "v_permlane32_swap_b32"):
        for r in range(80, 88): A(f"v_mov_b32 v{r+8}, v{r}")
        for r in range(80, 88): A(f"{op} v{r}, v{r+8}")
        for r in range(80, 88): A(f"v_add_f32 v{r}, v{r}, v{r+8}")
    A("v_mov_b32 v88, v80\nv_mov_b32 v90, v81")
    for pi in range(1, 4): A(f"v_cmp_eq_u32 vcc, {pi}, v4\nv_cndmask_b32 v88, v88, v{80+2*pi}, vcc\nv_cndmask_b32 v90, v90, v{81+2*pi}, vcc")
    A(f"v_lshlrev_b32 v6, 2, v5\nv_lshl_add_u32 v6, v4, 4, v6\ns_waitcnt vmcnt(0)")
    get_tag(TAGV, "H_T2")
    A(f"v_mov_b32 v89, s{sTAG}\nv_mov_b32 v91, s{sTAG+1}\ns_mul_i32 s{sT}, s{sC}, 10752\ns_lshl_b32 s{sU}, s{sD_}, 9\ns_add_u32 s{sT}, s{sT}, s{sU}\ns_add_u32 s{sT}, s{sT}, {WS_CSG}")
    set_exec(0xFFFFFFFF)
    A(f"buffer_store_dwordx4 v[88:91], v6, {R(RWS)}, s{sT} offen sc1\ns_mov_b64 exec, -1\ns_barrier\ns_branch B_P2")
    A(f"H_PF:\ns_cmp_lt_u32 s{SW}, 2\ns_cbranch_scc1 H_W")
    sQ = sB
    A(f"s_sub_u32 s{sQ}, s{sJ}, 24\ns_lshl_b32 s{sQ}, s{sQ}, 1\ns_add_u32 s{sQ}, s{sQ}, s{SW}\ns_sub_u32 s{sQ}, s{sQ}, 2")
    A(f"s_getpc_b64 s[{sC}:{sC+1}]\nCODE_REF:\ns_lshl_b32 s{sT}, s{sQ}, 12\nv_lshl_add_u32 v6, v1, 7, s{sT}\nv_min_u32 v6, CODE_END-CODE_REF-4, v6")
    A(f"v_mov_b32 v9, s{sC+1}\nv_add_co_u32 v8, vcc, s{sC}, v6\nv_addc_co_u32 v9, vcc, 0, v9, vcc")
    set_exec(0xFFFFFFFF)
    A("global_load_dword v25, v[8:9], off\ns_mov_b64 exec, -1\ns_waitcnt lgkmcnt(0)\ns_barrier")
    A("v_lshlrev_b32 v6, 7, v1")
    A(f"s_and_b32 s{sT}, s2, 7\ns_lshl_b32 s{sT}, s{sT}, 4\ns_add_u32 s{sT}, s{sT}, s{sQ}\ns_mul_i32 s{sT}, s{sT}, {7*8192}")
    for k in range(env("NP1", 0)): A(f"s_add_u32 s{sU}, s{sT}, {k*8192}\nbuffer_load_dword v{16+k}, v6, {R(RW1)}, s{sU} offen")
    for k in range(env("NP2", 0)): A(f"s_add_u32 s{sU}, s{sT}, {k*8192}\nbuffer_load_dword v{26+k}, v6, {R(RW2)}, s{sU} offen")
    if env("WOT", 0) == 1:
        A(f"s_mul_i32 s{sT}, s{sQ}, {196*128}")
        set_exec((1 << 49) - 1)
        for k in range(4): A(f"s_add_u32 s{sU}, s{sT}, {k*49*128}\nbuffer_load_dword v24, v6, {R(RWO)}, s{sU} offen")
        A("s_mov_b64 exec, -1")
    if STAMP:
        A("s_waitcnt vmcnt(0)"); stamp("h_touch"); stamp_flush(); A(f"v_mov_b32 v15, v{VST}\ns_branch B_P2S")
    A("s_branch B_P2\nH_W:\ns_waitcnt lgkmcnt(0)\ns_barrier\ns_branch B_P2")

XA = LDS_TOTAL - 65536
XBUF = [8192, 0, 8192, 4096]
def p1_common():
    sWO, sM = sA, sC
    A(f"s_mul_i32 s{sWO}, s{sSEC}, 896\ns_mul_i32 s{sT}, s{sHQ}, 224\ns_add_u32 s{sWO}, s{sWO}, s{sT}")
    A(f"s_lshl_b32 s{sE}, s{sI}, 2\ns_add_u32 s{sE}, s{sE}, s{SW}\ns_lshl_b32 s{sM}, s{SW}, 14\ns_add_u32 s{sM}, s{sM}, {XA}")

def p1():
    XF, ACC, WF = 16, 128, 192
    VXR = list(range(224, 232)); VXS = list(range(232, 236)); VWR = [236, 237]; TAGV = 238
    sWO, sM = sA, sC
    A("A_P1:")
    prologue2()
    p1_common()
    A(f"v_and_b32 v4, 31, v1\nv_lshrrev_b32 v5, 5, v1\nv_and_b32 v6, 15, v1\nv_xor_b32 v6, v6, v5\nv_lshlrev_b32 v6, 4, v6\nv_lshl_add_u32 v6, v4, 8, v6\nv_add_u32 v6, s{sM}, v6")
    for k in range(8): A(f"v_xor_b32 v{VXR[k]}, {k<<5}, v6")
    A(f"v_bfe_u32 v6, v1, 1, 3\nv_xor_b32 v6, v6, v5\nv_lshlrev_b32 v6, 4, v6\nv_lshl_add_u32 v6, v4, 7, v6\nv_add_u32 v6, s{sM}, v6")
    for k in range(4): A(f"v_xor_b32 v{VXS[k]}, {k<<5}, v6")
    tr_lane_addr(VWR[0], 4, 224, 8, 2); A(f"v_add_u32 v{VWR[1]}, {14*3584}, v{VWR[0]}")
    A("s_waitcnt lgkmcnt(0)")
    stamp("karg")
    A(f"s_or_b32 s{sT}, s2, s{SW}\ns_cbranch_scc1 P1_NOTAG")
    A(f"s_bitset1_b32 s{sTAG+1}, 31\nv_mov_b32 v8, s{sTAG}\nv_mov_b32 v9, s{sTAG+1}\nv_mov_b32 v10, 0\nv_mov_b32 v11, 0\ns_mov_b64 exec, 1\nbuffer_atomic_cmpswap_x2 v[8:11], v10, {R(RDBG)}, 0 offen sc1\ns_mov_b64 exec, -1\nP1_NOTAG:")
    roles()
    poison_all("A_PZ")
    stamp_flush()
    A(f"s_cmp_eq_u32 s{sSEC}, 2\ns_cbranch_scc1 P1_V")
    for isv in (0, 1):
        vm.q = []; lg.q = []
        if isv: A("P1_V:")
        def xread(p):
            for k in range(8 if p < 3 else 4):
                A(f"ds_read_b128 {v(XF + (8*p+k)*4, 4)}, v{(VXR if p < 3 else VXS)[k]} offset:{XBUF[p]}"); lg.issue(f"x{p}")
        def wread(ks, hds=range(4)):
            for hd in hds:
                for half in range(2):
                    A(f"ds_read_b64_tr_b16 {v(WF + (ks&1)*16 + hd*4 + half*2, 2)}, v{VWR[ks//14]} offset:{(ks%14)*3584 + half*224 + hd*56}"); lg.issue(f"w{ks}_{hd}")
        def gload():
            A(f"buffer_load_dwordx4 v[16:19], v4, {R(RWS)}, s{sU} offen sc1")
            for kq in range(4): A(f"buffer_load_dwordx4 {v(20+4*kq,4)}, v{5+kq}, {R(RWS)}, s{sV} offen sc1")
        for p in range(4):
            k0, k1 = 8*p, min(8*p + 8, 28)
            if p == 3:
                A(f"v_and_b32 v4, 31, v1\nv_lshlrev_b32 v4, 4, v4\ns_lshl_b32 s{sU}, s{sE}, 9\ns_add_u32 s{sU}, s{sU}, {WS_RST}\ns_lshl_b32 s{sV}, s{sWO}, 2\ns_add_u32 s{sV}, s{sV}, {WS_CSG}")
                A(f"v_min_u32 v5, 55, v1\nv_lshlrev_b32 v5, 4, v5\nv_add_u32 v6, 10752, v5\nv_add_u32 v7, 21504, v5\nv_add_u32 v8, 32256, v5\nv_mov_b32 v9, 0")
            A("s_barrier"); stamp(f"g{p}")
            xread(p); wread(k0, [0, 1, 2])
            if p == 3:
                A(f"buffer_load_dwordx2 {v(TAGV,2)}, v9, {R(RDBG)}, 0 offen sc1"); gload()
            lg.wait(f"x{p}")
            if p < 2: A("s_barrier")
            wread(k0, [3])
            for ks in range(k0, k1):
                x = v(XF + ks*4, 4)
                for hd in range(4):
                    lg.wait(f"w{ks}_{hd}")
                    w_ = v(WF + (ks&1)*16 + hd*4, 4); acc = v(ACC + 16*hd, 16)
                    A(f"{MFMA} {acc}, {x if isv else w_}, {w_ if isv else x}, {'0' if ks == 0 else acc}")
                    if ks + 1 < k1: wread(ks + 1, [hd])
        stamp("mfma_done")
        A("s_waitcnt vmcnt(5)")
        get_tag(TAGV, f"P1_T{isv}")
        L = A.label("P1_G")
        A(f"s_waitcnt vmcnt(0)")
        tagcheck([16, 20, 24, 28, 32], 9, 10, 11)
        A(f"s_cbranch_vccz {L}_x\nv_and_b32 v4, 31, v1\nv_lshlrev_b32 v4, 4, v4\ns_mov_b32 s{sTO}, 0x40000\n{L}:")
        gload()
        A(f"s_sub_u32 s{sTO}, s{sTO}, 1\ns_waitcnt vmcnt(0)\ns_cbranch_scc1 {L}_x")
        tagcheck([16, 20, 24, 28, 32], 9, 10, 11)
        A(f"s_cbranch_vccnz {L}\n{L}_x:")
        stamp("gran")
        A("v_add_f32 v20, v20, v24\nv_add_f32 v28, v28, v32\nv_add_f32 v22, v22, v26\nv_add_f32 v30, v30, v34\nv_add_f32 v20, v20, v28\nv_add_f32 v21, v22, v30")
        A(f"s_add_u32 s{sT}, s{sM}, 8192\nv_lshl_add_u32 v4, v1, 3, s{sT}\nds_write_b64 v4, v[20:21]\nv_lshrrev_b32 v5, 5, v1\nv_lshl_add_u32 v5, v5, 4, s{sT}")
        PK = 96
        A(f"s_lshl_b32 s{sU}, s{sHQ}, 8\ns_add_u32 s{sU}, s{sU}, s{sE}")
        if not isv:
            for hd in range(4):
                for g in range(4): A(f"ds_read_b128 {v(32+16*hd+4*g,4)}, v5 offset:{hd*112 + g*32}"); lg.issue(f"c{hd}")
            QS = DH ** -0.5 * math.log2(math.e)
            A(f"s_cmp_eq_u32 s{sSEC}, 0\ns_cselect_b32 s{sV}, {fl(QS)}, 1.0\ns_cselect_b32 s{sA}, 0, s{sONES}\ns_cselect_b32 s{sB}, 0, 0x3f80\ns_cselect_b32 s{sC}, {WS_Q}, {WS_KV}")
            A(f"s_add_u32 s{sD_}, s{sSEC}, 11\ns_lshl_b32 s{sU}, s{sU}, s{sD_}\ns_add_u32 s{sU}, s{sU}, s{sC}\ns_lshl_b32 s{sD_}, 64, s{sD_}")
            A(f"v_mul_f32 v16, s{sV}, v16\nv_mul_f32 v18, s{sV}, v18\nv_mov_b32 v12, s{sA}\nv_mov_b32 v13, s{sB}")
            for hd in range(4):
                lg.wait(f"c{hd}")
                c, ac = 32+16*hd, ACC+16*hd
                for r in range(0, 16, 2): A(f"v_pk_mul_f32 {v(c+r,2)}, {v(c+r,2)}, v[16:17] op_sel_hi:[1,0]")
                for r in range(0, 16, 2): A(f"v_pk_fma_f32 {v(ac+r,2)}, {v(ac+r,2)}, v[18:19], {v(c+r,2)} op_sel_hi:[1,0,1]")
                for r in range(8): A(f"v_cvt_pk_bf16_f32 v{PK+8*hd+r}, v{ac+2*r}, v{ac+2*r+1}")
                A(f"v_cndmask_b32 v{PK+8*hd+6}, v{PK+8*hd+6}, v12, s[{sHI}:{sHI+1}]\nv_cndmask_b32 v{PK+8*hd+7}, v{PK+8*hd+7}, v13, s[{sHI}:{sHI+1}]")
                for f in range(2): A(f"buffer_store_dwordx4 {v(PK+8*hd+4*f,4)}, v{VL}, {R(RWS)}, s{sU} offen offset:{f*1024} sc1")
                A(f"s_add_u32 s{sU}, s{sU}, s{sD_}")
        else:
            A(f"v_cndmask_b32 v6, v18, v16, s[{sHI}:{sHI+1}]\nv_lshl_add_u32 v4, v1, 2, s{sT}\nds_write_b32 v4, v6 offset:512")
            A(f"v_and_b32 v6, 31, v1\nv_lshl_add_u32 v4, v6, 2, s{sT}")
            for g in range(4): A(f"ds_read_b128 {v(32+4*g,4)}, v5 offset:{512 + g*32}\nds_read_b128 {v(48+4*g,4)}, v5 offset:{640 + g*32}")
            for hd in range(4): A(f"ds_read_b32 v{24+2*hd}, v4 offset:{hd*112}")
            A(f"s_lshl_b32 s{sU}, s{sU}, 12\ns_add_u32 s{sU}, s{sU}, {WS_KV + 2048}")
            A(f"v_cmp_eq_u32 vcc, 28, v6\nv_mov_b32 v13, s{sONES}\nv_cndmask_b32 v12, 0, v13, vcc\nv_mov_b32 v13, v12")
            for r in range(0, 16, 2): A(f"v_pk_mov_b32 {v(PK+r,2)}, v[12:13], v[12:13]")
            A(f"s_mov_b32 s{sA}, 0x0fffffff\ns_mov_b32 s{sA+1}, 0x0fffffff\ns_waitcnt lgkmcnt(0)")
            for hd in range(4):
                ac = ACC+16*hd; pk = PK + 8*(hd & 1)
                for r in range(0, 16, 2): A(f"v_pk_mul_f32 {v(64+r,2)}, {v(48+r,2)}, {v(24+2*hd,2)} op_sel_hi:[1,0]")
                for r in range(0, 16, 2): A(f"v_pk_fma_f32 {v(ac+r,2)}, {v(ac+r,2)}, {v(32+r,2)}, {v(64+r,2)}")
                A(f"s_mov_b64 exec, s[{sA}:{sA+1}]")
                for r in range(8): A(f"v_cvt_pk_bf16_f32 v{pk+r}, v{ac+2*r}, v{ac+2*r+1}")
                A("s_mov_b64 exec, -1")
                for f in range(2): A(f"buffer_store_dwordx4 {v(pk+4*f,4)}, v{VL}, {R(RWS)}, s{sU} offen offset:{f*1024} sc1")
                A(f"s_add_u32 s{sU}, s{sU}, {64*4096}")
        stamp("kvst"); stamp_flush()
        if not isv: A("s_branch P1_DONE")
    A("P1_DONE:")

def tilemax(sreg, T0, T1):
    A(f"v_max3_f32 v{T0}, v{sreg}, v{sreg+1}, v{sreg+2}\nv_max3_f32 v{T1}, v{sreg+3}, v{sreg+4}, v{sreg+5}")
    A(f"v_max3_f32 v{T0}, v{T0}, v{sreg+6}, v{sreg+7}\nv_max3_f32 v{T1}, v{T1}, v{sreg+8}, v{sreg+9}")
    A(f"v_max3_f32 v{T0}, v{T0}, v{sreg+10}, v{sreg+11}\nv_max3_f32 v{T1}, v{T1}, v{sreg+12}, v{sreg+13}")
    A(f"v_max3_f32 v{T0}, v{T0}, v{sreg+14}, v{sreg+15}")
def set_qpad(q, m, T0, T1, T2):
    A(f"v_sub_f32 v{T0}, 0, v{m}\nv_and_b32 v{T1}, 0xffff0000, v{T0}\nv_sub_f32 v{T0}, v{T0}, v{T1}")
    A(f"v_and_b32 v{T2}, 0xffff0000, v{T0}\nv_sub_f32 v{T0}, v{T0}, v{T2}\nv_lshrrev_b32 v{T0}, 16, v{T0}")
    A(f"v_lshrrev_b32 v{T1}, 16, v{T1}\nv_or_b32 v{T1}, v{T1}, v{T2}")
    A(f"v_cndmask_b32 v{q+6}, v{q+6}, v{T1}, s[{sHI}:{sHI+1}]\nv_cndmask_b32 v{q+7}, v{q+7}, v{T0}, s[{sHI}:{sHI+1}]")

XR, IR3 = 224, 232
VRD, VFL, VKV, VONE, VRB, VWO = [240, 241], 242, 243, 244, [246, 247], 248
VRW = [249, 250, 251, 252]
def addr_setup():
    tr_lane_addr(4, 5, 128, 4)
    A(f"v_bfe_u32 v5, v1, 3, 1\ns_lshr_b32 s{sT}, s{SW}, 1\nv_xor_b32 v5, s{sT}, v5")
    A(f"v_lshl_add_u32 v6, v5, 6, v4\nv_xor_b32 v5, 1, v5\nv_lshl_add_u32 v7, v5, 6, v4")
    A(f"v_add_u32 v{VRD[0]}, s{sW2W}, v6\nv_add_u32 v{VRD[1]}, s{sW2W}, v7\nv_add_u32 v{VRB[0]}, s{sRBW}, v6\nv_add_u32 v{VRB[1]}, s{sRBW}, v7")
    A(f"v_lshlrev_b32 v{VFL}, 7, v1\nv_mov_b32 v{VONE}, 0x3f80\nv_mov_b32 v{VONE+1}, 1.0")
    A(f"s_lshl_b32 s{sT}, s{sH}, 2\ns_add_u32 s{sT}, s{sT}, s{SW}\ns_lshl_b32 s{sT}, s{sT}, 16\ns_add_u32 s{sT}, s{sT}, {WS_KV}\nv_add_u32 v{VKV}, s{sT}, v{VL}")
    tr_lane_addr(VWO, 4, 64, 4); A(f"v_add_u32 v{VWO}, {RBUF}, v{VWO}\nv_add_u32 v{VRW[0]}, s{sRBW}, v{VL}")
    for t in range(1, 4):
        A(f"s_add_u32 s{sT}, s{SW}, {t}\ns_and_b32 s{sT}, s{sT}, 3\ns_mul_i32 s{sT}, s{sT}, 12288\ns_add_u32 s{sT}, s{sT}, {RBUF}\nv_add_u32 v{VRW[t]}, s{sT}, v{VL}")
    A("v_and_b32 v4, 31, v1\nv_lshrrev_b32 v5, 5, v1\nv_lshlrev_b32 v6, 3, v5\nv_sub_u32 v6, v4, v6")
    for p in range(2):
        for r in range(4):
            A(f"v_cmp_eq_u32 vcc, {16*p+2*r}, v6\nv_cmp_eq_u32 s[{sU}:{sU+1}], {16*p+2*r+1}, v6\nv_cndmask_b32 v{IR3+4*p+r}, 0, v{VONE}, vcc\nv_cndmask_b32 v{IR3+4*p+r}, v{IR3+4*p+r}, v{VONE+1}, s[{sU}:{sU+1}]")
    A("v_mul_u32_u24 v13, 896, v4\nv_lshl_add_u32 v13, v5, 4, v13")

def p2():
    Q, O, SS, PP, KV = 16, 48, [112, 128], [144, 152], 160
    M = [112, 113, 114, 115]; K0 = 120
    T0, T1, T2, T3 = 4, 5, 6, 7
    sKN = sB
    addr_setup()
    vm.wait_all(); stamp("kvdrain")
    A(f"s_barrier\ns_cmp_lg_u32 s{SW}, 0\ns_cbranch_scc1 P2_NOF")
    flag_store(sF[0]); A("P2_NOF:"); stamp_flush()
    A("s_branch P2_GO\nP2_START:")
    addr_setup()
    A("P2_GO:")
    A(f"s_mul_i32 s{sT}, s{sR3}, {32*896}\ns_lshl_b32 s{sU}, s{sC3}, 6\ns_add_u32 s{sT}, s{sT}, s{sU}\ns_lshl_b32 s{sV}, s{sI}, 2\ns_add_u32 s{sV}, s{sV}, s{SW}\ns_lshl_b32 s{sU}, s{sH}, 6")
    for p in range(2): A(f"buffer_load_dwordx4 {v(XR+4*p,4)}, v13, {R(RX)}, s{sT} offen offset:{32*p}")
    A(f"s_add_u32 s{sU}, s{sU}, s{sV}\ns_lshl_b32 s{sU}, s{sU}, 11")
    A(f"s_lshr_b32 s{sT}, s{sH}, 2\ns_lshl_b32 s{sT}, s{sT}, 13\ns_add_u32 s{sT}, s{sT}, {F1}\ns_lshl_b32 s{sA}, s{SW}, 9\ns_add_u32 s{sA}, s{sA}, 2048\ns_lshl_b32 s{sC}, s{sI}, 7")
    A(f"v_and_b32 v10, 3, v1\nv_lshl_add_u32 v10, v10, 7, s{sA}\nv_bfe_u32 v11, v1, 2, 1\nv_lshl_add_u32 v10, v11, 11, v10\nv_writelane_b32 v10, s{sC}, 8")
    poll(10, sT, 9, 8); stamp("s1")
    def kvload(n):
        pre = [f"s_mov_b32 s{sKN}, {n*4096}"]
        return pre + [f"buffer_load_dwordx4 {v(KV+16*(n&3)+4*f,4)}, v{VKV}, {R(RWS)}, s{sKN} offen offset:{f*1024} sc1" for f in range(4)]
    def emit(lines, tag):
        for ln in lines:
            A(ln)
            if ln.startswith("buffer_"): vm.issue(tag)
    for f in range(2): A(f"buffer_load_dwordx4 {v(Q+4*f,4)}, v{VL}, {R(RWS)}, s{sU} offen offset:{f*1024} sc1"); vm.issue("q")
    emit(kvload(0), "kv0")
    A("s_waitcnt vmcnt(2)"); stamp("qk0")
    A(f"{MFMA} {v(O,16)}, {v(KV,4)}, {v(Q,4)}, 0\n{MFMA} {v(O,16)}, {v(KV+4,4)}, {v(Q+4,4)}, {v(O,16)}")
    emit(kvload(1), "kv1")
    A(f"ds_write_b128 v{VRW[0]}, {v(Q,4)}")
    tilemax(O, T0, T1)
    A(f"v_max_f32 v{T0}, v{T0}, v{T1}\nv_mov_b32 v{T1}, v{T0}\nv_permlane32_swap_b32 v{T0}, v{T1}\nv_max_f32 v{T0}, v{T0}, v{T1}")
    set_qpad(Q, T0, T1, T2, T3)
    A(f"ds_write_b128 v{VRW[0]}, {v(Q+4,4)} offset:1024\ns_waitcnt lgkmcnt(0)")
    emit(kvload(2), "kv2")
    A("s_barrier")
    for t in range(1, 4): A(f"ds_read_b128 {v(Q+8*t,4)}, v{VRW[t]}\nds_read_b128 {v(Q+8*t+4,4)}, v{VRW[t]} offset:1024")
    emit(kvload(3), "kv3")
    A("P2_MAIN:")
    def qk(idx, part):
        n, t = idx >> 2, idx & 3; sr = SS[idx & 1]; k = KV + 16*(n & 3)
        return f"{MFMA} {v(sr,16)}, {v(k+4*part,4)}, {v(Q+8*t+4*part,4)}, {'0' if part == 0 else v(sr,16)}"
    def pv(idx, part):
        n, t = idx >> 2, idx & 3; k = KV + 16*(n & 3) + 8; o = O + 16*t
        return f"{MFMA} {v(o,16)}, {v(k+4*part,4)}, {v(PP[idx&1]+4*part,4)}, {'0' if (n == 0 and part == 0) else v(o,16)}"
    NI = 64
    A(qk(0, 0)); A(qk(0, 1)); A("s_waitcnt lgkmcnt(0)")
    for idx in range(NI):
        n, t = idx >> 2, idx & 3
        if idx in (16, 32, 48): stamp(f"a{idx}")
        if idx == 1: vm.wait("kv0")
        if idx == env("CUTAT", 61): A(f"ds_write_b32 v{VRW[1]}, v{VONE} offset:3072")
        if t == 3 and n + 1 < 16: vm.wait(f"kv{n+1}")
        mf = [qk(idx+1, 0) if idx+1 < NI else None, pv(idx-1, 0) if idx > 0 else None,
              qk(idx+1, 1) if idx+1 < NI else None, pv(idx-1, 1) if idx > 0 else None]
        sr, p = SS[idx & 1], PP[idx & 1]
        for q in range(4):
            if mf[q]: A(mf[q])
            for j in range(4): A(f"v_exp_f32 v{sr+4*q+j}, v{sr+4*q+j}")
            if q > 0:
                for j in range(2): A(f"v_cvt_pk_bf16_f32 v{p+2*(q-1)+j}, v{sr+4*(q-1)+2*j}, v{sr+4*(q-1)+2*j+1}")
        if t == 0 and 1 <= n < 13: emit(kvload(n + 3), f"kv{n+3}")
        for j in range(2): A(f"v_cvt_pk_bf16_f32 v{p+6+j}, v{sr+12+2*j}, v{sr+12+2*j+1}")
    A(pv(NI-1, 0)); A(pv(NI-1, 1)); stamp("aend")
    for t in (1, 2):
        for g in range(3): A(f"ds_write_b128 v{VRW[t]}, {v(O+16*t+4*g,4)} offset:{(t-1)*4096 + g*1024}")
    A(f"s_mov_b32 s{sT}, {fl(2.0**30)}")
    A(f"v_cmp_nlt_f32 s[{sA}:{sA+1}], v{O+12}, s{sT}\nv_cmp_nlt_f32 s[{sC}:{sC+1}], v{O+28}, s{sT}\ns_or_b32 s{sU}, s{sA+1}, s{sC+1}")
    A(f"v_cmp_nlt_f32 s[{sA}:{sA+1}], v{O+44}, s{sT}\nv_cmp_nlt_f32 s[{sC}:{sC+1}], v{O+60}, s{sT}\ns_or_b32 s{sU}, s{sU}, s{sA+1}\ns_or_b32 s{sU}, s{sU}, s{sC+1}")
    A(f"s_cselect_b32 s{sU}, 1.0, 0\nv_mov_b32 v{T0}, s{sU}")
    for t in range(4): A(f"v_cndmask_b32 v{O+16*t+13}, v{O+16*t+13}, v{T0}, s[{sHI}:{sHI+1}]")
    for g in range(3): A(f"ds_write_b128 v{VRW[3]}, {v(O+48+4*g,4)} offset:{2*4096 + g*1024}")
    for t in range(1, 4): A(f"ds_write_b128 v{VRW[t]}, {v(O+16*t+12,4)} offset:{(t-1)*4096 + 3*1024}")
    A(f"s_lshl_b32 s{sD_}, s{sI}, 2\ns_add_u32 s{sD_}, s{sD_}, s{SW}\ns_lshl_b32 s{sV}, s{sD_}, 4\ns_add_u32 s{sV}, s{sV}, s{sH}\ns_lshl_b32 s{sV}, s{sV}, 11\ns_add_u32 s{sV}, s{sV}, {WS_O}")
    A("s_waitcnt lgkmcnt(0)\ns_barrier")
    for g in (3, 0, 1, 2):
        for t in range(1, 4): A(f"ds_read_b128 {v(O+16*t+4*g,4)}, v{VRW[0]} offset:{(t-1)*4096 + g*1024}")
    def red(g):
        for r in (4*g, 4*g+2):
            A(f"v_pk_add_f32 {v(O+r,2)}, {v(O+r,2)}, {v(O+16+r,2)}\nv_pk_add_f32 {v(O+32+r,2)}, {v(O+32+r,2)}, {v(O+48+r,2)}")
        for r in (4*g, 4*g+2): A(f"v_pk_add_f32 {v(O+r,2)}, {v(O+r,2)}, {v(O+32+r,2)}")
    A("s_waitcnt lgkmcnt(9)"); red(3)
    A(f"v_readlane_b32 s{sT}, v{O+13}, 32\nv_mov_b32 v{T0}, v{O+12}\nv_mov_b32 v{T2}, v{O+12}\nv_permlane32_swap_b32 v{T0}, v{T2}\nv_rcp_f32 v{T2}, v{T2}")
    A(f"s_cmp_lg_u32 s{sT}, s{sRETRY}\ns_cbranch_scc1 P2_FALL\nP2_FIN:")
    for k, g in enumerate((0, 1, 2)):
        A(f"s_waitcnt lgkmcnt({6 - 3*k})"); red(g)
    for r in range(0, 16, 2): A(f"v_pk_mul_f32 {v(O+r,2)}, {v(O+r,2)}, {v(T2,2)} op_sel_hi:[1,0]")
    for r in range(8): A(f"v_cvt_pk_bf16_f32 v{O+16+r}, v{O+2*r}, v{O+2*r+1}")
    A(f"v_cndmask_b32 v{O+22}, v{O+22}, 0, s[{sHI}:{sHI+1}]\nv_cndmask_b32 v{O+23}, v{O+23}, 0, s[{sHI}:{sHI+1}]")
    sanitize(O+19, O+23)
    for f in range(2): A(f"buffer_store_dwordx4 {v(O+16+4*f,4)}, v{VL}, {R(RWS)}, s{sV} offen offset:{f*1024} sc1")
    stamp("ost"); stamp_flush()
    A("s_barrier")
    def fallback():
        A(f"P2_FALL:\ns_cmp_lg_u32 s{sRETRY}, 0\ns_cbranch_scc1 P2_FIN")
        A(f"s_mov_b32 s{sRETRY}, -1\ns_waitcnt vmcnt(0) lgkmcnt(0)")
        for t in range(4):
            A(f"v_cndmask_b32 v{Q+8*t+6}, v{Q+8*t+6}, 0, s[{sHI}:{sHI+1}]\nv_cndmask_b32 v{Q+8*t+7}, v{Q+8*t+7}, 0, s[{sHI}:{sHI+1}]\nv_mov_b32 v{M[t]}, 0xff800000")
        A(f"s_mov_b32 s{sU}, 0\nP2_MAXLOOP:")
        for f in range(2): A(f"buffer_load_dwordx4 {v(K0+4*f,4)}, v{VKV}, {R(RWS)}, s{sU} offen offset:{f*1024} sc1")
        A("s_waitcnt vmcnt(0)")
        for t in range(4):
            A(f"{MFMA} {v(O+16*t,16)}, {v(K0,4)}, {v(Q+8*t,4)}, 0\n{MFMA} {v(O+16*t,16)}, {v(K0+4,4)}, {v(Q+8*t+4,4)}, {v(O+16*t,16)}")
        for t in range(4):
            tilemax(O+16*t, T0, T1); A(f"v_max3_f32 v{M[t]}, v{M[t]}, v{T0}, v{T1}")
        A(f"s_add_u32 s{sU}, s{sU}, 4096\ns_cmp_lt_u32 s{sU}, {16*4096}\ns_cbranch_scc1 P2_MAXLOOP")
        A(f"s_barrier\nv_and_b32 v{T3}, 31, v1\nv_lshlrev_b32 v{T3}, 4, v{T3}")
        for t in range(4):
            A(f"v_mov_b32 v{T2}, v{M[t]}\nv_permlane32_swap_b32 v{M[t]}, v{T2}\nv_max_f32 v{M[t]}, v{M[t]}, v{T2}")
            A(f"s_add_u32 s{sT}, s{SW}, {t}\ns_and_b32 s{sT}, s{sT}, 3\ns_lshl_b32 s{sT}, s{sT}, 9\ns_add_u32 s{sT}, s{sT}, {RBUF}\ns_lshl_b32 s{sU}, s{SW}, 2\ns_add_u32 s{sU}, s{sU}, s{sT}")
            A(f"v_add_u32 v{K0+t}, s{sT}, v{T3}\nv_add_u32 v{T2}, s{sU}, v{T3}\nds_write_b32 v{T2}, v{M[t]}")
        A("s_waitcnt lgkmcnt(0)\ns_barrier")
        for t in range(4): A(f"ds_read_b128 {v(O+4*t,4)}, v{K0+t}")
        for n in range(4):
            for ln in kvload(n): A(ln)
        A("s_waitcnt vmcnt(0) lgkmcnt(0)\ns_barrier")
        for t in range(4):
            A(f"v_max3_f32 v{M[t]}, v{O+4*t}, v{O+4*t+1}, v{O+4*t+2}\nv_max_f32 v{M[t]}, v{M[t]}, v{O+4*t+3}")
            set_qpad(Q+8*t, M[t], T0, T1, T2)
        A("s_branch P2_MAIN")
    return fallback

def p3():
    OFR, D1, D2, TF = 16, 144, 160, 176
    T0, T1, T2, T3 = 8, 9, 10, 11
    A(f"{MFMA} {v(D1,16)}, {v(XR,4)}, {v(IR3,4)}, 0\n{MFMA} {v(D2,16)}, {v(IR3,4)}, {v(XR,4)}, 0")
    A(f"{MFMA} {v(D1,16)}, {v(XR+4,4)}, {v(IR3+4,4)}, {v(D1,16)}\n{MFMA} {v(D2,16)}, {v(IR3+4,4)}, {v(XR+4,4)}, {v(D2,16)}")
    A(f"s_lshl_b32 s{sB}, s{sR3}, 15\ns_add_u32 s{sB}, s{sB}, {WS_O}\nv_add_u32 v{T2}, s{sB}, v{VL}\ns_and_b32 s{sA}, s{sC3}, 7\ns_lshl_b32 s{sA}, s{sA}, 12")
    A("s_barrier")
    A(f"s_cmp_lt_u32 s{sC3}, 14\ns_cbranch_scc1 P3_GO\ns_barrier\ns_branch P3_END\nP3_GO:")
    vm.q = []; lg.q = []
    so = Stream("SO", 8, lambda g: [(OFR+16*g+4*k, T2, k*1024) for k in range(4)],
                lambda g: A(f"s_add_u32 s{sT}, s{sA}, {g*4096}\ns_and_b32 s{sT}, s{sT}, 0x7fff"), T0)
    NPRE = 3
    for m in range(NPRE): so.issue(m)
    def wread(ks):
        n, p = ks >> 1, ks & 1
        for half in range(2):
            A(f"ds_read_b64_tr_b16 {v(TF+4*(ks&3)+2*half,2)}, v{VWO} offset:{(n>>2)*12288 + (n&3)*2048 + (16*p+8*half)*64}"); lg.issue(f"w{ks}")
    wread(0); wread(1)
    so.check1(0); so.check2(0)
    for ks in range(32):
        lg.wait(f"w{ks}")
        if ks in (0, 16): stamp(f"p3_{ks}")
        o, wv = v(OFR+4*ks, 4), v(TF+4*(ks&3), 4)
        A(f"{MFMA} {v(D2,16)}, {wv}, {o}, {v(D2,16)}")
        if ks + 2 < 32: wread(ks + 2)
        A(f"{MFMA} {v(D1,16)}, {o}, {wv}, {v(D1,16)}")
        if ks % 4 == 0: so.issue(NPRE + ks//4)
        if ks % 4 == 2: so.check1(ks//4 + 1)
        if ks % 4 == 3: so.check2(ks//4 + 1)
    stamp("p3mm")
    G = 16
    A(f"s_lshl_b32 s{sB}, s{sR3}, 13\ns_add_u32 s{sB}, s{sB}, {WS_ST}\ns_lshl_b32 s{sT}, s{sC3}, 9\ns_add_u32 s{sT}, s{sT}, s{sB}")
    A(f"v_mov_b32 v{G+1}, s{sTAG}\nv_mov_b32 v{G+3}, s{sTAG+1}")
    A(f"v_pk_add_f32 v[20:21], {v(D2,2)}, {v(D2+2,2)}\nv_pk_mul_f32 v[22:23], {v(D2,2)}, {v(D2,2)}\nv_pk_fma_f32 v[22:23], {v(D2+2,2)}, {v(D2+2,2)}, v[22:23]")
    for r in range(4, 16, 2): A(f"v_pk_add_f32 v[20:21], v[20:21], {v(D2+r,2)}\nv_pk_fma_f32 v[22:23], {v(D2+r,2)}, {v(D2+r,2)}, v[22:23]")
    A(f"v_add_f32 v{G}, v20, v21\nv_add_f32 v{G+2}, v22, v23")
    A(f"v_mov_b32 v20, v{G}\nv_mov_b32 v22, v{G+2}\nv_permlane32_swap_b32 v{G}, v20\nv_permlane32_swap_b32 v{G+2}, v22\nv_add_f32 v{G}, v{G}, v20\nv_add_f32 v{G+2}, v{G+2}, v22")
    set_exec(0xFFFFFFFF)
    A(f"buffer_store_dwordx4 {v(G,4)}, v{VL}, {R(RWS)}, s{sT} offen sc1\ns_mov_b64 exec, -1")
    for r in range(8): A(f"v_cvt_pk_bf16_f32 v{24+r}, v{D2+2*r}, v{D2+2*r+1}")
    sanitize(27, 31)
    A(f"s_mul_i32 s{sT}, s{sR3}, 14\ns_add_u32 s{sT}, s{sT}, s{sC3}\ns_lshl_b32 s{sT}, s{sT}, 11\ns_add_u32 s{sT}, s{sT}, {WS_HF}")
    for p in range(2): A(f"buffer_store_dwordx4 {v(24+4*p,4)}, v{VL}, {R(RWS)}, s{sT} offen offset:{p*1024} sc1")
    A(f"v_and_b32 v{T0}, 31, v1\nv_lshlrev_b32 v{T0}, 4, v{T0}\nv_lshrrev_b32 v{T1}, 5, v1\nv_mul_u32_u24 v{T1}, 3584, v{T1}\nv_add_u32 v{T0}, v{T0}, v{T1}")
    A("s_barrier")
    if env("S3W", 1): A("s_waitcnt vmcnt(2)")
    stamp("s3pre")
    GR = 32
    A(f"s_mov_b32 s{sTO}, 0x40000\nP3_GL:")
    for k in range(7): A(f"buffer_load_dwordx4 {v(GR+4*k,4)}, v{T0}, {R(RWS)}, s{sB} offen offset:{k*512} sc1")
    A(f"s_sub_u32 s{sTO}, s{sTO}, 1\ns_waitcnt vmcnt(0)\ns_cbranch_scc1 P3_GX")
    tagcheck([GR+4*k for k in range(7)], T1, T2, T3)
    A("s_cbranch_vccnz P3_GL\nP3_GX:")
    vm.q = []
    stamp("s3")
    for k in range(1, 7): A(f"v_add_f32 v{GR}, v{GR}, v{GR+4*k}\nv_add_f32 v{GR+2}, v{GR+2}, v{GR+4*k+2}")
    m, q = GR, GR+2
    A(f"v_mov_b32 v{T0}, v{m}\nv_mov_b32 v{T1}, v{q}\nv_permlane32_swap_b32 v{m}, v{T0}\nv_permlane32_swap_b32 v{q}, v{T1}\nv_add_f32 v{m}, v{m}, v{T0}\nv_add_f32 v{q}, v{q}, v{T1}")
    A(f"v_mul_f32 v{m}, {fl(1.0/D)}, v{m}\nv_mul_f32 v{q}, {fl(1.0/D)}, v{q}\nv_fma_f32 v{q}, -v{m}, v{m}, v{q}\nv_max_f32 v{q}, 0, v{q}")
    A(f"v_add_f32 v{T0}, {fl(EPS)}, v{q}\nv_mul_f32 v{T0}, {fl(EPS)}, v{T0}\nv_add_f32 v{q}, v{q}, v{T0}\nv_rsq_f32 v{q}, v{q}\ns_add_u32 s{sT}, s{sRBW}, 8192\nv_mul_f32 v{m}, v{m}, v{q}")
    A(f"v_cndmask_b32 v{T0}, v{q}, v{m}, s[{sHI}:{sHI+1}]\nv_lshl_add_u32 v{T1}, v1, 2, s{sT}\nds_write_b32 v{T1}, v{T0}")
    A(f"v_lshrrev_b32 v{T2}, 5, v1\nv_lshl_add_u32 v{T2}, v{T2}, 4, s{sT}")
    for g in range(4): A(f"ds_read_b128 {v(64+4*g,4)}, v{T2} offset:{g*32}\nds_read_b128 {v(80+4*g,4)}, v{T2} offset:{128+g*32}")
    A(f"s_lshl_b32 s{sT}, s{sC3}, 17\ns_lshl_b32 s{sU}, s{sR3}, 11\ns_add_u32 s{sT}, s{sT}, s{sU}\ns_add_u32 s{sT}, s{sT}, {WS_HH}")
    for p in range(2):
        A(f"s_waitcnt lgkmcnt({4 - 4*p})")
        for r in range(8*p, 8*p+8, 2): A(f"v_pk_fma_f32 {v(D1+r,2)}, {v(D1+r,2)}, {v(64+r,2)}, {v(80+r,2)} neg_lo:[0,0,1] neg_hi:[0,0,1]")
        for r in range(4*p, 4*p+4): A(f"v_cvt_pk_bf16_f32 v{24+r}, v{D1+2*r}, v{D1+2*r+1}")
        sanitize(27+4*p)
        A(f"buffer_store_dwordx4 {v(24+4*p,4)}, v{VL}, {R(RWS)}, s{sT} offen offset:{p*1024} sc1")
    stamp("hhst"); stamp_flush()
    A("P3_END:")
    vm.q = []; lg.q = []

PRE, ACC = 128, 16
def preread():
    for n in range(14):
        for ti in range(2):
            for half in range(2):
                A(f"ds_read_b64_tr_b16 {v(PRE + 8*n + ti*4 + half*2, 2)}, v{VRD[ti]} offset:{n*2048 + half*1024}")

def p4():
    RING, NR = 80, 6
    T0, T1, BR, VH = 4, 5, 6, [14, 15]
    preread()
    A("s_waitcnt lgkmcnt(0)\ns_barrier")
    stamp("hhflag"); stamp_flush()
    A(f"s_cmp_lg_u32 s{sACT4}, 0\ns_cbranch_scc1 P4_GO\ns_barrier\ns_barrier\ns_barrier\ns_barrier\ns_branch P4_END\nP4_GO:")
    sFO, sRO = sA, sD_
    A(f"s_lshr_b32 s{sFO}, s{SW}, 1\ns_lshl_b32 s{sT}, s{sFT}, 1\ns_add_u32 s{sFO}, s{sFO}, s{sT}\ns_lshl_b32 s{sT}, s{sFO}, 6\nv_lshrrev_b32 v{T0}, 5, v1\nv_lshlrev_b32 v{T0}, 3, v{T0}")
    for g in range(4): A(f"buffer_load_dwordx2 {v(BR+2*g,2)}, v{T0}, {R(RB1)}, s{sT} offen offset:{g*16}")
    A(f"s_and_b32 s{sE}, s{SW}, 1\ns_lshl_b32 s{sT}, s{sDT4}, 1\ns_add_u32 s{sE}, s{sE}, s{sT}\ns_xor_b32 s{sU}, s{sE}, 1")
    A(f"s_lshl_b32 s{sT}, s{SW}, 15\ns_add_u32 s{sT}, s{sT}, {WS_HH}\ns_lshl_b32 s{sB}, s{sE}, 17\ns_add_u32 s{sB}, s{sB}, s{sT}\ns_lshl_b32 s{sC}, s{sU}, 17\ns_add_u32 s{sC}, s{sC}, s{sT}")
    A(f"v_add_u32 v{VH[0]}, s{sB}, v{VL}\nv_add_u32 v{VH[1]}, s{sC}, v{VL}")
    rot4(sRO); A(f"s_lshl_b32 s{sRO}, s{sRO}, 10")
    for sl in range(1, 4):
        A(f"s_xor_b32 s{sU}, s{SW}, {sl}\ns_mul_i32 s{sU}, s{sU}, 12288\ns_add_u32 s{sU}, s{sU}, {RBUF}\nv_add_u32 v{VRW[sl]}, s{sU}, v{VL}")
    dreg = lambda n, j: RING + (n % NR)*8 + 4*j
    dest = lambda n, j: v(dreg(n, j), 4)
    vm.q = []
    sh = Stream("SH", 16, lambda g: [(dreg(2*g+k, j), VH[j], k*1024) for k in range(2) for j in range(2)],
                lambda g: A(f"s_add_u32 s{sT}, s{sRO}, {g*2048}\ns_and_b32 s{sT}, s{sT}, 0x7fff"), T0)
    wreg = lambda n, ti: v(PRE + 8*(n if n < 14 else n & 3) + 4*ti, 4)
    def tread(n, ti):
        va, off = (VRB, (n-14)*2048) if n < 18 else (VRD, (n-18)*2048)
        for half in range(2): A(f"ds_read_b64_tr_b16 {v(PRE + 8*(n&3) + ti*4 + half*2, 2)}, v{va[ti]} offset:{off + half*1024}"); lg.issue(n)
    for g in range(NR//2): sh.issue(g)
    sh.check1(0); sh.check2(0)
    for n in range(32):
        if n == 0: stamp("p4first")
        if n in (8, 16, 24): stamp(f"p4_{n}")
        if n == 12: A("s_barrier")
        lg.wait(n)
        if n == 25: A("s_barrier")
        if n == 31: A("s_barrier")
        order = [(0, 0), (0, 1), (1, 0), (1, 1)] if n < 31 else [(0, 1), (1, 0), (1, 1), (0, 0)]
        for k, (ti, tj) in enumerate(order):
            acc = ACC + 16*(2*ti + tj)
            A(f"{MFMA} {v(acc,16)}, {wreg(n,ti)}, {dest(n,tj)}, {'0' if n == 0 else v(acc,16)}")
            if k < 2 and 14 <= n + 2 < 32: tread(n + 2, k)
            if n & 1 and k == 2: sh.check1(n//2 + 1)
        if n & 1: sh.check2(n//2 + 1); sh.issue(n//2 + NR//2)
    stamp("p4mm")
    for sl in (1, 2, 3):
        for g in range(4): A(f"ds_write_b128 v{VRW[sl]}, {v(ACC+16*sl+4*g,4)} offset:{(sl-1)*4096 + g*1024}")
    for j in range(8):
        A(f"v_lshlrev_b32 v80, 16, v{BR+j}\nv_and_b32 v81, 0xffff0000, v{BR+j}\nv_pk_add_f32 {v(ACC+2*j,2)}, {v(ACC+2*j,2)}, v[80:81]")
    c1 = -2.0*math.sqrt(2.0/math.pi)*math.log2(math.e); c2 = c1*0.044715
    A(f"v_mov_b32 v82, {fl(c2)}\nv_mov_b32 v84, {fl(c1)}")
    A(f"s_mul_i32 s{sT}, s{sE}, {112*1024}\ns_lshl_b32 s{sU}, s{sFO}, 11\ns_add_u32 s{sT}, s{sT}, s{sU}\ns_add_u32 s{sT}, s{sT}, {WS_G}")
    A("s_waitcnt lgkmcnt(0)\ns_barrier")
    for g in range(4):
        for sl in range(1, 4): A(f"ds_read_b128 {v(ACC+16*sl+4*g,4)}, v{VRW[0]} offset:{(sl-1)*4096 + g*1024}")
    for g in range(4):
        A(f"s_waitcnt lgkmcnt({9-3*g})")
        rs = (16+4*g, 18+4*g)
        for r in rs: A(f"v_pk_add_f32 {v(r,2)}, {v(r,2)}, {v(r+16,2)}\nv_pk_add_f32 {v(r+32,2)}, {v(r+32,2)}, {v(r+48,2)}")
        for r in rs: A(f"v_pk_add_f32 {v(r,2)}, {v(r,2)}, {v(r+32,2)}")
        for r in rs: A(f"v_pk_mul_f32 {v(r+16,2)}, {v(r,2)}, {v(r,2)}")
        for r in rs: A(f"v_pk_fma_f32 {v(r+16,2)}, {v(r+16,2)}, v[82:83], v[84:85] op_sel_hi:[1,0,0]")
        for r in rs: A(f"v_pk_mul_f32 {v(r+16,2)}, {v(r+16,2)}, {v(r,2)}")
        for r in range(32+4*g, 36+4*g): A(f"v_exp_f32 v{r}, v{r}")
        for r in rs: A(f"v_pk_add_f32 {v(r+16,2)}, {v(r+16,2)}, 1.0 op_sel_hi:[1,0]")
        for r in range(32+4*g, 36+4*g): A(f"v_rcp_f32 v{r}, v{r}")
        for r in rs: A(f"v_pk_mul_f32 {v(r,2)}, {v(r,2)}, {v(r+16,2)}")
        for k, r in enumerate(rs): A(f"v_cvt_pk_bf16_f32 v{88+2*g+k}, v{r}, v{r+1}")
        if g & 1: sanitize(89+2*g)
        if g & 1: A(f"buffer_store_dwordx4 {v(88+4*(g>>1),4)}, v{VL}, {R(RWS)}, s{sT} offen offset:{(g>>1)*1024} sc1")
    stamp("gst"); stamp_flush()
    A("P4_END:\ns_barrier")
    vm.q = []; lg.q = []
    preread()
    A("s_waitcnt lgkmcnt(0)\ns_barrier")
    stamp("gflag"); stamp_flush()

def p5():
    T0, T1, T2 = 4, 5, 6
    RING, NR, HR, IR, VO, B2R, VG, TC = 80, 6, 64, 246, 3, 8, [12, 13], 254
    A(f"s_cmp_ge_u32 s{sJ}, 28\ns_cbranch_scc1 K_FIN")
    sGC = sC
    A(f"s_and_b32 s{sE}, s{SW}, 1\ns_lshl_b32 s{sT}, s{sDT5}, 1\ns_add_u32 s{sE}, s{sE}, s{sT}\ns_xor_b32 s{sU}, s{sE}, 1")
    A(f"s_lshr_b32 s{sV}, s{SW}, 1\ns_lshl_b32 s{sT}, s{sST}, 1\ns_add_u32 s{sV}, s{sV}, s{sT}\ns_mul_i32 s{sV}, s{sV}, 14\ns_add_u32 s{sV}, s{sV}, s{sE}\ns_lshl_b32 s{sV}, s{sV}, 11\ns_add_u32 s{sV}, s{sV}, {WS_HF}")
    vm.q = []
    A(f"v_lshrrev_b32 v{T0}, 3, v0\nv_mul_u32_u24 v{VO}, 896, v{T0}\nv_and_b32 v{T1}, 7, v0\nv_lshl_add_u32 v{VO}, v{T1}, 4, v{VO}\nv_lshlrev_b32 v{T0}, 1, v{T0}\ns_lshl_b32 s{sT}, s{sST}, 7")
    A(f"buffer_load_ushort v{B2R}, v{T0}, {R(RB2)}, s{sT} offen\nbuffer_load_ushort v{B2R+2}, v{T0}, {R(RB2)}, s{sT} offen offset:64")
    sx = Stream("SX", 1, lambda g: [(HR+4*p, VL, p*1024) for p in range(2)], lambda g: A(f"s_mov_b32 s{sT}, s{sV}"), TC)
    sx.issue(0)
    A(f"s_mul_i32 s{sT}, s{SW}, {28*1024}\ns_add_u32 s{sT}, s{sT}, {WS_G}\ns_mul_i32 s{sA}, s{sE}, {112*1024}\ns_add_u32 s{sA}, s{sA}, s{sT}\ns_mul_i32 s{sB}, s{sU}, {112*1024}\ns_add_u32 s{sB}, s{sB}, s{sT}")
    A(f"v_add_u32 v{VG[0]}, s{sA}, v{VL}\nv_add_u32 v{VG[1]}, s{sB}, v{VL}")
    rot5(sGC); A(f"s_lshl_b32 s{sGC}, s{sGC}, 10")
    dreg = lambda n, j: RING + (n % NR)*8 + 4*j
    dest = lambda n, j: v(dreg(n, j), 4)
    sg = Stream("SG", 14, lambda g: [(dreg(2*g+k, j), VG[j], k*1024) for k in range(2) for j in range(2)],
                lambda g: A(f"s_add_u32 s{sT}, s{sGC}, {g*2048}\ns_sub_u32 s{sD_}, s{sT}, {28*1024}\ns_min_u32 s{sT}, s{sT}, s{sD_}"), TC)
    for g in range(NR//2): sg.issue(g)
    A(f"v_and_b32 v{T0}, 31, v1\nv_lshrrev_b32 v{T1}, 5, v1\nv_lshlrev_b32 v{T1}, 2, v{T1}\nv_sub_u32 v{T0}, v{T0}, v{T1}")
    for p in range(2):
        for r in range(4):
            d0 = 16*p + 8*(r >> 1) + 2*(r & 1)
            A(f"v_cmp_eq_u32 vcc, {d0}, v{T0}\nv_cmp_eq_u32 s[{sA}:{sA+1}], {d0+1}, v{T0}\nv_cndmask_b32 v{IR+4*p+r}, 0, v{VONE}, vcc\nv_cndmask_b32 v{IR+4*p+r}, v{IR+4*p+r}, v{VONE+1}, s[{sA}:{sA+1}]")
    VWA = [4, 5, 6, 7]; VRA = [14, 15]
    A(f"v_and_b32 v14, 31, v1\nv_mul_u32_u24 v14, 272, v14\nv_lshrrev_b32 v15, 5, v1\nv_lshl_add_u32 v14, v15, 4, v14\nv_add_u32 v14, s{sW2W}, v14")
    for sl in range(4):
        A(f"s_xor_b32 s{sT}, s{SW}, {sl}\ns_lshr_b32 s{sU}, s{sT}, 1\ns_mul_i32 s{sU}, s{sU}, {32*272}\ns_and_b32 s{sT}, s{sT}, 1\ns_lshl_b32 s{sT}, s{sT}, 7\ns_add_u32 s{sT}, s{sT}, s{sU}\nv_add_u32 v{VWA[sl]}, s{sT}, v14")
    A(f"v_lshrrev_b32 v14, 3, v0\nv_mul_u32_u24 v14, 272, v14\nv_and_b32 v15, 7, v0\nv_lshl_add_u32 v14, v15, 5, v14\nv_add_u32 v15, {2*28672}, v14")
    sx.check1(0); sx.check2(0)
    A(f"{MFMA} {v(ACC,16)}, {v(IR,4)}, {v(HR,4)}, 0\n{MFMA} {v(ACC,16)}, {v(IR+4,4)}, {v(HR+4,4)}, {v(ACC,16)}")
    A(f"v_lshlrev_b32 v{B2R}, 16, v{B2R}\nv_lshlrev_b32 v{B2R+2}, 16, v{B2R+2}")
    wreg = lambda n, ti: v(PRE + 8*(n if n < 14 else n & 3) + 4*ti, 4)
    def tread(n, ti):
        for half in range(2): A(f"ds_read_b64_tr_b16 {v(PRE + 8*(n&3) + ti*4 + half*2, 2)}, v{VRD[ti]} offset:{(n-14)*2048 + half*1024}"); lg.issue(n)
    sg.check1(0); sg.check2(0)
    for n in range(28):
        if n == 0: stamp("p5first")
        if n in (7, 14, 21): stamp(f"p5_{n}")
        if n == 12: A("s_barrier")
        lg.wait(n)
        for k, (ti, tj) in enumerate([(0, 0), (0, 1), (1, 0), (1, 1)]):
            acc = ACC + 16*(2*ti + tj)
            A(f"{MFMA} {v(acc,16)}, {dest(n,tj)}, {wreg(n,ti)}, {'0' if n == 0 and k else v(acc,16)}")
            if k < 2 and 14 <= n + 2 < 28: tread(n + 2, k)
            if n & 1 and k == 2: sg.check1(n//2 + 1)
        if n & 1: sg.check2(n//2 + 1); sg.issue(n//2 + NR//2)
    A(f"s_mul_i32 s{sT}, s{sST}, {64*896}\ns_lshl_b32 s{sU}, s{sDT5}, 7\ns_add_u32 s{sT}, s{sT}, s{sU}\ns_add_u32 s{sU}, s{sT}, {32*896}")
    stamp("p5mm")
    for sl in range(4):
        for g in range(4): A(f"ds_write_b128 v{VWA[sl]}, {v(ACC+16*sl+4*g,4)} offset:{g*32}")
    A("s_waitcnt lgkmcnt(0)\ns_barrier")
    for rr in range(2):
        for w in range(4):
            for q in range(2):
                A(f"ds_read_b128 {v(16+16*w+8*rr+4*q,4)}, v{VRA[w>>1]} offset:{(w&1)*28672 + rr*32*272 + q*16}")
    for rr in range(2):
        A(f"s_waitcnt lgkmcnt({8 if rr == 0 else 0})")
        rs = range(16+8*rr, 24+8*rr, 2)
        for r in rs: A(f"v_pk_add_f32 {v(r,2)}, {v(r,2)}, {v(r+16,2)}\nv_pk_add_f32 {v(r+32,2)}, {v(r+32,2)}, {v(r+48,2)}")
        for r in rs: A(f"v_pk_add_f32 {v(r,2)}, {v(r,2)}, {v(B2R+2*rr,2)} op_sel_hi:[1,0]")
        for r in rs: A(f"v_pk_add_f32 {v(r,2)}, {v(r,2)}, {v(r+32,2)}")
        for r in range(4): A(f"v_cvt_pk_bf16_f32 v{80+4*rr+r}, v{16+8*rr+2*r}, v{17+8*rr+2*r}")
        A(f"buffer_store_dwordx4 {v(80+4*rr,4)}, v{VO}, {R(ROUT)}, s{[sT,sU][rr]} offen")
    stamp("outst"); stamp_flush()
    A("K_FIN:")
    if os.environ.get("DIAGAT"):
        A(f"DSP:\ns_memrealtime s[{sA}:{sA+1}]\ns_waitcnt lgkmcnt(0)\ns_sub_u32 s{sA}, s{sA}, s72\ns_cmp_lt_u32 s{sA}, 4000\ns_cbranch_scc1 DSP")
    if STAMP:
        A("s_waitcnt vmcnt(0)"); stamp("end"); A(f"s_memrealtime s[{sA}:{sA+1}]"); stamp_flush()
        A(f"v_writelane_b32 v{VST}, s72, 62\nv_writelane_b32 v{VST}, s{sA}, 63")
        A(f"s_lshl_b32 s{sT}, s2, 3\ns_add_u32 s{sT}, s{sT}, s{sW8}\ns_lshl_b32 s{sT}, s{sT}, 8\ns_add_u32 s{sT}, s{sT}, {WS_STAMP}\nv_lshlrev_b32 v4, 2, v1\nbuffer_store_dword v{VST}, v4, {R(RWS)}, s{sT} offen")
    A("K_END:\ns_endpgm")

PZ = 8
def poison_all(lab):
    for r in range(4): A(f"v_mov_b32 v{PZ+r}, -1")
    def poison():
        for p in range(2): A(f"buffer_store_dwordx4 {v(PZ,4)}, v{VL}, {R(RWS)}, s{sT} offen offset:{p*1024} sc1")
    A(f"s_lshl_b32 s{sT}, s{sI}, 2\ns_add_u32 s{sT}, s{sT}, s{SW}\ns_lshl_b32 s{sT}, s{sT}, 4\ns_add_u32 s{sT}, s{sT}, s{sH}\ns_lshl_b32 s{sT}, s{sT}, 11\ns_add_u32 s{sT}, s{sT}, {WS_O}")
    poison()
    A(f"s_cmp_ge_u32 s{sC3}, 14\ns_cbranch_scc1 {lab}1")
    A(f"s_mul_i32 s{sT}, s{sR3}, 14\ns_add_u32 s{sT}, s{sT}, s{sC3}\ns_lshl_b32 s{sT}, s{sT}, 11\ns_add_u32 s{sT}, s{sT}, {WS_HF}"); poison()
    A(f"s_lshl_b32 s{sT}, s{sC3}, 17\ns_lshl_b32 s{sU}, s{sR3}, 11\ns_add_u32 s{sT}, s{sT}, s{sU}\ns_add_u32 s{sT}, s{sT}, {WS_HH}"); poison()
    A(f"{lab}1:\ns_cmp_eq_u32 s{sACT4}, 0\ns_cbranch_scc1 {lab}2")
    A(f"s_and_b32 s{sT}, s{SW}, 1\ns_lshl_b32 s{sU}, s{sDT4}, 1\ns_add_u32 s{sT}, s{sT}, s{sU}\ns_mul_i32 s{sT}, s{sT}, {112*1024}\ns_lshr_b32 s{sU}, s{SW}, 1\ns_lshl_b32 s{sV}, s{sFT}, 1\ns_add_u32 s{sU}, s{sU}, s{sV}\ns_lshl_b32 s{sU}, s{sU}, 11\ns_add_u32 s{sT}, s{sT}, s{sU}\ns_add_u32 s{sT}, s{sT}, {WS_G}"); poison()
    A(f"{lab}2:")

def bprog():
    NT = env("NT", 0); nt = " nt" if NT else ""
    nt1 = " nt" if env("NT1", 0) else ""
    VXD = [16, 17, 18, 19]; VXE = [20, 21]; VWD = list(range(22, 29))
    sWO, sXO, sM, sWM = sA, sB, sC, sD_
    sXP, sWP = [sW1, sW1S, sW1E], [sW2, sW2S, sW2E]
    A("B_P1:"); vm.q = []; lg.q = []
    p1_common()
    A(f"s_mul_i32 s{sXO}, s{sE}, {32*896}\ns_lshl_b32 s{sWM}, s{SW}, 10")
    A("v_lshrrev_b32 v4, 4, v1\nv_and_b32 v5, 15, v1\nv_xor_b32 v5, v5, v4\nv_mul_u32_u24 v6, 896, v4")
    for j in range(4): A(f"v_xor_b32 v7, {4*j}, v5\nv_lshl_add_u32 v7, v7, 4, v6\nv_add_u32 v{VXD[j]}, {j*4*896 - j*1024}, v7")
    A(f"s_lshr_b32 s{sT}, s{sJ}, 2\ns_and_b32 s{sU}, s{sJ}, 3\ns_add_u32 s{sT}, s{sT}, s{sU}\ns_mul_i32 s{sU}, s{sT}, 11\ns_lshr_b32 s{sU}, s{sU}, 5\ns_mul_i32 s{sU}, s{sU}, 3\ns_sub_u32 s{sT}, s{sT}, s{sU}")
    if not env("P1ROT", 1): A(f"s_mov_b32 s{sT}, 0")
    for p in range(3):
        A(f"s_lshl_b32 s{sU}, s{sT}, 8\ns_add_u32 s{sXP[p]}, s{sXO}, s{sU}\ns_mul_i32 s{sU}, s{sT}, {128*2688}\ns_add_u32 s{sWP[p]}, s{sWO}, s{sU}")
        if p < 2: A(f"s_add_u32 s{sT}, s{sT}, 1\ns_cmp_eq_u32 s{sT}, 3\ns_cselect_b32 s{sT}, 0, s{sT}")
    def xpiece(p):
        if p < 3:
            for j in range(8):
                if j % 4 == 0: A(f"s_add_u32 m0, s{sM}, {XBUF[p] + (j>>2)*4096}\ns_add_u32 s{sV}, s{sXP[p]}, {(j>>2)*16*896}")
                A(f"buffer_load_dwordx4 v{VXD[j&3]}, {R(RX)}, s{sV} offen offset:{(j&3)*1024}{nt1} lds"); vm.issue(f"x{p}")
        else:
            for j in range(4):
                A(f"s_add_u32 m0, s{sM}, {XBUF[p] + j*1024}\ns_add_u32 s{sV}, s{sXO}, {(j>>1)*16*896 + 768}\nbuffer_load_dwordx4 v{VXE[j&1]}, {R(RX)}, s{sV} offen{nt1} lds"); vm.issue(f"x{p}")
    def wdma(j):
        g = j // 7
        if g == 3 and j == 21: A(f"s_add_u32 s{sT}, s{sWO}, {3*128*2688}")
        A(f"s_add_u32 m0, s{sWM}, {j*4096}\nbuffer_load_dwordx4 v{VWD[j%7]}, {R(RWQ)}, s{sWP[g] if g < 3 else sT} offen{nt1} lds"); vm.issue(f"w{g}")
    A("s_waitcnt lgkmcnt(0)")
    xpiece(0)
    for j in range(7):
        A(f"v_add_u32 v4, {256*j}, v0\nv_mul_u32_u24 v5, 4682, v4\nv_lshrrev_b32 v5, 16, v5\nv_mul_u32_u24 v6, 14, v5\nv_sub_u32 v4, v4, v6")
        A(f"v_and_b32 v6, 0xf8, v5\nv_and_b32 v7, 1, v5\nv_lshl_add_u32 v6, v7, 2, v6\nv_bfe_u32 v7, v5, 1, 2\nv_add_u32 v6, v6, v7\nv_mul_u32_u24 v6, 2688, v6\nv_lshl_add_u32 v{VWD[j]}, v4, 4, v6")
        wdma(j)
    xpiece(1)
    A("v_lshrrev_b32 v4, 3, v1\nv_mul_u32_u24 v6, 896, v4\nv_lshrrev_b32 v4, 4, v1\nv_and_b32 v5, 7, v1\nv_xor_b32 v5, v5, v4")
    for j in range(2): A(f"v_xor_b32 v7, {4*j}, v5\nv_lshl_add_u32 v7, v7, 4, v6\nv_add_u32 v{VXE[j]}, {j*8*896}, v7")
    prologue2()
    vm.wait("w0"); A("s_barrier\ns_barrier")
    for j in range(7, 14): wdma(j)
    xpiece(2)
    vm.wait("w1"); A("s_barrier\ns_barrier")
    for j in range(14, 21): wdma(j)
    xpiece(3)
    for j in range(21, 25): wdma(j)
    vm.wait("w2"); A("s_barrier")
    vm.wait_all(); A("s_barrier\ns_waitcnt lgkmcnt(0)\ns_branch B_P2")

def bprog2():
    NT = env("NT", 0); nt = " nt" if NT else ""
    A("B_P2:"); vm.q = []
    if STAMP: A("v_mov_b32 v15, -1\nB_P2S:"); st["v"] = 15
    roles(touch=False)
    W1B, WOR, W2R0 = 16, 160, 192
    VT1, VT2, VTO, VDW, VDR = [4, 5], [6, 7], [8, 9], 10, 11
    A("v_lshrrev_b32 v12, 3, v1\nv_bfe_u32 v13, v1, 4, 1\nv_lshlrev_b32 v13, 2, v13\nv_and_b32 v14, 7, v1\nv_xor_b32 v14, v14, v13\nv_lshlrev_b32 v14, 4, v14")
    A(f"v_mul_u32_u24 v13, 3584, v12\nv_add_u32 v{VT1[0]}, v13, v14\nv_add_u32 v{VT1[1]}, {8*3584}, v{VT1[0]}\nv_lshl_add_u32 v{VT2[0]}, v12, 12, v14\nv_add_u32 v{VT2[1]}, {8*4096}, v{VT2[0]}")
    A(f"v_lshrrev_b32 v12, 2, v1\nv_mul_u32_u24 v12, 896, v12\nv_and_b32 v13, 3, v1\nv_lshl_add_u32 v{VTO[0]}, v13, 4, v12\nv_add_u32 v{VTO[1]}, {16*896}, v{VTO[0]}")
    A(f"v_add_u32 v{VDW}, s{sW2W}, v{VL}\nv_add_u32 v{VDR}, s{sRBW}, v{VL}")
    A(f"s_mul_i32 s{sW1S}, s{SW}, {512*3584}\ns_lshl_b32 s{sT}, s{sFT}, 7\ns_add_u32 s{sW1S}, s{sW1S}, s{sT}\ns_add_u32 s{sW1E}, s{sW1S}, {512*3584}")
    rot4(sT); A(f"s_mul_i32 s{sT}, s{sT}, {16*3584}\ns_add_u32 s{sW1}, s{sW1S}, s{sT}")
    A(f"s_mul_i32 s{sW2S}, s{SW}, {448*4096}\ns_lshl_b32 s{sT}, s{sST}, 7\ns_add_u32 s{sW2S}, s{sW2S}, s{sT}\ns_add_u32 s{sW2E}, s{sW2S}, {448*4096}")
    rot5(sT); A(f"s_lshl_b32 s{sT}, s{sT}, 16\ns_add_u32 s{sW2}, s{sW2S}, s{sT}")
    TH = env("BTH", 4)
    def adv(cur, st_, en, step): A(f"s_add_u32 s{cur}, s{cur}, {step}\ns_cmp_eq_u32 s{cur}, s{en}\ns_cselect_b32 s{cur}, s{st_}, s{cur}")
    def w2reg(n): return W2R0 + 8*n if n < 8 else (WOR + 8*(n-8) if n < 12 else W1B + 8*(n-12))
    def w2load(n, th=None):
        for j in range(2): A(f"buffer_load_dwordx4 {v(w2reg(n)+4*j,4)}, v{VT2[j]}, {R(RW2)}, s{sW2} offen{nt}"); vm.issue(f"v{n}")
        adv(sW2, sW2S, sW2E, 16*4096)
        if th: A(f"s_waitcnt vmcnt({th})")
    A(f"s_and_b32 s{sT}, s{sC3}, 7\ns_lshl_b32 s{sT}, s{sT}, 1\ns_lshl_b32 s{sB}, s{SW}, 2\ns_add_u32 s{sB}, s{sB}, s{sT}\ns_min_u32 s{sC}, s{sC3}, 13\ns_lshl_b32 s{sC}, s{sC}, 6")
    A(f"s_cmp_ge_u32 s{sJ}, 24\ns_cbranch_scc1 B_NOKV\ns_barrier\nB_NOKV:")
    A(f"s_add_u32 s{sT}, s{SW}, 1\ns_and_b32 s{sT}, s{sT}, 3\ns_mul_i32 s{sT}, s{sT}, 12288\ns_add_u32 s{sT}, s{sT}, {RBUF + 3072}\nv_add_u32 v14, s{sT}, v{VL}")
    A(f"v_mov_b32 v12, 0\nds_write_b32 v14, v12\ns_waitcnt lgkmcnt(0)\ns_barrier")
    stamp("b_go")
    BP = env("BPRIO", 0)
    if BP: A(f"s_setprio {BP}")
    A(f"buffer_load_dwordx2 v[{W2R0}:{W2R0+1}], v12, {R(RDBG)}, 0 offen sc1")
    sPOS = sE
    def item(k, th):
        if k < 32:
            n = k
            for j in range(2):
                if n < 14: A(f"s_add_u32 m0, s{sW2W}, {n*2048 + j*1024}\nbuffer_load_dwordx4 v{VT1[j]}, {R(RW1)}, s{sW1} offen{nt} lds")
                else: A(f"buffer_load_dwordx4 {v(W1B+8*(n-14)+4*j,4)}, v{VT1[j]}, {R(RW1)}, s{sW1} offen{nt}")
            adv(sW1, sW1S, sW1E, 16*3584)
            if th: A(f"s_waitcnt vmcnt({th})")
        else: w2load(k - 32, th)
    K0 = 14
    for k in range(40):
        if k >= K0: A("ds_read_b32 v13, v14")
        item(k, TH)
        if k == 3:
            A(f"s_waitcnt vmcnt(8)\ns_setprio 3\nv_readfirstlane_b32 s{sTAG}, v{W2R0}\nv_readfirstlane_b32 s{sTAG+1}, v{W2R0+1}\ns_setprio {BP}\ns_cmp_lg_u32 s{SW}, 0\ns_cbranch_scc1 B_NOFP")
            A(f"s_mov_b64 exec, 1\nbuffer_store_dwordx2 v[{W2R0}:{W2R0+1}], v12, {R(RWS)}, s{sF[1]} offen sc1\ns_mov_b64 exec, -1\nB_NOFP:")
        if k in (4, 6, 8, 10):
            q = (k - 4) // 2
            A(f"s_add_u32 s{sT}, s{sB}, {q}\ns_and_b32 s{sT}, s{sT}, 15\ns_mul_i32 s{sT}, s{sT}, {28*896}\ns_add_u32 s{sT}, s{sT}, s{sC}")
            for j in range(2): A(f"buffer_load_dwordx4 {v(WOR+8*q+4*j,4)}, v{VTO[j]}, {R(RWO)}, s{sT} offen")
            A(f"s_waitcnt vmcnt({TH})")
        if k == 13:
            A(f"s_setprio 3\nv_lshlrev_b32 v12, 3, v1\ns_lshl_b32 s{sV}, s{SW}, 9\ns_add_u32 s{sV}, s{sV}, {F2}")
            poll(12, sV, 64, 8); A(f"s_setprio {BP}")
            TH = env("BTH2", 8)
        if k in (4, 13): stamp(f"b_{k}")
        if K0 <= k < 39:
            A(f"s_mov_b32 s{sPOS}, {k+1}\ns_waitcnt lgkmcnt(0)\ns_setprio 3\nv_cmp_ne_u32 vcc, 0, v13\ns_setprio {BP}\ns_cbranch_vccnz B_CUT")
    A(f"s_mov_b32 s{sPOS}, 40\nB_CUT:")
    stamp("b_done"); stamp_flush()
    if STAMP: A(f"v_writelane_b32 v15, s{sPOS}, 60")
    A(f"v_min_u32 v12, 5, v1\nv_lshlrev_b32 v12, 12, v12\nv_add_u32 v12, {RBUF + 3*1024 + 32*16 + 4}, v12")
    A(f"B_RED:\ns_barrier\nds_read_b32 v13, v12\ns_waitcnt lgkmcnt(0)\nv_cmp_ne_u32 vcc, 0, v13")
    A(f"s_cbranch_vccz B_OK\ns_cmp_lg_u32 s{sRETRY}, 0\ns_cbranch_scc1 B_OK\ns_mov_b32 s{sRETRY}, -1\ns_barrier\ns_barrier\ns_barrier\ns_branch B_RED\nB_OK:")
    A("s_barrier")
    for k in range(8): A(f"ds_write_b128 v{VDR}, {v(WOR+4*k,4)} offset:{k*1024}")
    A("s_waitcnt lgkmcnt(0)\ns_barrier\ns_barrier")
    for k in range(K0 + 1, 40):
        A(f"s_cmp_gt_u32 s{sPOS}, {k}\ns_cbranch_scc1 B_SK{k}"); item(k, None); A(f"B_SK{k}:")
    vm.q = []
    for n in range(8, 12): w2load(n)
    A("s_barrier\ns_waitcnt vmcnt(8)")
    def dump(reg, va, off):
        for j in range(2): A(f"ds_write_b128 v{va}, {v(reg+4*j,4)} offset:{off + j*1024}")
    for n in range(14, 18): dump(W1B + 8*(n-14), VDR, (n-14)*2048)
    A("s_waitcnt lgkmcnt(0)")
    NE = env("W2E", 16)
    for n in range(12, NE): w2load(n)
    for n in range(18, 32): dump(W1B + 8*(n-14), VDW, (n-18)*2048)
    A("s_waitcnt lgkmcnt(0)\ns_barrier\ns_barrier")
    for n in range(7): dump(w2reg(n), VDW, n*2048)
    A("s_barrier")
    rest = list(range(NE, 28))
    for n in rest[:4]: w2load(n)
    rest = rest[4:]
    A("s_barrier")
    vm.wait("v13")
    for n in range(7, 14):
        dump(w2reg(n), VDW, n*2048)
        if rest: w2load(rest.pop(0))
    for n in rest: w2load(n)
    A("s_waitcnt lgkmcnt(0)\ns_barrier\ns_barrier")
    for n in range(14, 28):
        vm.wait(f"v{n}"); dump(w2reg(n), VDW, (n-14)*2048)
    A("s_waitcnt lgkmcnt(0)\ns_barrier")
    if STAMP: A(f"v_mov_b32 v{VST}, v15"); del st["v"]
    A("s_branch K_FIN")

def main(out):
    prologue()
    pend0 = list(st["pend"])
    bprog()
    st["pend"] = list(pend0); p1_helper()
    st["pend"] = list(pend0); p1(); fb = p2(); p3(); p4(); p5()
    st["pend"] = list(pend0); bprog2(); fb()
    for h in handlers: h()
    A("CODE_END:")
    head = open("head.txt").read()
    nv = 256
    txt = head + f"; @launch grid=(256,1,1) block=(512,1,1) lds={LDS_TOTAL}\n" + '.amdgcn_target "amdgcn-amd-amdhsa--gfx950"\n.text\n' + kernel_header(NAME) + A.text() + '.section .rodata,"a"\n' + kernel_desc(NAME, nv, 102, 256)
    open(out, "w").write(txt)
    if STAMP: open(out + ".names", "w").write(" ".join(st["names"].keys()))

if __name__ == "__main__":
    main(sys.argv[1])
```

```python
import sys, struct, math, os
from asmlib import *

S, D, H, DH, F = 2048, 448, 16, 28, 1792
MB = 1 << 20
WS_Q, WS_KV, WS_O, WS_HF, WS_HH, WS_G, WS_ST, WS_FL, WS_STAMP = 0, 2*MB, 6*MB, 8*MB, 10*MB, 12*MB, 14*MB, 14*MB + 512*1024, 15*MB
F1, F2, F4, F5 = WS_FL, WS_FL + 131072, WS_FL + 2*131072, WS_FL + 3*131072
WS_RST, WS_CSG = 13*MB + 768*1024, 13*MB + 832*1024
WS_SIZE = 16*MB
WS_O = WS_HH = WS_Q
WS_G = WS_KV
EPS = 1e-5
STAMP = os.environ.get("STAMP", "0") == "1"
def env(n, d): return int(os.environ.get(n, str(d)))
def f2u(x): return struct.unpack("<I", struct.pack("<f", x))[0]
def hx(x): return f"0x{x & 0xffffffff:08x}"
def fl(x): return hx(f2u(x))
MFMA = "v_mfma_f32_32x32x16_bf16"
NAME = "sequential_preLN__mha_block__mixer_token_mlp__prompt_kernel"

class Cnt:
    def __init__(self, A, name, mx):
        self.A, self.name, self.mx, self.q = A, name, mx, []
    def issue(self, tag): self.q.append(tag)
    def wait(self, tag):
        idx = [i for i, t in enumerate(self.q) if t == tag]
        if not idx: return
        n = len(self.q) - 1 - idx[-1]
        self.A(f"s_waitcnt {self.name}({min(n, self.mx)})")
        self.q = self.q[idx[-1] + 1:]
    def wait_all(self):
        self.A(f"s_waitcnt {self.name}(0)"); self.q = []

RX, RWQ, RWO, RW1, RB1, RW2, RB2, ROUT, RDBG, RWS = 8, 12, 16, 20, 24, 28, 32, 36, 40, 44
def R(r): return f"s[{r}:{r+3}]"
SW, sH, sI, sJ, sFT, sDT4, sST, sDT5, sACT4, sTO, sTAG = 48, 49, 50, 51, 52, 53, 54, 55, 56, 57, 58
sHI, sONES = 60, 62
sT, sU, sV, sA, sB, sC, sD_, sE, sRETRY = 63, 64, 65, 66, 67, 68, 69, 70, 71
sF = [4, 5, 6, 7]
sSEC, sHQ, sW8 = 3, 92, 93
sC3, sR3 = 0, 1
sRBW, sW2W = 94, 95
sW1, sW1S, sW1E, sW2, sW2S, sW2E = 96, 97, 98, 99, 100, 101
VL, VST = 2, 255
W2A, RBUF, LDS_TOTAL = 0, 114688, 163840

A = Asm(); vm = Cnt(A, "vmcnt", 63); lg = Cnt(A, "lgkmcnt", 15)
st = {"pend": [], "names": {}}
def stamp(name):
    if os.environ.get("DIAGAT") == name or (os.environ.get("DIAGAT") and name == "start"): A("s_memrealtime s[72:73]")
    if not STAMP: return
    k = len(st["pend"]); assert k < 9, name
    n = st["names"].setdefault(name, len(st["names"]))
    A(f"{'s_memtime' if env('CYC', 0) else 's_memrealtime'} s[{74+2*k}:{75+2*k}]"); st["pend"].append(n)
def stamp_flush():
    if not STAMP or not st["pend"]: return
    A("s_waitcnt lgkmcnt(0)")
    for k, n in enumerate(st["pend"]): A(f"v_writelane_b32 v{st.get('v', VST)}, s{74+2*k}, {n}")
    st["pend"] = []

def set_exec(mask): A(f"s_mov_b32 exec_lo, {hx(mask)}\ns_mov_b32 exec_hi, {hx(mask >> 32)}")
def halfsum(x, t): A(f"v_mov_b32 v{t}, v{x}\nv_permlane32_swap_b32 v{x}, v{t}\nv_add_f32 v{x}, v{x}, v{t}")
def flag_store(soff_reg, t=4):
    A(f"v_mov_b32 v{t}, s{sTAG}\nv_mov_b32 v{t+1}, s{sTAG+1}\nv_mov_b32 v{t+2}, 0\ns_mov_b64 exec, 1")
    A(f"buffer_store_dwordx2 {v(t,2)}, v{t+2}, {R(RWS)}, s{soff_reg} offen sc1\ns_mov_b64 exec, -1"); vm.issue("flag")
def poll(voff, soff_reg, nl, t):
    L = A.label("POLL")
    set_exec((1 << nl) - 1)
    A(f"s_mov_b32 s{sTO}, 0x40000\n{L}:")
    A(f"buffer_load_dwordx2 {v(t,2)}, v{voff}, {R(RWS)}, s{soff_reg} offen sc1\ns_sub_u32 s{sTO}, s{sTO}, 1\ns_waitcnt vmcnt(0)")
    A(f"s_cbranch_scc1 {L}_x\nv_cmp_ne_u64 vcc, s[{sTAG}:{sTAG+1}], {v(t,2)}\ns_and_b64 exec, exec, vcc\n" + (f"s_cbranch_scc0 {L}_x\ns_sleep {env('PSL', 0)}\ns_branch {L}" if env("PSL", 0) else f"s_cbranch_scc1 {L}") + f"\n{L}_x:\ns_mov_b64 exec, -1")
    vm.q = []
def tr_lane_addr(dst, t, pitch, hs, rs=1):
    A(f"v_lshrrev_b32 v{dst}, 5, v1\nv_mul_u32_u24 v{dst}, {hs*pitch}, v{dst}\nv_bfe_u32 v{t}, v1, 2, 2\nv_mul_u32_u24 v{t}, {rs*pitch}, v{t}\nv_add_u32 v{dst}, v{dst}, v{t}")
    A(f"v_bfe_u32 v{t}, v1, 4, 1\nv_lshl_add_u32 v{dst}, v{t}, 5, v{dst}\nv_and_b32 v{t}, 3, v1\nv_lshl_add_u32 v{dst}, v{t}, 3, v{dst}")
def get_tag(TAGV, lab):
    A(f"v_readfirstlane_b32 s{sTAG}, v{TAGV}\nv_readfirstlane_b32 s{sTAG+1}, v{TAGV+1}")
    A(f"s_or_b32 s{sTO}, s{sTAG}, s{sTAG+1}\ns_cbranch_scc1 {lab}_ok\ns_mov_b32 s{sTO}, 0x40000\nv_mov_b32 v4, 0\n{lab}_l:")
    A(f"buffer_load_dwordx2 {v(TAGV,2)}, v4, {R(RDBG)}, 0 offen sc1\ns_sub_u32 s{sTO}, s{sTO}, 1\ns_waitcnt vmcnt(0)\ns_cbranch_scc1 {lab}_ok")
    A(f"v_readfirstlane_b32 s{sTAG}, v{TAGV}\nv_readfirstlane_b32 s{sTAG+1}, v{TAGV+1}\ns_cmp_eq_u64 s[{sTAG}:{sTAG+1}], 0\ns_cbranch_scc1 {lab}_l\n{lab}_ok:")
def tagcheck(regs, T1, T2, T3):
    A(f"v_xor_b32 v{T1}, s{sTAG}, v{regs[0]+1}\nv_xor_b32 v{T2}, s{sTAG+1}, v{regs[0]+3}\nv_or_b32 v{T1}, v{T1}, v{T2}")
    for g in regs[1:]: A(f"v_xor_b32 v{T2}, s{sTAG}, v{g+1}\nv_xor_b32 v{T3}, s{sTAG+1}, v{g+3}\nv_or3_b32 v{T1}, v{T1}, v{T2}, v{T3}")
    A(f"v_cmp_ne_u32 vcc, 0, v{T1}")
def rot4(d):
    A(f"s_bfe_u32 s{d}, s2, 0x20001\ns_mul_i32 s{d}, s{d}, 7\ns_sub_u32 s{d}, s{sFT}, s{d}\ns_add_u32 s{d}, s{d}, s{sDT4}\ns_add_u32 s{d}, s{d}, s{sDT4}")
    A(f"s_and_b32 s{sTO}, s2, 1\ns_mul_i32 s{sTO}, s{sTO}, 3\ns_add_u32 s{d}, s{d}, s{sTO}\ns_and_b32 s{d}, s{d}, 7\ns_lshl_b32 s{d}, s{d}, 2")
def rot5(d):
    A(f"s_and_b32 s{sTO}, s2, 1\ns_mul_i32 s{d}, s{sTO}, 3\ns_sub_u32 s{d}, s{sDT5}, s{d}\ns_mul_i32 s{d}, s{d}, 7\ns_lshr_b32 s{d}, s{d}, 1\ns_lshl_b32 s{sTO}, s{sTO}, 1\ns_add_u32 s{d}, s{d}, s{sTO}")
    A(f"s_and_b32 s{sTO}, s{sST}, 7\ns_mul_i32 s{sTO}, s{sTO}, 7\ns_lshr_b32 s{sTO}, s{sTO}, 2\ns_add_u32 s{d}, s{d}, s{sTO}")
    A(f"s_cmp_ge_u32 s{d}, 14\ns_cselect_b32 s{sTO}, 14, 0\ns_sub_u32 s{d}, s{d}, s{sTO}\ns_lshl_b32 s{d}, s{d}, 1")

handlers = []
class Stream:
    def __init__(self, name, ng, loads, soff, T, bit):
        self.name, self.ng, self.loads, self.soff, self.T, self.last, self.bit = name, ng, loads, soff, T, -1, bit
    def _emit(self, g, track):
        self.soff(g)
        for reg, va, off in self.loads(g):
            A(f"buffer_load_dwordx4 {v(reg,4)}, v{va}, {R(RWS)}, s{sT} offen offset:{off} sc1")
            if track: vm.issue((self.name, g))
    def issue(self, g):
        if g < self.ng: self._emit(g, True); self.last = g
    def _red(self, g):
        r = [x[0] + 3 for x in self.loads(g)]
        A(f"v_bitop3_b32 v{self.T}, v{r[0]}, v{r[1]}, v{r[2]} bitop3:0x80\nv_bitop3_b32 v{self.T}, v{self.T}, v{r[3]}, {self.bit} bitop3:0x80")
    def check1(self, g):
        if g < self.ng: vm.wait((self.name, g)); self._red(g)
    def check2(self, g):
        if g >= self.ng: return
        L = f"{self.name}{g}"
        A(f"v_cmp_eq_u32 vcc, 0, v{self.T}\ns_cbranch_vccnz {L}_h\n{L}_r:")
        last = self.last
        def h():
            A(f"{L}_h:\ns_mov_b32 s{sTO}, 0x40000\n{L}_l:")
            for k in range(g, last + 1): self._emit(k, False)
            A(f"s_sub_u32 s{sTO}, s{sTO}, 1\ns_waitcnt vmcnt({4*(last - g)})\ns_cbranch_scc1 {L}_r")
            self._red(g)
            A(f"v_cmp_eq_u32 vcc, 0, v{self.T}\ns_cbranch_vccnz {L}_l\ns_branch {L}_r")
        handlers.append(h)

def prologue():
    if STAMP: A(f"s_memrealtime s[72:73]\nv_mov_b32 v{VST}, -1")
    stamp("start")
    A(f"s_load_dwordx2 s[{RX}:{RX+1}], s[0:1], 0\ns_load_dwordx2 s[{RWQ}:{RWQ+1}], s[0:1], 8")
    A("s_cmp_ge_u32 s2, 256\ns_cbranch_scc1 K_END")
    A(f"v_and_b32 v1, 63, v0\nv_lshrrev_b32 v3, 6, v0\nv_lshlrev_b32 v{VL}, 4, v1\nv_readfirstlane_b32 s{sW8}, v3\nv_and_b32 v0, 255, v0")
    for r, sz in ((RX, S*D*2), (RWQ, D*3*D*2)): A(f"s_mov_b32 s{r+2}, {sz}\ns_mov_b32 s{r+3}, 0x20000")
    A(f"s_and_b32 s{SW}, s{sW8}, 3\ns_lshr_b32 s{sJ}, s2, 3\ns_bfe_u32 s{sT}, s2, 0x20001\ns_and_b32 s{sU}, s2, 1")
    A(f"s_lshl_b32 s{sI}, s{sT}, 2\ns_and_b32 s{sV}, s{sJ}, 3\ns_add_u32 s{sI}, s{sI}, s{sV}")
    A(f"s_lshr_b32 s{sSEC}, s{sJ}, 3\ns_bfe_u32 s{sHQ}, s{sJ}, 0x10002\ns_lshl_b32 s{sV}, s{sU}, 1\ns_add_u32 s{sHQ}, s{sHQ}, s{sV}")
    A(f"s_cmp_ge_u32 s{sJ}, 24\ns_cbranch_scc1 P1_HELP\ns_cmp_lt_u32 s{sW8}, 4\ns_cbranch_scc1 A_P1")

def prologue2():
    for r, off in ((RWS, 80), (RDBG, 72), (RWO, 16), (RW1, 32), (RB1, 40), (RW2, 48), (RB2, 56), (ROUT, 64)):
        A(f"s_load_dwordx2 s[{r}:{r+1}], s[0:1], {off}")
    A(f"s_memrealtime s[{sTAG}:{sTAG+1}]")
    for r, sz in ((RWS, WS_SIZE), (RDBG, 256), (RWO, D*D*2), (RW1, S*F*2), (RB1, F*2), (RW2, S*F*2), (RB2, S*2), (ROUT, S*D*2)):
        A(f"s_mov_b32 s{r+2}, {sz}\ns_mov_b32 s{r+3}, 0x20000")
    A(f"s_mov_b32 s{sHI}, 0\ns_mov_b32 s{sHI+1}, -1\ns_mov_b32 s{sONES}, 0x3f803f80\ns_mov_b32 s{sRETRY}, 0")
    A(f"s_mul_i32 s{sRBW}, s{SW}, 12288\ns_add_u32 s{sRBW}, s{sRBW}, {RBUF}\ns_mul_i32 s{sW2W}, s{SW}, 28672")

def roles(touch=True):
    A(f"s_bfe_u32 s{sT}, s2, 0x20001\ns_and_b32 s{sU}, s2, 1")
    pass
    A(f"s_sub_u32 s{sV}, 25, s{sU}\ns_cmp_lt_u32 s{sJ}, s{sV}\ns_cselect_b32 s{sACT4}, 1, 0\ns_cselect_b32 s{sV}, s{sJ}, 0")
    A(f"s_mul_i32 s{sFT}, s{sU}, 25\ns_add_u32 s{sV}, s{sV}, s{sFT}\ns_mul_i32 s{sDT4}, s{sV}, 9363\ns_lshr_b32 s{sDT4}, s{sDT4}, 16")
    A(f"s_mul_i32 s{sFT}, s{sDT4}, 7\ns_sub_u32 s{sV}, s{sV}, s{sFT}\ns_mul_i32 s{sFT}, s{sT}, 7\ns_add_u32 s{sFT}, s{sV}, s{sFT}")
    A(f"s_cmp_lt_u32 s{sJ}, 28\ns_cselect_b32 s{sV}, s{sJ}, 0\ns_mul_i32 s{sST}, s{sU}, 28\ns_add_u32 s{sV}, s{sV}, s{sST}")
    A(f"s_lshr_b32 s{sDT5}, s{sV}, 3\ns_and_b32 s{sV}, s{sV}, 7\ns_lshl_b32 s{sST}, s{sT}, 3\ns_add_u32 s{sST}, s{sST}, s{sV}")
    A(f"s_lshl_b32 s{sT}, s{sHQ}, 2\ns_add_u32 s{sT}, s{sT}, s{sSEC}\ns_lshl_b32 s{sT}, s{sT}, 4\ns_add_u32 s{sT}, s{sT}, s{sI}\ns_lshl_b32 s{sT}, s{sT}, 7\ns_add_u32 s{sF[0]}, s{sT}, {F1}")
    A(f"s_and_b32 s{sT}, s2, 7\ns_lshl_b32 s{sT}, s{sT}, 1\ns_and_b32 s{sH}, s{sJ}, 1\ns_add_u32 s{sH}, s{sH}, s{sT}\ns_lshr_b32 s{sI}, s{sJ}, 1")
    A(f"s_lshr_b32 s{sR3}, s{sJ}, 4\ns_add_u32 s{sR3}, s{sR3}, s{sT}\ns_lshl_b32 s{sR3}, s{sR3}, 2\ns_add_u32 s{sR3}, s{sR3}, s{SW}\ns_and_b32 s{sC3}, s{sJ}, 15")
    A(f"s_lshl_b32 s{sT}, s2, 3\ns_add_u32 s{sF[1]}, s{sT}, {F2}")
    if not touch: return
    A(f"s_lshl_b32 s{sV}, s{sR3}, 4\ns_add_u32 s{sV}, s{sV}, s{sC3}\ns_lshl_b32 s{sV}, s{sV}, 9\ns_add_u32 s{sV}, s{sV}, {WS_ST}\nv_lshl_add_u32 v4, v1, 7, s{sV}")
    A(f"v_writelane_b32 v4, s{sF[0]}, 4\nv_writelane_b32 v4, s{sF[1]}, 5\ns_mov_b64 exec, 0x3f\nbuffer_load_dword v12, v4, {R(RWS)}, 0 offen sc1\ns_mov_b64 exec, -1")
    vm.issue("touch")

def p1_helper():
    TAGV = 14
    sHX = sA
    A("P1_HELP:")
    vm.q = []
    prologue2()
    A(f"s_and_b32 s{sHX}, s2, 7\ns_lshl_b32 s{sHX}, s{sHX}, 3\ns_add_u32 s{sHX}, s{sHX}, s{sJ}\ns_sub_u32 s{sHX}, s{sHX}, 24")
    A(f"v_lshrrev_b32 v4, 3, v1\nv_and_b32 v5, 7, v1\nv_lshlrev_b32 v5, 4, v5\nv_mov_b32 v7, 0")
    A(f"s_cmp_ge_u32 s{sW8}, 4\ns_cbranch_scc1 H_CS")
    A(f"v_mul_u32_u24 v6, 896, v4\nv_add_u32 v6, v6, v5\ns_lshl_b32 s{sB}, s{sHX}, 2\ns_add_u32 s{sB}, s{sB}, s{SW}\ns_mul_i32 s{sT}, s{sB}, {8*896}\ns_waitcnt lgkmcnt(0)")
    for m in range(7): A(f"buffer_load_dwordx4 {v(16+4*m,4)}, v6, {R(RX)}, s{sT} offen offset:{m*128}")
    A("v_mov_b32 v80, 0\nv_mov_b32 v82, 0\nv_mov_b32 v84, 0\nv_mov_b32 v86, 0\ns_waitcnt vmcnt(0)")
    A(f"buffer_load_dwordx2 {v(TAGV,2)}, v7, {R(RDBG)}, 0 offen sc1")
    for k in range(28): A(f"v_dot2c_f32_bf16 v{80+4*(k&1)}, s{sONES}, v{16+k}\nv_dot2c_f32_bf16 v{82+4*(k&1)}, v{16+k}, v{16+k}")
    A("v_add_f32 v80, v80, v84\nv_add_f32 v82, v82, v86")
    for m in ("quad_perm:[1,0,3,2]", "quad_perm:[2,3,0,1]", "row_half_mirror"):
        for r in (80, 82): A(f"v_add_f32_dpp v{r}, v{r}, v{r} {m} row_mask:0xf bank_mask:0xf")
    A(f"v_mul_f32 v80, {fl(1.0/D)}, v80\nv_mul_f32 v82, {fl(1.0/D)}, v82\nv_fma_f32 v82, -v80, v80, v82\nv_max_f32 v82, 0, v82\nv_add_f32 v82, {fl(EPS)}, v82\nv_rsq_f32 v82, v82")
    A(f"v_lshlrev_b32 v6, 4, v4\nv_mul_f32 v80, v80, v82\nv_sub_f32 v80, 0, v80\ns_waitcnt vmcnt(0)")
    get_tag(TAGV, "H_T1")
    A(f"v_mov_b32 v81, s{sTAG}\nv_mov_b32 v83, s{sTAG+1}\ns_lshl_b32 s{sT}, s{sB}, 7\ns_add_u32 s{sT}, s{sT}, {WS_RST}")
    set_exec(0x0101010101010101)
    A(f"buffer_store_dwordx4 v[80:83], v6, {R(RWS)}, s{sT} offen sc1\ns_mov_b64 exec, -1")
    stamp("h_pub"); stamp_flush()
    A("s_barrier")
    roles()
    A("s_branch P2_START")
    st["pend"] = [0] if STAMP else []
    A(f"H_CS:\ns_lshl_b32 s{sB}, s{SW}, 6\ns_add_u32 s{sB}, s{sB}, s{sHX}\ns_cmp_ge_u32 s{sB}, 84\ns_cbranch_scc1 H_PF")
    A(f"v_mul_u32_u24 v6, 2688, v4\nv_add_u32 v6, v6, v5\ns_and_b32 s{sC}, s{sB}, 3\ns_lshr_b32 s{sD_}, s{sB}, 2\ns_mul_i32 s{sT}, s{sC}, {112*2688}\ns_lshl_b32 s{sU}, s{sD_}, 7\ns_add_u32 s{sT}, s{sT}, s{sU}\ns_waitcnt lgkmcnt(0)")
    for m in range(14): A(f"buffer_load_dwordx4 {v(16+4*m,4)}, v6, {R(RWQ)}, s{sT} offen\ns_add_u32 s{sT}, s{sT}, {8*2688}")
    A(f"s_mov_b32 s{sT}, 0x3f80\ns_mov_b32 s{sU}, 0x3f800000")
    for r in range(80, 88): A(f"v_mov_b32 v{r}, 0")
    for m in range(14):
        if m % 4 == 0: A(f"s_waitcnt vmcnt({max(0, 14 - m - 4)})")
        if m == 12: A(f"buffer_load_dwordx2 {v(TAGV,2)}, v7, {R(RDBG)}, 0 offen sc1")
        for k in range(4): A(f"v_dot2c_f32_bf16 v{80+2*k}, s{sT}, v{16+4*m+k}\nv_dot2c_f32_bf16 v{81+2*k}, s{sU}, v{16+4*m+k}")
    for r in range(80, 88): A(f"v_add_f32_dpp v{r}, v{r}, v{r} row_ror:8 row_mask:0xf bank_mask:0xf")
    for op in ("v_permlane16_swap_b32", "v_permlane32_swap_b32"):
        for r in range(80, 88): A(f"v_mov_b32 v{r+8}, v{r}")
        for r in range(80, 88): A(f"{op} v{r}, v{r+8}")
        for r in range(80, 88): A(f"v_add_f32 v{r}, v{r}, v{r+8}")
    A("v_mov_b32 v88, v80\nv_mov_b32 v90, v81")
    for pi in range(1, 4): A(f"v_cmp_eq_u32 vcc, {pi}, v4\nv_cndmask_b32 v88, v88, v{80+2*pi}, vcc\nv_cndmask_b32 v90, v90, v{81+2*pi}, vcc")
    A(f"v_lshlrev_b32 v6, 2, v5\nv_lshl_add_u32 v6, v4, 4, v6\ns_waitcnt vmcnt(0)")
    get_tag(TAGV, "H_T2")
    A(f"v_mov_b32 v89, s{sTAG}\nv_mov_b32 v91, s{sTAG+1}\ns_mul_i32 s{sT}, s{sC}, 10752\ns_lshl_b32 s{sU}, s{sD_}, 9\ns_add_u32 s{sT}, s{sT}, s{sU}\ns_add_u32 s{sT}, s{sT}, {WS_CSG}")
    set_exec(0xFFFFFFFF)
    A(f"buffer_store_dwordx4 v[88:91], v6, {R(RWS)}, s{sT} offen sc1\ns_mov_b64 exec, -1\ns_barrier\ns_branch B_P2")
    A(f"H_PF:\ns_cmp_lt_u32 s{SW}, 2\ns_cbranch_scc1 H_W")
    sQ = sB
    A(f"s_sub_u32 s{sQ}, s{sJ}, 24\ns_lshl_b32 s{sQ}, s{sQ}, 1\ns_add_u32 s{sQ}, s{sQ}, s{SW}\ns_sub_u32 s{sQ}, s{sQ}, 2")
    A(f"s_getpc_b64 s[{sC}:{sC+1}]\nCODE_REF:\ns_lshl_b32 s{sT}, s{sQ}, 12\nv_lshl_add_u32 v6, v1, 7, s{sT}\nv_min_u32 v6, CODE_END-CODE_REF-4, v6")
    A(f"v_mov_b32 v9, s{sC+1}\nv_add_co_u32 v8, vcc, s{sC}, v6\nv_addc_co_u32 v9, vcc, 0, v9, vcc")
    set_exec(0xFFFFFFFF)
    A("global_load_dword v25, v[8:9], off\ns_mov_b64 exec, -1\ns_waitcnt lgkmcnt(0)\ns_barrier")
    A("v_lshlrev_b32 v6, 7, v1")
    A(f"s_and_b32 s{sT}, s2, 7\ns_lshl_b32 s{sT}, s{sT}, 4\ns_add_u32 s{sT}, s{sT}, s{sQ}\ns_mul_i32 s{sT}, s{sT}, {7*8192}")
    for k in range(env("NP1", 0)): A(f"s_add_u32 s{sU}, s{sT}, {k*8192}\nbuffer_load_dword v{16+k}, v6, {R(RW1)}, s{sU} offen")
    for k in range(env("NP2", 0)): A(f"s_add_u32 s{sU}, s{sT}, {k*8192}\nbuffer_load_dword v{26+k}, v6, {R(RW2)}, s{sU} offen")
    if env("WOT", 0) == 1:
        A(f"s_mul_i32 s{sT}, s{sQ}, {196*128}")
        set_exec((1 << 49) - 1)
        for k in range(4): A(f"s_add_u32 s{sU}, s{sT}, {k*49*128}\nbuffer_load_dword v24, v6, {R(RWO)}, s{sU} offen")
        A("s_mov_b64 exec, -1")
    if STAMP:
        A("s_waitcnt vmcnt(0)"); stamp("h_touch"); stamp_flush(); A(f"v_mov_b32 v15, v{VST}\ns_branch B_P2S")
    A("s_branch B_P2\nH_W:\ns_waitcnt lgkmcnt(0)\ns_barrier\ns_branch B_P2")

XA = LDS_TOTAL - 65536
XBUF = [8192, 0, 8192, 4096]
def p1_common():
    sWO, sM = sA, sC
    A(f"s_mul_i32 s{sWO}, s{sSEC}, 896\ns_mul_i32 s{sT}, s{sHQ}, 224\ns_add_u32 s{sWO}, s{sWO}, s{sT}")
    A(f"s_lshl_b32 s{sE}, s{sI}, 2\ns_add_u32 s{sE}, s{sE}, s{SW}\ns_lshl_b32 s{sM}, s{SW}, 14\ns_add_u32 s{sM}, s{sM}, {XA}")

def p1():
    XF, ACC, WF = 16, 128, 192
    VXR = list(range(224, 232)); VXS = list(range(232, 236)); VWR = [236, 237]; TAGV = 238
    sWO, sM = sA, sC
    A("A_P1:")
    prologue2()
    p1_common()
    A(f"v_and_b32 v4, 31, v1\nv_lshrrev_b32 v5, 5, v1\nv_and_b32 v6, 15, v1\nv_xor_b32 v6, v6, v5\nv_lshlrev_b32 v6, 4, v6\nv_lshl_add_u32 v6, v4, 8, v6\nv_add_u32 v6, s{sM}, v6")
    for k in range(8): A(f"v_xor_b32 v{VXR[k]}, {k<<5}, v6")
    A(f"v_bfe_u32 v6, v1, 1, 3\nv_xor_b32 v6, v6, v5\nv_lshlrev_b32 v6, 4, v6\nv_lshl_add_u32 v6, v4, 7, v6\nv_add_u32 v6, s{sM}, v6")
    for k in range(4): A(f"v_xor_b32 v{VXS[k]}, {k<<5}, v6")
    tr_lane_addr(VWR[0], 4, 224, 8, 2); A(f"v_add_u32 v{VWR[1]}, {14*3584}, v{VWR[0]}")
    A("s_waitcnt lgkmcnt(0)")
    stamp("karg")
    A(f"s_or_b32 s{sT}, s2, s{SW}\ns_cbranch_scc1 P1_NOTAG")
    A(f"s_bitset1_b32 s{sTAG+1}, 31\nv_mov_b32 v8, s{sTAG}\nv_mov_b32 v9, s{sTAG+1}\nv_mov_b32 v10, 0\nv_mov_b32 v11, 0\ns_mov_b64 exec, 1\nbuffer_atomic_cmpswap_x2 v[8:11], v10, {R(RDBG)}, 0 offen sc1\ns_mov_b64 exec, -1\nP1_NOTAG:")
    roles()
    stamp_flush()
    A(f"s_cmp_eq_u32 s{sSEC}, 2\ns_cbranch_scc1 P1_V")
    for isv in (0, 1):
        vm.q = []; lg.q = []
        if isv: A("P1_V:")
        def xread(p):
            for k in range(8 if p < 3 else 4):
                A(f"ds_read_b128 {v(XF + (8*p+k)*4, 4)}, v{(VXR if p < 3 else VXS)[k]} offset:{XBUF[p]}"); lg.issue(f"x{p}")
        def wread(ks, hds=range(4)):
            for hd in hds:
                for half in range(2):
                    A(f"ds_read_b64_tr_b16 {v(WF + (ks&1)*16 + hd*4 + half*2, 2)}, v{VWR[ks//14]} offset:{(ks%14)*3584 + half*224 + hd*56}"); lg.issue(f"w{ks}_{hd}")
        def gload():
            A(f"buffer_load_dwordx4 v[16:19], v4, {R(RWS)}, s{sU} offen sc1")
            for kq in range(4): A(f"buffer_load_dwordx4 {v(20+4*kq,4)}, v{5+kq}, {R(RWS)}, s{sV} offen sc1")
        for p in range(4):
            k0, k1 = 8*p, min(8*p + 8, 28)
            if p == 3:
                A(f"v_and_b32 v4, 31, v1\nv_lshlrev_b32 v4, 4, v4\ns_lshl_b32 s{sU}, s{sE}, 9\ns_add_u32 s{sU}, s{sU}, {WS_RST}\ns_lshl_b32 s{sV}, s{sWO}, 2\ns_add_u32 s{sV}, s{sV}, {WS_CSG}")
                A(f"v_min_u32 v5, 55, v1\nv_lshlrev_b32 v5, 4, v5\nv_add_u32 v6, 10752, v5\nv_add_u32 v7, 21504, v5\nv_add_u32 v8, 32256, v5\nv_mov_b32 v9, 0")
            A("s_barrier"); stamp(f"g{p}")
            xread(p); wread(k0, [0, 1, 2])
            if p == 3:
                A(f"buffer_load_dwordx2 {v(TAGV,2)}, v9, {R(RDBG)}, 0 offen sc1"); gload()
            lg.wait(f"x{p}")
            if p < 2: A("s_barrier")
            wread(k0, [3])
            for ks in range(k0, k1):
                x = v(XF + ks*4, 4)
                for hd in range(4):
                    lg.wait(f"w{ks}_{hd}")
                    w_ = v(WF + (ks&1)*16 + hd*4, 4); acc = v(ACC + 16*hd, 16)
                    A(f"{MFMA} {acc}, {x if isv else w_}, {w_ if isv else x}, {'0' if ks == 0 else acc}")
                    if ks + 1 < k1: wread(ks + 1, [hd])
        stamp("mfma_done")
        A("s_waitcnt vmcnt(5)")
        get_tag(TAGV, f"P1_T{isv}")
        L = A.label("P1_G")
        A(f"s_waitcnt vmcnt(0)")
        tagcheck([16, 20, 24, 28, 32], 9, 10, 11)
        A(f"s_cbranch_vccz {L}_x\nv_and_b32 v4, 31, v1\nv_lshlrev_b32 v4, 4, v4\ns_mov_b32 s{sTO}, 0x40000\n{L}:")
        gload()
        A(f"s_sub_u32 s{sTO}, s{sTO}, 1\ns_waitcnt vmcnt(0)\ns_cbranch_scc1 {L}_x")
        tagcheck([16, 20, 24, 28, 32], 9, 10, 11)
        A(f"s_cbranch_vccnz {L}\n{L}_x:")
        stamp("gran")
        A("v_add_f32 v20, v20, v24\nv_add_f32 v28, v28, v32\nv_add_f32 v22, v22, v26\nv_add_f32 v30, v30, v34\nv_add_f32 v20, v20, v28\nv_add_f32 v21, v22, v30")
        A(f"s_add_u32 s{sT}, s{sM}, 8192\nv_lshl_add_u32 v4, v1, 3, s{sT}\nds_write_b64 v4, v[20:21]\nv_lshrrev_b32 v5, 5, v1\nv_lshl_add_u32 v5, v5, 4, s{sT}")
        PK = 96
        A(f"s_lshl_b32 s{sU}, s{sHQ}, 8\ns_add_u32 s{sU}, s{sU}, s{sE}")
        if not isv:
            for hd in range(4):
                for g in range(4): A(f"ds_read_b128 {v(32+16*hd+4*g,4)}, v5 offset:{hd*112 + g*32}"); lg.issue(f"c{hd}")
            QS = DH ** -0.5 * math.log2(math.e)
            A(f"s_cmp_eq_u32 s{sSEC}, 0\ns_cselect_b32 s{sV}, {fl(QS)}, 1.0\ns_cselect_b32 s{sA}, 0, s{sONES}\ns_cselect_b32 s{sB}, 0, 0x3f80\ns_cselect_b32 s{sC}, {WS_Q}, {WS_KV}")
            A(f"s_add_u32 s{sD_}, s{sSEC}, 11\ns_lshl_b32 s{sU}, s{sU}, s{sD_}\ns_add_u32 s{sU}, s{sU}, s{sC}\ns_lshl_b32 s{sD_}, 64, s{sD_}")
            A(f"v_mul_f32 v16, s{sV}, v16\nv_mul_f32 v18, s{sV}, v18\nv_mov_b32 v12, s{sA}\nv_mov_b32 v13, s{sB}")
            for hd in range(4):
                lg.wait(f"c{hd}")
                c, ac = 32+16*hd, ACC+16*hd
                for r in range(0, 16, 2): A(f"v_pk_mul_f32 {v(c+r,2)}, {v(c+r,2)}, v[16:17] op_sel_hi:[1,0]")
                for r in range(0, 16, 2): A(f"v_pk_fma_f32 {v(ac+r,2)}, {v(ac+r,2)}, v[18:19], {v(c+r,2)} op_sel_hi:[1,0,1]")
                for r in range(8): A(f"v_cvt_pk_bf16_f32 v{PK+8*hd+r}, v{ac+2*r}, v{ac+2*r+1}")
                A(f"v_cndmask_b32 v{PK+8*hd+6}, v{PK+8*hd+6}, v12, s[{sHI}:{sHI+1}]\nv_cndmask_b32 v{PK+8*hd+7}, v{PK+8*hd+7}, v13, s[{sHI}:{sHI+1}]")
                for f in range(2): A(f"v_and_b32 v{PK+8*hd+4*f+3}, 0xfffefffe, v{PK+8*hd+4*f+3}")
                for f in range(2): A(f"buffer_store_dwordx4 {v(PK+8*hd+4*f,4)}, v{VL}, {R(RWS)}, s{sU} offen offset:{f*1024} sc1")
                A(f"s_add_u32 s{sU}, s{sU}, s{sD_}")
        else:
            A(f"v_cndmask_b32 v6, v18, v16, s[{sHI}:{sHI+1}]\nv_lshl_add_u32 v4, v1, 2, s{sT}\nds_write_b32 v4, v6 offset:512")
            A(f"v_and_b32 v6, 31, v1\nv_lshl_add_u32 v4, v6, 2, s{sT}")
            for g in range(4): A(f"ds_read_b128 {v(32+4*g,4)}, v5 offset:{512 + g*32}\nds_read_b128 {v(48+4*g,4)}, v5 offset:{640 + g*32}")
            for hd in range(4): A(f"ds_read_b32 v{24+2*hd}, v4 offset:{hd*112}")
            A(f"s_lshl_b32 s{sU}, s{sU}, 12\ns_add_u32 s{sU}, s{sU}, {WS_KV + 2048}")
            A(f"v_cmp_eq_u32 vcc, 28, v6\nv_mov_b32 v13, s{sONES}\nv_cndmask_b32 v12, 0, v13, vcc\nv_mov_b32 v13, v12")
            for r in range(0, 16, 2): A(f"v_pk_mov_b32 {v(PK+r,2)}, v[12:13], v[12:13]")
            A(f"s_mov_b32 s{sA}, 0x0fffffff\ns_mov_b32 s{sA+1}, 0x0fffffff\ns_waitcnt lgkmcnt(0)")
            for hd in range(4):
                ac = ACC+16*hd; pk = PK + 8*(hd & 1)
                for r in range(0, 16, 2): A(f"v_pk_mul_f32 {v(64+r,2)}, {v(48+r,2)}, {v(24+2*hd,2)} op_sel_hi:[1,0]")
                for r in range(0, 16, 2): A(f"v_pk_fma_f32 {v(ac+r,2)}, {v(ac+r,2)}, {v(32+r,2)}, {v(64+r,2)}")
                A(f"s_mov_b64 exec, s[{sA}:{sA+1}]")
                for r in range(8): A(f"v_cvt_pk_bf16_f32 v{pk+r}, v{ac+2*r}, v{ac+2*r+1}")
                A(f"v_and_b32 v{pk+3}, -2, v{pk+3}\nv_and_b32 v{pk+7}, -2, v{pk+7}\ns_mov_b64 exec, -1")
                for f in range(2): A(f"buffer_store_dwordx4 {v(pk+4*f,4)}, v{VL}, {R(RWS)}, s{sU} offen offset:{f*1024} sc1")
                A(f"s_add_u32 s{sU}, s{sU}, {64*4096}")
        stamp("kvst"); stamp_flush()
        if not isv: A("s_branch P1_DONE")
    A("P1_DONE:")

def tilemax(sreg, T0, T1):
    A(f"v_max3_f32 v{T0}, v{sreg}, v{sreg+1}, v{sreg+2}\nv_max3_f32 v{T1}, v{sreg+3}, v{sreg+4}, v{sreg+5}")
    A(f"v_max3_f32 v{T0}, v{T0}, v{sreg+6}, v{sreg+7}\nv_max3_f32 v{T1}, v{T1}, v{sreg+8}, v{sreg+9}")
    A(f"v_max3_f32 v{T0}, v{T0}, v{sreg+10}, v{sreg+11}\nv_max3_f32 v{T1}, v{T1}, v{sreg+12}, v{sreg+13}")
    A(f"v_max3_f32 v{T0}, v{T0}, v{sreg+14}, v{sreg+15}")
def set_qpad(q, m, T0, T1, T2):
    A(f"v_sub_f32 v{T0}, 0, v{m}\nv_and_b32 v{T1}, 0xffff0000, v{T0}\nv_sub_f32 v{T0}, v{T0}, v{T1}")
    A(f"v_and_b32 v{T2}, 0xffff0000, v{T0}\nv_sub_f32 v{T0}, v{T0}, v{T2}\nv_lshrrev_b32 v{T0}, 16, v{T0}")
    A(f"v_lshrrev_b32 v{T1}, 16, v{T1}\nv_or_b32 v{T1}, v{T1}, v{T2}")
    A(f"v_cndmask_b32 v{q+6}, v{q+6}, v{T1}, s[{sHI}:{sHI+1}]\nv_cndmask_b32 v{q+7}, v{q+7}, v{T0}, s[{sHI}:{sHI+1}]")

XR, IR3 = 224, 232
VRD, VFL, VKV, VONE, VRB, VWO = [240, 241], 242, 243, 244, [246, 247], 248
VRW = [249, 250, 251, 252]
def addr_setup():
    tr_lane_addr(4, 5, 128, 4)
    A(f"v_bfe_u32 v5, v1, 3, 1\ns_lshr_b32 s{sT}, s{SW}, 1\nv_xor_b32 v5, s{sT}, v5")
    A(f"v_lshl_add_u32 v6, v5, 6, v4\nv_xor_b32 v5, 1, v5\nv_lshl_add_u32 v7, v5, 6, v4")
    A(f"v_add_u32 v{VRD[0]}, s{sW2W}, v6\nv_add_u32 v{VRD[1]}, s{sW2W}, v7\nv_add_u32 v{VRB[0]}, s{sRBW}, v6\nv_add_u32 v{VRB[1]}, s{sRBW}, v7")
    A(f"v_lshlrev_b32 v{VFL}, 7, v1\nv_mov_b32 v{VONE}, 0x3f80\nv_mov_b32 v{VONE+1}, 1.0")
    A(f"s_lshl_b32 s{sT}, s{sH}, 2\ns_add_u32 s{sT}, s{sT}, s{SW}\ns_lshl_b32 s{sT}, s{sT}, 16\ns_add_u32 s{sT}, s{sT}, {WS_KV}\nv_add_u32 v{VKV}, s{sT}, v{VL}")
    tr_lane_addr(VWO, 4, 64, 4); A(f"v_add_u32 v{VWO}, {RBUF}, v{VWO}\nv_add_u32 v{VRW[0]}, s{sRBW}, v{VL}")
    for t in range(1, 4):
        A(f"s_add_u32 s{sT}, s{SW}, {t}\ns_and_b32 s{sT}, s{sT}, 3\ns_mul_i32 s{sT}, s{sT}, 12288\ns_add_u32 s{sT}, s{sT}, {RBUF}\nv_add_u32 v{VRW[t]}, s{sT}, v{VL}")
    A("v_and_b32 v4, 31, v1\nv_lshrrev_b32 v5, 5, v1\nv_lshlrev_b32 v6, 3, v5\nv_sub_u32 v6, v4, v6")
    for p in range(2):
        for r in range(4):
            A(f"v_cmp_eq_u32 vcc, {16*p+2*r}, v6\nv_cmp_eq_u32 s[{sU}:{sU+1}], {16*p+2*r+1}, v6\nv_cndmask_b32 v{IR3+4*p+r}, 0, v{VONE}, vcc\nv_cndmask_b32 v{IR3+4*p+r}, v{IR3+4*p+r}, v{VONE+1}, s[{sU}:{sU+1}]")
    A("v_mul_u32_u24 v13, 896, v4\nv_lshl_add_u32 v13, v5, 4, v13")

def p2():
    Q, O, SS, PP, KV = 16, 48, [112, 128], [144, 152], 160
    M = [112, 113, 114, 115]; K0 = 120
    T0, T1, T2, T3 = 4, 5, 6, 7
    sKN = sB
    addr_setup()
    vm.wait_all(); stamp("kvdrain")
    A(f"s_barrier\ns_cmp_lg_u32 s{SW}, 0\ns_cbranch_scc1 P2_NOF")
    flag_store(sF[0]); flag_store(sF[1]); A("P2_NOF:"); stamp_flush()
    A("s_branch P2_GO\nP2_START:")
    addr_setup()
    A("P2_GO:")
    A(f"s_mul_i32 s{sT}, s{sR3}, {32*896}\ns_lshl_b32 s{sU}, s{sC3}, 6\ns_add_u32 s{sT}, s{sT}, s{sU}\ns_lshl_b32 s{sV}, s{sI}, 2\ns_add_u32 s{sV}, s{sV}, s{SW}\ns_lshl_b32 s{sU}, s{sH}, 6")
    for p in range(2): A(f"buffer_load_dwordx4 {v(XR+4*p,4)}, v13, {R(RX)}, s{sT} offen offset:{32*p}")
    A(f"s_add_u32 s{sU}, s{sU}, s{sV}\ns_lshl_b32 s{sU}, s{sU}, 11")
    A(f"s_lshr_b32 s{sT}, s{sH}, 2\ns_lshl_b32 s{sT}, s{sT}, 13\ns_add_u32 s{sT}, s{sT}, {F1}\ns_lshl_b32 s{sA}, s{SW}, 9\ns_add_u32 s{sA}, s{sA}, 2048\ns_lshl_b32 s{sC}, s{sI}, 7")
    A(f"v_and_b32 v10, 3, v1\nv_lshl_add_u32 v10, v10, 7, s{sA}\nv_bfe_u32 v11, v1, 2, 1\nv_lshl_add_u32 v10, v11, 11, v10\nv_writelane_b32 v10, s{sC}, 8")
    poll(10, sT, 9, 8); stamp("s1")
    def kvload(n):
        pre = [f"s_mov_b32 s{sKN}, {n*4096}"]
        return pre + [f"buffer_load_dwordx4 {v(KV+16*(n&3)+4*f,4)}, v{VKV}, {R(RWS)}, s{sKN} offen offset:{f*1024} sc1" for f in range(4)]
    def emit(lines, tag):
        for ln in lines:
            A(ln)
            if ln.startswith("buffer_"): vm.issue(tag)
    for f in range(2): A(f"buffer_load_dwordx4 {v(Q+4*f,4)}, v{VL}, {R(RWS)}, s{sU} offen offset:{f*1024} sc1"); vm.issue("q")
    emit(kvload(0), "kv0")
    A("s_waitcnt vmcnt(2)"); stamp("qk0")
    A(f"{MFMA} {v(O,16)}, {v(KV,4)}, {v(Q,4)}, 0\n{MFMA} {v(O,16)}, {v(KV+4,4)}, {v(Q+4,4)}, {v(O,16)}")
    emit(kvload(1), "kv1")
    A(f"ds_write_b128 v{VRW[0]}, {v(Q,4)}")
    tilemax(O, T0, T1)
    A(f"v_max_f32 v{T0}, v{T0}, v{T1}\nv_mov_b32 v{T1}, v{T0}\nv_permlane32_swap_b32 v{T0}, v{T1}\nv_max_f32 v{T0}, v{T0}, v{T1}")
    set_qpad(Q, T0, T1, T2, T3)
    A(f"ds_write_b128 v{VRW[0]}, {v(Q+4,4)} offset:1024\ns_waitcnt lgkmcnt(0)")
    emit(kvload(2), "kv2")
    A("s_barrier")
    for t in range(1, 4): A(f"ds_read_b128 {v(Q+8*t,4)}, v{VRW[t]}\nds_read_b128 {v(Q+8*t+4,4)}, v{VRW[t]} offset:1024")
    emit(kvload(3), "kv3")
    A("P2_MAIN:")
    def qk(idx, part):
        n, t = idx >> 2, idx & 3; sr = SS[idx & 1]; k = KV + 16*(n & 3)
        return f"{MFMA} {v(sr,16)}, {v(k+4*part,4)}, {v(Q+8*t+4*part,4)}, {'0' if part == 0 else v(sr,16)}"
    def pv(idx, part):
        n, t = idx >> 2, idx & 3; k = KV + 16*(n & 3) + 8; o = O + 16*t
        return f"{MFMA} {v(o,16)}, {v(k+4*part,4)}, {v(PP[idx&1]+4*part,4)}, {'0' if (n == 0 and part == 0) else v(o,16)}"
    NI = 64
    A(qk(0, 0)); A(qk(0, 1)); A("s_waitcnt lgkmcnt(0)")
    for idx in range(NI):
        n, t = idx >> 2, idx & 3
        if idx in (16, 32, 48): stamp(f"a{idx}")
        if idx == 1: vm.wait("kv0")
        if idx == env("CUTAT", 61): A(f"ds_write_b32 v{VRW[1]}, v{VONE} offset:3072")
        if t == 3 and n + 1 < 16: vm.wait(f"kv{n+1}")
        mf = [qk(idx+1, 0) if idx+1 < NI else None, pv(idx-1, 0) if idx > 0 else None,
              qk(idx+1, 1) if idx+1 < NI else None, pv(idx-1, 1) if idx > 0 else None]
        sr, p = SS[idx & 1], PP[idx & 1]
        for q in range(4):
            if mf[q]: A(mf[q])
            for j in range(4): A(f"v_exp_f32 v{sr+4*q+j}, v{sr+4*q+j}")
            if q > 0:
                for j in range(2): A(f"v_cvt_pk_bf16_f32 v{p+2*(q-1)+j}, v{sr+4*(q-1)+2*j}, v{sr+4*(q-1)+2*j+1}")
        if t == 0 and 1 <= n < 13: emit(kvload(n + 3), f"kv{n+3}")
        for j in range(2): A(f"v_cvt_pk_bf16_f32 v{p+6+j}, v{sr+12+2*j}, v{sr+12+2*j+1}")
    A(pv(NI-1, 0)); A(pv(NI-1, 1)); stamp("aend")
    for t in (1, 2):
        for g in range(3): A(f"ds_write_b128 v{VRW[t]}, {v(O+16*t+4*g,4)} offset:{(t-1)*4096 + g*1024}")
    A(f"s_mov_b32 s{sT}, {fl(2.0**30)}")
    A(f"v_cmp_nlt_f32 s[{sA}:{sA+1}], v{O+12}, s{sT}\nv_cmp_nlt_f32 s[{sC}:{sC+1}], v{O+28}, s{sT}\ns_or_b32 s{sU}, s{sA+1}, s{sC+1}")
    A(f"v_cmp_nlt_f32 s[{sA}:{sA+1}], v{O+44}, s{sT}\nv_cmp_nlt_f32 s[{sC}:{sC+1}], v{O+60}, s{sT}\ns_or_b32 s{sU}, s{sU}, s{sA+1}\ns_or_b32 s{sU}, s{sU}, s{sC+1}")
    A(f"s_cselect_b32 s{sU}, 1.0, 0\nv_mov_b32 v{T0}, s{sU}")
    for t in range(4): A(f"v_cndmask_b32 v{O+16*t+13}, v{O+16*t+13}, v{T0}, s[{sHI}:{sHI+1}]")
    for g in range(3): A(f"ds_write_b128 v{VRW[3]}, {v(O+48+4*g,4)} offset:{2*4096 + g*1024}")
    for t in range(1, 4): A(f"ds_write_b128 v{VRW[t]}, {v(O+16*t+12,4)} offset:{(t-1)*4096 + 3*1024}")
    A(f"s_lshl_b32 s{sD_}, s{sI}, 2\ns_add_u32 s{sD_}, s{sD_}, s{SW}\ns_lshl_b32 s{sV}, s{sH}, 6\ns_add_u32 s{sV}, s{sV}, s{sD_}\ns_lshl_b32 s{sV}, s{sV}, 11\ns_add_u32 s{sV}, s{sV}, {WS_O}")
    A("s_waitcnt lgkmcnt(0)\ns_barrier")
    for g in (3, 0, 1, 2):
        for t in range(1, 4): A(f"ds_read_b128 {v(O+16*t+4*g,4)}, v{VRW[0]} offset:{(t-1)*4096 + g*1024}")
    def red(g):
        for r in (4*g, 4*g+2):
            A(f"v_pk_add_f32 {v(O+r,2)}, {v(O+r,2)}, {v(O+16+r,2)}\nv_pk_add_f32 {v(O+32+r,2)}, {v(O+32+r,2)}, {v(O+48+r,2)}")
        for r in (4*g, 4*g+2): A(f"v_pk_add_f32 {v(O+r,2)}, {v(O+r,2)}, {v(O+32+r,2)}")
    A("s_waitcnt lgkmcnt(9)"); red(3)
    A(f"v_readlane_b32 s{sT}, v{O+13}, 32\nv_mov_b32 v{T0}, v{O+12}\nv_mov_b32 v{T2}, v{O+12}\nv_permlane32_swap_b32 v{T0}, v{T2}\nv_rcp_f32 v{T2}, v{T2}")
    A(f"s_cmp_lg_u32 s{sT}, s{sRETRY}\ns_cbranch_scc1 P2_FALL\nP2_FIN:")
    for k, g in enumerate((0, 1, 2)):
        A(f"s_waitcnt lgkmcnt({6 - 3*k})"); red(g)
    for r in range(0, 16, 2): A(f"v_pk_mul_f32 {v(O+r,2)}, {v(O+r,2)}, {v(T2,2)} op_sel_hi:[1,0]")
    for r in range(8): A(f"v_cvt_pk_bf16_f32 v{O+16+r}, v{O+2*r}, v{O+2*r+1}")
    A(f"v_cndmask_b32 v{O+22}, v{O+22}, 0, s[{sHI}:{sHI+1}]\nv_cndmask_b32 v{O+23}, v{O+23}, 0, s[{sHI}:{sHI+1}]")
    A(f"s_mov_b32 s{sT}, 0xfffeffff\nv_and_or_b32 v{O+19}, v{O+19}, s{sT}, 1\nv_and_or_b32 v{O+23}, v{O+23}, s{sT}, 1")
    for f in range(2): A(f"buffer_store_dwordx4 {v(O+16+4*f,4)}, v{VL}, {R(RWS)}, s{sV} offen offset:{f*1024} sc1")
    stamp("ost"); stamp_flush()
    A("s_barrier")
    def fallback():
        A(f"P2_FALL:\ns_cmp_lg_u32 s{sRETRY}, 0\ns_cbranch_scc1 P2_FIN")
        A(f"s_mov_b32 s{sRETRY}, -1\ns_waitcnt vmcnt(0) lgkmcnt(0)")
        for t in range(4):
            A(f"v_cndmask_b32 v{Q+8*t+6}, v{Q+8*t+6}, 0, s[{sHI}:{sHI+1}]\nv_cndmask_b32 v{Q+8*t+7}, v{Q+8*t+7}, 0, s[{sHI}:{sHI+1}]\nv_mov_b32 v{M[t]}, 0xff800000")
        A(f"s_mov_b32 s{sU}, 0\nP2_MAXLOOP:")
        for f in range(2): A(f"buffer_load_dwordx4 {v(K0+4*f,4)}, v{VKV}, {R(RWS)}, s{sU} offen offset:{f*1024} sc1")
        A("s_waitcnt vmcnt(0)")
        for t in range(4):
            A(f"{MFMA} {v(O+16*t,16)}, {v(K0,4)}, {v(Q+8*t,4)}, 0\n{MFMA} {v(O+16*t,16)}, {v(K0+4,4)}, {v(Q+8*t+4,4)}, {v(O+16*t,16)}")
        for t in range(4):
            tilemax(O+16*t, T0, T1); A(f"v_max3_f32 v{M[t]}, v{M[t]}, v{T0}, v{T1}")
        A(f"s_add_u32 s{sU}, s{sU}, 4096\ns_cmp_lt_u32 s{sU}, {16*4096}\ns_cbranch_scc1 P2_MAXLOOP")
        A(f"s_barrier\nv_and_b32 v{T3}, 31, v1\nv_lshlrev_b32 v{T3}, 4, v{T3}")
        for t in range(4):
            A(f"v_mov_b32 v{T2}, v{M[t]}\nv_permlane32_swap_b32 v{M[t]}, v{T2}\nv_max_f32 v{M[t]}, v{M[t]}, v{T2}")
            A(f"s_add_u32 s{sT}, s{SW}, {t}\ns_and_b32 s{sT}, s{sT}, 3\ns_lshl_b32 s{sT}, s{sT}, 9\ns_add_u32 s{sT}, s{sT}, {RBUF}\ns_lshl_b32 s{sU}, s{SW}, 2\ns_add_u32 s{sU}, s{sU}, s{sT}")
            A(f"v_add_u32 v{K0+t}, s{sT}, v{T3}\nv_add_u32 v{T2}, s{sU}, v{T3}\nds_write_b32 v{T2}, v{M[t]}")
        A("s_waitcnt lgkmcnt(0)\ns_barrier")
        for t in range(4): A(f"ds_read_b128 {v(O+4*t,4)}, v{K0+t}")
        for n in range(4):
            for ln in kvload(n): A(ln)
        A("s_waitcnt vmcnt(0) lgkmcnt(0)\ns_barrier")
        for t in range(4):
            A(f"v_max3_f32 v{M[t]}, v{O+4*t}, v{O+4*t+1}, v{O+4*t+2}\nv_max_f32 v{M[t]}, v{M[t]}, v{O+4*t+3}")
            set_qpad(Q+8*t, M[t], T0, T1, T2)
        A("s_branch P2_MAIN")
    return fallback

def p3():
    OFR, D1, D2, TF = 16, 144, 160, 176
    T0, T1, T2, T3 = 8, 9, 10, 11
    A(f"{MFMA} {v(D1,16)}, {v(XR,4)}, {v(IR3,4)}, 0\n{MFMA} {v(D2,16)}, {v(IR3,4)}, {v(XR,4)}, 0")
    A(f"{MFMA} {v(D1,16)}, {v(XR+4,4)}, {v(IR3+4,4)}, {v(D1,16)}\n{MFMA} {v(D2,16)}, {v(IR3+4,4)}, {v(XR+4,4)}, {v(D2,16)}")
    A(f"s_lshl_b32 s{sB}, s{sR3}, 11\ns_add_u32 s{sB}, s{sB}, {WS_O}\nv_add_u32 v{T2}, s{sB}, v{VL}\nv_add_u32 v{T3}, 0x20000, v{T2}\ns_and_b32 s{sA}, s{sC3}, 7\ns_lshl_b32 s{sA}, s{sA}, 18")
    A("s_barrier")
    A(f"s_cmp_lt_u32 s{sC3}, 14\ns_cbranch_scc1 P3_GO\ns_barrier\ns_branch P3_END\nP3_GO:")
    vm.q = []; lg.q = []
    so = Stream("SO", 8, lambda g: [(OFR+16*g+4*k, [T2, T3][k >> 1], (k & 1)*1024) for k in range(4)],
                lambda g: A(f"s_add_u32 s{sT}, s{sA}, {g << 18}\ns_and_b32 s{sT}, s{sT}, 0x1fffff"), T0, 1)
    NPRE = 3
    for m in range(NPRE): so.issue(m)
    def wread(ks):
        n, p = ks >> 1, ks & 1
        for half in range(2):
            A(f"ds_read_b64_tr_b16 {v(TF+4*(ks&3)+2*half,2)}, v{VWO} offset:{(n>>2)*12288 + (n&3)*2048 + (16*p+8*half)*64}"); lg.issue(f"w{ks}")
    wread(0); wread(1)
    so.check1(0); so.check2(0)
    for ks in range(32):
        lg.wait(f"w{ks}")
        if ks in (0, 16): stamp(f"p3_{ks}")
        o, wv = v(OFR+4*ks, 4), v(TF+4*(ks&3), 4)
        A(f"{MFMA} {v(D2,16)}, {wv}, {o}, {v(D2,16)}")
        if ks + 2 < 32: wread(ks + 2)
        A(f"{MFMA} {v(D1,16)}, {o}, {wv}, {v(D1,16)}")
        if ks % 4 == 0: so.issue(NPRE + ks//4)
        if ks % 4 == 2: so.check1(ks//4 + 1)
        if ks % 4 == 3: so.check2(ks//4 + 1)
    stamp("p3mm")
    G = 16
    A(f"s_lshl_b32 s{sB}, s{sR3}, 13\ns_add_u32 s{sB}, s{sB}, {WS_ST}\ns_lshl_b32 s{sT}, s{sC3}, 9\ns_add_u32 s{sT}, s{sT}, s{sB}")
    A(f"v_mov_b32 v{G+1}, s{sTAG}\nv_mov_b32 v{G+3}, s{sTAG+1}")
    A(f"v_pk_add_f32 v[20:21], {v(D2,2)}, {v(D2+2,2)}\nv_pk_mul_f32 v[22:23], {v(D2,2)}, {v(D2,2)}\nv_pk_fma_f32 v[22:23], {v(D2+2,2)}, {v(D2+2,2)}, v[22:23]")
    for r in range(4, 16, 2): A(f"v_pk_add_f32 v[20:21], v[20:21], {v(D2+r,2)}\nv_pk_fma_f32 v[22:23], {v(D2+r,2)}, {v(D2+r,2)}, v[22:23]")
    A(f"v_add_f32 v{G}, v20, v21\nv_add_f32 v{G+2}, v22, v23")
    A(f"v_mov_b32 v20, v{G}\nv_mov_b32 v22, v{G+2}\nv_permlane32_swap_b32 v{G}, v20\nv_permlane32_swap_b32 v{G+2}, v22\nv_add_f32 v{G}, v{G}, v20\nv_add_f32 v{G+2}, v{G+2}, v22")
    set_exec(0xFFFFFFFF)
    A(f"buffer_store_dwordx4 {v(G,4)}, v{VL}, {R(RWS)}, s{sT} offen sc1\ns_mov_b64 exec, -1")
    for r in range(8): A(f"v_cvt_pk_bf16_f32 v{24+r}, v{D2+2*r}, v{D2+2*r+1}")
    A(f"s_mul_i32 s{sT}, s{sR3}, 14\ns_add_u32 s{sT}, s{sT}, s{sC3}\ns_lshl_b32 s{sT}, s{sT}, 11\ns_add_u32 s{sT}, s{sT}, {WS_HF}")
    for p in range(2): A(f"buffer_store_dwordx4 {v(24+4*p,4)}, v{VL}, {R(RWS)}, s{sT} offen offset:{p*1024} sc1")
    A(f"v_and_b32 v{T0}, 31, v1\nv_lshlrev_b32 v{T0}, 4, v{T0}\nv_lshrrev_b32 v{T1}, 5, v1\nv_mul_u32_u24 v{T1}, 3584, v{T1}\nv_add_u32 v{T0}, v{T0}, v{T1}")
    A("s_barrier")
    if env("S3W", 1): A("s_waitcnt vmcnt(2)")
    stamp("s3pre")
    GR = 32
    A(f"s_mov_b32 s{sTO}, 0x40000\nP3_GL:")
    for k in range(7): A(f"buffer_load_dwordx4 {v(GR+4*k,4)}, v{T0}, {R(RWS)}, s{sB} offen offset:{k*512} sc1")
    A(f"s_sub_u32 s{sTO}, s{sTO}, 1\ns_waitcnt vmcnt(0)\ns_cbranch_scc1 P3_GX")
    tagcheck([GR+4*k for k in range(7)], T1, T2, T3)
    A("s_cbranch_vccnz P3_GL\nP3_GX:")
    vm.q = []
    stamp("s3")
    for k in range(1, 7): A(f"v_add_f32 v{GR}, v{GR}, v{GR+4*k}\nv_add_f32 v{GR+2}, v{GR+2}, v{GR+4*k+2}")
    m, q = GR, GR+2
    A(f"v_mov_b32 v{T0}, v{m}\nv_mov_b32 v{T1}, v{q}\nv_permlane32_swap_b32 v{m}, v{T0}\nv_permlane32_swap_b32 v{q}, v{T1}\nv_add_f32 v{m}, v{m}, v{T0}\nv_add_f32 v{q}, v{q}, v{T1}")
    A(f"v_mul_f32 v{m}, {fl(1.0/D)}, v{m}\nv_mul_f32 v{q}, {fl(1.0/D)}, v{q}\nv_fma_f32 v{q}, -v{m}, v{m}, v{q}\nv_max_f32 v{q}, 0, v{q}")
    A(f"v_add_f32 v{T0}, {fl(EPS)}, v{q}\nv_mul_f32 v{T0}, {fl(EPS)}, v{T0}\nv_add_f32 v{q}, v{q}, v{T0}\nv_rsq_f32 v{q}, v{q}\ns_add_u32 s{sT}, s{sRBW}, 8192\nv_mul_f32 v{m}, v{m}, v{q}")
    A(f"v_cndmask_b32 v{T0}, v{q}, v{m}, s[{sHI}:{sHI+1}]\nv_lshl_add_u32 v{T1}, v1, 2, s{sT}\nds_write_b32 v{T1}, v{T0}")
    A(f"v_lshrrev_b32 v{T2}, 5, v1\nv_lshl_add_u32 v{T2}, v{T2}, 4, s{sT}")
    for g in range(4): A(f"ds_read_b128 {v(64+4*g,4)}, v{T2} offset:{g*32}\nds_read_b128 {v(80+4*g,4)}, v{T2} offset:{128+g*32}")
    A(f"s_lshl_b32 s{sT}, s{sC3}, 17\ns_lshl_b32 s{sU}, s{sR3}, 11\ns_add_u32 s{sT}, s{sT}, s{sU}\ns_add_u32 s{sT}, s{sT}, {WS_HH}")
    for p in range(2):
        A(f"s_waitcnt lgkmcnt({4 - 4*p})")
        for r in range(8*p, 8*p+8, 2): A(f"v_pk_fma_f32 {v(D1+r,2)}, {v(D1+r,2)}, {v(64+r,2)}, {v(80+r,2)} neg_lo:[0,0,1] neg_hi:[0,0,1]")
        for r in range(4*p, 4*p+4): A(f"v_cvt_pk_bf16_f32 v{24+r}, v{D1+2*r}, v{D1+2*r+1}")
        A(f"v_or_b32 v{27+4*p}, 0x10000, v{27+4*p}")
        A(f"buffer_store_dwordx4 {v(24+4*p,4)}, v{VL}, {R(RWS)}, s{sT} offen offset:{p*1024} sc1")
    stamp("hhst"); stamp_flush()
    A("P3_END:")
    vm.q = []; lg.q = []

PRE, ACC = 128, 16
def preread():
    for n in range(14):
        for ti in range(2):
            for half in range(2):
                A(f"ds_read_b64_tr_b16 {v(PRE + 8*n + ti*4 + half*2, 2)}, v{VRD[ti]} offset:{n*2048 + half*1024}")

def p4():
    RING, NR = 80, 6
    T0, T1, BR, VH = 4, 5, 6, [14, 15]
    preread()
    A("s_waitcnt lgkmcnt(0)\ns_barrier")
    stamp("hhflag"); stamp_flush()
    A(f"s_cmp_lg_u32 s{sACT4}, 0\ns_cbranch_scc1 P4_GO\ns_barrier\ns_barrier\ns_barrier\ns_barrier\ns_branch P4_END\nP4_GO:")
    sFO, sRO = sA, sD_
    A(f"s_lshr_b32 s{sFO}, s{SW}, 1\ns_lshl_b32 s{sT}, s{sFT}, 1\ns_add_u32 s{sFO}, s{sFO}, s{sT}\ns_lshl_b32 s{sT}, s{sFO}, 6\nv_lshrrev_b32 v{T0}, 5, v1\nv_lshlrev_b32 v{T0}, 3, v{T0}")
    for g in range(4): A(f"buffer_load_dwordx2 {v(BR+2*g,2)}, v{T0}, {R(RB1)}, s{sT} offen offset:{g*16}")
    A(f"s_and_b32 s{sE}, s{SW}, 1\ns_lshl_b32 s{sT}, s{sDT4}, 1\ns_add_u32 s{sE}, s{sE}, s{sT}\ns_xor_b32 s{sU}, s{sE}, 1")
    A(f"s_lshl_b32 s{sT}, s{SW}, 15\ns_add_u32 s{sT}, s{sT}, {WS_HH}\ns_lshl_b32 s{sB}, s{sE}, 17\ns_add_u32 s{sB}, s{sB}, s{sT}\ns_lshl_b32 s{sC}, s{sU}, 17\ns_add_u32 s{sC}, s{sC}, s{sT}")
    A(f"v_add_u32 v{VH[0]}, s{sB}, v{VL}\nv_add_u32 v{VH[1]}, s{sC}, v{VL}")
    rot4(sRO); A(f"s_lshl_b32 s{sRO}, s{sRO}, 10")
    for sl in range(1, 4):
        A(f"s_xor_b32 s{sU}, s{SW}, {sl}\ns_mul_i32 s{sU}, s{sU}, 12288\ns_add_u32 s{sU}, s{sU}, {RBUF}\nv_add_u32 v{VRW[sl]}, s{sU}, v{VL}")
    dreg = lambda n, j: RING + (n % NR)*8 + 4*j
    dest = lambda n, j: v(dreg(n, j), 4)
    vm.q = []
    sh = Stream("SH", 16, lambda g: [(dreg(2*g+k, j), VH[j], k*1024) for k in range(2) for j in range(2)],
                lambda g: A(f"s_add_u32 s{sT}, s{sRO}, {g*2048}\ns_and_b32 s{sT}, s{sT}, 0x7fff"), T0, f"s{sV}")
    A(f"s_mov_b32 s{sV}, 0x10000")
    wreg = lambda n, ti: v(PRE + 8*(n if n < 14 else n & 3) + 4*ti, 4)
    def tread(n, ti):
        va, off = (VRB, (n-14)*2048) if n < 18 else (VRD, (n-18)*2048)
        for half in range(2): A(f"ds_read_b64_tr_b16 {v(PRE + 8*(n&3) + ti*4 + half*2, 2)}, v{va[ti]} offset:{off + half*1024}"); lg.issue(n)
    for g in range(NR//2): sh.issue(g)
    sh.check1(0); sh.check2(0)
    for n in range(32):
        if n == 0: stamp("p4first")
        if n in (8, 16, 24): stamp(f"p4_{n}")
        if n == 12: A("s_barrier")
        lg.wait(n)
        if n == 25: A("s_barrier")
        if n == 31: A("s_barrier")
        order = [(0, 0), (0, 1), (1, 0), (1, 1)] if n < 31 else [(0, 1), (1, 0), (1, 1), (0, 0)]
        for k, (ti, tj) in enumerate(order):
            acc = ACC + 16*(2*ti + tj)
            A(f"{MFMA} {v(acc,16)}, {wreg(n,ti)}, {dest(n,tj)}, {'0' if n == 0 else v(acc,16)}")
            if k < 2 and 14 <= n + 2 < 32: tread(n + 2, k)
            if n & 1 and k == 2: sh.check1(n//2 + 1)
        if n & 1: sh.check2(n//2 + 1); sh.issue(n//2 + NR//2)
    stamp("p4mm")
    for sl in (1, 2, 3):
        for g in range(4): A(f"ds_write_b128 v{VRW[sl]}, {v(ACC+16*sl+4*g,4)} offset:{(sl-1)*4096 + g*1024}")
    for j in range(8):
        A(f"v_lshlrev_b32 v80, 16, v{BR+j}\nv_and_b32 v81, 0xffff0000, v{BR+j}\nv_pk_add_f32 {v(ACC+2*j,2)}, {v(ACC+2*j,2)}, v[80:81]")
    c1 = -2.0*math.sqrt(2.0/math.pi)*math.log2(math.e); c2 = c1*0.044715
    A(f"v_mov_b32 v82, {fl(c2)}\nv_mov_b32 v84, {fl(c1)}")
    A(f"s_mul_i32 s{sT}, s{sE}, {112*1024}\ns_lshl_b32 s{sU}, s{sFO}, 11\ns_add_u32 s{sT}, s{sT}, s{sU}\ns_add_u32 s{sT}, s{sT}, {WS_G}")
    A("s_waitcnt lgkmcnt(0)\ns_barrier")
    for g in range(4):
        for sl in range(1, 4): A(f"ds_read_b128 {v(ACC+16*sl+4*g,4)}, v{VRW[0]} offset:{(sl-1)*4096 + g*1024}")
    for g in range(4):
        A(f"s_waitcnt lgkmcnt({9-3*g})")
        rs = (16+4*g, 18+4*g)
        for r in rs: A(f"v_pk_add_f32 {v(r,2)}, {v(r,2)}, {v(r+16,2)}\nv_pk_add_f32 {v(r+32,2)}, {v(r+32,2)}, {v(r+48,2)}")
        for r in rs: A(f"v_pk_add_f32 {v(r,2)}, {v(r,2)}, {v(r+32,2)}")
        for r in rs: A(f"v_pk_mul_f32 {v(r+16,2)}, {v(r,2)}, {v(r,2)}")
        for r in rs: A(f"v_pk_fma_f32 {v(r+16,2)}, {v(r+16,2)}, v[82:83], v[84:85] op_sel_hi:[1,0,0]")
        for r in rs: A(f"v_pk_mul_f32 {v(r+16,2)}, {v(r+16,2)}, {v(r,2)}")
        for r in range(32+4*g, 36+4*g): A(f"v_exp_f32 v{r}, v{r}")
        for r in rs: A(f"v_pk_add_f32 {v(r+16,2)}, {v(r+16,2)}, 1.0 op_sel_hi:[1,0]")
        for r in range(32+4*g, 36+4*g): A(f"v_rcp_f32 v{r}, v{r}")
        for r in rs: A(f"v_pk_mul_f32 {v(r,2)}, {v(r,2)}, {v(r+16,2)}")
        for k, r in enumerate(rs): A(f"v_cvt_pk_bf16_f32 v{88+2*g+k}, v{r}, v{r+1}")
        if g & 1: A(f"v_or_b32 v{89+2*g}, 1, v{89+2*g}")
        if g & 1: A(f"buffer_store_dwordx4 {v(88+4*(g>>1),4)}, v{VL}, {R(RWS)}, s{sT} offen offset:{(g>>1)*1024} sc1")
    stamp("gst"); stamp_flush()
    A("P4_END:\ns_barrier")
    vm.q = []; lg.q = []
    preread()
    A("s_waitcnt lgkmcnt(0)\ns_barrier")
    stamp("gflag"); stamp_flush()

def p5():
    T0, T1, T2 = 4, 5, 6
    RING, NR, HR, IR, VO, B2R, VG, TC = 80, 6, PRE + 32, 246, 3, 8, [12, 13], 254
    A(f"s_cmp_ge_u32 s{sJ}, 28\ns_cbranch_scc1 K_FIN")
    sGC = sC
    A(f"s_and_b32 s{sE}, s{SW}, 1\ns_lshl_b32 s{sT}, s{sDT5}, 1\ns_add_u32 s{sE}, s{sE}, s{sT}\ns_xor_b32 s{sU}, s{sE}, 1")
    A(f"s_lshr_b32 s{sV}, s{SW}, 1\ns_lshl_b32 s{sT}, s{sST}, 1\ns_add_u32 s{sV}, s{sV}, s{sT}\ns_mul_i32 s{sV}, s{sV}, 14\ns_add_u32 s{sV}, s{sV}, s{sE}\ns_lshl_b32 s{sV}, s{sV}, 11\ns_add_u32 s{sV}, s{sV}, {WS_HF}")
    vm.q = []
    A(f"v_lshrrev_b32 v{T0}, 3, v0\nv_mul_u32_u24 v{VO}, 896, v{T0}\nv_and_b32 v{T1}, 7, v0\nv_lshl_add_u32 v{VO}, v{T1}, 4, v{VO}\nv_lshlrev_b32 v{T0}, 1, v{T0}\ns_lshl_b32 s{sT}, s{sST}, 7")
    A(f"buffer_load_ushort v{B2R}, v{T0}, {R(RB2)}, s{sT} offen\nbuffer_load_ushort v{B2R+2}, v{T0}, {R(RB2)}, s{sT} offen offset:64")
    A(f"s_mul_i32 s{sT}, s{SW}, {28*1024}\ns_add_u32 s{sT}, s{sT}, {WS_G}\ns_mul_i32 s{sA}, s{sE}, {112*1024}\ns_add_u32 s{sA}, s{sA}, s{sT}\ns_mul_i32 s{sB}, s{sU}, {112*1024}\ns_add_u32 s{sB}, s{sB}, s{sT}")
    A(f"v_add_u32 v{VG[0]}, s{sA}, v{VL}\nv_add_u32 v{VG[1]}, s{sB}, v{VL}")
    rot5(sGC); A(f"s_lshl_b32 s{sGC}, s{sGC}, 10")
    dreg = lambda n, j: RING + (n % NR)*8 + 4*j
    dest = lambda n, j: v(dreg(n, j), 4)
    sg = Stream("SG", 14, lambda g: [(dreg(2*g+k, j), VG[j], k*1024) for k in range(2) for j in range(2)],
                lambda g: A(f"s_add_u32 s{sT}, s{sGC}, {g*2048}\ns_sub_u32 s{sD_}, s{sT}, {28*1024}\ns_min_u32 s{sT}, s{sT}, s{sD_}"), TC, 1)
    for g in range(NR//2): sg.issue(g)
    A(f"v_and_b32 v{T0}, 31, v1\nv_lshrrev_b32 v{T1}, 5, v1\nv_lshlrev_b32 v{T1}, 2, v{T1}\nv_sub_u32 v{T0}, v{T0}, v{T1}")
    for p in range(2):
        for r in range(4):
            d0 = 16*p + 8*(r >> 1) + 2*(r & 1)
            A(f"v_cmp_eq_u32 vcc, {d0}, v{T0}\nv_cmp_eq_u32 s[{sA}:{sA+1}], {d0+1}, v{T0}\nv_cndmask_b32 v{IR+4*p+r}, 0, v{VONE}, vcc\nv_cndmask_b32 v{IR+4*p+r}, v{IR+4*p+r}, v{VONE+1}, s[{sA}:{sA+1}]")
    VWA = [4, 5, 6, 7]; VRA = [14, 15]
    A(f"v_and_b32 v14, 31, v1\nv_mul_u32_u24 v14, 272, v14\nv_lshrrev_b32 v15, 5, v1\nv_lshl_add_u32 v14, v15, 4, v14\nv_add_u32 v14, s{sW2W}, v14")
    for sl in range(4):
        A(f"s_xor_b32 s{sT}, s{SW}, {sl}\ns_lshr_b32 s{sU}, s{sT}, 1\ns_mul_i32 s{sU}, s{sU}, {32*272}\ns_and_b32 s{sT}, s{sT}, 1\ns_lshl_b32 s{sT}, s{sT}, 7\ns_add_u32 s{sT}, s{sT}, s{sU}\nv_add_u32 v{VWA[sl]}, s{sT}, v14")
    A(f"v_lshrrev_b32 v14, 3, v0\nv_mul_u32_u24 v14, 272, v14\nv_and_b32 v15, 7, v0\nv_lshl_add_u32 v14, v15, 5, v14\nv_add_u32 v15, {2*28672}, v14")
    wreg = lambda n, ti: v(PRE + 8*(n if n < 14 else n & 3) + 4*ti, 4)
    def tread(n, ti):
        for half in range(2): A(f"ds_read_b64_tr_b16 {v(PRE + 8*(n&3) + ti*4 + half*2, 2)}, v{VRD[ti]} offset:{(n-14)*2048 + half*1024}"); lg.issue(n)
    sg.check1(0); sg.check2(0)
    for n in range(28):
        if n == 0: stamp("p5first")
        if n in (7, 14, 21): stamp(f"p5_{n}")
        if n == 12: A("s_barrier")
        lg.wait(n)
        for k, (ti, tj) in enumerate([(0, 0), (0, 1), (1, 0), (1, 1)]):
            acc = ACC + 16*(2*ti + tj)
            A(f"{MFMA} {v(acc,16)}, {dest(n,tj)}, {wreg(n,ti)}, {'0' if n == 0 else v(acc,16)}")
            if k < 2 and 14 <= n + 2 < 28: tread(n + 2, k)
            if n & 1 and k == 2: sg.check1(n//2 + 1)
        if n & 1: sg.check2(n//2 + 1); sg.issue(n//2 + NR//2)
        if n == 5:
            for p in range(2): A(f"buffer_load_dwordx4 {v(HR+4*p,4)}, v{VL}, {R(RWS)}, s{sV} offen offset:{p*1024} sc1")
        if n == 19:
            for p in range(2): A(f"{MFMA} {v(ACC,16)}, {v(IR+4*p,4)}, {v(HR+4*p,4)}, {v(ACC,16)}")
            A(f"v_lshlrev_b32 v{B2R}, 16, v{B2R}\nv_lshlrev_b32 v{B2R+2}, 16, v{B2R+2}")
    A(f"s_mul_i32 s{sT}, s{sST}, {64*896}\ns_lshl_b32 s{sU}, s{sDT5}, 7\ns_add_u32 s{sT}, s{sT}, s{sU}\ns_add_u32 s{sU}, s{sT}, {32*896}")
    stamp("p5mm")
    for sl in range(4):
        for g in range(4): A(f"ds_write_b128 v{VWA[sl]}, {v(ACC+16*sl+4*g,4)} offset:{g*32}")
    A("s_waitcnt lgkmcnt(0)\ns_barrier")
    for rr in range(2):
        for w in range(4):
            for q in range(2):
                A(f"ds_read_b128 {v(16+16*w+8*rr+4*q,4)}, v{VRA[w>>1]} offset:{(w&1)*28672 + rr*32*272 + q*16}")
    for rr in range(2):
        A(f"s_waitcnt lgkmcnt({8 if rr == 0 else 0})")
        rs = range(16+8*rr, 24+8*rr, 2)
        for r in rs: A(f"v_pk_add_f32 {v(r,2)}, {v(r,2)}, {v(r+16,2)}\nv_pk_add_f32 {v(r+32,2)}, {v(r+32,2)}, {v(r+48,2)}")
        for r in rs: A(f"v_pk_add_f32 {v(r,2)}, {v(r,2)}, {v(B2R+2*rr,2)} op_sel_hi:[1,0]")
        for r in rs: A(f"v_pk_add_f32 {v(r,2)}, {v(r,2)}, {v(r+32,2)}")
        for r in range(4): A(f"v_cvt_pk_bf16_f32 v{80+4*rr+r}, v{16+8*rr+2*r}, v{17+8*rr+2*r}")
        A(f"buffer_store_dwordx4 {v(80+4*rr,4)}, v{VO}, {R(ROUT)}, s{[sT,sU][rr]} offen")
    stamp("outst"); stamp_flush()
    A("K_FIN:")
    if os.environ.get("DIAGAT"):
        A(f"DSP:\ns_memrealtime s[{sA}:{sA+1}]\ns_waitcnt lgkmcnt(0)\ns_sub_u32 s{sA}, s{sA}, s72\ns_cmp_lt_u32 s{sA}, 4000\ns_cbranch_scc1 DSP")
    if STAMP:
        A("s_waitcnt vmcnt(0)"); stamp("end"); A(f"s_memrealtime s[{sA}:{sA+1}]"); stamp_flush()
        A(f"v_writelane_b32 v{VST}, s72, 62\nv_writelane_b32 v{VST}, s{sA}, 63")
        A(f"s_lshl_b32 s{sT}, s2, 3\ns_add_u32 s{sT}, s{sT}, s{sW8}\ns_lshl_b32 s{sT}, s{sT}, 8\ns_add_u32 s{sT}, s{sT}, {WS_STAMP}\nv_lshlrev_b32 v4, 2, v1\nbuffer_store_dword v{VST}, v4, {R(RWS)}, s{sT} offen")
    A("K_END:\ns_endpgm")

def bprog():
    NT = env("NT", 0); nt = " nt" if NT else ""
    nt1 = " nt" if env("NT1", 0) else ""
    VXD = [16, 17, 18, 19]; VXE = [20, 21]; VWD = list(range(22, 29))
    sWO, sXO, sM, sWM = sA, sB, sC, sD_
    sXP, sWP = [sW1, sW1S, sW1E], [sW2, sW2S, sW2E]
    A("B_P1:"); vm.q = []; lg.q = []
    p1_common()
    A(f"s_mul_i32 s{sXO}, s{sE}, {32*896}\ns_lshl_b32 s{sWM}, s{SW}, 10")
    A("v_lshrrev_b32 v4, 4, v1\nv_and_b32 v5, 15, v1\nv_xor_b32 v5, v5, v4\nv_mul_u32_u24 v6, 896, v4")
    for j in range(4): A(f"v_xor_b32 v7, {4*j}, v5\nv_lshl_add_u32 v7, v7, 4, v6\nv_add_u32 v{VXD[j]}, {j*4*896 - j*1024}, v7")
    A(f"s_lshr_b32 s{sT}, s{sJ}, 2\ns_and_b32 s{sU}, s{sJ}, 3\ns_add_u32 s{sT}, s{sT}, s{sU}\ns_mul_i32 s{sU}, s{sT}, 11\ns_lshr_b32 s{sU}, s{sU}, 5\ns_mul_i32 s{sU}, s{sU}, 3\ns_sub_u32 s{sT}, s{sT}, s{sU}")
    if not env("P1ROT", 1): A(f"s_mov_b32 s{sT}, 0")
    for p in range(3):
        A(f"s_lshl_b32 s{sU}, s{sT}, 8\ns_add_u32 s{sXP[p]}, s{sXO}, s{sU}\ns_mul_i32 s{sU}, s{sT}, {128*2688}\ns_add_u32 s{sWP[p]}, s{sWO}, s{sU}")
        if p < 2: A(f"s_add_u32 s{sT}, s{sT}, 1\ns_cmp_eq_u32 s{sT}, 3\ns_cselect_b32 s{sT}, 0, s{sT}")
    def xpiece(p):
        if p < 3:
            for j in range(8):
                if j % 4 == 0: A(f"s_add_u32 m0, s{sM}, {XBUF[p] + (j>>2)*4096}\ns_add_u32 s{sV}, s{sXP[p]}, {(j>>2)*16*896}")
                A(f"buffer_load_dwordx4 v{VXD[j&3]}, {R(RX)}, s{sV} offen offset:{(j&3)*1024}{nt1} lds"); vm.issue(f"x{p}")
        else:
            for j in range(4):
                A(f"s_add_u32 m0, s{sM}, {XBUF[p] + j*1024}\ns_add_u32 s{sV}, s{sXO}, {(j>>1)*16*896 + 768}\nbuffer_load_dwordx4 v{VXE[j&1]}, {R(RX)}, s{sV} offen{nt1} lds"); vm.issue(f"x{p}")
    def wdma(j):
        g = j // 7
        if g == 3 and j == 21: A(f"s_add_u32 s{sT}, s{sWO}, {3*128*2688}")
        A(f"s_add_u32 m0, s{sWM}, {j*4096}\nbuffer_load_dwordx4 v{VWD[j%7]}, {R(RWQ)}, s{sWP[g] if g < 3 else sT} offen{nt1} lds"); vm.issue(f"w{g}")
    A("s_waitcnt lgkmcnt(0)")
    xpiece(0)
    for j in range(7):
        A(f"v_add_u32 v4, {256*j}, v0\nv_mul_u32_u24 v5, 4682, v4\nv_lshrrev_b32 v5, 16, v5\nv_mul_u32_u24 v6, 14, v5\nv_sub_u32 v4, v4, v6")
        A(f"v_and_b32 v6, 0xf8, v5\nv_and_b32 v7, 1, v5\nv_lshl_add_u32 v6, v7, 2, v6\nv_bfe_u32 v7, v5, 1, 2\nv_add_u32 v6, v6, v7\nv_mul_u32_u24 v6, 2688, v6\nv_lshl_add_u32 v{VWD[j]}, v4, 4, v6")
        wdma(j)
    xpiece(1)
    A("v_lshrrev_b32 v4, 3, v1\nv_mul_u32_u24 v6, 896, v4\nv_lshrrev_b32 v4, 4, v1\nv_and_b32 v5, 7, v1\nv_xor_b32 v5, v5, v4")
    for j in range(2): A(f"v_xor_b32 v7, {4*j}, v5\nv_lshl_add_u32 v7, v7, 4, v6\nv_add_u32 v{VXE[j]}, {j*8*896}, v7")
    prologue2()
    vm.wait("w0"); A("s_barrier\ns_barrier")
    for j in range(7, 14): wdma(j)
    xpiece(2)
    vm.wait("w1"); A("s_barrier\ns_barrier")
    for j in range(14, 21): wdma(j)
    xpiece(3)
    for j in range(21, 25): wdma(j)
    vm.wait("w2"); A("s_barrier")
    vm.wait_all(); A("s_barrier\ns_waitcnt lgkmcnt(0)\ns_branch B_P2")

def bprog2():
    NT = env("NT", 0); nt = " nt" if NT else ""
    A("B_P2:"); vm.q = []
    if STAMP: A("v_mov_b32 v15, -1\nB_P2S:"); st["v"] = 15
    roles(touch=False)
    W1B, WOR, W2R0 = 16, 160, 192
    VT1, VT2, VTO, VDW, VDR = [4, 5], [6, 7], [8, 9], 10, 11
    A("v_lshrrev_b32 v12, 3, v1\nv_bfe_u32 v13, v1, 4, 1\nv_lshlrev_b32 v13, 2, v13\nv_and_b32 v14, 7, v1\nv_xor_b32 v14, v14, v13\nv_lshlrev_b32 v14, 4, v14")
    A(f"v_mul_u32_u24 v13, 3584, v12\nv_add_u32 v{VT1[0]}, v13, v14\nv_add_u32 v{VT1[1]}, {8*3584}, v{VT1[0]}\nv_lshl_add_u32 v{VT2[0]}, v12, 12, v14\nv_add_u32 v{VT2[1]}, {8*4096}, v{VT2[0]}")
    A(f"v_lshrrev_b32 v12, 2, v1\nv_mul_u32_u24 v12, 896, v12\nv_and_b32 v13, 3, v1\nv_lshl_add_u32 v{VTO[0]}, v13, 4, v12\nv_add_u32 v{VTO[1]}, {16*896}, v{VTO[0]}")
    A(f"v_add_u32 v{VDW}, s{sW2W}, v{VL}\nv_add_u32 v{VDR}, s{sRBW}, v{VL}")
    A(f"s_mul_i32 s{sW1S}, s{SW}, {512*3584}\ns_lshl_b32 s{sT}, s{sFT}, 7\ns_add_u32 s{sW1S}, s{sW1S}, s{sT}\ns_add_u32 s{sW1E}, s{sW1S}, {512*3584}")
    rot4(sT); A(f"s_mul_i32 s{sT}, s{sT}, {16*3584}\ns_add_u32 s{sW1}, s{sW1S}, s{sT}")
    A(f"s_mul_i32 s{sW2S}, s{SW}, {448*4096}\ns_lshl_b32 s{sT}, s{sST}, 7\ns_add_u32 s{sW2S}, s{sW2S}, s{sT}\ns_add_u32 s{sW2E}, s{sW2S}, {448*4096}")
    rot5(sT); A(f"s_lshl_b32 s{sT}, s{sT}, 16\ns_add_u32 s{sW2}, s{sW2S}, s{sT}")
    TH = env("BTH", 4)
    def adv(cur, st_, en, step): A(f"s_add_u32 s{cur}, s{cur}, {step}\ns_cmp_eq_u32 s{cur}, s{en}\ns_cselect_b32 s{cur}, s{st_}, s{cur}")
    def w2reg(n): return W2R0 + 8*n if n < 8 else (WOR + 8*(n-8) if n < 12 else W1B + 8*(n-12))
    def w2load(n, th=None):
        for j in range(2): A(f"buffer_load_dwordx4 {v(w2reg(n)+4*j,4)}, v{VT2[j]}, {R(RW2)}, s{sW2} offen{nt}"); vm.issue(f"v{n}")
        adv(sW2, sW2S, sW2E, 16*4096)
        if th: A(f"s_waitcnt vmcnt({th})")
    A(f"s_and_b32 s{sT}, s{sC3}, 7\ns_lshl_b32 s{sT}, s{sT}, 1\ns_lshl_b32 s{sB}, s{SW}, 2\ns_add_u32 s{sB}, s{sB}, s{sT}\ns_min_u32 s{sC}, s{sC3}, 13\ns_lshl_b32 s{sC}, s{sC}, 6")
    A(f"s_cmp_ge_u32 s{sJ}, 24\ns_cbranch_scc1 B_NOKV\ns_barrier\nB_NOKV:")
    A(f"s_add_u32 s{sT}, s{SW}, 1\ns_and_b32 s{sT}, s{sT}, 3\ns_mul_i32 s{sT}, s{sT}, 12288\ns_add_u32 s{sT}, s{sT}, {RBUF + 3072}\nv_add_u32 v14, s{sT}, v{VL}")
    A(f"v_mov_b32 v12, 0\nds_write_b32 v14, v12\ns_waitcnt lgkmcnt(0)\ns_barrier")
    stamp("b_go")
    BP = env("BPRIO", 0)
    if BP: A(f"s_setprio {BP}")
    A(f"buffer_load_dwordx2 v[{W2R0}:{W2R0+1}], v12, {R(RDBG)}, 0 offen sc1")
    sPOS = sE
    def item(k, th):
        if k < 32:
            n = k
            for j in range(2):
                if n < 14: A(f"s_add_u32 m0, s{sW2W}, {n*2048 + j*1024}\nbuffer_load_dwordx4 v{VT1[j]}, {R(RW1)}, s{sW1} offen{nt} lds")
                else: A(f"buffer_load_dwordx4 {v(W1B+8*(n-14)+4*j,4)}, v{VT1[j]}, {R(RW1)}, s{sW1} offen{nt}")
            adv(sW1, sW1S, sW1E, 16*3584)
            if th: A(f"s_waitcnt vmcnt({th})")
        else: w2load(k - 32, th)
    K0 = env("K0", 14)
    for k in range(40):
        if k >= K0: A("ds_read_b32 v13, v14")
        item(k, TH)
        if k in (4, 6, 8, 10):
            q = (k - 4) // 2
            A(f"s_add_u32 s{sT}, s{sB}, {q}\ns_and_b32 s{sT}, s{sT}, 15\ns_mul_i32 s{sT}, s{sT}, {28*896}\ns_add_u32 s{sT}, s{sT}, s{sC}")
            for j in range(2): A(f"buffer_load_dwordx4 {v(WOR+8*q+4*j,4)}, v{VTO[j]}, {R(RWO)}, s{sT} offen")
            A(f"s_waitcnt vmcnt({TH})")
        if k == K0 - 1:
            A(f"s_setprio 3\nv_readfirstlane_b32 s{sTAG}, v{W2R0}\nv_readfirstlane_b32 s{sTAG+1}, v{W2R0+1}\nv_lshlrev_b32 v12, 3, v1\ns_mul_i32 s{sV}, s{SW}, 384\ns_add_u32 s{sV}, s{sV}, {F2}")
            poll(12, sV, 48, 8); A(f"s_setprio {BP}")
            TH = env("BTH2", 8)
        if k in (4, K0 - 1): stamp(f"b_{k}")
        if K0 <= k < 39:
            A(f"s_mov_b32 s{sPOS}, {k+1}\ns_waitcnt lgkmcnt(0)\ns_setprio 3\nv_cmp_ne_u32 vcc, 0, v13\ns_setprio {BP}\ns_cbranch_vccnz B_CUT")
    A(f"s_mov_b32 s{sPOS}, 40\nB_CUT:")
    stamp("b_done"); stamp_flush()
    if STAMP: A(f"v_writelane_b32 v15, s{sPOS}, 60")
    A(f"v_min_u32 v12, 5, v1\nv_lshlrev_b32 v12, 12, v12\nv_add_u32 v12, {RBUF + 3*1024 + 32*16 + 4}, v12")
    A(f"B_RED:\ns_barrier\nds_read_b32 v13, v12\ns_waitcnt lgkmcnt(0)\nv_cmp_ne_u32 vcc, 0, v13")
    A(f"s_cbranch_vccz B_OK\ns_cmp_lg_u32 s{sRETRY}, 0\ns_cbranch_scc1 B_OK\ns_mov_b32 s{sRETRY}, -1\ns_barrier\ns_barrier\ns_barrier\ns_branch B_RED\nB_OK:")
    A("s_barrier")
    for k in range(8): A(f"ds_write_b128 v{VDR}, {v(WOR+4*k,4)} offset:{k*1024}")
    A("s_waitcnt lgkmcnt(0)\ns_barrier\ns_barrier")
    for k in range(K0 + 1, 40):
        A(f"s_cmp_gt_u32 s{sPOS}, {k}\ns_cbranch_scc1 B_SK{k}"); item(k, None); A(f"B_SK{k}:")
    vm.q = []
    for n in range(8, 12): w2load(n)
    A("s_barrier\ns_waitcnt vmcnt(8)")
    def dump(reg, va, off):
        for j in range(2): A(f"ds_write_b128 v{va}, {v(reg+4*j,4)} offset:{off + j*1024}")
    for n in range(14, 18): dump(W1B + 8*(n-14), VDR, (n-14)*2048)
    A("s_waitcnt lgkmcnt(0)")
    NE = env("W2E", 16)
    for n in range(12, NE): w2load(n)
    for n in range(18, 32): dump(W1B + 8*(n-14), VDW, (n-18)*2048)
    A("s_waitcnt lgkmcnt(0)\ns_barrier\ns_barrier")
    for n in range(7): dump(w2reg(n), VDW, n*2048)
    A("s_barrier")
    rest = list(range(NE, 28))
    for n in rest[:4]: w2load(n)
    rest = rest[4:]
    A("s_barrier")
    vm.wait("v13")
    for n in range(7, 14):
        dump(w2reg(n), VDW, n*2048)
        if rest: w2load(rest.pop(0))
    for n in rest: w2load(n)
    A("s_waitcnt lgkmcnt(0)\ns_barrier\ns_barrier")
    for n in range(14, 28):
        vm.wait(f"v{n}"); dump(w2reg(n), VDW, (n-14)*2048)
    A("s_waitcnt lgkmcnt(0)\ns_barrier")
    if STAMP: A(f"v_mov_b32 v{VST}, v15"); del st["v"]
    A("s_branch K_FIN")

def main(out):
    prologue()
    pend0 = list(st["pend"])
    bprog()
    st["pend"] = list(pend0); p1_helper()
    st["pend"] = list(pend0); p1(); fb = p2(); p3(); p4(); p5()
    st["pend"] = list(pend0); bprog2(); fb()
    for h in handlers: h()
    A("CODE_END:")
    head = open("head.txt").read()
    nv = 256
    txt = head + f"; @launch grid=(256,1,1) block=(512,1,1) lds={LDS_TOTAL}\n" + '.amdgcn_target "amdgcn-amd-amdhsa--gfx950"\n.text\n' + kernel_header(NAME) + A.text() + '.section .rodata,"a"\n' + kernel_desc(NAME, nv, 102, 256)
    open(out, "w").write(txt)
    if STAMP: open(out + ".names", "w").write(" ".join(st["names"].keys()))

if __name__ == "__main__":
    main(sys.argv[1])
```

```python
import sys, struct, math, os
from asmlib import *

S, D, H, DH, F = 2048, 448, 16, 28, 1792
MB = 1 << 20
WS_Q, WS_KV, WS_O, WS_HF, WS_HH, WS_G, WS_ST, WS_FL, WS_STAMP = 0, 2*MB, 6*MB, 8*MB, 10*MB, 12*MB, 14*MB, 14*MB + 512*1024, 15*MB
F1, F2, F4, F5 = WS_FL, WS_FL + 131072, WS_FL + 2*131072, WS_FL + 3*131072
WS_RST, WS_CSG = 13*MB + 768*1024, 13*MB + 832*1024
WS_SIZE = 16*MB
WS_O = WS_HH = WS_Q
WS_G = WS_KV
EPS = 1e-5
STAMP = os.environ.get("STAMP", "0") == "1"
def env(n, d): return int(os.environ.get(n, str(d)))
def f2u(x): return struct.unpack("<I", struct.pack("<f", x))[0]
def hx(x): return f"0x{x & 0xffffffff:08x}"
def fl(x): return hx(f2u(x))
MFMA = "v_mfma_f32_32x32x16_bf16"
NAME = "sequential_preLN__mha_block__mixer_token_mlp__prompt_kernel"

class Cnt:
    def __init__(self, A, name, mx):
        self.A, self.name, self.mx, self.q = A, name, mx, []
    def issue(self, tag): self.q.append(tag)
    def wait(self, tag):
        idx = [i for i, t in enumerate(self.q) if t == tag]
        if not idx: return
        n = len(self.q) - 1 - idx[-1]
        self.A(f"s_waitcnt {self.name}({min(n, self.mx)})")
        self.q = self.q[idx[-1] + 1:]
    def wait_all(self):
        self.A(f"s_waitcnt {self.name}(0)"); self.q = []

RX, RWQ, RWO, RW1, RB1, RW2, RB2, ROUT, RDBG, RWS = 8, 12, 16, 20, 24, 28, 32, 36, 40, 44
def R(r): return f"s[{r}:{r+3}]"
SW, sH, sI, sJ, sFT, sDT4, sST, sDT5, sACT4, sTO, sTAG = 48, 49, 50, 51, 52, 53, 54, 55, 56, 57, 58
sHI, sONES = 60, 62
sT, sU, sV, sA, sB, sC, sD_, sE, sRETRY = 63, 64, 65, 66, 67, 68, 69, 70, 71
sF = [4, 5, 6, 7]
sSEC, sHQ, sW8 = 3, 92, 93
sMISS = 6
sC3, sR3 = 0, 1
sRBW, sW2W = 94, 95
sW2, sW2S, sW2E, sW1, sW1S, sW1E = 96, 97, 98, 99, 100, 101
VL, VST = 2, 255
W2A, RBUF, LDS_TOTAL = 0, 114688, 163840

A = Asm(); vm = Cnt(A, "vmcnt", 63); lg = Cnt(A, "lgkmcnt", 15)
st = {"pend": [], "names": {}}
def stamp(name):
    if os.environ.get("DIAGAT") == name or (os.environ.get("DIAGAT") and name == "start"): A("s_memrealtime s[72:73]")
    if not STAMP: return
    k = len(st["pend"]); assert k < 9, name
    n = st["names"].setdefault(name, len(st["names"]))
    A(f"{'s_memtime' if env('CYC', 0) else 's_memrealtime'} s[{74+2*k}:{75+2*k}]"); st["pend"].append(n)
def stamp_flush():
    if not STAMP or not st["pend"]: return
    A("s_waitcnt lgkmcnt(0)")
    for k, n in enumerate(st["pend"]): A(f"v_writelane_b32 v{st.get('v', VST)}, s{74+2*k}, {n}")
    st["pend"] = []

def set_exec(mask): A(f"s_mov_b32 exec_lo, {hx(mask)}\ns_mov_b32 exec_hi, {hx(mask >> 32)}")
def halfsum(x, t): A(f"v_mov_b32 v{t}, v{x}\nv_permlane32_swap_b32 v{x}, v{t}\nv_add_f32 v{x}, v{x}, v{t}")
def flag_store(soff_reg, t=4):
    A(f"v_mov_b32 v{t}, s{sTAG}\nv_mov_b32 v{t+1}, s{sTAG+1}\nv_mov_b32 v{t+2}, 0\ns_mov_b64 exec, 1")
    A(f"buffer_store_dwordx2 {v(t,2)}, v{t+2}, {R(RWS)}, s{soff_reg} offen sc1\ns_mov_b64 exec, -1"); vm.issue("flag")
def poll(voff, soff_reg, nl, t):
    L = A.label("POLL")
    set_exec((1 << nl) - 1)
    A(f"s_mov_b32 s{sTO}, 0x8000\n{L}:")
    A(f"buffer_load_dwordx2 {v(t,2)}, v{voff}, {R(RWS)}, s{soff_reg} offen sc1\ns_sub_u32 s{sTO}, s{sTO}, 1\ns_waitcnt vmcnt(0)")
    A(f"s_cbranch_scc1 {L}_x\nv_cmp_ne_u64 vcc, s[{sTAG}:{sTAG+1}], {v(t,2)}\ns_and_b64 exec, exec, vcc\n" + (f"s_cbranch_scc0 {L}_x\ns_sleep {env('PSL', 0)}\ns_branch {L}" if env("PSL", 0) else f"s_cbranch_scc1 {L}") + f"\n{L}_x:\ns_mov_b64 exec, -1")
    vm.q = []
def tr_lane_addr(dst, t, pitch, hs, rs=1):
    A(f"v_lshrrev_b32 v{dst}, 5, v1\nv_mul_u32_u24 v{dst}, {hs*pitch}, v{dst}\nv_bfe_u32 v{t}, v1, 2, 2\nv_mul_u32_u24 v{t}, {rs*pitch}, v{t}\nv_add_u32 v{dst}, v{dst}, v{t}")
    A(f"v_bfe_u32 v{t}, v1, 4, 1\nv_lshl_add_u32 v{dst}, v{t}, 5, v{dst}\nv_and_b32 v{t}, 3, v1\nv_lshl_add_u32 v{dst}, v{t}, 3, v{dst}")
def get_tag(TAGV, lab):
    A(f"v_readfirstlane_b32 s{sTAG}, v{TAGV}\nv_readfirstlane_b32 s{sTAG+1}, v{TAGV+1}")
    A(f"s_or_b32 s{sTO}, s{sTAG}, s{sTAG+1}\ns_cbranch_scc1 {lab}_ok\ns_mov_b32 s{sTO}, 0x8000\nv_mov_b32 v4, 0\n{lab}_l:")
    A(f"buffer_load_dwordx2 {v(TAGV,2)}, v4, {R(RDBG)}, 0 offen sc1\ns_sub_u32 s{sTO}, s{sTO}, 1\ns_waitcnt vmcnt(0)\ns_cbranch_scc1 {lab}_ok")
    A(f"v_readfirstlane_b32 s{sTAG}, v{TAGV}\nv_readfirstlane_b32 s{sTAG+1}, v{TAGV+1}\ns_cmp_eq_u64 s[{sTAG}:{sTAG+1}], 0\ns_cbranch_scc1 {lab}_l\n{lab}_ok:")
def tagcheck(regs, T1, T2, T3):
    A(f"v_xor_b32 v{T1}, s{sTAG}, v{regs[0]+1}\nv_xor_b32 v{T2}, s{sTAG+1}, v{regs[0]+3}\nv_or_b32 v{T1}, v{T1}, v{T2}")
    for g in regs[1:]: A(f"v_xor_b32 v{T2}, s{sTAG}, v{g+1}\nv_xor_b32 v{T3}, s{sTAG+1}, v{g+3}\nv_or3_b32 v{T1}, v{T1}, v{T2}, v{T3}")
    A(f"v_cmp_ne_u32 vcc, 0, v{T1}")
def rot4(d):
    A(f"s_bfe_u32 s{d}, s2, 0x20001\ns_mul_i32 s{d}, s{d}, 7\ns_sub_u32 s{d}, s{sFT}, s{d}\ns_add_u32 s{d}, s{d}, s{sDT4}\ns_add_u32 s{d}, s{d}, s{sDT4}")
    A(f"s_and_b32 s{sTO}, s2, 1\ns_mul_i32 s{sTO}, s{sTO}, 3\ns_add_u32 s{d}, s{d}, s{sTO}\ns_and_b32 s{d}, s{d}, 7\ns_lshl_b32 s{d}, s{d}, 2")
def rot5(d):
    A(f"s_and_b32 s{sTO}, s2, 1\ns_lshl_b32 s{sTO}, s{sTO}, 1\ns_lshl_b32 s{d}, s{sDT5}, 1\ns_add_u32 s{d}, s{d}, s{sTO}\ns_and_b32 s{sTO}, s{sST}, 7\ns_add_u32 s{d}, s{d}, s{sTO}")
    A(f"s_mul_i32 s{sTO}, s{d}, 37\ns_lshr_b32 s{sTO}, s{sTO}, 8\ns_mul_i32 s{sTO}, s{sTO}, 7\ns_sub_u32 s{d}, s{d}, s{sTO}\ns_lshl_b32 s{d}, s{d}, 2")

handlers = []
class Stream:
    def __init__(self, name, ng, loads, soff, T, bit, VP, TP, pm=None, gated=None):
        self.name, self.ng, self.loads, self.soff, self.T, self.last, self.bit = name, ng, loads, soff, T, -1, bit
        self.VP, self.TP, self.pm, self.gated = VP, TP, pm or (lambda g: 0xffffffff), ng if gated is None else gated
        A(f"s_mov_b32 s{sMISS}, {hx((1 << 2*ng) - 1)}")
    def gate(self, g):
        if g >= self.gated: return
        L = f"{self.name}g{g}"
        A(f"s_and_b32 s{sT}, s{sMISS}, {hx(3 << 2*g)}\ns_cbranch_scc1 {L}_h\n{L}_r:")
        def h():
            A(f"{L}_h:\ns_mov_b32 s{sTO}, 0x8000\ns_mov_b32 exec_hi, 0\n{L}_l:\ns_and_b32 exec_lo, s{sMISS}, {hx(self.pm(g))}")
            A(f"buffer_load_dword v{self.TP}, v{self.VP}, {R(RWS)}, 0 offen sc1\ns_sub_u32 s{sTO}, s{sTO}, 1\ns_waitcnt vmcnt(0)\ns_cbranch_scc1 {L}_x")
            A(f"v_and_b32 v{self.TP}, {self.bit}, v{self.TP}\nv_cmp_ne_u32 vcc, 0, v{self.TP}\ns_andn2_b32 s{sMISS}, s{sMISS}, vcc_lo\ns_and_b32 s{sT}, s{sMISS}, {hx(3 << 2*g)}\ns_cbranch_scc1 {L}_l")
            A(f"{L}_x:\ns_mov_b64 exec, -1\ns_branch {L}_r")
        handlers.append(h)
    def _emit(self, g, track):
        self.soff(g)
        for reg, va, off in self.loads(g):
            A(f"buffer_load_dwordx4 {v(reg,4)}, v{va}, {R(RWS)}, s{sT} offen offset:{off} sc1")
            if track: vm.issue((self.name, g))
    def issue(self, g):
        if g < self.ng: self.gate(g); self._emit(g, True); self.last = g
    def issue_part(self, g, k):
        if g >= self.ng: return
        if k == 0: self.gate(g); self.soff(g)
        reg, va, off = self.loads(g)[k]
        A(f"buffer_load_dwordx4 {v(reg,4)}, v{va}, {R(RWS)}, s{sT} offen offset:{off} sc1"); vm.issue((self.name, g))
        self.last = g
    def _red(self, g):
        r = [x[0] + 3 for x in self.loads(g)]
        A(f"v_bitop3_b32 v{self.T}, v{r[0]}, v{r[1]}, v{r[2]} bitop3:0x80\nv_bitop3_b32 v{self.T}, v{self.T}, v{r[3]}, {self.bit} bitop3:0x80")
    def check1(self, g):
        if g < self.ng: vm.wait((self.name, g)); self._red(g)
    def check2(self, g):
        if g >= self.ng: return
        L = f"{self.name}{g}"
        A(f"v_cmp_eq_u32 vcc, 0, v{self.T}\ns_cbranch_vccnz {L}_h\n{L}_r:")
        last = self.last
        def h():
            A(f"{L}_h:\ns_mov_b32 s{sTO}, 0x8000\n{L}_l:")
            self._emit(g, False)
            A(f"s_sub_u32 s{sTO}, s{sTO}, 1\ns_waitcnt vmcnt(0)\ns_cbranch_scc1 {L}_r")
            self._red(g)
            A(f"v_cmp_eq_u32 vcc, 0, v{self.T}\ns_cbranch_vccnz {L}_l\ns_branch {L}_r")
        handlers.append(h)

def prologue():
    if STAMP: A(f"s_memrealtime s[72:73]\nv_mov_b32 v{VST}, -1")
    stamp("start")
    A(f"s_load_dwordx2 s[{RX}:{RX+1}], s[0:1], 0\ns_load_dwordx2 s[{RWQ}:{RWQ+1}], s[0:1], 8")
    A("s_cmp_ge_u32 s2, 256\ns_cbranch_scc1 K_END")
    A(f"v_and_b32 v1, 63, v0\nv_lshrrev_b32 v3, 6, v0\nv_lshlrev_b32 v{VL}, 4, v1\nv_readfirstlane_b32 s{sW8}, v3\nv_and_b32 v0, 255, v0")
    for r, sz in ((RX, S*D*2), (RWQ, D*3*D*2)): A(f"s_mov_b32 s{r+2}, {sz}\ns_mov_b32 s{r+3}, 0x20000")
    A(f"s_and_b32 s{SW}, s{sW8}, 3\ns_lshr_b32 s{sJ}, s2, 3\ns_bfe_u32 s{sT}, s2, 0x20001\ns_and_b32 s{sU}, s2, 1")
    A(f"s_lshl_b32 s{sI}, s{sT}, 2\ns_and_b32 s{sV}, s{sJ}, 3\ns_add_u32 s{sI}, s{sI}, s{sV}")
    A(f"s_lshr_b32 s{sSEC}, s{sJ}, 3\ns_bfe_u32 s{sHQ}, s{sJ}, 0x10002\ns_lshl_b32 s{sV}, s{sU}, 1\ns_add_u32 s{sHQ}, s{sHQ}, s{sV}")
    A(f"s_cmp_ge_u32 s{sJ}, 24\ns_cbranch_scc1 P1_HELP\ns_cmp_lt_u32 s{sW8}, 4\ns_cbranch_scc1 A_P1")

def prologue2():
    for r, off in ((RWS, 80), (RDBG, 72), (RWO, 16), (RW1, 32), (RB1, 40), (RW2, 48), (RB2, 56), (ROUT, 64)):
        A(f"s_load_dwordx2 s[{r}:{r+1}], s[0:1], {off}")
    A(f"s_memrealtime s[{sTAG}:{sTAG+1}]")
    for r, sz in ((RWS, WS_SIZE), (RDBG, 256), (RWO, D*D*2), (RW1, S*F*2), (RB1, F*2), (RW2, S*F*2), (RB2, S*2), (ROUT, S*D*2)):
        A(f"s_mov_b32 s{r+2}, {sz}\ns_mov_b32 s{r+3}, 0x20000")
    A(f"s_mov_b32 s{sHI}, 0\ns_mov_b32 s{sHI+1}, -1\ns_mov_b32 s{sONES}, 0x3f803f80\ns_mov_b32 s{sRETRY}, 0")
    A(f"s_mul_i32 s{sRBW}, s{SW}, 12288\ns_add_u32 s{sRBW}, s{sRBW}, {RBUF}\ns_mul_i32 s{sW2W}, s{SW}, 28672")

def roles(touch=True):
    A(f"s_bfe_u32 s{sT}, s2, 0x20001\ns_and_b32 s{sU}, s2, 1")
    pass
    A(f"s_sub_u32 s{sV}, 25, s{sU}\ns_cmp_lt_u32 s{sJ}, s{sV}\ns_cselect_b32 s{sACT4}, 1, 0\ns_cselect_b32 s{sV}, s{sJ}, 0")
    A(f"s_mul_i32 s{sFT}, s{sU}, 25\ns_add_u32 s{sV}, s{sV}, s{sFT}\ns_mul_i32 s{sDT4}, s{sV}, 9363\ns_lshr_b32 s{sDT4}, s{sDT4}, 16")
    A(f"s_mul_i32 s{sFT}, s{sDT4}, 7\ns_sub_u32 s{sV}, s{sV}, s{sFT}\ns_mul_i32 s{sFT}, s{sT}, 7\ns_add_u32 s{sFT}, s{sV}, s{sFT}")
    A(f"s_cmp_lt_u32 s{sJ}, 28\ns_cselect_b32 s{sV}, s{sJ}, 0\ns_mul_i32 s{sST}, s{sU}, 28\ns_add_u32 s{sV}, s{sV}, s{sST}")
    A(f"s_lshr_b32 s{sDT5}, s{sV}, 3\ns_and_b32 s{sV}, s{sV}, 7\ns_lshl_b32 s{sST}, s{sT}, 3\ns_add_u32 s{sST}, s{sST}, s{sV}")
    A(f"s_lshl_b32 s{sT}, s{sHQ}, 2\ns_add_u32 s{sT}, s{sT}, s{sSEC}\ns_lshl_b32 s{sT}, s{sT}, 4\ns_add_u32 s{sT}, s{sT}, s{sI}\ns_lshl_b32 s{sT}, s{sT}, 7\ns_add_u32 s{sF[0]}, s{sT}, {F1}")
    A(f"s_and_b32 s{sT}, s2, 7\ns_lshl_b32 s{sT}, s{sT}, 1\ns_and_b32 s{sH}, s{sJ}, 1\ns_add_u32 s{sH}, s{sH}, s{sT}\ns_lshr_b32 s{sI}, s{sJ}, 1")
    A(f"s_lshr_b32 s{sR3}, s{sJ}, 4\ns_add_u32 s{sR3}, s{sR3}, s{sT}\ns_lshl_b32 s{sR3}, s{sR3}, 2\ns_add_u32 s{sR3}, s{sR3}, s{SW}\ns_and_b32 s{sC3}, s{sJ}, 15")
    A(f"s_lshl_b32 s{sT}, s2, 3\ns_add_u32 s{sF[1]}, s{sT}, {F2}")
    if not touch: return
    A(f"s_lshl_b32 s{sV}, s{sR3}, 4\ns_add_u32 s{sV}, s{sV}, s{sC3}\ns_lshl_b32 s{sV}, s{sV}, 9\ns_add_u32 s{sV}, s{sV}, {WS_ST}\nv_lshl_add_u32 v4, v1, 7, s{sV}")
    A(f"v_writelane_b32 v4, s{sF[0]}, 4\nv_writelane_b32 v4, s{sF[1]}, 5\ns_mov_b64 exec, {0x3f if env('STT', 0) else 0x30}\nbuffer_load_dword v127, v4, {R(RWS)}, 0 offen sc1\ns_mov_b64 exec, -1")
    vm.issue("touch")

def p1_helper():
    TAGV = 14
    sHX = sA
    A("P1_HELP:")
    vm.q = []
    prologue2()
    A(f"s_and_b32 s{sHX}, s2, 7\ns_lshl_b32 s{sHX}, s{sHX}, 3\ns_add_u32 s{sHX}, s{sHX}, s{sJ}\ns_sub_u32 s{sHX}, s{sHX}, 24")
    A(f"v_lshrrev_b32 v4, 3, v1\nv_and_b32 v5, 7, v1\nv_lshlrev_b32 v5, 4, v5\nv_mov_b32 v7, 0")
    A(f"s_cmp_ge_u32 s{sW8}, 4\ns_cbranch_scc1 H_CS")
    A(f"v_mul_u32_u24 v6, 896, v4\nv_add_u32 v6, v6, v5\ns_lshl_b32 s{sB}, s{sHX}, 2\ns_add_u32 s{sB}, s{sB}, s{SW}\ns_mul_i32 s{sT}, s{sB}, {8*896}\ns_waitcnt lgkmcnt(0)")
    for m in range(7): A(f"buffer_load_dwordx4 {v(16+4*m,4)}, v6, {R(RX)}, s{sT} offen offset:{m*128}")
    A("v_mov_b32 v80, 0\nv_mov_b32 v82, 0\nv_mov_b32 v84, 0\nv_mov_b32 v86, 0\ns_waitcnt vmcnt(0)")
    A(f"buffer_load_dwordx2 {v(TAGV,2)}, v7, {R(RDBG)}, 0 offen sc1")
    for k in range(28): A(f"v_dot2c_f32_bf16 v{80+4*(k&1)}, s{sONES}, v{16+k}\nv_dot2c_f32_bf16 v{82+4*(k&1)}, v{16+k}, v{16+k}")
    A("v_add_f32 v80, v80, v84\nv_add_f32 v82, v82, v86")
    for m in ("quad_perm:[1,0,3,2]", "quad_perm:[2,3,0,1]", "row_half_mirror"):
        for r in (80, 82): A(f"v_add_f32_dpp v{r}, v{r}, v{r} {m} row_mask:0xf bank_mask:0xf")
    A(f"v_mul_f32 v80, {fl(1.0/D)}, v80\nv_mul_f32 v82, {fl(1.0/D)}, v82\nv_fma_f32 v82, -v80, v80, v82\nv_max_f32 v82, 0, v82\nv_add_f32 v82, {fl(EPS)}, v82\nv_rsq_f32 v82, v82")
    A(f"v_lshlrev_b32 v6, 4, v4\nv_mul_f32 v80, v80, v82\nv_sub_f32 v80, 0, v80\ns_waitcnt vmcnt(0)")
    get_tag(TAGV, "H_T1")
    A(f"v_mov_b32 v81, s{sTAG}\nv_mov_b32 v83, s{sTAG+1}\ns_lshl_b32 s{sT}, s{sB}, 7\ns_add_u32 s{sT}, s{sT}, {WS_RST}")
    set_exec(0x0101010101010101)
    A(f"buffer_store_dwordx4 v[80:83], v6, {R(RWS)}, s{sT} offen sc1\ns_mov_b64 exec, -1")
    stamp("h_pub"); stamp_flush()
    A("s_barrier")
    roles()
    addr_setup()
    A("s_branch P2_START")
    st["pend"] = [0] if STAMP else []
    A(f"H_CS:\ns_lshl_b32 s{sB}, s{SW}, 6\ns_add_u32 s{sB}, s{sB}, s{sHX}\ns_cmp_ge_u32 s{sB}, 84\ns_cbranch_scc1 H_PF")
    A(f"v_mul_u32_u24 v6, 2688, v4\nv_add_u32 v6, v6, v5\ns_and_b32 s{sC}, s{sB}, 3\ns_lshr_b32 s{sD_}, s{sB}, 2\ns_mul_i32 s{sT}, s{sC}, {112*2688}\ns_lshl_b32 s{sU}, s{sD_}, 7\ns_add_u32 s{sT}, s{sT}, s{sU}\ns_waitcnt lgkmcnt(0)")
    for m in range(14): A(f"buffer_load_dwordx4 {v(16+4*m,4)}, v6, {R(RWQ)}, s{sT} offen\ns_add_u32 s{sT}, s{sT}, {8*2688}")
    A(f"s_mov_b32 s{sT}, 0x3f80\ns_mov_b32 s{sU}, 0x3f800000")
    for r in range(80, 88): A(f"v_mov_b32 v{r}, 0")
    for m in range(14):
        if m % 4 == 0: A(f"s_waitcnt vmcnt({max(0, 14 - m - 4)})")
        if m == 12: A(f"buffer_load_dwordx2 {v(TAGV,2)}, v7, {R(RDBG)}, 0 offen sc1")
        for k in range(4): A(f"v_dot2c_f32_bf16 v{80+2*k}, s{sT}, v{16+4*m+k}\nv_dot2c_f32_bf16 v{81+2*k}, s{sU}, v{16+4*m+k}")
    for r in range(80, 88): A(f"v_add_f32_dpp v{r}, v{r}, v{r} row_ror:8 row_mask:0xf bank_mask:0xf")
    for op in ("v_permlane16_swap_b32", "v_permlane32_swap_b32"):
        for r in range(80, 88): A(f"v_mov_b32 v{r+8}, v{r}")
        for r in range(80, 88): A(f"{op} v{r}, v{r+8}")
        for r in range(80, 88): A(f"v_add_f32 v{r}, v{r}, v{r+8}")
    A("v_mov_b32 v88, v80\nv_mov_b32 v90, v81")
    for pi in range(1, 4): A(f"v_cmp_eq_u32 vcc, {pi}, v4\nv_cndmask_b32 v88, v88, v{80+2*pi}, vcc\nv_cndmask_b32 v90, v90, v{81+2*pi}, vcc")
    A(f"v_lshlrev_b32 v6, 2, v5\nv_lshl_add_u32 v6, v4, 4, v6\ns_waitcnt vmcnt(0)")
    get_tag(TAGV, "H_T2")
    A(f"v_mov_b32 v89, s{sTAG}\nv_mov_b32 v91, s{sTAG+1}\ns_mul_i32 s{sT}, s{sC}, 10752\ns_lshl_b32 s{sU}, s{sD_}, 9\ns_add_u32 s{sT}, s{sT}, s{sU}\ns_add_u32 s{sT}, s{sT}, {WS_CSG}")
    set_exec(0xFFFFFFFF)
    A(f"buffer_store_dwordx4 v[88:91], v6, {R(RWS)}, s{sT} offen sc1\ns_mov_b64 exec, -1\ns_barrier\ns_branch B_P2")
    A(f"H_PF:\ns_cmp_lt_u32 s{SW}, 2\ns_cbranch_scc1 H_W")
    sQ = sB
    A(f"s_sub_u32 s{sQ}, s{sJ}, 24\ns_lshl_b32 s{sQ}, s{sQ}, 1\ns_add_u32 s{sQ}, s{sQ}, s{SW}\ns_sub_u32 s{sQ}, s{sQ}, 2")
    A(f"s_getpc_b64 s[{sC}:{sC+1}]\nCODE_REF:\ns_lshl_b32 s{sT}, s{sQ}, 12\nv_lshl_add_u32 v6, v1, 7, s{sT}\nv_min_u32 v6, CODE_END-CODE_REF-4, v6")
    A(f"v_mov_b32 v9, s{sC+1}\nv_add_co_u32 v8, vcc, s{sC}, v6\nv_addc_co_u32 v9, vcc, 0, v9, vcc")
    set_exec(0xFFFFFFFF)
    A("global_load_dword v25, v[8:9], off\ns_mov_b64 exec, -1\ns_waitcnt lgkmcnt(0)\ns_barrier")
    A("v_lshlrev_b32 v6, 7, v1")
    A(f"s_and_b32 s{sT}, s2, 7\ns_lshl_b32 s{sT}, s{sT}, 4\ns_add_u32 s{sT}, s{sT}, s{sQ}\ns_mul_i32 s{sT}, s{sT}, {7*8192}")
    for k in range(env("NP1", 0)): A(f"s_add_u32 s{sU}, s{sT}, {k*8192}\nbuffer_load_dword v{16+k}, v6, {R(RW1)}, s{sU} offen")
    for k in range(env("NP2", 0)): A(f"s_add_u32 s{sU}, s{sT}, {k*8192}\nbuffer_load_dword v{26+k}, v6, {R(RW2)}, s{sU} offen")
    if env("WOT", 0) == 1:
        A(f"s_mul_i32 s{sT}, s{sQ}, {196*128}")
        set_exec((1 << 49) - 1)
        for k in range(4): A(f"s_add_u32 s{sU}, s{sT}, {k*49*128}\nbuffer_load_dword v24, v6, {R(RWO)}, s{sU} offen")
        A("s_mov_b64 exec, -1")
    if STAMP:
        A("s_waitcnt vmcnt(0)"); stamp("h_touch"); stamp_flush(); A(f"v_mov_b32 v15, v{VST}\ns_branch B_P2S")
    A("s_branch B_P2\nH_W:\ns_waitcnt lgkmcnt(0)\ns_barrier\ns_branch B_P2")

XA = LDS_TOTAL - 65536
XBUF = [8192, 0, 8192, 4096]
def p1_common():
    sWO, sM = sA, sC
    A(f"s_mul_i32 s{sWO}, s{sSEC}, 896\ns_mul_i32 s{sT}, s{sHQ}, 224\ns_add_u32 s{sWO}, s{sWO}, s{sT}")
    A(f"s_lshl_b32 s{sE}, s{sI}, 2\ns_add_u32 s{sE}, s{sE}, s{SW}\ns_lshl_b32 s{sM}, s{SW}, 14\ns_add_u32 s{sM}, s{sM}, {XA}")

def p1():
    XF, ACC, WF = 16, 128, 192
    VXR = list(range(80, 88)); VXS = list(range(88, 92)); VWR = [92, 93]; TAGV = 94
    xf = lambda ks: XF + ((ks + 8) & 15)*4 if False else XF + (ks & 15)*4
    sWO, sM = sA, sC
    A("A_P1:")
    prologue2()
    p1_common()
    A(f"v_and_b32 v4, 31, v1\nv_lshrrev_b32 v5, 5, v1\nv_and_b32 v6, 15, v1\nv_xor_b32 v6, v6, v5\nv_lshlrev_b32 v6, 4, v6\nv_lshl_add_u32 v6, v4, 8, v6\nv_add_u32 v6, s{sM}, v6")
    for k in range(8): A(f"v_xor_b32 v{VXR[k]}, {k<<5}, v6")
    A(f"v_bfe_u32 v6, v1, 1, 3\nv_xor_b32 v6, v6, v5\nv_lshlrev_b32 v6, 4, v6\nv_lshl_add_u32 v6, v4, 7, v6\nv_add_u32 v6, s{sM}, v6")
    for k in range(4): A(f"v_xor_b32 v{VXS[k]}, {k<<5}, v6")
    tr_lane_addr(VWR[0], 4, 224, 8, 2); A(f"v_add_u32 v{VWR[1]}, {14*3584}, v{VWR[0]}")
    A("s_waitcnt lgkmcnt(0)")
    stamp("karg")
    A(f"s_or_b32 s{sT}, s2, s{SW}\ns_cbranch_scc1 P1_NOTAG")
    A(f"s_bitset1_b32 s{sTAG+1}, 31\nv_mov_b32 v8, s{sTAG}\nv_mov_b32 v9, s{sTAG+1}\nv_mov_b32 v10, 0\nv_mov_b32 v11, 0\ns_mov_b64 exec, 1\nbuffer_atomic_cmpswap_x2 v[8:11], v10, {R(RDBG)}, 0 offen sc1\ns_mov_b64 exec, -1\nP1_NOTAG:")
    A(f"s_mov_b32 s7, s{sE}")
    roles()
    addr_setup()
    A(f"s_mov_b32 s{sE}, s7\ns_lshl_b32 s{sM}, s{SW}, 14\ns_add_u32 s{sM}, s{sM}, {XA}")
    stamp_flush()
    A(f"s_cmp_eq_u32 s{sSEC}, 2\ns_cbranch_scc1 P1_V")
    for isv in (0, 1):
        vm.q = []; lg.q = []
        if isv: A("P1_V:")
        def xread(p):
            for k in range(8 if p < 3 else 4):
                A(f"ds_read_b128 {v(xf(8*p+k), 4)}, v{(VXR if p < 3 else VXS)[k]} offset:{XBUF[p]}"); lg.issue(f"x{p}")
        def wread(ks, hds=range(4)):
            for hd in hds:
                for half in range(2):
                    A(f"ds_read_b64_tr_b16 {v(WF + (ks&1)*16 + hd*4 + half*2, 2)}, v{VWR[ks//14]} offset:{(ks%14)*3584 + half*224 + hd*56}"); lg.issue(f"w{ks}_{hd}")
        def gload():
            A(f"buffer_load_dwordx4 v[16:19], v4, {R(RWS)}, s{sU} offen sc1")
            for kq in range(4): A(f"buffer_load_dwordx4 {v(20+4*kq,4)}, v{5+kq}, {R(RWS)}, s{sV} offen sc1")
        for p in range(4):
            k0, k1 = 8*p, min(8*p + 8, 28)
            if p == 3:
                A(f"v_and_b32 v4, 31, v1\nv_lshlrev_b32 v4, 4, v4\ns_lshl_b32 s{sU}, s{sE}, 9\ns_add_u32 s{sU}, s{sU}, {WS_RST}\ns_lshl_b32 s{sV}, s{sWO}, 2\ns_add_u32 s{sV}, s{sV}, {WS_CSG}")
                A(f"v_min_u32 v5, 55, v1\nv_lshlrev_b32 v5, 4, v5\nv_add_u32 v6, 10752, v5\nv_add_u32 v7, 21504, v5\nv_add_u32 v8, 32256, v5\nv_mov_b32 v9, 0")
            A("s_barrier"); stamp(f"g{p}")
            xread(p); wread(k0, [0, 1, 2])
            if p == 3:
                A(f"buffer_load_dwordx2 {v(TAGV,2)}, v9, {R(RDBG)}, 0 offen sc1"); gload()
            lg.wait(f"x{p}")
            if p < 2: A("s_barrier")
            wread(k0, [3])
            for ks in range(k0, k1):
                x = v(xf(ks), 4)
                for hd in range(4):
                    lg.wait(f"w{ks}_{hd}")
                    w_ = v(WF + (ks&1)*16 + hd*4, 4); acc = v(ACC + 16*hd, 16)
                    A(f"{MFMA} {acc}, {x if isv else w_}, {w_ if isv else x}, {'0' if ks == 0 else acc}")
                    if ks + 1 < k1: wread(ks + 1, [hd])
        stamp("mfma_done")
        A("s_waitcnt vmcnt(5)")
        get_tag(TAGV, f"P1_T{isv}")
        L = A.label("P1_G")
        A(f"s_waitcnt vmcnt(0)")
        tagcheck([16, 20, 24, 28, 32], 96, 97, 98)
        A(f"s_cbranch_vccz {L}_x\nv_and_b32 v4, 31, v1\nv_lshlrev_b32 v4, 4, v4\ns_mov_b32 s{sTO}, 0x8000\n{L}:")
        gload()
        A(f"s_sub_u32 s{sTO}, s{sTO}, 1\ns_waitcnt vmcnt(0)\ns_cbranch_scc1 {L}_x")
        tagcheck([16, 20, 24, 28, 32], 96, 97, 98)
        A(f"s_cbranch_vccnz {L}\n{L}_x:")
        stamp("gran")
        A("v_add_f32 v20, v20, v24\nv_add_f32 v28, v28, v32\nv_add_f32 v22, v22, v26\nv_add_f32 v30, v30, v34\nv_add_f32 v20, v20, v28\nv_add_f32 v21, v22, v30")
        A(f"s_add_u32 s{sT}, s{sM}, 8192\nv_lshl_add_u32 v4, v1, 3, s{sT}\nds_write_b64 v4, v[20:21]\nv_lshrrev_b32 v5, 5, v1\nv_lshl_add_u32 v5, v5, 4, s{sT}")
        PK = 96
        A(f"s_lshl_b32 s{sU}, s{sHQ}, 8\ns_add_u32 s{sU}, s{sU}, s{sE}")
        if not isv:
            for hd in range(4):
                for g in range(4): A(f"ds_read_b128 {v(32+16*hd+4*g,4)}, v5 offset:{hd*112 + g*32}"); lg.issue(f"c{hd}")
            QS = DH ** -0.5 * math.log2(math.e)
            A(f"s_cmp_eq_u32 s{sSEC}, 0\ns_cselect_b32 s{sV}, {fl(QS)}, 1.0\ns_cselect_b32 s{sA}, 0, s{sONES}\ns_cselect_b32 s{sB}, 0, 0x3f80\ns_cselect_b32 s{sC}, {WS_Q}, {WS_KV}")
            A(f"s_add_u32 s{sD_}, s{sSEC}, 11\ns_lshl_b32 s{sU}, s{sU}, s{sD_}\ns_add_u32 s{sU}, s{sU}, s{sC}\ns_lshl_b32 s{sD_}, 64, s{sD_}")
            A(f"v_mul_f32 v16, s{sV}, v16\nv_mul_f32 v18, s{sV}, v18\nv_mov_b32 v8, s{sA}\nv_mov_b32 v9, s{sB}")
            for hd in range(4):
                lg.wait(f"c{hd}")
                c, ac = 32+16*hd, ACC+16*hd
                for r in range(0, 16, 2): A(f"v_pk_mul_f32 {v(c+r,2)}, {v(c+r,2)}, v[16:17] op_sel_hi:[1,0]")
                for r in range(0, 16, 2): A(f"v_pk_fma_f32 {v(ac+r,2)}, {v(ac+r,2)}, v[18:19], {v(c+r,2)} op_sel_hi:[1,0,1]")
                for r in range(8): A(f"v_cvt_pk_bf16_f32 v{PK+8*hd+r}, v{ac+2*r}, v{ac+2*r+1}")
                A(f"v_cndmask_b32 v{PK+8*hd+6}, v{PK+8*hd+6}, v8, s[{sHI}:{sHI+1}]\nv_cndmask_b32 v{PK+8*hd+7}, v{PK+8*hd+7}, v9, s[{sHI}:{sHI+1}]")
                for f in range(2): A(f"v_and_b32 v{PK+8*hd+4*f+3}, 0xfffefffe, v{PK+8*hd+4*f+3}")
                for f in range(2): A(f"buffer_store_dwordx4 {v(PK+8*hd+4*f,4)}, v{VL}, {R(RWS)}, s{sU} offen offset:{f*1024} sc1")
                A(f"s_add_u32 s{sU}, s{sU}, s{sD_}")
        else:
            A(f"v_cndmask_b32 v6, v18, v16, s[{sHI}:{sHI+1}]\nv_lshl_add_u32 v4, v1, 2, s{sT}\nds_write_b32 v4, v6 offset:512")
            A(f"v_and_b32 v6, 31, v1\nv_lshl_add_u32 v4, v6, 2, s{sT}")
            for g in range(4): A(f"ds_read_b128 {v(32+4*g,4)}, v5 offset:{512 + g*32}\nds_read_b128 {v(48+4*g,4)}, v5 offset:{640 + g*32}")
            for hd in range(4): A(f"ds_read_b32 v{24+2*hd}, v4 offset:{hd*112}")
            A(f"s_lshl_b32 s{sU}, s{sU}, 12\ns_add_u32 s{sU}, s{sU}, {WS_KV + 2048}")
            A(f"v_cmp_eq_u32 vcc, 28, v6\nv_mov_b32 v9, s{sONES}\nv_cndmask_b32 v8, 0, v9, vcc\nv_mov_b32 v9, v8")
            for r in range(0, 16, 2): A(f"v_pk_mov_b32 {v(PK+r,2)}, v[8:9], v[8:9]")
            A(f"s_mov_b32 s{sA}, 0x0fffffff\ns_mov_b32 s{sA+1}, 0x0fffffff\ns_waitcnt lgkmcnt(0)")
            for hd in range(4):
                ac = ACC+16*hd; pk = PK + 8*(hd & 1)
                for r in range(0, 16, 2): A(f"v_pk_mul_f32 {v(64+r,2)}, {v(48+r,2)}, {v(24+2*hd,2)} op_sel_hi:[1,0]")
                for r in range(0, 16, 2): A(f"v_pk_fma_f32 {v(ac+r,2)}, {v(ac+r,2)}, {v(32+r,2)}, {v(64+r,2)}")
                A(f"s_mov_b64 exec, s[{sA}:{sA+1}]")
                for r in range(8): A(f"v_cvt_pk_bf16_f32 v{pk+r}, v{ac+2*r}, v{ac+2*r+1}")
                A(f"v_and_b32 v{pk+3}, -2, v{pk+3}\nv_and_b32 v{pk+7}, -2, v{pk+7}\ns_mov_b64 exec, -1")
                for f in range(2): A(f"buffer_store_dwordx4 {v(pk+4*f,4)}, v{VL}, {R(RWS)}, s{sU} offen offset:{f*1024} sc1")
                A(f"s_add_u32 s{sU}, s{sU}, {64*4096}")
        stamp("kvst"); stamp_flush()
        if not isv: A("s_branch P1_DONE")
    A("P1_DONE:")

def tilemax(sreg, T0, T1):
    A(f"v_max3_f32 v{T0}, v{sreg}, v{sreg+1}, v{sreg+2}\nv_max3_f32 v{T1}, v{sreg+3}, v{sreg+4}, v{sreg+5}")
    A(f"v_max3_f32 v{T0}, v{T0}, v{sreg+6}, v{sreg+7}\nv_max3_f32 v{T1}, v{T1}, v{sreg+8}, v{sreg+9}")
    A(f"v_max3_f32 v{T0}, v{T0}, v{sreg+10}, v{sreg+11}\nv_max3_f32 v{T1}, v{T1}, v{sreg+12}, v{sreg+13}")
    A(f"v_max3_f32 v{T0}, v{T0}, v{sreg+14}, v{sreg+15}")
def set_qpad(q, m, T0, T1, T2):
    A(f"v_sub_f32 v{T0}, 0, v{m}\nv_and_b32 v{T1}, 0xffff0000, v{T0}\nv_sub_f32 v{T0}, v{T0}, v{T1}")
    A(f"v_and_b32 v{T2}, 0xffff0000, v{T0}\nv_sub_f32 v{T0}, v{T0}, v{T2}\nv_lshrrev_b32 v{T0}, 16, v{T0}")
    A(f"v_lshrrev_b32 v{T1}, 16, v{T1}\nv_or_b32 v{T1}, v{T1}, v{T2}")
    A(f"v_cndmask_b32 v{q+6}, v{q+6}, v{T1}, s[{sHI}:{sHI+1}]\nv_cndmask_b32 v{q+7}, v{q+7}, v{T0}, s[{sHI}:{sHI+1}]")

XR, IR3 = 224, 232
VRD, VFL, VKV, VONE, VRB, VWO = [240, 241], 242, 243, 244, [246, 247], 248
VO3, VP3, VH, VP4, VG, VP5 = [10, 11], 12, [14, 15], 3, [253, 254], 242
sRO, sGC, sGST, sHFO, sFO, sRT3 = 96, 97, 98, 99, 100, 101
VRW = [249, 250, 251, 252]
def addr_setup():
    tr_lane_addr(4, 5, 128, 4)
    A(f"s_and_b32 s{sT}, s{SW}, 1\ns_lshl_b32 s{sT}, s{sT}, 5\nv_xor_b32 v4, s{sT}, v4")
    A(f"v_bfe_u32 v5, v1, 3, 1\ns_lshr_b32 s{sT}, s{SW}, 1\nv_xor_b32 v5, s{sT}, v5")
    A(f"v_lshl_add_u32 v6, v5, 6, v4\nv_xor_b32 v5, 1, v5\nv_lshl_add_u32 v7, v5, 6, v4")
    A(f"v_add_u32 v{VRD[0]}, s{sW2W}, v6\nv_add_u32 v{VRD[1]}, s{sW2W}, v7")
    A(f"v_mov_b32 v{VONE}, 0x3f80\nv_mov_b32 v{VONE+1}, 1.0")
    A(f"s_lshl_b32 s{sT}, s{sH}, 2\ns_add_u32 s{sT}, s{sT}, s{SW}\ns_lshl_b32 s{sT}, s{sT}, 16\ns_add_u32 s{sT}, s{sT}, {WS_KV}\nv_add_u32 v{VKV}, s{sT}, v{VL}")
    tr_lane_addr(VWO, 4, 64, 4); A(f"v_add_u32 v{VWO}, {RBUF}, v{VWO}\nv_add_u32 v{VRW[0]}, s{sRBW}, v{VL}")
    for t in range(1, 4):
        A(f"s_add_u32 s{sT}, s{SW}, {t}\ns_and_b32 s{sT}, s{sT}, 3\ns_mul_i32 s{sT}, s{sT}, 12288\ns_add_u32 s{sT}, s{sT}, {RBUF}\nv_add_u32 v{VRW[t]}, s{sT}, v{VL}")
    A("v_and_b32 v4, 31, v1\nv_lshrrev_b32 v5, 5, v1\nv_lshlrev_b32 v6, 3, v5\nv_sub_u32 v6, v4, v6")
    for p in range(2):
        for r in range(4):
            A(f"v_cmp_eq_u32 vcc, {16*p+2*r}, v6\nv_cmp_eq_u32 s[{sU}:{sU+1}], {16*p+2*r+1}, v6\nv_cndmask_b32 v{IR3+4*p+r}, 0, v{VONE}, vcc\nv_cndmask_b32 v{IR3+4*p+r}, v{IR3+4*p+r}, v{VONE+1}, s[{sU}:{sU+1}]")
    A("v_mul_u32_u24 v13, 896, v4\nv_lshl_add_u32 v13, v5, 4, v13")
    A(f"s_lshl_b32 s{sB}, s{sR3}, 11\ns_add_u32 s{sB}, s{sB}, {WS_O}\nv_add_u32 v{VO3[0]}, s{sB}, v{VL}\nv_add_u32 v{VO3[1]}, 0x20000, v{VO3[0]}\ns_and_b32 s{sT}, s{sC3}, 7\ns_lshl_b32 s{sRT3}, s{sT}, 18")
    A(f"s_lshl_b32 s{sT}, s{sT}, 1\nv_add_u32 v{VP3}, s{sT}, v1\nv_and_b32 v{VP3}, 15, v{VP3}\nv_lshlrev_b32 v{VP3}, 17, v{VP3}\ns_add_u32 s{sT}, s{sB}, 2044\nv_add_u32 v{VP3}, s{sT}, v{VP3}")
    mlp_addr(RA, 4, 6)
    A(f"s_lshl_b32 s{sFO}, s{sFT}, 2\ns_add_u32 s{sFO}, s{sFO}, s{SW}\ns_mul_i32 s{sT}, s{sDT4}, {2*112*1024}\ns_lshl_b32 s{sU}, s{sFO}, 10\ns_add_u32 s{sT}, s{sT}, s{sU}\ns_add_u32 s{sGST}, s{sT}, {WS_G}")
    A(f"s_lshr_b32 s{sV}, s{SW}, 1\ns_lshl_b32 s{sT}, s{sST}, 1\ns_add_u32 s{sV}, s{sV}, s{sT}\ns_mul_i32 s{sV}, s{sV}, 7\ns_add_u32 s{sV}, s{sV}, s{sDT5}\ns_lshl_b32 s{sV}, s{sV}, 12\ns_and_b32 s{sT}, s{SW}, 1\ns_lshl_b32 s{sT}, s{sT}, 10\ns_add_u32 s{sV}, s{sV}, s{sT}\ns_add_u32 s{sHFO}, s{sV}, {WS_HF}")
    A(f"s_xor_b32 s{sT}, s{SW}, 3\ns_mul_i32 s{sT}, s{sT}, 28672\ns_add_u32 s{sT}, s{sT}, {13*2048}\nv_add_u32 v{VX3}, s{sT}, v{VL}")

class Role: pass
RA, RB = Role(), Role()
C5A = env("C5A", 8)
RA.n, RA.n4, RA.c4, RA.n5, RA.c5, RA.W, RA.slots = "A", 0, 12, 0, C5A, 128, [0, 1, 2, 3, 4, 5]
RA.VRD, RA.VH, RA.VG, RA.VP4, RA.VP5, RA.VT2, RA.T0, RA.T1 = [240, 241], 14, 253, 3, 242, [246, 247], 4, 5
RB.n, RB.n4, RB.c4, RB.n5, RB.c5, RB.W, RB.slots = "B", 12, 20, C5A, 28 - C5A, 96, [12, 6, 7, 8, 9, 10, 11]
RB.VRD, RB.VH, RB.VG, RB.VP4, RB.VP5, RB.VT2, RB.T0, RB.T1 = [0, 3], 4, 5, 8, 9, [6, 7], 12, 13
VX3 = 15
def w2_addr(r, t0, t1):
    A(f"v_lshrrev_b32 v{t0}, 3, v1\nv_bfe_u32 v{t1}, v1, 4, 1\nv_lshlrev_b32 v{t1}, 2, v{t1}\nv_and_b32 v{r.VT2[0]}, 7, v1\nv_xor_b32 v{t1}, v{r.VT2[0]}, v{t1}\nv_lshlrev_b32 v{t1}, 4, v{t1}\nv_lshl_add_u32 v{t0}, v{t0}, 12, v{t1}")
    A(f"s_mul_i32 s{sT}, s{SW}, {448*4096}\ns_lshl_b32 s{sU}, s{sST}, 7\ns_add_u32 s{sT}, s{sT}, s{sU}\nv_add_u32 v{r.VT2[0]}, s{sT}, v{t0}\nv_add_u32 v{r.VT2[1]}, {8*4096 - 1024}, v{r.VT2[0]}")
    rot4(sRO); A(f"s_lshl_b32 s{sRO}, s{sRO}, 10")
    rot5(sGC); A(f"s_lshl_b32 s{sGC}, s{sGC}, 10")
def mlp_addr(r, t0, t1, w2=True):
    if w2: w2_addr(r, t0, t1)
    A(f"s_lshl_b32 s{sT}, s{SW}, 15\ns_add_u32 s{sT}, s{sT}, {WS_HH}\ns_lshl_b32 s{sB}, s{sDT4}, 18\ns_add_u32 s{sB}, s{sB}, s{sT}\nv_add_u32 v{r.VH}, s{sB}, v{VL}")
    A(f"s_add_u32 s{sT}, s{sRO}, {r.n4*1024}\nv_lshl_add_u32 v{r.VP4}, v1, 11, s{sT}\nv_and_b32 v{r.VP4}, 0x7fff, v{r.VP4}\ns_add_u32 s{sT}, s{sB}, 2044\nv_add_u32 v{r.VP4}, s{sT}, v{r.VP4}")
    A(f"s_mul_i32 s{sT}, s{SW}, {28*1024}\ns_add_u32 s{sT}, s{sT}, {WS_G}\ns_mul_i32 s{sB}, s{sDT5}, {2*112*1024}\ns_add_u32 s{sB}, s{sB}, s{sT}")
    A(f"s_and_b32 s{sT}, s{SW}, 1\ns_lshl_b32 s{sT}, s{sT}, 8\nv_xor_b32 v{r.VG}, s{sT}, v{VL}\nv_add_u32 v{r.VG}, s{sB}, v{r.VG}")
    A(f"s_add_u32 s{sT}, s{sGC}, {r.n5*1024}\nv_min_u32 v{t0}, {r.c5 // 2 - 1}, v1\nv_lshl_add_u32 v{r.VP5}, v{t0}, 11, s{sT}\nv_subrev_u32 v{t0}, {28*1024}, v{r.VP5}\nv_min_u32 v{r.VP5}, v{r.VP5}, v{t0}\ns_add_u32 s{sT}, s{sB}, 2044\nv_add_u32 v{r.VP5}, s{sT}, v{r.VP5}")

def p2():
    Q, O, SS, PP, KV = 16, 48, [112, 128], [144, 152], 160
    M = [112, 113, 114, 115]; K0 = 120
    T0, T1, T2, T3 = 4, 5, 6, 7
    sKN = sB
    vm.wait_all(); stamp("kvdrain")
    A(f"s_barrier\ns_cmp_lg_u32 s{SW}, 0\ns_cbranch_scc1 P2_NOF")
    flag_store(sF[0]); flag_store(sF[1]); A("P2_NOF:"); stamp_flush()
    A("P2_START:")
    A(f"s_mul_i32 s{sT}, s{sR3}, {32*896}\ns_lshl_b32 s{sU}, s{sC3}, 6\ns_add_u32 s{sT}, s{sT}, s{sU}")
    for p in range(2): A(f"buffer_load_dwordx4 {v(XR+4*p,4)}, v13, {R(RX)}, s{sT} offen offset:{32*p}")
    A(f"s_lshl_b32 s{sV}, s{sI}, 2\ns_add_u32 s{sV}, s{sV}, s{SW}\ns_lshl_b32 s{sU}, s{sH}, 6\ns_add_u32 s{sU}, s{sU}, s{sV}\ns_lshl_b32 s{sU}, s{sU}, 11")
    A(f"s_lshr_b32 s{sT}, s{sH}, 2\ns_lshl_b32 s{sT}, s{sT}, 13\ns_add_u32 s{sT}, s{sT}, {F1}\ns_lshl_b32 s{sA}, s{SW}, 9\ns_add_u32 s{sA}, s{sA}, 2048\ns_lshl_b32 s{sC}, s{sI}, 7")
    A(f"v_and_b32 v7, 3, v1\nv_lshl_add_u32 v7, v7, 7, s{sA}\nv_bfe_u32 v8, v1, 2, 1\nv_lshl_add_u32 v7, v8, 11, v7\nv_writelane_b32 v7, s{sC}, 8")
    poll(7, sT, 9, 8); stamp("s1")
    def kvload(n):
        pre = [f"s_mov_b32 s{sKN}, {n*4096}"]
        return pre + [f"buffer_load_dwordx4 {v(KV+16*(n&3)+4*f,4)}, v{VKV}, {R(RWS)}, s{sKN} offen offset:{f*1024} sc1" for f in range(4)]
    def emit(lines, tag):
        for ln in lines:
            A(ln)
            if ln.startswith("buffer_"): vm.issue(tag)
    for f in range(2): A(f"buffer_load_dwordx4 {v(Q+4*f,4)}, v{VL}, {R(RWS)}, s{sU} offen offset:{f*1024} sc1"); vm.issue("q")
    emit(kvload(0), "kv0")
    A("s_waitcnt vmcnt(2)"); stamp("qk0")
    A(f"{MFMA} {v(O,16)}, {v(KV,4)}, {v(Q,4)}, 0\n{MFMA} {v(O,16)}, {v(KV+4,4)}, {v(Q+4,4)}, {v(O,16)}")
    emit(kvload(1), "kv1")
    A(f"ds_write_b128 v{VRW[0]}, {v(Q,4)}")
    tilemax(O, T0, T1)
    A(f"v_max_f32 v{T0}, v{T0}, v{T1}\nv_mov_b32 v{T1}, v{T0}\nv_permlane32_swap_b32 v{T0}, v{T1}\nv_max_f32 v{T0}, v{T0}, v{T1}")
    set_qpad(Q, T0, T1, T2, T3)
    A(f"ds_write_b128 v{VRW[0]}, {v(Q+4,4)} offset:1024\ns_waitcnt lgkmcnt(0)")
    emit(kvload(2), "kv2")
    A("s_barrier")
    for t in range(1, 4): A(f"ds_read_b128 {v(Q+8*t,4)}, v{VRW[t]}\nds_read_b128 {v(Q+8*t+4,4)}, v{VRW[t]} offset:1024")
    emit(kvload(3), "kv3")
    A("P2_MAIN:")
    def qk(idx, part):
        n, t = idx >> 2, idx & 3; sr = SS[idx & 1]; k = KV + 16*(n & 3)
        return f"{MFMA} {v(sr,16)}, {v(k+4*part,4)}, {v(Q+8*t+4*part,4)}, {'0' if part == 0 else v(sr,16)}"
    def pv(idx, part):
        n, t = idx >> 2, idx & 3; k = KV + 16*(n & 3) + 8; o = O + 16*t
        return f"{MFMA} {v(o,16)}, {v(k+4*part,4)}, {v(PP[idx&1]+4*part,4)}, {'0' if (n == 0 and part == 0) else v(o,16)}"
    NI = 64
    A(qk(0, 0)); A(qk(0, 1)); A("s_waitcnt lgkmcnt(0)")
    for idx in range(NI):
        n, t = idx >> 2, idx & 3
        if idx in (16, 32, 48): stamp(f"a{idx}")
        if idx == 1: vm.wait("kv0")
        if idx == env("CUTAT", 61): A(f"ds_write_b32 v{VRW[1]}, v{VONE} offset:3072")
        if t == 3 and n + 1 < 16: vm.wait(f"kv{n+1}")
        mf = [qk(idx+1, 0) if idx+1 < NI else None, pv(idx-1, 0) if idx > 0 else None,
              qk(idx+1, 1) if idx+1 < NI else None, pv(idx-1, 1) if idx > 0 else None]
        sr, p = SS[idx & 1], PP[idx & 1]
        for q in range(4):
            if mf[q]: A(mf[q])
            for j in range(4): A(f"v_exp_f32 v{sr+4*q+j}, v{sr+4*q+j}")
            if q > 0:
                for j in range(2): A(f"v_cvt_pk_bf16_f32 v{p+2*(q-1)+j}, v{sr+4*(q-1)+2*j}, v{sr+4*(q-1)+2*j+1}")
        if t == 0 and 1 <= n < 13: emit(kvload(n + 3), f"kv{n+3}")
        for j in range(2): A(f"v_cvt_pk_bf16_f32 v{p+6+j}, v{sr+12+2*j}, v{sr+12+2*j+1}")
    A(pv(NI-1, 0)); A(pv(NI-1, 1)); stamp("aend")
    for t in (1, 2):
        for g in range(3): A(f"ds_write_b128 v{VRW[t]}, {v(O+16*t+4*g,4)} offset:{(t-1)*4096 + g*1024}")
    A(f"s_mov_b32 s{sT}, {fl(2.0**30)}")
    A(f"v_cmp_nlt_f32 s[{sA}:{sA+1}], v{O+12}, s{sT}\nv_cmp_nlt_f32 s[{sC}:{sC+1}], v{O+28}, s{sT}\ns_or_b32 s{sU}, s{sA+1}, s{sC+1}")
    A(f"v_cmp_nlt_f32 s[{sA}:{sA+1}], v{O+44}, s{sT}\nv_cmp_nlt_f32 s[{sC}:{sC+1}], v{O+60}, s{sT}\ns_or_b32 s{sU}, s{sU}, s{sA+1}\ns_or_b32 s{sU}, s{sU}, s{sC+1}")
    A(f"s_cselect_b32 s{sU}, 1.0, 0\nv_mov_b32 v{T0}, s{sU}")
    for t in range(4): A(f"v_cndmask_b32 v{O+16*t+13}, v{O+16*t+13}, v{T0}, s[{sHI}:{sHI+1}]")
    for g in range(3): A(f"ds_write_b128 v{VRW[3]}, {v(O+48+4*g,4)} offset:{2*4096 + g*1024}")
    for t in range(1, 4): A(f"ds_write_b128 v{VRW[t]}, {v(O+16*t+12,4)} offset:{(t-1)*4096 + 3*1024}")
    A(f"s_lshl_b32 s{sD_}, s{sI}, 2\ns_add_u32 s{sD_}, s{sD_}, s{SW}\ns_lshl_b32 s{sV}, s{sH}, 6\ns_add_u32 s{sV}, s{sV}, s{sD_}\ns_lshl_b32 s{sV}, s{sV}, 11\ns_add_u32 s{sV}, s{sV}, {WS_O}")
    A("s_waitcnt lgkmcnt(0)\ns_barrier")
    for g in (3, 0, 1, 2):
        for t in range(1, 4): A(f"ds_read_b128 {v(O+16*t+4*g,4)}, v{VRW[0]} offset:{(t-1)*4096 + g*1024}")
    def red(g):
        for r in (4*g, 4*g+2):
            A(f"v_pk_add_f32 {v(O+r,2)}, {v(O+r,2)}, {v(O+16+r,2)}\nv_pk_add_f32 {v(O+32+r,2)}, {v(O+32+r,2)}, {v(O+48+r,2)}")
        for r in (4*g, 4*g+2): A(f"v_pk_add_f32 {v(O+r,2)}, {v(O+r,2)}, {v(O+32+r,2)}")
    A("s_waitcnt lgkmcnt(9)"); red(3)
    A(f"v_readlane_b32 s{sT}, v{O+13}, 32\nv_mov_b32 v{T0}, v{O+12}\nv_mov_b32 v{T2}, v{O+12}\nv_permlane32_swap_b32 v{T0}, v{T2}\nv_rcp_f32 v{T2}, v{T2}")
    A(f"s_cmp_lg_u32 s{sT}, s{sRETRY}\ns_cbranch_scc1 P2_FALL\nP2_FIN:")
    for k, g in enumerate((0, 1, 2)):
        A(f"s_waitcnt lgkmcnt({6 - 3*k})"); red(g)
    for r in range(0, 16, 2): A(f"v_pk_mul_f32 {v(O+r,2)}, {v(O+r,2)}, {v(T2,2)} op_sel_hi:[1,0]")
    for r in range(8): A(f"v_cvt_pk_bf16_f32 v{O+16+r}, v{O+2*r}, v{O+2*r+1}")
    A(f"v_cndmask_b32 v{O+22}, v{O+22}, 0, s[{sHI}:{sHI+1}]\nv_cndmask_b32 v{O+23}, v{O+23}, 0, s[{sHI}:{sHI+1}]")
    A(f"s_mov_b32 s{sT}, 0xfffeffff\nv_and_or_b32 v{O+19}, v{O+19}, s{sT}, 1\nv_and_or_b32 v{O+23}, v{O+23}, s{sT}, 1")
    for f in range(2): A(f"buffer_store_dwordx4 {v(O+16+4*f,4)}, v{VL}, {R(RWS)}, s{sV} offen offset:{f*1024} sc1")
    stamp("ost")
    if STAMP and env("ACK", 0): A("s_waitcnt vmcnt(0)"); stamp("oack")
    stamp_flush()
    A("s_barrier")
    def fallback():
        A(f"P2_FALL:\ns_cmp_lg_u32 s{sRETRY}, 0\ns_cbranch_scc1 P2_FIN")
        A(f"s_mov_b32 s{sRETRY}, -1\ns_waitcnt vmcnt(0) lgkmcnt(0)")
        for t in range(4):
            A(f"v_cndmask_b32 v{Q+8*t+6}, v{Q+8*t+6}, 0, s[{sHI}:{sHI+1}]\nv_cndmask_b32 v{Q+8*t+7}, v{Q+8*t+7}, 0, s[{sHI}:{sHI+1}]\nv_mov_b32 v{M[t]}, 0xff800000")
        A(f"s_mov_b32 s{sU}, 0\nP2_MAXLOOP:")
        for f in range(2): A(f"buffer_load_dwordx4 {v(K0+4*f,4)}, v{VKV}, {R(RWS)}, s{sU} offen offset:{f*1024} sc1")
        A("s_waitcnt vmcnt(0)")
        for t in range(4):
            A(f"{MFMA} {v(O+16*t,16)}, {v(K0,4)}, {v(Q+8*t,4)}, 0\n{MFMA} {v(O+16*t,16)}, {v(K0+4,4)}, {v(Q+8*t+4,4)}, {v(O+16*t,16)}")
        for t in range(4):
            tilemax(O+16*t, T0, T1); A(f"v_max3_f32 v{M[t]}, v{M[t]}, v{T0}, v{T1}")
        A(f"s_add_u32 s{sU}, s{sU}, 4096\ns_cmp_lt_u32 s{sU}, {16*4096}\ns_cbranch_scc1 P2_MAXLOOP")
        A(f"s_barrier\nv_and_b32 v{T3}, 31, v1\nv_lshlrev_b32 v{T3}, 4, v{T3}")
        for t in range(4):
            A(f"v_mov_b32 v{T2}, v{M[t]}\nv_permlane32_swap_b32 v{M[t]}, v{T2}\nv_max_f32 v{M[t]}, v{M[t]}, v{T2}")
            A(f"s_add_u32 s{sT}, s{SW}, {t}\ns_and_b32 s{sT}, s{sT}, 3\ns_lshl_b32 s{sT}, s{sT}, 9\ns_add_u32 s{sT}, s{sT}, {RBUF}\ns_lshl_b32 s{sU}, s{SW}, 2\ns_add_u32 s{sU}, s{sU}, s{sT}")
            A(f"v_add_u32 v{K0+t}, s{sT}, v{T3}\nv_add_u32 v{T2}, s{sU}, v{T3}\nds_write_b32 v{T2}, v{M[t]}")
        A("s_waitcnt lgkmcnt(0)\ns_barrier")
        for t in range(4): A(f"ds_read_b128 {v(O+4*t,4)}, v{K0+t}")
        for n in range(4):
            for ln in kvload(n): A(ln)
        A("s_waitcnt vmcnt(0) lgkmcnt(0)\ns_barrier")
        for t in range(4):
            A(f"v_max3_f32 v{M[t]}, v{O+4*t}, v{O+4*t+1}, v{O+4*t+2}\nv_max_f32 v{M[t]}, v{M[t]}, v{O+4*t+3}")
            set_qpad(Q+8*t, M[t], T0, T1, T2)
        A("s_branch P2_MAIN")
    return fallback

def p3():
    D1, D2, TF = 96, 112, 176
    ofr = lambda ks: 16 + 4*ks if ks < 20 else 128 + 4*(ks - 20)
    T0, T1, T2, T3 = 8, 9, 4, 5
    A(f"{MFMA} {v(D1,16)}, {v(XR,4)}, {v(IR3,4)}, 0\n{MFMA} {v(D2,16)}, {v(IR3,4)}, {v(XR,4)}, 0")
    A(f"{MFMA} {v(D1,16)}, {v(XR+4,4)}, {v(IR3+4,4)}, {v(D1,16)}\n{MFMA} {v(D2,16)}, {v(IR3+4,4)}, {v(XR+4,4)}, {v(D2,16)}")
    for sl in range(1, 4):
        A(f"s_xor_b32 s{sU}, s{SW}, {sl}\ns_mul_i32 s{sU}, s{sU}, 12288\ns_add_u32 s{sU}, s{sU}, {RBUF}\nv_add_u32 v{VRW[sl]}, s{sU}, v{VL}")
    A("s_barrier")
    A(f"s_cmp_lt_u32 s{sC3}, 14\ns_cbranch_scc1 P3_GO")
    preread()
    A("s_waitcnt lgkmcnt(0)\ns_barrier\ns_branch P3_END\nP3_GO:")
    vm.q = []; lg.q = []
    so = Stream("SO", 8, lambda g: [(ofr(4*g+k), VO3[k >> 1], (k & 1)*1024) for k in range(4)],
                lambda g: A(f"s_add_u32 s{sT}, s{sRT3}, {g << 18}\ns_and_b32 s{sT}, s{sT}, 0x1fffff"), T0, 1, VP3, T1)
    NPRE = 3
    stamp("p3pre")
    for m in range(NPRE): so.issue(m)
    stamp("p3gate")
    def wread(ks):
        n, p = ks >> 1, ks & 1
        for half in range(2):
            A(f"ds_read_b64_tr_b16 {v(TF+4*(ks&3)+2*half,2)}, v{VWO} offset:{(n>>2)*12288 + (n&3)*2048 + (16*p+8*half)*64}"); lg.issue(f"w{ks}")
    wread(0); wread(1)
    so.check1(0); so.check2(0)
    for ks in range(32):
        lg.wait(f"w{ks}")
        if ks in (0, 16): stamp(f"p3_{ks}")
        o, wv = v(ofr(ks), 4), v(TF+4*(ks&3), 4)
        A(f"{MFMA} {v(D2,16)}, {wv}, {o}, {v(D2,16)}")
        if ks + 2 < 32: wread(ks + 2)
        A(f"{MFMA} {v(D1,16)}, {o}, {wv}, {v(D1,16)}")
        if ks % 4 < 2:
            for k in range(2): so.issue_part(NPRE + ks//4, 2*(ks % 4) + k)
        if ks % 4 == 2: so.check1(ks//4 + 1)
        if ks % 4 == 3: so.check2(ks//4 + 1)
    stamp("p3mm")
    G = 16
    A(f"s_lshl_b32 s{sB}, s{sR3}, 13\ns_add_u32 s{sB}, s{sB}, {WS_ST}\ns_lshl_b32 s{sT}, s{sC3}, 9\ns_add_u32 s{sT}, s{sT}, s{sB}")
    A(f"v_mov_b32 v{G+1}, s{sTAG}\nv_mov_b32 v{G+3}, s{sTAG+1}")
    A(f"v_pk_add_f32 v[20:21], {v(D2,2)}, {v(D2+2,2)}\nv_pk_mul_f32 v[22:23], {v(D2,2)}, {v(D2,2)}\nv_pk_fma_f32 v[22:23], {v(D2+2,2)}, {v(D2+2,2)}, v[22:23]")
    for r in range(4, 16, 2): A(f"v_pk_add_f32 v[20:21], v[20:21], {v(D2+r,2)}\nv_pk_fma_f32 v[22:23], {v(D2+r,2)}, {v(D2+r,2)}, v[22:23]")
    A(f"v_add_f32 v{G}, v20, v21\nv_add_f32 v{G+2}, v22, v23")
    A(f"v_mov_b32 v20, v{G}\nv_mov_b32 v22, v{G+2}\nv_permlane32_swap_b32 v{G}, v20\nv_permlane32_swap_b32 v{G+2}, v22\nv_add_f32 v{G}, v{G}, v20\nv_add_f32 v{G+2}, v{G+2}, v22")
    set_exec(0xFFFFFFFF)
    A(f"buffer_store_dwordx4 {v(G,4)}, v{VL}, {R(RWS)}, s{sT} offen sc1\ns_mov_b64 exec, -1")
    for r in range(8): A(f"v_cvt_pk_bf16_f32 v{24+r}, v{D2+2*r}, v{D2+2*r+1}")
    A(f"s_mul_i32 s{sT}, s{sR3}, 14\ns_add_u32 s{sT}, s{sT}, s{sC3}\ns_lshl_b32 s{sT}, s{sT}, 11\ns_add_u32 s{sT}, s{sT}, {WS_HF}")
    for p in range(2): A(f"buffer_store_dwordx4 {v(24+4*p,4)}, v{VL}, {R(RWS)}, s{sT} offen offset:{p*1024} sc1")
    A(f"v_and_b32 v{T0}, 31, v1\nv_lshlrev_b32 v{T0}, 4, v{T0}\nv_lshrrev_b32 v{T1}, 5, v1\nv_mul_u32_u24 v{T1}, 3584, v{T1}\nv_add_u32 v{T0}, v{T0}, v{T1}")
    preread()
    A("s_waitcnt lgkmcnt(0)\ns_barrier")
    if env("S3W", 1): A("s_waitcnt vmcnt(2)")
    stamp("s3pre")
    GR = 32
    A(f"s_mov_b32 s{sTO}, 0x8000\nP3_GL:")
    for k in range(7): A(f"buffer_load_dwordx4 {v(GR+4*k,4)}, v{T0}, {R(RWS)}, s{sB} offen offset:{k*512} sc1")
    A(f"s_sub_u32 s{sTO}, s{sTO}, 1\ns_waitcnt vmcnt(0)\ns_cbranch_scc1 P3_GX")
    tagcheck([GR+4*k for k in range(7)], T1, T2, T3)
    A("s_cbranch_vccnz P3_GL\nP3_GX:")
    vm.q = []
    stamp("s3")
    for k in range(1, 7): A(f"v_add_f32 v{GR}, v{GR}, v{GR+4*k}\nv_add_f32 v{GR+2}, v{GR+2}, v{GR+4*k+2}")
    m, q = GR, GR+2
    A(f"v_mov_b32 v{T0}, v{m}\nv_mov_b32 v{T1}, v{q}\nv_permlane32_swap_b32 v{m}, v{T0}\nv_permlane32_swap_b32 v{q}, v{T1}\nv_add_f32 v{m}, v{m}, v{T0}\nv_add_f32 v{q}, v{q}, v{T1}")
    A(f"v_mul_f32 v{m}, {fl(1.0/D)}, v{m}\nv_mul_f32 v{q}, {fl(1.0/D)}, v{q}\nv_fma_f32 v{q}, -v{m}, v{m}, v{q}\nv_max_f32 v{q}, 0, v{q}")
    A(f"v_add_f32 v{T0}, {fl(EPS)}, v{q}\nv_mul_f32 v{T0}, {fl(EPS)}, v{T0}\nv_add_f32 v{q}, v{q}, v{T0}\nv_rsq_f32 v{q}, v{q}\ns_add_u32 s{sT}, s{sRBW}, 8192\nv_mul_f32 v{m}, v{m}, v{q}")
    A(f"v_cndmask_b32 v{T0}, v{q}, v{m}, s[{sHI}:{sHI+1}]\nv_lshl_add_u32 v{T1}, v1, 2, s{sT}\nds_write_b32 v{T1}, v{T0}")
    A(f"v_lshrrev_b32 v{T2}, 5, v1\nv_lshl_add_u32 v{T2}, v{T2}, 4, s{sT}")
    for g in range(4): A(f"ds_read_b128 {v(64+4*g,4)}, v{T2} offset:{g*32}\nds_read_b128 {v(80+4*g,4)}, v{T2} offset:{128+g*32}")
    A(f"s_lshl_b32 s{sT}, s{sC3}, 17\ns_lshl_b32 s{sU}, s{sR3}, 11\ns_add_u32 s{sT}, s{sT}, s{sU}\ns_add_u32 s{sT}, s{sT}, {WS_HH}")
    for p in range(2):
        A(f"s_waitcnt lgkmcnt({4 - 4*p})")
        for r in range(8*p, 8*p+8, 2): A(f"v_pk_fma_f32 {v(D1+r,2)}, {v(D1+r,2)}, {v(64+r,2)}, {v(80+r,2)} neg_lo:[0,0,1] neg_hi:[0,0,1]")
        for r in range(4*p, 4*p+4): A(f"v_cvt_pk_bf16_f32 v{24+r}, v{D1+2*r}, v{D1+2*r+1}")
        A(f"v_or_b32 v{27+4*p}, 0x10000, v{27+4*p}")
        A(f"buffer_store_dwordx4 {v(24+4*p,4)}, v{VL}, {R(RWS)}, s{sT} offen offset:{p*1024} sc1")
    stamp("hhst")
    if STAMP and env("ACK", 0): A("s_waitcnt vmcnt(0)"); stamp("hhack")
    stamp_flush()
    A("P3_END:")
    if env("X1B", 1): A("s_barrier")
    vm.q = []; lg.q = []

ACC, RING, TMP = 16, 48, 96
def wread_step(r, m, slot, tag=None):
    for ti in range(2):
        for half in range(2):
            A(f"ds_read_b64_tr_b16 {v(r.W + 8*m + ti*4 + half*2, 2)}, v{r.VRD[ti]} offset:{slot*2048 + half*1024}")
            if tag is not None: lg.issue(tag)
def unswap(r): A(f"s_and_b32 s{sT}, s{SW}, 1\ns_lshl_b32 s{sT}, s{sT}, 5\nv_xor_b32 v{r.VRD[0]}, s{sT}, v{r.VRD[0]}\nv_xor_b32 v{r.VRD[1]}, s{sT}, v{r.VRD[1]}")
def preread():
    for n in range(RA.c4): wread_step(RA, n, n)
    unswap(RA)
def w2soff(n): A(f"s_add_u32 s{sA}, s{sGC}, {n*1024}\ns_sub_u32 s{sB}, s{sA}, {28*1024}\ns_min_u32 s{sA}, s{sA}, s{sB}\ns_lshl_b32 s{sA}, s{sA}, 6")
def w2dma(r, m):
    w2soff(r.n5 + m)
    A(f"s_add_u32 m0, s{sW2W}, {r.slots[m % len(r.slots)]*2048}")
    for j in range(2): A(f"buffer_load_dwordx4 v{r.VT2[j]}, {R(RW2)}, s{sA} offen offset:{j*1024} lds"); vm.issue(("d", m))
def w2read(r, m):
    vm.wait(("d", m)); wread_step(r, m, r.slots[m % len(r.slots)], ("r", m))

def mlp(r, VDR=None, VDW=None):
    isA = r is RA
    N, L = r.n, len(r.slots)
    BR, B2R, VO, IR, HR = 6, 10, 12, 224, 228
    G4, G5 = r.c4 // 4, r.c5 // 4
    dreg = lambda t, k: RING + (t % 3)*16 + 4*k
    def pw(q, j):
        if isA: return f"ds_write_b128 v{VRW[0]}, {v(ACC+8*q+4*j,4)} offset:{(q-1)*2048 + j*1024}"
        return f"ds_write_b128 v{VDR if q < 3 else VDW}, {v(ACC+8*q+4*j,4)} offset:{(6144 + q*2048 if q < 3 else 13*2048) + j*1024}"
    def add(d, a_, b_, pk):
        if pk:
            for k in range(0, 4, 2): A(f"v_pk_add_f32 {v(d+k,2)}, {v(a_+k,2)}, {v(b_+k,2)}")
        else:
            for k in range(4): A(f"v_add_f32 v{d+k}, v{a_+k}, v{b_+k}")
    OWN = 232
    def gather(pk, wide):
        src = lambda j: [(VRW[q], (q-1)*2048 + j*1024) for q in range(1, 4)] + [(VRW[q], 6144 + q*2048 + j*1024) for q in range(3)] + [(VX3, j*1024)]
        base = [TMP, ACC if wide else TMP]
        def rd(j):
            for k, (va, off) in enumerate(src(j)): A(f"ds_read_b128 {v(base[j]+4*k,4)}, v{va} offset:{off}")
        def sm(j):
            b, o = base[j], OWN + 4*j
            add(b, b, b+4, pk); add(b+8, b+8, b+12, pk); add(b+16, b+16, b+20, pk); add(o, o, b+24, pk)
            add(b, b, b+8, pk); add(o, o, b+16, pk); add(o, o, b, pk)
        if wide: rd(0); rd(1); A("s_waitcnt lgkmcnt(7)"); sm(0); A("s_waitcnt lgkmcnt(0)"); sm(1)
        else:
            for j in range(2): rd(j); A("s_waitcnt lgkmcnt(0)"); sm(j)
    def p5setup():
        A(f"v_and_b32 v6, 31, v1\nv_lshrrev_b32 v7, 5, v1\nv_mul_u32_u24 v{VO}, 896, v6\nv_lshl_add_u32 v{VO}, v7, 4, v{VO}\ns_lshr_b32 s{sA}, s{SW}, 1\ns_lshl_b32 s{sB}, s{sST}, 1\ns_add_u32 s{sA}, s{sA}, s{sB}")
        A(f"s_mul_i32 s{sE}, s{sA}, {32*896}\ns_lshl_b32 s{sB}, s{sDT5}, 7\ns_add_u32 s{sE}, s{sE}, s{sB}\ns_and_b32 s{sB}, s{SW}, 1\ns_lshl_b32 s{sB}, s{sB}, 5\ns_add_u32 s{sE}, s{sE}, s{sB}")
        A(f"s_lshl_b32 s{sA}, s{sA}, 6\nv_lshlrev_b32 v8, 1, v6\nbuffer_load_ushort v{B2R}, v8, {R(RB2)}, s{sA} offen\nv_lshlrev_b32 v7, 2, v7\nv_sub_u32 v6, v6, v7")
        for k in range(4):
            d0 = 8*(k >> 1) + 2*(k & 1)
            A(f"v_cmp_eq_u32 s[{sA}:{sA+1}], {d0}, v6\nv_cmp_eq_u32 s[{sC}:{sC+1}], {d0+1}, v6\nv_cndmask_b32 v{IR+k}, 0, v{VONE}, s[{sA}:{sA+1}]\nv_cndmask_b32 v{IR+k}, v{IR+k}, v{VONE+1}, s[{sC}:{sC+1}]")
    mk5 = lambda nm: Stream(nm + N, 2*G5, lambda g: [(dreg(2*G4 + g, k), r.VG, k*1024) for k in range(4)],
                lambda g: A(f"s_add_u32 s{sT}, s{sGC}, {(r.n5 + (g % G5)*4)*1024}\ns_sub_u32 s{sU}, s{sT}, {28*1024}\ns_min_u32 s{sT}, s{sT}, s{sU}" + (f"\ns_add_u32 s{sT}, s{sT}, {112*1024}" if g >= G5 else "")),
                r.T0, 1, r.VP5, r.T1, lambda g: (1 << 2*G5) - 1, G5)
    NP5 = min(3, G5)
    D3L = env("D3L", 1)
    A(f"s_cmp_lg_u32 s{sACT4}, 0\ns_cbranch_scc1 P4_GO{N}\ns_cmp_ge_u32 s{sJ}, 28\ns_cbranch_scc1 MLP_END{N}")
    q0 = list(vm.q); lg.q = []
    A("s_waitcnt lgkmcnt(0)\ns_barrier")
    for m0 in range(0, min(r.c5, 2*L), L):
        for m in range(m0, min(m0 + L, r.c5)): w2read(r, m)
        lg.wait_all()
        if m0 == 0 or not D3L:
            for m in range(m0 + L, min(m0 + 2*L, r.c5)): w2dma(r, m)
    si = mk5("SI")
    if isA: p5setup()
    for g in range(G5): si.gate(g)
    si.gated = 0
    for g in range(NP5 if isA else 2): si.issue(g)
    if isA: A("s_barrier\ns_barrier")
    else: si.check1(0); si.check2(0)
    A(f"s_branch P5_IN{N}\nP4_GO{N}:")
    vm.q = q0; lg.q = []
    sg = mk5("SG"); sg.gated = 0
    A(f"s_mov_b32 s{sV}, 0x10000")
    if isA:
        A(f"s_lshl_b32 s{sA}, s{sFO}, 5\nv_lshrrev_b32 v{r.T0}, 5, v1\nv_lshlrev_b32 v{r.T0}, 3, v{r.T0}")
        for g in range(2): A(f"buffer_load_dwordx2 {v(BR+2*g,2)}, v{r.T0}, {R(RB1)}, s{sA} offen offset:{g*16}")
        if env("ACKW", 1): A("s_waitcnt vmcnt(0)")
    sh = Stream("SH" + N, 2*G4, lambda g: [(dreg(g, k), r.VH, k*1024) for k in range(4)],
                lambda g: A(f"s_add_u32 s{sT}, s{sRO}, {(r.n4 + (g % G4)*4)*1024}\ns_and_b32 s{sT}, s{sT}, 0x7fff" + (f"\ns_bitset1_b32 s{sT}, 17" if g >= G4 else "")),
                r.T0, f"s{sV}", r.VP4, r.T1, lambda g: (1 << 2*G4) - 1, G4)
    seq = [(sh, g) for g in range(2*G4)] + [(sg, g) for g in range(2*G5)]
    first = [0, G4, 2*G4, 2*G4 + G5, len(seq)]
    late = {3} | ({2} if isA else set())
    issued = set()
    stamp("p4pre" + N)
    for g in range(3): sh.issue(g); issued.add(g)
    sh.check1(0); sh.check2(0)
    c1 = -2.0*math.sqrt(2.0/math.pi)*math.log2(math.e); c2 = c1*0.044715
    def compute(H):
        ph, hf = H >> 1, H & 1
        ns = (r.c4, r.c5)[ph]
        nm = f"p{4+ph}"
        if H == 2: A(f"P5_IN{N}:")
        if H in late: seq[first[H]][0].check1(seq[first[H]][1]); seq[first[H]][0].check2(seq[first[H]][1])
        if ph and isA:
            A(f"buffer_load_dwordx4 {v(HR,4)}, v{VL}, {R(RWS)}, s{sHFO} offen offset:{hf*2048} sc1")
        stamp(f"{nm}first{hf}" + N)
        for t in range(first[H], first[H+1]):
            n0 = 4*(t - first[H])
            tail = not isA and t == first[H+1] - 1
            head = not isA and t == first[H] and H > 0 and H not in late
            order = [(k, ti) for ti in (1, 0) for k in range(4)] if (tail or head) else [(k, ti) for k in range(4) for ti in (0, 1)]
            nxt = t + 2
            can = nxt < len(seq) and nxt not in issued and not (nxt >= first[H+1] and H + 1 in late)
            for sl, (k, ti) in enumerate(order):
                n = n0 + k
                if not isA and H > 0 and n0 == 4*env("RDNG", 2) and sl == 0: A("s_barrier")
                if not isA and H == 2 and n >= 14: lg.wait(("r", n))
                if not isA and H == 2 and not D3L and n0 == 12 and sl == 0: A("s_waitcnt lgkmcnt(0)")
                if head and sl == 4: A("s_waitcnt lgkmcnt(0)\ns_barrier"); lg.q = []
                acc = v(ACC + 16*ti, 16); w_, d_ = v(r.W + 8*n + 4*ti, 4), v(dreg(t, k), 4)
                A(f"{MFMA} {acc}, {d_ if ph else w_}, {w_ if ph else d_}, {'0' if n == 0 else acc}")
                if head and sl < 4: A(pw(sl >> 1, sl & 1))
                if tail and sl >= 4: A(pw(2 + ((sl - 4) >> 1), sl & 1))
                if can and sl < 4: seq[nxt][0].issue_part(seq[nxt][1], sl)
                if t + 1 < len(seq) and not (t + 1 == first[H+1] and H + 1 in late):
                    if sl == 5: seq[t+1][0].check1(seq[t+1][1])
                    if sl == 6: seq[t+1][0].check2(seq[t+1][1])
                done = (ti == 0) if (tail or head) else (ti == 1)
                if H == 1 and done and not env("NOW2", 0):
                    if 1 <= n <= L and n - 1 + L < r.c5: lg.wait(("r", n - 1)); w2dma(r, n - 1 + L)
                    if n < L: w2read(r, n)
                    if not isA:
                        if 9 <= n <= 15: w2read(r, n - 2)
                        if not D3L and 10 <= n and n + 4 < r.c5: lg.wait(("r", n - 3)); w2dma(r, n + 4)
                if H == 2 and not isA and done:
                    if not D3L and 4 <= n and n + 10 < r.c5: wread_step(r, n + 10, r.slots[(n + 10) % L])
                    if D3L and n + 14 < r.c5: w2dma(r, n + 14)
                    if D3L and 8 <= n and n + 6 < r.c5: w2read(r, n + 6)
            if can: issued.add(nxt)
        if ph and isA:
            vm.wait_all()
            A(f"{MFMA} {v(ACC,16)}, {v(IR,4)}, {v(HR,4)}, {v(ACC,16)}")
        stamp(f"{nm}mm{hf}" + N)
    def late_issue(H):
        for t in range(first[H], min(first[H] + 3, first[H+1])): seq[t][0].issue(seq[t][1]); issued.add(t)
    def partials(H):
        for q in (2, 3, 1):
            for j in range(2): A(pw(q, j))
        if H < 2:
            for j in range(4): A(f"v_lshlrev_b32 v{TMP}, 16, v{BR+j}\nv_and_b32 v{TMP+1}, 0xffff0000, v{BR+j}\nv_add_f32 v{OWN+2*j}, v{ACC+2*j}, v{TMP}\nv_add_f32 v{OWN+2*j+1}, v{ACC+2*j+1}, v{TMP+1}")
        else:
            if H == 2: A(f"v_lshlrev_b32 v{B2R}, 16, v{B2R}")
            for k in range(8): A(f"v_add_f32 v{OWN+k}, v{ACC+k}, v{B2R}")
    def epilogue(H):
        ph, hf = H >> 1, H & 1
        A("s_waitcnt lgkmcnt(0)\ns_barrier"); lg.q = []
        stamp(f"red{4+ph}{hf}")
        if H in (1, 2): late_issue(H + 1)
        if env("PRIO", 1): A("s_setprio 2")
        gather(H == 3, H > 0)
        if ph == 0:
            A(f"s_mov_b32 s{sA}, {fl(c2)}\nv_mov_b32 v{TMP}, {fl(c1)}")
            E = TMP + 8
            for k in range(8): A(f"v_mul_f32 v{E+k}, v{OWN+k}, v{OWN+k}")
            for k in range(8): A(f"v_fma_f32 v{E+k}, v{E+k}, s{sA}, v{TMP}")
            for k in range(8): A(f"v_mul_f32 v{E+k}, v{E+k}, v{OWN+k}")
            for k in range(8): A(f"v_exp_f32 v{E+k}, v{E+k}")
            for k in range(8): A(f"v_add_f32 v{E+k}, 1.0, v{E+k}")
            for k in range(8): A(f"v_rcp_f32 v{E+k}, v{E+k}")
            for k in range(8): A(f"v_mul_f32 v{OWN+k}, v{OWN+k}, v{E+k}")
        for k in range(4): A(f"v_cvt_pk_bf16_f32 v{TMP+4+k}, v{OWN+2*k}, v{OWN+2*k+1}")
        if ph == 0:
            A(f"v_or_b32 v{TMP+7}, 1, v{TMP+7}\nbuffer_store_dwordx4 {v(TMP+4,4)}, v{VL}, {R(RWS)}, s{sGST} offen sc1\ns_add_u32 s{sGST}, s{sGST}, {112*1024}")
        else:
            A(f"v_permlane32_swap_b32 v{TMP+4}, v{TMP+6}\nv_permlane32_swap_b32 v{TMP+5}, v{TMP+7}\nbuffer_store_dwordx4 {v(TMP+4,4)}, v{VO}, {R(ROUT)}, s{sE} offen offset:{hf*64}")
        stamp(("gst", "outst")[ph] + str(hf))
        if H < 3: A("s_barrier")
        stamp_flush()
    if isA:
        if env("PRIO", 1): A("s_setprio 2")
        compute(0); partials(0)
        if env("PRIO", 1): A("s_setprio 0")
        compute(1); epilogue(0); partials(1)
        for m in range(L, r.c5): w2read(r, m)
        p5setup(); epilogue(1)
        compute(2); partials(2); epilogue(2)
        compute(3); partials(3); epilogue(3)
    else:
        if env("PRIO", 1): A("s_setprio 1")
        for H in range(4):
            compute(H)
            if H == 3 or H + 1 in late:
                for q in range(2):
                    for j in range(2): A(pw(q, j))
                if H < 3: late_issue(H + 1)
                A("s_waitcnt lgkmcnt(0)\ns_barrier"); lg.q = []
            stamp_flush()
    A(f"MLP_END{N}:")

def finish():
    A(f"s_or_b32 s{sT}, s2, s{SW}\ns_cbranch_scc1 K_FIN\nv_mov_b32 v4, 0\nv_mov_b32 v5, 0\ns_mov_b64 exec, 1\nbuffer_store_dwordx2 v[4:5], v4, {R(RDBG)}, 0 offen sc1\ns_mov_b64 exec, -1")
    A("K_FIN:")
    if os.environ.get("DIAGAT"):
        A(f"DSP:\ns_memrealtime s[{sA}:{sA+1}]\ns_waitcnt lgkmcnt(0)\ns_sub_u32 s{sA}, s{sA}, s72\ns_cmp_lt_u32 s{sA}, 4000\ns_cbranch_scc1 DSP")
    if STAMP:
        A("s_waitcnt vmcnt(0)"); stamp("end"); A(f"s_memrealtime s[{sA}:{sA+1}]"); stamp_flush()
        A(f"v_writelane_b32 v{VST}, s72, 62\nv_writelane_b32 v{VST}, s{sA}, 63")
        A(f"s_lshl_b32 s{sT}, s2, 3\ns_add_u32 s{sT}, s{sT}, s{sW8}\ns_lshl_b32 s{sT}, s{sT}, 8\ns_add_u32 s{sT}, s{sT}, {WS_STAMP}\nv_lshlrev_b32 v4, 2, v1\nbuffer_store_dword v{VST}, v4, {R(RWS)}, s{sT} offen")
    A("K_END:\ns_endpgm")

def bprog():
    NT = env("NT", 0); nt = " nt" if NT else ""
    nt1 = " nt" if env("NT1", 0) else ""
    VXD = [16, 17, 18, 19]; VXE = [20, 21]; VWD = list(range(22, 29))
    sWO, sXO, sM, sWM = sA, sB, sC, sD_
    sXP, sWP = [sW1, sW1S, sW1E], [sW2, sW2S, sW2E]
    A("B_P1:"); vm.q = []; lg.q = []
    p1_common()
    A(f"s_mul_i32 s{sXO}, s{sE}, {32*896}\ns_lshl_b32 s{sWM}, s{SW}, 10")
    A("v_lshrrev_b32 v4, 4, v1\nv_and_b32 v5, 15, v1\nv_xor_b32 v5, v5, v4\nv_mul_u32_u24 v6, 896, v4")
    for j in range(4): A(f"v_xor_b32 v7, {4*j}, v5\nv_lshl_add_u32 v7, v7, 4, v6\nv_add_u32 v{VXD[j]}, {j*4*896 - j*1024}, v7")
    A(f"s_lshr_b32 s{sT}, s{sJ}, 2\ns_and_b32 s{sU}, s{sJ}, 3\ns_add_u32 s{sT}, s{sT}, s{sU}\ns_mul_i32 s{sU}, s{sT}, 11\ns_lshr_b32 s{sU}, s{sU}, 5\ns_mul_i32 s{sU}, s{sU}, 3\ns_sub_u32 s{sT}, s{sT}, s{sU}")
    if not env("P1ROT", 1): A(f"s_mov_b32 s{sT}, 0")
    for p in range(3):
        A(f"s_lshl_b32 s{sU}, s{sT}, 8\ns_add_u32 s{sXP[p]}, s{sXO}, s{sU}\ns_mul_i32 s{sU}, s{sT}, {128*2688}\ns_add_u32 s{sWP[p]}, s{sWO}, s{sU}")
        if p < 2: A(f"s_add_u32 s{sT}, s{sT}, 1\ns_cmp_eq_u32 s{sT}, 3\ns_cselect_b32 s{sT}, 0, s{sT}")
    def xpiece(p):
        if p < 3:
            for j in range(8):
                if j % 4 == 0: A(f"s_add_u32 m0, s{sM}, {XBUF[p] + (j>>2)*4096}\ns_add_u32 s{sV}, s{sXP[p]}, {(j>>2)*16*896}")
                A(f"buffer_load_dwordx4 v{VXD[j&3]}, {R(RX)}, s{sV} offen offset:{(j&3)*1024}{nt1} lds"); vm.issue(f"x{p}")
        else:
            for j in range(4):
                A(f"s_add_u32 m0, s{sM}, {XBUF[p] + j*1024}\ns_add_u32 s{sV}, s{sXO}, {(j>>1)*16*896 + 768}\nbuffer_load_dwordx4 v{VXE[j&1]}, {R(RX)}, s{sV} offen{nt1} lds"); vm.issue(f"x{p}")
    def wdma(j):
        g = j // 7
        if g == 3 and j == 21: A(f"s_add_u32 s{sT}, s{sWO}, {3*128*2688}")
        A(f"s_add_u32 m0, s{sWM}, {j*4096}\nbuffer_load_dwordx4 v{VWD[j%7]}, {R(RWQ)}, s{sWP[g] if g < 3 else sT} offen{nt1} lds"); vm.issue(f"w{g}")
    A("s_waitcnt lgkmcnt(0)")
    xpiece(0)
    for j in range(7):
        A(f"v_add_u32 v4, {256*j}, v0\nv_mul_u32_u24 v5, 4682, v4\nv_lshrrev_b32 v5, 16, v5\nv_mul_u32_u24 v6, 14, v5\nv_sub_u32 v4, v4, v6")
        A(f"v_and_b32 v6, 0xf8, v5\nv_and_b32 v7, 1, v5\nv_lshl_add_u32 v6, v7, 2, v6\nv_bfe_u32 v7, v5, 1, 2\nv_add_u32 v6, v6, v7\nv_mul_u32_u24 v6, 2688, v6\nv_lshl_add_u32 v{VWD[j]}, v4, 4, v6")
        wdma(j)
    xpiece(1)
    A("v_lshrrev_b32 v4, 3, v1\nv_mul_u32_u24 v6, 896, v4\nv_lshrrev_b32 v4, 4, v1\nv_and_b32 v5, 7, v1\nv_xor_b32 v5, v5, v4")
    for j in range(2): A(f"v_xor_b32 v7, {4*j}, v5\nv_lshl_add_u32 v7, v7, 4, v6\nv_add_u32 v{VXE[j]}, {j*8*896}, v7")
    prologue2()
    vm.wait("w0"); A("s_barrier\ns_barrier")
    for j in range(7, 14): wdma(j)
    xpiece(2)
    vm.wait("w1"); A("s_barrier\ns_barrier")
    for j in range(14, 21): wdma(j)
    xpiece(3)
    for j in range(21, 25): wdma(j)
    vm.wait("w2"); A("s_barrier")
    vm.wait_all(); A("s_barrier\ns_waitcnt lgkmcnt(0)\ns_branch B_P2")

def bprog2():
    NT = env("NT", 0); nt = " nt" if NT else ""
    A("B_P2:"); vm.q = []
    if STAMP: A("v_mov_b32 v15, -1\nB_P2S:"); st["v"] = 15
    roles(touch=False)
    r = RB
    WOR, W2T = 16, 48
    VT1, VTO, VDW, VDR = [4, 5], [8, 9], 10, 11
    w2_addr(r, 12, 13)
    A(f"v_lshrrev_b32 v12, 3, v1\nv_mul_u32_u24 v12, 3584, v12\nv_add_u32 v{VT1[0]}, v12, v13\nv_add_u32 v{VT1[1]}, {8*3584 - 1024}, v{VT1[0]}")
    A(f"v_lshrrev_b32 v12, 2, v1\nv_mul_u32_u24 v12, 896, v12\nv_and_b32 v13, 3, v1\nv_lshl_add_u32 v{VTO[0]}, v13, 4, v12\nv_add_u32 v{VTO[1]}, {16*896}, v{VTO[0]}")
    A(f"v_add_u32 v{VDW}, s{sW2W}, v{VL}\nv_add_u32 v{VDR}, s{sRBW}, v{VL}")
    tr_lane_addr(12, 13, 128, 4)
    A(f"s_and_b32 s{sT}, s{SW}, 1\ns_lshl_b32 s{sT}, s{sT}, 5\nv_xor_b32 v12, s{sT}, v12\nv_add_u32 v12, s{sW2W}, v12\nv_bfe_u32 v13, v1, 3, 1\ns_lshr_b32 s{sT}, s{SW}, 1\nv_xor_b32 v13, s{sT}, v13")
    A(f"v_lshl_add_u32 v{r.VRD[0]}, v13, 6, v12\nv_xor_b32 v13, 1, v13\nv_lshl_add_u32 v{r.VRD[1]}, v13, 6, v12")
    A(f"s_mul_i32 s{sW1S}, s{SW}, {512*3584}\ns_lshl_b32 s{sT}, s{sFT}, 7\ns_add_u32 s{sW1S}, s{sW1S}, s{sT}\ns_add_u32 s{sW1E}, s{sW1S}, {512*3584}")
    A(f"s_lshr_b32 s{sT}, s{sRO}, 10\ns_add_u32 s{sT}, s{sT}, {r.n4}\ns_and_b32 s{sT}, s{sT}, 31\ns_mul_i32 s{sT}, s{sT}, {16*3584}\ns_add_u32 s{sW1}, s{sW1S}, s{sT}")
    TH = [env("BTH", 4)]
    A(f"s_and_b32 s{sT}, s{sC3}, 7\ns_lshl_b32 s{sT}, s{sT}, 1\ns_lshl_b32 s{sD_}, s{SW}, 2\ns_add_u32 s{sD_}, s{sD_}, s{sT}\ns_min_u32 s{sC}, s{sC3}, 13\ns_lshl_b32 s{sC}, s{sC}, 6")
    A(f"s_cmp_ge_u32 s{sJ}, 24\ns_cbranch_scc1 B_NOKV\ns_barrier\nB_NOKV:")
    A(f"s_add_u32 s{sT}, s{SW}, 1\ns_and_b32 s{sT}, s{sT}, 3\ns_mul_i32 s{sT}, s{sT}, 12288\ns_add_u32 s{sT}, s{sT}, {RBUF + 3072}\nv_add_u32 v14, s{sT}, v{VL}")
    A(f"v_mov_b32 v12, 0\nds_write_b32 v14, v12\ns_waitcnt lgkmcnt(0)\ns_barrier")
    stamp("b_go")
    vm.q = []
    A(f"buffer_load_dwordx2 v[{W2T}:{W2T+1}], v12, {R(RDBG)}, 0 offen sc1"); vm.issue("tag")
    sPOS = sE
    todo = []
    def throttle():
        A(f"s_waitcnt vmcnt({TH[0]})"); vm.q = vm.q[-TH[0]:]
        while todo and ("s", todo[0]) not in vm.q:
            m = todo.pop(0); wread_step(r, m, m % 14)
    def rawitem(m):
        w2soff(m)
        for j in range(2): A(f"buffer_load_dwordx4 {v(W2T+8*m+4*j,4)}, v{r.VT2[j]}, {R(RW2)}, s{sA} offen offset:{j*1024}")
    for k in range(32):
        slot = k % 14 if k < 20 else (k - 20 + 6) % 12
        if k == 20: A(f"s_add_u32 s{sW1}, s{sW1}, {6*16*3584}\ns_cmp_ge_u32 s{sW1}, s{sW1E}\ns_cselect_b32 s{sT}, {512*3584}, 0\ns_sub_u32 s{sW1}, s{sW1}, s{sT}")
        if k == 26: A(f"s_lshr_b32 s{sT}, s{sRO}, 10\ns_mul_i32 s{sT}, s{sT}, {16*3584}\ns_add_u32 s{sW1}, s{sW1S}, s{sT}")
        if k >= 14:
            assert not [m for m in todo if m % 14 == slot]
            A("s_waitcnt lgkmcnt(0)")
        A(f"s_add_u32 m0, s{sW2W}, {slot*2048}")
        for j in range(2): A(f"buffer_load_dwordx4 v{VT1[j]}, {R(RW1)}, s{sW1} offen offset:{j*1024} lds"); vm.issue(("s", k))
        if k < 20: todo.append(k)
        A(f"s_add_u32 s{sW1}, s{sW1}, {16*3584}\ns_cmp_eq_u32 s{sW1}, s{sW1E}\ns_cselect_b32 s{sW1}, s{sW1S}, s{sW1}")
        throttle()
        if k in (4, 6, 8, 10):
            q = (k - 4) // 2
            A(f"s_add_u32 s{sT}, s{sD_}, {q}\ns_and_b32 s{sT}, s{sT}, 15\ns_mul_i32 s{sT}, s{sT}, {28*896}\ns_add_u32 s{sT}, s{sT}, s{sC}")
            for j in range(2): A(f"buffer_load_dwordx4 {v(WOR+8*q+4*j,4)}, v{VTO[j]}, {R(RWO)}, s{sT} offen"); vm.issue("wo")
            throttle()
        if k == 13:
            A(f"s_setprio 3\nv_readfirstlane_b32 s{sTAG}, v{W2T}\nv_readfirstlane_b32 s{sTAG+1}, v{W2T+1}\nv_lshlrev_b32 v12, 3, v1\ns_mul_i32 s{sV}, s{SW}, 384\ns_add_u32 s{sV}, s{sV}, {F2}")
            poll(12, sV, 48, 8); A("s_setprio 0")
            TH[0] = env("BTH2", 8)
        if k in (4, 13, 31): stamp(f"b_{k}")
    assert not todo
    w2dma(r, 0)
    for m in range(6):
        A(f"ds_read_b32 v13, v14\ns_mov_b32 s{sPOS}, {m}\ns_waitcnt vmcnt({TH[0]}) lgkmcnt(0)\ns_setprio 3\nv_cmp_ne_u32 vcc, 0, v13\ns_setprio 0\ns_cbranch_vccnz B_CUT")
        rawitem(m)
    A(f"s_mov_b32 s{sPOS}, 6")
    if env("W2T", 0):
        A(f"s_setprio 3\ns_lshr_b32 s{sT}, s{sGC}, 6\ns_add_u32 s{sT}, s{sT}, 96\nv_add_u32 v12, s{sT}, v1\nv_subrev_u32 v13, 448, v12\nv_min_u32 v12, v12, v13\nv_lshlrev_b32 v12, 12, v12\ns_setprio 0")
        A(f"s_mul_i32 s{sT}, s{SW}, {448*4096}\ns_lshl_b32 s{sU}, s{sST}, 7\ns_add_u32 s{sT}, s{sT}, s{sU}\nbuffer_load_dword v14, v12, {R(RW2)}, s{sT} offen")
    A("B_CUT:")
    stamp("b_done"); stamp_flush()
    if STAMP: A(f"v_writelane_b32 v15, s{sPOS}, 60")
    A(f"s_setprio 3\nv_min_u32 v12, 5, v1\nv_lshlrev_b32 v12, 12, v12\nv_add_u32 v12, {RBUF + 3*1024 + 32*16 + 4}, v12\ns_setprio 0")
    A(f"B_RED:\ns_barrier\nds_read_b32 v13, v12\ns_waitcnt lgkmcnt(0)\nv_cmp_ne_u32 vcc, 0, v13")
    A(f"s_cbranch_vccz B_OK\ns_cmp_lg_u32 s{sRETRY}, 0\ns_cbranch_scc1 B_OK\ns_mov_b32 s{sRETRY}, -1\ns_barrier\ns_barrier\ns_barrier\ns_branch B_RED\nB_OK:")
    A("s_barrier")
    for k in range(8): A(f"ds_write_b128 v{VDR}, {v(WOR+4*k,4)} offset:{k*1024}")
    A("s_waitcnt vmcnt(0) lgkmcnt(0)\ns_barrier")
    unswap(r); mlp_addr(r, 12, 13, False)
    A("s_barrier")
    for m in range(6):
        A(f"s_cmp_gt_u32 s{sPOS}, {m}\ns_cbranch_scc1 B_SK{m}"); rawitem(m); A(f"B_SK{m}:")
    vm.q = []
    for m in range(1, 7): w2dma(r, m)
    A("s_waitcnt vmcnt(12)")
    for m in range(6):
        for j in range(2): A(f"ds_write_b128 v{VDW}, {v(W2T+8*m+4*j,4)} offset:{m*2048 + j*1024}")
    A("s_waitcnt lgkmcnt(0)")
    if env("X1B", 1): A("s_barrier")
    mlp(r, VDR, VDW)
    if STAMP: A(f"v_mov_b32 v{VST}, v15"); del st["v"]
    A("s_branch K_FIN")

def main(out):
    prologue()
    pend0 = list(st["pend"])
    bprog()
    st["pend"] = list(pend0); p1_helper()
    st["pend"] = list(pend0); p1(); fb = p2(); p3(); vm.q = []; mlp(RA); finish()
    st["pend"] = list(pend0); bprog2(); fb()
    for h in handlers: h()
    A("CODE_END:")
    head = open("head.txt").read()
    nv = 256
    txt = head + f"; @launch grid=(256,1,1) block=(512,1,1) lds={LDS_TOTAL}\n" + '.amdgcn_target "amdgcn-amd-amdhsa--gfx950"\n.text\n' + kernel_header(NAME) + A.text() + '.section .rodata,"a"\n' + kernel_desc(NAME, nv, 102, 256)
    open(out, "w").write(txt)
    if STAMP: open(out + ".names", "w").write(" ".join(st["names"].keys()))

if __name__ == "__main__":
    main(sys.argv[1])
```

```python
import sys, struct, math, os
from asmlib import *

S, D, H, DH, F = 2048, 448, 16, 28, 1792
MB = 1 << 20
WS_Q, WS_KV, WS_O, WS_HF, WS_HH, WS_G, WS_ST, WS_FL, WS_STAMP = 0, 2*MB, 6*MB, 8*MB, 10*MB, 12*MB, 14*MB, 14*MB + 512*1024, 15*MB
F1, F2, F4, F5 = WS_FL, WS_FL + 131072, WS_FL + 2*131072, WS_FL + 3*131072
WS_RST, WS_CSG = 13*MB + 768*1024, 13*MB + 832*1024
WS_SIZE = 16*MB
WS_O = WS_HH = WS_Q
WS_G = WS_KV
EPS = 1e-5
STAMP = os.environ.get("STAMP", "0") == "1"
def env(n, d): return int(os.environ.get(n, str(d)))
def f2u(x): return struct.unpack("<I", struct.pack("<f", x))[0]
def hx(x): return f"0x{x & 0xffffffff:08x}"
def fl(x): return hx(f2u(x))
MFMA = "v_mfma_f32_32x32x16_bf16"
NAME = "sequential_preLN__mha_block__mixer_token_mlp__prompt_kernel"

class Cnt:
    def __init__(self, A, name, mx):
        self.A, self.name, self.mx, self.q = A, name, mx, []
    def issue(self, tag): self.q.append(tag)
    def wait(self, tag):
        idx = [i for i, t in enumerate(self.q) if t == tag]
        if not idx: return
        n = len(self.q) - 1 - idx[-1]
        self.A(f"s_waitcnt {self.name}({min(n, self.mx)})")
        self.q = self.q[idx[-1] + 1:]
    def wait_all(self):
        self.A(f"s_waitcnt {self.name}(0)"); self.q = []

RX, RWQ, RWO, RW1, RB1, RW2, RB2, ROUT, RDBG, RWS = 8, 12, 16, 20, 24, 28, 32, 36, 40, 44
def R(r): return f"s[{r}:{r+3}]"
SW, sH, sI, sJ, sFT, sDT4, sST, sDT5, sACT4, sTO, sTAG = 48, 49, 50, 51, 52, 53, 54, 55, 56, 57, 58
sHI, sONES = 60, 62
sT, sU, sV, sA, sB, sC, sD_, sE, sRETRY = 63, 64, 65, 66, 67, 68, 69, 70, 71
sF = [4, 5, 6, 7]
sSEC, sHQ, sW8 = 3, 92, 93
sMISS = 6
sC3, sR3 = 0, 1
sRBW, sW2W = 94, 95
sW2, sW2S, sW2E, sW1, sW1S, sW1E = 96, 97, 98, 99, 100, 101
VL, VST = 2, 255
W2A, RBUF, LDS_TOTAL = 0, 114688, 163840

A = Asm(); vm = Cnt(A, "vmcnt", 63); lg = Cnt(A, "lgkmcnt", 15)
st = {"pend": [], "names": {}}
def stamp(name):
    if os.environ.get("DIAGAT") == name or (os.environ.get("DIAGAT") and name == "start"): A("s_memrealtime s[72:73]")
    if not STAMP: return
    k = len(st["pend"]); assert k < 9, name
    n = st["names"].setdefault(name, len(st["names"]))
    A(f"{'s_memtime' if env('CYC', 0) else 's_memrealtime'} s[{74+2*k}:{75+2*k}]"); st["pend"].append(n)
def stamp_flush():
    if not STAMP or not st["pend"]: return
    A("s_waitcnt lgkmcnt(0)")
    for k, n in enumerate(st["pend"]): A(f"v_writelane_b32 v{st.get('v', VST)}, s{74+2*k}, {n}")
    st["pend"] = []

def set_exec(mask): A(f"s_mov_b32 exec_lo, {hx(mask)}\ns_mov_b32 exec_hi, {hx(mask >> 32)}")
def halfsum(x, t): A(f"v_mov_b32 v{t}, v{x}\nv_permlane32_swap_b32 v{x}, v{t}\nv_add_f32 v{x}, v{x}, v{t}")
def flag_store(soff_reg, t=4):
    A(f"v_mov_b32 v{t}, s{sTAG}\nv_mov_b32 v{t+1}, s{sTAG+1}\nv_mov_b32 v{t+2}, 0\ns_mov_b64 exec, 1")
    A(f"buffer_store_dwordx2 {v(t,2)}, v{t+2}, {R(RWS)}, s{soff_reg} offen sc1\ns_mov_b64 exec, -1"); vm.issue("flag")
def poll(voff, soff_reg, nl, t):
    L = A.label("POLL")
    set_exec((1 << nl) - 1)
    A(f"s_mov_b32 s{sTO}, 0x8000\n{L}:")
    A(f"buffer_load_dwordx2 {v(t,2)}, v{voff}, {R(RWS)}, s{soff_reg} offen sc1\ns_sub_u32 s{sTO}, s{sTO}, 1\ns_waitcnt vmcnt(0)")
    A(f"s_cbranch_scc1 {L}_x\nv_cmp_ne_u64 vcc, s[{sTAG}:{sTAG+1}], {v(t,2)}\ns_and_b64 exec, exec, vcc\n" + (f"s_cbranch_scc0 {L}_x\ns_sleep {env('PSL', 0)}\ns_branch {L}" if env("PSL", 0) else f"s_cbranch_scc1 {L}") + f"\n{L}_x:\ns_mov_b64 exec, -1")
    vm.q = []
def tr_lane_addr(dst, t, pitch, hs, rs=1):
    A(f"v_lshrrev_b32 v{dst}, 5, v1\nv_mul_u32_u24 v{dst}, {hs*pitch}, v{dst}\nv_bfe_u32 v{t}, v1, 2, 2\nv_mul_u32_u24 v{t}, {rs*pitch}, v{t}\nv_add_u32 v{dst}, v{dst}, v{t}")
    A(f"v_bfe_u32 v{t}, v1, 4, 1\nv_lshl_add_u32 v{dst}, v{t}, 5, v{dst}\nv_and_b32 v{t}, 3, v1\nv_lshl_add_u32 v{dst}, v{t}, 3, v{dst}")
def get_tag(TAGV, lab):
    A(f"v_readfirstlane_b32 s{sTAG}, v{TAGV}\nv_readfirstlane_b32 s{sTAG+1}, v{TAGV+1}")
    A(f"s_or_b32 s{sTO}, s{sTAG}, s{sTAG+1}\ns_cbranch_scc1 {lab}_ok\ns_mov_b32 s{sTO}, 0x8000\nv_mov_b32 v4, 0\n{lab}_l:")
    A(f"buffer_load_dwordx2 {v(TAGV,2)}, v4, {R(RDBG)}, 0 offen sc1\ns_sub_u32 s{sTO}, s{sTO}, 1\ns_waitcnt vmcnt(0)\ns_cbranch_scc1 {lab}_ok")
    A(f"v_readfirstlane_b32 s{sTAG}, v{TAGV}\nv_readfirstlane_b32 s{sTAG+1}, v{TAGV+1}\ns_cmp_eq_u64 s[{sTAG}:{sTAG+1}], 0\ns_cbranch_scc1 {lab}_l\n{lab}_ok:")
def tagcheck(regs, T1, T2, T3):
    A(f"v_xor_b32 v{T1}, s{sTAG}, v{regs[0]+1}\nv_xor_b32 v{T2}, s{sTAG+1}, v{regs[0]+3}\nv_or_b32 v{T1}, v{T1}, v{T2}")
    for g in regs[1:]: A(f"v_xor_b32 v{T2}, s{sTAG}, v{g+1}\nv_xor_b32 v{T3}, s{sTAG+1}, v{g+3}\nv_or3_b32 v{T1}, v{T1}, v{T2}, v{T3}")
    A(f"v_cmp_ne_u32 vcc, 0, v{T1}")
def rot4(d):
    A(f"s_bfe_u32 s{d}, s2, 0x20001\ns_mul_i32 s{d}, s{d}, 7\ns_sub_u32 s{d}, s{sFT}, s{d}\ns_add_u32 s{d}, s{d}, s{sDT4}\ns_add_u32 s{d}, s{d}, s{sDT4}")
    A(f"s_and_b32 s{sTO}, s2, 1\ns_mul_i32 s{sTO}, s{sTO}, 3\ns_add_u32 s{d}, s{d}, s{sTO}\ns_and_b32 s{d}, s{d}, 7\ns_lshl_b32 s{d}, s{d}, 2")
def rot5(d):
    A(f"s_and_b32 s{sTO}, s2, 1\ns_lshl_b32 s{sTO}, s{sTO}, 1\ns_lshl_b32 s{d}, s{sDT5}, 1\ns_add_u32 s{d}, s{d}, s{sTO}\ns_and_b32 s{sTO}, s{sST}, 7\ns_add_u32 s{d}, s{d}, s{sTO}")
    A(f"s_mul_i32 s{sTO}, s{d}, 37\ns_lshr_b32 s{sTO}, s{sTO}, 8\ns_mul_i32 s{sTO}, s{sTO}, 7\ns_sub_u32 s{d}, s{d}, s{sTO}\ns_lshl_b32 s{d}, s{d}, 2")

handlers = []
class Stream:
    def __init__(self, name, ng, loads, soff, T, bit, VP, TP, pm=None, gated=None):
        self.name, self.ng, self.loads, self.soff, self.T, self.last, self.bit = name, ng, loads, soff, T, -1, bit
        self.VP, self.TP, self.pm, self.gated = VP, TP, pm or (lambda g: 0xffffffff), ng if gated is None else gated
        A(f"s_mov_b32 s{sMISS}, {hx((1 << 2*ng) - 1)}")
    def gate(self, g):
        if g >= self.gated: return
        L = f"{self.name}g{g}"
        A(f"s_and_b32 s{sT}, s{sMISS}, {hx(3 << 2*g)}\ns_cbranch_scc1 {L}_h\n{L}_r:")
        def h():
            A(f"{L}_h:\ns_mov_b32 s{sTO}, 0x8000\ns_mov_b32 exec_hi, 0\n{L}_l:\ns_and_b32 exec_lo, s{sMISS}, {hx(self.pm(g))}")
            A(f"buffer_load_dword v{self.TP}, v{self.VP}, {R(RWS)}, 0 offen sc1\ns_sub_u32 s{sTO}, s{sTO}, 1\ns_waitcnt vmcnt(0)\ns_cbranch_scc1 {L}_x")
            A(f"v_and_b32 v{self.TP}, {self.bit}, v{self.TP}\nv_cmp_ne_u32 vcc, 0, v{self.TP}\ns_andn2_b32 s{sMISS}, s{sMISS}, vcc_lo\ns_and_b32 s{sT}, s{sMISS}, {hx(3 << 2*g)}\ns_cbranch_scc1 {L}_l")
            A(f"{L}_x:\ns_mov_b64 exec, -1\ns_branch {L}_r")
        handlers.append(h)
    def _emit(self, g, track):
        self.soff(g)
        for reg, va, off in self.loads(g):
            A(f"buffer_load_dwordx4 {v(reg,4)}, v{va}, {R(RWS)}, s{sT} offen offset:{off} sc1")
            if track: vm.issue((self.name, g))
    def issue(self, g):
        if g < self.ng: self.gate(g); self._emit(g, True); self.last = g
    def issue_part(self, g, k):
        if g >= self.ng: return
        if k == 0: self.gate(g); self.soff(g)
        reg, va, off = self.loads(g)[k]
        A(f"buffer_load_dwordx4 {v(reg,4)}, v{va}, {R(RWS)}, s{sT} offen offset:{off} sc1"); vm.issue((self.name, g))
        self.last = g
    def _red(self, g):
        r = [x[0] + 3 for x in self.loads(g)]
        A(f"v_bitop3_b32 v{self.T}, v{r[0]}, v{r[1]}, v{r[2]} bitop3:0x80\nv_bitop3_b32 v{self.T}, v{self.T}, v{r[3]}, {self.bit} bitop3:0x80")
    def check1(self, g):
        if g < self.ng: vm.wait((self.name, g)); self._red(g)
    def check2(self, g):
        if g >= self.ng: return
        L = f"{self.name}{g}"
        A(f"v_cmp_eq_u32 vcc, 0, v{self.T}\ns_cbranch_vccnz {L}_h\n{L}_r:")
        last = self.last
        def h():
            A(f"{L}_h:\ns_mov_b32 s{sTO}, 0x8000\n{L}_l:")
            self._emit(g, False)
            A(f"s_sub_u32 s{sTO}, s{sTO}, 1\ns_waitcnt vmcnt(0)\ns_cbranch_scc1 {L}_r")
            self._red(g)
            A(f"v_cmp_eq_u32 vcc, 0, v{self.T}\ns_cbranch_vccnz {L}_l\ns_branch {L}_r")
        handlers.append(h)

def prologue():
    if STAMP: A(f"s_memrealtime s[72:73]\nv_mov_b32 v{VST}, -1")
    stamp("start")
    A(f"s_load_dwordx2 s[{RX}:{RX+1}], s[0:1], 0\ns_load_dwordx2 s[{RWQ}:{RWQ+1}], s[0:1], 8")
    A("s_cmp_ge_u32 s2, 256\ns_cbranch_scc1 K_END")
    A(f"v_and_b32 v1, 63, v0\nv_lshrrev_b32 v3, 6, v0\nv_lshlrev_b32 v{VL}, 4, v1\nv_readfirstlane_b32 s{sW8}, v3\nv_and_b32 v0, 255, v0")
    for r, sz in ((RX, S*D*2), (RWQ, D*3*D*2)): A(f"s_mov_b32 s{r+2}, {sz}\ns_mov_b32 s{r+3}, 0x20000")
    A(f"s_and_b32 s{SW}, s{sW8}, 3\ns_lshr_b32 s{sJ}, s2, 3\ns_bfe_u32 s{sT}, s2, 0x20001\ns_and_b32 s{sU}, s2, 1")
    A(f"s_lshl_b32 s{sI}, s{sT}, 2\ns_and_b32 s{sV}, s{sJ}, 3\ns_add_u32 s{sI}, s{sI}, s{sV}")
    A(f"s_lshr_b32 s{sSEC}, s{sJ}, 3\ns_bfe_u32 s{sHQ}, s{sJ}, 0x10002\ns_lshl_b32 s{sV}, s{sU}, 1\ns_add_u32 s{sHQ}, s{sHQ}, s{sV}")
    A(f"s_cmp_ge_u32 s{sJ}, 24\ns_cbranch_scc1 P1_HELP\ns_cmp_lt_u32 s{sW8}, 4\ns_cbranch_scc1 A_P1")

def prologue2():
    for r, off in ((RWS, 80), (RDBG, 72), (RWO, 16), (RW1, 32), (RB1, 40), (RW2, 48), (RB2, 56), (ROUT, 64)):
        A(f"s_load_dwordx2 s[{r}:{r+1}], s[0:1], {off}")
    A(f"s_memrealtime s[{sTAG}:{sTAG+1}]")
    for r, sz in ((RWS, WS_SIZE), (RDBG, 256), (RWO, D*D*2), (RW1, S*F*2), (RB1, F*2), (RW2, S*F*2), (RB2, S*2), (ROUT, S*D*2)):
        A(f"s_mov_b32 s{r+2}, {sz}\ns_mov_b32 s{r+3}, 0x20000")
    A(f"s_mov_b32 s{sHI}, 0\ns_mov_b32 s{sHI+1}, -1\ns_mov_b32 s{sONES}, 0x3f803f80\ns_mov_b32 s{sRETRY}, 0")
    A(f"s_mul_i32 s{sRBW}, s{SW}, 12288\ns_add_u32 s{sRBW}, s{sRBW}, {RBUF}\ns_mul_i32 s{sW2W}, s{SW}, 28672")

def roles(touch=True):
    A(f"s_bfe_u32 s{sT}, s2, 0x20001\ns_and_b32 s{sU}, s2, 1")
    pass
    A(f"s_sub_u32 s{sV}, 25, s{sU}\ns_cmp_lt_u32 s{sJ}, s{sV}\ns_cselect_b32 s{sACT4}, 1, 0\ns_cselect_b32 s{sV}, s{sJ}, 0")
    A(f"s_mul_i32 s{sFT}, s{sU}, 25\ns_add_u32 s{sV}, s{sV}, s{sFT}\ns_mul_i32 s{sDT4}, s{sV}, 9363\ns_lshr_b32 s{sDT4}, s{sDT4}, 16")
    A(f"s_mul_i32 s{sFT}, s{sDT4}, 7\ns_sub_u32 s{sV}, s{sV}, s{sFT}\ns_mul_i32 s{sFT}, s{sT}, 7\ns_add_u32 s{sFT}, s{sV}, s{sFT}")
    A(f"s_cmp_lt_u32 s{sJ}, 28\ns_cselect_b32 s{sV}, s{sJ}, 0\ns_mul_i32 s{sST}, s{sU}, 28\ns_add_u32 s{sV}, s{sV}, s{sST}")
    A(f"s_lshr_b32 s{sDT5}, s{sV}, 3\ns_and_b32 s{sV}, s{sV}, 7\ns_lshl_b32 s{sST}, s{sT}, 3\ns_add_u32 s{sST}, s{sST}, s{sV}")
    A(f"s_lshl_b32 s{sT}, s{sHQ}, 2\ns_add_u32 s{sT}, s{sT}, s{sSEC}\ns_lshl_b32 s{sT}, s{sT}, 4\ns_add_u32 s{sT}, s{sT}, s{sI}\ns_lshl_b32 s{sT}, s{sT}, 7\ns_add_u32 s{sF[0]}, s{sT}, {F1}")
    A(f"s_and_b32 s{sT}, s2, 7\ns_lshl_b32 s{sT}, s{sT}, 1\ns_and_b32 s{sH}, s{sJ}, 1\ns_add_u32 s{sH}, s{sH}, s{sT}\ns_lshr_b32 s{sI}, s{sJ}, 1")
    A(f"s_lshr_b32 s{sR3}, s{sJ}, 4\ns_add_u32 s{sR3}, s{sR3}, s{sT}\ns_lshl_b32 s{sR3}, s{sR3}, 2\ns_add_u32 s{sR3}, s{sR3}, s{SW}\ns_and_b32 s{sC3}, s{sJ}, 15")
    A(f"s_lshl_b32 s{sT}, s2, 3\ns_add_u32 s{sF[1]}, s{sT}, {F2}")
    if not touch: return
    A(f"s_lshl_b32 s{sV}, s{sR3}, 4\ns_add_u32 s{sV}, s{sV}, s{sC3}\ns_lshl_b32 s{sV}, s{sV}, 9\ns_add_u32 s{sV}, s{sV}, {WS_ST}\nv_lshl_add_u32 v4, v1, 7, s{sV}")
    A(f"v_writelane_b32 v4, s{sF[0]}, 4\nv_writelane_b32 v4, s{sF[1]}, 5\ns_mov_b64 exec, {0x3f if env('STT', 1) else 0x30}\nbuffer_load_dword v127, v4, {R(RWS)}, 0 offen sc1\ns_mov_b64 exec, -1")
    vm.issue("touch")

def p1_helper():
    TAGV = 14
    sHX = sA
    A("P1_HELP:")
    vm.q = []
    prologue2()
    A(f"s_and_b32 s{sHX}, s2, 7\ns_lshl_b32 s{sHX}, s{sHX}, 3\ns_add_u32 s{sHX}, s{sHX}, s{sJ}\ns_sub_u32 s{sHX}, s{sHX}, 24")
    A(f"v_lshrrev_b32 v4, 3, v1\nv_and_b32 v5, 7, v1\nv_lshlrev_b32 v5, 4, v5\nv_mov_b32 v7, 0")
    A(f"s_cmp_ge_u32 s{sW8}, 4\ns_cbranch_scc1 H_CS")
    A(f"v_mul_u32_u24 v6, 896, v4\nv_add_u32 v6, v6, v5\ns_lshl_b32 s{sB}, s{sHX}, 2\ns_add_u32 s{sB}, s{sB}, s{SW}\ns_mul_i32 s{sT}, s{sB}, {8*896}\ns_waitcnt lgkmcnt(0)")
    for m in range(7): A(f"buffer_load_dwordx4 {v(16+4*m,4)}, v6, {R(RX)}, s{sT} offen offset:{m*128}")
    A("v_mov_b32 v80, 0\nv_mov_b32 v82, 0\nv_mov_b32 v84, 0\nv_mov_b32 v86, 0\ns_waitcnt vmcnt(0)")
    A(f"buffer_load_dwordx2 {v(TAGV,2)}, v7, {R(RDBG)}, 0 offen sc1")
    for k in range(28): A(f"v_dot2c_f32_bf16 v{80+4*(k&1)}, s{sONES}, v{16+k}\nv_dot2c_f32_bf16 v{82+4*(k&1)}, v{16+k}, v{16+k}")
    A("v_add_f32 v80, v80, v84\nv_add_f32 v82, v82, v86")
    for m in ("quad_perm:[1,0,3,2]", "quad_perm:[2,3,0,1]", "row_half_mirror"):
        for r in (80, 82): A(f"v_add_f32_dpp v{r}, v{r}, v{r} {m} row_mask:0xf bank_mask:0xf")
    A(f"v_mul_f32 v80, {fl(1.0/D)}, v80\nv_mul_f32 v82, {fl(1.0/D)}, v82\nv_fma_f32 v82, -v80, v80, v82\nv_max_f32 v82, 0, v82\nv_add_f32 v82, {fl(EPS)}, v82\nv_rsq_f32 v82, v82")
    A(f"v_lshlrev_b32 v6, 4, v4\nv_mul_f32 v80, v80, v82\nv_sub_f32 v80, 0, v80\ns_waitcnt vmcnt(0)")
    get_tag(TAGV, "H_T1")
    A(f"v_mov_b32 v81, s{sTAG}\nv_mov_b32 v83, s{sTAG+1}\ns_lshl_b32 s{sT}, s{sB}, 7\ns_add_u32 s{sT}, s{sT}, {WS_RST}")
    set_exec(0x0101010101010101)
    A(f"buffer_store_dwordx4 v[80:83], v6, {R(RWS)}, s{sT} offen sc1\ns_mov_b64 exec, -1")
    stamp("h_pub"); stamp_flush()
    A("s_barrier")
    roles()
    addr_setup()
    A("s_branch P2_START")
    st["pend"] = [0] if STAMP else []
    A(f"H_CS:\ns_lshl_b32 s{sB}, s{SW}, 6\ns_add_u32 s{sB}, s{sB}, s{sHX}\ns_cmp_ge_u32 s{sB}, 84\ns_cbranch_scc1 H_PF")
    A(f"v_mul_u32_u24 v6, 2688, v4\nv_add_u32 v6, v6, v5\ns_and_b32 s{sC}, s{sB}, 3\ns_lshr_b32 s{sD_}, s{sB}, 2\ns_mul_i32 s{sT}, s{sC}, {112*2688}\ns_lshl_b32 s{sU}, s{sD_}, 7\ns_add_u32 s{sT}, s{sT}, s{sU}\ns_waitcnt lgkmcnt(0)")
    for m in range(14): A(f"buffer_load_dwordx4 {v(16+4*m,4)}, v6, {R(RWQ)}, s{sT} offen\ns_add_u32 s{sT}, s{sT}, {8*2688}")
    A(f"s_mov_b32 s{sT}, 0x3f80\ns_mov_b32 s{sU}, 0x3f800000")
    for r in range(80, 88): A(f"v_mov_b32 v{r}, 0")
    for m in range(14):
        if m % 4 == 0: A(f"s_waitcnt vmcnt({max(0, 14 - m - 4)})")
        if m == 12: A(f"buffer_load_dwordx2 {v(TAGV,2)}, v7, {R(RDBG)}, 0 offen sc1")
        for k in range(4): A(f"v_dot2c_f32_bf16 v{80+2*k}, s{sT}, v{16+4*m+k}\nv_dot2c_f32_bf16 v{81+2*k}, s{sU}, v{16+4*m+k}")
    for r in range(80, 88): A(f"v_add_f32_dpp v{r}, v{r}, v{r} row_ror:8 row_mask:0xf bank_mask:0xf")
    for op in ("v_permlane16_swap_b32", "v_permlane32_swap_b32"):
        for r in range(80, 88): A(f"v_mov_b32 v{r+8}, v{r}")
        for r in range(80, 88): A(f"{op} v{r}, v{r+8}")
        for r in range(80, 88): A(f"v_add_f32 v{r}, v{r}, v{r+8}")
    A("v_mov_b32 v88, v80\nv_mov_b32 v90, v81")
    for pi in range(1, 4): A(f"v_cmp_eq_u32 vcc, {pi}, v4\nv_cndmask_b32 v88, v88, v{80+2*pi}, vcc\nv_cndmask_b32 v90, v90, v{81+2*pi}, vcc")
    A(f"v_lshlrev_b32 v6, 2, v5\nv_lshl_add_u32 v6, v4, 4, v6\ns_waitcnt vmcnt(0)")
    get_tag(TAGV, "H_T2")
    A(f"v_mov_b32 v89, s{sTAG}\nv_mov_b32 v91, s{sTAG+1}\ns_mul_i32 s{sT}, s{sC}, 10752\ns_lshl_b32 s{sU}, s{sD_}, 9\ns_add_u32 s{sT}, s{sT}, s{sU}\ns_add_u32 s{sT}, s{sT}, {WS_CSG}")
    set_exec(0xFFFFFFFF)
    A(f"buffer_store_dwordx4 v[88:91], v6, {R(RWS)}, s{sT} offen sc1\ns_mov_b64 exec, -1\ns_barrier\ns_branch B_P2")
    A(f"H_PF:\ns_cmp_lt_u32 s{SW}, 2\ns_cbranch_scc1 H_W")
    sQ = sB
    A(f"s_sub_u32 s{sQ}, s{sJ}, 24\ns_lshl_b32 s{sQ}, s{sQ}, 1\ns_add_u32 s{sQ}, s{sQ}, s{SW}\ns_sub_u32 s{sQ}, s{sQ}, 2")
    A(f"s_getpc_b64 s[{sC}:{sC+1}]\nCODE_REF:\ns_lshl_b32 s{sT}, s{sQ}, 12\nv_lshl_add_u32 v6, v1, 7, s{sT}\nv_min_u32 v6, CODE_END-CODE_REF-4, v6")
    A(f"v_mov_b32 v9, s{sC+1}\nv_add_co_u32 v8, vcc, s{sC}, v6\nv_addc_co_u32 v9, vcc, 0, v9, vcc")
    set_exec(0xFFFFFFFF)
    A("global_load_dword v25, v[8:9], off\ns_mov_b64 exec, -1\ns_waitcnt lgkmcnt(0)\ns_barrier")
    A("v_lshlrev_b32 v6, 7, v1")
    A(f"s_and_b32 s{sT}, s2, 7\ns_lshl_b32 s{sT}, s{sT}, 4\ns_add_u32 s{sT}, s{sT}, s{sQ}\ns_mul_i32 s{sT}, s{sT}, {7*8192}")
    for k in range(env("NP1", 0)): A(f"s_add_u32 s{sU}, s{sT}, {k*8192}\nbuffer_load_dword v{16+k}, v6, {R(RW1)}, s{sU} offen")
    for k in range(env("NP2", 0)): A(f"s_add_u32 s{sU}, s{sT}, {k*8192}\nbuffer_load_dword v{26+k}, v6, {R(RW2)}, s{sU} offen")
    if env("WOT", 0) == 1:
        A(f"s_mul_i32 s{sT}, s{sQ}, {196*128}")
        set_exec((1 << 49) - 1)
        for k in range(4): A(f"s_add_u32 s{sU}, s{sT}, {k*49*128}\nbuffer_load_dword v24, v6, {R(RWO)}, s{sU} offen")
        A("s_mov_b64 exec, -1")
    if STAMP:
        A("s_waitcnt vmcnt(0)"); stamp("h_touch"); stamp_flush(); A(f"v_mov_b32 v15, v{VST}\ns_branch B_P2S")
    A("s_branch B_P2\nH_W:\ns_waitcnt lgkmcnt(0)\ns_barrier\ns_branch B_P2")

XA = LDS_TOTAL - 65536
XBUF = [8192, 0, 8192, 4096]
def p1_common():
    sWO, sM = sA, sC
    A(f"s_mul_i32 s{sWO}, s{sSEC}, 896\ns_mul_i32 s{sT}, s{sHQ}, 224\ns_add_u32 s{sWO}, s{sWO}, s{sT}")
    A(f"s_lshl_b32 s{sE}, s{sI}, 2\ns_add_u32 s{sE}, s{sE}, s{SW}\ns_lshl_b32 s{sM}, s{SW}, 14\ns_add_u32 s{sM}, s{sM}, {XA}")

def p1():
    XF, ACC, WF = 16, 128, 192
    VXR = list(range(80, 88)); VXS = list(range(88, 92)); VWR = [92, 93]; TAGV = 94
    xf = lambda ks: XF + ((ks + 8) & 15)*4 if False else XF + (ks & 15)*4
    sWO, sM = sA, sC
    A("A_P1:")
    prologue2()
    p1_common()
    A(f"v_and_b32 v4, 31, v1\nv_lshrrev_b32 v5, 5, v1\nv_and_b32 v6, 15, v1\nv_xor_b32 v6, v6, v5\nv_lshlrev_b32 v6, 4, v6\nv_lshl_add_u32 v6, v4, 8, v6\nv_add_u32 v6, s{sM}, v6")
    for k in range(8): A(f"v_xor_b32 v{VXR[k]}, {k<<5}, v6")
    A(f"v_bfe_u32 v6, v1, 1, 3\nv_xor_b32 v6, v6, v5\nv_lshlrev_b32 v6, 4, v6\nv_lshl_add_u32 v6, v4, 7, v6\nv_add_u32 v6, s{sM}, v6")
    for k in range(4): A(f"v_xor_b32 v{VXS[k]}, {k<<5}, v6")
    tr_lane_addr(VWR[0], 4, 224, 8, 2); A(f"v_add_u32 v{VWR[1]}, {14*3584}, v{VWR[0]}")
    A("s_waitcnt lgkmcnt(0)")
    stamp("karg")
    A(f"s_or_b32 s{sT}, s2, s{SW}\ns_cbranch_scc1 P1_NOTAG")
    A(f"s_bitset1_b32 s{sTAG+1}, 31\nv_mov_b32 v8, s{sTAG}\nv_mov_b32 v9, s{sTAG+1}\nv_mov_b32 v10, 0\nv_mov_b32 v11, 0\ns_mov_b64 exec, 1\nbuffer_atomic_cmpswap_x2 v[8:11], v10, {R(RDBG)}, 0 offen sc1\ns_mov_b64 exec, -1\nP1_NOTAG:")
    A(f"s_mov_b32 s7, s{sE}")
    roles()
    addr_setup()
    A(f"s_mov_b32 s{sE}, s7\ns_lshl_b32 s{sM}, s{SW}, 14\ns_add_u32 s{sM}, s{sM}, {XA}")
    stamp_flush()
    A(f"s_cmp_eq_u32 s{sSEC}, 2\ns_cbranch_scc1 P1_V")
    for isv in (0, 1):
        vm.q = []; lg.q = []
        if isv: A("P1_V:")
        def xread(p):
            for k in range(8 if p < 3 else 4):
                A(f"ds_read_b128 {v(xf(8*p+k), 4)}, v{(VXR if p < 3 else VXS)[k]} offset:{XBUF[p]}"); lg.issue(f"x{p}")
        def wread(ks, hds=range(4)):
            for hd in hds:
                for half in range(2):
                    A(f"ds_read_b64_tr_b16 {v(WF + (ks&1)*16 + hd*4 + half*2, 2)}, v{VWR[ks//14]} offset:{(ks%14)*3584 + half*224 + hd*56}"); lg.issue(f"w{ks}_{hd}")
        def gload():
            A(f"buffer_load_dwordx4 v[16:19], v4, {R(RWS)}, s{sU} offen sc1")
            for kq in range(4): A(f"buffer_load_dwordx4 {v(20+4*kq,4)}, v{5+kq}, {R(RWS)}, s{sV} offen sc1")
        for p in range(4):
            k0, k1 = 8*p, min(8*p + 8, 28)
            if p == 3:
                A(f"v_and_b32 v4, 31, v1\nv_lshlrev_b32 v4, 4, v4\ns_lshl_b32 s{sU}, s{sE}, 9\ns_add_u32 s{sU}, s{sU}, {WS_RST}\ns_lshl_b32 s{sV}, s{sWO}, 2\ns_add_u32 s{sV}, s{sV}, {WS_CSG}")
                A(f"v_min_u32 v5, 55, v1\nv_lshlrev_b32 v5, 4, v5\nv_add_u32 v6, 10752, v5\nv_add_u32 v7, 21504, v5\nv_add_u32 v8, 32256, v5\nv_mov_b32 v9, 0")
            A("s_barrier"); stamp(f"g{p}")
            xread(p); wread(k0, [0, 1, 2])
            if p == 3:
                A(f"buffer_load_dwordx2 {v(TAGV,2)}, v9, {R(RDBG)}, 0 offen sc1"); gload()
            lg.wait(f"x{p}")
            if p < 2: A("s_barrier")
            wread(k0, [3])
            for ks in range(k0, k1):
                x = v(xf(ks), 4)
                for hd in range(4):
                    lg.wait(f"w{ks}_{hd}")
                    w_ = v(WF + (ks&1)*16 + hd*4, 4); acc = v(ACC + 16*hd, 16)
                    A(f"{MFMA} {acc}, {x if isv else w_}, {w_ if isv else x}, {'0' if ks == 0 else acc}")
                    if ks + 1 < k1: wread(ks + 1, [hd])
        stamp("mfma_done")
        A("s_waitcnt vmcnt(5)")
        get_tag(TAGV, f"P1_T{isv}")
        L = A.label("P1_G")
        A(f"s_waitcnt vmcnt(0)")
        tagcheck([16, 20, 24, 28, 32], 96, 97, 98)
        A(f"s_cbranch_vccz {L}_x\nv_and_b32 v4, 31, v1\nv_lshlrev_b32 v4, 4, v4\ns_mov_b32 s{sTO}, 0x8000\n{L}:")
        gload()
        A(f"s_sub_u32 s{sTO}, s{sTO}, 1\ns_waitcnt vmcnt(0)\ns_cbranch_scc1 {L}_x")
        tagcheck([16, 20, 24, 28, 32], 96, 97, 98)
        A(f"s_cbranch_vccnz {L}\n{L}_x:")
        stamp("gran")
        A("v_add_f32 v20, v20, v24\nv_add_f32 v28, v28, v32\nv_add_f32 v22, v22, v26\nv_add_f32 v30, v30, v34\nv_add_f32 v20, v20, v28\nv_add_f32 v21, v22, v30")
        A(f"s_add_u32 s{sT}, s{sM}, 8192\nv_lshl_add_u32 v4, v1, 3, s{sT}\nds_write_b64 v4, v[20:21]\nv_lshrrev_b32 v5, 5, v1\nv_lshl_add_u32 v5, v5, 4, s{sT}")
        PK = 96
        A(f"s_lshl_b32 s{sU}, s{sHQ}, 8\ns_add_u32 s{sU}, s{sU}, s{sE}")
        if not isv:
            for hd in range(4):
                for g in range(4): A(f"ds_read_b128 {v(32+16*hd+4*g,4)}, v5 offset:{hd*112 + g*32}"); lg.issue(f"c{hd}")
            QS = DH ** -0.5 * math.log2(math.e)
            A(f"s_cmp_eq_u32 s{sSEC}, 0\ns_cselect_b32 s{sV}, {fl(QS)}, 1.0\ns_cselect_b32 s{sA}, 0, s{sONES}\ns_cselect_b32 s{sB}, 0, 0x3f80\ns_cselect_b32 s{sC}, {WS_Q}, {WS_KV}")
            A(f"s_add_u32 s{sD_}, s{sSEC}, 11\ns_lshl_b32 s{sU}, s{sU}, s{sD_}\ns_add_u32 s{sU}, s{sU}, s{sC}\ns_lshl_b32 s{sD_}, 64, s{sD_}")
            A(f"v_mul_f32 v16, s{sV}, v16\nv_mul_f32 v18, s{sV}, v18\nv_mov_b32 v8, s{sA}\nv_mov_b32 v9, s{sB}")
            for hd in range(4):
                lg.wait(f"c{hd}")
                c, ac = 32+16*hd, ACC+16*hd
                for r in range(0, 16, 2): A(f"v_pk_mul_f32 {v(c+r,2)}, {v(c+r,2)}, v[16:17] op_sel_hi:[1,0]")
                for r in range(0, 16, 2): A(f"v_pk_fma_f32 {v(ac+r,2)}, {v(ac+r,2)}, v[18:19], {v(c+r,2)} op_sel_hi:[1,0,1]")
                for r in range(8): A(f"v_cvt_pk_bf16_f32 v{PK+8*hd+r}, v{ac+2*r}, v{ac+2*r+1}")
                A(f"v_cndmask_b32 v{PK+8*hd+6}, v{PK+8*hd+6}, v8, s[{sHI}:{sHI+1}]\nv_cndmask_b32 v{PK+8*hd+7}, v{PK+8*hd+7}, v9, s[{sHI}:{sHI+1}]")
                for f in range(2): A(f"v_and_b32 v{PK+8*hd+4*f+3}, 0xfffefffe, v{PK+8*hd+4*f+3}")
                for f in range(2): A(f"buffer_store_dwordx4 {v(PK+8*hd+4*f,4)}, v{VL}, {R(RWS)}, s{sU} offen offset:{f*1024} sc1")
                A(f"s_add_u32 s{sU}, s{sU}, s{sD_}")
        else:
            A(f"v_cndmask_b32 v6, v18, v16, s[{sHI}:{sHI+1}]\nv_lshl_add_u32 v4, v1, 2, s{sT}\nds_write_b32 v4, v6 offset:512")
            A(f"v_and_b32 v6, 31, v1\nv_lshl_add_u32 v4, v6, 2, s{sT}")
            for g in range(4): A(f"ds_read_b128 {v(32+4*g,4)}, v5 offset:{512 + g*32}\nds_read_b128 {v(48+4*g,4)}, v5 offset:{640 + g*32}")
            for hd in range(4): A(f"ds_read_b32 v{24+2*hd}, v4 offset:{hd*112}")
            A(f"s_lshl_b32 s{sU}, s{sU}, 12\ns_add_u32 s{sU}, s{sU}, {WS_KV + 2048}")
            A(f"v_cmp_eq_u32 vcc, 28, v6\nv_mov_b32 v9, s{sONES}\nv_cndmask_b32 v8, 0, v9, vcc\nv_mov_b32 v9, v8")
            for r in range(0, 16, 2): A(f"v_pk_mov_b32 {v(PK+r,2)}, v[8:9], v[8:9]")
            A(f"s_mov_b32 s{sA}, 0x0fffffff\ns_mov_b32 s{sA+1}, 0x0fffffff\ns_waitcnt lgkmcnt(0)")
            for hd in range(4):
                ac = ACC+16*hd; pk = PK + 8*(hd & 1)
                for r in range(0, 16, 2): A(f"v_pk_mul_f32 {v(64+r,2)}, {v(48+r,2)}, {v(24+2*hd,2)} op_sel_hi:[1,0]")
                for r in range(0, 16, 2): A(f"v_pk_fma_f32 {v(ac+r,2)}, {v(ac+r,2)}, {v(32+r,2)}, {v(64+r,2)}")
                A(f"s_mov_b64 exec, s[{sA}:{sA+1}]")
                for r in range(8): A(f"v_cvt_pk_bf16_f32 v{pk+r}, v{ac+2*r}, v{ac+2*r+1}")
                A(f"v_and_b32 v{pk+3}, -2, v{pk+3}\nv_and_b32 v{pk+7}, -2, v{pk+7}\ns_mov_b64 exec, -1")
                for f in range(2): A(f"buffer_store_dwordx4 {v(pk+4*f,4)}, v{VL}, {R(RWS)}, s{sU} offen offset:{f*1024} sc1")
                A(f"s_add_u32 s{sU}, s{sU}, {64*4096}")
        stamp("kvst"); stamp_flush()
        if not isv: A("s_branch P1_DONE")
    A("P1_DONE:")

def tilemax(sreg, T0, T1):
    A(f"v_max3_f32 v{T0}, v{sreg}, v{sreg+1}, v{sreg+2}\nv_max3_f32 v{T1}, v{sreg+3}, v{sreg+4}, v{sreg+5}")
    A(f"v_max3_f32 v{T0}, v{T0}, v{sreg+6}, v{sreg+7}\nv_max3_f32 v{T1}, v{T1}, v{sreg+8}, v{sreg+9}")
    A(f"v_max3_f32 v{T0}, v{T0}, v{sreg+10}, v{sreg+11}\nv_max3_f32 v{T1}, v{T1}, v{sreg+12}, v{sreg+13}")
    A(f"v_max3_f32 v{T0}, v{T0}, v{sreg+14}, v{sreg+15}")
def set_qpad(q, m, T0, T1, T2):
    A(f"v_sub_f32 v{T0}, 0, v{m}\nv_and_b32 v{T1}, 0xffff0000, v{T0}\nv_sub_f32 v{T0}, v{T0}, v{T1}")
    A(f"v_and_b32 v{T2}, 0xffff0000, v{T0}\nv_sub_f32 v{T0}, v{T0}, v{T2}\nv_lshrrev_b32 v{T0}, 16, v{T0}")
    A(f"v_lshrrev_b32 v{T1}, 16, v{T1}\nv_or_b32 v{T1}, v{T1}, v{T2}")
    A(f"v_cndmask_b32 v{q+6}, v{q+6}, v{T1}, s[{sHI}:{sHI+1}]\nv_cndmask_b32 v{q+7}, v{q+7}, v{T0}, s[{sHI}:{sHI+1}]")

XR, IR3 = 224, 232
VRD, VFL, VKV, VONE, VRB, VWO = [240, 241], 242, 243, 244, [246, 247], 248
VO3, VP3, VH, VP4, VG, VP5 = [10, 11], 12, [14, 15], 3, [253, 254], 242
sRO, sGC, sGST, sHFO, sFO, sRT3 = 96, 97, 98, 99, 100, 101
VRW = [249, 250, 251, 252]
def addr_setup():
    tr_lane_addr(4, 5, 128, 4)
    A(f"s_and_b32 s{sT}, s{SW}, 1\ns_lshl_b32 s{sT}, s{sT}, 5\nv_xor_b32 v4, s{sT}, v4")
    A(f"v_bfe_u32 v5, v1, 3, 1\ns_lshr_b32 s{sT}, s{SW}, 1\nv_xor_b32 v5, s{sT}, v5")
    A(f"v_lshl_add_u32 v6, v5, 6, v4\nv_xor_b32 v5, 1, v5\nv_lshl_add_u32 v7, v5, 6, v4")
    A(f"v_add_u32 v{VRD[0]}, s{sW2W}, v6\nv_add_u32 v{VRD[1]}, s{sW2W}, v7")
    A(f"v_mov_b32 v{VONE}, 0x3f80\nv_mov_b32 v{VONE+1}, 1.0")
    A(f"s_lshl_b32 s{sT}, s{sH}, 2\ns_add_u32 s{sT}, s{sT}, s{SW}\ns_lshl_b32 s{sT}, s{sT}, 16\ns_add_u32 s{sT}, s{sT}, {WS_KV}\nv_add_u32 v{VKV}, s{sT}, v{VL}")
    tr_lane_addr(VWO, 4, 64, 4); A(f"v_add_u32 v{VWO}, {RBUF}, v{VWO}\nv_add_u32 v{VRW[0]}, s{sRBW}, v{VL}")
    for t in range(1, 4):
        A(f"s_add_u32 s{sT}, s{SW}, {t}\ns_and_b32 s{sT}, s{sT}, 3\ns_mul_i32 s{sT}, s{sT}, 12288\ns_add_u32 s{sT}, s{sT}, {RBUF}\nv_add_u32 v{VRW[t]}, s{sT}, v{VL}")
    A("v_and_b32 v4, 31, v1\nv_lshrrev_b32 v5, 5, v1\nv_lshlrev_b32 v6, 3, v5\nv_sub_u32 v6, v4, v6")
    for p in range(2):
        for r in range(4):
            A(f"v_cmp_eq_u32 vcc, {16*p+2*r}, v6\nv_cmp_eq_u32 s[{sU}:{sU+1}], {16*p+2*r+1}, v6\nv_cndmask_b32 v{IR3+4*p+r}, 0, v{VONE}, vcc\nv_cndmask_b32 v{IR3+4*p+r}, v{IR3+4*p+r}, v{VONE+1}, s[{sU}:{sU+1}]")
    A("v_mul_u32_u24 v13, 896, v4\nv_lshl_add_u32 v13, v5, 4, v13")
    A(f"s_lshl_b32 s{sB}, s{sR3}, 11\ns_add_u32 s{sB}, s{sB}, {WS_O}\nv_add_u32 v{VO3[0]}, s{sB}, v{VL}\nv_add_u32 v{VO3[1]}, 0x20000, v{VO3[0]}\ns_and_b32 s{sT}, s{sC3}, 7\ns_lshl_b32 s{sRT3}, s{sT}, 18")
    A(f"s_lshl_b32 s{sT}, s{sT}, 1\nv_add_u32 v{VP3}, s{sT}, v1\nv_and_b32 v{VP3}, 15, v{VP3}\nv_lshlrev_b32 v{VP3}, 17, v{VP3}\ns_add_u32 s{sT}, s{sB}, 2044\nv_add_u32 v{VP3}, s{sT}, v{VP3}")
    mlp_addr(RA, 4, 6)
    A(f"s_lshl_b32 s{sFO}, s{sFT}, 2\ns_add_u32 s{sFO}, s{sFO}, s{SW}\ns_mul_i32 s{sT}, s{sDT4}, {2*112*1024}\ns_lshl_b32 s{sU}, s{sFO}, 10\ns_add_u32 s{sT}, s{sT}, s{sU}\ns_add_u32 s{sGST}, s{sT}, {WS_G}")
    A(f"s_lshr_b32 s{sV}, s{SW}, 1\ns_lshl_b32 s{sT}, s{sST}, 1\ns_add_u32 s{sV}, s{sV}, s{sT}\ns_mul_i32 s{sV}, s{sV}, 7\ns_add_u32 s{sV}, s{sV}, s{sDT5}\ns_lshl_b32 s{sV}, s{sV}, 12\ns_and_b32 s{sT}, s{SW}, 1\ns_lshl_b32 s{sT}, s{sT}, 10\ns_add_u32 s{sV}, s{sV}, s{sT}\ns_add_u32 s{sHFO}, s{sV}, {WS_HF}")
    A(f"s_xor_b32 s{sT}, s{SW}, 3\ns_mul_i32 s{sT}, s{sT}, 28672\ns_add_u32 s{sT}, s{sT}, {13*2048}\nv_add_u32 v{VX3}, s{sT}, v{VL}")

class Role: pass
RA, RB = Role(), Role()
C5A = env("C5A", 8)
RA.n, RA.n4, RA.c4, RA.n5, RA.c5, RA.W, RA.slots = "A", 0, 12, 0, C5A, 128, [0, 1, 2, 3, 4, 5]
RA.VRD, RA.VH, RA.VG, RA.VP4, RA.VP5, RA.VT2, RA.T0, RA.T1 = [240, 241], 14, 253, 3, 242, [246, 247], 4, 5
RB.n, RB.n4, RB.c4, RB.n5, RB.c5, RB.W, RB.slots = "B", 12, 20, C5A, 28 - C5A, 96, [12, 6, 7, 8, 9, 10, 11]
RB.VRD, RB.VH, RB.VG, RB.VP4, RB.VP5, RB.VT2, RB.T0, RB.T1 = [0, 3], 4, 5, 8, 9, [6, 7], 12, 13
VX3 = 15
def w2_addr(r, t0, t1):
    A(f"v_lshrrev_b32 v{t0}, 3, v1\nv_bfe_u32 v{t1}, v1, 4, 1\nv_lshlrev_b32 v{t1}, 2, v{t1}\nv_and_b32 v{r.VT2[0]}, 7, v1\nv_xor_b32 v{t1}, v{r.VT2[0]}, v{t1}\nv_lshlrev_b32 v{t1}, 4, v{t1}\nv_lshl_add_u32 v{t0}, v{t0}, 12, v{t1}")
    A(f"s_mul_i32 s{sT}, s{SW}, {448*4096}\ns_lshl_b32 s{sU}, s{sST}, 7\ns_add_u32 s{sT}, s{sT}, s{sU}\nv_add_u32 v{r.VT2[0]}, s{sT}, v{t0}\nv_add_u32 v{r.VT2[1]}, {8*4096 - 1024}, v{r.VT2[0]}")
    rot4(sRO); A(f"s_lshl_b32 s{sRO}, s{sRO}, 10")
    rot5(sGC); A(f"s_lshl_b32 s{sGC}, s{sGC}, 10")
def mlp_addr(r, t0, t1, w2=True):
    if w2: w2_addr(r, t0, t1)
    A(f"s_lshl_b32 s{sT}, s{SW}, 15\ns_add_u32 s{sT}, s{sT}, {WS_HH}\ns_lshl_b32 s{sB}, s{sDT4}, 18\ns_add_u32 s{sB}, s{sB}, s{sT}\nv_add_u32 v{r.VH}, s{sB}, v{VL}")
    A(f"s_add_u32 s{sT}, s{sRO}, {r.n4*1024}\nv_lshl_add_u32 v{r.VP4}, v1, 11, s{sT}\nv_and_b32 v{r.VP4}, 0x7fff, v{r.VP4}\ns_add_u32 s{sT}, s{sB}, 2044\nv_add_u32 v{r.VP4}, s{sT}, v{r.VP4}")
    A(f"s_mul_i32 s{sT}, s{SW}, {28*1024}\ns_add_u32 s{sT}, s{sT}, {WS_G}\ns_mul_i32 s{sB}, s{sDT5}, {2*112*1024}\ns_add_u32 s{sB}, s{sB}, s{sT}")
    A(f"s_and_b32 s{sT}, s{SW}, 1\ns_lshl_b32 s{sT}, s{sT}, 8\nv_xor_b32 v{r.VG}, s{sT}, v{VL}\nv_add_u32 v{r.VG}, s{sB}, v{r.VG}")
    A(f"s_add_u32 s{sT}, s{sGC}, {r.n5*1024}\nv_min_u32 v{t0}, {r.c5 // 2 - 1}, v1\nv_lshl_add_u32 v{r.VP5}, v{t0}, 11, s{sT}\nv_subrev_u32 v{t0}, {28*1024}, v{r.VP5}\nv_min_u32 v{r.VP5}, v{r.VP5}, v{t0}\ns_add_u32 s{sT}, s{sB}, 2044\nv_add_u32 v{r.VP5}, s{sT}, v{r.VP5}")

def p2():
    Q, O, SS, PP, KV = 16, 48, [112, 128], [144, 152], 160
    M = [112, 113, 114, 115]; K0 = 120
    T0, T1, T2, T3 = 4, 5, 6, 7
    sKN = sB
    vm.wait_all(); stamp("kvdrain")
    A(f"s_barrier\ns_cmp_lg_u32 s{SW}, 0\ns_cbranch_scc1 P2_NOF")
    flag_store(sF[0]); flag_store(sF[1]); A("P2_NOF:"); stamp_flush()
    A("P2_START:")
    A(f"s_mul_i32 s{sT}, s{sR3}, {32*896}\ns_lshl_b32 s{sU}, s{sC3}, 6\ns_add_u32 s{sT}, s{sT}, s{sU}")
    for p in range(2): A(f"buffer_load_dwordx4 {v(XR+4*p,4)}, v13, {R(RX)}, s{sT} offen offset:{32*p}")
    A(f"s_lshl_b32 s{sV}, s{sI}, 2\ns_add_u32 s{sV}, s{sV}, s{SW}\ns_lshl_b32 s{sU}, s{sH}, 6\ns_add_u32 s{sU}, s{sU}, s{sV}\ns_lshl_b32 s{sU}, s{sU}, 11")
    A(f"s_lshr_b32 s{sT}, s{sH}, 2\ns_lshl_b32 s{sT}, s{sT}, 13\ns_add_u32 s{sT}, s{sT}, {F1}\ns_lshl_b32 s{sA}, s{SW}, 9\ns_add_u32 s{sA}, s{sA}, 2048\ns_lshl_b32 s{sC}, s{sI}, 7")
    A(f"v_and_b32 v7, 3, v1\nv_lshl_add_u32 v7, v7, 7, s{sA}\nv_bfe_u32 v8, v1, 2, 1\nv_lshl_add_u32 v7, v8, 11, v7\nv_writelane_b32 v7, s{sC}, 8")
    poll(7, sT, 9, 8); stamp("s1")
    def kvload(n):
        pre = [f"s_mov_b32 s{sKN}, {n*4096}"]
        return pre + [f"buffer_load_dwordx4 {v(KV+16*(n&3)+4*f,4)}, v{VKV}, {R(RWS)}, s{sKN} offen offset:{f*1024} sc1" for f in range(4)]
    def emit(lines, tag):
        for ln in lines:
            A(ln)
            if ln.startswith("buffer_"): vm.issue(tag)
    for f in range(2): A(f"buffer_load_dwordx4 {v(Q+4*f,4)}, v{VL}, {R(RWS)}, s{sU} offen offset:{f*1024} sc1"); vm.issue("q")
    emit(kvload(0), "kv0")
    A("s_waitcnt vmcnt(2)"); stamp("qk0")
    A(f"{MFMA} {v(O,16)}, {v(KV,4)}, {v(Q,4)}, 0\n{MFMA} {v(O,16)}, {v(KV+4,4)}, {v(Q+4,4)}, {v(O,16)}")
    emit(kvload(1), "kv1")
    A(f"ds_write_b128 v{VRW[0]}, {v(Q,4)}")
    tilemax(O, T0, T1)
    A(f"v_max_f32 v{T0}, v{T0}, v{T1}\nv_mov_b32 v{T1}, v{T0}\nv_permlane32_swap_b32 v{T0}, v{T1}\nv_max_f32 v{T0}, v{T0}, v{T1}")
    set_qpad(Q, T0, T1, T2, T3)
    A(f"ds_write_b128 v{VRW[0]}, {v(Q+4,4)} offset:1024\ns_waitcnt lgkmcnt(0)")
    emit(kvload(2), "kv2")
    A("s_barrier")
    for t in range(1, 4): A(f"ds_read_b128 {v(Q+8*t,4)}, v{VRW[t]}\nds_read_b128 {v(Q+8*t+4,4)}, v{VRW[t]} offset:1024")
    emit(kvload(3), "kv3")
    A("P2_MAIN:")
    def qk(idx, part):
        n, t = idx >> 2, idx & 3; sr = SS[idx & 1]; k = KV + 16*(n & 3)
        return f"{MFMA} {v(sr,16)}, {v(k+4*part,4)}, {v(Q+8*t+4*part,4)}, {'0' if part == 0 else v(sr,16)}"
    def pv(idx, part):
        n, t = idx >> 2, idx & 3; k = KV + 16*(n & 3) + 8; o = O + 16*t
        return f"{MFMA} {v(o,16)}, {v(k+4*part,4)}, {v(PP[idx&1]+4*part,4)}, {'0' if (n == 0 and part == 0) else v(o,16)}"
    NI = 64
    A(qk(0, 0)); A(qk(0, 1)); A("s_waitcnt lgkmcnt(0)")
    for idx in range(NI):
        n, t = idx >> 2, idx & 3
        if idx in (16, 32, 48): stamp(f"a{idx}")
        if idx == 1: vm.wait("kv0")
        if idx == env("CUTAT", 61): A(f"ds_write_b32 v{VRW[1]}, v{VONE} offset:3072")
        if t == 3 and n + 1 < 16: vm.wait(f"kv{n+1}")
        mf = [qk(idx+1, 0) if idx+1 < NI else None, pv(idx-1, 0) if idx > 0 else None,
              qk(idx+1, 1) if idx+1 < NI else None, pv(idx-1, 1) if idx > 0 else None]
        sr, p = SS[idx & 1], PP[idx & 1]
        for q in range(4):
            if mf[q]: A(mf[q])
            for j in range(4): A(f"v_exp_f32 v{sr+4*q+j}, v{sr+4*q+j}")
            if q > 0:
                for j in range(2): A(f"v_cvt_pk_bf16_f32 v{p+2*(q-1)+j}, v{sr+4*(q-1)+2*j}, v{sr+4*(q-1)+2*j+1}")
        if t == 0 and 1 <= n < 13: emit(kvload(n + 3), f"kv{n+3}")
        for j in range(2): A(f"v_cvt_pk_bf16_f32 v{p+6+j}, v{sr+12+2*j}, v{sr+12+2*j+1}")
    A(pv(NI-1, 0)); A(pv(NI-1, 1)); stamp("aend")
    for t in (1, 2):
        for g in range(3): A(f"ds_write_b128 v{VRW[t]}, {v(O+16*t+4*g,4)} offset:{(t-1)*4096 + g*1024}")
    A(f"s_mov_b32 s{sT}, {fl(2.0**30)}")
    A(f"v_cmp_nlt_f32 s[{sA}:{sA+1}], v{O+12}, s{sT}\nv_cmp_nlt_f32 s[{sC}:{sC+1}], v{O+28}, s{sT}\ns_or_b32 s{sU}, s{sA+1}, s{sC+1}")
    A(f"v_cmp_nlt_f32 s[{sA}:{sA+1}], v{O+44}, s{sT}\nv_cmp_nlt_f32 s[{sC}:{sC+1}], v{O+60}, s{sT}\ns_or_b32 s{sU}, s{sU}, s{sA+1}\ns_or_b32 s{sU}, s{sU}, s{sC+1}")
    A(f"s_cselect_b32 s{sU}, 1.0, 0\nv_mov_b32 v{T0}, s{sU}")
    for t in range(4): A(f"v_cndmask_b32 v{O+16*t+13}, v{O+16*t+13}, v{T0}, s[{sHI}:{sHI+1}]")
    for g in range(3): A(f"ds_write_b128 v{VRW[3]}, {v(O+48+4*g,4)} offset:{2*4096 + g*1024}")
    for t in range(1, 4): A(f"ds_write_b128 v{VRW[t]}, {v(O+16*t+12,4)} offset:{(t-1)*4096 + 3*1024}")
    A(f"s_lshl_b32 s{sD_}, s{sI}, 2\ns_add_u32 s{sD_}, s{sD_}, s{SW}\ns_lshl_b32 s{sV}, s{sH}, 6\ns_add_u32 s{sV}, s{sV}, s{sD_}\ns_lshl_b32 s{sV}, s{sV}, 11\ns_add_u32 s{sV}, s{sV}, {WS_O}")
    A("s_waitcnt lgkmcnt(0)\ns_barrier")
    for g in (3, 0, 1, 2):
        for t in range(1, 4): A(f"ds_read_b128 {v(O+16*t+4*g,4)}, v{VRW[0]} offset:{(t-1)*4096 + g*1024}")
    def red(g):
        for r in (4*g, 4*g+2):
            A(f"v_pk_add_f32 {v(O+r,2)}, {v(O+r,2)}, {v(O+16+r,2)}\nv_pk_add_f32 {v(O+32+r,2)}, {v(O+32+r,2)}, {v(O+48+r,2)}")
        for r in (4*g, 4*g+2): A(f"v_pk_add_f32 {v(O+r,2)}, {v(O+r,2)}, {v(O+32+r,2)}")
    A("s_waitcnt lgkmcnt(9)"); red(3)
    A(f"v_readlane_b32 s{sT}, v{O+13}, 32\nv_mov_b32 v{T0}, v{O+12}\nv_mov_b32 v{T2}, v{O+12}\nv_permlane32_swap_b32 v{T0}, v{T2}\nv_rcp_f32 v{T2}, v{T2}")
    A(f"s_cmp_lg_u32 s{sT}, s{sRETRY}\ns_cbranch_scc1 P2_FALL\nP2_FIN:")
    for k, g in enumerate((0, 1, 2)):
        A(f"s_waitcnt lgkmcnt({6 - 3*k})"); red(g)
    for r in range(0, 16, 2): A(f"v_pk_mul_f32 {v(O+r,2)}, {v(O+r,2)}, {v(T2,2)} op_sel_hi:[1,0]")
    for r in range(8): A(f"v_cvt_pk_bf16_f32 v{O+16+r}, v{O+2*r}, v{O+2*r+1}")
    A(f"v_cndmask_b32 v{O+22}, v{O+22}, 0, s[{sHI}:{sHI+1}]\nv_cndmask_b32 v{O+23}, v{O+23}, 0, s[{sHI}:{sHI+1}]")
    A(f"s_mov_b32 s{sT}, 0xfffeffff\nv_and_or_b32 v{O+19}, v{O+19}, s{sT}, 1\nv_and_or_b32 v{O+23}, v{O+23}, s{sT}, 1")
    for f in range(2): A(f"buffer_store_dwordx4 {v(O+16+4*f,4)}, v{VL}, {R(RWS)}, s{sV} offen offset:{f*1024} sc1")
    stamp("ost")
    if STAMP and env("ACK", 0): A("s_waitcnt vmcnt(0)"); stamp("oack")
    stamp_flush()
    A("s_barrier")
    def fallback():
        A(f"P2_FALL:\ns_cmp_lg_u32 s{sRETRY}, 0\ns_cbranch_scc1 P2_FIN")
        A(f"s_mov_b32 s{sRETRY}, -1\ns_waitcnt vmcnt(0) lgkmcnt(0)")
        for t in range(4):
            A(f"v_cndmask_b32 v{Q+8*t+6}, v{Q+8*t+6}, 0, s[{sHI}:{sHI+1}]\nv_cndmask_b32 v{Q+8*t+7}, v{Q+8*t+7}, 0, s[{sHI}:{sHI+1}]\nv_mov_b32 v{M[t]}, 0xff800000")
        A(f"s_mov_b32 s{sU}, 0\nP2_MAXLOOP:")
        for f in range(2): A(f"buffer_load_dwordx4 {v(K0+4*f,4)}, v{VKV}, {R(RWS)}, s{sU} offen offset:{f*1024} sc1")
        A("s_waitcnt vmcnt(0)")
        for t in range(4):
            A(f"{MFMA} {v(O+16*t,16)}, {v(K0,4)}, {v(Q+8*t,4)}, 0\n{MFMA} {v(O+16*t,16)}, {v(K0+4,4)}, {v(Q+8*t+4,4)}, {v(O+16*t,16)}")
        for t in range(4):
            tilemax(O+16*t, T0, T1); A(f"v_max3_f32 v{M[t]}, v{M[t]}, v{T0}, v{T1}")
        A(f"s_add_u32 s{sU}, s{sU}, 4096\ns_cmp_lt_u32 s{sU}, {16*4096}\ns_cbranch_scc1 P2_MAXLOOP")
        A(f"s_barrier\nv_and_b32 v{T3}, 31, v1\nv_lshlrev_b32 v{T3}, 4, v{T3}")
        for t in range(4):
            A(f"v_mov_b32 v{T2}, v{M[t]}\nv_permlane32_swap_b32 v{M[t]}, v{T2}\nv_max_f32 v{M[t]}, v{M[t]}, v{T2}")
            A(f"s_add_u32 s{sT}, s{SW}, {t}\ns_and_b32 s{sT}, s{sT}, 3\ns_lshl_b32 s{sT}, s{sT}, 9\ns_add_u32 s{sT}, s{sT}, {RBUF}\ns_lshl_b32 s{sU}, s{SW}, 2\ns_add_u32 s{sU}, s{sU}, s{sT}")
            A(f"v_add_u32 v{K0+t}, s{sT}, v{T3}\nv_add_u32 v{T2}, s{sU}, v{T3}\nds_write_b32 v{T2}, v{M[t]}")
        A("s_waitcnt lgkmcnt(0)\ns_barrier")
        for t in range(4): A(f"ds_read_b128 {v(O+4*t,4)}, v{K0+t}")
        for n in range(4):
            for ln in kvload(n): A(ln)
        A("s_waitcnt vmcnt(0) lgkmcnt(0)\ns_barrier")
        for t in range(4):
            A(f"v_max3_f32 v{M[t]}, v{O+4*t}, v{O+4*t+1}, v{O+4*t+2}\nv_max_f32 v{M[t]}, v{M[t]}, v{O+4*t+3}")
            set_qpad(Q+8*t, M[t], T0, T1, T2)
        A("s_branch P2_MAIN")
    return fallback

def p3():
    EP = env("EP", 0)
    D1, D2, TF = 96, 112, 80 if EP else 176
    ofr = (lambda ks: 16 + 4*(ks & 15)) if EP else (lambda ks: 16 + 4*ks if ks < 20 else 128 + 4*(ks - 20))
    T0, T1, T2, T3 = 8, 9, 4, 5
    A(f"{MFMA} {v(D1,16)}, {v(XR,4)}, {v(IR3,4)}, 0\n{MFMA} {v(D2,16)}, {v(IR3,4)}, {v(XR,4)}, 0")
    A(f"{MFMA} {v(D1,16)}, {v(XR+4,4)}, {v(IR3+4,4)}, {v(D1,16)}\n{MFMA} {v(D2,16)}, {v(IR3+4,4)}, {v(XR+4,4)}, {v(D2,16)}")
    for sl in range(1, 4):
        A(f"s_xor_b32 s{sU}, s{SW}, {sl}\ns_mul_i32 s{sU}, s{sU}, 12288\ns_add_u32 s{sU}, s{sU}, {RBUF}\nv_add_u32 v{VRW[sl]}, s{sU}, v{VL}")
    if EP:
        preread()
        A(f"s_waitcnt lgkmcnt(0)\ns_barrier\ns_cmp_lt_u32 s{sC3}, 14\ns_cbranch_scc0 P3_END")
    else:
        A("s_barrier")
        A(f"s_cmp_lt_u32 s{sC3}, 14\ns_cbranch_scc1 P3_GO")
        preread()
        A("s_waitcnt lgkmcnt(0)\ns_barrier\ns_branch P3_END\nP3_GO:")
    vm.q = []; lg.q = []
    so = Stream("SO", 8, lambda g: [(ofr(4*g+k), VO3[k >> 1], (k & 1)*1024) for k in range(4)],
                lambda g: A(f"s_add_u32 s{sT}, s{sRT3}, {g << 18}\ns_and_b32 s{sT}, s{sT}, 0x1fffff"), T0, 1, VP3, T1)
    NPRE = 3
    stamp("p3pre")
    for m in range(NPRE): so.issue(m)
    stamp("p3gate")
    def wread(ks):
        n, p = ks >> 1, ks & 1
        for half in range(2):
            A(f"ds_read_b64_tr_b16 {v(TF+4*(ks&3)+2*half,2)}, v{VWO} offset:{(n>>2)*12288 + (n&3)*2048 + (16*p+8*half)*64}"); lg.issue(f"w{ks}")
    wread(0); wread(1)
    so.check1(0); so.check2(0)
    for ks in range(32):
        lg.wait(f"w{ks}")
        if ks in (0, 16): stamp(f"p3_{ks}")
        o, wv = v(ofr(ks), 4), v(TF+4*(ks&3), 4)
        A(f"{MFMA} {v(D2,16)}, {wv}, {o}, {v(D2,16)}")
        if ks + 2 < 32: wread(ks + 2)
        A(f"{MFMA} {v(D1,16)}, {o}, {wv}, {v(D1,16)}")
        if ks % 4 < 2:
            for k in range(2): so.issue_part(NPRE + ks//4, 2*(ks % 4) + k)
        if ks % 4 == 2: so.check1(ks//4 + 1)
        if ks % 4 == 3: so.check2(ks//4 + 1)
    stamp("p3mm")
    G = 16
    A(f"s_lshl_b32 s{sB}, s{sR3}, 13\ns_add_u32 s{sB}, s{sB}, {WS_ST}\ns_lshl_b32 s{sT}, s{sC3}, 9\ns_add_u32 s{sT}, s{sT}, s{sB}")
    A(f"v_mov_b32 v{G+1}, s{sTAG}\nv_mov_b32 v{G+3}, s{sTAG+1}")
    A(f"v_pk_add_f32 v[20:21], {v(D2,2)}, {v(D2+2,2)}\nv_pk_mul_f32 v[22:23], {v(D2,2)}, {v(D2,2)}\nv_pk_fma_f32 v[22:23], {v(D2+2,2)}, {v(D2+2,2)}, v[22:23]")
    for r in range(4, 16, 2): A(f"v_pk_add_f32 v[20:21], v[20:21], {v(D2+r,2)}\nv_pk_fma_f32 v[22:23], {v(D2+r,2)}, {v(D2+r,2)}, v[22:23]")
    A(f"v_add_f32 v{G}, v20, v21\nv_add_f32 v{G+2}, v22, v23")
    A(f"v_mov_b32 v20, v{G}\nv_mov_b32 v22, v{G+2}\nv_permlane32_swap_b32 v{G}, v20\nv_permlane32_swap_b32 v{G+2}, v22\nv_add_f32 v{G}, v{G}, v20\nv_add_f32 v{G+2}, v{G+2}, v22")
    set_exec(0xFFFFFFFF)
    A(f"buffer_store_dwordx4 {v(G,4)}, v{VL}, {R(RWS)}, s{sT} offen sc1\ns_mov_b64 exec, -1")
    for r in range(8): A(f"v_cvt_pk_bf16_f32 v{24+r}, v{D2+2*r}, v{D2+2*r+1}")
    A(f"s_mul_i32 s{sT}, s{sR3}, 14\ns_add_u32 s{sT}, s{sT}, s{sC3}\ns_lshl_b32 s{sT}, s{sT}, 11\ns_add_u32 s{sT}, s{sT}, {WS_HF}")
    for p in range(2): A(f"buffer_store_dwordx4 {v(24+4*p,4)}, v{VL}, {R(RWS)}, s{sT} offen offset:{p*1024} sc1")
    A(f"v_and_b32 v{T0}, 31, v1\nv_lshlrev_b32 v{T0}, 4, v{T0}\nv_lshrrev_b32 v{T1}, 5, v1\nv_mul_u32_u24 v{T1}, 3584, v{T1}\nv_add_u32 v{T0}, v{T0}, v{T1}")
    if not EP:
        preread()
        A("s_waitcnt lgkmcnt(0)\ns_barrier")
    if env("S3W", 1): A("s_waitcnt vmcnt(2)")
    stamp("s3pre")
    GR = 32
    A(f"s_mov_b32 s{sTO}, 0x8000\nP3_GL:")
    for k in range(7): A(f"buffer_load_dwordx4 {v(GR+4*k,4)}, v{T0}, {R(RWS)}, s{sB} offen offset:{k*512} sc1")
    A(f"s_sub_u32 s{sTO}, s{sTO}, 1\ns_waitcnt vmcnt(0)\ns_cbranch_scc1 P3_GX")
    tagcheck([GR+4*k for k in range(7)], T1, T2, T3)
    A("s_cbranch_vccnz P3_GL\nP3_GX:")
    vm.q = []
    stamp("s3")
    for k in range(1, 7): A(f"v_add_f32 v{GR}, v{GR}, v{GR+4*k}\nv_add_f32 v{GR+2}, v{GR+2}, v{GR+4*k+2}")
    m, q = GR, GR+2
    A(f"v_mov_b32 v{T0}, v{m}\nv_mov_b32 v{T1}, v{q}\nv_permlane32_swap_b32 v{m}, v{T0}\nv_permlane32_swap_b32 v{q}, v{T1}\nv_add_f32 v{m}, v{m}, v{T0}\nv_add_f32 v{q}, v{q}, v{T1}")
    A(f"v_mul_f32 v{m}, {fl(1.0/D)}, v{m}\nv_mul_f32 v{q}, {fl(1.0/D)}, v{q}\nv_fma_f32 v{q}, -v{m}, v{m}, v{q}\nv_max_f32 v{q}, 0, v{q}")
    A(f"v_add_f32 v{T0}, {fl(EPS)}, v{q}\nv_mul_f32 v{T0}, {fl(EPS)}, v{T0}\nv_add_f32 v{q}, v{q}, v{T0}\nv_rsq_f32 v{q}, v{q}\ns_add_u32 s{sT}, s{sRBW}, 8192\nv_mul_f32 v{m}, v{m}, v{q}")
    A(f"v_cndmask_b32 v{T0}, v{q}, v{m}, s[{sHI}:{sHI+1}]\nv_lshl_add_u32 v{T1}, v1, 2, s{sT}\nds_write_b32 v{T1}, v{T0}")
    A(f"v_lshrrev_b32 v{T2}, 5, v1\nv_lshl_add_u32 v{T2}, v{T2}, 4, s{sT}")
    for g in range(4): A(f"ds_read_b128 {v(64+4*g,4)}, v{T2} offset:{g*32}\nds_read_b128 {v(80+4*g,4)}, v{T2} offset:{128+g*32}")
    A(f"s_lshl_b32 s{sT}, s{sC3}, 17\ns_lshl_b32 s{sU}, s{sR3}, 11\ns_add_u32 s{sT}, s{sT}, s{sU}\ns_add_u32 s{sT}, s{sT}, {WS_HH}")
    for p in range(2):
        A(f"s_waitcnt lgkmcnt({4 - 4*p})")
        for r in range(8*p, 8*p+8, 2): A(f"v_pk_fma_f32 {v(D1+r,2)}, {v(D1+r,2)}, {v(64+r,2)}, {v(80+r,2)} neg_lo:[0,0,1] neg_hi:[0,0,1]")
        for r in range(4*p, 4*p+4): A(f"v_cvt_pk_bf16_f32 v{24+r}, v{D1+2*r}, v{D1+2*r+1}")
        A(f"v_or_b32 v{27+4*p}, 0x10000, v{27+4*p}")
        A(f"buffer_store_dwordx4 {v(24+4*p,4)}, v{VL}, {R(RWS)}, s{sT} offen offset:{p*1024} sc1")
    stamp("hhst")
    if STAMP and env("ACK", 0): A("s_waitcnt vmcnt(0)"); stamp("hhack")
    stamp_flush()
    A("P3_END:")
    if env("X1B", 1): A("s_barrier")
    vm.q = []; lg.q = []

ACC, RING, TMP = 16, 48, 96
def wread_step(r, m, slot, tag=None):
    for ti in range(2):
        for half in range(2):
            A(f"ds_read_b64_tr_b16 {v(r.W + 8*m + ti*4 + half*2, 2)}, v{r.VRD[ti]} offset:{slot*2048 + half*1024}")
            if tag is not None: lg.issue(tag)
def unswap(r): A(f"s_and_b32 s{sT}, s{SW}, 1\ns_lshl_b32 s{sT}, s{sT}, 5\nv_xor_b32 v{r.VRD[0]}, s{sT}, v{r.VRD[0]}\nv_xor_b32 v{r.VRD[1]}, s{sT}, v{r.VRD[1]}")
def preread():
    for n in range(RA.c4): wread_step(RA, n, n)
    unswap(RA)
def w2soff(n): A(f"s_add_u32 s{sA}, s{sGC}, {n*1024}\ns_sub_u32 s{sB}, s{sA}, {28*1024}\ns_min_u32 s{sA}, s{sA}, s{sB}\ns_lshl_b32 s{sA}, s{sA}, 6")
def w2dma(r, m):
    w2soff(r.n5 + m)
    A(f"s_add_u32 m0, s{sW2W}, {r.slots[m % len(r.slots)]*2048}")
    for j in range(2): A(f"buffer_load_dwordx4 v{r.VT2[j]}, {R(RW2)}, s{sA} offen offset:{j*1024} lds"); vm.issue(("d", m))
def w2read(r, m):
    vm.wait(("d", m)); wread_step(r, m, r.slots[m % len(r.slots)], ("r", m))

def mlp(r, VDR=None, VDW=None):
    isA = r is RA
    N, L = r.n, len(r.slots)
    BR, B2R, VO, IR, HR = 6, 10, 12, 224, 228
    G4, G5 = r.c4 // 4, r.c5 // 4
    dreg = lambda t, k: RING + (t % 3)*16 + 4*k
    def pw(q, j):
        if isA: return f"ds_write_b128 v{VRW[0]}, {v(ACC+8*q+4*j,4)} offset:{(q-1)*2048 + j*1024}"
        return f"ds_write_b128 v{VDR if q < 3 else VDW}, {v(ACC+8*q+4*j,4)} offset:{(6144 + q*2048 if q < 3 else 13*2048) + j*1024}"
    def add(d, a_, b_, pk):
        if pk:
            for k in range(0, 4, 2): A(f"v_pk_add_f32 {v(d+k,2)}, {v(a_+k,2)}, {v(b_+k,2)}")
        else:
            for k in range(4): A(f"v_add_f32 v{d+k}, v{a_+k}, v{b_+k}")
    OWN = 232
    def gather(pk, wide):
        src = lambda j: [(VRW[q], (q-1)*2048 + j*1024) for q in range(1, 4)] + [(VRW[q], 6144 + q*2048 + j*1024) for q in range(3)] + [(VX3, j*1024)]
        base = [TMP, ACC if wide else TMP]
        def rd(j):
            for k, (va, off) in enumerate(src(j)): A(f"ds_read_b128 {v(base[j]+4*k,4)}, v{va} offset:{off}")
        def sm(j):
            b, o = base[j], OWN + 4*j
            add(b, b, b+4, pk); add(b+8, b+8, b+12, pk); add(b+16, b+16, b+20, pk); add(o, o, b+24, pk)
            add(b, b, b+8, pk); add(o, o, b+16, pk); add(o, o, b, pk)
        if wide: rd(0); rd(1); A("s_waitcnt lgkmcnt(7)"); sm(0); A("s_waitcnt lgkmcnt(0)"); sm(1)
        else:
            for j in range(2): rd(j); A("s_waitcnt lgkmcnt(0)"); sm(j)
    def p5setup():
        A(f"v_and_b32 v6, 31, v1\nv_lshrrev_b32 v7, 5, v1\nv_mul_u32_u24 v{VO}, 896, v6\nv_lshl_add_u32 v{VO}, v7, 4, v{VO}\ns_lshr_b32 s{sA}, s{SW}, 1\ns_lshl_b32 s{sB}, s{sST}, 1\ns_add_u32 s{sA}, s{sA}, s{sB}")
        A(f"s_mul_i32 s{sE}, s{sA}, {32*896}\ns_lshl_b32 s{sB}, s{sDT5}, 7\ns_add_u32 s{sE}, s{sE}, s{sB}\ns_and_b32 s{sB}, s{SW}, 1\ns_lshl_b32 s{sB}, s{sB}, 5\ns_add_u32 s{sE}, s{sE}, s{sB}")
        A(f"s_lshl_b32 s{sA}, s{sA}, 6\nv_lshlrev_b32 v8, 1, v6\nbuffer_load_ushort v{B2R}, v8, {R(RB2)}, s{sA} offen\nv_lshlrev_b32 v7, 2, v7\nv_sub_u32 v6, v6, v7")
        for k in range(4):
            d0 = 8*(k >> 1) + 2*(k & 1)
            A(f"v_cmp_eq_u32 s[{sA}:{sA+1}], {d0}, v6\nv_cmp_eq_u32 s[{sC}:{sC+1}], {d0+1}, v6\nv_cndmask_b32 v{IR+k}, 0, v{VONE}, s[{sA}:{sA+1}]\nv_cndmask_b32 v{IR+k}, v{IR+k}, v{VONE+1}, s[{sC}:{sC+1}]")
    mk5 = lambda nm: Stream(nm + N, 2*G5, lambda g: [(dreg(2*G4 + g, k), r.VG, k*1024) for k in range(4)],
                lambda g: A(f"s_add_u32 s{sT}, s{sGC}, {(r.n5 + (g % G5)*4)*1024}\ns_sub_u32 s{sU}, s{sT}, {28*1024}\ns_min_u32 s{sT}, s{sT}, s{sU}" + (f"\ns_add_u32 s{sT}, s{sT}, {112*1024}" if g >= G5 else "")),
                r.T0, 1, r.VP5, r.T1, lambda g: (1 << 2*G5) - 1, G5)
    NP5 = min(3, G5)
    D3L = env("D3L", 1)
    A(f"s_cmp_lg_u32 s{sACT4}, 0\ns_cbranch_scc1 P4_GO{N}\ns_cmp_ge_u32 s{sJ}, 28\ns_cbranch_scc1 MLP_END{N}")
    q0 = list(vm.q); lg.q = []
    A("s_waitcnt lgkmcnt(0)\ns_barrier")
    if not isA and env("DL", 0) == 2:
        for m in range(1, 7): w2dma(r, m)
    for m0 in range(0, min(r.c5, 2*L), L):
        for m in range(m0, min(m0 + L, r.c5)): w2read(r, m)
        lg.wait_all()
        if m0 == 0 or not D3L:
            for m in range(m0 + L, min(m0 + 2*L, r.c5)): w2dma(r, m)
    si = mk5("SI")
    if isA: p5setup()
    for g in range(G5): si.gate(g)
    si.gated = 0
    for g in range(NP5 if isA else 2): si.issue(g)
    if isA: A("s_barrier\ns_barrier")
    else: si.check1(0); si.check2(0)
    A(f"s_branch P5_IN{N}\nP4_GO{N}:")
    vm.q = q0; lg.q = []
    sg = mk5("SG"); sg.gated = 0
    A(f"s_mov_b32 s{sV}, 0x10000")
    if isA:
        A(f"s_lshl_b32 s{sA}, s{sFO}, 5\nv_lshrrev_b32 v{r.T0}, 5, v1\nv_lshlrev_b32 v{r.T0}, 3, v{r.T0}")
        for g in range(2): A(f"buffer_load_dwordx2 {v(BR+2*g,2)}, v{r.T0}, {R(RB1)}, s{sA} offen offset:{g*16}")
        if env("ACKW", 1): A("s_waitcnt vmcnt(0)")
    sh = Stream("SH" + N, 2*G4, lambda g: [(dreg(g, k), r.VH, k*1024) for k in range(4)],
                lambda g: A(f"s_add_u32 s{sT}, s{sRO}, {(r.n4 + (g % G4)*4)*1024}\ns_and_b32 s{sT}, s{sT}, 0x7fff" + (f"\ns_bitset1_b32 s{sT}, 17" if g >= G4 else "")),
                r.T0, f"s{sV}", r.VP4, r.T1, lambda g: (1 << 2*G4) - 1, G4)
    seq = [(sh, g) for g in range(2*G4)] + [(sg, g) for g in range(2*G5)]
    first = [0, G4, 2*G4, 2*G4 + G5, len(seq)]
    late = {3} | ({2} if isA else set())
    issued = set()
    stamp("p4pre" + N)
    for g in range(3): sh.issue(g); issued.add(g)
    sh.check1(0); sh.check2(0)
    c1 = -2.0*math.sqrt(2.0/math.pi)*math.log2(math.e); c2 = c1*0.044715
    def compute(H):
        ph, hf = H >> 1, H & 1
        ns = (r.c4, r.c5)[ph]
        nm = f"p{4+ph}"
        if H == 2: A(f"P5_IN{N}:")
        if H in late: seq[first[H]][0].check1(seq[first[H]][1]); seq[first[H]][0].check2(seq[first[H]][1])
        if ph and isA:
            A(f"buffer_load_dwordx4 {v(HR,4)}, v{VL}, {R(RWS)}, s{sHFO} offen offset:{hf*2048} sc1")
        stamp(f"{nm}first{hf}" + N)
        for t in range(first[H], first[H+1]):
            n0 = 4*(t - first[H])
            tail = not isA and t == first[H+1] - 1
            head = not isA and t == first[H] and H > 0 and H not in late
            order = [(k, ti) for ti in (1, 0) for k in range(4)] if (tail or head) else [(k, ti) for k in range(4) for ti in (0, 1)]
            nxt = t + 2
            can = nxt < len(seq) and nxt not in issued and not (nxt >= first[H+1] and H + 1 in late)
            for sl, (k, ti) in enumerate(order):
                n = n0 + k
                if not isA and H > 0 and n0 == 4*env("RDNG", 2) and sl == 0: A("s_barrier")
                if not isA and H == 2 and n >= 14: lg.wait(("r", n))
                if not isA and H == 2 and not D3L and n0 == 12 and sl == 0: A("s_waitcnt lgkmcnt(0)")
                if head and sl == 4: A("s_waitcnt lgkmcnt(0)\ns_barrier"); lg.q = []
                acc = v(ACC + 16*ti, 16); w_, d_ = v(r.W + 8*n + 4*ti, 4), v(dreg(t, k), 4)
                A(f"{MFMA} {acc}, {d_ if ph else w_}, {w_ if ph else d_}, {'0' if n == 0 else acc}")
                if head and sl < 4: A(pw(sl >> 1, sl & 1))
                if tail and sl >= 4: A(pw(2 + ((sl - 4) >> 1), sl & 1))
                if can and sl < 4: seq[nxt][0].issue_part(seq[nxt][1], sl)
                if t + 1 < len(seq) and not (t + 1 == first[H+1] and H + 1 in late):
                    if sl == 5: seq[t+1][0].check1(seq[t+1][1])
                    if sl == 6: seq[t+1][0].check2(seq[t+1][1])
                done = (ti == 0) if (tail or head) else (ti == 1)
                if H == 1 and done and not env("NOW2", 0):
                    if 1 <= n <= L and n - 1 + L < r.c5: lg.wait(("r", n - 1)); w2dma(r, n - 1 + L)
                    if n < L: w2read(r, n)
                    if not isA:
                        if 9 <= n <= 15: w2read(r, n - 2)
                        if not D3L and 10 <= n and n + 4 < r.c5: lg.wait(("r", n - 3)); w2dma(r, n + 4)
                if H == 0 and not isA and done and env("DL", 0) == 2 and n % 3 == 2 and n < 18: w2dma(r, 1 + n // 3)
                if H == 2 and not isA and done:
                    if not D3L and 4 <= n and n + 10 < r.c5: wread_step(r, n + 10, r.slots[(n + 10) % L])
                    if D3L and n + 14 < r.c5: w2dma(r, n + 14)
                    if D3L and 8 <= n and n + 6 < r.c5: w2read(r, n + 6)
            if can: issued.add(nxt)
        if ph and isA:
            vm.wait_all()
            A(f"{MFMA} {v(ACC,16)}, {v(IR,4)}, {v(HR,4)}, {v(ACC,16)}")
        stamp(f"{nm}mm{hf}" + N)
    def late_issue(H):
        for t in range(first[H], min(first[H] + 3, first[H+1])): seq[t][0].issue(seq[t][1]); issued.add(t)
    def partials(H):
        for q in (2, 3, 1):
            for j in range(2): A(pw(q, j))
        if H < 2:
            for j in range(4): A(f"v_lshlrev_b32 v{TMP}, 16, v{BR+j}\nv_and_b32 v{TMP+1}, 0xffff0000, v{BR+j}\nv_add_f32 v{OWN+2*j}, v{ACC+2*j}, v{TMP}\nv_add_f32 v{OWN+2*j+1}, v{ACC+2*j+1}, v{TMP+1}")
        else:
            if H == 2: A(f"v_lshlrev_b32 v{B2R}, 16, v{B2R}")
            for k in range(8): A(f"v_add_f32 v{OWN+k}, v{ACC+k}, v{B2R}")
    def epilogue(H):
        ph, hf = H >> 1, H & 1
        A("s_waitcnt lgkmcnt(0)\ns_barrier"); lg.q = []
        stamp(f"red{4+ph}{hf}")
        if H in (1, 2): late_issue(H + 1)
        if env("PRIO", 1): A("s_setprio 2")
        gather(H == 3, H > 0)
        if ph == 0:
            A(f"s_mov_b32 s{sA}, {fl(c2)}\nv_mov_b32 v{TMP}, {fl(c1)}")
            E = TMP + 8
            for k in range(8): A(f"v_mul_f32 v{E+k}, v{OWN+k}, v{OWN+k}")
            for k in range(8): A(f"v_fma_f32 v{E+k}, v{E+k}, s{sA}, v{TMP}")
            for k in range(8): A(f"v_mul_f32 v{E+k}, v{E+k}, v{OWN+k}")
            for k in range(8): A(f"v_exp_f32 v{E+k}, v{E+k}")
            for k in range(8): A(f"v_add_f32 v{E+k}, 1.0, v{E+k}")
            for k in range(8): A(f"v_rcp_f32 v{E+k}, v{E+k}")
            for k in range(8): A(f"v_mul_f32 v{OWN+k}, v{OWN+k}, v{E+k}")
        for k in range(4): A(f"v_cvt_pk_bf16_f32 v{TMP+4+k}, v{OWN+2*k}, v{OWN+2*k+1}")
        if ph == 0:
            A(f"v_or_b32 v{TMP+7}, 1, v{TMP+7}\nbuffer_store_dwordx4 {v(TMP+4,4)}, v{VL}, {R(RWS)}, s{sGST} offen sc1\ns_add_u32 s{sGST}, s{sGST}, {112*1024}")
        else:
            A(f"v_permlane32_swap_b32 v{TMP+4}, v{TMP+6}\nv_permlane32_swap_b32 v{TMP+5}, v{TMP+7}\nbuffer_store_dwordx4 {v(TMP+4,4)}, v{VO}, {R(ROUT)}, s{sE} offen offset:{hf*64}" + [os.environ.get("OF0", ""), os.environ.get("OF1", "")][hf])
        stamp(("gst", "outst")[ph] + str(hf))
        if H < 3: A("s_barrier")
        stamp_flush()
    if isA:
        if env("PRIO", 1): A("s_setprio 2")
        compute(0); partials(0)
        if env("PRIO", 1): A("s_setprio 0")
        compute(1); epilogue(0); partials(1)
        for m in range(L, r.c5): w2read(r, m)
        p5setup(); epilogue(1)
        compute(2); partials(2); epilogue(2)
        compute(3); partials(3); epilogue(3)
    else:
        if env("PRIO", 1): A("s_setprio 1")
        for H in range(4):
            compute(H)
            if H == 3 or H + 1 in late:
                for q in range(2):
                    for j in range(2): A(pw(q, j))
                if H < 3: late_issue(H + 1)
                A("s_waitcnt lgkmcnt(0)\ns_barrier"); lg.q = []
            stamp_flush()
    A(f"MLP_END{N}:")

def finish():
    A(f"s_or_b32 s{sT}, s2, s{SW}\ns_cbranch_scc1 K_FIN\nv_mov_b32 v4, 0\nv_mov_b32 v5, 0\ns_mov_b64 exec, 1\nbuffer_store_dwordx2 v[4:5], v4, {R(RDBG)}, 0 offen sc1\ns_mov_b64 exec, -1")
    A("K_FIN:")
    if os.environ.get("DIAGAT"):
        A(f"DSP:\ns_memrealtime s[{sA}:{sA+1}]\ns_waitcnt lgkmcnt(0)\ns_sub_u32 s{sA}, s{sA}, s72\ns_cmp_lt_u32 s{sA}, 4000\ns_cbranch_scc1 DSP")
    if STAMP:
        A("s_waitcnt vmcnt(0)"); stamp("end"); A(f"s_memrealtime s[{sA}:{sA+1}]"); stamp_flush()
        A(f"v_writelane_b32 v{VST}, s72, 62\nv_writelane_b32 v{VST}, s{sA}, 63")
        A(f"s_lshl_b32 s{sT}, s2, 3\ns_add_u32 s{sT}, s{sT}, s{sW8}\ns_lshl_b32 s{sT}, s{sT}, 8\ns_add_u32 s{sT}, s{sT}, {WS_STAMP}\nv_lshlrev_b32 v4, 2, v1\nbuffer_store_dword v{VST}, v4, {R(RWS)}, s{sT} offen")
    A("K_END:\ns_endpgm")

def bprog():
    NT = env("NT", 0); nt = " nt" if NT else ""
    nt1 = " nt" if env("NT1", 0) else ""
    VXD = [16, 17, 18, 19]; VXE = [20, 21]; VWD = list(range(22, 29))
    sWO, sXO, sM, sWM = sA, sB, sC, sD_
    sXP, sWP = [sW1, sW1S, sW1E], [sW2, sW2S, sW2E]
    A("B_P1:"); vm.q = []; lg.q = []
    p1_common()
    A(f"s_mul_i32 s{sXO}, s{sE}, {32*896}\ns_lshl_b32 s{sWM}, s{SW}, 10")
    A("v_lshrrev_b32 v4, 4, v1\nv_and_b32 v5, 15, v1\nv_xor_b32 v5, v5, v4\nv_mul_u32_u24 v6, 896, v4")
    for j in range(4): A(f"v_xor_b32 v7, {4*j}, v5\nv_lshl_add_u32 v7, v7, 4, v6\nv_add_u32 v{VXD[j]}, {j*4*896 - j*1024}, v7")
    A(f"s_lshr_b32 s{sT}, s{sJ}, 2\ns_and_b32 s{sU}, s{sJ}, 3\ns_add_u32 s{sT}, s{sT}, s{sU}\ns_mul_i32 s{sU}, s{sT}, 11\ns_lshr_b32 s{sU}, s{sU}, 5\ns_mul_i32 s{sU}, s{sU}, 3\ns_sub_u32 s{sT}, s{sT}, s{sU}")
    if not env("P1ROT", 1): A(f"s_mov_b32 s{sT}, 0")
    for p in range(3):
        A(f"s_lshl_b32 s{sU}, s{sT}, 8\ns_add_u32 s{sXP[p]}, s{sXO}, s{sU}\ns_mul_i32 s{sU}, s{sT}, {128*2688}\ns_add_u32 s{sWP[p]}, s{sWO}, s{sU}")
        if p < 2: A(f"s_add_u32 s{sT}, s{sT}, 1\ns_cmp_eq_u32 s{sT}, 3\ns_cselect_b32 s{sT}, 0, s{sT}")
    def xpiece(p):
        if p < 3:
            for j in range(8):
                if j % 4 == 0: A(f"s_add_u32 m0, s{sM}, {XBUF[p] + (j>>2)*4096}\ns_add_u32 s{sV}, s{sXP[p]}, {(j>>2)*16*896}")
                A(f"buffer_load_dwordx4 v{VXD[j&3]}, {R(RX)}, s{sV} offen offset:{(j&3)*1024}{nt1} lds"); vm.issue(f"x{p}")
        else:
            for j in range(4):
                A(f"s_add_u32 m0, s{sM}, {XBUF[p] + j*1024}\ns_add_u32 s{sV}, s{sXO}, {(j>>1)*16*896 + 768}\nbuffer_load_dwordx4 v{VXE[j&1]}, {R(RX)}, s{sV} offen{nt1} lds"); vm.issue(f"x{p}")
    def wdma(j):
        g = j // 7
        if g == 3 and j == 21: A(f"s_add_u32 s{sT}, s{sWO}, {3*128*2688}")
        A(f"s_add_u32 m0, s{sWM}, {j*4096}\nbuffer_load_dwordx4 v{VWD[j%7]}, {R(RWQ)}, s{sWP[g] if g < 3 else sT} offen{nt1} lds"); vm.issue(f"w{g}")
    A("s_waitcnt lgkmcnt(0)")
    xpiece(0)
    for j in range(7):
        A(f"v_add_u32 v4, {256*j}, v0\nv_mul_u32_u24 v5, 4682, v4\nv_lshrrev_b32 v5, 16, v5\nv_mul_u32_u24 v6, 14, v5\nv_sub_u32 v4, v4, v6")
        A(f"v_and_b32 v6, 0xf8, v5\nv_and_b32 v7, 1, v5\nv_lshl_add_u32 v6, v7, 2, v6\nv_bfe_u32 v7, v5, 1, 2\nv_add_u32 v6, v6, v7\nv_mul_u32_u24 v6, 2688, v6\nv_lshl_add_u32 v{VWD[j]}, v4, 4, v6")
        wdma(j)
    xpiece(1)
    A("v_lshrrev_b32 v4, 3, v1\nv_mul_u32_u24 v6, 896, v4\nv_lshrrev_b32 v4, 4, v1\nv_and_b32 v5, 7, v1\nv_xor_b32 v5, v5, v4")
    for j in range(2): A(f"v_xor_b32 v7, {4*j}, v5\nv_lshl_add_u32 v7, v7, 4, v6\nv_add_u32 v{VXE[j]}, {j*8*896}, v7")
    prologue2()
    vm.wait("w0"); A("s_barrier\ns_barrier")
    for j in range(7, 14): wdma(j)
    xpiece(2)
    vm.wait("w1"); A("s_barrier\ns_barrier")
    for j in range(14, 21): wdma(j)
    xpiece(3)
    for j in range(21, 25): wdma(j)
    vm.wait("w2"); A("s_barrier")
    vm.wait_all(); A("s_barrier\ns_waitcnt lgkmcnt(0)\ns_branch B_P2")

def bprog2():
    NT = env("NT", 0); nt = " nt" if NT else ""
    A("B_P2:"); vm.q = []
    if STAMP: A("v_mov_b32 v15, -1\nB_P2S:"); st["v"] = 15
    roles(touch=False)
    r = RB
    WOR, W2T = 16, 48
    VT1, VTO, VDW, VDR = [4, 5], [8, 9], 10, 11
    w2_addr(r, 12, 13)
    A(f"v_lshrrev_b32 v12, 3, v1\nv_mul_u32_u24 v12, 3584, v12\nv_add_u32 v{VT1[0]}, v12, v13\nv_add_u32 v{VT1[1]}, {8*3584 - 1024}, v{VT1[0]}")
    A(f"v_lshrrev_b32 v12, 2, v1\nv_mul_u32_u24 v12, 896, v12\nv_and_b32 v13, 3, v1\nv_lshl_add_u32 v{VTO[0]}, v13, 4, v12\nv_add_u32 v{VTO[1]}, {16*896}, v{VTO[0]}")
    A(f"v_add_u32 v{VDW}, s{sW2W}, v{VL}\nv_add_u32 v{VDR}, s{sRBW}, v{VL}")
    tr_lane_addr(12, 13, 128, 4)
    A(f"s_and_b32 s{sT}, s{SW}, 1\ns_lshl_b32 s{sT}, s{sT}, 5\nv_xor_b32 v12, s{sT}, v12\nv_add_u32 v12, s{sW2W}, v12\nv_bfe_u32 v13, v1, 3, 1\ns_lshr_b32 s{sT}, s{SW}, 1\nv_xor_b32 v13, s{sT}, v13")
    A(f"v_lshl_add_u32 v{r.VRD[0]}, v13, 6, v12\nv_xor_b32 v13, 1, v13\nv_lshl_add_u32 v{r.VRD[1]}, v13, 6, v12")
    A(f"s_mul_i32 s{sW1S}, s{SW}, {512*3584}\ns_lshl_b32 s{sT}, s{sFT}, 7\ns_add_u32 s{sW1S}, s{sW1S}, s{sT}\ns_add_u32 s{sW1E}, s{sW1S}, {512*3584}")
    A(f"s_lshr_b32 s{sT}, s{sRO}, 10\ns_add_u32 s{sT}, s{sT}, {r.n4}\ns_and_b32 s{sT}, s{sT}, 31\ns_mul_i32 s{sT}, s{sT}, {16*3584}\ns_add_u32 s{sW1}, s{sW1S}, s{sT}")
    TH = [env("BTH", 4)]
    A(f"s_and_b32 s{sT}, s{sC3}, 7\ns_lshl_b32 s{sT}, s{sT}, 1\ns_lshl_b32 s{sD_}, s{SW}, 2\ns_add_u32 s{sD_}, s{sD_}, s{sT}\ns_min_u32 s{sC}, s{sC3}, 13\ns_lshl_b32 s{sC}, s{sC}, 6")
    A(f"s_cmp_ge_u32 s{sJ}, 24\ns_cbranch_scc1 B_NOKV\ns_barrier\nB_NOKV:")
    A(f"s_add_u32 s{sT}, s{SW}, 1\ns_and_b32 s{sT}, s{sT}, 3\ns_mul_i32 s{sT}, s{sT}, 12288\ns_add_u32 s{sT}, s{sT}, {RBUF + 3072}\nv_add_u32 v14, s{sT}, v{VL}")
    A(f"v_mov_b32 v12, 0\nds_write_b32 v14, v12\ns_waitcnt lgkmcnt(0)\ns_barrier")
    stamp("b_go")
    vm.q = []
    A(f"buffer_load_dwordx2 v[{W2T}:{W2T+1}], v12, {R(RDBG)}, 0 offen sc1"); vm.issue("tag")
    sPOS = sE
    todo = []
    def throttle():
        A(f"s_waitcnt vmcnt({TH[0]})"); vm.q = vm.q[-TH[0]:]
        while todo and ("s", todo[0]) not in vm.q:
            m = todo.pop(0); wread_step(r, m, m % 14)
    def rawitem(m):
        w2soff(m)
        for j in range(2): A(f"buffer_load_dwordx4 {v(W2T+8*m+4*j,4)}, v{r.VT2[j]}, {R(RW2)}, s{sA} offen offset:{j*1024}")
    for k in range(32):
        slot = k % 14 if k < 20 else (k - 20 + 6) % 12
        if k == 20: A(f"s_add_u32 s{sW1}, s{sW1}, {6*16*3584}\ns_cmp_ge_u32 s{sW1}, s{sW1E}\ns_cselect_b32 s{sT}, {512*3584}, 0\ns_sub_u32 s{sW1}, s{sW1}, s{sT}")
        if k == 26: A(f"s_lshr_b32 s{sT}, s{sRO}, 10\ns_mul_i32 s{sT}, s{sT}, {16*3584}\ns_add_u32 s{sW1}, s{sW1S}, s{sT}")
        if k >= 14:
            assert not [m for m in todo if m % 14 == slot]
            A("s_waitcnt lgkmcnt(0)")
        A(f"s_add_u32 m0, s{sW2W}, {slot*2048}")
        for j in range(2): A(f"buffer_load_dwordx4 v{VT1[j]}, {R(RW1)}, s{sW1} offen offset:{j*1024} lds"); vm.issue(("s", k))
        if k < 20: todo.append(k)
        A(f"s_add_u32 s{sW1}, s{sW1}, {16*3584}\ns_cmp_eq_u32 s{sW1}, s{sW1E}\ns_cselect_b32 s{sW1}, s{sW1S}, s{sW1}")
        throttle()
        if k in (4, 6, 8, 10):
            q = (k - 4) // 2
            A(f"s_add_u32 s{sT}, s{sD_}, {q}\ns_and_b32 s{sT}, s{sT}, 15\ns_mul_i32 s{sT}, s{sT}, {28*896}\ns_add_u32 s{sT}, s{sT}, s{sC}")
            for j in range(2): A(f"buffer_load_dwordx4 {v(WOR+8*q+4*j,4)}, v{VTO[j]}, {R(RWO)}, s{sT} offen"); vm.issue("wo")
            throttle()
        if k == 13:
            A(f"s_setprio 3\nv_readfirstlane_b32 s{sTAG}, v{W2T}\nv_readfirstlane_b32 s{sTAG+1}, v{W2T+1}\nv_lshlrev_b32 v12, 3, v1\ns_mul_i32 s{sV}, s{SW}, 384\ns_add_u32 s{sV}, s{sV}, {F2}")
            poll(12, sV, 48, 8); A("v_lshlrev_b32 v12, 7, v1\ns_setprio 0")
            TH[0] = env("BTH2", 8)
        if env("W2C", 0) and k in (14, 20):
            A(f"s_lshl_b32 s{sA}, s2, 2\ns_add_u32 s{sA}, s{sA}, s{SW}\ns_mul_i32 s{sA}, s{sA}, {56*128}")
            set_exec(((1 << 28) - 1) << (28*(k == 20))); A(f"buffer_load_dword v8, v12, {R(RW2)}, s{sA} offen\ns_mov_b64 exec, -1"); vm.issue("t")
        if k in (4, 13, 31): stamp(f"b_{k}")
    assert not todo
    w2dma(r, 0)
    for m in range(6):
        A(f"ds_read_b32 v13, v14\ns_mov_b32 s{sPOS}, {m}\ns_waitcnt vmcnt({TH[0]}) lgkmcnt(0)\ns_setprio 3\nv_cmp_ne_u32 vcc, 0, v13\ns_setprio 0\ns_cbranch_vccnz B_CUT")
        rawitem(m)
    A(f"s_mov_b32 s{sPOS}, 6")
    if env("W2T", 0):
        A(f"s_setprio 3\ns_lshr_b32 s{sT}, s{sGC}, 6\ns_add_u32 s{sT}, s{sT}, 96\nv_add_u32 v12, s{sT}, v1\nv_subrev_u32 v13, 448, v12\nv_min_u32 v12, v12, v13\nv_lshlrev_b32 v12, 12, v12\ns_setprio 0")
        A(f"s_mul_i32 s{sT}, s{SW}, {448*4096}\ns_lshl_b32 s{sU}, s{sST}, 7\ns_add_u32 s{sT}, s{sT}, s{sU}\nbuffer_load_dword v14, v12, {R(RW2)}, s{sT} offen")
    A("B_CUT:")
    stamp("b_done"); stamp_flush()
    if STAMP: A(f"v_writelane_b32 v15, s{sPOS}, 60")
    A(f"s_setprio 3\nv_min_u32 v12, 5, v1\nv_lshlrev_b32 v12, 12, v12\nv_add_u32 v12, {RBUF + 3*1024 + 32*16 + 4}, v12\ns_setprio 0")
    A(f"B_RED:\ns_barrier\nds_read_b32 v13, v12\ns_waitcnt lgkmcnt(0)\nv_cmp_ne_u32 vcc, 0, v13")
    A(f"s_cbranch_vccz B_OK\ns_cmp_lg_u32 s{sRETRY}, 0\ns_cbranch_scc1 B_OK\ns_mov_b32 s{sRETRY}, -1\ns_barrier\ns_barrier\ns_barrier\ns_branch B_RED\nB_OK:")
    A("s_waitcnt vmcnt(0)\ns_barrier")
    for k in range(8): A(f"ds_write_b128 v{VDR}, {v(WOR+4*k,4)} offset:{k*1024}")
    A("s_waitcnt vmcnt(0) lgkmcnt(0)\ns_barrier")
    if not env("EP", 0): A("s_barrier")
    for m in range(6):
        A(f"s_cmp_gt_u32 s{sPOS}, {m}\ns_cbranch_scc1 B_SK{m}"); rawitem(m); A(f"B_SK{m}:")
    vm.q = []
    DL = env("DL", 0)
    if DL == 0:
        for m in range(1, 7): w2dma(r, m)
    A(f"s_waitcnt vmcnt({12 if DL == 0 else 0})")
    for m in range(6):
        for j in range(2): A(f"ds_write_b128 v{VDW}, {v(W2T+8*m+4*j,4)} offset:{m*2048 + j*1024}")
    unswap(r); mlp_addr(r, 12, 13, False)
    A("s_waitcnt lgkmcnt(0)")
    if env("X1B", 1): A("s_barrier")
    if DL == 1:
        for m in range(1, 7): w2dma(r, m)
    mlp(r, VDR, VDW)
    if STAMP: A(f"v_mov_b32 v{VST}, v15"); del st["v"]
    A("s_branch K_FIN")

def main(out):
    prologue()
    pend0 = list(st["pend"])
    bprog()
    st["pend"] = list(pend0); p1_helper()
    st["pend"] = list(pend0); p1(); fb = p2(); p3(); vm.q = []; mlp(RA); finish()
    st["pend"] = list(pend0); bprog2(); fb()
    for h in handlers: h()
    A("CODE_END:")
    head = open("head.txt").read()
    nv = 256
    txt = head + f"; @launch grid=(256,1,1) block=(512,1,1) lds={LDS_TOTAL}\n" + '.amdgcn_target "amdgcn-amd-amdhsa--gfx950"\n.text\n' + kernel_header(NAME) + A.text() + '.section .rodata,"a"\n' + kernel_desc(NAME, nv, 102, 256)
    open(out, "w").write(txt)
    if STAMP: open(out + ".names", "w").write(" ".join(st["names"].keys()))

if __name__ == "__main__":
    main(sys.argv[1])
```

```python
import sys, struct, math, os
from asmlib import *

S, D, H, DH, F = 2048, 448, 16, 28, 1792
MB = 1 << 20
WS_Q, WS_KV, WS_O, WS_HF, WS_HH, WS_G, WS_ST, WS_FL, WS_STAMP = 0, 2*MB, 6*MB, 8*MB, 10*MB, 12*MB, 14*MB, 14*MB + 512*1024, 15*MB
F1, F2, F4, F5 = WS_FL, WS_FL + 131072, WS_FL + 2*131072, WS_FL + 3*131072
WS_RST, WS_CSG = 13*MB + 768*1024, 13*MB + 832*1024
WS_SIZE = 16*MB
WS_O = WS_HH = WS_Q
WS_G = WS_KV
EPS = 1e-5
STAMP = os.environ.get("STAMP", "0") == "1"
def env(n, d): return int(os.environ.get(n, str(d)))
def f2u(x): return struct.unpack("<I", struct.pack("<f", x))[0]
def hx(x): return f"0x{x & 0xffffffff:08x}"
def fl(x): return hx(f2u(x))
MFMA = "v_mfma_f32_32x32x16_bf16"
NAME = "sequential_preLN__mha_block__mixer_token_mlp__prompt_kernel"

class Cnt:
    def __init__(self, A, name, mx):
        self.A, self.name, self.mx, self.q = A, name, mx, []
    def issue(self, tag): self.q.append(tag)
    def wait(self, tag):
        idx = [i for i, t in enumerate(self.q) if t == tag]
        if not idx: return
        n = len(self.q) - 1 - idx[-1]
        self.A(f"s_waitcnt {self.name}({min(n, self.mx)})")
        self.q = self.q[idx[-1] + 1:]
    def wait_all(self):
        self.A(f"s_waitcnt {self.name}(0)"); self.q = []

RX, RWQ, RWO, RW1, RB1, RW2, RB2, ROUT, RDBG, RWS = 8, 12, 16, 20, 24, 28, 32, 36, 40, 44
def R(r): return f"s[{r}:{r+3}]"
SW, sH, sI, sJ, sFT, sDT4, sST, sDT5, sACT4, sTO, sTAG = 48, 49, 50, 51, 52, 53, 54, 55, 56, 57, 58
sHI, sONES = 60, 62
sT, sU, sV, sA, sB, sC, sD_, sE, sRETRY = 63, 64, 65, 66, 67, 68, 69, 70, 71
sF = [4, 5, 6, 7]
sSEC, sHQ, sW8 = 3, 92, 93
sMISS = 6
sC3, sR3 = 0, 1
sRBW, sW2W = 94, 95
sW2, sW2S, sW2E, sW1, sW1S, sW1E = 96, 97, 98, 99, 100, 101
VL, VST = 2, 255
W2A, RBUF, LDS_TOTAL = 0, 114688, 163840

A = Asm(); vm = Cnt(A, "vmcnt", 63); lg = Cnt(A, "lgkmcnt", 15)
st = {"pend": [], "names": {}}
def stamp(name):
    if os.environ.get("DIAGAT") == name or (os.environ.get("DIAGAT") and name == "start"): A("s_memrealtime s[72:73]")
    if not STAMP: return
    k = len(st["pend"]); assert k < 9, name
    n = st["names"].setdefault(name, len(st["names"]))
    A(f"{'s_memtime' if env('CYC', 0) else 's_memrealtime'} s[{74+2*k}:{75+2*k}]"); st["pend"].append(n)
def stamp_flush():
    if not STAMP or not st["pend"]: return
    A("s_waitcnt lgkmcnt(0)")
    for k, n in enumerate(st["pend"]): A(f"v_writelane_b32 v{st.get('v', VST)}, s{74+2*k}, {n}")
    st["pend"] = []

def set_exec(mask): A(f"s_mov_b32 exec_lo, {hx(mask)}\ns_mov_b32 exec_hi, {hx(mask >> 32)}")
def halfsum(x, t): A(f"v_mov_b32 v{t}, v{x}\nv_permlane32_swap_b32 v{x}, v{t}\nv_add_f32 v{x}, v{x}, v{t}")
def flag_store(soff_reg, t=4):
    A(f"v_mov_b32 v{t}, s{sTAG}\nv_mov_b32 v{t+1}, s{sTAG+1}\nv_mov_b32 v{t+2}, 0\ns_mov_b64 exec, 1")
    A(f"buffer_store_dwordx2 {v(t,2)}, v{t+2}, {R(RWS)}, s{soff_reg} offen sc1\ns_mov_b64 exec, -1"); vm.issue("flag")
def poll(voff, soff_reg, nl, t):
    L = A.label("POLL")
    set_exec((1 << nl) - 1)
    A(f"s_mov_b32 s{sTO}, 0x8000\n{L}:")
    A(f"buffer_load_dwordx2 {v(t,2)}, v{voff}, {R(RWS)}, s{soff_reg} offen sc1\ns_sub_u32 s{sTO}, s{sTO}, 1\ns_waitcnt vmcnt(0)")
    A(f"s_cbranch_scc1 {L}_x\nv_cmp_ne_u64 vcc, s[{sTAG}:{sTAG+1}], {v(t,2)}\ns_and_b64 exec, exec, vcc\n" + (f"s_cbranch_scc0 {L}_x\ns_sleep {env('PSL', 0)}\ns_branch {L}" if env("PSL", 0) else f"s_cbranch_scc1 {L}") + f"\n{L}_x:\ns_mov_b64 exec, -1")
    vm.q = []
def tr_lane_addr(dst, t, pitch, hs, rs=1):
    A(f"v_lshrrev_b32 v{dst}, 5, v1\nv_mul_u32_u24 v{dst}, {hs*pitch}, v{dst}\nv_bfe_u32 v{t}, v1, 2, 2\nv_mul_u32_u24 v{t}, {rs*pitch}, v{t}\nv_add_u32 v{dst}, v{dst}, v{t}")
    A(f"v_bfe_u32 v{t}, v1, 4, 1\nv_lshl_add_u32 v{dst}, v{t}, 5, v{dst}\nv_and_b32 v{t}, 3, v1\nv_lshl_add_u32 v{dst}, v{t}, 3, v{dst}")
def get_tag(TAGV, lab):
    A(f"v_readfirstlane_b32 s{sTAG}, v{TAGV}\nv_readfirstlane_b32 s{sTAG+1}, v{TAGV+1}")
    A(f"s_or_b32 s{sTO}, s{sTAG}, s{sTAG+1}\ns_cbranch_scc1 {lab}_ok\ns_mov_b32 s{sTO}, 0x8000\nv_mov_b32 v4, 0\n{lab}_l:")
    A(f"buffer_load_dwordx2 {v(TAGV,2)}, v4, {R(RDBG)}, 0 offen sc1\ns_sub_u32 s{sTO}, s{sTO}, 1\ns_waitcnt vmcnt(0)\ns_cbranch_scc1 {lab}_ok")
    A(f"v_readfirstlane_b32 s{sTAG}, v{TAGV}\nv_readfirstlane_b32 s{sTAG+1}, v{TAGV+1}\ns_cmp_eq_u64 s[{sTAG}:{sTAG+1}], 0\ns_cbranch_scc1 {lab}_l\n{lab}_ok:")
def tagcheck(regs, T1, T2, T3):
    A(f"v_xor_b32 v{T1}, s{sTAG}, v{regs[0]+1}\nv_xor_b32 v{T2}, s{sTAG+1}, v{regs[0]+3}\nv_or_b32 v{T1}, v{T1}, v{T2}")
    for g in regs[1:]: A(f"v_xor_b32 v{T2}, s{sTAG}, v{g+1}\nv_xor_b32 v{T3}, s{sTAG+1}, v{g+3}\nv_or3_b32 v{T1}, v{T1}, v{T2}, v{T3}")
    A(f"v_cmp_ne_u32 vcc, 0, v{T1}")
def rot4(d):
    A(f"s_bfe_u32 s{d}, s2, 0x20001\ns_mul_i32 s{d}, s{d}, 7\ns_sub_u32 s{d}, s{sFT}, s{d}\ns_add_u32 s{d}, s{d}, s{sDT4}\ns_add_u32 s{d}, s{d}, s{sDT4}")
    A(f"s_and_b32 s{sTO}, s2, 1\ns_mul_i32 s{sTO}, s{sTO}, 3\ns_add_u32 s{d}, s{d}, s{sTO}\ns_and_b32 s{d}, s{d}, 7\ns_lshl_b32 s{d}, s{d}, 2")
def rot5(d):
    A(f"s_and_b32 s{sTO}, s2, 1\ns_lshl_b32 s{sTO}, s{sTO}, 1\ns_lshl_b32 s{d}, s{sDT5}, 1\ns_add_u32 s{d}, s{d}, s{sTO}\ns_and_b32 s{sTO}, s{sST}, 7\ns_add_u32 s{d}, s{d}, s{sTO}")
    A(f"s_mul_i32 s{sTO}, s{d}, 37\ns_lshr_b32 s{sTO}, s{sTO}, 8\ns_mul_i32 s{sTO}, s{sTO}, 7\ns_sub_u32 s{d}, s{d}, s{sTO}\ns_lshl_b32 s{d}, s{d}, 2")

handlers = []
class Stream:
    def __init__(self, name, ng, loads, soff, T, bit, VP, TP, pm=None, gated=None):
        self.name, self.ng, self.loads, self.soff, self.T, self.last, self.bit = name, ng, loads, soff, T, -1, bit
        self.VP, self.TP, self.pm, self.gated = VP, TP, pm or (lambda g: 0xffffffff), ng if gated is None else gated
        A(f"s_mov_b32 s{sMISS}, {hx((1 << 2*ng) - 1)}")
    def gate(self, g):
        if g >= self.gated: return
        L = f"{self.name}g{g}"
        A(f"s_and_b32 s{sT}, s{sMISS}, {hx(3 << 2*g)}\ns_cbranch_scc1 {L}_h\n{L}_r:")
        def h():
            A(f"{L}_h:\ns_mov_b32 s{sTO}, 0x8000\ns_mov_b32 exec_hi, 0\n{L}_l:\ns_and_b32 exec_lo, s{sMISS}, {hx(self.pm(g))}")
            A(f"buffer_load_dword v{self.TP}, v{self.VP}, {R(RWS)}, 0 offen sc1\ns_sub_u32 s{sTO}, s{sTO}, 1\ns_waitcnt vmcnt(0)\ns_cbranch_scc1 {L}_x")
            A(f"v_and_b32 v{self.TP}, {self.bit}, v{self.TP}\nv_cmp_ne_u32 vcc, 0, v{self.TP}\ns_andn2_b32 s{sMISS}, s{sMISS}, vcc_lo\ns_and_b32 s{sT}, s{sMISS}, {hx(3 << 2*g)}\ns_cbranch_scc1 {L}_l")
            A(f"{L}_x:\ns_mov_b64 exec, -1\ns_branch {L}_r")
        handlers.append(h)
    def _emit(self, g, track):
        self.soff(g)
        for reg, va, off in self.loads(g):
            A(f"buffer_load_dwordx4 {v(reg,4)}, v{va}, {R(RWS)}, s{sT} offen offset:{off} sc1")
            if track: vm.issue((self.name, g))
    def issue(self, g):
        if g < self.ng: self.gate(g); self._emit(g, True); self.last = g
    def issue_part(self, g, k):
        if g >= self.ng: return
        if k == 0: self.gate(g); self.soff(g)
        reg, va, off = self.loads(g)[k]
        A(f"buffer_load_dwordx4 {v(reg,4)}, v{va}, {R(RWS)}, s{sT} offen offset:{off} sc1"); vm.issue((self.name, g))
        self.last = g
    def _red(self, g):
        r = [x[0] + 3 for x in self.loads(g)]
        A(f"v_bitop3_b32 v{self.T}, v{r[0]}, v{r[1]}, v{r[2]} bitop3:0x80\nv_bitop3_b32 v{self.T}, v{self.T}, v{r[3]}, {self.bit} bitop3:0x80")
    def check1(self, g):
        if g < self.ng: vm.wait((self.name, g)); self._red(g)
    def check2(self, g):
        if g >= self.ng: return
        L = f"{self.name}{g}"
        A(f"v_cmp_eq_u32 vcc, 0, v{self.T}\ns_cbranch_vccnz {L}_h\n{L}_r:")
        last = self.last
        def h():
            A(f"{L}_h:\ns_mov_b32 s{sTO}, 0x8000\n{L}_l:")
            self._emit(g, False)
            A(f"s_sub_u32 s{sTO}, s{sTO}, 1\ns_waitcnt vmcnt(0)\ns_cbranch_scc1 {L}_r")
            self._red(g)
            A(f"v_cmp_eq_u32 vcc, 0, v{self.T}\ns_cbranch_vccnz {L}_l\ns_branch {L}_r")
        handlers.append(h)

def prologue():
    if STAMP: A(f"s_memrealtime s[72:73]\nv_mov_b32 v{VST}, -1")
    stamp("start")
    A(f"s_load_dwordx2 s[{RX}:{RX+1}], s[0:1], 0\ns_load_dwordx2 s[{RWQ}:{RWQ+1}], s[0:1], 8")
    A("s_cmp_ge_u32 s2, 256\ns_cbranch_scc1 K_END")
    A(f"v_and_b32 v1, 63, v0\nv_lshrrev_b32 v3, 6, v0\nv_lshlrev_b32 v{VL}, 4, v1\nv_readfirstlane_b32 s{sW8}, v3\nv_and_b32 v0, 255, v0")
    for r, sz in ((RX, S*D*2), (RWQ, D*3*D*2)): A(f"s_mov_b32 s{r+2}, {sz}\ns_mov_b32 s{r+3}, 0x20000")
    A(f"s_and_b32 s{SW}, s{sW8}, 3\ns_lshr_b32 s{sJ}, s2, 3\ns_bfe_u32 s{sT}, s2, 0x20001\ns_and_b32 s{sU}, s2, 1")
    A(f"s_lshl_b32 s{sI}, s{sT}, 2\ns_and_b32 s{sV}, s{sJ}, 3\ns_add_u32 s{sI}, s{sI}, s{sV}")
    A(f"s_lshr_b32 s{sSEC}, s{sJ}, 3\ns_bfe_u32 s{sHQ}, s{sJ}, 0x10002\ns_lshl_b32 s{sV}, s{sU}, 1\ns_add_u32 s{sHQ}, s{sHQ}, s{sV}")
    A(f"s_cmp_ge_u32 s{sJ}, 24\ns_cbranch_scc1 P1_HELP\ns_cmp_lt_u32 s{sW8}, 4\ns_cbranch_scc1 A_P1")

def prologue2():
    for r, off in ((RWS, 80), (RDBG, 72), (RWO, 16), (RW1, 32), (RB1, 40), (RW2, 48), (RB2, 56), (ROUT, 64)):
        A(f"s_load_dwordx2 s[{r}:{r+1}], s[0:1], {off}")
    A(f"s_memrealtime s[{sTAG}:{sTAG+1}]")
    for r, sz in ((RWS, WS_SIZE), (RDBG, 256), (RWO, D*D*2), (RW1, S*F*2), (RB1, F*2), (RW2, S*F*2), (RB2, S*2), (ROUT, S*D*2)):
        A(f"s_mov_b32 s{r+2}, {sz}\ns_mov_b32 s{r+3}, 0x20000")
    A(f"s_mov_b32 s{sHI}, 0\ns_mov_b32 s{sHI+1}, -1\ns_mov_b32 s{sONES}, 0x3f803f80\ns_mov_b32 s{sRETRY}, 0")
    A(f"s_mul_i32 s{sRBW}, s{SW}, 12288\ns_add_u32 s{sRBW}, s{sRBW}, {RBUF}\ns_mul_i32 s{sW2W}, s{SW}, 28672")

def roles(touch=True):
    A(f"s_bfe_u32 s{sT}, s2, 0x20001\ns_and_b32 s{sU}, s2, 1")
    pass
    A(f"s_sub_u32 s{sV}, 25, s{sU}\ns_cmp_lt_u32 s{sJ}, s{sV}\ns_cselect_b32 s{sACT4}, 1, 0\ns_cselect_b32 s{sV}, s{sJ}, 0")
    A(f"s_mul_i32 s{sFT}, s{sU}, 25\ns_add_u32 s{sV}, s{sV}, s{sFT}\ns_mul_i32 s{sDT4}, s{sV}, 9363\ns_lshr_b32 s{sDT4}, s{sDT4}, 16")
    A(f"s_mul_i32 s{sFT}, s{sDT4}, 7\ns_sub_u32 s{sV}, s{sV}, s{sFT}\ns_mul_i32 s{sFT}, s{sT}, 7\ns_add_u32 s{sFT}, s{sV}, s{sFT}")
    A(f"s_cmp_lt_u32 s{sJ}, 28\ns_cselect_b32 s{sV}, s{sJ}, 0\ns_mul_i32 s{sST}, s{sU}, 28\ns_add_u32 s{sV}, s{sV}, s{sST}")
    A(f"s_lshr_b32 s{sDT5}, s{sV}, 3\ns_and_b32 s{sV}, s{sV}, 7\ns_lshl_b32 s{sST}, s{sT}, 3\ns_add_u32 s{sST}, s{sST}, s{sV}")
    A(f"s_lshl_b32 s{sT}, s{sHQ}, 2\ns_add_u32 s{sT}, s{sT}, s{sSEC}\ns_lshl_b32 s{sT}, s{sT}, 4\ns_add_u32 s{sT}, s{sT}, s{sI}\ns_lshl_b32 s{sT}, s{sT}, 7\ns_add_u32 s{sF[0]}, s{sT}, {F1}")
    A(f"s_and_b32 s{sT}, s2, 7\ns_lshl_b32 s{sT}, s{sT}, 1\ns_and_b32 s{sH}, s{sJ}, 1\ns_add_u32 s{sH}, s{sH}, s{sT}\ns_lshr_b32 s{sI}, s{sJ}, 1")
    A(f"s_lshr_b32 s{sR3}, s{sJ}, 4\ns_add_u32 s{sR3}, s{sR3}, s{sT}\ns_lshl_b32 s{sR3}, s{sR3}, 2\ns_add_u32 s{sR3}, s{sR3}, s{SW}\ns_and_b32 s{sC3}, s{sJ}, 15")
    A(f"s_lshl_b32 s{sT}, s2, 3\ns_add_u32 s{sF[1]}, s{sT}, {F2}")
    if not touch: return
    A(f"s_lshl_b32 s{sV}, s{sR3}, 4\ns_add_u32 s{sV}, s{sV}, s{sC3}\ns_lshl_b32 s{sV}, s{sV}, 9\ns_add_u32 s{sV}, s{sV}, {WS_ST}\nv_lshl_add_u32 v4, v1, 7, s{sV}")
    A(f"v_writelane_b32 v4, s{sF[0]}, 4\nv_writelane_b32 v4, s{sF[1]}, 5\ns_mov_b64 exec, {0x3f if env('STT', 1) else 0x30}\nbuffer_load_dword v127, v4, {R(RWS)}, 0 offen sc1\ns_mov_b64 exec, -1")
    vm.issue("touch")

def p1_helper():
    TAGV = 14
    sHX = sA
    A("P1_HELP:")
    vm.q = []
    prologue2()
    A(f"s_and_b32 s{sHX}, s2, 7\ns_lshl_b32 s{sHX}, s{sHX}, 3\ns_add_u32 s{sHX}, s{sHX}, s{sJ}\ns_sub_u32 s{sHX}, s{sHX}, 24")
    A(f"v_lshrrev_b32 v4, 3, v1\nv_and_b32 v5, 7, v1\nv_lshlrev_b32 v5, 4, v5\nv_mov_b32 v7, 0")
    A(f"s_cmp_ge_u32 s{sW8}, 4\ns_cbranch_scc1 H_CS")
    A(f"v_mul_u32_u24 v6, 896, v4\nv_add_u32 v6, v6, v5\ns_lshl_b32 s{sB}, s{sHX}, 2\ns_add_u32 s{sB}, s{sB}, s{SW}\ns_mul_i32 s{sT}, s{sB}, {8*896}\ns_waitcnt lgkmcnt(0)")
    for m in range(7): A(f"buffer_load_dwordx4 {v(16+4*m,4)}, v6, {R(RX)}, s{sT} offen offset:{m*128}")
    A("v_mov_b32 v80, 0\nv_mov_b32 v82, 0\nv_mov_b32 v84, 0\nv_mov_b32 v86, 0\ns_waitcnt vmcnt(0)")
    A(f"buffer_load_dwordx2 {v(TAGV,2)}, v7, {R(RDBG)}, 0 offen sc1")
    for k in range(28): A(f"v_dot2c_f32_bf16 v{80+4*(k&1)}, s{sONES}, v{16+k}\nv_dot2c_f32_bf16 v{82+4*(k&1)}, v{16+k}, v{16+k}")
    A("v_add_f32 v80, v80, v84\nv_add_f32 v82, v82, v86")
    for m in ("quad_perm:[1,0,3,2]", "quad_perm:[2,3,0,1]", "row_half_mirror"):
        for r in (80, 82): A(f"v_add_f32_dpp v{r}, v{r}, v{r} {m} row_mask:0xf bank_mask:0xf")
    A(f"v_mul_f32 v80, {fl(1.0/D)}, v80\nv_mul_f32 v82, {fl(1.0/D)}, v82\nv_fma_f32 v82, -v80, v80, v82\nv_max_f32 v82, 0, v82\nv_add_f32 v82, {fl(EPS)}, v82\nv_rsq_f32 v82, v82")
    A(f"v_lshlrev_b32 v6, 4, v4\nv_mul_f32 v80, v80, v82\nv_sub_f32 v80, 0, v80\ns_waitcnt vmcnt(0)")
    get_tag(TAGV, "H_T1")
    A(f"v_mov_b32 v81, s{sTAG}\nv_mov_b32 v83, s{sTAG+1}\ns_lshl_b32 s{sT}, s{sB}, 7\ns_add_u32 s{sT}, s{sT}, {WS_RST}")
    set_exec(0x0101010101010101)
    A(f"buffer_store_dwordx4 v[80:83], v6, {R(RWS)}, s{sT} offen sc1\ns_mov_b64 exec, -1")
    stamp("h_pub"); stamp_flush()
    A("s_barrier")
    roles()
    addr_setup()
    A("s_branch P2_START")
    st["pend"] = [0] if STAMP else []
    A(f"H_CS:\ns_lshl_b32 s{sB}, s{SW}, 6\ns_add_u32 s{sB}, s{sB}, s{sHX}\ns_cmp_ge_u32 s{sB}, 84\ns_cbranch_scc1 H_PF")
    A(f"v_mul_u32_u24 v6, 2688, v4\nv_add_u32 v6, v6, v5\ns_and_b32 s{sC}, s{sB}, 3\ns_lshr_b32 s{sD_}, s{sB}, 2\ns_mul_i32 s{sT}, s{sC}, {112*2688}\ns_lshl_b32 s{sU}, s{sD_}, 7\ns_add_u32 s{sT}, s{sT}, s{sU}\ns_waitcnt lgkmcnt(0)")
    for m in range(14): A(f"buffer_load_dwordx4 {v(16+4*m,4)}, v6, {R(RWQ)}, s{sT} offen\ns_add_u32 s{sT}, s{sT}, {8*2688}")
    A(f"s_mov_b32 s{sT}, 0x3f80\ns_mov_b32 s{sU}, 0x3f800000")
    for r in range(80, 88): A(f"v_mov_b32 v{r}, 0")
    for m in range(14):
        if m % 4 == 0: A(f"s_waitcnt vmcnt({max(0, 14 - m - 4)})")
        if m == 12: A(f"buffer_load_dwordx2 {v(TAGV,2)}, v7, {R(RDBG)}, 0 offen sc1")
        for k in range(4): A(f"v_dot2c_f32_bf16 v{80+2*k}, s{sT}, v{16+4*m+k}\nv_dot2c_f32_bf16 v{81+2*k}, s{sU}, v{16+4*m+k}")
    for r in range(80, 88): A(f"v_add_f32_dpp v{r}, v{r}, v{r} row_ror:8 row_mask:0xf bank_mask:0xf")
    for op in ("v_permlane16_swap_b32", "v_permlane32_swap_b32"):
        for r in range(80, 88): A(f"v_mov_b32 v{r+8}, v{r}")
        for r in range(80, 88): A(f"{op} v{r}, v{r+8}")
        for r in range(80, 88): A(f"v_add_f32 v{r}, v{r}, v{r+8}")
    A("v_mov_b32 v88, v80\nv_mov_b32 v90, v81")
    for pi in range(1, 4): A(f"v_cmp_eq_u32 vcc, {pi}, v4\nv_cndmask_b32 v88, v88, v{80+2*pi}, vcc\nv_cndmask_b32 v90, v90, v{81+2*pi}, vcc")
    A(f"v_lshlrev_b32 v6, 2, v5\nv_lshl_add_u32 v6, v4, 4, v6\ns_waitcnt vmcnt(0)")
    get_tag(TAGV, "H_T2")
    A(f"v_mov_b32 v89, s{sTAG}\nv_mov_b32 v91, s{sTAG+1}\ns_mul_i32 s{sT}, s{sC}, 10752\ns_lshl_b32 s{sU}, s{sD_}, 9\ns_add_u32 s{sT}, s{sT}, s{sU}\ns_add_u32 s{sT}, s{sT}, {WS_CSG}")
    set_exec(0xFFFFFFFF)
    A(f"buffer_store_dwordx4 v[88:91], v6, {R(RWS)}, s{sT} offen sc1\ns_mov_b64 exec, -1\ns_barrier\ns_branch B_P2")
    A(f"H_PF:\ns_cmp_lt_u32 s{SW}, 2\ns_cbranch_scc1 H_W")
    sQ = sB
    A(f"s_sub_u32 s{sQ}, s{sJ}, 24\ns_lshl_b32 s{sQ}, s{sQ}, 1\ns_add_u32 s{sQ}, s{sQ}, s{SW}\ns_sub_u32 s{sQ}, s{sQ}, 2")
    A(f"s_getpc_b64 s[{sC}:{sC+1}]\nCODE_REF:\ns_lshl_b32 s{sT}, s{sQ}, 12\nv_lshl_add_u32 v6, v1, 7, s{sT}\nv_min_u32 v6, CODE_END-CODE_REF-4, v6")
    A(f"v_mov_b32 v9, s{sC+1}\nv_add_co_u32 v8, vcc, s{sC}, v6\nv_addc_co_u32 v9, vcc, 0, v9, vcc")
    set_exec(0xFFFFFFFF)
    A("global_load_dword v25, v[8:9], off\ns_mov_b64 exec, -1\ns_waitcnt lgkmcnt(0)\ns_barrier")
    A("v_lshlrev_b32 v6, 7, v1")
    A(f"s_and_b32 s{sT}, s2, 7\ns_lshl_b32 s{sT}, s{sT}, 4\ns_add_u32 s{sT}, s{sT}, s{sQ}\ns_mul_i32 s{sT}, s{sT}, {7*8192}")
    for k in range(env("NP1", 0)): A(f"s_add_u32 s{sU}, s{sT}, {k*8192}\nbuffer_load_dword v{16+k}, v6, {R(RW1)}, s{sU} offen")
    for k in range(env("NP2", 0)): A(f"s_add_u32 s{sU}, s{sT}, {k*8192}\nbuffer_load_dword v{26+k}, v6, {R(RW2)}, s{sU} offen")
    if env("WOT", 1) == 1:
        A(f"s_mul_i32 s{sT}, s{sQ}, {196*128}")
        set_exec((1 << 49) - 1)
        for k in range(4): A(f"s_add_u32 s{sU}, s{sT}, {k*49*128}\nbuffer_load_dword v24, v6, {R(RWO)}, s{sU} offen")
        A("s_mov_b64 exec, -1")
    if STAMP:
        A("s_waitcnt vmcnt(0)"); stamp("h_touch"); stamp_flush(); A(f"v_mov_b32 v15, v{VST}\ns_branch B_P2S")
    A("s_branch B_P2\nH_W:\ns_waitcnt lgkmcnt(0)\ns_barrier\ns_branch B_P2")

XA = LDS_TOTAL - 65536
XBUF = [8192, 0, 8192, 4096]
def p1_common():
    sWO, sM = sA, sC
    A(f"s_mul_i32 s{sWO}, s{sSEC}, 896\ns_mul_i32 s{sT}, s{sHQ}, 224\ns_add_u32 s{sWO}, s{sWO}, s{sT}")
    A(f"s_lshl_b32 s{sE}, s{sI}, 2\ns_add_u32 s{sE}, s{sE}, s{SW}\ns_lshl_b32 s{sM}, s{SW}, 14\ns_add_u32 s{sM}, s{sM}, {XA}")

def p1():
    XF, ACC, WF = 16, 128, 192
    VXR = list(range(80, 88)); VXS = list(range(88, 92)); VWR = [92, 93]; TAGV = 94
    xf = lambda ks: XF + ((ks + 8) & 15)*4 if False else XF + (ks & 15)*4
    sWO, sM = sA, sC
    A("A_P1:")
    prologue2()
    p1_common()
    A(f"v_and_b32 v4, 31, v1\nv_lshrrev_b32 v5, 5, v1\nv_and_b32 v6, 15, v1\nv_xor_b32 v6, v6, v5\nv_lshlrev_b32 v6, 4, v6\nv_lshl_add_u32 v6, v4, 8, v6\nv_add_u32 v6, s{sM}, v6")
    for k in range(8): A(f"v_xor_b32 v{VXR[k]}, {k<<5}, v6")
    A(f"v_bfe_u32 v6, v1, 1, 3\nv_xor_b32 v6, v6, v5\nv_lshlrev_b32 v6, 4, v6\nv_lshl_add_u32 v6, v4, 7, v6\nv_add_u32 v6, s{sM}, v6")
    for k in range(4): A(f"v_xor_b32 v{VXS[k]}, {k<<5}, v6")
    tr_lane_addr(VWR[0], 4, 224, 8, 2); A(f"v_add_u32 v{VWR[1]}, {14*3584}, v{VWR[0]}")
    A("s_waitcnt lgkmcnt(0)")
    stamp("karg")
    A(f"s_or_b32 s{sT}, s2, s{SW}\ns_cbranch_scc1 P1_NOTAG")
    A(f"s_bitset1_b32 s{sTAG+1}, 31\nv_mov_b32 v8, s{sTAG}\nv_mov_b32 v9, s{sTAG+1}\nv_mov_b32 v10, 0\nv_mov_b32 v11, 0\ns_mov_b64 exec, 1\nbuffer_atomic_cmpswap_x2 v[8:11], v10, {R(RDBG)}, 0 offen sc1\ns_mov_b64 exec, -1\nP1_NOTAG:")
    A(f"s_mov_b32 s7, s{sE}")
    roles()
    addr_setup()
    A(f"s_mov_b32 s{sE}, s7\ns_lshl_b32 s{sM}, s{SW}, 14\ns_add_u32 s{sM}, s{sM}, {XA}")
    stamp_flush()
    A(f"s_cmp_eq_u32 s{sSEC}, 2\ns_cbranch_scc1 P1_V")
    for isv in (0, 1):
        vm.q = []; lg.q = []
        if isv: A("P1_V:")
        def xread(p):
            for k in range(8 if p < 3 else 4):
                A(f"ds_read_b128 {v(xf(8*p+k), 4)}, v{(VXR if p < 3 else VXS)[k]} offset:{XBUF[p]}"); lg.issue(f"x{p}")
        def wread(ks, hds=range(4)):
            for hd in hds:
                for half in range(2):
                    A(f"ds_read_b64_tr_b16 {v(WF + (ks&1)*16 + hd*4 + half*2, 2)}, v{VWR[ks//14]} offset:{(ks%14)*3584 + half*224 + hd*56}"); lg.issue(f"w{ks}_{hd}")
        def gload():
            A(f"buffer_load_dwordx4 v[16:19], v4, {R(RWS)}, s{sU} offen sc1")
            for kq in range(4): A(f"buffer_load_dwordx4 {v(20+4*kq,4)}, v{5+kq}, {R(RWS)}, s{sV} offen sc1")
        for p in range(4):
            k0, k1 = 8*p, min(8*p + 8, 28)
            if p == 3:
                A(f"v_and_b32 v4, 31, v1\nv_lshlrev_b32 v4, 4, v4\ns_lshl_b32 s{sU}, s{sE}, 9\ns_add_u32 s{sU}, s{sU}, {WS_RST}\ns_lshl_b32 s{sV}, s{sWO}, 2\ns_add_u32 s{sV}, s{sV}, {WS_CSG}")
                A(f"v_min_u32 v5, 55, v1\nv_lshlrev_b32 v5, 4, v5\nv_add_u32 v6, 10752, v5\nv_add_u32 v7, 21504, v5\nv_add_u32 v8, 32256, v5\nv_mov_b32 v9, 0")
            A("s_barrier"); stamp(f"g{p}")
            xread(p); wread(k0, [0, 1, 2])
            if p == 3:
                A(f"buffer_load_dwordx2 {v(TAGV,2)}, v9, {R(RDBG)}, 0 offen sc1"); gload()
            lg.wait(f"x{p}")
            if p < 2: A("s_barrier")
            wread(k0, [3])
            for ks in range(k0, k1):
                x = v(xf(ks), 4)
                for hd in range(4):
                    lg.wait(f"w{ks}_{hd}")
                    w_ = v(WF + (ks&1)*16 + hd*4, 4); acc = v(ACC + 16*hd, 16)
                    A(f"{MFMA} {acc}, {x if isv else w_}, {w_ if isv else x}, {'0' if ks == 0 else acc}")
                    if ks + 1 < k1: wread(ks + 1, [hd])
        stamp("mfma_done")
        A("s_waitcnt vmcnt(5)")
        get_tag(TAGV, f"P1_T{isv}")
        L = A.label("P1_G")
        A(f"s_waitcnt vmcnt(0)")
        tagcheck([16, 20, 24, 28, 32], 96, 97, 98)
        A(f"s_cbranch_vccz {L}_x\nv_and_b32 v4, 31, v1\nv_lshlrev_b32 v4, 4, v4\ns_mov_b32 s{sTO}, 0x8000\n{L}:")
        gload()
        A(f"s_sub_u32 s{sTO}, s{sTO}, 1\ns_waitcnt vmcnt(0)\ns_cbranch_scc1 {L}_x")
        tagcheck([16, 20, 24, 28, 32], 96, 97, 98)
        A(f"s_cbranch_vccnz {L}\n{L}_x:")
        stamp("gran")
        A("v_add_f32 v20, v20, v24\nv_add_f32 v28, v28, v32\nv_add_f32 v22, v22, v26\nv_add_f32 v30, v30, v34\nv_add_f32 v20, v20, v28\nv_add_f32 v21, v22, v30")
        A(f"s_add_u32 s{sT}, s{sM}, 8192\nv_lshl_add_u32 v4, v1, 3, s{sT}\nds_write_b64 v4, v[20:21]\nv_lshrrev_b32 v5, 5, v1\nv_lshl_add_u32 v5, v5, 4, s{sT}")
        PK = 96
        A(f"s_lshl_b32 s{sU}, s{sHQ}, 8\ns_add_u32 s{sU}, s{sU}, s{sE}")
        if not isv:
            for hd in range(4):
                for g in range(4): A(f"ds_read_b128 {v(32+16*hd+4*g,4)}, v5 offset:{hd*112 + g*32}"); lg.issue(f"c{hd}")
            QS = DH ** -0.5 * math.log2(math.e)
            A(f"s_cmp_eq_u32 s{sSEC}, 0\ns_cselect_b32 s{sV}, {fl(QS)}, 1.0\ns_cselect_b32 s{sA}, 0, s{sONES}\ns_cselect_b32 s{sB}, 0, 0x3f80\ns_cselect_b32 s{sC}, {WS_Q}, {WS_KV}")
            A(f"s_add_u32 s{sD_}, s{sSEC}, 11\ns_lshl_b32 s{sU}, s{sU}, s{sD_}\ns_add_u32 s{sU}, s{sU}, s{sC}\ns_lshl_b32 s{sD_}, 64, s{sD_}")
            A(f"v_mul_f32 v16, s{sV}, v16\nv_mul_f32 v18, s{sV}, v18\nv_mov_b32 v8, s{sA}\nv_mov_b32 v9, s{sB}")
            for hd in range(4):
                lg.wait(f"c{hd}")
                c, ac = 32+16*hd, ACC+16*hd
                for r in range(0, 16, 2): A(f"v_pk_mul_f32 {v(c+r,2)}, {v(c+r,2)}, v[16:17] op_sel_hi:[1,0]")
                for r in range(0, 16, 2): A(f"v_pk_fma_f32 {v(ac+r,2)}, {v(ac+r,2)}, v[18:19], {v(c+r,2)} op_sel_hi:[1,0,1]")
                for r in range(8): A(f"v_cvt_pk_bf16_f32 v{PK+8*hd+r}, v{ac+2*r}, v{ac+2*r+1}")
                A(f"v_cndmask_b32 v{PK+8*hd+6}, v{PK+8*hd+6}, v8, s[{sHI}:{sHI+1}]\nv_cndmask_b32 v{PK+8*hd+7}, v{PK+8*hd+7}, v9, s[{sHI}:{sHI+1}]")
                for f in range(2): A(f"v_and_b32 v{PK+8*hd+4*f+3}, 0xfffefffe, v{PK+8*hd+4*f+3}")
                for f in range(2): A(f"buffer_store_dwordx4 {v(PK+8*hd+4*f,4)}, v{VL}, {R(RWS)}, s{sU} offen offset:{f*1024} sc1")
                A(f"s_add_u32 s{sU}, s{sU}, s{sD_}")
        else:
            A(f"v_cndmask_b32 v6, v18, v16, s[{sHI}:{sHI+1}]\nv_lshl_add_u32 v4, v1, 2, s{sT}\nds_write_b32 v4, v6 offset:512")
            A(f"v_and_b32 v6, 31, v1\nv_lshl_add_u32 v4, v6, 2, s{sT}")
            for g in range(4): A(f"ds_read_b128 {v(32+4*g,4)}, v5 offset:{512 + g*32}\nds_read_b128 {v(48+4*g,4)}, v5 offset:{640 + g*32}")
            for hd in range(4): A(f"ds_read_b32 v{24+2*hd}, v4 offset:{hd*112}")
            A(f"s_lshl_b32 s{sU}, s{sU}, 12\ns_add_u32 s{sU}, s{sU}, {WS_KV + 2048}")
            A(f"v_cmp_eq_u32 vcc, 28, v6\nv_mov_b32 v9, s{sONES}\nv_cndmask_b32 v8, 0, v9, vcc\nv_mov_b32 v9, v8")
            for r in range(0, 16, 2): A(f"v_pk_mov_b32 {v(PK+r,2)}, v[8:9], v[8:9]")
            A(f"s_mov_b32 s{sA}, 0x0fffffff\ns_mov_b32 s{sA+1}, 0x0fffffff\ns_waitcnt lgkmcnt(0)")
            for hd in range(4):
                ac = ACC+16*hd; pk = PK + 8*(hd & 1)
                for r in range(0, 16, 2): A(f"v_pk_mul_f32 {v(64+r,2)}, {v(48+r,2)}, {v(24+2*hd,2)} op_sel_hi:[1,0]")
                for r in range(0, 16, 2): A(f"v_pk_fma_f32 {v(ac+r,2)}, {v(ac+r,2)}, {v(32+r,2)}, {v(64+r,2)}")
                A(f"s_mov_b64 exec, s[{sA}:{sA+1}]")
                for r in range(8): A(f"v_cvt_pk_bf16_f32 v{pk+r}, v{ac+2*r}, v{ac+2*r+1}")
                A(f"v_and_b32 v{pk+3}, -2, v{pk+3}\nv_and_b32 v{pk+7}, -2, v{pk+7}\ns_mov_b64 exec, -1")
                for f in range(2): A(f"buffer_store_dwordx4 {v(pk+4*f,4)}, v{VL}, {R(RWS)}, s{sU} offen offset:{f*1024} sc1")
                A(f"s_add_u32 s{sU}, s{sU}, {64*4096}")
        stamp("kvst"); stamp_flush()
        if not isv: A("s_branch P1_DONE")
    A("P1_DONE:")

def tilemax(sreg, T0, T1):
    A(f"v_max3_f32 v{T0}, v{sreg}, v{sreg+1}, v{sreg+2}\nv_max3_f32 v{T1}, v{sreg+3}, v{sreg+4}, v{sreg+5}")
    A(f"v_max3_f32 v{T0}, v{T0}, v{sreg+6}, v{sreg+7}\nv_max3_f32 v{T1}, v{T1}, v{sreg+8}, v{sreg+9}")
    A(f"v_max3_f32 v{T0}, v{T0}, v{sreg+10}, v{sreg+11}\nv_max3_f32 v{T1}, v{T1}, v{sreg+12}, v{sreg+13}")
    A(f"v_max3_f32 v{T0}, v{T0}, v{sreg+14}, v{sreg+15}")
def set_qpad(q, m, T0, T1, T2):
    A(f"v_sub_f32 v{T0}, 0, v{m}\nv_and_b32 v{T1}, 0xffff0000, v{T0}\nv_sub_f32 v{T0}, v{T0}, v{T1}")
    A(f"v_and_b32 v{T2}, 0xffff0000, v{T0}\nv_sub_f32 v{T0}, v{T0}, v{T2}\nv_lshrrev_b32 v{T0}, 16, v{T0}")
    A(f"v_lshrrev_b32 v{T1}, 16, v{T1}\nv_or_b32 v{T1}, v{T1}, v{T2}")
    A(f"v_cndmask_b32 v{q+6}, v{q+6}, v{T1}, s[{sHI}:{sHI+1}]\nv_cndmask_b32 v{q+7}, v{q+7}, v{T0}, s[{sHI}:{sHI+1}]")

XR, IR3 = 224, 232
VRD, VFL, VKV, VONE, VRB, VWO = [240, 241], 242, 243, 244, [246, 247], 248
VO3, VP3, VH, VP4, VG, VP5 = [10, 11], 12, [14, 15], 3, [253, 254], 242
sRO, sGC, sGST, sHFO, sFO, sRT3 = 96, 97, 98, 99, 100, 101
VRW = [249, 250, 251, 252]
def addr_setup():
    tr_lane_addr(4, 5, 128, 4)
    A(f"s_and_b32 s{sT}, s{SW}, 1\ns_lshl_b32 s{sT}, s{sT}, 5\nv_xor_b32 v4, s{sT}, v4")
    A(f"v_bfe_u32 v5, v1, 3, 1\ns_lshr_b32 s{sT}, s{SW}, 1\nv_xor_b32 v5, s{sT}, v5")
    A(f"v_lshl_add_u32 v6, v5, 6, v4\nv_xor_b32 v5, 1, v5\nv_lshl_add_u32 v7, v5, 6, v4")
    A(f"v_add_u32 v{VRD[0]}, s{sW2W}, v6\nv_add_u32 v{VRD[1]}, s{sW2W}, v7")
    A(f"v_mov_b32 v{VONE}, 0x3f80\nv_mov_b32 v{VONE+1}, 1.0")
    A(f"s_lshl_b32 s{sT}, s{sH}, 2\ns_add_u32 s{sT}, s{sT}, s{SW}\ns_lshl_b32 s{sT}, s{sT}, 16\ns_add_u32 s{sT}, s{sT}, {WS_KV}\nv_add_u32 v{VKV}, s{sT}, v{VL}")
    tr_lane_addr(VWO, 4, 64, 4); A(f"v_add_u32 v{VWO}, {RBUF}, v{VWO}\nv_add_u32 v{VRW[0]}, s{sRBW}, v{VL}")
    for t in range(1, 4):
        A(f"s_add_u32 s{sT}, s{SW}, {t}\ns_and_b32 s{sT}, s{sT}, 3\ns_mul_i32 s{sT}, s{sT}, 12288\ns_add_u32 s{sT}, s{sT}, {RBUF}\nv_add_u32 v{VRW[t]}, s{sT}, v{VL}")
    A("v_and_b32 v4, 31, v1\nv_lshrrev_b32 v5, 5, v1\nv_lshlrev_b32 v6, 3, v5\nv_sub_u32 v6, v4, v6")
    for p in range(2):
        for r in range(4):
            A(f"v_cmp_eq_u32 vcc, {16*p+2*r}, v6\nv_cmp_eq_u32 s[{sU}:{sU+1}], {16*p+2*r+1}, v6\nv_cndmask_b32 v{IR3+4*p+r}, 0, v{VONE}, vcc\nv_cndmask_b32 v{IR3+4*p+r}, v{IR3+4*p+r}, v{VONE+1}, s[{sU}:{sU+1}]")
    A("v_mul_u32_u24 v13, 896, v4\nv_lshl_add_u32 v13, v5, 4, v13")
    A(f"s_lshl_b32 s{sB}, s{sR3}, 11\ns_add_u32 s{sB}, s{sB}, {WS_O}\nv_add_u32 v{VO3[0]}, s{sB}, v{VL}\nv_add_u32 v{VO3[1]}, 0x20000, v{VO3[0]}\ns_and_b32 s{sT}, s{sC3}, 7\ns_lshl_b32 s{sRT3}, s{sT}, 18")
    A(f"s_lshl_b32 s{sT}, s{sT}, 1\nv_add_u32 v{VP3}, s{sT}, v1\nv_and_b32 v{VP3}, 15, v{VP3}\nv_lshlrev_b32 v{VP3}, 17, v{VP3}\ns_add_u32 s{sT}, s{sB}, 2044\nv_add_u32 v{VP3}, s{sT}, v{VP3}")
    mlp_addr(RA, 4, 6)
    A(f"s_lshl_b32 s{sFO}, s{sFT}, 2\ns_add_u32 s{sFO}, s{sFO}, s{SW}\ns_mul_i32 s{sT}, s{sDT4}, {2*112*1024}\ns_lshl_b32 s{sU}, s{sFO}, 10\ns_add_u32 s{sT}, s{sT}, s{sU}\ns_add_u32 s{sGST}, s{sT}, {WS_G}")
    A(f"s_lshr_b32 s{sV}, s{SW}, 1\ns_lshl_b32 s{sT}, s{sST}, 1\ns_add_u32 s{sV}, s{sV}, s{sT}\ns_mul_i32 s{sV}, s{sV}, 7\ns_add_u32 s{sV}, s{sV}, s{sDT5}\ns_lshl_b32 s{sV}, s{sV}, 12\ns_and_b32 s{sT}, s{SW}, 1\ns_lshl_b32 s{sT}, s{sT}, 10\ns_add_u32 s{sV}, s{sV}, s{sT}\ns_add_u32 s{sHFO}, s{sV}, {WS_HF}")
    A(f"s_xor_b32 s{sT}, s{SW}, 3\ns_mul_i32 s{sT}, s{sT}, 28672\ns_add_u32 s{sT}, s{sT}, {13*2048}\nv_add_u32 v{VX3}, s{sT}, v{VL}")

class Role: pass
RA, RB = Role(), Role()
C5A = env("C5A", 12)
RA.n, RA.n4, RA.c4, RA.n5, RA.c5, RA.W, RA.slots = "A", 0, 12, 0, C5A, 128, [0, 1, 2, 3, 4, 5]
RA.VRD, RA.VH, RA.VG, RA.VP4, RA.VP5, RA.VT2, RA.T0, RA.T1 = [240, 241], 14, 253, 3, 242, [246, 247], 4, 5
RB.n, RB.n4, RB.c4, RB.n5, RB.c5, RB.W, RB.slots = "B", 12, 20, C5A, 28 - C5A, 96, [12, 6, 7, 8, 9, 10, 11]
RB.VRD, RB.VH, RB.VG, RB.VP4, RB.VP5, RB.VT2, RB.T0, RB.T1 = [0, 3], 4, 5, 8, 9, [6, 7], 12, 13
VX3 = 15
def w2_addr(r, t0, t1):
    A(f"v_lshrrev_b32 v{t0}, 3, v1\nv_bfe_u32 v{t1}, v1, 4, 1\nv_lshlrev_b32 v{t1}, 2, v{t1}\nv_and_b32 v{r.VT2[0]}, 7, v1\nv_xor_b32 v{t1}, v{r.VT2[0]}, v{t1}\nv_lshlrev_b32 v{t1}, 4, v{t1}\nv_lshl_add_u32 v{t0}, v{t0}, 12, v{t1}")
    A(f"s_mul_i32 s{sT}, s{SW}, {448*4096}\ns_lshl_b32 s{sU}, s{sST}, 7\ns_add_u32 s{sT}, s{sT}, s{sU}\nv_add_u32 v{r.VT2[0]}, s{sT}, v{t0}\nv_add_u32 v{r.VT2[1]}, {8*4096 - 1024}, v{r.VT2[0]}")
    rot4(sRO); A(f"s_lshl_b32 s{sRO}, s{sRO}, 10")
    rot5(sGC); A(f"s_lshl_b32 s{sGC}, s{sGC}, 10")
def mlp_addr(r, t0, t1, w2=True):
    if w2: w2_addr(r, t0, t1)
    A(f"s_lshl_b32 s{sT}, s{SW}, 15\ns_add_u32 s{sT}, s{sT}, {WS_HH}\ns_lshl_b32 s{sB}, s{sDT4}, 18\ns_add_u32 s{sB}, s{sB}, s{sT}\nv_add_u32 v{r.VH}, s{sB}, v{VL}")
    A(f"s_add_u32 s{sT}, s{sRO}, {r.n4*1024}\nv_lshl_add_u32 v{r.VP4}, v1, 11, s{sT}\nv_and_b32 v{r.VP4}, 0x7fff, v{r.VP4}\ns_add_u32 s{sT}, s{sB}, 2044\nv_add_u32 v{r.VP4}, s{sT}, v{r.VP4}")
    A(f"s_mul_i32 s{sT}, s{SW}, {28*1024}\ns_add_u32 s{sT}, s{sT}, {WS_G}\ns_mul_i32 s{sB}, s{sDT5}, {2*112*1024}\ns_add_u32 s{sB}, s{sB}, s{sT}")
    A(f"s_and_b32 s{sT}, s{SW}, 1\ns_lshl_b32 s{sT}, s{sT}, 8\nv_xor_b32 v{r.VG}, s{sT}, v{VL}\nv_add_u32 v{r.VG}, s{sB}, v{r.VG}")
    A(f"s_add_u32 s{sT}, s{sGC}, {r.n5*1024}\nv_min_u32 v{t0}, {r.c5 // 2 - 1}, v1\nv_lshl_add_u32 v{r.VP5}, v{t0}, 11, s{sT}\nv_subrev_u32 v{t0}, {28*1024}, v{r.VP5}\nv_min_u32 v{r.VP5}, v{r.VP5}, v{t0}\ns_add_u32 s{sT}, s{sB}, 2044\nv_add_u32 v{r.VP5}, s{sT}, v{r.VP5}")

def p2():
    Q, O, SS, PP, KV = 16, 48, [112, 128], [144, 152], 160
    M = [112, 113, 114, 115]; K0 = 120
    T0, T1, T2, T3 = 4, 5, 6, 7
    sKN = sB
    vm.wait_all(); stamp("kvdrain")
    A(f"s_barrier\ns_cmp_lg_u32 s{SW}, 0\ns_cbranch_scc1 P2_NOF")
    flag_store(sF[0]); flag_store(sF[1]); A("P2_NOF:"); stamp_flush()
    A("P2_START:")
    A(f"s_mul_i32 s{sT}, s{sR3}, {32*896}\ns_lshl_b32 s{sU}, s{sC3}, 6\ns_add_u32 s{sT}, s{sT}, s{sU}")
    for p in range(2): A(f"buffer_load_dwordx4 {v(XR+4*p,4)}, v13, {R(RX)}, s{sT} offen offset:{32*p}")
    A(f"s_lshl_b32 s{sV}, s{sI}, 2\ns_add_u32 s{sV}, s{sV}, s{SW}\ns_lshl_b32 s{sU}, s{sH}, 6\ns_add_u32 s{sU}, s{sU}, s{sV}\ns_lshl_b32 s{sU}, s{sU}, 11")
    A(f"s_lshr_b32 s{sT}, s{sH}, 2\ns_lshl_b32 s{sT}, s{sT}, 13\ns_add_u32 s{sT}, s{sT}, {F1}\ns_lshl_b32 s{sA}, s{SW}, 9\ns_add_u32 s{sA}, s{sA}, 2048\ns_lshl_b32 s{sC}, s{sI}, 7")
    A(f"v_and_b32 v7, 3, v1\nv_lshl_add_u32 v7, v7, 7, s{sA}\nv_bfe_u32 v8, v1, 2, 1\nv_lshl_add_u32 v7, v8, 11, v7\nv_writelane_b32 v7, s{sC}, 8")
    poll(7, sT, 9, 8); stamp("s1")
    def kvload(n):
        pre = []
        if n == 0: pre = [f"s_add_u32 s{sA}, s{RWS}, 4096", f"s_addc_u32 s{sA+1}, s{RWS+1}, 0"]
        elif n % 2 == 0: pre = [f"s_add_u32 s{sA}, s{sA}, 8192", f"s_addc_u32 s{sA+1}, s{sA+1}, 0"]
        return pre + [f"global_load_dwordx4 {v(KV+16*(n&3)+4*f,4)}, v{VKV}, s[{sA}:{sA+1}] offset:{(n % 2 - 1)*4096 + f*1024} sc1" for f in range(4)]
    def emit(lines, tag):
        for ln in lines:
            A(ln)
            if ln.startswith("global_"): vm.issue(tag)
    for f in range(2): A(f"buffer_load_dwordx4 {v(Q+4*f,4)}, v{VL}, {R(RWS)}, s{sU} offen offset:{f*1024} sc1"); vm.issue("q")
    emit(kvload(0), "kv0")
    A("s_waitcnt vmcnt(2)"); stamp("qk0")
    A(f"{MFMA} {v(O,16)}, {v(KV,4)}, {v(Q,4)}, 0\n{MFMA} {v(O,16)}, {v(KV+4,4)}, {v(Q+4,4)}, {v(O,16)}")
    emit(kvload(1), "kv1")
    A(f"ds_write_b128 v{VRW[0]}, {v(Q,4)}")
    tilemax(O, T0, T1)
    A(f"v_max_f32 v{T0}, v{T0}, v{T1}\nv_mov_b32 v{T1}, v{T0}\nv_permlane32_swap_b32 v{T0}, v{T1}\nv_max_f32 v{T0}, v{T0}, v{T1}")
    set_qpad(Q, T0, T1, T2, T3)
    A(f"ds_write_b128 v{VRW[0]}, {v(Q+4,4)} offset:1024\ns_waitcnt lgkmcnt(0)")
    emit(kvload(2), "kv2")
    A("s_barrier")
    for t in range(1, 4): A(f"ds_read_b128 {v(Q+8*t,4)}, v{VRW[t]}\nds_read_b128 {v(Q+8*t+4,4)}, v{VRW[t]} offset:1024")
    emit(kvload(3), "kv3")
    if env("APRIO", 0): A(f"s_setprio {env('APRIO', 0)}")
    A("P2_MAIN:")
    slot = lambda idx: (idx + (idx >= 60)) & 3
    pwr = lambda t, g: f"ds_write_b128 v{VRW[t]}, {v(O+16*t+4*g,4)} offset:{(t-1)*4096 + g*1024}"
    def qk(idx, part):
        n, t = idx >> 2, slot(idx); sr = SS[idx & 1]; k = KV + 16*(n & 3)
        return f"{MFMA} {v(sr,16)}, {v(k+4*part,4)}, {v(Q+8*t+4*part,4)}, {'0' if part == 0 else v(sr,16)}"
    def pv(idx, part):
        n, t = idx >> 2, slot(idx); k = KV + 16*(n & 3) + 8; o = O + 16*t
        return f"{MFMA} {v(o,16)}, {v(k+4*part,4)}, {v(PP[idx&1]+4*part,4)}, {'0' if (n == 0 and part == 0) else v(o,16)}"
    NI = 64
    A(qk(0, 0)); A(qk(0, 1)); A("s_waitcnt lgkmcnt(0)")
    for idx in range(NI):
        n, t = idx >> 2, idx & 3
        if idx in (16, 32, 48): stamp(f"a{idx}")
        side = [[], [], [], []]
        if t in (1, 2) and 1 <= n < 13:
            l = kvload(n + 3); pre, ld = l[:-4], l[-4:]
            side = [pre[:1], pre[1:], ld[0:1], ld[1:2]] if t == 1 else [ld[2:3], ld[3:4], [], []]
        if idx == 62: side = [[], [pwr(1, 0)], [pwr(1, 1)], [pwr(1, 2)]]
        if idx == 63: side = [[], [pwr(2, 0), pwr(2, 1)], [], [pwr(2, 2)]]
        if idx == env("CUTAT", 61): side[0].append(f"ds_write_b32 v{VRW[1]}, v{VONE} offset:3072")
        mf = [qk(idx+1, 0) if idx+1 < NI else None, pv(idx-1, 0) if idx > 0 else None,
              qk(idx+1, 1) if idx+1 < NI else None, pv(idx-1, 1) if idx > 0 else None]
        sr, p = SS[idx & 1], PP[idx & 1]
        for q in range(4):
            if mf[q]: A(mf[q])
            emit(side[q], f"kv{n+3}")
            if idx == 0 and q == 2: vm.wait("kv0")
            if t == 2 and q == 3 and n + 1 < 16: vm.wait(f"kv{n+1}")
            for j in range(4): A(f"v_exp_f32 v{sr+4*q+j}, v{sr+4*q+j}")
            if q > 0:
                for j in range(2): A(f"v_cvt_pk_bf16_f32 v{p+2*(q-1)+j}, v{sr+4*(q-1)+2*j}, v{sr+4*(q-1)+2*j+1}")
        for j in range(2): A(f"v_cvt_pk_bf16_f32 v{p+6+j}, v{sr+12+2*j}, v{sr+12+2*j+1}")
    A(pv(NI-1, 0)); A(pv(NI-1, 1)); stamp("aend")
    for g in range(3): A(pwr(3, g))
    A(f"s_mov_b32 s{sT}, {fl(2.0**30)}")
    A(f"v_cmp_nlt_f32 s[{sA}:{sA+1}], v{O+60}, s{sT}\nv_cmp_nlt_f32 s[{sC}:{sC+1}], v{O+28}, s{sT}\ns_or_b32 s{sU}, s{sA+1}, s{sC+1}")
    A(f"v_cmp_nlt_f32 s[{sA}:{sA+1}], v{O+44}, s{sT}\nv_cmp_nlt_f32 s[{sC}:{sC+1}], v{O+12}, s{sT}\ns_or_b32 s{sU}, s{sU}, s{sA+1}\ns_or_b32 s{sU}, s{sU}, s{sC+1}")
    A(f"s_cselect_b32 s{sU}, 1.0, 0\nv_mov_b32 v{T0}, s{sU}")
    for t in range(4): A(f"v_cndmask_b32 v{O+16*t+13}, v{O+16*t+13}, v{T0}, s[{sHI}:{sHI+1}]")
    for t in range(1, 4): A(f"ds_write_b128 v{VRW[t]}, {v(O+16*t+12,4)} offset:{(t-1)*4096 + 3*1024}")
    A(f"s_lshl_b32 s{sD_}, s{sI}, 2\ns_add_u32 s{sD_}, s{sD_}, s{SW}\ns_lshl_b32 s{sV}, s{sH}, 6\ns_add_u32 s{sV}, s{sV}, s{sD_}\ns_lshl_b32 s{sV}, s{sV}, 11\ns_add_u32 s{sV}, s{sV}, {WS_O}")
    A("s_waitcnt lgkmcnt(0)\ns_barrier")
    for g in (3, 0, 1, 2):
        for t in range(1, 4): A(f"ds_read_b128 {v(O+16*t+4*g,4)}, v{VRW[0]} offset:{(t-1)*4096 + g*1024}")
    def red(g):
        for r in (4*g, 4*g+2):
            A(f"v_pk_add_f32 {v(O+r,2)}, {v(O+r,2)}, {v(O+16+r,2)}\nv_pk_add_f32 {v(O+32+r,2)}, {v(O+32+r,2)}, {v(O+48+r,2)}")
        for r in (4*g, 4*g+2): A(f"v_pk_add_f32 {v(O+r,2)}, {v(O+r,2)}, {v(O+32+r,2)}")
    A("s_waitcnt lgkmcnt(9)"); red(3)
    A(f"v_readlane_b32 s{sT}, v{O+13}, 32\nv_mov_b32 v{T0}, v{O+12}\nv_mov_b32 v{T2}, v{O+12}\nv_permlane32_swap_b32 v{T0}, v{T2}\nv_rcp_f32 v{T2}, v{T2}")
    A(f"s_cmp_lg_u32 s{sT}, s{sRETRY}\ns_cbranch_scc1 P2_FALL\nP2_FIN:")
    for k, g in enumerate((0, 1, 2)):
        A(f"s_waitcnt lgkmcnt({6 - 3*k})"); red(g)
    for r in range(0, 16, 2): A(f"v_pk_mul_f32 {v(O+r,2)}, {v(O+r,2)}, {v(T2,2)} op_sel_hi:[1,0]")
    for r in range(8): A(f"v_cvt_pk_bf16_f32 v{O+16+r}, v{O+2*r}, v{O+2*r+1}")
    A(f"v_cndmask_b32 v{O+22}, v{O+22}, 0, s[{sHI}:{sHI+1}]\nv_cndmask_b32 v{O+23}, v{O+23}, 0, s[{sHI}:{sHI+1}]")
    A(f"s_mov_b32 s{sT}, 0xfffeffff\nv_and_or_b32 v{O+19}, v{O+19}, s{sT}, 1\nv_and_or_b32 v{O+23}, v{O+23}, s{sT}, 1")
    for f in range(2): A(f"buffer_store_dwordx4 {v(O+16+4*f,4)}, v{VL}, {R(RWS)}, s{sV} offen offset:{f*1024} sc1")
    stamp("ost")
    if STAMP and env("ACK", 0): A("s_waitcnt vmcnt(0)"); stamp("oack")
    stamp_flush()
    A("s_barrier")
    def fallback():
        A(f"P2_FALL:\ns_cmp_lg_u32 s{sRETRY}, 0\ns_cbranch_scc1 P2_FIN")
        A(f"s_mov_b32 s{sRETRY}, -1\ns_waitcnt vmcnt(0) lgkmcnt(0)")
        for t in range(4):
            A(f"v_cndmask_b32 v{Q+8*t+6}, v{Q+8*t+6}, 0, s[{sHI}:{sHI+1}]\nv_cndmask_b32 v{Q+8*t+7}, v{Q+8*t+7}, 0, s[{sHI}:{sHI+1}]\nv_mov_b32 v{M[t]}, 0xff800000")
        A(f"s_mov_b32 s{sU}, 0\nP2_MAXLOOP:")
        for f in range(2): A(f"buffer_load_dwordx4 {v(K0+4*f,4)}, v{VKV}, {R(RWS)}, s{sU} offen offset:{f*1024} sc1")
        A("s_waitcnt vmcnt(0)")
        for t in range(4):
            A(f"{MFMA} {v(O+16*t,16)}, {v(K0,4)}, {v(Q+8*t,4)}, 0\n{MFMA} {v(O+16*t,16)}, {v(K0+4,4)}, {v(Q+8*t+4,4)}, {v(O+16*t,16)}")
        for t in range(4):
            tilemax(O+16*t, T0, T1); A(f"v_max3_f32 v{M[t]}, v{M[t]}, v{T0}, v{T1}")
        A(f"s_add_u32 s{sU}, s{sU}, 4096\ns_cmp_lt_u32 s{sU}, {16*4096}\ns_cbranch_scc1 P2_MAXLOOP")
        A(f"s_barrier\nv_and_b32 v{T3}, 31, v1\nv_lshlrev_b32 v{T3}, 4, v{T3}")
        for t in range(4):
            A(f"v_mov_b32 v{T2}, v{M[t]}\nv_permlane32_swap_b32 v{M[t]}, v{T2}\nv_max_f32 v{M[t]}, v{M[t]}, v{T2}")
            A(f"s_add_u32 s{sT}, s{SW}, {t}\ns_and_b32 s{sT}, s{sT}, 3\ns_lshl_b32 s{sT}, s{sT}, 9\ns_add_u32 s{sT}, s{sT}, {RBUF}\ns_lshl_b32 s{sU}, s{SW}, 2\ns_add_u32 s{sU}, s{sU}, s{sT}")
            A(f"v_add_u32 v{K0+t}, s{sT}, v{T3}\nv_add_u32 v{T2}, s{sU}, v{T3}\nds_write_b32 v{T2}, v{M[t]}")
        A("s_waitcnt lgkmcnt(0)\ns_barrier")
        for t in range(4): A(f"ds_read_b128 {v(O+4*t,4)}, v{K0+t}")
        for n in range(4):
            for ln in kvload(n): A(ln)
        A("s_waitcnt vmcnt(0) lgkmcnt(0)\ns_barrier")
        for t in range(4):
            A(f"v_max3_f32 v{M[t]}, v{O+4*t}, v{O+4*t+1}, v{O+4*t+2}\nv_max_f32 v{M[t]}, v{M[t]}, v{O+4*t+3}")
            set_qpad(Q+8*t, M[t], T0, T1, T2)
        A("s_branch P2_MAIN")
    return fallback

def p3():
    EP = env("EP", 0)
    D1, D2, TF = 96, 112, 80 if EP else 176
    ofr = (lambda ks: 16 + 4*(ks & 15)) if EP else (lambda ks: 16 + 4*ks if ks < 20 else 128 + 4*(ks - 20))
    T0, T1, T2, T3 = 8, 9, 4, 5
    A(f"{MFMA} {v(D1,16)}, {v(XR,4)}, {v(IR3,4)}, 0\n{MFMA} {v(D2,16)}, {v(IR3,4)}, {v(XR,4)}, 0")
    A(f"{MFMA} {v(D1,16)}, {v(XR+4,4)}, {v(IR3+4,4)}, {v(D1,16)}\n{MFMA} {v(D2,16)}, {v(IR3+4,4)}, {v(XR+4,4)}, {v(D2,16)}")
    for sl in range(1, 4):
        A(f"s_xor_b32 s{sU}, s{SW}, {sl}\ns_mul_i32 s{sU}, s{sU}, 12288\ns_add_u32 s{sU}, s{sU}, {RBUF}\nv_add_u32 v{VRW[sl]}, s{sU}, v{VL}")
    if EP:
        preread()
        A(f"s_waitcnt lgkmcnt(0)\ns_barrier\ns_cmp_lt_u32 s{sC3}, 14\ns_cbranch_scc0 P3_END")
    else:
        A("s_barrier")
        A(f"s_cmp_lt_u32 s{sC3}, 14\ns_cbranch_scc1 P3_GO")
        preread()
        A("s_waitcnt lgkmcnt(0)\ns_barrier\ns_branch P3_END\nP3_GO:")
    vm.q = []; lg.q = []
    so = Stream("SO", 8, lambda g: [(ofr(4*g+k), VO3[k >> 1], (k & 1)*1024) for k in range(4)],
                lambda g: A(f"s_add_u32 s{sT}, s{sRT3}, {g << 18}\ns_and_b32 s{sT}, s{sT}, 0x1fffff"), T0, 1, VP3, T1)
    NPRE = 3
    stamp("p3pre")
    for m in range(NPRE): so.issue(m)
    stamp("p3gate")
    def wread(ks):
        n, p = ks >> 1, ks & 1
        for half in range(2):
            A(f"ds_read_b64_tr_b16 {v(TF+4*(ks&3)+2*half,2)}, v{VWO} offset:{(n>>2)*12288 + (n&3)*2048 + (16*p+8*half)*64}"); lg.issue(f"w{ks}")
    wread(0); wread(1)
    so.check1(0); so.check2(0)
    for ks in range(32):
        lg.wait(f"w{ks}")
        if ks in (0, 16): stamp(f"p3_{ks}")
        o, wv = v(ofr(ks), 4), v(TF+4*(ks&3), 4)
        A(f"{MFMA} {v(D2,16)}, {wv}, {o}, {v(D2,16)}")
        if ks + 2 < 32: wread(ks + 2)
        A(f"{MFMA} {v(D1,16)}, {o}, {wv}, {v(D1,16)}")
        if ks % 4 < 2:
            for k in range(2): so.issue_part(NPRE + ks//4, 2*(ks % 4) + k)
        if ks % 4 == 2: so.check1(ks//4 + 1)
        if ks % 4 == 3: so.check2(ks//4 + 1)
    stamp("p3mm")
    G = 16
    A(f"s_lshl_b32 s{sB}, s{sR3}, 13\ns_add_u32 s{sB}, s{sB}, {WS_ST}\ns_lshl_b32 s{sT}, s{sC3}, 9\ns_add_u32 s{sT}, s{sT}, s{sB}")
    A(f"v_mov_b32 v{G+1}, s{sTAG}\nv_mov_b32 v{G+3}, s{sTAG+1}")
    A(f"v_pk_add_f32 v[20:21], {v(D2,2)}, {v(D2+2,2)}\nv_pk_mul_f32 v[22:23], {v(D2,2)}, {v(D2,2)}\nv_pk_fma_f32 v[22:23], {v(D2+2,2)}, {v(D2+2,2)}, v[22:23]")
    for r in range(4, 16, 2): A(f"v_pk_add_f32 v[20:21], v[20:21], {v(D2+r,2)}\nv_pk_fma_f32 v[22:23], {v(D2+r,2)}, {v(D2+r,2)}, v[22:23]")
    A(f"v_add_f32 v{G}, v20, v21\nv_add_f32 v{G+2}, v22, v23")
    A(f"v_mov_b32 v20, v{G}\nv_mov_b32 v22, v{G+2}\nv_permlane32_swap_b32 v{G}, v20\nv_permlane32_swap_b32 v{G+2}, v22\nv_add_f32 v{G}, v{G}, v20\nv_add_f32 v{G+2}, v{G+2}, v22")
    set_exec(0xFFFFFFFF)
    A(f"buffer_store_dwordx4 {v(G,4)}, v{VL}, {R(RWS)}, s{sT} offen sc1\ns_mov_b64 exec, -1")
    for r in range(8): A(f"v_cvt_pk_bf16_f32 v{24+r}, v{D2+2*r}, v{D2+2*r+1}")
    A(f"s_mul_i32 s{sT}, s{sR3}, 14\ns_add_u32 s{sT}, s{sT}, s{sC3}\ns_lshl_b32 s{sT}, s{sT}, 11\ns_add_u32 s{sT}, s{sT}, {WS_HF}")
    for p in range(2): A(f"buffer_store_dwordx4 {v(24+4*p,4)}, v{VL}, {R(RWS)}, s{sT} offen offset:{p*1024} sc1")
    A(f"v_and_b32 v{T0}, 31, v1\nv_lshlrev_b32 v{T0}, 4, v{T0}\nv_lshrrev_b32 v{T1}, 5, v1\nv_mul_u32_u24 v{T1}, 3584, v{T1}\nv_add_u32 v{T0}, v{T0}, v{T1}")
    if not EP:
        preread()
        A("s_waitcnt lgkmcnt(0)\ns_barrier")
    if env("S3W", 1): A("s_waitcnt vmcnt(2)")
    stamp("s3pre")
    GR = 32
    A(f"s_mov_b32 s{sTO}, 0x8000\nP3_GL:")
    for k in range(7): A(f"buffer_load_dwordx4 {v(GR+4*k,4)}, v{T0}, {R(RWS)}, s{sB} offen offset:{k*512} sc1")
    A(f"s_sub_u32 s{sTO}, s{sTO}, 1\ns_waitcnt vmcnt(0)\ns_cbranch_scc1 P3_GX")
    tagcheck([GR+4*k for k in range(7)], T1, T2, T3)
    A("s_cbranch_vccnz P3_GL\nP3_GX:")
    vm.q = []
    stamp("s3")
    for k in range(1, 7): A(f"v_add_f32 v{GR}, v{GR}, v{GR+4*k}\nv_add_f32 v{GR+2}, v{GR+2}, v{GR+4*k+2}")
    m, q = GR, GR+2
    A(f"v_mov_b32 v{T0}, v{m}\nv_mov_b32 v{T1}, v{q}\nv_permlane32_swap_b32 v{m}, v{T0}\nv_permlane32_swap_b32 v{q}, v{T1}\nv_add_f32 v{m}, v{m}, v{T0}\nv_add_f32 v{q}, v{q}, v{T1}")
    A(f"v_mul_f32 v{m}, {fl(1.0/D)}, v{m}\nv_mul_f32 v{q}, {fl(1.0/D)}, v{q}\nv_fma_f32 v{q}, -v{m}, v{m}, v{q}\nv_max_f32 v{q}, 0, v{q}")
    A(f"v_add_f32 v{T0}, {fl(EPS)}, v{q}\nv_mul_f32 v{T0}, {fl(EPS)}, v{T0}\nv_add_f32 v{q}, v{q}, v{T0}\nv_rsq_f32 v{q}, v{q}\ns_add_u32 s{sT}, s{sRBW}, 8192\nv_mul_f32 v{m}, v{m}, v{q}")
    A(f"v_cndmask_b32 v{T0}, v{q}, v{m}, s[{sHI}:{sHI+1}]\nv_lshl_add_u32 v{T1}, v1, 2, s{sT}\nds_write_b32 v{T1}, v{T0}")
    A(f"v_lshrrev_b32 v{T2}, 5, v1\nv_lshl_add_u32 v{T2}, v{T2}, 4, s{sT}")
    for g in range(4): A(f"ds_read_b128 {v(64+4*g,4)}, v{T2} offset:{g*32}\nds_read_b128 {v(80+4*g,4)}, v{T2} offset:{128+g*32}")
    A(f"s_lshl_b32 s{sT}, s{sC3}, 17\ns_lshl_b32 s{sU}, s{sR3}, 11\ns_add_u32 s{sT}, s{sT}, s{sU}\ns_add_u32 s{sT}, s{sT}, {WS_HH}")
    for p in range(2):
        A(f"s_waitcnt lgkmcnt({4 - 4*p})")
        for r in range(8*p, 8*p+8, 2): A(f"v_pk_fma_f32 {v(D1+r,2)}, {v(D1+r,2)}, {v(64+r,2)}, {v(80+r,2)} neg_lo:[0,0,1] neg_hi:[0,0,1]")
        for r in range(4*p, 4*p+4): A(f"v_cvt_pk_bf16_f32 v{24+r}, v{D1+2*r}, v{D1+2*r+1}")
        A(f"v_or_b32 v{27+4*p}, 0x10000, v{27+4*p}")
        A(f"buffer_store_dwordx4 {v(24+4*p,4)}, v{VL}, {R(RWS)}, s{sT} offen offset:{p*1024} sc1")
    stamp("hhst")
    if STAMP and env("ACK", 0): A("s_waitcnt vmcnt(0)"); stamp("hhack")
    stamp_flush()
    A("P3_END:")
    if env("X1B", 1): A("s_barrier")
    vm.q = []; lg.q = []

ACC, RING, TMP = 16, 48, 96
def wread_step(r, m, slot, tag=None):
    for ti in range(2):
        for half in range(2):
            A(f"ds_read_b64_tr_b16 {v(r.W + 8*m + ti*4 + half*2, 2)}, v{r.VRD[ti]} offset:{slot*2048 + half*1024}")
            if tag is not None: lg.issue(tag)
def unswap(r): A(f"s_and_b32 s{sT}, s{SW}, 1\ns_lshl_b32 s{sT}, s{sT}, 5\nv_xor_b32 v{r.VRD[0]}, s{sT}, v{r.VRD[0]}\nv_xor_b32 v{r.VRD[1]}, s{sT}, v{r.VRD[1]}")
def preread():
    for n in range(RA.c4): wread_step(RA, n, n)
    unswap(RA)
def w2soff(n): A(f"s_add_u32 s{sA}, s{sGC}, {n*1024}\ns_sub_u32 s{sB}, s{sA}, {28*1024}\ns_min_u32 s{sA}, s{sA}, s{sB}\ns_lshl_b32 s{sA}, s{sA}, 6")
def w2dma(r, m):
    w2soff(r.n5 + m)
    A(f"s_add_u32 m0, s{sW2W}, {r.slots[m % len(r.slots)]*2048}")
    for j in range(2): A(f"buffer_load_dwordx4 v{r.VT2[j]}, {R(RW2)}, s{sA} offen offset:{j*1024} lds"); vm.issue(("d", m))
def w2read(r, m):
    vm.wait(("d", m)); wread_step(r, m, r.slots[m % len(r.slots)], ("r", m))

def mlp(r, VDR=None, VDW=None):
    isA = r is RA
    N, L = r.n, len(r.slots)
    BR, B2R, VO, IR, HR = 6, 10, 12, 224, 228
    G4, G5 = r.c4 // 4, r.c5 // 4
    dreg = lambda t, k: RING + (t % 3)*16 + 4*k
    def pw(q, j):
        if isA: return f"ds_write_b128 v{VRW[0]}, {v(ACC+8*q+4*j,4)} offset:{(q-1)*2048 + j*1024}"
        return f"ds_write_b128 v{VDR if q < 3 else VDW}, {v(ACC+8*q+4*j,4)} offset:{(6144 + q*2048 if q < 3 else 13*2048) + j*1024}"
    def add(d, a_, b_, pk):
        if pk:
            for k in range(0, 4, 2): A(f"v_pk_add_f32 {v(d+k,2)}, {v(a_+k,2)}, {v(b_+k,2)}")
        else:
            for k in range(4): A(f"v_add_f32 v{d+k}, v{a_+k}, v{b_+k}")
    OWN = 232
    def gather(pk, wide):
        src = lambda j: [(VRW[q], (q-1)*2048 + j*1024) for q in range(1, 4)] + [(VRW[q], 6144 + q*2048 + j*1024) for q in range(3)] + [(VX3, j*1024)]
        base = [TMP, ACC if wide else TMP]
        def rd(j):
            for k, (va, off) in enumerate(src(j)): A(f"ds_read_b128 {v(base[j]+4*k,4)}, v{va} offset:{off}")
        def sm(j):
            b, o = base[j], OWN + 4*j
            add(b, b, b+4, pk); add(b+8, b+8, b+12, pk); add(b+16, b+16, b+20, pk); add(o, o, b+24, pk)
            add(b, b, b+8, pk); add(o, o, b+16, pk); add(o, o, b, pk)
        if wide: rd(0); rd(1); A("s_waitcnt lgkmcnt(7)"); sm(0); A("s_waitcnt lgkmcnt(0)"); sm(1)
        else:
            for j in range(2): rd(j); A("s_waitcnt lgkmcnt(0)"); sm(j)
    def p5setup():
        A(f"v_and_b32 v6, 31, v1\nv_lshrrev_b32 v7, 5, v1\nv_mul_u32_u24 v{VO}, 896, v6\nv_lshl_add_u32 v{VO}, v7, 4, v{VO}\ns_lshr_b32 s{sA}, s{SW}, 1\ns_lshl_b32 s{sB}, s{sST}, 1\ns_add_u32 s{sA}, s{sA}, s{sB}")
        A(f"s_mul_i32 s{sE}, s{sA}, {32*896}\ns_lshl_b32 s{sB}, s{sDT5}, 7\ns_add_u32 s{sE}, s{sE}, s{sB}\ns_and_b32 s{sB}, s{SW}, 1\ns_lshl_b32 s{sB}, s{sB}, 5\ns_add_u32 s{sE}, s{sE}, s{sB}")
        A(f"s_lshl_b32 s{sA}, s{sA}, 6\nv_lshlrev_b32 v8, 1, v6\nbuffer_load_ushort v{B2R}, v8, {R(RB2)}, s{sA} offen\nv_lshlrev_b32 v7, 2, v7\nv_sub_u32 v6, v6, v7")
        for k in range(4):
            d0 = 8*(k >> 1) + 2*(k & 1)
            A(f"v_cmp_eq_u32 s[{sA}:{sA+1}], {d0}, v6\nv_cmp_eq_u32 s[{sC}:{sC+1}], {d0+1}, v6\nv_cndmask_b32 v{IR+k}, 0, v{VONE}, s[{sA}:{sA+1}]\nv_cndmask_b32 v{IR+k}, v{IR+k}, v{VONE+1}, s[{sC}:{sC+1}]")
    mk5 = lambda nm: Stream(nm + N, 2*G5, lambda g: [(dreg(2*G4 + g, k), r.VG, k*1024) for k in range(4)],
                lambda g: A(f"s_add_u32 s{sT}, s{sGC}, {(r.n5 + (g % G5)*4)*1024}\ns_sub_u32 s{sU}, s{sT}, {28*1024}\ns_min_u32 s{sT}, s{sT}, s{sU}" + (f"\ns_add_u32 s{sT}, s{sT}, {112*1024}" if g >= G5 else "")),
                r.T0, 1, r.VP5, r.T1, lambda g: (1 << 2*G5) - 1, G5)
    NP5 = min(3, G5)
    D3L = env("D3L", 1)
    A(f"s_cmp_lg_u32 s{sACT4}, 0\ns_cbranch_scc1 P4_GO{N}\ns_cmp_ge_u32 s{sJ}, 28\ns_cbranch_scc1 MLP_END{N}")
    q0 = list(vm.q); lg.q = []
    A("s_waitcnt lgkmcnt(0)\ns_barrier")
    if not isA and env("DL", 0) == 2:
        for m in range(1, 7): w2dma(r, m)
    for m0 in range(0, min(r.c5, 2*L), L):
        for m in range(m0, min(m0 + L, r.c5)): w2read(r, m)
        lg.wait_all()
        if m0 == 0 or not D3L:
            for m in range(m0 + L, min(m0 + 2*L, r.c5)): w2dma(r, m)
    si = mk5("SI")
    if isA: p5setup()
    for g in range(G5): si.gate(g)
    si.gated = 0
    for g in range(NP5 if isA else 2): si.issue(g)
    if isA: A("s_barrier\ns_barrier")
    else: si.check1(0); si.check2(0)
    A(f"s_branch P5_IN{N}\nP4_GO{N}:")
    vm.q = q0; lg.q = []
    sg = mk5("SG"); sg.gated = 0
    A(f"s_mov_b32 s{sV}, 0x10000")
    if isA:
        A(f"s_lshl_b32 s{sA}, s{sFO}, 5\nv_lshrrev_b32 v{r.T0}, 5, v1\nv_lshlrev_b32 v{r.T0}, 3, v{r.T0}")
        for g in range(2): A(f"buffer_load_dwordx2 {v(BR+2*g,2)}, v{r.T0}, {R(RB1)}, s{sA} offen offset:{g*16}")
        if env("ACKW", 1): A("s_waitcnt vmcnt(0)")
    sh = Stream("SH" + N, 2*G4, lambda g: [(dreg(g, k), r.VH, k*1024) for k in range(4)],
                lambda g: A(f"s_add_u32 s{sT}, s{sRO}, {(r.n4 + (g % G4)*4)*1024}\ns_and_b32 s{sT}, s{sT}, 0x7fff" + (f"\ns_bitset1_b32 s{sT}, 17" if g >= G4 else "")),
                r.T0, f"s{sV}", r.VP4, r.T1, lambda g: (1 << 2*G4) - 1, G4)
    seq = [(sh, g) for g in range(2*G4)] + [(sg, g) for g in range(2*G5)]
    first = [0, G4, 2*G4, 2*G4 + G5, len(seq)]
    late = {3} | ({2} if isA else set())
    issued = set()
    stamp("p4pre" + N)
    for g in range(3): sh.issue(g); issued.add(g)
    sh.check1(0); sh.check2(0)
    c1 = -2.0*math.sqrt(2.0/math.pi)*math.log2(math.e); c2 = c1*0.044715
    def compute(H):
        ph, hf = H >> 1, H & 1
        ns = (r.c4, r.c5)[ph]
        nm = f"p{4+ph}"
        if H == 2: A(f"P5_IN{N}:")
        if H in late: seq[first[H]][0].check1(seq[first[H]][1]); seq[first[H]][0].check2(seq[first[H]][1])
        if ph and isA:
            A(f"buffer_load_dwordx4 {v(HR,4)}, v{VL}, {R(RWS)}, s{sHFO} offen offset:{hf*2048} sc1")
        stamp(f"{nm}first{hf}" + N)
        for t in range(first[H], first[H+1]):
            n0 = 4*(t - first[H])
            tail = not isA and t == first[H+1] - 1
            head = not isA and t == first[H] and H > 0 and H not in late
            order = [(k, ti) for ti in (1, 0) for k in range(4)] if (tail or head) else [(k, ti) for k in range(4) for ti in (0, 1)]
            nxt = t + 2
            can = nxt < len(seq) and nxt not in issued and not (nxt >= first[H+1] and H + 1 in late)
            for sl, (k, ti) in enumerate(order):
                n = n0 + k
                if not isA and H > 0 and n0 == 4*env("RDNG", 2) and sl == 0: A("s_barrier")
                if not isA and H == 2 and n >= 14: lg.wait(("r", n))
                if not isA and H == 2 and not D3L and n0 == 12 and sl == 0: A("s_waitcnt lgkmcnt(0)")
                if head and sl == 4: A("s_waitcnt lgkmcnt(0)\ns_barrier"); lg.q = []
                acc = v(ACC + 16*ti, 16); w_, d_ = v(r.W + 8*n + 4*ti, 4), v(dreg(t, k), 4)
                A(f"{MFMA} {acc}, {d_ if ph else w_}, {w_ if ph else d_}, {'0' if n == 0 else acc}")
                if head and sl < 4: A(pw(sl >> 1, sl & 1))
                if tail and sl >= 4: A(pw(2 + ((sl - 4) >> 1), sl & 1))
                if can and sl < 4: seq[nxt][0].issue_part(seq[nxt][1], sl)
                if t + 1 < len(seq) and not (t + 1 == first[H+1] and H + 1 in late):
                    if sl == 5: seq[t+1][0].check1(seq[t+1][1])
                    if sl == 6: seq[t+1][0].check2(seq[t+1][1])
                done = (ti == 0) if (tail or head) else (ti == 1)
                if H == 1 and done and not env("NOW2", 0):
                    if 1 <= n <= L and n - 1 + L < r.c5: lg.wait(("r", n - 1)); w2dma(r, n - 1 + L)
                    if n < L: w2read(r, n)
                    if not isA:
                        if 9 <= n <= 15: w2read(r, n - 2)
                        if not D3L and 10 <= n and n + 4 < r.c5: lg.wait(("r", n - 3)); w2dma(r, n + 4)
                if H == 0 and not isA and done and env("DL", 0) == 2 and n % 3 == 2 and n < 18: w2dma(r, 1 + n // 3)
                if H == 2 and not isA and done:
                    if not D3L and 4 <= n and n + 10 < r.c5: wread_step(r, n + 10, r.slots[(n + 10) % L])
                    if D3L and n + 14 < r.c5: w2dma(r, n + 14)
                    if D3L and 8 <= n and n + 6 < r.c5: w2read(r, n + 6)
            if can: issued.add(nxt)
        if ph and isA:
            vm.wait_all()
            A(f"{MFMA} {v(ACC,16)}, {v(IR,4)}, {v(HR,4)}, {v(ACC,16)}")
        stamp(f"{nm}mm{hf}" + N)
    def late_issue(H):
        for t in range(first[H], min(first[H] + 3, first[H+1])): seq[t][0].issue(seq[t][1]); issued.add(t)
    def partials(H):
        for q in (2, 3, 1):
            for j in range(2): A(pw(q, j))
        if H < 2:
            for j in range(4): A(f"v_lshlrev_b32 v{TMP}, 16, v{BR+j}\nv_and_b32 v{TMP+1}, 0xffff0000, v{BR+j}\nv_add_f32 v{OWN+2*j}, v{ACC+2*j}, v{TMP}\nv_add_f32 v{OWN+2*j+1}, v{ACC+2*j+1}, v{TMP+1}")
        else:
            if H == 2: A(f"v_lshlrev_b32 v{B2R}, 16, v{B2R}")
            for k in range(8): A(f"v_add_f32 v{OWN+k}, v{ACC+k}, v{B2R}")
    def epilogue(H):
        ph, hf = H >> 1, H & 1
        A("s_waitcnt lgkmcnt(0)\ns_barrier"); lg.q = []
        stamp(f"red{4+ph}{hf}")
        if H in (1, 2): late_issue(H + 1)
        if env("PRIO", 1): A("s_setprio 2")
        gather(H == 3, H > 0)
        if ph == 0:
            A(f"s_mov_b32 s{sA}, {fl(c2)}\nv_mov_b32 v{TMP}, {fl(c1)}")
            E = TMP + 8
            for k in range(8): A(f"v_mul_f32 v{E+k}, v{OWN+k}, v{OWN+k}")
            for k in range(8): A(f"v_fma_f32 v{E+k}, v{E+k}, s{sA}, v{TMP}")
            for k in range(8): A(f"v_mul_f32 v{E+k}, v{E+k}, v{OWN+k}")
            for k in range(8): A(f"v_exp_f32 v{E+k}, v{E+k}")
            for k in range(8): A(f"v_add_f32 v{E+k}, 1.0, v{E+k}")
            for k in range(8): A(f"v_rcp_f32 v{E+k}, v{E+k}")
            for k in range(8): A(f"v_mul_f32 v{OWN+k}, v{OWN+k}, v{E+k}")
        for k in range(4): A(f"v_cvt_pk_bf16_f32 v{TMP+4+k}, v{OWN+2*k}, v{OWN+2*k+1}")
        if ph == 0:
            A(f"v_or_b32 v{TMP+7}, 1, v{TMP+7}\nbuffer_store_dwordx4 {v(TMP+4,4)}, v{VL}, {R(RWS)}, s{sGST} offen sc1\ns_add_u32 s{sGST}, s{sGST}, {112*1024}")
        else:
            A(f"v_permlane32_swap_b32 v{TMP+4}, v{TMP+6}\nv_permlane32_swap_b32 v{TMP+5}, v{TMP+7}\nbuffer_store_dwordx4 {v(TMP+4,4)}, v{VO}, {R(ROUT)}, s{sE} offen offset:{hf*64}" + [os.environ.get("OF0", " sc1"), os.environ.get("OF1", "")][hf])
        stamp(("gst", "outst")[ph] + str(hf))
        if H < 3: A("s_barrier")
        stamp_flush()
    if isA:
        if env("PRIO", 1): A("s_setprio 2")
        compute(0); partials(0)
        if env("PRIO", 1): A("s_setprio 0")
        compute(1); epilogue(0); partials(1)
        for m in range(L, r.c5): w2read(r, m)
        p5setup(); epilogue(1)
        compute(2); partials(2); epilogue(2)
        compute(3); partials(3); epilogue(3)
    else:
        if env("PRIO", 1): A("s_setprio 1")
        for H in range(4):
            compute(H)
            if H == 3 or H + 1 in late:
                for q in range(2):
                    for j in range(2): A(pw(q, j))
                if H < 3: late_issue(H + 1)
                A("s_waitcnt lgkmcnt(0)\ns_barrier"); lg.q = []
            stamp_flush()
    A(f"MLP_END{N}:")

def finish():
    A(f"s_or_b32 s{sT}, s2, s{SW}\ns_cbranch_scc1 K_FIN\nv_mov_b32 v4, 0\nv_mov_b32 v5, 0\ns_mov_b64 exec, 1\nbuffer_store_dwordx2 v[4:5], v4, {R(RDBG)}, 0 offen sc1\ns_mov_b64 exec, -1")
    A("K_FIN:")
    if os.environ.get("DIAGAT"):
        A(f"DSP:\ns_memrealtime s[{sA}:{sA+1}]\ns_waitcnt lgkmcnt(0)\ns_sub_u32 s{sA}, s{sA}, s72\ns_cmp_lt_u32 s{sA}, 4000\ns_cbranch_scc1 DSP")
    if STAMP:
        A("s_waitcnt vmcnt(0)"); stamp("end"); A(f"s_memrealtime s[{sA}:{sA+1}]"); stamp_flush()
        A(f"v_writelane_b32 v{VST}, s72, 62\nv_writelane_b32 v{VST}, s{sA}, 63")
        A(f"s_lshl_b32 s{sT}, s2, 3\ns_add_u32 s{sT}, s{sT}, s{sW8}\ns_lshl_b32 s{sT}, s{sT}, 8\ns_add_u32 s{sT}, s{sT}, {WS_STAMP}\nv_lshlrev_b32 v4, 2, v1\nbuffer_store_dword v{VST}, v4, {R(RWS)}, s{sT} offen")
    A("K_END:\ns_endpgm")

def bprog():
    NT = env("NT", 0); nt = " nt" if NT else ""
    nt1 = " nt" if env("NT1", 0) else ""
    VXD = [16, 17, 18, 19]; VXE = [20, 21]; VWD = list(range(22, 29))
    sWO, sXO, sM, sWM = sA, sB, sC, sD_
    sXP, sWP = [sW1, sW1S, sW1E], [sW2, sW2S, sW2E]
    A("B_P1:"); vm.q = []; lg.q = []
    p1_common()
    A(f"s_mul_i32 s{sXO}, s{sE}, {32*896}\ns_lshl_b32 s{sWM}, s{SW}, 10")
    A("v_lshrrev_b32 v4, 4, v1\nv_and_b32 v5, 15, v1\nv_xor_b32 v5, v5, v4\nv_mul_u32_u24 v6, 896, v4")
    for j in range(4): A(f"v_xor_b32 v7, {4*j}, v5\nv_lshl_add_u32 v7, v7, 4, v6\nv_add_u32 v{VXD[j]}, {j*4*896 - j*1024}, v7")
    A(f"s_lshr_b32 s{sT}, s{sJ}, 2\ns_and_b32 s{sU}, s{sJ}, 3\ns_add_u32 s{sT}, s{sT}, s{sU}\ns_mul_i32 s{sU}, s{sT}, 11\ns_lshr_b32 s{sU}, s{sU}, 5\ns_mul_i32 s{sU}, s{sU}, 3\ns_sub_u32 s{sT}, s{sT}, s{sU}")
    if not env("P1ROT", 1): A(f"s_mov_b32 s{sT}, 0")
    for p in range(3):
        A(f"s_lshl_b32 s{sU}, s{sT}, 8\ns_add_u32 s{sXP[p]}, s{sXO}, s{sU}\ns_mul_i32 s{sU}, s{sT}, {128*2688}\ns_add_u32 s{sWP[p]}, s{sWO}, s{sU}")
        if p < 2: A(f"s_add_u32 s{sT}, s{sT}, 1\ns_cmp_eq_u32 s{sT}, 3\ns_cselect_b32 s{sT}, 0, s{sT}")
    def xpiece(p):
        if p < 3:
            for j in range(8):
                if j % 4 == 0: A(f"s_add_u32 m0, s{sM}, {XBUF[p] + (j>>2)*4096}\ns_add_u32 s{sV}, s{sXP[p]}, {(j>>2)*16*896}")
                A(f"buffer_load_dwordx4 v{VXD[j&3]}, {R(RX)}, s{sV} offen offset:{(j&3)*1024}{nt1} lds"); vm.issue(f"x{p}")
        else:
            for j in range(4):
                A(f"s_add_u32 m0, s{sM}, {XBUF[p] + j*1024}\ns_add_u32 s{sV}, s{sXO}, {(j>>1)*16*896 + 768}\nbuffer_load_dwordx4 v{VXE[j&1]}, {R(RX)}, s{sV} offen{nt1} lds"); vm.issue(f"x{p}")
    def wdma(j):
        g = j // 7
        if g == 3 and j == 21: A(f"s_add_u32 s{sT}, s{sWO}, {3*128*2688}")
        A(f"s_add_u32 m0, s{sWM}, {j*4096}\nbuffer_load_dwordx4 v{VWD[j%7]}, {R(RWQ)}, s{sWP[g] if g < 3 else sT} offen{nt1} lds"); vm.issue(f"w{g}")
    A("s_waitcnt lgkmcnt(0)")
    xpiece(0)
    for j in range(7):
        A(f"v_add_u32 v4, {256*j}, v0\nv_mul_u32_u24 v5, 4682, v4\nv_lshrrev_b32 v5, 16, v5\nv_mul_u32_u24 v6, 14, v5\nv_sub_u32 v4, v4, v6")
        A(f"v_and_b32 v6, 0xf8, v5\nv_and_b32 v7, 1, v5\nv_lshl_add_u32 v6, v7, 2, v6\nv_bfe_u32 v7, v5, 1, 2\nv_add_u32 v6, v6, v7\nv_mul_u32_u24 v6, 2688, v6\nv_lshl_add_u32 v{VWD[j]}, v4, 4, v6")
        wdma(j)
    xpiece(1)
    A("v_lshrrev_b32 v4, 3, v1\nv_mul_u32_u24 v6, 896, v4\nv_lshrrev_b32 v4, 4, v1\nv_and_b32 v5, 7, v1\nv_xor_b32 v5, v5, v4")
    for j in range(2): A(f"v_xor_b32 v7, {4*j}, v5\nv_lshl_add_u32 v7, v7, 4, v6\nv_add_u32 v{VXE[j]}, {j*8*896}, v7")
    prologue2()
    vm.wait("w0"); A("s_barrier\ns_barrier")
    for j in range(7, 14): wdma(j)
    xpiece(2)
    vm.wait("w1"); A("s_barrier\ns_barrier")
    for j in range(14, 21): wdma(j)
    xpiece(3)
    for j in range(21, 25): wdma(j)
    vm.wait("w2"); A("s_barrier")
    vm.wait_all(); A("s_barrier\ns_waitcnt lgkmcnt(0)\ns_branch B_P2")

def bprog2():
    NT = env("NT", 0); nt = " nt" if NT else ""
    A("B_P2:"); vm.q = []
    if STAMP: A("v_mov_b32 v15, -1\nB_P2S:"); st["v"] = 15
    roles(touch=False)
    r = RB
    WOR, W2T = 16, 48
    VT1, VTO, VDW, VDR = [4, 5], [8, 9], 10, 11
    w2_addr(r, 12, 13)
    A(f"v_lshrrev_b32 v12, 3, v1\nv_mul_u32_u24 v12, 3584, v12\nv_add_u32 v{VT1[0]}, v12, v13\nv_add_u32 v{VT1[1]}, {8*3584 - 1024}, v{VT1[0]}")
    A(f"v_lshrrev_b32 v12, 2, v1\nv_mul_u32_u24 v12, 896, v12\nv_and_b32 v13, 3, v1\nv_lshl_add_u32 v{VTO[0]}, v13, 4, v12\nv_add_u32 v{VTO[1]}, {16*896}, v{VTO[0]}")
    A(f"v_add_u32 v{VDW}, s{sW2W}, v{VL}\nv_add_u32 v{VDR}, s{sRBW}, v{VL}")
    tr_lane_addr(12, 13, 128, 4)
    A(f"s_and_b32 s{sT}, s{SW}, 1\ns_lshl_b32 s{sT}, s{sT}, 5\nv_xor_b32 v12, s{sT}, v12\nv_add_u32 v12, s{sW2W}, v12\nv_bfe_u32 v13, v1, 3, 1\ns_lshr_b32 s{sT}, s{SW}, 1\nv_xor_b32 v13, s{sT}, v13")
    A(f"v_lshl_add_u32 v{r.VRD[0]}, v13, 6, v12\nv_xor_b32 v13, 1, v13\nv_lshl_add_u32 v{r.VRD[1]}, v13, 6, v12")
    A(f"s_mul_i32 s{sW1S}, s{SW}, {512*3584}\ns_lshl_b32 s{sT}, s{sFT}, 7\ns_add_u32 s{sW1S}, s{sW1S}, s{sT}\ns_add_u32 s{sW1E}, s{sW1S}, {512*3584}")
    A(f"s_lshr_b32 s{sT}, s{sRO}, 10\ns_add_u32 s{sT}, s{sT}, {r.n4}\ns_and_b32 s{sT}, s{sT}, 31\ns_mul_i32 s{sT}, s{sT}, {16*3584}\ns_add_u32 s{sW1}, s{sW1S}, s{sT}")
    TH = [env("BTH", 2)]
    A(f"s_and_b32 s{sT}, s{sC3}, 7\ns_lshl_b32 s{sT}, s{sT}, 1\ns_lshl_b32 s{sD_}, s{SW}, 2\ns_add_u32 s{sD_}, s{sD_}, s{sT}\ns_min_u32 s{sC}, s{sC3}, 13\ns_lshl_b32 s{sC}, s{sC}, 6")
    A(f"s_cmp_ge_u32 s{sJ}, 24\ns_cbranch_scc1 B_NOKV\ns_barrier\nB_NOKV:")
    A(f"s_add_u32 s{sT}, s{SW}, 1\ns_and_b32 s{sT}, s{sT}, 3\ns_mul_i32 s{sT}, s{sT}, 12288\ns_add_u32 s{sT}, s{sT}, {RBUF + 3072}\nv_add_u32 v14, s{sT}, v{VL}")
    A(f"v_mov_b32 v12, 0\nds_write_b32 v14, v12\ns_waitcnt lgkmcnt(0)\ns_barrier")
    stamp("b_go")
    vm.q = []
    A(f"buffer_load_dwordx2 v[{W2T}:{W2T+1}], v12, {R(RDBG)}, 0 offen sc1"); vm.issue("tag")
    sPOS = sE
    todo = []
    def throttle():
        A(f"s_waitcnt vmcnt({TH[0]})"); vm.q = vm.q[-TH[0]:]
        while todo and ("s", todo[0]) not in vm.q:
            m = todo.pop(0); wread_step(r, m, m % 14)
    def rawitem(m):
        w2soff(m)
        for j in range(2): A(f"buffer_load_dwordx4 {v(W2T+8*m+4*j,4)}, v{r.VT2[j]}, {R(RW2)}, s{sA} offen offset:{j*1024}")
    if env("NOB", 0): A("s_mov_b32 s70, 6\ns_branch B_CUT")
    for k in range(32):
        slot = k % 14 if k < 20 else (k - 20 + 6) % 12
        if k == 20: A(f"s_add_u32 s{sW1}, s{sW1}, {6*16*3584}\ns_cmp_ge_u32 s{sW1}, s{sW1E}\ns_cselect_b32 s{sT}, {512*3584}, 0\ns_sub_u32 s{sW1}, s{sW1}, s{sT}")
        if k == 26: A(f"s_lshr_b32 s{sT}, s{sRO}, 10\ns_mul_i32 s{sT}, s{sT}, {16*3584}\ns_add_u32 s{sW1}, s{sW1S}, s{sT}")
        if k >= 14:
            assert not [m for m in todo if m % 14 == slot]
            A("s_waitcnt lgkmcnt(0)")
        A(f"s_add_u32 m0, s{sW2W}, {slot*2048}")
        for j in range(2): A(f"buffer_load_dwordx4 v{VT1[j]}, {R(RW1)}, s{sW1} offen offset:{j*1024} lds"); vm.issue(("s", k))
        if k < 20: todo.append(k)
        A(f"s_add_u32 s{sW1}, s{sW1}, {16*3584}\ns_cmp_eq_u32 s{sW1}, s{sW1E}\ns_cselect_b32 s{sW1}, s{sW1S}, s{sW1}")
        throttle()
        if k in (4, 6, 8, 10):
            q = (k - 4) // 2
            A(f"s_add_u32 s{sT}, s{sD_}, {q}\ns_and_b32 s{sT}, s{sT}, 15\ns_mul_i32 s{sT}, s{sT}, {28*896}\ns_add_u32 s{sT}, s{sT}, s{sC}")
            for j in range(2): A(f"buffer_load_dwordx4 {v(WOR+8*q+4*j,4)}, v{VTO[j]}, {R(RWO)}, s{sT} offen"); vm.issue("wo")
            throttle()
        if k == 13:
            A(f"s_setprio 3\nv_readfirstlane_b32 s{sTAG}, v{W2T}\nv_readfirstlane_b32 s{sTAG+1}, v{W2T+1}\nv_lshlrev_b32 v12, 3, v1\ns_mul_i32 s{sV}, s{SW}, 384\ns_add_u32 s{sV}, s{sV}, {F2}")
            poll(12, sV, 48, 8); A("v_lshlrev_b32 v12, 7, v1\ns_setprio 0")
        if env("W2C", 0) and k in (14, 20):
            A(f"s_lshl_b32 s{sA}, s2, 2\ns_add_u32 s{sA}, s{sA}, s{SW}\ns_mul_i32 s{sA}, s{sA}, {56*128}")
            set_exec(((1 << 28) - 1) << (28*(k == 20))); A(f"buffer_load_dword v8, v12, {R(RW2)}, s{sA} offen\ns_mov_b64 exec, -1"); vm.issue("t")
        if k == env("BSW", 24): TH[0] = env("BTH2", 10)
        if k in (4, 13, 31): stamp(f"b_{k}")
    assert not todo
    w2dma(r, 0)
    for m in range(6):
        A(f"ds_read_b32 v13, v14\ns_mov_b32 s{sPOS}, {m}\ns_waitcnt vmcnt({TH[0]}) lgkmcnt(0)\ns_setprio 3\nv_cmp_ne_u32 vcc, 0, v13\ns_setprio 0\ns_cbranch_vccnz B_CUT")
        rawitem(m)
    A(f"s_mov_b32 s{sPOS}, 6")
    if env("W2T", 0):
        A(f"s_setprio 3\ns_lshr_b32 s{sT}, s{sGC}, 6\ns_add_u32 s{sT}, s{sT}, 96\nv_add_u32 v12, s{sT}, v1\nv_subrev_u32 v13, 448, v12\nv_min_u32 v12, v12, v13\nv_lshlrev_b32 v12, 12, v12\ns_setprio 0")
        A(f"s_mul_i32 s{sT}, s{SW}, {448*4096}\ns_lshl_b32 s{sU}, s{sST}, 7\ns_add_u32 s{sT}, s{sT}, s{sU}\nbuffer_load_dword v14, v12, {R(RW2)}, s{sT} offen")
    A("B_CUT:")
    stamp("b_done"); stamp_flush()
    if STAMP: A(f"v_writelane_b32 v15, s{sPOS}, 60")
    A(f"s_setprio 3\nv_min_u32 v12, 5, v1\nv_lshlrev_b32 v12, 12, v12\nv_add_u32 v12, {RBUF + 3*1024 + 32*16 + 4}, v12\ns_setprio 0")
    A(f"B_RED:\ns_barrier\nds_read_b32 v13, v12\ns_waitcnt lgkmcnt(0)\nv_cmp_ne_u32 vcc, 0, v13")
    A(f"s_cbranch_vccz B_OK\ns_cmp_lg_u32 s{sRETRY}, 0\ns_cbranch_scc1 B_OK\ns_mov_b32 s{sRETRY}, -1\ns_barrier\ns_barrier\ns_barrier\ns_branch B_RED\nB_OK:")
    A("s_waitcnt vmcnt(0)\ns_barrier")
    for k in range(8): A(f"ds_write_b128 v{VDR}, {v(WOR+4*k,4)} offset:{k*1024}")
    A("s_waitcnt vmcnt(0) lgkmcnt(0)\ns_barrier")
    if not env("EP", 0): A("s_barrier")
    for m in range(6):
        A(f"s_cmp_gt_u32 s{sPOS}, {m}\ns_cbranch_scc1 B_SK{m}"); rawitem(m); A(f"B_SK{m}:")
    vm.q = []
    DL = env("DL", 0)
    if DL == 0:
        for m in range(1, 7): w2dma(r, m)
    A(f"s_waitcnt vmcnt({12 if DL == 0 else 0})")
    for m in range(6):
        for j in range(2): A(f"ds_write_b128 v{VDW}, {v(W2T+8*m+4*j,4)} offset:{m*2048 + j*1024}")
    unswap(r); mlp_addr(r, 12, 13, False)
    A("s_waitcnt lgkmcnt(0)")
    if env("X1B", 1): A("s_barrier")
    if DL == 1:
        for m in range(1, 7): w2dma(r, m)
    mlp(r, VDR, VDW)
    if STAMP: A(f"v_mov_b32 v{VST}, v15"); del st["v"]
    A("s_branch K_FIN")

def main(out):
    prologue()
    pend0 = list(st["pend"])
    bprog()
    st["pend"] = list(pend0); p1_helper()
    st["pend"] = list(pend0); p1(); fb = p2(); p3(); vm.q = []; mlp(RA); finish()
    st["pend"] = list(pend0); bprog2(); fb()
    for h in handlers: h()
    A("CODE_END:")
    head = open("head.txt").read()
    nv = 256
    txt = head + f"; @launch grid=(256,1,1) block=(512,1,1) lds={LDS_TOTAL}\n" + '.amdgcn_target "amdgcn-amd-amdhsa--gfx950"\n.text\n' + kernel_header(NAME) + A.text() + '.section .rodata,"a"\n' + kernel_desc(NAME, nv, 102, 256)
    open(out, "w").write(txt)
    if STAMP: open(out + ".names", "w").write(" ".join(st["names"].keys()))

if __name__ == "__main__":
    main(sys.argv[1])
```

```python
import sys, struct, math, os
from asmlib import *

S, D, H, DH, F = 2048, 448, 16, 28, 1792
MB = 1 << 20
WS_Q, WS_KV, WS_O, WS_HF, WS_HH, WS_G, WS_ST, WS_FL, WS_STAMP = 0, 2*MB, 6*MB, 8*MB, 10*MB, 12*MB, 14*MB, 14*MB + 512*1024, 15*MB
F1, F2, F4, F5 = WS_FL, WS_FL + 131072, WS_FL + 2*131072, WS_FL + 3*131072
WS_RST, WS_CSG = 13*MB + 768*1024, 13*MB + 832*1024
WS_SIZE = 16*MB
WS_O = WS_HH = WS_Q
WS_G = WS_KV
EPS = 1e-5
STAMP = os.environ.get("STAMP", "0") == "1"
def env(n, d): return int(os.environ.get(n, str(d)))
def f2u(x): return struct.unpack("<I", struct.pack("<f", x))[0]
def hx(x): return f"0x{x & 0xffffffff:08x}"
def fl(x): return hx(f2u(x))
MFMA = "v_mfma_f32_32x32x16_bf16"
NAME = "sequential_preLN__mha_block__mixer_token_mlp__prompt_kernel"

class Cnt:
    def __init__(self, A, name, mx):
        self.A, self.name, self.mx, self.q = A, name, mx, []
    def issue(self, tag): self.q.append(tag)
    def wait(self, tag):
        idx = [i for i, t in enumerate(self.q) if t == tag]
        if not idx: return
        n = len(self.q) - 1 - idx[-1]
        self.A(f"s_waitcnt {self.name}({min(n, self.mx)})")
        self.q = self.q[idx[-1] + 1:]
    def wait_all(self):
        self.A(f"s_waitcnt {self.name}(0)"); self.q = []

RX, RWQ, RWO, RW1, RB1, RW2, RB2, ROUT, RDBG, RWS = 8, 12, 16, 20, 24, 28, 32, 36, 40, 44
def R(r): return f"s[{r}:{r+3}]"
SW, sH, sI, sJ, sFT, sDT4, sST, sDT5, sACT4, sTO, sTAG = 48, 49, 50, 51, 52, 53, 54, 55, 56, 57, 58
sHI, sONES = 60, 62
sT, sU, sV, sA, sB, sC, sD_, sE, sRETRY = 63, 64, 65, 66, 67, 68, 69, 70, 71
sF = [4, 5, 6, 7]
sSEC, sHQ, sW8 = 3, 92, 93
sMISS = 6
sC3, sR3 = 0, 1
sRBW, sW2W = 94, 95
sW2, sW2S, sW2E, sW1, sW1S, sW1E = 96, 97, 98, 99, 100, 101
VL, VST = 2, 255
W2A, RBUF, LDS_TOTAL = 0, 114688, 163840

A = Asm(); vm = Cnt(A, "vmcnt", 63); lg = Cnt(A, "lgkmcnt", 15)
st = {"pend": [], "names": {}}
def stamp(name):
    if os.environ.get("DIAGAT") == name or (os.environ.get("DIAGAT") and name == "start"): A("s_memrealtime s[72:73]")
    if not STAMP: return
    import re
    if name != "start" and not re.match(os.environ.get("STF", "^[^t]"), name): return
    k = len(st["pend"]); assert k < 9, name
    n = st["names"].setdefault(name, len(st["names"]))
    A(f"{'s_memtime' if env('CYC', 0) else 's_memrealtime'} s[{74+2*k}:{75+2*k}]"); st["pend"].append(n)
def stamp_flush():
    if not STAMP or not st["pend"]: return
    A("s_waitcnt lgkmcnt(0)")
    for k, n in enumerate(st["pend"]): A(f"v_writelane_b32 v{st.get('v', VST)}, s{74+2*k}, {n}")
    st["pend"] = []

def set_exec(mask): A(f"s_mov_b32 exec_lo, {hx(mask)}\ns_mov_b32 exec_hi, {hx(mask >> 32)}")
def halfsum(x, t): A(f"v_mov_b32 v{t}, v{x}\nv_permlane32_swap_b32 v{x}, v{t}\nv_add_f32 v{x}, v{x}, v{t}")
def flag_store(soff_reg, t=4):
    A(f"v_mov_b32 v{t}, s{sTAG}\nv_mov_b32 v{t+1}, s{sTAG+1}\nv_mov_b32 v{t+2}, 0\ns_mov_b64 exec, 1")
    A(f"buffer_store_dwordx2 {v(t,2)}, v{t+2}, {R(RWS)}, s{soff_reg} offen sc1\ns_mov_b64 exec, -1"); vm.issue("flag")
def poll(voff, soff_reg, nl, t):
    L = A.label("POLL")
    set_exec((1 << nl) - 1)
    A(f"s_mov_b32 s{sTO}, 0x8000\n{L}:")
    A(f"buffer_load_dwordx2 {v(t,2)}, v{voff}, {R(RWS)}, s{soff_reg} offen sc1\ns_sub_u32 s{sTO}, s{sTO}, 1\ns_waitcnt vmcnt(0)")
    A(f"s_cbranch_scc1 {L}_x\nv_cmp_ne_u64 vcc, s[{sTAG}:{sTAG+1}], {v(t,2)}\ns_and_b64 exec, exec, vcc\n" + (f"s_cbranch_scc0 {L}_x\ns_sleep {env('PSL', 0)}\ns_branch {L}" if env("PSL", 0) else f"s_cbranch_scc1 {L}") + f"\n{L}_x:\ns_mov_b64 exec, -1")
    vm.q = []
def tr_lane_addr(dst, t, pitch, hs, rs=1):
    A(f"v_lshrrev_b32 v{dst}, 5, v1\nv_mul_u32_u24 v{dst}, {hs*pitch}, v{dst}\nv_bfe_u32 v{t}, v1, 2, 2\nv_mul_u32_u24 v{t}, {rs*pitch}, v{t}\nv_add_u32 v{dst}, v{dst}, v{t}")
    A(f"v_bfe_u32 v{t}, v1, 4, 1\nv_lshl_add_u32 v{dst}, v{t}, 5, v{dst}\nv_and_b32 v{t}, 3, v1\nv_lshl_add_u32 v{dst}, v{t}, 3, v{dst}")
def get_tag(TAGV, lab):
    A(f"v_readfirstlane_b32 s{sTAG}, v{TAGV}\nv_readfirstlane_b32 s{sTAG+1}, v{TAGV+1}")
    A(f"s_or_b32 s{sTO}, s{sTAG}, s{sTAG+1}\ns_cbranch_scc1 {lab}_ok\ns_mov_b32 s{sTO}, 0x8000\nv_mov_b32 v4, 0\n{lab}_l:")
    A(f"buffer_load_dwordx2 {v(TAGV,2)}, v4, {R(RDBG)}, 0 offen sc1\ns_sub_u32 s{sTO}, s{sTO}, 1\ns_waitcnt vmcnt(0)\ns_cbranch_scc1 {lab}_ok")
    A(f"v_readfirstlane_b32 s{sTAG}, v{TAGV}\nv_readfirstlane_b32 s{sTAG+1}, v{TAGV+1}\ns_cmp_eq_u64 s[{sTAG}:{sTAG+1}], 0\ns_cbranch_scc1 {lab}_l\n{lab}_ok:")
def tagcheck(regs, T1, T2, T3):
    A(f"v_xor_b32 v{T1}, s{sTAG}, v{regs[0]+1}\nv_xor_b32 v{T2}, s{sTAG+1}, v{regs[0]+3}\nv_or_b32 v{T1}, v{T1}, v{T2}")
    for g in regs[1:]: A(f"v_xor_b32 v{T2}, s{sTAG}, v{g+1}\nv_xor_b32 v{T3}, s{sTAG+1}, v{g+3}\nv_or3_b32 v{T1}, v{T1}, v{T2}, v{T3}")
    A(f"v_cmp_ne_u32 vcc, 0, v{T1}")
def rot4(d):
    A(f"s_bfe_u32 s{d}, s2, 0x20001\ns_mul_i32 s{d}, s{d}, 7\ns_sub_u32 s{d}, s{sFT}, s{d}\ns_add_u32 s{d}, s{d}, s{sDT4}\ns_add_u32 s{d}, s{d}, s{sDT4}")
    A(f"s_and_b32 s{sTO}, s2, 1\ns_mul_i32 s{sTO}, s{sTO}, 3\ns_add_u32 s{d}, s{d}, s{sTO}\ns_and_b32 s{d}, s{d}, 7\ns_lshl_b32 s{d}, s{d}, 2")
def rot5(d):
    A(f"s_and_b32 s{sTO}, s2, 1\ns_lshl_b32 s{sTO}, s{sTO}, 1\ns_lshl_b32 s{d}, s{sDT5}, 1\ns_add_u32 s{d}, s{d}, s{sTO}\ns_and_b32 s{sTO}, s{sST}, 7\ns_add_u32 s{d}, s{d}, s{sTO}")
    A(f"s_mul_i32 s{sTO}, s{d}, 37\ns_lshr_b32 s{sTO}, s{sTO}, 8\ns_mul_i32 s{sTO}, s{sTO}, 7\ns_sub_u32 s{d}, s{d}, s{sTO}\ns_lshl_b32 s{d}, s{d}, 2")

handlers = []
class Stream:
    def __init__(self, name, ng, loads, soff, T, bit, VP, TP, pm=None, gated=None):
        self.name, self.ng, self.loads, self.soff, self.T, self.last, self.bit = name, ng, loads, soff, T, -1, bit
        self.VP, self.TP, self.pm, self.gated = VP, TP, pm or (lambda g: 0xffffffff), ng if gated is None else gated
        A(f"s_mov_b32 s{sMISS}, {hx((1 << 2*ng) - 1)}")
    def gate(self, g):
        if g >= self.gated: return
        L = f"{self.name}g{g}"
        A(f"s_and_b32 s{sT}, s{sMISS}, {hx(3 << 2*g)}\ns_cbranch_scc1 {L}_h\n{L}_r:")
        def h():
            A(f"{L}_h:\ns_mov_b32 s{sTO}, 0x8000\ns_mov_b32 exec_hi, 0\n{L}_l:\ns_and_b32 exec_lo, s{sMISS}, {hx(self.pm(g))}")
            A(f"buffer_load_dword v{self.TP}, v{self.VP}, {R(RWS)}, 0 offen sc1\ns_sub_u32 s{sTO}, s{sTO}, 1\ns_waitcnt vmcnt(0)\ns_cbranch_scc1 {L}_x")
            A(f"v_and_b32 v{self.TP}, {self.bit}, v{self.TP}\nv_cmp_ne_u32 vcc, 0, v{self.TP}\ns_andn2_b32 s{sMISS}, s{sMISS}, vcc_lo\ns_and_b32 s{sT}, s{sMISS}, {hx(3 << 2*g)}\ns_cbranch_scc1 {L}_l")
            A(f"{L}_x:\ns_mov_b64 exec, -1\ns_branch {L}_r")
        handlers.append(h)
    def _emit(self, g, track):
        self.soff(g)
        for reg, va, off in self.loads(g):
            A(f"buffer_load_dwordx4 {v(reg,4)}, v{va}, {R(RWS)}, s{sT} offen offset:{off} sc1")
            if track: vm.issue((self.name, g))
    def issue(self, g):
        if g < self.ng: self.gate(g); self._emit(g, True); self.last = g
    def issue_part(self, g, k):
        if g >= self.ng: return
        if k == 0: self.gate(g); self.soff(g)
        reg, va, off = self.loads(g)[k]
        A(f"buffer_load_dwordx4 {v(reg,4)}, v{va}, {R(RWS)}, s{sT} offen offset:{off} sc1"); vm.issue((self.name, g))
        self.last = g
    def _red(self, g):
        r = [x[0] + 3 for x in self.loads(g)]
        A(f"v_bitop3_b32 v{self.T}, v{r[0]}, v{r[1]}, v{r[2]} bitop3:0x80\nv_bitop3_b32 v{self.T}, v{self.T}, v{r[3]}, {self.bit} bitop3:0x80")
    def check1(self, g):
        if g < self.ng: vm.wait((self.name, g)); self._red(g)
    def check2(self, g):
        if g >= self.ng: return
        L = f"{self.name}{g}"
        A(f"v_cmp_eq_u32 vcc, 0, v{self.T}\ns_cbranch_vccnz {L}_h\n{L}_r:")
        last = self.last
        def h():
            A(f"{L}_h:\ns_mov_b32 s{sTO}, 0x8000\n{L}_l:")
            self._emit(g, False)
            A(f"s_sub_u32 s{sTO}, s{sTO}, 1\ns_waitcnt vmcnt(0)\ns_cbranch_scc1 {L}_r")
            self._red(g)
            A(f"v_cmp_eq_u32 vcc, 0, v{self.T}\ns_cbranch_vccnz {L}_l\ns_branch {L}_r")
        handlers.append(h)

def prologue():
    if STAMP: A(f"s_memrealtime s[72:73]\nv_mov_b32 v{VST}, -1")
    stamp("start")
    A(f"s_load_dwordx2 s[{RX}:{RX+1}], s[0:1], 0\ns_load_dwordx2 s[{RWQ}:{RWQ+1}], s[0:1], 8")
    A("s_cmp_ge_u32 s2, 256\ns_cbranch_scc1 K_END")
    A(f"v_and_b32 v1, 63, v0\nv_lshrrev_b32 v3, 6, v0\nv_lshlrev_b32 v{VL}, 4, v1\nv_readfirstlane_b32 s{sW8}, v3\nv_and_b32 v0, 255, v0")
    for r, sz in ((RX, S*D*2), (RWQ, D*3*D*2)): A(f"s_mov_b32 s{r+2}, {sz}\ns_mov_b32 s{r+3}, 0x20000")
    A(f"s_and_b32 s{SW}, s{sW8}, 3\ns_lshr_b32 s{sJ}, s2, 3\ns_bfe_u32 s{sT}, s2, 0x20001\ns_and_b32 s{sU}, s2, 1")
    A(f"s_lshl_b32 s{sI}, s{sT}, 2\ns_and_b32 s{sV}, s{sJ}, 3\ns_add_u32 s{sI}, s{sI}, s{sV}")
    A(f"s_lshr_b32 s{sSEC}, s{sJ}, 3\ns_bfe_u32 s{sHQ}, s{sJ}, 0x10002\ns_lshl_b32 s{sV}, s{sU}, 1\ns_add_u32 s{sHQ}, s{sHQ}, s{sV}")
    A(f"s_cmp_ge_u32 s{sJ}, 24\ns_cbranch_scc1 P1_HELP\ns_cmp_lt_u32 s{sW8}, 4\ns_cbranch_scc1 A_P1")

def prologue2():
    for r, off in ((RWS, 80), (RDBG, 72), (RWO, 16), (RW1, 32), (RB1, 40), (RW2, 48), (RB2, 56), (ROUT, 64)):
        A(f"s_load_dwordx2 s[{r}:{r+1}], s[0:1], {off}")
    A(f"s_memrealtime s[{sTAG}:{sTAG+1}]")
    for r, sz in ((RWS, WS_SIZE), (RDBG, 256), (RWO, D*D*2), (RW1, S*F*2), (RB1, F*2), (RW2, S*F*2), (RB2, S*2), (ROUT, S*D*2)):
        A(f"s_mov_b32 s{r+2}, {sz}\ns_mov_b32 s{r+3}, 0x20000")
    A(f"s_mov_b32 s{sHI}, 0\ns_mov_b32 s{sHI+1}, -1\ns_mov_b32 s{sONES}, 0x3f803f80\ns_mov_b32 s{sRETRY}, 0")
    A(f"s_mul_i32 s{sRBW}, s{SW}, 12288\ns_add_u32 s{sRBW}, s{sRBW}, {RBUF}\ns_mul_i32 s{sW2W}, s{SW}, 28672")

def roles(touch=True):
    A(f"s_bfe_u32 s{sT}, s2, 0x20001\ns_and_b32 s{sU}, s2, 1")
    pass
    A(f"s_sub_u32 s{sV}, 25, s{sU}\ns_cmp_lt_u32 s{sJ}, s{sV}\ns_cselect_b32 s{sACT4}, 1, 0\ns_cselect_b32 s{sV}, s{sJ}, 0")
    A(f"s_mul_i32 s{sFT}, s{sU}, 25\ns_add_u32 s{sV}, s{sV}, s{sFT}\ns_mul_i32 s{sDT4}, s{sV}, 9363\ns_lshr_b32 s{sDT4}, s{sDT4}, 16")
    A(f"s_mul_i32 s{sFT}, s{sDT4}, 7\ns_sub_u32 s{sV}, s{sV}, s{sFT}\ns_mul_i32 s{sFT}, s{sT}, 7\ns_add_u32 s{sFT}, s{sV}, s{sFT}")
    A(f"s_cmp_lt_u32 s{sJ}, 28\ns_cselect_b32 s{sV}, s{sJ}, 0\ns_mul_i32 s{sST}, s{sU}, 28\ns_add_u32 s{sV}, s{sV}, s{sST}")
    A(f"s_lshr_b32 s{sDT5}, s{sV}, 3\ns_and_b32 s{sV}, s{sV}, 7\ns_lshl_b32 s{sST}, s{sT}, 3\ns_add_u32 s{sST}, s{sST}, s{sV}")
    A(f"s_lshl_b32 s{sT}, s{sHQ}, 2\ns_add_u32 s{sT}, s{sT}, s{sSEC}\ns_lshl_b32 s{sT}, s{sT}, 4\ns_add_u32 s{sT}, s{sT}, s{sI}\ns_lshl_b32 s{sT}, s{sT}, 7\ns_add_u32 s{sF[0]}, s{sT}, {F1}")
    A(f"s_and_b32 s{sT}, s2, 7\ns_lshl_b32 s{sT}, s{sT}, 1\ns_and_b32 s{sH}, s{sJ}, 1\ns_add_u32 s{sH}, s{sH}, s{sT}\ns_lshr_b32 s{sI}, s{sJ}, 1")
    A(f"s_lshr_b32 s{sR3}, s{sJ}, 4\ns_add_u32 s{sR3}, s{sR3}, s{sT}\ns_lshl_b32 s{sR3}, s{sR3}, 2\ns_add_u32 s{sR3}, s{sR3}, s{SW}\ns_and_b32 s{sC3}, s{sJ}, 15")
    A(f"s_lshl_b32 s{sT}, s2, 3\ns_add_u32 s{sF[1]}, s{sT}, {F2}")
    if not touch: return
    A(f"s_lshl_b32 s{sV}, s{sR3}, 4\ns_add_u32 s{sV}, s{sV}, s{sC3}\ns_lshl_b32 s{sV}, s{sV}, 9\ns_add_u32 s{sV}, s{sV}, {WS_ST}\nv_lshl_add_u32 v4, v1, 7, s{sV}")
    A(f"v_writelane_b32 v4, s{sF[0]}, 4\nv_writelane_b32 v4, s{sF[1]}, 5\ns_mov_b64 exec, {0x3f if env('STT', 1) else 0x30}\nbuffer_load_dword v127, v4, {R(RWS)}, 0 offen sc1\ns_mov_b64 exec, -1")
    vm.issue("touch")

def p1_helper():
    TAGV = 14
    sHX = sA
    A("P1_HELP:")
    vm.q = []
    prologue2()
    A(f"s_and_b32 s{sHX}, s2, 7\ns_lshl_b32 s{sHX}, s{sHX}, 3\ns_add_u32 s{sHX}, s{sHX}, s{sJ}\ns_sub_u32 s{sHX}, s{sHX}, 24")
    A(f"v_lshrrev_b32 v4, 3, v1\nv_and_b32 v5, 7, v1\nv_lshlrev_b32 v5, 4, v5\nv_mov_b32 v7, 0")
    A(f"s_cmp_ge_u32 s{sW8}, 4\ns_cbranch_scc1 H_CS")
    A(f"v_mul_u32_u24 v6, 896, v4\nv_add_u32 v6, v6, v5\ns_lshl_b32 s{sB}, s{sHX}, 2\ns_add_u32 s{sB}, s{sB}, s{SW}\ns_mul_i32 s{sT}, s{sB}, {8*896}\ns_waitcnt lgkmcnt(0)")
    for m in range(7): A(f"buffer_load_dwordx4 {v(16+4*m,4)}, v6, {R(RX)}, s{sT} offen offset:{m*128}")
    A("v_mov_b32 v80, 0\nv_mov_b32 v82, 0\nv_mov_b32 v84, 0\nv_mov_b32 v86, 0\ns_waitcnt vmcnt(0)")
    A(f"buffer_load_dwordx2 {v(TAGV,2)}, v7, {R(RDBG)}, 0 offen sc1")
    for k in range(28): A(f"v_dot2c_f32_bf16 v{80+4*(k&1)}, s{sONES}, v{16+k}\nv_dot2c_f32_bf16 v{82+4*(k&1)}, v{16+k}, v{16+k}")
    A("v_add_f32 v80, v80, v84\nv_add_f32 v82, v82, v86")
    for m in ("quad_perm:[1,0,3,2]", "quad_perm:[2,3,0,1]", "row_half_mirror"):
        for r in (80, 82): A(f"v_add_f32_dpp v{r}, v{r}, v{r} {m} row_mask:0xf bank_mask:0xf")
    A(f"v_mul_f32 v80, {fl(1.0/D)}, v80\nv_mul_f32 v82, {fl(1.0/D)}, v82\nv_fma_f32 v82, -v80, v80, v82\nv_max_f32 v82, 0, v82\nv_add_f32 v82, {fl(EPS)}, v82\nv_rsq_f32 v82, v82")
    A(f"v_lshlrev_b32 v6, 4, v4\nv_mul_f32 v80, v80, v82\nv_sub_f32 v80, 0, v80\ns_waitcnt vmcnt(0)")
    get_tag(TAGV, "H_T1")
    A(f"v_mov_b32 v81, s{sTAG}\nv_mov_b32 v83, s{sTAG+1}\ns_lshl_b32 s{sT}, s{sB}, 7\ns_add_u32 s{sT}, s{sT}, {WS_RST}")
    set_exec(0x0101010101010101)
    A(f"buffer_store_dwordx4 v[80:83], v6, {R(RWS)}, s{sT} offen sc1\ns_mov_b64 exec, -1")
    stamp("h_pub"); stamp_flush()
    A("s_barrier")
    roles()
    addr_setup()
    A("s_branch P2_START")
    st["pend"] = [0] if STAMP else []
    A(f"H_CS:\ns_lshl_b32 s{sB}, s{SW}, 6\ns_add_u32 s{sB}, s{sB}, s{sHX}\ns_cmp_ge_u32 s{sB}, 84\ns_cbranch_scc1 H_PF")
    A(f"v_mul_u32_u24 v6, 2688, v4\nv_add_u32 v6, v6, v5\ns_and_b32 s{sC}, s{sB}, 3\ns_lshr_b32 s{sD_}, s{sB}, 2\ns_mul_i32 s{sT}, s{sC}, {112*2688}\ns_lshl_b32 s{sU}, s{sD_}, 7\ns_add_u32 s{sT}, s{sT}, s{sU}\ns_waitcnt lgkmcnt(0)")
    for m in range(14): A(f"buffer_load_dwordx4 {v(16+4*m,4)}, v6, {R(RWQ)}, s{sT} offen\ns_add_u32 s{sT}, s{sT}, {8*2688}")
    A(f"s_mov_b32 s{sT}, 0x3f80\ns_mov_b32 s{sU}, 0x3f800000")
    for r in range(80, 88): A(f"v_mov_b32 v{r}, 0")
    for m in range(14):
        if m % 4 == 0: A(f"s_waitcnt vmcnt({max(0, 14 - m - 4)})")
        if m == 12: A(f"buffer_load_dwordx2 {v(TAGV,2)}, v7, {R(RDBG)}, 0 offen sc1")
        for k in range(4): A(f"v_dot2c_f32_bf16 v{80+2*k}, s{sT}, v{16+4*m+k}\nv_dot2c_f32_bf16 v{81+2*k}, s{sU}, v{16+4*m+k}")
    for r in range(80, 88): A(f"v_add_f32_dpp v{r}, v{r}, v{r} row_ror:8 row_mask:0xf bank_mask:0xf")
    for op in ("v_permlane16_swap_b32", "v_permlane32_swap_b32"):
        for r in range(80, 88): A(f"v_mov_b32 v{r+8}, v{r}")
        for r in range(80, 88): A(f"{op} v{r}, v{r+8}")
        for r in range(80, 88): A(f"v_add_f32 v{r}, v{r}, v{r+8}")
    A("v_mov_b32 v88, v80\nv_mov_b32 v90, v81")
    for pi in range(1, 4): A(f"v_cmp_eq_u32 vcc, {pi}, v4\nv_cndmask_b32 v88, v88, v{80+2*pi}, vcc\nv_cndmask_b32 v90, v90, v{81+2*pi}, vcc")
    A(f"v_lshlrev_b32 v6, 2, v5\nv_lshl_add_u32 v6, v4, 4, v6\ns_waitcnt vmcnt(0)")
    get_tag(TAGV, "H_T2")
    A(f"v_mov_b32 v89, s{sTAG}\nv_mov_b32 v91, s{sTAG+1}\ns_mul_i32 s{sT}, s{sC}, 10752\ns_lshl_b32 s{sU}, s{sD_}, 9\ns_add_u32 s{sT}, s{sT}, s{sU}\ns_add_u32 s{sT}, s{sT}, {WS_CSG}")
    set_exec(0xFFFFFFFF)
    A(f"buffer_store_dwordx4 v[88:91], v6, {R(RWS)}, s{sT} offen sc1\ns_mov_b64 exec, -1\ns_barrier\ns_branch B_P2")
    A(f"H_PF:\ns_cmp_lt_u32 s{SW}, 2\ns_cbranch_scc1 H_W")
    sQ = sB
    A(f"s_sub_u32 s{sQ}, s{sJ}, 24\ns_lshl_b32 s{sQ}, s{sQ}, 1\ns_add_u32 s{sQ}, s{sQ}, s{SW}\ns_sub_u32 s{sQ}, s{sQ}, 2")
    A(f"s_getpc_b64 s[{sC}:{sC+1}]\nCODE_REF:\ns_lshl_b32 s{sT}, s{sQ}, 12\nv_lshl_add_u32 v6, v1, 7, s{sT}\nv_min_u32 v6, CODE_END-CODE_REF-4, v6")
    A(f"v_mov_b32 v9, s{sC+1}\nv_add_co_u32 v8, vcc, s{sC}, v6\nv_addc_co_u32 v9, vcc, 0, v9, vcc")
    set_exec(0xFFFFFFFF)
    A("global_load_dword v25, v[8:9], off\ns_mov_b64 exec, -1\ns_waitcnt lgkmcnt(0)\ns_barrier")
    A("v_lshlrev_b32 v6, 7, v1")
    A(f"s_and_b32 s{sT}, s2, 7\ns_lshl_b32 s{sT}, s{sT}, 4\ns_add_u32 s{sT}, s{sT}, s{sQ}\ns_mul_i32 s{sT}, s{sT}, {7*8192}")
    for k in range(env("NP1", 0)): A(f"s_add_u32 s{sU}, s{sT}, {k*8192}\nbuffer_load_dword v{16+k}, v6, {R(RW1)}, s{sU} offen")
    for k in range(env("NP2", 0)): A(f"s_add_u32 s{sU}, s{sT}, {k*8192}\nbuffer_load_dword v{26+k}, v6, {R(RW2)}, s{sU} offen")
    if env("WOT", 1) == 1:
        A(f"s_mul_i32 s{sT}, s{sQ}, {196*128}")
        set_exec((1 << 49) - 1)
        for k in range(4): A(f"s_add_u32 s{sU}, s{sT}, {k*49*128}\nbuffer_load_dword v24, v6, {R(RWO)}, s{sU} offen")
        A("s_mov_b64 exec, -1")
    if STAMP:
        A("s_waitcnt vmcnt(0)"); stamp("h_touch"); stamp_flush(); A(f"v_mov_b32 v15, v{VST}\ns_branch B_P2S")
    A("s_branch B_P2\nH_W:\ns_waitcnt lgkmcnt(0)\ns_barrier\ns_branch B_P2")

XA = LDS_TOTAL - 65536
XBUF = [8192, 0, 8192, 4096]
def p1_common():
    sWO, sM = sA, sC
    A(f"s_mul_i32 s{sWO}, s{sSEC}, 896\ns_mul_i32 s{sT}, s{sHQ}, 224\ns_add_u32 s{sWO}, s{sWO}, s{sT}")
    A(f"s_lshl_b32 s{sE}, s{sI}, 2\ns_add_u32 s{sE}, s{sE}, s{SW}\ns_lshl_b32 s{sM}, s{SW}, 14\ns_add_u32 s{sM}, s{sM}, {XA}")

def p1():
    XF, ACC, WF = 16, 128, 192
    VXR = list(range(80, 88)); VXS = list(range(88, 92)); VWR = [92, 93]; TAGV = 94
    xf = lambda ks: XF + ((ks + 8) & 15)*4 if False else XF + (ks & 15)*4
    sWO, sM = sA, sC
    A("A_P1:")
    prologue2()
    p1_common()
    A(f"v_and_b32 v4, 31, v1\nv_lshrrev_b32 v5, 5, v1\nv_and_b32 v6, 15, v1\nv_xor_b32 v6, v6, v5\nv_lshlrev_b32 v6, 4, v6\nv_lshl_add_u32 v6, v4, 8, v6\nv_add_u32 v6, s{sM}, v6")
    for k in range(8): A(f"v_xor_b32 v{VXR[k]}, {k<<5}, v6")
    A(f"v_bfe_u32 v6, v1, 1, 3\nv_xor_b32 v6, v6, v5\nv_lshlrev_b32 v6, 4, v6\nv_lshl_add_u32 v6, v4, 7, v6\nv_add_u32 v6, s{sM}, v6")
    for k in range(4): A(f"v_xor_b32 v{VXS[k]}, {k<<5}, v6")
    tr_lane_addr(VWR[0], 4, 224, 8, 2); A(f"v_add_u32 v{VWR[1]}, {14*3584}, v{VWR[0]}")
    A("s_waitcnt lgkmcnt(0)")
    stamp("karg")
    A(f"s_or_b32 s{sT}, s2, s{SW}\ns_cbranch_scc1 P1_NOTAG")
    A(f"s_bitset1_b32 s{sTAG+1}, 31\nv_mov_b32 v8, s{sTAG}\nv_mov_b32 v9, s{sTAG+1}\nv_mov_b32 v10, 0\nv_mov_b32 v11, 0\ns_mov_b64 exec, 1\nbuffer_atomic_cmpswap_x2 v[8:11], v10, {R(RDBG)}, 0 offen sc1\ns_mov_b64 exec, -1\nP1_NOTAG:")
    A(f"s_mov_b32 s7, s{sE}")
    roles()
    addr_setup()
    A(f"s_mov_b32 s{sE}, s7\ns_lshl_b32 s{sM}, s{SW}, 14\ns_add_u32 s{sM}, s{sM}, {XA}")
    stamp_flush()
    A(f"s_cmp_eq_u32 s{sSEC}, 2\ns_cbranch_scc1 P1_V")
    for isv in (0, 1):
        vm.q = []; lg.q = []
        if isv: A("P1_V:")
        def xread(p):
            for k in range(8 if p < 3 else 4):
                A(f"ds_read_b128 {v(xf(8*p+k), 4)}, v{(VXR if p < 3 else VXS)[k]} offset:{XBUF[p]}"); lg.issue(f"x{p}")
        def wread(ks, hds=range(4)):
            for hd in hds:
                for half in range(2):
                    A(f"ds_read_b64_tr_b16 {v(WF + (ks&1)*16 + hd*4 + half*2, 2)}, v{VWR[ks//14]} offset:{(ks%14)*3584 + half*224 + hd*56}"); lg.issue(f"w{ks}_{hd}")
        def gload():
            A(f"buffer_load_dwordx4 v[16:19], v4, {R(RWS)}, s{sU} offen sc1")
            for kq in range(4): A(f"buffer_load_dwordx4 {v(20+4*kq,4)}, v{5+kq}, {R(RWS)}, s{sV} offen sc1")
        for p in range(4):
            k0, k1 = 8*p, min(8*p + 8, 28)
            if p == 3:
                A(f"v_and_b32 v4, 31, v1\nv_lshlrev_b32 v4, 4, v4\ns_lshl_b32 s{sU}, s{sE}, 9\ns_add_u32 s{sU}, s{sU}, {WS_RST}\ns_lshl_b32 s{sV}, s{sWO}, 2\ns_add_u32 s{sV}, s{sV}, {WS_CSG}")
                A(f"v_min_u32 v5, 55, v1\nv_lshlrev_b32 v5, 4, v5\nv_add_u32 v6, 10752, v5\nv_add_u32 v7, 21504, v5\nv_add_u32 v8, 32256, v5\nv_mov_b32 v9, 0")
            A("s_barrier"); stamp(f"g{p}")
            xread(p); wread(k0, [0, 1, 2])
            if p == 3:
                A(f"buffer_load_dwordx2 {v(TAGV,2)}, v9, {R(RDBG)}, 0 offen sc1"); gload()
            lg.wait(f"x{p}")
            if p < 2: A("s_barrier")
            wread(k0, [3])
            for ks in range(k0, k1):
                x = v(xf(ks), 4)
                for hd in range(4):
                    lg.wait(f"w{ks}_{hd}")
                    w_ = v(WF + (ks&1)*16 + hd*4, 4); acc = v(ACC + 16*hd, 16)
                    A(f"{MFMA} {acc}, {x if isv else w_}, {w_ if isv else x}, {'0' if ks == 0 else acc}")
                    if ks + 1 < k1: wread(ks + 1, [hd])
        stamp("mfma_done")
        A("s_waitcnt vmcnt(5)")
        get_tag(TAGV, f"P1_T{isv}")
        L = A.label("P1_G")
        A(f"s_waitcnt vmcnt(0)")
        tagcheck([16, 20, 24, 28, 32], 96, 97, 98)
        A(f"s_cbranch_vccz {L}_x\nv_and_b32 v4, 31, v1\nv_lshlrev_b32 v4, 4, v4\ns_mov_b32 s{sTO}, 0x8000\n{L}:")
        gload()
        A(f"s_sub_u32 s{sTO}, s{sTO}, 1\ns_waitcnt vmcnt(0)\ns_cbranch_scc1 {L}_x")
        tagcheck([16, 20, 24, 28, 32], 96, 97, 98)
        A(f"s_cbranch_vccnz {L}\n{L}_x:")
        stamp("gran")
        A("v_add_f32 v20, v20, v24\nv_add_f32 v28, v28, v32\nv_add_f32 v22, v22, v26\nv_add_f32 v30, v30, v34\nv_add_f32 v20, v20, v28\nv_add_f32 v21, v22, v30")
        A(f"s_add_u32 s{sT}, s{sM}, 8192\nv_lshl_add_u32 v4, v1, 3, s{sT}\nds_write_b64 v4, v[20:21]\nv_lshrrev_b32 v5, 5, v1\nv_lshl_add_u32 v5, v5, 4, s{sT}")
        PK = 96
        A(f"s_lshl_b32 s{sU}, s{sHQ}, 8\ns_add_u32 s{sU}, s{sU}, s{sE}")
        if not isv:
            for hd in range(4):
                for g in range(4): A(f"ds_read_b128 {v(32+16*hd+4*g,4)}, v5 offset:{hd*112 + g*32}"); lg.issue(f"c{hd}")
            QS = DH ** -0.5 * math.log2(math.e)
            A(f"s_cmp_eq_u32 s{sSEC}, 0\ns_cselect_b32 s{sV}, {fl(QS)}, 1.0\ns_cselect_b32 s{sA}, 0, s{sONES}\ns_cselect_b32 s{sB}, 0, 0x3f80\ns_cselect_b32 s{sC}, {WS_Q}, {WS_KV}")
            A(f"s_add_u32 s{sD_}, s{sSEC}, 11\ns_lshl_b32 s{sU}, s{sU}, s{sD_}\ns_add_u32 s{sU}, s{sU}, s{sC}\ns_lshl_b32 s{sD_}, 64, s{sD_}")
            A(f"v_mul_f32 v16, s{sV}, v16\nv_mul_f32 v18, s{sV}, v18\nv_mov_b32 v8, s{sA}\nv_mov_b32 v9, s{sB}")
            for hd in range(4):
                lg.wait(f"c{hd}")
                c, ac = 32+16*hd, ACC+16*hd
                for r in range(0, 16, 2): A(f"v_pk_mul_f32 {v(c+r,2)}, {v(c+r,2)}, v[16:17] op_sel_hi:[1,0]")
                for r in range(0, 16, 2): A(f"v_pk_fma_f32 {v(ac+r,2)}, {v(ac+r,2)}, v[18:19], {v(c+r,2)} op_sel_hi:[1,0,1]")
                for r in range(8): A(f"v_cvt_pk_bf16_f32 v{PK+8*hd+r}, v{ac+2*r}, v{ac+2*r+1}")
                A(f"v_cndmask_b32 v{PK+8*hd+6}, v{PK+8*hd+6}, v8, s[{sHI}:{sHI+1}]\nv_cndmask_b32 v{PK+8*hd+7}, v{PK+8*hd+7}, v9, s[{sHI}:{sHI+1}]")
                for f in range(2): A(f"v_and_b32 v{PK+8*hd+4*f+3}, 0xfffefffe, v{PK+8*hd+4*f+3}")
                for f in range(2): A(f"buffer_store_dwordx4 {v(PK+8*hd+4*f,4)}, v{VL}, {R(RWS)}, s{sU} offen offset:{f*1024} sc1")
                A(f"s_add_u32 s{sU}, s{sU}, s{sD_}")
        else:
            A(f"v_cndmask_b32 v6, v18, v16, s[{sHI}:{sHI+1}]\nv_lshl_add_u32 v4, v1, 2, s{sT}\nds_write_b32 v4, v6 offset:512")
            A(f"v_and_b32 v6, 31, v1\nv_lshl_add_u32 v4, v6, 2, s{sT}")
            for g in range(4): A(f"ds_read_b128 {v(32+4*g,4)}, v5 offset:{512 + g*32}\nds_read_b128 {v(48+4*g,4)}, v5 offset:{640 + g*32}")
            for hd in range(4): A(f"ds_read_b32 v{24+2*hd}, v4 offset:{hd*112}")
            A(f"s_lshl_b32 s{sU}, s{sU}, 12\ns_add_u32 s{sU}, s{sU}, {WS_KV + 2048}")
            A(f"v_cmp_eq_u32 vcc, 28, v6\nv_mov_b32 v9, s{sONES}\nv_cndmask_b32 v8, 0, v9, vcc\nv_mov_b32 v9, v8")
            for r in range(0, 16, 2): A(f"v_pk_mov_b32 {v(PK+r,2)}, v[8:9], v[8:9]")
            A(f"s_mov_b32 s{sA}, 0x0fffffff\ns_mov_b32 s{sA+1}, 0x0fffffff\ns_waitcnt lgkmcnt(0)")
            for hd in range(4):
                ac = ACC+16*hd; pk = PK + 8*(hd & 1)
                for r in range(0, 16, 2): A(f"v_pk_mul_f32 {v(64+r,2)}, {v(48+r,2)}, {v(24+2*hd,2)} op_sel_hi:[1,0]")
                for r in range(0, 16, 2): A(f"v_pk_fma_f32 {v(ac+r,2)}, {v(ac+r,2)}, {v(32+r,2)}, {v(64+r,2)}")
                A(f"s_mov_b64 exec, s[{sA}:{sA+1}]")
                for r in range(8): A(f"v_cvt_pk_bf16_f32 v{pk+r}, v{ac+2*r}, v{ac+2*r+1}")
                A(f"v_and_b32 v{pk+3}, -2, v{pk+3}\nv_and_b32 v{pk+7}, -2, v{pk+7}\ns_mov_b64 exec, -1")
                for f in range(2): A(f"buffer_store_dwordx4 {v(pk+4*f,4)}, v{VL}, {R(RWS)}, s{sU} offen offset:{f*1024} sc1")
                A(f"s_add_u32 s{sU}, s{sU}, {64*4096}")
        stamp("kvst"); stamp_flush()
        if not isv: A("s_branch P1_DONE")
    A("P1_DONE:")

def tilemax(sreg, T0, T1):
    A(f"v_max3_f32 v{T0}, v{sreg}, v{sreg+1}, v{sreg+2}\nv_max3_f32 v{T1}, v{sreg+3}, v{sreg+4}, v{sreg+5}")
    A(f"v_max3_f32 v{T0}, v{T0}, v{sreg+6}, v{sreg+7}\nv_max3_f32 v{T1}, v{T1}, v{sreg+8}, v{sreg+9}")
    A(f"v_max3_f32 v{T0}, v{T0}, v{sreg+10}, v{sreg+11}\nv_max3_f32 v{T1}, v{T1}, v{sreg+12}, v{sreg+13}")
    A(f"v_max3_f32 v{T0}, v{T0}, v{sreg+14}, v{sreg+15}")
def set_qpad(q, m, T0, T1, T2):
    A(f"v_sub_f32 v{T0}, 0, v{m}\nv_and_b32 v{T1}, 0xffff0000, v{T0}\nv_sub_f32 v{T0}, v{T0}, v{T1}")
    A(f"v_and_b32 v{T2}, 0xffff0000, v{T0}\nv_sub_f32 v{T0}, v{T0}, v{T2}\nv_lshrrev_b32 v{T0}, 16, v{T0}")
    A(f"v_lshrrev_b32 v{T1}, 16, v{T1}\nv_or_b32 v{T1}, v{T1}, v{T2}")
    A(f"v_cndmask_b32 v{q+6}, v{q+6}, v{T1}, s[{sHI}:{sHI+1}]\nv_cndmask_b32 v{q+7}, v{q+7}, v{T0}, s[{sHI}:{sHI+1}]")

XR, IR3 = 224, 232
VRD, VFL, VKV, VONE, VRB, VWO = [240, 241], 242, 243, 244, [246, 247], 248
VO3, VP3, VH, VP4, VG, VP5 = [10, 11], 12, [14, 15], 3, [253, 254], 242
sRO, sGC, sGST, sHFO, sFO, sRT3 = 96, 97, 98, 99, 100, 101
VRW = [249, 250, 251, 252]
def addr_setup():
    tr_lane_addr(4, 5, 128, 4)
    A(f"s_and_b32 s{sT}, s{SW}, 1\ns_lshl_b32 s{sT}, s{sT}, 5\nv_xor_b32 v4, s{sT}, v4")
    A(f"v_bfe_u32 v5, v1, 3, 1\ns_lshr_b32 s{sT}, s{SW}, 1\nv_xor_b32 v5, s{sT}, v5")
    A(f"v_lshl_add_u32 v6, v5, 6, v4\nv_xor_b32 v5, 1, v5\nv_lshl_add_u32 v7, v5, 6, v4")
    A(f"v_add_u32 v{VRD[0]}, s{sW2W}, v6\nv_add_u32 v{VRD[1]}, s{sW2W}, v7")
    A(f"v_mov_b32 v{VONE}, 0x3f80\nv_mov_b32 v{VONE+1}, 1.0")
    A(f"s_lshl_b32 s{sT}, s{sH}, 2\ns_add_u32 s{sT}, s{sT}, s{SW}\ns_lshl_b32 s{sT}, s{sT}, 16\ns_add_u32 s{sT}, s{sT}, {WS_KV}\nv_add_u32 v{VKV}, s{sT}, v{VL}")
    tr_lane_addr(VWO, 4, 64, 4); A(f"v_add_u32 v{VWO}, {RBUF}, v{VWO}\nv_add_u32 v{VRW[0]}, s{sRBW}, v{VL}")
    for t in range(1, 4):
        A(f"s_add_u32 s{sT}, s{SW}, {t}\ns_and_b32 s{sT}, s{sT}, 3\ns_mul_i32 s{sT}, s{sT}, 12288\ns_add_u32 s{sT}, s{sT}, {RBUF}\nv_add_u32 v{VRW[t]}, s{sT}, v{VL}")
    A("v_and_b32 v4, 31, v1\nv_lshrrev_b32 v5, 5, v1\nv_lshlrev_b32 v6, 3, v5\nv_sub_u32 v6, v4, v6")
    for p in range(2):
        for r in range(4):
            A(f"v_cmp_eq_u32 vcc, {16*p+2*r}, v6\nv_cmp_eq_u32 s[{sU}:{sU+1}], {16*p+2*r+1}, v6\nv_cndmask_b32 v{IR3+4*p+r}, 0, v{VONE}, vcc\nv_cndmask_b32 v{IR3+4*p+r}, v{IR3+4*p+r}, v{VONE+1}, s[{sU}:{sU+1}]")
    A("v_mul_u32_u24 v13, 896, v4\nv_lshl_add_u32 v13, v5, 4, v13")
    A(f"s_lshl_b32 s{sB}, s{sR3}, 11\ns_add_u32 s{sB}, s{sB}, {WS_O}\nv_add_u32 v{VO3[0]}, s{sB}, v{VL}\nv_add_u32 v{VO3[1]}, 0x20000, v{VO3[0]}\ns_and_b32 s{sT}, s{sC3}, 7\ns_lshl_b32 s{sRT3}, s{sT}, 18")
    A(f"s_lshl_b32 s{sT}, s{sT}, 1\nv_add_u32 v{VP3}, s{sT}, v1\nv_and_b32 v{VP3}, 15, v{VP3}\nv_lshlrev_b32 v{VP3}, 17, v{VP3}\ns_add_u32 s{sT}, s{sB}, 2044\nv_add_u32 v{VP3}, s{sT}, v{VP3}")
    mlp_addr(RA, 4, 6)
    A(f"s_lshl_b32 s{sFO}, s{sFT}, 2\ns_add_u32 s{sFO}, s{sFO}, s{SW}\ns_mul_i32 s{sT}, s{sDT4}, {2*112*1024}\ns_lshl_b32 s{sU}, s{sFO}, 10\ns_add_u32 s{sT}, s{sT}, s{sU}\ns_add_u32 s{sGST}, s{sT}, {WS_G}")
    A(f"s_lshr_b32 s{sV}, s{SW}, 1\ns_lshl_b32 s{sT}, s{sST}, 1\ns_add_u32 s{sV}, s{sV}, s{sT}\ns_mul_i32 s{sV}, s{sV}, 7\ns_add_u32 s{sV}, s{sV}, s{sDT5}\ns_lshl_b32 s{sV}, s{sV}, 12\ns_and_b32 s{sT}, s{SW}, 1\ns_lshl_b32 s{sT}, s{sT}, 10\ns_add_u32 s{sV}, s{sV}, s{sT}\ns_add_u32 s{sHFO}, s{sV}, {WS_HF}")
    A(f"s_xor_b32 s{sT}, s{SW}, 3\ns_mul_i32 s{sT}, s{sT}, 28672\ns_add_u32 s{sT}, s{sT}, {13*2048}\nv_add_u32 v{VX3}, s{sT}, v{VL}")

class Role: pass
RA, RB = Role(), Role()
C5A = env("C5A", 12)
RA.n, RA.n4, RA.c4, RA.n5, RA.c5, RA.W, RA.slots = "A", 0, 12, 0, C5A, 128, [0, 1, 2, 3, 4, 5]
RA.VRD, RA.VH, RA.VG, RA.VP4, RA.VP5, RA.VT2, RA.T0, RA.T1 = [240, 241], 14, 253, 3, 242, [246, 247], 4, 5
RB.n, RB.n4, RB.c4, RB.n5, RB.c5, RB.W, RB.slots = "B", 12, 20, C5A, 28 - C5A, 96, [12, 6, 7, 8, 9, 10, 11]
RB.VRD, RB.VH, RB.VG, RB.VP4, RB.VP5, RB.VT2, RB.T0, RB.T1 = [0, 3], 4, 5, 8, 9, [6, 7], 12, 13
VX3 = 15
def w2_addr(r, t0, t1):
    A(f"v_lshrrev_b32 v{t0}, 3, v1\nv_bfe_u32 v{t1}, v1, 4, 1\nv_lshlrev_b32 v{t1}, 2, v{t1}\nv_and_b32 v{r.VT2[0]}, 7, v1\nv_xor_b32 v{t1}, v{r.VT2[0]}, v{t1}\nv_lshlrev_b32 v{t1}, 4, v{t1}\nv_lshl_add_u32 v{t0}, v{t0}, 12, v{t1}")
    A(f"s_mul_i32 s{sT}, s{SW}, {448*4096}\ns_lshl_b32 s{sU}, s{sST}, 7\ns_add_u32 s{sT}, s{sT}, s{sU}\nv_add_u32 v{r.VT2[0]}, s{sT}, v{t0}\nv_add_u32 v{r.VT2[1]}, {8*4096 - 1024}, v{r.VT2[0]}")
    rot4(sRO); A(f"s_lshl_b32 s{sRO}, s{sRO}, 10")
    rot5(sGC); A(f"s_lshl_b32 s{sGC}, s{sGC}, 10")
def mlp_addr(r, t0, t1, w2=True):
    if w2: w2_addr(r, t0, t1)
    A(f"s_lshl_b32 s{sT}, s{SW}, 15\ns_add_u32 s{sT}, s{sT}, {WS_HH}\ns_lshl_b32 s{sB}, s{sDT4}, 18\ns_add_u32 s{sB}, s{sB}, s{sT}\nv_add_u32 v{r.VH}, s{sB}, v{VL}")
    A(f"s_add_u32 s{sT}, s{sRO}, {r.n4*1024}\nv_lshl_add_u32 v{r.VP4}, v1, 11, s{sT}\nv_and_b32 v{r.VP4}, 0x7fff, v{r.VP4}\ns_add_u32 s{sT}, s{sB}, 2044\nv_add_u32 v{r.VP4}, s{sT}, v{r.VP4}")
    A(f"s_mul_i32 s{sT}, s{SW}, {28*1024}\ns_add_u32 s{sT}, s{sT}, {WS_G}\ns_mul_i32 s{sB}, s{sDT5}, {2*112*1024}\ns_add_u32 s{sB}, s{sB}, s{sT}")
    A(f"s_and_b32 s{sT}, s{SW}, 1\ns_lshl_b32 s{sT}, s{sT}, 8\nv_xor_b32 v{r.VG}, s{sT}, v{VL}\nv_add_u32 v{r.VG}, s{sB}, v{r.VG}")
    A(f"s_add_u32 s{sT}, s{sGC}, {r.n5*1024}\nv_min_u32 v{t0}, {r.c5 // 2 - 1}, v1\nv_lshl_add_u32 v{r.VP5}, v{t0}, 11, s{sT}\nv_subrev_u32 v{t0}, {28*1024}, v{r.VP5}\nv_min_u32 v{r.VP5}, v{r.VP5}, v{t0}\ns_add_u32 s{sT}, s{sB}, 2044\nv_add_u32 v{r.VP5}, s{sT}, v{r.VP5}")

def p2():
    Q, O, SS, PP, KV = 16, 48, [112, 128], [144, 152], 160
    M = [112, 113, 114, 115]; K0 = 120
    T0, T1, T2, T3 = 4, 5, 6, 7
    sKN = sB
    vm.wait_all(); stamp("kvdrain")
    A(f"s_barrier\ns_cmp_lg_u32 s{SW}, 0\ns_cbranch_scc1 P2_NOF")
    flag_store(sF[0]); flag_store(sF[1]); A("P2_NOF:"); stamp_flush()
    A("P2_START:")
    if env("LOC3", 1):
        A(f"s_getreg_b32 s{sV}, hwreg(HW_REG_XCC_ID, 0, 4)\ns_cmp_lg_u32 s{SW}, 1\ns_cbranch_scc1 P2_NOX")
        A(f"s_lshr_b32 s{sT}, s{sR3}, 2\ns_lshl_b32 s{sT}, s{sT}, 4\ns_add_u32 s{sT}, s{sT}, s{sC3}\ns_lshl_b32 s{sT}, s{sT}, 4\ns_add_u32 s{sT}, s{sT}, {F4}")
        A(f"v_mov_b32 v4, s{sV}\nv_mov_b32 v5, s{sTAG}\nv_mov_b32 v6, s{sV}\nv_mov_b32 v7, s{sTAG+1}\nv_mov_b32 v8, 0\ns_mov_b64 exec, 1\nbuffer_store_dwordx4 v[4:7], v8, {R(RWS)}, s{sT} offen sc1\ns_mov_b64 exec, -1\nP2_NOX:")
    A(f"s_mul_i32 s{sT}, s{sR3}, {32*896}\ns_lshl_b32 s{sU}, s{sC3}, 6\ns_add_u32 s{sT}, s{sT}, s{sU}")
    for p in range(2): A(f"buffer_load_dwordx4 {v(XR+4*p,4)}, v13, {R(RX)}, s{sT} offen offset:{32*p}")
    A(f"s_lshl_b32 s{sV}, s{sI}, 2\ns_add_u32 s{sV}, s{sV}, s{SW}\ns_lshl_b32 s{sU}, s{sH}, 6\ns_add_u32 s{sU}, s{sU}, s{sV}\ns_lshl_b32 s{sU}, s{sU}, 11")
    A(f"s_lshr_b32 s{sT}, s{sH}, 2\ns_lshl_b32 s{sT}, s{sT}, 13\ns_add_u32 s{sT}, s{sT}, {F1}\ns_lshl_b32 s{sA}, s{SW}, 9\ns_add_u32 s{sA}, s{sA}, 2048\ns_lshl_b32 s{sC}, s{sI}, 7")
    A(f"v_and_b32 v7, 3, v1\nv_lshl_add_u32 v7, v7, 7, s{sA}\nv_bfe_u32 v8, v1, 2, 1\nv_lshl_add_u32 v7, v8, 11, v7\nv_writelane_b32 v7, s{sC}, 8")
    poll(7, sT, 9, 8); stamp("s1")
    def kvload(n):
        pre = []
        if n == 0: pre = [f"s_add_u32 s{sA}, s{RWS}, 4096", f"s_addc_u32 s{sA+1}, s{RWS+1}, 0"]
        elif n % 2 == 0: pre = [f"s_add_u32 s{sA}, s{sA}, 8192", f"s_addc_u32 s{sA+1}, s{sA+1}, 0"]
        return pre + [f"global_load_dwordx4 {v(KV+16*(n&3)+4*f,4)}, v{VKV}, s[{sA}:{sA+1}] offset:{(n % 2 - 1)*4096 + f*1024} sc1" for f in range(4)]
    def emit(lines, tag):
        for ln in lines:
            A(ln)
            if ln.startswith("global_"): vm.issue(tag)
    for f in range(2): A(f"buffer_load_dwordx4 {v(Q+4*f,4)}, v{VL}, {R(RWS)}, s{sU} offen offset:{f*1024} sc1"); vm.issue("q")
    emit(kvload(0), "kv0")
    A("s_waitcnt vmcnt(2)"); stamp("qk0")
    A(f"{MFMA} {v(O,16)}, {v(KV,4)}, {v(Q,4)}, 0\n{MFMA} {v(O,16)}, {v(KV+4,4)}, {v(Q+4,4)}, {v(O,16)}")
    emit(kvload(1), "kv1")
    A(f"ds_write_b128 v{VRW[0]}, {v(Q,4)}")
    tilemax(O, T0, T1)
    A(f"v_max_f32 v{T0}, v{T0}, v{T1}\nv_mov_b32 v{T1}, v{T0}\nv_permlane32_swap_b32 v{T0}, v{T1}\nv_max_f32 v{T0}, v{T0}, v{T1}")
    set_qpad(Q, T0, T1, T2, T3)
    A(f"ds_write_b128 v{VRW[0]}, {v(Q+4,4)} offset:1024\ns_waitcnt lgkmcnt(0)")
    emit(kvload(2), "kv2")
    A("s_barrier")
    for t in range(1, 4): A(f"ds_read_b128 {v(Q+8*t,4)}, v{VRW[t]}\nds_read_b128 {v(Q+8*t+4,4)}, v{VRW[t]} offset:1024")
    emit(kvload(3), "kv3")
    if env("APRIO", 0): A(f"s_setprio {env('APRIO', 0)}")
    A("P2_MAIN:")
    slot = lambda idx: (idx + (idx >= 60)) & 3
    pwr = lambda t, g: f"ds_write_b128 v{VRW[t]}, {v(O+16*t+4*g,4)} offset:{(t-1)*4096 + g*1024}"
    def qk(idx, part):
        n, t = idx >> 2, slot(idx); sr = SS[idx & 1]; k = KV + 16*(n & 3)
        return f"{MFMA} {v(sr,16)}, {v(k+4*part,4)}, {v(Q+8*t+4*part,4)}, {'0' if part == 0 else v(sr,16)}"
    def pv(idx, part):
        n, t = idx >> 2, slot(idx); k = KV + 16*(n & 3) + 8; o = O + 16*t
        return f"{MFMA} {v(o,16)}, {v(k+4*part,4)}, {v(PP[idx&1]+4*part,4)}, {'0' if (n == 0 and part == 0) else v(o,16)}"
    NI = 64
    A(qk(0, 0)); A(qk(0, 1)); A("s_waitcnt lgkmcnt(0)")
    for idx in range(NI):
        n, t = idx >> 2, idx & 3
        if idx in (16, 32, 48): stamp(f"a{idx}")
        side = [[], [], [], []]
        if t in (1, 2) and 1 <= n < 13:
            l = kvload(n + 3); pre, ld = l[:-4], l[-4:]
            side = [pre[:1], pre[1:], ld[0:1], ld[1:2]] if t == 1 else [ld[2:3], ld[3:4], [], []]
        if idx == 62: side = [[], [pwr(1, 0)], [pwr(1, 1)], [pwr(1, 2)]]
        if idx == 63: side = [[], [pwr(2, 0), pwr(2, 1)], [], [pwr(2, 2)]]
        if idx == env("CUTAT", 61): side[0].append(f"ds_write_b32 v{VRW[1]}, v{VONE} offset:3072")
        mf = [qk(idx+1, 0) if idx+1 < NI else None, pv(idx-1, 0) if idx > 0 else None,
              qk(idx+1, 1) if idx+1 < NI else None, pv(idx-1, 1) if idx > 0 else None]
        sr, p = SS[idx & 1], PP[idx & 1]
        for q in range(4):
            if mf[q]: A(mf[q])
            emit(side[q], f"kv{n+3}")
            if idx == 0 and q == 2: vm.wait("kv0")
            if t == 2 and q == 3 and n + 1 < 16: vm.wait(f"kv{n+1}")
            for j in range(4): A(f"v_exp_f32 v{sr+4*q+j}, v{sr+4*q+j}")
            if q > 0:
                for j in range(2): A(f"v_cvt_pk_bf16_f32 v{p+2*(q-1)+j}, v{sr+4*(q-1)+2*j}, v{sr+4*(q-1)+2*j+1}")
        for j in range(2): A(f"v_cvt_pk_bf16_f32 v{p+6+j}, v{sr+12+2*j}, v{sr+12+2*j+1}")
    A(pv(NI-1, 0)); A(pv(NI-1, 1)); stamp("aend")
    for g in range(3): A(pwr(3, g))
    A(f"s_mov_b32 s{sT}, {fl(2.0**30)}")
    A(f"v_cmp_nlt_f32 s[{sA}:{sA+1}], v{O+60}, s{sT}\nv_cmp_nlt_f32 s[{sC}:{sC+1}], v{O+28}, s{sT}\ns_or_b32 s{sU}, s{sA+1}, s{sC+1}")
    A(f"v_cmp_nlt_f32 s[{sA}:{sA+1}], v{O+44}, s{sT}\nv_cmp_nlt_f32 s[{sC}:{sC+1}], v{O+12}, s{sT}\ns_or_b32 s{sU}, s{sU}, s{sA+1}\ns_or_b32 s{sU}, s{sU}, s{sC+1}")
    A(f"s_cselect_b32 s{sU}, 1.0, 0\nv_mov_b32 v{T0}, s{sU}")
    for t in range(4): A(f"v_cndmask_b32 v{O+16*t+13}, v{O+16*t+13}, v{T0}, s[{sHI}:{sHI+1}]")
    for t in range(1, 4): A(f"ds_write_b128 v{VRW[t]}, {v(O+16*t+12,4)} offset:{(t-1)*4096 + 3*1024}")
    A(f"s_lshl_b32 s{sD_}, s{sI}, 2\ns_add_u32 s{sD_}, s{sD_}, s{SW}\ns_lshl_b32 s{sV}, s{sH}, 6\ns_add_u32 s{sV}, s{sV}, s{sD_}\ns_lshl_b32 s{sV}, s{sV}, 11\ns_add_u32 s{sV}, s{sV}, {WS_O}")
    A("s_waitcnt lgkmcnt(0)\ns_barrier")
    for g in (3, 0, 1, 2):
        for t in range(1, 4): A(f"ds_read_b128 {v(O+16*t+4*g,4)}, v{VRW[0]} offset:{(t-1)*4096 + g*1024}")
    def red(g):
        for r in (4*g, 4*g+2):
            A(f"v_pk_add_f32 {v(O+r,2)}, {v(O+r,2)}, {v(O+16+r,2)}\nv_pk_add_f32 {v(O+32+r,2)}, {v(O+32+r,2)}, {v(O+48+r,2)}")
        for r in (4*g, 4*g+2): A(f"v_pk_add_f32 {v(O+r,2)}, {v(O+r,2)}, {v(O+32+r,2)}")
    A("s_waitcnt lgkmcnt(9)"); red(3)
    A(f"v_readlane_b32 s{sT}, v{O+13}, 32\nv_mov_b32 v{T0}, v{O+12}\nv_mov_b32 v{T2}, v{O+12}\nv_permlane32_swap_b32 v{T0}, v{T2}\nv_rcp_f32 v{T2}, v{T2}")
    A(f"s_cmp_lg_u32 s{sT}, s{sRETRY}\ns_cbranch_scc1 P2_FALL\nP2_FIN:")
    for k, g in enumerate((0, 1, 2)):
        A(f"s_waitcnt lgkmcnt({6 - 3*k})"); red(g)
    for r in range(0, 16, 2): A(f"v_pk_mul_f32 {v(O+r,2)}, {v(O+r,2)}, {v(T2,2)} op_sel_hi:[1,0]")
    for r in range(8): A(f"v_cvt_pk_bf16_f32 v{O+16+r}, v{O+2*r}, v{O+2*r+1}")
    A(f"v_cndmask_b32 v{O+22}, v{O+22}, 0, s[{sHI}:{sHI+1}]\nv_cndmask_b32 v{O+23}, v{O+23}, 0, s[{sHI}:{sHI+1}]")
    A(f"s_mov_b32 s{sT}, 0xfffeffff\nv_and_or_b32 v{O+19}, v{O+19}, s{sT}, 1\nv_and_or_b32 v{O+23}, v{O+23}, s{sT}, 1")
    for f in range(2): A(f"buffer_store_dwordx4 {v(O+16+4*f,4)}, v{VL}, {R(RWS)}, s{sV} offen offset:{f*1024} sc1")
    stamp("ost")
    if STAMP and env("ACK", 0): A("s_waitcnt vmcnt(0)"); stamp("oack")
    stamp_flush()
    A("s_barrier")
    def fallback():
        A(f"P2_FALL:\ns_cmp_lg_u32 s{sRETRY}, 0\ns_cbranch_scc1 P2_FIN")
        A(f"s_mov_b32 s{sRETRY}, -1\ns_waitcnt vmcnt(0) lgkmcnt(0)")
        for t in range(4):
            A(f"v_cndmask_b32 v{Q+8*t+6}, v{Q+8*t+6}, 0, s[{sHI}:{sHI+1}]\nv_cndmask_b32 v{Q+8*t+7}, v{Q+8*t+7}, 0, s[{sHI}:{sHI+1}]\nv_mov_b32 v{M[t]}, 0xff800000")
        A(f"s_mov_b32 s{sU}, 0\nP2_MAXLOOP:")
        for f in range(2): A(f"buffer_load_dwordx4 {v(K0+4*f,4)}, v{VKV}, {R(RWS)}, s{sU} offen offset:{f*1024} sc1")
        A("s_waitcnt vmcnt(0)")
        for t in range(4):
            A(f"{MFMA} {v(O+16*t,16)}, {v(K0,4)}, {v(Q+8*t,4)}, 0\n{MFMA} {v(O+16*t,16)}, {v(K0+4,4)}, {v(Q+8*t+4,4)}, {v(O+16*t,16)}")
        for t in range(4):
            tilemax(O+16*t, T0, T1); A(f"v_max3_f32 v{M[t]}, v{M[t]}, v{T0}, v{T1}")
        A(f"s_add_u32 s{sU}, s{sU}, 4096\ns_cmp_lt_u32 s{sU}, {16*4096}\ns_cbranch_scc1 P2_MAXLOOP")
        A(f"s_barrier\nv_and_b32 v{T3}, 31, v1\nv_lshlrev_b32 v{T3}, 4, v{T3}")
        for t in range(4):
            A(f"v_mov_b32 v{T2}, v{M[t]}\nv_permlane32_swap_b32 v{M[t]}, v{T2}\nv_max_f32 v{M[t]}, v{M[t]}, v{T2}")
            A(f"s_add_u32 s{sT}, s{SW}, {t}\ns_and_b32 s{sT}, s{sT}, 3\ns_lshl_b32 s{sT}, s{sT}, 9\ns_add_u32 s{sT}, s{sT}, {RBUF}\ns_lshl_b32 s{sU}, s{SW}, 2\ns_add_u32 s{sU}, s{sU}, s{sT}")
            A(f"v_add_u32 v{K0+t}, s{sT}, v{T3}\nv_add_u32 v{T2}, s{sU}, v{T3}\nds_write_b32 v{T2}, v{M[t]}")
        A("s_waitcnt lgkmcnt(0)\ns_barrier")
        for t in range(4): A(f"ds_read_b128 {v(O+4*t,4)}, v{K0+t}")
        for n in range(4):
            for ln in kvload(n): A(ln)
        A("s_waitcnt vmcnt(0) lgkmcnt(0)\ns_barrier")
        for t in range(4):
            A(f"v_max3_f32 v{M[t]}, v{O+4*t}, v{O+4*t+1}, v{O+4*t+2}\nv_max_f32 v{M[t]}, v{M[t]}, v{O+4*t+3}")
            set_qpad(Q+8*t, M[t], T0, T1, T2)
        A("s_branch P2_MAIN")
    return fallback

def p3():
    EP = env("EP", 0)
    D1, D2, TF = 96, 112, 80 if EP else 176
    ofr = (lambda ks: 16 + 4*(ks & 15)) if EP else (lambda ks: 16 + 4*ks if ks < 20 else 128 + 4*(ks - 20))
    T0, T1, T2, T3 = 8, 9, 4, 5
    A(f"{MFMA} {v(D1,16)}, {v(XR,4)}, {v(IR3,4)}, 0\n{MFMA} {v(D2,16)}, {v(IR3,4)}, {v(XR,4)}, 0")
    A(f"{MFMA} {v(D1,16)}, {v(XR+4,4)}, {v(IR3+4,4)}, {v(D1,16)}\n{MFMA} {v(D2,16)}, {v(IR3+4,4)}, {v(XR+4,4)}, {v(D2,16)}")
    for sl in range(1, 4):
        A(f"s_xor_b32 s{sU}, s{SW}, {sl}\ns_mul_i32 s{sU}, s{sU}, 12288\ns_add_u32 s{sU}, s{sU}, {RBUF}\nv_add_u32 v{VRW[sl]}, s{sU}, v{VL}")
    A(f"s_barrier\ns_cmp_lt_u32 s{sC3}, 14\ns_cbranch_scc0 P3_END")
    vm.q = []; lg.q = []
    so = Stream("SO", 8, lambda g: [(ofr(4*g+k), VO3[k >> 1], (k & 1)*1024) for k in range(4)],
                lambda g: A(f"s_add_u32 s{sT}, s{sRT3}, {g << 18}\ns_and_b32 s{sT}, s{sT}, 0x1fffff"), T0, 1, VP3, T1)
    NPRE = env("NPRE", 4)
    if env("LOC3", 1):
        A(f"s_lshr_b32 s{sT}, s{sR3}, 2\ns_lshl_b32 s{sT}, s{sT}, 8\ns_add_u32 s{sT}, s{sT}, {F4}\nv_min_u32 v6, 13, v1\nv_lshlrev_b32 v6, 4, v6\nbuffer_load_dwordx4 {v(192,4)}, v6, {R(RWS)}, s{sT} offen sc1")
    stamp("p3pre")
    for m in range(NPRE): so.issue(m)
    stamp("p3gate")
    def wread(ks):
        n, p = ks >> 1, ks & 1
        for half in range(2):
            A(f"ds_read_b64_tr_b16 {v(TF+4*(ks&3)+2*half,2)}, v{VWO} offset:{(n>>2)*12288 + (n&3)*2048 + (16*p+8*half)*64}"); lg.issue(f"w{ks}")
    wread(0); wread(1)
    A("v_and_b32 v6, 31, v1\nv_lshlrev_b32 v6, 4, v6\nv_lshrrev_b32 v7, 5, v1\nv_mul_u32_u24 v7, 3584, v7\nv_add_u32 v6, v6, v7")
    so.check1(0); so.check2(0)
    if env("LOC3", 1):
        A(f"s_getreg_b32 s{sV}, hwreg(HW_REG_XCC_ID, 0, 4)\nv_xor_b32 v192, s{sV}, v192\nv_xor_b32 v193, s{sTAG}, v193\nv_xor_b32 v194, s{sV}, v194\nv_xor_b32 v195, s{sTAG+1}, v195")
        A(f"v_or3_b32 v192, v192, v193, v194\nv_or_b32 v192, v192, v195\nv_cmp_ne_u32 vcc, 0, v192\ns_or_b32 s{sE}, vcc_lo, vcc_hi")
    for ks in range(32):
        lg.wait(f"w{ks}")
        if ks in (0, 16): stamp(f"p3_{ks}")
        o, wv = v(ofr(ks), 4), v(TF+4*(ks&3), 4)
        A(f"{MFMA} {v(D2,16)}, {wv}, {o}, {v(D2,16)}")
        if ks + 2 < 32: wread(ks + 2)
        A(f"{MFMA} {v(D1,16)}, {o}, {wv}, {v(D1,16)}")
        if ks % 4 < 2:
            for k in range(2): so.issue_part(NPRE + ks//4, 2*(ks % 4) + k)
        if ks % 4 == 2: so.check1(ks//4 + 1)
        if ks % 4 == 3: so.check2(ks//4 + 1)
    stamp("p3mm")
    G = 16
    A(f"s_lshl_b32 s{sB}, s{sR3}, 13\ns_add_u32 s{sB}, s{sB}, {WS_ST}\ns_lshl_b32 s{sT}, s{sC3}, 9\ns_add_u32 s{sT}, s{sT}, s{sB}")
    A(f"v_mov_b32 v{G+1}, s{sTAG}\nv_mov_b32 v{G+3}, s{sTAG+1}")
    A(f"v_pk_add_f32 v[20:21], {v(D2,2)}, {v(D2+2,2)}\nv_pk_mul_f32 v[22:23], {v(D2,2)}, {v(D2,2)}\nv_pk_fma_f32 v[22:23], {v(D2+2,2)}, {v(D2+2,2)}, v[22:23]")
    for r in range(4, 16, 2): A(f"v_pk_add_f32 v[20:21], v[20:21], {v(D2+r,2)}\nv_pk_fma_f32 v[22:23], {v(D2+r,2)}, {v(D2+r,2)}, v[22:23]")
    A(f"v_add_f32 v{G}, v20, v21\nv_add_f32 v{G+2}, v22, v23")
    A(f"v_mov_b32 v20, v{G}\nv_mov_b32 v22, v{G+2}\nv_permlane32_swap_b32 v{G}, v20\nv_permlane32_swap_b32 v{G+2}, v22\nv_add_f32 v{G}, v{G}, v20\nv_add_f32 v{G+2}, v{G+2}, v22")
    set_exec(0xFFFFFFFF)
    if env("LOC3", 1):
        A(f"s_cmp_lg_u32 s{sE}, 0\ns_cbranch_scc1 P3_FAR\nbuffer_store_dwordx4 {v(G,4)}, v{VL}, {R(RWS)}, s{sT} offen\nP3_FARX:\ns_mov_b64 exec, -1")
        handlers.append(lambda: A(f"P3_FAR:\nbuffer_store_dwordx4 {v(G,4)}, v{VL}, {R(RWS)}, s{sT} offen sc1\ns_branch P3_FARX"))
    else: A(f"buffer_store_dwordx4 {v(G,4)}, v{VL}, {R(RWS)}, s{sT} offen sc1\ns_mov_b64 exec, -1")
    GR = 32
    def gl():
        for k in range(7): A(f"buffer_load_dwordx4 {v(GR+4*k,4)}, v6, {R(RWS)}, s{sB} offen offset:{k*512} sc1")
    for r in range(8): A(f"v_cvt_pk_bf16_f32 v{24+r}, v{D2+2*r}, v{D2+2*r+1}")
    A(f"s_mul_i32 s{sT}, s{sR3}, 14\ns_add_u32 s{sT}, s{sT}, s{sC3}\ns_lshl_b32 s{sT}, s{sT}, 11\ns_add_u32 s{sT}, s{sT}, {WS_HF}")
    if env("S3W", 0): A("s_waitcnt vmcnt(0)")
    stamp("s3pre")
    gl()
    for p in range(2): A(f"buffer_store_dwordx4 {v(24+4*p,4)}, v{VL}, {R(RWS)}, s{sT} offen offset:{p*1024} sc1")
    A("s_waitcnt vmcnt(2)")
    tagcheck([GR+4*k for k in range(7)], T1, T2, T3)
    A("s_cbranch_vccnz P3_GH\nP3_GX:")
    def gh():
        A(f"P3_GH:\ns_mov_b32 s{sTO}, 0x8000\nP3_GL:"); gl()
        A(f"s_sub_u32 s{sTO}, s{sTO}, 1\ns_waitcnt vmcnt(0)\ns_cbranch_scc1 P3_GX")
        tagcheck([GR+4*k for k in range(7)], T1, T2, T3)
        A("s_cbranch_vccnz P3_GL\ns_branch P3_GX")
    handlers.append(gh)
    vm.q = []
    stamp("s3")
    for k in range(1, 7): A(f"v_add_f32 v{GR}, v{GR}, v{GR+4*k}\nv_add_f32 v{GR+2}, v{GR+2}, v{GR+4*k+2}")
    m, q = GR, GR+2
    A(f"v_mov_b32 v{T0}, v{m}\nv_mov_b32 v{T1}, v{q}\nv_permlane32_swap_b32 v{m}, v{T0}\nv_permlane32_swap_b32 v{q}, v{T1}\nv_add_f32 v{m}, v{m}, v{T0}\nv_add_f32 v{q}, v{q}, v{T1}")
    A(f"v_mul_f32 v{m}, {fl(1.0/D)}, v{m}\nv_mul_f32 v{q}, {fl(1.0/D)}, v{q}\nv_fma_f32 v{q}, -v{m}, v{m}, v{q}\nv_max_f32 v{q}, 0, v{q}")
    A(f"v_add_f32 v{T0}, {fl(EPS)}, v{q}\nv_mul_f32 v{T0}, {fl(EPS)}, v{T0}\nv_add_f32 v{q}, v{q}, v{T0}\nv_rsq_f32 v{q}, v{q}\ns_add_u32 s{sT}, s{sRBW}, 8192\nv_mul_f32 v{m}, v{m}, v{q}")
    A(f"v_cndmask_b32 v{T0}, v{q}, v{m}, s[{sHI}:{sHI+1}]\nv_lshl_add_u32 v{T1}, v1, 2, s{sT}\nds_write_b32 v{T1}, v{T0}")
    A(f"v_lshrrev_b32 v{T2}, 5, v1\nv_lshl_add_u32 v{T2}, v{T2}, 4, s{sT}")
    for g in range(4): A(f"ds_read_b128 {v(64+4*g,4)}, v{T2} offset:{g*32}\nds_read_b128 {v(80+4*g,4)}, v{T2} offset:{128+g*32}")
    A(f"s_lshl_b32 s{sT}, s{sC3}, 17\ns_lshl_b32 s{sU}, s{sR3}, 11\ns_add_u32 s{sT}, s{sT}, s{sU}\ns_add_u32 s{sT}, s{sT}, {WS_HH}")
    for p in range(2):
        A(f"s_waitcnt lgkmcnt({4 - 4*p})")
        for r in range(8*p, 8*p+8, 2): A(f"v_pk_fma_f32 {v(D1+r,2)}, {v(D1+r,2)}, {v(64+r,2)}, {v(80+r,2)} neg_lo:[0,0,1] neg_hi:[0,0,1]")
        for r in range(4*p, 4*p+4): A(f"v_cvt_pk_bf16_f32 v{16+r}, v{D1+2*r}, v{D1+2*r+1}")
        A(f"v_or_b32 v{19+4*p}, 0x10000, v{19+4*p}")
        if p == 0: A("s_waitcnt vmcnt(0)")
        A(f"buffer_store_dwordx4 {v(16+4*p,4)}, v{VL}, {R(RWS)}, s{sT} offen offset:{p*1024} sc1")
    stamp("hhst")
    if STAMP and env("ACK", 0): A("s_waitcnt vmcnt(0)"); stamp("hhack")
    stamp_flush()
    A("P3_END:")
    preread()
    A("s_waitcnt lgkmcnt(0)\ns_barrier")
    if env("X1B", 1): A("s_barrier")
    vm.q = []; lg.q = []

ACC, RING, TMP = 16, 48, 96
def wread_step(r, m, slot, tag=None):
    for ti in range(2):
        for half in range(2):
            A(f"ds_read_b64_tr_b16 {v(r.W + 8*m + ti*4 + half*2, 2)}, v{r.VRD[ti]} offset:{slot*2048 + half*1024}")
            if tag is not None: lg.issue(tag)
def unswap(r): A(f"s_and_b32 s{sT}, s{SW}, 1\ns_lshl_b32 s{sT}, s{sT}, 5\nv_xor_b32 v{r.VRD[0]}, s{sT}, v{r.VRD[0]}\nv_xor_b32 v{r.VRD[1]}, s{sT}, v{r.VRD[1]}")
def preread():
    for n in range(RA.c4): wread_step(RA, n, n)
    unswap(RA)
def w2soff(n): A(f"s_add_u32 s{sA}, s{sGC}, {n*1024}\ns_sub_u32 s{sB}, s{sA}, {28*1024}\ns_min_u32 s{sA}, s{sA}, s{sB}\ns_lshl_b32 s{sA}, s{sA}, 6")
def w2dma(r, m):
    w2soff(r.n5 + m)
    A(f"s_add_u32 m0, s{sW2W}, {r.slots[m % len(r.slots)]*2048}")
    for j in range(2): A(f"buffer_load_dwordx4 v{r.VT2[j]}, {R(RW2)}, s{sA} offen offset:{j*1024} lds"); vm.issue(("d", m))
def w2read(r, m):
    vm.wait(("d", m)); wread_step(r, m, r.slots[m % len(r.slots)], ("r", m))

def mlp(r, VDR=None, VDW=None):
    isA = r is RA
    N, L = r.n, len(r.slots)
    BR, B2R, VO, IR, HR = 6, 10, 12, 224, 228
    G4, G5 = r.c4 // 4, r.c5 // 4
    dreg = lambda t, k: RING + (t % 3)*16 + 4*k
    def pw(q, j):
        if isA: return f"ds_write_b128 v{VRW[0]}, {v(ACC+8*q+4*j,4)} offset:{(q-1)*2048 + j*1024}"
        return f"ds_write_b128 v{VDR if q < 3 else VDW}, {v(ACC+8*q+4*j,4)} offset:{(6144 + q*2048 if q < 3 else 13*2048) + j*1024}"
    def add(d, a_, b_, pk):
        if pk:
            for k in range(0, 4, 2): A(f"v_pk_add_f32 {v(d+k,2)}, {v(a_+k,2)}, {v(b_+k,2)}")
        else:
            for k in range(4): A(f"v_add_f32 v{d+k}, v{a_+k}, v{b_+k}")
    OWN = 232
    def gather(pk, wide):
        src = lambda j: [(VRW[q], (q-1)*2048 + j*1024) for q in range(1, 4)] + [(VRW[q], 6144 + q*2048 + j*1024) for q in range(3)] + [(VX3, j*1024)]
        base = [TMP, ACC if wide else TMP]
        def rd(j):
            for k, (va, off) in enumerate(src(j)): A(f"ds_read_b128 {v(base[j]+4*k,4)}, v{va} offset:{off}")
        def sm(j):
            b, o = base[j], OWN + 4*j
            add(b, b, b+4, pk); add(b+8, b+8, b+12, pk); add(b+16, b+16, b+20, pk); add(o, o, b+24, pk)
            add(b, b, b+8, pk); add(o, o, b+16, pk); add(o, o, b, pk)
        if wide: rd(0); rd(1); A("s_waitcnt lgkmcnt(7)"); sm(0); A("s_waitcnt lgkmcnt(0)"); sm(1)
        else:
            for j in range(2): rd(j); A("s_waitcnt lgkmcnt(0)"); sm(j)
    def p5setup():
        A(f"v_and_b32 v6, 31, v1\nv_lshrrev_b32 v7, 5, v1\nv_mul_u32_u24 v{VO}, 896, v6\nv_lshl_add_u32 v{VO}, v7, 4, v{VO}\ns_lshr_b32 s{sA}, s{SW}, 1\ns_lshl_b32 s{sB}, s{sST}, 1\ns_add_u32 s{sA}, s{sA}, s{sB}")
        A(f"s_mul_i32 s{sE}, s{sA}, {32*896}\ns_lshl_b32 s{sB}, s{sDT5}, 7\ns_add_u32 s{sE}, s{sE}, s{sB}\ns_and_b32 s{sB}, s{SW}, 1\ns_lshl_b32 s{sB}, s{sB}, 5\ns_add_u32 s{sE}, s{sE}, s{sB}")
        A(f"s_lshl_b32 s{sA}, s{sA}, 6\nv_lshlrev_b32 v8, 1, v6\nbuffer_load_ushort v{B2R}, v8, {R(RB2)}, s{sA} offen\nv_lshlrev_b32 v7, 2, v7\nv_sub_u32 v6, v6, v7")
        for k in range(4):
            d0 = 8*(k >> 1) + 2*(k & 1)
            A(f"v_cmp_eq_u32 s[{sA}:{sA+1}], {d0}, v6\nv_cmp_eq_u32 s[{sC}:{sC+1}], {d0+1}, v6\nv_cndmask_b32 v{IR+k}, 0, v{VONE}, s[{sA}:{sA+1}]\nv_cndmask_b32 v{IR+k}, v{IR+k}, v{VONE+1}, s[{sC}:{sC+1}]")
    mk5 = lambda nm: Stream(nm + N, 2*G5, lambda g: [(dreg(2*G4 + g, k), r.VG, k*1024) for k in range(4)],
                lambda g: A(f"s_add_u32 s{sT}, s{sGC}, {(r.n5 + (g % G5)*4)*1024}\ns_sub_u32 s{sU}, s{sT}, {28*1024}\ns_min_u32 s{sT}, s{sT}, s{sU}" + (f"\ns_add_u32 s{sT}, s{sT}, {112*1024}" if g >= G5 else "")),
                r.T0, 1, r.VP5, r.T1, lambda g: (1 << 2*G5) - 1, G5)
    NP5 = min(3, G5)
    DB0 = env("DB0", 4)
    R2E, NE3 = env("R2E", 0), max(0, r.c5 - 2*L)
    A(f"s_cmp_lg_u32 s{sACT4}, 0\ns_cbranch_scc1 P4_GO{N}\ns_cmp_ge_u32 s{sJ}, 28\ns_cbranch_scc1 MLP_END{N}")
    q0 = list(vm.q); lg.q = []
    A("s_waitcnt lgkmcnt(0)\ns_barrier")
    if not isA and env("DL", 0) == 2:
        for m in range(1, 7): w2dma(r, m)
    for m in range(L): w2read(r, m)
    lg.wait_all()
    for m in range(L, min(2*L, r.c5)): w2dma(r, m)
    if R2E and NE3:
        for m in range(L, L + NE3): w2read(r, m)
        lg.wait_all()
        for m in range(2*L, r.c5): w2dma(r, m)
    si = mk5("SI")
    if isA: p5setup()
    for g in range(G5): si.gate(g)
    si.gated = 0
    for g in range(NP5): si.issue(g)
    ER = {2: env("ER2", -1), 3: env("ER3", -1)}
    RL = env("RL", 1)
    if isA and ER[2] >= 0: A("s_barrier")
    A(f"s_branch P5_IN{N}\nP4_GO{N}:")
    vm.q = q0; lg.q = []
    sg = mk5("SG"); sg.gated = 0
    A(f"s_mov_b32 s{sV}, 0x10000")
    if isA:
        A(f"s_lshl_b32 s{sA}, s{sFO}, 5\nv_lshrrev_b32 v{r.T0}, 5, v1\nv_lshlrev_b32 v{r.T0}, 3, v{r.T0}")
        for g in range(2): A(f"buffer_load_dwordx2 {v(BR+2*g,2)}, v{r.T0}, {R(RB1)}, s{sA} offen offset:{g*16}")
        if env("ACKW", 0): A("s_waitcnt vmcnt(0)")
    sh = Stream("SH" + N, 2*G4, lambda g: [(dreg(g, k), r.VH, k*1024) for k in range(4)],
                lambda g: A(f"s_add_u32 s{sT}, s{sRO}, {(r.n4 + (g % G4)*4)*1024}\ns_and_b32 s{sT}, s{sT}, 0x7fff" + (f"\ns_bitset1_b32 s{sT}, 17" if g >= G4 else "")),
                r.T0, f"s{sV}", r.VP4, r.T1, lambda g: (1 << 2*G4) - 1, G4)
    seq = [(sh, g) for g in range(2*G4)] + [(sg, g) for g in range(2*G5)]
    first = [0, G4, 2*G4, 2*G4 + G5, len(seq)]
    RA5 = env("RA5", 2)
    late = {2} if RA5 == 1 else ({2} | ({3} if isA else set()) if RA5 == 2 else {2, 3})
    issued = set()
    stamp("p4pre" + N)
    for g in range(3): sh.issue(g); issued.add(g)
    sh.check1(0); sh.check2(0)
    c1 = -2.0*math.sqrt(2.0/math.pi)*math.log2(math.e); c2 = c1*0.044715
    def compute(H):
        ph, hf = H >> 1, H & 1
        ns = (r.c4, r.c5)[ph]
        nm = f"p{4+ph}"
        if H == 2: A(f"P5_IN{N}:")
        if H in late: seq[first[H]][0].check1(seq[first[H]][1]); seq[first[H]][0].check2(seq[first[H]][1])
        if ph and isA:
            A(f"buffer_load_dwordx4 {v(HR,4)}, v{VL}, {R(RWS)}, s{sHFO} offen offset:{hf*2048} sc1"); vm.issue("h")
        if H == 2 and isA:
            for m in range(L, r.c5): wread_step(r, m, r.slots[m % L], ("r", m))
        stamp(f"{nm}first{hf}" + N)
        for t in range(first[H], first[H+1]):
            n0 = 4*(t - first[H])
            stamp(f"t{N}{t}")
            tail = not isA and t == first[H+1] - 1
            head = not isA and t == first[H] and H > 0 and H not in late
            order = [(k, ti) for ti in (1, 0) for k in range(4)] if (tail or head) else [(k, ti) for k in range(4) for ti in (0, 1)]
            nxt = t + 2
            can = nxt < len(seq) and nxt not in issued and not (nxt >= first[H+1] and H + 1 in late)
            for sl, (k, ti) in enumerate(order):
                n = n0 + k
                if not isA and H > 0 and (t, sl) == ((first[2] - 2, 0) if H == 1 else ((first[H] + ER[H], 0) if ER[H] >= 0 else (first[H+1] - 1, 4))): A("s_barrier")
                if H == 2: lg.wait(("r", n))
                if head and sl == 4: A("s_waitcnt lgkmcnt(0)\ns_barrier"); lg.q = []
                acc = v(ACC + 16*ti, 16); w_, d_ = v(r.W + 8*n + 4*ti, 4), v(dreg(t, k), 4)
                A(f"{MFMA} {acc}, {d_ if ph else w_}, {w_ if ph else d_}, {'0' if n == 0 else acc}")
                if head and sl < 4: A(pw(sl >> 1, sl & 1))
                if tail and sl >= 4: A(pw(2 + ((sl - 4) >> 1), sl & 1))
                if can and sl < 4: seq[nxt][0].issue_part(seq[nxt][1], sl)
                if t + 1 < len(seq) and not (t + 1 == first[H+1] and H + 1 in late):
                    if sl == 5: seq[t+1][0].check1(seq[t+1][1])
                    if sl == 6: seq[t+1][0].check2(seq[t+1][1])
                done = (ti == 0) if (tail or head) else (ti == 1)
                if H == 1 and done:
                    if n < L: w2read(r, n)
                    if not isA and DB0 <= n < DB0 + L: lg.wait(("r", n - DB0)); w2dma(r, n - DB0 + L)
                    if not isA and R2E:
                        if R2E <= n < R2E + NE3: w2read(r, n - R2E + L)
                        if R2E + 1 <= n < R2E + 1 + NE3: lg.wait(("r", n - R2E - 1 + L)); w2dma(r, n - R2E - 1 + 2*L)
                if H == 0 and not isA and done and env("DL", 0) == 2 and n % 3 == 2 and n < 18: w2dma(r, 1 + n // 3)
                if H == 2 and not isA and done:
                    if L + (NE3 if R2E else 0) <= n + 4 < 2*L: w2read(r, n + 4)
                    if not R2E and 2*L <= n + 10 < r.c5: lg.wait(("r", n + 3)); w2dma(r, n + 10)
                    if 2*L <= n + 4 < r.c5: w2read(r, n + 4)
            if can: issued.add(nxt)
        if ph and isA:
            vm.wait("h")
            A(f"{MFMA} {v(ACC,16)}, {v(IR,4)}, {v(HR,4)}, {v(ACC,16)}")
        stamp(f"{nm}mm{hf}" + N)
    def late_issue(H):
        for t in range(first[H], min(first[H] + 3, first[H+1])): seq[t][0].issue(seq[t][1]); issued.add(t)
    def partials(H):
        if H == 1 or (H > 1 and ER[H] < 0): A("s_barrier")
        for q in (2, 3, 1):
            for j in range(2): A(pw(q, j))
        if H < 2:
            for j in range(4): A(f"v_lshlrev_b32 v{TMP}, 16, v{BR+j}\nv_and_b32 v{TMP+1}, 0xffff0000, v{BR+j}\nv_add_f32 v{OWN+2*j}, v{ACC+2*j}, v{TMP}\nv_add_f32 v{OWN+2*j+1}, v{ACC+2*j+1}, v{TMP+1}")
        else:
            if H == 2: A(f"v_lshlrev_b32 v{B2R}, 16, v{B2R}")
            for k in range(8): A(f"v_add_f32 v{OWN+k}, v{ACC+k}, v{B2R}")
    def epilogue(H):
        ph, hf = H >> 1, H & 1
        A("s_waitcnt lgkmcnt(0)\ns_barrier"); lg.q = []
        stamp(f"red{4+ph}{hf}")
        LI = env("LI", 1) if H == 1 else 0
        if (H == 1 or (H == 2 and not RA5)) and LI == 0: late_issue(H + 1)
        if env("PRIO", 1): A("s_setprio 2")
        gather(H == 3, H & 1 or (H == 2 and not RA5))
        if ph == 0:
            A(f"s_mov_b32 s{sA}, {fl(c2)}\nv_mov_b32 v{TMP}, {fl(c1)}")
            E = TMP + 8
            for k in range(8): A(f"v_mul_f32 v{E+k}, v{OWN+k}, v{OWN+k}")
            for k in range(8): A(f"v_fma_f32 v{E+k}, v{E+k}, s{sA}, v{TMP}")
            for k in range(8): A(f"v_mul_f32 v{E+k}, v{E+k}, v{OWN+k}")
            for k in range(8): A(f"v_exp_f32 v{E+k}, v{E+k}")
            for k in range(8): A(f"v_add_f32 v{E+k}, 1.0, v{E+k}")
            for k in range(8): A(f"v_rcp_f32 v{E+k}, v{E+k}")
            for k in range(8): A(f"v_mul_f32 v{OWN+k}, v{OWN+k}, v{E+k}")
        for k in range(4): A(f"v_cvt_pk_bf16_f32 v{TMP+4+k}, v{OWN+2*k}, v{OWN+2*k+1}")
        if ph == 0:
            A(f"v_or_b32 v{TMP+7}, 1, v{TMP+7}\nbuffer_store_dwordx4 {v(TMP+4,4)}, v{VL}, {R(RWS)}, s{sGST} offen sc1\ns_add_u32 s{sGST}, s{sGST}, {112*1024}")
        else:
            A(f"v_permlane32_swap_b32 v{TMP+4}, v{TMP+6}\nv_permlane32_swap_b32 v{TMP+5}, v{TMP+7}\nbuffer_store_dwordx4 {v(TMP+4,4)}, v{VO}, {R(ROUT)}, s{sE} offen offset:{hf*64}" + [os.environ.get("OF0", " sc1"), os.environ.get("OF1", "")][hf])
        stamp(("gst", "outst")[ph] + str(hf))
        if (H == 1 or (H == 2 and not RA5)) and LI == 1: late_issue(H + 1)
        if H in (1, 2) and ER[H+1] >= 0: A("s_barrier")
        stamp_flush()
    if isA:
        if env("PRIO", 1): A("s_setprio 2")
        compute(0); partials(0); stamp_flush()
        if env("PRIO", 1): A("s_setprio 0")
        compute(1)
        if env("DA", 1) == 1:
            lg.wait_all()
            for m in range(L, r.c5): w2dma(r, m)
        epilogue(0); partials(1); p5setup()
        if env("DA", 1) == 0:
            for m in range(L, r.c5): w2dma(r, m)
        epilogue(1)
        compute(2)
        if RA5:
            if RA5 == 2: late_issue(3)
            partials(2); stamp_flush()
            if env("PRIO", 1): A("s_setprio 0")
            compute(3); epilogue(2); partials(3); epilogue(3)
        else:
            partials(2); epilogue(2); compute(3); partials(3); epilogue(3)
    else:
        if env("PRIO", 1): A("s_setprio 1")
        for H in range(4):
            compute(H)
            if H == 3 or H + 1 in late:
                for q in range(2):
                    for j in range(2): A(pw(q, j))
                if H == 2: late_issue(H + 1)
                A("s_waitcnt lgkmcnt(0)\ns_barrier"); lg.q = []
                if H == 1:
                    if env("G2", 0):
                        sg.gated = G5; A(f"s_mov_b32 s{sMISS}, {(1 << 2*G5) - 1}")
                    late_issue(H + 1); sg.gated = 0
            stamp_flush()
    A(f"MLP_END{N}:")

def finish():
    A(f"s_or_b32 s{sT}, s2, s{SW}\ns_cbranch_scc1 K_FIN\nv_mov_b32 v4, 0\nv_mov_b32 v5, 0\ns_mov_b64 exec, 1\nbuffer_store_dwordx2 v[4:5], v4, {R(RDBG)}, 0 offen sc1\ns_mov_b64 exec, -1")
    A("K_FIN:")
    if os.environ.get("DIAGAT"):
        A(f"DSP:\ns_memrealtime s[{sA}:{sA+1}]\ns_waitcnt lgkmcnt(0)\ns_sub_u32 s{sA}, s{sA}, s72\ns_cmp_lt_u32 s{sA}, 4000\ns_cbranch_scc1 DSP")
    if STAMP:
        A("s_waitcnt vmcnt(0)"); stamp("end"); A(f"s_memrealtime s[{sA}:{sA+1}]"); stamp_flush()
        A(f"v_writelane_b32 v{VST}, s72, 62\nv_writelane_b32 v{VST}, s{sA}, 63")
        A(f"s_lshl_b32 s{sT}, s2, 3\ns_add_u32 s{sT}, s{sT}, s{sW8}\ns_lshl_b32 s{sT}, s{sT}, 8\ns_add_u32 s{sT}, s{sT}, {WS_STAMP}\nv_lshlrev_b32 v4, 2, v1\nbuffer_store_dword v{VST}, v4, {R(RWS)}, s{sT} offen")
    A("K_END:\ns_endpgm")

def bprog():
    NT = env("NT", 0); nt = " nt" if NT else ""
    nt1 = " nt" if env("NT1", 0) else ""
    VXD = [16, 17, 18, 19]; VXE = [20, 21]; VWD = list(range(22, 29))
    sWO, sXO, sM, sWM = sA, sB, sC, sD_
    sXP, sWP = [sW1, sW1S, sW1E], [sW2, sW2S, sW2E]
    A("B_P1:"); vm.q = []; lg.q = []
    p1_common()
    A(f"s_mul_i32 s{sXO}, s{sE}, {32*896}\ns_lshl_b32 s{sWM}, s{SW}, 10")
    A("v_lshrrev_b32 v4, 4, v1\nv_and_b32 v5, 15, v1\nv_xor_b32 v5, v5, v4\nv_mul_u32_u24 v6, 896, v4")
    for j in range(4): A(f"v_xor_b32 v7, {4*j}, v5\nv_lshl_add_u32 v7, v7, 4, v6\nv_add_u32 v{VXD[j]}, {j*4*896 - j*1024}, v7")
    A(f"s_lshr_b32 s{sT}, s{sJ}, 2\ns_and_b32 s{sU}, s{sJ}, 3\ns_add_u32 s{sT}, s{sT}, s{sU}\ns_mul_i32 s{sU}, s{sT}, 11\ns_lshr_b32 s{sU}, s{sU}, 5\ns_mul_i32 s{sU}, s{sU}, 3\ns_sub_u32 s{sT}, s{sT}, s{sU}")
    if not env("P1ROT", 1): A(f"s_mov_b32 s{sT}, 0")
    for p in range(3):
        A(f"s_lshl_b32 s{sU}, s{sT}, 8\ns_add_u32 s{sXP[p]}, s{sXO}, s{sU}\ns_mul_i32 s{sU}, s{sT}, {128*2688}\ns_add_u32 s{sWP[p]}, s{sWO}, s{sU}")
        if p < 2: A(f"s_add_u32 s{sT}, s{sT}, 1\ns_cmp_eq_u32 s{sT}, 3\ns_cselect_b32 s{sT}, 0, s{sT}")
    def xpiece(p):
        if p < 3:
            for j in range(8):
                if j % 4 == 0: A(f"s_add_u32 m0, s{sM}, {XBUF[p] + (j>>2)*4096}\ns_add_u32 s{sV}, s{sXP[p]}, {(j>>2)*16*896}")
                A(f"buffer_load_dwordx4 v{VXD[j&3]}, {R(RX)}, s{sV} offen offset:{(j&3)*1024}{nt1} lds"); vm.issue(f"x{p}")
        else:
            for j in range(4):
                A(f"s_add_u32 m0, s{sM}, {XBUF[p] + j*1024}\ns_add_u32 s{sV}, s{sXO}, {(j>>1)*16*896 + 768}\nbuffer_load_dwordx4 v{VXE[j&1]}, {R(RX)}, s{sV} offen{nt1} lds"); vm.issue(f"x{p}")
    def wdma(j):
        g = j // 7
        if g == 3 and j == 21: A(f"s_add_u32 s{sT}, s{sWO}, {3*128*2688}")
        A(f"s_add_u32 m0, s{sWM}, {j*4096}\nbuffer_load_dwordx4 v{VWD[j%7]}, {R(RWQ)}, s{sWP[g] if g < 3 else sT} offen{nt1} lds"); vm.issue(f"w{g}")
    A("s_waitcnt lgkmcnt(0)")
    xpiece(0)
    for j in range(7):
        A(f"v_add_u32 v4, {256*j}, v0\nv_mul_u32_u24 v5, 4682, v4\nv_lshrrev_b32 v5, 16, v5\nv_mul_u32_u24 v6, 14, v5\nv_sub_u32 v4, v4, v6")
        A(f"v_and_b32 v6, 0xf8, v5\nv_and_b32 v7, 1, v5\nv_lshl_add_u32 v6, v7, 2, v6\nv_bfe_u32 v7, v5, 1, 2\nv_add_u32 v6, v6, v7\nv_mul_u32_u24 v6, 2688, v6\nv_lshl_add_u32 v{VWD[j]}, v4, 4, v6")
        wdma(j)
    xpiece(1)
    A("v_lshrrev_b32 v4, 3, v1\nv_mul_u32_u24 v6, 896, v4\nv_lshrrev_b32 v4, 4, v1\nv_and_b32 v5, 7, v1\nv_xor_b32 v5, v5, v4")
    for j in range(2): A(f"v_xor_b32 v7, {4*j}, v5\nv_lshl_add_u32 v7, v7, 4, v6\nv_add_u32 v{VXE[j]}, {j*8*896}, v7")
    prologue2()
    vm.wait("w0"); A("s_barrier\ns_barrier")
    for j in range(7, 14): wdma(j)
    xpiece(2)
    vm.wait("w1"); A("s_barrier\ns_barrier")
    for j in range(14, 21): wdma(j)
    xpiece(3)
    for j in range(21, 25): wdma(j)
    vm.wait("w2"); A("s_barrier")
    vm.wait_all(); A("s_barrier\ns_waitcnt lgkmcnt(0)\ns_branch B_P2")

def bprog2():
    NT = env("NT", 0); nt = " nt" if NT else ""
    A("B_P2:"); vm.q = []
    if STAMP: A("v_mov_b32 v15, -1\nB_P2S:"); st["v"] = 15
    roles(touch=False)
    r = RB
    WOR, W2T = 16, 48
    VT1, VTO, VDW, VDR = [4, 5], [8, 9], 10, 11
    w2_addr(r, 12, 13)
    A(f"v_lshrrev_b32 v12, 3, v1\nv_mul_u32_u24 v12, 3584, v12\nv_add_u32 v{VT1[0]}, v12, v13\nv_add_u32 v{VT1[1]}, {8*3584 - 1024}, v{VT1[0]}")
    A(f"v_lshrrev_b32 v12, 2, v1\nv_mul_u32_u24 v12, 896, v12\nv_and_b32 v13, 3, v1\nv_lshl_add_u32 v{VTO[0]}, v13, 4, v12\nv_add_u32 v{VTO[1]}, {16*896}, v{VTO[0]}")
    A(f"v_add_u32 v{VDW}, s{sW2W}, v{VL}\nv_add_u32 v{VDR}, s{sRBW}, v{VL}")
    tr_lane_addr(12, 13, 128, 4)
    A(f"s_and_b32 s{sT}, s{SW}, 1\ns_lshl_b32 s{sT}, s{sT}, 5\nv_xor_b32 v12, s{sT}, v12\nv_add_u32 v12, s{sW2W}, v12\nv_bfe_u32 v13, v1, 3, 1\ns_lshr_b32 s{sT}, s{SW}, 1\nv_xor_b32 v13, s{sT}, v13")
    A(f"v_lshl_add_u32 v{r.VRD[0]}, v13, 6, v12\nv_xor_b32 v13, 1, v13\nv_lshl_add_u32 v{r.VRD[1]}, v13, 6, v12")
    A(f"s_mul_i32 s{sW1S}, s{SW}, {512*3584}\ns_lshl_b32 s{sT}, s{sFT}, 7\ns_add_u32 s{sW1S}, s{sW1S}, s{sT}\ns_add_u32 s{sW1E}, s{sW1S}, {512*3584}")
    A(f"s_lshr_b32 s{sT}, s{sRO}, 10\ns_add_u32 s{sT}, s{sT}, {r.n4}\ns_and_b32 s{sT}, s{sT}, 31\ns_mul_i32 s{sT}, s{sT}, {16*3584}\ns_add_u32 s{sW1}, s{sW1S}, s{sT}")
    TH = [env("BTH", 2)]
    A(f"s_and_b32 s{sT}, s{sC3}, 7\ns_lshl_b32 s{sT}, s{sT}, 1\ns_lshl_b32 s{sD_}, s{SW}, 2\ns_add_u32 s{sD_}, s{sD_}, s{sT}\ns_min_u32 s{sC}, s{sC3}, 13\ns_lshl_b32 s{sC}, s{sC}, 6")
    A(f"s_cmp_ge_u32 s{sJ}, 24\ns_cbranch_scc1 B_NOKV\ns_barrier\nB_NOKV:")
    A(f"s_add_u32 s{sT}, s{SW}, 1\ns_and_b32 s{sT}, s{sT}, 3\ns_mul_i32 s{sT}, s{sT}, 12288\ns_add_u32 s{sT}, s{sT}, {RBUF + 3072}\nv_add_u32 v14, s{sT}, v{VL}")
    A(f"v_mov_b32 v12, 0\nds_write_b32 v14, v12\ns_waitcnt lgkmcnt(0)")
    vm.q = []
    NPQ = env("NPQ", 0)
    if NPQ: TH[0] = env("BTH0", 4)
    sPOS = sE
    todo = []
    def throttle():
        A(f"s_waitcnt vmcnt({TH[0]})"); vm.q = vm.q[-TH[0]:]
        while todo and ("s", todo[0]) not in vm.q:
            m = todo.pop(0); wread_step(r, m, m % 14)
    def rawitem(m):
        w2soff(m)
        for j in range(2): A(f"buffer_load_dwordx4 {v(W2T+8*m+4*j,4)}, v{r.VT2[j]}, {R(RW2)}, s{sA} offen offset:{j*1024}")
    for k in range(32):
        if k == NPQ:
            stamp("b_pre")
            A("s_barrier")
            stamp("b_go"); TH[0] = env("BTH", 2)
            A(f"buffer_load_dwordx2 v[{W2T}:{W2T+1}], v12, {R(RDBG)}, 0 offen sc1"); vm.issue("tag")
        if env("IDL", 0) and k in (0, 13, 15, 17, 19, 20): A(f"s_cmp_eq_u32 s{sACT4}, 0\ns_cbranch_scc1 B_I{k}")
        slot = k % 14 if k < 20 else (k - 20 + 6) % 12
        if k == 20: A(f"s_add_u32 s{sW1}, s{sW1}, {6*16*3584}\ns_cmp_ge_u32 s{sW1}, s{sW1E}\ns_cselect_b32 s{sT}, {512*3584}, 0\ns_sub_u32 s{sW1}, s{sW1}, s{sT}")
        if k == 26: A(f"s_lshr_b32 s{sT}, s{sRO}, 10\ns_mul_i32 s{sT}, s{sT}, {16*3584}\ns_add_u32 s{sW1}, s{sW1S}, s{sT}")
        if k >= 14:
            assert not [m for m in todo if m % 14 == slot]
            A("s_waitcnt lgkmcnt(0)")
        A(f"s_add_u32 m0, s{sW2W}, {slot*2048}")
        for j in range(2): A(f"buffer_load_dwordx4 v{VT1[j]}, {R(RW1)}, s{sW1} offen offset:{j*1024} lds"); vm.issue(("s", k))
        if k < 20: todo.append(k)
        A(f"s_add_u32 s{sW1}, s{sW1}, {16*3584}\ns_cmp_eq_u32 s{sW1}, s{sW1E}\ns_cselect_b32 s{sW1}, s{sW1S}, s{sW1}")
        throttle()
        if env("IDL", 0) and k in (12, 14, 16, 18, 19, 31):
            k0 = {12: 0, 14: 13, 16: 15, 18: 17, 19: 19, 31: 20}[k]
            def idle(k0=k0):
                A(f"B_I{k0}:")
                if k0 in (0, 20):
                    A(f"s_setprio 3\nv_lshrrev_b32 v96, 3, v1\nv_lshlrev_b32 v96, 12, v96\nv_and_b32 v97, 7, v1\nv_lshl_add_u32 v96, v97, 7, v96\ns_setprio 0")
                    A(f"s_sub_u32 s{sA}, s{sJ}, 25\ns_lshl_b32 s{sA}, s{sA}, 2\ns_add_u32 s{sA}, s{sA}, s{SW}\ns_lshl_b32 s{sA}, s{sA}, 18\ns_bfe_u32 s{sB}, s2, 0x20001\ns_lshl_b32 s{sB}, s{sB}, 10\ns_add_u32 s{sA}, s{sA}, s{sB}")
                    for i in (range(0, env("IDN", 8)) if k0 == 0 else range(env("IDN", 8), 8)):
                        A(f"s_add_u32 s{sB}, s{sA}, {i*8*4096}\nbuffer_load_dword v97, v96, {R(RW2)}, s{sB} offen\ns_waitcnt vmcnt({env('IDT', 0)})")
                A(f"s_branch B_J{k0}")
            handlers.append(idle)
            A(f"B_J{k0}:")
        if k in (12, 14, 16, 18):
            q = (k - 12) // 2
            A(f"s_add_u32 s{sT}, s{sD_}, {q}\ns_and_b32 s{sT}, s{sT}, 15\ns_mul_i32 s{sT}, s{sT}, {28*896}\ns_add_u32 s{sT}, s{sT}, s{sC}")
            for j in range(2): A(f"buffer_load_dwordx4 {v(WOR+8*q+4*j,4)}, v{VTO[j]}, {R(RWO)}, s{sT} offen"); vm.issue("wo")
            throttle()
        if k == 19:
            A(f"s_setprio 3\nv_readfirstlane_b32 s{sTAG}, v{W2T}\nv_readfirstlane_b32 s{sTAG+1}, v{W2T+1}\nv_lshlrev_b32 v12, 3, v1\ns_mul_i32 s{sV}, s{SW}, 384\ns_add_u32 s{sV}, s{sV}, {F2}")
            poll(12, sV, 48, 8); A("v_lshlrev_b32 v12, 7, v1\ns_setprio 0")
        if env("W2C", 0) and k in (14, 20):
            A(f"s_lshl_b32 s{sA}, s2, 2\ns_add_u32 s{sA}, s{sA}, s{SW}\ns_mul_i32 s{sA}, s{sA}, {56*128}")
            set_exec(((1 << 28) - 1) << (28*(k == 20))); A(f"buffer_load_dword v8, v12, {R(RW2)}, s{sA} offen\ns_mov_b64 exec, -1"); vm.issue("t")
        if k == env("BSW", 24): TH[0] = env("BTH2", 10)
        if k in (13, 31): stamp(f"b_{k}")
    assert not todo
    w2dma(r, 0)
    for m in range(6):
        A(f"ds_read_b32 v13, v14\ns_mov_b32 s{sPOS}, {m}\ns_waitcnt vmcnt({TH[0]}) lgkmcnt(0)\ns_setprio 3\nv_cmp_ne_u32 vcc, 0, v13\ns_setprio 0\ns_cbranch_vccnz B_CUT")
        rawitem(m)
    A(f"s_mov_b32 s{sPOS}, 6")
    if env("W2T", 0):
        A(f"s_setprio 3\ns_lshr_b32 s{sT}, s{sGC}, 6\ns_add_u32 s{sT}, s{sT}, 96\nv_add_u32 v12, s{sT}, v1\nv_subrev_u32 v13, 448, v12\nv_min_u32 v12, v12, v13\nv_lshlrev_b32 v12, 12, v12\ns_setprio 0")
        A(f"s_mul_i32 s{sT}, s{SW}, {448*4096}\ns_lshl_b32 s{sU}, s{sST}, 7\ns_add_u32 s{sT}, s{sT}, s{sU}\nbuffer_load_dword v14, v12, {R(RW2)}, s{sT} offen")
    A("B_CUT:")
    stamp("b_done"); stamp_flush()
    if STAMP: A(f"v_writelane_b32 v15, s{sPOS}, 60")
    A(f"s_setprio 3\nv_min_u32 v12, 5, v1\nv_lshlrev_b32 v12, 12, v12\nv_add_u32 v12, {RBUF + 3*1024 + 32*16 + 4}, v12\ns_setprio 0")
    A(f"B_RED:\ns_barrier\nds_read_b32 v13, v12\ns_waitcnt lgkmcnt(0)\nv_cmp_ne_u32 vcc, 0, v13")
    A(f"s_cbranch_vccz B_OK\ns_cmp_lg_u32 s{sRETRY}, 0\ns_cbranch_scc1 B_OK\ns_mov_b32 s{sRETRY}, -1\ns_barrier\ns_barrier\ns_barrier\ns_branch B_RED\nB_OK:")
    A("s_waitcnt vmcnt(0)\ns_barrier")
    for k in range(8): A(f"ds_write_b128 v{VDR}, {v(WOR+4*k,4)} offset:{k*1024}")
    for m in range(6):
        A(f"s_cmp_gt_u32 s{sPOS}, {m}\ns_cbranch_scc1 B_SK{m}"); rawitem(m); A(f"B_SK{m}:")
    A("s_waitcnt lgkmcnt(0)\ns_barrier")
    unswap(r); mlp_addr(r, 12, 13, False)
    A("s_waitcnt vmcnt(0)")
    if not env("EP", 0): A("s_barrier")
    vm.q = []
    DL = env("DL", 0)
    for m in range(6):
        for j in range(2): A(f"ds_write_b128 v{VDW}, {v(W2T+8*m+4*j,4)} offset:{m*2048 + j*1024}")
        if DL == 0: w2dma(r, m + 1)
    A("s_waitcnt lgkmcnt(0)")
    if env("X1B", 1): A("s_barrier")
    if DL == 1:
        for m in range(1, 7): w2dma(r, m)
    mlp(r, VDR, VDW)
    if STAMP: A(f"v_mov_b32 v{VST}, v15"); del st["v"]
    A("s_branch K_FIN")

def main(out):
    prologue()
    pend0 = list(st["pend"])
    bprog()
    st["pend"] = list(pend0); p1_helper()
    st["pend"] = list(pend0); p1(); fb = p2(); p3(); vm.q = []; mlp(RA); finish()
    st["pend"] = list(pend0); bprog2(); fb()
    for h in handlers: h()
    A("CODE_END:")
    head = open("head.txt").read()
    nv = 256
    txt = head + f"; @launch grid=(256,1,1) block=(512,1,1) lds={LDS_TOTAL}\n" + '.amdgcn_target "amdgcn-amd-amdhsa--gfx950"\n.text\n' + kernel_header(NAME) + A.text() + '.section .rodata,"a"\n' + kernel_desc(NAME, nv, 102, 256)
    open(out, "w").write(txt)
    if STAMP: open(out + ".names", "w").write(" ".join(st["names"].keys()))

if __name__ == "__main__":
    main(sys.argv[1])
```

```python
import sys, struct, math, os
from asmlib import *

S, D, H, DH, F = 2048, 448, 16, 28, 1792
MB = 1 << 20
WS_Q, WS_KV, WS_O, WS_HF, WS_HH, WS_G, WS_ST, WS_FL, WS_STAMP = 0, 2*MB, 6*MB, 8*MB, 10*MB, 12*MB, 14*MB, 14*MB + 512*1024, 15*MB
F1, F2, F4, F5 = WS_FL, WS_FL + 131072, WS_FL + 2*131072, WS_FL + 3*131072
WS_RST, WS_CSG = 13*MB + 768*1024, 13*MB + 832*1024
WS_SIZE = 16*MB
WS_O = WS_HH = WS_Q
WS_G = WS_KV
EPS = 1e-5
STAMP = os.environ.get("STAMP", "0") == "1"
def env(n, d): return int(os.environ.get(n, str(d)))
def f2u(x): return struct.unpack("<I", struct.pack("<f", x))[0]
def hx(x): return f"0x{x & 0xffffffff:08x}"
def fl(x): return hx(f2u(x))
MFMA = "v_mfma_f32_32x32x16_bf16"
NAME = "sequential_preLN__mha_block__mixer_token_mlp__prompt_kernel"

class Cnt:
    def __init__(self, A, name, mx):
        self.A, self.name, self.mx, self.q = A, name, mx, []
    def issue(self, tag): self.q.append(tag)
    def wait(self, tag):
        idx = [i for i, t in enumerate(self.q) if t == tag]
        if not idx: return
        n = len(self.q) - 1 - idx[-1]
        self.A(f"s_waitcnt {self.name}({min(n, self.mx)})")
        self.q = self.q[idx[-1] + 1:]
    def wait_all(self):
        self.A(f"s_waitcnt {self.name}(0)"); self.q = []

RX, RWQ, RWO, RW1, RB1, RW2, RB2, ROUT, RDBG, RWS = 8, 12, 16, 20, 24, 28, 32, 36, 40, 44
def R(r): return f"s[{r}:{r+3}]"
SW, sH, sI, sJ, sFT, sDT4, sST, sDT5, sACT4, sTO, sTAG = 48, 49, 50, 51, 52, 53, 54, 55, 56, 57, 58
sHI, sONES = 60, 62
sT, sU, sV, sA, sB, sC, sD_, sE, sRETRY = 63, 64, 65, 66, 67, 68, 69, 70, 71
sF = [4, 5, 6, 7]
sSEC, sHQ, sW8 = 3, 92, 93
sMISS = 6
sC3, sR3 = 0, 1
sRBW, sW2W = 94, 95
sW2, sW2S, sW2E, sW1, sW1S, sW1E = 96, 97, 98, 99, 100, 101
VL, VST = 2, 255
W2A, RBUF, LDS_TOTAL = 0, 114688, 163840

A = Asm(); vm = Cnt(A, "vmcnt", 63); lg = Cnt(A, "lgkmcnt", 15)
st = {"pend": [], "names": {}}
def stamp(name):
    if os.environ.get("DIAGAT") == name or (os.environ.get("DIAGAT") and name == "start"): A("s_memrealtime s[72:73]")
    if not STAMP: return
    import re
    if name != "start" and not re.match(os.environ.get("STF", "^[^t]"), name): return
    k = len(st["pend"]); assert k < 9, name
    n = st["names"].setdefault(name, len(st["names"]))
    A(f"{'s_memtime' if env('CYC', 0) else 's_memrealtime'} s[{74+2*k}:{75+2*k}]"); st["pend"].append(n)
def stamp_flush():
    if not STAMP or not st["pend"]: return
    A("s_waitcnt lgkmcnt(0)")
    for k, n in enumerate(st["pend"]): A(f"v_writelane_b32 v{st.get('v', VST)}, s{74+2*k}, {n}")
    st["pend"] = []

def set_exec(mask): A(f"s_mov_b32 exec_lo, {hx(mask)}\ns_mov_b32 exec_hi, {hx(mask >> 32)}")
def halfsum(x, t): A(f"v_mov_b32 v{t}, v{x}\nv_permlane32_swap_b32 v{x}, v{t}\nv_add_f32 v{x}, v{x}, v{t}")
def flag_store(soff_reg, t=4):
    A(f"v_mov_b32 v{t}, s{sTAG}\nv_mov_b32 v{t+1}, s{sTAG+1}\nv_mov_b32 v{t+2}, 0\ns_mov_b64 exec, 1")
    A(f"buffer_store_dwordx2 {v(t,2)}, v{t+2}, {R(RWS)}, s{soff_reg} offen sc1\ns_mov_b64 exec, -1"); vm.issue("flag")
def poll(voff, soff_reg, nl, t):
    L = A.label("POLL")
    set_exec((1 << nl) - 1)
    A(f"s_mov_b32 s{sTO}, 0x8000\n{L}:")
    A(f"buffer_load_dwordx2 {v(t,2)}, v{voff}, {R(RWS)}, s{soff_reg} offen sc1\ns_sub_u32 s{sTO}, s{sTO}, 1\ns_waitcnt vmcnt(0)")
    A(f"s_cbranch_scc1 {L}_x\nv_cmp_ne_u64 vcc, s[{sTAG}:{sTAG+1}], {v(t,2)}\ns_and_b64 exec, exec, vcc\n" + (f"s_cbranch_scc0 {L}_x\ns_sleep {env('PSL', 0)}\ns_branch {L}" if env("PSL", 0) else f"s_cbranch_scc1 {L}") + f"\n{L}_x:\ns_mov_b64 exec, -1")
    vm.q = []
def tr_lane_addr(dst, t, pitch, hs, rs=1):
    A(f"v_lshrrev_b32 v{dst}, 5, v1\nv_mul_u32_u24 v{dst}, {hs*pitch}, v{dst}\nv_bfe_u32 v{t}, v1, 2, 2\nv_mul_u32_u24 v{t}, {rs*pitch}, v{t}\nv_add_u32 v{dst}, v{dst}, v{t}")
    A(f"v_bfe_u32 v{t}, v1, 4, 1\nv_lshl_add_u32 v{dst}, v{t}, 5, v{dst}\nv_and_b32 v{t}, 3, v1\nv_lshl_add_u32 v{dst}, v{t}, 3, v{dst}")
def get_tag(TAGV, lab):
    A(f"v_readfirstlane_b32 s{sTAG}, v{TAGV}\nv_readfirstlane_b32 s{sTAG+1}, v{TAGV+1}")
    A(f"s_or_b32 s{sTO}, s{sTAG}, s{sTAG+1}\ns_cbranch_scc1 {lab}_ok\ns_mov_b32 s{sTO}, 0x8000\nv_mov_b32 v4, 0\n{lab}_l:")
    A(f"buffer_load_dwordx2 {v(TAGV,2)}, v4, {R(RDBG)}, 0 offen sc1\ns_sub_u32 s{sTO}, s{sTO}, 1\ns_waitcnt vmcnt(0)\ns_cbranch_scc1 {lab}_ok")
    A(f"v_readfirstlane_b32 s{sTAG}, v{TAGV}\nv_readfirstlane_b32 s{sTAG+1}, v{TAGV+1}\ns_cmp_eq_u64 s[{sTAG}:{sTAG+1}], 0\ns_cbranch_scc1 {lab}_l\n{lab}_ok:")
def tagcheck(regs, T1, T2, T3):
    A(f"v_xor_b32 v{T1}, s{sTAG}, v{regs[0]+1}\nv_xor_b32 v{T2}, s{sTAG+1}, v{regs[0]+3}\nv_or_b32 v{T1}, v{T1}, v{T2}")
    for g in regs[1:]: A(f"v_xor_b32 v{T2}, s{sTAG}, v{g+1}\nv_xor_b32 v{T3}, s{sTAG+1}, v{g+3}\nv_or3_b32 v{T1}, v{T1}, v{T2}, v{T3}")
    A(f"v_cmp_ne_u32 vcc, 0, v{T1}")
def rot4(d):
    A(f"s_bfe_u32 s{d}, s2, 0x20001\ns_mul_i32 s{d}, s{d}, 7\ns_sub_u32 s{d}, s{sFT}, s{d}\ns_add_u32 s{d}, s{d}, s{sDT4}\ns_add_u32 s{d}, s{d}, s{sDT4}")
    A(f"s_and_b32 s{sTO}, s2, 1\ns_mul_i32 s{sTO}, s{sTO}, 3\ns_add_u32 s{d}, s{d}, s{sTO}\ns_and_b32 s{d}, s{d}, 7\ns_lshl_b32 s{d}, s{d}, 2")
def rot5(d):
    A(f"s_and_b32 s{sTO}, s2, 1\ns_lshl_b32 s{sTO}, s{sTO}, 1\ns_lshl_b32 s{d}, s{sDT5}, 1\ns_add_u32 s{d}, s{d}, s{sTO}\ns_and_b32 s{sTO}, s{sST}, 7\ns_add_u32 s{d}, s{d}, s{sTO}")
    A(f"s_mul_i32 s{sTO}, s{d}, 37\ns_lshr_b32 s{sTO}, s{sTO}, 8\ns_mul_i32 s{sTO}, s{sTO}, 7\ns_sub_u32 s{d}, s{d}, s{sTO}\ns_lshl_b32 s{d}, s{d}, 2")

handlers = []
class Stream:
    def __init__(self, name, ng, loads, soff, T, bit, VP, TP, pm=None, gated=None):
        self.name, self.ng, self.loads, self.soff, self.T, self.last, self.bit = name, ng, loads, soff, T, -1, bit
        self.VP, self.TP, self.pm, self.gated = VP, TP, pm or (lambda g: 0xffffffff), ng if gated is None else gated
        A(f"s_mov_b32 s{sMISS}, {hx((1 << 2*ng) - 1)}")
    def gate(self, g):
        if g >= self.gated: return
        L = f"{self.name}g{g}"
        A(f"s_and_b32 s{sT}, s{sMISS}, {hx(3 << 2*g)}\ns_cbranch_scc1 {L}_h\n{L}_r:")
        def h():
            A(f"{L}_h:\ns_mov_b32 s{sTO}, 0x8000\ns_mov_b32 exec_hi, 0\n{L}_l:\ns_and_b32 exec_lo, s{sMISS}, {hx(self.pm(g))}")
            A(f"buffer_load_dword v{self.TP}, v{self.VP}, {R(RWS)}, 0 offen sc1\ns_sub_u32 s{sTO}, s{sTO}, 1\ns_waitcnt vmcnt(0)\ns_cbranch_scc1 {L}_x")
            A(f"v_and_b32 v{self.TP}, {self.bit}, v{self.TP}\nv_cmp_ne_u32 vcc, 0, v{self.TP}\ns_andn2_b32 s{sMISS}, s{sMISS}, vcc_lo\ns_and_b32 s{sT}, s{sMISS}, {hx(3 << 2*g)}\ns_cbranch_scc1 {L}_l")
            A(f"{L}_x:\ns_mov_b64 exec, -1\ns_branch {L}_r")
        handlers.append(h)
    def _emit(self, g, track):
        self.soff(g)
        for reg, va, off in self.loads(g):
            A(f"buffer_load_dwordx4 {v(reg,4)}, v{va}, {R(RWS)}, s{sT} offen offset:{off} sc1")
            if track: vm.issue((self.name, g))
    def issue(self, g):
        if g < self.ng: self.gate(g); self._emit(g, True); self.last = g
    def issue_part(self, g, k):
        if g >= self.ng: return
        if k == 0: self.gate(g); self.soff(g)
        reg, va, off = self.loads(g)[k]
        A(f"buffer_load_dwordx4 {v(reg,4)}, v{va}, {R(RWS)}, s{sT} offen offset:{off} sc1"); vm.issue((self.name, g))
        self.last = g
    def _red(self, g):
        r = [x[0] + 3 for x in self.loads(g)]
        A(f"v_bitop3_b32 v{self.T}, v{r[0]}, v{r[1]}, v{r[2]} bitop3:0x80\nv_bitop3_b32 v{self.T}, v{self.T}, v{r[3]}, {self.bit} bitop3:0x80")
    def check1(self, g):
        if g < self.ng: vm.wait((self.name, g)); self._red(g)
    def check2(self, g):
        if g >= self.ng: return
        L = f"{self.name}{g}"
        A(f"v_cmp_eq_u32 vcc, 0, v{self.T}\ns_cbranch_vccnz {L}_h\n{L}_r:")
        last = self.last
        def h():
            A(f"{L}_h:\ns_mov_b32 s{sTO}, 0x8000\n{L}_l:")
            self._emit(g, False)
            A(f"s_sub_u32 s{sTO}, s{sTO}, 1\ns_waitcnt vmcnt(0)\ns_cbranch_scc1 {L}_r")
            self._red(g)
            A(f"v_cmp_eq_u32 vcc, 0, v{self.T}\ns_cbranch_vccnz {L}_l\ns_branch {L}_r")
        handlers.append(h)

def prologue():
    if STAMP: A(f"s_memrealtime s[72:73]\nv_mov_b32 v{VST}, -1")
    stamp("start")
    A(f"s_load_dwordx2 s[{RX}:{RX+1}], s[0:1], 0\ns_load_dwordx2 s[{RWQ}:{RWQ+1}], s[0:1], 8")
    A("s_cmp_ge_u32 s2, 256\ns_cbranch_scc1 K_END")
    A(f"v_and_b32 v1, 63, v0\nv_lshrrev_b32 v3, 6, v0\nv_lshlrev_b32 v{VL}, 4, v1\nv_readfirstlane_b32 s{sW8}, v3\nv_and_b32 v0, 255, v0")
    for r, sz in ((RX, S*D*2), (RWQ, D*3*D*2)): A(f"s_mov_b32 s{r+2}, {sz}\ns_mov_b32 s{r+3}, 0x20000")
    A(f"s_and_b32 s{SW}, s{sW8}, 3\ns_lshr_b32 s{sJ}, s2, 3\ns_bfe_u32 s{sT}, s2, 0x20001\ns_and_b32 s{sU}, s2, 1")
    A(f"s_lshl_b32 s{sI}, s{sT}, 2\ns_and_b32 s{sV}, s{sJ}, 3\ns_add_u32 s{sI}, s{sI}, s{sV}")
    A(f"s_lshr_b32 s{sSEC}, s{sJ}, 3\ns_bfe_u32 s{sHQ}, s{sJ}, 0x10002\ns_lshl_b32 s{sV}, s{sU}, 1\ns_add_u32 s{sHQ}, s{sHQ}, s{sV}")
    A(f"s_cmp_ge_u32 s{sJ}, 24\ns_cbranch_scc1 P1_HELP\ns_cmp_lt_u32 s{sW8}, 4\ns_cbranch_scc1 A_P1")

def prologue2():
    for r, off in ((RWS, 80), (RDBG, 72), (RWO, 16), (RW1, 32), (RB1, 40), (RW2, 48), (RB2, 56), (ROUT, 64)):
        A(f"s_load_dwordx2 s[{r}:{r+1}], s[0:1], {off}")
    A(f"s_memrealtime s[{sTAG}:{sTAG+1}]")
    for r, sz in ((RWS, WS_SIZE), (RDBG, 256), (RWO, D*D*2), (RW1, S*F*2), (RB1, F*2), (RW2, S*F*2), (RB2, S*2), (ROUT, S*D*2)):
        A(f"s_mov_b32 s{r+2}, {sz}\ns_mov_b32 s{r+3}, 0x20000")
    A(f"s_mov_b32 s{sHI}, 0\ns_mov_b32 s{sHI+1}, -1\ns_mov_b32 s{sONES}, 0x3f803f80\ns_mov_b32 s{sRETRY}, 0")
    A(f"s_mul_i32 s{sRBW}, s{SW}, 12288\ns_add_u32 s{sRBW}, s{sRBW}, {RBUF}\ns_mul_i32 s{sW2W}, s{SW}, 28672")

def roles(touch=True):
    A(f"s_bfe_u32 s{sT}, s2, 0x20001\ns_and_b32 s{sU}, s2, 1")
    pass
    A(f"s_sub_u32 s{sV}, 25, s{sU}\ns_cmp_lt_u32 s{sJ}, s{sV}\ns_cselect_b32 s{sACT4}, 1, 0\ns_cselect_b32 s{sV}, s{sJ}, 0")
    A(f"s_mul_i32 s{sFT}, s{sU}, 25\ns_add_u32 s{sV}, s{sV}, s{sFT}\ns_mul_i32 s{sDT4}, s{sV}, 9363\ns_lshr_b32 s{sDT4}, s{sDT4}, 16")
    A(f"s_mul_i32 s{sFT}, s{sDT4}, 7\ns_sub_u32 s{sV}, s{sV}, s{sFT}\ns_mul_i32 s{sFT}, s{sT}, 7\ns_add_u32 s{sFT}, s{sV}, s{sFT}")
    A(f"s_cmp_lt_u32 s{sJ}, 28\ns_cselect_b32 s{sV}, s{sJ}, 0\ns_mul_i32 s{sST}, s{sU}, 28\ns_add_u32 s{sV}, s{sV}, s{sST}")
    A(f"s_lshr_b32 s{sDT5}, s{sV}, 3\ns_and_b32 s{sV}, s{sV}, 7\ns_lshl_b32 s{sST}, s{sT}, 3\ns_add_u32 s{sST}, s{sST}, s{sV}")
    A(f"s_lshl_b32 s{sT}, s{sHQ}, 2\ns_add_u32 s{sT}, s{sT}, s{sSEC}\ns_lshl_b32 s{sT}, s{sT}, 4\ns_add_u32 s{sT}, s{sT}, s{sI}\ns_lshl_b32 s{sT}, s{sT}, 7\ns_add_u32 s{sF[0]}, s{sT}, {F1}")
    A(f"s_and_b32 s{sT}, s2, 7\ns_lshl_b32 s{sT}, s{sT}, 1\ns_and_b32 s{sH}, s{sJ}, 1\ns_add_u32 s{sH}, s{sH}, s{sT}\ns_lshr_b32 s{sI}, s{sJ}, 1")
    A(f"s_lshr_b32 s{sR3}, s{sJ}, 4\ns_add_u32 s{sR3}, s{sR3}, s{sT}\ns_lshl_b32 s{sR3}, s{sR3}, 2\ns_add_u32 s{sR3}, s{sR3}, s{SW}\ns_and_b32 s{sC3}, s{sJ}, 15")
    A(f"s_lshl_b32 s{sT}, s2, 3\ns_add_u32 s{sF[1]}, s{sT}, {F2}")
    if not touch: return
    A(f"s_lshl_b32 s{sV}, s{sR3}, 4\ns_add_u32 s{sV}, s{sV}, s{sC3}\ns_lshl_b32 s{sV}, s{sV}, 9\ns_add_u32 s{sV}, s{sV}, {WS_ST}\nv_lshl_add_u32 v4, v1, 7, s{sV}")
    A(f"v_writelane_b32 v4, s{sF[0]}, 4\nv_writelane_b32 v4, s{sF[1]}, 5\ns_mov_b64 exec, {0x3f if env('STT', 1) else 0x30}\nbuffer_load_dword v126, v4, {R(RWS)}, 0 offen sc1\ns_mov_b64 exec, -1")
    vm.issue("touch")

def p1_helper():
    TAGV = 14
    sHX = sA
    A("P1_HELP:")
    vm.q = []
    prologue2()
    A(f"s_and_b32 s{sHX}, s2, 7\ns_lshl_b32 s{sHX}, s{sHX}, 3\ns_add_u32 s{sHX}, s{sHX}, s{sJ}\ns_sub_u32 s{sHX}, s{sHX}, 24")
    A(f"v_lshrrev_b32 v4, 3, v1\nv_and_b32 v5, 7, v1\nv_lshlrev_b32 v5, 4, v5\nv_mov_b32 v7, 0")
    A(f"s_cmp_ge_u32 s{sW8}, 4\ns_cbranch_scc1 H_CS")
    A(f"v_mul_u32_u24 v6, 896, v4\nv_add_u32 v6, v6, v5\ns_lshl_b32 s{sB}, s{sHX}, 2\ns_add_u32 s{sB}, s{sB}, s{SW}\ns_mul_i32 s{sT}, s{sB}, {8*896}\ns_waitcnt lgkmcnt(0)")
    for m in range(7): A(f"buffer_load_dwordx4 {v(16+4*m,4)}, v6, {R(RX)}, s{sT} offen offset:{m*128}")
    A("v_mov_b32 v80, 0\nv_mov_b32 v82, 0\nv_mov_b32 v84, 0\nv_mov_b32 v86, 0\ns_waitcnt vmcnt(0)")
    A(f"buffer_load_dwordx2 {v(TAGV,2)}, v7, {R(RDBG)}, 0 offen sc1")
    for k in range(28): A(f"v_dot2c_f32_bf16 v{80+4*(k&1)}, s{sONES}, v{16+k}\nv_dot2c_f32_bf16 v{82+4*(k&1)}, v{16+k}, v{16+k}")
    A("v_add_f32 v80, v80, v84\nv_add_f32 v82, v82, v86")
    for m in ("quad_perm:[1,0,3,2]", "quad_perm:[2,3,0,1]", "row_half_mirror"):
        for r in (80, 82): A(f"v_add_f32_dpp v{r}, v{r}, v{r} {m} row_mask:0xf bank_mask:0xf")
    A(f"v_mul_f32 v80, {fl(1.0/D)}, v80\nv_mul_f32 v82, {fl(1.0/D)}, v82\nv_fma_f32 v82, -v80, v80, v82\nv_max_f32 v82, 0, v82\nv_add_f32 v82, {fl(EPS)}, v82\nv_rsq_f32 v82, v82")
    A(f"v_lshlrev_b32 v6, 4, v4\nv_mul_f32 v80, v80, v82\nv_sub_f32 v80, 0, v80\ns_waitcnt vmcnt(0)")
    get_tag(TAGV, "H_T1")
    A(f"v_mov_b32 v81, s{sTAG}\nv_mov_b32 v83, s{sTAG+1}\ns_lshl_b32 s{sT}, s{sB}, 7\ns_add_u32 s{sT}, s{sT}, {WS_RST}")
    set_exec(0x0101010101010101)
    A(f"buffer_store_dwordx4 v[80:83], v6, {R(RWS)}, s{sT} offen sc1\ns_mov_b64 exec, -1")
    stamp("h_pub"); stamp_flush()
    A("s_barrier")
    roles()
    addr_setup()
    A("s_branch P2_START")
    st["pend"] = [0] if STAMP else []
    A(f"H_CS:\ns_lshl_b32 s{sB}, s{SW}, 6\ns_add_u32 s{sB}, s{sB}, s{sHX}\ns_cmp_ge_u32 s{sB}, 84\ns_cbranch_scc1 H_PF")
    A(f"v_mul_u32_u24 v6, 2688, v4\nv_add_u32 v6, v6, v5\ns_and_b32 s{sC}, s{sB}, 3\ns_lshr_b32 s{sD_}, s{sB}, 2\ns_mul_i32 s{sT}, s{sC}, {112*2688}\ns_lshl_b32 s{sU}, s{sD_}, 7\ns_add_u32 s{sT}, s{sT}, s{sU}\ns_waitcnt lgkmcnt(0)")
    for m in range(14): A(f"buffer_load_dwordx4 {v(16+4*m,4)}, v6, {R(RWQ)}, s{sT} offen\ns_add_u32 s{sT}, s{sT}, {8*2688}")
    A(f"s_mov_b32 s{sT}, 0x3f80\ns_mov_b32 s{sU}, 0x3f800000")
    for r in range(80, 88): A(f"v_mov_b32 v{r}, 0")
    for m in range(14):
        if m % 4 == 0: A(f"s_waitcnt vmcnt({max(0, 14 - m - 4)})")
        if m == 12: A(f"buffer_load_dwordx2 {v(TAGV,2)}, v7, {R(RDBG)}, 0 offen sc1")
        for k in range(4): A(f"v_dot2c_f32_bf16 v{80+2*k}, s{sT}, v{16+4*m+k}\nv_dot2c_f32_bf16 v{81+2*k}, s{sU}, v{16+4*m+k}")
    for r in range(80, 88): A(f"v_add_f32_dpp v{r}, v{r}, v{r} row_ror:8 row_mask:0xf bank_mask:0xf")
    for op in ("v_permlane16_swap_b32", "v_permlane32_swap_b32"):
        for r in range(80, 88): A(f"v_mov_b32 v{r+8}, v{r}")
        for r in range(80, 88): A(f"{op} v{r}, v{r+8}")
        for r in range(80, 88): A(f"v_add_f32 v{r}, v{r}, v{r+8}")
    A("v_mov_b32 v88, v80\nv_mov_b32 v90, v81")
    for pi in range(1, 4): A(f"v_cmp_eq_u32 vcc, {pi}, v4\nv_cndmask_b32 v88, v88, v{80+2*pi}, vcc\nv_cndmask_b32 v90, v90, v{81+2*pi}, vcc")
    A(f"v_lshlrev_b32 v6, 2, v5\nv_lshl_add_u32 v6, v4, 4, v6\ns_waitcnt vmcnt(0)")
    get_tag(TAGV, "H_T2")
    A(f"v_mov_b32 v89, s{sTAG}\nv_mov_b32 v91, s{sTAG+1}\ns_mul_i32 s{sT}, s{sC}, 10752\ns_lshl_b32 s{sU}, s{sD_}, 9\ns_add_u32 s{sT}, s{sT}, s{sU}\ns_add_u32 s{sT}, s{sT}, {WS_CSG}")
    set_exec(0xFFFFFFFF)
    A(f"buffer_store_dwordx4 v[88:91], v6, {R(RWS)}, s{sT} offen sc1\ns_mov_b64 exec, -1\ns_barrier\ns_branch B_P2")
    A(f"H_PF:\ns_cmp_lt_u32 s{SW}, 2\ns_cbranch_scc1 H_W")
    sQ = sB
    A(f"s_sub_u32 s{sQ}, s{sJ}, 24\ns_lshl_b32 s{sQ}, s{sQ}, 1\ns_add_u32 s{sQ}, s{sQ}, s{SW}\ns_sub_u32 s{sQ}, s{sQ}, 2")
    A(f"s_getpc_b64 s[{sC}:{sC+1}]\nCODE_REF:\ns_lshl_b32 s{sT}, s{sQ}, 12\nv_lshl_add_u32 v6, v1, 7, s{sT}\nv_min_u32 v6, CODE_END-CODE_REF-4, v6")
    A(f"v_mov_b32 v9, s{sC+1}\nv_add_co_u32 v8, vcc, s{sC}, v6\nv_addc_co_u32 v9, vcc, 0, v9, vcc")
    set_exec(0xFFFFFFFF)
    A("global_load_dword v25, v[8:9], off\ns_mov_b64 exec, -1\ns_waitcnt lgkmcnt(0)\ns_barrier")
    A("v_lshlrev_b32 v6, 7, v1")
    A(f"s_and_b32 s{sT}, s2, 7\ns_lshl_b32 s{sT}, s{sT}, 4\ns_add_u32 s{sT}, s{sT}, s{sQ}\ns_mul_i32 s{sT}, s{sT}, {7*8192}")
    for k in range(env("NP1", 0)): A(f"s_add_u32 s{sU}, s{sT}, {k*8192}\nbuffer_load_dword v{16+k}, v6, {R(RW1)}, s{sU} offen")
    for k in range(env("NP2", 0)): A(f"s_add_u32 s{sU}, s{sT}, {k*8192}\nbuffer_load_dword v{26+k}, v6, {R(RW2)}, s{sU} offen")
    if env("WOT", 0) == 1:
        A(f"s_mul_i32 s{sT}, s{sQ}, {196*128}")
        set_exec((1 << 49) - 1)
        for k in range(4): A(f"s_add_u32 s{sU}, s{sT}, {k*49*128}\nbuffer_load_dword v24, v6, {R(RWO)}, s{sU} offen")
        A("s_mov_b64 exec, -1")
    if STAMP:
        A("s_waitcnt vmcnt(0)"); stamp("h_touch"); stamp_flush(); A(f"v_mov_b32 v15, v{VST}\ns_branch B_P2S")
    A("s_branch B_P2\nH_W:\ns_waitcnt lgkmcnt(0)\ns_barrier\ns_branch B_P2")

XA = LDS_TOTAL - 65536
XBUF = [8192, 0, 8192, 4096]
def p1_common():
    sWO, sM = sA, sC
    A(f"s_mul_i32 s{sWO}, s{sSEC}, 896\ns_mul_i32 s{sT}, s{sHQ}, 224\ns_add_u32 s{sWO}, s{sWO}, s{sT}")
    A(f"s_lshl_b32 s{sE}, s{sI}, 2\ns_add_u32 s{sE}, s{sE}, s{SW}\ns_lshl_b32 s{sM}, s{SW}, 14\ns_add_u32 s{sM}, s{sM}, {XA}")

def p1():
    XF, ACC, WF = 16, 128, 192
    VXR = list(range(80, 88)); VXS = list(range(88, 92)); VWR = [92, 93]; TAGV = 94
    xf = lambda ks: XF + ((ks + 8) & 15)*4 if False else XF + (ks & 15)*4
    sWO, sM = sA, sC
    A("A_P1:")
    prologue2()
    p1_common()
    A(f"v_and_b32 v4, 31, v1\nv_lshrrev_b32 v5, 5, v1\nv_and_b32 v6, 15, v1\nv_xor_b32 v6, v6, v5\nv_lshlrev_b32 v6, 4, v6\nv_lshl_add_u32 v6, v4, 8, v6\nv_add_u32 v6, s{sM}, v6")
    for k in range(8): A(f"v_xor_b32 v{VXR[k]}, {k<<5}, v6")
    A(f"v_bfe_u32 v6, v1, 1, 3\nv_xor_b32 v6, v6, v5\nv_lshlrev_b32 v6, 4, v6\nv_lshl_add_u32 v6, v4, 7, v6\nv_add_u32 v6, s{sM}, v6")
    for k in range(4): A(f"v_xor_b32 v{VXS[k]}, {k<<5}, v6")
    tr_lane_addr(VWR[0], 4, 224, 8, 2); A(f"v_add_u32 v{VWR[1]}, {14*3584}, v{VWR[0]}")
    A("s_waitcnt lgkmcnt(0)")
    stamp("karg")
    A(f"s_or_b32 s{sT}, s2, s{SW}\ns_cbranch_scc1 P1_NOTAG")
    A(f"s_bitset1_b32 s{sTAG+1}, 31\nv_mov_b32 v8, s{sTAG}\nv_mov_b32 v9, s{sTAG+1}\nv_mov_b32 v10, 0\nv_mov_b32 v11, 0\ns_mov_b64 exec, 1\nbuffer_atomic_cmpswap_x2 v[8:11], v10, {R(RDBG)}, 0 offen sc1\ns_mov_b64 exec, -1\nP1_NOTAG:")
    A(f"s_mov_b32 s7, s{sE}")
    roles()
    addr_setup()
    A(f"s_mov_b32 s{sE}, s7\ns_lshl_b32 s{sM}, s{SW}, 14\ns_add_u32 s{sM}, s{sM}, {XA}")
    stamp_flush()
    A(f"s_cmp_eq_u32 s{sSEC}, 2\ns_cbranch_scc1 P1_V")
    for isv in (0, 1):
        vm.q = []; lg.q = []
        if isv: A("P1_V:")
        def xread(p):
            for k in range(8 if p < 3 else 4):
                A(f"ds_read_b128 {v(xf(8*p+k), 4)}, v{(VXR if p < 3 else VXS)[k]} offset:{XBUF[p]}"); lg.issue(f"x{p}")
        def wread(ks, hds=range(4)):
            for hd in hds:
                for half in range(2):
                    A(f"ds_read_b64_tr_b16 {v(WF + (ks&1)*16 + hd*4 + half*2, 2)}, v{VWR[ks//14]} offset:{(ks%14)*3584 + half*224 + hd*56}"); lg.issue(f"w{ks}_{hd}")
        C = [16, 32, 64, 96]; PK = WF; RS = 112
        A(f"s_lshl_b32 s{sT}, s{SW}, 10\nv_lshrrev_b32 v5, 5, v1\nv_lshl_add_u32 v5, v5, 4, s{sT}\nv_and_b32 v6, 31, v1\nv_lshl_add_u32 v4, v6, 2, s{sT}\nv_mov_b32 v9, 0")
        A(f"s_lshl_b32 s{sU}, s{sHQ}, 8\ns_add_u32 s{sU}, s{sU}, s{sE}")
        if not isv:
            A(f"s_cmp_eq_u32 s{sSEC}, 0\ns_cselect_b32 s{sA}, 0, s{sONES}\ns_cselect_b32 s{sB}, 0, 0x3f80\ns_cselect_b32 s{sC}, {WS_Q}, {WS_KV}")
            A(f"s_add_u32 s{sD_}, s{sSEC}, 11\ns_lshl_b32 s{sU}, s{sU}, s{sD_}\ns_add_u32 s{sU}, s{sU}, s{sC}\ns_lshl_b32 s{sD_}, 64, s{sD_}\nv_mov_b32 v7, s{sA}\nv_mov_b32 v8, s{sB}")
            cr = [f"ds_read_b32 v{RS}, v4 offset:512", f"ds_read_b32 v{RS+2}, v4 offset:640"] + [f"ds_read_b128 {v(C[hd]+4*g,4)}, v5 offset:{hd*112 + g*32}" for hd in range(4) for g in range(4)]
        else:
            A(f"s_lshl_b32 s{sU}, s{sU}, 12\ns_add_u32 s{sU}, s{sU}, {WS_KV + 2048}\ns_mov_b32 s{sD_}, {64*4096}\ns_mov_b32 s{sA}, 0x0fffffff\ns_mov_b32 s{sA+1}, 0x0fffffff")
            A(f"v_cmp_eq_u32 vcc, 28, v6\nv_mov_b32 v7, s{sONES}\nv_cndmask_b32 v8, 0, v7, vcc")
            PK = 96
            for r in range(16): A(f"v_mov_b32 v{PK+r}, v8")
            cr = [f"ds_read_b128 {v(16+4*g,4)}, v5 offset:{512 + g*32}" for g in range(4)] + [f"ds_read_b128 {v(32+4*g,4)}, v5 offset:{640 + g*32}" for g in range(4)] + [f"ds_read_b32 v{RS+2*hd}, v4 offset:{hd*112}" for hd in range(4)]
        for p in range(4):
            k0, k1 = 8*p, min(8*p + 8, 28)
            A("s_barrier"); stamp(f"g{p}")
            xread(p); wread(k0, [0, 1, 2])
            if p == 2: A(f"buffer_load_dwordx2 {v(TAGV,2)}, v9, {R(RDBG)}, 0 offen sc1")
            lg.wait(f"x{p}")
            if p < 2: A("s_barrier")
            wread(k0, [3])
            for ks in range(k0, k1):
                x = v(xf(ks), 4)
                for hd in range(4):
                    lg.wait(f"w{ks}_{hd}")
                    w_ = v(WF + (ks&1)*16 + hd*4, 4); acc = v(ACC + 16*hd, 16)
                    A(f"{MFMA} {acc}, {x if isv else w_}, {w_ if isv else x}, {'0' if ks == 0 else acc}")
                    if ks + 1 < k1: wread(ks + 1, [hd])
                    if p == 3:
                        for _ in range(3 if ks == 27 else (1 if hd & 1 else 0)):
                            if cr: A(cr.pop(0)); lg.issue("c")
        assert not cr
        stamp("mfma_done")
        lg.wait_all()
        for hd in range(4):
            ac = ACC + 16*hd
            if not isv:
                c, o = C[hd], PK + 8*hd
                for r in range(0, 16, 2): A(f"v_pk_mul_f32 {v(c+r,2)}, {v(c+r,2)}, {v(RS+2,2)} op_sel_hi:[1,0]")
                for r in range(0, 16, 2): A(f"v_pk_fma_f32 {v(ac+r,2)}, {v(ac+r,2)}, {v(RS,2)}, {v(c+r,2)} op_sel_hi:[1,0,1]")
            else:
                o = PK + 8*(hd & 1)
                for r in range(0, 16, 2): A(f"v_pk_mul_f32 {v(64+r,2)}, {v(32+r,2)}, {v(RS+2*hd,2)} op_sel_hi:[1,0]")
                for r in range(0, 16, 2): A(f"v_pk_fma_f32 {v(ac+r,2)}, {v(ac+r,2)}, {v(16+r,2)}, {v(64+r,2)}")
                A(f"s_mov_b64 exec, s[{sA}:{sA+1}]")
            for r in range(8): A(f"v_cvt_pk_bf16_f32 v{o+r}, v{ac+2*r}, v{ac+2*r+1}")
            if not isv: A(f"v_cndmask_b32 v{o+6}, v{o+6}, v7, s[{sHI}:{sHI+1}]\nv_cndmask_b32 v{o+7}, v{o+7}, v8, s[{sHI}:{sHI+1}]\nv_and_b32 v{o+3}, 0xfffefffe, v{o+3}\nv_and_b32 v{o+7}, 0xfffefffe, v{o+7}")
            else: A(f"v_and_b32 v{o+3}, -2, v{o+3}\nv_and_b32 v{o+7}, -2, v{o+7}\ns_mov_b64 exec, -1")
            for f in range(2): A(f"buffer_store_dwordx4 {v(o+4*f,4)}, v{VL}, {R(RWS)}, s{sU} offen offset:{f*1024} sc1")
            if hd < 3: A(f"s_add_u32 s{sU}, s{sU}, s{sD_}")
        stamp("kvst"); stamp_flush()
        if not isv: A("s_branch P1_DONE")
    A("P1_DONE:\ns_waitcnt vmcnt(8)")
    get_tag(TAGV, "P1_T")

def tilemax(sreg, T0, T1):
    A(f"v_max3_f32 v{T0}, v{sreg}, v{sreg+1}, v{sreg+2}\nv_max3_f32 v{T1}, v{sreg+3}, v{sreg+4}, v{sreg+5}")
    A(f"v_max3_f32 v{T0}, v{T0}, v{sreg+6}, v{sreg+7}\nv_max3_f32 v{T1}, v{T1}, v{sreg+8}, v{sreg+9}")
    A(f"v_max3_f32 v{T0}, v{T0}, v{sreg+10}, v{sreg+11}\nv_max3_f32 v{T1}, v{T1}, v{sreg+12}, v{sreg+13}")
    A(f"v_max3_f32 v{T0}, v{T0}, v{sreg+14}, v{sreg+15}")
def set_qpad(q, m, T0, T1, T2):
    A(f"v_sub_f32 v{T0}, 0, v{m}\nv_and_b32 v{T1}, 0xffff0000, v{T0}\nv_sub_f32 v{T0}, v{T0}, v{T1}")
    A(f"v_and_b32 v{T2}, 0xffff0000, v{T0}\nv_sub_f32 v{T0}, v{T0}, v{T2}\nv_lshrrev_b32 v{T0}, 16, v{T0}")
    A(f"v_lshrrev_b32 v{T1}, 16, v{T1}\nv_or_b32 v{T1}, v{T1}, v{T2}")
    A(f"v_cndmask_b32 v{q+6}, v{q+6}, v{T1}, s[{sHI}:{sHI+1}]\nv_cndmask_b32 v{q+7}, v{q+7}, v{T0}, s[{sHI}:{sHI+1}]")

NKV = env("NKV", 4)
XR, IR3 = (224, 232) if NKV == 4 else (176, 184)
VRD, VFL, VKV, VONE, VRB, VWO = [240, 241], 242, 243, 244, [246, 247], 248
VO3, VP3, VH, VP4, VG, VP5 = [10, 11], 12, [14, 15], 3, [253, 254], 242
sRO, sGC, sGST, sHFO, sFO, sRT3 = 96, 97, 98, 99, 100, 101
VRW = [249, 250, 251, 252]
def ident3():
    A("v_and_b32 v4, 31, v1\nv_lshrrev_b32 v5, 5, v1\nv_lshlrev_b32 v6, 3, v5\nv_sub_u32 v6, v4, v6")
    for p in range(2):
        for r in range(4):
            A(f"v_cmp_eq_u32 vcc, {16*p+2*r}, v6\nv_cmp_eq_u32 s[{sU}:{sU+1}], {16*p+2*r+1}, v6\nv_cndmask_b32 v{IR3+4*p+r}, 0, v{VONE}, vcc\nv_cndmask_b32 v{IR3+4*p+r}, v{IR3+4*p+r}, v{VONE+1}, s[{sU}:{sU+1}]")
def addr_setup():
    tr_lane_addr(4, 5, 128, 4)
    A(f"s_and_b32 s{sT}, s{SW}, 1\ns_lshl_b32 s{sT}, s{sT}, 5\nv_xor_b32 v4, s{sT}, v4")
    A(f"v_bfe_u32 v5, v1, 3, 1\ns_lshr_b32 s{sT}, s{SW}, 1\nv_xor_b32 v5, s{sT}, v5")
    A(f"v_lshl_add_u32 v6, v5, 6, v4\nv_xor_b32 v5, 1, v5\nv_lshl_add_u32 v7, v5, 6, v4")
    A(f"v_add_u32 v{VRD[0]}, s{sW2W}, v6\nv_add_u32 v{VRD[1]}, s{sW2W}, v7")
    A(f"v_mov_b32 v{VONE}, 0x3f80\nv_mov_b32 v{VONE+1}, 1.0")
    A(f"s_lshl_b32 s{sT}, s{sH}, 2\ns_add_u32 s{sT}, s{sT}, s{SW}\ns_lshl_b32 s{sT}, s{sT}, 16\ns_add_u32 s{sT}, s{sT}, {WS_KV}\nv_add_u32 v{VKV}, s{sT}, v{VL}")
    tr_lane_addr(VWO, 4, 64, 4); A(f"v_add_u32 v{VWO}, {RBUF}, v{VWO}\nv_add_u32 v{VRW[0]}, s{sRBW}, v{VL}")
    for t in range(1, 4):
        A(f"s_add_u32 s{sT}, s{SW}, {t}\ns_and_b32 s{sT}, s{sT}, 3\ns_mul_i32 s{sT}, s{sT}, 12288\ns_add_u32 s{sT}, s{sT}, {RBUF}\nv_add_u32 v{VRW[t]}, s{sT}, v{VL}")
    if NKV == 4: ident3()
    A("v_and_b32 v4, 31, v1\nv_lshrrev_b32 v5, 5, v1")
    A("v_mul_u32_u24 v13, 896, v4\nv_lshl_add_u32 v13, v5, 4, v13")
    A(f"s_lshl_b32 s{sB}, s{sR3}, 11\ns_add_u32 s{sB}, s{sB}, {WS_O}\nv_add_u32 v{VO3[0]}, s{sB}, v{VL}\nv_add_u32 v{VO3[1]}, 0x20000, v{VO3[0]}\ns_and_b32 s{sT}, s{sC3}, 7\ns_lshl_b32 s{sRT3}, s{sT}, 18")
    A(f"s_lshl_b32 s{sT}, s{sT}, 1\nv_add_u32 v{VP3}, s{sT}, v1\nv_and_b32 v{VP3}, 15, v{VP3}\nv_lshlrev_b32 v{VP3}, 17, v{VP3}\ns_add_u32 s{sT}, s{sB}, 2044\nv_add_u32 v{VP3}, s{sT}, v{VP3}")
    mlp_addr(RA, 4, 6)
    A(f"s_lshl_b32 s{sFO}, s{sFT}, 2\ns_add_u32 s{sFO}, s{sFO}, s{SW}\ns_mul_i32 s{sT}, s{sDT4}, {2*112*1024}\ns_lshl_b32 s{sU}, s{sFO}, 10\ns_add_u32 s{sT}, s{sT}, s{sU}\ns_add_u32 s{sGST}, s{sT}, {WS_G}")
    A(f"s_lshr_b32 s{sV}, s{SW}, 1\ns_lshl_b32 s{sT}, s{sST}, 1\ns_add_u32 s{sV}, s{sV}, s{sT}\ns_mul_i32 s{sV}, s{sV}, 7\ns_add_u32 s{sV}, s{sV}, s{sDT5}\ns_lshl_b32 s{sV}, s{sV}, 12\ns_and_b32 s{sT}, s{SW}, 1\ns_lshl_b32 s{sT}, s{sT}, 10\ns_add_u32 s{sV}, s{sV}, s{sT}\ns_add_u32 s{sHFO}, s{sV}, {WS_HF}")
    A(f"s_xor_b32 s{sT}, s{SW}, 3\ns_mul_i32 s{sT}, s{sT}, 28672\ns_add_u32 s{sT}, s{sT}, {13*2048}\nv_add_u32 v{VX3}, s{sT}, v{VL}")

class Role: pass
RA, RB = Role(), Role()
C5A = env("C5A", 12)
RA.n, RA.n4, RA.c4, RA.n5, RA.c5, RA.W, RA.slots = "A", 0, 12, 0, C5A, 128, [0, 1, 2, 3, 4, 5]
RA.VRD, RA.VH, RA.VG, RA.VP4, RA.VP5, RA.VT2, RA.T0, RA.T1 = [240, 241], 14, 253, 3, 242, [246, 247], 4, 5
RB.n, RB.n4, RB.c4, RB.n5, RB.c5, RB.W, RB.slots = "B", 12, 20, C5A, 28 - C5A, 96, [12, 6, 7, 8, 9, 10, 11]
RB.VRD, RB.VH, RB.VG, RB.VP4, RB.VP5, RB.VT2, RB.T0, RB.T1 = [0, 3], 4, 5, 8, 9, [6, 7], 12, 13
VX3 = 15
def w2_addr(r, t0, t1):
    A(f"v_lshrrev_b32 v{t0}, 3, v1\nv_bfe_u32 v{t1}, v1, 4, 1\nv_lshlrev_b32 v{t1}, 2, v{t1}\nv_and_b32 v{r.VT2[0]}, 7, v1\nv_xor_b32 v{t1}, v{r.VT2[0]}, v{t1}\nv_lshlrev_b32 v{t1}, 4, v{t1}\nv_lshl_add_u32 v{t0}, v{t0}, 12, v{t1}")
    A(f"s_mul_i32 s{sT}, s{SW}, {448*4096}\ns_lshl_b32 s{sU}, s{sST}, 7\ns_add_u32 s{sT}, s{sT}, s{sU}\nv_add_u32 v{r.VT2[0]}, s{sT}, v{t0}\nv_add_u32 v{r.VT2[1]}, {8*4096 - 1024}, v{r.VT2[0]}")
    rot4(sRO); A(f"s_lshl_b32 s{sRO}, s{sRO}, 10")
    rot5(sGC); A(f"s_lshl_b32 s{sGC}, s{sGC}, 10")
def mlp_addr(r, t0, t1, w2=True):
    if w2: w2_addr(r, t0, t1)
    A(f"s_lshl_b32 s{sT}, s{SW}, 15\ns_add_u32 s{sT}, s{sT}, {WS_HH}\ns_lshl_b32 s{sB}, s{sDT4}, 18\ns_add_u32 s{sB}, s{sB}, s{sT}\nv_add_u32 v{r.VH}, s{sB}, v{VL}")
    A(f"s_add_u32 s{sT}, s{sRO}, {r.n4*1024}\nv_lshl_add_u32 v{r.VP4}, v1, 11, s{sT}\nv_and_b32 v{r.VP4}, 0x7fff, v{r.VP4}\ns_add_u32 s{sT}, s{sB}, 2044\nv_add_u32 v{r.VP4}, s{sT}, v{r.VP4}")
    A(f"s_mul_i32 s{sT}, s{SW}, {28*1024}\ns_add_u32 s{sT}, s{sT}, {WS_G}\ns_mul_i32 s{sB}, s{sDT5}, {2*112*1024}\ns_add_u32 s{sB}, s{sB}, s{sT}")
    A(f"s_and_b32 s{sT}, s{SW}, 1\ns_lshl_b32 s{sT}, s{sT}, 8\nv_xor_b32 v{r.VG}, s{sT}, v{VL}\nv_add_u32 v{r.VG}, s{sB}, v{r.VG}")
    A(f"s_add_u32 s{sT}, s{sGC}, {r.n5*1024}\nv_min_u32 v{t0}, {r.c5 // 2 - 1}, v1\nv_lshl_add_u32 v{r.VP5}, v{t0}, 11, s{sT}\nv_subrev_u32 v{t0}, {28*1024}, v{r.VP5}\nv_min_u32 v{r.VP5}, v{r.VP5}, v{t0}\ns_add_u32 s{sT}, s{sB}, 2044\nv_add_u32 v{r.VP5}, s{sT}, v{r.VP5}")

def p2():
    Q, O, SS, PP, KV = 16, 48, [112, 128], [144, 152], 160
    M = [112, 113, 114, 115]; K0 = 120
    T0, T1, T2, T3 = 4, 5, 6, 7
    sKN = sB
    vm.wait_all(); stamp("kvdrain")
    A(f"s_barrier\ns_cmp_lg_u32 s{SW}, 0\ns_cbranch_scc1 P2_NOF")
    flag_store(sF[0]); flag_store(sF[1]); A("P2_NOF:"); stamp_flush()
    A("P2_START:")
    if env("LOC3", 1):
        A(f"s_getreg_b32 s{sV}, hwreg(HW_REG_XCC_ID, 0, 4)\ns_cmp_lg_u32 s{SW}, 1\ns_cbranch_scc1 P2_NOX")
        A(f"s_lshr_b32 s{sT}, s{sR3}, 2\ns_lshl_b32 s{sT}, s{sT}, 4\ns_add_u32 s{sT}, s{sT}, s{sC3}\ns_lshl_b32 s{sT}, s{sT}, 4\ns_add_u32 s{sT}, s{sT}, {F4}")
        A(f"v_mov_b32 v4, s{sV}\nv_mov_b32 v5, s{sTAG}\nv_mov_b32 v6, s{sV}\nv_mov_b32 v7, s{sTAG+1}\nv_mov_b32 v8, 0\ns_mov_b64 exec, 1\nbuffer_store_dwordx4 v[4:7], v8, {R(RWS)}, s{sT} offen sc1\ns_mov_b64 exec, -1\nP2_NOX:")
    A(f"s_mul_i32 s{sE}, s{sR3}, {32*896}\ns_lshl_b32 s{sU}, s{sC3}, 6\ns_add_u32 s{sE}, s{sE}, s{sU}")
    xl = [f"buffer_load_dwordx4 {v(XR+4*p,4)}, v13, {R(RX)}, s{sE} offen offset:{32*p}" for p in range(2)]
    if NKV == 4: A("\n".join(xl))
    A(f"s_lshl_b32 s{sV}, s{sI}, 2\ns_add_u32 s{sV}, s{sV}, s{SW}\ns_lshl_b32 s{sU}, s{sH}, 6\ns_add_u32 s{sU}, s{sU}, s{sV}\ns_lshl_b32 s{sU}, s{sU}, 11")
    A(f"s_lshr_b32 s{sT}, s{sH}, 2\ns_lshl_b32 s{sT}, s{sT}, 13\ns_add_u32 s{sT}, s{sT}, {F1}\ns_lshl_b32 s{sA}, s{SW}, 9\ns_add_u32 s{sA}, s{sA}, 2048\ns_lshl_b32 s{sC}, s{sI}, 7")
    A(f"v_and_b32 v7, 3, v1\nv_lshl_add_u32 v7, v7, 7, s{sA}\nv_bfe_u32 v8, v1, 2, 1\nv_lshl_add_u32 v7, v8, 11, v7\nv_writelane_b32 v7, s{sC}, 8")
    poll(7, sT, 9, 8); stamp("s1")
    def kvload(n):
        pre = []
        if n == 0: pre = [f"s_add_u32 s{sA}, s{RWS}, 4096", f"s_addc_u32 s{sA+1}, s{RWS+1}, 0"]
        elif n % 2 == 0: pre = [f"s_add_u32 s{sA}, s{sA}, 8192", f"s_addc_u32 s{sA+1}, s{sA+1}, 0"]
        return pre + [f"global_load_dwordx4 {v(KV+16*(n%NKV)+4*f,4)}, v{VKV}, s[{sA}:{sA+1}] offset:{(n % 2 - 1)*4096 + f*1024} sc1" for f in range(4)]
    def emit(lines, tag):
        for ln in lines:
            A(ln)
            if ln.startswith("global_"): vm.issue(tag)
    for f in range(2): A(f"buffer_load_dwordx4 {v(Q+4*f,4)}, v{VL}, {R(RWS)}, s{sU} offen offset:{f*1024} sc1"); vm.issue("q")
    emit(kvload(0), "kv0")
    A("s_waitcnt vmcnt(2)"); stamp("qk0")
    A(f"{MFMA} {v(O,16)}, {v(KV,4)}, {v(Q,4)}, 0\n{MFMA} {v(O,16)}, {v(KV+4,4)}, {v(Q+4,4)}, {v(O,16)}")
    emit(kvload(1), "kv1")
    A(f"ds_write_b128 v{VRW[0]}, {v(Q,4)}")
    tilemax(O, T0, T1)
    A(f"v_max_f32 v{T0}, v{T0}, v{T1}\nv_mov_b32 v{T1}, v{T0}\nv_permlane32_swap_b32 v{T0}, v{T1}\nv_max_f32 v{T0}, v{T0}, v{T1}")
    set_qpad(Q, T0, T1, T2, T3)
    A(f"ds_write_b128 v{VRW[0]}, {v(Q+4,4)} offset:1024")
    A(f"{MFMA} {v(SS[0],16)}, {v(KV,4)}, {v(Q,4)}, 0\n{MFMA} {v(SS[0],16)}, {v(KV+4,4)}, {v(Q+4,4)}, {v(SS[0],16)}")
    emit(kvload(2), "kv2")
    A("s_waitcnt lgkmcnt(0)")
    A("s_barrier")
    for t in range(1, 4): A(f"ds_read_b128 {v(Q+8*t,4)}, v{VRW[t]}\nds_read_b128 {v(Q+8*t+4,4)}, v{VRW[t]} offset:1024")
    emit(kvload(3), "kv3")
    if env("APRIO", 0): A(f"s_setprio {env('APRIO', 0)}")
    A("P2_MAIN:")
    slot = lambda idx: (idx + (idx >= 60)) & 3
    pwr = lambda t, g: f"ds_write_b128 v{VRW[t]}, {v(O+16*t+4*g,4)} offset:{(t-1)*4096 + g*1024}"
    def qk(idx, part):
        n, t = idx >> 2, slot(idx); sr = SS[idx & 1]; k = KV + 16*(n % NKV)
        return f"{MFMA} {v(sr,16)}, {v(k+4*part,4)}, {v(Q+8*t+4*part,4)}, {'0' if part == 0 else v(sr,16)}"
    def pv(idx, part):
        n, t = idx >> 2, slot(idx); k = KV + 16*(n % NKV) + 8; o = O + 16*t
        return f"{MFMA} {v(o,16)}, {v(k+4*part,4)}, {v(PP[idx&1]+4*part,4)}, {'0' if (n == 0 and part == 0) else v(o,16)}"
    NI = 64
    for idx in range(NI):
        n, t = idx >> 2, idx & 3
        if idx in (16, 32, 48): stamp(f"a{idx}")
        side = [[], [], [], []]
        if NKV > 4 and idx == 53: side = [xl[:1], [], xl[1:], []]
        if t in (1, 2) and 4 <= n + NKV - 1 < 16:
            l = kvload(n + NKV - 1); pre, ld = l[:-4], l[-4:]
            side = [pre[:1], pre[1:], ld[0:1], ld[1:2]] if t == 1 else [ld[2:3], ld[3:4], [], []]
        if idx == 62: side = [[], [pwr(1, 0)], [pwr(1, 1)], [pwr(1, 2)]]
        if idx == 63: side = [[], [pwr(2, 0), pwr(2, 1)], [], [pwr(2, 2)]]
        if idx == env("CUTAT", 61): side[0].append(f"ds_write_b32 v{VRW[1]}, v{VONE} offset:3072")
        mf = [qk(idx+1, 0) if idx+1 < NI else None, pv(idx-1, 0) if idx > 0 else None,
              qk(idx+1, 1) if idx+1 < NI else None, pv(idx-1, 1) if idx > 0 else None]
        if idx == 0: mf = [None, "s_waitcnt lgkmcnt(0)\n" + mf[0], mf[2], None]
        sr, p = SS[idx & 1], PP[idx & 1]
        for q in range(4):
            if mf[q]: A(mf[q])
            emit(side[q], f"kv{n+NKV-1}")
            if idx == 0 and q == 2: vm.wait("kv0")
            if t == 2 and q == 3 and n + 1 < 16: vm.wait(f"kv{n+1}")
            for j in range(4): A(f"v_exp_f32 v{sr+4*q+j}, v{sr+4*q+j}")
            if q > 0:
                for j in range(2): A(f"v_cvt_pk_bf16_f32 v{p+2*(q-1)+j}, v{sr+4*(q-1)+2*j}, v{sr+4*(q-1)+2*j+1}")
        for j in range(2): A(f"v_cvt_pk_bf16_f32 v{p+6+j}, v{sr+12+2*j}, v{sr+12+2*j+1}")
    A(pv(NI-1, 0)); A(pv(NI-1, 1)); stamp("aend")
    for g in range(3): A(pwr(3, g))
    A(f"s_mov_b32 s{sT}, {fl(2.0**30)}")
    A(f"v_cmp_nlt_f32 s[{sA}:{sA+1}], v{O+60}, s{sT}\nv_cmp_nlt_f32 s[{sC}:{sC+1}], v{O+28}, s{sT}\ns_or_b32 s{sU}, s{sA+1}, s{sC+1}")
    A(f"v_cmp_nlt_f32 s[{sA}:{sA+1}], v{O+44}, s{sT}\nv_cmp_nlt_f32 s[{sC}:{sC+1}], v{O+12}, s{sT}\ns_or_b32 s{sU}, s{sU}, s{sA+1}\ns_or_b32 s{sU}, s{sU}, s{sC+1}")
    A(f"s_cselect_b32 s{sU}, 1.0, 0\nv_mov_b32 v{T0}, s{sU}")
    for t in range(4): A(f"v_cndmask_b32 v{O+16*t+13}, v{O+16*t+13}, v{T0}, s[{sHI}:{sHI+1}]")
    for t in range(1, 4): A(f"ds_write_b128 v{VRW[t]}, {v(O+16*t+12,4)} offset:{(t-1)*4096 + 3*1024}")
    A(f"s_lshl_b32 s{sD_}, s{sI}, 2\ns_add_u32 s{sD_}, s{sD_}, s{SW}\ns_lshl_b32 s{sV}, s{sH}, 6\ns_add_u32 s{sV}, s{sV}, s{sD_}\ns_lshl_b32 s{sV}, s{sV}, 11\ns_add_u32 s{sV}, s{sV}, {WS_O}")
    A("s_waitcnt lgkmcnt(0)\ns_barrier")
    for g in (3, 0, 1, 2):
        for t in range(1, 4): A(f"ds_read_b128 {v(O+16*t+4*g,4)}, v{VRW[0]} offset:{(t-1)*4096 + g*1024}")
    def red(g):
        for r in (4*g, 4*g+2):
            A(f"v_pk_add_f32 {v(O+r,2)}, {v(O+r,2)}, {v(O+16+r,2)}\nv_pk_add_f32 {v(O+32+r,2)}, {v(O+32+r,2)}, {v(O+48+r,2)}")
        for r in (4*g, 4*g+2): A(f"v_pk_add_f32 {v(O+r,2)}, {v(O+r,2)}, {v(O+32+r,2)}")
    A("s_waitcnt lgkmcnt(9)"); red(3)
    A(f"v_readlane_b32 s{sT}, v{O+13}, 32\nv_mov_b32 v{T0}, v{O+12}\nv_mov_b32 v{T2}, v{O+12}\nv_permlane32_swap_b32 v{T0}, v{T2}\nv_rcp_f32 v{T2}, v{T2}")
    A(f"s_cmp_lg_u32 s{sT}, s{sRETRY}\ns_cbranch_scc1 P2_FALL\nP2_FIN:")
    for k, g in enumerate((0, 1, 2)):
        A(f"s_waitcnt lgkmcnt({6 - 3*k})"); red(g)
    for r in range(0, 16, 2): A(f"v_pk_mul_f32 {v(O+r,2)}, {v(O+r,2)}, {v(T2,2)} op_sel_hi:[1,0]")
    for r in range(8): A(f"v_cvt_pk_bf16_f32 v{O+16+r}, v{O+2*r}, v{O+2*r+1}")
    A(f"v_cndmask_b32 v{O+22}, v{O+22}, 0, s[{sHI}:{sHI+1}]\nv_cndmask_b32 v{O+23}, v{O+23}, 0, s[{sHI}:{sHI+1}]")
    A(f"s_mov_b32 s{sT}, 0xfffeffff\nv_and_or_b32 v{O+19}, v{O+19}, s{sT}, 1\nv_and_or_b32 v{O+23}, v{O+23}, s{sT}, 1")
    for f in range(2): A(f"buffer_store_dwordx4 {v(O+16+4*f,4)}, v{VL}, {R(RWS)}, s{sV} offen offset:{f*1024} sc1")
    stamp("ost")
    if STAMP and env("ACK", 0): A("s_waitcnt vmcnt(0)"); stamp("oack")
    stamp_flush()
    A("s_barrier")
    def fallback():
        A(f"P2_FALL:\ns_cmp_lg_u32 s{sRETRY}, 0\ns_cbranch_scc1 P2_FIN")
        A(f"s_mov_b32 s{sRETRY}, -1\ns_waitcnt vmcnt(0) lgkmcnt(0)")
        for t in range(4):
            A(f"v_cndmask_b32 v{Q+8*t+6}, v{Q+8*t+6}, 0, s[{sHI}:{sHI+1}]\nv_cndmask_b32 v{Q+8*t+7}, v{Q+8*t+7}, 0, s[{sHI}:{sHI+1}]\nv_mov_b32 v{M[t]}, 0xff800000")
        A(f"s_mov_b32 s{sU}, 0\nP2_MAXLOOP:")
        for f in range(2): A(f"buffer_load_dwordx4 {v(K0+4*f,4)}, v{VKV}, {R(RWS)}, s{sU} offen offset:{f*1024} sc1")
        A("s_waitcnt vmcnt(0)")
        for t in range(4):
            A(f"{MFMA} {v(O+16*t,16)}, {v(K0,4)}, {v(Q+8*t,4)}, 0\n{MFMA} {v(O+16*t,16)}, {v(K0+4,4)}, {v(Q+8*t+4,4)}, {v(O+16*t,16)}")
        for t in range(4):
            tilemax(O+16*t, T0, T1); A(f"v_max3_f32 v{M[t]}, v{M[t]}, v{T0}, v{T1}")
        A(f"s_add_u32 s{sU}, s{sU}, 4096\ns_cmp_lt_u32 s{sU}, {16*4096}\ns_cbranch_scc1 P2_MAXLOOP")
        A(f"s_barrier\nv_and_b32 v{T3}, 31, v1\nv_lshlrev_b32 v{T3}, 4, v{T3}")
        for t in range(4):
            A(f"v_mov_b32 v{T2}, v{M[t]}\nv_permlane32_swap_b32 v{M[t]}, v{T2}\nv_max_f32 v{M[t]}, v{M[t]}, v{T2}")
            A(f"s_add_u32 s{sT}, s{SW}, {t}\ns_and_b32 s{sT}, s{sT}, 3\ns_lshl_b32 s{sT}, s{sT}, 9\ns_add_u32 s{sT}, s{sT}, {RBUF}\ns_lshl_b32 s{sU}, s{SW}, 2\ns_add_u32 s{sU}, s{sU}, s{sT}")
            A(f"v_add_u32 v{K0+t}, s{sT}, v{T3}\nv_add_u32 v{T2}, s{sU}, v{T3}\nds_write_b32 v{T2}, v{M[t]}")
        A("s_waitcnt lgkmcnt(0)\ns_barrier")
        for t in range(4): A(f"ds_read_b128 {v(O+4*t,4)}, v{K0+t}")
        for n in range(4):
            for ln in kvload(n): A(ln)
        A("s_waitcnt vmcnt(0) lgkmcnt(0)\ns_barrier")
        for t in range(4):
            A(f"v_max3_f32 v{M[t]}, v{O+4*t}, v{O+4*t+1}, v{O+4*t+2}\nv_max_f32 v{M[t]}, v{M[t]}, v{O+4*t+3}")
            set_qpad(Q+8*t, M[t], T0, T1, T2)
        A(qk(0, 0)); A(qk(0, 1))
        A("s_branch P2_MAIN")
    return fallback

def p3():
    EP = env("EP", 0)
    D1, D2, TF = 96, 112, 80 if EP else 176
    ofr = (lambda ks: 16 + 4*(ks & 15)) if EP else (lambda ks: 16 + 4*ks if ks < 20 else 128 + 4*(ks - 20))
    T0, T1, T2, T3 = 8, 9, 4, 5
    if NKV > 4: ident3(); A("s_waitcnt vmcnt(2)")
    A(f"{MFMA} {v(D1,16)}, {v(XR,4)}, {v(IR3,4)}, 0\n{MFMA} {v(D2,16)}, {v(IR3,4)}, {v(XR,4)}, 0")
    A(f"{MFMA} {v(D1,16)}, {v(XR+4,4)}, {v(IR3+4,4)}, {v(D1,16)}\n{MFMA} {v(D2,16)}, {v(IR3+4,4)}, {v(XR+4,4)}, {v(D2,16)}")
    for sl in range(1, 4):
        A(f"s_xor_b32 s{sU}, s{SW}, {sl}\ns_mul_i32 s{sU}, s{sU}, 12288\ns_add_u32 s{sU}, s{sU}, {RBUF}\nv_add_u32 v{VRW[sl]}, s{sU}, v{VL}")
    A(f"s_barrier\ns_cmp_lt_u32 s{sC3}, 14\ns_cbranch_scc0 P3_END")
    vm.q = []; lg.q = []
    so = Stream("SO", 8, lambda g: [(ofr(4*g+k), VO3[k >> 1], (k & 1)*1024) for k in range(4)],
                lambda g: A(f"s_add_u32 s{sT}, s{sRT3}, {g << 18}\ns_and_b32 s{sT}, s{sT}, 0x1fffff"), T0, 1, VP3, T1)
    NPRE = env("NPRE", 4)
    if env("LOC3", 1):
        A(f"s_lshr_b32 s{sT}, s{sR3}, 2\ns_lshl_b32 s{sT}, s{sT}, 8\ns_add_u32 s{sT}, s{sT}, {F4}\nv_min_u32 v6, 13, v1\nv_lshlrev_b32 v6, 4, v6\nbuffer_load_dwordx4 {v(192,4)}, v6, {R(RWS)}, s{sT} offen sc1")
    stamp("p3pre")
    for m in range(NPRE): so.issue(m)
    stamp("p3gate")
    LAG = env("LAG", 8)
    tf = lambda ks: TF + 4*(ks & 3) if ks < 32 - LAG else 192 + 4*(ks - 32 + LAG)
    def wread(ks):
        n, p = ks >> 1, ks & 1
        for half in range(2):
            A(f"ds_read_b64_tr_b16 {v(tf(ks)+2*half,2)}, v{VWO} offset:{(n>>2)*12288 + (n&3)*2048 + (16*p+8*half)*64}"); lg.issue(f"w{ks}")
    wread(0); wread(1)
    A("v_and_b32 v6, 31, v1\nv_lshlrev_b32 v6, 4, v6\nv_lshrrev_b32 v7, 5, v1\nv_mul_u32_u24 v7, 3584, v7\nv_add_u32 v6, v6, v7")
    so.check1(0); so.check2(0)
    if env("LOC3", 1):
        A(f"s_getreg_b32 s{sV}, hwreg(HW_REG_XCC_ID, 0, 4)\nv_xor_b32 v192, s{sV}, v192\nv_xor_b32 v193, s{sTAG}, v193\nv_xor_b32 v194, s{sV}, v194\nv_xor_b32 v195, s{sTAG+1}, v195")
        A(f"v_or3_b32 v192, v192, v193, v194\nv_or_b32 v192, v192, v195\nv_cmp_ne_u32 vcc, 0, v192\ns_or_b32 s{sE}, vcc_lo, vcc_hi")
    for ks in range(32):
        lg.wait(f"w{ks}")
        if ks in (0, 16): stamp(f"p3_{ks}")
        o, wv = v(ofr(ks), 4), v(tf(ks), 4)
        A(f"{MFMA} {v(D2,16)}, {wv}, {o}, {v(D2,16)}")
        if ks + 2 < 32 - LAG: wread(ks + 2)
        if 32 - 2*LAG - 2 <= ks < 32 - LAG - 2: wread(ks + LAG + 2)
        if ks < 32 - LAG: A(f"{MFMA} {v(D1,16)}, {o}, {wv}, {v(D1,16)}")
        if ks % 4 < 2:
            for k in range(2): so.issue_part(NPRE + ks//4, 2*(ks % 4) + k)
        if ks % 4 == 2: so.check1(ks//4 + 1)
        if ks % 4 == 3: so.check2(ks//4 + 1)
    stamp("p3mm")
    G = 16
    A(f"s_lshl_b32 s{sB}, s{sR3}, 13\ns_add_u32 s{sB}, s{sB}, {WS_ST}\ns_lshl_b32 s{sT}, s{sC3}, 9\ns_add_u32 s{sT}, s{sT}, s{sB}")
    A(f"v_mov_b32 v{G+1}, s{sTAG}\nv_mov_b32 v{G+3}, s{sTAG+1}")
    A(f"v_pk_add_f32 v[20:21], {v(D2,2)}, {v(D2+2,2)}\nv_pk_mul_f32 v[22:23], {v(D2,2)}, {v(D2,2)}\nv_pk_fma_f32 v[22:23], {v(D2+2,2)}, {v(D2+2,2)}, v[22:23]")
    for r in range(4, 16, 2): A(f"v_pk_add_f32 v[20:21], v[20:21], {v(D2+r,2)}\nv_pk_fma_f32 v[22:23], {v(D2+r,2)}, {v(D2+r,2)}, v[22:23]")
    A(f"v_add_f32 v{G}, v20, v21\nv_add_f32 v{G+2}, v22, v23")
    A(f"v_mov_b32 v20, v{G}\nv_mov_b32 v22, v{G+2}\nv_permlane32_swap_b32 v{G}, v20\nv_permlane32_swap_b32 v{G+2}, v22\nv_add_f32 v{G}, v{G}, v20\nv_add_f32 v{G+2}, v{G+2}, v22")
    set_exec(0xFFFFFFFF)
    if env("LOC3", 1):
        A(f"s_cmp_lg_u32 s{sE}, 0\ns_cbranch_scc1 P3_FAR\nbuffer_store_dwordx4 {v(G,4)}, v{VL}, {R(RWS)}, s{sT} offen\nP3_FARX:\ns_mov_b64 exec, -1")
        handlers.append(lambda: A(f"P3_FAR:\nbuffer_store_dwordx4 {v(G,4)}, v{VL}, {R(RWS)}, s{sT} offen sc1\ns_branch P3_FARX"))
    else: A(f"buffer_store_dwordx4 {v(G,4)}, v{VL}, {R(RWS)}, s{sT} offen sc1\ns_mov_b64 exec, -1")
    GR = 32
    def gl():
        for k in range(7): A(f"buffer_load_dwordx4 {v(GR+4*k,4)}, v6, {R(RWS)}, s{sB} offen offset:{k*512} sc1")
    for r in range(8): A(f"v_cvt_pk_bf16_f32 v{24+r}, v{D2+2*r}, v{D2+2*r+1}")
    A(f"s_mul_i32 s{sT}, s{sR3}, 14\ns_add_u32 s{sT}, s{sT}, s{sC3}\ns_lshl_b32 s{sT}, s{sT}, 11\ns_add_u32 s{sT}, s{sT}, {WS_HF}")
    if env("S3W", 0): A("s_waitcnt vmcnt(0)")
    stamp("s3pre")
    for ks in range(32 - LAG, 32): A(f"{MFMA} {v(D1,16)}, {v(ofr(ks),4)}, {v(tf(ks),4)}, {v(D1,16)}")
    gl()
    for p in range(2): A(f"buffer_store_dwordx4 {v(24+4*p,4)}, v{VL}, {R(RWS)}, s{sT} offen offset:{p*1024} sc1")
    A("s_waitcnt vmcnt(2)")
    tagcheck([GR+4*k for k in range(7)], T1, T2, T3)
    A("s_cbranch_vccnz P3_GH\nP3_GX:")
    def gh():
        A(f"P3_GH:\ns_mov_b32 s{sTO}, 0x8000\nP3_GL:"); gl()
        A(f"s_sub_u32 s{sTO}, s{sTO}, 1\ns_waitcnt vmcnt(0)\ns_cbranch_scc1 P3_GX")
        tagcheck([GR+4*k for k in range(7)], T1, T2, T3)
        A("s_cbranch_vccnz P3_GL\ns_branch P3_GX")
    handlers.append(gh)
    vm.q = []
    stamp("s3")
    for k in range(1, 7): A(f"v_add_f32 v{GR}, v{GR}, v{GR+4*k}\nv_add_f32 v{GR+2}, v{GR+2}, v{GR+4*k+2}")
    m, q = GR, GR+2
    A(f"v_mov_b32 v{T0}, v{m}\nv_mov_b32 v{T1}, v{q}\nv_permlane32_swap_b32 v{m}, v{T0}\nv_permlane32_swap_b32 v{q}, v{T1}\nv_add_f32 v{m}, v{m}, v{T0}\nv_add_f32 v{q}, v{q}, v{T1}")
    A(f"v_mul_f32 v{m}, {fl(1.0/D)}, v{m}\nv_mul_f32 v{q}, {fl(1.0/D)}, v{q}\nv_fma_f32 v{q}, -v{m}, v{m}, v{q}\nv_max_f32 v{q}, 0, v{q}")
    A(f"v_add_f32 v{T0}, {fl(EPS)}, v{q}\nv_mul_f32 v{T0}, {fl(EPS)}, v{T0}\nv_add_f32 v{q}, v{q}, v{T0}\nv_rsq_f32 v{q}, v{q}\ns_add_u32 s{sT}, s{sRBW}, 8192\nv_mul_f32 v{m}, v{m}, v{q}")
    A(f"v_cndmask_b32 v{T0}, v{q}, v{m}, s[{sHI}:{sHI+1}]\nv_lshl_add_u32 v{T1}, v1, 2, s{sT}\nds_write_b32 v{T1}, v{T0}")
    A(f"v_lshrrev_b32 v{T2}, 5, v1\nv_lshl_add_u32 v{T2}, v{T2}, 4, s{sT}")
    for g in range(4): A(f"ds_read_b128 {v(64+4*g,4)}, v{T2} offset:{g*32}\nds_read_b128 {v(80+4*g,4)}, v{T2} offset:{128+g*32}")
    A(f"s_lshl_b32 s{sT}, s{sC3}, 17\ns_lshl_b32 s{sU}, s{sR3}, 11\ns_add_u32 s{sT}, s{sT}, s{sU}\ns_add_u32 s{sT}, s{sT}, {WS_HH}")
    for p in range(2):
        A(f"s_waitcnt lgkmcnt({4 - 4*p})")
        for r in range(8*p, 8*p+8, 2): A(f"v_pk_fma_f32 {v(D1+r,2)}, {v(D1+r,2)}, {v(64+r,2)}, {v(80+r,2)} neg_lo:[0,0,1] neg_hi:[0,0,1]")
        for r in range(4*p, 4*p+4): A(f"v_cvt_pk_bf16_f32 v{16+r}, v{D1+2*r}, v{D1+2*r+1}")
        A(f"v_or_b32 v{19+4*p}, 0x10000, v{19+4*p}")
        if p == 0: A("s_waitcnt vmcnt(0)")
        A(f"buffer_store_dwordx4 {v(16+4*p,4)}, v{VL}, {R(RWS)}, s{sT} offen offset:{p*1024} sc1")
    stamp("hhst")
    if STAMP and env("ACK", 0): A("s_waitcnt vmcnt(0)"); stamp("hhack")
    stamp_flush()
    A("P3_END:")
    preread()
    A("s_waitcnt lgkmcnt(0)\ns_barrier")
    if env("X1B", 1): A("s_barrier")
    vm.q = []; lg.q = []

ACC, RING, TMP = 16, 48, 96
def wread_step(r, m, slot, tag=None):
    for ti in range(2):
        for half in range(2):
            A(f"ds_read_b64_tr_b16 {v(r.W + 8*m + ti*4 + half*2, 2)}, v{r.VRD[ti]} offset:{slot*2048 + half*1024}")
            if tag is not None: lg.issue(tag)
def unswap(r): A(f"s_and_b32 s{sT}, s{SW}, 1\ns_lshl_b32 s{sT}, s{sT}, 5\nv_xor_b32 v{r.VRD[0]}, s{sT}, v{r.VRD[0]}\nv_xor_b32 v{r.VRD[1]}, s{sT}, v{r.VRD[1]}")
def preread():
    for n in range(RA.c4): wread_step(RA, n, n)
    unswap(RA)
def w2soff(n): A(f"s_add_u32 s{sA}, s{sGC}, {n*1024}\ns_sub_u32 s{sB}, s{sA}, {28*1024}\ns_min_u32 s{sA}, s{sA}, s{sB}\ns_lshl_b32 s{sA}, s{sA}, 6")
def w2dma(r, m):
    w2soff(r.n5 + m)
    A(f"s_add_u32 m0, s{sW2W}, {r.slots[m % len(r.slots)]*2048}")
    for j in range(2): A(f"buffer_load_dwordx4 v{r.VT2[j]}, {R(RW2)}, s{sA} offen offset:{j*1024} lds"); vm.issue(("d", m))
def w2read(r, m):
    vm.wait(("d", m)); wread_step(r, m, r.slots[m % len(r.slots)], ("r", m))

def mlp(r, VDR=None, VDW=None):
    isA = r is RA
    N, L = r.n, len(r.slots)
    BR, B2R, VO, IR, HR = 6, 10, 12, 224, 228
    G4, G5 = r.c4 // 4, r.c5 // 4
    dreg = lambda t, k: RING + (t % 3)*16 + 4*k
    def pw(q, j):
        if isA: return f"ds_write_b128 v{VRW[0]}, {v(ACC+8*q+4*j,4)} offset:{(q-1)*2048 + j*1024}"
        return f"ds_write_b128 v{VDR if q < 3 else VDW}, {v(ACC+8*q+4*j,4)} offset:{(6144 + q*2048 if q < 3 else 13*2048) + j*1024}"
    def add(d, a_, b_, pk):
        if pk:
            for k in range(0, 4, 2): A(f"v_pk_add_f32 {v(d+k,2)}, {v(a_+k,2)}, {v(b_+k,2)}")
        else:
            for k in range(4): A(f"v_add_f32 v{d+k}, v{a_+k}, v{b_+k}")
    OWN = 232
    def gather(pk, wide):
        src = lambda j: [(VRW[q], (q-1)*2048 + j*1024) for q in range(1, 4)] + [(VRW[q], 6144 + q*2048 + j*1024) for q in range(3)] + [(VX3, j*1024)]
        base = [TMP, ACC if wide else TMP]
        def rd(j):
            for k, (va, off) in enumerate(src(j)): A(f"ds_read_b128 {v(base[j]+4*k,4)}, v{va} offset:{off}")
        def sm(j):
            b, o = base[j], OWN + 4*j
            add(b, b, b+4, pk); add(b+8, b+8, b+12, pk); add(b+16, b+16, b+20, pk); add(o, o, b+24, pk)
            add(b, b, b+8, pk); add(o, o, b+16, pk); add(o, o, b, pk)
        if wide: rd(0); rd(1); A("s_waitcnt lgkmcnt(7)"); sm(0); A("s_waitcnt lgkmcnt(0)"); sm(1)
        else:
            for j in range(2): rd(j); A("s_waitcnt lgkmcnt(0)"); sm(j)
    def p5setup():
        A(f"v_and_b32 v6, 31, v1\nv_lshrrev_b32 v7, 5, v1\nv_mul_u32_u24 v{VO}, 896, v6\nv_lshl_add_u32 v{VO}, v7, 4, v{VO}\ns_lshr_b32 s{sA}, s{SW}, 1\ns_lshl_b32 s{sB}, s{sST}, 1\ns_add_u32 s{sA}, s{sA}, s{sB}")
        A(f"s_mul_i32 s{sE}, s{sA}, {32*896}\ns_lshl_b32 s{sB}, s{sDT5}, 7\ns_add_u32 s{sE}, s{sE}, s{sB}\ns_and_b32 s{sB}, s{SW}, 1\ns_lshl_b32 s{sB}, s{sB}, 5\ns_add_u32 s{sE}, s{sE}, s{sB}")
        A(f"s_lshl_b32 s{sA}, s{sA}, 6\nv_lshlrev_b32 v8, 1, v6\nbuffer_load_ushort v{B2R}, v8, {R(RB2)}, s{sA} offen\nv_lshlrev_b32 v7, 2, v7\nv_sub_u32 v6, v6, v7")
        for k in range(4):
            d0 = 8*(k >> 1) + 2*(k & 1)
            A(f"v_cmp_eq_u32 s[{sA}:{sA+1}], {d0}, v6\nv_cmp_eq_u32 s[{sC}:{sC+1}], {d0+1}, v6\nv_cndmask_b32 v{IR+k}, 0, v{VONE}, s[{sA}:{sA+1}]\nv_cndmask_b32 v{IR+k}, v{IR+k}, v{VONE+1}, s[{sC}:{sC+1}]")
    mk5 = lambda nm: Stream(nm + N, 2*G5, lambda g: [(dreg(2*G4 + g, k), r.VG, k*1024) for k in range(4)],
                lambda g: A(f"s_add_u32 s{sT}, s{sGC}, {(r.n5 + (g % G5)*4)*1024}\ns_sub_u32 s{sU}, s{sT}, {28*1024}\ns_min_u32 s{sT}, s{sT}, s{sU}" + (f"\ns_add_u32 s{sT}, s{sT}, {112*1024}" if g >= G5 else "")),
                r.T0, 1, r.VP5, r.T1, lambda g: (1 << 2*G5) - 1, G5)
    NP5 = min(3, G5)
    DB0 = env("DB0", 4)
    R2E, NE3 = env("R2E", 0), max(0, r.c5 - 2*L)
    A(f"s_cmp_lg_u32 s{sACT4}, 0\ns_cbranch_scc1 P4_GO{N}\ns_cmp_ge_u32 s{sJ}, 28\ns_cbranch_scc1 MLP_END{N}")
    q0 = list(vm.q); lg.q = []
    A("s_waitcnt lgkmcnt(0)\ns_barrier")
    if not isA and env("DL", 0) == 2:
        for m in range(1, 7): w2dma(r, m)
    for m in range(L): w2read(r, m)
    lg.wait_all()
    for m in range(L, min(2*L, r.c5)): w2dma(r, m)
    if R2E and NE3:
        for m in range(L, L + NE3): w2read(r, m)
        lg.wait_all()
        for m in range(2*L, r.c5): w2dma(r, m)
    si = mk5("SI")
    if isA: p5setup()
    for g in range(G5): si.gate(g)
    si.gated = 0
    for g in range(NP5): si.issue(g)
    ER = {2: env("ER2", -1), 3: env("ER3", -1)}
    RL = env("RL", 1)
    if isA and ER[2] >= 0: A("s_barrier")
    A(f"s_branch P5_IN{N}\nP4_GO{N}:")
    vm.q = q0; lg.q = []
    sg = mk5("SG"); sg.gated = 0
    A(f"s_mov_b32 s{sV}, 0x10000")
    if isA:
        A(f"s_lshl_b32 s{sA}, s{sFO}, 5\nv_lshrrev_b32 v{r.T0}, 5, v1\nv_lshlrev_b32 v{r.T0}, 3, v{r.T0}")
        for g in range(2): A(f"buffer_load_dwordx2 {v(BR+2*g,2)}, v{r.T0}, {R(RB1)}, s{sA} offen offset:{g*16}")
        if env("ACKW", 0): A("s_waitcnt vmcnt(0)")
    sh = Stream("SH" + N, 2*G4, lambda g: [(dreg(g, k), r.VH, k*1024) for k in range(4)],
                lambda g: A(f"s_add_u32 s{sT}, s{sRO}, {(r.n4 + (g % G4)*4)*1024}\ns_and_b32 s{sT}, s{sT}, 0x7fff" + (f"\ns_bitset1_b32 s{sT}, 17" if g >= G4 else "")),
                r.T0, f"s{sV}", r.VP4, r.T1, lambda g: (1 << 2*G4) - 1, G4)
    seq = [(sh, g) for g in range(2*G4)] + [(sg, g) for g in range(2*G5)]
    first = [0, G4, 2*G4, 2*G4 + G5, len(seq)]
    RA5 = env("RA5", 2)
    late = {2} if RA5 == 1 else ({2} | ({3} if isA else set()) if RA5 == 2 else {2, 3})
    issued = set()
    stamp("p4pre" + N)
    for g in range(3): sh.issue(g); issued.add(g)
    sh.check1(0); sh.check2(0)
    c1 = -2.0*math.sqrt(2.0/math.pi)*math.log2(math.e); c2 = c1*0.044715
    def compute(H):
        ph, hf = H >> 1, H & 1
        ns = (r.c4, r.c5)[ph]
        nm = f"p{4+ph}"
        if H == 2: A(f"P5_IN{N}:")
        if H in late: seq[first[H]][0].check1(seq[first[H]][1]); seq[first[H]][0].check2(seq[first[H]][1])
        if ph and isA:
            A(f"buffer_load_dwordx4 {v(HR,4)}, v{VL}, {R(RWS)}, s{sHFO} offen offset:{hf*2048} sc1"); vm.issue("h")
        if H == 2 and isA:
            for m in range(L, r.c5): wread_step(r, m, r.slots[m % L], ("r", m))
        stamp(f"{nm}first{hf}" + N)
        for t in range(first[H], first[H+1]):
            n0 = 4*(t - first[H])
            stamp(f"t{N}{t}")
            tail = not isA and t == first[H+1] - 1
            head = not isA and t == first[H] and H > 0 and H not in late
            order = [(k, ti) for ti in (1, 0) for k in range(4)] if (tail or head) else [(k, ti) for k in range(4) for ti in (0, 1)]
            nxt = t + 2
            can = nxt < len(seq) and nxt not in issued and not (nxt >= first[H+1] and H + 1 in late)
            for sl, (k, ti) in enumerate(order):
                n = n0 + k
                if not isA and H > 0 and (t, sl) == ((first[2] - 2, 0) if H == 1 else ((first[H] + ER[H], 0) if ER[H] >= 0 else (first[H+1] - 1, 4))): A("s_barrier")
                if H == 2: lg.wait(("r", n))
                if head and sl == 4: A("s_waitcnt lgkmcnt(0)\ns_barrier"); lg.q = []
                acc = v(ACC + 16*ti, 16); w_, d_ = v(r.W + 8*n + 4*ti, 4), v(dreg(t, k), 4)
                A(f"{MFMA} {acc}, {d_ if ph else w_}, {w_ if ph else d_}, {'0' if n == 0 else acc}")
                if head and sl < 4: A(pw(sl >> 1, sl & 1))
                if tail and sl >= 4: A(pw(2 + ((sl - 4) >> 1), sl & 1))
                if can and sl < 4: seq[nxt][0].issue_part(seq[nxt][1], sl)
                if t + 1 < len(seq) and not (t + 1 == first[H+1] and H + 1 in late):
                    if sl == 5: seq[t+1][0].check1(seq[t+1][1])
                    if sl == 6: seq[t+1][0].check2(seq[t+1][1])
                done = (ti == 0) if (tail or head) else (ti == 1)
                if H == 1 and done:
                    if n < L: w2read(r, n)
                    if not isA and DB0 <= n < DB0 + L: lg.wait(("r", n - DB0)); w2dma(r, n - DB0 + L)
                    if not isA and R2E:
                        if R2E <= n < R2E + NE3: w2read(r, n - R2E + L)
                        if R2E + 1 <= n < R2E + 1 + NE3: lg.wait(("r", n - R2E - 1 + L)); w2dma(r, n - R2E - 1 + 2*L)
                if H == 0 and not isA and done and env("DL", 0) == 2 and n % 3 == 2 and n < 18: w2dma(r, 1 + n // 3)
                if H == 2 and not isA and done:
                    if L + (NE3 if R2E else 0) <= n + 4 < 2*L: w2read(r, n + 4)
                    if not R2E and 2*L <= n + 10 < r.c5: lg.wait(("r", n + 3)); w2dma(r, n + 10)
                    if 2*L <= n + 4 < r.c5: w2read(r, n + 4)
            if can: issued.add(nxt)
        if ph and isA:
            vm.wait("h")
            A(f"{MFMA} {v(ACC,16)}, {v(IR,4)}, {v(HR,4)}, {v(ACC,16)}")
        stamp(f"{nm}mm{hf}" + N)
    def late_issue(H):
        for t in range(first[H], min(first[H] + 3, first[H+1])): seq[t][0].issue(seq[t][1]); issued.add(t)
    def partials(H):
        if H == 1 or (H > 1 and ER[H] < 0): A("s_barrier")
        for q in (2, 3, 1):
            for j in range(2): A(pw(q, j))
        if H < 2:
            for j in range(4): A(f"v_lshlrev_b32 v{TMP}, 16, v{BR+j}\nv_and_b32 v{TMP+1}, 0xffff0000, v{BR+j}\nv_add_f32 v{OWN+2*j}, v{ACC+2*j}, v{TMP}\nv_add_f32 v{OWN+2*j+1}, v{ACC+2*j+1}, v{TMP+1}")
        else:
            if H == 2: A(f"v_lshlrev_b32 v{B2R}, 16, v{B2R}")
            for k in range(8): A(f"v_add_f32 v{OWN+k}, v{ACC+k}, v{B2R}")
    def epilogue(H):
        ph, hf = H >> 1, H & 1
        A("s_waitcnt lgkmcnt(0)\ns_barrier"); lg.q = []
        stamp(f"red{4+ph}{hf}")
        LI = env("LI", 1) if H == 1 else 0
        if (H == 1 or (H == 2 and not RA5)) and LI == 0: late_issue(H + 1)
        if env("PRIO", 1): A("s_setprio 2")
        gather(H == 3, H & 1 or (H == 2 and not RA5))
        if ph == 0:
            A(f"s_mov_b32 s{sA}, {fl(c2)}\nv_mov_b32 v{TMP}, {fl(c1)}")
            E = TMP + 8
            for k in range(8): A(f"v_mul_f32 v{E+k}, v{OWN+k}, v{OWN+k}")
            for k in range(8): A(f"v_fma_f32 v{E+k}, v{E+k}, s{sA}, v{TMP}")
            for k in range(8): A(f"v_mul_f32 v{E+k}, v{E+k}, v{OWN+k}")
            for k in range(8): A(f"v_exp_f32 v{E+k}, v{E+k}")
            for k in range(8): A(f"v_add_f32 v{E+k}, 1.0, v{E+k}")
            for k in range(8): A(f"v_rcp_f32 v{E+k}, v{E+k}")
            for k in range(8): A(f"v_mul_f32 v{OWN+k}, v{OWN+k}, v{E+k}")
        for k in range(4): A(f"v_cvt_pk_bf16_f32 v{TMP+4+k}, v{OWN+2*k}, v{OWN+2*k+1}")
        if ph == 0:
            A(f"v_or_b32 v{TMP+7}, 1, v{TMP+7}\nbuffer_store_dwordx4 {v(TMP+4,4)}, v{VL}, {R(RWS)}, s{sGST} offen sc1\ns_add_u32 s{sGST}, s{sGST}, {112*1024}")
        else:
            A(f"v_permlane32_swap_b32 v{TMP+4}, v{TMP+6}\nv_permlane32_swap_b32 v{TMP+5}, v{TMP+7}\nbuffer_store_dwordx4 {v(TMP+4,4)}, v{VO}, {R(ROUT)}, s{sE} offen offset:{hf*64}" + [os.environ.get("OF0", " sc1"), os.environ.get("OF1", "")][hf])
        stamp(("gst", "outst")[ph] + str(hf))
        if (H == 1 or (H == 2 and not RA5)) and LI == 1: late_issue(H + 1)
        if H in (1, 2) and ER[H+1] >= 0: A("s_barrier")
        stamp_flush()
    if isA:
        if env("PRIO", 1): A("s_setprio 2")
        compute(0); partials(0); stamp_flush()
        if env("PRIO", 1): A("s_setprio 0")
        compute(1)
        if env("DA", 1) == 1:
            lg.wait_all()
            for m in range(L, r.c5): w2dma(r, m)
        epilogue(0); partials(1); p5setup()
        if env("DA", 1) == 0:
            for m in range(L, r.c5): w2dma(r, m)
        epilogue(1)
        compute(2)
        if RA5:
            if RA5 == 2: late_issue(3)
            partials(2); stamp_flush()
            if env("PRIO", 1): A("s_setprio 0")
            compute(3); epilogue(2); partials(3); epilogue(3)
        else:
            partials(2); epilogue(2); compute(3); partials(3); epilogue(3)
    else:
        if env("PRIO", 1): A("s_setprio 1")
        for H in range(4):
            compute(H)
            if H == 3 or H + 1 in late:
                for q in range(2):
                    for j in range(2): A(pw(q, j))
                if H == 2: late_issue(H + 1)
                A("s_waitcnt lgkmcnt(0)\ns_barrier"); lg.q = []
                if H == 1:
                    if env("G2", 0):
                        sg.gated = G5; A(f"s_mov_b32 s{sMISS}, {(1 << 2*G5) - 1}")
                    late_issue(H + 1); sg.gated = 0
            stamp_flush()
    A(f"MLP_END{N}:")

def finish():
    A(f"s_or_b32 s{sT}, s2, s{SW}\ns_cbranch_scc1 K_FIN\nv_mov_b32 v4, 0\nv_mov_b32 v5, 0\ns_mov_b64 exec, 1\nbuffer_store_dwordx2 v[4:5], v4, {R(RDBG)}, 0 offen sc1\ns_mov_b64 exec, -1")
    A("K_FIN:")
    if os.environ.get("DIAGAT"):
        A(f"DSP:\ns_memrealtime s[{sA}:{sA+1}]\ns_waitcnt lgkmcnt(0)\ns_sub_u32 s{sA}, s{sA}, s72\ns_cmp_lt_u32 s{sA}, 4000\ns_cbranch_scc1 DSP")
    if STAMP:
        A("s_waitcnt vmcnt(0)"); stamp("end"); A(f"s_memrealtime s[{sA}:{sA+1}]"); stamp_flush()
        A(f"v_writelane_b32 v{VST}, s72, 62\nv_writelane_b32 v{VST}, s{sA}, 63")
        A(f"s_lshl_b32 s{sT}, s2, 3\ns_add_u32 s{sT}, s{sT}, s{sW8}\ns_lshl_b32 s{sT}, s{sT}, 8\ns_add_u32 s{sT}, s{sT}, {WS_STAMP}\nv_lshlrev_b32 v4, 2, v1\nbuffer_store_dword v{VST}, v4, {R(RWS)}, s{sT} offen")
    A("K_END:\ns_endpgm")

def bprog():
    NT = env("NT", 0); nt = " nt" if NT else ""
    nt1 = " nt" if env("NT1", 0) else ""
    VXD = [16, 17, 18, 19]; VXE = [20, 21]; VWD = list(range(22, 29))
    sWO, sXO, sM, sWM = sA, sB, sC, sD_
    sXP, sWP = [sW1, sW1S, sW1E], [sW2, sW2S, sW2E]
    A("B_P1:"); vm.q = []; lg.q = []
    p1_common()
    A(f"s_mul_i32 s{sXO}, s{sE}, {32*896}\ns_lshl_b32 s{sWM}, s{SW}, 10")
    A("v_lshrrev_b32 v4, 4, v1\nv_and_b32 v5, 15, v1\nv_xor_b32 v5, v5, v4\nv_mul_u32_u24 v6, 896, v4")
    for j in range(4): A(f"v_xor_b32 v7, {4*j}, v5\nv_lshl_add_u32 v7, v7, 4, v6\nv_add_u32 v{VXD[j]}, {j*4*896 - j*1024}, v7")
    A(f"s_lshr_b32 s{sT}, s{sJ}, 2\ns_and_b32 s{sU}, s{sJ}, 3\ns_add_u32 s{sT}, s{sT}, s{sU}\ns_mul_i32 s{sU}, s{sT}, 11\ns_lshr_b32 s{sU}, s{sU}, 5\ns_mul_i32 s{sU}, s{sU}, 3\ns_sub_u32 s{sT}, s{sT}, s{sU}")
    if not env("P1ROT", 1): A(f"s_mov_b32 s{sT}, 0")
    for p in range(3):
        A(f"s_lshl_b32 s{sU}, s{sT}, 8\ns_add_u32 s{sXP[p]}, s{sXO}, s{sU}\ns_mul_i32 s{sU}, s{sT}, {128*2688}\ns_add_u32 s{sWP[p]}, s{sWO}, s{sU}")
        if p < 2: A(f"s_add_u32 s{sT}, s{sT}, 1\ns_cmp_eq_u32 s{sT}, 3\ns_cselect_b32 s{sT}, 0, s{sT}")
    def xpiece(p):
        if p < 3:
            for j in range(8):
                if j % 4 == 0: A(f"s_add_u32 m0, s{sM}, {XBUF[p] + (j>>2)*4096}\ns_add_u32 s{sV}, s{sXP[p]}, {(j>>2)*16*896}")
                A(f"buffer_load_dwordx4 v{VXD[j&3]}, {R(RX)}, s{sV} offen offset:{(j&3)*1024}{nt1} lds"); vm.issue(f"x{p}")
        else:
            for j in range(4):
                A(f"s_add_u32 m0, s{sM}, {XBUF[p] + j*1024}\ns_add_u32 s{sV}, s{sXO}, {(j>>1)*16*896 + 768}\nbuffer_load_dwordx4 v{VXE[j&1]}, {R(RX)}, s{sV} offen{nt1} lds"); vm.issue(f"x{p}")
    def wdma(j):
        g = j // 7
        if g == 3 and j == 21: A(f"s_add_u32 s{sT}, s{sWO}, {3*128*2688}")
        A(f"s_add_u32 m0, s{sWM}, {j*4096}\nbuffer_load_dwordx4 v{VWD[j%7]}, {R(RWQ)}, s{sWP[g] if g < 3 else sT} offen{nt1} lds"); vm.issue(f"w{g}")
    A("s_waitcnt lgkmcnt(0)")
    xpiece(0)
    for j in range(7):
        A(f"v_add_u32 v4, {256*j}, v0\nv_mul_u32_u24 v5, 4682, v4\nv_lshrrev_b32 v5, 16, v5\nv_mul_u32_u24 v6, 14, v5\nv_sub_u32 v4, v4, v6")
        A(f"v_and_b32 v6, 0xf8, v5\nv_and_b32 v7, 1, v5\nv_lshl_add_u32 v6, v7, 2, v6\nv_bfe_u32 v7, v5, 1, 2\nv_add_u32 v6, v6, v7\nv_mul_u32_u24 v6, 2688, v6\nv_lshl_add_u32 v{VWD[j]}, v4, 4, v6")
        wdma(j)
    xpiece(1)
    A("v_lshrrev_b32 v4, 3, v1\nv_mul_u32_u24 v6, 896, v4\nv_lshrrev_b32 v4, 4, v1\nv_and_b32 v5, 7, v1\nv_xor_b32 v5, v5, v4")
    for j in range(2): A(f"v_xor_b32 v7, {4*j}, v5\nv_lshl_add_u32 v7, v7, 4, v6\nv_add_u32 v{VXE[j]}, {j*8*896}, v7")
    prologue2()
    A("v_and_b32 v10, 31, v1\nv_lshlrev_b32 v10, 4, v10\nv_min_u32 v5, 55, v1\nv_lshlrev_b32 v5, 4, v5\nv_add_u32 v6, 10752, v5\nv_add_u32 v7, 21504, v5\nv_add_u32 v8, 32256, v5\nv_mov_b32 v9, 0")
    vm.wait("w0"); A("s_barrier\ns_barrier")
    for j in range(7, 14): wdma(j)
    xpiece(2)
    vm.wait("w1"); A("s_barrier\ns_barrier")
    for j in range(14, 21): wdma(j)
    xpiece(3)
    for j in range(21, 25): wdma(j)
    vm.wait("w2"); A("s_barrier\ns_setprio 2")
    A(f"s_waitcnt lgkmcnt(0)\ns_lshl_b32 s{sU}, s{sE}, 9\ns_add_u32 s{sU}, s{sU}, {WS_RST}\ns_lshl_b32 s{sV}, s{sWO}, 2\ns_add_u32 s{sV}, s{sV}, {WS_CSG}")
    def gload():
        A(f"buffer_load_dwordx4 v[32:35], v10, {R(RWS)}, s{sU} offen sc1")
        for kq in range(4): A(f"buffer_load_dwordx4 {v(36+4*kq,4)}, v{5+kq}, {R(RWS)}, s{sV} offen sc1")
    A(f"buffer_load_dwordx2 v[30:31], v9, {R(RDBG)}, 0 offen sc1"); gload()
    vm.wait_all()
    get_tag(30, "B_T")
    A(f"s_mov_b32 s{sTO}, 0x8000\ns_branch B_GC\nB_GL:"); gload()
    A(f"s_sub_u32 s{sTO}, s{sTO}, 1\ns_waitcnt vmcnt(0)\ns_cbranch_scc1 B_GX\nB_GC:")
    tagcheck([32, 36, 40, 44, 48], 11, 12, 13)
    A("s_cbranch_vccnz B_GL\nB_GX:")
    QS = DH ** -0.5 * math.log2(math.e)
    A("v_add_f32 v36, v36, v40\nv_add_f32 v44, v44, v48\nv_add_f32 v38, v38, v42\nv_add_f32 v46, v46, v50\nv_add_f32 v36, v36, v44\nv_add_f32 v37, v38, v46")
    A(f"s_cmp_eq_u32 s{sSEC}, 0\ns_cselect_b32 s{sV}, {fl(QS)}, 1.0\nv_cndmask_b32 v6, v34, v32, s[{sHI}:{sHI+1}]\nv_mul_f32 v6, s{sV}, v6")
    A(f"v_lshl_add_u32 v4, v1, 3, s{sWM}\nds_write_b64 v4, v[36:37]\nv_lshl_add_u32 v4, v1, 2, s{sWM}\nds_write_b32 v4, v6 offset:512")
    A("s_setprio 0\ns_waitcnt lgkmcnt(0)\ns_barrier\ns_branch B_P2")

def bprog2():
    NT = env("NT", 0); nt = " nt" if NT else ""
    A("B_P2:"); vm.q = []
    if STAMP: A("v_mov_b32 v15, -1\nB_P2S:"); st["v"] = 15
    roles(touch=False)
    r = RB
    WOR, W2T = 16, 48
    VT1, VTO, VDW, VDR = [4, 5], [8, 9], 10, 11
    w2_addr(r, 12, 13)
    A(f"v_lshrrev_b32 v12, 3, v1\nv_mul_u32_u24 v12, 3584, v12\nv_add_u32 v{VT1[0]}, v12, v13\nv_add_u32 v{VT1[1]}, {8*3584 - 1024}, v{VT1[0]}")
    A(f"v_lshrrev_b32 v12, 2, v1\nv_mul_u32_u24 v12, 896, v12\nv_and_b32 v13, 3, v1\nv_lshl_add_u32 v{VTO[0]}, v13, 4, v12\nv_add_u32 v{VTO[1]}, {16*896}, v{VTO[0]}")
    A(f"v_add_u32 v{VDW}, s{sW2W}, v{VL}\nv_add_u32 v{VDR}, s{sRBW}, v{VL}")
    tr_lane_addr(12, 13, 128, 4)
    A(f"s_and_b32 s{sT}, s{SW}, 1\ns_lshl_b32 s{sT}, s{sT}, 5\nv_xor_b32 v12, s{sT}, v12\nv_add_u32 v12, s{sW2W}, v12\nv_bfe_u32 v13, v1, 3, 1\ns_lshr_b32 s{sT}, s{SW}, 1\nv_xor_b32 v13, s{sT}, v13")
    A(f"v_lshl_add_u32 v{r.VRD[0]}, v13, 6, v12\nv_xor_b32 v13, 1, v13\nv_lshl_add_u32 v{r.VRD[1]}, v13, 6, v12")
    A(f"s_mul_i32 s{sW1S}, s{SW}, {512*3584}\ns_lshl_b32 s{sT}, s{sFT}, 7\ns_add_u32 s{sW1S}, s{sW1S}, s{sT}\ns_add_u32 s{sW1E}, s{sW1S}, {512*3584}")
    A(f"s_lshr_b32 s{sT}, s{sRO}, 10\ns_add_u32 s{sT}, s{sT}, {r.n4}\ns_and_b32 s{sT}, s{sT}, 31\ns_mul_i32 s{sT}, s{sT}, {16*3584}\ns_add_u32 s{sW1}, s{sW1S}, s{sT}")
    TH = [env("BTH", 2)]
    A(f"s_and_b32 s{sT}, s{sC3}, 7\ns_lshl_b32 s{sT}, s{sT}, 1\ns_lshl_b32 s{sD_}, s{SW}, 2\ns_add_u32 s{sD_}, s{sD_}, s{sT}\ns_min_u32 s{sC}, s{sC3}, 13\ns_lshl_b32 s{sC}, s{sC}, 6")
    A(f"s_cmp_ge_u32 s{sJ}, 24\ns_cbranch_scc1 B_NOKV\ns_barrier\nB_NOKV:")
    A(f"s_add_u32 s{sT}, s{SW}, 1\ns_and_b32 s{sT}, s{sT}, 3\ns_mul_i32 s{sT}, s{sT}, 12288\ns_add_u32 s{sT}, s{sT}, {RBUF + 3072}\nv_add_u32 v14, s{sT}, v{VL}")
    A(f"v_mov_b32 v12, 0\nds_write_b32 v14, v12\ns_waitcnt lgkmcnt(0)")
    vm.q = []
    NPQ = env("NPQ", 0)
    if NPQ: TH[0] = env("BTH0", 4)
    sPOS = sE
    todo = []
    def throttle():
        A(f"s_waitcnt vmcnt({TH[0]})"); vm.q = vm.q[-TH[0]:]
        while todo and ("s", todo[0]) not in vm.q:
            m = todo.pop(0); wread_step(r, m, m % 14)
    def rawitem(m):
        w2soff(m)
        for j in range(2): A(f"buffer_load_dwordx4 {v(W2T+8*m+4*j,4)}, v{r.VT2[j]}, {R(RW2)}, s{sA} offen offset:{j*1024}{' nt' if env('NTR', 0) else ''}")
    for k in range(32):
        if k == NPQ:
            stamp("b_pre")
            A("s_barrier")
            stamp("b_go"); TH[0] = env("BTH0", env("BTH", 3))
            A(f"buffer_load_dwordx2 v[{W2T}:{W2T+1}], v12, {R(RDBG)}, 0 offen sc1"); vm.issue("tag")
        if env("IDL", 0) and k in (0, 13, 15, 17, 19, 20): A(f"s_cmp_eq_u32 s{sACT4}, 0\ns_cbranch_scc1 B_I{k}")
        slot = k % 14 if k < 20 else (k - 20 + 6) % 12
        if k == 20: A(f"s_add_u32 s{sW1}, s{sW1}, {6*16*3584}\ns_cmp_ge_u32 s{sW1}, s{sW1E}\ns_cselect_b32 s{sT}, {512*3584}, 0\ns_sub_u32 s{sW1}, s{sW1}, s{sT}")
        if k == 26: A(f"s_lshr_b32 s{sT}, s{sRO}, 10\ns_mul_i32 s{sT}, s{sT}, {16*3584}\ns_add_u32 s{sW1}, s{sW1S}, s{sT}")
        if k >= 14:
            assert not [m for m in todo if m % 14 == slot]
            A("s_waitcnt lgkmcnt(0)")
        A(f"s_add_u32 m0, s{sW2W}, {slot*2048}")
        for j in range(2): A(f"buffer_load_dwordx4 v{VT1[j]}, {R(RW1)}, s{sW1} offen offset:{j*1024}{' nt' if k < env('NTK', 0) else ''} lds"); vm.issue(("s", k))
        if k < 20: todo.append(k)
        A(f"s_add_u32 s{sW1}, s{sW1}, {16*3584}\ns_cmp_eq_u32 s{sW1}, s{sW1E}\ns_cselect_b32 s{sW1}, s{sW1S}, s{sW1}")
        throttle()
        if env("IDL", 0) and k in (12, 14, 16, 18, 19, 31):
            k0 = {12: 0, 14: 13, 16: 15, 18: 17, 19: 19, 31: 20}[k]
            def idle(k0=k0):
                A(f"B_I{k0}:")
                if k0 in (0, 20):
                    A(f"s_setprio 3\nv_lshrrev_b32 v96, 3, v1\nv_lshlrev_b32 v96, 12, v96\nv_and_b32 v97, 7, v1\nv_lshl_add_u32 v96, v97, 7, v96\ns_setprio 0")
                    A(f"s_sub_u32 s{sA}, s{sJ}, 25\ns_lshl_b32 s{sA}, s{sA}, 2\ns_add_u32 s{sA}, s{sA}, s{SW}\ns_lshl_b32 s{sA}, s{sA}, 18\ns_bfe_u32 s{sB}, s2, 0x20001\ns_lshl_b32 s{sB}, s{sB}, 10\ns_add_u32 s{sA}, s{sA}, s{sB}")
                    A(f"s_and_b32 s{sB}, s2, 1\ns_lshl_b32 s{sB}, s{sB}, 17\ns_xor_b32 s{sA}, s{sA}, s{sB}")
                    for i in (range(0, env("IDN", 4)) if k0 == 0 else range(env("IDN", 4), env("IDM", 4))):
                        A(f"s_xor_b32 s{sB}, s{sA}, {i*8*4096}\nbuffer_load_dword v97, v96, {R(RW2)}, s{sB} offen\ns_waitcnt vmcnt({env('IDT', 0)})")
                A(f"s_branch B_J{k0}")
            handlers.append(idle)
            A(f"B_J{k0}:")
        if k in (12, 14, 16, 18):
            q = (k - 12) // 2
            A(f"s_add_u32 s{sT}, s{sD_}, {q}\ns_and_b32 s{sT}, s{sT}, 15\ns_mul_i32 s{sT}, s{sT}, {28*896}\ns_add_u32 s{sT}, s{sT}, s{sC}")
            for j in range(2): A(f"buffer_load_dwordx4 {v(WOR+8*q+4*j,4)}, v{VTO[j]}, {R(RWO)}, s{sT} offen"); vm.issue("wo")
            throttle()
        if k == 19:
            A(f"s_setprio 3\nv_readfirstlane_b32 s{sTAG}, v{W2T}\nv_readfirstlane_b32 s{sTAG+1}, v{W2T+1}\nv_lshlrev_b32 v12, 3, v1\ns_mul_i32 s{sV}, s{SW}, 384\ns_add_u32 s{sV}, s{sV}, {F2}")
            poll(12, sV, 48, 8); A("v_lshlrev_b32 v12, 7, v1\ns_setprio 0")
        if env("W2C", 0) and k in (14, 20):
            A(f"s_lshl_b32 s{sA}, s2, 2\ns_add_u32 s{sA}, s{sA}, s{SW}\ns_mul_i32 s{sA}, s{sA}, {56*128}")
            set_exec(((1 << 28) - 1) << (28*(k == 20))); A(f"buffer_load_dword v8, v12, {R(RW2)}, s{sA} offen\ns_mov_b64 exec, -1"); vm.issue("t")
        if k == env("BSW0", 7): TH[0] = env("BTH", 3)
        if k == env("BSW", 24): TH[0] = env("BTH2", 10)
        if k in (13, 31): stamp(f"b_{k}")
    assert not todo
    w2dma(r, 0)
    for m in range(6):
        A(f"ds_read_b32 v13, v14\ns_mov_b32 s{sPOS}, {m}\ns_waitcnt vmcnt({TH[0]}) lgkmcnt(0)\ns_setprio 3\nv_cmp_ne_u32 vcc, 0, v13\ns_setprio 0\ns_cbranch_vccnz B_CUT")
        rawitem(m)
    A(f"s_mov_b32 s{sPOS}, 6")
    if env("W2T", 0):
        A(f"s_setprio 3\ns_lshr_b32 s{sT}, s{sGC}, 6\ns_add_u32 s{sT}, s{sT}, 96\nv_add_u32 v12, s{sT}, v1\nv_subrev_u32 v13, 448, v12\nv_min_u32 v12, v12, v13\nv_lshlrev_b32 v12, 12, v12\ns_setprio 0")
        A(f"s_mul_i32 s{sT}, s{SW}, {448*4096}\ns_lshl_b32 s{sU}, s{sST}, 7\ns_add_u32 s{sT}, s{sT}, s{sU}\nbuffer_load_dword v14, v12, {R(RW2)}, s{sT} offen")
    A("B_CUT:")
    stamp("b_done"); stamp_flush()
    if STAMP: A(f"v_writelane_b32 v15, s{sPOS}, 60")
    A(f"s_setprio 3\nv_min_u32 v12, 5, v1\nv_lshlrev_b32 v12, 12, v12\nv_add_u32 v12, {RBUF + 3*1024 + 32*16 + 4}, v12\ns_setprio 0")
    A(f"B_RED:\ns_barrier\nds_read_b32 v13, v12\ns_waitcnt lgkmcnt(0)\nv_cmp_ne_u32 vcc, 0, v13")
    A(f"s_cbranch_vccz B_OK\ns_cmp_lg_u32 s{sRETRY}, 0\ns_cbranch_scc1 B_OK\ns_mov_b32 s{sRETRY}, -1\ns_barrier\ns_barrier\ns_barrier\ns_branch B_RED\nB_OK:")
    A("s_waitcnt vmcnt(0)\ns_barrier")
    for k in range(8): A(f"ds_write_b128 v{VDR}, {v(WOR+4*k,4)} offset:{k*1024}")
    for m in range(6):
        A(f"s_cmp_gt_u32 s{sPOS}, {m}\ns_cbranch_scc1 B_SK{m}"); rawitem(m); A(f"B_SK{m}:")
    A("s_waitcnt lgkmcnt(0)\ns_barrier")
    unswap(r); mlp_addr(r, 12, 13, False)
    A("s_waitcnt vmcnt(0)")
    if not env("EP", 0): A("s_barrier")
    vm.q = []
    DL = env("DL", 0)
    for m in range(6):
        for j in range(2): A(f"ds_write_b128 v{VDW}, {v(W2T+8*m+4*j,4)} offset:{m*2048 + j*1024}")
        if DL == 0: w2dma(r, m + 1)
    A("s_waitcnt lgkmcnt(0)")
    if env("X1B", 1): A("s_barrier")
    if DL == 1:
        for m in range(1, 7): w2dma(r, m)
    mlp(r, VDR, VDW)
    if STAMP: A(f"v_mov_b32 v{VST}, v15"); del st["v"]
    A("s_branch K_FIN")

def main(out):
    prologue()
    pend0 = list(st["pend"])
    bprog()
    st["pend"] = list(pend0); p1_helper()
    st["pend"] = list(pend0); p1(); fb = p2(); p3(); vm.q = []; mlp(RA); finish()
    st["pend"] = list(pend0); bprog2(); fb()
    for h in handlers: h()
    A("CODE_END:")
    head = open("head.txt").read()
    nv = 256
    txt = head + f"; @launch grid=(256,1,1) block=(512,1,1) lds={LDS_TOTAL}\n" + '.amdgcn_target "amdgcn-amd-amdhsa--gfx950"\n.text\n' + kernel_header(NAME) + A.text() + '.section .rodata,"a"\n' + kernel_desc(NAME, nv, 102, 256)
    open(out, "w").write(txt)
    if STAMP: open(out + ".names", "w").write(" ".join(st["names"].keys()))

if __name__ == "__main__":
    main(sys.argv[1])
```

```python
import sys, struct, math, os
from asmlib import *

S, D, H, DH, F = 2048, 448, 16, 28, 1792
MB = 1 << 20
WS_Q, WS_KV, WS_O, WS_HF, WS_HH, WS_G, WS_ST, WS_FL, WS_STAMP = 0, 2*MB, 6*MB, 8*MB, 10*MB, 12*MB, 14*MB, 14*MB + 512*1024, 15*MB
F1, F2, F4, F5 = WS_FL, WS_FL + 131072, WS_FL + 2*131072, WS_FL + 3*131072
WS_RST, WS_CSG = 13*MB + 768*1024, 13*MB + 832*1024
WS_SIZE = 16*MB
WS_O = WS_HH = WS_Q
WS_G = WS_KV
EPS = 1e-5
STAMP = os.environ.get("STAMP", "0") == "1"
def env(n, d): return int(os.environ.get(n, str(d)))
def f2u(x): return struct.unpack("<I", struct.pack("<f", x))[0]
def hx(x): return f"0x{x & 0xffffffff:08x}"
def fl(x): return hx(f2u(x))
MFMA = "v_mfma_f32_32x32x16_bf16"
NAME = "sequential_preLN__mha_block__mixer_token_mlp__prompt_kernel"

class Cnt:
    def __init__(self, A, name, mx):
        self.A, self.name, self.mx, self.q = A, name, mx, []
    def issue(self, tag): self.q.append(tag)
    def wait(self, tag):
        idx = [i for i, t in enumerate(self.q) if t == tag]
        if not idx: return
        n = len(self.q) - 1 - idx[-1]
        self.A(f"s_waitcnt {self.name}({min(n, self.mx)})")
        self.q = self.q[idx[-1] + 1:]
    def wait_all(self):
        self.A(f"s_waitcnt {self.name}(0)"); self.q = []

RX, RWQ, RWO, RW1, RB1, RW2, RB2, ROUT, RDBG, RWS = 8, 12, 16, 20, 24, 28, 32, 36, 40, 44
def R(r): return f"s[{r}:{r+3}]"
SW, sH, sI, sJ, sFT, sDT4, sST, sDT5, sACT4, sTO, sTAG = 48, 49, 50, 51, 52, 53, 54, 55, 56, 57, 58
sHI, sONES = 60, 62
sT, sU, sV, sA, sB, sC, sD_, sE, sRETRY = 63, 64, 65, 66, 67, 68, 69, 70, 71
sF = [4, 5, 6, 7]
sSEC, sHQ, sW8 = 3, 92, 93
sMISS = 6
sC3, sR3 = 0, 1
sRBW, sW2W = 94, 95
sW2, sW2S, sW2E, sW1, sW1S, sW1E = 96, 97, 98, 99, 100, 101
VL, VST = 2, 255
W2A, RBUF, LDS_TOTAL = 0, 114688, 163840

A = Asm(); vm = Cnt(A, "vmcnt", 63); lg = Cnt(A, "lgkmcnt", 15)
st = {"pend": [], "names": {}}
def stamp(name):
    if os.environ.get("DIAGAT") == name or (os.environ.get("DIAGAT") and name == "start"): A("s_memrealtime s[72:73]")
    if not STAMP: return
    import re
    if name != "start" and not re.match(os.environ.get("STF", "^[^t]"), name): return
    k = len(st["pend"]); assert k < 9, name
    n = st["names"].setdefault(name, len(st["names"]))
    A(f"{'s_memtime' if env('CYC', 0) else 's_memrealtime'} s[{74+2*k}:{75+2*k}]"); st["pend"].append(n)
def stamp_flush():
    if not STAMP or not st["pend"]: return
    A("s_waitcnt lgkmcnt(0)")
    for k, n in enumerate(st["pend"]): A(f"v_writelane_b32 v{st.get('v', VST)}, s{74+2*k}, {n}")
    st["pend"] = []

def set_exec(mask): A(f"s_mov_b32 exec_lo, {hx(mask)}\ns_mov_b32 exec_hi, {hx(mask >> 32)}")
def halfsum(x, t): A(f"v_mov_b32 v{t}, v{x}\nv_permlane32_swap_b32 v{x}, v{t}\nv_add_f32 v{x}, v{x}, v{t}")
def flag_store(soff_reg, t=4):
    A(f"v_mov_b32 v{t}, s{sTAG}\nv_mov_b32 v{t+1}, s{sTAG+1}\nv_mov_b32 v{t+2}, 0\ns_mov_b64 exec, 1")
    A(f"buffer_store_dwordx2 {v(t,2)}, v{t+2}, {R(RWS)}, s{soff_reg} offen sc1\ns_mov_b64 exec, -1"); vm.issue("flag")
def poll(voff, soff_reg, nl, t):
    L = A.label("POLL")
    set_exec((1 << nl) - 1)
    A(f"s_mov_b32 s{sTO}, 0x8000\n{L}:")
    A(f"buffer_load_dwordx2 {v(t,2)}, v{voff}, {R(RWS)}, s{soff_reg} offen sc1\ns_sub_u32 s{sTO}, s{sTO}, 1\ns_waitcnt vmcnt(0)")
    A(f"s_cbranch_scc1 {L}_x\nv_cmp_ne_u64 vcc, s[{sTAG}:{sTAG+1}], {v(t,2)}\ns_and_b64 exec, exec, vcc\n" + (f"s_cbranch_scc0 {L}_x\ns_sleep {env('PSL', 0)}\ns_branch {L}" if env("PSL", 0) else f"s_cbranch_scc1 {L}") + f"\n{L}_x:\ns_mov_b64 exec, -1")
    vm.q = []
def tr_lane_addr(dst, t, pitch, hs, rs=1):
    A(f"v_lshrrev_b32 v{dst}, 5, v1\nv_mul_u32_u24 v{dst}, {hs*pitch}, v{dst}\nv_bfe_u32 v{t}, v1, 2, 2\nv_mul_u32_u24 v{t}, {rs*pitch}, v{t}\nv_add_u32 v{dst}, v{dst}, v{t}")
    A(f"v_bfe_u32 v{t}, v1, 4, 1\nv_lshl_add_u32 v{dst}, v{t}, 5, v{dst}\nv_and_b32 v{t}, 3, v1\nv_lshl_add_u32 v{dst}, v{t}, 3, v{dst}")
def get_tag(TAGV, lab):
    A(f"v_readfirstlane_b32 s{sTAG}, v{TAGV}\nv_readfirstlane_b32 s{sTAG+1}, v{TAGV+1}")
    A(f"s_or_b32 s{sTO}, s{sTAG}, s{sTAG+1}\ns_cbranch_scc1 {lab}_ok\ns_mov_b32 s{sTO}, 0x8000\nv_mov_b32 v4, 0\n{lab}_l:")
    A(f"buffer_load_dwordx2 {v(TAGV,2)}, v4, {R(RDBG)}, 0 offen sc1\ns_sub_u32 s{sTO}, s{sTO}, 1\ns_waitcnt vmcnt(0)\ns_cbranch_scc1 {lab}_ok")
    A(f"v_readfirstlane_b32 s{sTAG}, v{TAGV}\nv_readfirstlane_b32 s{sTAG+1}, v{TAGV+1}\ns_cmp_eq_u64 s[{sTAG}:{sTAG+1}], 0\ns_cbranch_scc1 {lab}_l\n{lab}_ok:")
def tagcheck(regs, T1, T2, T3):
    A(f"v_xor_b32 v{T1}, s{sTAG}, v{regs[0]+1}\nv_xor_b32 v{T2}, s{sTAG+1}, v{regs[0]+3}\nv_or_b32 v{T1}, v{T1}, v{T2}")
    for g in regs[1:]: A(f"v_xor_b32 v{T2}, s{sTAG}, v{g+1}\nv_xor_b32 v{T3}, s{sTAG+1}, v{g+3}\nv_or3_b32 v{T1}, v{T1}, v{T2}, v{T3}")
    A(f"v_cmp_ne_u32 vcc, 0, v{T1}")
def rot4(d):
    A(f"s_bfe_u32 s{d}, s2, 0x20001\ns_mul_i32 s{d}, s{d}, 7\ns_sub_u32 s{d}, s{sFT}, s{d}\ns_add_u32 s{d}, s{d}, s{sDT4}\ns_add_u32 s{d}, s{d}, s{sDT4}")
    A(f"s_and_b32 s{sTO}, s2, 1\ns_mul_i32 s{sTO}, s{sTO}, 3\ns_add_u32 s{d}, s{d}, s{sTO}\ns_and_b32 s{d}, s{d}, 7\ns_lshl_b32 s{d}, s{d}, 2")
def rot5(d):
    A(f"s_and_b32 s{sTO}, s2, 1\ns_lshl_b32 s{sTO}, s{sTO}, 1\ns_lshl_b32 s{d}, s{sDT5}, 1\ns_add_u32 s{d}, s{d}, s{sTO}\ns_and_b32 s{sTO}, s{sST}, 7\ns_add_u32 s{d}, s{d}, s{sTO}")
    A(f"s_mul_i32 s{sTO}, s{d}, 37\ns_lshr_b32 s{sTO}, s{sTO}, 8\ns_mul_i32 s{sTO}, s{sTO}, 7\ns_sub_u32 s{d}, s{d}, s{sTO}\ns_lshl_b32 s{d}, s{d}, 2")

handlers = []
class Stream:
    def __init__(self, name, ng, loads, soff, T, bit, VP, TP, pm=None, gated=None):
        self.name, self.ng, self.loads, self.soff, self.T, self.last, self.bit = name, ng, loads, soff, T, -1, bit
        self.VP, self.TP, self.pm, self.gated = VP, TP, pm or (lambda g: 0xffffffff), ng if gated is None else gated
        A(f"s_mov_b32 s{sMISS}, {hx((1 << 2*ng) - 1)}")
    def gate(self, g):
        if g >= self.gated: return
        L = f"{self.name}g{g}"
        A(f"s_and_b32 s{sT}, s{sMISS}, {hx(3 << 2*g)}\ns_cbranch_scc1 {L}_h\n{L}_r:")
        def h():
            A(f"{L}_h:\ns_mov_b32 s{sTO}, 0x8000\ns_mov_b32 exec_hi, 0\n{L}_l:\ns_and_b32 exec_lo, s{sMISS}, {hx(self.pm(g))}")
            A(f"buffer_load_dword v{self.TP}, v{self.VP}, {R(RWS)}, 0 offen sc1\ns_sub_u32 s{sTO}, s{sTO}, 1\ns_waitcnt vmcnt(0)\ns_cbranch_scc1 {L}_x")
            A(f"v_and_b32 v{self.TP}, {self.bit}, v{self.TP}\nv_cmp_ne_u32 vcc, 0, v{self.TP}\ns_andn2_b32 s{sMISS}, s{sMISS}, vcc_lo\ns_and_b32 s{sT}, s{sMISS}, {hx(3 << 2*g)}\ns_cbranch_scc1 {L}_l")
            A(f"{L}_x:\ns_mov_b64 exec, -1\ns_branch {L}_r")
        handlers.append(h)
    def _emit(self, g, track):
        self.soff(g)
        for reg, va, off in self.loads(g):
            A(f"buffer_load_dwordx4 {v(reg,4)}, v{va}, {R(RWS)}, s{sT} offen offset:{off} sc1")
            if track: vm.issue((self.name, g))
    def issue(self, g):
        if g < self.ng: self.gate(g); self._emit(g, True); self.last = g
    def issue_part(self, g, k):
        if g >= self.ng: return
        if k == 0: self.gate(g); self.soff(g)
        reg, va, off = self.loads(g)[k]
        A(f"buffer_load_dwordx4 {v(reg,4)}, v{va}, {R(RWS)}, s{sT} offen offset:{off} sc1"); vm.issue((self.name, g))
        self.last = g
    def _red(self, g):
        r = [x[0] + 3 for x in self.loads(g)]
        A(f"v_bitop3_b32 v{self.T}, v{r[0]}, v{r[1]}, v{r[2]} bitop3:0x80\nv_bitop3_b32 v{self.T}, v{self.T}, v{r[3]}, {self.bit} bitop3:0x80")
    def check1(self, g):
        if g < self.ng: vm.wait((self.name, g)); self._red(g)
    def check2(self, g):
        if g >= self.ng: return
        L = f"{self.name}{g}"
        A(f"v_cmp_eq_u32 vcc, 0, v{self.T}\ns_cbranch_vccnz {L}_h\n{L}_r:")
        last = self.last
        later = list(range(g + 1, last + 1)) if env("RFR", 0) and vm.q == [(self.name, k) for k in range(g + 1, last + 1) for _ in range(4)] else []
        def h():
            A(f"{L}_h:\ns_mov_b32 s{sTO}, 0x8000\n{L}_l:")
            self._emit(g, False)
            A(f"s_sub_u32 s{sTO}, s{sTO}, 1\ns_waitcnt vmcnt(0)\ns_cbranch_scc1 {L}_r")
            self._red(g)
            A(f"v_cmp_eq_u32 vcc, 0, v{self.T}\ns_cbranch_vccnz {L}_l")
            for k in later:
                self._red(k); A(f"v_cmp_eq_u32 vcc, 0, v{self.T}\ns_cbranch_vccnz {L}_f{k}")
            A(f"s_branch {L}_r")
            for k in later:
                A(f"{L}_f{k}:"); self._emit(k, False)
            if later: A(f"s_branch {L}_r")
        handlers.append(h)

def prologue():
    if STAMP: A(f"s_memrealtime s[72:73]\nv_mov_b32 v{VST}, -1")
    stamp("start")
    A(f"s_load_dwordx2 s[{RX}:{RX+1}], s[0:1], 0\ns_load_dwordx2 s[{RWQ}:{RWQ+1}], s[0:1], 8")
    A("s_cmp_ge_u32 s2, 256\ns_cbranch_scc1 K_END")
    A(f"v_and_b32 v1, 63, v0\nv_lshrrev_b32 v3, 6, v0\nv_lshlrev_b32 v{VL}, 4, v1\nv_readfirstlane_b32 s{sW8}, v3\nv_and_b32 v0, 255, v0")
    for r, sz in ((RX, S*D*2), (RWQ, D*3*D*2)): A(f"s_mov_b32 s{r+2}, {sz}\ns_mov_b32 s{r+3}, 0x20000")
    A(f"s_and_b32 s{SW}, s{sW8}, 3\ns_lshr_b32 s{sJ}, s2, 3\ns_bfe_u32 s{sT}, s2, 0x20001\ns_and_b32 s{sU}, s2, 1")
    A(f"s_lshl_b32 s{sI}, s{sT}, 2\ns_and_b32 s{sV}, s{sJ}, 3\ns_add_u32 s{sI}, s{sI}, s{sV}")
    A(f"s_lshr_b32 s{sSEC}, s{sJ}, 3\ns_bfe_u32 s{sHQ}, s{sJ}, 0x10002\ns_lshl_b32 s{sV}, s{sU}, 1\ns_add_u32 s{sHQ}, s{sHQ}, s{sV}")
    A(f"s_cmp_ge_u32 s{sJ}, 24\ns_cbranch_scc1 P1_HELP\ns_cmp_lt_u32 s{sW8}, 4\ns_cbranch_scc1 A_P1")

def prologue2():
    for r, off in ((RWS, 80), (RDBG, 72), (RWO, 16), (RW1, 32), (RB1, 40), (RW2, 48), (RB2, 56), (ROUT, 64)):
        A(f"s_load_dwordx2 s[{r}:{r+1}], s[0:1], {off}")
    A(f"s_memrealtime s[{sTAG}:{sTAG+1}]")
    for r, sz in ((RWS, WS_SIZE), (RDBG, 256), (RWO, D*D*2), (RW1, S*F*2), (RB1, F*2), (RW2, S*F*2), (RB2, S*2), (ROUT, S*D*2)):
        A(f"s_mov_b32 s{r+2}, {sz}\ns_mov_b32 s{r+3}, 0x20000")
    A(f"s_mov_b32 s{sHI}, 0\ns_mov_b32 s{sHI+1}, -1\ns_mov_b32 s{sONES}, 0x3f803f80\ns_mov_b32 s{sRETRY}, 0")
    A(f"s_mul_i32 s{sRBW}, s{SW}, 12288\ns_add_u32 s{sRBW}, s{sRBW}, {RBUF}\ns_mul_i32 s{sW2W}, s{SW}, 28672")

def roles(touch=True):
    A(f"s_bfe_u32 s{sT}, s2, 0x20001\ns_and_b32 s{sU}, s2, 1")
    pass
    A(f"s_sub_u32 s{sV}, 25, s{sU}\ns_cmp_lt_u32 s{sJ}, s{sV}\ns_cselect_b32 s{sACT4}, 1, 0\ns_cselect_b32 s{sV}, s{sJ}, 0")
    A(f"s_mul_i32 s{sFT}, s{sU}, 25\ns_add_u32 s{sV}, s{sV}, s{sFT}\ns_mul_i32 s{sDT4}, s{sV}, 9363\ns_lshr_b32 s{sDT4}, s{sDT4}, 16")
    A(f"s_mul_i32 s{sFT}, s{sDT4}, 7\ns_sub_u32 s{sV}, s{sV}, s{sFT}\ns_mul_i32 s{sFT}, s{sT}, 7\ns_add_u32 s{sFT}, s{sV}, s{sFT}")
    A(f"s_cmp_lt_u32 s{sJ}, 28\ns_cselect_b32 s{sV}, s{sJ}, 0\ns_mul_i32 s{sST}, s{sU}, 28\ns_add_u32 s{sV}, s{sV}, s{sST}")
    A(f"s_lshr_b32 s{sDT5}, s{sV}, 3\ns_and_b32 s{sV}, s{sV}, 7\ns_lshl_b32 s{sST}, s{sT}, 3\ns_add_u32 s{sST}, s{sST}, s{sV}")
    A(f"s_lshl_b32 s{sT}, s{sHQ}, 2\ns_add_u32 s{sT}, s{sT}, s{sSEC}\ns_lshl_b32 s{sT}, s{sT}, 4\ns_add_u32 s{sT}, s{sT}, s{sI}\ns_lshl_b32 s{sT}, s{sT}, 7\ns_add_u32 s{sF[0]}, s{sT}, {F1}")
    A(f"s_and_b32 s{sT}, s2, 7\ns_lshl_b32 s{sT}, s{sT}, 1\ns_and_b32 s{sH}, s{sJ}, 1\ns_add_u32 s{sH}, s{sH}, s{sT}\ns_lshr_b32 s{sI}, s{sJ}, 1")
    A(f"s_lshr_b32 s{sR3}, s{sJ}, 4\ns_add_u32 s{sR3}, s{sR3}, s{sT}\ns_lshl_b32 s{sR3}, s{sR3}, 2\ns_add_u32 s{sR3}, s{sR3}, s{SW}\ns_and_b32 s{sC3}, s{sJ}, 15")
    A(f"s_lshl_b32 s{sT}, s2, 3\ns_add_u32 s{sF[1]}, s{sT}, {F2}")
    if not touch: return
    A(f"s_lshl_b32 s{sV}, s{sR3}, 4\ns_add_u32 s{sV}, s{sV}, s{sC3}\ns_lshl_b32 s{sV}, s{sV}, 9\ns_add_u32 s{sV}, s{sV}, {WS_ST}\nv_lshl_add_u32 v4, v1, 7, s{sV}")
    A(f"v_writelane_b32 v4, s{sF[0]}, 4\nv_writelane_b32 v4, s{sF[1]}, 5\ns_mov_b64 exec, {0x3f if env('STT', 1) else 0x30}\nbuffer_load_dword v126, v4, {R(RWS)}, 0 offen sc1\ns_mov_b64 exec, -1")
    vm.issue("touch")

def p1_helper():
    TAGV = 14
    sHX = sA
    A("P1_HELP:")
    vm.q = []
    prologue2()
    A(f"s_and_b32 s{sHX}, s2, 7\ns_lshl_b32 s{sHX}, s{sHX}, 3\ns_add_u32 s{sHX}, s{sHX}, s{sJ}\ns_sub_u32 s{sHX}, s{sHX}, 24")
    A(f"v_lshrrev_b32 v4, 3, v1\nv_and_b32 v5, 7, v1\nv_lshlrev_b32 v5, 4, v5\nv_mov_b32 v7, 0")
    A(f"s_cmp_ge_u32 s{sW8}, 4\ns_cbranch_scc1 H_CS")
    A(f"v_mul_u32_u24 v6, 896, v4\nv_add_u32 v6, v6, v5\ns_lshl_b32 s{sB}, s{sHX}, 2\ns_add_u32 s{sB}, s{sB}, s{SW}\ns_mul_i32 s{sT}, s{sB}, {8*896}\ns_waitcnt lgkmcnt(0)")
    for m in range(7): A(f"buffer_load_dwordx4 {v(16+4*m,4)}, v6, {R(RX)}, s{sT} offen offset:{m*128}")
    A("v_mov_b32 v80, 0\nv_mov_b32 v82, 0\nv_mov_b32 v84, 0\nv_mov_b32 v86, 0\ns_waitcnt vmcnt(0)")
    A(f"buffer_load_dwordx2 {v(TAGV,2)}, v7, {R(RDBG)}, 0 offen sc1")
    for k in range(28): A(f"v_dot2c_f32_bf16 v{80+4*(k&1)}, s{sONES}, v{16+k}\nv_dot2c_f32_bf16 v{82+4*(k&1)}, v{16+k}, v{16+k}")
    A("v_add_f32 v80, v80, v84\nv_add_f32 v82, v82, v86")
    for m in ("quad_perm:[1,0,3,2]", "quad_perm:[2,3,0,1]", "row_half_mirror"):
        for r in (80, 82): A(f"v_add_f32_dpp v{r}, v{r}, v{r} {m} row_mask:0xf bank_mask:0xf")
    A(f"v_mul_f32 v80, {fl(1.0/D)}, v80\nv_mul_f32 v82, {fl(1.0/D)}, v82\nv_fma_f32 v82, -v80, v80, v82\nv_max_f32 v82, 0, v82\nv_add_f32 v82, {fl(EPS)}, v82\nv_rsq_f32 v82, v82")
    A(f"v_lshlrev_b32 v6, 4, v4\nv_mul_f32 v80, v80, v82\nv_sub_f32 v80, 0, v80\ns_waitcnt vmcnt(0)")
    get_tag(TAGV, "H_T1")
    A(f"v_mov_b32 v81, s{sTAG}\nv_mov_b32 v83, s{sTAG+1}\ns_lshl_b32 s{sT}, s{sB}, 7\ns_add_u32 s{sT}, s{sT}, {WS_RST}")
    set_exec(0x0101010101010101)
    A(f"buffer_store_dwordx4 v[80:83], v6, {R(RWS)}, s{sT} offen sc1\ns_mov_b64 exec, -1")
    stamp("h_pub"); stamp_flush()
    A("s_barrier")
    roles()
    addr_setup()
    A("s_branch P2_START")
    st["pend"] = [0] if STAMP else []
    A(f"H_CS:\ns_lshl_b32 s{sB}, s{SW}, 6\ns_add_u32 s{sB}, s{sB}, s{sHX}\ns_cmp_ge_u32 s{sB}, 84\ns_cbranch_scc1 H_PF")
    A(f"v_mul_u32_u24 v6, 2688, v4\nv_add_u32 v6, v6, v5\ns_and_b32 s{sC}, s{sB}, 3\ns_lshr_b32 s{sD_}, s{sB}, 2\ns_mul_i32 s{sT}, s{sC}, {112*2688}\ns_lshl_b32 s{sU}, s{sD_}, 7\ns_add_u32 s{sT}, s{sT}, s{sU}\ns_waitcnt lgkmcnt(0)")
    for m in range(14): A(f"buffer_load_dwordx4 {v(16+4*m,4)}, v6, {R(RWQ)}, s{sT} offen\ns_add_u32 s{sT}, s{sT}, {8*2688}")
    A(f"s_mov_b32 s{sT}, 0x3f80\ns_mov_b32 s{sU}, 0x3f800000")
    for r in range(80, 88): A(f"v_mov_b32 v{r}, 0")
    for m in range(14):
        if m % 4 == 0: A(f"s_waitcnt vmcnt({max(0, 14 - m - 4)})")
        if m == 12: A(f"buffer_load_dwordx2 {v(TAGV,2)}, v7, {R(RDBG)}, 0 offen sc1")
        for k in range(4): A(f"v_dot2c_f32_bf16 v{80+2*k}, s{sT}, v{16+4*m+k}\nv_dot2c_f32_bf16 v{81+2*k}, s{sU}, v{16+4*m+k}")
    for r in range(80, 88): A(f"v_add_f32_dpp v{r}, v{r}, v{r} row_ror:8 row_mask:0xf bank_mask:0xf")
    for op in ("v_permlane16_swap_b32", "v_permlane32_swap_b32"):
        for r in range(80, 88): A(f"v_mov_b32 v{r+8}, v{r}")
        for r in range(80, 88): A(f"{op} v{r}, v{r+8}")
        for r in range(80, 88): A(f"v_add_f32 v{r}, v{r}, v{r+8}")
    A("v_mov_b32 v88, v80\nv_mov_b32 v90, v81")
    for pi in range(1, 4): A(f"v_cmp_eq_u32 vcc, {pi}, v4\nv_cndmask_b32 v88, v88, v{80+2*pi}, vcc\nv_cndmask_b32 v90, v90, v{81+2*pi}, vcc")
    A(f"v_lshlrev_b32 v6, 2, v5\nv_lshl_add_u32 v6, v4, 4, v6\ns_waitcnt vmcnt(0)")
    get_tag(TAGV, "H_T2")
    A(f"v_mov_b32 v89, s{sTAG}\nv_mov_b32 v91, s{sTAG+1}\ns_mul_i32 s{sT}, s{sC}, 10752\ns_lshl_b32 s{sU}, s{sD_}, 9\ns_add_u32 s{sT}, s{sT}, s{sU}\ns_add_u32 s{sT}, s{sT}, {WS_CSG}")
    set_exec(0xFFFFFFFF)
    A(f"buffer_store_dwordx4 v[88:91], v6, {R(RWS)}, s{sT} offen sc1\ns_mov_b64 exec, -1\ns_barrier\ns_branch B_P2")
    A(f"H_PF:\ns_cmp_lt_u32 s{SW}, 2\ns_cbranch_scc1 H_W")
    sQ = sB
    A(f"s_sub_u32 s{sQ}, s{sJ}, 24\ns_lshl_b32 s{sQ}, s{sQ}, 1\ns_add_u32 s{sQ}, s{sQ}, s{SW}\ns_sub_u32 s{sQ}, s{sQ}, 2")
    A(f"s_getpc_b64 s[{sC}:{sC+1}]\nCODE_REF:\ns_lshl_b32 s{sT}, s{sQ}, 12\nv_lshl_add_u32 v6, v1, 7, s{sT}\nv_min_u32 v6, CODE_END-CODE_REF-4, v6")
    A(f"v_mov_b32 v9, s{sC+1}\nv_add_co_u32 v8, vcc, s{sC}, v6\nv_addc_co_u32 v9, vcc, 0, v9, vcc")
    set_exec(0xFFFFFFFF)
    A("global_load_dword v25, v[8:9], off\ns_mov_b64 exec, -1\ns_waitcnt lgkmcnt(0)\ns_barrier")
    A("v_lshlrev_b32 v6, 7, v1")
    A(f"s_and_b32 s{sT}, s2, 7\ns_lshl_b32 s{sT}, s{sT}, 4\ns_add_u32 s{sT}, s{sT}, s{sQ}\ns_mul_i32 s{sT}, s{sT}, {7*8192}")
    for k in range(env("NP1", 0)): A(f"s_add_u32 s{sU}, s{sT}, {k*8192}\nbuffer_load_dword v{16+k}, v6, {R(RW1)}, s{sU} offen")
    for k in range(env("NP2", 0)): A(f"s_add_u32 s{sU}, s{sT}, {k*8192}\nbuffer_load_dword v{26+k}, v6, {R(RW2)}, s{sU} offen")
    if env("WOT", 0) == 1:
        A(f"s_mul_i32 s{sT}, s{sQ}, {196*128}")
        set_exec((1 << 49) - 1)
        for k in range(4): A(f"s_add_u32 s{sU}, s{sT}, {k*49*128}\nbuffer_load_dword v24, v6, {R(RWO)}, s{sU} offen")
        A("s_mov_b64 exec, -1")
    if STAMP:
        A("s_waitcnt vmcnt(0)"); stamp("h_touch"); stamp_flush(); A(f"v_mov_b32 v15, v{VST}\ns_branch B_P2S")
    A("s_branch B_P2\nH_W:\ns_waitcnt lgkmcnt(0)\ns_barrier\ns_branch B_P2")

XA = LDS_TOTAL - 65536
XBUF = [8192, 0, 8192, 4096]
def p1_common():
    sWO, sM = sA, sC
    A(f"s_mul_i32 s{sWO}, s{sSEC}, 896\ns_mul_i32 s{sT}, s{sHQ}, 224\ns_add_u32 s{sWO}, s{sWO}, s{sT}")
    A(f"s_lshl_b32 s{sE}, s{sI}, 2\ns_add_u32 s{sE}, s{sE}, s{SW}\ns_lshl_b32 s{sM}, s{SW}, 14\ns_add_u32 s{sM}, s{sM}, {XA}")

def p1():
    XF, ACC, WF = 16, 128, 192
    VXR = list(range(80, 88)); VXS = list(range(88, 92)); VWR = [92, 93]; TAGV = 94
    xf = lambda ks: XF + ((ks + 8) & 15)*4 if False else XF + (ks & 15)*4
    sWO, sM = sA, sC
    A("A_P1:")
    prologue2()
    p1_common()
    A(f"v_and_b32 v4, 31, v1\nv_lshrrev_b32 v5, 5, v1\nv_and_b32 v6, 15, v1\nv_xor_b32 v6, v6, v5\nv_lshlrev_b32 v6, 4, v6\nv_lshl_add_u32 v6, v4, 8, v6\nv_add_u32 v6, s{sM}, v6")
    for k in range(8): A(f"v_xor_b32 v{VXR[k]}, {k<<5}, v6")
    A(f"v_bfe_u32 v6, v1, 1, 3\nv_xor_b32 v6, v6, v5\nv_lshlrev_b32 v6, 4, v6\nv_lshl_add_u32 v6, v4, 7, v6\nv_add_u32 v6, s{sM}, v6")
    for k in range(4): A(f"v_xor_b32 v{VXS[k]}, {k<<5}, v6")
    tr_lane_addr(VWR[0], 4, 224, 8, 2); A(f"v_add_u32 v{VWR[1]}, {14*3584}, v{VWR[0]}")
    A("s_waitcnt lgkmcnt(0)")
    stamp("karg")
    A(f"s_or_b32 s{sT}, s2, s{SW}\ns_cbranch_scc1 P1_NOTAG")
    A(f"s_bitset1_b32 s{sTAG+1}, 31\nv_mov_b32 v8, s{sTAG}\nv_mov_b32 v9, s{sTAG+1}\nv_mov_b32 v10, 0\nv_mov_b32 v11, 0\ns_mov_b64 exec, 1\nbuffer_atomic_cmpswap_x2 v[8:11], v10, {R(RDBG)}, 0 offen sc1\ns_mov_b64 exec, -1\nP1_NOTAG:")
    A(f"s_mov_b32 s7, s{sE}")
    roles()
    addr_setup()
    A(f"s_mov_b32 s{sE}, s7\ns_lshl_b32 s{sM}, s{SW}, 14\ns_add_u32 s{sM}, s{sM}, {XA}")
    stamp_flush()
    A(f"s_cmp_eq_u32 s{sSEC}, 2\ns_cbranch_scc1 P1_V")
    for isv in (0, 1):
        vm.q = []; lg.q = []
        if isv: A("P1_V:")
        def xread(p):
            for k in range(8 if p < 3 else 4):
                A(f"ds_read_b128 {v(xf(8*p+k), 4)}, v{(VXR if p < 3 else VXS)[k]} offset:{XBUF[p]}"); lg.issue(f"x{p}")
        def wread(ks, hds=range(4)):
            for hd in hds:
                for half in range(2):
                    A(f"ds_read_b64_tr_b16 {v(WF + (ks&1)*16 + hd*4 + half*2, 2)}, v{VWR[ks//14]} offset:{(ks%14)*3584 + half*224 + hd*56}"); lg.issue(f"w{ks}_{hd}")
        C = [16, 32, 64, 96]; PK = WF; RS = 112
        A(f"s_lshl_b32 s{sT}, s{SW}, 10\nv_lshrrev_b32 v5, 5, v1\nv_lshl_add_u32 v5, v5, 4, s{sT}\nv_and_b32 v6, 31, v1\nv_lshl_add_u32 v4, v6, 2, s{sT}\nv_mov_b32 v9, 0")
        A(f"s_lshl_b32 s{sU}, s{sHQ}, 8\ns_add_u32 s{sU}, s{sU}, s{sE}")
        if not isv:
            A(f"s_cmp_eq_u32 s{sSEC}, 0\ns_cselect_b32 s{sA}, 0, s{sONES}\ns_cselect_b32 s{sB}, 0, 0x3f80\ns_cselect_b32 s{sC}, {WS_Q}, {WS_KV}")
            A(f"s_add_u32 s{sD_}, s{sSEC}, 11\ns_lshl_b32 s{sU}, s{sU}, s{sD_}\ns_add_u32 s{sU}, s{sU}, s{sC}\ns_lshl_b32 s{sD_}, 64, s{sD_}\nv_mov_b32 v7, s{sA}\nv_mov_b32 v8, s{sB}")
            cr = [f"ds_read_b32 v{RS}, v4 offset:512", f"ds_read_b32 v{RS+2}, v4 offset:640"] + [f"ds_read_b128 {v(C[hd]+4*g,4)}, v5 offset:{hd*112 + g*32}" for hd in range(4) for g in range(4)]
        else:
            A(f"s_lshl_b32 s{sU}, s{sU}, 12\ns_add_u32 s{sU}, s{sU}, {WS_KV + 2048}\ns_mov_b32 s{sD_}, {64*4096}\ns_mov_b32 s{sA}, 0x0fffffff\ns_mov_b32 s{sA+1}, 0x0fffffff")
            A(f"v_cmp_eq_u32 vcc, 28, v6\nv_mov_b32 v7, s{sONES}\nv_cndmask_b32 v8, 0, v7, vcc")
            PK = 96
            for r in range(16): A(f"v_mov_b32 v{PK+r}, v8")
            cr = [f"ds_read_b128 {v(16+4*g,4)}, v5 offset:{512 + g*32}" for g in range(4)] + [f"ds_read_b128 {v(32+4*g,4)}, v5 offset:{640 + g*32}" for g in range(4)] + [f"ds_read_b32 v{RS+2*hd}, v4 offset:{hd*112}" for hd in range(4)]
        for p in range(4):
            k0, k1 = 8*p, min(8*p + 8, 28)
            A("s_barrier"); stamp(f"g{p}")
            xread(p); wread(k0, [0, 1, 2])
            if p == 2: A(f"buffer_load_dwordx2 {v(TAGV,2)}, v9, {R(RDBG)}, 0 offen sc1")
            lg.wait(f"x{p}")
            if p < 2: A("s_barrier")
            wread(k0, [3])
            for ks in range(k0, k1):
                x = v(xf(ks), 4)
                for hd in range(4):
                    lg.wait(f"w{ks}_{hd}")
                    w_ = v(WF + (ks&1)*16 + hd*4, 4); acc = v(ACC + 16*hd, 16)
                    A(f"{MFMA} {acc}, {x if isv else w_}, {w_ if isv else x}, {'0' if ks == 0 else acc}")
                    if ks + 1 < k1: wread(ks + 1, [hd])
                    if p == 3:
                        for _ in range(3 if ks == 27 else (1 if hd & 1 else 0)):
                            if cr: A(cr.pop(0)); lg.issue("c")
        assert not cr
        stamp("mfma_done")
        lg.wait_all()
        for hd in range(4):
            ac = ACC + 16*hd
            if not isv:
                c, o = C[hd], PK + 8*hd
                for r in range(0, 16, 2): A(f"v_pk_mul_f32 {v(c+r,2)}, {v(c+r,2)}, {v(RS+2,2)} op_sel_hi:[1,0]")
                for r in range(0, 16, 2): A(f"v_pk_fma_f32 {v(ac+r,2)}, {v(ac+r,2)}, {v(RS,2)}, {v(c+r,2)} op_sel_hi:[1,0,1]")
            else:
                o = PK + 8*(hd & 1)
                for r in range(0, 16, 2): A(f"v_pk_mul_f32 {v(64+r,2)}, {v(32+r,2)}, {v(RS+2*hd,2)} op_sel_hi:[1,0]")
                for r in range(0, 16, 2): A(f"v_pk_fma_f32 {v(ac+r,2)}, {v(ac+r,2)}, {v(16+r,2)}, {v(64+r,2)}")
                A(f"s_mov_b64 exec, s[{sA}:{sA+1}]")
            for r in range(8): A(f"v_cvt_pk_bf16_f32 v{o+r}, v{ac+2*r}, v{ac+2*r+1}")
            if not isv: A(f"v_cndmask_b32 v{o+6}, v{o+6}, v7, s[{sHI}:{sHI+1}]\nv_cndmask_b32 v{o+7}, v{o+7}, v8, s[{sHI}:{sHI+1}]\nv_and_b32 v{o+3}, 0xfffefffe, v{o+3}\nv_and_b32 v{o+7}, 0xfffefffe, v{o+7}")
            else: A(f"v_and_b32 v{o+3}, -2, v{o+3}\nv_and_b32 v{o+7}, -2, v{o+7}\ns_mov_b64 exec, -1")
            for f in range(2): A(f"buffer_store_dwordx4 {v(o+4*f,4)}, v{VL}, {R(RWS)}, s{sU} offen offset:{f*1024} sc1")
            if hd < 3: A(f"s_add_u32 s{sU}, s{sU}, s{sD_}")
        stamp("kvst"); stamp_flush()
        if not isv: A("s_branch P1_DONE")
    A("P1_DONE:\ns_waitcnt vmcnt(8)")
    get_tag(TAGV, "P1_T")

def tilemax(sreg, T0, T1):
    A(f"v_max3_f32 v{T0}, v{sreg}, v{sreg+1}, v{sreg+2}\nv_max3_f32 v{T1}, v{sreg+3}, v{sreg+4}, v{sreg+5}")
    A(f"v_max3_f32 v{T0}, v{T0}, v{sreg+6}, v{sreg+7}\nv_max3_f32 v{T1}, v{T1}, v{sreg+8}, v{sreg+9}")
    A(f"v_max3_f32 v{T0}, v{T0}, v{sreg+10}, v{sreg+11}\nv_max3_f32 v{T1}, v{T1}, v{sreg+12}, v{sreg+13}")
    A(f"v_max3_f32 v{T0}, v{T0}, v{sreg+14}, v{sreg+15}")
def set_qpad(q, m, T0, T1, T2):
    A(f"v_sub_f32 v{T0}, 0, v{m}\nv_and_b32 v{T1}, 0xffff0000, v{T0}\nv_sub_f32 v{T0}, v{T0}, v{T1}")
    A(f"v_and_b32 v{T2}, 0xffff0000, v{T0}\nv_sub_f32 v{T0}, v{T0}, v{T2}\nv_lshrrev_b32 v{T0}, 16, v{T0}")
    A(f"v_lshrrev_b32 v{T1}, 16, v{T1}\nv_or_b32 v{T1}, v{T1}, v{T2}")
    A(f"v_cndmask_b32 v{q+6}, v{q+6}, v{T1}, s[{sHI}:{sHI+1}]\nv_cndmask_b32 v{q+7}, v{q+7}, v{T0}, s[{sHI}:{sHI+1}]")

NKV = env("NKV", 4)
XR, IR3 = (224, 232) if NKV == 4 else (176, 184)
VRD, VFL, VKV, VONE, VRB, VWO = [240, 241], 242, 243, 244, [246, 247], 248
VO3, VP3, VH, VP4, VG, VP5 = [10, 11], 12, [14, 15], 3, [253, 254], 242
sRO, sGC, sGST, sHFO, sFO, sRT3 = 96, 97, 98, 99, 100, 101
VRW = [249, 250, 251, 252]
def ident3():
    A("v_and_b32 v4, 31, v1\nv_lshrrev_b32 v5, 5, v1\nv_lshlrev_b32 v6, 3, v5\nv_sub_u32 v6, v4, v6")
    for p in range(2):
        for r in range(4):
            A(f"v_cmp_eq_u32 vcc, {16*p+2*r}, v6\nv_cmp_eq_u32 s[{sU}:{sU+1}], {16*p+2*r+1}, v6\nv_cndmask_b32 v{IR3+4*p+r}, 0, v{VONE}, vcc\nv_cndmask_b32 v{IR3+4*p+r}, v{IR3+4*p+r}, v{VONE+1}, s[{sU}:{sU+1}]")
def addr_setup():
    tr_lane_addr(4, 5, 128, 4)
    A(f"s_and_b32 s{sT}, s{SW}, 1\ns_lshl_b32 s{sT}, s{sT}, 5\nv_xor_b32 v4, s{sT}, v4")
    A(f"v_bfe_u32 v5, v1, 3, 1\ns_lshr_b32 s{sT}, s{SW}, 1\nv_xor_b32 v5, s{sT}, v5")
    A(f"v_lshl_add_u32 v6, v5, 6, v4\nv_xor_b32 v5, 1, v5\nv_lshl_add_u32 v7, v5, 6, v4")
    A(f"v_add_u32 v{VRD[0]}, s{sW2W}, v6\nv_add_u32 v{VRD[1]}, s{sW2W}, v7")
    A(f"v_mov_b32 v{VONE}, 0x3f80\nv_mov_b32 v{VONE+1}, 1.0")
    A(f"s_lshl_b32 s{sT}, s{sH}, 2\ns_add_u32 s{sT}, s{sT}, s{SW}\ns_lshl_b32 s{sT}, s{sT}, 16\ns_add_u32 s{sT}, s{sT}, {WS_KV}\nv_add_u32 v{VKV}, s{sT}, v{VL}")
    tr_lane_addr(VWO, 4, 64, 4); A(f"v_add_u32 v{VWO}, {RBUF}, v{VWO}\nv_add_u32 v{VRW[0]}, s{sRBW}, v{VL}")
    for t in range(1, 4):
        A(f"s_add_u32 s{sT}, s{SW}, {t}\ns_and_b32 s{sT}, s{sT}, 3\ns_mul_i32 s{sT}, s{sT}, 12288\ns_add_u32 s{sT}, s{sT}, {RBUF}\nv_add_u32 v{VRW[t]}, s{sT}, v{VL}")
    if NKV == 4: ident3()
    A("v_and_b32 v4, 31, v1\nv_lshrrev_b32 v5, 5, v1")
    A("v_mul_u32_u24 v13, 896, v4\nv_lshl_add_u32 v13, v5, 4, v13")
    A(f"s_lshl_b32 s{sB}, s{sR3}, 11\ns_add_u32 s{sB}, s{sB}, {WS_O}\nv_add_u32 v{VO3[0]}, s{sB}, v{VL}\nv_add_u32 v{VO3[1]}, 0x20000, v{VO3[0]}\ns_and_b32 s{sT}, s{sC3}, 7\ns_lshl_b32 s{sRT3}, s{sT}, 18")
    A(f"s_lshl_b32 s{sT}, s{sT}, 1\nv_add_u32 v{VP3}, s{sT}, v1\nv_and_b32 v{VP3}, 15, v{VP3}\nv_lshlrev_b32 v{VP3}, 17, v{VP3}\ns_add_u32 s{sT}, s{sB}, 2044\nv_add_u32 v{VP3}, s{sT}, v{VP3}")
    mlp_addr(RA, 4, 6)
    A(f"s_lshl_b32 s{sFO}, s{sFT}, 2\ns_add_u32 s{sFO}, s{sFO}, s{SW}\ns_mul_i32 s{sT}, s{sDT4}, {2*112*1024}\ns_lshl_b32 s{sU}, s{sFO}, 10\ns_add_u32 s{sT}, s{sT}, s{sU}\ns_add_u32 s{sGST}, s{sT}, {WS_G}")
    A(f"s_lshr_b32 s{sV}, s{SW}, 1\ns_lshl_b32 s{sT}, s{sST}, 1\ns_add_u32 s{sV}, s{sV}, s{sT}\ns_mul_i32 s{sV}, s{sV}, 7\ns_add_u32 s{sV}, s{sV}, s{sDT5}\ns_lshl_b32 s{sV}, s{sV}, 12\ns_and_b32 s{sT}, s{SW}, 1\ns_lshl_b32 s{sT}, s{sT}, 10\ns_add_u32 s{sV}, s{sV}, s{sT}\ns_add_u32 s{sHFO}, s{sV}, {WS_HF}")
    A(f"s_xor_b32 s{sT}, s{SW}, 3\ns_mul_i32 s{sT}, s{sT}, 28672\ns_add_u32 s{sT}, s{sT}, {13*2048}\nv_add_u32 v{VX3}, s{sT}, v{VL}")

class Role: pass
RA, RB = Role(), Role()
C5A = env("C5A", 12)
RA.n, RA.n4, RA.c4, RA.n5, RA.c5, RA.W, RA.slots = "A", 0, 12, 0, C5A, 128, [0, 1, 2, 3, 4, 5]
RA.VRD, RA.VH, RA.VG, RA.VP4, RA.VP5, RA.VT2, RA.T0, RA.T1 = [240, 241], 14, 253, 3, 242, [246, 247], 4, 5
RB.n, RB.n4, RB.c4, RB.n5, RB.c5, RB.W, RB.slots = "B", 12, 20, C5A, 28 - C5A, 96, [12, 6, 7, 8, 9, 10, 11]
RB.VRD, RB.VH, RB.VG, RB.VP4, RB.VP5, RB.VT2, RB.T0, RB.T1 = [0, 3], 4, 5, 8, 9, [6, 7], 12, 13
VX3 = 15
def w2_addr(r, t0, t1):
    A(f"v_lshrrev_b32 v{t0}, 3, v1\nv_bfe_u32 v{t1}, v1, 4, 1\nv_lshlrev_b32 v{t1}, 2, v{t1}\nv_and_b32 v{r.VT2[0]}, 7, v1\nv_xor_b32 v{t1}, v{r.VT2[0]}, v{t1}\nv_lshlrev_b32 v{t1}, 4, v{t1}\nv_lshl_add_u32 v{t0}, v{t0}, 12, v{t1}")
    A(f"s_mul_i32 s{sT}, s{SW}, {448*4096}\ns_lshl_b32 s{sU}, s{sST}, 7\ns_add_u32 s{sT}, s{sT}, s{sU}\nv_add_u32 v{r.VT2[0]}, s{sT}, v{t0}\nv_add_u32 v{r.VT2[1]}, {8*4096 - 1024}, v{r.VT2[0]}")
    rot4(sRO); A(f"s_lshl_b32 s{sRO}, s{sRO}, 10")
    rot5(sGC); A(f"s_lshl_b32 s{sGC}, s{sGC}, 10")
def mlp_addr(r, t0, t1, w2=True):
    if w2: w2_addr(r, t0, t1)
    A(f"s_lshl_b32 s{sT}, s{SW}, 15\ns_add_u32 s{sT}, s{sT}, {WS_HH}\ns_lshl_b32 s{sB}, s{sDT4}, 18\ns_add_u32 s{sB}, s{sB}, s{sT}\nv_add_u32 v{r.VH}, s{sB}, v{VL}")
    A(f"s_add_u32 s{sT}, s{sRO}, {r.n4*1024}\nv_lshl_add_u32 v{r.VP4}, v1, 11, s{sT}\nv_and_b32 v{r.VP4}, 0x7fff, v{r.VP4}\ns_add_u32 s{sT}, s{sB}, 2044\nv_add_u32 v{r.VP4}, s{sT}, v{r.VP4}")
    A(f"s_mul_i32 s{sT}, s{SW}, {28*1024}\ns_add_u32 s{sT}, s{sT}, {WS_G}\ns_mul_i32 s{sB}, s{sDT5}, {2*112*1024}\ns_add_u32 s{sB}, s{sB}, s{sT}")
    A(f"s_and_b32 s{sT}, s{SW}, 1\ns_lshl_b32 s{sT}, s{sT}, 8\nv_xor_b32 v{r.VG}, s{sT}, v{VL}\nv_add_u32 v{r.VG}, s{sB}, v{r.VG}")
    A(f"s_add_u32 s{sT}, s{sGC}, {r.n5*1024}\nv_min_u32 v{t0}, {r.c5 // 2 - 1}, v1\nv_lshl_add_u32 v{r.VP5}, v{t0}, 11, s{sT}\nv_subrev_u32 v{t0}, {28*1024}, v{r.VP5}\nv_min_u32 v{r.VP5}, v{r.VP5}, v{t0}\ns_add_u32 s{sT}, s{sB}, 2044\nv_add_u32 v{r.VP5}, s{sT}, v{r.VP5}")

def p2():
    Q, O, SS, PP, KV = 16, 48, [112, 128], [144, 152], 160
    M = [112, 113, 114, 115]; K0 = 120
    T0, T1, T2, T3 = 4, 5, 6, 7
    sKN = sB
    vm.wait_all(); stamp("kvdrain")
    A(f"s_barrier\ns_cmp_lg_u32 s{SW}, 0\ns_cbranch_scc1 P2_NOF")
    flag_store(sF[0]); flag_store(sF[1]); A("P2_NOF:"); stamp_flush()
    A("P2_START:")
    if env("LOC3", 1):
        A(f"s_getreg_b32 s{sV}, hwreg(HW_REG_XCC_ID, 0, 4)\ns_cmp_lg_u32 s{SW}, 1\ns_cbranch_scc1 P2_NOX")
        A(f"s_lshr_b32 s{sT}, s{sR3}, 2\ns_lshl_b32 s{sT}, s{sT}, 4\ns_add_u32 s{sT}, s{sT}, s{sC3}\ns_lshl_b32 s{sT}, s{sT}, 4\ns_add_u32 s{sT}, s{sT}, {F4}")
        A(f"v_mov_b32 v4, s{sV}\nv_mov_b32 v5, s{sTAG}\nv_mov_b32 v6, s{sV}\nv_mov_b32 v7, s{sTAG+1}\nv_mov_b32 v8, 0\ns_mov_b64 exec, 1\nbuffer_store_dwordx4 v[4:7], v8, {R(RWS)}, s{sT} offen sc1\ns_mov_b64 exec, -1\nP2_NOX:")
    A(f"s_mul_i32 s{sE}, s{sR3}, {32*896}\ns_lshl_b32 s{sU}, s{sC3}, 6\ns_add_u32 s{sE}, s{sE}, s{sU}")
    xl = [f"buffer_load_dwordx4 {v(XR+4*p,4)}, v13, {R(RX)}, s{sE} offen offset:{32*p}" for p in range(2)]
    if NKV == 4: A("\n".join(xl))
    A(f"s_lshl_b32 s{sV}, s{sI}, 2\ns_add_u32 s{sV}, s{sV}, s{SW}\ns_lshl_b32 s{sU}, s{sH}, 6\ns_add_u32 s{sU}, s{sU}, s{sV}\ns_lshl_b32 s{sU}, s{sU}, 11")
    A(f"s_lshr_b32 s{sT}, s{sH}, 2\ns_lshl_b32 s{sT}, s{sT}, 13\ns_add_u32 s{sT}, s{sT}, {F1}\ns_lshl_b32 s{sA}, s{SW}, 9\ns_add_u32 s{sA}, s{sA}, 2048\ns_lshl_b32 s{sC}, s{sI}, 7")
    A(f"v_and_b32 v7, 3, v1\nv_lshl_add_u32 v7, v7, 7, s{sA}\nv_bfe_u32 v8, v1, 2, 1\nv_lshl_add_u32 v7, v8, 11, v7\nv_writelane_b32 v7, s{sC}, 8")
    poll(7, sT, 9, 8); stamp("s1")
    def kvload(n):
        pre = []
        if n == 0: pre = [f"s_add_u32 s{sA}, s{RWS}, 4096", f"s_addc_u32 s{sA+1}, s{RWS+1}, 0"]
        elif n % 2 == 0: pre = [f"s_add_u32 s{sA}, s{sA}, 8192", f"s_addc_u32 s{sA+1}, s{sA+1}, 0"]
        return pre + [f"global_load_dwordx4 {v(KV+16*(n%NKV)+4*f,4)}, v{VKV}, s[{sA}:{sA+1}] offset:{(n % 2 - 1)*4096 + f*1024} sc1" for f in range(4)]
    def emit(lines, tag):
        for ln in lines:
            A(ln)
            if ln.startswith("global_"): vm.issue(tag)
    for f in range(2): A(f"buffer_load_dwordx4 {v(Q+4*f,4)}, v{VL}, {R(RWS)}, s{sU} offen offset:{f*1024} sc1"); vm.issue("q")
    emit(kvload(0), "kv0")
    A("s_waitcnt vmcnt(2)"); stamp("qk0")
    A(f"{MFMA} {v(O,16)}, {v(KV,4)}, {v(Q,4)}, 0\n{MFMA} {v(O,16)}, {v(KV+4,4)}, {v(Q+4,4)}, {v(O,16)}")
    emit(kvload(1), "kv1")
    A(f"ds_write_b128 v{VRW[0]}, {v(Q,4)}")
    tilemax(O, T0, T1)
    A(f"v_max_f32 v{T0}, v{T0}, v{T1}\nv_mov_b32 v{T1}, v{T0}\nv_permlane32_swap_b32 v{T0}, v{T1}\nv_max_f32 v{T0}, v{T0}, v{T1}")
    set_qpad(Q, T0, T1, T2, T3)
    A(f"ds_write_b128 v{VRW[0]}, {v(Q+4,4)} offset:1024")
    A(f"{MFMA} {v(SS[0],16)}, {v(KV,4)}, {v(Q,4)}, 0\n{MFMA} {v(SS[0],16)}, {v(KV+4,4)}, {v(Q+4,4)}, {v(SS[0],16)}")
    emit(kvload(2), "kv2")
    A("s_waitcnt lgkmcnt(0)")
    A("s_barrier")
    for t in range(1, 4): A(f"ds_read_b128 {v(Q+8*t,4)}, v{VRW[t]}\nds_read_b128 {v(Q+8*t+4,4)}, v{VRW[t]} offset:1024")
    emit(kvload(3), "kv3")
    if env("APRIO", 0): A(f"s_setprio {env('APRIO', 0)}")
    A("P2_MAIN:")
    slot = lambda idx: (idx + (idx >= 60)) & 3
    pwr = lambda t, g: f"ds_write_b128 v{VRW[t]}, {v(O+16*t+4*g,4)} offset:{(t-1)*4096 + g*1024}"
    def qk(idx, part):
        n, t = idx >> 2, slot(idx); sr = SS[idx & 1]; k = KV + 16*(n % NKV)
        return f"{MFMA} {v(sr,16)}, {v(k+4*part,4)}, {v(Q+8*t+4*part,4)}, {'0' if part == 0 else v(sr,16)}"
    def pv(idx, part):
        n, t = idx >> 2, slot(idx); k = KV + 16*(n % NKV) + 8; o = O + 16*t
        return f"{MFMA} {v(o,16)}, {v(k+4*part,4)}, {v(PP[idx&1]+4*part,4)}, {'0' if (n == 0 and part == 0) else v(o,16)}"
    NI = 64
    for idx in range(NI):
        n, t = idx >> 2, idx & 3
        if idx in (16, 32, 48): stamp(f"a{idx}")
        side = [[], [], [], []]
        if NKV > 4 and idx == 53: side = [xl[:1], [], xl[1:], []]
        if t in (1, 2) and 4 <= n + NKV - 1 < 16:
            l = kvload(n + NKV - 1); pre, ld = l[:-4], l[-4:]
            side = [pre[:1], pre[1:], ld[0:1], ld[1:2]] if t == 1 else [ld[2:3], ld[3:4], [], []]
        if idx == 62: side = [[], [pwr(1, 0)], [pwr(1, 1)], [pwr(1, 2)]]
        if idx == 63: side = [[], [pwr(2, 0), pwr(2, 1)], [], [pwr(2, 2)]]
        if idx == env("CUTAT", 61): side[0].append(f"ds_write_b32 v{VRW[1]}, v{VONE} offset:3072")
        mf = [qk(idx+1, 0) if idx+1 < NI else None, pv(idx-1, 0) if idx > 0 else None,
              qk(idx+1, 1) if idx+1 < NI else None, pv(idx-1, 1) if idx > 0 else None]
        if idx == 0: mf = [None, "s_waitcnt lgkmcnt(0)\n" + mf[0], mf[2], None]
        sr, p = SS[idx & 1], PP[idx & 1]
        for q in range(4):
            if mf[q]: A(mf[q])
            emit(side[q], f"kv{n+NKV-1}")
            if idx == 0 and q == 2: vm.wait("kv0")
            if t == 2 and q == 3 and n + 1 < 16: vm.wait(f"kv{n+1}")
            for j in range(4): A(f"v_exp_f32 v{sr+4*q+j}, v{sr+4*q+j}")
            if q > 0:
                for j in range(2): A(f"v_cvt_pk_bf16_f32 v{p+2*(q-1)+j}, v{sr+4*(q-1)+2*j}, v{sr+4*(q-1)+2*j+1}")
        for j in range(2): A(f"v_cvt_pk_bf16_f32 v{p+6+j}, v{sr+12+2*j}, v{sr+12+2*j+1}")
    A("P2_TAIL:"); A(pv(NI-1, 0)); A(pv(NI-1, 1)); stamp("aend")
    for g in range(3): A(pwr(3, g))
    A(f"s_mov_b32 s{sT}, {fl(2.0**30)}")
    A(f"v_cmp_nlt_f32 s[{sA}:{sA+1}], v{O+60}, s{sT}\nv_cmp_nlt_f32 s[{sC}:{sC+1}], v{O+28}, s{sT}\ns_or_b32 s{sU}, s{sA+1}, s{sC+1}")
    A(f"v_cmp_nlt_f32 s[{sA}:{sA+1}], v{O+44}, s{sT}\nv_cmp_nlt_f32 s[{sC}:{sC+1}], v{O+12}, s{sT}\ns_or_b32 s{sU}, s{sU}, s{sA+1}\ns_or_b32 s{sU}, s{sU}, s{sC+1}")
    A(f"s_cselect_b32 s{sU}, 1.0, 0\nv_mov_b32 v{T0}, s{sU}")
    for t in range(4): A(f"v_cndmask_b32 v{O+16*t+13}, v{O+16*t+13}, v{T0}, s[{sHI}:{sHI+1}]")
    for t in range(1, 4): A(f"ds_write_b128 v{VRW[t]}, {v(O+16*t+12,4)} offset:{(t-1)*4096 + 3*1024}")
    A(f"s_lshl_b32 s{sD_}, s{sI}, 2\ns_add_u32 s{sD_}, s{sD_}, s{SW}\ns_lshl_b32 s{sV}, s{sH}, 6\ns_add_u32 s{sV}, s{sV}, s{sD_}\ns_lshl_b32 s{sV}, s{sV}, 11\ns_add_u32 s{sV}, s{sV}, {WS_O}")
    A("s_waitcnt lgkmcnt(0)\ns_barrier")
    for g in (3, 0, 1, 2):
        for t in range(1, 4): A(f"ds_read_b128 {v(O+16*t+4*g,4)}, v{VRW[0]} offset:{(t-1)*4096 + g*1024}")
    def red(g):
        for r in (4*g, 4*g+2):
            A(f"v_pk_add_f32 {v(O+r,2)}, {v(O+r,2)}, {v(O+16+r,2)}\nv_pk_add_f32 {v(O+32+r,2)}, {v(O+32+r,2)}, {v(O+48+r,2)}")
        for r in (4*g, 4*g+2): A(f"v_pk_add_f32 {v(O+r,2)}, {v(O+r,2)}, {v(O+32+r,2)}")
    A("s_waitcnt lgkmcnt(9)"); red(3)
    A(f"v_readlane_b32 s{sT}, v{O+13}, 32\nv_mov_b32 v{T0}, v{O+12}\nv_mov_b32 v{T2}, v{O+12}\nv_permlane32_swap_b32 v{T0}, v{T2}\nv_rcp_f32 v{T2}, v{T2}")
    A(f"s_cmp_lg_u32 s{sT}, s{sRETRY}\ns_cbranch_scc1 P2_FALL\nP2_FIN:")
    for k, g in enumerate((0, 1, 2)):
        A(f"s_waitcnt lgkmcnt({6 - 3*k})"); red(g)
    for r in range(0, 16, 2): A(f"v_pk_mul_f32 {v(O+r,2)}, {v(O+r,2)}, {v(T2,2)} op_sel_hi:[1,0]")
    for r in range(8): A(f"v_cvt_pk_bf16_f32 v{O+16+r}, v{O+2*r}, v{O+2*r+1}")
    A(f"v_cndmask_b32 v{O+22}, v{O+22}, 0, s[{sHI}:{sHI+1}]\nv_cndmask_b32 v{O+23}, v{O+23}, 0, s[{sHI}:{sHI+1}]")
    A(f"s_mov_b32 s{sT}, 0xfffeffff\nv_and_or_b32 v{O+19}, v{O+19}, s{sT}, 1\nv_and_or_b32 v{O+23}, v{O+23}, s{sT}, 1")
    for f in range(2): A(f"buffer_store_dwordx4 {v(O+16+4*f,4)}, v{VL}, {R(RWS)}, s{sV} offen offset:{f*1024} sc1")
    stamp("ost")
    if STAMP and env("ACK", 0): A("s_waitcnt vmcnt(0)"); stamp("oack")
    stamp_flush()
    A("s_barrier")
    def fallback():
        A(f"P2_FALL:\ns_cmp_lg_u32 s{sRETRY}, 0\ns_cbranch_scc1 P2_FIN")
        A(f"s_mov_b32 s{sRETRY}, -1\ns_waitcnt vmcnt(0) lgkmcnt(0)")
        for t in range(4):
            A(f"v_cndmask_b32 v{Q+8*t+6}, v{Q+8*t+6}, 0, s[{sHI}:{sHI+1}]\nv_cndmask_b32 v{Q+8*t+7}, v{Q+8*t+7}, 0, s[{sHI}:{sHI+1}]\nv_mov_b32 v{M[t]}, 0xff800000")
        A(f"s_mov_b32 s{sU}, 0\nP2_MAXLOOP:")
        for f in range(2): A(f"buffer_load_dwordx4 {v(K0+4*f,4)}, v{VKV}, {R(RWS)}, s{sU} offen offset:{f*1024} sc1")
        A("s_waitcnt vmcnt(0)")
        for t in range(4):
            A(f"{MFMA} {v(O+16*t,16)}, {v(K0,4)}, {v(Q+8*t,4)}, 0\n{MFMA} {v(O+16*t,16)}, {v(K0+4,4)}, {v(Q+8*t+4,4)}, {v(O+16*t,16)}")
        for t in range(4):
            tilemax(O+16*t, T0, T1); A(f"v_max3_f32 v{M[t]}, v{M[t]}, v{T0}, v{T1}")
        A(f"s_add_u32 s{sU}, s{sU}, 4096\ns_cmp_lt_u32 s{sU}, {16*4096}\ns_cbranch_scc1 P2_MAXLOOP")
        A(f"s_barrier\nv_and_b32 v{T3}, 31, v1\nv_lshlrev_b32 v{T3}, 4, v{T3}")
        for t in range(4):
            A(f"v_mov_b32 v{T2}, v{M[t]}\nv_permlane32_swap_b32 v{M[t]}, v{T2}\nv_max_f32 v{M[t]}, v{M[t]}, v{T2}")
            A(f"s_add_u32 s{sT}, s{SW}, {t}\ns_and_b32 s{sT}, s{sT}, 3\ns_lshl_b32 s{sT}, s{sT}, 9\ns_add_u32 s{sT}, s{sT}, {RBUF}\ns_lshl_b32 s{sU}, s{SW}, 2\ns_add_u32 s{sU}, s{sU}, s{sT}")
            A(f"v_add_u32 v{K0+t}, s{sT}, v{T3}\nv_add_u32 v{T2}, s{sU}, v{T3}\nds_write_b32 v{T2}, v{M[t]}")
        A("s_waitcnt lgkmcnt(0)\ns_barrier")
        for t in range(4): A(f"ds_read_b128 {v(O+4*t,4)}, v{K0+t}")
        for n in range(4):
            for ln in kvload(n): A(ln)
        A("s_waitcnt vmcnt(0) lgkmcnt(0)\ns_barrier")
        for t in range(4):
            A(f"v_max3_f32 v{M[t]}, v{O+4*t}, v{O+4*t+1}, v{O+4*t+2}\nv_max_f32 v{M[t]}, v{M[t]}, v{O+4*t+3}")
            set_qpad(Q+8*t, M[t], T0, T1, T2)
        A(qk(0, 0)); A(qk(0, 1))
        A("s_branch P2_MAIN")
    return fallback

def p3():
    EP = env("EP", 0)
    D1, D2, TF = 96, 112, 80 if EP else 176
    ofr = (lambda ks: 16 + 4*(ks & 15)) if EP else (lambda ks: 16 + 4*ks if ks < 20 else 128 + 4*(ks - 20))
    T0, T1, T2, T3 = 8, 9, 4, 5
    if NKV > 4: ident3(); A("s_waitcnt vmcnt(2)")
    A(f"{MFMA} {v(D1,16)}, {v(XR,4)}, {v(IR3,4)}, 0\n{MFMA} {v(D2,16)}, {v(IR3,4)}, {v(XR,4)}, 0")
    A(f"{MFMA} {v(D1,16)}, {v(XR+4,4)}, {v(IR3+4,4)}, {v(D1,16)}\n{MFMA} {v(D2,16)}, {v(IR3+4,4)}, {v(XR+4,4)}, {v(D2,16)}")
    for sl in range(1, 4):
        A(f"s_xor_b32 s{sU}, s{SW}, {sl}\ns_mul_i32 s{sU}, s{sU}, 12288\ns_add_u32 s{sU}, s{sU}, {RBUF}\nv_add_u32 v{VRW[sl]}, s{sU}, v{VL}")
    A(f"s_barrier\ns_cmp_lt_u32 s{sC3}, 14\ns_cbranch_scc0 P3_END")
    vm.q = []; lg.q = []
    so = Stream("SO", 8, lambda g: [(ofr(4*g+k), VO3[k >> 1], (k & 1)*1024) for k in range(4)],
                lambda g: A(f"s_add_u32 s{sT}, s{sRT3}, {g << 18}\ns_and_b32 s{sT}, s{sT}, 0x1fffff"), T0, 1, VP3, T1, None, None if env("GT3", 0) else 0)
    NPRE = env("NPRE", 4)
    if env("LOC3", 1):
        A(f"s_lshr_b32 s{sT}, s{sR3}, 2\ns_lshl_b32 s{sT}, s{sT}, 8\ns_add_u32 s{sT}, s{sT}, {F4}\nv_min_u32 v6, 13, v1\nv_lshlrev_b32 v6, 4, v6\nbuffer_load_dwordx4 {v(192,4)}, v6, {R(RWS)}, s{sT} offen sc1")
    stamp("p3pre")
    for m in range(NPRE): so.issue(m)
    stamp("p3gate")
    LAG = env("LAG", 8)
    tf = lambda ks: TF + 4*(ks & 3) if ks < 32 - LAG else 192 + 4*(ks - 32 + LAG)
    def wread(ks):
        n, p = ks >> 1, ks & 1
        for half in range(2):
            A(f"ds_read_b64_tr_b16 {v(tf(ks)+2*half,2)}, v{VWO} offset:{(n>>2)*12288 + (n&3)*2048 + (16*p+8*half)*64}"); lg.issue(f"w{ks}")
    wread(0); wread(1)
    A("v_and_b32 v6, 31, v1\nv_lshlrev_b32 v6, 4, v6\nv_lshrrev_b32 v7, 5, v1\nv_mul_u32_u24 v7, 3584, v7\nv_add_u32 v6, v6, v7")
    so.check1(0); so.check2(0)
    if env("LOC3", 1):
        A(f"s_getreg_b32 s{sV}, hwreg(HW_REG_XCC_ID, 0, 4)\nv_xor_b32 v192, s{sV}, v192\nv_xor_b32 v193, s{sTAG}, v193\nv_xor_b32 v194, s{sV}, v194\nv_xor_b32 v195, s{sTAG+1}, v195")
        A(f"v_or3_b32 v192, v192, v193, v194\nv_or_b32 v192, v192, v195\nv_cmp_ne_u32 vcc, 0, v192\ns_or_b32 s{sE}, vcc_lo, vcc_hi")
    for ks in range(32):
        lg.wait(f"w{ks}")
        if ks in (0, 16): stamp(f"p3_{ks}")
        o, wv = v(ofr(ks), 4), v(tf(ks), 4)
        A(f"{MFMA} {v(D2,16)}, {wv}, {o}, {v(D2,16)}")
        if ks + 2 < 32 - LAG: wread(ks + 2)
        if 32 - 2*LAG - 2 <= ks < 32 - LAG - 2: wread(ks + LAG + 2)
        if ks < 32 - LAG: A(f"{MFMA} {v(D1,16)}, {o}, {wv}, {v(D1,16)}")
        if ks % 4 < 2:
            for k in range(2): so.issue_part(NPRE + ks//4, 2*(ks % 4) + k)
        if ks % 4 == 2: so.check1(ks//4 + 1)
        if ks % 4 == 3: so.check2(ks//4 + 1)
    stamp("p3mm")
    G = 16
    A(f"s_lshl_b32 s{sB}, s{sR3}, 13\ns_add_u32 s{sB}, s{sB}, {WS_ST}\ns_lshl_b32 s{sT}, s{sC3}, 9\ns_add_u32 s{sT}, s{sT}, s{sB}")
    A(f"v_mov_b32 v{G+1}, s{sTAG}\nv_mov_b32 v{G+3}, s{sTAG+1}")
    A(f"v_pk_add_f32 v[20:21], {v(D2,2)}, {v(D2+2,2)}\nv_pk_mul_f32 v[22:23], {v(D2,2)}, {v(D2,2)}\nv_pk_fma_f32 v[22:23], {v(D2+2,2)}, {v(D2+2,2)}, v[22:23]")
    for r in range(4, 16, 2): A(f"v_pk_add_f32 v[20:21], v[20:21], {v(D2+r,2)}\nv_pk_fma_f32 v[22:23], {v(D2+r,2)}, {v(D2+r,2)}, v[22:23]")
    A(f"v_add_f32 v{G}, v20, v21\nv_add_f32 v{G+2}, v22, v23")
    A(f"v_mov_b32 v20, v{G}\nv_mov_b32 v22, v{G+2}\nv_permlane32_swap_b32 v{G}, v20\nv_permlane32_swap_b32 v{G+2}, v22\nv_add_f32 v{G}, v{G}, v20\nv_add_f32 v{G+2}, v{G+2}, v22")
    set_exec(0xFFFFFFFF)
    if env("LOC3", 1):
        A(f"s_cmp_lg_u32 s{sE}, 0\ns_cbranch_scc1 P3_FAR\nbuffer_store_dwordx4 {v(G,4)}, v{VL}, {R(RWS)}, s{sT} offen\nP3_FARX:\ns_mov_b64 exec, -1")
        handlers.append(lambda: A(f"P3_FAR:\nbuffer_store_dwordx4 {v(G,4)}, v{VL}, {R(RWS)}, s{sT} offen sc1\ns_branch P3_FARX"))
    else: A(f"buffer_store_dwordx4 {v(G,4)}, v{VL}, {R(RWS)}, s{sT} offen sc1\ns_mov_b64 exec, -1")
    GR = 32
    def gl():
        for k in range(7): A(f"buffer_load_dwordx4 {v(GR+4*k,4)}, v6, {R(RWS)}, s{sB} offen offset:{k*512} sc1")
    for r in range(8): A(f"v_cvt_pk_bf16_f32 v{24+r}, v{D2+2*r}, v{D2+2*r+1}")
    A(f"s_mul_i32 s{sT}, s{sR3}, 14\ns_add_u32 s{sT}, s{sT}, s{sC3}\ns_lshl_b32 s{sT}, s{sT}, 11\ns_add_u32 s{sT}, s{sT}, {WS_HF}")
    if env("S3W", 0): A("s_waitcnt vmcnt(0)")
    stamp("s3pre")
    for ks in range(32 - LAG, 32): A(f"{MFMA} {v(D1,16)}, {v(ofr(ks),4)}, {v(tf(ks),4)}, {v(D1,16)}")
    gl()
    for p in range(2): A(f"buffer_store_dwordx4 {v(24+4*p,4)}, v{VL}, {R(RWS)}, s{sT} offen offset:{p*1024} sc1")
    A("s_waitcnt vmcnt(2)")
    tagcheck([GR+4*k for k in range(7)], T1, T2, T3)
    A("s_cbranch_vccnz P3_GH\nP3_GX:")
    def gh():
        A(f"P3_GH:\ns_mov_b32 s{sTO}, 0x8000\nP3_GL:"); gl()
        A(f"s_sub_u32 s{sTO}, s{sTO}, 1\ns_waitcnt vmcnt(0)\ns_cbranch_scc1 P3_GX")
        tagcheck([GR+4*k for k in range(7)], T1, T2, T3)
        A("s_cbranch_vccnz P3_GL\ns_branch P3_GX")
    handlers.append(gh)
    vm.q = []
    stamp("s3")
    for k in range(1, 7): A(f"v_add_f32 v{GR}, v{GR}, v{GR+4*k}\nv_add_f32 v{GR+2}, v{GR+2}, v{GR+4*k+2}")
    m, q = GR, GR+2
    A(f"v_mov_b32 v{T0}, v{m}\nv_mov_b32 v{T1}, v{q}\nv_permlane32_swap_b32 v{m}, v{T0}\nv_permlane32_swap_b32 v{q}, v{T1}\nv_add_f32 v{m}, v{m}, v{T0}\nv_add_f32 v{q}, v{q}, v{T1}")
    A(f"v_mul_f32 v{m}, {fl(1.0/D)}, v{m}\nv_mul_f32 v{q}, {fl(1.0/D)}, v{q}\nv_fma_f32 v{q}, -v{m}, v{m}, v{q}\nv_max_f32 v{q}, 0, v{q}")
    A(f"v_add_f32 v{T0}, {fl(EPS)}, v{q}\nv_mul_f32 v{T0}, {fl(EPS)}, v{T0}\nv_add_f32 v{q}, v{q}, v{T0}\nv_rsq_f32 v{q}, v{q}\ns_add_u32 s{sT}, s{sRBW}, 8192\nv_mul_f32 v{m}, v{m}, v{q}")
    A(f"v_cndmask_b32 v{T0}, v{q}, v{m}, s[{sHI}:{sHI+1}]\nv_lshl_add_u32 v{T1}, v1, 2, s{sT}\nds_write_b32 v{T1}, v{T0}")
    A(f"v_lshrrev_b32 v{T2}, 5, v1\nv_lshl_add_u32 v{T2}, v{T2}, 4, s{sT}")
    for g in range(4): A(f"ds_read_b128 {v(64+4*g,4)}, v{T2} offset:{g*32}\nds_read_b128 {v(80+4*g,4)}, v{T2} offset:{128+g*32}")
    A(f"s_lshl_b32 s{sT}, s{sC3}, 17\ns_lshl_b32 s{sU}, s{sR3}, 11\ns_add_u32 s{sT}, s{sT}, s{sU}\ns_add_u32 s{sT}, s{sT}, {WS_HH}")
    for p in range(2):
        A(f"s_waitcnt lgkmcnt({4 - 4*p})")
        for r in range(8*p, 8*p+8, 2): A(f"v_pk_fma_f32 {v(D1+r,2)}, {v(D1+r,2)}, {v(64+r,2)}, {v(80+r,2)} neg_lo:[0,0,1] neg_hi:[0,0,1]")
        for r in range(4*p, 4*p+4): A(f"v_cvt_pk_bf16_f32 v{16+r}, v{D1+2*r}, v{D1+2*r+1}")
        A(f"v_or_b32 v{19+4*p}, 0x10000, v{19+4*p}")
        if p == 0: A("s_waitcnt vmcnt(0)")
        A(f"buffer_store_dwordx4 {v(16+4*p,4)}, v{VL}, {R(RWS)}, s{sT} offen offset:{p*1024} sc1")
    stamp("hhst")
    if STAMP and env("ACK", 0): A("s_waitcnt vmcnt(0)"); stamp("hhack")
    stamp_flush()
    A("P3_END:")
    preread()
    A("s_waitcnt lgkmcnt(0)\ns_barrier")
    if env("X1B", 1): A("s_barrier")
    vm.q = []; lg.q = []

ACC, RING, TMP = 16, 48, 96
def wread_step(r, m, slot, tag=None):
    for ti in range(2):
        for half in range(2):
            A(f"ds_read_b64_tr_b16 {v(r.W + 8*m + ti*4 + half*2, 2)}, v{r.VRD[ti]} offset:{slot*2048 + half*1024}")
            if tag is not None: lg.issue(tag)
def unswap(r): A(f"s_and_b32 s{sT}, s{SW}, 1\ns_lshl_b32 s{sT}, s{sT}, 5\nv_xor_b32 v{r.VRD[0]}, s{sT}, v{r.VRD[0]}\nv_xor_b32 v{r.VRD[1]}, s{sT}, v{r.VRD[1]}")
def preread():
    for n in range(RA.c4): wread_step(RA, n, n)
    unswap(RA)
def w2soff(n): A(f"s_add_u32 s{sA}, s{sGC}, {n*1024}\ns_sub_u32 s{sB}, s{sA}, {28*1024}\ns_min_u32 s{sA}, s{sA}, s{sB}\ns_lshl_b32 s{sA}, s{sA}, 6")
def w2dma(r, m):
    w2soff(r.n5 + m)
    A(f"s_add_u32 m0, s{sW2W}, {r.slots[m % len(r.slots)]*2048}")
    for j in range(2): A(f"buffer_load_dwordx4 v{r.VT2[j]}, {R(RW2)}, s{sA} offen offset:{j*1024} lds"); vm.issue(("d", m))
def w2read(r, m):
    vm.wait(("d", m)); wread_step(r, m, r.slots[m % len(r.slots)], ("r", m))

def mlp(r, VDR=None, VDW=None):
    isA = r is RA
    N, L = r.n, len(r.slots)
    BR, B2R, VO, IR, HR = 6, 10, 12, 224, 228
    G4, G5 = r.c4 // 4, r.c5 // 4
    dreg = lambda t, k: RING + (t % 3)*16 + 4*k
    def pw(q, j):
        if isA: return f"ds_write_b128 v{VRW[0]}, {v(ACC+8*q+4*j,4)} offset:{(q-1)*2048 + j*1024}"
        return f"ds_write_b128 v{VDR if q < 3 else VDW}, {v(ACC+8*q+4*j,4)} offset:{(6144 + q*2048 if q < 3 else 13*2048) + j*1024}"
    def add(d, a_, b_, pk):
        if pk:
            for k in range(0, 4, 2): A(f"v_pk_add_f32 {v(d+k,2)}, {v(a_+k,2)}, {v(b_+k,2)}")
        else:
            for k in range(4): A(f"v_add_f32 v{d+k}, v{a_+k}, v{b_+k}")
    OWN = 232
    def gather(pk, wide):
        src = lambda j: [(VRW[q], (q-1)*2048 + j*1024) for q in range(1, 4)] + [(VRW[q], 6144 + q*2048 + j*1024) for q in range(3)] + [(VX3, j*1024)]
        base = [TMP, ACC if wide else TMP]
        def rd(j):
            for k, (va, off) in enumerate(src(j)): A(f"ds_read_b128 {v(base[j]+4*k,4)}, v{va} offset:{off}")
        def sm(j):
            b, o = base[j], OWN + 4*j
            add(b, b, b+4, pk); add(b+8, b+8, b+12, pk); add(b+16, b+16, b+20, pk); add(o, o, b+24, pk)
            add(b, b, b+8, pk); add(o, o, b+16, pk); add(o, o, b, pk)
        if wide: rd(0); rd(1); A("s_waitcnt lgkmcnt(7)"); sm(0); A("s_waitcnt lgkmcnt(0)"); sm(1)
        else:
            for j in range(2): rd(j); A("s_waitcnt lgkmcnt(0)"); sm(j)
    def p5setup():
        A(f"v_and_b32 v6, 31, v1\nv_lshrrev_b32 v7, 5, v1\nv_mul_u32_u24 v{VO}, 896, v6\nv_lshl_add_u32 v{VO}, v7, 4, v{VO}\ns_lshr_b32 s{sA}, s{SW}, 1\ns_lshl_b32 s{sB}, s{sST}, 1\ns_add_u32 s{sA}, s{sA}, s{sB}")
        A(f"s_mul_i32 s{sE}, s{sA}, {32*896}\ns_lshl_b32 s{sB}, s{sDT5}, 7\ns_add_u32 s{sE}, s{sE}, s{sB}\ns_and_b32 s{sB}, s{SW}, 1\ns_lshl_b32 s{sB}, s{sB}, 5\ns_add_u32 s{sE}, s{sE}, s{sB}")
        A(f"s_lshl_b32 s{sA}, s{sA}, 6\nv_lshlrev_b32 v8, 1, v6\nbuffer_load_ushort v{B2R}, v8, {R(RB2)}, s{sA} offen\nv_lshlrev_b32 v7, 2, v7\nv_sub_u32 v6, v6, v7")
        for k in range(4):
            d0 = 8*(k >> 1) + 2*(k & 1)
            A(f"v_cmp_eq_u32 s[{sA}:{sA+1}], {d0}, v6\nv_cmp_eq_u32 s[{sC}:{sC+1}], {d0+1}, v6\nv_cndmask_b32 v{IR+k}, 0, v{VONE}, s[{sA}:{sA+1}]\nv_cndmask_b32 v{IR+k}, v{IR+k}, v{VONE+1}, s[{sC}:{sC+1}]")
    mk5 = lambda nm: Stream(nm + N, 2*G5, lambda g: [(dreg(2*G4 + g, k), r.VG, k*1024) for k in range(4)],
                lambda g: A(f"s_add_u32 s{sT}, s{sGC}, {(r.n5 + (g % G5)*4)*1024}\ns_sub_u32 s{sU}, s{sT}, {28*1024}\ns_min_u32 s{sT}, s{sT}, s{sU}" + (f"\ns_add_u32 s{sT}, s{sT}, {112*1024}" if g >= G5 else "")),
                r.T0, 1, r.VP5, r.T1, lambda g: (1 << 2*G5) - 1, G5)
    NP5 = min(3, G5)
    DB0 = env("DB0", 4)
    R2E, NE3 = env("R2E", 0), max(0, r.c5 - 2*L)
    A(f"s_cmp_lg_u32 s{sACT4}, 0\ns_cbranch_scc1 P4_GO{N}\ns_cmp_ge_u32 s{sJ}, 28\ns_cbranch_scc1 MLP_END{N}")
    q0 = list(vm.q); lg.q = []
    A("s_waitcnt lgkmcnt(0)\ns_barrier")
    if not isA and env("DL", 0) == 2:
        for m in range(1, 7): w2dma(r, m)
    for m in range(L): w2read(r, m)
    lg.wait_all()
    for m in range(L, min(2*L, r.c5)): w2dma(r, m)
    if R2E and NE3:
        for m in range(L, L + NE3): w2read(r, m)
        lg.wait_all()
        for m in range(2*L, r.c5): w2dma(r, m)
    si = mk5("SI")
    if isA: p5setup()
    for g in range(G5): si.gate(g)
    si.gated = 0
    for g in range(NP5): si.issue(g)
    ER = {2: env("ER2", -1), 3: env("ER3", -1)}
    RL = env("RL", 1)
    if isA and ER[2] >= 0: A("s_barrier")
    A(f"s_branch P5_IN{N}\nP4_GO{N}:")
    vm.q = q0; lg.q = []
    sg = mk5("SG"); sg.gated = 0
    A(f"s_mov_b32 s{sV}, 0x10000")
    if isA:
        A(f"s_lshl_b32 s{sA}, s{sFO}, 5\nv_lshrrev_b32 v{r.T0}, 5, v1\nv_lshlrev_b32 v{r.T0}, 3, v{r.T0}")
        for g in range(2): A(f"buffer_load_dwordx2 {v(BR+2*g,2)}, v{r.T0}, {R(RB1)}, s{sA} offen offset:{g*16}")
        if env("ACKW", 0): A("s_waitcnt vmcnt(0)")
    sh = Stream("SH" + N, 2*G4, lambda g: [(dreg(g, k), r.VH, k*1024) for k in range(4)],
                lambda g: A(f"s_add_u32 s{sT}, s{sRO}, {(r.n4 + (g % G4)*4)*1024}\ns_and_b32 s{sT}, s{sT}, 0x7fff" + (f"\ns_bitset1_b32 s{sT}, 17" if g >= G4 else "")),
                r.T0, f"s{sV}", r.VP4, r.T1, lambda g: (1 << 2*G4) - 1, G4 if env("GT4", 2) else 0)
    if env("GT4", 2) == 2: A(f"s_cmp_lt_u32 s{sC3}, 14\ns_cselect_b32 s{sMISS}, 0, s{sMISS}")
    seq = [(sh, g) for g in range(2*G4)] + [(sg, g) for g in range(2*G5)]
    first = [0, G4, 2*G4, 2*G4 + G5, len(seq)]
    RA5 = env("RA5", 2)
    late = {2} if RA5 == 1 else ({2} | ({3} if isA else set()) if RA5 == 2 else {2, 3})
    issued = set()
    stamp("p4pre" + N)
    for g in range(3): sh.issue(g); issued.add(g)
    sh.check1(0); sh.check2(0)
    c1 = -2.0*math.sqrt(2.0/math.pi)*math.log2(math.e); c2 = c1*0.044715
    def compute(H):
        ph, hf = H >> 1, H & 1
        ns = (r.c4, r.c5)[ph]
        nm = f"p{4+ph}"
        if H == 2: A(f"P5_IN{N}:")
        if H in late: seq[first[H]][0].check1(seq[first[H]][1]); seq[first[H]][0].check2(seq[first[H]][1])
        if ph and isA:
            A(f"buffer_load_dwordx4 {v(HR,4)}, v{VL}, {R(RWS)}, s{sHFO} offen offset:{hf*2048} sc1"); vm.issue("h")
        if H == 2 and isA:
            for m in range(L, r.c5): wread_step(r, m, r.slots[m % L], ("r", m))
        stamp(f"{nm}first{hf}" + N)
        for t in range(first[H], first[H+1]):
            n0 = 4*(t - first[H])
            stamp(f"t{N}{t}")
            tail = not isA and t == first[H+1] - 1
            head = not isA and t == first[H] and H > 0 and H not in late
            order = [(k, ti) for ti in (1, 0) for k in range(4)] if (tail or head) else [(k, ti) for k in range(4) for ti in (0, 1)]
            nxt = t + 2
            can = nxt < len(seq) and nxt not in issued and not (nxt >= first[H+1] and H + 1 in late)
            for sl, (k, ti) in enumerate(order):
                n = n0 + k
                if not isA and H > 0 and (t, sl) == ((first[2] - 2, 0) if H == 1 else ((first[H] + ER[H], 0) if ER[H] >= 0 else (first[H+1] - 1, 4))): A("s_barrier")
                if H == 2: lg.wait(("r", n))
                if head and sl == 4: A("s_waitcnt lgkmcnt(0)\ns_barrier"); lg.q = []
                acc = v(ACC + 16*ti, 16); w_, d_ = v(r.W + 8*n + 4*ti, 4), v(dreg(t, k), 4)
                A(f"{MFMA} {acc}, {d_ if ph else w_}, {w_ if ph else d_}, {'0' if n == 0 else acc}")
                if head and sl < 4: A(pw(sl >> 1, sl & 1))
                if tail and sl >= 4: A(pw(2 + ((sl - 4) >> 1), sl & 1))
                if can and sl < 4: seq[nxt][0].issue_part(seq[nxt][1], sl)
                if t + 1 < len(seq) and not (t + 1 == first[H+1] and H + 1 in late):
                    if sl == 5: seq[t+1][0].check1(seq[t+1][1])
                    if sl == 6: seq[t+1][0].check2(seq[t+1][1])
                done = (ti == 0) if (tail or head) else (ti == 1)
                if H == 1 and done:
                    if n < L: w2read(r, n)
                    if not isA and DB0 <= n < DB0 + L: lg.wait(("r", n - DB0)); w2dma(r, n - DB0 + L)
                    if not isA and R2E:
                        if R2E <= n < R2E + NE3: w2read(r, n - R2E + L)
                        if R2E + 1 <= n < R2E + 1 + NE3: lg.wait(("r", n - R2E - 1 + L)); w2dma(r, n - R2E - 1 + 2*L)
                if H == 0 and not isA and done and env("DL", 0) == 2 and n % 3 == 2 and n < 18: w2dma(r, 1 + n // 3)
                if H == 2 and not isA and done:
                    if L + (NE3 if R2E else 0) <= n + 4 < 2*L: w2read(r, n + 4)
                    if not R2E and 2*L <= n + 10 < r.c5: lg.wait(("r", n + 3)); w2dma(r, n + 10)
                    if 2*L <= n + 4 < r.c5: w2read(r, n + 4)
            if can: issued.add(nxt)
        if ph and isA:
            vm.wait("h")
            A(f"{MFMA} {v(ACC,16)}, {v(IR,4)}, {v(HR,4)}, {v(ACC,16)}")
        stamp(f"{nm}mm{hf}" + N)
    def late_issue(H):
        for t in range(first[H], min(first[H] + 3, first[H+1])): seq[t][0].issue(seq[t][1]); issued.add(t)
    def partials(H):
        if H == 1 or (H > 1 and ER[H] < 0): A("s_barrier")
        for q in (2, 3, 1):
            for j in range(2): A(pw(q, j))
        if H < 2:
            for j in range(4): A(f"v_lshlrev_b32 v{TMP}, 16, v{BR+j}\nv_and_b32 v{TMP+1}, 0xffff0000, v{BR+j}\nv_add_f32 v{OWN+2*j}, v{ACC+2*j}, v{TMP}\nv_add_f32 v{OWN+2*j+1}, v{ACC+2*j+1}, v{TMP+1}")
        else:
            if H == 2: A(f"v_lshlrev_b32 v{B2R}, 16, v{B2R}")
            for k in range(8): A(f"v_add_f32 v{OWN+k}, v{ACC+k}, v{B2R}")
    def epilogue(H):
        ph, hf = H >> 1, H & 1
        A("s_waitcnt lgkmcnt(0)\ns_barrier"); lg.q = []
        stamp(f"red{4+ph}{hf}")
        LI = env("LI", 1) if H == 1 else 0
        if (H == 1 or (H == 2 and not RA5)) and LI == 0: late_issue(H + 1)
        if env("PRIO", 1): A("s_setprio 2")
        gather(H == 3, H & 1 or (H == 2 and not RA5))
        if ph == 0:
            A(f"s_mov_b32 s{sA}, {fl(c2)}\nv_mov_b32 v{TMP}, {fl(c1)}")
            E = TMP + 8
            for k in range(8): A(f"v_mul_f32 v{E+k}, v{OWN+k}, v{OWN+k}")
            for k in range(8): A(f"v_fma_f32 v{E+k}, v{E+k}, s{sA}, v{TMP}")
            for k in range(8): A(f"v_mul_f32 v{E+k}, v{E+k}, v{OWN+k}")
            for k in range(8): A(f"v_exp_f32 v{E+k}, v{E+k}")
            for k in range(8): A(f"v_add_f32 v{E+k}, 1.0, v{E+k}")
            for k in range(8): A(f"v_rcp_f32 v{E+k}, v{E+k}")
            for k in range(8): A(f"v_mul_f32 v{OWN+k}, v{OWN+k}, v{E+k}")
        for k in range(4): A(f"v_cvt_pk_bf16_f32 v{TMP+4+k}, v{OWN+2*k}, v{OWN+2*k+1}")
        if ph == 0:
            A(f"v_or_b32 v{TMP+7}, 1, v{TMP+7}\nbuffer_store_dwordx4 {v(TMP+4,4)}, v{VL}, {R(RWS)}, s{sGST} offen sc1\ns_add_u32 s{sGST}, s{sGST}, {112*1024}")
        else:
            A(f"v_permlane32_swap_b32 v{TMP+4}, v{TMP+6}\nv_permlane32_swap_b32 v{TMP+5}, v{TMP+7}\nbuffer_store_dwordx4 {v(TMP+4,4)}, v{VO}, {R(ROUT)}, s{sE} offen offset:{hf*64}" + [os.environ.get("OF0", " sc1"), os.environ.get("OF1", "")][hf])
        stamp(("gst", "outst")[ph] + str(hf))
        if (H == 1 or (H == 2 and not RA5)) and LI == 1: late_issue(H + 1)
        if H in (1, 2) and ER[H+1] >= 0: A("s_barrier")
        stamp_flush()
    if isA:
        if env("PRIO", 1): A("s_setprio 2")
        compute(0); partials(0); stamp_flush()
        if env("PRIO", 1): A("s_setprio 0")
        compute(1)
        if env("DA", 1) == 1:
            lg.wait_all()
            for m in range(L, r.c5): w2dma(r, m)
        epilogue(0); partials(1); p5setup()
        if env("DA", 1) == 0:
            for m in range(L, r.c5): w2dma(r, m)
        epilogue(1)
        compute(2)
        if RA5:
            if RA5 == 2: late_issue(3)
            partials(2); stamp_flush()
            if env("PRIO", 1): A("s_setprio 0")
            compute(3); epilogue(2); partials(3); epilogue(3)
        else:
            partials(2); epilogue(2); compute(3); partials(3); epilogue(3)
    else:
        if env("PRIO", 1): A("s_setprio 1")
        for H in range(4):
            compute(H)
            if H == 3 or H + 1 in late:
                for q in range(2):
                    for j in range(2): A(pw(q, j))
                if H == 2: late_issue(H + 1)
                A("s_waitcnt lgkmcnt(0)\ns_barrier"); lg.q = []
                if H == 1:
                    if env("G2", 0):
                        sg.gated = G5; A(f"s_mov_b32 s{sMISS}, {(1 << 2*G5) - 1}")
                    late_issue(H + 1); sg.gated = 0
            stamp_flush()
    A(f"MLP_END{N}:")

def finish():
    A(f"s_or_b32 s{sT}, s2, s{SW}\ns_cbranch_scc1 K_FIN\nv_mov_b32 v4, 0\nv_mov_b32 v5, 0\ns_mov_b64 exec, 1\nbuffer_store_dwordx2 v[4:5], v4, {R(RDBG)}, 0 offen sc1\ns_mov_b64 exec, -1")
    A("K_FIN:")
    if os.environ.get("DIAGAT"):
        A(f"DSP:\ns_memrealtime s[{sA}:{sA+1}]\ns_waitcnt lgkmcnt(0)\ns_sub_u32 s{sA}, s{sA}, s72\ns_cmp_lt_u32 s{sA}, 4000\ns_cbranch_scc1 DSP")
    if STAMP:
        A("s_waitcnt vmcnt(0)"); stamp("end"); A(f"s_memrealtime s[{sA}:{sA+1}]"); stamp_flush()
        A(f"v_writelane_b32 v{VST}, s72, 62\nv_writelane_b32 v{VST}, s{sA}, 63")
        A(f"s_lshl_b32 s{sT}, s2, 3\ns_add_u32 s{sT}, s{sT}, s{sW8}\ns_lshl_b32 s{sT}, s{sT}, 8\ns_add_u32 s{sT}, s{sT}, {WS_STAMP}\nv_lshlrev_b32 v4, 2, v1\nbuffer_store_dword v{VST}, v4, {R(RWS)}, s{sT} offen")
    A("K_END:\ns_endpgm")

def bprog():
    NT = env("NT", 0); nt = " nt" if NT else ""
    nt1 = " nt" if env("NT1", 0) else ""
    VXD = [16, 17, 18, 19]; VXE = [20, 21]; VWD = list(range(22, 29))
    sWO, sXO, sM, sWM = sA, sB, sC, sD_
    sXP, sWP = [sW1, sW1S, sW1E], [sW2, sW2S, sW2E]
    A("B_P1:"); vm.q = []; lg.q = []
    p1_common()
    A(f"s_mul_i32 s{sXO}, s{sE}, {32*896}\ns_lshl_b32 s{sWM}, s{SW}, 10")
    A("v_lshrrev_b32 v4, 4, v1\nv_and_b32 v5, 15, v1\nv_xor_b32 v5, v5, v4\nv_mul_u32_u24 v6, 896, v4")
    for j in range(4): A(f"v_xor_b32 v7, {4*j}, v5\nv_lshl_add_u32 v7, v7, 4, v6\nv_add_u32 v{VXD[j]}, {j*4*896 - j*1024}, v7")
    A(f"s_lshr_b32 s{sT}, s{sJ}, 2\ns_and_b32 s{sU}, s{sJ}, 3\ns_add_u32 s{sT}, s{sT}, s{sU}\ns_mul_i32 s{sU}, s{sT}, 11\ns_lshr_b32 s{sU}, s{sU}, 5\ns_mul_i32 s{sU}, s{sU}, 3\ns_sub_u32 s{sT}, s{sT}, s{sU}")
    if not env("P1ROT", 1): A(f"s_mov_b32 s{sT}, 0")
    for p in range(3):
        A(f"s_lshl_b32 s{sU}, s{sT}, 8\ns_add_u32 s{sXP[p]}, s{sXO}, s{sU}\ns_mul_i32 s{sU}, s{sT}, {128*2688}\ns_add_u32 s{sWP[p]}, s{sWO}, s{sU}")
        if p < 2: A(f"s_add_u32 s{sT}, s{sT}, 1\ns_cmp_eq_u32 s{sT}, 3\ns_cselect_b32 s{sT}, 0, s{sT}")
    def xpiece(p):
        if p < 3:
            for j in range(8):
                if j % 4 == 0: A(f"s_add_u32 m0, s{sM}, {XBUF[p] + (j>>2)*4096}\ns_add_u32 s{sV}, s{sXP[p]}, {(j>>2)*16*896}")
                A(f"buffer_load_dwordx4 v{VXD[j&3]}, {R(RX)}, s{sV} offen offset:{(j&3)*1024}{nt1} lds"); vm.issue(f"x{p}")
        else:
            for j in range(4):
                A(f"s_add_u32 m0, s{sM}, {XBUF[p] + j*1024}\ns_add_u32 s{sV}, s{sXO}, {(j>>1)*16*896 + 768}\nbuffer_load_dwordx4 v{VXE[j&1]}, {R(RX)}, s{sV} offen{nt1} lds"); vm.issue(f"x{p}")
    def wdma(j):
        g = j // 7
        if g == 3 and j == 21: A(f"s_add_u32 s{sT}, s{sWO}, {3*128*2688}")
        A(f"s_add_u32 m0, s{sWM}, {j*4096}\nbuffer_load_dwordx4 v{VWD[j%7]}, {R(RWQ)}, s{sWP[g] if g < 3 else sT} offen{nt1} lds"); vm.issue(f"w{g}")
    A("s_waitcnt lgkmcnt(0)")
    xpiece(0)
    for j in range(7):
        A(f"v_add_u32 v4, {256*j}, v0\nv_mul_u32_u24 v5, 4682, v4\nv_lshrrev_b32 v5, 16, v5\nv_mul_u32_u24 v6, 14, v5\nv_sub_u32 v4, v4, v6")
        A(f"v_and_b32 v6, 0xf8, v5\nv_and_b32 v7, 1, v5\nv_lshl_add_u32 v6, v7, 2, v6\nv_bfe_u32 v7, v5, 1, 2\nv_add_u32 v6, v6, v7\nv_mul_u32_u24 v6, 2688, v6\nv_lshl_add_u32 v{VWD[j]}, v4, 4, v6")
        wdma(j)
    xpiece(1)
    A("v_lshrrev_b32 v4, 3, v1\nv_mul_u32_u24 v6, 896, v4\nv_lshrrev_b32 v4, 4, v1\nv_and_b32 v5, 7, v1\nv_xor_b32 v5, v5, v4")
    for j in range(2): A(f"v_xor_b32 v7, {4*j}, v5\nv_lshl_add_u32 v7, v7, 4, v6\nv_add_u32 v{VXE[j]}, {j*8*896}, v7")
    prologue2()
    A("v_and_b32 v10, 31, v1\nv_lshlrev_b32 v10, 4, v10\nv_min_u32 v5, 55, v1\nv_lshlrev_b32 v5, 4, v5\nv_add_u32 v6, 10752, v5\nv_add_u32 v7, 21504, v5\nv_add_u32 v8, 32256, v5\nv_mov_b32 v9, 0")
    vm.wait("w0"); A("s_barrier\ns_barrier")
    for j in range(7, 14): wdma(j)
    xpiece(2)
    vm.wait("w1"); A("s_barrier\ns_barrier")
    for j in range(14, 21): wdma(j)
    xpiece(3)
    for j in range(21, 25): wdma(j)
    vm.wait("w2"); A("s_barrier\ns_setprio 2")
    A(f"s_waitcnt lgkmcnt(0)\ns_lshl_b32 s{sU}, s{sE}, 9\ns_add_u32 s{sU}, s{sU}, {WS_RST}\ns_lshl_b32 s{sV}, s{sWO}, 2\ns_add_u32 s{sV}, s{sV}, {WS_CSG}")
    def gload():
        A(f"buffer_load_dwordx4 v[32:35], v10, {R(RWS)}, s{sU} offen sc1")
        for kq in range(4): A(f"buffer_load_dwordx4 {v(36+4*kq,4)}, v{5+kq}, {R(RWS)}, s{sV} offen sc1")
    A(f"buffer_load_dwordx2 v[30:31], v9, {R(RDBG)}, 0 offen sc1"); gload()
    vm.wait_all()
    get_tag(30, "B_T")
    A(f"s_mov_b32 s{sTO}, 0x8000\ns_branch B_GC\nB_GL:"); gload()
    A(f"s_sub_u32 s{sTO}, s{sTO}, 1\ns_waitcnt vmcnt(0)\ns_cbranch_scc1 B_GX\nB_GC:")
    tagcheck([32, 36, 40, 44, 48], 11, 12, 13)
    A("s_cbranch_vccnz B_GL\nB_GX:")
    QS = DH ** -0.5 * math.log2(math.e)
    A("v_add_f32 v36, v36, v40\nv_add_f32 v44, v44, v48\nv_add_f32 v38, v38, v42\nv_add_f32 v46, v46, v50\nv_add_f32 v36, v36, v44\nv_add_f32 v37, v38, v46")
    A(f"s_cmp_eq_u32 s{sSEC}, 0\ns_cselect_b32 s{sV}, {fl(QS)}, 1.0\nv_cndmask_b32 v6, v34, v32, s[{sHI}:{sHI+1}]\nv_mul_f32 v6, s{sV}, v6")
    A(f"v_lshl_add_u32 v4, v1, 3, s{sWM}\nds_write_b64 v4, v[36:37]\nv_lshl_add_u32 v4, v1, 2, s{sWM}\nds_write_b32 v4, v6 offset:512")
    A("s_setprio 0\ns_waitcnt lgkmcnt(0)\ns_barrier\ns_branch B_P2")

def bprog2():
    NT = env("NT", 0); nt = " nt" if NT else ""
    A("B_P2:"); vm.q = []
    if STAMP: A("v_mov_b32 v15, -1\nB_P2S:"); st["v"] = 15
    roles(touch=False)
    r = RB
    WOR, W2T = 16, 48
    VT1, VTO, VDW, VDR = [4, 5], [8, 9], 10, 11
    w2_addr(r, 12, 13)
    A(f"v_lshrrev_b32 v12, 3, v1\nv_mul_u32_u24 v12, 3584, v12\nv_add_u32 v{VT1[0]}, v12, v13\nv_add_u32 v{VT1[1]}, {8*3584 - 1024}, v{VT1[0]}")
    A(f"v_lshrrev_b32 v12, 2, v1\nv_mul_u32_u24 v12, 896, v12\nv_and_b32 v13, 3, v1\nv_lshl_add_u32 v{VTO[0]}, v13, 4, v12\nv_add_u32 v{VTO[1]}, {16*896}, v{VTO[0]}")
    A(f"v_add_u32 v{VDW}, s{sW2W}, v{VL}\nv_add_u32 v{VDR}, s{sRBW}, v{VL}")
    tr_lane_addr(12, 13, 128, 4)
    A(f"s_and_b32 s{sT}, s{SW}, 1\ns_lshl_b32 s{sT}, s{sT}, 5\nv_xor_b32 v12, s{sT}, v12\nv_add_u32 v12, s{sW2W}, v12\nv_bfe_u32 v13, v1, 3, 1\ns_lshr_b32 s{sT}, s{SW}, 1\nv_xor_b32 v13, s{sT}, v13")
    A(f"v_lshl_add_u32 v{r.VRD[0]}, v13, 6, v12\nv_xor_b32 v13, 1, v13\nv_lshl_add_u32 v{r.VRD[1]}, v13, 6, v12")
    A(f"s_mul_i32 s{sW1S}, s{SW}, {512*3584}\ns_lshl_b32 s{sT}, s{sFT}, 7\ns_add_u32 s{sW1S}, s{sW1S}, s{sT}\ns_add_u32 s{sW1E}, s{sW1S}, {512*3584}")
    A(f"s_lshr_b32 s{sT}, s{sRO}, 10\ns_add_u32 s{sT}, s{sT}, {r.n4}\ns_and_b32 s{sT}, s{sT}, 31\ns_mul_i32 s{sT}, s{sT}, {16*3584}\ns_add_u32 s{sW1}, s{sW1S}, s{sT}")
    TH = [env("BTH", 2)]
    A(f"s_and_b32 s{sT}, s{sC3}, 7\ns_lshl_b32 s{sT}, s{sT}, 1\ns_lshl_b32 s{sD_}, s{SW}, 2\ns_add_u32 s{sD_}, s{sD_}, s{sT}\ns_min_u32 s{sC}, s{sC3}, 13\ns_lshl_b32 s{sC}, s{sC}, 6")
    A(f"s_cmp_ge_u32 s{sJ}, 24\ns_cbranch_scc1 B_NOKV\ns_barrier\nB_NOKV:")
    A(f"s_add_u32 s{sT}, s{SW}, 1\ns_and_b32 s{sT}, s{sT}, 3\ns_mul_i32 s{sT}, s{sT}, 12288\ns_add_u32 s{sT}, s{sT}, {RBUF + 3072}\nv_add_u32 v14, s{sT}, v{VL}")
    A(f"v_mov_b32 v12, 0\nds_write_b32 v14, v12\ns_waitcnt lgkmcnt(0)")
    vm.q = []
    NPQ = env("NPQ", 0)
    if NPQ: TH[0] = env("BTH0", 4)
    sPOS = sE
    todo = []
    def throttle():
        A(f"s_waitcnt vmcnt({TH[0]})"); vm.q = vm.q[-TH[0]:]
        while todo and ("s", todo[0]) not in vm.q:
            m = todo.pop(0); wread_step(r, m, m % 14)
    def rawitem(m):
        w2soff(m)
        for j in range(2): A(f"buffer_load_dwordx4 {v(W2T+8*m+4*j,4)}, v{r.VT2[j]}, {R(RW2)}, s{sA} offen offset:{j*1024}{' nt' if env('NTR', 0) else ''}")
    for k in range(32):
        if k == NPQ:
            stamp("b_pre")
            A("s_barrier")
            stamp("b_go"); TH[0] = env("BTH0", env("BTH", 3))
            A(f"buffer_load_dwordx2 v[{W2T}:{W2T+1}], v12, {R(RDBG)}, 0 offen sc1"); vm.issue("tag")
        if env("IDL", 0) and k in (0, 13, 15, 17, 19, 20): A(f"s_cmp_eq_u32 s{sACT4}, 0\ns_cbranch_scc1 B_I{k}")
        slot = k % 14 if k < 20 else (k - 20 + 6) % 12
        if k == 20: A(f"s_add_u32 s{sW1}, s{sW1}, {6*16*3584}\ns_cmp_ge_u32 s{sW1}, s{sW1E}\ns_cselect_b32 s{sT}, {512*3584}, 0\ns_sub_u32 s{sW1}, s{sW1}, s{sT}")
        if k == 26: A(f"s_lshr_b32 s{sT}, s{sRO}, 10\ns_mul_i32 s{sT}, s{sT}, {16*3584}\ns_add_u32 s{sW1}, s{sW1S}, s{sT}")
        if k >= 14:
            assert not [m for m in todo if m % 14 == slot]
            A("s_waitcnt lgkmcnt(0)")
        A(f"s_add_u32 m0, s{sW2W}, {slot*2048}")
        for j in range(2): A(f"buffer_load_dwordx4 v{VT1[j]}, {R(RW1)}, s{sW1} offen offset:{j*1024}{' nt' if k < env('NTK', 0) else ''} lds"); vm.issue(("s", k))
        if k < 20: todo.append(k)
        A(f"s_add_u32 s{sW1}, s{sW1}, {16*3584}\ns_cmp_eq_u32 s{sW1}, s{sW1E}\ns_cselect_b32 s{sW1}, s{sW1S}, s{sW1}")
        throttle()
        if env("IDL", 0) and k in (12, 14, 16, 18, 19, 31):
            k0 = {12: 0, 14: 13, 16: 15, 18: 17, 19: 19, 31: 20}[k]
            def idle(k0=k0):
                A(f"B_I{k0}:")
                if k0 in (0, 20):
                    A(f"s_setprio 3\nv_lshrrev_b32 v96, 3, v1\nv_lshlrev_b32 v96, 12, v96\nv_and_b32 v97, 7, v1\nv_lshl_add_u32 v96, v97, 7, v96\ns_setprio 0")
                    A(f"s_sub_u32 s{sA}, s{sJ}, 25\ns_lshl_b32 s{sA}, s{sA}, 2\ns_add_u32 s{sA}, s{sA}, s{SW}\ns_lshl_b32 s{sA}, s{sA}, 18\ns_bfe_u32 s{sB}, s2, 0x20001\ns_lshl_b32 s{sB}, s{sB}, 10\ns_add_u32 s{sA}, s{sA}, s{sB}")
                    A(f"s_and_b32 s{sB}, s2, 1\ns_lshl_b32 s{sB}, s{sB}, 17\ns_xor_b32 s{sA}, s{sA}, s{sB}")
                    for i in (range(0, env("IDN", 4)) if k0 == 0 else range(env("IDN", 4), env("IDM", 4))):
                        A(f"s_xor_b32 s{sB}, s{sA}, {i*8*4096}\nbuffer_load_dword v97, v96, {R(RW2)}, s{sB} offen\ns_waitcnt vmcnt({env('IDT', 0)})")
                A(f"s_branch B_J{k0}")
            handlers.append(idle)
            A(f"B_J{k0}:")
        if k in (12, 14, 16, 18):
            q = (k - 12) // 2
            A(f"s_add_u32 s{sT}, s{sD_}, {q}\ns_and_b32 s{sT}, s{sT}, 15\ns_mul_i32 s{sT}, s{sT}, {28*896}\ns_add_u32 s{sT}, s{sT}, s{sC}")
            for j in range(2): A(f"buffer_load_dwordx4 {v(WOR+8*q+4*j,4)}, v{VTO[j]}, {R(RWO)}, s{sT} offen"); vm.issue("wo")
            throttle()
        if k == 19:
            A(f"s_setprio 3\nv_readfirstlane_b32 s{sTAG}, v{W2T}\nv_readfirstlane_b32 s{sTAG+1}, v{W2T+1}\nv_lshlrev_b32 v12, 3, v1\ns_mul_i32 s{sV}, s{SW}, 384\ns_add_u32 s{sV}, s{sV}, {F2}")
            poll(12, sV, 48, 8); A("v_lshlrev_b32 v12, 7, v1\ns_setprio 0")
        if env("W2C", 0) and k in (14, 20):
            A(f"s_lshl_b32 s{sA}, s2, 2\ns_add_u32 s{sA}, s{sA}, s{SW}\ns_mul_i32 s{sA}, s{sA}, {56*128}")
            set_exec(((1 << 28) - 1) << (28*(k == 20))); A(f"buffer_load_dword v8, v12, {R(RW2)}, s{sA} offen\ns_mov_b64 exec, -1"); vm.issue("t")
        if k == env("CT2", 22):
            A(f"s_setprio 3\ns_getpc_b64 s[{sA}:{sA+1}]\nCODE_R2:\ns_sub_u32 s{sA}, s{sA}, CODE_R2-P2_TAIL\ns_subb_u32 s{sA+1}, s{sA+1}, 0\ns_lshl_b32 s{sT}, s{sJ}, 2\ns_add_u32 s{sT}, s{sT}, s{SW}\ns_lshl_b32 s{sT}, s{sT}, 9")
            A(f"v_lshl_add_u32 v13, v1, 7, s{sT}\nv_min_u32 v13, CODE_END-P2_TAIL-4, v13\nv_mov_b32 v9, s{sA+1}\nv_add_co_u32 v8, vcc, s{sA}, v13\nv_addc_co_u32 v9, vcc, 0, v9, vcc\ns_setprio 0")
            A("s_mov_b64 exec, 15\nglobal_load_dword v8, v[8:9], off\ns_mov_b64 exec, -1"); vm.issue("t")
        if k == env("BSW0", 7): TH[0] = env("BTH", 3)
        if k == env("BSW", 24): TH[0] = env("BTH2", 10)
        if k in (13, 31): stamp(f"b_{k}")
    assert not todo
    w2dma(r, 0)
    for m in range(6):
        A(f"ds_read_b32 v13, v14\ns_mov_b32 s{sPOS}, {m}\ns_waitcnt vmcnt({TH[0]}) lgkmcnt(0)\ns_setprio 3\nv_cmp_ne_u32 vcc, 0, v13\ns_setprio 0\ns_cbranch_vccnz B_CUT")
        rawitem(m)
    A(f"s_mov_b32 s{sPOS}, 6")
    if env("W2T", 0):
        A(f"s_setprio 3\ns_lshr_b32 s{sT}, s{sGC}, 6\ns_add_u32 s{sT}, s{sT}, 96\nv_add_u32 v12, s{sT}, v1\nv_subrev_u32 v13, 448, v12\nv_min_u32 v12, v12, v13\nv_lshlrev_b32 v12, 12, v12\ns_setprio 0")
        A(f"s_mul_i32 s{sT}, s{SW}, {448*4096}\ns_lshl_b32 s{sU}, s{sST}, 7\ns_add_u32 s{sT}, s{sT}, s{sU}\nbuffer_load_dword v14, v12, {R(RW2)}, s{sT} offen")
    A("B_CUT:")
    stamp("b_done"); stamp_flush()
    if STAMP: A(f"v_writelane_b32 v15, s{sPOS}, 60")
    A(f"s_setprio 3\nv_min_u32 v12, 5, v1\nv_lshlrev_b32 v12, 12, v12\nv_add_u32 v12, {RBUF + 3*1024 + 32*16 + 4}, v12\ns_setprio 0")
    A(f"B_RED:\ns_barrier\nds_read_b32 v13, v12\ns_waitcnt lgkmcnt(0)\nv_cmp_ne_u32 vcc, 0, v13")
    A(f"s_cbranch_vccz B_OK\ns_cmp_lg_u32 s{sRETRY}, 0\ns_cbranch_scc1 B_OK\ns_mov_b32 s{sRETRY}, -1\ns_barrier\ns_barrier\ns_barrier\ns_branch B_RED\nB_OK:")
    A("s_waitcnt vmcnt(0)\ns_barrier")
    for k in range(8): A(f"ds_write_b128 v{VDR}, {v(WOR+4*k,4)} offset:{k*1024}")
    for m in range(6):
        A(f"s_cmp_gt_u32 s{sPOS}, {m}\ns_cbranch_scc1 B_SK{m}"); rawitem(m); A(f"B_SK{m}:")
    A("s_waitcnt lgkmcnt(0)\ns_barrier")
    unswap(r); mlp_addr(r, 12, 13, False)
    A("s_waitcnt vmcnt(0)")
    if not env("EP", 0): A("s_barrier")
    vm.q = []
    DL = env("DL", 0)
    for m in range(6):
        for j in range(2): A(f"ds_write_b128 v{VDW}, {v(W2T+8*m+4*j,4)} offset:{m*2048 + j*1024}")
        if DL == 0: w2dma(r, m + 1)
    A("s_waitcnt lgkmcnt(0)")
    if env("X1B", 1): A("s_barrier")
    if DL == 1:
        for m in range(1, 7): w2dma(r, m)
    mlp(r, VDR, VDW)
    if STAMP: A(f"v_mov_b32 v{VST}, v15"); del st["v"]
    A("s_branch K_FIN")

def main(out):
    prologue()
    pend0 = list(st["pend"])
    bprog()
    st["pend"] = list(pend0); p1_helper()
    st["pend"] = list(pend0); p1(); fb = p2(); p3(); vm.q = []; mlp(RA); finish()
    st["pend"] = list(pend0); bprog2(); fb()
    for h in handlers: h()
    A("CODE_END:")
    head = open("head.txt").read()
    nv = 256
    txt = head + f"; @launch grid=(256,1,1) block=(512,1,1) lds={LDS_TOTAL}\n" + '.amdgcn_target "amdgcn-amd-amdhsa--gfx950"\n.text\n' + kernel_header(NAME) + A.text() + '.section .rodata,"a"\n' + kernel_desc(NAME, nv, 102, 256)
    open(out, "w").write(txt)
    if STAMP: open(out + ".names", "w").write(" ".join(st["names"].keys()))

if __name__ == "__main__":
    main(sys.argv[1])
```

```python
import sys, struct, math, os
from asmlib import *

S, D, H, DH, F = 2048, 448, 16, 28, 1792
MB = 1 << 20
WS_Q, WS_KV, WS_O, WS_HF, WS_HH, WS_G, WS_ST, WS_FL, WS_STAMP = 0, 2*MB, 6*MB, 8*MB, 10*MB, 12*MB, 14*MB, 14*MB + 512*1024, 15*MB
F1, F2, F4, F5 = WS_FL, WS_FL + 131072, WS_FL + 2*131072, WS_FL + 3*131072
WS_RST, WS_CSG = 13*MB + 768*1024, 13*MB + 832*1024
WS_SIZE = 16*MB
WS_O = WS_HH = WS_Q
WS_G = WS_KV
EPS = 1e-5
STAMP = os.environ.get("STAMP", "0") == "1"
def env(n, d): return int(os.environ.get(n, str(d)))
def f2u(x): return struct.unpack("<I", struct.pack("<f", x))[0]
def hx(x): return f"0x{x & 0xffffffff:08x}"
def fl(x): return hx(f2u(x))
MFMA = "v_mfma_f32_32x32x16_bf16"
NAME = "sequential_preLN__mha_block__mixer_token_mlp__prompt_kernel"

class Cnt:
    def __init__(self, A, name, mx):
        self.A, self.name, self.mx, self.q = A, name, mx, []
    def issue(self, tag): self.q.append(tag)
    def wait(self, tag):
        idx = [i for i, t in enumerate(self.q) if t == tag]
        if not idx: return
        n = len(self.q) - 1 - idx[-1]
        self.A(f"s_waitcnt {self.name}({min(n, self.mx)})")
        self.q = self.q[idx[-1] + 1:]
    def wait_all(self):
        self.A(f"s_waitcnt {self.name}(0)"); self.q = []

RX, RWQ, RWO, RW1, RB1, RW2, RB2, ROUT, RDBG, RWS = 8, 12, 16, 20, 24, 28, 32, 36, 40, 44
def R(r): return f"s[{r}:{r+3}]"
SW, sH, sI, sJ, sFT, sDT4, sST, sDT5, sACT4, sTO, sTAG = 48, 49, 50, 51, 52, 53, 54, 55, 56, 57, 58
sHI, sONES = 60, 62
sT, sU, sV, sA, sB, sC, sD_, sE, sRETRY = 63, 64, 65, 66, 67, 68, 69, 70, 71
sF = [4, 5, 6, 7]
sSEC, sHQ, sW8 = 3, 92, 93
sMISS = 6
sC3, sR3 = 0, 1
sRBW, sW2W = 94, 95
sW2, sW2S, sW2E, sW1, sW1S, sW1E = 96, 97, 98, 99, 100, 101
VL, VST = 2, 255
W2A, RBUF, LDS_TOTAL = 0, 114688, 163840

A = Asm(); vm = Cnt(A, "vmcnt", 63); lg = Cnt(A, "lgkmcnt", 15)
st = {"pend": [], "names": {}}
def stamp(name):
    if os.environ.get("DIAGAT") == name or (os.environ.get("DIAGAT") and name == "start"): A("s_memrealtime s[72:73]")
    if not STAMP: return
    import re
    if name != "start" and not re.match(os.environ.get("STF", "^[^t]"), name): return
    k = len(st["pend"]); assert k < 9, name
    n = st["names"].setdefault(name, len(st["names"]))
    A(f"{'s_memtime' if env('CYC', 0) else 's_memrealtime'} s[{74+2*k}:{75+2*k}]"); st["pend"].append(n)
def stamp_flush():
    if not STAMP or not st["pend"]: return
    A("s_waitcnt lgkmcnt(0)")
    for k, n in enumerate(st["pend"]): A(f"v_writelane_b32 v{st.get('v', VST)}, s{74+2*k}, {n}")
    st["pend"] = []

def set_exec(mask): A(f"s_mov_b32 exec_lo, {hx(mask)}\ns_mov_b32 exec_hi, {hx(mask >> 32)}")
def halfsum(x, t): A(f"v_mov_b32 v{t}, v{x}\nv_permlane32_swap_b32 v{x}, v{t}\nv_add_f32 v{x}, v{x}, v{t}")
def flag_store(soff_reg, t=4):
    A(f"v_mov_b32 v{t}, s{sTAG}\nv_mov_b32 v{t+1}, s{sTAG+1}\nv_mov_b32 v{t+2}, 0\ns_mov_b64 exec, 1")
    A(f"buffer_store_dwordx2 {v(t,2)}, v{t+2}, {R(RWS)}, s{soff_reg} offen sc1\ns_mov_b64 exec, -1"); vm.issue("flag")
def poll(voff, soff_reg, nl, t):
    L = A.label("POLL")
    set_exec((1 << nl) - 1)
    A(f"s_mov_b32 s{sTO}, 0x8000\n{L}:")
    A(f"buffer_load_dwordx2 {v(t,2)}, v{voff}, {R(RWS)}, s{soff_reg} offen sc1\ns_sub_u32 s{sTO}, s{sTO}, 1\ns_waitcnt vmcnt(0)")
    A(f"s_cbranch_scc1 {L}_x\nv_cmp_ne_u64 vcc, s[{sTAG}:{sTAG+1}], {v(t,2)}\ns_and_b64 exec, exec, vcc\n" + (f"s_cbranch_scc0 {L}_x\ns_sleep {env('PSL', 0)}\ns_branch {L}" if env("PSL", 0) else f"s_cbranch_scc1 {L}") + f"\n{L}_x:\ns_mov_b64 exec, -1")
    vm.q = []
def tr_lane_addr(dst, t, pitch, hs, rs=1):
    A(f"v_lshrrev_b32 v{dst}, 5, v1\nv_mul_u32_u24 v{dst}, {hs*pitch}, v{dst}\nv_bfe_u32 v{t}, v1, 2, 2\nv_mul_u32_u24 v{t}, {rs*pitch}, v{t}\nv_add_u32 v{dst}, v{dst}, v{t}")
    A(f"v_bfe_u32 v{t}, v1, 4, 1\nv_lshl_add_u32 v{dst}, v{t}, 5, v{dst}\nv_and_b32 v{t}, 3, v1\nv_lshl_add_u32 v{dst}, v{t}, 3, v{dst}")
def get_tag(TAGV, lab):
    A(f"v_readfirstlane_b32 s{sTAG}, v{TAGV}\nv_readfirstlane_b32 s{sTAG+1}, v{TAGV+1}")
    A(f"s_or_b32 s{sTO}, s{sTAG}, s{sTAG+1}\ns_cbranch_scc1 {lab}_ok\ns_mov_b32 s{sTO}, 0x8000\nv_mov_b32 v4, 0\n{lab}_l:")
    A(f"buffer_load_dwordx2 {v(TAGV,2)}, v4, {R(RDBG)}, 0 offen sc1\ns_sub_u32 s{sTO}, s{sTO}, 1\ns_waitcnt vmcnt(0)\ns_cbranch_scc1 {lab}_ok")
    A(f"v_readfirstlane_b32 s{sTAG}, v{TAGV}\nv_readfirstlane_b32 s{sTAG+1}, v{TAGV+1}\ns_cmp_eq_u64 s[{sTAG}:{sTAG+1}], 0\ns_cbranch_scc1 {lab}_l\n{lab}_ok:")
def tagcheck(regs, T1, T2, T3):
    A(f"v_xor_b32 v{T1}, s{sTAG}, v{regs[0]+1}\nv_xor_b32 v{T2}, s{sTAG+1}, v{regs[0]+3}\nv_or_b32 v{T1}, v{T1}, v{T2}")
    for g in regs[1:]: A(f"v_xor_b32 v{T2}, s{sTAG}, v{g+1}\nv_xor_b32 v{T3}, s{sTAG+1}, v{g+3}\nv_or3_b32 v{T1}, v{T1}, v{T2}, v{T3}")
    A(f"v_cmp_ne_u32 vcc, 0, v{T1}")
def rot4(d):
    A(f"s_bfe_u32 s{d}, s2, 0x20001\ns_mul_i32 s{d}, s{d}, 7\ns_sub_u32 s{d}, s{sFT}, s{d}\ns_add_u32 s{d}, s{d}, s{sDT4}\ns_add_u32 s{d}, s{d}, s{sDT4}")
    A(f"s_and_b32 s{sTO}, s2, 1\ns_mul_i32 s{sTO}, s{sTO}, 3\ns_add_u32 s{d}, s{d}, s{sTO}\ns_and_b32 s{d}, s{d}, 7\ns_lshl_b32 s{d}, s{d}, 2")
def rot5(d):
    A(f"s_and_b32 s{sTO}, s2, 1\ns_lshl_b32 s{sTO}, s{sTO}, 1\ns_lshl_b32 s{d}, s{sDT5}, 1\ns_add_u32 s{d}, s{d}, s{sTO}\ns_and_b32 s{sTO}, s{sST}, 7\ns_add_u32 s{d}, s{d}, s{sTO}")
    A(f"s_mul_i32 s{sTO}, s{d}, 37\ns_lshr_b32 s{sTO}, s{sTO}, 8\ns_mul_i32 s{sTO}, s{sTO}, 7\ns_sub_u32 s{d}, s{d}, s{sTO}\ns_lshl_b32 s{d}, s{d}, 2")

handlers = []
class Stream:
    def __init__(self, name, ng, loads, soff, T, bit, VP, TP, pm=None, gated=None):
        self.name, self.ng, self.loads, self.soff, self.T, self.last, self.bit = name, ng, loads, soff, T, -1, bit
        self.VP, self.TP, self.pm, self.gated = VP, TP, pm or (lambda g: 0xffffffff), ng if gated is None else gated
        A(f"s_mov_b32 s{sMISS}, {hx((1 << 2*ng) - 1)}")
    def gate(self, g):
        if g >= self.gated: return
        L = f"{self.name}g{g}"
        A(f"s_and_b32 s{sT}, s{sMISS}, {hx(3 << 2*g)}\ns_cbranch_scc1 {L}_h\n{L}_r:")
        def h():
            A(f"{L}_h:\ns_mov_b32 s{sTO}, 0x8000\ns_mov_b32 exec_hi, 0\n{L}_l:\ns_and_b32 exec_lo, s{sMISS}, {hx(self.pm(g))}")
            A(f"buffer_load_dword v{self.TP}, v{self.VP}, {R(RWS)}, 0 offen sc1\ns_sub_u32 s{sTO}, s{sTO}, 1\ns_waitcnt vmcnt(0)\ns_cbranch_scc1 {L}_x")
            A(f"v_and_b32 v{self.TP}, {self.bit}, v{self.TP}\nv_cmp_ne_u32 vcc, 0, v{self.TP}\ns_andn2_b32 s{sMISS}, s{sMISS}, vcc_lo\ns_and_b32 s{sT}, s{sMISS}, {hx(3 << 2*g)}\ns_cbranch_scc1 {L}_l")
            A(f"{L}_x:\ns_mov_b64 exec, -1\ns_branch {L}_r")
        handlers.append(h)
    def _emit(self, g, track):
        self.soff(g)
        for reg, va, off in self.loads(g):
            A(f"buffer_load_dwordx4 {v(reg,4)}, v{va}, {R(RWS)}, s{sT} offen offset:{off} sc1")
            if track: vm.issue((self.name, g))
    def issue(self, g):
        if g < self.ng: self.gate(g); self._emit(g, True); self.last = g
    def issue_part(self, g, k):
        if g >= self.ng: return
        if k == 0: self.gate(g); self.soff(g)
        reg, va, off = self.loads(g)[k]
        A(f"buffer_load_dwordx4 {v(reg,4)}, v{va}, {R(RWS)}, s{sT} offen offset:{off} sc1"); vm.issue((self.name, g))
        self.last = g
    def _red(self, g):
        r = [x[0] + 3 for x in self.loads(g)]
        A(f"v_bitop3_b32 v{self.T}, v{r[0]}, v{r[1]}, v{r[2]} bitop3:0x80\nv_bitop3_b32 v{self.T}, v{self.T}, v{r[3]}, {self.bit} bitop3:0x80")
    def check1(self, g):
        if g < self.ng: vm.wait((self.name, g)); self._red(g)
    def check2(self, g):
        if g >= self.ng: return
        L = f"{self.name}{g}"
        A(f"v_cmp_eq_u32 vcc, 0, v{self.T}\ns_cbranch_vccnz {L}_h\n{L}_r:")
        last = self.last
        later = list(range(g + 1, last + 1)) if env("RFR", 0) and vm.q == [(self.name, k) for k in range(g + 1, last + 1) for _ in range(4)] else []
        def h():
            A(f"{L}_h:\ns_mov_b32 s{sTO}, 0x8000\n{L}_l:")
            self._emit(g, False)
            A(f"s_sub_u32 s{sTO}, s{sTO}, 1\ns_waitcnt vmcnt(0)\ns_cbranch_scc1 {L}_r")
            self._red(g)
            A(f"v_cmp_eq_u32 vcc, 0, v{self.T}\ns_cbranch_vccnz {L}_l")
            for k in later:
                self._red(k); A(f"v_cmp_eq_u32 vcc, 0, v{self.T}\ns_cbranch_vccnz {L}_f{k}")
            A(f"s_branch {L}_r")
            for k in later:
                A(f"{L}_f{k}:"); self._emit(k, False)
            if later: A(f"s_branch {L}_r")
        handlers.append(h)

def prologue():
    if STAMP: A(f"s_memrealtime s[72:73]\nv_mov_b32 v{VST}, -1")
    stamp("start")
    A(f"s_load_dwordx2 s[{RX}:{RX+1}], s[0:1], 0\ns_load_dwordx2 s[{RWQ}:{RWQ+1}], s[0:1], 8")
    A("s_cmp_ge_u32 s2, 256\ns_cbranch_scc1 K_END")
    A(f"v_and_b32 v1, 63, v0\nv_lshrrev_b32 v3, 6, v0\nv_lshlrev_b32 v{VL}, 4, v1\nv_readfirstlane_b32 s{sW8}, v3\nv_and_b32 v0, 255, v0")
    for r, sz in ((RX, S*D*2), (RWQ, D*3*D*2)): A(f"s_mov_b32 s{r+2}, {sz}\ns_mov_b32 s{r+3}, 0x20000")
    A(f"s_and_b32 s{SW}, s{sW8}, 3\ns_lshr_b32 s{sJ}, s2, 3\ns_bfe_u32 s{sT}, s2, 0x20001\ns_and_b32 s{sU}, s2, 1")
    A(f"s_lshl_b32 s{sI}, s{sT}, 2\ns_and_b32 s{sV}, s{sJ}, 3\ns_add_u32 s{sI}, s{sI}, s{sV}")
    A(f"s_lshr_b32 s{sSEC}, s{sJ}, 3\ns_bfe_u32 s{sHQ}, s{sJ}, 0x10002\ns_lshl_b32 s{sV}, s{sU}, 1\ns_add_u32 s{sHQ}, s{sHQ}, s{sV}")
    A(f"s_cmp_ge_u32 s{sJ}, 24\ns_cbranch_scc1 P1_HELP\ns_cmp_lt_u32 s{sW8}, 4\ns_cbranch_scc1 A_P1")

def prologue2():
    for r, off in ((RWS, 80), (RDBG, 72), (RWO, 16), (RW1, 32), (RB1, 40), (RW2, 48), (RB2, 56), (ROUT, 64)):
        A(f"s_load_dwordx2 s[{r}:{r+1}], s[0:1], {off}")
    A(f"s_memrealtime s[{sTAG}:{sTAG+1}]")
    for r, sz in ((RWS, WS_SIZE), (RDBG, 256), (RWO, D*D*2), (RW1, S*F*2), (RB1, F*2), (RW2, S*F*2), (RB2, S*2), (ROUT, S*D*2)):
        A(f"s_mov_b32 s{r+2}, {sz}\ns_mov_b32 s{r+3}, 0x20000")
    A(f"s_mov_b32 s{sHI}, 0\ns_mov_b32 s{sHI+1}, -1\ns_mov_b32 s{sONES}, 0x3f803f80\ns_mov_b32 s{sRETRY}, 0")
    A(f"s_mul_i32 s{sRBW}, s{SW}, 12288\ns_add_u32 s{sRBW}, s{sRBW}, {RBUF}\ns_mul_i32 s{sW2W}, s{SW}, 28672")

def roles(touch=True):
    A(f"s_bfe_u32 s{sT}, s2, 0x20001\ns_and_b32 s{sU}, s2, 1")
    pass
    A(f"s_sub_u32 s{sV}, 25, s{sU}\ns_cmp_lt_u32 s{sJ}, s{sV}\ns_cselect_b32 s{sACT4}, 1, 0\ns_cselect_b32 s{sV}, s{sJ}, 0")
    A(f"s_mul_i32 s{sFT}, s{sU}, 25\ns_add_u32 s{sV}, s{sV}, s{sFT}\ns_mul_i32 s{sDT4}, s{sV}, 9363\ns_lshr_b32 s{sDT4}, s{sDT4}, 16")
    A(f"s_mul_i32 s{sFT}, s{sDT4}, 7\ns_sub_u32 s{sV}, s{sV}, s{sFT}\ns_mul_i32 s{sFT}, s{sT}, 7\ns_add_u32 s{sFT}, s{sV}, s{sFT}")
    A(f"s_cmp_lt_u32 s{sJ}, 28\ns_cselect_b32 s{sV}, s{sJ}, 0\ns_mul_i32 s{sST}, s{sU}, 28\ns_add_u32 s{sV}, s{sV}, s{sST}")
    A(f"s_lshr_b32 s{sDT5}, s{sV}, 3\ns_and_b32 s{sV}, s{sV}, 7\ns_lshl_b32 s{sST}, s{sT}, 3\ns_add_u32 s{sST}, s{sST}, s{sV}")
    A(f"s_lshl_b32 s{sT}, s{sHQ}, 2\ns_add_u32 s{sT}, s{sT}, s{sSEC}\ns_lshl_b32 s{sT}, s{sT}, 4\ns_add_u32 s{sT}, s{sT}, s{sI}\ns_lshl_b32 s{sT}, s{sT}, 7\ns_add_u32 s{sF[0]}, s{sT}, {F1}")
    A(f"s_and_b32 s{sT}, s2, 7\ns_lshl_b32 s{sT}, s{sT}, 1\ns_and_b32 s{sH}, s{sJ}, 1\ns_add_u32 s{sH}, s{sH}, s{sT}\ns_lshr_b32 s{sI}, s{sJ}, 1")
    A(f"s_lshr_b32 s{sR3}, s{sJ}, 4\ns_add_u32 s{sR3}, s{sR3}, s{sT}\ns_lshl_b32 s{sR3}, s{sR3}, 2\ns_add_u32 s{sR3}, s{sR3}, s{SW}\ns_and_b32 s{sC3}, s{sJ}, 15")
    A(f"s_lshl_b32 s{sT}, s2, 3\ns_add_u32 s{sF[1]}, s{sT}, {F2}")
    if not touch: return
    A(f"s_lshl_b32 s{sV}, s{sR3}, 4\ns_add_u32 s{sV}, s{sV}, s{sC3}\ns_lshl_b32 s{sV}, s{sV}, 9\ns_add_u32 s{sV}, s{sV}, {WS_ST}\nv_lshl_add_u32 v4, v1, 7, s{sV}")
    A(f"v_writelane_b32 v4, s{sF[0]}, 4\nv_writelane_b32 v4, s{sF[1]}, 5\ns_mov_b64 exec, {0x3f if env('STT', 1) else 0x30}\nbuffer_load_dword v126, v4, {R(RWS)}, 0 offen sc1\ns_mov_b64 exec, -1")
    vm.issue("touch")

def p1_helper():
    TAGV = 14
    sHX = sA
    A("P1_HELP:")
    vm.q = []
    prologue2()
    A(f"s_and_b32 s{sHX}, s2, 7\ns_lshl_b32 s{sHX}, s{sHX}, 3\ns_add_u32 s{sHX}, s{sHX}, s{sJ}\ns_sub_u32 s{sHX}, s{sHX}, 24")
    A(f"v_lshrrev_b32 v4, 3, v1\nv_and_b32 v5, 7, v1\nv_lshlrev_b32 v5, 4, v5\nv_mov_b32 v7, 0")
    A(f"s_cmp_ge_u32 s{sW8}, 4\ns_cbranch_scc1 H_CS")
    A(f"v_mul_u32_u24 v6, 896, v4\nv_add_u32 v6, v6, v5\ns_lshl_b32 s{sB}, s{sHX}, 2\ns_add_u32 s{sB}, s{sB}, s{SW}\ns_mul_i32 s{sT}, s{sB}, {8*896}\ns_waitcnt lgkmcnt(0)")
    for m in range(7): A(f"buffer_load_dwordx4 {v(16+4*m,4)}, v6, {R(RX)}, s{sT} offen offset:{m*128}")
    A("v_mov_b32 v80, 0\nv_mov_b32 v82, 0\nv_mov_b32 v84, 0\nv_mov_b32 v86, 0\ns_waitcnt vmcnt(0)")
    A(f"buffer_load_dwordx2 {v(TAGV,2)}, v7, {R(RDBG)}, 0 offen sc1")
    for k in range(28): A(f"v_dot2c_f32_bf16 v{80+4*(k&1)}, s{sONES}, v{16+k}\nv_dot2c_f32_bf16 v{82+4*(k&1)}, v{16+k}, v{16+k}")
    A("v_add_f32 v80, v80, v84\nv_add_f32 v82, v82, v86")
    for m in ("quad_perm:[1,0,3,2]", "quad_perm:[2,3,0,1]", "row_half_mirror"):
        for r in (80, 82): A(f"v_add_f32_dpp v{r}, v{r}, v{r} {m} row_mask:0xf bank_mask:0xf")
    A(f"v_mul_f32 v80, {fl(1.0/D)}, v80\nv_mul_f32 v82, {fl(1.0/D)}, v82\nv_fma_f32 v82, -v80, v80, v82\nv_max_f32 v82, 0, v82\nv_add_f32 v82, {fl(EPS)}, v82\nv_rsq_f32 v82, v82")
    A(f"v_lshlrev_b32 v6, 4, v4\nv_mul_f32 v80, v80, v82\nv_sub_f32 v80, 0, v80\ns_waitcnt vmcnt(0)")
    get_tag(TAGV, "H_T1")
    A(f"v_mov_b32 v81, s{sTAG}\nv_mov_b32 v83, s{sTAG+1}\ns_lshl_b32 s{sT}, s{sB}, 7\ns_add_u32 s{sT}, s{sT}, {WS_RST}")
    set_exec(0x0101010101010101)
    A(f"buffer_store_dwordx4 v[80:83], v6, {R(RWS)}, s{sT} offen sc1\ns_mov_b64 exec, -1")
    stamp("h_pub"); stamp_flush()
    A("s_barrier")
    roles()
    addr_setup()
    A("s_branch P2_START")
    st["pend"] = [0] if STAMP else []
    A(f"H_CS:\ns_lshl_b32 s{sB}, s{SW}, 6\ns_add_u32 s{sB}, s{sB}, s{sHX}\ns_cmp_ge_u32 s{sB}, 84\ns_cbranch_scc1 H_PF")
    A(f"v_mul_u32_u24 v6, 2688, v4\nv_add_u32 v6, v6, v5\ns_and_b32 s{sC}, s{sB}, 3\ns_lshr_b32 s{sD_}, s{sB}, 2\ns_mul_i32 s{sT}, s{sC}, {112*2688}\ns_lshl_b32 s{sU}, s{sD_}, 7\ns_add_u32 s{sT}, s{sT}, s{sU}\ns_waitcnt lgkmcnt(0)")
    for m in range(14): A(f"buffer_load_dwordx4 {v(16+4*m,4)}, v6, {R(RWQ)}, s{sT} offen\ns_add_u32 s{sT}, s{sT}, {8*2688}")
    A(f"s_mov_b32 s{sT}, 0x3f80\ns_mov_b32 s{sU}, 0x3f800000")
    for r in range(80, 88): A(f"v_mov_b32 v{r}, 0")
    for m in range(14):
        if m % 4 == 0: A(f"s_waitcnt vmcnt({max(0, 14 - m - 4)})")
        if m == 12: A(f"buffer_load_dwordx2 {v(TAGV,2)}, v7, {R(RDBG)}, 0 offen sc1")
        for k in range(4): A(f"v_dot2c_f32_bf16 v{80+2*k}, s{sT}, v{16+4*m+k}\nv_dot2c_f32_bf16 v{81+2*k}, s{sU}, v{16+4*m+k}")
    for r in range(80, 88): A(f"v_add_f32_dpp v{r}, v{r}, v{r} row_ror:8 row_mask:0xf bank_mask:0xf")
    for op in ("v_permlane16_swap_b32", "v_permlane32_swap_b32"):
        for r in range(80, 88): A(f"v_mov_b32 v{r+8}, v{r}")
        for r in range(80, 88): A(f"{op} v{r}, v{r+8}")
        for r in range(80, 88): A(f"v_add_f32 v{r}, v{r}, v{r+8}")
    A("v_mov_b32 v88, v80\nv_mov_b32 v90, v81")
    for pi in range(1, 4): A(f"v_cmp_eq_u32 vcc, {pi}, v4\nv_cndmask_b32 v88, v88, v{80+2*pi}, vcc\nv_cndmask_b32 v90, v90, v{81+2*pi}, vcc")
    A(f"v_lshlrev_b32 v6, 2, v5\nv_lshl_add_u32 v6, v4, 4, v6\ns_waitcnt vmcnt(0)")
    get_tag(TAGV, "H_T2")
    A(f"v_mov_b32 v89, s{sTAG}\nv_mov_b32 v91, s{sTAG+1}\ns_mul_i32 s{sT}, s{sC}, 10752\ns_lshl_b32 s{sU}, s{sD_}, 9\ns_add_u32 s{sT}, s{sT}, s{sU}\ns_add_u32 s{sT}, s{sT}, {WS_CSG}")
    set_exec(0xFFFFFFFF)
    A(f"buffer_store_dwordx4 v[88:91], v6, {R(RWS)}, s{sT} offen sc1\ns_mov_b64 exec, -1\ns_barrier\ns_branch B_P2")
    A(f"H_PF:\ns_cmp_lt_u32 s{SW}, 2\ns_cbranch_scc1 H_W")
    sQ = sB
    A(f"s_sub_u32 s{sQ}, s{sJ}, 24\ns_lshl_b32 s{sQ}, s{sQ}, 1\ns_add_u32 s{sQ}, s{sQ}, s{SW}\ns_sub_u32 s{sQ}, s{sQ}, 2")
    A(f"s_getpc_b64 s[{sC}:{sC+1}]\nCODE_REF:\ns_lshl_b32 s{sT}, s{sQ}, 12\nv_lshl_add_u32 v6, v1, 7, s{sT}\nv_min_u32 v6, CODE_END-CODE_REF-4, v6")
    A(f"v_mov_b32 v9, s{sC+1}\nv_add_co_u32 v8, vcc, s{sC}, v6\nv_addc_co_u32 v9, vcc, 0, v9, vcc")
    set_exec(0xFFFFFFFF)
    A("global_load_dword v25, v[8:9], off\ns_mov_b64 exec, -1\ns_waitcnt lgkmcnt(0)\ns_barrier")
    A("v_lshlrev_b32 v6, 7, v1")
    A(f"s_and_b32 s{sT}, s2, 7\ns_lshl_b32 s{sT}, s{sT}, 4\ns_add_u32 s{sT}, s{sT}, s{sQ}\ns_mul_i32 s{sT}, s{sT}, {7*8192}")
    for k in range(env("NP1", 0)): A(f"s_add_u32 s{sU}, s{sT}, {k*8192}\nbuffer_load_dword v{16+k}, v6, {R(RW1)}, s{sU} offen")
    for k in range(env("NP2", 0)): A(f"s_add_u32 s{sU}, s{sT}, {k*8192}\nbuffer_load_dword v{26+k}, v6, {R(RW2)}, s{sU} offen")
    if env("WOT", 0) == 1:
        A(f"s_mul_i32 s{sT}, s{sQ}, {196*128}")
        set_exec((1 << 49) - 1)
        for k in range(4): A(f"s_add_u32 s{sU}, s{sT}, {k*49*128}\nbuffer_load_dword v24, v6, {R(RWO)}, s{sU} offen")
        A("s_mov_b64 exec, -1")
    if STAMP:
        A("s_waitcnt vmcnt(0)"); stamp("h_touch"); stamp_flush(); A(f"v_mov_b32 v15, v{VST}\ns_branch B_P2S")
    A("s_branch B_P2\nH_W:\ns_waitcnt lgkmcnt(0)\ns_barrier\ns_branch B_P2")

XA = LDS_TOTAL - 65536
XBUF = [8192, 0, 8192, 4096]
def p1_common():
    sWO, sM = sA, sC
    A(f"s_mul_i32 s{sWO}, s{sSEC}, 896\ns_mul_i32 s{sT}, s{sHQ}, 224\ns_add_u32 s{sWO}, s{sWO}, s{sT}")
    A(f"s_lshl_b32 s{sE}, s{sI}, 2\ns_add_u32 s{sE}, s{sE}, s{SW}\ns_lshl_b32 s{sM}, s{SW}, 14\ns_add_u32 s{sM}, s{sM}, {XA}")

def p1():
    XF, ACC, WF = 16, 128, 192
    VXR = list(range(80, 88)); VXS = list(range(88, 92)); VWR = [92, 93]; TAGV = 94
    xf = lambda ks: XF + ((ks + 8) & 15)*4 if False else XF + (ks & 15)*4
    sWO, sM = sA, sC
    A("A_P1:")
    prologue2()
    p1_common()
    A(f"v_and_b32 v4, 31, v1\nv_lshrrev_b32 v5, 5, v1\nv_and_b32 v6, 15, v1\nv_xor_b32 v6, v6, v5\nv_lshlrev_b32 v6, 4, v6\nv_lshl_add_u32 v6, v4, 8, v6\nv_add_u32 v6, s{sM}, v6")
    for k in range(8): A(f"v_xor_b32 v{VXR[k]}, {k<<5}, v6")
    A(f"v_bfe_u32 v6, v1, 1, 3\nv_xor_b32 v6, v6, v5\nv_lshlrev_b32 v6, 4, v6\nv_lshl_add_u32 v6, v4, 7, v6\nv_add_u32 v6, s{sM}, v6")
    for k in range(4): A(f"v_xor_b32 v{VXS[k]}, {k<<5}, v6")
    tr_lane_addr(VWR[0], 4, 224, 8, 2); A(f"v_add_u32 v{VWR[1]}, {14*3584}, v{VWR[0]}")
    A("s_waitcnt lgkmcnt(0)")
    stamp("karg")
    A(f"s_or_b32 s{sT}, s2, s{SW}\ns_cbranch_scc1 P1_NOTAG")
    A(f"s_bitset1_b32 s{sTAG+1}, 31\nv_mov_b32 v8, s{sTAG}\nv_mov_b32 v9, s{sTAG+1}\nv_mov_b32 v10, 0\nv_mov_b32 v11, 0\ns_mov_b64 exec, 1\nbuffer_atomic_cmpswap_x2 v[8:11], v10, {R(RDBG)}, 0 offen sc1\ns_mov_b64 exec, -1\nP1_NOTAG:")
    A(f"s_mov_b32 s7, s{sE}")
    roles()
    addr_setup()
    A(f"s_mov_b32 s{sE}, s7\ns_lshl_b32 s{sM}, s{SW}, 14\ns_add_u32 s{sM}, s{sM}, {XA}")
    stamp_flush()
    A(f"s_cmp_eq_u32 s{sSEC}, 2\ns_cbranch_scc1 P1_V")
    for isv in (0, 1):
        vm.q = []; lg.q = []
        if isv: A("P1_V:")
        def xread(p):
            for k in range(8 if p < 3 else 4):
                A(f"ds_read_b128 {v(xf(8*p+k), 4)}, v{(VXR if p < 3 else VXS)[k]} offset:{XBUF[p]}"); lg.issue(f"x{p}")
        def wread(ks, hds=range(4)):
            for hd in hds:
                for half in range(2):
                    A(f"ds_read_b64_tr_b16 {v(WF + (ks&1)*16 + hd*4 + half*2, 2)}, v{VWR[ks//14]} offset:{(ks%14)*3584 + half*224 + hd*56}"); lg.issue(f"w{ks}_{hd}")
        C = [16, 32, 64, 96]; PK = WF; RS = 112
        A(f"s_lshl_b32 s{sT}, s{SW}, 10\nv_lshrrev_b32 v5, 5, v1\nv_lshl_add_u32 v5, v5, 4, s{sT}\nv_and_b32 v6, 31, v1\nv_lshl_add_u32 v4, v6, 2, s{sT}\nv_mov_b32 v9, 0")
        A(f"s_lshl_b32 s{sU}, s{sHQ}, 8\ns_add_u32 s{sU}, s{sU}, s{sE}")
        if not isv:
            A(f"s_cmp_eq_u32 s{sSEC}, 0\ns_cselect_b32 s{sA}, 0, s{sONES}\ns_cselect_b32 s{sB}, 0, 0x3f80\ns_cselect_b32 s{sC}, {WS_Q}, {WS_KV}")
            A(f"s_add_u32 s{sD_}, s{sSEC}, 11\ns_lshl_b32 s{sU}, s{sU}, s{sD_}\ns_add_u32 s{sU}, s{sU}, s{sC}\ns_lshl_b32 s{sD_}, 64, s{sD_}\nv_mov_b32 v7, s{sA}\nv_mov_b32 v8, s{sB}")
            cr = [f"ds_read_b32 v{RS}, v4 offset:512", f"ds_read_b32 v{RS+2}, v4 offset:640"] + [f"ds_read_b128 {v(C[hd]+4*g,4)}, v5 offset:{hd*112 + g*32}" for hd in range(4) for g in range(4)]
        else:
            A(f"s_lshl_b32 s{sU}, s{sU}, 12\ns_add_u32 s{sU}, s{sU}, {WS_KV + 2048}\ns_mov_b32 s{sD_}, {64*4096}\ns_mov_b32 s{sA}, 0x0fffffff\ns_mov_b32 s{sA+1}, 0x0fffffff")
            A(f"v_cmp_eq_u32 vcc, 28, v6\nv_mov_b32 v7, s{sONES}\nv_cndmask_b32 v8, 0, v7, vcc")
            PK = 96
            for r in range(16): A(f"v_mov_b32 v{PK+r}, v8")
            cr = [f"ds_read_b128 {v(16+4*g,4)}, v5 offset:{512 + g*32}" for g in range(4)] + [f"ds_read_b128 {v(32+4*g,4)}, v5 offset:{640 + g*32}" for g in range(4)] + [f"ds_read_b32 v{RS+2*hd}, v4 offset:{hd*112}" for hd in range(4)]
        for p in range(4):
            k0, k1 = 8*p, min(8*p + 8, 28)
            A("s_barrier"); stamp(f"g{p}")
            xread(p); wread(k0, [0, 1, 2])
            if p == 2: A(f"buffer_load_dwordx2 {v(TAGV,2)}, v9, {R(RDBG)}, 0 offen sc1")
            lg.wait(f"x{p}")
            if p < 2: A("s_barrier")
            wread(k0, [3])
            for ks in range(k0, k1):
                x = v(xf(ks), 4)
                for hd in range(4):
                    lg.wait(f"w{ks}_{hd}")
                    w_ = v(WF + (ks&1)*16 + hd*4, 4); acc = v(ACC + 16*hd, 16)
                    A(f"{MFMA} {acc}, {x if isv else w_}, {w_ if isv else x}, {'0' if ks == 0 else acc}")
                    if ks + 1 < k1: wread(ks + 1, [hd])
                    if p == 3:
                        for _ in range(3 if ks == 27 else (1 if hd & 1 else 0)):
                            if cr: A(cr.pop(0)); lg.issue("c")
        assert not cr
        stamp("mfma_done")
        lg.wait_all()
        for hd in range(4):
            ac = ACC + 16*hd
            if not isv:
                c, o = C[hd], PK + 8*hd
                for r in range(0, 16, 2): A(f"v_pk_mul_f32 {v(c+r,2)}, {v(c+r,2)}, {v(RS+2,2)} op_sel_hi:[1,0]")
                for r in range(0, 16, 2): A(f"v_pk_fma_f32 {v(ac+r,2)}, {v(ac+r,2)}, {v(RS,2)}, {v(c+r,2)} op_sel_hi:[1,0,1]")
            else:
                o = PK + 8*(hd & 1)
                for r in range(0, 16, 2): A(f"v_pk_mul_f32 {v(64+r,2)}, {v(32+r,2)}, {v(RS+2*hd,2)} op_sel_hi:[1,0]")
                for r in range(0, 16, 2): A(f"v_pk_fma_f32 {v(ac+r,2)}, {v(ac+r,2)}, {v(16+r,2)}, {v(64+r,2)}")
                A(f"s_mov_b64 exec, s[{sA}:{sA+1}]")
            for r in range(8): A(f"v_cvt_pk_bf16_f32 v{o+r}, v{ac+2*r}, v{ac+2*r+1}")
            if not isv: A(f"v_cndmask_b32 v{o+6}, v{o+6}, v7, s[{sHI}:{sHI+1}]\nv_cndmask_b32 v{o+7}, v{o+7}, v8, s[{sHI}:{sHI+1}]\nv_and_b32 v{o+3}, 0xfffefffe, v{o+3}\nv_and_b32 v{o+7}, 0xfffefffe, v{o+7}")
            else: A(f"v_and_b32 v{o+3}, -2, v{o+3}\nv_and_b32 v{o+7}, -2, v{o+7}\ns_mov_b64 exec, -1")
            for f in range(2): A(f"buffer_store_dwordx4 {v(o+4*f,4)}, v{VL}, {R(RWS)}, s{sU} offen offset:{f*1024} sc1")
            if hd < 3: A(f"s_add_u32 s{sU}, s{sU}, s{sD_}")
        stamp("kvst"); stamp_flush()
        if not isv: A("s_branch P1_DONE")
    A("P1_DONE:\ns_waitcnt vmcnt(8)")
    get_tag(TAGV, "P1_T")

def tilemax(sreg, T0, T1):
    A(f"v_max3_f32 v{T0}, v{sreg}, v{sreg+1}, v{sreg+2}\nv_max3_f32 v{T1}, v{sreg+3}, v{sreg+4}, v{sreg+5}")
    A(f"v_max3_f32 v{T0}, v{T0}, v{sreg+6}, v{sreg+7}\nv_max3_f32 v{T1}, v{T1}, v{sreg+8}, v{sreg+9}")
    A(f"v_max3_f32 v{T0}, v{T0}, v{sreg+10}, v{sreg+11}\nv_max3_f32 v{T1}, v{T1}, v{sreg+12}, v{sreg+13}")
    A(f"v_max3_f32 v{T0}, v{T0}, v{sreg+14}, v{sreg+15}")
def set_qpad(q, m, T0, T1, T2):
    A(f"v_sub_f32 v{T0}, 0, v{m}\nv_and_b32 v{T1}, 0xffff0000, v{T0}\nv_sub_f32 v{T0}, v{T0}, v{T1}")
    A(f"v_and_b32 v{T2}, 0xffff0000, v{T0}\nv_sub_f32 v{T0}, v{T0}, v{T2}\nv_lshrrev_b32 v{T0}, 16, v{T0}")
    A(f"v_lshrrev_b32 v{T1}, 16, v{T1}\nv_or_b32 v{T1}, v{T1}, v{T2}")
    A(f"v_cndmask_b32 v{q+6}, v{q+6}, v{T1}, s[{sHI}:{sHI+1}]\nv_cndmask_b32 v{q+7}, v{q+7}, v{T0}, s[{sHI}:{sHI+1}]")

NKV = env("NKV", 4)
XR, IR3 = (224, 232) if NKV == 4 else (176, 184)
VRD, VFL, VKV, VONE, VRB, VWO = [240, 241], 242, 243, 244, [246, 247], 248
VO3, VP3, VH, VP4, VG, VP5 = [10, 11], 12, [14, 15], 3, [253, 254], 242
sRO, sGC, sGST, sHFO, sFO, sRT3 = 96, 97, 98, 99, 100, 101
VRW = [249, 250, 251, 252]
def ident3():
    A("v_and_b32 v4, 31, v1\nv_lshrrev_b32 v5, 5, v1\nv_lshlrev_b32 v6, 3, v5\nv_sub_u32 v6, v4, v6")
    for p in range(2):
        for r in range(4):
            A(f"v_cmp_eq_u32 vcc, {16*p+2*r}, v6\nv_cmp_eq_u32 s[{sU}:{sU+1}], {16*p+2*r+1}, v6\nv_cndmask_b32 v{IR3+4*p+r}, 0, v{VONE}, vcc\nv_cndmask_b32 v{IR3+4*p+r}, v{IR3+4*p+r}, v{VONE+1}, s[{sU}:{sU+1}]")
def addr_setup():
    tr_lane_addr(4, 5, 128, 4)
    A(f"s_and_b32 s{sT}, s{SW}, 1\ns_lshl_b32 s{sT}, s{sT}, 5\nv_xor_b32 v4, s{sT}, v4")
    A(f"v_bfe_u32 v5, v1, 3, 1\ns_lshr_b32 s{sT}, s{SW}, 1\nv_xor_b32 v5, s{sT}, v5")
    A(f"v_lshl_add_u32 v6, v5, 6, v4\nv_xor_b32 v5, 1, v5\nv_lshl_add_u32 v7, v5, 6, v4")
    A(f"v_add_u32 v{VRD[0]}, s{sW2W}, v6\nv_add_u32 v{VRD[1]}, s{sW2W}, v7")
    A(f"v_mov_b32 v{VONE}, 0x3f80\nv_mov_b32 v{VONE+1}, 1.0")
    A(f"s_lshl_b32 s{sT}, s{sH}, 2\ns_add_u32 s{sT}, s{sT}, s{SW}\ns_lshl_b32 s{sT}, s{sT}, 16\ns_add_u32 s{sT}, s{sT}, {WS_KV}\nv_add_u32 v{VKV}, s{sT}, v{VL}")
    tr_lane_addr(VWO, 4, 64, 4); A(f"v_add_u32 v{VWO}, {RBUF}, v{VWO}\nv_add_u32 v{VRW[0]}, s{sRBW}, v{VL}")
    for t in range(1, 4):
        A(f"s_add_u32 s{sT}, s{SW}, {t}\ns_and_b32 s{sT}, s{sT}, 3\ns_mul_i32 s{sT}, s{sT}, 12288\ns_add_u32 s{sT}, s{sT}, {RBUF}\nv_add_u32 v{VRW[t]}, s{sT}, v{VL}")
    if NKV == 4: ident3()
    A("v_and_b32 v4, 31, v1\nv_lshrrev_b32 v5, 5, v1")
    A("v_mul_u32_u24 v13, 896, v4\nv_lshl_add_u32 v13, v5, 4, v13")
    A(f"s_lshl_b32 s{sB}, s{sR3}, 11\ns_add_u32 s{sB}, s{sB}, {WS_O}\nv_add_u32 v{VO3[0]}, s{sB}, v{VL}\nv_add_u32 v{VO3[1]}, 0x20000, v{VO3[0]}\ns_and_b32 s{sT}, s{sC3}, 7\ns_lshl_b32 s{sRT3}, s{sT}, 18")
    A(f"s_lshl_b32 s{sT}, s{sT}, 1\nv_add_u32 v{VP3}, s{sT}, v1\nv_and_b32 v{VP3}, 15, v{VP3}\nv_lshlrev_b32 v{VP3}, 17, v{VP3}\ns_add_u32 s{sT}, s{sB}, 2044\nv_add_u32 v{VP3}, s{sT}, v{VP3}")
    mlp_addr(RA, 4, 6)
    A(f"s_lshl_b32 s{sFO}, s{sFT}, 2\ns_add_u32 s{sFO}, s{sFO}, s{SW}\ns_mul_i32 s{sT}, s{sDT4}, {2*112*1024}\ns_lshl_b32 s{sU}, s{sFO}, 10\ns_add_u32 s{sT}, s{sT}, s{sU}\ns_add_u32 s{sGST}, s{sT}, {WS_G}")
    A(f"s_lshr_b32 s{sV}, s{SW}, 1\ns_lshl_b32 s{sT}, s{sST}, 1\ns_add_u32 s{sV}, s{sV}, s{sT}\ns_mul_i32 s{sV}, s{sV}, 7\ns_add_u32 s{sV}, s{sV}, s{sDT5}\ns_lshl_b32 s{sV}, s{sV}, 12\ns_and_b32 s{sT}, s{SW}, 1\ns_lshl_b32 s{sT}, s{sT}, 10\ns_add_u32 s{sV}, s{sV}, s{sT}\ns_add_u32 s{sHFO}, s{sV}, {WS_HF}")
    A(f"s_xor_b32 s{sT}, s{SW}, 3\ns_mul_i32 s{sT}, s{sT}, 28672\ns_add_u32 s{sT}, s{sT}, {13*2048}\nv_add_u32 v{VX3}, s{sT}, v{VL}")

class Role: pass
RA, RB = Role(), Role()
C5A = env("C5A", 12)
RA.n, RA.n4, RA.c4, RA.n5, RA.c5, RA.W, RA.slots = "A", 0, 12, 0, C5A, 128, [0, 1, 2, 3, 4, 5]
RA.VRD, RA.VH, RA.VG, RA.VP4, RA.VP5, RA.VT2, RA.T0, RA.T1 = [240, 241], 14, 253, 3, 242, [246, 247], 4, 5
RB.n, RB.n4, RB.c4, RB.n5, RB.c5, RB.W, RB.slots = "B", 12, 20, C5A, 28 - C5A, 96, [12, 6, 7, 8, 9, 10, 11]
RB.VRD, RB.VH, RB.VG, RB.VP4, RB.VP5, RB.VT2, RB.T0, RB.T1 = [0, 3], 4, 5, 8, 9, [6, 7], 12, 13
VX3 = 15
def w2_addr(r, t0, t1):
    A(f"v_lshrrev_b32 v{t0}, 3, v1\nv_bfe_u32 v{t1}, v1, 4, 1\nv_lshlrev_b32 v{t1}, 2, v{t1}\nv_and_b32 v{r.VT2[0]}, 7, v1\nv_xor_b32 v{t1}, v{r.VT2[0]}, v{t1}\nv_lshlrev_b32 v{t1}, 4, v{t1}\nv_lshl_add_u32 v{t0}, v{t0}, 12, v{t1}")
    A(f"s_mul_i32 s{sT}, s{SW}, {448*4096}\ns_lshl_b32 s{sU}, s{sST}, 7\ns_add_u32 s{sT}, s{sT}, s{sU}\nv_add_u32 v{r.VT2[0]}, s{sT}, v{t0}\nv_add_u32 v{r.VT2[1]}, {8*4096 - 1024}, v{r.VT2[0]}")
    rot4(sRO); A(f"s_lshl_b32 s{sRO}, s{sRO}, 10")
    rot5(sGC); A(f"s_lshl_b32 s{sGC}, s{sGC}, 10")
def mlp_addr(r, t0, t1, w2=True):
    if w2: w2_addr(r, t0, t1)
    A(f"s_lshl_b32 s{sT}, s{SW}, 15\ns_add_u32 s{sT}, s{sT}, {WS_HH}\ns_lshl_b32 s{sB}, s{sDT4}, 18\ns_add_u32 s{sB}, s{sB}, s{sT}\nv_add_u32 v{r.VH}, s{sB}, v{VL}")
    A(f"s_add_u32 s{sT}, s{sRO}, {r.n4*1024}\nv_lshl_add_u32 v{r.VP4}, v1, 11, s{sT}\nv_and_b32 v{r.VP4}, 0x7fff, v{r.VP4}\ns_add_u32 s{sT}, s{sB}, 2044\nv_add_u32 v{r.VP4}, s{sT}, v{r.VP4}")
    A(f"s_mul_i32 s{sT}, s{SW}, {28*1024}\ns_add_u32 s{sT}, s{sT}, {WS_G}\ns_mul_i32 s{sB}, s{sDT5}, {2*112*1024}\ns_add_u32 s{sB}, s{sB}, s{sT}")
    A(f"s_and_b32 s{sT}, s{SW}, 1\ns_lshl_b32 s{sT}, s{sT}, 8\nv_xor_b32 v{r.VG}, s{sT}, v{VL}\nv_add_u32 v{r.VG}, s{sB}, v{r.VG}")
    A(f"s_add_u32 s{sT}, s{sGC}, {r.n5*1024}\nv_min_u32 v{t0}, {r.c5 // 2 - 1}, v1\nv_lshl_add_u32 v{r.VP5}, v{t0}, 11, s{sT}\nv_subrev_u32 v{t0}, {28*1024}, v{r.VP5}\nv_min_u32 v{r.VP5}, v{r.VP5}, v{t0}\ns_add_u32 s{sT}, s{sB}, 2044\nv_add_u32 v{r.VP5}, s{sT}, v{r.VP5}")

def p2():
    Q, O, SS, PP, KV = 16, 48, [112, 128], [144, 152], 160
    M = [112, 113, 114, 115]; K0 = 120
    T0, T1, T2, T3 = 4, 5, 6, 7
    sKN = sB
    vm.wait_all(); stamp("kvdrain")
    A(f"s_barrier\ns_cmp_lg_u32 s{SW}, 0\ns_cbranch_scc1 P2_NOF")
    flag_store(sF[0]); flag_store(sF[1]); A("P2_NOF:"); stamp_flush()
    A("P2_START:")
    if env("LOC3", 1):
        A(f"s_getreg_b32 s{sV}, hwreg(HW_REG_XCC_ID, 0, 4)\ns_cmp_lg_u32 s{SW}, 1\ns_cbranch_scc1 P2_NOX")
        A(f"s_lshr_b32 s{sT}, s{sR3}, 2\ns_lshl_b32 s{sT}, s{sT}, 4\ns_add_u32 s{sT}, s{sT}, s{sC3}\ns_lshl_b32 s{sT}, s{sT}, 4\ns_add_u32 s{sT}, s{sT}, {F4}")
        A(f"v_mov_b32 v4, s{sV}\nv_mov_b32 v5, s{sTAG}\nv_mov_b32 v6, s{sV}\nv_mov_b32 v7, s{sTAG+1}\nv_mov_b32 v8, 0\ns_mov_b64 exec, 1\nbuffer_store_dwordx4 v[4:7], v8, {R(RWS)}, s{sT} offen sc1\ns_mov_b64 exec, -1\nP2_NOX:")
    A(f"s_mul_i32 s{sE}, s{sR3}, {32*896}\ns_lshl_b32 s{sU}, s{sC3}, 6\ns_add_u32 s{sE}, s{sE}, s{sU}")
    xl = [f"buffer_load_dwordx4 {v(XR+4*p,4)}, v13, {R(RX)}, s{sE} offen offset:{32*p}" for p in range(2)]
    if NKV == 4: A("\n".join(xl))
    A(f"s_lshl_b32 s{sV}, s{sI}, 2\ns_add_u32 s{sV}, s{sV}, s{SW}\ns_lshl_b32 s{sU}, s{sH}, 6\ns_add_u32 s{sU}, s{sU}, s{sV}\ns_lshl_b32 s{sU}, s{sU}, 11")
    A(f"s_lshr_b32 s{sT}, s{sH}, 2\ns_lshl_b32 s{sT}, s{sT}, 13\ns_add_u32 s{sT}, s{sT}, {F1}\ns_lshl_b32 s{sA}, s{SW}, 9\ns_add_u32 s{sA}, s{sA}, 2048\ns_lshl_b32 s{sC}, s{sI}, 7")
    A(f"v_and_b32 v7, 3, v1\nv_lshl_add_u32 v7, v7, 7, s{sA}\nv_bfe_u32 v8, v1, 2, 1\nv_lshl_add_u32 v7, v8, 11, v7\nv_writelane_b32 v7, s{sC}, 8")
    poll(7, sT, 9, 8); stamp("s1")
    def kvload(n):
        pre = []
        if n == 0: pre = [f"s_add_u32 s{sA}, s{RWS}, 4096", f"s_addc_u32 s{sA+1}, s{RWS+1}, 0"]
        elif n % 2 == 0: pre = [f"s_add_u32 s{sA}, s{sA}, 8192", f"s_addc_u32 s{sA+1}, s{sA+1}, 0"]
        return pre + [f"global_load_dwordx4 {v(KV+16*(n%NKV)+4*f,4)}, v{VKV}, s[{sA}:{sA+1}] offset:{(n % 2 - 1)*4096 + f*1024} sc1" for f in range(4)]
    def emit(lines, tag):
        for ln in lines:
            A(ln)
            if ln.startswith("global_"): vm.issue(tag)
    for f in range(2): A(f"buffer_load_dwordx4 {v(Q+4*f,4)}, v{VL}, {R(RWS)}, s{sU} offen offset:{f*1024} sc1"); vm.issue("q")
    emit(kvload(0), "kv0")
    A("s_waitcnt vmcnt(2)"); stamp("qk0")
    A(f"{MFMA} {v(O,16)}, {v(KV,4)}, {v(Q,4)}, 0\n{MFMA} {v(O,16)}, {v(KV+4,4)}, {v(Q+4,4)}, {v(O,16)}")
    emit(kvload(1), "kv1")
    A(f"ds_write_b128 v{VRW[0]}, {v(Q,4)}")
    tilemax(O, T0, T1)
    A(f"v_max_f32 v{T0}, v{T0}, v{T1}\nv_mov_b32 v{T1}, v{T0}\nv_permlane32_swap_b32 v{T0}, v{T1}\nv_max_f32 v{T0}, v{T0}, v{T1}")
    set_qpad(Q, T0, T1, T2, T3)
    A(f"ds_write_b128 v{VRW[0]}, {v(Q+4,4)} offset:1024")
    A(f"{MFMA} {v(SS[0],16)}, {v(KV,4)}, {v(Q,4)}, 0\n{MFMA} {v(SS[0],16)}, {v(KV+4,4)}, {v(Q+4,4)}, {v(SS[0],16)}")
    emit(kvload(2), "kv2")
    A("s_waitcnt lgkmcnt(0)")
    A("s_barrier")
    for t in range(1, 4): A(f"ds_read_b128 {v(Q+8*t,4)}, v{VRW[t]}\nds_read_b128 {v(Q+8*t+4,4)}, v{VRW[t]} offset:1024")
    emit(kvload(3), "kv3")
    if env("APRIO", 0): A(f"s_setprio {env('APRIO', 0)}")
    A("P2_MAIN:")
    slot = lambda idx: (idx + (idx >= 60)) & 3
    pwr = lambda t, g: f"ds_write_b128 v{VRW[t]}, {v(O+16*t+4*g,4)} offset:{(t-1)*4096 + g*1024}"
    def qk(idx, part):
        n, t = idx >> 2, slot(idx); sr = SS[idx & 1]; k = KV + 16*(n % NKV)
        return f"{MFMA} {v(sr,16)}, {v(k+4*part,4)}, {v(Q+8*t+4*part,4)}, {'0' if part == 0 else v(sr,16)}"
    def pv(idx, part):
        n, t = idx >> 2, slot(idx); k = KV + 16*(n % NKV) + 8; o = O + 16*t
        return f"{MFMA} {v(o,16)}, {v(k+4*part,4)}, {v(PP[idx&1]+4*part,4)}, {'0' if (n == 0 and part == 0) else v(o,16)}"
    NI = 64
    for idx in range(NI):
        n, t = idx >> 2, idx & 3
        if idx in (16, 32, 48): stamp(f"a{idx}")
        side = [[], [], [], []]
        if NKV > 4 and idx == 53: side = [xl[:1], [], xl[1:], []]
        if t in (1, 2) and 4 <= n + NKV - 1 < 16:
            l = kvload(n + NKV - 1); pre, ld = l[:-4], l[-4:]
            side = [pre[:1], pre[1:], ld[0:1], ld[1:2]] if t == 1 else [ld[2:3], ld[3:4], [], []]
        if idx == 62: side = [[], [pwr(1, 0)], [pwr(1, 1)], [pwr(1, 2)]]
        if idx == 63: side = [[], [pwr(2, 0), pwr(2, 1)], [], [pwr(2, 2)]]
        if idx == env("CUTAT", 61): side[0].append(f"ds_write_b32 v{VRW[1]}, v{VONE} offset:3072")
        mf = [qk(idx+1, 0) if idx+1 < NI else None, pv(idx-1, 0) if idx > 0 else None,
              qk(idx+1, 1) if idx+1 < NI else None, pv(idx-1, 1) if idx > 0 else None]
        if idx == 0: mf = [None, "s_waitcnt lgkmcnt(0)\n" + mf[0], mf[2], None]
        sr, p = SS[idx & 1], PP[idx & 1]
        for q in range(4):
            if mf[q]: A(mf[q])
            emit(side[q], f"kv{n+NKV-1}")
            if idx == 0 and q == 2: vm.wait("kv0")
            if t == 2 and q == 3 and n + 1 < 16: vm.wait(f"kv{n+1}")
            for j in range(4): A(f"v_exp_f32 v{sr+4*q+j}, v{sr+4*q+j}")
            if q > 0:
                for j in range(2): A(f"v_cvt_pk_bf16_f32 v{p+2*(q-1)+j}, v{sr+4*(q-1)+2*j}, v{sr+4*(q-1)+2*j+1}")
        for j in range(2): A(f"v_cvt_pk_bf16_f32 v{p+6+j}, v{sr+12+2*j}, v{sr+12+2*j+1}")
    A("P2_TAIL:"); A(pv(NI-1, 0)); A(pv(NI-1, 1)); stamp("aend")
    for g in range(3): A(pwr(3, g))
    A(f"s_mov_b32 s{sT}, {fl(2.0**30)}")
    A(f"v_cmp_nlt_f32 s[{sA}:{sA+1}], v{O+60}, s{sT}\nv_cmp_nlt_f32 s[{sC}:{sC+1}], v{O+28}, s{sT}\ns_or_b32 s{sU}, s{sA+1}, s{sC+1}")
    A(f"v_cmp_nlt_f32 s[{sA}:{sA+1}], v{O+44}, s{sT}\nv_cmp_nlt_f32 s[{sC}:{sC+1}], v{O+12}, s{sT}\ns_or_b32 s{sU}, s{sU}, s{sA+1}\ns_or_b32 s{sU}, s{sU}, s{sC+1}")
    A(f"s_cselect_b32 s{sU}, 1.0, 0\nv_mov_b32 v{T0}, s{sU}")
    for t in range(4): A(f"v_cndmask_b32 v{O+16*t+13}, v{O+16*t+13}, v{T0}, s[{sHI}:{sHI+1}]")
    for t in range(1, 4): A(f"ds_write_b128 v{VRW[t]}, {v(O+16*t+12,4)} offset:{(t-1)*4096 + 3*1024}")
    A(f"s_lshl_b32 s{sD_}, s{sI}, 2\ns_add_u32 s{sD_}, s{sD_}, s{SW}\ns_lshl_b32 s{sV}, s{sH}, 6\ns_add_u32 s{sV}, s{sV}, s{sD_}\ns_lshl_b32 s{sV}, s{sV}, 11\ns_add_u32 s{sV}, s{sV}, {WS_O}")
    A("s_waitcnt lgkmcnt(0)\ns_barrier")
    for g in (3, 0, 1, 2):
        for t in range(1, 4): A(f"ds_read_b128 {v(O+16*t+4*g,4)}, v{VRW[0]} offset:{(t-1)*4096 + g*1024}")
    def red(g):
        for r in (4*g, 4*g+2):
            A(f"v_pk_add_f32 {v(O+r,2)}, {v(O+r,2)}, {v(O+16+r,2)}\nv_pk_add_f32 {v(O+32+r,2)}, {v(O+32+r,2)}, {v(O+48+r,2)}")
        for r in (4*g, 4*g+2): A(f"v_pk_add_f32 {v(O+r,2)}, {v(O+r,2)}, {v(O+32+r,2)}")
    A("s_waitcnt lgkmcnt(9)"); red(3)
    A(f"v_readlane_b32 s{sT}, v{O+13}, 32\nv_mov_b32 v{T0}, v{O+12}\nv_mov_b32 v{T2}, v{O+12}\nv_permlane32_swap_b32 v{T0}, v{T2}\nv_rcp_f32 v{T2}, v{T2}")
    A(f"s_cmp_lg_u32 s{sT}, s{sRETRY}\ns_cbranch_scc1 P2_FALL\nP2_FIN:")
    for k, g in enumerate((0, 1, 2)):
        A(f"s_waitcnt lgkmcnt({6 - 3*k})"); red(g)
    for r in range(0, 16, 2): A(f"v_pk_mul_f32 {v(O+r,2)}, {v(O+r,2)}, {v(T2,2)} op_sel_hi:[1,0]")
    for r in range(8): A(f"v_cvt_pk_bf16_f32 v{O+16+r}, v{O+2*r}, v{O+2*r+1}")
    A(f"v_cndmask_b32 v{O+22}, v{O+22}, 0, s[{sHI}:{sHI+1}]\nv_cndmask_b32 v{O+23}, v{O+23}, 0, s[{sHI}:{sHI+1}]")
    A(f"s_mov_b32 s{sT}, 0xfffeffff\nv_and_or_b32 v{O+19}, v{O+19}, s{sT}, 1\nv_and_or_b32 v{O+23}, v{O+23}, s{sT}, 1")
    for f in range(2): A(f"buffer_store_dwordx4 {v(O+16+4*f,4)}, v{VL}, {R(RWS)}, s{sV} offen offset:{f*1024} sc1")
    stamp("ost")
    if STAMP and env("ACK", 0): A("s_waitcnt vmcnt(0)"); stamp("oack")
    stamp_flush()
    A("s_barrier")
    def fallback():
        A(f"P2_FALL:\ns_cmp_lg_u32 s{sRETRY}, 0\ns_cbranch_scc1 P2_FIN")
        A(f"s_mov_b32 s{sRETRY}, -1\ns_waitcnt vmcnt(0) lgkmcnt(0)")
        for t in range(4):
            A(f"v_cndmask_b32 v{Q+8*t+6}, v{Q+8*t+6}, 0, s[{sHI}:{sHI+1}]\nv_cndmask_b32 v{Q+8*t+7}, v{Q+8*t+7}, 0, s[{sHI}:{sHI+1}]\nv_mov_b32 v{M[t]}, 0xff800000")
        A(f"s_mov_b32 s{sU}, 0\nP2_MAXLOOP:")
        for f in range(2): A(f"buffer_load_dwordx4 {v(K0+4*f,4)}, v{VKV}, {R(RWS)}, s{sU} offen offset:{f*1024} sc1")
        A("s_waitcnt vmcnt(0)")
        for t in range(4):
            A(f"{MFMA} {v(O+16*t,16)}, {v(K0,4)}, {v(Q+8*t,4)}, 0\n{MFMA} {v(O+16*t,16)}, {v(K0+4,4)}, {v(Q+8*t+4,4)}, {v(O+16*t,16)}")
        for t in range(4):
            tilemax(O+16*t, T0, T1); A(f"v_max3_f32 v{M[t]}, v{M[t]}, v{T0}, v{T1}")
        A(f"s_add_u32 s{sU}, s{sU}, 4096\ns_cmp_lt_u32 s{sU}, {16*4096}\ns_cbranch_scc1 P2_MAXLOOP")
        A(f"s_barrier\nv_and_b32 v{T3}, 31, v1\nv_lshlrev_b32 v{T3}, 4, v{T3}")
        for t in range(4):
            A(f"v_mov_b32 v{T2}, v{M[t]}\nv_permlane32_swap_b32 v{M[t]}, v{T2}\nv_max_f32 v{M[t]}, v{M[t]}, v{T2}")
            A(f"s_add_u32 s{sT}, s{SW}, {t}\ns_and_b32 s{sT}, s{sT}, 3\ns_lshl_b32 s{sT}, s{sT}, 9\ns_add_u32 s{sT}, s{sT}, {RBUF}\ns_lshl_b32 s{sU}, s{SW}, 2\ns_add_u32 s{sU}, s{sU}, s{sT}")
            A(f"v_add_u32 v{K0+t}, s{sT}, v{T3}\nv_add_u32 v{T2}, s{sU}, v{T3}\nds_write_b32 v{T2}, v{M[t]}")
        A("s_waitcnt lgkmcnt(0)\ns_barrier")
        for t in range(4): A(f"ds_read_b128 {v(O+4*t,4)}, v{K0+t}")
        for n in range(4):
            for ln in kvload(n): A(ln)
        A("s_waitcnt vmcnt(0) lgkmcnt(0)\ns_barrier")
        for t in range(4):
            A(f"v_max3_f32 v{M[t]}, v{O+4*t}, v{O+4*t+1}, v{O+4*t+2}\nv_max_f32 v{M[t]}, v{M[t]}, v{O+4*t+3}")
            set_qpad(Q+8*t, M[t], T0, T1, T2)
        A(qk(0, 0)); A(qk(0, 1))
        A("s_branch P2_MAIN")
    return fallback

def p3():
    EP = env("EP", 0)
    D1, D2, TF = 96, 112, 80 if EP else 176
    ofr = (lambda ks: 16 + 4*(ks & 15)) if EP else (lambda ks: 16 + 4*ks if ks < 20 else 128 + 4*(ks - 20))
    T0, T1, T2, T3 = 8, 9, 4, 5
    if NKV > 4: ident3(); A("s_waitcnt vmcnt(2)")
    A(f"{MFMA} {v(D1,16)}, {v(XR,4)}, {v(IR3,4)}, 0\n{MFMA} {v(D2,16)}, {v(IR3,4)}, {v(XR,4)}, 0")
    A(f"{MFMA} {v(D1,16)}, {v(XR+4,4)}, {v(IR3+4,4)}, {v(D1,16)}\n{MFMA} {v(D2,16)}, {v(IR3+4,4)}, {v(XR+4,4)}, {v(D2,16)}")
    for sl in range(1, 4):
        A(f"s_xor_b32 s{sU}, s{SW}, {sl}\ns_mul_i32 s{sU}, s{sU}, 12288\ns_add_u32 s{sU}, s{sU}, {RBUF}\nv_add_u32 v{VRW[sl]}, s{sU}, v{VL}")
    A(f"s_barrier\ns_cmp_lt_u32 s{sC3}, 14\ns_cbranch_scc0 P3_END")
    vm.q = []; lg.q = []
    so = Stream("SO", 8, lambda g: [(ofr(4*g+k), VO3[k >> 1], (k & 1)*1024) for k in range(4)],
                lambda g: A(f"s_add_u32 s{sT}, s{sRT3}, {g << 18}\ns_and_b32 s{sT}, s{sT}, 0x1fffff"), T0, 1, VP3, T1, None, None if env("GT3", 0) else 0)
    NPRE = env("NPRE", 4)
    if env("LOC3", 1):
        A(f"s_lshr_b32 s{sT}, s{sR3}, 2\ns_lshl_b32 s{sT}, s{sT}, 8\ns_add_u32 s{sT}, s{sT}, {F4}\nv_min_u32 v6, 13, v1\nv_lshlrev_b32 v6, 4, v6\nbuffer_load_dwordx4 {v(192,4)}, v6, {R(RWS)}, s{sT} offen sc1")
    stamp("p3pre")
    for m in range(NPRE): so.issue(m)
    stamp("p3gate")
    LAG = env("LAG", 8)
    tf = lambda ks: TF + 4*(ks & 3) if ks < 32 - LAG else 192 + 4*(ks - 32 + LAG)
    def wread(ks):
        n, p = ks >> 1, ks & 1
        for half in range(2):
            A(f"ds_read_b64_tr_b16 {v(tf(ks)+2*half,2)}, v{VWO} offset:{(n>>2)*12288 + (n&3)*2048 + (16*p+8*half)*64}"); lg.issue(f"w{ks}")
    wread(0); wread(1)
    A("v_and_b32 v6, 31, v1\nv_lshlrev_b32 v6, 4, v6\nv_lshrrev_b32 v7, 5, v1\nv_mul_u32_u24 v7, 3584, v7\nv_add_u32 v6, v6, v7")
    so.check1(0); so.check2(0)
    if env("LOC3", 1):
        A(f"s_getreg_b32 s{sV}, hwreg(HW_REG_XCC_ID, 0, 4)\nv_xor_b32 v192, s{sV}, v192\nv_xor_b32 v193, s{sTAG}, v193\nv_xor_b32 v194, s{sV}, v194\nv_xor_b32 v195, s{sTAG+1}, v195")
        A(f"v_or3_b32 v192, v192, v193, v194\nv_or_b32 v192, v192, v195\nv_cmp_ne_u32 vcc, 0, v192\ns_or_b32 s{sE}, vcc_lo, vcc_hi")
    for ks in range(32):
        lg.wait(f"w{ks}")
        if ks in (0, 16): stamp(f"p3_{ks}")
        o, wv = v(ofr(ks), 4), v(tf(ks), 4)
        A(f"{MFMA} {v(D2,16)}, {wv}, {o}, {v(D2,16)}")
        if ks + 2 < 32 - LAG: wread(ks + 2)
        if 32 - 2*LAG - 2 <= ks < 32 - LAG - 2: wread(ks + LAG + 2)
        if ks < 32 - LAG: A(f"{MFMA} {v(D1,16)}, {o}, {wv}, {v(D1,16)}")
        if ks % 4 < 2:
            for k in range(2): so.issue_part(NPRE + ks//4, 2*(ks % 4) + k)
        if ks % 4 == 2: so.check1(ks//4 + 1)
        if ks % 4 == 3: so.check2(ks//4 + 1)
    stamp("p3mm")
    G = 16
    A(f"s_lshl_b32 s{sB}, s{sR3}, 13\ns_add_u32 s{sB}, s{sB}, {WS_ST}\ns_lshl_b32 s{sT}, s{sC3}, 9\ns_add_u32 s{sT}, s{sT}, s{sB}")
    A(f"v_mov_b32 v{G+1}, s{sTAG}\nv_mov_b32 v{G+3}, s{sTAG+1}")
    A(f"v_pk_add_f32 v[20:21], {v(D2,2)}, {v(D2+2,2)}\nv_pk_mul_f32 v[22:23], {v(D2,2)}, {v(D2,2)}\nv_pk_fma_f32 v[22:23], {v(D2+2,2)}, {v(D2+2,2)}, v[22:23]")
    for r in range(4, 16, 2): A(f"v_pk_add_f32 v[20:21], v[20:21], {v(D2+r,2)}\nv_pk_fma_f32 v[22:23], {v(D2+r,2)}, {v(D2+r,2)}, v[22:23]")
    A(f"v_add_f32 v{G}, v20, v21\nv_add_f32 v{G+2}, v22, v23")
    A(f"v_mov_b32 v20, v{G}\nv_mov_b32 v22, v{G+2}\nv_permlane32_swap_b32 v{G}, v20\nv_permlane32_swap_b32 v{G+2}, v22\nv_add_f32 v{G}, v{G}, v20\nv_add_f32 v{G+2}, v{G+2}, v22")
    set_exec(0xFFFFFFFF)
    if env("LOC3", 1):
        A(f"s_cmp_lg_u32 s{sE}, 0\ns_cbranch_scc1 P3_FAR\nbuffer_store_dwordx4 {v(G,4)}, v{VL}, {R(RWS)}, s{sT} offen\nP3_FARX:\ns_mov_b64 exec, -1")
        handlers.append(lambda: A(f"P3_FAR:\nbuffer_store_dwordx4 {v(G,4)}, v{VL}, {R(RWS)}, s{sT} offen sc1\ns_branch P3_FARX"))
    else: A(f"buffer_store_dwordx4 {v(G,4)}, v{VL}, {R(RWS)}, s{sT} offen sc1\ns_mov_b64 exec, -1")
    GR = 32
    def gl():
        for k in range(7): A(f"buffer_load_dwordx4 {v(GR+4*k,4)}, v6, {R(RWS)}, s{sB} offen offset:{k*512} sc1")
    for r in range(8): A(f"v_cvt_pk_bf16_f32 v{24+r}, v{D2+2*r}, v{D2+2*r+1}")
    A(f"s_mul_i32 s{sT}, s{sR3}, 14\ns_add_u32 s{sT}, s{sT}, s{sC3}\ns_lshl_b32 s{sT}, s{sT}, 11\ns_add_u32 s{sT}, s{sT}, {WS_HF}")
    if env("S3W", 0): A("s_waitcnt vmcnt(0)")
    stamp("s3pre")
    for ks in range(32 - LAG, 32): A(f"{MFMA} {v(D1,16)}, {v(ofr(ks),4)}, {v(tf(ks),4)}, {v(D1,16)}")
    gl()
    for p in range(2): A(f"buffer_store_dwordx4 {v(24+4*p,4)}, v{VL}, {R(RWS)}, s{sT} offen offset:{p*1024} sc1")
    A("s_waitcnt vmcnt(2)")
    tagcheck([GR+4*k for k in range(7)], T1, T2, T3)
    A("s_cbranch_vccnz P3_GH\nP3_GX:")
    def gh():
        A(f"P3_GH:\ns_mov_b32 s{sTO}, 0x8000\nP3_GL:"); gl()
        A(f"s_sub_u32 s{sTO}, s{sTO}, 1\ns_waitcnt vmcnt(0)\ns_cbranch_scc1 P3_GX")
        tagcheck([GR+4*k for k in range(7)], T1, T2, T3)
        A("s_cbranch_vccnz P3_GL\ns_branch P3_GX")
    handlers.append(gh)
    vm.q = []
    stamp("s3")
    for k in range(1, 7): A(f"v_add_f32 v{GR}, v{GR}, v{GR+4*k}\nv_add_f32 v{GR+2}, v{GR+2}, v{GR+4*k+2}")
    m, q = GR, GR+2
    A(f"v_mov_b32 v{T0}, v{m}\nv_mov_b32 v{T1}, v{q}\nv_permlane32_swap_b32 v{m}, v{T0}\nv_permlane32_swap_b32 v{q}, v{T1}\nv_add_f32 v{m}, v{m}, v{T0}\nv_add_f32 v{q}, v{q}, v{T1}")
    A(f"v_mul_f32 v{m}, {fl(1.0/D)}, v{m}\nv_mul_f32 v{q}, {fl(1.0/D)}, v{q}\nv_fma_f32 v{q}, -v{m}, v{m}, v{q}\nv_max_f32 v{q}, 0, v{q}")
    A(f"v_add_f32 v{T0}, {fl(EPS)}, v{q}\nv_mul_f32 v{T0}, {fl(EPS)}, v{T0}\nv_add_f32 v{q}, v{q}, v{T0}\nv_rsq_f32 v{q}, v{q}\ns_add_u32 s{sT}, s{sRBW}, 8192\nv_mul_f32 v{m}, v{m}, v{q}")
    A(f"v_cndmask_b32 v{T0}, v{q}, v{m}, s[{sHI}:{sHI+1}]\nv_lshl_add_u32 v{T1}, v1, 2, s{sT}\nds_write_b32 v{T1}, v{T0}")
    A(f"v_lshrrev_b32 v{T2}, 5, v1\nv_lshl_add_u32 v{T2}, v{T2}, 4, s{sT}")
    for g in range(4): A(f"ds_read_b128 {v(64+4*g,4)}, v{T2} offset:{g*32}\nds_read_b128 {v(80+4*g,4)}, v{T2} offset:{128+g*32}")
    A(f"s_lshl_b32 s{sT}, s{sC3}, 17\ns_lshl_b32 s{sU}, s{sR3}, 11\ns_add_u32 s{sT}, s{sT}, s{sU}\ns_add_u32 s{sT}, s{sT}, {WS_HH}")
    for p in range(2):
        A(f"s_waitcnt lgkmcnt({4 - 4*p})")
        for r in range(8*p, 8*p+8, 2): A(f"v_pk_fma_f32 {v(D1+r,2)}, {v(D1+r,2)}, {v(64+r,2)}, {v(80+r,2)} neg_lo:[0,0,1] neg_hi:[0,0,1]")
        for r in range(4*p, 4*p+4): A(f"v_cvt_pk_bf16_f32 v{16+r}, v{D1+2*r}, v{D1+2*r+1}")
        A(f"v_or_b32 v{19+4*p}, 0x10000, v{19+4*p}")
        if p == 0: A("s_waitcnt vmcnt(0)")
        A(f"buffer_store_dwordx4 {v(16+4*p,4)}, v{VL}, {R(RWS)}, s{sT} offen offset:{p*1024} sc1")
    stamp("hhst")
    if STAMP and env("ACK", 0): A("s_waitcnt vmcnt(0)"); stamp("hhack")
    stamp_flush()
    A("P3_END:")
    preread()
    A("s_waitcnt lgkmcnt(0)\ns_barrier")
    if env("X1B", 1): A("s_barrier")
    vm.q = []; lg.q = []

ACC, RING, TMP = 16, 48, 96
def wread_step(r, m, slot, tag=None):
    for ti in range(2):
        for half in range(2):
            A(f"ds_read_b64_tr_b16 {v(r.W + 8*m + ti*4 + half*2, 2)}, v{r.VRD[ti]} offset:{slot*2048 + half*1024}")
            if tag is not None: lg.issue(tag)
def unswap(r): A(f"s_and_b32 s{sT}, s{SW}, 1\ns_lshl_b32 s{sT}, s{sT}, 5\nv_xor_b32 v{r.VRD[0]}, s{sT}, v{r.VRD[0]}\nv_xor_b32 v{r.VRD[1]}, s{sT}, v{r.VRD[1]}")
def preread():
    for n in range(RA.c4): wread_step(RA, n, n)
    unswap(RA)
def w2soff(n): A(f"s_add_u32 s{sA}, s{sGC}, {n*1024}\ns_sub_u32 s{sB}, s{sA}, {28*1024}\ns_min_u32 s{sA}, s{sA}, s{sB}\ns_lshl_b32 s{sA}, s{sA}, 6")
def w2dma(r, m):
    w2soff(r.n5 + m)
    A(f"s_add_u32 m0, s{sW2W}, {r.slots[m % len(r.slots)]*2048}")
    for j in range(2): A(f"buffer_load_dwordx4 v{r.VT2[j]}, {R(RW2)}, s{sA} offen offset:{j*1024} lds"); vm.issue(("d", m))
def w2read(r, m):
    vm.wait(("d", m)); wread_step(r, m, r.slots[m % len(r.slots)], ("r", m))

def mlp(r, VDR=None, VDW=None):
    isA = r is RA
    N, L = r.n, len(r.slots)
    BR, B2R, VO, IR, HR = 6, 10, 12, 224, 228
    G4, G5 = r.c4 // 4, r.c5 // 4
    dreg = lambda t, k: RING + (t % 3)*16 + 4*k
    def pw(q, j):
        if isA: return f"ds_write_b128 v{VRW[0]}, {v(ACC+8*q+4*j,4)} offset:{(q-1)*2048 + j*1024}"
        return f"ds_write_b128 v{VDR if q < 3 else VDW}, {v(ACC+8*q+4*j,4)} offset:{(6144 + q*2048 if q < 3 else 13*2048) + j*1024}"
    def add(d, a_, b_, pk):
        if pk:
            for k in range(0, 4, 2): A(f"v_pk_add_f32 {v(d+k,2)}, {v(a_+k,2)}, {v(b_+k,2)}")
        else:
            for k in range(4): A(f"v_add_f32 v{d+k}, v{a_+k}, v{b_+k}")
    OWN = 232
    def gather(pk, wide, mid=None):
        src = lambda j: [(VRW[q], (q-1)*2048 + j*1024) for q in range(1, 4)] + [(VRW[q], 6144 + q*2048 + j*1024) for q in range(3)] + [(VX3, j*1024)]
        base = [TMP, ACC if wide else TMP]
        def rd(j):
            for k, (va, off) in enumerate(src(j)): A(f"ds_read_b128 {v(base[j]+4*k,4)}, v{va} offset:{off}")
        def sm(j):
            b, o = base[j], OWN + 4*j
            add(b, b, b+4, pk); add(b+8, b+8, b+12, pk); add(b+16, b+16, b+20, pk); add(o, o, b+24, pk)
            add(b, b, b+8, pk); add(o, o, b+16, pk); add(o, o, b, pk)
        if wide:
            rd(0); rd(1)
            if mid: mid()
            A("s_waitcnt lgkmcnt(7)"); sm(0); A("s_waitcnt lgkmcnt(0)"); sm(1)
        else:
            for j in range(2): rd(j); A("s_waitcnt lgkmcnt(0)"); sm(j)
    def p5setup():
        A(f"v_and_b32 v6, 31, v1\nv_lshrrev_b32 v7, 5, v1\nv_mul_u32_u24 v{VO}, 896, v6\nv_lshl_add_u32 v{VO}, v7, 4, v{VO}\ns_lshr_b32 s{sA}, s{SW}, 1\ns_lshl_b32 s{sB}, s{sST}, 1\ns_add_u32 s{sA}, s{sA}, s{sB}")
        A(f"s_mul_i32 s{sE}, s{sA}, {32*896}\ns_lshl_b32 s{sB}, s{sDT5}, 7\ns_add_u32 s{sE}, s{sE}, s{sB}\ns_and_b32 s{sB}, s{SW}, 1\ns_lshl_b32 s{sB}, s{sB}, 5\ns_add_u32 s{sE}, s{sE}, s{sB}")
        A(f"s_lshl_b32 s{sA}, s{sA}, 6\nv_lshlrev_b32 v8, 1, v6\nbuffer_load_ushort v{B2R}, v8, {R(RB2)}, s{sA} offen\nv_lshlrev_b32 v7, 2, v7\nv_sub_u32 v6, v6, v7")
        for k in range(4):
            d0 = 8*(k >> 1) + 2*(k & 1)
            A(f"v_cmp_eq_u32 s[{sA}:{sA+1}], {d0}, v6\nv_cmp_eq_u32 s[{sC}:{sC+1}], {d0+1}, v6\nv_cndmask_b32 v{IR+k}, 0, v{VONE}, s[{sA}:{sA+1}]\nv_cndmask_b32 v{IR+k}, v{IR+k}, v{VONE+1}, s[{sC}:{sC+1}]")
    mk5 = lambda nm: Stream(nm + N, 2*G5, lambda g: [(dreg(2*G4 + g, k), r.VG, k*1024) for k in range(4)],
                lambda g: A(f"s_add_u32 s{sT}, s{sGC}, {(r.n5 + (g % G5)*4)*1024}\ns_sub_u32 s{sU}, s{sT}, {28*1024}\ns_min_u32 s{sT}, s{sT}, s{sU}" + (f"\ns_add_u32 s{sT}, s{sT}, {112*1024}" if g >= G5 else "")),
                r.T0, 1, r.VP5, r.T1, lambda g: (1 << 2*G5) - 1, G5)
    NP5 = min(3, G5)
    DB0 = env("DB0", 4)
    R2E, NE3 = env("R2E", 0), max(0, r.c5 - 2*L)
    A(f"s_cmp_lg_u32 s{sACT4}, 0\ns_cbranch_scc1 P4_GO{N}\ns_cmp_ge_u32 s{sJ}, 28\ns_cbranch_scc1 MLP_END{N}")
    q0 = list(vm.q); lg.q = []
    A("s_waitcnt lgkmcnt(0)\ns_barrier")
    if not isA and env("DL", 0) == 2:
        for m in range(1, 7): w2dma(r, m)
    for m in range(L): w2read(r, m)
    lg.wait_all()
    for m in range(L, min(2*L, r.c5)): w2dma(r, m)
    if R2E and NE3:
        for m in range(L, L + NE3): w2read(r, m)
        lg.wait_all()
        for m in range(2*L, r.c5): w2dma(r, m)
    si = mk5("SI")
    if isA: p5setup()
    for g in range(G5): si.gate(g)
    si.gated = 0
    for g in range(NP5): si.issue(g)
    ER = {2: env("ER2", 2), 3: env("ER3", -1)}
    RL = env("RL", 1)
    if isA and ER[2] >= 0: A("s_barrier")
    A(f"s_branch P5_IN{N}\nP4_GO{N}:")
    vm.q = q0; lg.q = []
    sg = mk5("SG"); sg.gated = 0
    A(f"s_mov_b32 s{sV}, 0x10000")
    if isA:
        A(f"s_lshl_b32 s{sA}, s{sFO}, 5\nv_lshrrev_b32 v{r.T0}, 5, v1\nv_lshlrev_b32 v{r.T0}, 3, v{r.T0}")
        for g in range(2): A(f"buffer_load_dwordx2 {v(BR+2*g,2)}, v{r.T0}, {R(RB1)}, s{sA} offen offset:{g*16}")
        if env("ACKW", 0): A("s_waitcnt vmcnt(0)")
    sh = Stream("SH" + N, 2*G4, lambda g: [(dreg(g, k), r.VH, k*1024) for k in range(4)],
                lambda g: A(f"s_add_u32 s{sT}, s{sRO}, {(r.n4 + (g % G4)*4)*1024}\ns_and_b32 s{sT}, s{sT}, 0x7fff" + (f"\ns_bitset1_b32 s{sT}, 17" if g >= G4 else "")),
                r.T0, f"s{sV}", r.VP4, r.T1, lambda g: (1 << 2*G4) - 1, G4 if env("GT4", 2) else 0)
    if env("GT4", 2) == 2: A(f"s_cmp_lt_u32 s{sC3}, 14\ns_cselect_b32 s{sMISS}, 0, s{sMISS}")
    seq = [(sh, g) for g in range(2*G4)] + [(sg, g) for g in range(2*G5)]
    first = [0, G4, 2*G4, 2*G4 + G5, len(seq)]
    RA5 = env("RA5", 2)
    late = {2} if RA5 == 1 else ({2} | ({3} if isA else set()) if RA5 == 2 else {2, 3})
    issued = set()
    stamp("p4pre" + N)
    for g in range(3): sh.issue(g); issued.add(g)
    sh.check1(0); sh.check2(0)
    c1 = -2.0*math.sqrt(2.0/math.pi)*math.log2(math.e); c2 = c1*0.044715
    def compute(H):
        ph, hf = H >> 1, H & 1
        ns = (r.c4, r.c5)[ph]
        nm = f"p{4+ph}"
        if H == 2: A(f"P5_IN{N}:")
        if H in late: seq[first[H]][0].check1(seq[first[H]][1]); seq[first[H]][0].check2(seq[first[H]][1])
        if ph and isA:
            A(f"buffer_load_dwordx4 {v(HR,4)}, v{VL}, {R(RWS)}, s{sHFO} offen offset:{hf*2048} sc1"); vm.issue("h")
        if H == 2 and isA:
            for m in range(L, r.c5): wread_step(r, m, r.slots[m % L], ("r", m))
        stamp(f"{nm}first{hf}" + N)
        for t in range(first[H], first[H+1]):
            n0 = 4*(t - first[H])
            stamp(f"t{N}{t}")
            tail = not isA and t == first[H+1] - 1
            head = not isA and t == first[H] and H > 0 and H not in late
            order = [(k, ti) for ti in (1, 0) for k in range(4)] if (tail or head) else [(k, ti) for k in range(4) for ti in (0, 1)]
            nxt = t + 2
            can = nxt < len(seq) and nxt not in issued and not (nxt >= first[H+1] and H + 1 in late)
            for sl, (k, ti) in enumerate(order):
                n = n0 + k
                if not isA and H > 0 and (t, sl) == ((first[2] - 2, 0) if H == 1 else ((first[H] + ER[H], 0) if ER[H] >= 0 else (first[H+1] - 1, 4))): A("s_barrier")
                if H == 2: lg.wait(("r", n))
                if head and sl == 4: A("s_waitcnt lgkmcnt(0)\ns_barrier"); lg.q = []
                acc = v(ACC + 16*ti, 16); w_, d_ = v(r.W + 8*n + 4*ti, 4), v(dreg(t, k), 4)
                A(f"{MFMA} {acc}, {d_ if ph else w_}, {w_ if ph else d_}, {'0' if n == 0 else acc}")
                if head and sl < 4: A(pw(sl >> 1, sl & 1))
                if tail and sl >= 4: A(pw(2 + ((sl - 4) >> 1), sl & 1))
                if can and sl < 4: seq[nxt][0].issue_part(seq[nxt][1], sl)
                if t + 1 < len(seq) and not (t + 1 == first[H+1] and H + 1 in late):
                    if sl == 5: seq[t+1][0].check1(seq[t+1][1])
                    if sl == 6: seq[t+1][0].check2(seq[t+1][1])
                done = (ti == 0) if (tail or head) else (ti == 1)
                if H == 1 and done:
                    if n < L: w2read(r, n)
                    if not isA and DB0 <= n < DB0 + L: lg.wait(("r", n - DB0)); w2dma(r, n - DB0 + L)
                    if not isA and R2E:
                        if R2E <= n < R2E + NE3: w2read(r, n - R2E + L)
                        if R2E + 1 <= n < R2E + 1 + NE3: lg.wait(("r", n - R2E - 1 + L)); w2dma(r, n - R2E - 1 + 2*L)
                if H == 0 and not isA and done and env("DL", 0) == 2 and n % 3 == 2 and n < 18: w2dma(r, 1 + n // 3)
                if H == 2 and not isA and done:
                    if L + (NE3 if R2E else 0) <= n + 4 < 2*L: w2read(r, n + 4)
                    if not R2E and 2*L <= n + 10 < r.c5: lg.wait(("r", n + 3)); w2dma(r, n + 10)
                    if 2*L <= n + 4 < r.c5: w2read(r, n + 4)
            if can: issued.add(nxt)
        if ph and isA:
            vm.wait("h")
            A(f"{MFMA} {v(ACC,16)}, {v(IR,4)}, {v(HR,4)}, {v(ACC,16)}")
        stamp(f"{nm}mm{hf}" + N)
    def late_issue(H):
        for t in range(first[H], min(first[H] + 3, first[H+1])): seq[t][0].issue(seq[t][1]); issued.add(t)
    def partials(H):
        if (H == 1 and env("RA4", 1)) or (H > 1 and ER[H] < 0): A("s_barrier")
        for q in (2, 3, 1):
            for j in range(2): A(pw(q, j))
        if H < 2:
            for j in range(4): A(f"v_lshlrev_b32 v{TMP}, 16, v{BR+j}\nv_and_b32 v{TMP+1}, 0xffff0000, v{BR+j}\nv_add_f32 v{OWN+2*j}, v{ACC+2*j}, v{TMP}\nv_add_f32 v{OWN+2*j+1}, v{ACC+2*j+1}, v{TMP+1}")
        else:
            if H == 2: A(f"v_lshlrev_b32 v{B2R}, 16, v{B2R}")
            for k in range(8): A(f"v_add_f32 v{OWN+k}, v{ACC+k}, v{B2R}")
    def epilogue(H):
        ph, hf = H >> 1, H & 1
        A("s_waitcnt lgkmcnt(0)\ns_barrier"); lg.q = []
        stamp(f"red{4+ph}{hf}")
        LI = env("LI", 2) if H == 1 else 0
        if (H == 1 or (H == 2 and not RA5)) and LI == 0: late_issue(H + 1)
        if env("PRIO", 1): A("s_setprio 2")
        gather(H == 3, H & 1 or (H == 2 and not RA5) or (H == 0 and not env("RA4", 1)), (lambda: seq[first[2]][0].issue(0)) if H == 1 and LI == 2 else None)
        if ph == 0:
            A(f"s_mov_b32 s{sA}, {fl(c2)}\nv_mov_b32 v{TMP}, {fl(c1)}")
            E = TMP + 8
            for k in range(8): A(f"v_mul_f32 v{E+k}, v{OWN+k}, v{OWN+k}")
            for k in range(8): A(f"v_fma_f32 v{E+k}, v{E+k}, s{sA}, v{TMP}")
            for k in range(8): A(f"v_mul_f32 v{E+k}, v{E+k}, v{OWN+k}")
            for k in range(8): A(f"v_exp_f32 v{E+k}, v{E+k}")
            for k in range(8): A(f"v_add_f32 v{E+k}, 1.0, v{E+k}")
            for k in range(8): A(f"v_rcp_f32 v{E+k}, v{E+k}")
            for k in range(8): A(f"v_mul_f32 v{OWN+k}, v{OWN+k}, v{E+k}")
        for k in range(4): A(f"v_cvt_pk_bf16_f32 v{TMP+4+k}, v{OWN+2*k}, v{OWN+2*k+1}")
        if ph == 0:
            A(f"v_or_b32 v{TMP+7}, 1, v{TMP+7}\nbuffer_store_dwordx4 {v(TMP+4,4)}, v{VL}, {R(RWS)}, s{sGST} offen sc1\ns_add_u32 s{sGST}, s{sGST}, {112*1024}")
        else:
            A(f"v_permlane32_swap_b32 v{TMP+4}, v{TMP+6}\nv_permlane32_swap_b32 v{TMP+5}, v{TMP+7}\nbuffer_store_dwordx4 {v(TMP+4,4)}, v{VO}, {R(ROUT)}, s{sE} offen offset:{hf*64}" + [os.environ.get("OF0", " sc1"), os.environ.get("OF1", "")][hf])
        stamp(("gst", "outst")[ph] + str(hf))
        if (H == 1 or (H == 2 and not RA5)) and LI == 1: late_issue(H + 1)
        if H == 1 and LI == 2:
            for t in range(first[2], first[2] + NP5):
                if t > first[2]: seq[t][0].issue(seq[t][1])
                issued.add(t)
        if H in (1, 2) and ER[H+1] >= 0: A("s_barrier")
        stamp_flush()
    if isA:
        if env("PRIO", 1): A("s_setprio 2")
        compute(0); partials(0); stamp_flush()
        RA4 = env("RA4", 1)
        if not RA4: epilogue(0); A("s_barrier")
        elif env("PRIO", 1): A("s_setprio 0")
        compute(1)
        if env("DA", 1) == 1:
            lg.wait_all()
            for m in range(L, r.c5): w2dma(r, m)
        if RA4: epilogue(0)
        partials(1); p5setup()
        if env("LI", 2) == 3: late_issue(2)
        if env("DA", 1) == 0:
            for m in range(L, r.c5): w2dma(r, m)
        epilogue(1)
        compute(2)
        if RA5:
            if RA5 == 2: late_issue(3)
            partials(2); stamp_flush()
            if env("PRIO", 1): A("s_setprio 0")
            compute(3); epilogue(2); partials(3); epilogue(3)
        else:
            partials(2); epilogue(2); compute(3); partials(3); epilogue(3)
    else:
        if env("PRIO", 1): A("s_setprio 1")
        for H in range(4):
            compute(H)
            if H == 3 or H + 1 in late:
                for q in range(2):
                    for j in range(2): A(pw(q, j))
                if H == 2: late_issue(H + 1)
                A("s_waitcnt lgkmcnt(0)\ns_barrier"); lg.q = []
                if H == 1:
                    if env("G2", 0):
                        sg.gated = G5; A(f"s_mov_b32 s{sMISS}, {(1 << 2*G5) - 1}")
                    late_issue(H + 1); sg.gated = 0
            stamp_flush()
    A(f"MLP_END{N}:")

def finish():
    A(f"s_or_b32 s{sT}, s2, s{SW}\ns_cbranch_scc1 K_FIN\nv_mov_b32 v4, 0\nv_mov_b32 v5, 0\ns_mov_b64 exec, 1\nbuffer_store_dwordx2 v[4:5], v4, {R(RDBG)}, 0 offen sc1\ns_mov_b64 exec, -1")
    A("K_FIN:")
    if os.environ.get("DIAGAT"):
        A(f"DSP:\ns_memrealtime s[{sA}:{sA+1}]\ns_waitcnt lgkmcnt(0)\ns_sub_u32 s{sA}, s{sA}, s72\ns_cmp_lt_u32 s{sA}, 4000\ns_cbranch_scc1 DSP")
    if STAMP:
        A("s_waitcnt vmcnt(0)"); stamp("end"); A(f"s_memrealtime s[{sA}:{sA+1}]"); stamp_flush()
        A(f"v_writelane_b32 v{VST}, s72, 62\nv_writelane_b32 v{VST}, s{sA}, 63")
        A(f"s_lshl_b32 s{sT}, s2, 3\ns_add_u32 s{sT}, s{sT}, s{sW8}\ns_lshl_b32 s{sT}, s{sT}, 8\ns_add_u32 s{sT}, s{sT}, {WS_STAMP}\nv_lshlrev_b32 v4, 2, v1\nbuffer_store_dword v{VST}, v4, {R(RWS)}, s{sT} offen")
    A("K_END:\ns_endpgm")

def bprog():
    NT = env("NT", 0); nt = " nt" if NT else ""
    nt1 = " nt" if env("NT1", 0) else ""
    VXD = [16, 17, 18, 19]; VXE = [20, 21]; VWD = list(range(22, 29))
    sWO, sXO, sM, sWM = sA, sB, sC, sD_
    sXP, sWP = [sW1, sW1S, sW1E], [sW2, sW2S, sW2E]
    A("B_P1:"); vm.q = []; lg.q = []
    p1_common()
    A(f"s_mul_i32 s{sXO}, s{sE}, {32*896}\ns_lshl_b32 s{sWM}, s{SW}, 10")
    A("v_lshrrev_b32 v4, 4, v1\nv_and_b32 v5, 15, v1\nv_xor_b32 v5, v5, v4\nv_mul_u32_u24 v6, 896, v4")
    for j in range(4): A(f"v_xor_b32 v7, {4*j}, v5\nv_lshl_add_u32 v7, v7, 4, v6\nv_add_u32 v{VXD[j]}, {j*4*896 - j*1024}, v7")
    A(f"s_lshr_b32 s{sT}, s{sJ}, 2\ns_and_b32 s{sU}, s{sJ}, 3\ns_add_u32 s{sT}, s{sT}, s{sU}\ns_mul_i32 s{sU}, s{sT}, 11\ns_lshr_b32 s{sU}, s{sU}, 5\ns_mul_i32 s{sU}, s{sU}, 3\ns_sub_u32 s{sT}, s{sT}, s{sU}")
    if not env("P1ROT", 1): A(f"s_mov_b32 s{sT}, 0")
    for p in range(3):
        A(f"s_lshl_b32 s{sU}, s{sT}, 8\ns_add_u32 s{sXP[p]}, s{sXO}, s{sU}\ns_mul_i32 s{sU}, s{sT}, {128*2688}\ns_add_u32 s{sWP[p]}, s{sWO}, s{sU}")
        if p < 2: A(f"s_add_u32 s{sT}, s{sT}, 1\ns_cmp_eq_u32 s{sT}, 3\ns_cselect_b32 s{sT}, 0, s{sT}")
    def xpiece(p):
        if p < 3:
            for j in range(8):
                if j % 4 == 0: A(f"s_add_u32 m0, s{sM}, {XBUF[p] + (j>>2)*4096}\ns_add_u32 s{sV}, s{sXP[p]}, {(j>>2)*16*896}")
                A(f"buffer_load_dwordx4 v{VXD[j&3]}, {R(RX)}, s{sV} offen offset:{(j&3)*1024}{nt1} lds"); vm.issue(f"x{p}")
        else:
            for j in range(4):
                A(f"s_add_u32 m0, s{sM}, {XBUF[p] + j*1024}\ns_add_u32 s{sV}, s{sXO}, {(j>>1)*16*896 + 768}\nbuffer_load_dwordx4 v{VXE[j&1]}, {R(RX)}, s{sV} offen{nt1} lds"); vm.issue(f"x{p}")
    def wdma(j):
        g = j // 7
        if g == 3 and j == 21: A(f"s_add_u32 s{sT}, s{sWO}, {3*128*2688}")
        A(f"s_add_u32 m0, s{sWM}, {j*4096}\nbuffer_load_dwordx4 v{VWD[j%7]}, {R(RWQ)}, s{sWP[g] if g < 3 else sT} offen{nt1} lds"); vm.issue(f"w{g}")
    A("s_waitcnt lgkmcnt(0)")
    xpiece(0)
    for j in range(7):
        A(f"v_add_u32 v4, {256*j}, v0\nv_mul_u32_u24 v5, 4682, v4\nv_lshrrev_b32 v5, 16, v5\nv_mul_u32_u24 v6, 14, v5\nv_sub_u32 v4, v4, v6")
        A(f"v_and_b32 v6, 0xf8, v5\nv_and_b32 v7, 1, v5\nv_lshl_add_u32 v6, v7, 2, v6\nv_bfe_u32 v7, v5, 1, 2\nv_add_u32 v6, v6, v7\nv_mul_u32_u24 v6, 2688, v6\nv_lshl_add_u32 v{VWD[j]}, v4, 4, v6")
        wdma(j)
    xpiece(1)
    A("v_lshrrev_b32 v4, 3, v1\nv_mul_u32_u24 v6, 896, v4\nv_lshrrev_b32 v4, 4, v1\nv_and_b32 v5, 7, v1\nv_xor_b32 v5, v5, v4")
    for j in range(2): A(f"v_xor_b32 v7, {4*j}, v5\nv_lshl_add_u32 v7, v7, 4, v6\nv_add_u32 v{VXE[j]}, {j*8*896}, v7")
    prologue2()
    A("v_and_b32 v10, 31, v1\nv_lshlrev_b32 v10, 4, v10\nv_min_u32 v5, 55, v1\nv_lshlrev_b32 v5, 4, v5\nv_add_u32 v6, 10752, v5\nv_add_u32 v7, 21504, v5\nv_add_u32 v8, 32256, v5\nv_mov_b32 v9, 0")
    vm.wait("w0"); A("s_barrier\ns_barrier")
    for j in range(7, 14): wdma(j)
    xpiece(2)
    vm.wait("w1"); A("s_barrier\ns_barrier")
    for j in range(14, 21): wdma(j)
    xpiece(3)
    for j in range(21, 25): wdma(j)
    vm.wait("w2"); A("s_barrier\ns_setprio 2")
    A(f"s_waitcnt lgkmcnt(0)\ns_lshl_b32 s{sU}, s{sE}, 9\ns_add_u32 s{sU}, s{sU}, {WS_RST}\ns_lshl_b32 s{sV}, s{sWO}, 2\ns_add_u32 s{sV}, s{sV}, {WS_CSG}")
    def gload():
        A(f"buffer_load_dwordx4 v[32:35], v10, {R(RWS)}, s{sU} offen sc1")
        for kq in range(4): A(f"buffer_load_dwordx4 {v(36+4*kq,4)}, v{5+kq}, {R(RWS)}, s{sV} offen sc1")
    A(f"buffer_load_dwordx2 v[30:31], v9, {R(RDBG)}, 0 offen sc1"); gload()
    vm.wait_all()
    get_tag(30, "B_T")
    A(f"s_mov_b32 s{sTO}, 0x8000\ns_branch B_GC\nB_GL:"); gload()
    A(f"s_sub_u32 s{sTO}, s{sTO}, 1\ns_waitcnt vmcnt(0)\ns_cbranch_scc1 B_GX\nB_GC:")
    tagcheck([32, 36, 40, 44, 48], 11, 12, 13)
    A("s_cbranch_vccnz B_GL\nB_GX:")
    QS = DH ** -0.5 * math.log2(math.e)
    A("v_add_f32 v36, v36, v40\nv_add_f32 v44, v44, v48\nv_add_f32 v38, v38, v42\nv_add_f32 v46, v46, v50\nv_add_f32 v36, v36, v44\nv_add_f32 v37, v38, v46")
    A(f"s_cmp_eq_u32 s{sSEC}, 0\ns_cselect_b32 s{sV}, {fl(QS)}, 1.0\nv_cndmask_b32 v6, v34, v32, s[{sHI}:{sHI+1}]\nv_mul_f32 v6, s{sV}, v6")
    A(f"v_lshl_add_u32 v4, v1, 3, s{sWM}\nds_write_b64 v4, v[36:37]\nv_lshl_add_u32 v4, v1, 2, s{sWM}\nds_write_b32 v4, v6 offset:512")
    A("s_setprio 0\ns_waitcnt lgkmcnt(0)\ns_barrier\ns_branch B_P2")

def bprog2():
    NT = env("NT", 0); nt = " nt" if NT else ""
    A("B_P2:"); vm.q = []
    if STAMP: A("v_mov_b32 v15, -1\nB_P2S:"); st["v"] = 15
    roles(touch=False)
    r = RB
    WOR, W2T = 16, 48
    VT1, VTO, VDW, VDR = [4, 5], [8, 9], 10, 11
    w2_addr(r, 12, 13)
    A(f"v_lshrrev_b32 v12, 3, v1\nv_mul_u32_u24 v12, 3584, v12\nv_add_u32 v{VT1[0]}, v12, v13\nv_add_u32 v{VT1[1]}, {8*3584 - 1024}, v{VT1[0]}")
    A(f"v_lshrrev_b32 v12, 2, v1\nv_mul_u32_u24 v12, 896, v12\nv_and_b32 v13, 3, v1\nv_lshl_add_u32 v{VTO[0]}, v13, 4, v12\nv_add_u32 v{VTO[1]}, {16*896}, v{VTO[0]}")
    A(f"v_add_u32 v{VDW}, s{sW2W}, v{VL}\nv_add_u32 v{VDR}, s{sRBW}, v{VL}")
    tr_lane_addr(12, 13, 128, 4)
    A(f"s_and_b32 s{sT}, s{SW}, 1\ns_lshl_b32 s{sT}, s{sT}, 5\nv_xor_b32 v12, s{sT}, v12\nv_add_u32 v12, s{sW2W}, v12\nv_bfe_u32 v13, v1, 3, 1\ns_lshr_b32 s{sT}, s{SW}, 1\nv_xor_b32 v13, s{sT}, v13")
    A(f"v_lshl_add_u32 v{r.VRD[0]}, v13, 6, v12\nv_xor_b32 v13, 1, v13\nv_lshl_add_u32 v{r.VRD[1]}, v13, 6, v12")
    A(f"s_mul_i32 s{sW1S}, s{SW}, {512*3584}\ns_lshl_b32 s{sT}, s{sFT}, 7\ns_add_u32 s{sW1S}, s{sW1S}, s{sT}\ns_add_u32 s{sW1E}, s{sW1S}, {512*3584}")
    A(f"s_lshr_b32 s{sT}, s{sRO}, 10\ns_add_u32 s{sT}, s{sT}, {r.n4}\ns_and_b32 s{sT}, s{sT}, 31\ns_mul_i32 s{sT}, s{sT}, {16*3584}\ns_add_u32 s{sW1}, s{sW1S}, s{sT}")
    TH = [env("BTH", 2)]
    A(f"s_and_b32 s{sT}, s{sC3}, 7\ns_lshl_b32 s{sT}, s{sT}, 1\ns_lshl_b32 s{sD_}, s{SW}, 2\ns_add_u32 s{sD_}, s{sD_}, s{sT}\ns_min_u32 s{sC}, s{sC3}, 13\ns_lshl_b32 s{sC}, s{sC}, 6")
    A(f"s_cmp_ge_u32 s{sJ}, 24\ns_cbranch_scc1 B_NOKV\ns_barrier\nB_NOKV:")
    A(f"s_add_u32 s{sT}, s{SW}, 1\ns_and_b32 s{sT}, s{sT}, 3\ns_mul_i32 s{sT}, s{sT}, 12288\ns_add_u32 s{sT}, s{sT}, {RBUF + 3072}\nv_add_u32 v14, s{sT}, v{VL}")
    A(f"v_mov_b32 v12, 0\nds_write_b32 v14, v12\ns_waitcnt lgkmcnt(0)")
    if env("WARMH", 0):
        A("s_mov_b64 exec, 0")
        for q in range(3): A(f"s_cmp_eq_u32 s{SW}, {q}\ns_cbranch_scc1 WQ{q}")
        A("s_branch WQ3\nWH_RET:\ns_mov_b64 exec, -1")
    vm.q = []
    NPQ = env("NPQ", 0)
    if NPQ: TH[0] = env("BTH0", 4)
    sPOS = sE
    todo = []
    def throttle():
        A(f"s_waitcnt vmcnt({TH[0]})"); vm.q = vm.q[-TH[0]:]
        while todo and ("s", todo[0]) not in vm.q:
            m = todo.pop(0); wread_step(r, m, m % 14)
    def rawitem(m):
        w2soff(m)
        for j in range(2): A(f"buffer_load_dwordx4 {v(W2T+8*m+4*j,4)}, v{r.VT2[j]}, {R(RW2)}, s{sA} offen offset:{j*1024}{' nt' if env('NTR', 0) else ''}")
    for k in range(32):
        if k == NPQ:
            stamp("b_pre")
            A("s_barrier")
            stamp("b_go"); TH[0] = env("BTH0", env("BTH", 3))
            A(f"buffer_load_dwordx2 v[{W2T}:{W2T+1}], v12, {R(RDBG)}, 0 offen sc1"); vm.issue("tag")
        if env("IDL", 0) and k in (0, 13, 15, 17, 19, 20): A(f"s_cmp_eq_u32 s{sACT4}, 0\ns_cbranch_scc1 B_I{k}")
        slot = k % 14 if k < 20 else (k - 20 + 6) % 12
        if k == 20: A(f"s_add_u32 s{sW1}, s{sW1}, {6*16*3584}\ns_cmp_ge_u32 s{sW1}, s{sW1E}\ns_cselect_b32 s{sT}, {512*3584}, 0\ns_sub_u32 s{sW1}, s{sW1}, s{sT}")
        if k == 26: A(f"s_lshr_b32 s{sT}, s{sRO}, 10\ns_mul_i32 s{sT}, s{sT}, {16*3584}\ns_add_u32 s{sW1}, s{sW1S}, s{sT}")
        if k >= 14:
            assert not [m for m in todo if m % 14 == slot]
            A("s_waitcnt lgkmcnt(0)")
        A(f"s_add_u32 m0, s{sW2W}, {slot*2048}")
        for j in range(2): A(f"buffer_load_dwordx4 v{VT1[j]}, {R(RW1)}, s{sW1} offen offset:{j*1024}{' nt' if k < env('NTK', 0) else ''} lds"); vm.issue(("s", k))
        if k < 20: todo.append(k)
        A(f"s_add_u32 s{sW1}, s{sW1}, {16*3584}\ns_cmp_eq_u32 s{sW1}, s{sW1E}\ns_cselect_b32 s{sW1}, s{sW1S}, s{sW1}")
        throttle()
        if env("IDL", 0) and k in (12, 14, 16, 18, 19, 31):
            k0 = {12: 0, 14: 13, 16: 15, 18: 17, 19: 19, 31: 20}[k]
            def idle(k0=k0):
                A(f"B_I{k0}:")
                if k0 in (0, 20):
                    A(f"s_setprio 3\nv_lshrrev_b32 v96, 3, v1\nv_lshlrev_b32 v96, 12, v96\nv_and_b32 v97, 7, v1\nv_lshl_add_u32 v96, v97, 7, v96\ns_setprio 0")
                    A(f"s_sub_u32 s{sA}, s{sJ}, 25\ns_lshl_b32 s{sA}, s{sA}, 2\ns_add_u32 s{sA}, s{sA}, s{SW}\ns_lshl_b32 s{sA}, s{sA}, 18\ns_bfe_u32 s{sB}, s2, 0x20001\ns_lshl_b32 s{sB}, s{sB}, 10\ns_add_u32 s{sA}, s{sA}, s{sB}")
                    A(f"s_and_b32 s{sB}, s2, 1\ns_lshl_b32 s{sB}, s{sB}, 17\ns_xor_b32 s{sA}, s{sA}, s{sB}")
                    for i in (range(0, env("IDN", 4)) if k0 == 0 else range(env("IDN", 4), env("IDM", 4))):
                        A(f"s_xor_b32 s{sB}, s{sA}, {i*8*4096}\nbuffer_load_dword v97, v96, {R(RW2)}, s{sB} offen\ns_waitcnt vmcnt({env('IDT', 0)})")
                A(f"s_branch B_J{k0}")
            handlers.append(idle)
            A(f"B_J{k0}:")
        if k in (12, 14, 16, 18):
            q = (k - 12) // 2
            A(f"s_add_u32 s{sT}, s{sD_}, {q}\ns_and_b32 s{sT}, s{sT}, 15\ns_mul_i32 s{sT}, s{sT}, {28*896}\ns_add_u32 s{sT}, s{sT}, s{sC}")
            for j in range(2): A(f"buffer_load_dwordx4 {v(WOR+8*q+4*j,4)}, v{VTO[j]}, {R(RWO)}, s{sT} offen"); vm.issue("wo")
            throttle()
        if k == 19:
            A(f"s_setprio 3\nv_readfirstlane_b32 s{sTAG}, v{W2T}\nv_readfirstlane_b32 s{sTAG+1}, v{W2T+1}\nv_lshlrev_b32 v12, 3, v1\ns_mul_i32 s{sV}, s{SW}, 384\ns_add_u32 s{sV}, s{sV}, {F2}")
            poll(12, sV, 48, 8); A("v_lshlrev_b32 v12, 7, v1\ns_setprio 0")
        if env("W2C", 0) and k in (14, 20):
            A(f"s_lshl_b32 s{sA}, s2, 2\ns_add_u32 s{sA}, s{sA}, s{SW}\ns_mul_i32 s{sA}, s{sA}, {56*128}")
            set_exec(((1 << 28) - 1) << (28*(k == 20))); A(f"buffer_load_dword v8, v12, {R(RW2)}, s{sA} offen\ns_mov_b64 exec, -1"); vm.issue("t")
        if k == env("CT2", 22):
            A(f"s_setprio 3\ns_getpc_b64 s[{sA}:{sA+1}]\nCODE_R2:\ns_sub_u32 s{sA}, s{sA}, CODE_R2-P2_TAIL\ns_subb_u32 s{sA+1}, s{sA+1}, 0\ns_lshl_b32 s{sT}, s{sJ}, 2\ns_add_u32 s{sT}, s{sT}, s{SW}\ns_lshl_b32 s{sT}, s{sT}, 9")
            A(f"v_lshl_add_u32 v13, v1, 7, s{sT}\nv_min_u32 v13, CODE_END-P2_TAIL-4, v13\nv_mov_b32 v9, s{sA+1}\nv_add_co_u32 v8, vcc, s{sA}, v13\nv_addc_co_u32 v9, vcc, 0, v9, vcc\ns_setprio 0")
            A("s_mov_b64 exec, 15\nglobal_load_dword v8, v[8:9], off\ns_mov_b64 exec, -1"); vm.issue("t")
        if k == env("BSW0", 7): TH[0] = env("BTH", 3)
        if k == env("BSW", 24): TH[0] = env("BTH2", 10)
        if k in (13, 31): stamp(f"b_{k}")
    assert not todo
    w2dma(r, 0)
    for m in range(6):
        A(f"ds_read_b32 v13, v14\ns_mov_b32 s{sPOS}, {m}\ns_waitcnt vmcnt({TH[0]}) lgkmcnt(0)\ns_setprio 3\nv_cmp_ne_u32 vcc, 0, v13\ns_setprio 0\ns_cbranch_vccnz B_CUT")
        rawitem(m)
    A(f"s_mov_b32 s{sPOS}, 6")
    if env("W2T", 0):
        A(f"s_setprio 3\ns_lshr_b32 s{sT}, s{sGC}, 6\ns_add_u32 s{sT}, s{sT}, 96\nv_add_u32 v12, s{sT}, v1\nv_subrev_u32 v13, 448, v12\nv_min_u32 v12, v12, v13\nv_lshlrev_b32 v12, 12, v12\ns_setprio 0")
        A(f"s_mul_i32 s{sT}, s{SW}, {448*4096}\ns_lshl_b32 s{sU}, s{sST}, 7\ns_add_u32 s{sT}, s{sT}, s{sU}\nbuffer_load_dword v14, v12, {R(RW2)}, s{sT} offen")
    A("B_CUT:")
    stamp("b_done"); stamp_flush()
    if STAMP: A(f"v_writelane_b32 v15, s{sPOS}, 60")
    A(f"s_setprio 3\nv_min_u32 v12, 5, v1\nv_lshlrev_b32 v12, 12, v12\nv_add_u32 v12, {RBUF + 3*1024 + 32*16 + 4}, v12\ns_setprio 0")
    A(f"B_RED:\ns_barrier\nds_read_b32 v13, v12\ns_waitcnt lgkmcnt(0)\nv_cmp_ne_u32 vcc, 0, v13")
    A(f"s_cbranch_vccz B_OK\ns_cmp_lg_u32 s{sRETRY}, 0\ns_cbranch_scc1 B_OK\ns_mov_b32 s{sRETRY}, -1\ns_barrier\ns_barrier\ns_barrier\ns_branch B_RED\nB_OK:")
    A("s_waitcnt vmcnt(0)\ns_barrier")
    for k in range(8): A(f"ds_write_b128 v{VDR}, {v(WOR+4*k,4)} offset:{k*1024}")
    for m in range(6):
        A(f"s_cmp_gt_u32 s{sPOS}, {m}\ns_cbranch_scc1 B_SK{m}"); rawitem(m); A(f"B_SK{m}:")
    A("s_waitcnt lgkmcnt(0)\ns_barrier")
    unswap(r); mlp_addr(r, 12, 13, False)
    A("s_waitcnt vmcnt(0)")
    if not env("EP", 0): A("s_barrier")
    vm.q = []
    DL = env("DL", 0)
    for m in range(6):
        for j in range(2): A(f"ds_write_b128 v{VDW}, {v(W2T+8*m+4*j,4)} offset:{m*2048 + j*1024}")
        if DL == 0: w2dma(r, m + 1)
    A("s_waitcnt lgkmcnt(0)")
    if env("X1B", 1): A("s_barrier")
    if DL == 1:
        for m in range(1, 7): w2dma(r, m)
    mlp(r, VDR, VDW)
    if STAMP: A(f"v_mov_b32 v{VST}, v15"); del st["v"]
    A("s_branch K_FIN")

def main(out):
    prologue()
    pend0 = list(st["pend"])
    bprog()
    st["pend"] = list(pend0); p1_helper()
    st["pend"] = list(pend0); p1(); fb = p2(); p3(); vm.q = []; mlp(RA); finish()
    st["pend"] = list(pend0); bprog2(); fb()
    for i, h in enumerate(handlers):
        per = -(-len(handlers) // 4)
        if env("WARMH", 0):
            if i % per == 0: A(f"WQ{i // per}:")
            A(f"WH{i}:\ns_cbranch_execz " + (f"WH{i+1}" if (i + 1) % per and i + 1 < len(handlers) else "WH_RET"))
        h()
    A("CODE_END:")
    head = open("head.txt").read()
    nv = 256
    txt = head + f"; @launch grid=(256,1,1) block=(512,1,1) lds={LDS_TOTAL}\n" + '.amdgcn_target "amdgcn-amd-amdhsa--gfx950"\n.text\n' + kernel_header(NAME) + A.text() + '.section .rodata,"a"\n' + kernel_desc(NAME, nv, 102, 256)
    open(out, "w").write(txt)
    if STAMP: open(out + ".names", "w").write(" ".join(st["names"].keys()))

if __name__ == "__main__":
    main(sys.argv[1])
```

```python
import sys, struct, math, os
from asmlib import *

S, D, H, DH, F = 2048, 448, 16, 28, 1792
MB = 1 << 20
WS_Q, WS_KV, WS_O, WS_HF, WS_HH, WS_G, WS_ST, WS_FL, WS_STAMP = 0, 2*MB, 6*MB, 8*MB, 10*MB, 12*MB, 14*MB, 14*MB + 512*1024, 15*MB
F1, F2, F4, F5 = WS_FL, WS_FL + 131072, WS_FL + 2*131072, WS_FL + 3*131072
WS_RST, WS_CSG = 13*MB + 768*1024, 13*MB + 832*1024
WS_SIZE = 16*MB
WS_O = WS_HH = WS_Q
WS_G = WS_KV
EPS = 1e-5
STAMP = os.environ.get("STAMP", "0") == "1"
def env(n, d): return int(os.environ.get(n, str(d)))
def f2u(x): return struct.unpack("<I", struct.pack("<f", x))[0]
def hx(x): return f"0x{x & 0xffffffff:08x}"
def fl(x): return hx(f2u(x))
MFMA = "v_mfma_f32_32x32x16_bf16"
NAME = "sequential_preLN__mha_block__mixer_token_mlp__prompt_kernel"

class Cnt:
    def __init__(self, A, name, mx):
        self.A, self.name, self.mx, self.q = A, name, mx, []
    def issue(self, tag): self.q.append(tag)
    def wait(self, tag):
        idx = [i for i, t in enumerate(self.q) if t == tag]
        if not idx: return
        n = len(self.q) - 1 - idx[-1]
        self.A(f"s_waitcnt {self.name}({min(n, self.mx)})")
        self.q = self.q[idx[-1] + 1:]
    def wait_all(self):
        self.A(f"s_waitcnt {self.name}(0)"); self.q = []

RX, RWQ, RWO, RW1, RB1, RW2, RB2, ROUT, RDBG, RWS = 8, 12, 16, 20, 24, 28, 32, 36, 40, 44
def R(r): return f"s[{r}:{r+3}]"
SW, sH, sI, sJ, sFT, sDT4, sST, sDT5, sACT4, sTO, sTAG = 48, 49, 50, 51, 52, 53, 54, 55, 56, 57, 58
sHI, sONES = 60, 62
sT, sU, sV, sA, sB, sC, sD_, sE, sRETRY = 63, 64, 65, 66, 67, 68, 69, 70, 71
sF = [4, 5, 6, 7]
sSEC, sHQ, sW8 = 3, 92, 93
sMISS = 6
sC3, sR3 = 0, 1
sRBW, sW2W = 94, 95
sW2, sW2S, sW2E, sW1, sW1S, sW1E = 96, 97, 98, 99, 100, 101
VL, VST = 2, 255
W2A, RBUF, LDS_TOTAL = 0, 114688, 163840

A = Asm(); vm = Cnt(A, "vmcnt", 63); lg = Cnt(A, "lgkmcnt", 15)
st = {"pend": [], "names": {}}
def stamp(name):
    if os.environ.get("DIAGAT") == name or (os.environ.get("DIAGAT") and name == "start"): A("s_memrealtime s[72:73]")
    if not STAMP: return
    import re
    if name != "start" and not re.match(os.environ.get("STF", "^[^t]"), name): return
    k = len(st["pend"]); assert k < 9, name
    n = st["names"].setdefault(name, len(st["names"]))
    A(f"{'s_memtime' if env('CYC', 0) else 's_memrealtime'} s[{74+2*k}:{75+2*k}]"); st["pend"].append(n)
def stamp_flush():
    if not STAMP or not st["pend"]: return
    A("s_waitcnt lgkmcnt(0)")
    for k, n in enumerate(st["pend"]): A(f"v_writelane_b32 v{st.get('v', VST)}, s{74+2*k}, {n}")
    st["pend"] = []

def set_exec(mask): A(f"s_mov_b32 exec_lo, {hx(mask)}\ns_mov_b32 exec_hi, {hx(mask >> 32)}")
def halfsum(x, t): A(f"v_mov_b32 v{t}, v{x}\nv_permlane32_swap_b32 v{x}, v{t}\nv_add_f32 v{x}, v{x}, v{t}")
def flag_store(soff_reg, t=4):
    A(f"v_mov_b32 v{t}, s{sTAG}\nv_mov_b32 v{t+1}, s{sTAG+1}\nv_mov_b32 v{t+2}, 0\ns_mov_b64 exec, 1")
    A(f"buffer_store_dwordx2 {v(t,2)}, v{t+2}, {R(RWS)}, s{soff_reg} offen sc1\ns_mov_b64 exec, -1"); vm.issue("flag")
def poll(voff, soff_reg, nl, t):
    L = A.label("POLL")
    set_exec((1 << nl) - 1)
    A(f"s_mov_b32 s{sTO}, 0x8000\n{L}:")
    A(f"buffer_load_dwordx2 {v(t,2)}, v{voff}, {R(RWS)}, s{soff_reg} offen sc1\ns_sub_u32 s{sTO}, s{sTO}, 1\ns_waitcnt vmcnt(0)")
    A(f"s_cbranch_scc1 {L}_x\nv_cmp_ne_u64 vcc, s[{sTAG}:{sTAG+1}], {v(t,2)}\ns_and_b64 exec, exec, vcc\n" + (f"s_cbranch_scc0 {L}_x\ns_sleep {env('PSL', 0)}\ns_branch {L}" if env("PSL", 0) else f"s_cbranch_scc1 {L}") + f"\n{L}_x:\ns_mov_b64 exec, -1")
    vm.q = []
def tr_lane_addr(dst, t, pitch, hs, rs=1):
    A(f"v_lshrrev_b32 v{dst}, 5, v1\nv_mul_u32_u24 v{dst}, {hs*pitch}, v{dst}\nv_bfe_u32 v{t}, v1, 2, 2\nv_mul_u32_u24 v{t}, {rs*pitch}, v{t}\nv_add_u32 v{dst}, v{dst}, v{t}")
    A(f"v_bfe_u32 v{t}, v1, 4, 1\nv_lshl_add_u32 v{dst}, v{t}, 5, v{dst}\nv_and_b32 v{t}, 3, v1\nv_lshl_add_u32 v{dst}, v{t}, 3, v{dst}")
def get_tag(TAGV, lab):
    A(f"v_readfirstlane_b32 s{sTAG}, v{TAGV}\nv_readfirstlane_b32 s{sTAG+1}, v{TAGV+1}")
    A(f"s_or_b32 s{sTO}, s{sTAG}, s{sTAG+1}\ns_cbranch_scc1 {lab}_ok\ns_mov_b32 s{sTO}, 0x8000\nv_mov_b32 v4, 0\n{lab}_l:")
    A(f"buffer_load_dwordx2 {v(TAGV,2)}, v4, {R(RDBG)}, 0 offen sc1\ns_sub_u32 s{sTO}, s{sTO}, 1\ns_waitcnt vmcnt(0)\ns_cbranch_scc1 {lab}_ok")
    A(f"v_readfirstlane_b32 s{sTAG}, v{TAGV}\nv_readfirstlane_b32 s{sTAG+1}, v{TAGV+1}\ns_cmp_eq_u64 s[{sTAG}:{sTAG+1}], 0\ns_cbranch_scc1 {lab}_l\n{lab}_ok:")
def tagcheck(regs, T1, T2, T3):
    A(f"v_xor_b32 v{T1}, s{sTAG}, v{regs[0]+1}\nv_xor_b32 v{T2}, s{sTAG+1}, v{regs[0]+3}\nv_or_b32 v{T1}, v{T1}, v{T2}")
    for g in regs[1:]: A(f"v_xor_b32 v{T2}, s{sTAG}, v{g+1}\nv_xor_b32 v{T3}, s{sTAG+1}, v{g+3}\nv_or3_b32 v{T1}, v{T1}, v{T2}, v{T3}")
    A(f"v_cmp_ne_u32 vcc, 0, v{T1}")
def rot4(d):
    A(f"s_bfe_u32 s{d}, s2, 0x20001\ns_mul_i32 s{d}, s{d}, 7\ns_sub_u32 s{d}, s{sFT}, s{d}\ns_add_u32 s{d}, s{d}, s{sDT4}\ns_add_u32 s{d}, s{d}, s{sDT4}")
    A(f"s_and_b32 s{sTO}, s2, 1\ns_mul_i32 s{sTO}, s{sTO}, 3\ns_add_u32 s{d}, s{d}, s{sTO}\ns_and_b32 s{d}, s{d}, 7\ns_lshl_b32 s{d}, s{d}, 2")
def rot5(d):
    A(f"s_and_b32 s{sTO}, s2, 1\ns_lshl_b32 s{sTO}, s{sTO}, 1\ns_lshl_b32 s{d}, s{sDT5}, 1\ns_add_u32 s{d}, s{d}, s{sTO}\ns_and_b32 s{sTO}, s{sST}, 7\ns_add_u32 s{d}, s{d}, s{sTO}")
    A(f"s_mul_i32 s{sTO}, s{d}, 37\ns_lshr_b32 s{sTO}, s{sTO}, 8\ns_mul_i32 s{sTO}, s{sTO}, 7\ns_sub_u32 s{d}, s{d}, s{sTO}\ns_lshl_b32 s{d}, s{d}, 2")

handlers = []
class Stream:
    def __init__(self, name, ng, loads, soff, T, bit, VP, TP, pm=None, gated=None):
        self.name, self.ng, self.loads, self.soff, self.T, self.last, self.bit = name, ng, loads, soff, T, -1, bit
        self.VP, self.TP, self.pm, self.gated = VP, TP, pm or (lambda g: 0xffffffff), ng if gated is None else gated
        A(f"s_mov_b32 s{sMISS}, {hx((1 << 2*ng) - 1)}")
    def gate(self, g):
        if g >= self.gated: return
        L = f"{self.name}g{g}"
        A(f"s_and_b32 s{sT}, s{sMISS}, {hx(3 << 2*g)}\ns_cbranch_scc1 {L}_h\n{L}_r:")
        def h():
            A(f"{L}_h:\ns_mov_b32 s{sTO}, 0x8000\ns_mov_b32 exec_hi, 0\n{L}_l:\ns_and_b32 exec_lo, s{sMISS}, {hx(self.pm(g))}")
            A(f"buffer_load_dword v{self.TP}, v{self.VP}, {R(RWS)}, 0 offen sc1\ns_sub_u32 s{sTO}, s{sTO}, 1\ns_waitcnt vmcnt(0)\ns_cbranch_scc1 {L}_x")
            A(f"v_and_b32 v{self.TP}, {self.bit}, v{self.TP}\nv_cmp_ne_u32 vcc, 0, v{self.TP}\ns_andn2_b32 s{sMISS}, s{sMISS}, vcc_lo\ns_and_b32 s{sT}, s{sMISS}, {hx(3 << 2*g)}\ns_cbranch_scc1 {L}_l")
            A(f"{L}_x:\ns_mov_b64 exec, -1\ns_branch {L}_r")
        handlers.append(h)
    def _emit(self, g, track):
        self.soff(g)
        for reg, va, off in self.loads(g):
            A(f"buffer_load_dwordx4 {v(reg,4)}, v{va}, {R(RWS)}, s{sT} offen offset:{off} sc1")
            if track: vm.issue((self.name, g))
    def issue(self, g):
        if g < self.ng: self.gate(g); self._emit(g, True); self.last = g
    def issue_part(self, g, k):
        if g >= self.ng: return
        if k == 0: self.gate(g); self.soff(g)
        reg, va, off = self.loads(g)[k]
        A(f"buffer_load_dwordx4 {v(reg,4)}, v{va}, {R(RWS)}, s{sT} offen offset:{off} sc1"); vm.issue((self.name, g))
        self.last = g
    def _red(self, g):
        r = [x[0] + 3 for x in self.loads(g)]
        A(f"v_bitop3_b32 v{self.T}, v{r[0]}, v{r[1]}, v{r[2]} bitop3:0x80\nv_bitop3_b32 v{self.T}, v{self.T}, v{r[3]}, {self.bit} bitop3:0x80")
    def check1(self, g):
        if g < self.ng: vm.wait((self.name, g)); self._red(g)
    def check2(self, g):
        if g >= self.ng: return
        L = f"{self.name}{g}"
        A(f"v_cmp_eq_u32 vcc, 0, v{self.T}\ns_cbranch_vccnz {L}_h\n{L}_r:")
        last = self.last
        later = list(range(g + 1, last + 1)) if env("RFR", 0) and vm.q == [(self.name, k) for k in range(g + 1, last + 1) for _ in range(4)] else []
        def h():
            A(f"{L}_h:\ns_mov_b32 s{sTO}, 0x8000\n{L}_l:")
            self._emit(g, False)
            A(f"s_sub_u32 s{sTO}, s{sTO}, 1\ns_waitcnt vmcnt(0)\ns_cbranch_scc1 {L}_r")
            self._red(g)
            A(f"v_cmp_eq_u32 vcc, 0, v{self.T}\ns_cbranch_vccnz {L}_l")
            for k in later:
                self._red(k); A(f"v_cmp_eq_u32 vcc, 0, v{self.T}\ns_cbranch_vccnz {L}_f{k}")
            A(f"s_branch {L}_r")
            for k in later:
                A(f"{L}_f{k}:"); self._emit(k, False)
            if later: A(f"s_branch {L}_r")
        handlers.append(h)

def prologue():
    if STAMP: A(f"s_memrealtime s[72:73]\nv_mov_b32 v{VST}, -1")
    stamp("start")
    A(f"s_load_dwordx2 s[{RX}:{RX+1}], s[0:1], 0\ns_load_dwordx2 s[{RWQ}:{RWQ+1}], s[0:1], 8")
    A("s_cmp_ge_u32 s2, 256\ns_cbranch_scc1 K_END")
    A(f"v_and_b32 v1, 63, v0\nv_lshrrev_b32 v3, 6, v0\nv_lshlrev_b32 v{VL}, 4, v1\nv_readfirstlane_b32 s{sW8}, v3\nv_and_b32 v0, 255, v0")
    for r, sz in ((RX, S*D*2), (RWQ, D*3*D*2)): A(f"s_mov_b32 s{r+2}, {sz}\ns_mov_b32 s{r+3}, 0x20000")
    A(f"s_and_b32 s{SW}, s{sW8}, 3\ns_lshr_b32 s{sJ}, s2, 3\ns_bfe_u32 s{sT}, s2, 0x20001\ns_and_b32 s{sU}, s2, 1")
    A(f"s_lshl_b32 s{sI}, s{sT}, 2\ns_and_b32 s{sV}, s{sJ}, 3\ns_add_u32 s{sI}, s{sI}, s{sV}")
    A(f"s_lshr_b32 s{sSEC}, s{sJ}, 3\ns_bfe_u32 s{sHQ}, s{sJ}, 0x10002\ns_lshl_b32 s{sV}, s{sU}, 1\ns_add_u32 s{sHQ}, s{sHQ}, s{sV}")
    A(f"s_cmp_ge_u32 s{sJ}, 24\ns_cbranch_scc1 P1_HELP\ns_cmp_lt_u32 s{sW8}, 4\ns_cbranch_scc1 A_P1")

def prologue2():
    for r, off in ((RWS, 80), (RDBG, 72), (RWO, 16), (RW1, 32), (RB1, 40), (RW2, 48), (RB2, 56), (ROUT, 64)):
        A(f"s_load_dwordx2 s[{r}:{r+1}], s[0:1], {off}")
    A(f"s_memrealtime s[{sTAG}:{sTAG+1}]")
    for r, sz in ((RWS, WS_SIZE), (RDBG, 256), (RWO, D*D*2), (RW1, S*F*2), (RB1, F*2), (RW2, S*F*2), (RB2, S*2), (ROUT, S*D*2)):
        A(f"s_mov_b32 s{r+2}, {sz}\ns_mov_b32 s{r+3}, 0x20000")
    A(f"s_mov_b32 s{sHI}, 0\ns_mov_b32 s{sHI+1}, -1\ns_mov_b32 s{sONES}, 0x3f803f80\ns_mov_b32 s{sRETRY}, 0")
    A(f"s_mul_i32 s{sRBW}, s{SW}, 12288\ns_add_u32 s{sRBW}, s{sRBW}, {RBUF}\ns_mul_i32 s{sW2W}, s{SW}, 28672")

def roles(touch=True):
    A(f"s_bfe_u32 s{sT}, s2, 0x20001\ns_and_b32 s{sU}, s2, 1")
    pass
    A(f"s_sub_u32 s{sV}, 25, s{sU}\ns_cmp_lt_u32 s{sJ}, s{sV}\ns_cselect_b32 s{sACT4}, 1, 0\ns_cselect_b32 s{sV}, s{sJ}, 0")
    A(f"s_mul_i32 s{sFT}, s{sU}, 25\ns_add_u32 s{sV}, s{sV}, s{sFT}\ns_mul_i32 s{sDT4}, s{sV}, 9363\ns_lshr_b32 s{sDT4}, s{sDT4}, 16")
    A(f"s_mul_i32 s{sFT}, s{sDT4}, 7\ns_sub_u32 s{sV}, s{sV}, s{sFT}\ns_mul_i32 s{sFT}, s{sT}, 7\ns_add_u32 s{sFT}, s{sV}, s{sFT}")
    A(f"s_cmp_lt_u32 s{sJ}, 28\ns_cselect_b32 s{sV}, s{sJ}, 0\ns_mul_i32 s{sST}, s{sU}, 28\ns_add_u32 s{sV}, s{sV}, s{sST}")
    A(f"s_lshr_b32 s{sDT5}, s{sV}, 3\ns_and_b32 s{sV}, s{sV}, 7\ns_lshl_b32 s{sST}, s{sT}, 3\ns_add_u32 s{sST}, s{sST}, s{sV}")
    A(f"s_lshl_b32 s{sT}, s{sHQ}, 2\ns_add_u32 s{sT}, s{sT}, s{sSEC}\ns_lshl_b32 s{sT}, s{sT}, 4\ns_add_u32 s{sT}, s{sT}, s{sI}\ns_lshl_b32 s{sT}, s{sT}, 7\ns_add_u32 s{sF[0]}, s{sT}, {F1}")
    A(f"s_and_b32 s{sT}, s2, 7\ns_lshl_b32 s{sT}, s{sT}, 1\ns_and_b32 s{sH}, s{sJ}, 1\ns_add_u32 s{sH}, s{sH}, s{sT}\ns_lshr_b32 s{sI}, s{sJ}, 1")
    A(f"s_lshr_b32 s{sR3}, s{sJ}, 4\ns_add_u32 s{sR3}, s{sR3}, s{sT}\ns_lshl_b32 s{sR3}, s{sR3}, 2\ns_add_u32 s{sR3}, s{sR3}, s{SW}\ns_and_b32 s{sC3}, s{sJ}, 15")
    A(f"s_lshl_b32 s{sT}, s2, 3\ns_add_u32 s{sF[1]}, s{sT}, {F2}")
    if not touch: return
    A(f"s_lshl_b32 s{sV}, s{sR3}, 4\ns_add_u32 s{sV}, s{sV}, s{sC3}\ns_lshl_b32 s{sV}, s{sV}, 9\ns_add_u32 s{sV}, s{sV}, {WS_ST}\nv_lshl_add_u32 v4, v1, 7, s{sV}")
    A(f"v_writelane_b32 v4, s{sF[0]}, 4\nv_writelane_b32 v4, s{sF[1]}, 5\ns_mov_b64 exec, {0x3f if env('STT', 1) else 0x30}\nbuffer_load_dword v126, v4, {R(RWS)}, 0 offen sc1\ns_mov_b64 exec, -1")
    vm.issue("touch")

def p1_helper():
    TAGV = 14
    sHX = sA
    A("P1_HELP:")
    vm.q = []
    prologue2()
    A(f"s_and_b32 s{sHX}, s2, 7\ns_lshl_b32 s{sHX}, s{sHX}, 3\ns_add_u32 s{sHX}, s{sHX}, s{sJ}\ns_sub_u32 s{sHX}, s{sHX}, 24")
    A(f"v_lshrrev_b32 v4, 3, v1\nv_and_b32 v5, 7, v1\nv_lshlrev_b32 v5, 4, v5\nv_mov_b32 v7, 0")
    A(f"s_cmp_ge_u32 s{sW8}, 4\ns_cbranch_scc1 H_CS")
    A(f"v_mul_u32_u24 v6, 896, v4\nv_add_u32 v6, v6, v5\ns_lshl_b32 s{sB}, s{sHX}, 2\ns_add_u32 s{sB}, s{sB}, s{SW}\ns_mul_i32 s{sT}, s{sB}, {8*896}\ns_waitcnt lgkmcnt(0)")
    for m in range(7): A(f"buffer_load_dwordx4 {v(16+4*m,4)}, v6, {R(RX)}, s{sT} offen offset:{m*128}")
    A("v_mov_b32 v80, 0\nv_mov_b32 v82, 0\nv_mov_b32 v84, 0\nv_mov_b32 v86, 0\ns_waitcnt vmcnt(0)")
    A(f"buffer_load_dwordx2 {v(TAGV,2)}, v7, {R(RDBG)}, 0 offen sc1")
    for k in range(28): A(f"v_dot2c_f32_bf16 v{80+4*(k&1)}, s{sONES}, v{16+k}\nv_dot2c_f32_bf16 v{82+4*(k&1)}, v{16+k}, v{16+k}")
    A("v_add_f32 v80, v80, v84\nv_add_f32 v82, v82, v86")
    for m in ("quad_perm:[1,0,3,2]", "quad_perm:[2,3,0,1]", "row_half_mirror"):
        for r in (80, 82): A(f"v_add_f32_dpp v{r}, v{r}, v{r} {m} row_mask:0xf bank_mask:0xf")
    A(f"v_mul_f32 v80, {fl(1.0/D)}, v80\nv_mul_f32 v82, {fl(1.0/D)}, v82\nv_fma_f32 v82, -v80, v80, v82\nv_max_f32 v82, 0, v82\nv_add_f32 v82, {fl(EPS)}, v82\nv_rsq_f32 v82, v82")
    A(f"v_lshlrev_b32 v6, 4, v4\nv_mul_f32 v80, v80, v82\nv_sub_f32 v80, 0, v80\ns_waitcnt vmcnt(0)")
    get_tag(TAGV, "H_T1")
    A(f"v_mov_b32 v81, s{sTAG}\nv_mov_b32 v83, s{sTAG+1}\ns_lshl_b32 s{sT}, s{sB}, 7\ns_add_u32 s{sT}, s{sT}, {WS_RST}")
    set_exec(0x0101010101010101)
    A(f"buffer_store_dwordx4 v[80:83], v6, {R(RWS)}, s{sT} offen sc1\ns_mov_b64 exec, -1")
    stamp("h_pub"); stamp_flush()
    A("s_barrier")
    roles()
    addr_setup()
    A("s_branch P2_START")
    st["pend"] = [0] if STAMP else []
    A(f"H_CS:\ns_lshl_b32 s{sB}, s{SW}, 6\ns_add_u32 s{sB}, s{sB}, s{sHX}\ns_cmp_ge_u32 s{sB}, 84\ns_cbranch_scc1 H_PF")
    A(f"v_mul_u32_u24 v6, 2688, v4\nv_add_u32 v6, v6, v5\ns_and_b32 s{sC}, s{sB}, 3\ns_lshr_b32 s{sD_}, s{sB}, 2\ns_mul_i32 s{sT}, s{sC}, {112*2688}\ns_lshl_b32 s{sU}, s{sD_}, 7\ns_add_u32 s{sT}, s{sT}, s{sU}\ns_waitcnt lgkmcnt(0)")
    for m in range(14): A(f"buffer_load_dwordx4 {v(16+4*m,4)}, v6, {R(RWQ)}, s{sT} offen\ns_add_u32 s{sT}, s{sT}, {8*2688}")
    A(f"s_mov_b32 s{sT}, 0x3f80\ns_mov_b32 s{sU}, 0x3f800000")
    for r in range(80, 88): A(f"v_mov_b32 v{r}, 0")
    for m in range(14):
        if m % 4 == 0: A(f"s_waitcnt vmcnt({max(0, 14 - m - 4)})")
        if m == 12: A(f"buffer_load_dwordx2 {v(TAGV,2)}, v7, {R(RDBG)}, 0 offen sc1")
        for k in range(4): A(f"v_dot2c_f32_bf16 v{80+2*k}, s{sT}, v{16+4*m+k}\nv_dot2c_f32_bf16 v{81+2*k}, s{sU}, v{16+4*m+k}")
    for r in range(80, 88): A(f"v_add_f32_dpp v{r}, v{r}, v{r} row_ror:8 row_mask:0xf bank_mask:0xf")
    for op in ("v_permlane16_swap_b32", "v_permlane32_swap_b32"):
        for r in range(80, 88): A(f"v_mov_b32 v{r+8}, v{r}")
        for r in range(80, 88): A(f"{op} v{r}, v{r+8}")
        for r in range(80, 88): A(f"v_add_f32 v{r}, v{r}, v{r+8}")
    A("v_mov_b32 v88, v80\nv_mov_b32 v90, v81")
    for pi in range(1, 4): A(f"v_cmp_eq_u32 vcc, {pi}, v4\nv_cndmask_b32 v88, v88, v{80+2*pi}, vcc\nv_cndmask_b32 v90, v90, v{81+2*pi}, vcc")
    A(f"v_lshlrev_b32 v6, 2, v5\nv_lshl_add_u32 v6, v4, 4, v6\ns_waitcnt vmcnt(0)")
    get_tag(TAGV, "H_T2")
    A(f"v_mov_b32 v89, s{sTAG}\nv_mov_b32 v91, s{sTAG+1}\ns_mul_i32 s{sT}, s{sC}, 10752\ns_lshl_b32 s{sU}, s{sD_}, 9\ns_add_u32 s{sT}, s{sT}, s{sU}\ns_add_u32 s{sT}, s{sT}, {WS_CSG}")
    set_exec(0xFFFFFFFF)
    A(f"buffer_store_dwordx4 v[88:91], v6, {R(RWS)}, s{sT} offen sc1\ns_mov_b64 exec, -1\ns_barrier\ns_branch B_P2")
    A(f"H_PF:\ns_cmp_lt_u32 s{SW}, 2\ns_cbranch_scc1 H_W")
    sQ = sB
    A(f"s_sub_u32 s{sQ}, s{sJ}, 24\ns_lshl_b32 s{sQ}, s{sQ}, 1\ns_add_u32 s{sQ}, s{sQ}, s{SW}\ns_sub_u32 s{sQ}, s{sQ}, 2")
    A(f"s_getpc_b64 s[{sC}:{sC+1}]\nCODE_REF:\ns_lshl_b32 s{sT}, s{sQ}, 12\nv_lshl_add_u32 v6, v1, 7, s{sT}\nv_min_u32 v6, CODE_END-CODE_REF-4, v6")
    A(f"v_mov_b32 v9, s{sC+1}\nv_add_co_u32 v8, vcc, s{sC}, v6\nv_addc_co_u32 v9, vcc, 0, v9, vcc")
    set_exec(0xFFFFFFFF)
    A("global_load_dword v25, v[8:9], off\ns_mov_b64 exec, -1\ns_waitcnt lgkmcnt(0)\ns_barrier")
    A("v_lshlrev_b32 v6, 7, v1")
    A(f"s_and_b32 s{sT}, s2, 7\ns_lshl_b32 s{sT}, s{sT}, 4\ns_add_u32 s{sT}, s{sT}, s{sQ}\ns_mul_i32 s{sT}, s{sT}, {7*8192}")
    for k in range(env("NP1", 0)): A(f"s_add_u32 s{sU}, s{sT}, {k*8192}\nbuffer_load_dword v{16+k}, v6, {R(RW1)}, s{sU} offen")
    for k in range(env("NP2", 0)): A(f"s_add_u32 s{sU}, s{sT}, {k*8192}\nbuffer_load_dword v{26+k}, v6, {R(RW2)}, s{sU} offen")
    if env("WOT", 0) == 1:
        A(f"s_mul_i32 s{sT}, s{sQ}, {196*128}")
        set_exec((1 << 49) - 1)
        for k in range(4): A(f"s_add_u32 s{sU}, s{sT}, {k*49*128}\nbuffer_load_dword v24, v6, {R(RWO)}, s{sU} offen")
        A("s_mov_b64 exec, -1")
    if STAMP:
        A("s_waitcnt vmcnt(0)"); stamp("h_touch"); stamp_flush(); A(f"v_mov_b32 v15, v{VST}\ns_branch B_P2S")
    A("s_branch B_P2\nH_W:\ns_waitcnt lgkmcnt(0)\ns_barrier\ns_branch B_P2")

XA = LDS_TOTAL - 65536
XBUF = [8192, 0, 8192, 4096]
def p1_common():
    sWO, sM = sA, sC
    A(f"s_mul_i32 s{sWO}, s{sSEC}, 896\ns_mul_i32 s{sT}, s{sHQ}, 224\ns_add_u32 s{sWO}, s{sWO}, s{sT}")
    A(f"s_lshl_b32 s{sE}, s{sI}, 2\ns_add_u32 s{sE}, s{sE}, s{SW}\ns_lshl_b32 s{sM}, s{SW}, 14\ns_add_u32 s{sM}, s{sM}, {XA}")

def p1():
    XF, ACC, WF = 16, 128, 192
    VXR = list(range(80, 88)); VXS = list(range(88, 92)); VWR = [92, 93]; TAGV = 94
    xf = lambda ks: XF + ((ks + 8) & 15)*4 if False else XF + (ks & 15)*4
    sWO, sM = sA, sC
    A("A_P1:")
    prologue2()
    p1_common()
    A(f"v_and_b32 v4, 31, v1\nv_lshrrev_b32 v5, 5, v1\nv_and_b32 v6, 15, v1\nv_xor_b32 v6, v6, v5\nv_lshlrev_b32 v6, 4, v6\nv_lshl_add_u32 v6, v4, 8, v6\nv_add_u32 v6, s{sM}, v6")
    for k in range(8): A(f"v_xor_b32 v{VXR[k]}, {k<<5}, v6")
    A(f"v_bfe_u32 v6, v1, 1, 3\nv_xor_b32 v6, v6, v5\nv_lshlrev_b32 v6, 4, v6\nv_lshl_add_u32 v6, v4, 7, v6\nv_add_u32 v6, s{sM}, v6")
    for k in range(4): A(f"v_xor_b32 v{VXS[k]}, {k<<5}, v6")
    tr_lane_addr(VWR[0], 4, 224, 8, 2); A(f"v_add_u32 v{VWR[1]}, {14*3584}, v{VWR[0]}")
    A("s_waitcnt lgkmcnt(0)")
    stamp("karg")
    A(f"s_or_b32 s{sT}, s2, s{SW}\ns_cbranch_scc1 P1_NOTAG")
    A(f"s_bitset1_b32 s{sTAG+1}, 31\nv_mov_b32 v8, s{sTAG}\nv_mov_b32 v9, s{sTAG+1}\nv_mov_b32 v10, 0\nv_mov_b32 v11, 0\ns_mov_b64 exec, 1\nbuffer_atomic_cmpswap_x2 v[8:11], v10, {R(RDBG)}, 0 offen sc1\ns_mov_b64 exec, -1\nP1_NOTAG:")
    A(f"s_mov_b32 s7, s{sE}")
    roles()
    addr_setup()
    A(f"s_mov_b32 s{sE}, s7\ns_lshl_b32 s{sM}, s{SW}, 14\ns_add_u32 s{sM}, s{sM}, {XA}")
    stamp_flush()
    A(f"s_cmp_eq_u32 s{sSEC}, 2\ns_cbranch_scc1 P1_V")
    for isv in (0, 1):
        vm.q = []; lg.q = []
        if isv: A("P1_V:")
        def xread(p):
            for k in range(8 if p < 3 else 4):
                A(f"ds_read_b128 {v(xf(8*p+k), 4)}, v{(VXR if p < 3 else VXS)[k]} offset:{XBUF[p]}"); lg.issue(f"x{p}")
        def wread(ks, hds=range(4)):
            for hd in hds:
                for half in range(2):
                    A(f"ds_read_b64_tr_b16 {v(WF + (ks&1)*16 + hd*4 + half*2, 2)}, v{VWR[ks//14]} offset:{(ks%14)*3584 + half*224 + hd*56}"); lg.issue(f"w{ks}_{hd}")
        C = [16, 32, 64, 96]; PK = WF; RS = 112
        A(f"s_lshl_b32 s{sT}, s{SW}, 10\nv_lshrrev_b32 v5, 5, v1\nv_lshl_add_u32 v5, v5, 4, s{sT}\nv_and_b32 v6, 31, v1\nv_lshl_add_u32 v4, v6, 2, s{sT}\nv_mov_b32 v9, 0")
        A(f"s_lshl_b32 s{sU}, s{sHQ}, 8\ns_add_u32 s{sU}, s{sU}, s{sE}")
        if not isv:
            A(f"s_cmp_eq_u32 s{sSEC}, 0\ns_cselect_b32 s{sA}, 0, s{sONES}\ns_cselect_b32 s{sB}, 0, 0x3f80\ns_cselect_b32 s{sC}, {WS_Q}, {WS_KV}")
            A(f"s_add_u32 s{sD_}, s{sSEC}, 11\ns_lshl_b32 s{sU}, s{sU}, s{sD_}\ns_add_u32 s{sU}, s{sU}, s{sC}\ns_lshl_b32 s{sD_}, 64, s{sD_}\nv_mov_b32 v7, s{sA}\nv_mov_b32 v8, s{sB}")
            cr = [f"ds_read_b32 v{RS}, v4 offset:512", f"ds_read_b32 v{RS+2}, v4 offset:640"] + [f"ds_read_b128 {v(C[hd]+4*g,4)}, v5 offset:{hd*112 + g*32}" for hd in range(4) for g in range(4)]
        else:
            A(f"s_lshl_b32 s{sU}, s{sU}, 12\ns_add_u32 s{sU}, s{sU}, {WS_KV + 2048}\ns_mov_b32 s{sD_}, {64*4096}\ns_mov_b32 s{sA}, 0x0fffffff\ns_mov_b32 s{sA+1}, 0x0fffffff")
            A(f"v_cmp_eq_u32 vcc, 28, v6\nv_mov_b32 v7, s{sONES}\nv_cndmask_b32 v8, 0, v7, vcc")
            PK = 96
            for r in range(16): A(f"v_mov_b32 v{PK+r}, v8")
            cr = [f"ds_read_b128 {v(16+4*g,4)}, v5 offset:{512 + g*32}" for g in range(4)] + [f"ds_read_b128 {v(32+4*g,4)}, v5 offset:{640 + g*32}" for g in range(4)] + [f"ds_read_b32 v{RS+2*hd}, v4 offset:{hd*112}" for hd in range(4)]
        for p in range(4):
            k0, k1 = 8*p, min(8*p + 8, 28)
            A("s_barrier"); stamp(f"g{p}")
            xread(p); wread(k0, [0, 1, 2])
            if p == 2: A(f"buffer_load_dwordx2 {v(TAGV,2)}, v9, {R(RDBG)}, 0 offen sc1")
            lg.wait(f"x{p}")
            if p < 2: A("s_barrier")
            wread(k0, [3])
            for ks in range(k0, k1):
                x = v(xf(ks), 4)
                for hd in range(4):
                    lg.wait(f"w{ks}_{hd}")
                    w_ = v(WF + (ks&1)*16 + hd*4, 4); acc = v(ACC + 16*hd, 16)
                    A(f"{MFMA} {acc}, {x if isv else w_}, {w_ if isv else x}, {'0' if ks == 0 else acc}")
                    if ks + 1 < k1: wread(ks + 1, [hd])
                    if p == 3:
                        for _ in range(3 if ks == 27 else (1 if hd & 1 else 0)):
                            if cr: A(cr.pop(0)); lg.issue("c")
        assert not cr
        stamp("mfma_done")
        lg.wait_all()
        for hd in range(4):
            ac = ACC + 16*hd
            if not isv:
                c, o = C[hd], PK + 8*hd
                for r in range(0, 16, 2): A(f"v_pk_mul_f32 {v(c+r,2)}, {v(c+r,2)}, {v(RS+2,2)} op_sel_hi:[1,0]")
                for r in range(0, 16, 2): A(f"v_pk_fma_f32 {v(ac+r,2)}, {v(ac+r,2)}, {v(RS,2)}, {v(c+r,2)} op_sel_hi:[1,0,1]")
            else:
                o = PK + 8*(hd & 1)
                for r in range(0, 16, 2): A(f"v_pk_mul_f32 {v(64+r,2)}, {v(32+r,2)}, {v(RS+2*hd,2)} op_sel_hi:[1,0]")
                for r in range(0, 16, 2): A(f"v_pk_fma_f32 {v(ac+r,2)}, {v(ac+r,2)}, {v(16+r,2)}, {v(64+r,2)}")
                A(f"s_mov_b64 exec, s[{sA}:{sA+1}]")
            for r in range(8): A(f"v_cvt_pk_bf16_f32 v{o+r}, v{ac+2*r}, v{ac+2*r+1}")
            if not isv: A(f"v_cndmask_b32 v{o+6}, v{o+6}, v7, s[{sHI}:{sHI+1}]\nv_cndmask_b32 v{o+7}, v{o+7}, v8, s[{sHI}:{sHI+1}]\nv_and_b32 v{o+3}, 0xfffefffe, v{o+3}\nv_and_b32 v{o+7}, 0xfffefffe, v{o+7}")
            else: A(f"v_and_b32 v{o+3}, -2, v{o+3}\nv_and_b32 v{o+7}, -2, v{o+7}\ns_mov_b64 exec, -1")
            for f in range(2): A(f"buffer_store_dwordx4 {v(o+4*f,4)}, v{VL}, {R(RWS)}, s{sU} offen offset:{f*1024} sc1")
            if hd < 3: A(f"s_add_u32 s{sU}, s{sU}, s{sD_}")
        stamp("kvst"); stamp_flush()
        if not isv: A("s_branch P1_DONE")
    A("P1_DONE:\ns_waitcnt vmcnt(8)")
    get_tag(TAGV, "P1_T")

def tilemax(sreg, T0, T1):
    A(f"v_max3_f32 v{T0}, v{sreg}, v{sreg+1}, v{sreg+2}\nv_max3_f32 v{T1}, v{sreg+3}, v{sreg+4}, v{sreg+5}")
    A(f"v_max3_f32 v{T0}, v{T0}, v{sreg+6}, v{sreg+7}\nv_max3_f32 v{T1}, v{T1}, v{sreg+8}, v{sreg+9}")
    A(f"v_max3_f32 v{T0}, v{T0}, v{sreg+10}, v{sreg+11}\nv_max3_f32 v{T1}, v{T1}, v{sreg+12}, v{sreg+13}")
    A(f"v_max3_f32 v{T0}, v{T0}, v{sreg+14}, v{sreg+15}")
def set_qpad(q, m, T0, T1, T2):
    A(f"v_sub_f32 v{T0}, 0, v{m}\nv_and_b32 v{T1}, 0xffff0000, v{T0}\nv_sub_f32 v{T0}, v{T0}, v{T1}")
    A(f"v_and_b32 v{T2}, 0xffff0000, v{T0}\nv_sub_f32 v{T0}, v{T0}, v{T2}\nv_lshrrev_b32 v{T0}, 16, v{T0}")
    A(f"v_lshrrev_b32 v{T1}, 16, v{T1}\nv_or_b32 v{T1}, v{T1}, v{T2}")
    A(f"v_cndmask_b32 v{q+6}, v{q+6}, v{T1}, s[{sHI}:{sHI+1}]\nv_cndmask_b32 v{q+7}, v{q+7}, v{T0}, s[{sHI}:{sHI+1}]")

NKV = env("NKV", 4)
XR, IR3 = (224, 232) if NKV == 4 else (176, 184)
VRD, VFL, VKV, VONE, VRB, VWO = [240, 241], 242, 243, 244, [246, 247], 248
VO3, VP3, VH, VP4, VG, VP5 = [10, 11], 12, [14, 15], 3, [253, 254], 242
sRO, sGC, sGST, sHFO, sFO, sRT3 = 96, 97, 98, 99, 100, 101
VRW = [249, 250, 251, 252]
def ident3():
    A("v_and_b32 v4, 31, v1\nv_lshrrev_b32 v5, 5, v1\nv_lshlrev_b32 v6, 3, v5\nv_sub_u32 v6, v4, v6")
    for p in range(2):
        for r in range(4):
            A(f"v_cmp_eq_u32 vcc, {16*p+2*r}, v6\nv_cmp_eq_u32 s[{sU}:{sU+1}], {16*p+2*r+1}, v6\nv_cndmask_b32 v{IR3+4*p+r}, 0, v{VONE}, vcc\nv_cndmask_b32 v{IR3+4*p+r}, v{IR3+4*p+r}, v{VONE+1}, s[{sU}:{sU+1}]")
def addr_setup():
    tr_lane_addr(4, 5, 128, 4)
    A(f"s_and_b32 s{sT}, s{SW}, 1\ns_lshl_b32 s{sT}, s{sT}, 5\nv_xor_b32 v4, s{sT}, v4")
    A(f"v_bfe_u32 v5, v1, 3, 1\ns_lshr_b32 s{sT}, s{SW}, 1\nv_xor_b32 v5, s{sT}, v5")
    A(f"v_lshl_add_u32 v6, v5, 6, v4\nv_xor_b32 v5, 1, v5\nv_lshl_add_u32 v7, v5, 6, v4")
    A(f"v_add_u32 v{VRD[0]}, s{sW2W}, v6\nv_add_u32 v{VRD[1]}, s{sW2W}, v7")
    A(f"v_mov_b32 v{VONE}, 0x3f80\nv_mov_b32 v{VONE+1}, 1.0")
    A(f"s_lshl_b32 s{sT}, s{sH}, 2\ns_add_u32 s{sT}, s{sT}, s{SW}\ns_lshl_b32 s{sT}, s{sT}, 16\ns_add_u32 s{sT}, s{sT}, {WS_KV}\nv_add_u32 v{VKV}, s{sT}, v{VL}")
    tr_lane_addr(VWO, 4, 64, 4); A(f"v_add_u32 v{VWO}, {RBUF}, v{VWO}\nv_add_u32 v{VRW[0]}, s{sRBW}, v{VL}")
    for t in range(1, 4):
        A(f"s_add_u32 s{sT}, s{SW}, {t}\ns_and_b32 s{sT}, s{sT}, 3\ns_mul_i32 s{sT}, s{sT}, 12288\ns_add_u32 s{sT}, s{sT}, {RBUF}\nv_add_u32 v{VRW[t]}, s{sT}, v{VL}")
    if NKV == 4: ident3()
    A("v_and_b32 v4, 31, v1\nv_lshrrev_b32 v5, 5, v1")
    A("v_mul_u32_u24 v13, 896, v4\nv_lshl_add_u32 v13, v5, 4, v13")
    A(f"s_lshl_b32 s{sB}, s{sR3}, 11\ns_add_u32 s{sB}, s{sB}, {WS_O}\nv_add_u32 v{VO3[0]}, s{sB}, v{VL}\nv_add_u32 v{VO3[1]}, 0x20000, v{VO3[0]}\ns_and_b32 s{sT}, s{sC3}, 7\ns_lshl_b32 s{sRT3}, s{sT}, 18")
    A(f"s_lshl_b32 s{sT}, s{sT}, 1\nv_add_u32 v{VP3}, s{sT}, v1\nv_and_b32 v{VP3}, 15, v{VP3}\nv_lshlrev_b32 v{VP3}, 17, v{VP3}\ns_add_u32 s{sT}, s{sB}, 2044\nv_add_u32 v{VP3}, s{sT}, v{VP3}")
    mlp_addr(RA, 4, 6)
    A(f"s_lshl_b32 s{sFO}, s{sFT}, 2\ns_add_u32 s{sFO}, s{sFO}, s{SW}\ns_mul_i32 s{sT}, s{sDT4}, {2*112*1024}\ns_lshl_b32 s{sU}, s{sFO}, 10\ns_add_u32 s{sT}, s{sT}, s{sU}\ns_add_u32 s{sGST}, s{sT}, {WS_G}")
    A(f"s_lshr_b32 s{sV}, s{SW}, 1\ns_lshl_b32 s{sT}, s{sST}, 1\ns_add_u32 s{sV}, s{sV}, s{sT}\ns_mul_i32 s{sV}, s{sV}, 7\ns_add_u32 s{sV}, s{sV}, s{sDT5}\ns_lshl_b32 s{sV}, s{sV}, 12\ns_and_b32 s{sT}, s{SW}, 1\ns_lshl_b32 s{sT}, s{sT}, 10\ns_add_u32 s{sV}, s{sV}, s{sT}\ns_add_u32 s{sHFO}, s{sV}, {WS_HF}")
    A(f"s_xor_b32 s{sT}, s{SW}, 3\ns_mul_i32 s{sT}, s{sT}, 28672\ns_add_u32 s{sT}, s{sT}, {13*2048}\nv_add_u32 v{VX3}, s{sT}, v{VL}")

class Role: pass
RA, RB = Role(), Role()
C5A = env("C5A", 12)
RA.n, RA.n4, RA.c4, RA.n5, RA.c5, RA.W, RA.slots = "A", 0, 12, 0, C5A, 128, [0, 1, 2, 3, 4, 5]
RA.VRD, RA.VH, RA.VG, RA.VP4, RA.VP5, RA.VT2, RA.T0, RA.T1 = [240, 241], 14, 253, 3, 242, [246, 247], 4, 5
RB.n, RB.n4, RB.c4, RB.n5, RB.c5, RB.W, RB.slots = "B", 12, 20, C5A, 28 - C5A, 96, [12, 6, 7, 8, 9, 10, 11]
RB.VRD, RB.VH, RB.VG, RB.VP4, RB.VP5, RB.VT2, RB.T0, RB.T1 = [0, 3], 4, 5, 8, 9, [6, 7], 12, 13
VX3 = 15
def w2_addr(r, t0, t1):
    A(f"v_lshrrev_b32 v{t0}, 3, v1\nv_bfe_u32 v{t1}, v1, 4, 1\nv_lshlrev_b32 v{t1}, 2, v{t1}\nv_and_b32 v{r.VT2[0]}, 7, v1\nv_xor_b32 v{t1}, v{r.VT2[0]}, v{t1}\nv_lshlrev_b32 v{t1}, 4, v{t1}\nv_lshl_add_u32 v{t0}, v{t0}, 12, v{t1}")
    A(f"s_mul_i32 s{sT}, s{SW}, {448*4096}\ns_lshl_b32 s{sU}, s{sST}, 7\ns_add_u32 s{sT}, s{sT}, s{sU}\nv_add_u32 v{r.VT2[0]}, s{sT}, v{t0}\nv_add_u32 v{r.VT2[1]}, {8*4096 - 1024}, v{r.VT2[0]}")
    rot4(sRO); A(f"s_lshl_b32 s{sRO}, s{sRO}, 10")
    rot5(sGC); A(f"s_lshl_b32 s{sGC}, s{sGC}, 10")
def mlp_addr(r, t0, t1, w2=True):
    if w2: w2_addr(r, t0, t1)
    A(f"s_lshl_b32 s{sT}, s{SW}, 15\ns_add_u32 s{sT}, s{sT}, {WS_HH}\ns_lshl_b32 s{sB}, s{sDT4}, 18\ns_add_u32 s{sB}, s{sB}, s{sT}\nv_add_u32 v{r.VH}, s{sB}, v{VL}")
    A(f"s_add_u32 s{sT}, s{sRO}, {r.n4*1024}\nv_lshl_add_u32 v{r.VP4}, v1, 11, s{sT}\nv_and_b32 v{r.VP4}, 0x7fff, v{r.VP4}\ns_add_u32 s{sT}, s{sB}, 2044\nv_add_u32 v{r.VP4}, s{sT}, v{r.VP4}")
    A(f"s_mul_i32 s{sT}, s{SW}, {28*1024}\ns_add_u32 s{sT}, s{sT}, {WS_G}\ns_mul_i32 s{sB}, s{sDT5}, {2*112*1024}\ns_add_u32 s{sB}, s{sB}, s{sT}")
    A(f"v_add_u32 v{r.VG}, s{sB}, v{VL}")
    A(f"s_add_u32 s{sT}, s{sGC}, {r.n5*1024}\nv_min_u32 v{t0}, {r.c5 // 2 - 1}, v1\nv_lshl_add_u32 v{r.VP5}, v{t0}, 11, s{sT}\nv_subrev_u32 v{t0}, {28*1024}, v{r.VP5}\nv_min_u32 v{r.VP5}, v{r.VP5}, v{t0}\ns_add_u32 s{sT}, s{sB}, 2044\nv_add_u32 v{r.VP5}, s{sT}, v{r.VP5}")

def p2():
    Q, O, SS, PP, KV = 16, 48, [112, 128], [144, 152], 160
    M = [112, 113, 114, 115]; K0 = 120
    T0, T1, T2, T3 = 4, 5, 6, 7
    sKN = sB
    vm.wait_all(); stamp("kvdrain")
    A(f"s_barrier\ns_cmp_lg_u32 s{SW}, 0\ns_cbranch_scc1 P2_NOF")
    flag_store(sF[0]); flag_store(sF[1]); A("P2_NOF:"); stamp_flush()
    A("P2_START:")
    if env("LOC3", 1):
        A(f"s_getreg_b32 s{sV}, hwreg(HW_REG_XCC_ID, 0, 4)\ns_cmp_lg_u32 s{SW}, 1\ns_cbranch_scc1 P2_NOX")
        A(f"s_lshr_b32 s{sT}, s{sR3}, 2\ns_lshl_b32 s{sT}, s{sT}, 4\ns_add_u32 s{sT}, s{sT}, s{sC3}\ns_lshl_b32 s{sT}, s{sT}, 4\ns_add_u32 s{sT}, s{sT}, {F4}")
        A(f"v_mov_b32 v4, s{sV}\nv_mov_b32 v5, s{sTAG}\nv_mov_b32 v6, s{sV}\nv_mov_b32 v7, s{sTAG+1}\nv_mov_b32 v8, 0\ns_mov_b64 exec, 1\nbuffer_store_dwordx4 v[4:7], v8, {R(RWS)}, s{sT} offen sc1\ns_mov_b64 exec, -1\nP2_NOX:")
    A(f"s_mul_i32 s{sE}, s{sR3}, {32*896}\ns_lshl_b32 s{sU}, s{sC3}, 6\ns_add_u32 s{sE}, s{sE}, s{sU}")
    xl = [f"buffer_load_dwordx4 {v(XR+4*p,4)}, v13, {R(RX)}, s{sE} offen offset:{32*p}" for p in range(2)]
    if NKV == 4: A("\n".join(xl))
    A(f"s_lshl_b32 s{sV}, s{sI}, 2\ns_add_u32 s{sV}, s{sV}, s{SW}\ns_lshl_b32 s{sU}, s{sH}, 6\ns_add_u32 s{sU}, s{sU}, s{sV}\ns_lshl_b32 s{sU}, s{sU}, 11")
    A(f"s_lshr_b32 s{sT}, s{sH}, 2\ns_lshl_b32 s{sT}, s{sT}, 13\ns_add_u32 s{sT}, s{sT}, {F1}\ns_lshl_b32 s{sA}, s{SW}, 9\ns_add_u32 s{sA}, s{sA}, 2048\ns_lshl_b32 s{sC}, s{sI}, 7")
    A(f"v_and_b32 v7, 3, v1\nv_lshl_add_u32 v7, v7, 7, s{sA}\nv_bfe_u32 v8, v1, 2, 1\nv_lshl_add_u32 v7, v8, 11, v7\nv_writelane_b32 v7, s{sC}, 8")
    poll(7, sT, 9, 8); stamp("s1")
    def kvload(n):
        pre = []
        if n == 0: pre = [f"s_add_u32 s{sA}, s{RWS}, 4096", f"s_addc_u32 s{sA+1}, s{RWS+1}, 0"]
        elif n % 2 == 0: pre = [f"s_add_u32 s{sA}, s{sA}, 8192", f"s_addc_u32 s{sA+1}, s{sA+1}, 0"]
        return pre + [f"global_load_dwordx4 {v(KV+16*(n%NKV)+4*f,4)}, v{VKV}, s[{sA}:{sA+1}] offset:{(n % 2 - 1)*4096 + f*1024} sc1" for f in range(4)]
    def emit(lines, tag):
        for ln in lines:
            A(ln)
            if ln.startswith("global_"): vm.issue(tag)
    for f in range(2): A(f"buffer_load_dwordx4 {v(Q+4*f,4)}, v{VL}, {R(RWS)}, s{sU} offen offset:{f*1024} sc1"); vm.issue("q")
    emit(kvload(0), "kv0")
    A("s_waitcnt vmcnt(2)"); stamp("qk0")
    A(f"{MFMA} {v(O,16)}, {v(KV,4)}, {v(Q,4)}, 0\n{MFMA} {v(O,16)}, {v(KV+4,4)}, {v(Q+4,4)}, {v(O,16)}")
    emit(kvload(1), "kv1")
    A(f"ds_write_b128 v{VRW[0]}, {v(Q,4)}")
    tilemax(O, T0, T1)
    A(f"v_max_f32 v{T0}, v{T0}, v{T1}\nv_mov_b32 v{T1}, v{T0}\nv_permlane32_swap_b32 v{T0}, v{T1}\nv_max_f32 v{T0}, v{T0}, v{T1}")
    set_qpad(Q, T0, T1, T2, T3)
    A(f"ds_write_b128 v{VRW[0]}, {v(Q+4,4)} offset:1024")
    A(f"{MFMA} {v(SS[0],16)}, {v(KV,4)}, {v(Q,4)}, 0\n{MFMA} {v(SS[0],16)}, {v(KV+4,4)}, {v(Q+4,4)}, {v(SS[0],16)}")
    emit(kvload(2), "kv2")
    A("s_waitcnt lgkmcnt(0)")
    A("s_barrier")
    for t in range(1, 4): A(f"ds_read_b128 {v(Q+8*t,4)}, v{VRW[t]}\nds_read_b128 {v(Q+8*t+4,4)}, v{VRW[t]} offset:1024")
    emit(kvload(3), "kv3")
    if env("APRIO", 0): A(f"s_setprio {env('APRIO', 0)}")
    A("P2_MAIN:")
    slot = lambda idx: (idx + (idx >= 60)) & 3
    pwr = lambda t, g: f"ds_write_b128 v{VRW[t]}, {v(O+16*t+4*g,4)} offset:{(t-1)*4096 + g*1024}"
    def qk(idx, part):
        n, t = idx >> 2, slot(idx); sr = SS[idx & 1]; k = KV + 16*(n % NKV)
        return f"{MFMA} {v(sr,16)}, {v(k+4*part,4)}, {v(Q+8*t+4*part,4)}, {'0' if part == 0 else v(sr,16)}"
    def pv(idx, part):
        n, t = idx >> 2, slot(idx); k = KV + 16*(n % NKV) + 8; o = O + 16*t
        return f"{MFMA} {v(o,16)}, {v(k+4*part,4)}, {v(PP[idx&1]+4*part,4)}, {'0' if (n == 0 and part == 0) else v(o,16)}"
    NI = 64
    for idx in range(NI):
        n, t = idx >> 2, idx & 3
        if idx in (16, 32, 48): stamp(f"a{idx}")
        side = [[], [], [], []]
        if NKV > 4 and idx == 53: side = [xl[:1], [], xl[1:], []]
        if t in (1, 2) and 4 <= n + NKV - 1 < 16:
            l = kvload(n + NKV - 1); pre, ld = l[:-4], l[-4:]
            side = [pre[:1], pre[1:], ld[0:1], ld[1:2]] if t == 1 else [ld[2:3], ld[3:4], [], []]
        if idx == 62: side = [[], [pwr(1, 0)], [pwr(1, 1)], [pwr(1, 2)]]
        if idx == 63: side = [[], [pwr(2, 0), pwr(2, 1)], [], [pwr(2, 2)]]
        if idx == env("CUTAT", 61): side[0].append(f"ds_write_b32 v{VRW[1]}, v{VONE} offset:3072")
        mf = [qk(idx+1, 0) if idx+1 < NI else None, pv(idx-1, 0) if idx > 0 else None,
              qk(idx+1, 1) if idx+1 < NI else None, pv(idx-1, 1) if idx > 0 else None]
        if idx == 0: mf = [None, "s_waitcnt lgkmcnt(0)\n" + mf[0], mf[2], None]
        sr, p = SS[idx & 1], PP[idx & 1]
        for q in range(4):
            if mf[q]: A(mf[q])
            emit(side[q], f"kv{n+NKV-1}")
            if idx == 0 and q == 2: vm.wait("kv0")
            if t == 2 and q == 3 and n + 1 < 16: vm.wait(f"kv{n+1}")
            for j in range(4): A(f"v_exp_f32 v{sr+4*q+j}, v{sr+4*q+j}")
            if q > 0:
                for j in range(2): A(f"v_cvt_pk_bf16_f32 v{p+2*(q-1)+j}, v{sr+4*(q-1)+2*j}, v{sr+4*(q-1)+2*j+1}")
        for j in range(2): A(f"v_cvt_pk_bf16_f32 v{p+6+j}, v{sr+12+2*j}, v{sr+12+2*j+1}")
    A("P2_TAIL:"); A(pv(NI-1, 0)); A(pv(NI-1, 1)); stamp("aend")
    for g in range(3): A(pwr(3, g))
    A(f"s_mov_b32 s{sT}, {fl(2.0**30)}")
    A(f"v_cmp_nlt_f32 s[{sA}:{sA+1}], v{O+60}, s{sT}\nv_cmp_nlt_f32 s[{sC}:{sC+1}], v{O+28}, s{sT}\ns_or_b32 s{sU}, s{sA+1}, s{sC+1}")
    A(f"v_cmp_nlt_f32 s[{sA}:{sA+1}], v{O+44}, s{sT}\nv_cmp_nlt_f32 s[{sC}:{sC+1}], v{O+12}, s{sT}\ns_or_b32 s{sU}, s{sU}, s{sA+1}\ns_or_b32 s{sU}, s{sU}, s{sC+1}")
    A(f"s_cselect_b32 s{sU}, 1.0, 0\nv_mov_b32 v{T0}, s{sU}")
    for t in range(4): A(f"v_cndmask_b32 v{O+16*t+13}, v{O+16*t+13}, v{T0}, s[{sHI}:{sHI+1}]")
    for t in range(1, 4): A(f"ds_write_b128 v{VRW[t]}, {v(O+16*t+12,4)} offset:{(t-1)*4096 + 3*1024}")
    A(f"s_lshl_b32 s{sD_}, s{sI}, 2\ns_add_u32 s{sD_}, s{sD_}, s{SW}\ns_lshl_b32 s{sV}, s{sH}, 6\ns_add_u32 s{sV}, s{sV}, s{sD_}\ns_lshl_b32 s{sV}, s{sV}, 11\ns_add_u32 s{sV}, s{sV}, {WS_O}")
    A("s_waitcnt lgkmcnt(0)\ns_barrier")
    for g in (3, 0, 1, 2):
        for t in range(1, 4): A(f"ds_read_b128 {v(O+16*t+4*g,4)}, v{VRW[0]} offset:{(t-1)*4096 + g*1024}")
    def red(g):
        for r in (4*g, 4*g+2):
            A(f"v_pk_add_f32 {v(O+r,2)}, {v(O+r,2)}, {v(O+16+r,2)}\nv_pk_add_f32 {v(O+32+r,2)}, {v(O+32+r,2)}, {v(O+48+r,2)}")
        for r in (4*g, 4*g+2): A(f"v_pk_add_f32 {v(O+r,2)}, {v(O+r,2)}, {v(O+32+r,2)}")
    A("s_waitcnt lgkmcnt(9)"); red(3)
    A(f"v_readlane_b32 s{sT}, v{O+13}, 32\nv_mov_b32 v{T0}, v{O+12}\nv_mov_b32 v{T2}, v{O+12}\nv_permlane32_swap_b32 v{T0}, v{T2}\nv_rcp_f32 v{T2}, v{T2}")
    A(f"s_cmp_lg_u32 s{sT}, s{sRETRY}\ns_cbranch_scc1 P2_FALL\nP2_FIN:")
    for k, g in enumerate((0, 1, 2)):
        A(f"s_waitcnt lgkmcnt({6 - 3*k})"); red(g)
    for r in range(0, 16, 2): A(f"v_pk_mul_f32 {v(O+r,2)}, {v(O+r,2)}, {v(T2,2)} op_sel_hi:[1,0]")
    for r in range(8): A(f"v_cvt_pk_bf16_f32 v{O+16+r}, v{O+2*r}, v{O+2*r+1}")
    A(f"v_cndmask_b32 v{O+22}, v{O+22}, 0, s[{sHI}:{sHI+1}]\nv_cndmask_b32 v{O+23}, v{O+23}, 0, s[{sHI}:{sHI+1}]")
    A(f"s_mov_b32 s{sT}, 0xfffeffff\nv_and_or_b32 v{O+19}, v{O+19}, s{sT}, 1\nv_and_or_b32 v{O+23}, v{O+23}, s{sT}, 1")
    for f in range(2): A(f"buffer_store_dwordx4 {v(O+16+4*f,4)}, v{VL}, {R(RWS)}, s{sV} offen offset:{f*1024} sc1")
    stamp("ost")
    if STAMP and env("ACK", 0): A("s_waitcnt vmcnt(0)"); stamp("oack")
    stamp_flush()
    A("s_barrier")
    def fallback():
        A(f"P2_FALL:\ns_cmp_lg_u32 s{sRETRY}, 0\ns_cbranch_scc1 P2_FIN")
        A(f"s_mov_b32 s{sRETRY}, -1\ns_waitcnt vmcnt(0) lgkmcnt(0)")
        for t in range(4):
            A(f"v_cndmask_b32 v{Q+8*t+6}, v{Q+8*t+6}, 0, s[{sHI}:{sHI+1}]\nv_cndmask_b32 v{Q+8*t+7}, v{Q+8*t+7}, 0, s[{sHI}:{sHI+1}]\nv_mov_b32 v{M[t]}, 0xff800000")
        A(f"s_mov_b32 s{sU}, 0\nP2_MAXLOOP:")
        for f in range(2): A(f"buffer_load_dwordx4 {v(K0+4*f,4)}, v{VKV}, {R(RWS)}, s{sU} offen offset:{f*1024} sc1")
        A("s_waitcnt vmcnt(0)")
        for t in range(4):
            A(f"{MFMA} {v(O+16*t,16)}, {v(K0,4)}, {v(Q+8*t,4)}, 0\n{MFMA} {v(O+16*t,16)}, {v(K0+4,4)}, {v(Q+8*t+4,4)}, {v(O+16*t,16)}")
        for t in range(4):
            tilemax(O+16*t, T0, T1); A(f"v_max3_f32 v{M[t]}, v{M[t]}, v{T0}, v{T1}")
        A(f"s_add_u32 s{sU}, s{sU}, 4096\ns_cmp_lt_u32 s{sU}, {16*4096}\ns_cbranch_scc1 P2_MAXLOOP")
        A(f"s_barrier\nv_and_b32 v{T3}, 31, v1\nv_lshlrev_b32 v{T3}, 4, v{T3}")
        for t in range(4):
            A(f"v_mov_b32 v{T2}, v{M[t]}\nv_permlane32_swap_b32 v{M[t]}, v{T2}\nv_max_f32 v{M[t]}, v{M[t]}, v{T2}")
            A(f"s_add_u32 s{sT}, s{SW}, {t}\ns_and_b32 s{sT}, s{sT}, 3\ns_lshl_b32 s{sT}, s{sT}, 9\ns_add_u32 s{sT}, s{sT}, {RBUF}\ns_lshl_b32 s{sU}, s{SW}, 2\ns_add_u32 s{sU}, s{sU}, s{sT}")
            A(f"v_add_u32 v{K0+t}, s{sT}, v{T3}\nv_add_u32 v{T2}, s{sU}, v{T3}\nds_write_b32 v{T2}, v{M[t]}")
        A("s_waitcnt lgkmcnt(0)\ns_barrier")
        for t in range(4): A(f"ds_read_b128 {v(O+4*t,4)}, v{K0+t}")
        for n in range(4):
            for ln in kvload(n): A(ln)
        A("s_waitcnt vmcnt(0) lgkmcnt(0)\ns_barrier")
        for t in range(4):
            A(f"v_max3_f32 v{M[t]}, v{O+4*t}, v{O+4*t+1}, v{O+4*t+2}\nv_max_f32 v{M[t]}, v{M[t]}, v{O+4*t+3}")
            set_qpad(Q+8*t, M[t], T0, T1, T2)
        A(qk(0, 0)); A(qk(0, 1))
        A("s_branch P2_MAIN")
    return fallback

def p3():
    EP = env("EP", 0)
    D1, D2, TF = 96, 112, 80 if EP else 176
    ofr = (lambda ks: 16 + 4*(ks & 15)) if EP else (lambda ks: 16 + 4*ks if ks < 20 else 128 + 4*(ks - 20))
    T0, T1, T2, T3 = 8, 9, 4, 5
    if NKV > 4: ident3(); A("s_waitcnt vmcnt(2)")
    A(f"{MFMA} {v(D1,16)}, {v(XR,4)}, {v(IR3,4)}, 0\n{MFMA} {v(D2,16)}, {v(IR3,4)}, {v(XR,4)}, 0")
    A(f"{MFMA} {v(D1,16)}, {v(XR+4,4)}, {v(IR3+4,4)}, {v(D1,16)}\n{MFMA} {v(D2,16)}, {v(IR3+4,4)}, {v(XR+4,4)}, {v(D2,16)}")
    for sl in range(1, 4):
        A(f"s_xor_b32 s{sU}, s{SW}, {sl}\ns_mul_i32 s{sU}, s{sU}, 12288\ns_add_u32 s{sU}, s{sU}, {RBUF}\nv_add_u32 v{VRW[sl]}, s{sU}, v{VL}")
    A(f"s_barrier\ns_cmp_lt_u32 s{sC3}, 14\ns_cbranch_scc0 P3_END")
    vm.q = []; lg.q = []
    so = Stream("SO", 8, lambda g: [(ofr(4*g+k), VO3[k >> 1], (k & 1)*1024) for k in range(4)],
                lambda g: A(f"s_add_u32 s{sT}, s{sRT3}, {g << 18}\ns_and_b32 s{sT}, s{sT}, 0x1fffff"), T0, 1, VP3, T1, None, None if env("GT3", 0) else 0)
    NPRE = env("NPRE", 4)
    if env("LOC3", 1):
        A(f"s_lshr_b32 s{sT}, s{sR3}, 2\ns_lshl_b32 s{sT}, s{sT}, 8\ns_add_u32 s{sT}, s{sT}, {F4}\nv_min_u32 v6, 13, v1\nv_lshlrev_b32 v6, 4, v6\nbuffer_load_dwordx4 {v(192,4)}, v6, {R(RWS)}, s{sT} offen sc1")
    stamp("p3pre")
    for m in range(NPRE): so.issue(m)
    stamp("p3gate")
    LAG = env("LAG", 8)
    tf = lambda ks: TF + 4*(ks & 3) if ks < 32 - LAG else 192 + 4*(ks - 32 + LAG)
    def wread(ks):
        n, p = ks >> 1, ks & 1
        for half in range(2):
            A(f"ds_read_b64_tr_b16 {v(tf(ks)+2*half,2)}, v{VWO} offset:{(n>>2)*12288 + (n&3)*2048 + (16*p+8*half)*64}"); lg.issue(f"w{ks}")
    wread(0); wread(1)
    A("v_and_b32 v6, 31, v1\nv_lshlrev_b32 v6, 4, v6\nv_lshrrev_b32 v7, 5, v1\nv_mul_u32_u24 v7, 3584, v7\nv_add_u32 v6, v6, v7")
    so.check1(0); so.check2(0)
    if env("LOC3", 1):
        A(f"s_getreg_b32 s{sV}, hwreg(HW_REG_XCC_ID, 0, 4)\nv_xor_b32 v192, s{sV}, v192\nv_xor_b32 v193, s{sTAG}, v193\nv_xor_b32 v194, s{sV}, v194\nv_xor_b32 v195, s{sTAG+1}, v195")
        A(f"v_or3_b32 v192, v192, v193, v194\nv_or_b32 v192, v192, v195\nv_cmp_ne_u32 vcc, 0, v192\ns_or_b32 s{sE}, vcc_lo, vcc_hi")
    for ks in range(32):
        lg.wait(f"w{ks}")
        if ks in (0, 16): stamp(f"p3_{ks}")
        o, wv = v(ofr(ks), 4), v(tf(ks), 4)
        A(f"{MFMA} {v(D2,16)}, {wv}, {o}, {v(D2,16)}")
        if ks + 2 < 32 - LAG: wread(ks + 2)
        if 32 - 2*LAG - 2 <= ks < 32 - LAG - 2: wread(ks + LAG + 2)
        if ks < 32 - LAG: A(f"{MFMA} {v(D1,16)}, {o}, {wv}, {v(D1,16)}")
        if ks % 4 < 2:
            for k in range(2): so.issue_part(NPRE + ks//4, 2*(ks % 4) + k)
        if ks % 4 == 2: so.check1(ks//4 + 1)
        if ks % 4 == 3: so.check2(ks//4 + 1)
    stamp("p3mm")
    G = 16
    A(f"s_lshl_b32 s{sB}, s{sR3}, 13\ns_add_u32 s{sB}, s{sB}, {WS_ST}\ns_lshl_b32 s{sT}, s{sC3}, 9\ns_add_u32 s{sT}, s{sT}, s{sB}")
    A(f"v_mov_b32 v{G+1}, s{sTAG}\nv_mov_b32 v{G+3}, s{sTAG+1}")
    A(f"v_pk_add_f32 v[20:21], {v(D2,2)}, {v(D2+2,2)}\nv_pk_mul_f32 v[22:23], {v(D2,2)}, {v(D2,2)}\nv_pk_fma_f32 v[22:23], {v(D2+2,2)}, {v(D2+2,2)}, v[22:23]")
    for r in range(4, 16, 2): A(f"v_pk_add_f32 v[20:21], v[20:21], {v(D2+r,2)}\nv_pk_fma_f32 v[22:23], {v(D2+r,2)}, {v(D2+r,2)}, v[22:23]")
    A(f"v_add_f32 v{G}, v20, v21\nv_add_f32 v{G+2}, v22, v23")
    A(f"v_mov_b32 v20, v{G}\nv_mov_b32 v22, v{G+2}\nv_permlane32_swap_b32 v{G}, v20\nv_permlane32_swap_b32 v{G+2}, v22\nv_add_f32 v{G}, v{G}, v20\nv_add_f32 v{G+2}, v{G+2}, v22")
    set_exec(0xFFFFFFFF)
    if env("LOC3", 1):
        A(f"s_cmp_lg_u32 s{sE}, 0\ns_cbranch_scc1 P3_FAR\nbuffer_store_dwordx4 {v(G,4)}, v{VL}, {R(RWS)}, s{sT} offen\nP3_FARX:\ns_mov_b64 exec, -1")
        handlers.append(lambda: A(f"P3_FAR:\nbuffer_store_dwordx4 {v(G,4)}, v{VL}, {R(RWS)}, s{sT} offen sc1\ns_branch P3_FARX"))
    else: A(f"buffer_store_dwordx4 {v(G,4)}, v{VL}, {R(RWS)}, s{sT} offen sc1\ns_mov_b64 exec, -1")
    GR = 32
    def gl():
        for k in range(7): A(f"buffer_load_dwordx4 {v(GR+4*k,4)}, v6, {R(RWS)}, s{sB} offen offset:{k*512} sc1")
    for r in range(8): A(f"v_cvt_pk_bf16_f32 v{24+r}, v{D2+2*r}, v{D2+2*r+1}")
    A(f"s_mul_i32 s{sT}, s{sR3}, 14\ns_add_u32 s{sT}, s{sT}, s{sC3}\ns_lshl_b32 s{sT}, s{sT}, 11\ns_add_u32 s{sT}, s{sT}, {WS_HF}")
    if env("S3W", 0): A("s_waitcnt vmcnt(0)")
    stamp("s3pre")
    for ks in range(32 - LAG, 32): A(f"{MFMA} {v(D1,16)}, {v(ofr(ks),4)}, {v(tf(ks),4)}, {v(D1,16)}")
    gl()
    for p in range(2): A(f"buffer_store_dwordx4 {v(24+4*p,4)}, v{VL}, {R(RWS)}, s{sT} offen offset:{p*1024} sc1")
    A("s_waitcnt vmcnt(2)")
    tagcheck([GR+4*k for k in range(7)], T1, T2, T3)
    A("s_cbranch_vccnz P3_GH\nP3_GX:")
    def gh():
        A(f"P3_GH:\ns_mov_b32 s{sTO}, 0x8000\nP3_GL:"); gl()
        A(f"s_sub_u32 s{sTO}, s{sTO}, 1\ns_waitcnt vmcnt(0)\ns_cbranch_scc1 P3_GX")
        tagcheck([GR+4*k for k in range(7)], T1, T2, T3)
        A("s_cbranch_vccnz P3_GL\ns_branch P3_GX")
    handlers.append(gh)
    vm.q = []
    stamp("s3")
    for k in range(1, 7): A(f"v_add_f32 v{GR}, v{GR}, v{GR+4*k}\nv_add_f32 v{GR+2}, v{GR+2}, v{GR+4*k+2}")
    m, q = GR, GR+2
    A(f"v_mov_b32 v{T0}, v{m}\nv_mov_b32 v{T1}, v{q}\nv_permlane32_swap_b32 v{m}, v{T0}\nv_permlane32_swap_b32 v{q}, v{T1}\nv_add_f32 v{m}, v{m}, v{T0}\nv_add_f32 v{q}, v{q}, v{T1}")
    A(f"v_mul_f32 v{m}, {fl(1.0/D)}, v{m}\nv_mul_f32 v{q}, {fl(1.0/D)}, v{q}\nv_fma_f32 v{q}, -v{m}, v{m}, v{q}\nv_max_f32 v{q}, 0, v{q}")
    A(f"v_add_f32 v{T0}, {fl(EPS)}, v{q}\nv_mul_f32 v{T0}, {fl(EPS)}, v{T0}\nv_add_f32 v{q}, v{q}, v{T0}\nv_rsq_f32 v{q}, v{q}\ns_add_u32 s{sT}, s{sRBW}, 8192\nv_mul_f32 v{m}, v{m}, v{q}")
    A(f"v_cndmask_b32 v{T0}, v{q}, v{m}, s[{sHI}:{sHI+1}]\nv_lshl_add_u32 v{T1}, v1, 2, s{sT}\nds_write_b32 v{T1}, v{T0}")
    A(f"v_lshrrev_b32 v{T2}, 5, v1\nv_lshl_add_u32 v{T2}, v{T2}, 4, s{sT}")
    for g in range(4): A(f"ds_read_b128 {v(64+4*g,4)}, v{T2} offset:{g*32}\nds_read_b128 {v(80+4*g,4)}, v{T2} offset:{128+g*32}")
    A(f"s_lshl_b32 s{sT}, s{sC3}, 17\ns_lshl_b32 s{sU}, s{sR3}, 11\ns_add_u32 s{sT}, s{sT}, s{sU}\ns_add_u32 s{sT}, s{sT}, {WS_HH}")
    for p in range(2):
        A(f"s_waitcnt lgkmcnt({4 - 4*p})")
        for r in range(8*p, 8*p+8, 2): A(f"v_pk_fma_f32 {v(D1+r,2)}, {v(D1+r,2)}, {v(64+r,2)}, {v(80+r,2)} neg_lo:[0,0,1] neg_hi:[0,0,1]")
        for r in range(4*p, 4*p+4): A(f"v_cvt_pk_bf16_f32 v{16+r}, v{D1+2*r}, v{D1+2*r+1}")
        A(f"v_or_b32 v{19+4*p}, 0x10000, v{19+4*p}")
        if p == 0: A("s_waitcnt vmcnt(0)")
        A(f"buffer_store_dwordx4 {v(16+4*p,4)}, v{VL}, {R(RWS)}, s{sT} offen offset:{p*1024} sc1")
    stamp("hhst")
    if STAMP and env("ACK", 0): A("s_waitcnt vmcnt(0)"); stamp("hhack")
    stamp_flush()
    A("P3_END:")
    preread()
    A("s_waitcnt lgkmcnt(0)\ns_barrier")
    if env("X1B", 1): A("s_barrier")
    vm.q = []; lg.q = []

ACC, RING, TMP = 16, 48, 96
def wread_step(r, m, slot, tag=None):
    for ti in range(2):
        for half in range(2):
            A(f"ds_read_b64_tr_b16 {v(r.W + 8*m + ti*4 + half*2, 2)}, v{r.VRD[ti]} offset:{slot*2048 + half*1024}")
            if tag is not None: lg.issue(tag)
def unswap(r): A(f"s_and_b32 s{sT}, s{SW}, 1\ns_lshl_b32 s{sT}, s{sT}, 5\nv_xor_b32 v{r.VRD[0]}, s{sT}, v{r.VRD[0]}\nv_xor_b32 v{r.VRD[1]}, s{sT}, v{r.VRD[1]}")
def preread():
    for n in range(RA.c4): wread_step(RA, n, n)
    unswap(RA)
def w2soff(n): A(f"s_add_u32 s{sA}, s{sGC}, {n*1024}\ns_sub_u32 s{sB}, s{sA}, {28*1024}\ns_min_u32 s{sA}, s{sA}, s{sB}\ns_lshl_b32 s{sA}, s{sA}, 6")
def w2dma(r, m):
    w2soff(r.n5 + m)
    A(f"s_add_u32 m0, s{sW2W}, {r.slots[m % len(r.slots)]*2048}")
    for j in range(2): A(f"buffer_load_dwordx4 v{r.VT2[j]}, {R(RW2)}, s{sA} offen offset:{j*1024} lds"); vm.issue(("d", m))
def w2read(r, m):
    vm.wait(("d", m)); wread_step(r, m, r.slots[m % len(r.slots)], ("r", m))

def mlp(r, VDR=None, VDW=None):
    isA = r is RA
    N, L = r.n, len(r.slots)
    BR, B2R, VO, IR, HR = 6, 10, 12, 224, 228
    G4, G5 = r.c4 // 4, r.c5 // 4
    dreg = lambda t, k: RING + (t % 3)*16 + 4*k
    VG5, VW5 = [6, 7, 8, 9], 11
    def pw(q, j, H):
        if H >= 2: return f"ds_write_b128 v{VW5 if isA else VDR}, {v(ACC+8*q+4*j,4)} offset:{q*2048 + j*1024}"
        if isA: return f"ds_write_b128 v{VRW[0]}, {v(ACC+8*q+4*j,4)} offset:{(q-1)*2048 + j*1024}"
        return f"ds_write_b128 v{VDR if q < 3 else VDW}, {v(ACC+8*q+4*j,4)} offset:{(6144 + q*2048 if q < 3 else 13*2048) + j*1024}"
    def add(d, a_, b_, pk):
        if pk:
            for k in range(0, 4, 2): A(f"v_pk_add_f32 {v(d+k,2)}, {v(a_+k,2)}, {v(b_+k,2)}")
        else:
            for k in range(4): A(f"v_add_f32 v{d+k}, v{a_+k}, v{b_+k}")
    OWN = 232
    def gather(pk, wide, mid=None):
        src = lambda j: [(VRW[q], (q-1)*2048 + j*1024) for q in range(1, 4)] + [(VRW[q], 6144 + q*2048 + j*1024) for q in range(3)] + [(VX3, j*1024)]
        base = [TMP, ACC if wide else TMP]
        def rd(j):
            for k, (va, off) in enumerate(src(j)): A(f"ds_read_b128 {v(base[j]+4*k,4)}, v{va} offset:{off}")
        def sm(j):
            b, o = base[j], OWN + 4*j
            add(b, b, b+4, pk); add(b+8, b+8, b+12, pk); add(b+16, b+16, b+20, pk); add(o, o, b+24, pk)
            add(b, b, b+8, pk); add(o, o, b+16, pk); add(o, o, b, pk)
        if wide:
            rd(0); rd(1)
            if mid: mid()
            A("s_waitcnt lgkmcnt(7)"); sm(0); A("s_waitcnt lgkmcnt(0)"); sm(1)
        else:
            for j in range(2): rd(j); A("s_waitcnt lgkmcnt(0)"); sm(j)
    def gather5(pk, wide):
        base = [TMP, ACC if wide else TMP]
        def rd(j):
            for k in range(8): A(f"ds_read_b128 {v(base[j]+4*k,4)}, v{VG5[k >> 1]} offset:{(k & 1)*(28672 if k < 4 else 12288) + j*512}")
        def sm(j):
            b, o = base[j], OWN + 4*j
            add(b, b, b+4, pk); add(b+8, b+8, b+12, pk); add(b+16, b+16, b+20, pk); add(b+24, b+24, b+28, pk)
            add(b, b, b+8, pk); add(b+16, b+16, b+24, pk)
            for k in range(4): A(f"v_add_f32 v{b+k}, v{b+k}, v{B2R}")
            add(o, b, b+16, pk)
        if wide: rd(0); rd(1); A("s_waitcnt lgkmcnt(8)"); sm(0); A("s_waitcnt lgkmcnt(0)"); sm(1)
        else:
            for j in range(2): rd(j); A("s_waitcnt lgkmcnt(0)"); sm(j)
    def p5setup():
        A(f"v_and_b32 v6, 31, v1\nv_lshrrev_b32 v7, 5, v1\ns_and_b32 s{sB}, s{SW}, 1\ns_lshl_b32 s{sB}, s{sB}, 4\nv_lshl_add_u32 v7, v7, 2, s{sB}\nv_sub_u32 v6, v6, v7")
        for k in range(4):
            d0 = 8*(k >> 1) + 2*(k & 1)
            A(f"v_cmp_eq_u32 s[{sA}:{sA+1}], {d0}, v6\nv_cmp_eq_u32 s[{sC}:{sC+1}], {d0+1}, v6\nv_cndmask_b32 v{IR+k}, 0, v{VONE}, s[{sA}:{sA+1}]\nv_cndmask_b32 v{IR+k}, v{IR+k}, v{VONE+1}, s[{sC}:{sC+1}]")
        A(f"v_lshrrev_b32 v6, 2, v1\nv_and_b32 v7, 3, v1\nv_mul_u32_u24 v{VO}, 896, v6\nv_lshl_add_u32 v{VO}, v7, 4, v{VO}\ns_lshl_b32 s{sA}, s{sST}, 2\ns_add_u32 s{sA}, s{sA}, s{SW}")
        A(f"s_mul_i32 s{sE}, s{sA}, {16*896}\ns_lshl_b32 s{sB}, s{sDT5}, 7\ns_add_u32 s{sE}, s{sE}, s{sB}\ns_lshl_b32 s{sA}, s{sA}, 5\nv_lshlrev_b32 v8, 1, v6\nbuffer_load_ushort v{B2R}, v8, {R(RB2)}, s{sA} offen")
        A(f"v_lshlrev_b32 v6, 4, v6\nv_lshl_add_u32 v6, v7, 10, v6\ns_and_b32 s{sA}, s{SW}, 1\ns_lshl_b32 s{sA}, s{sA}, 8\ns_lshr_b32 s{sB}, s{SW}, 1\ns_lshl_b32 s{sB}, s{sB}, 12\ns_add_u32 s{sA}, s{sA}, s{sB}\nv_add_u32 v6, s{sA}, v6")
        A(f"v_xor_b32 v7, 4096, v6\nv_add_u32 v8, {RBUF}, v6\nv_add_u32 v9, {RBUF + 2*12288}, v7\nv_add_u32 v7, {2*28672}, v7\nv_add_u32 v{VW5}, s{sW2W}, v{VL}")
    mk5 = lambda nm: Stream(nm + N, 2*G5, lambda g: [(dreg(2*G4 + g, k), r.VG, k*1024) for k in range(4)],
                lambda g: A(f"s_add_u32 s{sT}, s{sGC}, {(r.n5 + (g % G5)*4)*1024}\ns_sub_u32 s{sU}, s{sT}, {28*1024}\ns_min_u32 s{sT}, s{sT}, s{sU}" + (f"\ns_add_u32 s{sT}, s{sT}, {112*1024}" if g >= G5 else "")),
                r.T0, 1, r.VP5, r.T1, lambda g: (1 << 2*G5) - 1, G5)
    NP5 = min(3, G5)
    DB0 = env("DB0", 4)
    R2E, NE3 = env("R2E", 0), max(0, r.c5 - 2*L)
    A(f"s_cmp_lg_u32 s{sACT4}, 0\ns_cbranch_scc1 P4_GO{N}\ns_cmp_ge_u32 s{sJ}, 28\ns_cbranch_scc1 MLP_END{N}")
    q0 = list(vm.q); lg.q = []
    A("s_waitcnt lgkmcnt(0)\ns_barrier")
    if not isA and env("DL", 0) == 2:
        for m in range(1, 7): w2dma(r, m)
    for m in range(L): w2read(r, m)
    lg.wait_all()
    for m in range(L, min(2*L, r.c5)): w2dma(r, m)
    if R2E and NE3:
        for m in range(L, L + NE3): w2read(r, m)
        lg.wait_all()
        for m in range(2*L, r.c5): w2dma(r, m)
    si = mk5("SI")
    if isA: p5setup()
    for g in range(G5): si.gate(g)
    si.gated = 0
    for g in range(NP5): si.issue(g)
    ER = {2: env("ER2", 2), 3: env("ER3", -1)}
    RL = env("RL", 1)
    if isA and ER[2] >= 0: A("s_barrier")
    A(f"s_branch P5_IN{N}\nP4_GO{N}:")
    vm.q = q0; lg.q = []
    sg = mk5("SG"); sg.gated = 0
    A(f"s_mov_b32 s{sV}, 0x10000")
    if isA:
        A(f"s_lshl_b32 s{sA}, s{sFO}, 5\nv_lshrrev_b32 v{r.T0}, 5, v1\nv_lshlrev_b32 v{r.T0}, 3, v{r.T0}")
        for g in range(2): A(f"buffer_load_dwordx2 {v(BR+2*g,2)}, v{r.T0}, {R(RB1)}, s{sA} offen offset:{g*16}")
        if env("ACKW", 0): A("s_waitcnt vmcnt(0)")
    sh = Stream("SH" + N, 2*G4, lambda g: [(dreg(g, k), r.VH, k*1024) for k in range(4)],
                lambda g: A(f"s_add_u32 s{sT}, s{sRO}, {(r.n4 + (g % G4)*4)*1024}\ns_and_b32 s{sT}, s{sT}, 0x7fff" + (f"\ns_bitset1_b32 s{sT}, 17" if g >= G4 else "")),
                r.T0, f"s{sV}", r.VP4, r.T1, lambda g: (1 << 2*G4) - 1, G4 if env("GT4", 2) else 0)
    if env("GT4", 2) == 2: A(f"s_cmp_lt_u32 s{sC3}, 14\ns_cselect_b32 s{sMISS}, 0, s{sMISS}")
    seq = [(sh, g) for g in range(2*G4)] + [(sg, g) for g in range(2*G5)]
    first = [0, G4, 2*G4, 2*G4 + G5, len(seq)]
    RA5 = env("RA5", 2)
    late = {2} if RA5 == 1 else ({2} | ({3} if isA else set()) if RA5 == 2 else {2, 3})
    issued = set()
    stamp("p4pre" + N)
    for g in range(3): sh.issue(g); issued.add(g)
    sh.check1(0); sh.check2(0)
    c1 = -2.0*math.sqrt(2.0/math.pi)*math.log2(math.e); c2 = c1*0.044715
    def compute(H):
        ph, hf = H >> 1, H & 1
        ns = (r.c4, r.c5)[ph]
        nm = f"p{4+ph}"
        if H == 2: A(f"P5_IN{N}:")
        if H in late: seq[first[H]][0].check1(seq[first[H]][1]); seq[first[H]][0].check2(seq[first[H]][1])
        if ph and isA:
            A(f"buffer_load_dwordx4 {v(HR,4)}, v{VL}, {R(RWS)}, s{sHFO} offen offset:{hf*2048} sc1"); vm.issue("h")
        if H == 2 and isA:
            for m in range(L, r.c5): wread_step(r, m, r.slots[m % L], ("r", m))
        stamp(f"{nm}first{hf}" + N)
        for t in range(first[H], first[H+1]):
            n0 = 4*(t - first[H])
            stamp(f"t{N}{t}")
            tail = not isA and t == first[H+1] - 1
            head = not isA and t == first[H] and H > 0 and H not in late
            order = [(k, ti) for ti in (1, 0) for k in range(4)] if (tail or head) else [(k, ti) for k in range(4) for ti in (0, 1)]
            nxt = t + 2
            can = nxt < len(seq) and nxt not in issued and not (nxt >= first[H+1] and H + 1 in late)
            for sl, (k, ti) in enumerate(order):
                n = n0 + k
                if not isA and H > 0 and (t, sl) == ((first[2] - 2, 0) if H == 1 else ((first[H] + ER[H], 0) if ER[H] >= 0 else (first[H+1] - 1, 4))): A("s_barrier")
                if H == 2: lg.wait(("r", n))
                if head and sl == 4: A("s_waitcnt lgkmcnt(0)\ns_barrier"); lg.q = []
                acc = v(ACC + 16*ti, 16); w_, d_ = v(r.W + 8*n + 4*ti, 4), v(dreg(t, k), 4)
                A(f"{MFMA} {acc}, {d_ if ph else w_}, {w_ if ph else d_}, {'0' if n == 0 else acc}")
                if head and sl < 4: A(pw(sl >> 1, sl & 1, H - 1))
                if tail and sl >= 4: A(pw(2 + ((sl - 4) >> 1), sl & 1, H))
                if can and sl < 4: seq[nxt][0].issue_part(seq[nxt][1], sl)
                if t + 1 < len(seq) and not (t + 1 == first[H+1] and H + 1 in late):
                    if sl == 5: seq[t+1][0].check1(seq[t+1][1])
                    if sl == 6: seq[t+1][0].check2(seq[t+1][1])
                done = (ti == 0) if (tail or head) else (ti == 1)
                if H == 1 and done:
                    if n < L: w2read(r, n)
                    if not isA and DB0 <= n < DB0 + L: lg.wait(("r", n - DB0)); w2dma(r, n - DB0 + L)
                    if not isA and R2E:
                        if R2E <= n < R2E + NE3: w2read(r, n - R2E + L)
                        if R2E + 1 <= n < R2E + 1 + NE3: lg.wait(("r", n - R2E - 1 + L)); w2dma(r, n - R2E - 1 + 2*L)
                if H == 0 and not isA and done and env("DL", 0) == 2 and n % 3 == 2 and n < 18: w2dma(r, 1 + n // 3)
                if H == 2 and not isA and done:
                    if L + (NE3 if R2E else 0) <= n + 4 < 2*L: w2read(r, n + 4)
                    if not R2E and 2*L <= n + 10 < r.c5: lg.wait(("r", n + 3)); w2dma(r, n + 10)
                    if 2*L <= n + 4 < r.c5: w2read(r, n + 4)
            if can: issued.add(nxt)
        if ph and isA:
            vm.wait("h")
            A(f"{MFMA} {v(ACC,16)}, {v(IR,4)}, {v(HR,4)}, {v(ACC,16)}")
        stamp(f"{nm}mm{hf}" + N)
    def late_issue(H):
        for t in range(first[H], min(first[H] + 3, first[H+1])): seq[t][0].issue(seq[t][1]); issued.add(t)
    def partials(H):
        if (H == 1 and env("RA4", 1)) or (H > 1 and ER[H] < 0): A("s_barrier")
        for q in (2, 3, 1) if H < 2 else (2, 3, 0, 1):
            for j in range(2): A(pw(q, j, H))
        if H < 2:
            for j in range(4): A(f"v_lshlrev_b32 v{TMP}, 16, v{BR+j}\nv_and_b32 v{TMP+1}, 0xffff0000, v{BR+j}\nv_add_f32 v{OWN+2*j}, v{ACC+2*j}, v{TMP}\nv_add_f32 v{OWN+2*j+1}, v{ACC+2*j+1}, v{TMP+1}")
        elif H == 2: A(f"v_lshlrev_b32 v{B2R}, 16, v{B2R}")
    def epilogue(H):
        ph, hf = H >> 1, H & 1
        A("s_waitcnt lgkmcnt(0)\ns_barrier"); lg.q = []
        stamp(f"red{4+ph}{hf}")
        LI = env("LI", 2) if H == 1 else 0
        if (H == 1 or (H == 2 and not RA5)) and LI == 0: late_issue(H + 1)
        if env("PRIO", 1): A("s_setprio 2")
        if ph: gather5(H == 3, H == 3 or not RA5)
        else: gather(False, H & 1 or (H == 2 and not RA5) or (H == 0 and not env("RA4", 1)), (lambda: seq[first[2]][0].issue(0)) if H == 1 and LI == 2 else None)
        if ph == 0:
            A(f"s_mov_b32 s{sA}, {fl(c2)}\nv_mov_b32 v{TMP}, {fl(c1)}")
            E = TMP + 8
            for k in range(8): A(f"v_mul_f32 v{E+k}, v{OWN+k}, v{OWN+k}")
            for k in range(8): A(f"v_fma_f32 v{E+k}, v{E+k}, s{sA}, v{TMP}")
            for k in range(8): A(f"v_mul_f32 v{E+k}, v{E+k}, v{OWN+k}")
            for k in range(8): A(f"v_exp_f32 v{E+k}, v{E+k}")
            for k in range(8): A(f"v_add_f32 v{E+k}, 1.0, v{E+k}")
            for k in range(8): A(f"v_rcp_f32 v{E+k}, v{E+k}")
            for k in range(8): A(f"v_mul_f32 v{OWN+k}, v{OWN+k}, v{E+k}")
        for k in range(4): A(f"v_cvt_pk_bf16_f32 v{TMP+4+k}, v{OWN+2*k}, v{OWN+2*k+1}")
        if ph == 0:
            A(f"v_or_b32 v{TMP+7}, 1, v{TMP+7}\nbuffer_store_dwordx4 {v(TMP+4,4)}, v{VL}, {R(RWS)}, s{sGST} offen sc1\ns_add_u32 s{sGST}, s{sGST}, {112*1024}")
        else:
            A(f"buffer_store_dwordx4 {v(TMP+4,4)}, v{VO}, {R(ROUT)}, s{sE} offen offset:{hf*64}" + [os.environ.get("OF0", " sc1"), os.environ.get("OF1", "")][hf])
        stamp(("gst", "outst")[ph] + str(hf))
        if (H == 1 or (H == 2 and not RA5)) and LI == 1: late_issue(H + 1)
        if H == 1 and LI == 2:
            for t in range(first[2], first[2] + NP5):
                if t > first[2]: seq[t][0].issue(seq[t][1])
                issued.add(t)
        if H in (1, 2) and ER[H+1] >= 0: A("s_barrier")
        stamp_flush()
    if isA:
        if env("PRIO", 1): A("s_setprio 2")
        compute(0); partials(0); stamp_flush()
        RA4 = env("RA4", 1)
        if not RA4: epilogue(0); A("s_barrier")
        elif env("PRIO", 1): A("s_setprio 0")
        compute(1)
        if env("DA", 1) == 1:
            lg.wait_all()
            for m in range(L, r.c5): w2dma(r, m)
        if RA4: epilogue(0)
        partials(1); p5setup()
        if env("LI", 2) == 3: late_issue(2)
        if env("DA", 1) == 0:
            for m in range(L, r.c5): w2dma(r, m)
        epilogue(1)
        compute(2)
        if RA5:
            if RA5 == 2: late_issue(3)
            partials(2); stamp_flush()
            if env("PRIO", 1): A("s_setprio 0")
            compute(3); epilogue(2); partials(3); epilogue(3)
        else:
            partials(2); epilogue(2); compute(3); partials(3); epilogue(3)
    else:
        if env("PRIO", 1): A("s_setprio 1")
        for H in range(4):
            compute(H)
            if H == 3 or H + 1 in late:
                for q in range(2):
                    for j in range(2): A(pw(q, j, H))
                if H == 2: late_issue(H + 1)
                A("s_waitcnt lgkmcnt(0)\ns_barrier"); lg.q = []
                if H == 1:
                    if env("G2", 0):
                        sg.gated = G5; A(f"s_mov_b32 s{sMISS}, {(1 << 2*G5) - 1}")
                    late_issue(H + 1); sg.gated = 0
            stamp_flush()
    A(f"MLP_END{N}:")

def finish():
    A(f"s_or_b32 s{sT}, s2, s{SW}\ns_cbranch_scc1 K_FIN\nv_mov_b32 v4, 0\nv_mov_b32 v5, 0\ns_mov_b64 exec, 1\nbuffer_store_dwordx2 v[4:5], v4, {R(RDBG)}, 0 offen sc1\ns_mov_b64 exec, -1")
    A("K_FIN:")
    if os.environ.get("DIAGAT"):
        A(f"DSP:\ns_memrealtime s[{sA}:{sA+1}]\ns_waitcnt lgkmcnt(0)\ns_sub_u32 s{sA}, s{sA}, s72\ns_cmp_lt_u32 s{sA}, 4000\ns_cbranch_scc1 DSP")
    if STAMP:
        A("s_waitcnt vmcnt(0)"); stamp("end"); A(f"s_memrealtime s[{sA}:{sA+1}]"); stamp_flush()
        A(f"v_writelane_b32 v{VST}, s72, 62\nv_writelane_b32 v{VST}, s{sA}, 63")
        A(f"s_lshl_b32 s{sT}, s2, 3\ns_add_u32 s{sT}, s{sT}, s{sW8}\ns_lshl_b32 s{sT}, s{sT}, 8\ns_add_u32 s{sT}, s{sT}, {WS_STAMP}\nv_lshlrev_b32 v4, 2, v1\nbuffer_store_dword v{VST}, v4, {R(RWS)}, s{sT} offen")
    A("K_END:\ns_endpgm")

def bprog():
    NT = env("NT", 0); nt = " nt" if NT else ""
    nt1 = " nt" if env("NT1", 0) else ""
    VXD = [16, 17, 18, 19]; VXE = [20, 21]; VWD = list(range(22, 29))
    sWO, sXO, sM, sWM = sA, sB, sC, sD_
    sXP, sWP = [sW1, sW1S, sW1E], [sW2, sW2S, sW2E]
    A("B_P1:"); vm.q = []; lg.q = []
    p1_common()
    A(f"s_mul_i32 s{sXO}, s{sE}, {32*896}\ns_lshl_b32 s{sWM}, s{SW}, 10")
    A("v_lshrrev_b32 v4, 4, v1\nv_and_b32 v5, 15, v1\nv_xor_b32 v5, v5, v4\nv_mul_u32_u24 v6, 896, v4")
    for j in range(4): A(f"v_xor_b32 v7, {4*j}, v5\nv_lshl_add_u32 v7, v7, 4, v6\nv_add_u32 v{VXD[j]}, {j*4*896 - j*1024}, v7")
    A(f"s_lshr_b32 s{sT}, s{sJ}, 2\ns_and_b32 s{sU}, s{sJ}, 3\ns_add_u32 s{sT}, s{sT}, s{sU}\ns_mul_i32 s{sU}, s{sT}, 11\ns_lshr_b32 s{sU}, s{sU}, 5\ns_mul_i32 s{sU}, s{sU}, 3\ns_sub_u32 s{sT}, s{sT}, s{sU}")
    if not env("P1ROT", 1): A(f"s_mov_b32 s{sT}, 0")
    for p in range(3):
        A(f"s_lshl_b32 s{sU}, s{sT}, 8\ns_add_u32 s{sXP[p]}, s{sXO}, s{sU}\ns_mul_i32 s{sU}, s{sT}, {128*2688}\ns_add_u32 s{sWP[p]}, s{sWO}, s{sU}")
        if p < 2: A(f"s_add_u32 s{sT}, s{sT}, 1\ns_cmp_eq_u32 s{sT}, 3\ns_cselect_b32 s{sT}, 0, s{sT}")
    def xpiece(p):
        if p < 3:
            for j in range(8):
                if j % 4 == 0: A(f"s_add_u32 m0, s{sM}, {XBUF[p] + (j>>2)*4096}\ns_add_u32 s{sV}, s{sXP[p]}, {(j>>2)*16*896}")
                A(f"buffer_load_dwordx4 v{VXD[j&3]}, {R(RX)}, s{sV} offen offset:{(j&3)*1024}{nt1} lds"); vm.issue(f"x{p}")
        else:
            for j in range(4):
                A(f"s_add_u32 m0, s{sM}, {XBUF[p] + j*1024}\ns_add_u32 s{sV}, s{sXO}, {(j>>1)*16*896 + 768}\nbuffer_load_dwordx4 v{VXE[j&1]}, {R(RX)}, s{sV} offen{nt1} lds"); vm.issue(f"x{p}")
    def wdma(j):
        g = j // 7
        if g == 3 and j == 21: A(f"s_add_u32 s{sT}, s{sWO}, {3*128*2688}")
        A(f"s_add_u32 m0, s{sWM}, {j*4096}\nbuffer_load_dwordx4 v{VWD[j%7]}, {R(RWQ)}, s{sWP[g] if g < 3 else sT} offen{nt1} lds"); vm.issue(f"w{g}")
    A("s_waitcnt lgkmcnt(0)")
    xpiece(0)
    for j in range(7):
        A(f"v_add_u32 v4, {256*j}, v0\nv_mul_u32_u24 v5, 4682, v4\nv_lshrrev_b32 v5, 16, v5\nv_mul_u32_u24 v6, 14, v5\nv_sub_u32 v4, v4, v6")
        A(f"v_and_b32 v6, 0xf8, v5\nv_and_b32 v7, 1, v5\nv_lshl_add_u32 v6, v7, 2, v6\nv_bfe_u32 v7, v5, 1, 2\nv_add_u32 v6, v6, v7\nv_mul_u32_u24 v6, 2688, v6\nv_lshl_add_u32 v{VWD[j]}, v4, 4, v6")
        wdma(j)
    xpiece(1)
    A("v_lshrrev_b32 v4, 3, v1\nv_mul_u32_u24 v6, 896, v4\nv_lshrrev_b32 v4, 4, v1\nv_and_b32 v5, 7, v1\nv_xor_b32 v5, v5, v4")
    for j in range(2): A(f"v_xor_b32 v7, {4*j}, v5\nv_lshl_add_u32 v7, v7, 4, v6\nv_add_u32 v{VXE[j]}, {j*8*896}, v7")
    prologue2()
    A("v_and_b32 v10, 31, v1\nv_lshlrev_b32 v10, 4, v10\nv_min_u32 v5, 55, v1\nv_lshlrev_b32 v5, 4, v5\nv_add_u32 v6, 10752, v5\nv_add_u32 v7, 21504, v5\nv_add_u32 v8, 32256, v5\nv_mov_b32 v9, 0")
    vm.wait("w0"); A("s_barrier\ns_barrier")
    for j in range(7, 14): wdma(j)
    xpiece(2)
    vm.wait("w1"); A("s_barrier\ns_barrier")
    for j in range(14, 21): wdma(j)
    xpiece(3)
    for j in range(21, 25): wdma(j)
    vm.wait("w2"); A("s_barrier\ns_setprio 2")
    A(f"s_waitcnt lgkmcnt(0)\ns_lshl_b32 s{sU}, s{sE}, 9\ns_add_u32 s{sU}, s{sU}, {WS_RST}\ns_lshl_b32 s{sV}, s{sWO}, 2\ns_add_u32 s{sV}, s{sV}, {WS_CSG}")
    def gload():
        A(f"buffer_load_dwordx4 v[32:35], v10, {R(RWS)}, s{sU} offen sc1")
        for kq in range(4): A(f"buffer_load_dwordx4 {v(36+4*kq,4)}, v{5+kq}, {R(RWS)}, s{sV} offen sc1")
    A(f"buffer_load_dwordx2 v[30:31], v9, {R(RDBG)}, 0 offen sc1"); gload()
    vm.wait_all()
    get_tag(30, "B_T")
    A(f"s_mov_b32 s{sTO}, 0x8000\ns_branch B_GC\nB_GL:"); gload()
    A(f"s_sub_u32 s{sTO}, s{sTO}, 1\ns_waitcnt vmcnt(0)\ns_cbranch_scc1 B_GX\nB_GC:")
    tagcheck([32, 36, 40, 44, 48], 11, 12, 13)
    A("s_cbranch_vccnz B_GL\nB_GX:")
    QS = DH ** -0.5 * math.log2(math.e)
    A("v_add_f32 v36, v36, v40\nv_add_f32 v44, v44, v48\nv_add_f32 v38, v38, v42\nv_add_f32 v46, v46, v50\nv_add_f32 v36, v36, v44\nv_add_f32 v37, v38, v46")
    A(f"s_cmp_eq_u32 s{sSEC}, 0\ns_cselect_b32 s{sV}, {fl(QS)}, 1.0\nv_cndmask_b32 v6, v34, v32, s[{sHI}:{sHI+1}]\nv_mul_f32 v6, s{sV}, v6")
    A(f"v_lshl_add_u32 v4, v1, 3, s{sWM}\nds_write_b64 v4, v[36:37]\nv_lshl_add_u32 v4, v1, 2, s{sWM}\nds_write_b32 v4, v6 offset:512")
    A("s_setprio 0\ns_waitcnt lgkmcnt(0)\ns_barrier\ns_branch B_P2")

def bprog2():
    NT = env("NT", 0); nt = " nt" if NT else ""
    A("B_P2:"); vm.q = []
    if STAMP: A("v_mov_b32 v15, -1\nB_P2S:"); st["v"] = 15
    roles(touch=False)
    r = RB
    WOR, W2T = 16, 48
    VT1, VTO, VDW, VDR = [4, 5], [8, 9], 10, 11
    w2_addr(r, 12, 13)
    A(f"v_lshrrev_b32 v12, 3, v1\nv_mul_u32_u24 v12, 3584, v12\nv_add_u32 v{VT1[0]}, v12, v13\nv_add_u32 v{VT1[1]}, {8*3584 - 1024}, v{VT1[0]}")
    A(f"v_lshrrev_b32 v12, 2, v1\nv_mul_u32_u24 v12, 896, v12\nv_and_b32 v13, 3, v1\nv_lshl_add_u32 v{VTO[0]}, v13, 4, v12\nv_add_u32 v{VTO[1]}, {16*896}, v{VTO[0]}")
    A(f"v_add_u32 v{VDW}, s{sW2W}, v{VL}\nv_add_u32 v{VDR}, s{sRBW}, v{VL}")
    tr_lane_addr(12, 13, 128, 4)
    A(f"s_and_b32 s{sT}, s{SW}, 1\ns_lshl_b32 s{sT}, s{sT}, 5\nv_xor_b32 v12, s{sT}, v12\nv_add_u32 v12, s{sW2W}, v12\nv_bfe_u32 v13, v1, 3, 1\ns_lshr_b32 s{sT}, s{SW}, 1\nv_xor_b32 v13, s{sT}, v13")
    A(f"v_lshl_add_u32 v{r.VRD[0]}, v13, 6, v12\nv_xor_b32 v13, 1, v13\nv_lshl_add_u32 v{r.VRD[1]}, v13, 6, v12")
    A(f"s_mul_i32 s{sW1S}, s{SW}, {512*3584}\ns_lshl_b32 s{sT}, s{sFT}, 7\ns_add_u32 s{sW1S}, s{sW1S}, s{sT}\ns_add_u32 s{sW1E}, s{sW1S}, {512*3584}")
    A(f"s_lshr_b32 s{sT}, s{sRO}, 10\ns_add_u32 s{sT}, s{sT}, {r.n4}\ns_and_b32 s{sT}, s{sT}, 31\ns_mul_i32 s{sT}, s{sT}, {16*3584}\ns_add_u32 s{sW1}, s{sW1S}, s{sT}")
    TH = [env("BTH", 2)]
    A(f"s_and_b32 s{sT}, s{sC3}, 7\ns_lshl_b32 s{sT}, s{sT}, 1\ns_lshl_b32 s{sD_}, s{SW}, 2\ns_add_u32 s{sD_}, s{sD_}, s{sT}\ns_min_u32 s{sC}, s{sC3}, 13\ns_lshl_b32 s{sC}, s{sC}, 6")
    A(f"s_cmp_ge_u32 s{sJ}, 24\ns_cbranch_scc1 B_NOKV\ns_barrier\nB_NOKV:")
    A(f"s_add_u32 s{sT}, s{SW}, 1\ns_and_b32 s{sT}, s{sT}, 3\ns_mul_i32 s{sT}, s{sT}, 12288\ns_add_u32 s{sT}, s{sT}, {RBUF + 3072}\nv_add_u32 v14, s{sT}, v{VL}")
    A(f"v_mov_b32 v12, 0\nds_write_b32 v14, v12\ns_waitcnt lgkmcnt(0)")
    if env("WARMH", 0):
        A("s_mov_b64 exec, 0")
        for q in range(3): A(f"s_cmp_eq_u32 s{SW}, {q}\ns_cbranch_scc1 WQ{q}")
        A("s_branch WQ3\nWH_RET:\ns_mov_b64 exec, -1")
    vm.q = []
    NPQ = env("NPQ", 0)
    if NPQ: TH[0] = env("BTH0", 4)
    sPOS = sE
    todo = []
    def throttle():
        A(f"s_waitcnt vmcnt({TH[0]})"); vm.q = vm.q[-TH[0]:]
        while todo and ("s", todo[0]) not in vm.q:
            m = todo.pop(0); wread_step(r, m, m % 14)
    def rawitem(m):
        w2soff(m)
        for j in range(2): A(f"buffer_load_dwordx4 {v(W2T+8*m+4*j,4)}, v{r.VT2[j]}, {R(RW2)}, s{sA} offen offset:{j*1024}{' nt' if env('NTR', 0) else ''}")
    for k in range(32):
        if k == NPQ:
            stamp("b_pre")
            A("s_barrier")
            stamp("b_go"); TH[0] = env("BTH0", env("BTH", 3))
            A(f"buffer_load_dwordx2 v[{W2T}:{W2T+1}], v12, {R(RDBG)}, 0 offen sc1"); vm.issue("tag")
        if env("IDL", 0) and k in (0, 13, 15, 17, 19, 20): A(f"s_cmp_eq_u32 s{sACT4}, 0\ns_cbranch_scc1 B_I{k}")
        slot = k % 14 if k < 20 else (k - 20 + 6) % 12
        if k == 20: A(f"s_add_u32 s{sW1}, s{sW1}, {6*16*3584}\ns_cmp_ge_u32 s{sW1}, s{sW1E}\ns_cselect_b32 s{sT}, {512*3584}, 0\ns_sub_u32 s{sW1}, s{sW1}, s{sT}")
        if k == 26: A(f"s_lshr_b32 s{sT}, s{sRO}, 10\ns_mul_i32 s{sT}, s{sT}, {16*3584}\ns_add_u32 s{sW1}, s{sW1S}, s{sT}")
        if k >= 14:
            assert not [m for m in todo if m % 14 == slot]
            A("s_waitcnt lgkmcnt(0)")
        A(f"s_add_u32 m0, s{sW2W}, {slot*2048}")
        for j in range(2): A(f"buffer_load_dwordx4 v{VT1[j]}, {R(RW1)}, s{sW1} offen offset:{j*1024}{' nt' if k < env('NTK', 0) else ''} lds"); vm.issue(("s", k))
        if k < 20: todo.append(k)
        A(f"s_add_u32 s{sW1}, s{sW1}, {16*3584}\ns_cmp_eq_u32 s{sW1}, s{sW1E}\ns_cselect_b32 s{sW1}, s{sW1S}, s{sW1}")
        throttle()
        if env("IDL", 0) and k in (12, 14, 16, 18, 19, 31):
            k0 = {12: 0, 14: 13, 16: 15, 18: 17, 19: 19, 31: 20}[k]
            def idle(k0=k0):
                A(f"B_I{k0}:")
                if k0 in (0, 20):
                    A(f"s_setprio 3\nv_lshrrev_b32 v96, 3, v1\nv_lshlrev_b32 v96, 12, v96\nv_and_b32 v97, 7, v1\nv_lshl_add_u32 v96, v97, 7, v96\ns_setprio 0")
                    A(f"s_sub_u32 s{sA}, s{sJ}, 25\ns_lshl_b32 s{sA}, s{sA}, 2\ns_add_u32 s{sA}, s{sA}, s{SW}\ns_lshl_b32 s{sA}, s{sA}, 18\ns_bfe_u32 s{sB}, s2, 0x20001\ns_lshl_b32 s{sB}, s{sB}, 10\ns_add_u32 s{sA}, s{sA}, s{sB}")
                    A(f"s_and_b32 s{sB}, s2, 1\ns_lshl_b32 s{sB}, s{sB}, 17\ns_xor_b32 s{sA}, s{sA}, s{sB}")
                    for i in (range(0, env("IDN", 4)) if k0 == 0 else range(env("IDN", 4), env("IDM", 4))):
                        A(f"s_xor_b32 s{sB}, s{sA}, {i*8*4096}\nbuffer_load_dword v97, v96, {R(RW2)}, s{sB} offen\ns_waitcnt vmcnt({env('IDT', 0)})")
                A(f"s_branch B_J{k0}")
            handlers.append(idle)
            A(f"B_J{k0}:")
        if k in (12, 14, 16, 18):
            q = (k - 12) // 2
            A(f"s_add_u32 s{sT}, s{sD_}, {q}\ns_and_b32 s{sT}, s{sT}, 15\ns_mul_i32 s{sT}, s{sT}, {28*896}\ns_add_u32 s{sT}, s{sT}, s{sC}")
            for j in range(2): A(f"buffer_load_dwordx4 {v(WOR+8*q+4*j,4)}, v{VTO[j]}, {R(RWO)}, s{sT} offen"); vm.issue("wo")
            throttle()
        if k == 19:
            A(f"s_setprio 3\nv_readfirstlane_b32 s{sTAG}, v{W2T}\nv_readfirstlane_b32 s{sTAG+1}, v{W2T+1}\nv_lshlrev_b32 v12, 3, v1\ns_mul_i32 s{sV}, s{SW}, 384\ns_add_u32 s{sV}, s{sV}, {F2}")
            poll(12, sV, 48, 8); A("v_lshlrev_b32 v12, 7, v1\ns_setprio 0")
        if env("W2C", 0) and k in (14, 20):
            A(f"s_lshl_b32 s{sA}, s2, 2\ns_add_u32 s{sA}, s{sA}, s{SW}\ns_mul_i32 s{sA}, s{sA}, {56*128}")
            set_exec(((1 << 28) - 1) << (28*(k == 20))); A(f"buffer_load_dword v8, v12, {R(RW2)}, s{sA} offen\ns_mov_b64 exec, -1"); vm.issue("t")
        if k == env("CT2", 22):
            A(f"s_setprio 3\ns_getpc_b64 s[{sA}:{sA+1}]\nCODE_R2:\ns_sub_u32 s{sA}, s{sA}, CODE_R2-P2_TAIL\ns_subb_u32 s{sA+1}, s{sA+1}, 0\ns_lshl_b32 s{sT}, s{sJ}, 2\ns_add_u32 s{sT}, s{sT}, s{SW}\ns_lshl_b32 s{sT}, s{sT}, 9")
            A(f"v_lshl_add_u32 v13, v1, 7, s{sT}\nv_min_u32 v13, CODE_END-P2_TAIL-4, v13\nv_mov_b32 v9, s{sA+1}\nv_add_co_u32 v8, vcc, s{sA}, v13\nv_addc_co_u32 v9, vcc, 0, v9, vcc\ns_setprio 0")
            A("s_mov_b64 exec, 15\nglobal_load_dword v8, v[8:9], off\ns_mov_b64 exec, -1"); vm.issue("t")
        if k == env("BSW0", 7): TH[0] = env("BTH", 3)
        if k == env("BSW", 24): TH[0] = env("BTH2", 10)
        if k in (13, 31): stamp(f"b_{k}")
    assert not todo
    w2dma(r, 0)
    for m in range(6):
        A(f"ds_read_b32 v13, v14\ns_mov_b32 s{sPOS}, {m}\ns_waitcnt vmcnt({TH[0]}) lgkmcnt(0)\ns_setprio 3\nv_cmp_ne_u32 vcc, 0, v13\ns_setprio 0\ns_cbranch_vccnz B_CUT")
        rawitem(m)
    A(f"s_mov_b32 s{sPOS}, 6")
    if env("W2T", 0):
        A(f"s_setprio 3\ns_lshr_b32 s{sT}, s{sGC}, 6\ns_add_u32 s{sT}, s{sT}, 96\nv_add_u32 v12, s{sT}, v1\nv_subrev_u32 v13, 448, v12\nv_min_u32 v12, v12, v13\nv_lshlrev_b32 v12, 12, v12\ns_setprio 0")
        A(f"s_mul_i32 s{sT}, s{SW}, {448*4096}\ns_lshl_b32 s{sU}, s{sST}, 7\ns_add_u32 s{sT}, s{sT}, s{sU}\nbuffer_load_dword v14, v12, {R(RW2)}, s{sT} offen")
    A("B_CUT:")
    stamp("b_done"); stamp_flush()
    if STAMP: A(f"v_writelane_b32 v15, s{sPOS}, 60")
    A(f"s_setprio 3\nv_min_u32 v12, 5, v1\nv_lshlrev_b32 v12, 12, v12\nv_add_u32 v12, {RBUF + 3*1024 + 32*16 + 4}, v12\ns_setprio 0")
    A(f"B_RED:\ns_barrier\nds_read_b32 v13, v12\ns_waitcnt lgkmcnt(0)\nv_cmp_ne_u32 vcc, 0, v13")
    A(f"s_cbranch_vccz B_OK\ns_cmp_lg_u32 s{sRETRY}, 0\ns_cbranch_scc1 B_OK\ns_mov_b32 s{sRETRY}, -1\ns_barrier\ns_barrier\ns_barrier\ns_branch B_RED\nB_OK:")
    A("s_waitcnt vmcnt(0)\ns_barrier")
    for k in range(8): A(f"ds_write_b128 v{VDR}, {v(WOR+4*k,4)} offset:{k*1024}")
    for m in range(6):
        A(f"s_cmp_gt_u32 s{sPOS}, {m}\ns_cbranch_scc1 B_SK{m}"); rawitem(m); A(f"B_SK{m}:")
    A("s_waitcnt lgkmcnt(0)\ns_barrier")
    unswap(r); mlp_addr(r, 12, 13, False)
    A("s_waitcnt vmcnt(0)")
    if not env("EP", 0): A("s_barrier")
    vm.q = []
    DL = env("DL", 0)
    for m in range(6):
        for j in range(2): A(f"ds_write_b128 v{VDW}, {v(W2T+8*m+4*j,4)} offset:{m*2048 + j*1024}")
        if DL == 0: w2dma(r, m + 1)
    A("s_waitcnt lgkmcnt(0)")
    if env("X1B", 1): A("s_barrier")
    if DL == 1:
        for m in range(1, 7): w2dma(r, m)
    mlp(r, VDR, VDW)
    if STAMP: A(f"v_mov_b32 v{VST}, v15"); del st["v"]
    A("s_branch K_FIN")

def main(out):
    prologue()
    pend0 = list(st["pend"])
    bprog()
    st["pend"] = list(pend0); p1_helper()
    st["pend"] = list(pend0); p1(); fb = p2(); p3(); vm.q = []; mlp(RA); finish()
    st["pend"] = list(pend0); bprog2(); fb()
    for i, h in enumerate(handlers):
        per = -(-len(handlers) // 4)
        if env("WARMH", 0):
            if i % per == 0: A(f"WQ{i // per}:")
            A(f"WH{i}:\ns_cbranch_execz " + (f"WH{i+1}" if (i + 1) % per and i + 1 < len(handlers) else "WH_RET"))
        h()
    A("CODE_END:")
    head = open("head.txt").read()
    nv = 256
    txt = head + f"; @launch grid=(256,1,1) block=(512,1,1) lds={LDS_TOTAL}\n" + '.amdgcn_target "amdgcn-amd-amdhsa--gfx950"\n.text\n' + kernel_header(NAME) + A.text() + '.section .rodata,"a"\n' + kernel_desc(NAME, nv, 102, 256)
    open(out, "w").write(txt)
    if STAMP: open(out + ".names", "w").write(" ".join(st["names"].keys()))

if __name__ == "__main__":
    main(sys.argv[1])
```

```python
import sys, struct, math, os
from asmlib import *

S, D, H, DH, F = 2048, 448, 16, 28, 1792
MB = 1 << 20
WS_Q, WS_KV, WS_O, WS_HF, WS_HH, WS_G, WS_ST, WS_FL, WS_STAMP = 0, 2*MB, 6*MB, 8*MB, 10*MB, 12*MB, 14*MB, 14*MB + 512*1024, 15*MB
F1, F2, F4, F5 = WS_FL, WS_FL + 131072, WS_FL + 2*131072, WS_FL + 3*131072
WS_RST, WS_CSG = 13*MB + 768*1024, 13*MB + 832*1024
WS_SIZE = 16*MB
WS_O = WS_HH = WS_Q
WS_G = WS_KV
EPS = 1e-5
STAMP = os.environ.get("STAMP", "0") == "1"
def env(n, d): return int(os.environ.get(n, str(d)))
def f2u(x): return struct.unpack("<I", struct.pack("<f", x))[0]
def hx(x): return f"0x{x & 0xffffffff:08x}"
def fl(x): return hx(f2u(x))
MFMA = "v_mfma_f32_32x32x16_bf16"
NAME = "sequential_preLN__mha_block__mixer_token_mlp__prompt_kernel"

class Cnt:
    def __init__(self, A, name, mx):
        self.A, self.name, self.mx, self.q = A, name, mx, []
    def issue(self, tag): self.q.append(tag)
    def wait(self, tag):
        idx = [i for i, t in enumerate(self.q) if t == tag]
        if not idx: return
        n = len(self.q) - 1 - idx[-1]
        self.A(f"s_waitcnt {self.name}({min(n, self.mx)})")
        self.q = self.q[idx[-1] + 1:]
    def wait_all(self):
        self.A(f"s_waitcnt {self.name}(0)"); self.q = []

RX, RWQ, RWO, RW1, RB1, RW2, RB2, ROUT, RDBG, RWS = 8, 12, 16, 20, 24, 28, 32, 36, 40, 44
def R(r): return f"s[{r}:{r+3}]"
SW, sH, sI, sJ, sFT, sDT4, sST, sDT5, sACT4, sTO, sTAG = 48, 49, 50, 51, 52, 53, 54, 55, 56, 57, 58
sHI, sONES = 60, 62
sT, sU, sV, sA, sB, sC, sD_, sE, sRETRY = 63, 64, 65, 66, 67, 68, 69, 70, 71
sF = [4, 5, 6, 7]
sSEC, sHQ, sW8 = 3, 92, 93
sMISS = 6
sC3, sR3 = 0, 1
sRBW, sW2W = 94, 95
sW2, sW2S, sW2E, sW1, sW1S, sW1E = 96, 97, 98, 99, 100, 101
VL, VST = 2, 255
W2A, RBUF, LDS_TOTAL = 0, 114688, 163840

A = Asm(); vm = Cnt(A, "vmcnt", 63); lg = Cnt(A, "lgkmcnt", 15)
st = {"pend": [], "names": {}}
def stamp(name):
    if os.environ.get("DIAGAT") == name or (os.environ.get("DIAGAT") and name == "start"): A("s_memrealtime s[72:73]")
    if not STAMP: return
    import re
    if name != "start" and not re.match(os.environ.get("STF", "^[^t]"), name): return
    k = len(st["pend"]); assert k < 9, name
    n = st["names"].setdefault(name, len(st["names"]))
    A(f"{'s_memtime' if env('CYC', 0) else 's_memrealtime'} s[{74+2*k}:{75+2*k}]"); st["pend"].append(n)
def stamp_flush():
    if not STAMP or not st["pend"]: return
    A("s_waitcnt lgkmcnt(0)")
    for k, n in enumerate(st["pend"]): A(f"v_writelane_b32 v{st.get('v', VST)}, s{74+2*k}, {n}")
    st["pend"] = []

def set_exec(mask): A(f"s_mov_b32 exec_lo, {hx(mask)}\ns_mov_b32 exec_hi, {hx(mask >> 32)}")
def halfsum(x, t): A(f"v_mov_b32 v{t}, v{x}\nv_permlane32_swap_b32 v{x}, v{t}\nv_add_f32 v{x}, v{x}, v{t}")
def flag_store(soff_reg, t=4):
    A(f"v_mov_b32 v{t}, s{sTAG}\nv_mov_b32 v{t+1}, s{sTAG+1}\nv_mov_b32 v{t+2}, 0\ns_mov_b64 exec, 1")
    A(f"buffer_store_dwordx2 {v(t,2)}, v{t+2}, {R(RWS)}, s{soff_reg} offen sc1\ns_mov_b64 exec, -1"); vm.issue("flag")
def poll(voff, soff_reg, nl, t):
    L = A.label("POLL")
    set_exec((1 << nl) - 1)
    A(f"s_mov_b32 s{sTO}, 0x40000\n{L}:")
    A(f"buffer_load_dwordx2 {v(t,2)}, v{voff}, {R(RWS)}, s{soff_reg} offen sc1\ns_sub_u32 s{sTO}, s{sTO}, 1\ns_waitcnt vmcnt(0)")
    A(f"s_cbranch_scc1 {L}_x\nv_cmp_ne_u64 vcc, s[{sTAG}:{sTAG+1}], {v(t,2)}\ns_and_b64 exec, exec, vcc\n" + (f"s_cbranch_scc0 {L}_x\ns_sleep {env('PSL', 0)}\ns_branch {L}" if env("PSL", 0) else f"s_cbranch_scc1 {L}") + f"\n{L}_x:\ns_mov_b64 exec, -1")
    vm.q = []
def tr_lane_addr(dst, t, pitch, hs, rs=1):
    A(f"v_lshrrev_b32 v{dst}, 5, v1\nv_mul_u32_u24 v{dst}, {hs*pitch}, v{dst}\nv_bfe_u32 v{t}, v1, 2, 2\nv_mul_u32_u24 v{t}, {rs*pitch}, v{t}\nv_add_u32 v{dst}, v{dst}, v{t}")
    A(f"v_bfe_u32 v{t}, v1, 4, 1\nv_lshl_add_u32 v{dst}, v{t}, 5, v{dst}\nv_and_b32 v{t}, 3, v1\nv_lshl_add_u32 v{dst}, v{t}, 3, v{dst}")
def get_tag(TAGV, lab):
    A(f"v_readfirstlane_b32 s{sTAG}, v{TAGV}\nv_readfirstlane_b32 s{sTAG+1}, v{TAGV+1}")
    A(f"s_or_b32 s{sTO}, s{sTAG}, s{sTAG+1}\ns_cbranch_scc1 {lab}_ok\ns_mov_b32 s{sTO}, 0x40000\nv_mov_b32 v4, 0\n{lab}_l:")
    A(f"buffer_load_dwordx2 {v(TAGV,2)}, v4, {R(RDBG)}, 0 offen sc1\ns_sub_u32 s{sTO}, s{sTO}, 1\ns_waitcnt vmcnt(0)\ns_cbranch_scc1 {lab}_ok")
    A(f"v_readfirstlane_b32 s{sTAG}, v{TAGV}\nv_readfirstlane_b32 s{sTAG+1}, v{TAGV+1}\ns_cmp_eq_u64 s[{sTAG}:{sTAG+1}], 0\ns_cbranch_scc1 {lab}_l\n{lab}_ok:")
def tagcheck(regs, T1, T2, T3):
    A(f"v_xor_b32 v{T1}, s{sTAG}, v{regs[0]+1}\nv_xor_b32 v{T2}, s{sTAG+1}, v{regs[0]+3}\nv_or_b32 v{T1}, v{T1}, v{T2}")
    for g in regs[1:]: A(f"v_xor_b32 v{T2}, s{sTAG}, v{g+1}\nv_xor_b32 v{T3}, s{sTAG+1}, v{g+3}\nv_or3_b32 v{T1}, v{T1}, v{T2}, v{T3}")
    A(f"v_cmp_ne_u32 vcc, 0, v{T1}")
def rot4(d):
    A(f"s_bfe_u32 s{d}, s2, 0x20001\ns_mul_i32 s{d}, s{d}, 7\ns_sub_u32 s{d}, s{sFT}, s{d}\ns_add_u32 s{d}, s{d}, s{sDT4}\ns_add_u32 s{d}, s{d}, s{sDT4}")
    A(f"s_and_b32 s{sTO}, s2, 1\ns_mul_i32 s{sTO}, s{sTO}, 3\ns_add_u32 s{d}, s{d}, s{sTO}\ns_and_b32 s{d}, s{d}, 7\ns_lshl_b32 s{d}, s{d}, 2")
def rot5(d):
    A(f"s_and_b32 s{sTO}, s2, 1\ns_lshl_b32 s{sTO}, s{sTO}, 1\ns_lshl_b32 s{d}, s{sDT5}, 1\ns_add_u32 s{d}, s{d}, s{sTO}\ns_and_b32 s{sTO}, s{sST}, 7\ns_add_u32 s{d}, s{d}, s{sTO}")
    A(f"s_mul_i32 s{sTO}, s{d}, 37\ns_lshr_b32 s{sTO}, s{sTO}, 8\ns_mul_i32 s{sTO}, s{sTO}, 7\ns_sub_u32 s{d}, s{d}, s{sTO}\ns_lshl_b32 s{d}, s{d}, 2")

handlers = []
class Stream:
    def __init__(self, name, ng, loads, soff, T, bit, VP, TP, pm=None, gated=None):
        self.name, self.ng, self.loads, self.soff, self.T, self.last, self.bit = name, ng, loads, soff, T, -1, bit
        self.VP, self.TP, self.pm, self.gated = VP, TP, pm or (lambda g: 0xffffffff), ng if gated is None else gated
        A(f"s_mov_b32 s{sMISS}, {hx((1 << 2*ng) - 1)}")
    def gate(self, g):
        if g >= self.gated: return
        L = f"{self.name}g{g}"
        A(f"s_and_b32 s{sT}, s{sMISS}, {hx(3 << 2*g)}\ns_cbranch_scc1 {L}_h\n{L}_r:")
        def h():
            A(f"{L}_h:\ns_mov_b32 s{sTO}, 0x40000\ns_mov_b32 exec_hi, 0\n{L}_l:\ns_and_b32 exec_lo, s{sMISS}, {hx(self.pm(g))}")
            A(f"buffer_load_dword v{self.TP}, v{self.VP}, {R(RWS)}, 0 offen sc1\ns_sub_u32 s{sTO}, s{sTO}, 1\ns_waitcnt vmcnt(0)\ns_cbranch_scc1 {L}_x")
            A(f"v_and_b32 v{self.TP}, {self.bit}, v{self.TP}\nv_cmp_ne_u32 vcc, 0, v{self.TP}\ns_andn2_b32 s{sMISS}, s{sMISS}, vcc_lo\ns_and_b32 s{sT}, s{sMISS}, {hx(3 << 2*g)}\ns_cbranch_scc1 {L}_l")
            A(f"{L}_x:\ns_mov_b64 exec, -1\ns_branch {L}_r")
        handlers.append(h)
    def _emit(self, g, track):
        self.soff(g)
        for reg, va, off in self.loads(g):
            A(f"buffer_load_dwordx4 {v(reg,4)}, v{va}, {R(RWS)}, s{sT} offen offset:{off} sc1")
            if track: vm.issue((self.name, g))
    def issue(self, g):
        if g < self.ng: self.gate(g); self._emit(g, True); self.last = g
    def issue_part(self, g, k):
        if g >= self.ng: return
        if k == 0: self.gate(g); self.soff(g)
        reg, va, off = self.loads(g)[k]
        A(f"buffer_load_dwordx4 {v(reg,4)}, v{va}, {R(RWS)}, s{sT} offen offset:{off} sc1"); vm.issue((self.name, g))
        self.last = g
    def _red(self, g):
        r = [x[0] + 3 for x in self.loads(g)]
        A(f"v_bitop3_b32 v{self.T}, v{r[0]}, v{r[1]}, v{r[2]} bitop3:0x80\nv_bitop3_b32 v{self.T}, v{self.T}, v{r[3]}, {self.bit} bitop3:0x80")
    def check1(self, g):
        if g < self.ng: vm.wait((self.name, g)); self._red(g)
    def check2(self, g):
        if g >= self.ng: return
        L = f"{self.name}{g}"
        A(f"v_cmp_eq_u32 vcc, 0, v{self.T}\ns_cbranch_vccnz {L}_h\n{L}_r:")
        last = self.last
        later = list(range(g + 1, last + 1)) if env("RFR", 0) and vm.q == [(self.name, k) for k in range(g + 1, last + 1) for _ in range(4)] else []
        def h():
            A(f"{L}_h:\ns_mov_b32 s{sTO}, 0x40000\n{L}_l:")
            self._emit(g, False)
            A(f"s_sub_u32 s{sTO}, s{sTO}, 1\ns_waitcnt vmcnt(0)\ns_cbranch_scc1 {L}_r")
            self._red(g)
            A(f"v_cmp_eq_u32 vcc, 0, v{self.T}\ns_cbranch_vccnz {L}_l")
            for k in later:
                self._red(k); A(f"v_cmp_eq_u32 vcc, 0, v{self.T}\ns_cbranch_vccnz {L}_f{k}")
            A(f"s_branch {L}_r")
            for k in later:
                A(f"{L}_f{k}:"); self._emit(k, False)
            if later: A(f"s_branch {L}_r")
        handlers.append(h)

def prologue():
    if STAMP: A(f"s_memrealtime s[72:73]\nv_mov_b32 v{VST}, -1")
    stamp("start")
    A(f"s_load_dwordx2 s[{RX}:{RX+1}], s[0:1], 0\ns_load_dwordx2 s[{RWQ}:{RWQ+1}], s[0:1], 8")
    A("s_cmp_ge_u32 s2, 256\ns_cbranch_scc1 K_END")
    A(f"v_and_b32 v1, 63, v0\nv_lshrrev_b32 v3, 6, v0\nv_lshlrev_b32 v{VL}, 4, v1\nv_readfirstlane_b32 s{sW8}, v3\nv_and_b32 v0, 255, v0")
    for r, sz in ((RX, S*D*2), (RWQ, D*3*D*2)): A(f"s_mov_b32 s{r+2}, {sz}\ns_mov_b32 s{r+3}, 0x20000")
    A(f"s_and_b32 s{SW}, s{sW8}, 3\ns_lshr_b32 s{sJ}, s2, 3\ns_bfe_u32 s{sT}, s2, 0x20001\ns_and_b32 s{sU}, s2, 1")
    A(f"s_lshl_b32 s{sI}, s{sT}, 2\ns_and_b32 s{sV}, s{sJ}, 3\ns_add_u32 s{sI}, s{sI}, s{sV}")
    A(f"s_lshr_b32 s{sSEC}, s{sJ}, 3\ns_bfe_u32 s{sHQ}, s{sJ}, 0x10002\ns_lshl_b32 s{sV}, s{sU}, 1\ns_add_u32 s{sHQ}, s{sHQ}, s{sV}")
    A(f"s_cmp_ge_u32 s{sJ}, 24\ns_cbranch_scc1 P1_HELP\ns_cmp_lt_u32 s{sW8}, 4\ns_cbranch_scc1 A_P1")

def prologue2():
    for r, off in ((RWS, 80), (RDBG, 72), (RWO, 16), (RW1, 32), (RB1, 40), (RW2, 48), (RB2, 56), (ROUT, 64)):
        A(f"s_load_dwordx2 s[{r}:{r+1}], s[0:1], {off}")
    A(f"s_memrealtime s[{sTAG}:{sTAG+1}]")
    for r, sz in ((RWS, WS_SIZE), (RDBG, 256), (RWO, D*D*2), (RW1, S*F*2), (RB1, F*2), (RW2, S*F*2), (RB2, S*2), (ROUT, S*D*2)):
        A(f"s_mov_b32 s{r+2}, {sz}\ns_mov_b32 s{r+3}, 0x20000")
    A(f"s_mov_b32 s{sHI}, 0\ns_mov_b32 s{sHI+1}, -1\ns_mov_b32 s{sONES}, 0x3f803f80\ns_mov_b32 s{sRETRY}, 0")
    A(f"s_mul_i32 s{sRBW}, s{SW}, 12288\ns_add_u32 s{sRBW}, s{sRBW}, {RBUF}\ns_mul_i32 s{sW2W}, s{SW}, 28672")

def roles(touch=True):
    A(f"s_bfe_u32 s{sT}, s2, 0x20001\ns_and_b32 s{sU}, s2, 1")
    pass
    A(f"s_sub_u32 s{sV}, 25, s{sU}\ns_cmp_lt_u32 s{sJ}, s{sV}\ns_cselect_b32 s{sACT4}, 1, 0\ns_cselect_b32 s{sV}, s{sJ}, 0")
    A(f"s_mul_i32 s{sFT}, s{sU}, 25\ns_add_u32 s{sV}, s{sV}, s{sFT}\ns_mul_i32 s{sDT4}, s{sV}, 9363\ns_lshr_b32 s{sDT4}, s{sDT4}, 16")
    A(f"s_mul_i32 s{sFT}, s{sDT4}, 7\ns_sub_u32 s{sV}, s{sV}, s{sFT}\ns_mul_i32 s{sFT}, s{sT}, 7\ns_add_u32 s{sFT}, s{sV}, s{sFT}")
    A(f"s_cmp_lt_u32 s{sJ}, 28\ns_cselect_b32 s{sV}, s{sJ}, 0\ns_mul_i32 s{sST}, s{sU}, 28\ns_add_u32 s{sV}, s{sV}, s{sST}")
    A(f"s_lshr_b32 s{sDT5}, s{sV}, 3\ns_and_b32 s{sV}, s{sV}, 7\ns_lshl_b32 s{sST}, s{sT}, 3\ns_add_u32 s{sST}, s{sST}, s{sV}")
    A(f"s_lshl_b32 s{sT}, s{sHQ}, 2\ns_add_u32 s{sT}, s{sT}, s{sSEC}\ns_lshl_b32 s{sT}, s{sT}, 4\ns_add_u32 s{sT}, s{sT}, s{sI}\ns_lshl_b32 s{sT}, s{sT}, 7\ns_add_u32 s{sF[0]}, s{sT}, {F1}")
    A(f"s_and_b32 s{sT}, s2, 7\ns_lshl_b32 s{sT}, s{sT}, 1\ns_and_b32 s{sH}, s{sJ}, 1\ns_add_u32 s{sH}, s{sH}, s{sT}\ns_lshr_b32 s{sI}, s{sJ}, 1")
    A(f"s_lshr_b32 s{sR3}, s{sJ}, 4\ns_add_u32 s{sR3}, s{sR3}, s{sT}\ns_lshl_b32 s{sR3}, s{sR3}, 2\ns_add_u32 s{sR3}, s{sR3}, s{SW}\ns_and_b32 s{sC3}, s{sJ}, 15")
    A(f"s_lshl_b32 s{sT}, s2, 3\ns_add_u32 s{sF[1]}, s{sT}, {F2}")
    if not touch: return
    A(f"s_lshl_b32 s{sV}, s{sR3}, 4\ns_add_u32 s{sV}, s{sV}, s{sC3}\ns_lshl_b32 s{sV}, s{sV}, 9\ns_add_u32 s{sV}, s{sV}, {WS_ST}\nv_lshl_add_u32 v4, v1, 7, s{sV}")
    A(f"v_writelane_b32 v4, s{sF[0]}, 4\nv_writelane_b32 v4, s{sF[1]}, 5\ns_mov_b64 exec, {(0x3f if env('STT', 1) else 0x30) & ~(0x10 if env('NF1', 0) else 0)}\nbuffer_load_dword v126, v4, {R(RWS)}, 0 offen sc1\ns_mov_b64 exec, -1")
    vm.issue("touch")

def p1_helper():
    TAGV = 14
    sHX = sA
    A("P1_HELP:")
    vm.q = []
    prologue2()
    A(f"s_and_b32 s{sHX}, s2, 7\ns_lshl_b32 s{sHX}, s{sHX}, 3\ns_add_u32 s{sHX}, s{sHX}, s{sJ}\ns_sub_u32 s{sHX}, s{sHX}, 24")
    A(f"v_lshrrev_b32 v4, 3, v1\nv_and_b32 v5, 7, v1\nv_lshlrev_b32 v5, 4, v5\nv_mov_b32 v7, 0")
    A(f"s_cmp_ge_u32 s{sW8}, 4\ns_cbranch_scc1 H_CS")
    A(f"v_mul_u32_u24 v6, 896, v4\nv_add_u32 v6, v6, v5\ns_lshl_b32 s{sB}, s{sHX}, 2\ns_add_u32 s{sB}, s{sB}, s{SW}\ns_mul_i32 s{sT}, s{sB}, {8*896}\ns_waitcnt lgkmcnt(0)")
    for m in range(7): A(f"buffer_load_dwordx4 {v(16+4*m,4)}, v6, {R(RX)}, s{sT} offen offset:{m*128}")
    A("v_mov_b32 v80, 0\nv_mov_b32 v82, 0\nv_mov_b32 v84, 0\nv_mov_b32 v86, 0\ns_waitcnt vmcnt(0)")
    A(f"buffer_load_dwordx2 {v(TAGV,2)}, v7, {R(RDBG)}, 0 offen sc1")
    for k in range(28): A(f"v_dot2c_f32_bf16 v{80+4*(k&1)}, s{sONES}, v{16+k}\nv_dot2c_f32_bf16 v{82+4*(k&1)}, v{16+k}, v{16+k}")
    A("v_add_f32 v80, v80, v84\nv_add_f32 v82, v82, v86")
    for m in ("quad_perm:[1,0,3,2]", "quad_perm:[2,3,0,1]", "row_half_mirror"):
        for r in (80, 82): A(f"v_add_f32_dpp v{r}, v{r}, v{r} {m} row_mask:0xf bank_mask:0xf")
    A(f"v_mul_f32 v80, {fl(1.0/D)}, v80\nv_mul_f32 v82, {fl(1.0/D)}, v82\nv_fma_f32 v82, -v80, v80, v82\nv_max_f32 v82, 0, v82\nv_add_f32 v82, {fl(EPS)}, v82\nv_rsq_f32 v82, v82")
    A(f"v_lshlrev_b32 v6, 4, v4\nv_mul_f32 v80, v80, v82\nv_sub_f32 v80, 0, v80\ns_waitcnt vmcnt(0)")
    get_tag(TAGV, "H_T1")
    A(f"v_mov_b32 v81, s{sTAG}\nv_mov_b32 v83, s{sTAG+1}\ns_lshl_b32 s{sT}, s{sB}, 7\ns_add_u32 s{sT}, s{sT}, {WS_RST}")
    set_exec(0x0101010101010101)
    A(f"buffer_store_dwordx4 v[80:83], v6, {R(RWS)}, s{sT} offen sc1\ns_mov_b64 exec, -1")
    stamp("h_pub"); stamp_flush()
    A("s_barrier")
    roles()
    addr_setup()
    xid_store("H_NOX", 4)
    A("s_branch P2_START")
    st["pend"] = [0] if STAMP else []
    A(f"H_CS:\ns_lshl_b32 s{sB}, s{SW}, 6\ns_add_u32 s{sB}, s{sB}, s{sHX}\ns_cmp_ge_u32 s{sB}, 84\ns_cbranch_scc1 H_PF")
    A(f"v_mul_u32_u24 v6, 2688, v4\nv_add_u32 v6, v6, v5\ns_and_b32 s{sC}, s{sB}, 3\ns_lshr_b32 s{sD_}, s{sB}, 2\ns_mul_i32 s{sT}, s{sC}, {112*2688}\ns_lshl_b32 s{sU}, s{sD_}, 7\ns_add_u32 s{sT}, s{sT}, s{sU}\ns_waitcnt lgkmcnt(0)")
    for m in range(14): A(f"buffer_load_dwordx4 {v(16+4*m,4)}, v6, {R(RWQ)}, s{sT} offen\ns_add_u32 s{sT}, s{sT}, {8*2688}")
    A(f"s_mov_b32 s{sT}, 0x3f80\ns_mov_b32 s{sU}, 0x3f800000")
    for r in range(80, 88): A(f"v_mov_b32 v{r}, 0")
    for m in range(14):
        if m % 4 == 0: A(f"s_waitcnt vmcnt({max(0, 14 - m - 4)})")
        if m == 12: A(f"buffer_load_dwordx2 {v(TAGV,2)}, v7, {R(RDBG)}, 0 offen sc1")
        for k in range(4): A(f"v_dot2c_f32_bf16 v{80+2*k}, s{sT}, v{16+4*m+k}\nv_dot2c_f32_bf16 v{81+2*k}, s{sU}, v{16+4*m+k}")
    for r in range(80, 88): A(f"v_add_f32_dpp v{r}, v{r}, v{r} row_ror:8 row_mask:0xf bank_mask:0xf")
    for op in ("v_permlane16_swap_b32", "v_permlane32_swap_b32"):
        for r in range(80, 88): A(f"v_mov_b32 v{r+8}, v{r}")
        for r in range(80, 88): A(f"{op} v{r}, v{r+8}")
        for r in range(80, 88): A(f"v_add_f32 v{r}, v{r}, v{r+8}")
    A("v_mov_b32 v88, v80\nv_mov_b32 v90, v81")
    for pi in range(1, 4): A(f"v_cmp_eq_u32 vcc, {pi}, v4\nv_cndmask_b32 v88, v88, v{80+2*pi}, vcc\nv_cndmask_b32 v90, v90, v{81+2*pi}, vcc")
    A(f"v_lshlrev_b32 v6, 2, v5\nv_lshl_add_u32 v6, v4, 4, v6\ns_waitcnt vmcnt(0)")
    get_tag(TAGV, "H_T2")
    A(f"v_mov_b32 v89, s{sTAG}\nv_mov_b32 v91, s{sTAG+1}\ns_mul_i32 s{sT}, s{sC}, 10752\ns_lshl_b32 s{sU}, s{sD_}, 9\ns_add_u32 s{sT}, s{sT}, s{sU}\ns_add_u32 s{sT}, s{sT}, {WS_CSG}")
    set_exec(0xFFFFFFFF)
    A(f"buffer_store_dwordx4 v[88:91], v6, {R(RWS)}, s{sT} offen sc1\ns_mov_b64 exec, -1\ns_barrier\ns_branch B_P2")
    A(f"H_PF:\ns_cmp_lt_u32 s{SW}, 2\ns_cbranch_scc1 H_W")
    sQ = sB
    A(f"s_sub_u32 s{sQ}, s{sJ}, 24\ns_lshl_b32 s{sQ}, s{sQ}, 1\ns_add_u32 s{sQ}, s{sQ}, s{SW}\ns_sub_u32 s{sQ}, s{sQ}, 2")
    A(f"s_getpc_b64 s[{sC}:{sC+1}]\nCODE_REF:\ns_lshl_b32 s{sT}, s{sQ}, 12\nv_lshl_add_u32 v6, v1, 7, s{sT}\nv_min_u32 v6, CODE_END-CODE_REF-4, v6")
    A(f"v_mov_b32 v9, s{sC+1}\nv_add_co_u32 v8, vcc, s{sC}, v6\nv_addc_co_u32 v9, vcc, 0, v9, vcc")
    set_exec(0xFFFFFFFF)
    A("global_load_dword v25, v[8:9], off\ns_mov_b64 exec, -1\ns_waitcnt lgkmcnt(0)\ns_barrier")
    A("v_lshlrev_b32 v6, 7, v1")
    A(f"s_and_b32 s{sT}, s2, 7\ns_lshl_b32 s{sT}, s{sT}, 4\ns_add_u32 s{sT}, s{sT}, s{sQ}\ns_mul_i32 s{sT}, s{sT}, {7*8192}")
    for k in range(env("NP1", 0)): A(f"s_add_u32 s{sU}, s{sT}, {k*8192}\nbuffer_load_dword v{16+k}, v6, {R(RW1)}, s{sU} offen")
    for k in range(env("NP2", 0)): A(f"s_add_u32 s{sU}, s{sT}, {k*8192}\nbuffer_load_dword v{26+k}, v6, {R(RW2)}, s{sU} offen")
    if env("NPX", 0):
        A(f"v_lshrrev_b32 v7, 3, v1\nv_mul_u32_u24 v7, 3584, v7\nv_and_b32 v8, 7, v1\nv_min_u32 v8, 6, v8\nv_lshl_add_u32 v7, v8, 7, v7")
        A(f"s_mul_i32 s{sT}, s{sQ}, {128*3584}\ns_bfe_u32 s{sU}, s2, 0x20001\ns_mul_i32 s{sU}, s{sU}, 896\ns_add_u32 s{sT}, s{sT}, s{sU}")
        for k in range(env("NPX", 0)):
            i = (k * 16) // env("NPX", 0)
            A(f"s_add_u32 s{sU}, s{sT}, {i*8*3584}\nbuffer_load_dword v24, v7, {R(RW1)}, s{sU} offen{os.environ.get('NPF', ' nt')}")
    if env("WOT", 0) == 1:
        A(f"s_mul_i32 s{sT}, s{sQ}, {196*128}")
        set_exec((1 << 49) - 1)
        for k in range(4): A(f"s_add_u32 s{sU}, s{sT}, {k*49*128}\nbuffer_load_dword v24, v6, {R(RWO)}, s{sU} offen")
        A("s_mov_b64 exec, -1")
    if STAMP:
        A("s_waitcnt vmcnt(0)"); stamp("h_touch"); stamp_flush(); A(f"v_mov_b32 v15, v{VST}\ns_branch B_P2S")
    A("s_branch B_P2\nH_W:\ns_waitcnt lgkmcnt(0)\ns_barrier\ns_branch B_P2")

XA = LDS_TOTAL - 65536
XBUF = [4096, 8192, 12288, 0, 4096, 8192, 12288]
def p1_common():
    sWO, sM = sA, sC
    A(f"s_mul_i32 s{sWO}, s{sSEC}, 896\ns_mul_i32 s{sT}, s{sHQ}, 224\ns_add_u32 s{sWO}, s{sWO}, s{sT}")
    A(f"s_lshl_b32 s{sE}, s{sI}, 2\ns_add_u32 s{sE}, s{sE}, s{SW}\ns_lshl_b32 s{sM}, s{SW}, 14\ns_add_u32 s{sM}, s{sM}, {XA}")

def p1():
    ACC, XF, WF = 128, 192, 208
    VXR = list(range(80, 88)); VXS = list(range(88, 92)); VWR = [92, 93]; TAGV = 94
    sM = sC
    A("A_P1:")
    prologue2()
    A(f"s_and_b32 s7, s{SW}, 1\ns_lshl_b32 s{sM}, s7, 15\ns_add_u32 s{sM}, s{sM}, {XA}\ns_lshl_b32 s7, s7, 1\ns_lshl_b32 s{sT}, s{sI}, 2\ns_add_u32 s7, s7, s{sT}")
    A("v_and_b32 v4, 31, v1\nv_lshrrev_b32 v5, 5, v1")
    A(f"v_bfe_u32 v6, v1, 1, 3\nv_xor_b32 v6, v6, v5\nv_lshlrev_b32 v6, 4, v6\nv_lshl_add_u32 v6, v4, 7, v6\nv_add_u32 v6, s{sM}, v6")
    for k in range(4): A(f"v_xor_b32 v{VXS[k]}, {k<<5}, v6")
    tr_lane_addr(VWR[0], 4, 224, 8, 2)
    A(f"s_lshr_b32 s{sT}, s{SW}, 1\ns_mul_i32 s{sT}, s{sT}, 112\nv_add_u32 v{VWR[0]}, s{sT}, v{VWR[0]}\nv_add_u32 v{VWR[1]}, {14*3584}, v{VWR[0]}")
    A("s_waitcnt lgkmcnt(0)")
    stamp("karg")
    A(f"s_or_b32 s{sT}, s2, s{SW}\ns_cbranch_scc1 P1_NOTAG")
    A(f"s_bitset1_b32 s{sTAG+1}, 31\nv_mov_b32 v8, s{sTAG}\nv_mov_b32 v9, s{sTAG+1}\nv_mov_b32 v10, 0\nv_mov_b32 v11, 0\ns_mov_b64 exec, 1\nbuffer_atomic_cmpswap_x2 v[8:11], v10, {R(RDBG)}, 0 offen sc1\ns_mov_b64 exec, -1\nP1_NOTAG:")
    roles()
    addr_setup()
    stamp_flush()
    A(f"s_and_b32 s{sT}, s{SW}, 1\ns_lshl_b32 s{sT}, s{sT}, 11\ns_lshr_b32 s{sV}, s{SW}, 1\ns_mul_i32 s{sE}, s{sV}, 224")
    A(f"v_lshrrev_b32 v5, 5, v1\nv_lshlrev_b32 v5, 4, v5\nv_and_b32 v6, 31, v1\nv_lshlrev_b32 v4, 2, v6\nv_mov_b32 v9, 0")
    A(f"s_lshl_b32 s{sU}, s{sHQ}, 1\ns_add_u32 s{sU}, s{sU}, s{sV}\ns_lshl_b32 s{sU}, s{sU}, 7\ns_add_u32 s{sU}, s{sU}, s7")
    A(f"s_cmp_eq_u32 s{sSEC}, 2\ns_cbranch_scc1 P1_V")
    for isv in (0, 1):
        vm.q = []; lg.q = []
        if isv: A("P1_V:")
        RS, TM, PK = 112, 64, 96
        if not isv:
            A(f"v_add_u32 v4, s{sT}, v4\nv_add_u32 v5, s{sE}, v5")
            A(f"s_cmp_eq_u32 s{sSEC}, 0\ns_cselect_b32 s{sA}, 0, s{sONES}\ns_cselect_b32 s{sB}, 0, 0x3f80\ns_cselect_b32 s{sC}, {WS_Q}, {WS_KV}")
            A(f"s_add_u32 s{sD_}, s{sSEC}, 11\ns_lshl_b32 s{sU}, s{sU}, s{sD_}\ns_add_u32 s{sU}, s{sU}, s{sC}\ns_lshl_b32 s{sV}, 63, s{sD_}\ns_lshl_b32 s{sD_}, 1, s{sD_}\nv_mov_b32 v7, s{sA}\nv_mov_b32 v8, s{sB}")
            cr = [f"ds_read_b32 v{RS+4*rt+2*k}, v4 offset:{rt*1024 + 512 + 128*k}" for rt in range(2) for k in range(2)] + [f"ds_read_b128 {v(16+16*hd+4*g,4)}, v5 offset:{hd*112 + g*32}" for hd in range(2) for g in range(4)]
        else:
            A(f"v_add_u32 v4, s{sE}, v4\nv_add_u32 v5, s{sT}, v5")
            A(f"s_lshl_b32 s{sU}, s{sU}, 12\ns_add_u32 s{sU}, s{sU}, {WS_KV + 2048}\ns_mov_b32 s{sD_}, 4096\ns_mov_b32 s{sV}, {63*4096}\ns_mov_b32 s{sA}, 0x0fffffff\ns_mov_b32 s{sA+1}, 0x0fffffff")
            A(f"v_cmp_eq_u32 vcc, 28, v6\nv_mov_b32 v7, s{sONES}\nv_cndmask_b32 v8, 0, v7, vcc")
            for r in range(16): A(f"v_mov_b32 v{PK+r}, v8")
            cr = [f"ds_read_b128 {v(16+32*rt+16*k+4*g,4)}, v5 offset:{rt*1024 + 512 + 128*k + g*32}" for rt in range(2) for k in range(2) for g in range(4)] + [f"ds_read_b32 v{RS+2*hd}, v4 offset:{hd*112}" for hd in range(2)]
            TM = XF
        def rd(ks, part):
            xr = lambda rt: f"ds_read_b128 {v(XF + (ks&1)*8 + 4*rt, 4)}, v{VXS[ks & 3]} offset:{XBUF[ks >> 2] + rt*16384}"
            wr = lambda hd: [f"ds_read_b64_tr_b16 {v(WF + (ks&1)*8 + hd*4 + half*2, 2)}, v{VWR[ks//14]} offset:{(ks%14)*3584 + half*224 + hd*56}" for half in range(2)]
            for ln in ([xr(0), wr(0)[0]], [wr(0)[1], wr(1)[0]], [wr(1)[1], xr(1)])[part]: A(ln); lg.issue(ks)
        A("s_barrier"); stamp("g0")
        for part in range(3): rd(0, part)
        for ks in range(28):
            lg.wait(ks)
            if ks % 4 == 3 and ks < 27: A("s_barrier")
            if ks in (7, 15, 23): stamp(f"g{(ks+1)//8}")
            if ks == 16: A(f"buffer_load_dwordx2 {v(TAGV,2)}, v9, {R(RDBG)}, 0 offen sc1")
            for sl, (rt, hd) in enumerate(((0, 0), (0, 1), (1, 1), (1, 0))):
                x, w_, acc = v(XF + (ks&1)*8 + 4*rt, 4), v(WF + (ks&1)*8 + 4*hd, 4), v(ACC + 32*hd + 16*rt, 16)
                A(f"{MFMA} {acc}, {x if isv else w_}, {w_ if isv else x}, {'0' if ks == 0 else acc}")
                if ks + 1 < 28 and sl < 3: rd(ks + 1, sl)
                if ks >= 23 and (sl == 3 or ks == 27):
                    for _ in range(3 if ks == 27 else 2):
                        if cr: A(cr.pop(0)); lg.issue("c")
        assert not cr
        stamp("mfma_done")
        lg.wait_all()
        for n, (hd, rt) in enumerate(((0, 0), (0, 1), (1, 0), (1, 1))):
            ac, o = ACC + 32*hd + 16*rt, PK + 8*(n & 1)
            if not isv:
                for r in range(0, 16, 2): A(f"v_pk_mul_f32 {v(TM+r,2)}, {v(16+16*hd+r,2)}, {v(RS+4*rt+2,2)} op_sel_hi:[1,0]")
                for r in range(0, 16, 2): A(f"v_pk_fma_f32 {v(ac+r,2)}, {v(ac+r,2)}, {v(RS+4*rt,2)}, {v(TM+r,2)} op_sel_hi:[1,0,1]")
            else:
                for r in range(0, 16, 2): A(f"v_pk_mul_f32 {v(TM+r,2)}, {v(32+32*rt+r,2)}, {v(RS+2*hd,2)} op_sel_hi:[1,0]")
                for r in range(0, 16, 2): A(f"v_pk_fma_f32 {v(ac+r,2)}, {v(ac+r,2)}, {v(16+32*rt+r,2)}, {v(TM+r,2)}")
                A(f"s_mov_b64 exec, s[{sA}:{sA+1}]")
            for r in range(8): A(f"v_cvt_pk_bf16_f32 v{o+r}, v{ac+2*r}, v{ac+2*r+1}")
            if not isv: A(f"v_cndmask_b32 v{o+6}, v{o+6}, v7, s[{sHI}:{sHI+1}]\nv_cndmask_b32 v{o+7}, v{o+7}, v8, s[{sHI}:{sHI+1}]\nv_and_b32 v{o+3}, 0xfffefffe, v{o+3}\nv_and_b32 v{o+7}, 0xfffefffe, v{o+7}")
            else: A(f"v_and_b32 v{o+3}, -2, v{o+3}\nv_and_b32 v{o+7}, -2, v{o+7}\ns_mov_b64 exec, -1")
            for f in range(2): A(f"buffer_store_dwordx4 {v(o+4*f,4)}, v{VL}, {R(RWS)}, s{sU} offen offset:{f*1024} sc1")
            if n < 3: A(f"s_add_u32 s{sU}, s{sU}, s{sV if n == 1 else sD_}")
        stamp("kvst"); stamp_flush()
        if not isv: A("s_branch P1_DONE")
    A("P1_DONE:\ns_waitcnt vmcnt(8)")
    get_tag(TAGV, "P1_T")

def tilemax(sreg, T0, T1):
    A(f"v_max3_f32 v{T0}, v{sreg}, v{sreg+1}, v{sreg+2}\nv_max3_f32 v{T1}, v{sreg+3}, v{sreg+4}, v{sreg+5}")
    A(f"v_max3_f32 v{T0}, v{T0}, v{sreg+6}, v{sreg+7}\nv_max3_f32 v{T1}, v{T1}, v{sreg+8}, v{sreg+9}")
    A(f"v_max3_f32 v{T0}, v{T0}, v{sreg+10}, v{sreg+11}\nv_max3_f32 v{T1}, v{T1}, v{sreg+12}, v{sreg+13}")
    A(f"v_max3_f32 v{T0}, v{T0}, v{sreg+14}, v{sreg+15}")
def set_qpad(q, m, T0, T1, T2):
    A(f"v_sub_f32 v{T0}, 0, v{m}\nv_and_b32 v{T1}, 0xffff0000, v{T0}\nv_sub_f32 v{T0}, v{T0}, v{T1}")
    A(f"v_and_b32 v{T2}, 0xffff0000, v{T0}\nv_sub_f32 v{T0}, v{T0}, v{T2}\nv_lshrrev_b32 v{T0}, 16, v{T0}")
    A(f"v_lshrrev_b32 v{T1}, 16, v{T1}\nv_or_b32 v{T1}, v{T1}, v{T2}")
    A(f"v_cndmask_b32 v{q+6}, v{q+6}, v{T1}, s[{sHI}:{sHI+1}]\nv_cndmask_b32 v{q+7}, v{q+7}, v{T0}, s[{sHI}:{sHI+1}]")

NKV = env("NKV", 4)
XR, IR3 = (224, 232) if NKV == 4 else (176, 184)
VRD, VFL, VKV, VONE, VRB, VWO = [240, 241], 242, 243, 244, [246, 247], 248
VO3, VP3, VH, VP4, VG, VP5 = [10, 11], 12, [14, 15], 3, [253, 254], 242
sRO, sGC, sGST, sHFO, sFO, sRT3 = 96, 97, 98, 99, 100, 101
VRW = [249, 250, 251, 252]
def ident3():
    A("v_and_b32 v4, 31, v1\nv_lshrrev_b32 v5, 5, v1\nv_lshlrev_b32 v6, 3, v5\nv_sub_u32 v6, v4, v6")
    for p in range(2):
        for r in range(4):
            A(f"v_cmp_eq_u32 vcc, {16*p+2*r}, v6\nv_cmp_eq_u32 s[{sU}:{sU+1}], {16*p+2*r+1}, v6\nv_cndmask_b32 v{IR3+4*p+r}, 0, v{VONE}, vcc\nv_cndmask_b32 v{IR3+4*p+r}, v{IR3+4*p+r}, v{VONE+1}, s[{sU}:{sU+1}]")
def addr_setup():
    tr_lane_addr(4, 5, 128, 4)
    A(f"s_and_b32 s{sT}, s{SW}, 1\ns_lshl_b32 s{sT}, s{sT}, 5\nv_xor_b32 v4, s{sT}, v4")
    A(f"v_bfe_u32 v5, v1, 3, 1\ns_lshr_b32 s{sT}, s{SW}, 1\nv_xor_b32 v5, s{sT}, v5")
    A(f"v_lshl_add_u32 v6, v5, 6, v4\nv_xor_b32 v5, 1, v5\nv_lshl_add_u32 v7, v5, 6, v4")
    A(f"v_add_u32 v{VRD[0]}, s{sW2W}, v6\nv_add_u32 v{VRD[1]}, s{sW2W}, v7")
    A(f"v_mov_b32 v{VONE}, 0x3f80\nv_mov_b32 v{VONE+1}, 1.0")
    A(f"s_lshl_b32 s{sT}, s{sH}, 2\ns_add_u32 s{sT}, s{sT}, s{SW}\ns_lshl_b32 s{sT}, s{sT}, 16\ns_add_u32 s{sT}, s{sT}, {WS_KV}\nv_add_u32 v{VKV}, s{sT}, v{VL}")
    tr_lane_addr(VWO, 4, 64, 4); A(f"v_add_u32 v{VWO}, {RBUF}, v{VWO}\nv_add_u32 v{VRW[0]}, s{sRBW}, v{VL}")
    for t in range(1, 4):
        A(f"s_add_u32 s{sT}, s{SW}, {t}\ns_and_b32 s{sT}, s{sT}, 3\ns_mul_i32 s{sT}, s{sT}, 12288\ns_add_u32 s{sT}, s{sT}, {RBUF}\nv_add_u32 v{VRW[t]}, s{sT}, v{VL}")
    if NKV == 4: ident3()
    A("v_and_b32 v4, 31, v1\nv_lshrrev_b32 v5, 5, v1")
    A("v_mul_u32_u24 v13, 896, v4\nv_lshl_add_u32 v13, v5, 4, v13")
    A(f"s_lshl_b32 s{sB}, s{sR3}, 11\ns_add_u32 s{sB}, s{sB}, {WS_O}\nv_add_u32 v{VO3[0]}, s{sB}, v{VL}\nv_add_u32 v{VO3[1]}, 0x20000, v{VO3[0]}\ns_and_b32 s{sT}, s{sC3}, 7\ns_lshl_b32 s{sRT3}, s{sT}, 18")
    A(f"s_lshl_b32 s{sT}, s{sT}, 1\nv_add_u32 v{VP3}, s{sT}, v1\nv_and_b32 v{VP3}, 15, v{VP3}\nv_lshlrev_b32 v{VP3}, 17, v{VP3}\ns_add_u32 s{sT}, s{sB}, 2044\nv_add_u32 v{VP3}, s{sT}, v{VP3}")
    mlp_addr(RA, 4, 6)
    A(f"s_lshl_b32 s{sFO}, s{sFT}, 2\ns_add_u32 s{sFO}, s{sFO}, s{SW}\ns_mul_i32 s{sT}, s{sDT4}, {2*112*1024}\ns_lshl_b32 s{sU}, s{sFO}, 10\ns_add_u32 s{sT}, s{sT}, s{sU}\ns_add_u32 s{sGST}, s{sT}, {WS_G}")
    A(f"s_lshr_b32 s{sV}, s{SW}, 1\ns_lshl_b32 s{sT}, s{sST}, 1\ns_add_u32 s{sV}, s{sV}, s{sT}\ns_mul_i32 s{sV}, s{sV}, 7\ns_add_u32 s{sV}, s{sV}, s{sDT5}\ns_lshl_b32 s{sV}, s{sV}, 12\ns_and_b32 s{sT}, s{SW}, 1\ns_lshl_b32 s{sT}, s{sT}, 10\ns_add_u32 s{sV}, s{sV}, s{sT}\ns_add_u32 s{sHFO}, s{sV}, {WS_HF}")
    A(f"s_xor_b32 s{sT}, s{SW}, 3\ns_mul_i32 s{sT}, s{sT}, 28672\ns_add_u32 s{sT}, s{sT}, {13*2048}\nv_add_u32 v{VX3}, s{sT}, v{VL}")

class Role: pass
RA, RB = Role(), Role()
C5A = env("C5A", 12)
RA.n, RA.n4, RA.c4, RA.n5, RA.c5, RA.W, RA.slots = "A", 0, 12, 0, C5A, 128, [0, 1, 2, 3, 4, 5]
RA.VRD, RA.VH, RA.VG, RA.VP4, RA.VP5, RA.VT2, RA.T0, RA.T1 = [240, 241], 14, 253, 3, 242, [246, 247], 4, 5
RB.n, RB.n4, RB.c4, RB.n5, RB.c5, RB.W, RB.slots = "B", 12, 20, C5A, 28 - C5A, 96, [12, 6, 7, 8, 9, 10, 11]
RB.VRD, RB.VH, RB.VG, RB.VP4, RB.VP5, RB.VT2, RB.T0, RB.T1 = [0, 3], 4, 5, 8, 9, [6, 7], 12, 13
VX3 = 15
def w2_addr(r, t0, t1):
    A(f"v_lshrrev_b32 v{t0}, 3, v1\nv_bfe_u32 v{t1}, v1, 4, 1\nv_lshlrev_b32 v{t1}, 2, v{t1}\nv_and_b32 v{r.VT2[0]}, 7, v1\nv_xor_b32 v{t1}, v{r.VT2[0]}, v{t1}\nv_lshlrev_b32 v{t1}, 4, v{t1}\nv_lshl_add_u32 v{t0}, v{t0}, 12, v{t1}")
    A(f"s_mul_i32 s{sT}, s{SW}, {448*4096}\ns_lshl_b32 s{sU}, s{sST}, 7\ns_add_u32 s{sT}, s{sT}, s{sU}\nv_add_u32 v{r.VT2[0]}, s{sT}, v{t0}\nv_add_u32 v{r.VT2[1]}, {8*4096 - 1024}, v{r.VT2[0]}")
    rot4(sRO); A(f"s_lshl_b32 s{sRO}, s{sRO}, 10")
    rot5(sGC); A(f"s_lshl_b32 s{sGC}, s{sGC}, 10")
def mlp_addr(r, t0, t1, w2=True):
    if w2: w2_addr(r, t0, t1)
    A(f"s_lshl_b32 s{sT}, s{SW}, 15\ns_add_u32 s{sT}, s{sT}, {WS_HH}\ns_lshl_b32 s{sB}, s{sDT4}, 18\ns_add_u32 s{sB}, s{sB}, s{sT}\nv_add_u32 v{r.VH}, s{sB}, v{VL}")
    A(f"s_add_u32 s{sT}, s{sRO}, {r.n4*1024}\nv_lshl_add_u32 v{r.VP4}, v1, 11, s{sT}\nv_and_b32 v{r.VP4}, 0x7fff, v{r.VP4}\ns_add_u32 s{sT}, s{sB}, 2044\nv_add_u32 v{r.VP4}, s{sT}, v{r.VP4}")
    A(f"s_mul_i32 s{sT}, s{SW}, {28*1024}\ns_add_u32 s{sT}, s{sT}, {WS_G}\ns_mul_i32 s{sB}, s{sDT5}, {2*112*1024}\ns_add_u32 s{sB}, s{sB}, s{sT}")
    A(f"s_and_b32 s{sT}, s{SW}, 1\ns_lshl_b32 s{sT}, s{sT}, 8\nv_xor_b32 v{r.VG}, s{sT}, v{VL}\nv_add_u32 v{r.VG}, s{sB}, v{r.VG}")
    A(f"s_add_u32 s{sT}, s{sGC}, {r.n5*1024}\nv_min_u32 v{t0}, {r.c5 // 2 - 1}, v1\nv_lshl_add_u32 v{r.VP5}, v{t0}, 11, s{sT}\nv_subrev_u32 v{t0}, {28*1024}, v{r.VP5}\nv_min_u32 v{r.VP5}, v{r.VP5}, v{t0}\ns_add_u32 s{sT}, s{sB}, 2044\nv_add_u32 v{r.VP5}, s{sT}, v{r.VP5}")

def xid_store(lab, t):
    A(f"s_getreg_b32 s{sV}, hwreg(HW_REG_XCC_ID, 0, 4)\ns_cmp_lg_u32 s{SW}, 1\ns_cbranch_scc1 {lab}")
    A(f"s_lshr_b32 s{sT}, s{sR3}, 2\ns_lshl_b32 s{sT}, s{sT}, 4\ns_add_u32 s{sT}, s{sT}, s{sC3}\ns_lshl_b32 s{sT}, s{sT}, 4\ns_add_u32 s{sT}, s{sT}, {F4}")
    A(f"v_mov_b32 v{t}, s{sV}\nv_mov_b32 v{t+1}, s{sTAG}\nv_mov_b32 v{t+2}, s{sV}\nv_mov_b32 v{t+3}, s{sTAG+1}\nv_mov_b32 v{t+4}, 0\ns_mov_b64 exec, 1\nbuffer_store_dwordx4 {v(t,4)}, v{t+4}, {R(RWS)}, s{sT} offen sc1\ns_mov_b64 exec, -1\n{lab}:")

def p2():
    Q, O, SS, PP, KV = 16, 48, [112, 128], [144, 152], 160
    M = [112, 113, 114, 115]; K0 = 120
    T0, T1, T2, T3 = 4, 5, 6, 7
    sKN = sB
    A(f"v_mov_b32 v4, s{sTAG}\nv_mov_b32 v5, s{sTAG+1}\nv_mov_b32 v6, 0\ns_cmp_lg_u32 s{SW}, 0")
    vm.wait_all(); stamp("kvdrain")
    A(f"s_barrier\ns_cbranch_scc1 P2_NOF\ns_mov_b64 exec, 1\nbuffer_store_dwordx2 v[4:5], v6, {R(RWS)}, s{sF[0]} offen sc1\ns_mov_b64 exec, -1\nP2_NOF:"); stamp_flush()
    A("P2_START:")
    A(f"s_mul_i32 s{sE}, s{sR3}, {32*896}\ns_lshl_b32 s{sU}, s{sC3}, 6\ns_add_u32 s{sE}, s{sE}, s{sU}")
    xl = [f"buffer_load_dwordx4 {v(XR+4*p,4)}, v13, {R(RX)}, s{sE} offen offset:{32*p}" for p in range(2)]
    if NKV == 4: A("\n".join(xl))
    A(f"s_lshl_b32 s{sV}, s{sI}, 2\ns_add_u32 s{sV}, s{sV}, s{SW}\ns_lshl_b32 s{sU}, s{sH}, 6\ns_add_u32 s{sU}, s{sU}, s{sV}\ns_lshl_b32 s{sU}, s{sU}, 11")
    A(f"s_lshr_b32 s{sT}, s{sH}, 2\ns_lshl_b32 s{sT}, s{sT}, 13\ns_add_u32 s{sT}, s{sT}, {F1}\ns_lshl_b32 s{sA}, s{SW}, 9\ns_add_u32 s{sA}, s{sA}, 2048\ns_lshl_b32 s{sC}, s{sI}, 7")
    A(f"v_and_b32 v7, 3, v1\nv_lshl_add_u32 v7, v7, 7, s{sA}\nv_bfe_u32 v8, v1, 2, 1\nv_lshl_add_u32 v7, v8, 11, v7\nv_writelane_b32 v7, s{sC}, 8")
    if env("PW1", 1): A("s_waitcnt vmcnt(0)")
    poll(7, sT, 9, 8); stamp("s1")
    def kvload(n):
        pre = []
        if n == 0: pre = [f"s_add_u32 s{sA}, s{RWS}, 4096", f"s_addc_u32 s{sA+1}, s{RWS+1}, 0"]
        elif n % 2 == 0: pre = [f"s_add_u32 s{sA}, s{sA}, 8192", f"s_addc_u32 s{sA+1}, s{sA+1}, 0"]
        return pre + [f"global_load_dwordx4 {v(KV+16*(n%NKV)+4*f,4)}, v{VKV}, s[{sA}:{sA+1}] offset:{(n % 2 - 1)*4096 + f*1024} sc1" for f in range(4)]
    def emit(lines, tag):
        for ln in lines:
            A(ln)
            if ln.startswith("global_"): vm.issue(tag)
    for f in range(2): A(f"buffer_load_dwordx4 {v(Q+4*f,4)}, v{VL}, {R(RWS)}, s{sU} offen offset:{f*1024} sc1"); vm.issue("q")
    emit(kvload(0), "kv0")
    A("s_waitcnt vmcnt(2)"); stamp("qk0")
    A(f"{MFMA} {v(O,16)}, {v(KV,4)}, {v(Q,4)}, 0\n{MFMA} {v(O,16)}, {v(KV+4,4)}, {v(Q+4,4)}, {v(O,16)}")
    emit(kvload(1), "kv1")
    A(f"ds_write_b128 v{VRW[0]}, {v(Q,4)}")
    tilemax(O, T0, T1)
    A(f"v_max_f32 v{T0}, v{T0}, v{T1}\nv_mov_b32 v{T1}, v{T0}\nv_permlane32_swap_b32 v{T0}, v{T1}\nv_max_f32 v{T0}, v{T0}, v{T1}")
    set_qpad(Q, T0, T1, T2, T3)
    A(f"ds_write_b128 v{VRW[0]}, {v(Q+4,4)} offset:1024")
    A(f"{MFMA} {v(SS[0],16)}, {v(KV,4)}, {v(Q,4)}, 0\n{MFMA} {v(SS[0],16)}, {v(KV+4,4)}, {v(Q+4,4)}, {v(SS[0],16)}")
    emit(kvload(2), "kv2")
    A("s_waitcnt lgkmcnt(0)")
    A("s_barrier")
    for t in range(1, 4): A(f"ds_read_b128 {v(Q+8*t,4)}, v{VRW[t]}\nds_read_b128 {v(Q+8*t+4,4)}, v{VRW[t]} offset:1024")
    emit(kvload(3), "kv3")
    if env("APRIO", 0): A(f"s_setprio {env('APRIO', 0)}")
    A("P2_MAIN:")
    slot = lambda idx: (idx + (idx >= 60)) & 3
    pwr = lambda t, g: f"ds_write_b128 v{VRW[t]}, {v(O+16*t+4*g,4)} offset:{(t-1)*4096 + g*1024}"
    def qk(idx, part):
        n, t = idx >> 2, slot(idx); sr = SS[idx & 1]; k = KV + 16*(n % NKV)
        return f"{MFMA} {v(sr,16)}, {v(k+4*part,4)}, {v(Q+8*t+4*part,4)}, {'0' if part == 0 else v(sr,16)}"
    def pv(idx, part):
        n, t = idx >> 2, slot(idx); k = KV + 16*(n % NKV) + 8; o = O + 16*t
        return f"{MFMA} {v(o,16)}, {v(k+4*part,4)}, {v(PP[idx&1]+4*part,4)}, {'0' if (n == 0 and part == 0) else v(o,16)}"
    NI = 64
    for idx in range(NI):
        n, t = idx >> 2, idx & 3
        if idx in (16, 32, 48): stamp(f"a{idx}")
        side = [[], [], [], []]
        if NKV > 4 and idx == 53: side = [xl[:1], [], xl[1:], []]
        if t in (1, 2) and 4 <= n + NKV - 1 < 16:
            l = kvload(n + NKV - 1); pre, ld = l[:-4], l[-4:]
            side = [pre[:1], pre[1:], ld[0:1], ld[1:2]] if t == 1 else [ld[2:3], ld[3:4], [], []]
        if idx == 62: side = [[], [pwr(1, 0)], [pwr(1, 1)], [pwr(1, 2)]]
        if idx == 63: side = [[], [pwr(2, 0), pwr(2, 1)], [], [pwr(2, 2)]]
        if idx == env("CUTAT", 61): side[0].append(f"ds_write_b32 v{VRW[1]}, v{VONE} offset:3072")
        mf = [qk(idx+1, 0) if idx+1 < NI else None, pv(idx-1, 0) if idx > 0 else None,
              qk(idx+1, 1) if idx+1 < NI else None, pv(idx-1, 1) if idx > 0 else None]
        if idx == 0: mf = [None, "s_waitcnt lgkmcnt(0)\n" + mf[0], mf[2], None]
        sr, p = SS[idx & 1], PP[idx & 1]
        for q in range(4):
            if mf[q]: A(mf[q])
            emit(side[q], f"kv{n+NKV-1}")
            if idx == 0 and q == 2: vm.wait("kv0")
            if t == 2 and q == 3 and n + 1 < 16: vm.wait(f"kv{n+1}")
            for j in range(4): A(f"v_exp_f32 v{sr+4*q+j}, v{sr+4*q+j}")
            if q > 0:
                for j in range(2): A(f"v_cvt_pk_bf16_f32 v{p+2*(q-1)+j}, v{sr+4*(q-1)+2*j}, v{sr+4*(q-1)+2*j+1}")
        for j in range(2): A(f"v_cvt_pk_bf16_f32 v{p+6+j}, v{sr+12+2*j}, v{sr+12+2*j+1}")
    A("P2_TAIL:"); A(pv(NI-1, 0)); A(pv(NI-1, 1)); stamp("aend")
    for g in range(3): A(pwr(3, g))
    A(f"s_mov_b32 s{sT}, {fl(2.0**30)}")
    A(f"v_cmp_nlt_f32 s[{sA}:{sA+1}], v{O+60}, s{sT}\nv_cmp_nlt_f32 s[{sC}:{sC+1}], v{O+28}, s{sT}\ns_or_b32 s{sU}, s{sA+1}, s{sC+1}")
    A(f"v_cmp_nlt_f32 s[{sA}:{sA+1}], v{O+44}, s{sT}\nv_cmp_nlt_f32 s[{sC}:{sC+1}], v{O+12}, s{sT}\ns_or_b32 s{sU}, s{sU}, s{sA+1}\ns_or_b32 s{sU}, s{sU}, s{sC+1}")
    A(f"s_cselect_b32 s{sU}, 1.0, 0\nv_mov_b32 v{T0}, s{sU}")
    for t in range(4): A(f"v_cndmask_b32 v{O+16*t+13}, v{O+16*t+13}, v{T0}, s[{sHI}:{sHI+1}]")
    for t in range(1, 4): A(f"ds_write_b128 v{VRW[t]}, {v(O+16*t+12,4)} offset:{(t-1)*4096 + 3*1024}")
    A(f"s_lshl_b32 s{sD_}, s{sI}, 2\ns_add_u32 s{sD_}, s{sD_}, s{SW}\ns_lshl_b32 s{sV}, s{sH}, 6\ns_add_u32 s{sV}, s{sV}, s{sD_}\ns_lshl_b32 s{sV}, s{sV}, 11\ns_add_u32 s{sV}, s{sV}, {WS_O}")
    A("s_waitcnt lgkmcnt(0)\ns_barrier")
    for g in (3, 0, 1, 2):
        for t in range(1, 4): A(f"ds_read_b128 {v(O+16*t+4*g,4)}, v{VRW[0]} offset:{(t-1)*4096 + g*1024}")
    def red(g):
        for r in (4*g, 4*g+2):
            A(f"v_pk_add_f32 {v(O+r,2)}, {v(O+r,2)}, {v(O+16+r,2)}\nv_pk_add_f32 {v(O+32+r,2)}, {v(O+32+r,2)}, {v(O+48+r,2)}")
        for r in (4*g, 4*g+2): A(f"v_pk_add_f32 {v(O+r,2)}, {v(O+r,2)}, {v(O+32+r,2)}")
    A("s_waitcnt lgkmcnt(9)"); red(3)
    A(f"v_readlane_b32 s{sT}, v{O+13}, 32\nv_mov_b32 v{T0}, v{O+12}\nv_mov_b32 v{T2}, v{O+12}\nv_permlane32_swap_b32 v{T0}, v{T2}\nv_rcp_f32 v{T2}, v{T2}")
    A(f"s_cmp_lg_u32 s{sT}, s{sRETRY}\ns_cbranch_scc1 P2_FALL\nP2_FIN:")
    for k, g in enumerate((0, 1, 2)):
        A(f"s_waitcnt lgkmcnt({6 - 3*k})"); red(g)
    for r in range(0, 16, 2): A(f"v_pk_mul_f32 {v(O+r,2)}, {v(O+r,2)}, {v(T2,2)} op_sel_hi:[1,0]")
    for r in range(8): A(f"v_cvt_pk_bf16_f32 v{O+16+r}, v{O+2*r}, v{O+2*r+1}")
    A(f"v_cndmask_b32 v{O+22}, v{O+22}, 0, s[{sHI}:{sHI+1}]\nv_cndmask_b32 v{O+23}, v{O+23}, 0, s[{sHI}:{sHI+1}]")
    A(f"s_mov_b32 s{sT}, 0xfffeffff\nv_and_or_b32 v{O+19}, v{O+19}, s{sT}, 1\nv_and_or_b32 v{O+23}, v{O+23}, s{sT}, 1")
    for f in range(2): A(f"buffer_store_dwordx4 {v(O+16+4*f,4)}, v{VL}, {R(RWS)}, s{sV} offen offset:{f*1024} sc1")
    stamp("ost")
    if STAMP and env("ACK", 0): A("s_waitcnt vmcnt(0)"); stamp("oack")
    stamp_flush()
    A("s_barrier")
    def fallback():
        A(f"P2_FALL:\ns_cmp_lg_u32 s{sRETRY}, 0\ns_cbranch_scc1 P2_FIN")
        A(f"s_mov_b32 s{sRETRY}, -1\ns_waitcnt vmcnt(0) lgkmcnt(0)")
        for t in range(4):
            A(f"v_cndmask_b32 v{Q+8*t+6}, v{Q+8*t+6}, 0, s[{sHI}:{sHI+1}]\nv_cndmask_b32 v{Q+8*t+7}, v{Q+8*t+7}, 0, s[{sHI}:{sHI+1}]\nv_mov_b32 v{M[t]}, 0xff800000")
        A(f"s_mov_b32 s{sU}, 0\nP2_MAXLOOP:")
        for f in range(2): A(f"buffer_load_dwordx4 {v(K0+4*f,4)}, v{VKV}, {R(RWS)}, s{sU} offen offset:{f*1024} sc1")
        A("s_waitcnt vmcnt(0)")
        for t in range(4):
            A(f"{MFMA} {v(O+16*t,16)}, {v(K0,4)}, {v(Q+8*t,4)}, 0\n{MFMA} {v(O+16*t,16)}, {v(K0+4,4)}, {v(Q+8*t+4,4)}, {v(O+16*t,16)}")
        for t in range(4):
            tilemax(O+16*t, T0, T1); A(f"v_max3_f32 v{M[t]}, v{M[t]}, v{T0}, v{T1}")
        A(f"s_add_u32 s{sU}, s{sU}, 4096\ns_cmp_lt_u32 s{sU}, {16*4096}\ns_cbranch_scc1 P2_MAXLOOP")
        A(f"s_barrier\nv_and_b32 v{T3}, 31, v1\nv_lshlrev_b32 v{T3}, 4, v{T3}")
        for t in range(4):
            A(f"v_mov_b32 v{T2}, v{M[t]}\nv_permlane32_swap_b32 v{M[t]}, v{T2}\nv_max_f32 v{M[t]}, v{M[t]}, v{T2}")
            A(f"s_add_u32 s{sT}, s{SW}, {t}\ns_and_b32 s{sT}, s{sT}, 3\ns_lshl_b32 s{sT}, s{sT}, 9\ns_add_u32 s{sT}, s{sT}, {RBUF}\ns_lshl_b32 s{sU}, s{SW}, 2\ns_add_u32 s{sU}, s{sU}, s{sT}")
            A(f"v_add_u32 v{K0+t}, s{sT}, v{T3}\nv_add_u32 v{T2}, s{sU}, v{T3}\nds_write_b32 v{T2}, v{M[t]}")
        A("s_waitcnt lgkmcnt(0)\ns_barrier")
        for t in range(4): A(f"ds_read_b128 {v(O+4*t,4)}, v{K0+t}")
        for n in range(4):
            for ln in kvload(n): A(ln)
        A("s_waitcnt vmcnt(0) lgkmcnt(0)\ns_barrier")
        for t in range(4):
            A(f"v_max3_f32 v{M[t]}, v{O+4*t}, v{O+4*t+1}, v{O+4*t+2}\nv_max_f32 v{M[t]}, v{M[t]}, v{O+4*t+3}")
            set_qpad(Q+8*t, M[t], T0, T1, T2)
        A(qk(0, 0)); A(qk(0, 1))
        A("s_branch P2_MAIN")
    return fallback

def p3():
    EP = env("EP", 0)
    D1, D2, TF = 96, 112, 80 if EP else 176
    ofr = (lambda ks: 16 + 4*(ks & 15)) if EP else (lambda ks: 16 + 4*ks if ks < 20 else 128 + 4*(ks - 20))
    T0, T1, T2, T3 = 8, 9, 4, 5
    if NKV > 4: ident3(); A("s_waitcnt vmcnt(2)")
    A(f"{MFMA} {v(D1,16)}, {v(XR,4)}, {v(IR3,4)}, 0\n{MFMA} {v(D2,16)}, {v(IR3,4)}, {v(XR,4)}, 0")
    A(f"{MFMA} {v(D1,16)}, {v(XR+4,4)}, {v(IR3+4,4)}, {v(D1,16)}\n{MFMA} {v(D2,16)}, {v(IR3+4,4)}, {v(XR+4,4)}, {v(D2,16)}")
    for sl in range(1, 4):
        A(f"s_xor_b32 s{sU}, s{SW}, {sl}\ns_mul_i32 s{sU}, s{sU}, 12288\ns_add_u32 s{sU}, s{sU}, {RBUF}\nv_add_u32 v{VRW[sl]}, s{sU}, v{VL}")
    A(f"s_barrier\ns_cmp_lt_u32 s{sC3}, 14\ns_cbranch_scc0 P3_END")
    vm.q = []; lg.q = []
    so = Stream("SO", 8, lambda g: [(ofr(4*g+k), VO3[k >> 1], (k & 1)*1024) for k in range(4)],
                lambda g: A(f"s_add_u32 s{sT}, s{sRT3}, {g << 18}\ns_and_b32 s{sT}, s{sT}, 0x1fffff"), T0, 1, VP3, T1, None, None if env("GT3", 0) else 0)
    NPRE = env("NPRE", 4)
    if env("LOC3", 1):
        A(f"s_lshr_b32 s{sT}, s{sR3}, 2\ns_lshl_b32 s{sT}, s{sT}, 8\ns_add_u32 s{sT}, s{sT}, {F4}\nv_min_u32 v6, 13, v1\nv_lshlrev_b32 v6, 4, v6\nbuffer_load_dwordx4 {v(192,4)}, v6, {R(RWS)}, s{sT} offen sc1")
    stamp("p3pre")
    for m in range(NPRE): so.issue(m)
    stamp("p3gate")
    LAG = env("LAG", 8)
    tf = lambda ks: TF + 4*(ks & 3) if ks < 32 - LAG else 192 + 4*(ks - 32 + LAG)
    def wread(ks):
        n, p = ks >> 1, ks & 1
        for half in range(2):
            A(f"ds_read_b64_tr_b16 {v(tf(ks)+2*half,2)}, v{VWO} offset:{(n>>2)*12288 + (n&3)*2048 + (16*p+8*half)*64}"); lg.issue(f"w{ks}")
    wread(0); wread(1)
    A("v_and_b32 v6, 31, v1\nv_lshlrev_b32 v6, 4, v6\nv_lshrrev_b32 v7, 5, v1\nv_mul_u32_u24 v7, 3584, v7\nv_add_u32 v6, v6, v7")
    so.check1(0); so.check2(0)
    if env("LOC3", 1):
        A(f"s_getreg_b32 s{sV}, hwreg(HW_REG_XCC_ID, 0, 4)\nv_xor_b32 v192, s{sV}, v192\nv_xor_b32 v193, s{sTAG}, v193\nv_xor_b32 v194, s{sV}, v194\nv_xor_b32 v195, s{sTAG+1}, v195")
        A(f"v_or3_b32 v192, v192, v193, v194\nv_or_b32 v192, v192, v195\nv_cmp_ne_u32 vcc, 0, v192\ns_or_b32 s{sE}, vcc_lo, vcc_hi")
    for ks in range(32):
        lg.wait(f"w{ks}")
        if ks in (0, 16): stamp(f"p3_{ks}")
        o, wv = v(ofr(ks), 4), v(tf(ks), 4)
        A(f"{MFMA} {v(D2,16)}, {wv}, {o}, {v(D2,16)}")
        if ks + 2 < 32 - LAG: wread(ks + 2)
        if 32 - 2*LAG - 2 <= ks < 32 - LAG - 2: wread(ks + LAG + 2)
        if ks < 32 - LAG: A(f"{MFMA} {v(D1,16)}, {o}, {wv}, {v(D1,16)}")
        if ks % 4 < 2:
            for k in range(2): so.issue_part(NPRE + ks//4, 2*(ks % 4) + k)
        if ks % 4 == 2: so.check1(ks//4 + 1)
        if ks % 4 == 3: so.check2(ks//4 + 1)
    stamp("p3mm")
    G = 16
    A(f"s_lshl_b32 s{sB}, s{sR3}, 13\ns_add_u32 s{sB}, s{sB}, {WS_ST}\ns_lshl_b32 s{sT}, s{sC3}, 9\ns_add_u32 s{sT}, s{sT}, s{sB}")
    A(f"v_mov_b32 v{G+1}, s{sTAG}\nv_mov_b32 v{G+3}, s{sTAG+1}")
    A(f"v_pk_add_f32 v[20:21], {v(D2,2)}, {v(D2+2,2)}\nv_pk_mul_f32 v[22:23], {v(D2,2)}, {v(D2,2)}\nv_pk_fma_f32 v[22:23], {v(D2+2,2)}, {v(D2+2,2)}, v[22:23]")
    for r in range(4, 16, 2): A(f"v_pk_add_f32 v[20:21], v[20:21], {v(D2+r,2)}\nv_pk_fma_f32 v[22:23], {v(D2+r,2)}, {v(D2+r,2)}, v[22:23]")
    A(f"v_add_f32 v{G}, v20, v21\nv_add_f32 v{G+2}, v22, v23")
    A(f"v_mov_b32 v20, v{G}\nv_mov_b32 v22, v{G+2}\nv_permlane32_swap_b32 v{G}, v20\nv_permlane32_swap_b32 v{G+2}, v22\nv_add_f32 v{G}, v{G}, v20\nv_add_f32 v{G+2}, v{G+2}, v22")
    set_exec(0xFFFFFFFF)
    if env("LOC3", 1):
        A(f"s_cmp_lg_u32 s{sE}, 0\ns_cbranch_scc1 P3_FAR\nbuffer_store_dwordx4 {v(G,4)}, v{VL}, {R(RWS)}, s{sT} offen\nP3_FARX:\ns_mov_b64 exec, -1")
        handlers.append(lambda: A(f"P3_FAR:\nbuffer_store_dwordx4 {v(G,4)}, v{VL}, {R(RWS)}, s{sT} offen sc1\ns_branch P3_FARX"))
    else: A(f"buffer_store_dwordx4 {v(G,4)}, v{VL}, {R(RWS)}, s{sT} offen sc1\ns_mov_b64 exec, -1")
    GR = 32
    def gl():
        for k in range(7): A(f"buffer_load_dwordx4 {v(GR+4*k,4)}, v6, {R(RWS)}, s{sB} offen offset:{k*512} sc1")
    for r in range(8): A(f"v_cvt_pk_bf16_f32 v{24+r}, v{D2+2*r}, v{D2+2*r+1}")
    A(f"s_mul_i32 s{sT}, s{sR3}, 14\ns_add_u32 s{sT}, s{sT}, s{sC3}\ns_lshl_b32 s{sT}, s{sT}, 11\ns_add_u32 s{sT}, s{sT}, {WS_HF}")
    if env("S3W", 0): A("s_waitcnt vmcnt(0)")
    stamp("s3pre")
    for ks in range(32 - LAG, 32): A(f"{MFMA} {v(D1,16)}, {v(ofr(ks),4)}, {v(tf(ks),4)}, {v(D1,16)}")
    gl()
    for p in range(2): A(f"buffer_store_dwordx4 {v(24+4*p,4)}, v{VL}, {R(RWS)}, s{sT} offen offset:{p*1024} sc1")
    A("s_waitcnt vmcnt(2)")
    tagcheck([GR+4*k for k in range(7)], T1, T2, T3)
    A("s_cbranch_vccnz P3_GH\nP3_GX:")
    def gh():
        A(f"P3_GH:\ns_mov_b32 s{sTO}, 0x40000\nP3_GL:"); gl()
        A(f"s_sub_u32 s{sTO}, s{sTO}, 1\ns_waitcnt vmcnt(0)\ns_cbranch_scc1 P3_GX")
        tagcheck([GR+4*k for k in range(7)], T1, T2, T3)
        A("s_cbranch_vccnz P3_GL\ns_branch P3_GX")
    handlers.append(gh)
    vm.q = []
    stamp("s3")
    for k in range(1, 7): A(f"v_add_f32 v{GR}, v{GR}, v{GR+4*k}\nv_add_f32 v{GR+2}, v{GR+2}, v{GR+4*k+2}")
    m, q = GR, GR+2
    A(f"v_mov_b32 v{T0}, v{m}\nv_mov_b32 v{T1}, v{q}\nv_permlane32_swap_b32 v{m}, v{T0}\nv_permlane32_swap_b32 v{q}, v{T1}\nv_add_f32 v{m}, v{m}, v{T0}\nv_add_f32 v{q}, v{q}, v{T1}")
    A(f"v_mul_f32 v{m}, {fl(1.0/D)}, v{m}\nv_mul_f32 v{q}, {fl(1.0/D)}, v{q}\nv_fma_f32 v{q}, -v{m}, v{m}, v{q}\nv_max_f32 v{q}, 0, v{q}")
    A(f"v_add_f32 v{T0}, {fl(EPS)}, v{q}\nv_mul_f32 v{T0}, {fl(EPS)}, v{T0}\nv_add_f32 v{q}, v{q}, v{T0}\nv_rsq_f32 v{q}, v{q}\ns_add_u32 s{sT}, s{sRBW}, 8192\nv_mul_f32 v{m}, v{m}, v{q}")
    A(f"v_cndmask_b32 v{T0}, v{q}, v{m}, s[{sHI}:{sHI+1}]\nv_lshl_add_u32 v{T1}, v1, 2, s{sT}\nds_write_b32 v{T1}, v{T0}")
    A(f"v_lshrrev_b32 v{T2}, 5, v1\nv_lshl_add_u32 v{T2}, v{T2}, 4, s{sT}")
    for g in range(4): A(f"ds_read_b128 {v(64+4*g,4)}, v{T2} offset:{g*32}\nds_read_b128 {v(80+4*g,4)}, v{T2} offset:{128+g*32}")
    A(f"s_lshl_b32 s{sT}, s{sC3}, 17\ns_lshl_b32 s{sU}, s{sR3}, 11\ns_add_u32 s{sT}, s{sT}, s{sU}\ns_add_u32 s{sT}, s{sT}, {WS_HH}")
    for p in range(2):
        A(f"s_waitcnt lgkmcnt({4 - 4*p})")
        for r in range(8*p, 8*p+8, 2): A(f"v_pk_fma_f32 {v(D1+r,2)}, {v(D1+r,2)}, {v(64+r,2)}, {v(80+r,2)} neg_lo:[0,0,1] neg_hi:[0,0,1]")
        for r in range(4*p, 4*p+4): A(f"v_cvt_pk_bf16_f32 v{16+r}, v{D1+2*r}, v{D1+2*r+1}")
        A(f"v_or_b32 v{19+4*p}, 0x10000, v{19+4*p}")
        if p == 0: A("s_waitcnt vmcnt(0)")
        A(f"buffer_store_dwordx4 {v(16+4*p,4)}, v{VL}, {R(RWS)}, s{sT} offen offset:{p*1024} sc1")
    stamp("hhst")
    if STAMP and env("ACK", 0): A("s_waitcnt vmcnt(0)"); stamp("hhack")
    stamp_flush()
    A("P3_END:")
    preread()
    A("s_waitcnt lgkmcnt(0)\ns_barrier")
    if env("X1B", 1): A("s_barrier")
    vm.q = []; lg.q = []

ACC, RING, TMP = 16, 48, 96
def wread_step(r, m, slot, tag=None):
    for ti in range(2):
        for half in range(2):
            A(f"ds_read_b64_tr_b16 {v(r.W + 8*m + ti*4 + half*2, 2)}, v{r.VRD[ti]} offset:{slot*2048 + half*1024}")
            if tag is not None: lg.issue(tag)
def unswap(r): A(f"s_and_b32 s{sT}, s{SW}, 1\ns_lshl_b32 s{sT}, s{sT}, 5\nv_xor_b32 v{r.VRD[0]}, s{sT}, v{r.VRD[0]}\nv_xor_b32 v{r.VRD[1]}, s{sT}, v{r.VRD[1]}")
def preread():
    for n in range(RA.c4): wread_step(RA, n, n)
    unswap(RA)
def w2soff(n): A(f"s_add_u32 s{sA}, s{sGC}, {n*1024}\ns_sub_u32 s{sB}, s{sA}, {28*1024}\ns_min_u32 s{sA}, s{sA}, s{sB}\ns_lshl_b32 s{sA}, s{sA}, 6")
def w2dma(r, m):
    w2soff(r.n5 + m)
    A(f"s_add_u32 m0, s{sW2W}, {r.slots[m % len(r.slots)]*2048}")
    for j in range(2): A(f"buffer_load_dwordx4 v{r.VT2[j]}, {R(RW2)}, s{sA} offen offset:{j*1024} lds"); vm.issue(("d", m))
def w2read(r, m):
    vm.wait(("d", m)); wread_step(r, m, r.slots[m % len(r.slots)], ("r", m))

def mlp(r, VDR=None, VDW=None):
    isA = r is RA
    N, L = r.n, len(r.slots)
    BR, B2R, VO, IR, HR = 6, 10, 12, 224, 228
    G4, G5 = r.c4 // 4, r.c5 // 4
    dreg = lambda t, k: RING + (t % 3)*16 + 4*k
    def pw(q, j):
        if isA: return f"ds_write_b128 v{VRW[0]}, {v(ACC+8*q+4*j,4)} offset:{(q-1)*2048 + j*1024}"
        return f"ds_write_b128 v{VDR if q < 3 else VDW}, {v(ACC+8*q+4*j,4)} offset:{(6144 + q*2048 if q < 3 else 13*2048) + j*1024}"
    def add(d, a_, b_, pk):
        if pk:
            for k in range(0, 4, 2): A(f"v_pk_add_f32 {v(d+k,2)}, {v(a_+k,2)}, {v(b_+k,2)}")
        else:
            for k in range(4): A(f"v_add_f32 v{d+k}, v{a_+k}, v{b_+k}")
    OWN = 232
    def gather(pk, wide, mid=None):
        src = lambda j: [(VRW[q], (q-1)*2048 + j*1024) for q in range(1, 4)] + [(VRW[q], 6144 + q*2048 + j*1024) for q in range(3)] + [(VX3, j*1024)]
        base = [TMP, ACC if wide else TMP]
        def rd(j):
            for k, (va, off) in enumerate(src(j)): A(f"ds_read_b128 {v(base[j]+4*k,4)}, v{va} offset:{off}")
        def sm(j):
            b, o = base[j], OWN + 4*j
            add(b, b, b+4, pk); add(b+8, b+8, b+12, pk); add(b+16, b+16, b+20, pk); add(o, o, b+24, pk)
            add(b, b, b+8, pk); add(o, o, b+16, pk); add(o, o, b, pk)
        if wide:
            rd(0); rd(1)
            if mid: mid()
            A("s_waitcnt lgkmcnt(7)"); sm(0); A("s_waitcnt lgkmcnt(0)"); sm(1)
        else:
            for j in range(2): rd(j); A("s_waitcnt lgkmcnt(0)"); sm(j)
    def p5setup():
        A(f"v_and_b32 v6, 31, v1\nv_lshrrev_b32 v7, 5, v1\nv_mul_u32_u24 v{VO}, 896, v6\nv_lshl_add_u32 v{VO}, v7, 4, v{VO}\ns_lshr_b32 s{sA}, s{SW}, 1\ns_lshl_b32 s{sB}, s{sST}, 1\ns_add_u32 s{sA}, s{sA}, s{sB}")
        A(f"s_mul_i32 s{sE}, s{sA}, {32*896}\ns_lshl_b32 s{sB}, s{sDT5}, 7\ns_add_u32 s{sE}, s{sE}, s{sB}\ns_and_b32 s{sB}, s{SW}, 1\ns_lshl_b32 s{sB}, s{sB}, 5\ns_add_u32 s{sE}, s{sE}, s{sB}")
        A(f"s_lshl_b32 s{sA}, s{sA}, 6\nv_lshlrev_b32 v8, 1, v6\nbuffer_load_ushort v{B2R}, v8, {R(RB2)}, s{sA} offen\nv_lshlrev_b32 v7, 2, v7\nv_sub_u32 v6, v6, v7")
        for k in range(4):
            d0 = 8*(k >> 1) + 2*(k & 1)
            A(f"v_cmp_eq_u32 s[{sA}:{sA+1}], {d0}, v6\nv_cmp_eq_u32 s[{sC}:{sC+1}], {d0+1}, v6\nv_cndmask_b32 v{IR+k}, 0, v{VONE}, s[{sA}:{sA+1}]\nv_cndmask_b32 v{IR+k}, v{IR+k}, v{VONE+1}, s[{sC}:{sC+1}]")
    mk5 = lambda nm: Stream(nm + N, 2*G5, lambda g: [(dreg(2*G4 + g, k), r.VG, k*1024) for k in range(4)],
                lambda g: A(f"s_add_u32 s{sT}, s{sGC}, {(r.n5 + (g % G5)*4)*1024}\ns_sub_u32 s{sU}, s{sT}, {28*1024}\ns_min_u32 s{sT}, s{sT}, s{sU}" + (f"\ns_add_u32 s{sT}, s{sT}, {112*1024}" if g >= G5 else "")),
                r.T0, 1, r.VP5, r.T1, lambda g: (1 << 2*G5) - 1, G5)
    NP5 = min(3, G5)
    DB0 = env("DB0", 4)
    R2E, NE3 = env("R2E", 0), max(0, r.c5 - 2*L)
    A(f"s_cmp_lg_u32 s{sACT4}, 0\ns_cbranch_scc1 P4_GO{N}\ns_cmp_ge_u32 s{sJ}, 28\ns_cbranch_scc1 MLP_END{N}")
    q0 = list(vm.q); lg.q = []
    A("s_waitcnt lgkmcnt(0)\ns_barrier")
    if not isA and env("DL", 0) == 2:
        for m in range(1, 7): w2dma(r, m)
    for m in range(L): w2read(r, m)
    lg.wait_all()
    for m in range(L, min(2*L, r.c5)): w2dma(r, m)
    if R2E and NE3:
        for m in range(L, L + NE3): w2read(r, m)
        lg.wait_all()
        for m in range(2*L, r.c5): w2dma(r, m)
    si = mk5("SI")
    if isA: p5setup()
    for g in range(G5): si.gate(g)
    si.gated = 0
    for g in range(NP5): si.issue(g)
    ER = {2: env("ER2", 2), 3: env("ER3", -1)}
    RL = env("RL", 1)
    if isA and ER[2] >= 0: A("s_barrier")
    A(f"s_branch P5_IN{N}\nP4_GO{N}:")
    vm.q = q0; lg.q = []
    sg = mk5("SG"); sg.gated = 0
    A(f"s_mov_b32 s{sV}, 0x10000")
    if isA:
        A(f"s_lshl_b32 s{sA}, s{sFO}, 5\nv_lshrrev_b32 v{r.T0}, 5, v1\nv_lshlrev_b32 v{r.T0}, 3, v{r.T0}")
        for g in range(2): A(f"buffer_load_dwordx2 {v(BR+2*g,2)}, v{r.T0}, {R(RB1)}, s{sA} offen offset:{g*16}")
        if env("ACKW", 0): A("s_waitcnt vmcnt(0)")
    sh = Stream("SH" + N, 2*G4, lambda g: [(dreg(g, k), r.VH, k*1024) for k in range(4)],
                lambda g: A(f"s_add_u32 s{sT}, s{sRO}, {(r.n4 + (g % G4)*4)*1024}\ns_and_b32 s{sT}, s{sT}, 0x7fff" + (f"\ns_bitset1_b32 s{sT}, 17" if g >= G4 else "")),
                r.T0, f"s{sV}", r.VP4, r.T1, lambda g: (1 << 2*G4) - 1, G4 if env("GT4", 2) else 0)
    if env("GT4", 2) == 2: A(f"s_cmp_lt_u32 s{sC3}, 14\ns_cselect_b32 s{sMISS}, 0, s{sMISS}")
    seq = [(sh, g) for g in range(2*G4)] + [(sg, g) for g in range(2*G5)]
    first = [0, G4, 2*G4, 2*G4 + G5, len(seq)]
    RA5 = env("RA5", 2)
    late = {2} if RA5 == 1 else ({2} | ({3} if isA else set()) if RA5 == 2 else {2, 3})
    issued = set()
    stamp("p4pre" + N)
    for g in range(3): sh.issue(g); issued.add(g)
    sh.check1(0); sh.check2(0)
    c1 = -2.0*math.sqrt(2.0/math.pi)*math.log2(math.e); c2 = c1*0.044715
    def compute(H):
        ph, hf = H >> 1, H & 1
        ns = (r.c4, r.c5)[ph]
        nm = f"p{4+ph}"
        if H == 2: A(f"P5_IN{N}:")
        if H in late: seq[first[H]][0].check1(seq[first[H]][1]); seq[first[H]][0].check2(seq[first[H]][1])
        if ph and isA:
            A(f"buffer_load_dwordx4 {v(HR,4)}, v{VL}, {R(RWS)}, s{sHFO} offen offset:{hf*2048} sc1"); vm.issue("h")
        if H == 2 and isA:
            for m in range(L, r.c5): wread_step(r, m, r.slots[m % L], ("r", m))
        stamp(f"{nm}first{hf}" + N)
        for t in range(first[H], first[H+1]):
            n0 = 4*(t - first[H])
            stamp(f"t{N}{t}")
            tail = not isA and t == first[H+1] - 1
            head = not isA and t == first[H] and H > 0 and H not in late
            order = [(k, ti) for ti in (1, 0) for k in range(4)] if (tail or head) else [(k, ti) for k in range(4) for ti in (0, 1)]
            nxt = t + 2
            can = nxt < len(seq) and nxt not in issued and not (nxt >= first[H+1] and H + 1 in late)
            for sl, (k, ti) in enumerate(order):
                n = n0 + k
                if not isA and H > 0 and (t, sl) == ((first[2] - 2, 0) if H == 1 else ((first[H] + ER[H], 0) if ER[H] >= 0 else (first[H+1] - 1, 4))): A("s_barrier")
                if H == 2: lg.wait(("r", n))
                if head and sl == 4: A("s_waitcnt lgkmcnt(0)\ns_barrier"); lg.q = []
                acc = v(ACC + 16*ti, 16); w_, d_ = v(r.W + 8*n + 4*ti, 4), v(dreg(t, k), 4)
                A(f"{MFMA} {acc}, {d_ if ph else w_}, {w_ if ph else d_}, {'0' if n == 0 else acc}")
                if head and sl < 4: A(pw(sl >> 1, sl & 1))
                if tail and sl >= 4: A(pw(2 + ((sl - 4) >> 1), sl & 1))
                if can and sl < 4: seq[nxt][0].issue_part(seq[nxt][1], sl)
                if t + 1 < len(seq) and not (t + 1 == first[H+1] and H + 1 in late):
                    if sl == 5: seq[t+1][0].check1(seq[t+1][1])
                    if sl == 6: seq[t+1][0].check2(seq[t+1][1])
                done = (ti == 0) if (tail or head) else (ti == 1)
                if H == 1 and done:
                    if n < L: w2read(r, n)
                    if not isA and DB0 <= n < DB0 + L: lg.wait(("r", n - DB0)); w2dma(r, n - DB0 + L)
                    if not isA and R2E:
                        if R2E <= n < R2E + NE3: w2read(r, n - R2E + L)
                        if R2E + 1 <= n < R2E + 1 + NE3: lg.wait(("r", n - R2E - 1 + L)); w2dma(r, n - R2E - 1 + 2*L)
                if H == 0 and not isA and done and env("DL", 0) == 2 and n % 3 == 2 and n < 18: w2dma(r, 1 + n // 3)
                if H == 2 and not isA and done:
                    if L + (NE3 if R2E else 0) <= n + 4 < 2*L: w2read(r, n + 4)
                    if not R2E and 2*L <= n + 10 < r.c5: lg.wait(("r", n + 3)); w2dma(r, n + 10)
                    if 2*L <= n + 4 < r.c5: w2read(r, n + 4)
            if can: issued.add(nxt)
        if ph and isA:
            vm.wait("h")
            A(f"{MFMA} {v(ACC,16)}, {v(IR,4)}, {v(HR,4)}, {v(ACC,16)}")
        stamp(f"{nm}mm{hf}" + N)
    def late_issue(H):
        for t in range(first[H], min(first[H] + 3, first[H+1])): seq[t][0].issue(seq[t][1]); issued.add(t)
    def partials(H):
        if (H == 1 and env("RA4", 1)) or (H > 1 and ER[H] < 0): A("s_barrier")
        for q in (2, 3, 1):
            for j in range(2): A(pw(q, j))
        if H < 2:
            for j in range(4): A(f"v_lshlrev_b32 v{TMP}, 16, v{BR+j}\nv_and_b32 v{TMP+1}, 0xffff0000, v{BR+j}\nv_add_f32 v{OWN+2*j}, v{ACC+2*j}, v{TMP}\nv_add_f32 v{OWN+2*j+1}, v{ACC+2*j+1}, v{TMP+1}")
        else:
            if H == 2: A(f"v_lshlrev_b32 v{B2R}, 16, v{B2R}")
            for k in range(8): A(f"v_add_f32 v{OWN+k}, v{ACC+k}, v{B2R}")
    def epilogue(H):
        ph, hf = H >> 1, H & 1
        A("s_waitcnt lgkmcnt(0)\ns_barrier"); lg.q = []
        stamp(f"red{4+ph}{hf}")
        LI = env("LI", 2) if H == 1 else 0
        if (H == 1 or (H == 2 and not RA5)) and LI == 0: late_issue(H + 1)
        if env("PRIO", 1): A("s_setprio 2")
        gather(H == 3, H & 1 or (H == 2 and not RA5) or (H == 0 and not env("RA4", 1)), (lambda: seq[first[2]][0].issue(0)) if H == 1 and LI == 2 else None)
        if ph == 0:
            A(f"s_mov_b32 s{sA}, {fl(c2)}\nv_mov_b32 v{TMP}, {fl(c1)}")
            E = TMP + 8
            for k in range(8): A(f"v_mul_f32 v{E+k}, v{OWN+k}, v{OWN+k}")
            for k in range(8): A(f"v_fma_f32 v{E+k}, v{E+k}, s{sA}, v{TMP}")
            for k in range(8): A(f"v_mul_f32 v{E+k}, v{E+k}, v{OWN+k}")
            for k in range(8): A(f"v_exp_f32 v{E+k}, v{E+k}")
            for k in range(8): A(f"v_add_f32 v{E+k}, 1.0, v{E+k}")
            for k in range(8): A(f"v_rcp_f32 v{E+k}, v{E+k}")
            for k in range(8): A(f"v_mul_f32 v{OWN+k}, v{OWN+k}, v{E+k}")
        for k in range(4): A(f"v_cvt_pk_bf16_f32 v{TMP+4+k}, v{OWN+2*k}, v{OWN+2*k+1}")
        if ph == 0:
            A(f"v_or_b32 v{TMP+7}, 1, v{TMP+7}\nbuffer_store_dwordx4 {v(TMP+4,4)}, v{VL}, {R(RWS)}, s{sGST} offen sc1\ns_add_u32 s{sGST}, s{sGST}, {112*1024}")
        else:
            A(f"v_permlane32_swap_b32 v{TMP+4}, v{TMP+6}\nv_permlane32_swap_b32 v{TMP+5}, v{TMP+7}\nbuffer_store_dwordx4 {v(TMP+4,4)}, v{VO}, {R(ROUT)}, s{sE} offen offset:{hf*64}" + [os.environ.get("OF0", " sc1"), os.environ.get("OF1", "")][hf])
        stamp(("gst", "outst")[ph] + str(hf))
        if (H == 1 or (H == 2 and not RA5)) and LI == 1: late_issue(H + 1)
        if H == 1 and LI == 2:
            for t in range(first[2], first[2] + NP5):
                if t > first[2]: seq[t][0].issue(seq[t][1])
                issued.add(t)
        if H in (1, 2) and ER[H+1] >= 0: A("s_barrier")
        stamp_flush()
    if isA:
        if env("PRIO", 1): A("s_setprio 2")
        compute(0); partials(0); stamp_flush()
        RA4 = env("RA4", 1)
        if not RA4: epilogue(0); A("s_barrier")
        elif env("PRIO", 1): A("s_setprio 0")
        compute(1)
        if env("DA", 1) == 1:
            lg.wait_all()
            for m in range(L, r.c5): w2dma(r, m)
        if RA4: epilogue(0)
        partials(1); p5setup()
        if env("LI", 2) == 3: late_issue(2)
        if env("DA", 1) == 0:
            for m in range(L, r.c5): w2dma(r, m)
        epilogue(1)
        compute(2)
        if RA5:
            if RA5 == 2: late_issue(3)
            partials(2); stamp_flush()
            if env("PRIO", 1): A("s_setprio 0")
            compute(3); epilogue(2); partials(3); epilogue(3)
        else:
            partials(2); epilogue(2); compute(3); partials(3); epilogue(3)
    else:
        if env("PRIO", 1): A("s_setprio 1")
        for H in range(4):
            compute(H)
            if H == 3 or H + 1 in late:
                for q in range(2):
                    for j in range(2): A(pw(q, j))
                if H == 2: late_issue(H + 1)
                A("s_waitcnt lgkmcnt(0)\ns_barrier"); lg.q = []
                if H == 1:
                    if env("G2", 0):
                        sg.gated = G5; A(f"s_mov_b32 s{sMISS}, {(1 << 2*G5) - 1}")
                    late_issue(H + 1); sg.gated = 0
            stamp_flush()
    A(f"MLP_END{N}:")

def finish():
    A(f"s_or_b32 s{sT}, s2, s{SW}\ns_cbranch_scc1 K_FIN\nv_mov_b32 v4, 0\nv_mov_b32 v5, 0\ns_mov_b64 exec, 1\nbuffer_store_dwordx2 v[4:5], v4, {R(RDBG)}, 0 offen sc1\ns_mov_b64 exec, -1")
    A("K_FIN:")
    if os.environ.get("DIAGAT"):
        A(f"DSP:\ns_memrealtime s[{sA}:{sA+1}]\ns_waitcnt lgkmcnt(0)\ns_sub_u32 s{sA}, s{sA}, s72\ns_cmp_lt_u32 s{sA}, 4000\ns_cbranch_scc1 DSP")
    if STAMP:
        A("s_waitcnt vmcnt(0)"); stamp("end"); A(f"s_memrealtime s[{sA}:{sA+1}]"); stamp_flush()
        A(f"v_writelane_b32 v{VST}, s72, 62\nv_writelane_b32 v{VST}, s{sA}, 63")
        A(f"s_lshl_b32 s{sT}, s2, 3\ns_add_u32 s{sT}, s{sT}, s{sW8}\ns_lshl_b32 s{sT}, s{sT}, 8\ns_add_u32 s{sT}, s{sT}, {WS_STAMP}\nv_lshlrev_b32 v4, 2, v1\nbuffer_store_dword v{VST}, v4, {R(RWS)}, s{sT} offen")
    A("K_END:\ns_endpgm")

def bprog():
    NT = env("NT", 0); nt = " nt" if NT else ""
    nt1 = " nt" if env("NT1", 0) else ""
    VXD = [16, 17, 18, 19]; VXE = [20, 21]; VWD = list(range(22, 29))
    sWO, sXO, sM, sWM = sA, sB, sC, sD_
    sXP, sWP = [sW1, sW1S, sW1E], [sW2, sW2S, sW2E]
    A("B_P1:"); vm.q = []; lg.q = []
    p1_common()
    A(f"s_mul_i32 s{sXO}, s{sE}, {32*896}\ns_lshl_b32 s{sWM}, s{SW}, 10")
    A("v_lshrrev_b32 v4, 3, v1\nv_mul_u32_u24 v6, 896, v4\nv_lshrrev_b32 v4, 4, v1\nv_and_b32 v5, 7, v1\nv_xor_b32 v5, v5, v4")
    for j in range(4): A(f"v_xor_b32 v7, {4*(j&1)}, v5\nv_lshl_add_u32 v7, v7, 4, v6\nv_add_u32 v{VXD[j]}, {j*8*896 - j*1024}, v7")
    A(f"s_lshr_b32 s{sT}, s{sJ}, 2\ns_and_b32 s{sU}, s{sJ}, 3\ns_add_u32 s{sT}, s{sT}, s{sU}\ns_mul_i32 s{sU}, s{sT}, 11\ns_lshr_b32 s{sU}, s{sU}, 5\ns_mul_i32 s{sU}, s{sU}, 3\ns_sub_u32 s{sT}, s{sT}, s{sU}")
    if not env("P1ROT", 1): A(f"s_mov_b32 s{sT}, 0")
    for p in range(3):
        A(f"s_lshl_b32 s{sU}, s{sT}, 8\ns_add_u32 s{sXP[p]}, s{sXO}, s{sU}\ns_mul_i32 s{sU}, s{sT}, {128*2688}\ns_add_u32 s{sWP[p]}, s{sWO}, s{sU}")
        if p < 2: A(f"s_add_u32 s{sT}, s{sT}, 1\ns_cmp_eq_u32 s{sT}, 3\ns_cselect_b32 s{sT}, 0, s{sT}")
    def xpiece(p):
        A(f"s_add_u32 m0, s{sM}, {XBUF[p]}\ns_add_u32 s{sV}, s{sXP[p >> 1] if p < 6 else sXO}, {(p & 1)*128 if p < 6 else 768}")
        for j in range(4): A(f"buffer_load_dwordx4 v{VXD[j]}, {R(RX)}, s{sV} offen offset:{j*1024} lds"); vm.issue(f"x{p}")
    def wdma(j):
        g = j // 7
        if g == 3 and j == 21: A(f"s_add_u32 s{sT}, s{sWO}, {3*128*2688}")
        A(f"s_add_u32 m0, s{sWM}, {j*4096}\nbuffer_load_dwordx4 v{VWD[j%7]}, {R(RWQ)}, s{sWP[g] if g < 3 else sT} offen{nt1} lds"); vm.issue(("w", j))
    A("s_waitcnt lgkmcnt(0)")
    xpiece(0)
    for j in range(7):
        A(f"v_add_u32 v4, {256*j}, v0\nv_mul_u32_u24 v5, 4682, v4\nv_lshrrev_b32 v5, 16, v5\nv_mul_u32_u24 v6, 14, v5\nv_sub_u32 v4, v4, v6")
        A(f"v_and_b32 v6, 0xf8, v5\nv_and_b32 v7, 1, v5\nv_lshl_add_u32 v6, v7, 2, v6\nv_bfe_u32 v7, v5, 1, 2\nv_add_u32 v6, v6, v7\nv_mul_u32_u24 v6, 2688, v6\nv_lshl_add_u32 v{VWD[j]}, v4, 4, v6")
        wdma(j)
        if j == 3: xpiece(1)
    xpiece(2)
    prologue2()
    A("v_and_b32 v10, 31, v1\nv_lshlrev_b32 v10, 4, v10\nv_min_u32 v5, 55, v1\nv_lshlrev_b32 v5, 4, v5\nv_add_u32 v6, 10752, v5\nv_add_u32 v7, 21504, v5\nv_add_u32 v8, 32256, v5\nv_mov_b32 v9, 0")
    def gload():
        A(f"buffer_load_dwordx4 v[32:35], v10, {R(RWS)}, s{sU} offen sc1")
        for kq in range(4): A(f"buffer_load_dwordx4 {v(36+4*kq,4)}, v{5+kq}, {R(RWS)}, s7 offen sc1")
    def gpre():
        A(f"s_waitcnt lgkmcnt(0)\ns_lshl_b32 s{sU}, s{sE}, 9\ns_add_u32 s{sU}, s{sU}, {WS_RST}\ns_lshl_b32 s7, s{sWO}, 2\ns_add_u32 s7, s7, {WS_CSG}")
        A(f"buffer_load_dwordx2 v[30:31], v9, {R(RDBG)}, 0 offen sc1"); gload()
        for _ in range(6): vm.issue("g")
    WU = [(0, 4), (4, 7), (7, 11), (11, 14), (14, 18), (18, 21), (21, 24)]
    P1A = env("P1A", 4)
    for j in range(7, 7 + P1A): wdma(j)
    GS = env("GS", 1)
    for b in range(6 - GS):
        vm.wait(("w", WU[b][1] - 1)); A("s_barrier")
        if b == 0:
            for j in range(7 + P1A, 11): wdma(j)
        if GS and b == 3: gpre()
        if b + 3 < 7:
            xpiece(b + 3)
            for j in range(*WU[b + 3]): wdma(j)
        if not GS and b == env("GB", 4): gpre()
        if b == 4: wdma(24)
    A("s_setprio 2"); vm.wait("g")
    get_tag(30, "B_T")
    A(f"s_mov_b32 s{sTO}, 0x40000\ns_branch B_GC\nB_GL:"); gload()
    A(f"s_sub_u32 s{sTO}, s{sTO}, 1\ns_waitcnt vmcnt(0)\ns_cbranch_scc1 B_GX\nB_GC:")
    tagcheck([32, 36, 40, 44, 48], 11, 12, 13)
    A("s_cbranch_vccnz B_GL\nB_GX:")
    if GS: A("s_barrier")
    QS = DH ** -0.5 * math.log2(math.e)
    A("v_add_f32 v36, v36, v40\nv_add_f32 v44, v44, v48\nv_add_f32 v38, v38, v42\nv_add_f32 v46, v46, v50\nv_add_f32 v36, v36, v44\nv_add_f32 v37, v38, v46")
    A(f"s_cmp_eq_u32 s{sSEC}, 0\ns_cselect_b32 s{sV}, {fl(QS)}, 1.0\nv_cndmask_b32 v6, v34, v32, s[{sHI}:{sHI+1}]\nv_mul_f32 v6, s{sV}, v6")
    A(f"v_lshl_add_u32 v4, v1, 3, s{sWM}\nds_write_b64 v4, v[36:37]\nv_lshl_add_u32 v4, v1, 2, s{sWM}\nds_write_b32 v4, v6 offset:512")
    A("s_setprio 0\ns_waitcnt vmcnt(0) lgkmcnt(0)\ns_barrier\ns_branch B_P2")

def bprog2():
    NT = env("NT", 0); nt = " nt" if NT else ""
    A("B_P2:"); vm.q = []
    if STAMP: A("v_mov_b32 v15, -1\nB_P2S:"); st["v"] = 15
    roles(touch=False)
    r = RB
    WOR, W2T = 16, 48
    VT1, VTO, VDW, VDR = [4, 5], [8, 9], 10, 11
    w2_addr(r, 12, 13)
    A(f"v_lshrrev_b32 v12, 3, v1\nv_mul_u32_u24 v12, 3584, v12\nv_add_u32 v{VT1[0]}, v12, v13\nv_add_u32 v{VT1[1]}, {8*3584 - 1024}, v{VT1[0]}")
    A(f"v_lshrrev_b32 v12, 2, v1\nv_mul_u32_u24 v12, 896, v12\nv_and_b32 v13, 3, v1\nv_lshl_add_u32 v{VTO[0]}, v13, 4, v12\nv_add_u32 v{VTO[1]}, {16*896}, v{VTO[0]}")
    A(f"v_add_u32 v{VDW}, s{sW2W}, v{VL}\nv_add_u32 v{VDR}, s{sRBW}, v{VL}")
    tr_lane_addr(12, 13, 128, 4)
    A(f"s_and_b32 s{sT}, s{SW}, 1\ns_lshl_b32 s{sT}, s{sT}, 5\nv_xor_b32 v12, s{sT}, v12\nv_add_u32 v12, s{sW2W}, v12\nv_bfe_u32 v13, v1, 3, 1\ns_lshr_b32 s{sT}, s{SW}, 1\nv_xor_b32 v13, s{sT}, v13")
    A(f"v_lshl_add_u32 v{r.VRD[0]}, v13, 6, v12\nv_xor_b32 v13, 1, v13\nv_lshl_add_u32 v{r.VRD[1]}, v13, 6, v12")
    A(f"s_mul_i32 s{sW1S}, s{SW}, {512*3584}\ns_lshl_b32 s{sT}, s{sFT}, 7\ns_add_u32 s{sW1S}, s{sW1S}, s{sT}\ns_add_u32 s{sW1E}, s{sW1S}, {512*3584}")
    A(f"s_lshr_b32 s{sT}, s{sRO}, 10\ns_add_u32 s{sT}, s{sT}, {r.n4}\ns_and_b32 s{sT}, s{sT}, 31\ns_mul_i32 s{sT}, s{sT}, {16*3584}\ns_add_u32 s{sW1}, s{sW1S}, s{sT}")
    TH = [env("BTH", 2)]
    A(f"s_and_b32 s{sT}, s{sC3}, 7\ns_lshl_b32 s{sT}, s{sT}, 1\ns_lshl_b32 s{sD_}, s{SW}, 2\ns_add_u32 s{sD_}, s{sD_}, s{sT}\ns_min_u32 s{sC}, s{sC3}, 13\ns_lshl_b32 s{sC}, s{sC}, 6")
    A(f"s_cmp_ge_u32 s{sJ}, 24\ns_cbranch_scc1 B_NOKV\ns_barrier\nB_NOKV:")
    A(f"s_add_u32 s{sT}, s{SW}, 1\ns_and_b32 s{sT}, s{sT}, 3\ns_mul_i32 s{sT}, s{sT}, 12288\ns_add_u32 s{sT}, s{sT}, {RBUF + 3072}\nv_add_u32 v14, s{sT}, v{VL}")
    A(f"v_mov_b32 v12, 0\nds_write_b32 v14, v12\ns_waitcnt lgkmcnt(0)")
    if env("WARMH", 0):
        A("s_mov_b64 exec, 0")
        for q in range(3): A(f"s_cmp_eq_u32 s{SW}, {q}\ns_cbranch_scc1 WQ{q}")
        A("s_branch WQ3\nWH_RET:\ns_mov_b64 exec, -1")
    vm.q = []
    NPQ = env("NPQ", 0)
    if NPQ: TH[0] = env("BTH0", 4)
    sPOS = sE
    todo = []
    def throttle():
        A(f"s_waitcnt vmcnt({TH[0]})"); vm.q = vm.q[-TH[0]:]
        while todo and ("s", todo[0]) not in vm.q:
            m = todo.pop(0); wread_step(r, m, m % 14)
    def rawitem(m):
        w2soff(m)
        for j in range(2): A(f"buffer_load_dwordx4 {v(W2T+8*m+4*j,4)}, v{r.VT2[j]}, {R(RW2)}, s{sA} offen offset:{j*1024}{' nt' if env('NTR', 0) else ''}")
    for k in range(32):
        if k == NPQ:
            stamp("b_pre")
            A("s_barrier")
            stamp("b_go"); TH[0] = env("BTH0", env("BTH", 3))
            A(f"s_cmp_ge_u32 s{sJ}, 24\ns_cbranch_scc1 B_NOFP\ns_setprio 3")
            xid_store("B_NOX", 248)
            A(f"s_cmp_lg_u32 s{SW}, 0\ns_cbranch_scc1 B_NOFP\nv_mov_b32 v248, s{sTAG}\nv_mov_b32 v249, s{sTAG+1}\ns_mov_b64 exec, 1\nbuffer_store_dwordx2 v[248:249], v12, {R(RWS)}, s{sF[1]} offen sc1\ns_mov_b64 exec, -1\nB_NOFP:\ns_setprio 0")
            A(f"buffer_load_dwordx2 v[{W2T}:{W2T+1}], v12, {R(RDBG)}, 0 offen sc1"); vm.issue("tag")
        if env("IDL", 0) and k in (0, 13, 15, 17, 19, 20): A(f"s_cmp_eq_u32 s{sACT4}, 0\ns_cbranch_scc1 B_I{k}")
        slot = k % 14 if k < 20 else (k - 20 + 6) % 12
        if k == 20: A(f"s_add_u32 s{sW1}, s{sW1}, {6*16*3584}\ns_cmp_ge_u32 s{sW1}, s{sW1E}\ns_cselect_b32 s{sT}, {512*3584}, 0\ns_sub_u32 s{sW1}, s{sW1}, s{sT}")
        if k == 26: A(f"s_lshr_b32 s{sT}, s{sRO}, 10\ns_mul_i32 s{sT}, s{sT}, {16*3584}\ns_add_u32 s{sW1}, s{sW1S}, s{sT}")
        if k >= 14:
            assert not [m for m in todo if m % 14 == slot]
            A("s_waitcnt lgkmcnt(0)")
        A(f"s_add_u32 m0, s{sW2W}, {slot*2048}")
        for j in range(2): A(f"buffer_load_dwordx4 v{VT1[j]}, {R(RW1)}, s{sW1} offen offset:{j*1024}{' nt' if k < env('NTK', 0) else ''} lds"); vm.issue(("s", k))
        if k < 20: todo.append(k)
        A(f"s_add_u32 s{sW1}, s{sW1}, {16*3584}\ns_cmp_eq_u32 s{sW1}, s{sW1E}\ns_cselect_b32 s{sW1}, s{sW1S}, s{sW1}")
        throttle()
        if env("IDL", 0) and k in (12, 14, 16, 18, 19, 31):
            k0 = {12: 0, 14: 13, 16: 15, 18: 17, 19: 19, 31: 20}[k]
            def idle(k0=k0):
                A(f"B_I{k0}:")
                if k0 in (0, 20):
                    A(f"s_setprio 3\nv_lshrrev_b32 v96, 3, v1\nv_lshlrev_b32 v96, 12, v96\nv_and_b32 v97, 7, v1\nv_lshl_add_u32 v96, v97, 7, v96\ns_setprio 0")
                    A(f"s_sub_u32 s{sA}, s{sJ}, 25\ns_lshl_b32 s{sA}, s{sA}, 2\ns_add_u32 s{sA}, s{sA}, s{SW}\ns_lshl_b32 s{sA}, s{sA}, 18\ns_bfe_u32 s{sB}, s2, 0x20001\ns_lshl_b32 s{sB}, s{sB}, 10\ns_add_u32 s{sA}, s{sA}, s{sB}")
                    A(f"s_and_b32 s{sB}, s2, 1\ns_lshl_b32 s{sB}, s{sB}, 17\ns_xor_b32 s{sA}, s{sA}, s{sB}")
                    for i in (range(0, env("IDN", 4)) if k0 == 0 else range(env("IDN", 4), env("IDM", 4))):
                        A(f"s_xor_b32 s{sB}, s{sA}, {i*8*4096}\nbuffer_load_dword v97, v96, {R(RW2)}, s{sB} offen\ns_waitcnt vmcnt({env('IDT', 0)})")
                A(f"s_branch B_J{k0}")
            handlers.append(idle)
            A(f"B_J{k0}:")
        if k in (12, 14, 16, 18):
            q = (k - 12) // 2
            A(f"s_add_u32 s{sT}, s{sD_}, {q}\ns_and_b32 s{sT}, s{sT}, 15\ns_mul_i32 s{sT}, s{sT}, {28*896}\ns_add_u32 s{sT}, s{sT}, s{sC}")
            for j in range(2): A(f"buffer_load_dwordx4 {v(WOR+8*q+4*j,4)}, v{VTO[j]}, {R(RWO)}, s{sT} offen"); vm.issue("wo")
            throttle()
        if k == 19:
            A(f"s_setprio 3\nv_readfirstlane_b32 s{sTAG}, v{W2T}\nv_readfirstlane_b32 s{sTAG+1}, v{W2T+1}\nv_lshlrev_b32 v12, 3, v1\ns_mul_i32 s{sV}, s{SW}, 384\ns_add_u32 s{sV}, s{sV}, {F2}")
            poll(12, sV, 48, 8); A("v_lshlrev_b32 v12, 7, v1\ns_setprio 0")
        if env("W2C", 0) and k in (14, 20):
            A(f"s_lshl_b32 s{sA}, s2, 2\ns_add_u32 s{sA}, s{sA}, s{SW}\ns_mul_i32 s{sA}, s{sA}, {56*128}")
            set_exec(((1 << 28) - 1) << (28*(k == 20))); A(f"buffer_load_dword v8, v12, {R(RW2)}, s{sA} offen\ns_mov_b64 exec, -1"); vm.issue("t")
        if k == env("CT2", 22):
            A(f"s_setprio 3\ns_getpc_b64 s[{sA}:{sA+1}]\nCODE_R2:\ns_sub_u32 s{sA}, s{sA}, CODE_R2-P2_TAIL\ns_subb_u32 s{sA+1}, s{sA+1}, 0\ns_lshl_b32 s{sT}, s{sJ}, 2\ns_add_u32 s{sT}, s{sT}, s{SW}\ns_lshl_b32 s{sT}, s{sT}, 9")
            A(f"v_lshl_add_u32 v13, v1, 7, s{sT}\nv_min_u32 v13, CODE_END-P2_TAIL-4, v13\nv_mov_b32 v9, s{sA+1}\nv_add_co_u32 v8, vcc, s{sA}, v13\nv_addc_co_u32 v9, vcc, 0, v9, vcc\ns_setprio 0")
            A("s_mov_b64 exec, 15\nglobal_load_dword v8, v[8:9], off\ns_mov_b64 exec, -1"); vm.issue("t")
        if k == env("BSW0", 7): TH[0] = env("BTH", 3)
        if k == env("BSW", 20): TH[0] = env("BTH2", 10)
        if k in (13, 31): stamp(f"b_{k}")
    assert not todo
    w2dma(r, 0)
    for m in range(6):
        A(f"ds_read_b32 v13, v14\ns_mov_b32 s{sPOS}, {m}\ns_waitcnt vmcnt({TH[0]}) lgkmcnt(0)\ns_setprio 3\nv_cmp_ne_u32 vcc, 0, v13\ns_setprio 0\ns_cbranch_vccnz B_CUT")
        rawitem(m)
    A(f"s_mov_b32 s{sPOS}, 6")
    if env("W2T", 0):
        A(f"s_setprio 3\ns_lshr_b32 s{sT}, s{sGC}, 6\ns_add_u32 s{sT}, s{sT}, 96\nv_add_u32 v12, s{sT}, v1\nv_subrev_u32 v13, 448, v12\nv_min_u32 v12, v12, v13\nv_lshlrev_b32 v12, 12, v12\ns_setprio 0")
        A(f"s_mul_i32 s{sT}, s{SW}, {448*4096}\ns_lshl_b32 s{sU}, s{sST}, 7\ns_add_u32 s{sT}, s{sT}, s{sU}\nbuffer_load_dword v14, v12, {R(RW2)}, s{sT} offen")
    A("B_CUT:")
    stamp("b_done"); stamp_flush()
    if STAMP: A(f"v_writelane_b32 v15, s{sPOS}, 60")
    A(f"s_setprio 3\nv_min_u32 v12, 5, v1\nv_lshlrev_b32 v12, 12, v12\nv_add_u32 v12, {RBUF + 3*1024 + 32*16 + 4}, v12\ns_setprio 0")
    A(f"B_RED:\ns_barrier\nds_read_b32 v13, v12\ns_waitcnt lgkmcnt(0)\nv_cmp_ne_u32 vcc, 0, v13")
    A(f"s_cbranch_vccz B_OK\ns_cmp_lg_u32 s{sRETRY}, 0\ns_cbranch_scc1 B_OK\ns_mov_b32 s{sRETRY}, -1\ns_barrier\ns_barrier\ns_barrier\ns_branch B_RED\nB_OK:")
    A("s_waitcnt vmcnt(0)\ns_barrier")
    for k in range(8): A(f"ds_write_b128 v{VDR}, {v(WOR+4*k,4)} offset:{k*1024}")
    for m in range(6):
        A(f"s_cmp_gt_u32 s{sPOS}, {m}\ns_cbranch_scc1 B_SK{m}"); rawitem(m); A(f"B_SK{m}:")
    A("s_waitcnt lgkmcnt(0)\ns_barrier")
    unswap(r); mlp_addr(r, 12, 13, False)
    A("s_waitcnt vmcnt(0)")
    if not env("EP", 0): A("s_barrier")
    vm.q = []
    DL = env("DL", 0)
    for m in range(6):
        for j in range(2): A(f"ds_write_b128 v{VDW}, {v(W2T+8*m+4*j,4)} offset:{m*2048 + j*1024}")
        if DL == 0: w2dma(r, m + 1)
    A("s_waitcnt lgkmcnt(0)")
    if env("X1B", 1): A("s_barrier")
    if DL == 1:
        for m in range(1, 7): w2dma(r, m)
    mlp(r, VDR, VDW)
    if STAMP: A(f"v_mov_b32 v{VST}, v15"); del st["v"]
    A("s_branch K_FIN")

def main(out):
    prologue()
    pend0 = list(st["pend"])
    bprog()
    st["pend"] = list(pend0); p1_helper()
    st["pend"] = list(pend0); p1(); fb = p2(); p3(); vm.q = []; mlp(RA); finish()
    st["pend"] = list(pend0); bprog2(); fb()
    for i, h in enumerate(handlers):
        per = -(-len(handlers) // 4)
        if env("WARMH", 0):
            if i % per == 0: A(f"WQ{i // per}:")
            A(f"WH{i}:\ns_cbranch_execz " + (f"WH{i+1}" if (i + 1) % per and i + 1 < len(handlers) else "WH_RET"))
        h()
    A("CODE_END:")
    head = open("head.txt").read()
    nv = 256
    txt = head + f"; @launch grid=(256,1,1) block=(512,1,1) lds={LDS_TOTAL}\n" + '.amdgcn_target "amdgcn-amd-amdhsa--gfx950"\n.text\n' + kernel_header(NAME) + A.text() + '.section .rodata,"a"\n' + kernel_desc(NAME, nv, 102, 256)
    open(out, "w").write(txt)
    if STAMP: open(out + ".names", "w").write(" ".join(st["names"].keys()))

if __name__ == "__main__":
    main(sys.argv[1])
```

```python
import sys, struct, math, os
from asmlib import *

S, D, H, DH, F = 2048, 448, 16, 28, 1792
MB = 1 << 20
WS_Q, WS_KV, WS_O, WS_HF, WS_HH, WS_G, WS_ST, WS_FL, WS_STAMP = 0, 2*MB, 6*MB, 8*MB, 10*MB, 12*MB, 14*MB, 14*MB + 512*1024, 15*MB
F1, F2, F4, F5 = WS_FL, WS_FL + 131072, WS_FL + 2*131072, WS_FL + 3*131072
WS_RST, WS_CSG = 13*MB + 768*1024, 13*MB + 832*1024
WS_SIZE = 16*MB
WS_O = WS_HH = WS_Q
WS_G = WS_KV
EPS = 1e-5
STAMP = os.environ.get("STAMP", "0") == "1"
def env(n, d): return int(os.environ.get(n, str(d)))
def f2u(x): return struct.unpack("<I", struct.pack("<f", x))[0]
def hx(x): return f"0x{x & 0xffffffff:08x}"
def fl(x): return hx(f2u(x))
MFMA = "v_mfma_f32_32x32x16_bf16"
NAME = "sequential_preLN__mha_block__mixer_token_mlp__prompt_kernel"

class Cnt:
    def __init__(self, A, name, mx):
        self.A, self.name, self.mx, self.q = A, name, mx, []
    def issue(self, tag): self.q.append(tag)
    def wait(self, tag):
        idx = [i for i, t in enumerate(self.q) if t == tag]
        if not idx: return
        n = len(self.q) - 1 - idx[-1]
        self.A(f"s_waitcnt {self.name}({min(n, self.mx)})")
        self.q = self.q[idx[-1] + 1:]
    def wait_all(self):
        self.A(f"s_waitcnt {self.name}(0)"); self.q = []

RX, RWQ, RWO, RW1, RB1, RW2, RB2, ROUT, RDBG, RWS = 8, 12, 16, 20, 24, 28, 32, 36, 40, 44
def R(r): return f"s[{r}:{r+3}]"
SW, sH, sI, sJ, sFT, sDT4, sST, sDT5, sACT4, sTO, sTAG = 48, 49, 50, 51, 52, 53, 54, 55, 56, 57, 58
sHI, sONES = 60, 62
sT, sU, sV, sA, sB, sC, sD_, sE, sRETRY = 63, 64, 65, 66, 67, 68, 69, 70, 71
sF = [4, 5, 6, 7]
sSEC, sHQ, sW8 = 3, 92, 93
sMISS = 6
sC3, sR3 = 0, 1
sRBW, sW2W = 94, 95
sW2, sW2S, sW2E, sW1, sW1S, sW1E = 96, 97, 98, 99, 100, 101
VL, VST = 2, 255
W2A, RBUF, LDS_TOTAL = 0, 114688, 163840

A = Asm(); vm = Cnt(A, "vmcnt", 63); lg = Cnt(A, "lgkmcnt", 15)
st = {"pend": [], "names": {}}
def stamp(name):
    if os.environ.get("DIAGAT") == name or (os.environ.get("DIAGAT") and name == "start"): A("s_memrealtime s[72:73]")
    if not STAMP: return
    import re
    if name != "start" and not re.match(os.environ.get("STF", "^[^t]"), name): return
    k = len(st["pend"]); assert k < 9, name
    n = st["names"].setdefault(name, len(st["names"]))
    A(f"{'s_memtime' if env('CYC', 0) else 's_memrealtime'} s[{74+2*k}:{75+2*k}]"); st["pend"].append(n)
def stamp_flush():
    if not STAMP or not st["pend"]: return
    A("s_waitcnt lgkmcnt(0)")
    for k, n in enumerate(st["pend"]): A(f"v_writelane_b32 v{st.get('v', VST)}, s{74+2*k}, {n}")
    st["pend"] = []

def set_exec(mask): A(f"s_mov_b32 exec_lo, {hx(mask)}\ns_mov_b32 exec_hi, {hx(mask >> 32)}")
def halfsum(x, t): A(f"v_mov_b32 v{t}, v{x}\nv_permlane32_swap_b32 v{x}, v{t}\nv_add_f32 v{x}, v{x}, v{t}")
def flag_store(soff_reg, t=4):
    A(f"v_mov_b32 v{t}, s{sTAG}\nv_mov_b32 v{t+1}, s{sTAG+1}\nv_mov_b32 v{t+2}, 0\ns_mov_b64 exec, 1")
    A(f"buffer_store_dwordx2 {v(t,2)}, v{t+2}, {R(RWS)}, s{soff_reg} offen sc1\ns_mov_b64 exec, -1"); vm.issue("flag")
def poll(voff, soff_reg, nl, t):
    L = A.label("POLL")
    set_exec((1 << nl) - 1)
    A(f"s_mov_b32 s{sTO}, 0x40000\n{L}:")
    A(f"buffer_load_dwordx2 {v(t,2)}, v{voff}, {R(RWS)}, s{soff_reg} offen sc1\ns_sub_u32 s{sTO}, s{sTO}, 1\ns_waitcnt vmcnt(0)")
    A(f"s_cbranch_scc1 {L}_x\nv_cmp_ne_u64 vcc, s[{sTAG}:{sTAG+1}], {v(t,2)}\ns_and_b64 exec, exec, vcc\n" + (f"s_cbranch_scc0 {L}_x\ns_sleep {env('PSL', 0)}\ns_branch {L}" if env("PSL", 0) else f"s_cbranch_scc1 {L}") + f"\n{L}_x:\ns_mov_b64 exec, -1")
    vm.q = []
def tr_lane_addr(dst, t, pitch, hs, rs=1):
    A(f"v_lshrrev_b32 v{dst}, 5, v1\nv_mul_u32_u24 v{dst}, {hs*pitch}, v{dst}\nv_bfe_u32 v{t}, v1, 2, 2\nv_mul_u32_u24 v{t}, {rs*pitch}, v{t}\nv_add_u32 v{dst}, v{dst}, v{t}")
    A(f"v_bfe_u32 v{t}, v1, 4, 1\nv_lshl_add_u32 v{dst}, v{t}, 5, v{dst}\nv_and_b32 v{t}, 3, v1\nv_lshl_add_u32 v{dst}, v{t}, 3, v{dst}")
def get_tag(TAGV, lab):
    A(f"v_readfirstlane_b32 s{sTAG}, v{TAGV}\nv_readfirstlane_b32 s{sTAG+1}, v{TAGV+1}")
    A(f"s_or_b32 s{sTO}, s{sTAG}, s{sTAG+1}\ns_cbranch_scc1 {lab}_ok\ns_mov_b32 s{sTO}, 0x40000\nv_mov_b32 v4, 0\n{lab}_l:")
    A(f"buffer_load_dwordx2 {v(TAGV,2)}, v4, {R(RDBG)}, 0 offen sc1\ns_sub_u32 s{sTO}, s{sTO}, 1\ns_waitcnt vmcnt(0)\ns_cbranch_scc1 {lab}_ok")
    A(f"v_readfirstlane_b32 s{sTAG}, v{TAGV}\nv_readfirstlane_b32 s{sTAG+1}, v{TAGV+1}\ns_cmp_eq_u64 s[{sTAG}:{sTAG+1}], 0\ns_cbranch_scc1 {lab}_l\n{lab}_ok:")
def tagcheck(regs, T1, T2, T3):
    A(f"v_xor_b32 v{T1}, s{sTAG}, v{regs[0]+1}\nv_xor_b32 v{T2}, s{sTAG+1}, v{regs[0]+3}\nv_or_b32 v{T1}, v{T1}, v{T2}")
    for g in regs[1:]: A(f"v_xor_b32 v{T2}, s{sTAG}, v{g+1}\nv_xor_b32 v{T3}, s{sTAG+1}, v{g+3}\nv_or3_b32 v{T1}, v{T1}, v{T2}, v{T3}")
    A(f"v_cmp_ne_u32 vcc, 0, v{T1}")
def rot4(d):
    A(f"s_bfe_u32 s{d}, s2, 0x20001\ns_mul_i32 s{d}, s{d}, 7\ns_sub_u32 s{d}, s{sFT}, s{d}\ns_add_u32 s{d}, s{d}, s{sDT4}\ns_add_u32 s{d}, s{d}, s{sDT4}")
    A(f"s_and_b32 s{sTO}, s2, 1\ns_mul_i32 s{sTO}, s{sTO}, 3\ns_add_u32 s{d}, s{d}, s{sTO}\ns_and_b32 s{d}, s{d}, 7\ns_lshl_b32 s{d}, s{d}, 2")
def rot5(d):
    A(f"s_and_b32 s{sTO}, s2, 1\ns_lshl_b32 s{sTO}, s{sTO}, 1\ns_lshl_b32 s{d}, s{sDT5}, 1\ns_add_u32 s{d}, s{d}, s{sTO}\ns_and_b32 s{sTO}, s{sST}, 7\ns_add_u32 s{d}, s{d}, s{sTO}")
    A(f"s_mul_i32 s{sTO}, s{d}, 37\ns_lshr_b32 s{sTO}, s{sTO}, 8\ns_mul_i32 s{sTO}, s{sTO}, 7\ns_sub_u32 s{d}, s{d}, s{sTO}\ns_lshl_b32 s{d}, s{d}, 2")

handlers = []
class Stream:
    def __init__(self, name, ng, loads, soff, T, bit, VP, TP, pm=None, gated=None):
        self.name, self.ng, self.loads, self.soff, self.T, self.last, self.bit = name, ng, loads, soff, T, -1, bit
        self.VP, self.TP, self.pm, self.gated = VP, TP, pm or (lambda g: 0xffffffff), ng if gated is None else gated
        A(f"s_mov_b32 s{sMISS}, {hx((1 << 2*ng) - 1)}")
    def gate(self, g):
        if g >= self.gated: return
        L = f"{self.name}g{g}"
        A(f"s_and_b32 s{sT}, s{sMISS}, {hx(3 << 2*g)}\ns_cbranch_scc1 {L}_h\n{L}_r:")
        def h():
            A(f"{L}_h:\ns_mov_b32 s{sTO}, 0x40000\ns_mov_b32 exec_hi, 0\n{L}_l:\ns_and_b32 exec_lo, s{sMISS}, {hx(self.pm(g))}")
            A(f"buffer_load_dword v{self.TP}, v{self.VP}, {R(RWS)}, 0 offen sc1\ns_sub_u32 s{sTO}, s{sTO}, 1\ns_waitcnt vmcnt(0)\ns_cbranch_scc1 {L}_x")
            A(f"v_and_b32 v{self.TP}, {self.bit}, v{self.TP}\nv_cmp_ne_u32 vcc, 0, v{self.TP}\ns_andn2_b32 s{sMISS}, s{sMISS}, vcc_lo\ns_and_b32 s{sT}, s{sMISS}, {hx(3 << 2*g)}\ns_cbranch_scc1 {L}_l")
            A(f"{L}_x:\ns_mov_b64 exec, -1\ns_branch {L}_r")
        handlers.append(h)
    def _emit(self, g, track):
        self.soff(g)
        for reg, va, off in self.loads(g):
            A(f"buffer_load_dwordx4 {v(reg,4)}, v{va}, {R(RWS)}, s{sT} offen offset:{off} sc1")
            if track: vm.issue((self.name, g))
    def issue(self, g):
        if g < self.ng: self.gate(g); self._emit(g, True); self.last = g
    def issue_part(self, g, k):
        if g >= self.ng: return
        if k == 0: self.gate(g); self.soff(g)
        reg, va, off = self.loads(g)[k]
        A(f"buffer_load_dwordx4 {v(reg,4)}, v{va}, {R(RWS)}, s{sT} offen offset:{off} sc1"); vm.issue((self.name, g))
        self.last = g
    def _red(self, g):
        r = [x[0] + 3 for x in self.loads(g)]
        A(f"v_bitop3_b32 v{self.T}, v{r[0]}, v{r[1]}, v{r[2]} bitop3:0x80\nv_bitop3_b32 v{self.T}, v{self.T}, v{r[3]}, {self.bit} bitop3:0x80")
    def check1(self, g):
        if g < self.ng: vm.wait((self.name, g)); self._red(g)
    def check2(self, g):
        if g >= self.ng: return
        L = f"{self.name}{g}"
        A(f"v_cmp_eq_u32 vcc, 0, v{self.T}\ns_cbranch_vccnz {L}_h\n{L}_r:")
        last = self.last
        later = list(range(g + 1, last + 1)) if env("RFR", 0) and vm.q == [(self.name, k) for k in range(g + 1, last + 1) for _ in range(4)] else []
        def h():
            A(f"{L}_h:\ns_mov_b32 s{sTO}, 0x40000\n{L}_l:")
            self._emit(g, False)
            A(f"s_sub_u32 s{sTO}, s{sTO}, 1\ns_waitcnt vmcnt(0)\ns_cbranch_scc1 {L}_r")
            self._red(g)
            A(f"v_cmp_eq_u32 vcc, 0, v{self.T}\ns_cbranch_vccnz {L}_l")
            for k in later:
                self._red(k); A(f"v_cmp_eq_u32 vcc, 0, v{self.T}\ns_cbranch_vccnz {L}_f{k}")
            A(f"s_branch {L}_r")
            for k in later:
                A(f"{L}_f{k}:"); self._emit(k, False)
            if later: A(f"s_branch {L}_r")
        handlers.append(h)

def prologue():
    if STAMP: A(f"s_memrealtime s[72:73]\nv_mov_b32 v{VST}, -1")
    stamp("start")
    A(f"s_load_dwordx2 s[{RX}:{RX+1}], s[0:1], 0\ns_load_dwordx2 s[{RWQ}:{RWQ+1}], s[0:1], 8")
    A("s_cmp_ge_u32 s2, 256\ns_cbranch_scc1 K_END")
    A(f"v_and_b32 v1, 63, v0\nv_lshrrev_b32 v3, 6, v0\nv_lshlrev_b32 v{VL}, 4, v1\nv_readfirstlane_b32 s{sW8}, v3\nv_and_b32 v0, 255, v0")
    for r, sz in ((RX, S*D*2), (RWQ, D*3*D*2)): A(f"s_mov_b32 s{r+2}, {sz}\ns_mov_b32 s{r+3}, 0x20000")
    A(f"s_and_b32 s{SW}, s{sW8}, 3\ns_lshr_b32 s{sJ}, s2, 3\ns_bfe_u32 s{sT}, s2, 0x20001\ns_and_b32 s{sU}, s2, 1")
    A(f"s_lshl_b32 s{sI}, s{sT}, 2\ns_and_b32 s{sV}, s{sJ}, 3\ns_add_u32 s{sI}, s{sI}, s{sV}")
    A(f"s_lshr_b32 s{sSEC}, s{sJ}, 3\ns_bfe_u32 s{sHQ}, s{sJ}, 0x10002\ns_lshl_b32 s{sV}, s{sU}, 1\ns_add_u32 s{sHQ}, s{sHQ}, s{sV}")
    A(f"s_cmp_ge_u32 s{sJ}, 24\ns_cbranch_scc1 P1_HELP\ns_cmp_lt_u32 s{sW8}, 4\ns_cbranch_scc1 A_P1")

def prologue2():
    for r, off in ((RWS, 80), (RDBG, 72), (RWO, 16), (RW1, 32), (RB1, 40), (RW2, 48), (RB2, 56), (ROUT, 64)):
        A(f"s_load_dwordx2 s[{r}:{r+1}], s[0:1], {off}")
    A(f"s_memrealtime s[{sTAG}:{sTAG+1}]")
    for r, sz in ((RWS, WS_SIZE), (RDBG, 256), (RWO, D*D*2), (RW1, S*F*2), (RB1, F*2), (RW2, S*F*2), (RB2, S*2), (ROUT, S*D*2)):
        A(f"s_mov_b32 s{r+2}, {sz}\ns_mov_b32 s{r+3}, 0x20000")
    A(f"s_mov_b32 s{sHI}, 0\ns_mov_b32 s{sHI+1}, -1\ns_mov_b32 s{sONES}, 0x3f803f80\ns_mov_b32 s{sRETRY}, 0")
    A(f"s_mul_i32 s{sRBW}, s{SW}, 12288\ns_add_u32 s{sRBW}, s{sRBW}, {RBUF}\ns_mul_i32 s{sW2W}, s{SW}, 28672")

def roles(touch=True):
    A(f"s_bfe_u32 s{sT}, s2, 0x20001\ns_and_b32 s{sU}, s2, 1")
    pass
    A(f"s_sub_u32 s{sV}, 25, s{sU}\ns_cmp_lt_u32 s{sJ}, s{sV}\ns_cselect_b32 s{sACT4}, 1, 0\ns_cselect_b32 s{sV}, s{sJ}, 0")
    A(f"s_mul_i32 s{sFT}, s{sU}, 25\ns_add_u32 s{sV}, s{sV}, s{sFT}\ns_mul_i32 s{sDT4}, s{sV}, 9363\ns_lshr_b32 s{sDT4}, s{sDT4}, 16")
    A(f"s_mul_i32 s{sFT}, s{sDT4}, 7\ns_sub_u32 s{sV}, s{sV}, s{sFT}\ns_mul_i32 s{sFT}, s{sT}, 7\ns_add_u32 s{sFT}, s{sV}, s{sFT}")
    A(f"s_cmp_lt_u32 s{sJ}, 28\ns_cselect_b32 s{sV}, s{sJ}, 0\ns_mul_i32 s{sST}, s{sU}, 28\ns_add_u32 s{sV}, s{sV}, s{sST}")
    A(f"s_lshr_b32 s{sDT5}, s{sV}, 3\ns_and_b32 s{sV}, s{sV}, 7\ns_lshl_b32 s{sST}, s{sT}, 3\ns_add_u32 s{sST}, s{sST}, s{sV}")
    A(f"s_lshl_b32 s{sT}, s{sHQ}, 2\ns_add_u32 s{sT}, s{sT}, s{sSEC}\ns_lshl_b32 s{sT}, s{sT}, 4\ns_add_u32 s{sT}, s{sT}, s{sI}\ns_lshl_b32 s{sT}, s{sT}, 7\ns_add_u32 s{sF[0]}, s{sT}, {F1}")
    A(f"s_and_b32 s{sT}, s2, 7\ns_lshl_b32 s{sT}, s{sT}, 1\ns_and_b32 s{sH}, s{sJ}, 1\ns_add_u32 s{sH}, s{sH}, s{sT}\ns_lshr_b32 s{sI}, s{sJ}, 1")
    A(f"s_lshr_b32 s{sR3}, s{sJ}, 4\ns_add_u32 s{sR3}, s{sR3}, s{sT}\ns_lshl_b32 s{sR3}, s{sR3}, 2\ns_add_u32 s{sR3}, s{sR3}, s{SW}\ns_and_b32 s{sC3}, s{sJ}, 15")
    A(f"s_lshl_b32 s{sT}, s2, 3\ns_add_u32 s{sF[1]}, s{sT}, {F2}")
    if not touch: return
    A(f"s_lshl_b32 s{sV}, s{sR3}, 4\ns_add_u32 s{sV}, s{sV}, s{sC3}\ns_lshl_b32 s{sV}, s{sV}, 9\ns_add_u32 s{sV}, s{sV}, {WS_ST}\nv_lshl_add_u32 v4, v1, 7, s{sV}")
    A(f"v_writelane_b32 v4, s{sF[0]}, 4\nv_writelane_b32 v4, s{sF[1]}, 5\ns_mov_b64 exec, {(0x3f if env('STT', 1) else 0x30) & ~(0x10 if env('NF1', 0) else 0)}\nbuffer_load_dword v126, v4, {R(RWS)}, 0 offen sc1\ns_mov_b64 exec, -1")
    vm.issue("touch")

def p1_helper():
    TAGV = 14
    sHX = sA
    A("; ---- helper workgroups: row statistics of x, column sums of wqkv"); A("P1_HELP:")
    vm.q = []
    prologue2()
    A(f"s_and_b32 s{sHX}, s2, 7\ns_lshl_b32 s{sHX}, s{sHX}, 3\ns_add_u32 s{sHX}, s{sHX}, s{sJ}\ns_sub_u32 s{sHX}, s{sHX}, 24")
    A(f"v_lshrrev_b32 v4, 3, v1\nv_and_b32 v5, 7, v1\nv_lshlrev_b32 v5, 4, v5\nv_mov_b32 v7, 0")
    A(f"s_cmp_ge_u32 s{sW8}, 4\ns_cbranch_scc1 H_CS")
    A(f"v_mul_u32_u24 v6, 896, v4\nv_add_u32 v6, v6, v5\ns_lshl_b32 s{sB}, s{sHX}, 2\ns_add_u32 s{sB}, s{sB}, s{SW}\ns_mul_i32 s{sT}, s{sB}, {8*896}\ns_waitcnt lgkmcnt(0)")
    for m in range(7): A(f"buffer_load_dwordx4 {v(16+4*m,4)}, v6, {R(RX)}, s{sT} offen offset:{m*128}")
    A("v_mov_b32 v80, 0\nv_mov_b32 v82, 0\nv_mov_b32 v84, 0\nv_mov_b32 v86, 0\ns_waitcnt vmcnt(0)")
    A(f"buffer_load_dwordx2 {v(TAGV,2)}, v7, {R(RDBG)}, 0 offen sc1")
    for k in range(28): A(f"v_dot2c_f32_bf16 v{80+4*(k&1)}, s{sONES}, v{16+k}\nv_dot2c_f32_bf16 v{82+4*(k&1)}, v{16+k}, v{16+k}")
    A("v_add_f32 v80, v80, v84\nv_add_f32 v82, v82, v86")
    for m in ("quad_perm:[1,0,3,2]", "quad_perm:[2,3,0,1]", "row_half_mirror"):
        for r in (80, 82): A(f"v_add_f32_dpp v{r}, v{r}, v{r} {m} row_mask:0xf bank_mask:0xf")
    A(f"v_mul_f32 v80, {fl(1.0/D)}, v80\nv_mul_f32 v82, {fl(1.0/D)}, v82\nv_fma_f32 v82, -v80, v80, v82\nv_max_f32 v82, 0, v82\nv_add_f32 v82, {fl(EPS)}, v82\nv_rsq_f32 v82, v82")
    A(f"v_lshlrev_b32 v6, 4, v4\nv_mul_f32 v80, v80, v82\nv_sub_f32 v80, 0, v80\ns_waitcnt vmcnt(0)")
    get_tag(TAGV, "H_T1")
    A(f"v_mov_b32 v81, s{sTAG}\nv_mov_b32 v83, s{sTAG+1}\ns_lshl_b32 s{sT}, s{sB}, 7\ns_add_u32 s{sT}, s{sT}, {WS_RST}")
    set_exec(0x0101010101010101)
    A(f"buffer_store_dwordx4 v[80:83], v6, {R(RWS)}, s{sT} offen sc1\ns_mov_b64 exec, -1")
    stamp("h_pub"); stamp_flush()
    A("s_barrier")
    roles()
    addr_setup()
    xid_store("H_NOX", 4)
    A("s_branch P2_START")
    st["pend"] = [0] if STAMP else []
    A(f"H_CS:\ns_lshl_b32 s{sB}, s{SW}, 6\ns_add_u32 s{sB}, s{sB}, s{sHX}\ns_cmp_ge_u32 s{sB}, 84\ns_cbranch_scc1 H_PF")
    A(f"v_mul_u32_u24 v6, 2688, v4\nv_add_u32 v6, v6, v5\ns_and_b32 s{sC}, s{sB}, 3\ns_lshr_b32 s{sD_}, s{sB}, 2\ns_mul_i32 s{sT}, s{sC}, {112*2688}\ns_lshl_b32 s{sU}, s{sD_}, 7\ns_add_u32 s{sT}, s{sT}, s{sU}\ns_waitcnt lgkmcnt(0)")
    for m in range(14): A(f"buffer_load_dwordx4 {v(16+4*m,4)}, v6, {R(RWQ)}, s{sT} offen\ns_add_u32 s{sT}, s{sT}, {8*2688}")
    A(f"s_mov_b32 s{sT}, 0x3f80\ns_mov_b32 s{sU}, 0x3f800000")
    for r in range(80, 88): A(f"v_mov_b32 v{r}, 0")
    for m in range(14):
        if m % 4 == 0: A(f"s_waitcnt vmcnt({max(0, 14 - m - 4)})")
        if m == 12: A(f"buffer_load_dwordx2 {v(TAGV,2)}, v7, {R(RDBG)}, 0 offen sc1")
        for k in range(4): A(f"v_dot2c_f32_bf16 v{80+2*k}, s{sT}, v{16+4*m+k}\nv_dot2c_f32_bf16 v{81+2*k}, s{sU}, v{16+4*m+k}")
    for r in range(80, 88): A(f"v_add_f32_dpp v{r}, v{r}, v{r} row_ror:8 row_mask:0xf bank_mask:0xf")
    for op in ("v_permlane16_swap_b32", "v_permlane32_swap_b32"):
        for r in range(80, 88): A(f"v_mov_b32 v{r+8}, v{r}")
        for r in range(80, 88): A(f"{op} v{r}, v{r+8}")
        for r in range(80, 88): A(f"v_add_f32 v{r}, v{r}, v{r+8}")
    A("v_mov_b32 v88, v80\nv_mov_b32 v90, v81")
    for pi in range(1, 4): A(f"v_cmp_eq_u32 vcc, {pi}, v4\nv_cndmask_b32 v88, v88, v{80+2*pi}, vcc\nv_cndmask_b32 v90, v90, v{81+2*pi}, vcc")
    A(f"v_lshlrev_b32 v6, 2, v5\nv_lshl_add_u32 v6, v4, 4, v6\ns_waitcnt vmcnt(0)")
    get_tag(TAGV, "H_T2")
    A(f"v_mov_b32 v89, s{sTAG}\nv_mov_b32 v91, s{sTAG+1}\ns_mul_i32 s{sT}, s{sC}, 10752\ns_lshl_b32 s{sU}, s{sD_}, 9\ns_add_u32 s{sT}, s{sT}, s{sU}\ns_add_u32 s{sT}, s{sT}, {WS_CSG}")
    set_exec(0xFFFFFFFF)
    A(f"buffer_store_dwordx4 v[88:91], v6, {R(RWS)}, s{sT} offen sc1\ns_mov_b64 exec, -1\ns_barrier\ns_branch B_P2")
    A(f"H_PF:\ns_cmp_lt_u32 s{SW}, 2\ns_cbranch_scc1 H_W")
    sQ = sB
    A(f"s_sub_u32 s{sQ}, s{sJ}, 24\ns_lshl_b32 s{sQ}, s{sQ}, 1\ns_add_u32 s{sQ}, s{sQ}, s{SW}\ns_sub_u32 s{sQ}, s{sQ}, 2")
    A(f"s_getpc_b64 s[{sC}:{sC+1}]\nCODE_REF:\ns_lshl_b32 s{sT}, s{sQ}, 12\nv_lshl_add_u32 v6, v1, 7, s{sT}\nv_min_u32 v6, CODE_END-CODE_REF-4, v6")
    A(f"v_mov_b32 v9, s{sC+1}\nv_add_co_u32 v8, vcc, s{sC}, v6\nv_addc_co_u32 v9, vcc, 0, v9, vcc")
    set_exec(0xFFFFFFFF)
    A("global_load_dword v25, v[8:9], off\ns_mov_b64 exec, -1\ns_waitcnt lgkmcnt(0)\ns_barrier")
    A("v_lshlrev_b32 v6, 7, v1")
    A(f"s_and_b32 s{sT}, s2, 7\ns_lshl_b32 s{sT}, s{sT}, 4\ns_add_u32 s{sT}, s{sT}, s{sQ}\ns_mul_i32 s{sT}, s{sT}, {7*8192}")
    for k in range(env("NP1", 0)): A(f"s_add_u32 s{sU}, s{sT}, {k*8192}\nbuffer_load_dword v{16+k}, v6, {R(RW1)}, s{sU} offen")
    for k in range(env("NP2", 0)): A(f"s_add_u32 s{sU}, s{sT}, {k*8192}\nbuffer_load_dword v{26+k}, v6, {R(RW2)}, s{sU} offen")
    if env("NPX", 0):
        A(f"v_lshrrev_b32 v7, 3, v1\nv_mul_u32_u24 v7, 3584, v7\nv_and_b32 v8, 7, v1\nv_min_u32 v8, 6, v8\nv_lshl_add_u32 v7, v8, 7, v7")
        A(f"s_mul_i32 s{sT}, s{sQ}, {128*3584}\ns_bfe_u32 s{sU}, s2, 0x20001\ns_mul_i32 s{sU}, s{sU}, 896\ns_add_u32 s{sT}, s{sT}, s{sU}")
        for k in range(env("NPX", 0)):
            i = (k * 16) // env("NPX", 0)
            A(f"s_add_u32 s{sU}, s{sT}, {i*8*3584}\nbuffer_load_dword v24, v7, {R(RW1)}, s{sU} offen{os.environ.get('NPF', ' nt')}")
    if env("WOT", 0) == 1:
        A(f"s_mul_i32 s{sT}, s{sQ}, {196*128}")
        set_exec((1 << 49) - 1)
        for k in range(4): A(f"s_add_u32 s{sU}, s{sT}, {k*49*128}\nbuffer_load_dword v24, v6, {R(RWO)}, s{sU} offen")
        A("s_mov_b64 exec, -1")
    if STAMP:
        A("s_waitcnt vmcnt(0)"); stamp("h_touch"); stamp_flush(); A(f"v_mov_b32 v15, v{VST}\ns_branch B_P2S")
    A("s_branch B_P2\nH_W:\ns_waitcnt lgkmcnt(0)\ns_barrier\ns_branch B_P2")

XA = LDS_TOTAL - 65536
XBUF = [4096, 8192, 12288, 0, 4096, 8192, 12288]
def p1_common():
    sWO, sM = sA, sC
    A(f"s_mul_i32 s{sWO}, s{sSEC}, 896\ns_mul_i32 s{sT}, s{sHQ}, 224\ns_add_u32 s{sWO}, s{sWO}, s{sT}")
    A(f"s_lshl_b32 s{sE}, s{sI}, 2\ns_add_u32 s{sE}, s{sE}, s{SW}\ns_lshl_b32 s{sM}, s{SW}, 14\ns_add_u32 s{sM}, s{sM}, {XA}")

def p1():
    ACC, XF, WF = 128, 192, 208
    VXR = list(range(80, 88)); VXS = list(range(88, 92)); VWR = [92, 93]; TAGV = 94
    sM = sC
    A("; ---- A waves, P1: qkv GEMM"); A("A_P1:")
    prologue2()
    A(f"s_and_b32 s7, s{SW}, 1\ns_lshl_b32 s{sM}, s7, 15\ns_add_u32 s{sM}, s{sM}, {XA}\ns_lshl_b32 s7, s7, 1\ns_lshl_b32 s{sT}, s{sI}, 2\ns_add_u32 s7, s7, s{sT}")
    A("v_and_b32 v4, 31, v1\nv_lshrrev_b32 v5, 5, v1")
    A(f"v_bfe_u32 v6, v1, 1, 3\nv_xor_b32 v6, v6, v5\nv_lshlrev_b32 v6, 4, v6\nv_lshl_add_u32 v6, v4, 7, v6\nv_add_u32 v6, s{sM}, v6")
    for k in range(4): A(f"v_xor_b32 v{VXS[k]}, {k<<5}, v6")
    tr_lane_addr(VWR[0], 4, 224, 8, 2)
    A(f"s_lshr_b32 s{sT}, s{SW}, 1\ns_mul_i32 s{sT}, s{sT}, 112\nv_add_u32 v{VWR[0]}, s{sT}, v{VWR[0]}\nv_add_u32 v{VWR[1]}, {14*3584}, v{VWR[0]}")
    A("s_waitcnt lgkmcnt(0)")
    stamp("karg")
    A(f"s_or_b32 s{sT}, s2, s{SW}\ns_cbranch_scc1 P1_NOTAG")
    A(f"s_bitset1_b32 s{sTAG+1}, 31\nv_mov_b32 v8, s{sTAG}\nv_mov_b32 v9, s{sTAG+1}\nv_mov_b32 v10, 0\nv_mov_b32 v11, 0\ns_mov_b64 exec, 1\nbuffer_atomic_cmpswap_x2 v[8:11], v10, {R(RDBG)}, 0 offen sc1\ns_mov_b64 exec, -1\nP1_NOTAG:")
    roles()
    addr_setup()
    stamp_flush()
    A(f"s_and_b32 s{sT}, s{SW}, 1\ns_lshl_b32 s{sT}, s{sT}, 11\ns_lshr_b32 s{sV}, s{SW}, 1\ns_mul_i32 s{sE}, s{sV}, 224")
    A(f"v_lshrrev_b32 v5, 5, v1\nv_lshlrev_b32 v5, 4, v5\nv_and_b32 v6, 31, v1\nv_lshlrev_b32 v4, 2, v6\nv_mov_b32 v9, 0")
    A(f"s_lshl_b32 s{sU}, s{sHQ}, 1\ns_add_u32 s{sU}, s{sU}, s{sV}\ns_lshl_b32 s{sU}, s{sU}, 7\ns_add_u32 s{sU}, s{sU}, s7")
    A(f"s_cmp_eq_u32 s{sSEC}, 2\ns_cbranch_scc1 P1_V")
    for isv in (0, 1):
        vm.q = []; lg.q = []
        if isv: A("P1_V:")
        RS, TM, PK = 112, 64, 96
        if not isv:
            A(f"v_add_u32 v4, s{sT}, v4\nv_add_u32 v5, s{sE}, v5")
            A(f"s_cmp_eq_u32 s{sSEC}, 0\ns_cselect_b32 s{sA}, 0, s{sONES}\ns_cselect_b32 s{sB}, 0, 0x3f80\ns_cselect_b32 s{sC}, {WS_Q}, {WS_KV}")
            A(f"s_add_u32 s{sD_}, s{sSEC}, 11\ns_lshl_b32 s{sU}, s{sU}, s{sD_}\ns_add_u32 s{sU}, s{sU}, s{sC}\ns_lshl_b32 s{sV}, 63, s{sD_}\ns_lshl_b32 s{sD_}, 1, s{sD_}\nv_mov_b32 v7, s{sA}\nv_mov_b32 v8, s{sB}")
            cr = [f"ds_read_b32 v{RS+4*rt+2*k}, v4 offset:{rt*1024 + 512 + 128*k}" for rt in range(2) for k in range(2)] + [f"ds_read_b128 {v(16+16*hd+4*g,4)}, v5 offset:{hd*112 + g*32}" for hd in range(2) for g in range(4)]
        else:
            A(f"v_add_u32 v4, s{sE}, v4\nv_add_u32 v5, s{sT}, v5")
            A(f"s_lshl_b32 s{sU}, s{sU}, 12\ns_add_u32 s{sU}, s{sU}, {WS_KV + 2048}\ns_mov_b32 s{sD_}, 4096\ns_mov_b32 s{sV}, {63*4096}\ns_mov_b32 s{sA}, 0x0fffffff\ns_mov_b32 s{sA+1}, 0x0fffffff")
            A(f"v_cmp_eq_u32 vcc, 28, v6\nv_mov_b32 v7, s{sONES}\nv_cndmask_b32 v8, 0, v7, vcc")
            for r in range(16): A(f"v_mov_b32 v{PK+r}, v8")
            cr = [f"ds_read_b128 {v(16+32*rt+16*k+4*g,4)}, v5 offset:{rt*1024 + 512 + 128*k + g*32}" for rt in range(2) for k in range(2) for g in range(4)] + [f"ds_read_b32 v{RS+2*hd}, v4 offset:{hd*112}" for hd in range(2)]
            TM = XF
        def rd(ks, part):
            xr = lambda rt: f"ds_read_b128 {v(XF + (ks&1)*8 + 4*rt, 4)}, v{VXS[ks & 3]} offset:{XBUF[ks >> 2] + rt*16384}"
            wr = lambda hd: [f"ds_read_b64_tr_b16 {v(WF + (ks&1)*8 + hd*4 + half*2, 2)}, v{VWR[ks//14]} offset:{(ks%14)*3584 + half*224 + hd*56}" for half in range(2)]
            for ln in ([xr(0), wr(0)[0]], [wr(0)[1], wr(1)[0]], [wr(1)[1], xr(1)])[part]: A(ln); lg.issue(ks)
        A("s_barrier"); stamp("g0")
        for part in range(3): rd(0, part)
        for ks in range(28):
            lg.wait(ks)
            if ks % 4 == 3 and ks < 27: A("s_barrier")
            if ks in (7, 15, 23): stamp(f"g{(ks+1)//8}")
            if ks == 16: A(f"buffer_load_dwordx2 {v(TAGV,2)}, v9, {R(RDBG)}, 0 offen sc1")
            for sl, (rt, hd) in enumerate(((0, 0), (0, 1), (1, 1), (1, 0))):
                x, w_, acc = v(XF + (ks&1)*8 + 4*rt, 4), v(WF + (ks&1)*8 + 4*hd, 4), v(ACC + 32*hd + 16*rt, 16)
                A(f"{MFMA} {acc}, {x if isv else w_}, {w_ if isv else x}, {'0' if ks == 0 else acc}")
                if ks + 1 < 28 and sl < 3: rd(ks + 1, sl)
                if ks >= 23 and (sl == 3 or ks == 27):
                    for _ in range(3 if ks == 27 else 2):
                        if cr: A(cr.pop(0)); lg.issue("c")
        assert not cr
        stamp("mfma_done")
        lg.wait_all()
        for n, (hd, rt) in enumerate(((0, 0), (0, 1), (1, 0), (1, 1))):
            ac, o = ACC + 32*hd + 16*rt, PK + 8*(n & 1)
            if not isv:
                for r in range(0, 16, 2): A(f"v_pk_mul_f32 {v(TM+r,2)}, {v(16+16*hd+r,2)}, {v(RS+4*rt+2,2)} op_sel_hi:[1,0]")
                for r in range(0, 16, 2): A(f"v_pk_fma_f32 {v(ac+r,2)}, {v(ac+r,2)}, {v(RS+4*rt,2)}, {v(TM+r,2)} op_sel_hi:[1,0,1]")
            else:
                for r in range(0, 16, 2): A(f"v_pk_mul_f32 {v(TM+r,2)}, {v(32+32*rt+r,2)}, {v(RS+2*hd,2)} op_sel_hi:[1,0]")
                for r in range(0, 16, 2): A(f"v_pk_fma_f32 {v(ac+r,2)}, {v(ac+r,2)}, {v(16+32*rt+r,2)}, {v(TM+r,2)}")
                A(f"s_mov_b64 exec, s[{sA}:{sA+1}]")
            for r in range(8): A(f"v_cvt_pk_bf16_f32 v{o+r}, v{ac+2*r}, v{ac+2*r+1}")
            if not isv: A(f"v_cndmask_b32 v{o+6}, v{o+6}, v7, s[{sHI}:{sHI+1}]\nv_cndmask_b32 v{o+7}, v{o+7}, v8, s[{sHI}:{sHI+1}]\nv_and_b32 v{o+3}, 0xfffefffe, v{o+3}\nv_and_b32 v{o+7}, 0xfffefffe, v{o+7}")
            else: A(f"v_and_b32 v{o+3}, -2, v{o+3}\nv_and_b32 v{o+7}, -2, v{o+7}\ns_mov_b64 exec, -1")
            for f in range(2): A(f"buffer_store_dwordx4 {v(o+4*f,4)}, v{VL}, {R(RWS)}, s{sU} offen offset:{f*1024} sc1")
            if n < 3: A(f"s_add_u32 s{sU}, s{sU}, s{sV if n == 1 else sD_}")
        stamp("kvst"); stamp_flush()
        if not isv: A("s_branch P1_DONE")
    A("P1_DONE:\ns_waitcnt vmcnt(8)")
    get_tag(TAGV, "P1_T")

def tilemax(sreg, T0, T1):
    A(f"v_max3_f32 v{T0}, v{sreg}, v{sreg+1}, v{sreg+2}\nv_max3_f32 v{T1}, v{sreg+3}, v{sreg+4}, v{sreg+5}")
    A(f"v_max3_f32 v{T0}, v{T0}, v{sreg+6}, v{sreg+7}\nv_max3_f32 v{T1}, v{T1}, v{sreg+8}, v{sreg+9}")
    A(f"v_max3_f32 v{T0}, v{T0}, v{sreg+10}, v{sreg+11}\nv_max3_f32 v{T1}, v{T1}, v{sreg+12}, v{sreg+13}")
    A(f"v_max3_f32 v{T0}, v{T0}, v{sreg+14}, v{sreg+15}")
def set_qpad(q, m, T0, T1, T2):
    A(f"v_sub_f32 v{T0}, 0, v{m}\nv_and_b32 v{T1}, 0xffff0000, v{T0}\nv_sub_f32 v{T0}, v{T0}, v{T1}")
    A(f"v_and_b32 v{T2}, 0xffff0000, v{T0}\nv_sub_f32 v{T0}, v{T0}, v{T2}\nv_lshrrev_b32 v{T0}, 16, v{T0}")
    A(f"v_lshrrev_b32 v{T1}, 16, v{T1}\nv_or_b32 v{T1}, v{T1}, v{T2}")
    A(f"v_cndmask_b32 v{q+6}, v{q+6}, v{T1}, s[{sHI}:{sHI+1}]\nv_cndmask_b32 v{q+7}, v{q+7}, v{T0}, s[{sHI}:{sHI+1}]")

NKV = env("NKV", 4)
XR, IR3 = (224, 232) if NKV == 4 else (176, 184)
VRD, VFL, VKV, VONE, VRB, VWO = [240, 241], 242, 243, 244, [246, 247], 248
VO3, VP3, VH, VP4, VG, VP5 = [10, 11], 12, [14, 15], 3, [253, 254], 242
sRO, sGC, sGST, sHFO, sFO, sRT3 = 96, 97, 98, 99, 100, 101
VRW = [249, 250, 251, 252]
def ident3():
    A("v_and_b32 v4, 31, v1\nv_lshrrev_b32 v5, 5, v1\nv_lshlrev_b32 v6, 3, v5\nv_sub_u32 v6, v4, v6")
    for p in range(2):
        for r in range(4):
            A(f"v_cmp_eq_u32 vcc, {16*p+2*r}, v6\nv_cmp_eq_u32 s[{sU}:{sU+1}], {16*p+2*r+1}, v6\nv_cndmask_b32 v{IR3+4*p+r}, 0, v{VONE}, vcc\nv_cndmask_b32 v{IR3+4*p+r}, v{IR3+4*p+r}, v{VONE+1}, s[{sU}:{sU+1}]")
def addr_setup():
    tr_lane_addr(4, 5, 128, 4)
    A(f"s_and_b32 s{sT}, s{SW}, 1\ns_lshl_b32 s{sT}, s{sT}, 5\nv_xor_b32 v4, s{sT}, v4")
    A(f"v_bfe_u32 v5, v1, 3, 1\ns_lshr_b32 s{sT}, s{SW}, 1\nv_xor_b32 v5, s{sT}, v5")
    A(f"v_lshl_add_u32 v6, v5, 6, v4\nv_xor_b32 v5, 1, v5\nv_lshl_add_u32 v7, v5, 6, v4")
    A(f"v_add_u32 v{VRD[0]}, s{sW2W}, v6\nv_add_u32 v{VRD[1]}, s{sW2W}, v7")
    A(f"v_mov_b32 v{VONE}, 0x3f80\nv_mov_b32 v{VONE+1}, 1.0")
    A(f"s_lshl_b32 s{sT}, s{sH}, 2\ns_add_u32 s{sT}, s{sT}, s{SW}\ns_lshl_b32 s{sT}, s{sT}, 16\ns_add_u32 s{sT}, s{sT}, {WS_KV}\nv_add_u32 v{VKV}, s{sT}, v{VL}")
    tr_lane_addr(VWO, 4, 64, 4); A(f"v_add_u32 v{VWO}, {RBUF}, v{VWO}\nv_add_u32 v{VRW[0]}, s{sRBW}, v{VL}")
    for t in range(1, 4):
        A(f"s_add_u32 s{sT}, s{SW}, {t}\ns_and_b32 s{sT}, s{sT}, 3\ns_mul_i32 s{sT}, s{sT}, 12288\ns_add_u32 s{sT}, s{sT}, {RBUF}\nv_add_u32 v{VRW[t]}, s{sT}, v{VL}")
    if NKV == 4: ident3()
    A("v_and_b32 v4, 31, v1\nv_lshrrev_b32 v5, 5, v1")
    A("v_mul_u32_u24 v13, 896, v4\nv_lshl_add_u32 v13, v5, 4, v13")
    A(f"s_lshl_b32 s{sB}, s{sR3}, 11\ns_add_u32 s{sB}, s{sB}, {WS_O}\nv_add_u32 v{VO3[0]}, s{sB}, v{VL}\nv_add_u32 v{VO3[1]}, 0x20000, v{VO3[0]}\ns_and_b32 s{sT}, s{sC3}, 7\ns_lshl_b32 s{sRT3}, s{sT}, 18")
    A(f"s_lshl_b32 s{sT}, s{sT}, 1\nv_add_u32 v{VP3}, s{sT}, v1\nv_and_b32 v{VP3}, 15, v{VP3}\nv_lshlrev_b32 v{VP3}, 17, v{VP3}\ns_add_u32 s{sT}, s{sB}, 2044\nv_add_u32 v{VP3}, s{sT}, v{VP3}")
    mlp_addr(RA, 4, 6)
    A(f"s_lshl_b32 s{sFO}, s{sFT}, 2\ns_add_u32 s{sFO}, s{sFO}, s{SW}\ns_mul_i32 s{sT}, s{sDT4}, {2*112*1024}\ns_lshl_b32 s{sU}, s{sFO}, 10\ns_add_u32 s{sT}, s{sT}, s{sU}\ns_add_u32 s{sGST}, s{sT}, {WS_G}")
    A(f"s_lshr_b32 s{sV}, s{SW}, 1\ns_lshl_b32 s{sT}, s{sST}, 1\ns_add_u32 s{sV}, s{sV}, s{sT}\ns_mul_i32 s{sV}, s{sV}, 7\ns_add_u32 s{sV}, s{sV}, s{sDT5}\ns_lshl_b32 s{sV}, s{sV}, 12\ns_and_b32 s{sT}, s{SW}, 1\ns_lshl_b32 s{sT}, s{sT}, 10\ns_add_u32 s{sV}, s{sV}, s{sT}\ns_add_u32 s{sHFO}, s{sV}, {WS_HF}")
    A(f"s_xor_b32 s{sT}, s{SW}, 3\ns_mul_i32 s{sT}, s{sT}, 28672\ns_add_u32 s{sT}, s{sT}, {13*2048}\nv_add_u32 v{VX3}, s{sT}, v{VL}")

class Role: pass
RA, RB = Role(), Role()
C5A = env("C5A", 12)
RA.n, RA.n4, RA.c4, RA.n5, RA.c5, RA.W, RA.slots = "A", 0, 12, 0, C5A, 128, [0, 1, 2, 3, 4, 5]
RA.VRD, RA.VH, RA.VG, RA.VP4, RA.VP5, RA.VT2, RA.T0, RA.T1 = [240, 241], 14, 253, 3, 242, [246, 247], 4, 5
RB.n, RB.n4, RB.c4, RB.n5, RB.c5, RB.W, RB.slots = "B", 12, 20, C5A, 28 - C5A, 96, [12, 6, 7, 8, 9, 10, 11]
RB.VRD, RB.VH, RB.VG, RB.VP4, RB.VP5, RB.VT2, RB.T0, RB.T1 = [0, 3], 4, 5, 8, 9, [6, 7], 12, 13
VX3 = 15
def w2_addr(r, t0, t1):
    A(f"v_lshrrev_b32 v{t0}, 3, v1\nv_bfe_u32 v{t1}, v1, 4, 1\nv_lshlrev_b32 v{t1}, 2, v{t1}\nv_and_b32 v{r.VT2[0]}, 7, v1\nv_xor_b32 v{t1}, v{r.VT2[0]}, v{t1}\nv_lshlrev_b32 v{t1}, 4, v{t1}\nv_lshl_add_u32 v{t0}, v{t0}, 12, v{t1}")
    A(f"s_mul_i32 s{sT}, s{SW}, {448*4096}\ns_lshl_b32 s{sU}, s{sST}, 7\ns_add_u32 s{sT}, s{sT}, s{sU}\nv_add_u32 v{r.VT2[0]}, s{sT}, v{t0}\nv_add_u32 v{r.VT2[1]}, {8*4096 - 1024}, v{r.VT2[0]}")
    rot4(sRO); A(f"s_lshl_b32 s{sRO}, s{sRO}, 10")
    rot5(sGC); A(f"s_lshl_b32 s{sGC}, s{sGC}, 10")
def mlp_addr(r, t0, t1, w2=True):
    if w2: w2_addr(r, t0, t1)
    A(f"s_lshl_b32 s{sT}, s{SW}, 15\ns_add_u32 s{sT}, s{sT}, {WS_HH}\ns_lshl_b32 s{sB}, s{sDT4}, 18\ns_add_u32 s{sB}, s{sB}, s{sT}\nv_add_u32 v{r.VH}, s{sB}, v{VL}")
    A(f"s_add_u32 s{sT}, s{sRO}, {r.n4*1024}\nv_lshl_add_u32 v{r.VP4}, v1, 11, s{sT}\nv_and_b32 v{r.VP4}, 0x7fff, v{r.VP4}\ns_add_u32 s{sT}, s{sB}, 2044\nv_add_u32 v{r.VP4}, s{sT}, v{r.VP4}")
    A(f"s_mul_i32 s{sT}, s{SW}, {28*1024}\ns_add_u32 s{sT}, s{sT}, {WS_G}\ns_mul_i32 s{sB}, s{sDT5}, {2*112*1024}\ns_add_u32 s{sB}, s{sB}, s{sT}")
    A(f"s_and_b32 s{sT}, s{SW}, 1\ns_lshl_b32 s{sT}, s{sT}, 8\nv_xor_b32 v{r.VG}, s{sT}, v{VL}\nv_add_u32 v{r.VG}, s{sB}, v{r.VG}")
    A(f"s_add_u32 s{sT}, s{sGC}, {r.n5*1024}\nv_min_u32 v{t0}, {r.c5 // 2 - 1}, v1\nv_lshl_add_u32 v{r.VP5}, v{t0}, 11, s{sT}\nv_subrev_u32 v{t0}, {28*1024}, v{r.VP5}\nv_min_u32 v{r.VP5}, v{r.VP5}, v{t0}\ns_add_u32 s{sT}, s{sB}, 2044\nv_add_u32 v{r.VP5}, s{sT}, v{r.VP5}")

def xid_store(lab, t):
    A(f"s_getreg_b32 s{sV}, hwreg(HW_REG_XCC_ID, 0, 4)\ns_cmp_lg_u32 s{SW}, 1\ns_cbranch_scc1 {lab}")
    A(f"s_lshr_b32 s{sT}, s{sR3}, 2\ns_lshl_b32 s{sT}, s{sT}, 4\ns_add_u32 s{sT}, s{sT}, s{sC3}\ns_lshl_b32 s{sT}, s{sT}, 4\ns_add_u32 s{sT}, s{sT}, {F4}")
    A(f"v_mov_b32 v{t}, s{sV}\nv_mov_b32 v{t+1}, s{sTAG}\nv_mov_b32 v{t+2}, s{sV}\nv_mov_b32 v{t+3}, s{sTAG+1}\nv_mov_b32 v{t+4}, 0\ns_mov_b64 exec, 1\nbuffer_store_dwordx4 {v(t,4)}, v{t+4}, {R(RWS)}, s{sT} offen sc1\ns_mov_b64 exec, -1\n{lab}:")

def p2():
    Q, O, SS, PP, KV = 16, 48, [112, 128], [144, 152], 160
    M = [112, 113, 114, 115]; K0 = 120
    T0, T1, T2, T3 = 4, 5, 6, 7
    sKN = sB
    A(f"v_mov_b32 v4, s{sTAG}\nv_mov_b32 v5, s{sTAG+1}\nv_mov_b32 v6, 0\ns_cmp_lg_u32 s{SW}, 0")
    vm.wait_all(); stamp("kvdrain")
    A(f"s_barrier\ns_cbranch_scc1 P2_NOF\ns_mov_b64 exec, 1\nbuffer_store_dwordx2 v[4:5], v6, {R(RWS)}, s{sF[0]} offen sc1\ns_mov_b64 exec, -1\nP2_NOF:"); stamp_flush()
    A("; ---- A waves, P2: attention"); A("P2_START:")
    A(f"s_mul_i32 s{sE}, s{sR3}, {32*896}\ns_lshl_b32 s{sU}, s{sC3}, 6\ns_add_u32 s{sE}, s{sE}, s{sU}")
    xl = [f"buffer_load_dwordx4 {v(XR+4*p,4)}, v13, {R(RX)}, s{sE} offen offset:{32*p}" for p in range(2)]
    if NKV == 4: A("\n".join(xl))
    A(f"s_lshl_b32 s{sV}, s{sI}, 2\ns_add_u32 s{sV}, s{sV}, s{SW}\ns_lshl_b32 s{sU}, s{sH}, 6\ns_add_u32 s{sU}, s{sU}, s{sV}\ns_lshl_b32 s{sU}, s{sU}, 11")
    A(f"s_lshr_b32 s{sT}, s{sH}, 2\ns_lshl_b32 s{sT}, s{sT}, 13\ns_add_u32 s{sT}, s{sT}, {F1}\ns_lshl_b32 s{sA}, s{SW}, 9\ns_add_u32 s{sA}, s{sA}, 2048\ns_lshl_b32 s{sC}, s{sI}, 7")
    A(f"v_and_b32 v7, 3, v1\nv_lshl_add_u32 v7, v7, 7, s{sA}\nv_bfe_u32 v8, v1, 2, 1\nv_lshl_add_u32 v7, v8, 11, v7\nv_writelane_b32 v7, s{sC}, 8")
    if env("PW1", 1): A("s_waitcnt vmcnt(0)")
    poll(7, sT, 9, 8); stamp("s1")
    def kvload(n):
        pre = []
        if n == 0: pre = [f"s_add_u32 s{sA}, s{RWS}, 4096", f"s_addc_u32 s{sA+1}, s{RWS+1}, 0"]
        elif n % 2 == 0: pre = [f"s_add_u32 s{sA}, s{sA}, 8192", f"s_addc_u32 s{sA+1}, s{sA+1}, 0"]
        return pre + [f"global_load_dwordx4 {v(KV+16*(n%NKV)+4*f,4)}, v{VKV}, s[{sA}:{sA+1}] offset:{(n % 2 - 1)*4096 + f*1024} sc1" for f in range(4)]
    def emit(lines, tag):
        for ln in lines:
            A(ln)
            if ln.startswith("global_"): vm.issue(tag)
    for f in range(2): A(f"buffer_load_dwordx4 {v(Q+4*f,4)}, v{VL}, {R(RWS)}, s{sU} offen offset:{f*1024} sc1"); vm.issue("q")
    emit(kvload(0), "kv0")
    A("s_waitcnt vmcnt(2)"); stamp("qk0")
    A(f"{MFMA} {v(O,16)}, {v(KV,4)}, {v(Q,4)}, 0\n{MFMA} {v(O,16)}, {v(KV+4,4)}, {v(Q+4,4)}, {v(O,16)}")
    emit(kvload(1), "kv1")
    A(f"ds_write_b128 v{VRW[0]}, {v(Q,4)}")
    tilemax(O, T0, T1)
    A(f"v_max_f32 v{T0}, v{T0}, v{T1}\nv_mov_b32 v{T1}, v{T0}\nv_permlane32_swap_b32 v{T0}, v{T1}\nv_max_f32 v{T0}, v{T0}, v{T1}")
    set_qpad(Q, T0, T1, T2, T3)
    A(f"ds_write_b128 v{VRW[0]}, {v(Q+4,4)} offset:1024")
    A(f"{MFMA} {v(SS[0],16)}, {v(KV,4)}, {v(Q,4)}, 0\n{MFMA} {v(SS[0],16)}, {v(KV+4,4)}, {v(Q+4,4)}, {v(SS[0],16)}")
    emit(kvload(2), "kv2")
    A("s_waitcnt lgkmcnt(0)")
    A("s_barrier")
    for t in range(1, 4): A(f"ds_read_b128 {v(Q+8*t,4)}, v{VRW[t]}\nds_read_b128 {v(Q+8*t+4,4)}, v{VRW[t]} offset:1024")
    emit(kvload(3), "kv3")
    if env("APRIO", 0): A(f"s_setprio {env('APRIO', 0)}")
    A("P2_MAIN:")
    slot = lambda idx: (idx + (idx >= 60)) & 3
    pwr = lambda t, g: f"ds_write_b128 v{VRW[t]}, {v(O+16*t+4*g,4)} offset:{(t-1)*4096 + g*1024}"
    def qk(idx, part):
        n, t = idx >> 2, slot(idx); sr = SS[idx & 1]; k = KV + 16*(n % NKV)
        return f"{MFMA} {v(sr,16)}, {v(k+4*part,4)}, {v(Q+8*t+4*part,4)}, {'0' if part == 0 else v(sr,16)}"
    def pv(idx, part):
        n, t = idx >> 2, slot(idx); k = KV + 16*(n % NKV) + 8; o = O + 16*t
        return f"{MFMA} {v(o,16)}, {v(k+4*part,4)}, {v(PP[idx&1]+4*part,4)}, {'0' if (n == 0 and part == 0) else v(o,16)}"
    NI = 64
    for idx in range(NI):
        n, t = idx >> 2, idx & 3
        if idx in (16, 32, 48): stamp(f"a{idx}")
        side = [[], [], [], []]
        if NKV > 4 and idx == 53: side = [xl[:1], [], xl[1:], []]
        if t in (1, 2) and 4 <= n + NKV - 1 < 16:
            l = kvload(n + NKV - 1); pre, ld = l[:-4], l[-4:]
            side = [pre[:1], pre[1:], ld[0:1], ld[1:2]] if t == 1 else [ld[2:3], ld[3:4], [], []]
        if idx == 62: side = [[], [pwr(1, 0)], [pwr(1, 1)], [pwr(1, 2)]]
        if idx == 63: side = [[], [pwr(2, 0), pwr(2, 1)], [], [pwr(2, 2)]]
        if idx == env("PR1", 12): side[0].append(f"ds_write_b32 v{VRW[1]}, v{VONE} offset:3072")
        if idx == env("CUTAT", 61): side[0].append(f"ds_write_b32 v{VRW[1]}, v{VONE+1} offset:3072")
        mf = [qk(idx+1, 0) if idx+1 < NI else None, pv(idx-1, 0) if idx > 0 else None,
              qk(idx+1, 1) if idx+1 < NI else None, pv(idx-1, 1) if idx > 0 else None]
        if idx == 0: mf = [None, "s_waitcnt lgkmcnt(0)\n" + mf[0], mf[2], None]
        sr, p = SS[idx & 1], PP[idx & 1]
        for q in range(4):
            if mf[q]: A(mf[q])
            emit(side[q], f"kv{n+NKV-1}")
            if idx == 0 and q == 2: vm.wait("kv0")
            if t == 2 and q == 3 and n + 1 < 16: vm.wait(f"kv{n+1}")
            for j in range(4): A(f"v_exp_f32 v{sr+4*q+j}, v{sr+4*q+j}")
            if q > 0:
                for j in range(2): A(f"v_cvt_pk_bf16_f32 v{p+2*(q-1)+j}, v{sr+4*(q-1)+2*j}, v{sr+4*(q-1)+2*j+1}")
        for j in range(2): A(f"v_cvt_pk_bf16_f32 v{p+6+j}, v{sr+12+2*j}, v{sr+12+2*j+1}")
    A("P2_TAIL:"); A(pv(NI-1, 0)); A(pv(NI-1, 1)); stamp("aend")
    for g in range(3): A(pwr(3, g))
    A(f"s_mov_b32 s{sT}, {fl(2.0**30)}")
    A(f"v_cmp_nlt_f32 s[{sA}:{sA+1}], v{O+60}, s{sT}\nv_cmp_nlt_f32 s[{sC}:{sC+1}], v{O+28}, s{sT}\ns_or_b32 s{sU}, s{sA+1}, s{sC+1}")
    A(f"v_cmp_nlt_f32 s[{sA}:{sA+1}], v{O+44}, s{sT}\nv_cmp_nlt_f32 s[{sC}:{sC+1}], v{O+12}, s{sT}\ns_or_b32 s{sU}, s{sU}, s{sA+1}\ns_or_b32 s{sU}, s{sU}, s{sC+1}")
    A(f"s_cselect_b32 s{sU}, 1.0, 0\nv_mov_b32 v{T0}, s{sU}")
    for t in range(4): A(f"v_cndmask_b32 v{O+16*t+13}, v{O+16*t+13}, v{T0}, s[{sHI}:{sHI+1}]")
    for t in range(1, 4): A(f"ds_write_b128 v{VRW[t]}, {v(O+16*t+12,4)} offset:{(t-1)*4096 + 3*1024}")
    A(f"s_lshl_b32 s{sD_}, s{sI}, 2\ns_add_u32 s{sD_}, s{sD_}, s{SW}\ns_lshl_b32 s{sV}, s{sH}, 6\ns_add_u32 s{sV}, s{sV}, s{sD_}\ns_lshl_b32 s{sV}, s{sV}, 11\ns_add_u32 s{sV}, s{sV}, {WS_O}")
    A("s_waitcnt lgkmcnt(0)\ns_barrier")
    for g in (3, 0, 1, 2):
        for t in range(1, 4): A(f"ds_read_b128 {v(O+16*t+4*g,4)}, v{VRW[0]} offset:{(t-1)*4096 + g*1024}")
    def red(g):
        for r in (4*g, 4*g+2):
            A(f"v_pk_add_f32 {v(O+r,2)}, {v(O+r,2)}, {v(O+16+r,2)}\nv_pk_add_f32 {v(O+32+r,2)}, {v(O+32+r,2)}, {v(O+48+r,2)}")
        for r in (4*g, 4*g+2): A(f"v_pk_add_f32 {v(O+r,2)}, {v(O+r,2)}, {v(O+32+r,2)}")
    A("s_waitcnt lgkmcnt(9)"); red(3)
    A(f"v_readlane_b32 s{sT}, v{O+13}, 32\nv_mov_b32 v{T0}, v{O+12}\nv_mov_b32 v{T2}, v{O+12}\nv_permlane32_swap_b32 v{T0}, v{T2}\nv_rcp_f32 v{T2}, v{T2}")
    A(f"s_cmp_lg_u32 s{sT}, s{sRETRY}\ns_cbranch_scc1 P2_FALL\nP2_FIN:")
    for k, g in enumerate((0, 1, 2)):
        A(f"s_waitcnt lgkmcnt({6 - 3*k})"); red(g)
    for r in range(0, 16, 2): A(f"v_pk_mul_f32 {v(O+r,2)}, {v(O+r,2)}, {v(T2,2)} op_sel_hi:[1,0]")
    for r in range(8): A(f"v_cvt_pk_bf16_f32 v{O+16+r}, v{O+2*r}, v{O+2*r+1}")
    A(f"v_cndmask_b32 v{O+22}, v{O+22}, 0, s[{sHI}:{sHI+1}]\nv_cndmask_b32 v{O+23}, v{O+23}, 0, s[{sHI}:{sHI+1}]")
    A(f"s_mov_b32 s{sT}, 0xfffeffff\nv_and_or_b32 v{O+19}, v{O+19}, s{sT}, 1\nv_and_or_b32 v{O+23}, v{O+23}, s{sT}, 1")
    for f in range(2): A(f"buffer_store_dwordx4 {v(O+16+4*f,4)}, v{VL}, {R(RWS)}, s{sV} offen offset:{f*1024} sc1")
    stamp("ost")
    if STAMP and env("ACK", 0): A("s_waitcnt vmcnt(0)"); stamp("oack")
    stamp_flush()
    A("s_barrier")
    def fallback():
        A("; ---- softmax fallback: true row maxima over all keys, then the pass again")
        A(f"P2_FALL:\ns_cmp_lg_u32 s{sRETRY}, 0\ns_cbranch_scc1 P2_FIN")
        A(f"s_mov_b32 s{sRETRY}, -1\ns_waitcnt vmcnt(0) lgkmcnt(0)")
        for t in range(4):
            A(f"v_cndmask_b32 v{Q+8*t+6}, v{Q+8*t+6}, 0, s[{sHI}:{sHI+1}]\nv_cndmask_b32 v{Q+8*t+7}, v{Q+8*t+7}, 0, s[{sHI}:{sHI+1}]\nv_mov_b32 v{M[t]}, 0xff800000")
        A(f"s_mov_b32 s{sU}, 0\nP2_MAXLOOP:")
        for f in range(2): A(f"buffer_load_dwordx4 {v(K0+4*f,4)}, v{VKV}, {R(RWS)}, s{sU} offen offset:{f*1024} sc1")
        A("s_waitcnt vmcnt(0)")
        for t in range(4):
            A(f"{MFMA} {v(O+16*t,16)}, {v(K0,4)}, {v(Q+8*t,4)}, 0\n{MFMA} {v(O+16*t,16)}, {v(K0+4,4)}, {v(Q+8*t+4,4)}, {v(O+16*t,16)}")
        for t in range(4):
            tilemax(O+16*t, T0, T1); A(f"v_max3_f32 v{M[t]}, v{M[t]}, v{T0}, v{T1}")
        A(f"s_add_u32 s{sU}, s{sU}, 4096\ns_cmp_lt_u32 s{sU}, {16*4096}\ns_cbranch_scc1 P2_MAXLOOP")
        A(f"s_barrier\nv_and_b32 v{T3}, 31, v1\nv_lshlrev_b32 v{T3}, 4, v{T3}")
        for t in range(4):
            A(f"v_mov_b32 v{T2}, v{M[t]}\nv_permlane32_swap_b32 v{M[t]}, v{T2}\nv_max_f32 v{M[t]}, v{M[t]}, v{T2}")
            A(f"s_add_u32 s{sT}, s{SW}, {t}\ns_and_b32 s{sT}, s{sT}, 3\ns_lshl_b32 s{sT}, s{sT}, 9\ns_add_u32 s{sT}, s{sT}, {RBUF}\ns_lshl_b32 s{sU}, s{SW}, 2\ns_add_u32 s{sU}, s{sU}, s{sT}")
            A(f"v_add_u32 v{K0+t}, s{sT}, v{T3}\nv_add_u32 v{T2}, s{sU}, v{T3}\nds_write_b32 v{T2}, v{M[t]}")
        A("s_waitcnt lgkmcnt(0)\ns_barrier")
        for t in range(4): A(f"ds_read_b128 {v(O+4*t,4)}, v{K0+t}")
        for n in range(4):
            for ln in kvload(n): A(ln)
        A("s_waitcnt vmcnt(0) lgkmcnt(0)\ns_barrier")
        for t in range(4):
            A(f"v_max3_f32 v{M[t]}, v{O+4*t}, v{O+4*t+1}, v{O+4*t+2}\nv_max_f32 v{M[t]}, v{M[t]}, v{O+4*t+3}")
            set_qpad(Q+8*t, M[t], T0, T1, T2)
        A(qk(0, 0)); A(qk(0, 1))
        A("s_branch P2_MAIN")
    return fallback

def p3():
    A("; ---- A waves, P3: output projection + residual + LayerNorms")
    EP = env("EP", 0)
    D1, D2, TF = 96, 112, 80 if EP else 176
    ofr = (lambda ks: 16 + 4*(ks & 15)) if EP else (lambda ks: 16 + 4*ks if ks < 20 else 128 + 4*(ks - 20))
    T0, T1, T2, T3 = 8, 9, 4, 5
    if NKV > 4: ident3(); A("s_waitcnt vmcnt(2)")
    A(f"{MFMA} {v(D1,16)}, {v(XR,4)}, {v(IR3,4)}, 0\n{MFMA} {v(D2,16)}, {v(IR3,4)}, {v(XR,4)}, 0")
    A(f"{MFMA} {v(D1,16)}, {v(XR+4,4)}, {v(IR3+4,4)}, {v(D1,16)}\n{MFMA} {v(D2,16)}, {v(IR3+4,4)}, {v(XR+4,4)}, {v(D2,16)}")
    for sl in range(1, 4):
        A(f"s_xor_b32 s{sU}, s{SW}, {sl}\ns_mul_i32 s{sU}, s{sU}, 12288\ns_add_u32 s{sU}, s{sU}, {RBUF}\nv_add_u32 v{VRW[sl]}, s{sU}, v{VL}")
    A(f"s_barrier\ns_cmp_lt_u32 s{sC3}, 14\ns_cbranch_scc0 P3_END")
    vm.q = []; lg.q = []
    so = Stream("SO", 8, lambda g: [(ofr(4*g+k), VO3[k >> 1], (k & 1)*1024) for k in range(4)],
                lambda g: A(f"s_add_u32 s{sT}, s{sRT3}, {g << 18}\ns_and_b32 s{sT}, s{sT}, 0x1fffff"), T0, 1, VP3, T1, None, None if env("GT3", 0) else 0)
    NPRE = env("NPRE", 4)
    if env("LOC3", 1):
        A(f"s_lshr_b32 s{sT}, s{sR3}, 2\ns_lshl_b32 s{sT}, s{sT}, 8\ns_add_u32 s{sT}, s{sT}, {F4}\nv_min_u32 v6, 13, v1\nv_lshlrev_b32 v6, 4, v6\nbuffer_load_dwordx4 {v(192,4)}, v6, {R(RWS)}, s{sT} offen sc1")
    stamp("p3pre")
    for m in range(NPRE): so.issue(m)
    stamp("p3gate")
    LAG = env("LAG", 8)
    tf = lambda ks: TF + 4*(ks & 3) if ks < 32 - LAG else 192 + 4*(ks - 32 + LAG)
    def wread(ks):
        n, p = ks >> 1, ks & 1
        for half in range(2):
            A(f"ds_read_b64_tr_b16 {v(tf(ks)+2*half,2)}, v{VWO} offset:{(n>>2)*12288 + (n&3)*2048 + (16*p+8*half)*64}"); lg.issue(f"w{ks}")
    wread(0); wread(1)
    A("v_and_b32 v6, 31, v1\nv_lshlrev_b32 v6, 4, v6\nv_lshrrev_b32 v7, 5, v1\nv_mul_u32_u24 v7, 3584, v7\nv_add_u32 v6, v6, v7")
    so.check1(0); so.check2(0)
    if env("LOC3", 1):
        A(f"s_getreg_b32 s{sV}, hwreg(HW_REG_XCC_ID, 0, 4)\nv_xor_b32 v192, s{sV}, v192\nv_xor_b32 v193, s{sTAG}, v193\nv_xor_b32 v194, s{sV}, v194\nv_xor_b32 v195, s{sTAG+1}, v195")
        A(f"v_or3_b32 v192, v192, v193, v194\nv_or_b32 v192, v192, v195\nv_cmp_ne_u32 vcc, 0, v192\ns_or_b32 s{sE}, vcc_lo, vcc_hi")
    for ks in range(32):
        lg.wait(f"w{ks}")
        if ks in (0, 16): stamp(f"p3_{ks}")
        o, wv = v(ofr(ks), 4), v(tf(ks), 4)
        A(f"{MFMA} {v(D2,16)}, {wv}, {o}, {v(D2,16)}")
        if ks + 2 < 32 - LAG: wread(ks + 2)
        if 32 - 2*LAG - 2 <= ks < 32 - LAG - 2: wread(ks + LAG + 2)
        if ks < 32 - LAG: A(f"{MFMA} {v(D1,16)}, {o}, {wv}, {v(D1,16)}")
        if ks % 4 < 2:
            for k in range(2): so.issue_part(NPRE + ks//4, 2*(ks % 4) + k)
        if ks % 4 == 2: so.check1(ks//4 + 1)
        if ks % 4 == 3: so.check2(ks//4 + 1)
    stamp("p3mm")
    G = 16
    A(f"s_lshl_b32 s{sB}, s{sR3}, 13\ns_add_u32 s{sB}, s{sB}, {WS_ST}\ns_lshl_b32 s{sT}, s{sC3}, 9\ns_add_u32 s{sT}, s{sT}, s{sB}")
    A(f"v_mov_b32 v{G+1}, s{sTAG}\nv_mov_b32 v{G+3}, s{sTAG+1}")
    A(f"v_pk_add_f32 v[20:21], {v(D2,2)}, {v(D2+2,2)}\nv_pk_mul_f32 v[22:23], {v(D2,2)}, {v(D2,2)}\nv_pk_fma_f32 v[22:23], {v(D2+2,2)}, {v(D2+2,2)}, v[22:23]")
    for r in range(4, 16, 2): A(f"v_pk_add_f32 v[20:21], v[20:21], {v(D2+r,2)}\nv_pk_fma_f32 v[22:23], {v(D2+r,2)}, {v(D2+r,2)}, v[22:23]")
    A(f"v_add_f32 v{G}, v20, v21\nv_add_f32 v{G+2}, v22, v23")
    A(f"v_mov_b32 v20, v{G}\nv_mov_b32 v22, v{G+2}\nv_permlane32_swap_b32 v{G}, v20\nv_permlane32_swap_b32 v{G+2}, v22\nv_add_f32 v{G}, v{G}, v20\nv_add_f32 v{G+2}, v{G+2}, v22")
    set_exec(0xFFFFFFFF)
    if env("LOC3", 1):
        A(f"s_cmp_lg_u32 s{sE}, 0\ns_cbranch_scc1 P3_FAR\nbuffer_store_dwordx4 {v(G,4)}, v{VL}, {R(RWS)}, s{sT} offen\nP3_FARX:\ns_mov_b64 exec, -1")
        handlers.append(lambda: A(f"P3_FAR:\nbuffer_store_dwordx4 {v(G,4)}, v{VL}, {R(RWS)}, s{sT} offen sc1\ns_branch P3_FARX"))
    else: A(f"buffer_store_dwordx4 {v(G,4)}, v{VL}, {R(RWS)}, s{sT} offen sc1\ns_mov_b64 exec, -1")
    GR = 32
    def gl():
        for k in range(7): A(f"buffer_load_dwordx4 {v(GR+4*k,4)}, v6, {R(RWS)}, s{sB} offen offset:{k*512} sc1")
    for r in range(8): A(f"v_cvt_pk_bf16_f32 v{24+r}, v{D2+2*r}, v{D2+2*r+1}")
    A(f"s_mul_i32 s{sT}, s{sR3}, 14\ns_add_u32 s{sT}, s{sT}, s{sC3}\ns_lshl_b32 s{sT}, s{sT}, 11\ns_add_u32 s{sT}, s{sT}, {WS_HF}")
    if env("S3W", 0): A("s_waitcnt vmcnt(0)")
    stamp("s3pre")
    for ks in range(32 - LAG, 32): A(f"{MFMA} {v(D1,16)}, {v(ofr(ks),4)}, {v(tf(ks),4)}, {v(D1,16)}")
    gl()
    for p in range(2): A(f"buffer_store_dwordx4 {v(24+4*p,4)}, v{VL}, {R(RWS)}, s{sT} offen offset:{p*1024} sc1")
    A("s_waitcnt vmcnt(2)")
    tagcheck([GR+4*k for k in range(7)], T1, T2, T3)
    A("s_cbranch_vccnz P3_GH\nP3_GX:")
    def gh():
        A(f"P3_GH:\ns_mov_b32 s{sTO}, 0x40000\nP3_GL:"); gl()
        A(f"s_sub_u32 s{sTO}, s{sTO}, 1\ns_waitcnt vmcnt(0)\ns_cbranch_scc1 P3_GX")
        tagcheck([GR+4*k for k in range(7)], T1, T2, T3)
        A("s_cbranch_vccnz P3_GL\ns_branch P3_GX")
    handlers.append(gh)
    vm.q = []
    stamp("s3")
    for k in range(1, 7): A(f"v_add_f32 v{GR}, v{GR}, v{GR+4*k}\nv_add_f32 v{GR+2}, v{GR+2}, v{GR+4*k+2}")
    m, q = GR, GR+2
    A(f"v_mov_b32 v{T0}, v{m}\nv_mov_b32 v{T1}, v{q}\nv_permlane32_swap_b32 v{m}, v{T0}\nv_permlane32_swap_b32 v{q}, v{T1}\nv_add_f32 v{m}, v{m}, v{T0}\nv_add_f32 v{q}, v{q}, v{T1}")
    A(f"v_mul_f32 v{m}, {fl(1.0/D)}, v{m}\nv_mul_f32 v{q}, {fl(1.0/D)}, v{q}\nv_fma_f32 v{q}, -v{m}, v{m}, v{q}\nv_max_f32 v{q}, 0, v{q}")
    A(f"v_add_f32 v{T0}, {fl(EPS)}, v{q}\nv_mul_f32 v{T0}, {fl(EPS)}, v{T0}\nv_add_f32 v{q}, v{q}, v{T0}\nv_rsq_f32 v{q}, v{q}\ns_add_u32 s{sT}, s{sRBW}, 8192\nv_mul_f32 v{m}, v{m}, v{q}")
    A(f"v_cndmask_b32 v{T0}, v{q}, v{m}, s[{sHI}:{sHI+1}]\nv_lshl_add_u32 v{T1}, v1, 2, s{sT}\nds_write_b32 v{T1}, v{T0}")
    A(f"v_lshrrev_b32 v{T2}, 5, v1\nv_lshl_add_u32 v{T2}, v{T2}, 4, s{sT}")
    for g in range(4): A(f"ds_read_b128 {v(64+4*g,4)}, v{T2} offset:{g*32}\nds_read_b128 {v(80+4*g,4)}, v{T2} offset:{128+g*32}")
    A(f"s_lshl_b32 s{sT}, s{sC3}, 17\ns_lshl_b32 s{sU}, s{sR3}, 11\ns_add_u32 s{sT}, s{sT}, s{sU}\ns_add_u32 s{sT}, s{sT}, {WS_HH}")
    for p in range(2):
        A(f"s_waitcnt lgkmcnt({4 - 4*p})")
        for r in range(8*p, 8*p+8, 2): A(f"v_pk_fma_f32 {v(D1+r,2)}, {v(D1+r,2)}, {v(64+r,2)}, {v(80+r,2)} neg_lo:[0,0,1] neg_hi:[0,0,1]")
        for r in range(4*p, 4*p+4): A(f"v_cvt_pk_bf16_f32 v{16+r}, v{D1+2*r}, v{D1+2*r+1}")
        A(f"v_or_b32 v{19+4*p}, 0x10000, v{19+4*p}")
        if p == 0: A("s_waitcnt vmcnt(0)")
        A(f"buffer_store_dwordx4 {v(16+4*p,4)}, v{VL}, {R(RWS)}, s{sT} offen offset:{p*1024} sc1")
    stamp("hhst")
    if STAMP and env("ACK", 0): A("s_waitcnt vmcnt(0)"); stamp("hhack")
    stamp_flush()
    A("P3_END:")
    preread()
    A("s_waitcnt lgkmcnt(0)\ns_barrier")
    if env("X1B", 1): A("s_barrier")
    vm.q = []; lg.q = []

ACC, RING, TMP = 16, 48, 96
def wread_step(r, m, slot, tag=None):
    for ti in range(2):
        for half in range(2):
            A(f"ds_read_b64_tr_b16 {v(r.W + 8*m + ti*4 + half*2, 2)}, v{r.VRD[ti]} offset:{slot*2048 + half*1024}")
            if tag is not None: lg.issue(tag)
def unswap(r): A(f"s_and_b32 s{sT}, s{SW}, 1\ns_lshl_b32 s{sT}, s{sT}, 5\nv_xor_b32 v{r.VRD[0]}, s{sT}, v{r.VRD[0]}\nv_xor_b32 v{r.VRD[1]}, s{sT}, v{r.VRD[1]}")
def preread():
    for n in range(RA.c4): wread_step(RA, n, n)
    unswap(RA)
def w2soff(n): A(f"s_add_u32 s{sA}, s{sGC}, {n*1024}\ns_sub_u32 s{sB}, s{sA}, {28*1024}\ns_min_u32 s{sA}, s{sA}, s{sB}\ns_lshl_b32 s{sA}, s{sA}, 6")
def w2dma(r, m):
    w2soff(r.n5 + m)
    A(f"s_add_u32 m0, s{sW2W}, {r.slots[m % len(r.slots)]*2048}")
    for j in range(2): A(f"buffer_load_dwordx4 v{r.VT2[j]}, {R(RW2)}, s{sA} offen offset:{j*1024} lds"); vm.issue(("d", m))
def w2read(r, m):
    vm.wait(("d", m)); wread_step(r, m, r.slots[m % len(r.slots)], ("r", m))

def mlp(r, VDR=None, VDW=None):
    isA = r is RA
    N, L = r.n, len(r.slots)
    BR, B2R, VO, IR, HR = 6, 10, 12, 224, 228
    G4, G5 = r.c4 // 4, r.c5 // 4
    dreg = lambda t, k: RING + (t % 3)*16 + 4*k
    def pw(q, j):
        if isA: return f"ds_write_b128 v{VRW[0]}, {v(ACC+8*q+4*j,4)} offset:{(q-1)*2048 + j*1024}"
        return f"ds_write_b128 v{VDR if q < 3 else VDW}, {v(ACC+8*q+4*j,4)} offset:{(6144 + q*2048 if q < 3 else 13*2048) + j*1024}"
    def add(d, a_, b_, pk):
        if pk:
            for k in range(0, 4, 2): A(f"v_pk_add_f32 {v(d+k,2)}, {v(a_+k,2)}, {v(b_+k,2)}")
        else:
            for k in range(4): A(f"v_add_f32 v{d+k}, v{a_+k}, v{b_+k}")
    OWN = 232
    def gather(pk, wide, mid=None):
        src = lambda j: [(VRW[q], (q-1)*2048 + j*1024) for q in range(1, 4)] + [(VRW[q], 6144 + q*2048 + j*1024) for q in range(3)] + [(VX3, j*1024)]
        base = [TMP, ACC if wide else TMP]
        def rd(j):
            for k, (va, off) in enumerate(src(j)): A(f"ds_read_b128 {v(base[j]+4*k,4)}, v{va} offset:{off}")
        def sm(j):
            b, o = base[j], OWN + 4*j
            add(b, b, b+4, pk); add(b+8, b+8, b+12, pk); add(b+16, b+16, b+20, pk); add(o, o, b+24, pk)
            add(b, b, b+8, pk); add(o, o, b+16, pk); add(o, o, b, pk)
        if wide:
            rd(0); rd(1)
            if mid: mid()
            A("s_waitcnt lgkmcnt(7)"); sm(0); A("s_waitcnt lgkmcnt(0)"); sm(1)
        else:
            for j in range(2): rd(j); A("s_waitcnt lgkmcnt(0)"); sm(j)
    def p5setup():
        A(f"v_and_b32 v6, 31, v1\nv_lshrrev_b32 v7, 5, v1\nv_mul_u32_u24 v{VO}, 896, v6\nv_lshl_add_u32 v{VO}, v7, 4, v{VO}\ns_lshr_b32 s{sA}, s{SW}, 1\ns_lshl_b32 s{sB}, s{sST}, 1\ns_add_u32 s{sA}, s{sA}, s{sB}")
        A(f"s_mul_i32 s{sE}, s{sA}, {32*896}\ns_lshl_b32 s{sB}, s{sDT5}, 7\ns_add_u32 s{sE}, s{sE}, s{sB}\ns_and_b32 s{sB}, s{SW}, 1\ns_lshl_b32 s{sB}, s{sB}, 5\ns_add_u32 s{sE}, s{sE}, s{sB}")
        A(f"s_lshl_b32 s{sA}, s{sA}, 6\nv_lshlrev_b32 v8, 1, v6\nbuffer_load_ushort v{B2R}, v8, {R(RB2)}, s{sA} offen\nv_lshlrev_b32 v7, 2, v7\nv_sub_u32 v6, v6, v7")
        for k in range(4):
            d0 = 8*(k >> 1) + 2*(k & 1)
            A(f"v_cmp_eq_u32 s[{sA}:{sA+1}], {d0}, v6\nv_cmp_eq_u32 s[{sC}:{sC+1}], {d0+1}, v6\nv_cndmask_b32 v{IR+k}, 0, v{VONE}, s[{sA}:{sA+1}]\nv_cndmask_b32 v{IR+k}, v{IR+k}, v{VONE+1}, s[{sC}:{sC+1}]")
    mk5 = lambda nm: Stream(nm + N, 2*G5, lambda g: [(dreg(2*G4 + g, k), r.VG, k*1024) for k in range(4)],
                lambda g: A(f"s_add_u32 s{sT}, s{sGC}, {(r.n5 + (g % G5)*4)*1024}\ns_sub_u32 s{sU}, s{sT}, {28*1024}\ns_min_u32 s{sT}, s{sT}, s{sU}" + (f"\ns_add_u32 s{sT}, s{sT}, {112*1024}" if g >= G5 else "")),
                r.T0, 1, r.VP5, r.T1, lambda g: (1 << 2*G5) - 1, G5)
    NP5 = min(3, G5)
    DB0 = env("DB0", 4)
    R2E, NE3 = env("R2E", 0), max(0, r.c5 - 2*L)
    A(f"; ---- P4 + P5 ({N} waves)")
    A(f"s_cmp_lg_u32 s{sACT4}, 0\ns_cbranch_scc1 P4_GO{N}\ns_cmp_ge_u32 s{sJ}, 28\ns_cbranch_scc1 MLP_END{N}")
    q0 = list(vm.q); lg.q = []
    A("s_waitcnt lgkmcnt(0)\ns_barrier")
    if not isA and env("DL", 0) == 2:
        for m in range(1, 7): w2dma(r, m)
    for m in range(L): w2read(r, m)
    lg.wait_all()
    for m in range(L, min(2*L, r.c5)): w2dma(r, m)
    if R2E and NE3:
        for m in range(L, L + NE3): w2read(r, m)
        lg.wait_all()
        for m in range(2*L, r.c5): w2dma(r, m)
    si = mk5("SI")
    if isA: p5setup()
    for g in range(G5): si.gate(g)
    si.gated = 0
    for g in range(NP5): si.issue(g)
    ER = {2: env("ER2", 2), 3: env("ER3", -1)}
    RL = env("RL", 1)
    if isA and ER[2] >= 0: A("s_barrier")
    A(f"s_branch P5_IN{N}\nP4_GO{N}:")
    vm.q = q0; lg.q = []
    sg = mk5("SG"); sg.gated = 0
    A(f"s_mov_b32 s{sV}, 0x10000")
    if isA:
        A(f"s_lshl_b32 s{sA}, s{sFO}, 5\nv_lshrrev_b32 v{r.T0}, 5, v1\nv_lshlrev_b32 v{r.T0}, 3, v{r.T0}")
        for g in range(2): A(f"buffer_load_dwordx2 {v(BR+2*g,2)}, v{r.T0}, {R(RB1)}, s{sA} offen offset:{g*16}")
        if env("ACKW", 0): A("s_waitcnt vmcnt(0)")
    sh = Stream("SH" + N, 2*G4, lambda g: [(dreg(g, k), r.VH, k*1024) for k in range(4)],
                lambda g: A(f"s_add_u32 s{sT}, s{sRO}, {(r.n4 + (g % G4)*4)*1024}\ns_and_b32 s{sT}, s{sT}, 0x7fff" + (f"\ns_bitset1_b32 s{sT}, 17" if g >= G4 else "")),
                r.T0, f"s{sV}", r.VP4, r.T1, lambda g: (1 << 2*G4) - 1, G4 if env("GT4", 2) else 0)
    if env("GT4", 2) == 2: A(f"s_cmp_lt_u32 s{sC3}, 14\ns_cselect_b32 s{sMISS}, 0, s{sMISS}")
    seq = [(sh, g) for g in range(2*G4)] + [(sg, g) for g in range(2*G5)]
    first = [0, G4, 2*G4, 2*G4 + G5, len(seq)]
    RA5 = env("RA5", 2)
    late = {2} if RA5 == 1 else ({2} | ({3} if isA else set()) if RA5 == 2 else {2, 3})
    issued = set()
    stamp("p4pre" + N)
    for g in range(3): sh.issue(g); issued.add(g)
    sh.check1(0); sh.check2(0)
    c1 = -2.0*math.sqrt(2.0/math.pi)*math.log2(math.e); c2 = c1*0.044715
    def compute(H):
        ph, hf = H >> 1, H & 1
        ns = (r.c4, r.c5)[ph]
        nm = f"p{4+ph}"
        if H == 2: A(f"P5_IN{N}:")
        if H in late: seq[first[H]][0].check1(seq[first[H]][1]); seq[first[H]][0].check2(seq[first[H]][1])
        if ph and isA:
            A(f"buffer_load_dwordx4 {v(HR,4)}, v{VL}, {R(RWS)}, s{sHFO} offen offset:{hf*2048} sc1"); vm.issue("h")
        if H == 2 and isA:
            for m in range(L, r.c5): wread_step(r, m, r.slots[m % L], ("r", m))
        stamp(f"{nm}first{hf}" + N)
        for t in range(first[H], first[H+1]):
            n0 = 4*(t - first[H])
            stamp(f"t{N}{t}")
            tail = not isA and t == first[H+1] - 1
            head = not isA and t == first[H] and H > 0 and H not in late
            order = [(k, ti) for ti in (1, 0) for k in range(4)] if (tail or head) else [(k, ti) for k in range(4) for ti in (0, 1)]
            nxt = t + 2
            can = nxt < len(seq) and nxt not in issued and not (nxt >= first[H+1] and H + 1 in late)
            for sl, (k, ti) in enumerate(order):
                n = n0 + k
                if not isA and H > 0 and (t, sl) == ((first[2] - 2, 0) if H == 1 else ((first[H] + ER[H], 0) if ER[H] >= 0 else (first[H+1] - 1, 4))): A("s_barrier")
                if H == 2: lg.wait(("r", n))
                if head and sl == 4: A("s_waitcnt lgkmcnt(0)\ns_barrier"); lg.q = []
                acc = v(ACC + 16*ti, 16); w_, d_ = v(r.W + 8*n + 4*ti, 4), v(dreg(t, k), 4)
                A(f"{MFMA} {acc}, {d_ if ph else w_}, {w_ if ph else d_}, {'0' if n == 0 else acc}")
                if head and sl < 4: A(pw(sl >> 1, sl & 1))
                if tail and sl >= 4: A(pw(2 + ((sl - 4) >> 1), sl & 1))
                if can and sl < 4: seq[nxt][0].issue_part(seq[nxt][1], sl)
                if t + 1 < len(seq) and not (t + 1 == first[H+1] and H + 1 in late):
                    if sl == 5: seq[t+1][0].check1(seq[t+1][1])
                    if sl == 6: seq[t+1][0].check2(seq[t+1][1])
                done = (ti == 0) if (tail or head) else (ti == 1)
                if H == 1 and done:
                    if n < L: w2read(r, n)
                    if not isA and DB0 <= n < DB0 + L: lg.wait(("r", n - DB0)); w2dma(r, n - DB0 + L)
                    if not isA and R2E:
                        if R2E <= n < R2E + NE3: w2read(r, n - R2E + L)
                        if R2E + 1 <= n < R2E + 1 + NE3: lg.wait(("r", n - R2E - 1 + L)); w2dma(r, n - R2E - 1 + 2*L)
                if H == 0 and not isA and done and env("DL", 0) == 2 and n % 3 == 2 and n < 18: w2dma(r, 1 + n // 3)
                if H == 2 and not isA and done:
                    if L + (NE3 if R2E else 0) <= n + 4 < 2*L: w2read(r, n + 4)
                    if not R2E and 2*L <= n + 10 < r.c5: lg.wait(("r", n + 3)); w2dma(r, n + 10)
                    if 2*L <= n + 4 < r.c5: w2read(r, n + 4)
            if can: issued.add(nxt)
        if ph and isA:
            vm.wait("h")
            A(f"{MFMA} {v(ACC,16)}, {v(IR,4)}, {v(HR,4)}, {v(ACC,16)}")
        stamp(f"{nm}mm{hf}" + N)
    def late_issue(H):
        for t in range(first[H], min(first[H] + 3, first[H+1])): seq[t][0].issue(seq[t][1]); issued.add(t)
    def partials(H):
        if (H == 1 and env("RA4", 1)) or (H > 1 and ER[H] < 0): A("s_barrier")
        for q in (2, 3, 1):
            for j in range(2): A(pw(q, j))
        if H < 2:
            for j in range(4): A(f"v_lshlrev_b32 v{TMP}, 16, v{BR+j}\nv_and_b32 v{TMP+1}, 0xffff0000, v{BR+j}\nv_add_f32 v{OWN+2*j}, v{ACC+2*j}, v{TMP}\nv_add_f32 v{OWN+2*j+1}, v{ACC+2*j+1}, v{TMP+1}")
        else:
            if H == 2: A(f"v_lshlrev_b32 v{B2R}, 16, v{B2R}")
            for k in range(8): A(f"v_add_f32 v{OWN+k}, v{ACC+k}, v{B2R}")
    def epilogue(H):
        ph, hf = H >> 1, H & 1
        A("s_waitcnt lgkmcnt(0)\ns_barrier"); lg.q = []
        stamp(f"red{4+ph}{hf}")
        LI = env("LI", 2) if H == 1 else 0
        if (H == 1 or (H == 2 and not RA5)) and LI == 0: late_issue(H + 1)
        if env("PRIO", 1): A("s_setprio 2")
        gather(H == 3, H & 1 or (H == 2 and not RA5) or (H == 0 and not env("RA4", 1)), (lambda: seq[first[2]][0].issue(0)) if H == 1 and LI == 2 else None)
        if ph == 0:
            A(f"s_mov_b32 s{sA}, {fl(c2)}\nv_mov_b32 v{TMP}, {fl(c1)}")
            E = TMP + 8
            for k in range(8): A(f"v_mul_f32 v{E+k}, v{OWN+k}, v{OWN+k}")
            for k in range(8): A(f"v_fma_f32 v{E+k}, v{E+k}, s{sA}, v{TMP}")
            for k in range(8): A(f"v_mul_f32 v{E+k}, v{E+k}, v{OWN+k}")
            for k in range(8): A(f"v_exp_f32 v{E+k}, v{E+k}")
            for k in range(8): A(f"v_add_f32 v{E+k}, 1.0, v{E+k}")
            for k in range(8): A(f"v_rcp_f32 v{E+k}, v{E+k}")
            for k in range(8): A(f"v_mul_f32 v{OWN+k}, v{OWN+k}, v{E+k}")
        for k in range(4): A(f"v_cvt_pk_bf16_f32 v{TMP+4+k}, v{OWN+2*k}, v{OWN+2*k+1}")
        if ph == 0:
            A(f"v_or_b32 v{TMP+7}, 1, v{TMP+7}\nbuffer_store_dwordx4 {v(TMP+4,4)}, v{VL}, {R(RWS)}, s{sGST} offen sc1\ns_add_u32 s{sGST}, s{sGST}, {112*1024}")
        else:
            A(f"v_permlane32_swap_b32 v{TMP+4}, v{TMP+6}\nv_permlane32_swap_b32 v{TMP+5}, v{TMP+7}\nbuffer_store_dwordx4 {v(TMP+4,4)}, v{VO}, {R(ROUT)}, s{sE} offen offset:{hf*64}" + [os.environ.get("OF0", " sc1"), os.environ.get("OF1", "")][hf])
        stamp(("gst", "outst")[ph] + str(hf))
        if (H == 1 or (H == 2 and not RA5)) and LI == 1: late_issue(H + 1)
        if H == 1 and LI == 2:
            for t in range(first[2], first[2] + NP5):
                if t > first[2]: seq[t][0].issue(seq[t][1])
                issued.add(t)
        if H in (1, 2) and ER[H+1] >= 0: A("s_barrier")
        stamp_flush()
    if isA:
        if env("PRIO", 1): A("s_setprio 2")
        compute(0); partials(0); stamp_flush()
        RA4 = env("RA4", 1)
        if not RA4: epilogue(0); A("s_barrier")
        elif env("PRIO", 1): A("s_setprio 0")
        compute(1)
        if env("DA", 1) == 1:
            lg.wait_all()
            for m in range(L, r.c5): w2dma(r, m)
        if RA4: epilogue(0)
        partials(1); p5setup()
        if env("LI", 2) == 3: late_issue(2)
        if env("DA", 1) == 0:
            for m in range(L, r.c5): w2dma(r, m)
        epilogue(1)
        compute(2)
        if RA5:
            if RA5 == 2: late_issue(3)
            partials(2); stamp_flush()
            if env("PRIO", 1): A("s_setprio 0")
            compute(3); epilogue(2); partials(3); epilogue(3)
        else:
            partials(2); epilogue(2); compute(3); partials(3); epilogue(3)
    else:
        if env("PRIO", 1): A("s_setprio 1")
        for H in range(4):
            compute(H)
            if H == 3 or H + 1 in late:
                for q in range(2):
                    for j in range(2): A(pw(q, j))
                if H == 2: late_issue(H + 1)
                A("s_waitcnt lgkmcnt(0)\ns_barrier"); lg.q = []
                if H == 1:
                    if env("G2", 0):
                        sg.gated = G5; A(f"s_mov_b32 s{sMISS}, {(1 << 2*G5) - 1}")
                    late_issue(H + 1); sg.gated = 0
            stamp_flush()
    A(f"MLP_END{N}:")

def finish():
    A(f"s_or_b32 s{sT}, s2, s{SW}\ns_cbranch_scc1 K_FIN\nv_mov_b32 v4, 0\nv_mov_b32 v5, 0\ns_mov_b64 exec, 1\nbuffer_store_dwordx2 v[4:5], v4, {R(RDBG)}, 0 offen sc1\ns_mov_b64 exec, -1")
    A("K_FIN:")
    if os.environ.get("DIAGAT"):
        A(f"DSP:\ns_memrealtime s[{sA}:{sA+1}]\ns_waitcnt lgkmcnt(0)\ns_sub_u32 s{sA}, s{sA}, s72\ns_cmp_lt_u32 s{sA}, 4000\ns_cbranch_scc1 DSP")
    if STAMP:
        A("s_waitcnt vmcnt(0)"); stamp("end"); A(f"s_memrealtime s[{sA}:{sA+1}]"); stamp_flush()
        A(f"v_writelane_b32 v{VST}, s72, 62\nv_writelane_b32 v{VST}, s{sA}, 63")
        A(f"s_lshl_b32 s{sT}, s2, 3\ns_add_u32 s{sT}, s{sT}, s{sW8}\ns_lshl_b32 s{sT}, s{sT}, 8\ns_add_u32 s{sT}, s{sT}, {WS_STAMP}\nv_lshlrev_b32 v4, 2, v1\nbuffer_store_dword v{VST}, v4, {R(RWS)}, s{sT} offen")
    A("K_END:\ns_endpgm")

def bprog():
    NT = env("NT", 0); nt = " nt" if NT else ""
    nt1 = " nt" if env("NT1", 0) else ""
    VXD = [16, 17, 18, 19]; VXE = [20, 21]; VWD = list(range(22, 29))
    sWO, sXO, sM, sWM = sA, sB, sC, sD_
    sXP, sWP = [sW1, sW1S, sW1E], [sW2, sW2S, sW2E]
    A("; ---- B waves, P1: LDS-DMA of x and wqkv, statistics for the A waves"); A("B_P1:"); vm.q = []; lg.q = []
    p1_common()
    A(f"s_mul_i32 s{sXO}, s{sE}, {32*896}\ns_lshl_b32 s{sWM}, s{SW}, 10")
    A("v_lshrrev_b32 v4, 3, v1\nv_mul_u32_u24 v6, 896, v4\nv_lshrrev_b32 v4, 4, v1\nv_and_b32 v5, 7, v1\nv_xor_b32 v5, v5, v4")
    for j in range(4): A(f"v_xor_b32 v7, {4*(j&1)}, v5\nv_lshl_add_u32 v7, v7, 4, v6\nv_add_u32 v{VXD[j]}, {j*8*896 - j*1024}, v7")
    A(f"s_lshr_b32 s{sT}, s{sJ}, 2\ns_and_b32 s{sU}, s{sJ}, 3\ns_add_u32 s{sT}, s{sT}, s{sU}\ns_mul_i32 s{sU}, s{sT}, 11\ns_lshr_b32 s{sU}, s{sU}, 5\ns_mul_i32 s{sU}, s{sU}, 3\ns_sub_u32 s{sT}, s{sT}, s{sU}")
    if not env("P1ROT", 1): A(f"s_mov_b32 s{sT}, 0")
    for p in range(3):
        A(f"s_lshl_b32 s{sU}, s{sT}, 8\ns_add_u32 s{sXP[p]}, s{sXO}, s{sU}\ns_mul_i32 s{sU}, s{sT}, {128*2688}\ns_add_u32 s{sWP[p]}, s{sWO}, s{sU}")
        if p < 2: A(f"s_add_u32 s{sT}, s{sT}, 1\ns_cmp_eq_u32 s{sT}, 3\ns_cselect_b32 s{sT}, 0, s{sT}")
    def xpiece(p):
        A(f"s_add_u32 m0, s{sM}, {XBUF[p]}\ns_add_u32 s{sV}, s{sXP[p >> 1] if p < 6 else sXO}, {(p & 1)*128 if p < 6 else 768}")
        for j in range(4): A(f"buffer_load_dwordx4 v{VXD[j]}, {R(RX)}, s{sV} offen offset:{j*1024} lds"); vm.issue(f"x{p}")
    def wdma(j):
        g = j // 7
        if g == 3 and j == 21: A(f"s_add_u32 s{sT}, s{sWO}, {3*128*2688}")
        A(f"s_add_u32 m0, s{sWM}, {j*4096}\nbuffer_load_dwordx4 v{VWD[j%7]}, {R(RWQ)}, s{sWP[g] if g < 3 else sT} offen{nt1} lds"); vm.issue(("w", j))
    A("s_waitcnt lgkmcnt(0)")
    xpiece(0)
    for j in range(7):
        A(f"v_add_u32 v4, {256*j}, v0\nv_mul_u32_u24 v5, 4682, v4\nv_lshrrev_b32 v5, 16, v5\nv_mul_u32_u24 v6, 14, v5\nv_sub_u32 v4, v4, v6")
        A(f"v_and_b32 v6, 0xf8, v5\nv_and_b32 v7, 1, v5\nv_lshl_add_u32 v6, v7, 2, v6\nv_bfe_u32 v7, v5, 1, 2\nv_add_u32 v6, v6, v7\nv_mul_u32_u24 v6, 2688, v6\nv_lshl_add_u32 v{VWD[j]}, v4, 4, v6")
        wdma(j)
        if j == 3: xpiece(1)
    xpiece(2)
    prologue2()
    A("v_and_b32 v10, 31, v1\nv_lshlrev_b32 v10, 4, v10\nv_min_u32 v5, 55, v1\nv_lshlrev_b32 v5, 4, v5\nv_add_u32 v6, 10752, v5\nv_add_u32 v7, 21504, v5\nv_add_u32 v8, 32256, v5\nv_mov_b32 v9, 0")
    def gload():
        A(f"buffer_load_dwordx4 v[32:35], v10, {R(RWS)}, s{sU} offen sc1")
        for kq in range(4): A(f"buffer_load_dwordx4 {v(36+4*kq,4)}, v{5+kq}, {R(RWS)}, s7 offen sc1")
    def gpre():
        A(f"s_waitcnt lgkmcnt(0)\ns_lshl_b32 s{sU}, s{sE}, 9\ns_add_u32 s{sU}, s{sU}, {WS_RST}\ns_lshl_b32 s7, s{sWO}, 2\ns_add_u32 s7, s7, {WS_CSG}")
        A(f"buffer_load_dwordx2 v[30:31], v9, {R(RDBG)}, 0 offen sc1"); gload()
        for _ in range(6): vm.issue("g")
    WU = [(0, 4), (4, 7), (7, 11), (11, 14), (14, 18), (18, 21), (21, 24)]
    P1A = env("P1A", 4)
    for j in range(7, 7 + P1A): wdma(j)
    GS = env("GS", 0)
    for b in range(6 - GS):
        vm.wait(("w", WU[b][1] - 1)); A("s_barrier")
        if b == 0:
            for j in range(7 + P1A, 11): wdma(j)
        if GS and b == 3: gpre()
        if b + 3 < 7:
            xpiece(b + 3)
            for j in range(*WU[b + 3]): wdma(j)
        if not GS and b == env("GB", 4): gpre()
        if b == 4: wdma(24)
    A("s_setprio 2"); vm.wait("g")
    get_tag(30, "B_T")
    A(f"s_mov_b32 s{sTO}, 0x40000\ns_branch B_GC\nB_GL:"); gload()
    A(f"s_sub_u32 s{sTO}, s{sTO}, 1\ns_waitcnt vmcnt(0)\ns_cbranch_scc1 B_GX\nB_GC:")
    tagcheck([32, 36, 40, 44, 48], 11, 12, 13)
    A("s_cbranch_vccnz B_GL\nB_GX:")
    if GS: A("s_barrier")
    QS = DH ** -0.5 * math.log2(math.e)
    A("v_add_f32 v36, v36, v40\nv_add_f32 v44, v44, v48\nv_add_f32 v38, v38, v42\nv_add_f32 v46, v46, v50\nv_add_f32 v36, v36, v44\nv_add_f32 v37, v38, v46")
    A(f"s_cmp_eq_u32 s{sSEC}, 0\ns_cselect_b32 s{sV}, {fl(QS)}, 1.0\nv_cndmask_b32 v6, v34, v32, s[{sHI}:{sHI+1}]\nv_mul_f32 v6, s{sV}, v6")
    A(f"v_lshl_add_u32 v4, v1, 3, s{sWM}\nds_write_b64 v4, v[36:37]\nv_lshl_add_u32 v4, v1, 2, s{sWM}\nds_write_b32 v4, v6 offset:512")
    A("s_setprio 0\ns_waitcnt vmcnt(0) lgkmcnt(0)\ns_barrier\ns_branch B_P2")

def bprog2():
    NT = env("NT", 0); nt = " nt" if NT else ""
    A("; ---- B waves: weight prefetch during attention, then their share of P4/P5"); A("B_P2:"); vm.q = []
    if STAMP: A("v_mov_b32 v15, -1\nB_P2S:"); st["v"] = 15
    roles(touch=False)
    r = RB
    WOR, W2T = 16, 48
    VT1, VTO, VDW, VDR = [4, 5], [8, 9], 10, 11
    w2_addr(r, 12, 13)
    A(f"v_lshrrev_b32 v12, 3, v1\nv_mul_u32_u24 v12, 3584, v12\nv_add_u32 v{VT1[0]}, v12, v13\nv_add_u32 v{VT1[1]}, {8*3584 - 1024}, v{VT1[0]}")
    A(f"v_lshrrev_b32 v12, 2, v1\nv_mul_u32_u24 v12, 896, v12\nv_and_b32 v13, 3, v1\nv_lshl_add_u32 v{VTO[0]}, v13, 4, v12\nv_add_u32 v{VTO[1]}, {16*896}, v{VTO[0]}")
    A(f"v_add_u32 v{VDW}, s{sW2W}, v{VL}\nv_add_u32 v{VDR}, s{sRBW}, v{VL}")
    tr_lane_addr(12, 13, 128, 4)
    A(f"s_and_b32 s{sT}, s{SW}, 1\ns_lshl_b32 s{sT}, s{sT}, 5\nv_xor_b32 v12, s{sT}, v12\nv_add_u32 v12, s{sW2W}, v12\nv_bfe_u32 v13, v1, 3, 1\ns_lshr_b32 s{sT}, s{SW}, 1\nv_xor_b32 v13, s{sT}, v13")
    A(f"v_lshl_add_u32 v{r.VRD[0]}, v13, 6, v12\nv_xor_b32 v13, 1, v13\nv_lshl_add_u32 v{r.VRD[1]}, v13, 6, v12")
    A(f"s_mul_i32 s{sW1S}, s{SW}, {512*3584}\ns_lshl_b32 s{sT}, s{sFT}, 7\ns_add_u32 s{sW1S}, s{sW1S}, s{sT}\ns_add_u32 s{sW1E}, s{sW1S}, {512*3584}")
    A(f"s_lshr_b32 s{sT}, s{sRO}, 10\ns_add_u32 s{sT}, s{sT}, {r.n4}\ns_and_b32 s{sT}, s{sT}, 31\ns_mul_i32 s{sT}, s{sT}, {16*3584}\ns_add_u32 s{sW1}, s{sW1S}, s{sT}")
    TH = [env("BTH", 2)]
    A(f"s_and_b32 s{sT}, s{sC3}, 7\ns_lshl_b32 s{sT}, s{sT}, 1\ns_lshl_b32 s{sD_}, s{SW}, 2\ns_add_u32 s{sD_}, s{sD_}, s{sT}\ns_min_u32 s{sC}, s{sC3}, 13\ns_lshl_b32 s{sC}, s{sC}, 6")
    A(f"s_cmp_ge_u32 s{sJ}, 24\ns_cbranch_scc1 B_NOKV\ns_barrier\nB_NOKV:")
    A(f"s_add_u32 s{sT}, s{SW}, 1\ns_and_b32 s{sT}, s{sT}, 3\ns_mul_i32 s{sT}, s{sT}, 12288\ns_add_u32 s{sT}, s{sT}, {RBUF + 3072}\nv_add_u32 v14, s{sT}, v{VL}")
    A(f"v_mov_b32 v12, 0\nds_write_b32 v14, v12\ns_waitcnt lgkmcnt(0)")
    if env("WARMH", 0):
        A("s_mov_b64 exec, 0")
        for q in range(3): A(f"s_cmp_eq_u32 s{SW}, {q}\ns_cbranch_scc1 WQ{q}")
        A("s_branch WQ3\nWH_RET:\ns_mov_b64 exec, -1")
    vm.q = []
    NPQ = env("NPQ", 0)
    if NPQ: TH[0] = env("BTH0", 4)
    sPOS = sE
    todo = []
    def throttle():
        A(f"s_waitcnt vmcnt({TH[0]})"); vm.q = vm.q[-TH[0]:]
        while todo and ("s", todo[0]) not in vm.q:
            m = todo.pop(0); wread_step(r, m, m % 14)
    def rawitem(m):
        w2soff(m)
        for j in range(2): A(f"buffer_load_dwordx4 {v(W2T+8*m+4*j,4)}, v{r.VT2[j]}, {R(RW2)}, s{sA} offen offset:{j*1024}{' nt' if env('NTR', 0) else ''}")
    for k in range(32):
        if k == NPQ:
            stamp("b_pre")
            A("s_barrier")
            stamp("b_go"); TH[0] = env("BTH0", env("BTH", 3))
            A(f"s_cmp_ge_u32 s{sJ}, 24\ns_cbranch_scc1 B_NOFP\ns_setprio 3")
            xid_store("B_NOX", 248)
            A(f"s_cmp_lg_u32 s{SW}, 0\ns_cbranch_scc1 B_NOFP\nv_mov_b32 v248, s{sTAG}\nv_mov_b32 v249, s{sTAG+1}\ns_mov_b64 exec, 1\nbuffer_store_dwordx2 v[248:249], v12, {R(RWS)}, s{sF[1]} offen sc1\ns_mov_b64 exec, -1\nB_NOFP:\ns_setprio 0")
            A(f"buffer_load_dwordx2 v[{W2T}:{W2T+1}], v12, {R(RDBG)}, 0 offen sc1"); vm.issue("tag")
        if env("IDL", 1) and k in (0, 13, 15, 17, 19, 20): A(f"s_cmp_eq_u32 s{sACT4}, 0\ns_cbranch_scc1 B_I{k}")
        slot = k % 14 if k < 20 else (k - 20 + 6) % 12
        if k == 20: A(f"s_add_u32 s{sW1}, s{sW1}, {6*16*3584}\ns_cmp_ge_u32 s{sW1}, s{sW1E}\ns_cselect_b32 s{sT}, {512*3584}, 0\ns_sub_u32 s{sW1}, s{sW1}, s{sT}")
        if k == 26: A(f"s_lshr_b32 s{sT}, s{sRO}, 10\ns_mul_i32 s{sT}, s{sT}, {16*3584}\ns_add_u32 s{sW1}, s{sW1S}, s{sT}")
        if k >= 14:
            assert not [m for m in todo if m % 14 == slot]
            A("s_waitcnt lgkmcnt(0)")
        A(f"s_add_u32 m0, s{sW2W}, {slot*2048}")
        for j in range(2): A(f"buffer_load_dwordx4 v{VT1[j]}, {R(RW1)}, s{sW1} offen offset:{j*1024}{' nt' if k < env('NTK', 0) else ''} lds"); vm.issue(("s", k))
        if k < 20: todo.append(k)
        A(f"s_add_u32 s{sW1}, s{sW1}, {16*3584}\ns_cmp_eq_u32 s{sW1}, s{sW1E}\ns_cselect_b32 s{sW1}, s{sW1S}, s{sW1}")
        throttle()
        if env("IDL", 1) and k in (12, 14, 16, 18, 19, 31):
            k0 = {12: 0, 14: 13, 16: 15, 18: 17, 19: 19, 31: 20}[k]
            def idle(k0=k0):
                A(f"B_I{k0}:")
                if k0 == 0:
                    A(f"s_mov_b32 s{sTO}, 0x40000\nB_WF:\nds_read_b32 v13, v14\ns_sub_u32 s{sTO}, s{sTO}, 1\ns_waitcnt lgkmcnt(0)\ns_cbranch_scc1 B_WFX\ns_setprio 3\nv_cmp_ne_u32 vcc, 0, v13\ns_setprio 0\ns_cbranch_vccnz B_WFX\ns_sleep 8\ns_branch B_WF\nB_WFX:")
                A(f"s_branch B_J{k0}")
            handlers.append(idle)
            A(f"B_J{k0}:")
        if k in (12, 14, 16, 18):
            q = (k - 12) // 2
            A(f"s_add_u32 s{sT}, s{sD_}, {q}\ns_and_b32 s{sT}, s{sT}, 15\ns_mul_i32 s{sT}, s{sT}, {28*896}\ns_add_u32 s{sT}, s{sT}, s{sC}")
            for j in range(2): A(f"buffer_load_dwordx4 {v(WOR+8*q+4*j,4)}, v{VTO[j]}, {R(RWO)}, s{sT} offen"); vm.issue("wo")
            throttle()
        if k == 19:
            A(f"s_setprio 3\nv_readfirstlane_b32 s{sTAG}, v{W2T}\nv_readfirstlane_b32 s{sTAG+1}, v{W2T+1}\nv_lshlrev_b32 v12, 3, v1\ns_mul_i32 s{sV}, s{SW}, 384\ns_add_u32 s{sV}, s{sV}, {F2}")
            poll(12, sV, 48, 8); A("v_lshlrev_b32 v12, 7, v1\ns_setprio 0")
        if env("W2C", 0) and k in (14, 20):
            A(f"s_lshl_b32 s{sA}, s2, 2\ns_add_u32 s{sA}, s{sA}, s{SW}\ns_mul_i32 s{sA}, s{sA}, {56*128}")
            set_exec(((1 << 28) - 1) << (28*(k == 20))); A(f"buffer_load_dword v8, v12, {R(RW2)}, s{sA} offen\ns_mov_b64 exec, -1"); vm.issue("t")
        if k == env("CT2", 22):
            A(f"s_setprio 3\ns_getpc_b64 s[{sA}:{sA+1}]\nCODE_R2:\ns_sub_u32 s{sA}, s{sA}, CODE_R2-P2_TAIL\ns_subb_u32 s{sA+1}, s{sA+1}, 0\ns_lshl_b32 s{sT}, s{sJ}, 2\ns_add_u32 s{sT}, s{sT}, s{SW}\ns_lshl_b32 s{sT}, s{sT}, 9")
            A(f"v_lshl_add_u32 v13, v1, 7, s{sT}\nv_min_u32 v13, CODE_END-P2_TAIL-4, v13\nv_mov_b32 v9, s{sA+1}\nv_add_co_u32 v8, vcc, s{sA}, v13\nv_addc_co_u32 v9, vcc, 0, v9, vcc\ns_setprio 0")
            A("s_mov_b64 exec, 15\nglobal_load_dword v8, v[8:9], off\ns_mov_b64 exec, -1"); vm.issue("t")
        if k == env("BSW0", 7): TH[0] = env("BTH", 3)
        if k == env("BSW", 20): TH[0] = env("BTH2", 10)
        if k in (13, 31): stamp(f"b_{k}")
    assert not todo
    if env("SK5", 1): A(f"s_mov_b32 s{sPOS}, 6\ns_cmp_ge_u32 s{sJ}, 28\ns_cbranch_scc1 B_CUT")
    w2dma(r, 0)
    for m in range(6):
        A(f"ds_read_b32 v13, v14\ns_mov_b32 s{sPOS}, {m}\ns_waitcnt vmcnt({TH[0]}) lgkmcnt(0)\ns_setprio 3\nv_cmp_lt_u32 vcc, 0xffff, v13\ns_setprio 0\ns_cbranch_vccnz B_CUT")
        rawitem(m)
    A(f"s_mov_b32 s{sPOS}, 6")
    if env("W2T", 0):
        A(f"s_setprio 3\ns_lshr_b32 s{sT}, s{sGC}, 6\ns_add_u32 s{sT}, s{sT}, 96\nv_add_u32 v12, s{sT}, v1\nv_subrev_u32 v13, 448, v12\nv_min_u32 v12, v12, v13\nv_lshlrev_b32 v12, 12, v12\ns_setprio 0")
        A(f"s_mul_i32 s{sT}, s{SW}, {448*4096}\ns_lshl_b32 s{sU}, s{sST}, 7\ns_add_u32 s{sT}, s{sT}, s{sU}\nbuffer_load_dword v14, v12, {R(RW2)}, s{sT} offen")
    A("B_CUT:")
    stamp("b_done"); stamp_flush()
    if STAMP: A(f"v_writelane_b32 v15, s{sPOS}, 60")
    A(f"s_setprio 3\nv_min_u32 v12, 5, v1\nv_lshlrev_b32 v12, 12, v12\nv_add_u32 v12, {RBUF + 3*1024 + 32*16 + 4}, v12\ns_setprio 0")
    A(f"B_RED:\ns_barrier\nds_read_b32 v13, v12\ns_waitcnt lgkmcnt(0)\nv_cmp_ne_u32 vcc, 0, v13")
    A(f"s_cbranch_vccz B_OK\ns_cmp_lg_u32 s{sRETRY}, 0\ns_cbranch_scc1 B_OK\ns_mov_b32 s{sRETRY}, -1\ns_barrier\ns_barrier\ns_barrier\ns_branch B_RED\nB_OK:")
    A("s_waitcnt vmcnt(0)\ns_barrier")
    for k in range(8): A(f"ds_write_b128 v{VDR}, {v(WOR+4*k,4)} offset:{k*1024}")
    for m in range(6):
        A(f"s_cmp_gt_u32 s{sPOS}, {m}\ns_cbranch_scc1 B_SK{m}"); rawitem(m); A(f"B_SK{m}:")
    A("s_waitcnt lgkmcnt(0)\ns_barrier")
    unswap(r); mlp_addr(r, 12, 13, False)
    A("s_waitcnt vmcnt(0)")
    if not env("EP", 0): A("s_barrier")
    vm.q = []
    DL = env("DL", 0)
    if env("SK5", 1): A(f"s_cmp_ge_u32 s{sJ}, 28\ns_cbranch_scc1 B_ND")
    for m in range(6):
        for j in range(2): A(f"ds_write_b128 v{VDW}, {v(W2T+8*m+4*j,4)} offset:{m*2048 + j*1024}")
        if DL == 0: w2dma(r, m + 1)
    A("B_ND:\ns_waitcnt lgkmcnt(0)")
    if env("X1B", 1): A("s_barrier")
    if DL == 1:
        for m in range(1, 7): w2dma(r, m)
    mlp(r, VDR, VDW)
    if STAMP: A(f"v_mov_b32 v{VST}, v15"); del st["v"]
    A("s_branch K_FIN")


DOC = """;
"""
def main(out):
    prologue()
    pend0 = list(st["pend"])
    bprog()
    st["pend"] = list(pend0); p1_helper()
    st["pend"] = list(pend0); p1(); fb = p2(); p3(); vm.q = []; mlp(RA); finish()
    st["pend"] = list(pend0); bprog2(); fb()
    for i, h in enumerate(handlers):
        per = -(-len(handlers) // 4)
        if env("WARMH", 0):
            if i % per == 0: A(f"WQ{i // per}:")
            A(f"WH{i}:\ns_cbranch_execz " + (f"WH{i+1}" if (i + 1) % per and i + 1 < len(handlers) else "WH_RET"))
        h()
    A("CODE_END:")
    head = open("head.txt").read()
    nv = 256
    txt = head + f"; @launch grid=(256,1,1) block=(512,1,1) lds={LDS_TOTAL}\n" + DOC + '.amdgcn_target "amdgcn-amd-amdhsa--gfx950"\n.text\n' + kernel_header(NAME) + A.text() + '.section .rodata,"a"\n' + kernel_desc(NAME, nv, 102, 256)
    open(out, "w").write(txt)
    if STAMP: open(out + ".names", "w").write(" ".join(st["names"].keys()))

if __name__ == "__main__":
    main(sys.argv[1])
```

```python
import sys, struct, math, os
from asmlib import *

S, D, H, DH, F = 2048, 448, 16, 28, 1792
MB = 1 << 20
WS_Q, WS_KV, WS_O, WS_HF, WS_HH, WS_G, WS_ST, WS_FL, WS_STAMP = 0, 2*MB, 6*MB, 8*MB, 10*MB, 12*MB, 14*MB, 14*MB + 512*1024, 15*MB
F1, F2, F4, F5 = WS_FL, WS_FL + 131072, WS_FL + 2*131072, WS_FL + 3*131072
WS_RST, WS_CSG = 13*MB + 768*1024, 13*MB + 832*1024
WS_SIZE = 16*MB
WS_O = WS_HH = WS_Q
WS_G = WS_KV
EPS = 1e-5
STAMP = os.environ.get("STAMP", "0") == "1"
def env(n, d): return int(os.environ.get(n, str(d)))
def f2u(x): return struct.unpack("<I", struct.pack("<f", x))[0]
def hx(x): return f"0x{x & 0xffffffff:08x}"
def fl(x): return hx(f2u(x))
MFMA = "v_mfma_f32_32x32x16_bf16"
NAME = "sequential_preLN__mha_block__mixer_token_mlp__prompt_kernel"

class Cnt:
    def __init__(self, A, name, mx):
        self.A, self.name, self.mx, self.q = A, name, mx, []
    def issue(self, tag): self.q.append(tag)
    def wait(self, tag):
        idx = [i for i, t in enumerate(self.q) if t == tag]
        if not idx: return
        n = len(self.q) - 1 - idx[-1]
        self.A(f"s_waitcnt {self.name}({min(n, self.mx)})")
        self.q = self.q[idx[-1] + 1:]
    def wait_all(self):
        self.A(f"s_waitcnt {self.name}(0)"); self.q = []

RX, RWQ, RWO, RW1, RB1, RW2, RB2, ROUT, RDBG, RWS = 8, 12, 16, 20, 24, 28, 32, 36, 40, 44
def R(r): return f"s[{r}:{r+3}]"
SW, sH, sI, sJ, sFT, sDT4, sST, sDT5, sACT4, sTO, sTAG = 48, 49, 50, 51, 52, 53, 54, 55, 56, 57, 58
sHI, sONES = 60, 62
sT, sU, sV, sA, sB, sC, sD_, sE, sRETRY = 63, 64, 65, 66, 67, 68, 69, 70, 71
sF = [4, 5, 6, 7]
sSEC, sHQ, sW8 = 3, 92, 93
sMISS = 6
sC3, sR3 = 0, 1
sRBW, sW2W = 94, 95
sW2, sW2S, sW2E, sW1, sW1S, sW1E = 96, 97, 98, 99, 100, 101
VL, VST = 2, 255
W2A, RBUF, LDS_TOTAL = 0, 114688, 163840

A = Asm(); vm = Cnt(A, "vmcnt", 63); lg = Cnt(A, "lgkmcnt", 15)
st = {"pend": [], "names": {}}
def stamp(name):
    if os.environ.get("DIAGAT") == name or (os.environ.get("DIAGAT") and name == "start"): A("s_memrealtime s[72:73]")
    if not STAMP: return
    import re
    if name != "start" and not re.match(os.environ.get("STF", "^[^t]"), name): return
    k = len(st["pend"]); assert k < 9, name
    n = st["names"].setdefault(name, len(st["names"]))
    A(f"{'s_memtime' if env('CYC', 0) else 's_memrealtime'} s[{74+2*k}:{75+2*k}]"); st["pend"].append(n)
def stamp_flush():
    if not STAMP or not st["pend"]: return
    A("s_waitcnt lgkmcnt(0)")
    for k, n in enumerate(st["pend"]): A(f"v_writelane_b32 v{st.get('v', VST)}, s{74+2*k}, {n}")
    st["pend"] = []

def set_exec(mask): A(f"s_mov_b32 exec_lo, {hx(mask)}\ns_mov_b32 exec_hi, {hx(mask >> 32)}")
def halfsum(x, t): A(f"v_mov_b32 v{t}, v{x}\nv_permlane32_swap_b32 v{x}, v{t}\nv_add_f32 v{x}, v{x}, v{t}")
def flag_store(soff_reg, t=4):
    A(f"v_mov_b32 v{t}, s{sTAG}\nv_mov_b32 v{t+1}, s{sTAG+1}\nv_mov_b32 v{t+2}, 0\ns_mov_b64 exec, 1")
    A(f"buffer_store_dwordx2 {v(t,2)}, v{t+2}, {R(RWS)}, s{soff_reg} offen sc1\ns_mov_b64 exec, -1"); vm.issue("flag")
def poll(voff, soff_reg, nl, t):
    L = A.label("POLL")
    set_exec((1 << nl) - 1)
    A(f"s_mov_b32 s{sTO}, 0x40000\n{L}:")
    A(f"buffer_load_dwordx2 {v(t,2)}, v{voff}, {R(RWS)}, s{soff_reg} offen sc1\ns_sub_u32 s{sTO}, s{sTO}, 1\ns_waitcnt vmcnt(0)")
    A(f"s_cbranch_scc1 {L}_x\nv_cmp_ne_u64 vcc, s[{sTAG}:{sTAG+1}], {v(t,2)}\ns_and_b64 exec, exec, vcc\n" + (f"s_cbranch_scc0 {L}_x\ns_sleep {env('PSL', 0)}\ns_branch {L}" if env("PSL", 0) else f"s_cbranch_scc1 {L}") + f"\n{L}_x:\ns_mov_b64 exec, -1")
    vm.q = []
def tr_lane_addr(dst, t, pitch, hs, rs=1):
    A(f"v_lshrrev_b32 v{dst}, 5, v1\nv_mul_u32_u24 v{dst}, {hs*pitch}, v{dst}\nv_bfe_u32 v{t}, v1, 2, 2\nv_mul_u32_u24 v{t}, {rs*pitch}, v{t}\nv_add_u32 v{dst}, v{dst}, v{t}")
    A(f"v_bfe_u32 v{t}, v1, 4, 1\nv_lshl_add_u32 v{dst}, v{t}, 5, v{dst}\nv_and_b32 v{t}, 3, v1\nv_lshl_add_u32 v{dst}, v{t}, 3, v{dst}")
def get_tag(TAGV, lab):
    A(f"v_readfirstlane_b32 s{sTAG}, v{TAGV}\nv_readfirstlane_b32 s{sTAG+1}, v{TAGV+1}")
    A(f"s_or_b32 s{sTO}, s{sTAG}, s{sTAG+1}\ns_cbranch_scc1 {lab}_ok\ns_mov_b32 s{sTO}, 0x40000\nv_mov_b32 v4, 0\n{lab}_l:")
    A(f"buffer_load_dwordx2 {v(TAGV,2)}, v4, {R(RDBG)}, 0 offen sc1\ns_sub_u32 s{sTO}, s{sTO}, 1\ns_waitcnt vmcnt(0)\ns_cbranch_scc1 {lab}_ok")
    A(f"v_readfirstlane_b32 s{sTAG}, v{TAGV}\nv_readfirstlane_b32 s{sTAG+1}, v{TAGV+1}\ns_cmp_eq_u64 s[{sTAG}:{sTAG+1}], 0\ns_cbranch_scc1 {lab}_l\n{lab}_ok:")
def tagcheck(regs, T1, T2, T3):
    A(f"v_xor_b32 v{T1}, s{sTAG}, v{regs[0]+1}\nv_xor_b32 v{T2}, s{sTAG+1}, v{regs[0]+3}\nv_or_b32 v{T1}, v{T1}, v{T2}")
    for g in regs[1:]: A(f"v_xor_b32 v{T2}, s{sTAG}, v{g+1}\nv_xor_b32 v{T3}, s{sTAG+1}, v{g+3}\nv_or3_b32 v{T1}, v{T1}, v{T2}, v{T3}")
    A(f"v_cmp_ne_u32 vcc, 0, v{T1}")
def rot4(d):
    A(f"s_bfe_u32 s{d}, s2, 0x20001\ns_mul_i32 s{d}, s{d}, 7\ns_sub_u32 s{d}, s{sFT}, s{d}\ns_add_u32 s{d}, s{d}, s{sDT4}\ns_add_u32 s{d}, s{d}, s{sDT4}")
    A(f"s_and_b32 s{sTO}, s2, 1\ns_mul_i32 s{sTO}, s{sTO}, 3\ns_add_u32 s{d}, s{d}, s{sTO}\ns_and_b32 s{d}, s{d}, 7\ns_lshl_b32 s{d}, s{d}, 2")
def rot5(d):
    A(f"s_and_b32 s{sTO}, s2, 1\ns_lshl_b32 s{sTO}, s{sTO}, 1\ns_lshl_b32 s{d}, s{sDT5}, 1\ns_add_u32 s{d}, s{d}, s{sTO}\ns_and_b32 s{sTO}, s{sST}, 7\ns_add_u32 s{d}, s{d}, s{sTO}")
    A(f"s_mul_i32 s{sTO}, s{d}, 37\ns_lshr_b32 s{sTO}, s{sTO}, 8\ns_mul_i32 s{sTO}, s{sTO}, 7\ns_sub_u32 s{d}, s{d}, s{sTO}\ns_lshl_b32 s{d}, s{d}, 2")

handlers = []
class Stream:
    def __init__(self, name, ng, loads, soff, T, bit, VP, TP, pm=None, gated=None):
        self.name, self.ng, self.loads, self.soff, self.T, self.last, self.bit = name, ng, loads, soff, T, -1, bit
        self.VP, self.TP, self.pm, self.gated = VP, TP, pm or (lambda g: 0xffffffff), ng if gated is None else gated
        A(f"s_mov_b32 s{sMISS}, {hx((1 << 2*ng) - 1)}")
    def gate(self, g):
        if g >= self.gated: return
        L = f"{self.name}g{g}"
        A(f"s_and_b32 s{sT}, s{sMISS}, {hx(3 << 2*g)}\ns_cbranch_scc1 {L}_h\n{L}_r:")
        def h():
            A(f"{L}_h:\ns_mov_b32 s{sTO}, 0x40000\ns_mov_b32 exec_hi, 0\n{L}_l:\ns_and_b32 exec_lo, s{sMISS}, {hx(self.pm(g))}")
            A(f"buffer_load_dword v{self.TP}, v{self.VP}, {R(RWS)}, 0 offen sc1\ns_sub_u32 s{sTO}, s{sTO}, 1\ns_waitcnt vmcnt(0)\ns_cbranch_scc1 {L}_x")
            A(f"v_and_b32 v{self.TP}, {self.bit}, v{self.TP}\nv_cmp_ne_u32 vcc, 0, v{self.TP}\ns_andn2_b32 s{sMISS}, s{sMISS}, vcc_lo\ns_and_b32 s{sT}, s{sMISS}, {hx(3 << 2*g)}\ns_cbranch_scc1 {L}_l")
            A(f"{L}_x:\ns_mov_b64 exec, -1\ns_branch {L}_r")
        handlers.append(h)
    def _emit(self, g, track):
        self.soff(g)
        for reg, va, off in self.loads(g):
            A(f"buffer_load_dwordx4 {v(reg,4)}, v{va}, {R(RWS)}, s{sT} offen offset:{off} sc1")
            if track: vm.issue((self.name, g))
    def issue(self, g):
        if g < self.ng: self.gate(g); self._emit(g, True); self.last = g
    def issue_part(self, g, k):
        if g >= self.ng: return
        if k == 0: self.gate(g); self.soff(g)
        reg, va, off = self.loads(g)[k]
        A(f"buffer_load_dwordx4 {v(reg,4)}, v{va}, {R(RWS)}, s{sT} offen offset:{off} sc1"); vm.issue((self.name, g))
        self.last = g
    def _red(self, g):
        r = [x[0] + 3 for x in self.loads(g)]
        A(f"v_bitop3_b32 v{self.T}, v{r[0]}, v{r[1]}, v{r[2]} bitop3:0x80\nv_bitop3_b32 v{self.T}, v{self.T}, v{r[3]}, {self.bit} bitop3:0x80")
    def check1(self, g):
        if g < self.ng: vm.wait((self.name, g)); self._red(g)
    def check2(self, g):
        if g >= self.ng: return
        L = f"{self.name}{g}"
        A(f"v_cmp_eq_u32 vcc, 0, v{self.T}\ns_cbranch_vccnz {L}_h\n{L}_r:")
        last = self.last
        later = list(range(g + 1, last + 1)) if env("RFR", 0) and vm.q == [(self.name, k) for k in range(g + 1, last + 1) for _ in range(4)] else []
        def h():
            A(f"{L}_h:\ns_mov_b32 s{sTO}, 0x40000\n{L}_l:")
            self._emit(g, False)
            A(f"s_sub_u32 s{sTO}, s{sTO}, 1\ns_waitcnt vmcnt(0)\ns_cbranch_scc1 {L}_r")
            self._red(g)
            A(f"v_cmp_eq_u32 vcc, 0, v{self.T}\ns_cbranch_vccnz {L}_l")
            for k in later:
                self._red(k); A(f"v_cmp_eq_u32 vcc, 0, v{self.T}\ns_cbranch_vccnz {L}_f{k}")
            A(f"s_branch {L}_r")
            for k in later:
                A(f"{L}_f{k}:"); self._emit(k, False)
            if later: A(f"s_branch {L}_r")
        handlers.append(h)

def prologue():
    if STAMP: A(f"s_memrealtime s[72:73]\nv_mov_b32 v{VST}, -1")
    stamp("start")
    A(f"s_load_dwordx2 s[{RX}:{RX+1}], s[0:1], 0\ns_load_dwordx2 s[{RWQ}:{RWQ+1}], s[0:1], 8")
    A("s_cmp_ge_u32 s2, 256\ns_cbranch_scc1 K_END")
    A(f"v_and_b32 v1, 63, v0\nv_lshrrev_b32 v3, 6, v0\nv_lshlrev_b32 v{VL}, 4, v1\nv_readfirstlane_b32 s{sW8}, v3\nv_and_b32 v0, 255, v0")
    for r, sz in ((RX, S*D*2), (RWQ, D*3*D*2)): A(f"s_mov_b32 s{r+2}, {sz}\ns_mov_b32 s{r+3}, 0x20000")
    A(f"s_and_b32 s{SW}, s{sW8}, 3\ns_lshr_b32 s{sJ}, s2, 3\ns_bfe_u32 s{sT}, s2, 0x20001\ns_and_b32 s{sU}, s2, 1")
    A(f"s_lshl_b32 s{sI}, s{sT}, 2\ns_and_b32 s{sV}, s{sJ}, 3\ns_add_u32 s{sI}, s{sI}, s{sV}")
    A(f"s_lshr_b32 s{sSEC}, s{sJ}, 3\ns_bfe_u32 s{sHQ}, s{sJ}, 0x10002\ns_lshl_b32 s{sV}, s{sU}, 1\ns_add_u32 s{sHQ}, s{sHQ}, s{sV}")
    A(f"s_cmp_ge_u32 s{sJ}, 24\ns_cbranch_scc1 P1_HELP\ns_cmp_lt_u32 s{sW8}, 4\ns_cbranch_scc1 A_P1")

def prologue2():
    for r, off in ((RWS, 80), (RDBG, 72), (RWO, 16), (RW1, 32), (RB1, 40), (RW2, 48), (RB2, 56), (ROUT, 64)):
        A(f"s_load_dwordx2 s[{r}:{r+1}], s[0:1], {off}")
    A(f"s_memrealtime s[{sTAG}:{sTAG+1}]")
    for r, sz in ((RWS, WS_SIZE), (RDBG, 256), (RWO, D*D*2), (RW1, S*F*2), (RB1, F*2), (RW2, S*F*2), (RB2, S*2), (ROUT, S*D*2)):
        A(f"s_mov_b32 s{r+2}, {sz}\ns_mov_b32 s{r+3}, 0x20000")
    A(f"s_mov_b32 s{sHI}, 0\ns_mov_b32 s{sHI+1}, -1\ns_mov_b32 s{sONES}, 0x3f803f80\ns_mov_b32 s{sRETRY}, 0")
    A(f"s_mul_i32 s{sRBW}, s{SW}, 12288\ns_add_u32 s{sRBW}, s{sRBW}, {RBUF}\ns_mul_i32 s{sW2W}, s{SW}, 28672")

def roles(touch=True):
    A(f"s_bfe_u32 s{sT}, s2, 0x20001\ns_and_b32 s{sU}, s2, 1")
    pass
    A(f"s_sub_u32 s{sV}, 25, s{sU}\ns_cmp_lt_u32 s{sJ}, s{sV}\ns_cselect_b32 s{sACT4}, 1, 0\ns_cselect_b32 s{sV}, s{sJ}, 0")
    A(f"s_mul_i32 s{sFT}, s{sU}, 25\ns_add_u32 s{sV}, s{sV}, s{sFT}\ns_mul_i32 s{sDT4}, s{sV}, 9363\ns_lshr_b32 s{sDT4}, s{sDT4}, 16")
    A(f"s_mul_i32 s{sFT}, s{sDT4}, 7\ns_sub_u32 s{sV}, s{sV}, s{sFT}\ns_mul_i32 s{sFT}, s{sT}, 7\ns_add_u32 s{sFT}, s{sV}, s{sFT}")
    A(f"s_cmp_lt_u32 s{sJ}, 28\ns_cselect_b32 s{sV}, s{sJ}, 0\ns_mul_i32 s{sST}, s{sU}, 28\ns_add_u32 s{sV}, s{sV}, s{sST}")
    A(f"s_lshr_b32 s{sDT5}, s{sV}, 3\ns_and_b32 s{sV}, s{sV}, 7\ns_lshl_b32 s{sST}, s{sT}, 3\ns_add_u32 s{sST}, s{sST}, s{sV}")
    A(f"s_lshl_b32 s{sT}, s{sHQ}, 2\ns_add_u32 s{sT}, s{sT}, s{sSEC}\ns_lshl_b32 s{sT}, s{sT}, 4\ns_add_u32 s{sT}, s{sT}, s{sI}\ns_lshl_b32 s{sT}, s{sT}, 7\ns_add_u32 s{sF[0]}, s{sT}, {F1}")
    A(f"s_and_b32 s{sT}, s2, 7\ns_lshl_b32 s{sT}, s{sT}, 1\ns_and_b32 s{sH}, s{sJ}, 1\ns_add_u32 s{sH}, s{sH}, s{sT}\ns_lshr_b32 s{sI}, s{sJ}, 1")
    A(f"s_lshr_b32 s{sR3}, s{sJ}, 4\ns_add_u32 s{sR3}, s{sR3}, s{sT}\ns_lshl_b32 s{sR3}, s{sR3}, 2\ns_add_u32 s{sR3}, s{sR3}, s{SW}\ns_and_b32 s{sC3}, s{sJ}, 15")
    A(f"s_lshl_b32 s{sT}, s2, 3\ns_add_u32 s{sF[1]}, s{sT}, {F2}")
    if not touch: return
    A(f"s_lshl_b32 s{sV}, s{sR3}, 4\ns_add_u32 s{sV}, s{sV}, s{sC3}\ns_lshl_b32 s{sV}, s{sV}, 9\ns_add_u32 s{sV}, s{sV}, {WS_ST}\nv_lshl_add_u32 v4, v1, 7, s{sV}")
    A(f"v_writelane_b32 v4, s{sF[0]}, 4\nv_writelane_b32 v4, s{sF[1]}, 5\ns_mov_b64 exec, {(0x3f if env('STT', 1) else 0x30) & ~(0x10 if env('NF1', 0) else 0)}\nbuffer_load_dword v126, v4, {R(RWS)}, 0 offen sc1\ns_mov_b64 exec, -1")
    vm.issue("touch")

def p1_helper():
    TAGV = 14
    sHX = sA
    A("; ---- helper workgroups: row statistics of x, column sums of wqkv"); A("P1_HELP:")
    vm.q = []
    prologue2()
    A(f"s_and_b32 s{sHX}, s2, 7\ns_lshl_b32 s{sHX}, s{sHX}, 3\ns_add_u32 s{sHX}, s{sHX}, s{sJ}\ns_sub_u32 s{sHX}, s{sHX}, 24")
    A(f"v_lshrrev_b32 v4, 3, v1\nv_and_b32 v5, 7, v1\nv_lshlrev_b32 v5, 4, v5\nv_mov_b32 v7, 0")
    A(f"s_cmp_ge_u32 s{sW8}, 4\ns_cbranch_scc1 H_CS")
    A(f"v_mul_u32_u24 v6, 896, v4\nv_add_u32 v6, v6, v5\ns_lshl_b32 s{sB}, s{sHX}, 2\ns_add_u32 s{sB}, s{sB}, s{SW}\ns_mul_i32 s{sT}, s{sB}, {8*896}\ns_waitcnt lgkmcnt(0)")
    for m in range(7): A(f"buffer_load_dwordx4 {v(16+4*m,4)}, v6, {R(RX)}, s{sT} offen offset:{m*128}")
    A("v_mov_b32 v80, 0\nv_mov_b32 v82, 0\nv_mov_b32 v84, 0\nv_mov_b32 v86, 0\ns_waitcnt vmcnt(0)")
    A(f"buffer_load_dwordx2 {v(TAGV,2)}, v7, {R(RDBG)}, 0 offen sc1")
    for k in range(28): A(f"v_dot2c_f32_bf16 v{80+4*(k&1)}, s{sONES}, v{16+k}\nv_dot2c_f32_bf16 v{82+4*(k&1)}, v{16+k}, v{16+k}")
    A("v_add_f32 v80, v80, v84\nv_add_f32 v82, v82, v86")
    for m in ("quad_perm:[1,0,3,2]", "quad_perm:[2,3,0,1]", "row_half_mirror"):
        for r in (80, 82): A(f"v_add_f32_dpp v{r}, v{r}, v{r} {m} row_mask:0xf bank_mask:0xf")
    A(f"v_mul_f32 v80, {fl(1.0/D)}, v80\nv_mul_f32 v82, {fl(1.0/D)}, v82\nv_fma_f32 v82, -v80, v80, v82\nv_max_f32 v82, 0, v82\nv_add_f32 v82, {fl(EPS)}, v82\nv_rsq_f32 v82, v82")
    A(f"v_lshlrev_b32 v6, 4, v4\nv_mul_f32 v80, v80, v82\nv_sub_f32 v80, 0, v80\ns_waitcnt vmcnt(0)")
    get_tag(TAGV, "H_T1")
    A(f"v_mov_b32 v81, s{sTAG}\nv_mov_b32 v83, s{sTAG+1}\ns_lshl_b32 s{sT}, s{sB}, 7\ns_add_u32 s{sT}, s{sT}, {WS_RST}")
    set_exec(0x0101010101010101)
    A(f"buffer_store_dwordx4 v[80:83], v6, {R(RWS)}, s{sT} offen sc1\ns_mov_b64 exec, -1")
    stamp("h_pub"); stamp_flush()
    A("s_barrier")
    roles()
    addr_setup()
    xid_store("H_NOX", 4)
    A("s_branch P2_START")
    st["pend"] = [0] if STAMP else []
    A(f"H_CS:\ns_lshl_b32 s{sB}, s{SW}, 6\ns_add_u32 s{sB}, s{sB}, s{sHX}\ns_cmp_ge_u32 s{sB}, 84\ns_cbranch_scc1 H_PF")
    A(f"v_mul_u32_u24 v6, 2688, v4\nv_add_u32 v6, v6, v5\ns_and_b32 s{sC}, s{sB}, 3\ns_lshr_b32 s{sD_}, s{sB}, 2\ns_mul_i32 s{sT}, s{sC}, {112*2688}\ns_lshl_b32 s{sU}, s{sD_}, 7\ns_add_u32 s{sT}, s{sT}, s{sU}\ns_waitcnt lgkmcnt(0)")
    for m in range(14): A(f"buffer_load_dwordx4 {v(16+4*m,4)}, v6, {R(RWQ)}, s{sT} offen\ns_add_u32 s{sT}, s{sT}, {8*2688}")
    A(f"s_mov_b32 s{sT}, 0x3f80\ns_mov_b32 s{sU}, 0x3f800000")
    for r in range(80, 88): A(f"v_mov_b32 v{r}, 0")
    for m in range(14):
        if m % 4 == 0: A(f"s_waitcnt vmcnt({max(0, 14 - m - 4)})")
        if m == 12: A(f"buffer_load_dwordx2 {v(TAGV,2)}, v7, {R(RDBG)}, 0 offen sc1")
        for k in range(4): A(f"v_dot2c_f32_bf16 v{80+2*k}, s{sT}, v{16+4*m+k}\nv_dot2c_f32_bf16 v{81+2*k}, s{sU}, v{16+4*m+k}")
    for r in range(80, 88): A(f"v_add_f32_dpp v{r}, v{r}, v{r} row_ror:8 row_mask:0xf bank_mask:0xf")
    for op in ("v_permlane16_swap_b32", "v_permlane32_swap_b32"):
        for r in range(80, 88): A(f"v_mov_b32 v{r+8}, v{r}")
        for r in range(80, 88): A(f"{op} v{r}, v{r+8}")
        for r in range(80, 88): A(f"v_add_f32 v{r}, v{r}, v{r+8}")
    A("v_mov_b32 v88, v80\nv_mov_b32 v90, v81")
    for pi in range(1, 4): A(f"v_cmp_eq_u32 vcc, {pi}, v4\nv_cndmask_b32 v88, v88, v{80+2*pi}, vcc\nv_cndmask_b32 v90, v90, v{81+2*pi}, vcc")
    A(f"v_lshlrev_b32 v6, 2, v5\nv_lshl_add_u32 v6, v4, 4, v6\ns_waitcnt vmcnt(0)")
    get_tag(TAGV, "H_T2")
    A(f"v_mov_b32 v89, s{sTAG}\nv_mov_b32 v91, s{sTAG+1}\ns_mul_i32 s{sT}, s{sC}, 10752\ns_lshl_b32 s{sU}, s{sD_}, 9\ns_add_u32 s{sT}, s{sT}, s{sU}\ns_add_u32 s{sT}, s{sT}, {WS_CSG}")
    set_exec(0xFFFFFFFF)
    A(f"buffer_store_dwordx4 v[88:91], v6, {R(RWS)}, s{sT} offen sc1\ns_mov_b64 exec, -1\ns_barrier\ns_branch B_P2")
    A(f"H_PF:\ns_cmp_lt_u32 s{SW}, 2\ns_cbranch_scc1 H_W")
    sQ = sB
    A(f"s_sub_u32 s{sQ}, s{sJ}, 24\ns_lshl_b32 s{sQ}, s{sQ}, 1\ns_add_u32 s{sQ}, s{sQ}, s{SW}\ns_sub_u32 s{sQ}, s{sQ}, 2")
    A(f"s_getpc_b64 s[{sC}:{sC+1}]\nCODE_REF:\ns_lshl_b32 s{sT}, s{sQ}, 12\nv_lshl_add_u32 v6, v1, 7, s{sT}\nv_min_u32 v6, CODE_END-CODE_REF-4, v6")
    A(f"v_mov_b32 v9, s{sC+1}\nv_add_co_u32 v8, vcc, s{sC}, v6\nv_addc_co_u32 v9, vcc, 0, v9, vcc")
    set_exec(0xFFFFFFFF)
    A("global_load_dword v25, v[8:9], off\ns_mov_b64 exec, -1\ns_waitcnt lgkmcnt(0)\ns_barrier")
    A("v_lshlrev_b32 v6, 7, v1")
    A(f"s_and_b32 s{sT}, s2, 7\ns_lshl_b32 s{sT}, s{sT}, 4\ns_add_u32 s{sT}, s{sT}, s{sQ}\ns_mul_i32 s{sT}, s{sT}, {7*8192}")
    for k in range(env("NP1", 0)): A(f"s_add_u32 s{sU}, s{sT}, {k*8192}\nbuffer_load_dword v{16+k}, v6, {R(RW1)}, s{sU} offen")
    for k in range(env("NP2", 0)): A(f"s_add_u32 s{sU}, s{sT}, {k*8192}\nbuffer_load_dword v{26+k}, v6, {R(RW2)}, s{sU} offen")
    if env("NPX", 0):
        A(f"v_lshrrev_b32 v7, 3, v1\nv_mul_u32_u24 v7, 3584, v7\nv_and_b32 v8, 7, v1\nv_min_u32 v8, 6, v8\nv_lshl_add_u32 v7, v8, 7, v7")
        A(f"s_mul_i32 s{sT}, s{sQ}, {128*3584}\ns_bfe_u32 s{sU}, s2, 0x20001\ns_mul_i32 s{sU}, s{sU}, 896\ns_add_u32 s{sT}, s{sT}, s{sU}")
        for k in range(env("NPX", 0)):
            i = (k * 16) // env("NPX", 0)
            A(f"s_add_u32 s{sU}, s{sT}, {i*8*3584}\nbuffer_load_dword v24, v7, {R(RW1)}, s{sU} offen{os.environ.get('NPF', ' nt')}")
    if env("WOT", 0) == 1:
        A(f"s_mul_i32 s{sT}, s{sQ}, {196*128}")
        set_exec((1 << 49) - 1)
        for k in range(4): A(f"s_add_u32 s{sU}, s{sT}, {k*49*128}\nbuffer_load_dword v24, v6, {R(RWO)}, s{sU} offen")
        A("s_mov_b64 exec, -1")
    if STAMP:
        A("s_waitcnt vmcnt(0)"); stamp("h_touch"); stamp_flush(); A(f"v_mov_b32 v15, v{VST}\ns_branch B_P2S")
    A("s_branch B_P2\nH_W:\ns_waitcnt lgkmcnt(0)\ns_barrier\ns_branch B_P2")

XA = LDS_TOTAL - 65536
XBUF = [4096, 8192, 12288, 0, 4096, 8192, 12288]
def p1_common():
    sWO, sM = sA, sC
    A(f"s_mul_i32 s{sWO}, s{sSEC}, 896\ns_mul_i32 s{sT}, s{sHQ}, 224\ns_add_u32 s{sWO}, s{sWO}, s{sT}")
    A(f"s_lshl_b32 s{sE}, s{sI}, 2\ns_add_u32 s{sE}, s{sE}, s{SW}\ns_lshl_b32 s{sM}, s{SW}, 14\ns_add_u32 s{sM}, s{sM}, {XA}")

def p1():
    ACC, XF, WF = 128, 192, 208
    VXR = list(range(80, 88)); VXS = list(range(88, 92)); VWR = [92, 93]; TAGV = 94
    sM = sC
    A("; ---- A waves, P1: qkv GEMM"); A("A_P1:")
    prologue2()
    A(f"s_and_b32 s7, s{SW}, 1\ns_lshl_b32 s{sM}, s7, 15\ns_add_u32 s{sM}, s{sM}, {XA}\ns_lshl_b32 s7, s7, 1\ns_lshl_b32 s{sT}, s{sI}, 2\ns_add_u32 s7, s7, s{sT}")
    A("v_and_b32 v4, 31, v1\nv_lshrrev_b32 v5, 5, v1")
    A(f"v_bfe_u32 v6, v1, 1, 3\nv_xor_b32 v6, v6, v5\nv_lshlrev_b32 v6, 4, v6\nv_lshl_add_u32 v6, v4, 7, v6\nv_add_u32 v6, s{sM}, v6")
    for k in range(4): A(f"v_xor_b32 v{VXS[k]}, {k<<5}, v6")
    tr_lane_addr(VWR[0], 4, 224, 8, 2)
    A(f"s_lshr_b32 s{sT}, s{SW}, 1\ns_mul_i32 s{sT}, s{sT}, 112\nv_add_u32 v{VWR[0]}, s{sT}, v{VWR[0]}\nv_add_u32 v{VWR[1]}, {14*3584}, v{VWR[0]}")
    A("s_waitcnt lgkmcnt(0)")
    stamp("karg")
    A(f"s_or_b32 s{sT}, s2, s{SW}\ns_cbranch_scc1 P1_NOTAG")
    A(f"s_bitset1_b32 s{sTAG+1}, 31\nv_mov_b32 v8, s{sTAG}\nv_mov_b32 v9, s{sTAG+1}\nv_mov_b32 v10, 0\nv_mov_b32 v11, 0\ns_mov_b64 exec, 1\nbuffer_atomic_cmpswap_x2 v[8:11], v10, {R(RDBG)}, 0 offen sc1\ns_mov_b64 exec, -1\nP1_NOTAG:")
    roles()
    addr_setup()
    stamp_flush()
    A(f"s_and_b32 s{sT}, s{SW}, 1\ns_lshl_b32 s{sT}, s{sT}, 11\ns_lshr_b32 s{sV}, s{SW}, 1\ns_mul_i32 s{sE}, s{sV}, 224")
    A(f"v_lshrrev_b32 v5, 5, v1\nv_lshlrev_b32 v5, 4, v5\nv_and_b32 v6, 31, v1\nv_lshlrev_b32 v4, 2, v6\nv_mov_b32 v9, 0")
    A(f"s_lshl_b32 s{sU}, s{sHQ}, 1\ns_add_u32 s{sU}, s{sU}, s{sV}\ns_lshl_b32 s{sU}, s{sU}, 7\ns_add_u32 s{sU}, s{sU}, s7")
    A(f"s_cmp_eq_u32 s{sSEC}, 2\ns_cbranch_scc1 P1_V")
    for isv in (0, 1):
        vm.q = []; lg.q = []
        if isv: A("P1_V:")
        RS, TM, PK = 112, 64, 96
        if not isv:
            A(f"v_add_u32 v4, s{sT}, v4\nv_add_u32 v5, s{sE}, v5")
            A(f"s_cmp_eq_u32 s{sSEC}, 0\ns_cselect_b32 s{sA}, 0, s{sONES}\ns_cselect_b32 s{sB}, 0, 0x3f80\ns_cselect_b32 s{sC}, {WS_Q}, {WS_KV}")
            A(f"s_add_u32 s{sD_}, s{sSEC}, 11\ns_lshl_b32 s{sU}, s{sU}, s{sD_}\ns_add_u32 s{sU}, s{sU}, s{sC}\ns_lshl_b32 s{sV}, 63, s{sD_}\ns_lshl_b32 s{sD_}, 1, s{sD_}\nv_mov_b32 v7, s{sA}\nv_mov_b32 v8, s{sB}")
            cr = [f"ds_read_b32 v{RS+4*rt+2*k}, v4 offset:{rt*1024 + 512 + 128*k}" for rt in range(2) for k in range(2)] + [f"ds_read_b128 {v(16+16*hd+4*g,4)}, v5 offset:{hd*112 + g*32}" for hd in range(2) for g in range(4)]
        else:
            A(f"v_add_u32 v4, s{sE}, v4\nv_add_u32 v5, s{sT}, v5")
            A(f"s_lshl_b32 s{sU}, s{sU}, 12\ns_add_u32 s{sU}, s{sU}, {WS_KV + 2048}\ns_mov_b32 s{sD_}, 4096\ns_mov_b32 s{sV}, {63*4096}\ns_mov_b32 s{sA}, 0x0fffffff\ns_mov_b32 s{sA+1}, 0x0fffffff")
            A(f"v_cmp_eq_u32 vcc, 28, v6\nv_mov_b32 v7, s{sONES}\nv_cndmask_b32 v8, 0, v7, vcc")
            for r in range(16): A(f"v_mov_b32 v{PK+r}, v8")
            cr = [f"ds_read_b128 {v(16+32*rt+16*k+4*g,4)}, v5 offset:{rt*1024 + 512 + 128*k + g*32}" for rt in range(2) for k in range(2) for g in range(4)] + [f"ds_read_b32 v{RS+2*hd}, v4 offset:{hd*112}" for hd in range(2)]
            TM = XF
        def rd(ks, part):
            xr = lambda rt: f"ds_read_b128 {v(XF + (ks&1)*8 + 4*rt, 4)}, v{VXS[ks & 3]} offset:{XBUF[ks >> 2] + rt*16384}"
            wr = lambda hd: [f"ds_read_b64_tr_b16 {v(WF + (ks&1)*8 + hd*4 + half*2, 2)}, v{VWR[ks//14]} offset:{(ks%14)*3584 + half*224 + hd*56}" for half in range(2)]
            for ln in ([xr(0), wr(0)[0]], [wr(0)[1], wr(1)[0]], [wr(1)[1], xr(1)])[part]: A(ln); lg.issue(ks)
        A("s_barrier"); stamp("g0")
        for part in range(3): rd(0, part)
        for ks in range(28):
            lg.wait(ks)
            if ks % 4 == 3 and ks < 27: A("s_barrier")
            if ks in (7, 15, 23): stamp(f"g{(ks+1)//8}")
            if ks == 16: A(f"buffer_load_dwordx2 {v(TAGV,2)}, v9, {R(RDBG)}, 0 offen sc1")
            for sl, (rt, hd) in enumerate(((0, 0), (0, 1), (1, 1), (1, 0))):
                x, w_, acc = v(XF + (ks&1)*8 + 4*rt, 4), v(WF + (ks&1)*8 + 4*hd, 4), v(ACC + 32*hd + 16*rt, 16)
                A(f"{MFMA} {acc}, {x if isv else w_}, {w_ if isv else x}, {'0' if ks == 0 else acc}")
                if ks + 1 < 28 and sl < 3: rd(ks + 1, sl)
                if ks >= 23 and (sl == 3 or ks == 27):
                    for _ in range(3 if ks == 27 else 2):
                        if cr: A(cr.pop(0)); lg.issue("c")
        assert not cr
        stamp("mfma_done")
        lg.wait_all()
        for n, (hd, rt) in enumerate(((0, 0), (0, 1), (1, 0), (1, 1))):
            ac, o = ACC + 32*hd + 16*rt, PK + 8*(n & 1)
            if not isv:
                for r in range(0, 16, 2): A(f"v_pk_mul_f32 {v(TM+r,2)}, {v(16+16*hd+r,2)}, {v(RS+4*rt+2,2)} op_sel_hi:[1,0]")
                for r in range(0, 16, 2): A(f"v_pk_fma_f32 {v(ac+r,2)}, {v(ac+r,2)}, {v(RS+4*rt,2)}, {v(TM+r,2)} op_sel_hi:[1,0,1]")
            else:
                for r in range(0, 16, 2): A(f"v_pk_mul_f32 {v(TM+r,2)}, {v(32+32*rt+r,2)}, {v(RS+2*hd,2)} op_sel_hi:[1,0]")
                for r in range(0, 16, 2): A(f"v_pk_fma_f32 {v(ac+r,2)}, {v(ac+r,2)}, {v(16+32*rt+r,2)}, {v(TM+r,2)}")
                A(f"s_mov_b64 exec, s[{sA}:{sA+1}]")
            for r in range(8): A(f"v_cvt_pk_bf16_f32 v{o+r}, v{ac+2*r}, v{ac+2*r+1}")
            if not isv: A(f"v_cndmask_b32 v{o+6}, v{o+6}, v7, s[{sHI}:{sHI+1}]\nv_cndmask_b32 v{o+7}, v{o+7}, v8, s[{sHI}:{sHI+1}]\nv_and_b32 v{o+3}, 0xfffefffe, v{o+3}\nv_and_b32 v{o+7}, 0xfffefffe, v{o+7}")
            else: A(f"v_and_b32 v{o+3}, -2, v{o+3}\nv_and_b32 v{o+7}, -2, v{o+7}\ns_mov_b64 exec, -1")
            for f in range(2): A(f"buffer_store_dwordx4 {v(o+4*f,4)}, v{VL}, {R(RWS)}, s{sU} offen offset:{f*1024} sc1")
            if n < 3: A(f"s_add_u32 s{sU}, s{sU}, s{sV if n == 1 else sD_}")
        stamp("kvst"); stamp_flush()
        if not isv: A("s_branch P1_DONE")
    A("P1_DONE:\ns_waitcnt vmcnt(8)")
    get_tag(TAGV, "P1_T")

def tilemax(sreg, T0, T1):
    A(f"v_max3_f32 v{T0}, v{sreg}, v{sreg+1}, v{sreg+2}\nv_max3_f32 v{T1}, v{sreg+3}, v{sreg+4}, v{sreg+5}")
    A(f"v_max3_f32 v{T0}, v{T0}, v{sreg+6}, v{sreg+7}\nv_max3_f32 v{T1}, v{T1}, v{sreg+8}, v{sreg+9}")
    A(f"v_max3_f32 v{T0}, v{T0}, v{sreg+10}, v{sreg+11}\nv_max3_f32 v{T1}, v{T1}, v{sreg+12}, v{sreg+13}")
    A(f"v_max3_f32 v{T0}, v{T0}, v{sreg+14}, v{sreg+15}")
def set_qpad(q, m, T0, T1, T2):
    A(f"v_sub_f32 v{T0}, 0, v{m}\nv_and_b32 v{T1}, 0xffff0000, v{T0}\nv_sub_f32 v{T0}, v{T0}, v{T1}")
    A(f"v_and_b32 v{T2}, 0xffff0000, v{T0}\nv_sub_f32 v{T0}, v{T0}, v{T2}\nv_lshrrev_b32 v{T0}, 16, v{T0}")
    A(f"v_lshrrev_b32 v{T1}, 16, v{T1}\nv_or_b32 v{T1}, v{T1}, v{T2}")
    A(f"v_cndmask_b32 v{q+6}, v{q+6}, v{T1}, s[{sHI}:{sHI+1}]\nv_cndmask_b32 v{q+7}, v{q+7}, v{T0}, s[{sHI}:{sHI+1}]")

NKV = env("NKV", 4)
XR, IR3 = (224, 232) if NKV == 4 else (176, 184)
VRD, VFL, VKV, VONE, VRB, VWO = [240, 241], 242, 243, 244, [246, 247], 248
VO3, VP3, VH, VP4, VG, VP5 = [10, 11], 12, [14, 15], 3, [253, 254], 242
sRO, sGC, sGST, sHFO, sFO, sRT3 = 96, 97, 98, 99, 100, 101
VRW = [249, 250, 251, 252]
def ident3():
    A("v_and_b32 v4, 31, v1\nv_lshrrev_b32 v5, 5, v1\nv_lshlrev_b32 v6, 3, v5\nv_sub_u32 v6, v4, v6")
    for p in range(2):
        for r in range(4):
            A(f"v_cmp_eq_u32 vcc, {16*p+2*r}, v6\nv_cmp_eq_u32 s[{sU}:{sU+1}], {16*p+2*r+1}, v6\nv_cndmask_b32 v{IR3+4*p+r}, 0, v{VONE}, vcc\nv_cndmask_b32 v{IR3+4*p+r}, v{IR3+4*p+r}, v{VONE+1}, s[{sU}:{sU+1}]")
def addr_setup():
    tr_lane_addr(4, 5, 128, 4)
    A(f"s_and_b32 s{sT}, s{SW}, 1\ns_lshl_b32 s{sT}, s{sT}, 5\nv_xor_b32 v4, s{sT}, v4")
    A(f"v_bfe_u32 v5, v1, 3, 1\ns_lshr_b32 s{sT}, s{SW}, 1\nv_xor_b32 v5, s{sT}, v5")
    A(f"v_lshl_add_u32 v6, v5, 6, v4\nv_xor_b32 v5, 1, v5\nv_lshl_add_u32 v7, v5, 6, v4")
    A(f"v_add_u32 v{VRD[0]}, s{sW2W}, v6\nv_add_u32 v{VRD[1]}, s{sW2W}, v7")
    A(f"v_mov_b32 v{VONE}, 0x3f80\nv_mov_b32 v{VONE+1}, 1.0")
    A(f"s_lshl_b32 s{sT}, s{sH}, 2\ns_add_u32 s{sT}, s{sT}, s{SW}\ns_lshl_b32 s{sT}, s{sT}, 16\ns_add_u32 s{sT}, s{sT}, {WS_KV}\nv_add_u32 v{VKV}, s{sT}, v{VL}")
    tr_lane_addr(VWO, 4, 64, 4); A(f"v_add_u32 v{VWO}, {RBUF}, v{VWO}\nv_add_u32 v{VRW[0]}, s{sRBW}, v{VL}")
    for t in range(1, 4):
        A(f"s_add_u32 s{sT}, s{SW}, {t}\ns_and_b32 s{sT}, s{sT}, 3\ns_mul_i32 s{sT}, s{sT}, 12288\ns_add_u32 s{sT}, s{sT}, {RBUF}\nv_add_u32 v{VRW[t]}, s{sT}, v{VL}")
    if NKV == 4: ident3()
    A("v_and_b32 v4, 31, v1\nv_lshrrev_b32 v5, 5, v1")
    A("v_mul_u32_u24 v13, 896, v4\nv_lshl_add_u32 v13, v5, 4, v13")
    A(f"s_lshl_b32 s{sB}, s{sR3}, 11\ns_add_u32 s{sB}, s{sB}, {WS_O}\nv_add_u32 v{VO3[0]}, s{sB}, v{VL}\nv_add_u32 v{VO3[1]}, 0x20000, v{VO3[0]}\ns_and_b32 s{sT}, s{sC3}, 7\ns_lshl_b32 s{sRT3}, s{sT}, 18")
    A(f"s_lshl_b32 s{sT}, s{sT}, 1\nv_add_u32 v{VP3}, s{sT}, v1\nv_and_b32 v{VP3}, 15, v{VP3}\nv_lshlrev_b32 v{VP3}, 17, v{VP3}\ns_add_u32 s{sT}, s{sB}, 2044\nv_add_u32 v{VP3}, s{sT}, v{VP3}")
    mlp_addr(RA, 4, 6)
    A(f"s_lshl_b32 s{sFO}, s{sFT}, 2\ns_add_u32 s{sFO}, s{sFO}, s{SW}\ns_mul_i32 s{sT}, s{sDT4}, {2*112*1024}\ns_lshl_b32 s{sU}, s{sFO}, 10\ns_add_u32 s{sT}, s{sT}, s{sU}\ns_add_u32 s{sGST}, s{sT}, {WS_G}")
    A(f"s_lshr_b32 s{sV}, s{SW}, 1\ns_lshl_b32 s{sT}, s{sST}, 1\ns_add_u32 s{sV}, s{sV}, s{sT}\ns_mul_i32 s{sV}, s{sV}, 7\ns_add_u32 s{sV}, s{sV}, s{sDT5}\ns_lshl_b32 s{sV}, s{sV}, 12\ns_and_b32 s{sT}, s{SW}, 1\ns_lshl_b32 s{sT}, s{sT}, 10\ns_add_u32 s{sV}, s{sV}, s{sT}\ns_add_u32 s{sHFO}, s{sV}, {WS_HF}")
    A(f"s_xor_b32 s{sT}, s{SW}, 3\ns_mul_i32 s{sT}, s{sT}, 28672\ns_add_u32 s{sT}, s{sT}, {13*2048}\nv_add_u32 v{VX3}, s{sT}, v{VL}")

class Role: pass
RA, RB = Role(), Role()
C5A = env("C5A", 12)
RA.n, RA.n4, RA.c4, RA.n5, RA.c5, RA.W, RA.slots = "A", 0, 12, 0, C5A, 128, [0, 1, 2, 3, 4, 5]
RA.VRD, RA.VH, RA.VG, RA.VP4, RA.VP5, RA.VT2, RA.T0, RA.T1 = [240, 241], 14, 253, 3, 242, [246, 247], 4, 5
RB.n, RB.n4, RB.c4, RB.n5, RB.c5, RB.W, RB.slots = "B", 12, 20, C5A, 28 - C5A, 96, [12, 6, 7, 8, 9, 10, 11]
RB.VRD, RB.VH, RB.VG, RB.VP4, RB.VP5, RB.VT2, RB.T0, RB.T1 = [0, 3], 4, 5, 8, 9, [6, 7], 12, 13
VX3 = 15
def w2_addr(r, t0, t1):
    A(f"v_lshrrev_b32 v{t0}, 3, v1\nv_bfe_u32 v{t1}, v1, 4, 1\nv_lshlrev_b32 v{t1}, 2, v{t1}\nv_and_b32 v{r.VT2[0]}, 7, v1\nv_xor_b32 v{t1}, v{r.VT2[0]}, v{t1}\nv_lshlrev_b32 v{t1}, 4, v{t1}\nv_lshl_add_u32 v{t0}, v{t0}, 12, v{t1}")
    A(f"s_mul_i32 s{sT}, s{SW}, {448*4096}\ns_lshl_b32 s{sU}, s{sST}, 7\ns_add_u32 s{sT}, s{sT}, s{sU}\nv_add_u32 v{r.VT2[0]}, s{sT}, v{t0}\nv_add_u32 v{r.VT2[1]}, {8*4096 - 1024}, v{r.VT2[0]}")
    rot4(sRO); A(f"s_lshl_b32 s{sRO}, s{sRO}, 10")
    rot5(sGC); A(f"s_lshl_b32 s{sGC}, s{sGC}, 10")
def mlp_addr(r, t0, t1, w2=True):
    if w2: w2_addr(r, t0, t1)
    A(f"s_lshl_b32 s{sT}, s{SW}, 15\ns_add_u32 s{sT}, s{sT}, {WS_HH}\ns_lshl_b32 s{sB}, s{sDT4}, 18\ns_add_u32 s{sB}, s{sB}, s{sT}\nv_add_u32 v{r.VH}, s{sB}, v{VL}")
    A(f"s_add_u32 s{sT}, s{sRO}, {r.n4*1024}\nv_lshl_add_u32 v{r.VP4}, v1, 11, s{sT}\nv_and_b32 v{r.VP4}, 0x7fff, v{r.VP4}\ns_add_u32 s{sT}, s{sB}, 2044\nv_add_u32 v{r.VP4}, s{sT}, v{r.VP4}")
    A(f"s_mul_i32 s{sT}, s{SW}, {28*1024}\ns_add_u32 s{sT}, s{sT}, {WS_G}\ns_mul_i32 s{sB}, s{sDT5}, {2*112*1024}\ns_add_u32 s{sB}, s{sB}, s{sT}")
    A(f"s_and_b32 s{sT}, s{SW}, 1\ns_lshl_b32 s{sT}, s{sT}, 8\nv_xor_b32 v{r.VG}, s{sT}, v{VL}\nv_add_u32 v{r.VG}, s{sB}, v{r.VG}")
    A(f"s_add_u32 s{sT}, s{sGC}, {r.n5*1024}\nv_min_u32 v{t0}, {r.c5 // 2 - 1}, v1\nv_lshl_add_u32 v{r.VP5}, v{t0}, 11, s{sT}\nv_subrev_u32 v{t0}, {28*1024}, v{r.VP5}\nv_min_u32 v{r.VP5}, v{r.VP5}, v{t0}\ns_add_u32 s{sT}, s{sB}, 2044\nv_add_u32 v{r.VP5}, s{sT}, v{r.VP5}")

def xid_store(lab, t):
    A(f"s_getreg_b32 s{sV}, hwreg(HW_REG_XCC_ID, 0, 4)\ns_cmp_lg_u32 s{SW}, 1\ns_cbranch_scc1 {lab}")
    A(f"s_lshr_b32 s{sT}, s{sR3}, 2\ns_lshl_b32 s{sT}, s{sT}, 4\ns_add_u32 s{sT}, s{sT}, s{sC3}\ns_lshl_b32 s{sT}, s{sT}, 4\ns_add_u32 s{sT}, s{sT}, {F4}")
    A(f"v_mov_b32 v{t}, s{sV}\nv_mov_b32 v{t+1}, s{sTAG}\nv_mov_b32 v{t+2}, s{sV}\nv_mov_b32 v{t+3}, s{sTAG+1}\nv_mov_b32 v{t+4}, 0\ns_mov_b64 exec, 1\nbuffer_store_dwordx4 {v(t,4)}, v{t+4}, {R(RWS)}, s{sT} offen sc1\ns_mov_b64 exec, -1\n{lab}:")

def p2():
    Q, O, SS, PP, KV = 16, 48, [112, 128], [144, 152], 160
    M = [112, 113, 114, 115]; K0 = 120
    T0, T1, T2, T3 = 4, 5, 6, 7
    sKN = sB
    A(f"v_mov_b32 v4, s{sTAG}\nv_mov_b32 v5, s{sTAG+1}\nv_mov_b32 v6, 0\ns_cmp_lg_u32 s{SW}, 0")
    vm.wait_all(); stamp("kvdrain")
    A(f"s_barrier\ns_cbranch_scc1 P2_NOF\ns_mov_b64 exec, 1\nbuffer_store_dwordx2 v[4:5], v6, {R(RWS)}, s{sF[0]} offen sc1\ns_mov_b64 exec, -1\nP2_NOF:"); stamp_flush()
    A("; ---- A waves, P2: attention"); A("P2_START:")
    A(f"s_mul_i32 s{sE}, s{sR3}, {32*896}\ns_lshl_b32 s{sU}, s{sC3}, 6\ns_add_u32 s{sE}, s{sE}, s{sU}")
    xl = [f"buffer_load_dwordx4 {v(XR+4*p,4)}, v13, {R(RX)}, s{sE} offen offset:{32*p}" for p in range(2)]
    if NKV == 4: A("\n".join(xl))
    A(f"s_lshl_b32 s{sV}, s{sI}, 2\ns_add_u32 s{sV}, s{sV}, s{SW}\ns_lshl_b32 s{sU}, s{sH}, 6\ns_add_u32 s{sU}, s{sU}, s{sV}\ns_lshl_b32 s{sU}, s{sU}, 11")
    A(f"s_lshr_b32 s{sT}, s{sH}, 2\ns_lshl_b32 s{sT}, s{sT}, 13\ns_add_u32 s{sT}, s{sT}, {F1}\ns_lshl_b32 s{sA}, s{SW}, 9\ns_add_u32 s{sA}, s{sA}, 2048\ns_lshl_b32 s{sC}, s{sI}, 7")
    A(f"v_and_b32 v7, 3, v1\nv_lshl_add_u32 v7, v7, 7, s{sA}\nv_bfe_u32 v8, v1, 2, 1\nv_lshl_add_u32 v7, v8, 11, v7\nv_writelane_b32 v7, s{sC}, 8")
    if env("PW1", 1): A("s_waitcnt vmcnt(0)")
    poll(7, sT, 9, 8); stamp("s1")
    def kvload(n):
        pre = []
        if n == 0: pre = [f"s_add_u32 s{sA}, s{RWS}, 4096", f"s_addc_u32 s{sA+1}, s{RWS+1}, 0"]
        elif n % 2 == 0: pre = [f"s_add_u32 s{sA}, s{sA}, 8192", f"s_addc_u32 s{sA+1}, s{sA+1}, 0"]
        return pre + [f"global_load_dwordx4 {v(KV+16*(n%NKV)+4*f,4)}, v{VKV}, s[{sA}:{sA+1}] offset:{(n % 2 - 1)*4096 + f*1024} sc1" for f in range(4)]
    def emit(lines, tag):
        for ln in lines:
            A(ln)
            if ln.startswith("global_"): vm.issue(tag)
    for f in range(2): A(f"buffer_load_dwordx4 {v(Q+4*f,4)}, v{VL}, {R(RWS)}, s{sU} offen offset:{f*1024} sc1"); vm.issue("q")
    emit(kvload(0), "kv0")
    A("s_waitcnt vmcnt(2)"); stamp("qk0")
    A(f"{MFMA} {v(O,16)}, {v(KV,4)}, {v(Q,4)}, 0\n{MFMA} {v(O,16)}, {v(KV+4,4)}, {v(Q+4,4)}, {v(O,16)}")
    emit(kvload(1), "kv1")
    A(f"ds_write_b128 v{VRW[0]}, {v(Q,4)}")
    tilemax(O, T0, T1)
    A(f"v_max_f32 v{T0}, v{T0}, v{T1}\nv_mov_b32 v{T1}, v{T0}\nv_permlane32_swap_b32 v{T0}, v{T1}\nv_max_f32 v{T0}, v{T0}, v{T1}")
    set_qpad(Q, T0, T1, T2, T3)
    A(f"ds_write_b128 v{VRW[0]}, {v(Q+4,4)} offset:1024")
    A(f"{MFMA} {v(SS[0],16)}, {v(KV,4)}, {v(Q,4)}, 0\n{MFMA} {v(SS[0],16)}, {v(KV+4,4)}, {v(Q+4,4)}, {v(SS[0],16)}")
    emit(kvload(2), "kv2")
    A("s_waitcnt lgkmcnt(0)")
    A("s_barrier")
    for t in range(1, 4): A(f"ds_read_b128 {v(Q+8*t,4)}, v{VRW[t]}\nds_read_b128 {v(Q+8*t+4,4)}, v{VRW[t]} offset:1024")
    emit(kvload(3), "kv3")
    if env("APRIO", 0): A(f"s_setprio {env('APRIO', 0)}")
    A("P2_MAIN:")
    slot = lambda idx: (idx + (idx >= 60)) & 3
    pwr = lambda t, g: f"ds_write_b128 v{VRW[t]}, {v(O+16*t+4*g,4)} offset:{(t-1)*4096 + g*1024}"
    def qk(idx, part):
        n, t = idx >> 2, slot(idx); sr = SS[idx & 1]; k = KV + 16*(n % NKV)
        return f"{MFMA} {v(sr,16)}, {v(k+4*part,4)}, {v(Q+8*t+4*part,4)}, {'0' if part == 0 else v(sr,16)}"
    def pv(idx, part):
        n, t = idx >> 2, slot(idx); k = KV + 16*(n % NKV) + 8; o = O + 16*t
        return f"{MFMA} {v(o,16)}, {v(k+4*part,4)}, {v(PP[idx&1]+4*part,4)}, {'0' if (n == 0 and part == 0) else v(o,16)}"
    NI = 64
    for idx in range(NI):
        n, t = idx >> 2, idx & 3
        if idx in (16, 32, 48): stamp(f"a{idx}")
        side = [[], [], [], []]
        if NKV > 4 and idx == 53: side = [xl[:1], [], xl[1:], []]
        if t in (1, 2) and 4 <= n + NKV - 1 < 16:
            l = kvload(n + NKV - 1); pre, ld = l[:-4], l[-4:]
            side = [pre[:1], pre[1:], ld[0:1], ld[1:2]] if t == 1 else [ld[2:3], ld[3:4], [], []]
        if idx == 62: side = [[], [pwr(1, 0)], [pwr(1, 1)], [pwr(1, 2)]]
        if idx == 63: side = [[], [pwr(2, 0), pwr(2, 1)], [], [pwr(2, 2)]]
        if idx == env("PR1", 12): side[0].append(f"ds_write_b32 v{VRW[1]}, v{VONE} offset:3072")
        if idx == env("CUTAT", 61): side[0].append(f"ds_write_b32 v{VRW[1]}, v{VONE+1} offset:3072")
        mf = [qk(idx+1, 0) if idx+1 < NI else None, pv(idx-1, 0) if idx > 0 else None,
              qk(idx+1, 1) if idx+1 < NI else None, pv(idx-1, 1) if idx > 0 else None]
        if idx == 0: mf = [None, "s_waitcnt lgkmcnt(0)\n" + mf[0], mf[2], None]
        sr, p = SS[idx & 1], PP[idx & 1]
        for q in range(4):
            if mf[q]: A(mf[q])
            emit(side[q], f"kv{n+NKV-1}")
            if idx == 0 and q == 2: vm.wait("kv0")
            if t == 2 and q == 3 and n + 1 < 16: vm.wait(f"kv{n+1}")
            for j in range(4): A(f"v_exp_f32 v{sr+4*q+j}, v{sr+4*q+j}")
            if q > 0:
                for j in range(2): A(f"v_cvt_pk_bf16_f32 v{p+2*(q-1)+j}, v{sr+4*(q-1)+2*j}, v{sr+4*(q-1)+2*j+1}")
        for j in range(2): A(f"v_cvt_pk_bf16_f32 v{p+6+j}, v{sr+12+2*j}, v{sr+12+2*j+1}")
    A("P2_TAIL:"); A(pv(NI-1, 0)); A(pv(NI-1, 1)); stamp("aend")
    for g in range(3): A(pwr(3, g))
    A(f"s_mov_b32 s{sT}, {fl(2.0**30)}")
    A(f"v_cmp_nlt_f32 s[{sA}:{sA+1}], v{O+60}, s{sT}\nv_cmp_nlt_f32 s[{sC}:{sC+1}], v{O+28}, s{sT}\ns_or_b32 s{sU}, s{sA+1}, s{sC+1}")
    A(f"v_cmp_nlt_f32 s[{sA}:{sA+1}], v{O+44}, s{sT}\nv_cmp_nlt_f32 s[{sC}:{sC+1}], v{O+12}, s{sT}\ns_or_b32 s{sU}, s{sU}, s{sA+1}\ns_or_b32 s{sU}, s{sU}, s{sC+1}")
    A(f"s_cselect_b32 s{sU}, 1.0, 0\nv_mov_b32 v{T0}, s{sU}")
    for t in range(4): A(f"v_cndmask_b32 v{O+16*t+13}, v{O+16*t+13}, v{T0}, s[{sHI}:{sHI+1}]")
    for t in range(1, 4): A(f"ds_write_b128 v{VRW[t]}, {v(O+16*t+12,4)} offset:{(t-1)*4096 + 3*1024}")
    A(f"s_lshl_b32 s{sD_}, s{sI}, 2\ns_add_u32 s{sD_}, s{sD_}, s{SW}\ns_lshl_b32 s{sV}, s{sH}, 6\ns_add_u32 s{sV}, s{sV}, s{sD_}\ns_lshl_b32 s{sV}, s{sV}, 11\ns_add_u32 s{sV}, s{sV}, {WS_O}")
    A("s_waitcnt lgkmcnt(0)\ns_barrier")
    for g in (3, 0, 1, 2):
        for t in range(1, 4): A(f"ds_read_b128 {v(O+16*t+4*g,4)}, v{VRW[0]} offset:{(t-1)*4096 + g*1024}")
    def red(g):
        for r in (4*g, 4*g+2):
            A(f"v_pk_add_f32 {v(O+r,2)}, {v(O+r,2)}, {v(O+16+r,2)}\nv_pk_add_f32 {v(O+32+r,2)}, {v(O+32+r,2)}, {v(O+48+r,2)}")
        for r in (4*g, 4*g+2): A(f"v_pk_add_f32 {v(O+r,2)}, {v(O+r,2)}, {v(O+32+r,2)}")
    A("s_waitcnt lgkmcnt(9)"); red(3)
    A(f"v_readlane_b32 s{sT}, v{O+13}, 32\nv_mov_b32 v{T0}, v{O+12}\nv_mov_b32 v{T2}, v{O+12}\nv_permlane32_swap_b32 v{T0}, v{T2}\nv_rcp_f32 v{T2}, v{T2}")
    A(f"s_cmp_lg_u32 s{sT}, s{sRETRY}\ns_cbranch_scc1 P2_FALL\nP2_FIN:")
    for k, g in enumerate((0, 1, 2)):
        A(f"s_waitcnt lgkmcnt({6 - 3*k})"); red(g)
    for r in range(0, 16, 2): A(f"v_pk_mul_f32 {v(O+r,2)}, {v(O+r,2)}, {v(T2,2)} op_sel_hi:[1,0]")
    for r in range(8): A(f"v_cvt_pk_bf16_f32 v{O+16+r}, v{O+2*r}, v{O+2*r+1}")
    A(f"v_cndmask_b32 v{O+22}, v{O+22}, 0, s[{sHI}:{sHI+1}]\nv_cndmask_b32 v{O+23}, v{O+23}, 0, s[{sHI}:{sHI+1}]")
    A(f"s_mov_b32 s{sT}, 0xfffeffff\nv_and_or_b32 v{O+19}, v{O+19}, s{sT}, 1\nv_and_or_b32 v{O+23}, v{O+23}, s{sT}, 1")
    for f in range(2): A(f"buffer_store_dwordx4 {v(O+16+4*f,4)}, v{VL}, {R(RWS)}, s{sV} offen offset:{f*1024} sc1")
    stamp("ost")
    if STAMP and env("ACK", 0): A("s_waitcnt vmcnt(0)"); stamp("oack")
    stamp_flush()
    A("s_barrier")
    def fallback():
        A("; ---- softmax fallback: true row maxima over all keys, then the pass again")
        A(f"P2_FALL:\ns_cmp_lg_u32 s{sRETRY}, 0\ns_cbranch_scc1 P2_FIN")
        A(f"s_mov_b32 s{sRETRY}, -1\ns_waitcnt vmcnt(0) lgkmcnt(0)")
        for t in range(4):
            A(f"v_cndmask_b32 v{Q+8*t+6}, v{Q+8*t+6}, 0, s[{sHI}:{sHI+1}]\nv_cndmask_b32 v{Q+8*t+7}, v{Q+8*t+7}, 0, s[{sHI}:{sHI+1}]\nv_mov_b32 v{M[t]}, 0xff800000")
        A(f"s_mov_b32 s{sU}, 0\nP2_MAXLOOP:")
        for f in range(2): A(f"buffer_load_dwordx4 {v(K0+4*f,4)}, v{VKV}, {R(RWS)}, s{sU} offen offset:{f*1024} sc1")
        A("s_waitcnt vmcnt(0)")
        for t in range(4):
            A(f"{MFMA} {v(O+16*t,16)}, {v(K0,4)}, {v(Q+8*t,4)}, 0\n{MFMA} {v(O+16*t,16)}, {v(K0+4,4)}, {v(Q+8*t+4,4)}, {v(O+16*t,16)}")
        for t in range(4):
            tilemax(O+16*t, T0, T1); A(f"v_max3_f32 v{M[t]}, v{M[t]}, v{T0}, v{T1}")
        A(f"s_add_u32 s{sU}, s{sU}, 4096\ns_cmp_lt_u32 s{sU}, {16*4096}\ns_cbranch_scc1 P2_MAXLOOP")
        A(f"s_barrier\nv_and_b32 v{T3}, 31, v1\nv_lshlrev_b32 v{T3}, 4, v{T3}")
        for t in range(4):
            A(f"v_mov_b32 v{T2}, v{M[t]}\nv_permlane32_swap_b32 v{M[t]}, v{T2}\nv_max_f32 v{M[t]}, v{M[t]}, v{T2}")
            A(f"s_add_u32 s{sT}, s{SW}, {t}\ns_and_b32 s{sT}, s{sT}, 3\ns_lshl_b32 s{sT}, s{sT}, 9\ns_add_u32 s{sT}, s{sT}, {RBUF}\ns_lshl_b32 s{sU}, s{SW}, 2\ns_add_u32 s{sU}, s{sU}, s{sT}")
            A(f"v_add_u32 v{K0+t}, s{sT}, v{T3}\nv_add_u32 v{T2}, s{sU}, v{T3}\nds_write_b32 v{T2}, v{M[t]}")
        A("s_waitcnt lgkmcnt(0)\ns_barrier")
        for t in range(4): A(f"ds_read_b128 {v(O+4*t,4)}, v{K0+t}")
        for n in range(4):
            for ln in kvload(n): A(ln)
        A("s_waitcnt vmcnt(0) lgkmcnt(0)\ns_barrier")
        for t in range(4):
            A(f"v_max3_f32 v{M[t]}, v{O+4*t}, v{O+4*t+1}, v{O+4*t+2}\nv_max_f32 v{M[t]}, v{M[t]}, v{O+4*t+3}")
            set_qpad(Q+8*t, M[t], T0, T1, T2)
        A(qk(0, 0)); A(qk(0, 1))
        A("s_branch P2_MAIN")
    return fallback

def p3():
    A("; ---- A waves, P3: output projection + residual + LayerNorms")
    EP = env("EP", 0)
    D1, D2, TF = 96, 112, 80 if EP else 176
    ofr = (lambda ks: 16 + 4*(ks & 15)) if EP else (lambda ks: 16 + 4*ks if ks < 20 else 128 + 4*(ks - 20))
    T0, T1, T2, T3 = 8, 9, 4, 5
    if NKV > 4: ident3(); A("s_waitcnt vmcnt(2)")
    A(f"{MFMA} {v(D1,16)}, {v(XR,4)}, {v(IR3,4)}, 0\n{MFMA} {v(D2,16)}, {v(IR3,4)}, {v(XR,4)}, 0")
    A(f"{MFMA} {v(D1,16)}, {v(XR+4,4)}, {v(IR3+4,4)}, {v(D1,16)}\n{MFMA} {v(D2,16)}, {v(IR3+4,4)}, {v(XR+4,4)}, {v(D2,16)}")
    for sl in range(1, 4):
        A(f"s_xor_b32 s{sU}, s{SW}, {sl}\ns_mul_i32 s{sU}, s{sU}, 12288\ns_add_u32 s{sU}, s{sU}, {RBUF}\nv_add_u32 v{VRW[sl]}, s{sU}, v{VL}")
    A(f"s_barrier\ns_cmp_lt_u32 s{sC3}, 14\ns_cbranch_scc0 P3_END")
    vm.q = []; lg.q = []
    so = Stream("SO", 8, lambda g: [(ofr(4*g+k), VO3[k >> 1], (k & 1)*1024) for k in range(4)],
                lambda g: A(f"s_add_u32 s{sT}, s{sRT3}, {g << 18}\ns_and_b32 s{sT}, s{sT}, 0x1fffff"), T0, 1, VP3, T1, None, None if env("GT3", 0) else 0)
    NPRE = env("NPRE", 4)
    if env("LOC3", 1):
        A(f"s_lshr_b32 s{sT}, s{sR3}, 2\ns_lshl_b32 s{sT}, s{sT}, 8\ns_add_u32 s{sT}, s{sT}, {F4}\nv_min_u32 v6, 13, v1\nv_lshlrev_b32 v6, 4, v6\nbuffer_load_dwordx4 {v(192,4)}, v6, {R(RWS)}, s{sT} offen sc1")
    def xchk():
        A(f"s_getreg_b32 s{sV}, hwreg(HW_REG_XCC_ID, 0, 4)\nv_xor_b32 v192, s{sV}, v192\nv_xor_b32 v193, s{sTAG}, v193\nv_xor_b32 v194, s{sV}, v194\nv_xor_b32 v195, s{sTAG+1}, v195")
        A(f"v_or3_b32 v192, v192, v193, v194\nv_or_b32 v192, v192, v195\nv_cmp_ne_u32 vcc, 0, v192\ns_or_b32 s{sE}, vcc_lo, vcc_hi")
    if env("XW", 1): A("s_waitcnt vmcnt(0)"); xchk()
    stamp("p3pre")
    for m in range(NPRE): so.issue(m)
    stamp("p3gate")
    LAG = env("LAG", 8)
    tf = lambda ks: TF + 4*(ks & 3) if ks < 32 - LAG else 192 + 4*(ks - 32 + LAG)
    def wread(ks):
        n, p = ks >> 1, ks & 1
        for half in range(2):
            A(f"ds_read_b64_tr_b16 {v(tf(ks)+2*half,2)}, v{VWO} offset:{(n>>2)*12288 + (n&3)*2048 + (16*p+8*half)*64}"); lg.issue(f"w{ks}")
    wread(0); wread(1)
    A("v_and_b32 v6, 31, v1\nv_lshlrev_b32 v6, 4, v6\nv_lshrrev_b32 v7, 5, v1\nv_mul_u32_u24 v7, 3584, v7\nv_add_u32 v6, v6, v7")
    so.check1(0); so.check2(0)
    if not env("XW", 1): xchk()
    for ks in range(32):
        lg.wait(f"w{ks}")
        if ks in (0, 16): stamp(f"p3_{ks}")
        o, wv = v(ofr(ks), 4), v(tf(ks), 4)
        A(f"{MFMA} {v(D2,16)}, {wv}, {o}, {v(D2,16)}")
        if ks + 2 < 32 - LAG: wread(ks + 2)
        if 32 - 2*LAG - 2 <= ks < 32 - LAG - 2: wread(ks + LAG + 2)
        if ks < 32 - LAG: A(f"{MFMA} {v(D1,16)}, {o}, {wv}, {v(D1,16)}")
        if ks % 4 < 2:
            for k in range(2): so.issue_part(NPRE + ks//4, 2*(ks % 4) + k)
        if ks % 4 == 2: so.check1(ks//4 + 1)
        if ks % 4 == 3: so.check2(ks//4 + 1)
    stamp("p3mm")
    G = 16
    A(f"s_lshl_b32 s{sB}, s{sR3}, 13\ns_add_u32 s{sB}, s{sB}, {WS_ST}\ns_lshl_b32 s{sT}, s{sC3}, 9\ns_add_u32 s{sT}, s{sT}, s{sB}")
    A(f"v_mov_b32 v{G+1}, s{sTAG}\nv_mov_b32 v{G+3}, s{sTAG+1}")
    A(f"v_pk_add_f32 v[20:21], {v(D2,2)}, {v(D2+2,2)}\nv_pk_mul_f32 v[22:23], {v(D2,2)}, {v(D2,2)}\nv_pk_fma_f32 v[22:23], {v(D2+2,2)}, {v(D2+2,2)}, v[22:23]")
    for r in range(4, 16, 2): A(f"v_pk_add_f32 v[20:21], v[20:21], {v(D2+r,2)}\nv_pk_fma_f32 v[22:23], {v(D2+r,2)}, {v(D2+r,2)}, v[22:23]")
    A(f"v_add_f32 v{G}, v20, v21\nv_add_f32 v{G+2}, v22, v23")
    A(f"v_mov_b32 v20, v{G}\nv_mov_b32 v22, v{G+2}\nv_permlane32_swap_b32 v{G}, v20\nv_permlane32_swap_b32 v{G+2}, v22\nv_add_f32 v{G}, v{G}, v20\nv_add_f32 v{G+2}, v{G+2}, v22")
    set_exec(0xFFFFFFFF)
    if env("LOC3", 1):
        A(f"s_cmp_lg_u32 s{sE}, 0\ns_cbranch_scc1 P3_FAR\nbuffer_store_dwordx4 {v(G,4)}, v{VL}, {R(RWS)}, s{sT} offen\nP3_FARX:\ns_mov_b64 exec, -1")
        handlers.append(lambda: A(f"P3_FAR:\nbuffer_store_dwordx4 {v(G,4)}, v{VL}, {R(RWS)}, s{sT} offen sc1\ns_branch P3_FARX"))
    else: A(f"buffer_store_dwordx4 {v(G,4)}, v{VL}, {R(RWS)}, s{sT} offen sc1\ns_mov_b64 exec, -1")
    GR = 32
    def gl():
        for k in range(7): A(f"buffer_load_dwordx4 {v(GR+4*k,4)}, v6, {R(RWS)}, s{sB} offen offset:{k*512} sc1")
    for r in range(8): A(f"v_cvt_pk_bf16_f32 v{24+r}, v{D2+2*r}, v{D2+2*r+1}")
    A(f"s_mul_i32 s{sT}, s{sR3}, 14\ns_add_u32 s{sT}, s{sT}, s{sC3}\ns_lshl_b32 s{sT}, s{sT}, 11\ns_add_u32 s{sT}, s{sT}, {WS_HF}")
    if env("S3W", 0): A("s_waitcnt vmcnt(0)")
    stamp("s3pre")
    for ks in range(32 - LAG, 32): A(f"{MFMA} {v(D1,16)}, {v(ofr(ks),4)}, {v(tf(ks),4)}, {v(D1,16)}")
    gl()
    for p in range(2): A(f"buffer_store_dwordx4 {v(24+4*p,4)}, v{VL}, {R(RWS)}, s{sT} offen offset:{p*1024} sc1")
    A("s_waitcnt vmcnt(2)")
    tagcheck([GR+4*k for k in range(7)], T1, T2, T3)
    A("s_cbranch_vccnz P3_GH\nP3_GX:")
    def gh():
        A(f"P3_GH:\ns_mov_b32 s{sTO}, 0x40000\nP3_GL:"); gl()
        A(f"s_sub_u32 s{sTO}, s{sTO}, 1\ns_waitcnt vmcnt(0)\ns_cbranch_scc1 P3_GX")
        tagcheck([GR+4*k for k in range(7)], T1, T2, T3)
        A("s_cbranch_vccnz P3_GL\ns_branch P3_GX")
    handlers.append(gh)
    vm.q = []
    stamp("s3")
    for k in range(1, 7): A(f"v_add_f32 v{GR}, v{GR}, v{GR+4*k}\nv_add_f32 v{GR+2}, v{GR+2}, v{GR+4*k+2}")
    m, q = GR, GR+2
    A(f"v_mov_b32 v{T0}, v{m}\nv_mov_b32 v{T1}, v{q}\nv_permlane32_swap_b32 v{m}, v{T0}\nv_permlane32_swap_b32 v{q}, v{T1}\nv_add_f32 v{m}, v{m}, v{T0}\nv_add_f32 v{q}, v{q}, v{T1}")
    A(f"v_mul_f32 v{m}, {fl(1.0/D)}, v{m}\nv_mul_f32 v{q}, {fl(1.0/D)}, v{q}\nv_fma_f32 v{q}, -v{m}, v{m}, v{q}\nv_max_f32 v{q}, 0, v{q}")
    A(f"v_add_f32 v{T0}, {fl(EPS)}, v{q}\nv_mul_f32 v{T0}, {fl(EPS)}, v{T0}\nv_add_f32 v{q}, v{q}, v{T0}\nv_rsq_f32 v{q}, v{q}\ns_add_u32 s{sT}, s{sRBW}, 8192\nv_mul_f32 v{m}, v{m}, v{q}")
    A(f"v_cndmask_b32 v{T0}, v{q}, v{m}, s[{sHI}:{sHI+1}]\nv_lshl_add_u32 v{T1}, v1, 2, s{sT}\nds_write_b32 v{T1}, v{T0}")
    A(f"v_lshrrev_b32 v{T2}, 5, v1\nv_lshl_add_u32 v{T2}, v{T2}, 4, s{sT}")
    for g in range(4): A(f"ds_read_b128 {v(64+4*g,4)}, v{T2} offset:{g*32}\nds_read_b128 {v(80+4*g,4)}, v{T2} offset:{128+g*32}")
    A(f"s_lshl_b32 s{sT}, s{sC3}, 17\ns_lshl_b32 s{sU}, s{sR3}, 11\ns_add_u32 s{sT}, s{sT}, s{sU}\ns_add_u32 s{sT}, s{sT}, {WS_HH}")
    for p in range(2):
        A(f"s_waitcnt lgkmcnt({4 - 4*p})")
        for r in range(8*p, 8*p+8, 2): A(f"v_pk_fma_f32 {v(D1+r,2)}, {v(D1+r,2)}, {v(64+r,2)}, {v(80+r,2)} neg_lo:[0,0,1] neg_hi:[0,0,1]")
        for r in range(4*p, 4*p+4): A(f"v_cvt_pk_bf16_f32 v{16+r}, v{D1+2*r}, v{D1+2*r+1}")
        A(f"v_or_b32 v{19+4*p}, 0x10000, v{19+4*p}")
        if p == 0: A("s_waitcnt vmcnt(0)")
        A(f"buffer_store_dwordx4 {v(16+4*p,4)}, v{VL}, {R(RWS)}, s{sT} offen offset:{p*1024} sc1")
    stamp("hhst")
    if STAMP and env("ACK", 0): A("s_waitcnt vmcnt(0)"); stamp("hhack")
    stamp_flush()
    A("P3_END:")
    preread()
    A("s_waitcnt lgkmcnt(0)\ns_barrier")
    if env("X1B", 1): A("s_barrier")
    vm.q = []; lg.q = []

ACC, RING, TMP = 16, 48, 96
def wread_step(r, m, slot, tag=None):
    for ti in range(2):
        for half in range(2):
            A(f"ds_read_b64_tr_b16 {v(r.W + 8*m + ti*4 + half*2, 2)}, v{r.VRD[ti]} offset:{slot*2048 + half*1024}")
            if tag is not None: lg.issue(tag)
def unswap(r): A(f"s_and_b32 s{sT}, s{SW}, 1\ns_lshl_b32 s{sT}, s{sT}, 5\nv_xor_b32 v{r.VRD[0]}, s{sT}, v{r.VRD[0]}\nv_xor_b32 v{r.VRD[1]}, s{sT}, v{r.VRD[1]}")
def preread():
    for n in range(RA.c4): wread_step(RA, n, n)
    unswap(RA)
def w2soff(n): A(f"s_add_u32 s{sA}, s{sGC}, {n*1024}\ns_sub_u32 s{sB}, s{sA}, {28*1024}\ns_min_u32 s{sA}, s{sA}, s{sB}\ns_lshl_b32 s{sA}, s{sA}, 6")
def w2dma(r, m):
    w2soff(r.n5 + m)
    A(f"s_add_u32 m0, s{sW2W}, {r.slots[m % len(r.slots)]*2048}")
    for j in range(2): A(f"buffer_load_dwordx4 v{r.VT2[j]}, {R(RW2)}, s{sA} offen offset:{j*1024} lds"); vm.issue(("d", m))
def w2read(r, m):
    vm.wait(("d", m)); wread_step(r, m, r.slots[m % len(r.slots)], ("r", m))

def mlp(r, VDR=None, VDW=None):
    isA = r is RA
    N, L = r.n, len(r.slots)
    BR, B2R, VO, IR, HR = 6, 10, 12, 224, 228
    G4, G5 = r.c4 // 4, r.c5 // 4
    dreg = lambda t, k: RING + (t % 3)*16 + 4*k
    def pw(q, j):
        if isA: return f"ds_write_b128 v{VRW[0]}, {v(ACC+8*q+4*j,4)} offset:{(q-1)*2048 + j*1024}"
        return f"ds_write_b128 v{VDR if q < 3 else VDW}, {v(ACC+8*q+4*j,4)} offset:{(6144 + q*2048 if q < 3 else 13*2048) + j*1024}"
    def add(d, a_, b_, pk):
        if pk:
            for k in range(0, 4, 2): A(f"v_pk_add_f32 {v(d+k,2)}, {v(a_+k,2)}, {v(b_+k,2)}")
        else:
            for k in range(4): A(f"v_add_f32 v{d+k}, v{a_+k}, v{b_+k}")
    OWN = 232
    def gather(pk, wide, mid=None):
        src = lambda j: [(VRW[q], (q-1)*2048 + j*1024) for q in range(1, 4)] + [(VRW[q], 6144 + q*2048 + j*1024) for q in range(3)] + [(VX3, j*1024)]
        base = [TMP, ACC if wide else TMP]
        def rd(j):
            for k, (va, off) in enumerate(src(j)): A(f"ds_read_b128 {v(base[j]+4*k,4)}, v{va} offset:{off}")
        def sm(j):
            b, o = base[j], OWN + 4*j
            add(b, b, b+4, pk); add(b+8, b+8, b+12, pk); add(b+16, b+16, b+20, pk); add(o, o, b+24, pk)
            add(b, b, b+8, pk); add(o, o, b+16, pk); add(o, o, b, pk)
        if wide:
            rd(0); rd(1)
            if mid: mid()
            A("s_waitcnt lgkmcnt(7)"); sm(0); A("s_waitcnt lgkmcnt(0)"); sm(1)
        else:
            for j in range(2): rd(j); A("s_waitcnt lgkmcnt(0)"); sm(j)
    def p5setup():
        A(f"v_and_b32 v6, 31, v1\nv_lshrrev_b32 v7, 5, v1\nv_mul_u32_u24 v{VO}, 896, v6\nv_lshl_add_u32 v{VO}, v7, 4, v{VO}\ns_lshr_b32 s{sA}, s{SW}, 1\ns_lshl_b32 s{sB}, s{sST}, 1\ns_add_u32 s{sA}, s{sA}, s{sB}")
        A(f"s_mul_i32 s{sE}, s{sA}, {32*896}\ns_lshl_b32 s{sB}, s{sDT5}, 7\ns_add_u32 s{sE}, s{sE}, s{sB}\ns_and_b32 s{sB}, s{SW}, 1\ns_lshl_b32 s{sB}, s{sB}, 5\ns_add_u32 s{sE}, s{sE}, s{sB}")
        A(f"s_lshl_b32 s{sA}, s{sA}, 6\nv_lshlrev_b32 v8, 1, v6\nbuffer_load_ushort v{B2R}, v8, {R(RB2)}, s{sA} offen\nv_lshlrev_b32 v7, 2, v7\nv_sub_u32 v6, v6, v7")
        for k in range(4):
            d0 = 8*(k >> 1) + 2*(k & 1)
            A(f"v_cmp_eq_u32 s[{sA}:{sA+1}], {d0}, v6\nv_cmp_eq_u32 s[{sC}:{sC+1}], {d0+1}, v6\nv_cndmask_b32 v{IR+k}, 0, v{VONE}, s[{sA}:{sA+1}]\nv_cndmask_b32 v{IR+k}, v{IR+k}, v{VONE+1}, s[{sC}:{sC+1}]")
    mk5 = lambda nm: Stream(nm + N, 2*G5, lambda g: [(dreg(2*G4 + g, k), r.VG, k*1024) for k in range(4)],
                lambda g: A(f"s_add_u32 s{sT}, s{sGC}, {(r.n5 + (g % G5)*4)*1024}\ns_sub_u32 s{sU}, s{sT}, {28*1024}\ns_min_u32 s{sT}, s{sT}, s{sU}" + (f"\ns_add_u32 s{sT}, s{sT}, {112*1024}" if g >= G5 else "")),
                r.T0, 1, r.VP5, r.T1, lambda g: (1 << 2*G5) - 1, G5)
    NP5 = min(3, G5)
    DB0 = env("DB0", 4)
    R2E, NE3 = env("R2E", 0), max(0, r.c5 - 2*L)
    A(f"; ---- P4 + P5 ({N} waves)")
    A(f"s_cmp_lg_u32 s{sACT4}, 0\ns_cbranch_scc1 P4_GO{N}\ns_cmp_ge_u32 s{sJ}, 28\ns_cbranch_scc1 MLP_END{N}")
    q0 = list(vm.q); lg.q = []
    A("s_waitcnt lgkmcnt(0)\ns_barrier")
    if not isA and env("DL", 0) == 2:
        for m in range(1, 7): w2dma(r, m)
    for m in range(L): w2read(r, m)
    lg.wait_all()
    for m in range(L, min(2*L, r.c5)): w2dma(r, m)
    if R2E and NE3:
        for m in range(L, L + NE3): w2read(r, m)
        lg.wait_all()
        for m in range(2*L, r.c5): w2dma(r, m)
    si = mk5("SI")
    if isA: p5setup()
    for g in range(G5): si.gate(g)
    si.gated = 0
    for g in range(NP5): si.issue(g)
    ER = {2: env("ER2", 2), 3: env("ER3", -1)}
    RL = env("RL", 1)
    if isA and ER[2] >= 0: A("s_barrier")
    A(f"s_branch P5_IN{N}\nP4_GO{N}:")
    vm.q = q0; lg.q = []
    sg = mk5("SG"); sg.gated = 0
    A(f"s_mov_b32 s{sV}, 0x10000")
    if isA:
        A(f"s_lshl_b32 s{sA}, s{sFO}, 5\nv_lshrrev_b32 v{r.T0}, 5, v1\nv_lshlrev_b32 v{r.T0}, 3, v{r.T0}")
        for g in range(2): A(f"buffer_load_dwordx2 {v(BR+2*g,2)}, v{r.T0}, {R(RB1)}, s{sA} offen offset:{g*16}")
        if env("ACKW", 0): A("s_waitcnt vmcnt(0)")
    sh = Stream("SH" + N, 2*G4, lambda g: [(dreg(g, k), r.VH, k*1024) for k in range(4)],
                lambda g: A(f"s_add_u32 s{sT}, s{sRO}, {(r.n4 + (g % G4)*4)*1024}\ns_and_b32 s{sT}, s{sT}, 0x7fff" + (f"\ns_bitset1_b32 s{sT}, 17" if g >= G4 else "")),
                r.T0, f"s{sV}", r.VP4, r.T1, lambda g: (1 << 2*G4) - 1, G4 if env("GT4", 2) else 0)
    if env("GT4", 2) == 2: A(f"s_cmp_lt_u32 s{sC3}, 14\ns_cselect_b32 s{sMISS}, 0, s{sMISS}")
    seq = [(sh, g) for g in range(2*G4)] + [(sg, g) for g in range(2*G5)]
    first = [0, G4, 2*G4, 2*G4 + G5, len(seq)]
    RA5 = env("RA5", 2)
    late = {2} if RA5 == 1 else ({2} | ({3} if isA else set()) if RA5 == 2 else {2, 3})
    issued = set()
    stamp("p4pre" + N)
    for g in range(3): sh.issue(g); issued.add(g)
    sh.check1(0); sh.check2(0)
    c1 = -2.0*math.sqrt(2.0/math.pi)*math.log2(math.e); c2 = c1*0.044715
    def compute(H):
        ph, hf = H >> 1, H & 1
        ns = (r.c4, r.c5)[ph]
        nm = f"p{4+ph}"
        if H == 2: A(f"P5_IN{N}:")
        if H in late: seq[first[H]][0].check1(seq[first[H]][1]); seq[first[H]][0].check2(seq[first[H]][1])
        if ph and isA:
            A(f"buffer_load_dwordx4 {v(HR,4)}, v{VL}, {R(RWS)}, s{sHFO} offen offset:{hf*2048} sc1"); vm.issue("h")
        if H == 2 and isA:
            for m in range(L, r.c5): wread_step(r, m, r.slots[m % L], ("r", m))
        stamp(f"{nm}first{hf}" + N)
        for t in range(first[H], first[H+1]):
            n0 = 4*(t - first[H])
            stamp(f"t{N}{t}")
            tail = not isA and t == first[H+1] - 1
            head = not isA and t == first[H] and H > 0 and H not in late
            order = [(k, ti) for ti in (1, 0) for k in range(4)] if (tail or head) else [(k, ti) for k in range(4) for ti in (0, 1)]
            nxt = t + 2
            can = nxt < len(seq) and nxt not in issued and not (nxt >= first[H+1] and H + 1 in late)
            for sl, (k, ti) in enumerate(order):
                n = n0 + k
                if not isA and H > 0 and (t, sl) == ((first[2] - 2, 0) if H == 1 else ((first[H] + ER[H], 0) if ER[H] >= 0 else (first[H+1] - 1, 4))): A("s_barrier")
                if H == 2: lg.wait(("r", n))
                if head and sl == 4: A("s_waitcnt lgkmcnt(0)\ns_barrier"); lg.q = []
                acc = v(ACC + 16*ti, 16); w_, d_ = v(r.W + 8*n + 4*ti, 4), v(dreg(t, k), 4)
                A(f"{MFMA} {acc}, {d_ if ph else w_}, {w_ if ph else d_}, {'0' if n == 0 else acc}")
                if head and sl < 4: A(pw(sl >> 1, sl & 1))
                if tail and sl >= 4: A(pw(2 + ((sl - 4) >> 1), sl & 1))
                if can and sl < 4: seq[nxt][0].issue_part(seq[nxt][1], sl)
                if t + 1 < len(seq) and not (t + 1 == first[H+1] and H + 1 in late):
                    if sl == 5: seq[t+1][0].check1(seq[t+1][1])
                    if sl == 6: seq[t+1][0].check2(seq[t+1][1])
                done = (ti == 0) if (tail or head) else (ti == 1)
                if H == 1 and done:
                    if n < L: w2read(r, n)
                    if not isA and DB0 <= n < DB0 + L: lg.wait(("r", n - DB0)); w2dma(r, n - DB0 + L)
                    if not isA and R2E:
                        if R2E <= n < R2E + NE3: w2read(r, n - R2E + L)
                        if R2E + 1 <= n < R2E + 1 + NE3: lg.wait(("r", n - R2E - 1 + L)); w2dma(r, n - R2E - 1 + 2*L)
                if H == 0 and not isA and done and env("DL", 0) == 2 and n % 3 == 2 and n < 18: w2dma(r, 1 + n // 3)
                if H == 2 and not isA and done:
                    if L + (NE3 if R2E else 0) <= n + 4 < 2*L: w2read(r, n + 4)
                    if not R2E and 2*L <= n + 10 < r.c5: lg.wait(("r", n + 3)); w2dma(r, n + 10)
                    if 2*L <= n + 4 < r.c5: w2read(r, n + 4)
            if can: issued.add(nxt)
        if ph and isA:
            vm.wait("h")
            A(f"{MFMA} {v(ACC,16)}, {v(IR,4)}, {v(HR,4)}, {v(ACC,16)}")
        stamp(f"{nm}mm{hf}" + N)
    def late_issue(H):
        for t in range(first[H], min(first[H] + 3, first[H+1])): seq[t][0].issue(seq[t][1]); issued.add(t)
    def partials(H):
        if (H == 1 and env("RA4", 1)) or (H > 1 and ER[H] < 0): A("s_barrier")
        for q in (2, 3, 1):
            for j in range(2): A(pw(q, j))
        if H < 2:
            for j in range(4): A(f"v_lshlrev_b32 v{TMP}, 16, v{BR+j}\nv_and_b32 v{TMP+1}, 0xffff0000, v{BR+j}\nv_add_f32 v{OWN+2*j}, v{ACC+2*j}, v{TMP}\nv_add_f32 v{OWN+2*j+1}, v{ACC+2*j+1}, v{TMP+1}")
        else:
            if H == 2: A(f"v_lshlrev_b32 v{B2R}, 16, v{B2R}")
            for k in range(8): A(f"v_add_f32 v{OWN+k}, v{ACC+k}, v{B2R}")
    def epilogue(H):
        ph, hf = H >> 1, H & 1
        A("s_waitcnt lgkmcnt(0)\ns_barrier"); lg.q = []
        stamp(f"red{4+ph}{hf}")
        LI = env("LI", 2) if H == 1 else 0
        if (H == 1 or (H == 2 and not RA5)) and LI == 0: late_issue(H + 1)
        if env("PRIO", 1): A("s_setprio 2")
        gather(H == 3, H & 1 or (H == 2 and not RA5) or (H == 0 and not env("RA4", 1)), (lambda: seq[first[2]][0].issue(0)) if H == 1 and LI == 2 else None)
        if ph == 0:
            A(f"s_mov_b32 s{sA}, {fl(c2)}\nv_mov_b32 v{TMP}, {fl(c1)}")
            E = TMP + 8
            for k in range(8): A(f"v_mul_f32 v{E+k}, v{OWN+k}, v{OWN+k}")
            for k in range(8): A(f"v_fma_f32 v{E+k}, v{E+k}, s{sA}, v{TMP}")
            for k in range(8): A(f"v_mul_f32 v{E+k}, v{E+k}, v{OWN+k}")
            for k in range(8): A(f"v_exp_f32 v{E+k}, v{E+k}")
            for k in range(8): A(f"v_add_f32 v{E+k}, 1.0, v{E+k}")
            for k in range(8): A(f"v_rcp_f32 v{E+k}, v{E+k}")
            for k in range(8): A(f"v_mul_f32 v{OWN+k}, v{OWN+k}, v{E+k}")
        for k in range(4): A(f"v_cvt_pk_bf16_f32 v{TMP+4+k}, v{OWN+2*k}, v{OWN+2*k+1}")
        if ph == 0:
            A(f"v_or_b32 v{TMP+7}, 1, v{TMP+7}\nbuffer_store_dwordx4 {v(TMP+4,4)}, v{VL}, {R(RWS)}, s{sGST} offen sc1\ns_add_u32 s{sGST}, s{sGST}, {112*1024}")
        else:
            A(f"v_permlane32_swap_b32 v{TMP+4}, v{TMP+6}\nv_permlane32_swap_b32 v{TMP+5}, v{TMP+7}\nbuffer_store_dwordx4 {v(TMP+4,4)}, v{VO}, {R(ROUT)}, s{sE} offen offset:{hf*64}" + [os.environ.get("OF0", " sc1"), os.environ.get("OF1", "")][hf])
        stamp(("gst", "outst")[ph] + str(hf))
        if (H == 1 or (H == 2 and not RA5)) and LI == 1: late_issue(H + 1)
        if H == 1 and LI == 2:
            for t in range(first[2], first[2] + NP5):
                if t > first[2]: seq[t][0].issue(seq[t][1])
                issued.add(t)
        if H in (1, 2) and ER[H+1] >= 0: A("s_barrier")
        stamp_flush()
    if isA:
        if env("PRIO", 1): A("s_setprio 2")
        compute(0); partials(0); stamp_flush()
        RA4 = env("RA4", 1)
        if not RA4: epilogue(0); A("s_barrier")
        elif env("PRIO", 1): A("s_setprio 0")
        compute(1)
        if env("DA", 1) == 1:
            lg.wait_all()
            for m in range(L, r.c5): w2dma(r, m)
        if RA4: epilogue(0)
        A(f"s_or_b32 s{sT}, s2, s{SW}\ns_cbranch_scc1 DBG_X\nv_mov_b32 v{TMP+8}, 0\nv_mov_b32 v{TMP+9}, 0\ns_mov_b64 exec, 1\nbuffer_store_dwordx2 {v(TMP+8,2)}, v{TMP+8}, {R(RDBG)}, 0 offen sc1\ns_mov_b64 exec, -1\nDBG_X:")
        partials(1); p5setup()
        if env("LI", 2) == 3: late_issue(2)
        if env("DA", 1) == 0:
            for m in range(L, r.c5): w2dma(r, m)
        epilogue(1)
        compute(2)
        if RA5:
            if RA5 == 2: late_issue(3)
            partials(2); stamp_flush()
            if env("PRIO", 1): A("s_setprio 0")
            compute(3); epilogue(2); partials(3); epilogue(3)
        else:
            partials(2); epilogue(2); compute(3); partials(3); epilogue(3)
    else:
        if env("PRIO", 1): A("s_setprio 1")
        for H in range(4):
            compute(H)
            if H == 3 or H + 1 in late:
                for q in range(2):
                    for j in range(2): A(pw(q, j))
                if H == 2: late_issue(H + 1)
                A("s_waitcnt lgkmcnt(0)\ns_barrier"); lg.q = []
                if H == 1:
                    if env("G2", 0):
                        sg.gated = G5; A(f"s_mov_b32 s{sMISS}, {(1 << 2*G5) - 1}")
                    late_issue(H + 1); sg.gated = 0
            stamp_flush()
    A(f"MLP_END{N}:")

def finish():
    A("K_FIN:")
    if os.environ.get("DIAGAT"):
        A(f"DSP:\ns_memrealtime s[{sA}:{sA+1}]\ns_waitcnt lgkmcnt(0)\ns_sub_u32 s{sA}, s{sA}, s72\ns_cmp_lt_u32 s{sA}, 4000\ns_cbranch_scc1 DSP")
    if STAMP:
        A("s_waitcnt vmcnt(0)"); stamp("end"); A(f"s_memrealtime s[{sA}:{sA+1}]"); stamp_flush()
        A(f"v_writelane_b32 v{VST}, s72, 62\nv_writelane_b32 v{VST}, s{sA}, 63")
        A(f"s_lshl_b32 s{sT}, s2, 3\ns_add_u32 s{sT}, s{sT}, s{sW8}\ns_lshl_b32 s{sT}, s{sT}, 8\ns_add_u32 s{sT}, s{sT}, {WS_STAMP}\nv_lshlrev_b32 v4, 2, v1\nbuffer_store_dword v{VST}, v4, {R(RWS)}, s{sT} offen")
    A("K_END:\ns_endpgm")

def bprog():
    NT = env("NT", 0); nt = " nt" if NT else ""
    nt1 = " nt" if env("NT1", 0) else ""
    VXD = [16, 17, 18, 19]; VXE = [20, 21]; VWD = list(range(22, 29))
    sWO, sXO, sM, sWM = sA, sB, sC, sD_
    sXP, sWP = [sW1, sW1S, sW1E], [sW2, sW2S, sW2E]
    A("; ---- B waves, P1: LDS-DMA of x and wqkv, statistics for the A waves"); A("B_P1:"); vm.q = []; lg.q = []
    p1_common()
    A(f"s_mul_i32 s{sXO}, s{sE}, {32*896}\ns_lshl_b32 s{sWM}, s{SW}, 10")
    A("v_lshrrev_b32 v4, 3, v1\nv_mul_u32_u24 v6, 896, v4\nv_lshrrev_b32 v4, 4, v1\nv_and_b32 v5, 7, v1\nv_xor_b32 v5, v5, v4")
    for j in range(4): A(f"v_xor_b32 v7, {4*(j&1)}, v5\nv_lshl_add_u32 v7, v7, 4, v6\nv_add_u32 v{VXD[j]}, {j*8*896 - j*1024}, v7")
    A(f"s_lshr_b32 s{sT}, s{sJ}, 2\ns_and_b32 s{sU}, s{sJ}, 3\ns_add_u32 s{sT}, s{sT}, s{sU}\ns_mul_i32 s{sU}, s{sT}, 11\ns_lshr_b32 s{sU}, s{sU}, 5\ns_mul_i32 s{sU}, s{sU}, 3\ns_sub_u32 s{sT}, s{sT}, s{sU}")
    if not env("P1ROT", 1): A(f"s_mov_b32 s{sT}, 0")
    for p in range(3):
        A(f"s_lshl_b32 s{sU}, s{sT}, 8\ns_add_u32 s{sXP[p]}, s{sXO}, s{sU}\ns_mul_i32 s{sU}, s{sT}, {128*2688}\ns_add_u32 s{sWP[p]}, s{sWO}, s{sU}")
        if p < 2: A(f"s_add_u32 s{sT}, s{sT}, 1\ns_cmp_eq_u32 s{sT}, 3\ns_cselect_b32 s{sT}, 0, s{sT}")
    def xpiece(p):
        A(f"s_add_u32 m0, s{sM}, {XBUF[p]}\ns_add_u32 s{sV}, s{sXP[p >> 1] if p < 6 else sXO}, {(p & 1)*128 if p < 6 else 768}")
        for j in range(4): A(f"buffer_load_dwordx4 v{VXD[j]}, {R(RX)}, s{sV} offen offset:{j*1024} lds"); vm.issue(f"x{p}")
    def wdma(j):
        g = j // 7
        if g == 3 and j == 21: A(f"s_add_u32 s{sT}, s{sWO}, {3*128*2688}")
        A(f"s_add_u32 m0, s{sWM}, {j*4096}\nbuffer_load_dwordx4 v{VWD[j%7]}, {R(RWQ)}, s{sWP[g] if g < 3 else sT} offen{nt1} lds"); vm.issue(("w", j))
    A("s_waitcnt lgkmcnt(0)")
    xpiece(0)
    for j in range(7):
        A(f"v_add_u32 v4, {256*j}, v0\nv_mul_u32_u24 v5, 4682, v4\nv_lshrrev_b32 v5, 16, v5\nv_mul_u32_u24 v6, 14, v5\nv_sub_u32 v4, v4, v6")
        A(f"v_and_b32 v6, 0xf8, v5\nv_and_b32 v7, 1, v5\nv_lshl_add_u32 v6, v7, 2, v6\nv_bfe_u32 v7, v5, 1, 2\nv_add_u32 v6, v6, v7\nv_mul_u32_u24 v6, 2688, v6\nv_lshl_add_u32 v{VWD[j]}, v4, 4, v6")
        wdma(j)
        if j == 3: xpiece(1)
    xpiece(2)
    prologue2()
    A("v_and_b32 v10, 31, v1\nv_lshlrev_b32 v10, 4, v10\nv_min_u32 v5, 55, v1\nv_lshlrev_b32 v5, 4, v5\nv_add_u32 v6, 10752, v5\nv_add_u32 v7, 21504, v5\nv_add_u32 v8, 32256, v5\nv_mov_b32 v9, 0")
    def gload():
        A(f"buffer_load_dwordx4 v[32:35], v10, {R(RWS)}, s{sU} offen sc1")
        for kq in range(4): A(f"buffer_load_dwordx4 {v(36+4*kq,4)}, v{5+kq}, {R(RWS)}, s7 offen sc1")
    def gpre():
        A(f"s_waitcnt lgkmcnt(0)\ns_lshl_b32 s{sU}, s{sE}, 9\ns_add_u32 s{sU}, s{sU}, {WS_RST}\ns_lshl_b32 s7, s{sWO}, 2\ns_add_u32 s7, s7, {WS_CSG}")
        A(f"buffer_load_dwordx2 v[30:31], v9, {R(RDBG)}, 0 offen sc1"); gload()
        for _ in range(6): vm.issue("g")
    WU = [(0, 4), (4, 7), (7, 11), (11, 14), (14, 18), (18, 21), (21, 24)]
    P1A = env("P1A", 4)
    for j in range(7, 7 + P1A): wdma(j)
    GS = env("GS", 0)
    for b in range(6 - GS):
        vm.wait(("w", WU[b][1] - 1)); A("s_barrier")
        if b == 0:
            for j in range(7 + P1A, 11): wdma(j)
        if GS and b == 3: gpre()
        if b + 3 < 7:
            xpiece(b + 3)
            for j in range(*WU[b + 3]): wdma(j)
        if not GS and b == env("GB", 4): gpre()
        if b == 4: wdma(24)
    A("s_setprio 2"); vm.wait("g")
    get_tag(30, "B_T")
    A(f"s_mov_b32 s{sTO}, 0x40000\ns_branch B_GC\nB_GL:"); gload()
    A(f"s_sub_u32 s{sTO}, s{sTO}, 1\ns_waitcnt vmcnt(0)\ns_cbranch_scc1 B_GX\nB_GC:")
    tagcheck([32, 36, 40, 44, 48], 11, 12, 13)
    A("s_cbranch_vccnz B_GL\nB_GX:")
    if GS: A("s_barrier")
    QS = DH ** -0.5 * math.log2(math.e)
    A("v_add_f32 v36, v36, v40\nv_add_f32 v44, v44, v48\nv_add_f32 v38, v38, v42\nv_add_f32 v46, v46, v50\nv_add_f32 v36, v36, v44\nv_add_f32 v37, v38, v46")
    A(f"s_cmp_eq_u32 s{sSEC}, 0\ns_cselect_b32 s{sV}, {fl(QS)}, 1.0\nv_cndmask_b32 v6, v34, v32, s[{sHI}:{sHI+1}]\nv_mul_f32 v6, s{sV}, v6")
    A(f"v_lshl_add_u32 v4, v1, 3, s{sWM}\nds_write_b64 v4, v[36:37]\nv_lshl_add_u32 v4, v1, 2, s{sWM}\nds_write_b32 v4, v6 offset:512")
    A("s_setprio 0\ns_waitcnt vmcnt(0) lgkmcnt(0)\ns_barrier\ns_branch B_P2")

def bprog2():
    NT = env("NT", 0); nt = " nt" if NT else ""
    A("; ---- B waves: weight prefetch during attention, then their share of P4/P5"); A("B_P2:"); vm.q = []
    if STAMP: A("v_mov_b32 v15, -1\nB_P2S:"); st["v"] = 15
    roles(touch=False)
    r = RB
    WOR, W2T = 16, 48
    VT1, VTO, VDW, VDR = [4, 5], [8, 9], 10, 11
    w2_addr(r, 12, 13)
    A(f"v_lshrrev_b32 v12, 3, v1\nv_mul_u32_u24 v12, 3584, v12\nv_add_u32 v{VT1[0]}, v12, v13\nv_add_u32 v{VT1[1]}, {8*3584 - 1024}, v{VT1[0]}")
    A(f"v_lshrrev_b32 v12, 2, v1\nv_mul_u32_u24 v12, 896, v12\nv_and_b32 v13, 3, v1\nv_lshl_add_u32 v{VTO[0]}, v13, 4, v12\nv_add_u32 v{VTO[1]}, {16*896}, v{VTO[0]}")
    A(f"v_add_u32 v{VDW}, s{sW2W}, v{VL}\nv_add_u32 v{VDR}, s{sRBW}, v{VL}")
    tr_lane_addr(12, 13, 128, 4)
    A(f"s_and_b32 s{sT}, s{SW}, 1\ns_lshl_b32 s{sT}, s{sT}, 5\nv_xor_b32 v12, s{sT}, v12\nv_add_u32 v12, s{sW2W}, v12\nv_bfe_u32 v13, v1, 3, 1\ns_lshr_b32 s{sT}, s{SW}, 1\nv_xor_b32 v13, s{sT}, v13")
    A(f"v_lshl_add_u32 v{r.VRD[0]}, v13, 6, v12\nv_xor_b32 v13, 1, v13\nv_lshl_add_u32 v{r.VRD[1]}, v13, 6, v12")
    A(f"s_mul_i32 s{sW1S}, s{SW}, {512*3584}\ns_lshl_b32 s{sT}, s{sFT}, 7\ns_add_u32 s{sW1S}, s{sW1S}, s{sT}\ns_add_u32 s{sW1E}, s{sW1S}, {512*3584}")
    A(f"s_lshr_b32 s{sT}, s{sRO}, 10\ns_add_u32 s{sT}, s{sT}, {r.n4}\ns_and_b32 s{sT}, s{sT}, 31\ns_mul_i32 s{sT}, s{sT}, {16*3584}\ns_add_u32 s{sW1}, s{sW1S}, s{sT}")
    TH = [env("BTH", 2)]
    A(f"s_and_b32 s{sT}, s{sC3}, 7\ns_lshl_b32 s{sT}, s{sT}, 1\ns_lshl_b32 s{sD_}, s{SW}, 2\ns_add_u32 s{sD_}, s{sD_}, s{sT}\ns_min_u32 s{sC}, s{sC3}, 13\ns_lshl_b32 s{sC}, s{sC}, 6")
    A(f"s_cmp_ge_u32 s{sJ}, 24\ns_cbranch_scc1 B_NOKV\ns_barrier\nB_NOKV:")
    A(f"s_add_u32 s{sT}, s{SW}, 1\ns_and_b32 s{sT}, s{sT}, 3\ns_mul_i32 s{sT}, s{sT}, 12288\ns_add_u32 s{sT}, s{sT}, {RBUF + 3072}\nv_add_u32 v14, s{sT}, v{VL}")
    A(f"v_mov_b32 v12, 0\nds_write_b32 v14, v12\ns_waitcnt lgkmcnt(0)")
    if env("WARMH", 0):
        A("s_mov_b64 exec, 0")
        for q in range(3): A(f"s_cmp_eq_u32 s{SW}, {q}\ns_cbranch_scc1 WQ{q}")
        A("s_branch WQ3\nWH_RET:\ns_mov_b64 exec, -1")
    vm.q = []
    NPQ = env("NPQ", 0)
    if NPQ: TH[0] = env("BTH0", 4)
    sPOS = sE
    todo = []
    def throttle():
        A(f"s_waitcnt vmcnt({TH[0]})"); vm.q = vm.q[-TH[0]:]
        while todo and ("s", todo[0]) not in vm.q:
            m = todo.pop(0); wread_step(r, m, m % 14)
    def rawitem(m):
        w2soff(m)
        for j in range(2): A(f"buffer_load_dwordx4 {v(W2T+8*m+4*j,4)}, v{r.VT2[j]}, {R(RW2)}, s{sA} offen offset:{j*1024}{' nt' if env('NTR', 0) else ''}")
    for k in range(32):
        if k == NPQ:
            stamp("b_pre")
            A("s_barrier")
            stamp("b_go"); TH[0] = env("BTH0", env("BTH", 3))
            A(f"s_cmp_ge_u32 s{sJ}, 24\ns_cbranch_scc1 B_NOFP\ns_setprio 3")
            xid_store("B_NOX", 248)
            A(f"s_cmp_lg_u32 s{SW}, 0\ns_cbranch_scc1 B_NOFP\nv_mov_b32 v248, s{sTAG}\nv_mov_b32 v249, s{sTAG+1}\ns_mov_b64 exec, 1\nbuffer_store_dwordx2 v[248:249], v12, {R(RWS)}, s{sF[1]} offen sc1\ns_mov_b64 exec, -1\nB_NOFP:\ns_setprio 0")
            A(f"buffer_load_dwordx2 v[{W2T}:{W2T+1}], v12, {R(RDBG)}, 0 offen sc1"); vm.issue("tag")
        if env("IDL", 1) and k in (0, 13, 15, 17, 19, 20): A(f"s_cmp_eq_u32 s{sACT4}, 0\ns_cbranch_scc1 B_I{k}")
        slot = k % 14 if k < 20 else (k - 20 + 6) % 12
        if k == 20: A(f"s_add_u32 s{sW1}, s{sW1}, {6*16*3584}\ns_cmp_ge_u32 s{sW1}, s{sW1E}\ns_cselect_b32 s{sT}, {512*3584}, 0\ns_sub_u32 s{sW1}, s{sW1}, s{sT}")
        if k == 26: A(f"s_lshr_b32 s{sT}, s{sRO}, 10\ns_mul_i32 s{sT}, s{sT}, {16*3584}\ns_add_u32 s{sW1}, s{sW1S}, s{sT}")
        if k >= 14:
            assert not [m for m in todo if m % 14 == slot]
            A("s_waitcnt lgkmcnt(0)")
        A(f"s_add_u32 m0, s{sW2W}, {slot*2048}")
        for j in range(2): A(f"buffer_load_dwordx4 v{VT1[j]}, {R(RW1)}, s{sW1} offen offset:{j*1024}{' nt' if k < env('NTK', 0) else ''} lds"); vm.issue(("s", k))
        if k < 20: todo.append(k)
        A(f"s_add_u32 s{sW1}, s{sW1}, {16*3584}\ns_cmp_eq_u32 s{sW1}, s{sW1E}\ns_cselect_b32 s{sW1}, s{sW1S}, s{sW1}")
        throttle()
        if env("IDL", 1) and k in (12, 14, 16, 18, 19, 31):
            k0 = {12: 0, 14: 13, 16: 15, 18: 17, 19: 19, 31: 20}[k]
            def idle(k0=k0):
                A(f"B_I{k0}:")
                if k0 == 0:
                    A(f"s_mov_b32 s{sTO}, 0x40000\nB_WF:\nds_read_b32 v13, v14\ns_sub_u32 s{sTO}, s{sTO}, 1\ns_waitcnt lgkmcnt(0)\ns_cbranch_scc1 B_WFX\ns_setprio 3\nv_cmp_ne_u32 vcc, 0, v13\ns_setprio 0\ns_cbranch_vccnz B_WFX\ns_sleep 8\ns_branch B_WF\nB_WFX:")
                A(f"s_branch B_J{k0}")
            handlers.append(idle)
            A(f"B_J{k0}:")
        if k in (12, 14, 16, 18):
            q = (k - 12) // 2
            A(f"s_add_u32 s{sT}, s{sD_}, {q}\ns_and_b32 s{sT}, s{sT}, 15\ns_mul_i32 s{sT}, s{sT}, {28*896}\ns_add_u32 s{sT}, s{sT}, s{sC}")
            for j in range(2): A(f"buffer_load_dwordx4 {v(WOR+8*q+4*j,4)}, v{VTO[j]}, {R(RWO)}, s{sT} offen"); vm.issue("wo")
            throttle()
        if k == 19:
            A(f"s_setprio 3\nv_readfirstlane_b32 s{sTAG}, v{W2T}\nv_readfirstlane_b32 s{sTAG+1}, v{W2T+1}\nv_lshlrev_b32 v12, 3, v1\ns_mul_i32 s{sV}, s{SW}, 384\ns_add_u32 s{sV}, s{sV}, {F2}")
            poll(12, sV, 48, 8); A("v_lshlrev_b32 v12, 7, v1\ns_setprio 0")
        if env("W2C", 0) and k in (14, 20):
            A(f"s_lshl_b32 s{sA}, s2, 2\ns_add_u32 s{sA}, s{sA}, s{SW}\ns_mul_i32 s{sA}, s{sA}, {56*128}")
            set_exec(((1 << 28) - 1) << (28*(k == 20))); A(f"buffer_load_dword v8, v12, {R(RW2)}, s{sA} offen\ns_mov_b64 exec, -1"); vm.issue("t")
        if k == env("CT2", 22):
            A(f"s_setprio 3\ns_getpc_b64 s[{sA}:{sA+1}]\nCODE_R2:\ns_sub_u32 s{sA}, s{sA}, CODE_R2-P2_TAIL\ns_subb_u32 s{sA+1}, s{sA+1}, 0\ns_lshl_b32 s{sT}, s{sJ}, 2\ns_add_u32 s{sT}, s{sT}, s{SW}\ns_lshl_b32 s{sT}, s{sT}, 9")
            A(f"v_lshl_add_u32 v13, v1, 7, s{sT}\nv_min_u32 v13, CODE_END-P2_TAIL-4, v13\nv_mov_b32 v9, s{sA+1}\nv_add_co_u32 v8, vcc, s{sA}, v13\nv_addc_co_u32 v9, vcc, 0, v9, vcc\ns_setprio 0")
            A("s_mov_b64 exec, 15\nglobal_load_dword v8, v[8:9], off\ns_mov_b64 exec, -1"); vm.issue("t")
        if k == env("BSW0", 7): TH[0] = env("BTH", 3)
        if k == env("BSW", 20): TH[0] = env("BTH2", 10)
        if k in (13, 31): stamp(f"b_{k}")
    assert not todo
    if env("SK5", 1): A(f"s_mov_b32 s{sPOS}, 6\ns_cmp_ge_u32 s{sJ}, 28\ns_cbranch_scc1 B_CUT")
    w2dma(r, 0)
    for m in range(6):
        A(f"ds_read_b32 v13, v14\ns_mov_b32 s{sPOS}, {m}\ns_waitcnt vmcnt({TH[0]}) lgkmcnt(0)\ns_setprio 3\nv_cmp_lt_u32 vcc, 0xffff, v13\ns_setprio 0\ns_cbranch_vccnz B_CUT")
        rawitem(m)
    A(f"s_mov_b32 s{sPOS}, 6")
    if env("W2T", 0):
        A(f"s_setprio 3\ns_lshr_b32 s{sT}, s{sGC}, 6\ns_add_u32 s{sT}, s{sT}, 96\nv_add_u32 v12, s{sT}, v1\nv_subrev_u32 v13, 448, v12\nv_min_u32 v12, v12, v13\nv_lshlrev_b32 v12, 12, v12\ns_setprio 0")
        A(f"s_mul_i32 s{sT}, s{SW}, {448*4096}\ns_lshl_b32 s{sU}, s{sST}, 7\ns_add_u32 s{sT}, s{sT}, s{sU}\nbuffer_load_dword v14, v12, {R(RW2)}, s{sT} offen")
    A("B_CUT:")
    stamp("b_done"); stamp_flush()
    if STAMP: A(f"v_writelane_b32 v15, s{sPOS}, 60")
    A(f"s_setprio 3\nv_min_u32 v12, 5, v1\nv_lshlrev_b32 v12, 12, v12\nv_add_u32 v12, {RBUF + 3*1024 + 32*16 + 4}, v12\ns_setprio 0")
    A(f"B_RED:\ns_barrier\nds_read_b32 v13, v12\ns_waitcnt lgkmcnt(0)\nv_cmp_ne_u32 vcc, 0, v13")
    A(f"s_cbranch_vccz B_OK\ns_cmp_lg_u32 s{sRETRY}, 0\ns_cbranch_scc1 B_OK\ns_mov_b32 s{sRETRY}, -1\ns_barrier\ns_barrier\ns_barrier\ns_branch B_RED\nB_OK:")
    A("s_waitcnt vmcnt(0)\ns_barrier")
    for k in range(8): A(f"ds_write_b128 v{VDR}, {v(WOR+4*k,4)} offset:{k*1024}")
    for m in range(6):
        A(f"s_cmp_gt_u32 s{sPOS}, {m}\ns_cbranch_scc1 B_SK{m}"); rawitem(m); A(f"B_SK{m}:")
    A("s_waitcnt lgkmcnt(0)\ns_barrier")
    unswap(r); mlp_addr(r, 12, 13, False)
    A("s_waitcnt vmcnt(0)")
    if not env("EP", 0): A("s_barrier")
    vm.q = []
    DL = env("DL", 0)
    if env("SK5", 1): A(f"s_cmp_ge_u32 s{sJ}, 28\ns_cbranch_scc1 B_ND")
    for m in range(6):
        for j in range(2): A(f"ds_write_b128 v{VDW}, {v(W2T+8*m+4*j,4)} offset:{m*2048 + j*1024}")
        if DL == 0: w2dma(r, m + 1)
    A("B_ND:\ns_waitcnt lgkmcnt(0)")
    if env("X1B", 1): A("s_barrier")
    if DL == 1:
        for m in range(1, 7): w2dma(r, m)
    mlp(r, VDR, VDW)
    if STAMP: A(f"v_mov_b32 v{VST}, v15"); del st["v"]
    A("s_branch K_FIN")


DOC = """;
"""
def main(out):
    prologue()
    pend0 = list(st["pend"])
    bprog()
    st["pend"] = list(pend0); p1_helper()
    st["pend"] = list(pend0); p1(); fb = p2(); p3(); vm.q = []; mlp(RA); finish()
    st["pend"] = list(pend0); bprog2(); fb()
    for i, h in enumerate(handlers):
        per = -(-len(handlers) // 4)
        if env("WARMH", 0):
            if i % per == 0: A(f"WQ{i // per}:")
            A(f"WH{i}:\ns_cbranch_execz " + (f"WH{i+1}" if (i + 1) % per and i + 1 < len(handlers) else "WH_RET"))
        h()
    A("CODE_END:")
    head = open("head.txt").read()
    nv = 256
    txt = head + f"; @launch grid=(256,1,1) block=(512,1,1) lds={LDS_TOTAL}\n" + DOC + '.amdgcn_target "amdgcn-amd-amdhsa--gfx950"\n.text\n' + kernel_header(NAME) + A.text() + '.section .rodata,"a"\n' + kernel_desc(NAME, nv, 102, 256)
    open(out, "w").write(txt)
    if STAMP: open(out + ".names", "w").write(" ".join(st["names"].keys()))

if __name__ == "__main__":
    main(sys.argv[1])
```
